```python
import torch

def _softmax(x, axis=-1):
    return torch.softmax(x, dim=axis)
def _gelu(x):
    return torch.nn.functional.gelu(x, approximate="tanh")
def _silu(x):
    return torch.nn.functional.silu(x)
def _sigmoid(x):
    return torch.sigmoid(x)
def _layernorm(x, axis=-1, eps=1e-5):
    m = x.mean(dim=axis, keepdim=True)
    v = x.var(dim=axis, keepdim=True, unbiased=False)
    return (x - m) / torch.sqrt(v + eps)
def _scatter_add(tgt, idx, src, axis=0):
    return tgt.clone().index_add_(axis, idx, src)
def _segment_sum(src, seg, n):
    out = torch.zeros((n,) + src.shape[1:], dtype=src.dtype)
    return out.index_add_(0, seg, src)
def _pad(x, pw):
    flat = tuple(v for pair in reversed(pw) for v in pair)
    return torch.nn.functional.pad(x, flat)

kernel_name = 'recurrent_scan__gqa_block_cached__mixer_s_mlp__prompt'

def setup_inputs():

    _w = (lambda a: (lambda t: t.to(torch.bfloat16) if t.is_floating_point() else t)(torch.as_tensor(a)))
    def _A_setup():
        B, Sq, D = 1, 2048, 512
        Hq, Hkv, Sk, Dh = 32, 8, 2048, 128
        assert Hq % Hkv == 0, (Hq, Hkv)
        return {
            "x": _w((lambda *s: torch.randn(*s, dtype=torch.bfloat16) * 0.05)(B, Sq, D)),
            "k_cache": _w((lambda *s: torch.randn(*s, dtype=torch.bfloat16) * 0.8)(B, Hkv, Sk, Dh)),
            "v_cache": _w((lambda *s: torch.randn(*s, dtype=torch.bfloat16) * 0.8)(B, Hkv, Sk, Dh)),
            "wq": _w((lambda *s: torch.randn(*s, dtype=torch.bfloat16) * 0.8)(D, Hq * Dh) * (D ** -0.5)),
            "wo": _w((lambda *s: torch.randn(*s, dtype=torch.bfloat16) * 0.8)(Hq * Dh, D) * ((Hq * Dh) ** -0.5)),
        }
    _A_in = _A_setup()

    def _B_setup():
        B, S, D, F = 1, 2048, 512, 1792
        return {
            "x":  _w((lambda *s: torch.randn(*s, dtype=torch.bfloat16) * 0.05)(B, S, D)),
            "w1": _w((lambda *s: torch.randn(*s, dtype=torch.bfloat16) * 3.2)(D, D) * (D ** -0.5)),
            "w2": _w((lambda *s: torch.randn(*s, dtype=torch.bfloat16) * 3.2)(D, D) * (D ** -0.5)),
            "w3": _w((lambda *s: torch.randn(*s, dtype=torch.bfloat16) * 3.2)(D, F) * (D ** -0.5)),
            "w4": _w((lambda *s: torch.randn(*s, dtype=torch.bfloat16) * 1.6)(F, D) * (F ** -0.5)),
        }
    _B_in = _B_setup()

    return {
        "A_x": _A_in["x"],
        "A_k_cache": _A_in["k_cache"],
        "A_v_cache": _A_in["v_cache"],
        "A_wq": _A_in["wq"],
        "A_wo": _A_in["wo"],
        "B_x": _B_in["x"],
        "B_w1": _B_in["w1"],
        "B_w2": _B_in["w2"],
        "B_w3": _B_in["w3"],
        "B_w4": _B_in["w4"],
    }

def reference(A_x, A_k_cache, A_v_cache, A_wq, A_wo, B_x, B_w1, B_w2, B_w3, B_w4):
    def _A_ref(x, k_cache, v_cache, wq, wo):
        B, Sq, D = x.shape
        Hq, Dh = 32, 128
        Hkv = k_cache.shape[1]
        rep = Hq // Hkv
        q = (lambda x, *d: x.permute(*d))((x @ wq).reshape(B, Sq, Hq, Dh), 0, 2, 1, 3)
        k = (lambda x, n, axis: torch.repeat_interleave(x, n, dim=axis))(k_cache, rep, axis=1)
        v = (lambda x, n, axis: torch.repeat_interleave(x, n, dim=axis))(v_cache, rep, axis=1)
        scores = torch.einsum("bhqd,bhkd->bhqk", q, k) * (Dh ** -0.5)
        p = _softmax(scores, axis=-1)
        o = torch.einsum("bhqk,bhkd->bhqd", p, v)
        return (lambda x, *d: x.permute(*d))(o, 0, 2, 1, 3).reshape(B, Sq, Hq * Dh) @ wo

    def _B_ref(x, w1, w2, w3, w4):
        B, S, D = x.shape
        h = _gelu(_layernorm(x, axis=-1) @ w1)
        c = D // 4
        g0 = _pad(h[:, :, 0*c:1*c], ((0, 0), (1, 0), (0, 0)))[:, :S, :]
        g1 = _pad(h[:, :, 1*c:2*c], ((0, 0), (0, 1), (0, 0)))[:, 1:, :]
        g2 = _pad(h[:, :, 2*c:3*c], ((0, 0), (2, 0), (0, 0)))[:, :S, :]
        g3 = _pad(h[:, :, 3*c:   ], ((0, 0), (0, 2), (0, 0)))[:, 2:, :]
        hs = torch.concatenate([g0, g1, g2, g3], axis=-1) @ w2
        x1 = x + hs
        h2 = _gelu(_layernorm(x1, axis=-1) @ w3) @ w4
        return x1 + h2

    x = A_x
    xn = _layernorm(x, axis=-1)
    s = _A_ref(xn, A_k_cache, A_v_cache, A_wq, A_wo)
    g = _silu(_B_ref(xn, B_w1, B_w2, B_w3, B_w4))
    return x + s * g
```

```python
import re

TRANS = ('v_exp_f32', 'v_log_f32', 'v_rcp_f32', 'v_rsq_f32', 'v_sqrt_f32')
_REG = re.compile(r'^(-?)(?:abs\()?([vas])(?:(\d+)|\[(\d+):(\d+)\])\)?$')


def regs_of(tok):
    tok = tok.strip()
    if tok in ('vcc', 'exec', 'm0', 'scc'):
        return [tok]
    if tok in ('vcc_lo', 'vcc_hi'):
        return ['vcc']
    if tok in ('exec_lo', 'exec_hi'):
        return ['exec']
    if tok.startswith('|') and tok.endswith('|'):
        tok = tok[1:-1]
    m = _REG.match(tok)
    if not m:
        return []
    f = m.group(2)
    if m.group(3) is not None:
        return [(f, int(m.group(3)))]
    return [(f, i) for i in range(int(m.group(4)), int(m.group(5)) + 1)]


class Ins:
    __slots__ = ('text', 'op', 'kind', 'rd', 'wr', 'tag', 'need', 'srcc', 'srcab', 'note', 'nst')

    def __init__(self, text, tag=None, need=None):
        self.text = text
        self.tag = tag
        self.need = need or []
        self.rd, self.wr, self.srcc, self.srcab = set(), set(), set(), set()
        self.nst = 1
        t = text.split(';')[0].strip()
        if t.endswith(':') or t.startswith('.') or t.startswith('@') or not t:
            self.op, self.kind, self.nst = t, 'meta', 0
            return
        parts = t.split(None, 1)
        op = self.op = parts[0]
        rest = parts[1] if len(parts) > 1 else ''
        ops, depth, cur = [], 0, ''
        for ch in rest:
            if ch == '[':
                depth += 1
            if ch == ']':
                depth -= 1
            if ch == ',' and depth == 0:
                ops.append(cur.strip())
                cur = ''
            else:
                cur += ch
        mods = ''
        if cur.strip():
            last = cur.strip().split(None, 1)
            ops.append(last[0])
            mods = last[1] if len(last) > 1 else ''
        R = [regs_of(o) for o in ops]
        rd, wr = self.rd, self.wr
        if op.startswith('v_mfma') or op.startswith('v_smfmac'):
            self.kind = 'mfma' if op.startswith('v_mfma') else 'smfma'
            wr.update(R[0])
            self.srcab.update(R[1] + R[2])
            if self.kind == 'mfma':
                self.srcc.update(R[3])
            else:
                self.srcc.update(R[0])
                self.srcab.update(R[3])
            rd.update(self.srcab | self.srcc)
        elif op.startswith('v_'):
            base = op.replace('_e32', '').replace('_e64', '')
            self.kind = 'trans' if base in TRANS else 'valu'
            wr.update(R[0])
            for r in R[1:]:
                rd.update(r)
            if base.startswith(('v_fmac', 'v_dot2c', 'v_writelane')):
                rd.update(R[0])
            if base.startswith(('v_swap', 'v_permlane')):
                rd.update(R[0])
                wr.update(R[1])
            if base.startswith('v_cmpx'):
                wr.add('exec')
            if base.startswith(('v_add_co', 'v_sub_co', 'v_addc_co')):
                wr.update(R[1])
        elif op.startswith('ds_read'):
            self.kind = 'dsr'
            wr.update(R[0])
            rd.update(R[1])
        elif op.startswith('ds_'):
            self.kind = 'dsw'
            for r in R:
                rd.update(r)
        elif op.startswith('buffer_load'):
            if re.search(r'\blds\b', mods):
                self.kind = 'dma'
                for r in R:
                    rd.update(r)
                rd.add('m0')
            else:
                self.kind = 'vld'
                wr.update(R[0])
                for r in R[1:]:
                    rd.update(r)
        elif op.startswith('buffer_'):
            self.kind = 'vst'
            for r in R:
                rd.update(r)
            if op.endswith(('x3', 'x4')):
                self.srcc.update(R[0])
        elif op == 's_waitcnt':
            self.kind = 'wait'
        elif op == 's_barrier':
            self.kind = 'bar'
        elif op == 's_nop':
            self.kind = 'nop'
            self.nst = int(ops[0], 0) + 1
        elif op.startswith(('s_load', 's_memtime', 's_memrealtime')):
            self.kind = 'smem'
            wr.update(R[0])
            for r in R[1:]:
                rd.update(r)
        elif op.startswith(('s_branch', 's_cbranch', 's_endpgm', 's_setpc', 's_sleep', 's_setprio')):
            self.kind = 'ctl'
        elif op.startswith('s_cmp') or op.startswith('s_bitcmp'):
            self.kind = 'salu'
            for r in R:
                rd.update(r)
        elif op.startswith('s_'):
            self.kind = 'salu'
            wr.update(R[0])
            for r in R[1:]:
                rd.update(r)
            if 'saveexec' in op:
                wr.add('exec')
        else:
            raise ValueError('unknown instruction: ' + text)


def isv(r):
    return isinstance(r, tuple) and r[0] in 'va'


def iss(r):
    return (isinstance(r, tuple) and r[0] == 's') or r == 'vcc'


EAGER = 10
VEC = ('valu', 'trans')
MF = ('mfma', 'smfma')
VM = ('vld', 'vst', 'dma')
LG = ('dsr', 'dsw')


def hazard(p, c):
    n = 0
    if p.kind in MF:
        if c.kind in MF:
            if p.wr & c.srcab:
                n = max(n, 8)
            if p.wr & c.srcc and p.wr != c.srcc:
                n = max(n, 6)
            if p.wr & c.wr and not (p.wr & c.srcc):
                n = max(n, 6 if p.wr != c.wr else 0)
        elif c.kind in VEC or c.kind in VM or c.kind in LG:
            if p.wr & (c.rd | c.wr):
                n = max(n, 8)
            if c.kind in VEC and p.srcc & c.wr:
                n = max(n, 3)
    elif p.kind in VEC:
        pv = {r for r in p.wr if isv(r)}
        ps = {r for r in p.wr if iss(r)}
        if c.kind in MF and pv & c.rd:
            n = max(n, 2)
        if c.kind in MF and 'exec' in p.wr:
            n = max(n, 4)
        if c.kind in VEC:
            if p.kind == 'trans' and pv & c.rd:
                n = max(n, 1)
            if (c.op.startswith('v_permlane') or 'dpp' in c.op) and pv & c.rd:
                n = max(n, 2)
            if c.op.startswith(('v_readlane', 'v_readfirstlane')) and pv & c.rd:
                n = max(n, 1)
            if ps & c.rd:
                n = max(n, 4 if c.op.startswith(('v_readlane', 'v_writelane')) else 2)
        if c.kind in VM and ps & c.rd:
            n = max(n, 5)
        if c.kind == 'salu' and ps & c.rd:
            n = max(n, 1)
    elif p.kind == 'salu':
        if 'm0' in p.wr and c.kind == 'dma':
            n = max(n, 1)
    elif p.kind == 'vst':
        if p.srcc & c.wr:
            n = max(n, 2)
    return n


class Stream:
    def __init__(self):
        self.l = []

    def __call__(self, text, tag=None, need=None):
        for line in text.strip('\n').split('\n'):
            if line.strip():
                self.l.append(Ins(line.strip(), tag, need))
        return self

    def add(self, ins):
        self.l.append(ins)

    def insert_waits(self):
        out = []
        issued = {'vm': [], 'lg': []}
        done = {'vm': 0, 'lg': 0}
        pend = {}
        tags = {}
        mark = []
        cnt = {'vm': 0, 'lg': 0}
        LIM = {'vm': 62, 'lg': 14}
        for ins in self.l:
            req = {'vm': -1, 'lg': -1}
            if ins.kind != 'meta':
                own = 'vm' if ins.kind in VM else 'lg' if ins.kind in LG else None
                for r in ins.rd | ins.wr:
                    if r in pend:
                        c, s = pend[r]
                        if c == own and r not in ins.rd:
                            continue
                        req[c] = max(req[c], s)
            for t in ins.need:
                if t == '*vm':
                    req['vm'] = cnt['vm'] - 1
                elif t == '*lg':
                    req['lg'] = cnt['lg'] - 1
                else:
                    assert t in tags, 'unknown tag ' + t
                    c, s = tags[t]
                    req[c] = max(req[c], s)
            w = {c: s for c, s in req.items() if s >= done[c]}
            if w:
                pos = len(out)
                k = pos - 1
                while k >= 0 and pos - k <= 4 and out[k].kind not in MF and out[k].kind not in ('meta', 'ctl', 'bar'):
                    k -= 1
                if k >= 0 and pos - k <= 4 and out[k].kind in MF:
                    mk = mark[k]
                    if all(mk[c] > s for c, s in w.items()):
                        pos = k + 1
                base = mark[pos - 1] if pos > 0 else {'vm': 0, 'lg': 0}
                if 'lg' in w:
                    k, nm = pos - 1, 0
                    while k >= 0 and nm < EAGER and pos - k < 60:
                        nm += out[k].kind in MF
                        k -= 1
                    if nm == EAGER and k >= 0:
                        w['lg'] = max(w['lg'], mark[k]['lg'] - 1)
                val = {c: min(base[c] - 1 - s, LIM[c]) for c, s in w.items()}
                merged = False
                for q in (pos - 1, pos):
                    if 0 <= q < len(out) and out[q].kind == 'wait' and getattr(out[q], 'note', None) is not None:
                        old = out[q].note
                        for c, v in val.items():
                            old[c] = min(old.get(c, 99), v)
                        out[q].text = wait_text(old)
                        merged = True
                        break
                if not merged:
                    wi = Ins(wait_text(val))
                    wi.note = dict(val)
                    out.insert(pos, wi)
                    mark.insert(pos, dict(base))
                for c, v in val.items():
                    done[c] = max(done[c], base[c] - v)
                for r in [r for r, (c, s) in pend.items() if s < done[c]]:
                    del pend[r]
            if ins.kind == 'wait':
                ins.note = None
                m = re.search(r'vmcnt\((\d+)\)', ins.text)
                if m:
                    done['vm'] = max(done['vm'], cnt['vm'] - int(m.group(1)))
                m = re.search(r'lgkmcnt\((\d+)\)', ins.text)
                if m:
                    done['lg'] = max(done['lg'], cnt['lg'] - int(m.group(1)))
                for r in [r for r, (c, s) in pend.items() if s < done[c]]:
                    del pend[r]
            c = 'vm' if ins.kind in VM else 'lg' if ins.kind in LG else None
            if c:
                s = cnt[c]
                cnt[c] += 1
                for r in ins.wr:
                    pend[r] = (c, s)
                if ins.tag:
                    tags[ins.tag] = (c, s)
            if ins.op == '@need':
                continue
            out.append(ins)
            mark.append(dict(cnt))
        self.l = out

    def pad_hazards(self):
        out = []
        pads = 0
        for ins in self.l:
            if ins.kind not in ('meta', 'wait', 'nop', 'bar', 'ctl'):
                dist, need = 0, 0
                for p in reversed(out):
                    if dist >= 8:
                        break
                    h = hazard(p, ins)
                    if h > dist:
                        need = max(need, h - dist)
                    dist += p.nst
                if need:
                    n = Ins('s_nop %d' % (need - 1))
                    n.note = 'pad'
                    out.append(n)
                    pads += 1
            out.append(ins)
        self.l = out
        return pads

    def fold(self):
        out, i, l = [], 0, self.l
        while i < len(l):
            ins = l[i]
            if ins.kind == 'meta' and ins.op.startswith('@rep '):
                name = ins.op.split()[1]
                bodies, cur = [], []
                i += 1
                while not (l[i].kind == 'meta' and l[i].op == '@endrep ' + name):
                    if l[i].kind == 'meta' and l[i].op.startswith('@rep ' + name + ' '):
                        bodies.append(cur)
                        cur = []
                    else:
                        cur.append(l[i])
                    i += 1
                bodies.append(cur)
                t0 = [x.text for x in bodies[0]]
                for k, b in enumerate(bodies[1:]):
                    tb = [x.text for x in b]
                    if tb != t0:
                        for a_, b_ in zip(t0, tb):
                            if a_ != b_:
                                raise AssertionError('loop %s copy %d differs: %r vs %r' % (name, k + 1, a_, b_))
                        raise AssertionError('loop %s copy %d length differs' % (name, k + 1))
                out.append(Ins('.p2align 3'))
                out.append(Ins(name + ':'))
                out += bodies[0]
                i += 1
            else:
                out.append(ins)
                i += 1
        self.l = out

    def estimate(self):
        res, sec = [], None
        t = mf = vec = 0
        t0, nm = 0, 0
        prev = None
        for ins in self.l:
            if ins.kind == 'meta':
                if ins.op.startswith('@sec '):
                    if sec:
                        res.append((sec, t - t0, nm))
                    sec, t0, nm = ins.op[5:], t, 0
                continue
            k = ins.kind
            if k in MF:
                s = max(t, mf, vec)
                mf, vec, t = s + 16, s + (8 if k == 'mfma' else 12), s + 4
                nm += 1
            elif k in VEC:
                s = max(t, vec)
                if ins.op.startswith(('v_pk_', 'v_dot2')):
                    s = max(s, mf)
                    mf = s + 4
                t = s + (8 if k == 'trans' or ins.op.startswith(('v_permlane', 'v_swap')) else 4)
            elif k in LG:
                s = max(t, vec) + (8 if prev in VEC else 0)
                t = s + 4
            elif k in VM:
                t = t + (8 if prev in VEC else 0) + 12
            elif k == 'nop':
                t += 4 * ins.nst
            else:
                t += 4
            prev = k
        if sec:
            res.append((sec, t - t0, nm))
        return res

    def text(self):
        o = []
        for ins in self.l:
            if ins.kind == 'meta':
                if ins.op.startswith('@'):
                    if ins.op.startswith('@sec '):
                        o.append('; ---- ' + ins.op[5:])
                    continue
                o.append(ins.text)
            else:
                o.append('    ' + ins.text)
        return '\n'.join(o) + '\n'


def wait_text(val):
    p = []
    if 'vm' in val:
        p.append('vmcnt(%d)' % val['vm'])
    if 'lg' in val:
        p.append('lgkmcnt(%d)' % val['lg'])
    return 's_waitcnt ' + ' '.join(p)


def vr(f, b, n=1):
    return '%s%d' % (f, b) if n == 1 else '%s[%d:%d]' % (f, b, b + n - 1)
```

```python
import math
import struct
import sys

sys.path.insert(0, 'work')
from asmgen import Ins, Stream, vr

NAME = 'recurrent_scan__gqa_block_cached__mixer_s_mlp__prompt'


def f2u(x):
    return '0x%08x' % struct.unpack('<I', struct.pack('<f', x))[0]


H_OFF = 0
X1_OFF = 0x200000
FLAG_OFF = 0x400000
SP_OFF = 0x1000000
YP_OFF = 0x2000000
PROF_OFF = 0x8000000
OOB = 0x40000000

ACT = 0
KRING, VRING = 0, 32768
WREG = 65536
WWAVE = 24576

SX, SK, SV, SWQ, SWO, SW1, SW2, SW3, SW4, SOUT, SDBG, SWS, SH, SCODE = range(4, 60, 4)
sT, sJ, sW, sTBG, sRING, sW2K = 60, 61, 62, 63, 64, 65
sOA, sOB, sKO, sVO, sCNT, sRET = 66, 67, 68, 69, 70, 71
sT0, sT1, sT2, sT3 = 72, 73, 74, 75
sC0 = 76
sPASS = 80
sST = 82

vL = 0
vTR = 1
vKA = 9
vACT = 13
vDA, vDB = 14, 18
vFLAG, vONE, vPOFF, vPRES = 22, 23, 24, 25
vT = 26
vS, vP, vNEGM = 32, 48, 64
vIDX = 80
vRES = 56
vX = 64
vACC = 128
vPROF = 126, 127
aK, aV, aONES, aL, aX1, aQ = 0, 64, 128, 132, 140, 192
aPROF = 150

CSCALE = math.log2(math.e) / math.sqrt(128.0)
K1 = 2 * 0.7978845608028654 * math.log2(math.e)
K2 = K1 * 0.044715


def srd(n):
    return 's[%d:%d]' % (n, n + 3)


def mfma(d, a, b, c=None):
    return 'v_mfma_f32_16x16x32_bf16 %s, %s, %s, %s' % (d, a, b, d if c is None else c)


class Gen:
    def __init__(self, prof=False, opts=None):
        self.s = Stream()
        self.tail = []
        self.prof = prof
        self.o = opts or {}
        self.nstamp = 0
        self.nlab = 0

    def stamp(self):
        if not self.prof:
            return
        e = self.s
        sec = [x.op[5:] for x in e.l if x.kind == 'meta' and x.op.startswith('@sec ')][-1]
        self.tail.append('; @@' + sec)
        e('s_waitcnt lgkmcnt(0)')
        e('s_memtime s[%d:%d]\ns_memrealtime s[%d:%d]\ns_waitcnt lgkmcnt(0)' % (sST, sST + 1, sST + 2, sST + 3))
        e('v_accvgpr_read_b32 v%d, a%d\nv_accvgpr_read_b32 v%d, a%d' % (vT, aPROF, vT + 1, aPROF + 1))
        e('s_nop 1\nv_writelane_b32 v%d, s%d, %d\nv_writelane_b32 v%d, s%d, %d' % (vT, sST, self.nstamp, vT + 1, sST + 2, self.nstamp))
        e('v_accvgpr_write_b32 a%d, v%d\nv_accvgpr_write_b32 a%d, v%d' % (aPROF, vT, aPROF + 1, vT + 1))
        self.nstamp += 1

    def weave(self, mf, gaps):
        for j, m in enumerate(mf):
            self.s.add(m if isinstance(m, Ins) else Ins(m))
            for g in gaps.get(j, []):
                self.s.add(g if isinstance(g, Ins) else Ins(g))

    def poll_load(self, buf):
        return Ins('buffer_load_dword v%d, v%d, %s, 0 offen sc1' % (vPRES, vPOFF, srd(buf)))

    def poll_check(self, buf, val):
        self.nlab += 1
        n = self.nlab
        self.tail.append('''L_spin%(n)d:
    s_mov_b32 s%(c)d, 0x400000
L_spin%(n)d_loop:
    buffer_load_dword v%(r)d, v%(o)d, %(b)s, 0 offen sc1
    s_waitcnt vmcnt(0)
    v_cmp_ne_u32 vcc, %(v)d, v%(r)d
    s_cbranch_vccz L_back%(n)d
    s_sub_u32 s%(c)d, s%(c)d, 1
    s_cbranch_scc0 L_spin%(n)d_loop
    s_branch L_back%(n)d''' % dict(n=n, c=sT3, r=vPRES, o=vPOFF, b=srd(buf), v=val))
        return [Ins('v_cmp_ne_u32 vcc, %d, v%d' % (val, vPRES)), Ins('s_cbranch_vccnz L_spin%d' % n), Ins('L_back%d:' % n)]

    def flag_store(self, phase, need):
        return [Ins('s_mov_b32 s%d, 0x%x' % (sT2, FLAG_OFF + phase * 131072)),
                Ins('buffer_store_dword v%d, v%d, %s, s%d offen sc1' % (vONE, vFLAG, srd(SWS), sT2), need=need)]

    def tr256(self, base_s=None, base_c=0):
        e = self.s
        e('v_lshrrev_b32 v%d, 2, v%d' % (vT, vL))
        e('v_and_b32 v%d, 7, v%d' % (vT + 1, vT))
        e('v_lshlrev_b32 v%d, 5, v%d' % (vT + 1, vT + 1))
        e('v_lshl_or_b32 v%d, v%d, 8, v%d' % (vT, vT, vT + 1))
        e('v_and_b32 v%d, 3, v%d' % (vT + 1, vL))
        e('v_lshl_or_b32 v%d, v%d, 3, v%d' % (vT, vT + 1, vT))
        if base_s is not None:
            e('v_add_u32 v%d, s%d, v%d' % (vT, base_s, vT))
        if base_c:
            e('v_add_u32 v%d, 0x%x, v%d' % (vT, base_c, vT))
        for db in range(8):
            e('v_xor_b32 v%d, 0x%x, v%d' % (vTR + db, db << 5, vT))

    def tr128_base(self, dst):
        e = self.s
        e('v_lshrrev_b32 v%d, 2, v%d' % (dst, vL))
        e('v_bfe_u32 v%d, v%d, 3, 2' % (vT + 1, vL))
        e('v_lshlrev_b32 v%d, 5, v%d' % (vT + 1, vT + 1))
        e('v_lshl_or_b32 v%d, v%d, 7, v%d' % (dst, dst, vT + 1))
        e('v_and_b32 v%d, 3, v%d' % (vT + 1, vL))
        e('v_lshl_or_b32 v%d, v%d, 3, v%d' % (dst, vT + 1, dst))

    def dma256_offsets(self, dst, stride, rowstep):
        o = []
        o.append('v_lshrrev_b32 v%d, 4, v%d' % (vT, vL))
        o.append('v_and_b32 v%d, 15, v%d' % (vT + 1, vL))
        o.append('v_lshlrev_b32 v%d, 1, v%d' % (vT + 2, vT))
        o.append('v_xor_b32 v%d, v%d, v%d' % (vT + 1, vT + 1, vT + 2))
        o.append('v_lshlrev_b32 v%d, 4, v%d' % (vT + 1, vT + 1))
        o.append('v_mul_u32_u24 v%d, 0x%x, v%d' % (vT, stride, vT))
        o.append('v_add_u32 v%d, v%d, v%d' % (dst, vT, vT + 1))
        o.append('v_xor_b32 v%d, 0x80, v%d' % (vT, dst))
        o.append('v_add_u32 v%d, 0x%x, v%d' % (dst + 1, rowstep * stride - 1024, vT))
        o.append('v_add_u32 v%d, 0x%x, v%d' % (dst + 2, 2 * (rowstep * stride - 1024), dst))
        o.append('v_add_u32 v%d, 0x%x, v%d' % (dst + 3, 3 * (rowstep * stride - 1024), vT))
        return o

    def dma128_offsets(self, dst, stride, natural_k):
        o = []
        o.append('v_and_b32 v%d, 7, v%d' % (vT + 1, vL))
        o.append('v_bfe_u32 v%d, v%d, 4, 2' % (vT + 2, vL))
        o.append('v_lshlrev_b32 v%d, 1, v%d' % (vT + 2, vT + 2))
        o.append('v_xor_b32 v%d, v%d, v%d' % (vT + 1, vT + 1, vT + 2))
        o.append('v_lshlrev_b32 v%d, 4, v%d' % (vT + 1, vT + 1))
        if natural_k:
            o.append('v_bfe_u32 v%d, v%d, 3, 2' % (vT, vL))
            o.append('v_lshrrev_b32 v%d, 5, v%d' % (vT + 2, vL))
            o.append('v_lshl_or_b32 v%d, v%d, 3, v%d' % (vT, vT + 2, vT))
            rows = [16 * (a & 1) + 4 * (a >> 1) for a in range(4)]
        else:
            o.append('v_lshrrev_b32 v%d, 3, v%d' % (vT, vL))
            rows = [8 * a for a in range(4)]
        o.append('v_mul_u32_u24 v%d, 0x%x, v%d' % (vT, stride, vT))
        o.append('v_add_u32 v%d, v%d, v%d' % (dst, vT, vT + 1))
        for a in range(1, 4):
            o.append('v_add_u32 v%d, 0x%x, v%d' % (dst + a, rows[a] * stride - 1024 * a, dst))
        return o

    def wslot(self, q, buf, voff, soff, steps, tag):
        res = []
        for g in range(2):
            for i in range(4):
                pre = []
                if i == 0:
                    if g == 1:
                        pre.append('s_add_u32 s%d, s%d, 0x%x' % (soff, soff, steps[0]))
                    pre.append('s_add_u32 m0, s%d, 0x%x' % (sRING, (q % 3) * 8192 + g * 4096))
                post = ['s_add_u32 s%d, s%d, 0x%x' % (soff, soff, steps[1])] if (g == 1 and i == 3) else []
                res.append((pre, Ins('buffer_load_dwordx4 v%d, %s, s%d offen offset:%d lds' % (voff + i, srd(buf), soff, 1024 * i), tag=tag), post))
        return res

    def emit_slot(self, slot):
        for pre, d, post in slot:
            for p in pre:
                self.s(p)
            self.s.add(d)
            for p in post:
                self.s(p)

    def lanesum(self, r):
        e = self.s
        for op in ('v_permlane32_swap_b32', 'v_permlane16_swap_b32'):
            e('v_mov_b32 v%d, v%d' % (vT + 5, r))
            e('%s v%d, v%d' % (op, vT + 5, r))
            e('v_add_f32 v%d, v%d, v%d' % (r, r, vT + 5))

    def layernorm(self, scale, first, need_write=None):
        e = self.s
        A = vS
        for k in range(64):
            e('v_lshlrev_b32 v%d, 16, v%d' % (vACC + 2 * k, vX + k))
            e('v_and_b32 v%d, 0xffff0000, v%d' % (vACC + 2 * k + 1, vX + k))
            if k >= 1:
                kk = k - 1
                a = A + 2 * (kk % 4)
                if kk >= 8:
                    e('v_pk_add_f32 %s, %s, %s' % (vr('v', a, 2), vr('v', a, 2), vr('v', vACC + 2 * kk, 2)))
                elif kk >= 4:
                    e('v_pk_add_f32 %s, %s, %s' % (vr('v', a, 2), vr('v', vACC + 2 * (kk - 4), 2), vr('v', vACC + 2 * kk, 2)))
        e('v_pk_add_f32 %s, %s, %s' % (vr('v', A + 6, 2), vr('v', A + 6, 2), vr('v', vACC + 126, 2)))
        e('v_pk_add_f32 %s, %s, %s' % (vr('v', A, 2), vr('v', A, 2), vr('v', A + 2, 2)))
        e('v_pk_add_f32 %s, %s, %s' % (vr('v', A + 4, 2), vr('v', A + 4, 2), vr('v', A + 6, 2)))
        e('v_pk_add_f32 %s, %s, %s' % (vr('v', A, 2), vr('v', A, 2), vr('v', A + 4, 2)))
        e('v_add_f32 v%d, v%d, v%d' % (A + 8, A, A + 1))
        self.lanesum(A + 8)
        e('v_mul_f32 v%d, %s, v%d' % (A + 8, f2u(1.0 / 512), A + 8))
        for k in range(65):
            if k < 64:
                d = vr('v', vACC + 2 * k, 2)
                e('v_pk_add_f32 %s, %s, %s op_sel_hi:[1,0] neg_lo:[0,1] neg_hi:[0,1]' % (d, d, vr('v', A + 8, 2)))
            if k >= 1:
                kk = k - 1
                d, a = vr('v', vACC + 2 * kk, 2), vr('v', A + 2 * (kk % 4), 2)
                e('v_pk_fma_f32 %s, %s, %s, %s' % (a, d, d, a) if kk >= 4 else 'v_pk_mul_f32 %s, %s, %s' % (a, d, d))
        e('v_pk_add_f32 %s, %s, %s' % (vr('v', A, 2), vr('v', A, 2), vr('v', A + 2, 2)))
        e('v_pk_add_f32 %s, %s, %s' % (vr('v', A + 4, 2), vr('v', A + 4, 2), vr('v', A + 6, 2)))
        e('v_pk_add_f32 %s, %s, %s' % (vr('v', A, 2), vr('v', A, 2), vr('v', A + 4, 2)))
        e('v_add_f32 v%d, v%d, v%d' % (A + 8, A, A + 1))
        self.lanesum(A + 8)
        e('v_mul_f32 v%d, %s, v%d' % (A + 8, f2u(1.0 / 512), A + 8))
        e('v_add_f32 v%d, %s, v%d' % (A + 10, f2u(1e-5), A + 8))
        e('v_rsq_f32 v%d, v%d' % (A + 10, A + 10))
        if first:
            e('v_mul_f32 v%d, v%d, v%d' % (A + 9, A + 10, A + 10))
            e('v_fmaak_f32 v%d, v%d, v%d, %s' % (A + 9, A + 9, A + 8, f2u(1e-5)))
            e('v_rsq_f32 v%d, v%d' % (A + 9, A + 9))
            e('v_mul_f32 v%d, %s, v%d' % (A + 10, f2u(scale), A + 10))
            e('v_mul_f32 v%d, %s, v%d' % (vT + 4, f2u(1.0 / scale), A + 9))
        e('v_lshl_add_u32 v%d, s%d, 14, v%d' % (vT, sW, vACT))
        for ks in range(16):
            for k in range(4 * ks, 4 * ks + 4):
                d = vr('v', vACC + 2 * k, 2)
                e('v_pk_mul_f32 %s, %s, %s op_sel_hi:[1,0]' % (d, d, vr('v', A + 10, 2)))
            for k in range(4 * ks, 4 * ks + 4):
                e('v_cvt_pk_bf16_f32 v%d, v%d, v%d' % (vX + k, vACC + 2 * k, vACC + 2 * k + 1))
            if ks == 0 and need_write:
                need_write()
            e('ds_write_b128 v%d, %s offset:%d' % (vT, vr('v', vX + 4 * ks, 4), 1024 * ks))

    def gelu_consts(self):
        self.s('s_mov_b32 s%d, %s\ns_mov_b32 s%d, %s' % (sC0, f2u(-K2), sC0 + 1, f2u(-K2)))
        self.s('v_mov_b32 v%d, %s' % (vT + 2, f2u(-K1)))

    def gelu4(self, src, dst, tmp, scale=None):
        e = self.s
        P = lambda b: vr('v', b, 2)
        if scale is not None:
            for h in (0, 2):
                e('v_pk_mul_f32 %s, %s, %s op_sel_hi:[1,0]' % (P(src + h), P(src + h), P(scale)))
        for h in (0, 2):
            e('v_pk_mul_f32 %s, %s, %s' % (P(tmp + h), P(src + h), P(src + h)))
        for h in (0, 2):
            e('v_pk_fma_f32 %s, %s, s[%d:%d], %s op_sel_hi:[1,1,0]' % (P(tmp + h), P(tmp + h), sC0, sC0 + 1, P(vT + 2)))
        for h in (0, 2):
            e('v_pk_mul_f32 %s, %s, %s' % (P(tmp + h), P(tmp + h), P(src + h)))
        for r in range(4):
            e('v_exp_f32 v%d, v%d' % (tmp + r, tmp + r))
        for h in (0, 2):
            e('v_pk_add_f32 %s, %s, 1.0 op_sel_hi:[1,0]' % (P(tmp + h), P(tmp + h)))
        for r in range(4):
            e('v_rcp_f32 v%d, v%d' % (tmp + r, tmp + r))
        for h in (0, 2):
            e('v_pk_mul_f32 %s, %s, %s' % (P(tmp + h), P(tmp + h), P(src + h)))
        for h in (0, 2):
            e('v_cvt_pk_bf16_f32 v%d, v%d, v%d' % (dst + h // 2, tmp + h, tmp + h + 1))

    def g16(self, acc):
        e = self.s
        self.tr128_base(vT)
        for nb in range(4):
            e('v_xor_b32 v%d, 0x%x, v%d' % (vKA + nb, nb << 5, vT))
        for nb in range(4):
            e('v_add_u32 v%d, 0x%x, v%d' % (vTR + 4 + nb, WREG + 8192 + 2 * WWAVE, vKA + nb))
            e('v_add_u32 v%d, 0x%x, v%d' % (vTR + nb, WREG + 8192, vKA + nb))

        def rd(n):
            ks, nb = n >> 2, n & 3
            a = vTR + nb + (4 if ks >= 8 else 0)
            off = ((ks >> 2) & 1) * WWAVE + (ks & 3) * 4096
            f = 4 * (n % 8)
            return ['ds_read_b64_tr_b16 %s, v%d offset:%d' % (vr('a', f + 2 * g, 2), a, off + 2048 * g) for g in range(2)]
        self.g16_sync()
        AH = 6
        for n in range(AH):
            for x in rd(n):
                e(x)
        mf, gaps = [], {}
        for n in range(64):
            ks, nb = n >> 2, n & 3
            mf.append(mfma(vr('v', acc + 4 * nb, 4), vr('a', 4 * (n % 8), 4), vr('v', vX + 4 * ks, 4), '0' if ks == 0 else None))
            if n + AH < 64:
                gaps[n] = rd(n + AH)
        self.weave(mf, gaps)

    def g64(self, nks, q0, tagf, dmas, extra):
        e = self.s
        WF, AF, AH = 0, 16, 3

        def wrd(n):
            ks, nb = n >> 3, n & 7
            off = ((q0 + ks) % 3) * 8192
            return [Ins('ds_read_b64_tr_b16 %s, v%d offset:%d' % (vr('a', WF + 4 * (n % 4) + 2 * g, 2), vTR + nb, off + 4096 * g),
                        need=[tagf(ks)] if (nb == 0 and g == 0) else None) for g in range(2)]

        def ard(ks, tb):
            return 'ds_read_b128 %s, v%d offset:%d' % (vr('a', AF + 16 * (ks & 1) + 4 * tb, 4), vACT, (tb * 16 + ks) * 1024)
        for tb in range(4):
            e(ard(0, tb))
        for n in range(AH):
            for x in wrd(n):
                e.add(x)
        mf, gaps = [], {}
        carry = []
        for ks in range(nks):
            slot = dmas.get(ks)
            for nb in range(8):
                n = 8 * ks + nb
                j0 = 4 * n
                for tb in range(4):
                    mf.append(mfma(vr('v', vACC + 16 * nb + 4 * tb, 4), vr('a', WF + 4 * (n % 4), 4),
                                   vr('a', AF + 16 * (ks & 1) + 4 * tb, 4), '0' if ks == 0 else None))
                g = [[], [], [], []]
                sc = list(carry)
                carry = []
                if slot:
                    sc += slot[nb][0]
                    g[2].append(slot[nb][1])
                    carry = list(slot[nb][2])
                w = wrd(n + AH) if n + AH < 8 * nks else []
                g[0] += sc[:1] + w[:1]
                g[1] += sc[1:] + w[1:]
                if ks + 1 < nks and nb in (1, 2, 3, 4):
                    g[0 if not sc else 1].append(ard(ks + 1, nb - 1))
                g[3] += extra.get((ks, nb), [])
                for k in range(4):
                    gaps[j0 + k] = g[k]
        self.weave(mf, gaps)
        for c in carry:
            e(c)

    def publish_partials(self, base, tag):
        e = self.s
        e('s_lshl_b32 s%d, s%d, 19' % (sT0, sT))
        e('s_lshl_b32 s%d, s%d, 17' % (sT1, sW))
        e('s_add_u32 s%d, s%d, s%d' % (sT0, sT0, sT1))
        e('s_lshl_b32 s%d, s%d, 11' % (sT1, sJ))
        e('s_add_u32 s%d, s%d, s%d' % (sT0, sT0, sT1))
        e('s_add_u32 s%d, s%d, 0x%x' % (sT0, sT0, base))
        n = 0
        for h in range(2):
            for tb in range(4):
                e('s_add_u32 s%d, s%d, 0x%x' % (sT1, sT0, h * 65536 + tb * 16384))
                for p in range(2):
                    t = vS + 4 * (n % 8)
                    n += 1
                    for g in range(2):
                        a = vACC + 16 * (4 * h + 2 * p + g) + 4 * tb
                        e('v_cvt_pk_bf16_f32 v%d, v%d, v%d' % (t + 2 * g, a, a + 1))
                        e('v_cvt_pk_bf16_f32 v%d, v%d, v%d' % (t + 2 * g + 1, a + 2, a + 3))
                    e('buffer_store_dwordx4 %s, v%d, %s, s%d offen offset:%d sc1' % (vr('v', t, 4), vACT, srd(SWS), sT1, 1024 * p), tag=tag)

    def gather16(self, f, dst, soff):
        res = []
        for k in range(16):
            pre = ['s_add_u32 s%d, s%d, 0x1000' % (soff, soff)] if (k % 4 == 0 and k) else []
            res.append((pre, 'buffer_load_dwordx4 %s, v%d, %s, s%d offen offset:%d sc1' % (vr(f, dst + 4 * k, 4), vACT, srd(SWS), soff, 1024 * (k % 4))))
        return res

    def prologue(self):
        e = self.s
        e('@sec prologue')
        e('s_cmp_ge_u32 s2, 256\ns_cbranch_scc1 L_end')
        bufs = [(SX, 0, 0x200000), (SW1, 48, 0x80000), (SWQ, 24, 0x400000), (SWS, 96, 0x10000000), (SDBG, 88, 256), (SK, 8, 0x80000),
                (SV, 16, 0x80000), (SWO, 32, 0x400000), (SW2, 56, 0x80000), (SW3, 64, 0x1c0000), (SW4, 72, 0x1c0000), (SOUT, 80, 0x200000)]
        for b, off, _ in bufs:
            e('s_load_dwordx2 s[%d:%d], s[0:1], %d' % (b, b + 1, off))
        for b, _, size in bufs + [(SH, 0, 0x200000)]:
            e('s_mov_b32 s%d, 0x%x\ns_mov_b32 s%d, 0x20000' % (b + 2, size, b + 3))
        e('s_getpc_b64 s[%d:%d]\nL_pc:' % (SCODE, SCODE + 1))
        e('s_mov_b32 s%d, L_code_end-L_pc\ns_mov_b32 s%d, 0x20000' % (SCODE + 2, SCODE + 3))
        e('v_readfirstlane_b32 s%d, v0' % sW)
        e('s_and_b32 s%d, s2, 7\ns_lshr_b32 s%d, s2, 3' % (sJ, sT))
        e('v_lshlrev_b32 v%d, 4, v0' % (vT + 3))
        e('s_lshr_b32 s%d, s%d, 6' % (sW, sW))
        e('v_and_b32 v0, 63, v0')
        e('s_lshl_b32 s%d, s%d, 2\ns_add_u32 s%d, s%d, s%d' % (sTBG, sT, sTBG, sTBG, sW))
        e('s_mul_i32 s%d, s%d, %d\ns_add_u32 s%d, s%d, %d' % (sRING, sW, WWAVE, sRING, sRING, WREG))
        e('s_lshl_b32 s%d, s%d, 11' % (sW2K, sW))
        e('v_lshlrev_b32 v%d, 4, v%d' % (vACT, vL))
        e('v_mov_b32 v%d, 1' % vONE)
        e('v_and_b32 v%d, 15, v%d\nv_lshlrev_b32 v%d, 10, v%d' % (vT + 4, vL, vT + 4, vT + 4))
        e('v_and_b32 v%d, 48, v%d\nv_or_b32 v%d, v%d, v%d' % (vT + 5, vL, vT + 4, vT + 4, vT + 5))
        e('s_lshl_b32 s%d, s%d, 14' % (sT0, sTBG))
        e('v_lshrrev_b32 v%d, 2, v%d\nv_lshlrev_b32 v%d, 17, v%d' % (vPOFF, vL, vPOFF, vPOFF))
        e('v_and_b32 v%d, 3, v%d\nv_lshl_or_b32 v%d, v%d, 10, v%d' % (vT + 5, vL, vPOFF, vT + 5, vPOFF))
        e('v_mov_b32 v%d, 0x%x' % (vT + 5, OOB))
        e('v_cmp_gt_u32 vcc, 0x100, v%d' % (vT + 3))
        e('v_cndmask_b32 v%d, v%d, v%d, vcc' % (vPOFF, vT + 5, vPOFF))
        e('v_cmp_eq_u32 vcc, 0, v%d' % (vT + 3))
        e('v_cndmask_b32 v%d, v%d, 0, vcc' % (vS, vT + 5))
        e('s_lshl_b32 s%d, s%d, 10\ns_lshl_b32 s%d, s%d, 7\ns_add_u32 s%d, s%d, s%d' % (sT1, sTBG, sT2, sJ, sT1, sT1, sT2))
        e('v_mov_b32 v%d, s%d' % (vFLAG, sT1))
        e('v_cmp_eq_u32 vcc, 0, v%d' % vL)
        e('v_cndmask_b32 v%d, v%d, v%d, vcc' % (vFLAG, vT + 5, vFLAG))
        e('s_add_u32 s%d, s%d, 0x%x' % (sT1, sT1, FLAG_OFF))
        e('v_mov_b32 v%d, 0' % vPRES)
        for x in self.dma128_offsets(vDA, 1024, True) + self.dma256_offsets(vDB, 8192, 8):
            e(x)
        e('s_waitcnt lgkmcnt(0)')
        e('buffer_store_dword v%d, v%d, %s, s%d offen sc1' % (vPRES, vPOFF, srd(SWS), sT1), tag='reset')
        for ks in range(16):
            e('buffer_load_dwordx4 %s, v%d, %s, s%d offen offset:%d' % (vr('v', vX + 4 * ks, 4), vT + 4, srd(SX), sT0, 64 * ks))
        if self.prof:
            e('v_accvgpr_write_b32 a%d, 0\nv_accvgpr_write_b32 a%d, 0' % (aPROF, aPROF + 1))
        self.stamp()
        e('s_mov_b32 s%d, s%d\ns_mov_b32 s%d, s%d' % (SH, SWS, SH + 1, SWS + 1))
        e('s_lshl_b32 s%d, s%d, 19' % (sT0, sJ))
        for b in (SK, SV):
            e('s_add_u32 s%d, s%d, s%d\ns_addc_u32 s%d, s%d, 0' % (b, b, sT0, b + 1, b + 1))
        e('s_lshl_b32 s%d, s%d, 12' % (sT0, sT))
        e('buffer_load_dwordx4 a[248:251], v%d, %s, s%d offen' % (vT + 3, srd(SCODE), sT0))
        e('s_lshl_b32 s%d, s%d, 10\ns_lshl_b32 s%d, s%d, 8\ns_add_u32 s%d, s%d, s%d' % (sOB, sJ, sT0, sW, sOB, sOB, sT0))
        e('s_lshl_b32 s%d, s%d, 17\ns_lshl_b32 s%d, s%d, 7\ns_add_u32 s%d, s%d, s%d' % (sOA, sW, sT0, sJ, sOA, sOA, sT0))
        for q in (1, 2):
            self.emit_slot(self.wslot(q, SW1, vDA, sOA, (32768, 32768), 'w1'))
        e('s_lshl_b32 s%d, s%d, 3' % (sT0, sT))
        e('buffer_atomic_add v%d, v%d, %s, s%d offen sc1' % (vONE, vS, srd(SDBG), sT0), need=['reset'])
        e('s_lshr_b32 s%d, s%d, 1\ns_lshl_b32 s%d, s%d, 18' % (sT0, sT, sT0, sT0))
        e('s_and_b32 s%d, s%d, 1\ns_lshl_b32 s%d, s%d, 15' % (sT1, sT, sT1, sT1))
        e('s_add_u32 s%d, s%d, s%d\ns_add_u32 s%d, s%d, s%d' % (sT0, sT0, sT1, sT0, sT0, sOB))
        for i in range(4):
            e('buffer_load_dwordx4 a[248:251], v%d, %s, s%d offen offset:%d' % (vDB + i, srd(SWQ), sT0, 1024 * i))
        self.emit_slot(self.wq_slot(0))

    def wq_slot(self, q):
        return self.wslot(q, SWQ, vDB, sOB, (4 * 8192, 28 * 8192), 'wq%d' % q)

    def p0_p1(self):
        e = self.s
        e('@sec P0 layernorm')
        self.layernorm(CSCALE, True)
        self.stamp()
        e('@sec P1')
        e('v_bfe_u32 v%d, v%d, 5, 1\nv_lshlrev_b32 v%d, 8, v%d' % (vT, vL, vT, vT))
        e('v_and_b32 v%d, 15, v%d\nv_lshl_or_b32 v%d, v%d, 4, v%d' % (vT + 1, vL, vT, vT + 1, vT))
        e('v_bfe_u32 v%d, v%d, 4, 1\nv_lshl_or_b32 v%d, v%d, 3, v%d' % (vT + 1, vL, vT, vT + 1, vT))
        e('s_lshl_b32 s%d, s%d, 14\ns_lshl_b32 s%d, s%d, 11\ns_add_u32 s%d, s%d, s%d' % (sT0, sW, sT1, sJ, sT0, sT0, sT1))
        e('v_add_u32 v%d, s%d, v%d' % (vT, sT0, vT))
        for nb in range(4):
            e('ds_read_b64 %s, v%d offset:%d' % (vr('v', vRES + 2 * nb, 2), vT, 512 * nb))
        self.g16_sync = lambda: e('s_barrier', need=['w1', '*lg'])
        self.g16(vS)
        e('s_barrier')
        self.emit_slot(self.wq_slot(1))
        self.emit_slot(self.wq_slot(2))
        self.gelu_consts()
        for nb in range(4):
            self.gelu4(vS + 4 * nb, vX + 2 * nb, vP, scale=vT + 4)
        e('s_lshl_b32 s%d, s%d, 14\ns_lshl_b32 s%d, s%d, 11\ns_add_u32 s%d, s%d, s%d' % (sT0, sTBG, sT1, sJ, sT0, sT0, sT1))
        for p in range(2):
            e('buffer_store_dwordx4 %s, v%d, %s, s%d offen offset:%d sc1' % (vr('v', vX + 4 * p, 4), vACT, srd(SH), sT0, 1024 * p), tag='hst')
        self.stamp()

    def p2(self):
        e = self.s
        e('@sec P2 setup')
        self.tr256(base_s=sRING)
        for x in self.dma128_offsets(vDA, 1024, False):
            e(x)
        e('s_lshl_b32 s%d, s%d, 17\ns_lshl_b32 s%d, s%d, 7\ns_add_u32 s%d, s%d, s%d' % (sOA, sW, sT0, sJ, sOA, sOA, sT0))
        e('v_and_b32 v%d, 3, v%d\nv_min_u32 v%d, 2, v%d' % (vT, vL, vT, vT))
        e('v_add3_u32 v%d, v%d, s%d, -1\nv_med3_i32 v%d, v%d, 0, 31\nv_lshlrev_b32 v%d, 3, v%d' % (vT, vT, sT, vT, vT, vPOFF, vT))
        F = vS
        e('v_bfe_u32 v%d, v%d, 1, 1\nv_lshl_add_u32 v%d, v%d, 1, -1' % (vT, vL, vT, vT))
        e('v_bfe_u32 v%d, v%d, 3, 1\nv_mul_i32_i24 v%d, v%d, v%d' % (vT + 1, vL, vT, vT, vT + 1))
        e('v_add_u32 v%d, s%d, v%d\nv_max_i32 v%d, 0, v%d\nv_min_i32 v%d, 0x7f, v%d' % (vT, sTBG, vT, vT, vT, vT, vT))
        e('v_and_b32 v%d, 7, v%d\nv_lshl_or_b32 v%d, v%d, 3, v%d' % (vT + 1, vL, vT, vT, vT + 1))
        e('v_lshlrev_b32 v%d, 7, v%d\nv_add_u32 v%d, 0x%x, v%d' % (vT, vT, F, FLAG_OFF, vT))
        G = vS + 1
        e('v_and_b32 v%d, 15, v%d\nv_lshl_add_u32 v%d, s%d, 4, v%d' % (vT, vL, vT, sTBG, vT))
        e('v_and_b32 v%d, 48, v%d\nv_mov_b32 v%d, 0x%x' % (vT + 1, vL, vT + 5, OOB))
        for g, dlt in enumerate((-1, 1, -2, 2)):
            e('v_add_u32 v%d, %d, v%d' % (vT + 2, dlt, vT))
            e('v_and_or_b32 v%d, v%d, 15, v%d' % (vT + 3, vT + 2, vT + 1))
            e('v_lshlrev_b32 v%d, 4, v%d' % (vT + 3, vT + 3))
            e('v_lshrrev_b32 v%d, 4, v%d' % (G + g, vT + 2))
            e('v_lshl_add_u32 v%d, v%d, 14, v%d' % (G + g, G + g, vT + 3))
            e('v_add_u32 v%d, 0x%x, v%d' % (G + g, 4096 * g, G + g))
            e('v_cmp_gt_u32 vcc, 0x800, v%d' % (vT + 2))
            e('v_cndmask_b32 v%d, v%d, v%d, vcc' % (G + g, vT + 5, G + g))
        e('@sec P2')
        dmas = {ks: self.wq_slot(ks + 2) for ks in range(1, 14)}
        dmas[14] = self.wslot(16, SW2, vDA, sOA, (32768, 32768), 'w2')
        dmas[15] = self.wslot(17, SW2, vDA, sOA, (32768, 32768), 'w2')
        extra = {}
        fs = self.flag_store(0, ['hst'])
        extra[(1, 5)], extra[(1, 6)] = fs[:1], fs[1:]
        extra[(3, 0)] = [self.poll_load(SDBG)]
        extra[(5, 0)] = self.poll_check(SDBG, 8)
        extra[(5, 1)] = ['v_mov_b32 v%d, v%d' % (vPOFF, F)]
        extra[(5, 3)] = [self.poll_load(SWS)]
        extra[(7, 3)] = self.poll_check(SWS, 1)
        for k in range(16):
            extra[(8 + k // 4, 2 * (k % 4))] = ['buffer_load_dwordx4 %s, v%d, %s, 0 offen offset:%d sc1' % (vr('v', vX + 4 * k, 4), G + (k >> 2), srd(SH), 1024 * (k & 3))]
        self.g64(16, 0, lambda ks: 'wq%d' % ks, dmas, extra)
        self.stamp()

    def kv_dma(self, which, unit, tag):
        buf, ring, so, vo = (SK, KRING, sKO, vDB) if which == 'K' else (SV, VRING, sVO, vDB + 2)
        return [(['s_add_u32 m0, s%d, 0x%x' % (sW2K, ring + 8192 * (unit & 3))],
                 Ins('buffer_load_dwordx4 v%d, %s, s%d offen lds' % (vo, srd(buf), so), tag=tag), []),
                ([], Ins('buffer_load_dwordx4 v%d, %s, s%d offen offset:1024 lds' % (vo + 1, srd(buf), so), tag=tag),
                 ['s_add_u32 s%d, s%d, 0x2000' % (so, so), 's_and_b32 s%d, s%d, 0x7ffff' % (so, so)])]

    def kv_setup(self):
        e = self.s
        e('v_lshrrev_b32 v%d, 4, v%d\nv_and_b32 v%d, 15, v%d' % (vT, vL, vT + 1, vL))
        e('v_lshl_add_u32 v%d, v%d, 8, s%d' % (vT + 2, vT, sW2K))
        e('s_and_b32 s%d, s%d, 1\ns_lshl_b32 s%d, s%d, 3' % (sT0, sW, sT0, sT0))
        e('v_xor_b32 v%d, v%d, v%d\nv_xor_b32 v%d, s%d, v%d' % (vT + 3, vT + 1, vT, vT + 3, sT0, vT + 3))
        e('v_lshl_add_u32 v%d, v%d, 4, v%d\nv_xor_b32 v%d, 64, v%d' % (vDB, vT + 3, vT + 2, vDB + 1, vDB))
        e('v_lshlrev_b32 v%d, 1, v%d\nv_xor_b32 v%d, v%d, v%d' % (vT + 3, vT, vT + 3, vT + 3, vT + 1))
        e('v_lshl_add_u32 v%d, v%d, 4, v%d\nv_xor_b32 v%d, 0x80, v%d' % (vDB + 2, vT + 3, vT + 2, vDB + 3, vDB + 2))

    def kv_start(self):
        e = self.s
        e('s_lshl_b32 s%d, s%d, 14\ns_mov_b32 s%d, s%d' % (sKO, sT, sVO, sKO))
        for which, u in (('K', 0), ('K', 1), ('V', 0), ('K', 2), ('V', 1)):
            self.emit_slot(self.kv_dma(which, u, 'kv-1'))

    def p3(self):
        e = self.s
        e('@sec Q epilogue')
        self.kv_setup()
        e('s_barrier', need=['*lg'])
        self.kv_start()
        n = 0
        for qb in range(4):
            for ks in range(4):
                t = vS + 8 + 4 * (n % 4)
                n += 1
                for g in range(2):
                    a = vACC + 16 * (2 * ks + g) + 4 * qb
                    e('v_cvt_pk_bf16_f32 v%d, v%d, v%d' % (t + 2 * g, a, a + 1))
                    e('v_cvt_pk_bf16_f32 v%d, v%d, v%d' % (t + 2 * g + 1, a + 2, a + 3))
                for op in ('v_permlane32_swap_b32', 'v_permlane16_swap_b32'):
                    e('%s v%d, v%d\n%s v%d, v%d' % (op, t, t + 2, op, t + 1, t + 3))
                for r in range(4):
                    e('v_accvgpr_write_b32 a%d, v%d' % (aQ + 16 * qb + 4 * ks + r, t + r))
        self.stamp()
        e('@sec P3')
        self.g16_sync = lambda: e('s_barrier', need=['w2'])
        self.g16(vS)
        e('s_mov_b32 s%d, %s' % (sC0, f2u(1.0 / CSCALE)))
        for k in range(8):
            e('v_lshlrev_b32 v%d, 16, v%d\nv_and_b32 v%d, 0xffff0000, v%d' % (vT, vRES + k, vT + 1, vRES + k))
            e('v_fmac_f32 v%d, s%d, v%d\nv_fmac_f32 v%d, s%d, v%d' % (vS + 2 * k, sC0, vT, vS + 2 * k + 1, sC0, vT + 1))
            e('v_cvt_pk_bf16_f32 v%d, v%d, v%d' % (vP + k, vS + 2 * k, vS + 2 * k + 1))
        e('s_lshl_b32 s%d, s%d, 14\ns_lshl_b32 s%d, s%d, 11\ns_add_u32 s%d, s%d, s%d' % (sT0, sTBG, sT1, sJ, sT0, sT0, sT1))
        e('s_add_u32 s%d, s%d, 0x%x' % (sT0, sT0, X1_OFF))
        for p in range(2):
            e('buffer_store_dwordx4 %s, v%d, %s, s%d offen offset:%d sc1' % (vr('v', vP + 4 * p, 4), vACT, srd(SWS), sT0, 1024 * p), tag='x1st')
        for k in range(8):
            e('v_accvgpr_write_b32 a%d, v%d' % (aX1 + k, vP + k))
        self.stamp()

    def wo_slot(self, q):
        return self.wslot(q, SWO, vDA, sOA, (16384, 16384), 'wo%d' % q)

    def attention(self):
        e = self.s
        e('@sec attention setup')
        self.tr256(base_c=VRING)
        e('v_and_b32 v%d, 15, v%d\nv_lshrrev_b32 v%d, 4, v%d' % (vT, vL, vT + 1, vL))
        e('v_xor_b32 v%d, v%d, v%d\nv_lshlrev_b32 v%d, 4, v%d' % (vT + 1, vT + 1, vT, vT + 1, vT + 1))
        e('v_lshl_or_b32 v%d, v%d, 8, v%d' % (vKA, vT, vT + 1))
        for ks in range(1, 4):
            e('v_xor_b32 v%d, 0x%x, v%d' % (vKA + ks, 64 * ks, vKA))
        e('v_lshrrev_b32 v%d, 4, v%d\nv_xor_b32 v%d, v%d, v%d\nv_and_b32 v%d, 2, v%d' % (vT, vL, vT, vT, vL, vT, vT))
        e('v_mov_b32 v%d, 0x3f803f80\nv_cmp_eq_u32 vcc, 0, v%d' % (vT + 1, vT))
        e('v_cndmask_b32 v%d, 0, v%d, vcc' % (vT + 1, vT + 1))
        for r in range(4):
            e('v_accvgpr_write_b32 a%d, v%d' % (aONES + r, vT + 1))
        e('v_bfe_i32 v%d, v%d, 0, 1\nv_and_b32 v%d, 0xaaaaaaaa, v%d\nv_or_b32 v%d, 0x44444444, v%d' % (vT, vL, vT, vT, vIDX, vT))
        for r in range(16):
            e('v_mov_b32 v%d, 0' % (vNEGM + r))
        for x in self.dma256_offsets(vDA, 1024, 4):
            e(x)
        e('s_lshl_b32 s%d, s%d, 19\ns_lshl_b32 s%d, s%d, 8\ns_add_u32 s%d, s%d, s%d' % (sOA, sJ, sT0, sW, sOA, sOA, sT0))
        for r in range(8):
            e('v_accvgpr_write_b32 a%d, 0' % (aL + r))
        e('s_mov_b32 s%d, 14' % sCNT)
        e('s_barrier', need=['kv-1'])

        def krd(u, f):
            kb, ks = f >> 2, f & 3
            return 'ds_read_b128 %s, v%d offset:%d' % (vr('a', aK + 32 * (u & 1) + 4 * f, 4), vKA + ks, KRING + 8192 * (u & 3) + 4096 * kb)

        def vrd(u, h):
            db, g = h >> 1, h & 1
            return 'ds_read_b64_tr_b16 %s, v%d offset:%d' % (vr('a', aV + 32 * (u & 1) + 4 * db + 2 * g, 2), vTR + db, 8192 * (u & 3) + 4096 * g)
        for f in range(8):
            e(krd(0, f))
        e('@sec attention')
        NS = 256
        for n in range(NS + 4):
            u, qb, T = n >> 2, n & 3, n >> 3
            if n % 16 == 0 and 16 <= n < NS - 16:
                e('@rep L_attn %d' % (n // 16))
            if n == NS - 16:
                e('@endrep L_attn')
            mf = []
            if n < NS:
                for kb in range(2):
                    d = vr('v', vS + 8 * (n & 1) + 4 * kb, 4)
                    for ks in range(4):
                        mf.append(mfma(d, vr('a', aK + 32 * (u & 1) + 16 * kb + 4 * ks, 4), vr('a', aQ + 16 * qb + 4 * ks, 4),
                                       vr('v', vNEGM + 4 * qb, 4) if ks == 0 else None))
            if n >= 4:
                for db in range(8):
                    mf.append(mfma(vr('v', vACC + 16 * db + 4 * qb, 4), vr('a', aV + 32 * ((u - 1) & 1) + 4 * db, 4), vr('v', vP + 4 * qb, 4),
                                   '0' if n < 8 else None))
            ex, cv = [], []
            if 1 <= n <= NS:
                sb, pb = vS + 8 * ((n - 1) & 1), vP + 4 * ((n - 1) & 3)
                ex = ['v_exp_f32 v%d, v%d' % (sb + r, sb + r) for r in range(8)]
                cv = ['v_cvt_pk_bf16_f32 v%d, v%d, v%d' % (pb + r, sb + 2 * r, sb + 2 * r + 1) for r in range(4)]
            ds = []
            if u + 1 < 64:
                ds += [krd(u + 1, 2 * qb), krd(u + 1, 2 * qb + 1)]
            if u < 64:
                ds += [vrd(u, 4 * qb + h) for h in range(4)]
            dm = []
            r8 = n & 7
            if r8 < 4:
                which, unit = (('K', 2 * T + 3), ('V', 2 * T + 2), ('K', 2 * T + 4), ('V', 2 * T + 3))[r8]
                if unit < 64:
                    dm = self.kv_dma(which, unit, 'kv%d' % T)
            if n >= NS - 12 and n < NS:
                k = n - (NS - 12)
                dm = dm + self.wo_slot(k // 4)[2 * (k % 4):2 * (k % 4) + 2]
            sm = None
            if qb == 3 and n < NS:
                sm = 'v_smfmac_f32_16x16x64_bf16 %s, %s, %s, v%d' % (vr('a', aL, 4), vr('a', aONES, 4), vr('v', vP, 8), vIDX)
            if qb == 1 and n >= 5:
                sm = 'v_smfmac_f32_16x16x64_bf16 %s, %s, %s, v%d' % (vr('a', aL + 4, 4), vr('a', aONES, 4), vr('v', vP + 8, 8), vIDX)
            gaps = {j: [] for j in range(len(mf))}
            if len(mf) == 16:
                sc = {}
                if r8 == 0 and n < NS:
                    sc[0] = [Ins('s_barrier')]
                if r8 == 7 and n < NS - 1:
                    sc[14] = [Ins('@need', need=['kv%d' % T if 2 * T + 2 < 64 else '*lg', '*lg'])]
                if n % 16 == 15 and 16 <= n < NS - 16:
                    sc[10] = ['s_sub_u32 s%d, s%d, 1' % (sCNT, sCNT)]
                    sc[12] = ['s_cmp_lg_u32 s%d, 0' % sCNT]
                if n == 8:
                    fs = self.flag_store(1, ['x1st'])
                    dm = dm + [([fs[0].text], fs[1], [])]
                dgap = [5, 9, 13, 1][:len(dm)]
                dgap.sort()
                for g, (pre, d, post) in zip(dgap, dm):
                    for k, x in enumerate(pre):
                        sc.setdefault(max(g - 1 - 2 * (len(pre) - k), 0), []).append(x)
                    gaps[g].append(d)
                    for k, x in enumerate(post):
                        sc.setdefault(min(g + 1 + 2 * k, 14), []).append(x)
                free = [g for g in range(1, 16, 2) if g not in dgap]
                last = r8 == 7
                for k, x in enumerate(ds):
                    g = (1, 1, 3, 5, 5, 7)[k] if (last and not dm) else free[min(k, len(free) - 1)]
                    gaps[g].append(x)
                for k, x in enumerate(ex):
                    gaps[2 * k].append(x)
                for k, x in enumerate(cv):
                    gaps[4 * k + 3].append(x)
                for g, x in sc.items():
                    gaps[g] = list(x) + gaps[g]
                if sm:
                    gaps[7].append(sm)
                if n % 16 == 15 and 16 <= n < NS - 16:
                    gaps[15].append('s_cbranch_scc1 L_attn')
            else:
                seq = []
                for pre, d, post in dm:
                    seq.append(pre + [d] + post)
                if n == 2:
                    seq[0] = ['s_barrier'] + seq[0]
                seq += [[x] for x in ds]
                for k, x in enumerate(seq):
                    gaps[min(k, 7)] += x
                late = 2 if n < 4 else 0
                for k in range(len(ex)):
                    gaps[min(k + late, 7)].append(ex[k])
                    if k % 2 == 1:
                        gaps[min(k + late + 1, 7)].append(cv[k // 2])
                if n == NS:
                    order = []
                    for j in range(8):
                        order += gaps[j]
                    gaps = {j: order[2 * j:2 * j + 2] for j in range(8)}
                if sm:
                    gaps[3].append(sm)
            self.weave(mf, gaps)
        self.stamp()
        e('@sec O epilogue')
        for h in range(2):
            for r in range(4):
                e('v_accvgpr_read_b32 v%d, a%d' % (vS + 4 * h + r, aL + 4 * h + r))
        for qb in range(4):
            e('v_add_f32 v%d, v%d, v%d' % (vS + 2 * qb, vS + 2 * qb, vS + 2 * qb + 1))
        for qb in range(4):
            e('v_rcp_f32 v%d, v%d' % (vS + 2 * qb, vS + 2 * qb))
        e('v_lshl_add_u32 v%d, s%d, 12, v%d' % (vT + 3, sW, vACT))
        e('s_barrier', need=['*lg'])
        n = 0
        for qb in range(4):
            for ks in range(4):
                t = vP + 4 * (n % 4)
                n += 1
                for g in range(2):
                    a = vACC + 16 * (2 * ks + g) + 4 * qb
                    for h in (0, 2):
                        e('v_pk_mul_f32 %s, %s, %s op_sel_hi:[1,0]' % (vr('v', a + h, 2), vr('v', a + h, 2), vr('v', vS + 2 * qb, 2)))
                for g in range(2):
                    a = vACC + 16 * (2 * ks + g) + 4 * qb
                    e('v_cvt_pk_bf16_f32 v%d, v%d, v%d' % (t + 2 * g, a, a + 1))
                    e('v_cvt_pk_bf16_f32 v%d, v%d, v%d' % (t + 2 * g + 1, a + 2, a + 3))
                e('ds_write_b128 v%d, %s offset:%d' % (vT + 3, vr('v', t, 4), (16 * qb + ks) * 1024))
        self.stamp()

    def w3_slot(self, m):
        return self.wslot(16 + m, SW3, vDB, sOB, (32 * 3584, 32 * 3584), 'w3%d' % m)

    def w4_slot(self, k):
        return self.wslot(24 + k, SW4, vDA, sOA, (16384, 16384), 'w4%d' % k)

    def flag_addr(self, phase, blk_s):
        e = self.s
        e('v_and_b32 v%d, 7, v%d\nv_lshl_or_b32 v%d, s%d, 3, v%d' % (vT, vL, vT, blk_s, vT))
        e('v_lshlrev_b32 v%d, 7, v%d\nv_add_u32 v%d, 0x%x, v%d' % (vT, vT, vPOFF, FLAG_OFF + phase * 131072, vT))

    def p6(self):
        e = self.s
        e('@sec P6 setup')
        self.tr256(base_s=sRING)
        for x in self.dma128_offsets(vDB, 3584, False):
            e(x)
        e('s_mul_i32 s%d, s%d, 7\ns_lshr_b32 s%d, s%d, 1' % (sKO, sW, sKO, sKO))
        e('s_mul_i32 s%d, s%d, 448\ns_lshl_b32 s%d, s%d, 5\ns_add_u32 s%d, s%d, s%d' % (sOB, sJ, sT0, sKO, sOB, sOB, sT0))
        self.flag_addr(1, sTBG)
        e('s_lshl_b32 s%d, s%d, 14\ns_add_u32 s%d, s%d, 0x%x' % (sVO, sTBG, sVO, sVO, X1_OFF))
        e('s_barrier', need=['*lg'])
        e('@sec P6')
        dmas = {ks: self.wo_slot(ks + 2) for ks in range(1, 14)}
        dmas[14], dmas[15] = self.w3_slot(0), self.w3_slot(1)
        extra = {(0, 0): [self.poll_load(SWS)], (2, 6): self.poll_check(SWS, 1)}
        for k, (pre, ld) in enumerate(self.gather16('v', vX, sVO)):
            if pre:
                extra[(3 + k // 2 - 1, 7)] = pre
            extra[(3 + k // 2, 4 * (k % 2) + 1)] = [ld]
        self.g64(16, 0, lambda ks: 'wo%d' % ks, dmas, extra)
        self.stamp()
        e('@sec s epilogue')
        self.emit_slot(self.w3_slot(2))
        self.publish_partials(SP_OFF, 'sst')
        self.stamp()

    def p5(self):
        e = self.s
        e('@sec LN x1')
        self.layernorm(1.0, False, need_write=lambda: e('s_barrier'))
        for x in self.flag_store(2, ['sst']):
            e.add(x)
        self.stamp()
        e('@sec P5 setup')
        A01, A23 = vTR, vTR + 1
        WA = vTR + 2
        e('s_and_b32 s%d, s%d, 1' % (sT0, sW))
        self.tr128_base(vT)
        e('v_add_u32 v%d, s%d, v%d' % (vT, sRING, vT))
        e('v_lshl_add_u32 v%d, s%d, 15, v%d\nv_xor_b32 v%d, 0x8000, v%d' % (A01, sT0, vACT, A23, A01))
        for b in range(4):
            e('s_add_u32 s%d, s%d, %d\ns_and_b32 s%d, s%d, 3' % (sT1, sT0, b, sT1, sT1))
            e('s_lshl_b32 s%d, s%d, 5\nv_xor_b32 v%d, s%d, v%d' % (sT2, sT1, vKA + b, sT2, vT))
            e('s_add_u32 s%d, s%d, s%d' % (sT1, sT1, sKO))
            e('s_lshr_b32 s%d, s%d, 1\ns_lshl_b32 s%d, s%d, 10' % (sT2, sT1, sT2, sT2))
            e('s_and_b32 s%d, s%d, 1\ns_lshl_b32 s%d, s%d, 3\ns_add_u32 s%d, s%d, s%d' % (sT1, sT1, sT1, sT1, sT1, sT1, sT2))
            e('v_add_u32 v%d, s%d, v%d' % (WA + b, sT1, A01))
        e('s_mul_i32 s%d, s%d, %d\ns_lshl_b32 s%d, s%d, 8\ns_add_u32 s%d, s%d, s%d' % (sOA, sJ, 224 * 1024, sT0, sW, sOA, sOA, sT0))
        e('s_barrier', need=['*lg'])
        e('@sec P5')
        WF, AF, AH = 0, 16, 3

        def wrd(n):
            ks, b = n >> 2, n & 3
            off = ((16 + (ks >> 1)) % 3) * 8192 + (ks & 1) * 4096
            return [Ins('ds_read_b64_tr_b16 %s, v%d offset:%d' % (vr('a', WF + 4 * (n % 4) + 2 * g, 2), vKA + b, off + 2048 * g),
                        need=['w3%d' % (ks >> 1)] if (n % 8 == 0 and g == 0) else None) for g in range(2)]

        def ard(ks, tb):
            return 'ds_read_b128 %s, v%d offset:%d' % (vr('a', AF + 16 * (ks & 1) + 4 * tb, 4), A01 if tb < 2 else A23, ((tb & 1) * 16 + ks) * 1024)
        for tb in range(4):
            e(ard(0, tb))
        for n in range(AH):
            for x in wrd(n):
                e.add(x)
        mf, gaps, carry = [], {}, []
        for ks in range(16):
            m = ks >> 1
            slot = None
            if m >= 1:
                slot = (self.w3_slot(m + 2) if m + 2 < 8 else self.w4_slot(m + 2 - 8))[4 * (ks & 1):4 * (ks & 1) + 4]
            j0 = len(mf)
            for b in range(4):
                n = 4 * ks + b
                for tb in range(4 if b < 3 else 2):
                    mf.append(mfma(vr('v', vACC + 16 * b + 4 * tb, 4), vr('a', WF + 4 * (n % 4), 4),
                                   vr('a', AF + 16 * (ks & 1) + 4 * tb, 4), '0' if ks == 0 else None))
            g = {k: [] for k in range(14)}
            sc = list(carry)
            carry = []
            if slot:
                sc += slot[0][0]
                for k, pos in enumerate((2, 6, 7, 10)):
                    g[pos].append(slot[k][1])
                carry = list(slot[3][2])
            g[0] += sc[:1]
            g[1] += sc[1:]
            for b in range(4):
                n = 4 * ks + b + AH
                if n < 64:
                    w = wrd(n)
                    g[4 * b].append(w[0])
                    g[4 * b + 1].append(w[1])
            if ks + 1 < 16:
                for tb, pos in enumerate((3, 3, 5, 9)):
                    g[pos].append(ard(ks + 1, tb))
            for k in range(14):
                gaps[j0 + k] = g[k]
        self.weave(mf, gaps)
        for c in carry:
            e(c)
        self.stamp()
        e('@sec gelu')
        self.emit_slot(self.w4_slot(2))
        e('s_barrier')
        self.gelu_consts()
        n = 0
        for b in range(4):
            for tb in range(4 if b < 3 else 2):
                if tb == 2:
                    e('v_xor_b32 v%d, 0x8000, v%d' % (WA + b, WA + b))
                d = vS + 2 * (n % 4)
                self.gelu4(vACC + 16 * b + 4 * tb, d, vP + 4 * (n % 2))
                n += 1
                e('ds_write_b64 v%d, %s offset:%d' % (WA + b, vr('v', d, 2), (tb & 1) * 16384))
        self.stamp()

    def p7_final(self):
        e = self.s
        e('@sec P7 setup')
        self.tr256(base_s=sRING)
        e('s_lshl_b32 s%d, s%d, 2\ns_lshr_b32 s%d, s%d, 1\ns_add_u32 s%d, s%d, s%d' % (sKO, sT, sT0, sJ, sKO, sKO, sT0))
        self.flag_addr(2, sKO)
        e('s_lshl_b32 s%d, s%d, 19\ns_lshl_b32 s%d, s%d, 16\ns_add_u32 s%d, s%d, s%d' % (sVO, sT, sT0, sJ, sVO, sVO, sT0))
        e('s_lshl_b32 s%d, s%d, 14\ns_add_u32 s%d, s%d, s%d' % (sT0, sW, sVO, sVO, sT0))
        e('s_add_u32 s%d, s%d, 0x%x\ns_add_u32 s%d, s%d, 0x%x' % (sOB, sVO, YP_OFF, sVO, sVO, SP_OFF))
        XO = vKA
        e('v_and_b32 v%d, 15, v%d\nv_lshlrev_b32 v%d, 10, v%d' % (vT, vL, vT, vT))
        e('v_lshrrev_b32 v%d, 4, v%d\nv_lshl_or_b32 v%d, v%d, 3, v%d' % (vT + 1, vL, XO, vT + 1, vT))
        e('s_lshl_b32 s%d, s%d, 14\ns_lshl_b32 s%d, s%d, 7\ns_add_u32 s%d, s%d, s%d' % (sCNT, sTBG, sT0, sJ, sCNT, sCNT, sT0))
        e('s_barrier', need=['*lg'])
        e('@sec P7')
        dmas = {ks: self.w4_slot(ks + 2) for ks in range(1, 5)}
        extra = {(0, 0): [self.poll_load(SWS)], (2, 6): self.poll_check(SWS, 1)}
        XR = vX + 16
        for nb in range(4):
            extra[(0, 2 + nb)] = ['buffer_load_dwordx2 %s, v%d, %s, s%d offen offset:%d' % (vr('v', XR + 2 * nb, 2), XO, srd(SX), sCNT, 32 * nb)]
        for k, (pre, ld) in enumerate(self.gather16('a', 64, sVO)):
            if pre:
                extra[(3 + k // 4 - 1, 7)] = pre
            extra[(3 + k // 4, 2 * (k % 4))] = [ld]
        self.g64(7, 24, lambda ks: 'w4%d' % ks, dmas, extra)
        self.stamp()
        e('@sec y epilogue')
        self.publish_partials(YP_OFF, 'yst')
        SEL = vX
        e('v_lshrrev_b32 v%d, 4, v%d\nv_bfe_u32 v%d, v%d, 2, 2' % (vT, vL, vT + 1, vL))
        e('v_and_b32 v%d, 1, v%d\nv_lshlrev_b32 v%d, 4, v%d' % (vT + 2, vL, vT + 2, vT + 2))
        e('v_mov_b32 v%d, 0x3f80\nv_lshlrev_b32 v%d, v%d, v%d' % (vT + 3, vT + 2, vT + 2, vT + 3))
        e('v_cmp_eq_u32 vcc, v%d, v%d' % (vT, vT + 1))
        e('v_cndmask_b32 v%d, 0, v%d, vcc' % (vT + 2, vT + 2))
        e('v_and_b32 v%d, 2, v%d\nv_cmp_eq_u32 vcc, 0, v%d' % (vT, vL, vT))
        e('v_cndmask_b32 v%d, 0, v%d, vcc' % (SEL + 2, vT + 2))
        e('v_sub_u32 v%d, v%d, v%d' % (SEL + 3, vT + 2, SEL + 2))
        for r in (0, 1, 4, 5):
            e('v_mov_b32 v%d, 0' % (SEL + r))
        self.flag_addr(3, sKO)
        SS, ZZ = vACC, vACC + 16
        sel = lambda g: vr('v', SEL + 2 - 2 * g, 4)
        for k in range(16):
            for g in range(2):
                e(mfma(vr('v', SS + 4 * (2 * (k & 1) + g), 4), sel(g), vr('a', 64 + 4 * k, 4), '0' if k < 2 else None))
        for p in range(2):
            for g in range(2):
                e(mfma(vr('v', ZZ + 4 * (2 * p + g), 4), sel(g), vr('a', aX1 + 4 * p, 4), '0'))
        for x in self.flag_store(3, ['yst']):
            e.add(x)
        self.stamp()
        e('@sec final')
        e.add(self.poll_load(SWS))
        XF = vACC + 32
        for k in range(8):
            e('v_lshlrev_b32 v%d, 16, v%d\nv_and_b32 v%d, 0xffff0000, v%d' % (XF + 2 * k, XR + k, XF + 2 * k + 1, XR + k))
        for x in self.poll_check(SWS, 1):
            e.add(x)
        self.stamp()
        for pre, ld in self.gather16('a', 192, sOB):
            for x in pre:
                e(x)
            e(ld)
        for k in range(16):
            for g in range(2):
                e(mfma(vr('v', ZZ + 4 * (2 * (k & 1) + g), 4), sel(g), vr('a', 192 + 4 * k, 4)))
        E = vACC + 48
        for r in range(16):
            e('v_mul_f32 v%d, %s, v%d' % (E + r, f2u(-math.log2(math.e)), ZZ + r))
        for r in range(16):
            e('v_exp_f32 v%d, v%d' % (E + r, E + r))
        for r in range(0, 16, 2):
            e('v_pk_add_f32 %s, %s, 1.0 op_sel_hi:[1,0]' % (vr('v', E + r, 2), vr('v', E + r, 2)))
        for r in range(16):
            e('v_rcp_f32 v%d, v%d' % (E + r, E + r))
        for r in range(0, 16, 2):
            e('v_pk_mul_f32 %s, %s, %s' % (vr('v', E + r, 2), vr('v', E + r, 2), vr('v', ZZ + r, 2)))
        for r in range(0, 16, 2):
            e('v_pk_fma_f32 %s, %s, %s, %s' % (vr('v', E + r, 2), vr('v', E + r, 2), vr('v', SS + r, 2), vr('v', XF + r, 2)))
        for k in range(8):
            e('v_cvt_pk_bf16_f32 v%d, v%d, v%d' % (vS + k, E + 2 * k, E + 2 * k + 1))
        for nb in range(4):
            e('buffer_store_dwordx2 %s, v%d, %s, s%d offen offset:%d' % (vr('v', vS + 2 * nb, 2), XO, srd(SOUT), sCNT, 32 * nb))
        if self.prof:
            e('s_waitcnt vmcnt(0)')
            self.stamp()
            e('v_accvgpr_read_b32 v%d, a%d\nv_accvgpr_read_b32 v%d, a%d' % (vT, aPROF, vT + 1, aPROF + 1))
            e('s_lshl_b32 s%d, s2, 11\ns_lshl_b32 s%d, s%d, 9\ns_add_u32 s%d, s%d, s%d' % (sT0, sT1, sW, sT0, sT0, sT1))
            e('s_add_u32 s%d, s%d, 0x%x\nv_lshlrev_b32 v%d, 3, v%d' % (sT0, sT0, PROF_OFF, vT + 2, vL))
            e('buffer_store_dwordx2 %s, v%d, %s, s%d offen' % (vr('v', vT, 2), vT + 2, srd(SWS), sT0))

    def build(self, verbose=False):
        self.prologue()
        self.p0_p1()
        self.p2()
        self.p3()
        self.attention()
        self.p6()
        self.p5()
        self.p7_final()
        s = self.s
        s.insert_waits()
        pads = s.pad_hazards()
        est = s.estimate()
        s.fold()
        if verbose:
            print('hazard pads:', pads)
            for name, cyc, nm in est:
                print('  %-18s est %6d cycles, %5d mfma (%6d)' % (name, cyc, nm, nm * 16))
            print('  total', sum(c for _, c, _ in est))
        ref = open('cdna_kernels/%s.s.ref' % NAME).read().split('\n')
        head = [l for l in ref if l.startswith(';') and '@launch' not in l]
        o = head + ['; @launch grid=(256,1,1) block=(256,1,1) lds=163840',
                    '.amdgcn_target "amdgcn-amd-amdhsa--gfx950"', '.text', '.globl %s_kernel' % NAME, '.p2align 8',
                    '.type %s_kernel,@function' % NAME, '%s_kernel:' % NAME]
        o.append(s.text())
        o.append('L_end:\n    s_endpgm')
        o += self.tail
        o.append('L_code_end:\n    s_endpgm')
        o.append('''.section .rodata,"a"
.p2align 6
.amdhsa_kernel %s_kernel
  .amdhsa_next_free_vgpr 512
  .amdhsa_next_free_sgpr 102
  .amdhsa_accum_offset 256
  .amdhsa_group_segment_fixed_size 0
  .amdhsa_kernarg_size 104
  .amdhsa_user_sgpr_count 2
  .amdhsa_user_sgpr_kernarg_segment_ptr 1
  .amdhsa_system_sgpr_workgroup_id_x 1
  .amdhsa_float_denorm_mode_32 3
.end_amdhsa_kernel''' % NAME)
        return '\n'.join(o) + '\n'


if __name__ == '__main__':
    out = sys.argv[1] if len(sys.argv) > 1 else 'k.s'
    opts = dict(a.split('=') for a in sys.argv[2:])
    open(out, 'w').write(Gen(False, opts).build(True))
    open(out.replace('.s', '_prof.s'), 'w').write(Gen(True, opts).build())
```

```python
import re

TRANS = ('v_exp_f32', 'v_log_f32', 'v_rcp_f32', 'v_rsq_f32', 'v_sqrt_f32')
_REG = re.compile(r'^(-?)(?:abs\()?([vas])(?:(\d+)|\[(\d+):(\d+)\])\)?$')


def regs_of(tok):
    tok = tok.strip()
    if tok in ('vcc', 'exec', 'm0', 'scc'):
        return [tok]
    if tok in ('vcc_lo', 'vcc_hi'):
        return ['vcc']
    if tok in ('exec_lo', 'exec_hi'):
        return ['exec']
    if tok.startswith('|') and tok.endswith('|'):
        tok = tok[1:-1]
    m = _REG.match(tok)
    if not m:
        return []
    f = m.group(2)
    if m.group(3) is not None:
        return [(f, int(m.group(3)))]
    return [(f, i) for i in range(int(m.group(4)), int(m.group(5)) + 1)]


class Ins:
    __slots__ = ('text', 'op', 'kind', 'rd', 'wr', 'tag', 'need', 'srcc', 'srcab', 'note', 'nst')

    def __init__(self, text, tag=None, need=None):
        self.text = text
        self.tag = tag
        self.need = need or []
        self.rd, self.wr, self.srcc, self.srcab = set(), set(), set(), set()
        self.nst = 1
        t = text.split(';')[0].strip()
        if t.endswith(':') or t.startswith('.') or t.startswith('@') or not t:
            self.op, self.kind, self.nst = t, 'meta', 0
            return
        parts = t.split(None, 1)
        op = self.op = parts[0]
        rest = parts[1] if len(parts) > 1 else ''
        ops, depth, cur = [], 0, ''
        for ch in rest:
            if ch == '[':
                depth += 1
            if ch == ']':
                depth -= 1
            if ch == ',' and depth == 0:
                ops.append(cur.strip())
                cur = ''
            else:
                cur += ch
        mods = ''
        if cur.strip():
            last = cur.strip().split(None, 1)
            ops.append(last[0])
            mods = last[1] if len(last) > 1 else ''
        R = [regs_of(o) for o in ops]
        rd, wr = self.rd, self.wr
        if op.startswith('v_mfma') or op.startswith('v_smfmac'):
            self.kind = 'mfma' if op.startswith('v_mfma') else 'smfma'
            wr.update(R[0])
            self.srcab.update(R[1] + R[2])
            if self.kind == 'mfma':
                self.srcc.update(R[3])
            else:
                self.srcc.update(R[0])
                self.srcab.update(R[3])
            rd.update(self.srcab | self.srcc)
        elif op.startswith('v_'):
            base = op.replace('_e32', '').replace('_e64', '')
            self.kind = 'trans' if base in TRANS else 'valu'
            wr.update(R[0])
            for r in R[1:]:
                rd.update(r)
            if base.startswith(('v_fmac', 'v_dot2c', 'v_writelane')):
                rd.update(R[0])
            if base.startswith(('v_swap', 'v_permlane')):
                rd.update(R[0])
                wr.update(R[1])
            if base.startswith('v_cmpx'):
                wr.add('exec')
            if base.startswith(('v_add_co', 'v_sub_co', 'v_addc_co')):
                wr.update(R[1])
        elif op.startswith('ds_read'):
            self.kind = 'dsr'
            wr.update(R[0])
            rd.update(R[1])
        elif op.startswith('ds_'):
            self.kind = 'dsw'
            for r in R:
                rd.update(r)
        elif op.startswith('buffer_load'):
            if re.search(r'\blds\b', mods):
                self.kind = 'dma'
                for r in R:
                    rd.update(r)
                rd.add('m0')
            else:
                self.kind = 'vld'
                wr.update(R[0])
                for r in R[1:]:
                    rd.update(r)
        elif op.startswith('buffer_'):
            self.kind = 'vst'
            for r in R:
                rd.update(r)
            if op.endswith(('x3', 'x4')):
                self.srcc.update(R[0])
        elif op == 's_waitcnt':
            self.kind = 'wait'
        elif op == 's_barrier':
            self.kind = 'bar'
        elif op == 's_nop':
            self.kind = 'nop'
            self.nst = int(ops[0], 0) + 1
        elif op.startswith(('s_load', 's_memtime', 's_memrealtime')):
            self.kind = 'smem'
            wr.update(R[0])
            for r in R[1:]:
                rd.update(r)
        elif op.startswith(('s_branch', 's_cbranch', 's_endpgm', 's_setpc', 's_sleep', 's_setprio')):
            self.kind = 'ctl'
        elif op.startswith('s_cmp') or op.startswith('s_bitcmp'):
            self.kind = 'salu'
            for r in R:
                rd.update(r)
        elif op.startswith('s_'):
            self.kind = 'salu'
            wr.update(R[0])
            for r in R[1:]:
                rd.update(r)
            if 'saveexec' in op:
                wr.add('exec')
        else:
            raise ValueError('unknown instruction: ' + text)


def isv(r):
    return isinstance(r, tuple) and r[0] in 'va'


def iss(r):
    return (isinstance(r, tuple) and r[0] == 's') or r == 'vcc'


EAGER = 10
VEC = ('valu', 'trans')
MF = ('mfma', 'smfma')
VM = ('vld', 'vst', 'dma')
LG = ('dsr', 'dsw')


def hazard(p, c):
    n = 0
    if p.kind in MF:
        if c.kind in MF:
            if p.wr & c.srcab:
                n = max(n, 8)
            if p.wr & c.srcc and p.wr != c.srcc:
                n = max(n, 6)
            if p.wr & c.wr and not (p.wr & c.srcc):
                n = max(n, 6 if p.wr != c.wr else 0)
        elif c.kind in VEC or c.kind in VM or c.kind in LG:
            if p.wr & (c.rd | c.wr):
                n = max(n, 8)
            if c.kind in VEC and p.srcc & c.wr:
                n = max(n, 3)
    elif p.kind in VEC:
        pv = {r for r in p.wr if isv(r)}
        ps = {r for r in p.wr if iss(r)}
        if c.kind in MF and pv & c.rd:
            n = max(n, 2)
        if c.kind in MF and 'exec' in p.wr:
            n = max(n, 4)
        if c.kind in VEC:
            if p.kind == 'trans' and pv & c.rd:
                n = max(n, 1)
            if (c.op.startswith('v_permlane') or 'dpp' in c.op) and pv & c.rd:
                n = max(n, 2)
            if c.op.startswith(('v_readlane', 'v_readfirstlane')) and pv & c.rd:
                n = max(n, 1)
            if ps & c.rd:
                n = max(n, 4 if c.op.startswith(('v_readlane', 'v_writelane')) else 2)
        if c.kind in VM and ps & c.rd:
            n = max(n, 5)
        if c.kind == 'salu' and ps & c.rd:
            n = max(n, 1)
    elif p.kind == 'salu':
        if 'm0' in p.wr and c.kind == 'dma':
            n = max(n, 1)
    elif p.kind == 'vst':
        if p.srcc & c.wr:
            n = max(n, 2)
    return n


class Stream:
    def __init__(self):
        self.l = []

    def __call__(self, text, tag=None, need=None):
        for line in text.strip('\n').split('\n'):
            if line.strip():
                self.l.append(Ins(line.strip(), tag, need))
        return self

    def add(self, ins):
        self.l.append(ins)

    def insert_waits(self):
        out = []
        issued = {'vm': [], 'lg': []}
        done = {'vm': 0, 'lg': 0}
        pend = {}
        tags = {}
        mark = []
        cnt = {'vm': 0, 'lg': 0}
        LIM = {'vm': 62, 'lg': 14}
        for ins in self.l:
            req = {'vm': -1, 'lg': -1}
            if ins.kind != 'meta':
                own = 'vm' if ins.kind in VM else 'lg' if ins.kind in LG else None
                for r in ins.rd | ins.wr:
                    if r in pend:
                        c, s = pend[r]
                        if c == own and r not in ins.rd:
                            continue
                        req[c] = max(req[c], s)
            for t in ins.need:
                if t == '*vm':
                    req['vm'] = cnt['vm'] - 1
                elif t == '*lg':
                    req['lg'] = cnt['lg'] - 1
                else:
                    assert t in tags, 'unknown tag ' + t
                    c, s = tags[t]
                    req[c] = max(req[c], s)
            w = {c: s for c, s in req.items() if s >= done[c]}
            if w:
                pos = len(out)
                k = pos - 1
                while k >= 0 and pos - k <= 4 and out[k].kind not in MF and out[k].kind not in ('meta', 'ctl', 'bar'):
                    k -= 1
                if k >= 0 and pos - k <= 4 and out[k].kind in MF:
                    mk = mark[k]
                    if all(mk[c] > s for c, s in w.items()):
                        pos = k + 1
                base = mark[pos - 1] if pos > 0 else {'vm': 0, 'lg': 0}
                if 'lg' in w:
                    k, nm = pos - 1, 0
                    while k >= 0 and nm < EAGER and pos - k < 60:
                        nm += out[k].kind in MF
                        k -= 1
                    if nm == EAGER and k >= 0:
                        w['lg'] = max(w['lg'], mark[k]['lg'] - 1)
                val = {c: min(base[c] - 1 - s, LIM[c]) for c, s in w.items()}
                merged = False
                for q in (pos - 1, pos):
                    if 0 <= q < len(out) and out[q].kind == 'wait' and getattr(out[q], 'note', None) is not None:
                        old = out[q].note
                        for c, v in val.items():
                            old[c] = min(old.get(c, 99), v)
                        out[q].text = wait_text(old)
                        merged = True
                        break
                if not merged:
                    wi = Ins(wait_text(val))
                    wi.note = dict(val)
                    out.insert(pos, wi)
                    mark.insert(pos, dict(base))
                for c, v in val.items():
                    done[c] = max(done[c], base[c] - v)
                for r in [r for r, (c, s) in pend.items() if s < done[c]]:
                    del pend[r]
            if ins.kind == 'wait':
                ins.note = None
                m = re.search(r'vmcnt\((\d+)\)', ins.text)
                if m:
                    done['vm'] = max(done['vm'], cnt['vm'] - int(m.group(1)))
                m = re.search(r'lgkmcnt\((\d+)\)', ins.text)
                if m:
                    done['lg'] = max(done['lg'], cnt['lg'] - int(m.group(1)))
                for r in [r for r, (c, s) in pend.items() if s < done[c]]:
                    del pend[r]
            c = 'vm' if ins.kind in VM else 'lg' if ins.kind in LG else None
            if c:
                s = cnt[c]
                cnt[c] += 1
                for r in ins.wr:
                    pend[r] = (c, s)
                if ins.tag:
                    tags[ins.tag] = (c, s)
            if ins.op == '@need':
                continue
            out.append(ins)
            mark.append(dict(cnt))
        self.l = out

    def pad_hazards(self):
        out = []
        pads = 0
        for ins in self.l:
            if ins.kind not in ('meta', 'wait', 'nop', 'bar', 'ctl'):
                dist, need = 0, 0
                for p in reversed(out):
                    if dist >= 8:
                        break
                    h = hazard(p, ins)
                    if h > dist:
                        need = max(need, h - dist)
                    dist += p.nst
                if need:
                    n = Ins('s_nop %d' % (need - 1))
                    n.note = 'pad'
                    out.append(n)
                    pads += 1
            out.append(ins)
        self.l = out
        return pads

    def fold(self):
        out, i, l = [], 0, self.l
        while i < len(l):
            ins = l[i]
            if ins.kind == 'meta' and ins.op.startswith('@rep '):
                name = ins.op.split()[1]
                bodies, cur = [], []
                i += 1
                while not (l[i].kind == 'meta' and l[i].op == '@endrep ' + name):
                    if l[i].kind == 'meta' and l[i].op.startswith('@rep ' + name + ' '):
                        bodies.append(cur)
                        cur = []
                    else:
                        cur.append(l[i])
                    i += 1
                bodies.append(cur)
                t0 = [x.text for x in bodies[0]]
                for k, b in enumerate(bodies[1:]):
                    tb = [x.text for x in b]
                    if tb != t0:
                        for a_, b_ in zip(t0, tb):
                            if a_ != b_:
                                raise AssertionError('loop %s copy %d differs: %r vs %r' % (name, k + 1, a_, b_))
                        raise AssertionError('loop %s copy %d length differs' % (name, k + 1))
                out.append(Ins('.p2align 3'))
                out.append(Ins(name + ':'))
                out += bodies[0]
                i += 1
            else:
                out.append(ins)
                i += 1
        self.l = out

    def align(self):
        import subprocess, tempfile, os
        uniq = sorted({x.text for x in self.l if x.kind not in ('meta', 'ctl') and 'L_' not in x.text})
        d = tempfile.mkdtemp()
        open(d + '/a.s', 'w').write('.amdgcn_target "amdgcn-amd-amdhsa--gfx950"\n.text\n' + '\n'.join(uniq) + '\n')
        subprocess.check_call(['clang', '-x', 'assembler', '-target', 'amdgcn-amd-amdhsa', '-mcpu=gfx950', '-c', d + '/a.s', '-o', d + '/a.o'])
        dis = subprocess.check_output(['llvm-objdump', '-d', '--mcpu=gfx950', d + '/a.o']).decode()
        sz = [4 * len(m.group(1).split()) for m in re.finditer(r'// [0-9A-F]{12}: ([0-9A-F ]+)', dis)]
        assert len(sz) == len(uniq)
        size = dict(zip(uniq, sz))
        def sizeof(x):
            return 0 if x.kind == 'meta' else 4 if x.kind == 'ctl' else size.get(x.text, 8)
        out, off, fixes = [], 0, 0
        l = self.l
        for i, x in enumerate(l):
            if x.kind == 'meta' and x.text.startswith('.p2align'):
                off = 0
            if off % 8 and x.kind in VEC and sizeof(x) == 8:
                run, k = 0, i
                while k < len(l) and l[k].kind not in MF and sizeof(l[k]) == 8:
                    run, k = run + 1, k + 1
                pv = out[-1]
                if run >= 3 and pv.kind in VEC and sizeof(pv) == 4 and not pv.op.startswith(('v_accvgpr', 'v_readfirst', 'v_permlane', 'v_swap')):
                    t = pv.text.replace(pv.op, pv.op + '_e64', 1)
                    size[t] = 8
                    pv.text = t
                    off += 4
                    fixes += 1
                elif run >= 6:
                    out.append(Ins('s_nop 0'))
                    off += 4
                    fixes += 1
            out.append(x)
            off += sizeof(x)
        self.l = out
        return fixes

    def estimate(self):
        res, sec = [], None
        t = mf = vec = 0
        t0, nm = 0, 0
        prev = None
        for ins in self.l:
            if ins.kind == 'meta':
                if ins.op.startswith('@sec '):
                    if sec:
                        res.append((sec, t - t0, nm))
                    sec, t0, nm = ins.op[5:], t, 0
                continue
            k = ins.kind
            if k in MF:
                s = max(t, mf, vec)
                mf, vec, t = s + 16, s + (8 if k == 'mfma' else 12), s + 4
                nm += 1
            elif k in VEC:
                s = max(t, vec)
                if ins.op.startswith(('v_pk_', 'v_dot2')):
                    s = max(s, mf)
                    mf = s + 4
                t = s + (8 if k == 'trans' or ins.op.startswith(('v_permlane', 'v_swap')) else 4)
            elif k in LG:
                s = max(t, vec) + (8 if prev in VEC else 0)
                t = s + 4
            elif k in VM:
                t = t + (8 if prev in VEC else 0) + 12
            elif k == 'nop':
                t += 4 * ins.nst
            else:
                t += 4
            prev = k
        if sec:
            res.append((sec, t - t0, nm))
        return res

    def text(self):
        o = []
        for ins in self.l:
            if ins.kind == 'meta':
                if ins.op.startswith('@'):
                    if ins.op.startswith('@sec '):
                        o.append('; ---- ' + ins.op[5:])
                    continue
                o.append(ins.text)
            else:
                o.append('    ' + ins.text)
        return '\n'.join(o) + '\n'


def wait_text(val):
    p = []
    if 'vm' in val:
        p.append('vmcnt(%d)' % val['vm'])
    if 'lg' in val:
        p.append('lgkmcnt(%d)' % val['lg'])
    return 's_waitcnt ' + ' '.join(p)


def vr(f, b, n=1):
    return '%s%d' % (f, b) if n == 1 else '%s[%d:%d]' % (f, b, b + n - 1)
```

```python
import math
import struct
import sys

sys.path.insert(0, 'work')
from asmgen import Ins, Stream, vr

NAME = 'recurrent_scan__gqa_block_cached__mixer_s_mlp__prompt'


def f2u(x):
    return '0x%08x' % struct.unpack('<I', struct.pack('<f', x))[0]


H_OFF = 0
X1_OFF = 0x200000
FLAG_OFF = 0x400000
ST_OFF = 0x600000
SP_OFF = 0x1000000
YP_OFF = 0x2000000
PROF_OFF = 0x8000000
OOB = 0x40000000

ACT = 0
KRING, VRING = 0, 32768
WREG = 65536
WWAVE = 24576

SX, SK, SV, SWQ, SWO, SW1, SW2, SW3, SW4, SOUT, SDBG, SWS, SH, SCODE = range(4, 60, 4)
sT, sJ, sW, sTBG, sRING, sW2K = 60, 61, 62, 63, 64, 65
sOA, sOB, sKO, sVO, sCNT, sRET = 66, 67, 68, 69, 70, 71
sT0, sT1, sT2, sT3 = 72, 73, 74, 75
sC0 = 76
sPASS, sSH = 80, 81
sWA, sWB, sWC, sXO = 86, 87, 88, 89
sW3, sW4, sINV, sSPO, sYPO, sSPI, sCF, sFS, sFY, sCW = range(90, 100)
sST = 82

vL = 0
vTR = 1
vKA = 9
vACT = 13
vDA, vDB = 14, 18
vFLAG, vONE, vPOFF, vPRES = 22, 23, 24, 25
vT = 26
vIDX = 31
vS, vP = 32, 48
vX = 64
vACC = 128
aK, aV, aONES, aL, aX1, aQ = 0, 64, 128, 132, 140, 192
aPROF, aDUMMY, aSTAT, aRES = 150, 152, 156, 160

CSCALE = math.log2(math.e) / math.sqrt(128.0)
K1 = 2 * 0.7978845608028654 * math.log2(math.e)
K2 = K1 * 0.044715


def srd(n):
    return 's[%d:%d]' % (n, n + 3)


def mfma(d, a, b, c=None):
    return 'v_mfma_f32_16x16x32_bf16 %s, %s, %s, %s' % (d, a, b, d if c is None else c)


class Job:
    def __init__(self, ins, pre=(), m0=None, post=()):
        self.ins = ins if isinstance(ins, Ins) else Ins(ins)
        self.pre, self.m0, self.post = list(pre), m0, list(post)


class Plan:
    def __init__(self):
        self.mf, self.g = [], []

    def add(self, m):
        self.mf.append(m)
        self.g.append(dict(sc=[], ds=[], vm=[], va=[], end=[]))
        return len(self.mf) - 1

    def cap(self, j):
        g = self.g[j]
        if g['vm'] or g['end']:
            return 0
        c = 1 if self.mf[j].startswith('v_smfmac') else 2
        return c - len(g['ds']) - sum(vcost(x) for x in g['va']) - max(0, len(g['sc']) - 1)

    def jobs(self, groups, pos, lo=0, avoid=()):
        prev, pend = lo - 1, []
        for (pre, d, post), p in zip(groups, pos):
            self.scalars(pend + pre, prev + 1, p, avoid, late=True)
            assert not self.g[p]['vm'], 'gap %d already holds a memory instruction' % p
            self.g[p]['vm'].append(d)
            prev, pend = p, post
        return prev, pend

    def scalars(self, sc, a, b, avoid=(), late=False):
        if not sc:
            return
        c = [j for j in range(a, b) if not self.g[j]['vm'] and not self.g[j]['sc'] and j not in avoid]
        if len(c) < len(sc):
            c = [j for j in range(a, b) if not self.g[j]['vm']]
        if not c:
            self.g[b]['sc'] += sc
            return
        c = c[-len(sc):] if late else c[:len(sc)]
        for k, x in enumerate(sc):
            self.g[c[min(k, len(c) - 1)]]['sc'].append(x)

    def fill(self, va, start=0, end=None):
        va, j = list(va), start
        end = len(self.mf) if end is None else end
        while va and j < end:
            if self.cap(j) >= vcost(va[0]):
                self.g[j]['va'].append(va.pop(0))
            else:
                j += 1
        return va

    def emit(self, gen):
        for m, g in zip(self.mf, self.g):
            gen.put([m] + g['sc'] + g['vm'] + g['ds'] + g['va'] + g['end'])


def vcost(x):
    t = x.text if isinstance(x, Ins) else x
    return 2 if t.startswith(('v_exp', 'v_rcp', 'v_rsq', 'v_permlane')) else 1


class Gen:
    def __init__(self, prof=False, opts=None):
        self.s = Stream()
        self.tail = []
        self.prof = prof
        self.o = opts or {}
        self.nstamp = 0
        self.nlab = 0

    def stamp(self, name=None):
        if not self.prof:
            return
        e = self.s
        sec = [x.op[5:] for x in e.l if x.kind == 'meta' and x.op.startswith('@sec ')][-1]
        self.tail.append('; @@' + (name or sec))
        e('s_waitcnt lgkmcnt(0)')
        e('s_memtime s[%d:%d]\ns_memrealtime s[%d:%d]\ns_waitcnt lgkmcnt(0)' % (sST, sST + 1, sST + 2, sST + 3))
        for k in range(2):
            e('v_accvgpr_read_b32 v%d, a%d' % (vONE, aPROF + k))
            e('s_nop 1\nv_writelane_b32 v%d, s%d, %d' % (vONE, sST + 2 * k, self.nstamp))
            e('v_accvgpr_write_b32 a%d, v%d' % (aPROF + k, vONE))
        e('v_mov_b32 v%d, 1' % vONE)
        self.nstamp += 1

    def stamp_items(self, name):
        main, self.s = self.s, Stream()
        self.s('@sec ' + name)
        self.stamp(name)
        items, self.s = self.s.l[1:], main
        return items

    def weave(self, mf, gaps):
        for j, m in enumerate(mf):
            self.s.add(m if isinstance(m, Ins) else Ins(m))
            for g in gaps.get(j, []):
                self.s.add(g if isinstance(g, Ins) else Ins(g))

    def poll_load(self, buf):
        return Job('buffer_load_dword v%d, v%d, %s, 0 offen sc1' % (vPRES, vPOFF, srd(buf)))

    def poll_check(self, buf, val):
        self.nlab += 1
        n = self.nlab
        cmp = 'v_cmp_ne_u32' if val == 1 else 'v_cmp_gt_u32'
        self.tail.append('''L_spin%(n)d:
    s_mov_b32 s%(c)d, 0x80000
L_spin%(n)d_loop:
    buffer_load_dword v%(r)d, v%(o)d, %(b)s, 0 offen sc1
    s_waitcnt vmcnt(0)
    %(cmp)s vcc, %(v)d, v%(r)d
    s_cbranch_vccz L_back%(n)d
    s_sub_u32 s%(c)d, s%(c)d, 1
    s_cbranch_scc0 L_spin%(n)d_loop
    s_branch L_back%(n)d''' % dict(n=n, c=sT3, r=vPRES, o=vPOFF, b=srd(buf), v=val, cmp=cmp))
        return [Ins('%s vcc, %d, v%d' % (cmp, val, vPRES)), Ins('s_cbranch_vccnz L_spin%d' % n), Ins('L_back%d:' % n)]

    def flag_store(self, phase, need):
        return Job(Ins('buffer_store_dword v%d, v%d, %s, s%d offen sc1' % (vONE, vFLAG, srd(SWS), sT2), need=need),
                   pre=['s_mov_b32 s%d, 0x%x' % (sT2, FLAG_OFF + phase * 131072)])

    def tr256(self, base_s=None, base_c=0):
        e = self.s
        e('v_lshrrev_b32 v%d, 2, v%d' % (vT, vL))
        e('v_and_b32 v%d, 7, v%d' % (vT + 1, vT))
        e('v_lshlrev_b32 v%d, 5, v%d' % (vT + 1, vT + 1))
        e('v_lshl_or_b32 v%d, v%d, 8, v%d' % (vT, vT, vT + 1))
        e('v_and_b32 v%d, 3, v%d' % (vT + 1, vL))
        e('v_lshl_or_b32 v%d, v%d, 3, v%d' % (vT, vT + 1, vT))
        if base_s is not None:
            e('v_add_u32 v%d, s%d, v%d' % (vT, base_s, vT))
        if base_c:
            e('v_add_u32 v%d, 0x%x, v%d' % (vT, base_c, vT))
        for db in range(8):
            e('v_xor_b32 v%d, 0x%x, v%d' % (vTR + db, db << 5, vT))

    def tr128_base(self, dst):
        e = self.s
        e('v_lshrrev_b32 v%d, 2, v%d' % (dst, vL))
        e('v_bfe_u32 v%d, v%d, 3, 2' % (vT + 1, vL))
        e('v_lshlrev_b32 v%d, 5, v%d' % (vT + 1, vT + 1))
        e('v_lshl_or_b32 v%d, v%d, 7, v%d' % (dst, dst, vT + 1))
        e('v_and_b32 v%d, 3, v%d' % (vT + 1, vL))
        e('v_lshl_or_b32 v%d, v%d, 3, v%d' % (dst, vT + 1, dst))

    def dma256_offsets(self, dst, stride, rowstep):
        o = []
        o.append('v_lshrrev_b32 v%d, 4, v%d' % (vT, vL))
        o.append('v_and_b32 v%d, 15, v%d' % (vT + 1, vL))
        o.append('v_lshlrev_b32 v%d, 1, v%d' % (vT + 2, vT))
        o.append('v_xor_b32 v%d, v%d, v%d' % (vT + 1, vT + 1, vT + 2))
        o.append('v_lshlrev_b32 v%d, 4, v%d' % (vT + 1, vT + 1))
        o.append('v_mul_u32_u24 v%d, 0x%x, v%d' % (vT, stride, vT))
        o.append('v_add_u32 v%d, v%d, v%d' % (dst, vT, vT + 1))
        o.append('v_xor_b32 v%d, 0x80, v%d' % (vT, dst))
        o.append('v_add_u32 v%d, 0x%x, v%d' % (dst + 1, rowstep * stride - 1024, vT))
        o.append('v_add_u32 v%d, 0x%x, v%d' % (dst + 2, 2 * (rowstep * stride - 1024), dst))
        o.append('v_add_u32 v%d, 0x%x, v%d' % (dst + 3, 3 * (rowstep * stride - 1024), vT))
        return o

    def dma128_offsets(self, dst, stride, natural_k, split=False):
        o = []
        o.append('v_and_b32 v%d, 7, v%d' % (vT + 1, vL))
        o.append('v_bfe_u32 v%d, v%d, 4, 2' % (vT + 2, vL))
        o.append('v_lshlrev_b32 v%d, 1, v%d' % (vT + 2, vT + 2))
        o.append('v_xor_b32 v%d, v%d, v%d' % (vT + 1, vT + 1, vT + 2))
        if split:
            o.append('v_lshrrev_b32 v%d, 2, v%d' % (vT + 2, vT + 1))
            o.append('v_mad_u32_u24 v%d, v%d, 28, v%d' % (vT + 1, vT + 2, vT + 1))
        o.append('v_lshlrev_b32 v%d, 4, v%d' % (vT + 1, vT + 1))
        if natural_k:
            o.append('v_bfe_u32 v%d, v%d, 3, 2' % (vT, vL))
            o.append('v_lshrrev_b32 v%d, 5, v%d' % (vT + 2, vL))
            o.append('v_lshl_or_b32 v%d, v%d, 3, v%d' % (vT, vT + 2, vT))
            rows = [16 * (a & 1) + 4 * (a >> 1) for a in range(4)]
        else:
            o.append('v_lshrrev_b32 v%d, 3, v%d' % (vT, vL))
            rows = [8 * a for a in range(4)]
        o.append('v_mul_u32_u24 v%d, 0x%x, v%d' % (vT, stride, vT))
        o.append('v_add_u32 v%d, v%d, v%d' % (dst, vT, vT + 1))
        for a in range(1, 4):
            o.append('v_add_u32 v%d, 0x%x, v%d' % (dst + a, rows[a] * stride - 1024 * a, dst))
        return o

    def wslot(self, q, buf, voff, soff, steps, tag):
        res = []
        for g in range(2):
            for i in range(4):
                post = ['s_add_u32 s%d, s%d, 0x%x' % (soff, soff, steps[g] & 0xffffffff)] if i == 3 else []
                res.append(Job(Ins('buffer_load_dwordx4 v%d, %s, s%d offen offset:%d lds' % (voff + i, srd(buf), soff, 1024 * i), tag=tag),
                               m0='s_add_u32 m0, s%d, 0x%x' % (sRING, (q % 3) * 8192 + g * 4096), post=post))
        return res

    def flat(self, jobs):
        res, m0 = [], None
        for jb in jobs:
            pre = list(jb.pre)
            if jb.m0 and jb.m0 != m0:
                pre.append(jb.m0)
                m0 = jb.m0
            res.append((pre, jb.ins, list(jb.post)))
        return res

    def emit_jobs(self, jobs):
        for pre, d, post in self.flat(jobs):
            self.put(pre + [d] + post)

    def put(self, items):
        for x in items:
            self.s.add(x if isinstance(x, Ins) else Ins(x))

    def sprinkle(self, main, groups, start=0, every=8):
        groups = list(groups)
        for k, x in enumerate(main):
            if groups and k >= start and (k - start) % every == 0:
                pre, d, post = groups.pop(0)
                self.put(pre + [d] + post)
            self.put([x])
        for pre, d, post in groups:
            self.put(pre + [d] + post)

    def lanesum(self, r, t=vT + 5):
        o = []
        for op in ('v_permlane32_swap_b32', 'v_permlane16_swap_b32'):
            o += ['v_mov_b32 v%d, v%d' % (t, r), '%s v%d, v%d' % (op, t, r), 'v_add_f32 v%d, v%d, v%d' % (r, r, t)]
        return o

    def layernorm(self, scale, landed, jobs):
        e = self.s
        A = vS
        st, ev = int(self.o.get('p1_start', 6)), int(self.o.get('p1_every', 4))
        for k in range(64):
            if k >= st and (k - st) % ev == 0 and self.pass1_jobs:
                e(self.pass1_jobs.pop(0))
            e('v_lshlrev_b32 v%d, 16, v%d' % (vACC + 2 * k, vX + k))
            e('v_and_b32 v%d, 0xffff0000, v%d' % (vACC + 2 * k + 1, vX + k))
            if k >= 1:
                kk = k - 1
                a = A + 2 * (kk % 4)
                if kk >= 8:
                    e('v_pk_add_f32 %s, %s, %s' % (vr('v', a, 2), vr('v', a, 2), vr('v', vACC + 2 * kk, 2)))
                elif kk >= 4:
                    e('v_pk_add_f32 %s, %s, %s' % (vr('v', a, 2), vr('v', vACC + 2 * (kk - 4), 2), vr('v', vACC + 2 * kk, 2)))
        e('v_pk_add_f32 %s, %s, %s' % (vr('v', A + 6, 2), vr('v', A + 6, 2), vr('v', vACC + 126, 2)))
        landed()
        o = []
        fold4 = ['v_pk_add_f32 %s, %s, %s' % (vr('v', A, 2), vr('v', A, 2), vr('v', A + 2, 2)),
                 'v_pk_add_f32 %s, %s, %s' % (vr('v', A + 4, 2), vr('v', A + 4, 2), vr('v', A + 6, 2)),
                 'v_pk_add_f32 %s, %s, %s' % (vr('v', A, 2), vr('v', A, 2), vr('v', A + 4, 2)),
                 'v_add_f32 v%d, v%d, v%d' % (A + 8, A, A + 1)] + self.lanesum(A + 8) + ['v_mul_f32 v%d, %s, v%d' % (A + 8, f2u(1.0 / 512), A + 8)]
        o += fold4
        for k in range(65):
            if k < 64:
                d = vr('v', vACC + 2 * k, 2)
                o.append('v_pk_add_f32 %s, %s, %s op_sel_hi:[1,0] neg_lo:[0,1] neg_hi:[0,1]' % (d, d, vr('v', A + 8, 2)))
            if k >= 1:
                kk = k - 1
                d, a = vr('v', vACC + 2 * kk, 2), vr('v', A + 2 * (kk % 4), 2)
                o.append('v_pk_fma_f32 %s, %s, %s, %s' % (a, d, d, a) if kk >= 4 else 'v_pk_mul_f32 %s, %s, %s' % (a, d, d))
        o += fold4
        o.append('v_add_f32 v%d, %s, v%d' % (A + 10, f2u(1e-5), A + 8))
        o.append('v_rsq_f32 v%d, v%d' % (A + 10, A + 10))
        o.append('v_mul_f32 v%d, v%d, v%d' % (A + 9, A + 10, A + 10))
        o.append('v_fmaak_f32 v%d, v%d, v%d, %s' % (A + 9, A + 9, A + 8, f2u(1e-5)))
        o.append('v_rsq_f32 v%d, v%d' % (A + 9, A + 9))
        o.append('v_mul_f32 v%d, %s, v%d' % (A + 10, f2u(scale), A + 10))
        o.append('v_mul_f32 v%d, %s, v%d' % (vT + 4, f2u(1.0 / scale), A + 9))
        o.append('v_lshl_add_u32 v%d, s%d, 14, v%d' % (vT, sW, vACT))
        for ks in range(16):
            for k in range(4 * ks, 4 * ks + 4):
                d = vr('v', vACC + 2 * k, 2)
                o.append('v_pk_mul_f32 %s, %s, %s op_sel_hi:[1,0]' % (d, d, vr('v', A + 10, 2)))
            for k in range(4 * ks, 4 * ks + 4):
                o.append('v_cvt_pk_bf16_f32 v%d, v%d, v%d' % (vX + k, vACC + 2 * k, vACC + 2 * k + 1))
            o.append('ds_write_b128 v%d, %s offset:%d' % (vT, vr('v', vX + 4 * ks, 4), 1024 * ks))
        self.sprinkle(o, self.flat(jobs), start=int(self.o.get('ln_start', 140)), every=int(self.o.get('ln_every', 5)))

    def gelu_consts(self):
        self.s('s_mov_b32 s%d, %s\ns_mov_b32 s%d, %s' % (sC0, f2u(-K2), sC0 + 1, f2u(-K2)))
        self.s('v_mov_b32 v%d, %s' % (vT + 2, f2u(-K1)))

    def gelu4(self, src, dst, tmp, scale=None):
        o = []
        e = o.append
        P = lambda b: vr('v', b, 2)
        if scale is not None:
            for h in (0, 2):
                e('v_pk_mul_f32 %s, %s, %s op_sel_hi:[1,0]' % (P(src + h), P(src + h), P(scale)))
        for h in (0, 2):
            e('v_pk_mul_f32 %s, %s, %s' % (P(tmp + h), P(src + h), P(src + h)))
        for h in (0, 2):
            e('v_pk_fma_f32 %s, %s, s[%d:%d], %s op_sel_hi:[1,1,0]' % (P(tmp + h), P(tmp + h), sC0, sC0 + 1, P(vT + 2)))
        for h in (0, 2):
            e('v_pk_mul_f32 %s, %s, %s' % (P(tmp + h), P(tmp + h), P(src + h)))
        for r in range(4):
            e('v_exp_f32 v%d, v%d' % (tmp + r, tmp + r))
        for h in (0, 2):
            e('v_pk_add_f32 %s, %s, 1.0 op_sel_hi:[1,0]' % (P(tmp + h), P(tmp + h)))
        for r in range(4):
            e('v_rcp_f32 v%d, v%d' % (tmp + r, tmp + r))
        for h in (0, 2):
            e('v_pk_mul_f32 %s, %s, %s' % (P(tmp + h), P(tmp + h), P(src + h)))
        for h in (0, 2):
            e('v_cvt_pk_bf16_f32 v%d, v%d, v%d' % (dst + h // 2, tmp + h, tmp + h + 1))
        return o

    def g16(self, accf, acc, ring, lo, hi, sync):
        e = self.s
        t = hi + 3
        e('v_lshrrev_b32 v%d, 2, v%d\nv_bfe_u32 v%d, v%d, 3, 2' % (t, vL, lo, vL))
        e('v_lshlrev_b32 v%d, 5, v%d\nv_lshl_or_b32 v%d, v%d, 7, v%d' % (lo, lo, t, t, lo))
        e('v_and_b32 v%d, 3, v%d\nv_lshl_or_b32 v%d, v%d, 3, v%d' % (lo, vL, t, lo, t))
        e('v_add_u32 v%d, 0x%x, v%d' % (lo, WREG + 8192, t))
        for nb in range(1, 4):
            e('v_xor_b32 v%d, 0x%x, v%d' % (lo + nb, nb << 5, lo))
        for nb in range(4):
            e('v_add_u32 v%d, 0x%x, v%d' % (hi + nb, 2 * WWAVE, lo + nb))

        def rd(n):
            ks, nb = n >> 2, n & 3
            off = ((ks >> 2) & 1) * WWAVE + (ks & 3) * 4096
            return ['ds_read_b64_tr_b16 %s, v%d offset:%d' % (vr('a', ring + 4 * (n % 8) + 2 * g, 2), (hi if ks >= 8 else lo) + nb, off + 2048 * g) for g in range(2)]
        sync()
        AH = 6
        for n in range(AH):
            self.put(rd(n))
        p = Plan()
        for n in range(64):
            ks, nb = n >> 2, n & 3
            p.add(mfma(vr(accf, acc + 4 * nb, 4), vr('a', ring + 4 * (n % 8), 4), vr('v', vX + 4 * ks, 4), '0' if ks == 0 else None))
            if n + AH < 64:
                p.g[n]['ds'] += rd(n + AH)
        p.emit(self)

    def g64(self, nks, tagf, dmas, fill=(), fill_from=0, stamps=()):
        WF, AF, AH = 0, 16, 3

        def wrd(n):
            ks, nb = n >> 3, n & 7
            return [Ins('ds_read_b64_tr_b16 %s, v%d offset:%d' % (vr('a', WF + 4 * (n % 4) + 2 * g, 2), vTR + nb, (ks % 3) * 8192 + 4096 * g),
                        need=[tagf(ks)] if (nb == 0 and g == 0) else None) for g in range(2)]

        def ard(ks, tb):
            return 'ds_read_b128 %s, v%d offset:%d' % (vr('a', AF + 16 * (ks & 1) + 4 * tb, 4), vACT, (tb * 16 + ks) * 1024)
        self.put([ard(0, tb) for tb in range(4)])
        for n in range(AH):
            self.put(wrd(n))
        p = Plan()
        groups, pos = [], []
        for ks in range(nks):
            for nb in range(8):
                n = 8 * ks + nb
                for tb in range(4):
                    p.add(mfma(vr('v', vACC + 16 * nb + 4 * tb, 4), vr('a', WF + 4 * (n % 4), 4),
                               vr('a', AF + 16 * (ks & 1) + 4 * tb, 4), '0' if ks == 0 else None))
                if n + AH < 8 * nks:
                    w = wrd(n + AH)
                    p.g[4 * n]['ds'].append(w[0])
                    p.g[4 * n + 1]['ds'].append(w[1])
                if ks + 1 < nks and nb in (1, 2, 3, 5):
                    p.g[4 * n + 1]['ds'].append(ard(ks + 1, (1, 2, 3, 5).index(nb)))
            if ks in dmas:
                groups += self.flat(dmas[ks])
                pos += [32 * ks + 4 * nb + 2 for nb in range(8)]
        _, pend = p.jobs(groups, pos, avoid=set(range(3, 32 * nks, 4)))
        rest = p.fill(fill, fill_from)
        for ks in stamps:
            p.g[32 * ks - 1]['end'] += self.stamp_items('ks%d' % ks)
        p.emit(self)
        self.put(pend + rest)

    def g64h(self, ngr, h0, ntb, accf, firstf, actf, dmas):
        WF, AF, AH = 0, 16, 3

        def wrd(n):
            gi, b = n >> 2, n & 3
            return [Ins('ds_read_b64_tr_b16 %s, v%d offset:%d' % (vr('a', WF + 4 * (n % 4) + 2 * g, 2), vKA + b, ((h0 + gi) % 6) * 4096 + 2048 * g),
                        need=['w%d' % (h0 + gi)] if (b == 0 and g == 0) else None) for g in range(2)]

        def ard(gi, tb):
            return 'ds_read_b128 %s, v%d offset:%d' % ((vr('a', AF + 16 * (gi & 1) + 4 * tb, 4),) + actf(gi, tb))
        self.put([ard(0, tb) for tb in range(4)])
        for n in range(AH):
            self.put(wrd(n))
        p = Plan()
        groups, pos, start = [], [], []
        for gi in range(ngr):
            j0 = len(p.mf)
            start.append(j0)
            for b in range(4):
                n = 4 * gi + b
                for tb in range(ntb[b]):
                    p.add(mfma(vr('v', accf(gi, b) + 4 * tb, 4), vr('a', WF + 4 * (n % 4), 4),
                               vr('a', AF + 16 * (gi & 1) + 4 * tb, 4), '0' if firstf(gi) else None))
                if n + AH < 4 * ngr:
                    w = wrd(n + AH)
                    p.g[j0 + 4 * b]['ds'].append(w[0])
                    p.g[j0 + 4 * b + 1]['ds'].append(w[1])
            if gi + 1 < ngr:
                for tb, o in enumerate((1, 3, 4, 5)):
                    p.g[j0 + o]['ds'].append(ard(gi + 1, tb))
            if gi in dmas:
                groups += self.flat(dmas[gi])
                pos += [j0 + o for o in ((2, 6, 10, 14) if ntb[3] == 4 else (2, 6, 10, 11))]
        _, pend = p.jobs(groups, pos)
        return p, start, pend

    def pack_frag(self, a0, a1):
        return ['v_cvt_pk_bf16_f32 v%d, v%d, v%d' % (a1 + 3, a1 + 2, a1 + 3), 'v_cvt_pk_bf16_f32 v%d, v%d, v%d' % (a1 + 2, a1, a1 + 1),
                'v_cvt_pk_bf16_f32 v%d, v%d, v%d' % (a1, a0, a0 + 1), 'v_cvt_pk_bf16_f32 v%d, v%d, v%d' % (a1 + 1, a0 + 2, a0 + 3)]

    def part_store(self, reg, base_s, off, tag):
        return Job(Ins('buffer_store_dwordx4 %s, v%d, %s, s%d offen sc1' % (vr('v', reg, 4), vACT, srd(SWS), sT1), tag=tag),
                   pre=['s_add_u32 s%d, s%d, 0x%x' % (sT1, base_s, off)])

    def gather(self, f, dst, soff, ks, nt=''):
        res, cur = [], None
        for k in ks:
            pre = []
            if k >> 2 != cur:
                cur = k >> 2
                pre = ['s_add_u32 s%d, s%d, 0x%x' % (sRET, soff, 4096 * cur)]
            res.append(Job('buffer_load_dwordx4 %s, v%d, %s, s%d offen offset:%d sc1%s' % (vr(f, dst + 4 * k, 4), vACT, srd(SWS), sRET, 1024 * (k % 4), nt), pre=pre))
        return res

    def prologue(self):
        e = self.s
        xmap = int(self.o.get('xmap', 0))
        self.nsh = 16 if xmap else 32
        D = vr('a', aDUMMY, 4)
        e('@sec prologue')
        bufs = [(SX, 0, 0x200000), (SWQ, 24, 0x400000), (SWS, 96, 0x10000000), (SW1, 48, 0x80000), (SW2, 56, 0x80000), (SDBG, 88, 256), (SK, 8, 0x80000),
                (SV, 16, 0x80000), (SWO, 32, 0x400000), (SW3, 64, 0x1c0000), (SW4, 72, 0x1c0000), (SOUT, 80, 0x200000)]
        for b, off, _ in bufs[:2]:
            e('s_load_dwordx2 s[%d:%d], s[0:1], %d' % (b, b + 1, off))
        e('s_cmp_ge_u32 s2, 256\ns_cbranch_scc1 L_end')
        if self.prof:
            e('v_accvgpr_write_b32 a%d, 0\nv_accvgpr_write_b32 a%d, 0' % (aPROF, aPROF + 1))
        e('s_getpc_b64 s[%d:%d]\nL_pc:' % (SCODE, SCODE + 1))
        e('s_mov_b32 s%d, L_code_end-L_pc\ns_mov_b32 s%d, 0x20000' % (SCODE + 2, SCODE + 3))
        e('v_lshlrev_b32 v%d, 4, v0\ns_lshr_b32 s%d, s2, 3\ns_lshl_b32 s%d, s%d, 12' % (vT + 3, sT0, sT0, sT0))
        e('buffer_load_dwordx4 %s, v%d, %s, s%d offen' % (D, vT + 3, srd(SCODE), sT0))
        e('v_readfirstlane_b32 s%d, v0' % sW)
        if xmap:
            e('s_and_b32 s%d, s2, 3\ns_lshl_b32 s%d, s%d, 1\ns_bfe_u32 s%d, s2, 0x10003\ns_or_b32 s%d, s%d, s%d' % (sJ, sJ, sJ, sT0, sJ, sJ, sT0))
            e('s_lshr_b32 s%d, s2, 4\ns_bfe_u32 s%d, s2, 0x10002\ns_lshl_b32 s%d, s%d, 4\ns_or_b32 s%d, s%d, s%d' % (sSH, sT0, sT0, sT0, sT, sSH, sT0))
        else:
            e('s_and_b32 s%d, s2, 7\ns_lshr_b32 s%d, s2, 3\ns_mov_b32 s%d, s%d' % (sJ, sT, sSH, sT))
        e('s_lshr_b32 s%d, s%d, 6' % (sW, sW))
        e('v_and_b32 v0, 63, v0')
        e('s_lshl_b32 s%d, s%d, 2\ns_add_u32 s%d, s%d, s%d' % (sTBG, sT, sTBG, sTBG, sW))
        e('v_and_b32 v%d, 15, v%d\nv_lshlrev_b32 v%d, 10, v%d' % (vT + 4, vL, vT + 4, vT + 4))
        e('v_and_or_b32 v%d, v%d, 48, v%d' % (vT + 4, vL, vT + 4))
        e('v_lshlrev_b32 v%d, 4, v%d' % (vACT, vL))
        e('s_lshl_b32 s%d, s%d, 14' % (sT0, sTBG))
        for b, _, size in bufs[:2]:
            e('s_mov_b32 s%d, 0x%x\ns_mov_b32 s%d, 0x20000' % (b + 2, size, b + 3))
        nw = 128 // self.nsh
        e('s_lshl_b32 s%d, s%d, 2\ns_add_u32 s%d, s%d, s%d' % (sWA, sSH, sWA, sWA, sW))
        e('s_lshl_b32 s%d, s%d, 13\ns_lshl_b32 s%d, s%d, 10\ns_add_u32 s%d, s%d, s%d' % (sVO, sWA, sOB, sJ, sVO, sVO, sOB))
        e('s_waitcnt lgkmcnt(0)')
        self.stamp('kernarg')
        for b, off, _ in bufs[2:]:
            e('s_load_dwordx2 s[%d:%d], s[0:1], %d' % (b, b + 1, off))
        wq_first = int(self.o.get('wq_first', 1))
        xl = ['buffer_load_dwordx4 %s, v%d, %s, s%d offen offset:%d' % (vr('v', vX + 4 * ks, 4), vT + 4, srd(SX), sT0, 64 * ks) for ks in range(16)]
        wl = ['buffer_load_dwordx4 %s, v%d, %s, s%d offen\ns_add_u32 s%d, s%d, 0x%x' % (D, vACT, srd(SWQ), sVO, sVO, sVO, 8192 * 4 * self.nsh) for i in range(nw)]
        for x in wl[:wq_first] + xl:
            e(x)
        self.pass1_jobs = wl[wq_first:]
        self.stamp('x issued')
        for b, _, size in bufs[2:] + [(SH, 0, 0x200000)]:
            e('s_mov_b32 s%d, 0x%x\ns_mov_b32 s%d, 0x20000' % (b + 2, size, b + 3))
        e('s_mul_i32 s%d, s%d, %d\ns_add_u32 s%d, s%d, %d' % (sRING, sW, WWAVE, sRING, sRING, WREG))
        e('s_lshl_b32 s%d, s%d, 11' % (sW2K, sW))
        e('v_mov_b32 v%d, 1' % vONE)
        self.put(self.dma256_offsets(vDB, 8192, 8))
        e('s_lshl_b32 s%d, s%d, 8\ns_add_u32 s%d, s%d, s%d' % (sT0, sW, sOB, sOB, sT0))
        RS, Z, WR = vKA + 1, vKA + 2, vP
        e('v_lshrrev_b32 v%d, 2, v%d\nv_lshlrev_b32 v%d, 17, v%d' % (RS, vL, RS, RS))
        e('v_and_b32 v%d, 3, v%d\nv_lshl_or_b32 v%d, v%d, 10, v%d' % (vT + 5, vL, RS, vT + 5, RS))
        e('v_mov_b32 v%d, 0x%x' % (vT + 5, OOB))
        e('v_cmp_gt_u32 vcc, 0x80, v%d' % (vT + 3))
        e('s_lshl_b32 s%d, s%d, 10\ns_lshl_b32 s%d, s%d, 7\ns_add_u32 s%d, s%d, s%d' % (sT1, sTBG, sT2, sJ, sT1, sT1, sT2))
        e('v_cndmask_b32 v%d, v%d, v%d, vcc' % (RS, vT + 5, RS))
        e('v_lshrrev_b32 v%d, 9, v%d\nv_cmp_eq_u32 vcc, 1, v%d' % (Z, vT + 3, Z))
        e('v_lshlrev_b32 v%d, 2, v%d\nv_add_u32 v%d, 0x%x, v%d' % (Z, vL, Z, 0x40000 - 128, Z))
        e('v_cndmask_b32 v%d, v%d, v%d, vcc' % (RS, RS, Z))
        e('v_cmp_eq_u32 vcc, 0, v%d' % vL)
        e('v_mov_b32 v%d, s%d' % (vFLAG, sT1))
        e('s_add_u32 s%d, s%d, 0x%x' % (sRET, sT1, FLAG_OFF))
        e('v_cndmask_b32 v%d, v%d, v%d, vcc' % (vFLAG, vT + 5, vFLAG))
        e('v_cmp_eq_u32 vcc, 0, v%d' % (vT + 3))
        e('v_mov_b32 v%d, 0' % Z)
        e('s_lshl_b32 s%d, s%d, %d' % (sKO, sWA, 12 if self.nsh == 32 else 13))
        e('v_cndmask_b32 v%d, v%d, 0, vcc' % (vPOFF, vT + 5))
        if not xmap:
            e('s_lshr_b32 s%d, s%d, 1' % (sWA, sWA))
        e('s_lshl_b32 s%d, s%d, 13\ns_lshl_b32 s%d, s%d, 7\ns_add_u32 s%d, s%d, s%d' % (sWA, sWA, sWB, sJ, sWB, sWA, sWB))
        e('s_lshl_b32 s%d, s%d, 6\ns_add_u32 s%d, s%d, s%d' % (sWC, sJ, sWC, sWA, sWC))
        e('v_lshrrev_b32 v%d, 3, v%d\nv_lshlrev_b32 v%d, 10, v%d' % (WR, vL, WR, WR))
        e('v_and_b32 v%d, 7, v%d\nv_lshl_or_b32 v%d, v%d, 4, v%d' % (vT + 1, vL, WR, vT + 1, WR))
        e('v_and_b32 v%d, 4, v%d\nv_mul_u32_u24 v%d, 112, v%d\nv_add_u32 v%d, v%d, v%d' % (vT + 1, vL, vT + 1, vT + 1, WR + 1, WR, vT + 1))
        self.late_jobs = [Job(Ins('buffer_store_dword v%d, v%d, %s, s%d offen sc1' % (Z, RS, srd(SWS), sRET), tag='reset')),
                          Job('buffer_load_dwordx4 %s, v%d, %s, s%d offen' % (D, WR, srd(SW1), sWB)),
                          Job('buffer_load_dwordx4 %s, v%d, %s, s%d offen' % (D, WR + 1, srd(SW2), sWC))]
        if int(self.o.get('kvwarm', 0)):
            for r in range(32 // self.nsh):
                self.late_jobs += [Job('buffer_load_dwordx4 %s, v%d, %s, s%d offen offset:%d' % (D, vACT, srd(b), sKO, 1024 * i),
                                       post=['s_add_u32 s%d, s%d, 0x1000' % (sKO, sKO)] if (b == SV and i == 3) else []) for b in (SK, SV) for i in range(4)]
        self.tr256(base_s=sRING)
        self.put(self.dma128_offsets(vDA, 1024, True))
        e('s_lshl_b32 s%d, s%d, 17\ns_lshl_b32 s%d, s%d, 7\ns_add_u32 s%d, s%d, s%d' % (sOA, sW, sT0, sJ, sOA, sOA, sT0))
        R = vKA
        e('v_bfe_u32 v%d, v%d, 5, 1\nv_lshlrev_b32 v%d, 8, v%d' % (R, vL, R, R))
        e('v_and_b32 v%d, 15, v%d\nv_lshl_or_b32 v%d, v%d, 4, v%d' % (vT + 1, vL, R, vT + 1, R))
        e('v_bfe_u32 v%d, v%d, 4, 1\nv_lshl_or_b32 v%d, v%d, 3, v%d' % (vT + 1, vL, R, vT + 1, R))
        e('s_lshl_b32 s%d, s%d, 14\ns_lshl_b32 s%d, s%d, 10\ns_add_u32 s%d, s%d, s%d' % (sT0, sW, sT1, sJ, sT0, sT0, sT1))
        e('v_add_u32 v%d, s%d, v%d' % (R, sT0, R))
        def lin(dst, c, *terms):
            first = True
            for reg, mul in terms:
                t = dst if first else sT0
                e('s_mul_i32 s%d, s%d, 0x%x' % (t, reg, mul))
                if not first:
                    e('s_add_u32 s%d, s%d, s%d' % (dst, dst, t))
                first = False
            if c:
                e('s_add_u32 s%d, s%d, 0x%x' % (dst, dst, c))
        JO, WO, WH = sT1, sT2, sT3
        e('s_and_b32 s%d, s%d, 1\ns_and_b32 s%d, s%d, 1\ns_lshr_b32 s%d, s%d, 1' % (JO, sJ, WO, sW, WH, sW))
        lin(sW3, 0, (sJ, 448), (JO, 0xffffffc0), (sW, 128))
        lin(sW4, 0, (sJ, 224 * 1024), (sW, 128))
        lin(sINV, 7, (JO, 0xfffffff9))
        lin(sSPO, SP_OFF, (sT, 1 << 19), (sJ, 1 << 11), (WH, 1 << 10), (WO, 1 << 18))
        lin(sYPO, YP_OFF, (sT, 1 << 19), (sJ, 1 << 11), (sW, 1 << 17))
        lin(sSPI, SP_OFF, (sT, 1 << 19), (sJ, 1 << 16), (sW, 1 << 14))
        lin(sCF, FLAG_OFF + 0x40000, (sT, 1 << 12), (sJ, 1 << 7))
        lin(sFS, FLAG_OFF + 0x40000, (sT, 1 << 12), (WO, 512), (sJ, 4), (WH, 32))
        lin(sFY, FLAG_OFF + 0x40000 + 64, (sT, 1 << 12), (sW, 256), (sJ, 4))
        lin(sXO, 0, (sTBG, 1 << 14), (sJ, 64))
        e('s_lshr_b32 s%d, s2, 3' % JO)
        lin(sCW, 0, (JO, 4096), (sW, 1024))
        e('s_waitcnt lgkmcnt(0)')
        e('s_mov_b32 s%d, s%d\ns_mov_b32 s%d, s%d' % (SH, SWS, SH + 1, SWS + 1))
        e('s_lshl_b32 s%d, s%d, 19' % (sT0, sJ))
        for b in (SK, SV):
            e('s_add_u32 s%d, s%d, s%d\ns_addc_u32 s%d, s%d, 0' % (b, b, sT0, b + 1, b + 1))
        self.stamp('setup')

    def wq_slot(self, q):
        return self.wslot(q, SWQ, vDB, sOB, (4 * 8192, 28 * 8192), 'wq%d' % q)

    def p0_p2(self):
        e = self.s
        e('@sec P0 layernorm')
        arrive = Job(Ins('buffer_atomic_add v%d, v%d, %s, s%d offen sc1' % (vONE, vPOFF, srd(SDBG), sT0), need=['reset']),
                     pre=['s_lshl_b32 s%d, s%d, 3' % (sT0, sT)])
        self.layernorm(CSCALE, lambda: self.stamp('x landed'), self.wq_slot(0) + self.wq_slot(1) + self.wq_slot(2) + self.late_jobs)
        for nb in range(4):
            e('ds_read_b64 %s, v%d offset:%d' % (vr('a', aRES + 2 * nb, 2), vKA, 8192 * (nb >> 1) + 512 * (nb & 1)))
        e('s_barrier', need=['*lg'])
        self.stamp()
        e('@sec P2')
        dmas = {ks: self.wq_slot(ks + 2) for ks in range(1, 14)}
        dmas[14] = self.wslot(16, SW1, vDA, sOA, (32768, 32768), 'w1')
        dmas[15] = self.wslot(17, SW1, vDA, sOA, (32768, 32768), 'w1')
        self.g64(16, lambda ks: 'wq%d' % ks, dmas, fill=self.kv_setup(), fill_from=32 * 14 + 4)
        self.emit_jobs([arrive])
        self.stamp()

    def kv_dma(self, which, unit, tag):
        buf, ring, so, vo = (SK, KRING, sKO, vDB) if which == 'K' else (SV, VRING, sVO, vDB + 2)
        m0 = 's_add_u32 m0, s%d, 0x%x' % (sW2K, ring + 8192 * (unit & 3))
        return [Job(Ins('buffer_load_dwordx4 v%d, %s, s%d offen lds' % (vo, srd(buf), so), tag=tag), m0=m0),
                Job(Ins('buffer_load_dwordx4 v%d, %s, s%d offen offset:1024 lds' % (vo + 1, srd(buf), so), tag=tag), m0=m0,
                    post=['s_add_u32 s%d, s%d, 0x2000' % (so, so), 's_and_b32 s%d, s%d, 0x7ffff' % (so, so)])]

    def kv_setup(self):
        self.s('s_and_b32 s%d, s%d, 1\ns_lshl_b32 s%d, s%d, 3' % (sT3, sW, sT3, sT3))
        o = 'v_lshrrev_b32 v%d, 4, v%d\nv_and_b32 v%d, 15, v%d\n' % (vT, vL, vT + 1, vL)
        o += 'v_lshl_add_u32 v%d, v%d, 8, s%d\n' % (vT + 2, vT, sW2K)
        o += 'v_xor_b32 v%d, v%d, v%d\nv_xor_b32 v%d, s%d, v%d\n' % (vT + 3, vT + 1, vT, vT + 3, sT3, vT + 3)
        o += 'v_lshl_add_u32 v%d, v%d, 4, v%d\nv_xor_b32 v%d, 64, v%d\n' % (vDB, vT + 3, vT + 2, vDB + 1, vDB)
        o += 'v_lshlrev_b32 v%d, 1, v%d\nv_xor_b32 v%d, v%d, v%d\n' % (vT + 3, vT, vT + 3, vT + 3, vT + 1)
        o += 'v_lshl_add_u32 v%d, v%d, 4, v%d\nv_xor_b32 v%d, 0x80, v%d' % (vDB + 2, vT + 3, vT + 2, vDB + 3, vDB + 2)
        return o.split('\n')

    def q_p1(self):
        e = self.s
        e('@sec Q epilogue')
        e('s_lshl_b32 s%d, s%d, %d\ns_mov_b32 s%d, s%d' % (sKO, sSH, 14 if self.nsh == 32 else 15, sVO, sKO))
        e('s_barrier', need=['*lg'])
        jobs = []
        for which, u in (('K', 0), ('K', 1), ('V', 0), ('K', 2), ('V', 1)):
            jobs += self.kv_dma(which, u, 'kv-1')
        o = []
        fr = [(qb, ks) for qb in range(4) for ks in range(4)]
        for n in range(0, 16, 2):
            ts = []
            for qb, ks in fr[n:n + 2]:
                a = vACC + 32 * ks + 4 * qb
                o += self.pack_frag(a, a + 16)
                ts.append(a + 16)
            for op in ('v_permlane32_swap_b32', 'v_permlane16_swap_b32'):
                for t in ts:
                    o += ['%s v%d, v%d' % (op, t, t + 2), '%s v%d, v%d' % (op, t + 1, t + 3)]
            for (qb, ks), t in zip(fr[n:n + 2], ts):
                o += ['v_accvgpr_write_b32 a%d, v%d' % (aQ + 16 * qb + 4 * ks + r, t + r) for r in range(4)]
        self.sprinkle(o, self.flat(jobs), every=8)
        self.stamp()
        e('@sec P1')
        self.g16('v', vS, 0, vTR, vTR + 4, lambda: e('s_barrier', need=['w1']))
        self.gelu_consts()
        for nb in range(4):
            self.put(self.gelu4(vS + 4 * nb, vX + 2 * nb, vP + 4 * (nb & 1), scale=vT + 4))
        e('s_lshl_b32 s%d, s%d, 14\ns_lshl_b32 s%d, s%d, 11\ns_add_u32 s%d, s%d, s%d' % (sT0, sTBG, sT1, sJ, sT0, sT0, sT1))
        for p in range(2):
            e('buffer_store_dwordx4 %s, v%d, %s, s%d offen offset:%d sc1' % (vr('v', vX + 4 * p, 4), vACT, srd(SH), sT0, 1024 * p), tag='hst')
        self.stamp()

    def p3(self):
        e = self.s
        self.stamp('attention A')
        e('@sec P3')
        acc = aV
        self.g16('a', acc, aK + 32, vT, vDA, lambda: None)
        X, R, PK = vX, vX + 16, vX + 32
        for k in range(8):
            e('v_accvgpr_read_b32 v%d, a%d' % (PK + k, aRES + k))
        for k in range(8):
            e('v_lshlrev_b32 v%d, 16, v%d\nv_and_b32 v%d, 0xffff0000, v%d' % (R + 2 * k, PK + k, R + 2 * k + 1, PK + k))
        self.put(self.dma256_offsets(vDA, 1024, 4))
        e('s_mov_b32 s%d, %s\ns_mov_b32 s%d, %s' % (sC0, f2u(1.0 / CSCALE), sC0 + 1, f2u(1.0 / CSCALE)))
        for k in range(16):
            e('v_accvgpr_read_b32 v%d, a%d' % (X + k, acc + k))
        for k in range(8):
            e('v_pk_fma_f32 %s, %s, s[%d:%d], %s' % (vr('v', X + 2 * k, 2), vr('v', R + 2 * k, 2), sC0, sC0 + 1, vr('v', X + 2 * k, 2)))
        for k in range(8):
            e('v_cvt_pk_bf16_f32 v%d, v%d, v%d' % (PK + k, X + 2 * k, X + 2 * k + 1))
        e('s_lshl_b32 s%d, s%d, 14\ns_lshl_b32 s%d, s%d, 10\ns_add_u32 s%d, s%d, s%d' % (sT0, sTBG, sT1, sJ, sT0, sT0, sT1))
        for p in range(2):
            e('s_add_u32 s%d, s%d, 0x%x' % (sT1, sT0, X1_OFF + 8192 * p))
            e('buffer_store_dwordx4 %s, v%d, %s, s%d offen sc1' % (vr('v', PK + 4 * p, 4), vACT, srd(SWS), sT1))
        for k in range(8):
            e('v_lshlrev_b32 v%d, 16, v%d\nv_and_b32 v%d, 0xffff0000, v%d' % (X + 2 * k, PK + k, X + 2 * k + 1, PK + k))
            e('v_accvgpr_write_b32 a%d, v%d' % (aX1 + k, PK + k))
        P = lambda b: vr('v', b, 2)
        for k in range(4):
            e('v_pk_add_f32 %s, %s, %s' % (P(R + 2 * k), P(X + 2 * k), P(X + 8 + 2 * k)))
        e('v_pk_add_f32 %s, %s, %s\nv_pk_add_f32 %s, %s, %s' % (P(R), P(R), P(R + 2), P(R + 4), P(R + 4), P(R + 6)))
        e('v_pk_add_f32 %s, %s, %s\nv_add_f32 v%d, v%d, v%d' % (P(R), P(R), P(R + 4), R + 8, R, R + 1))
        self.put(self.lanesum(R + 8, R + 10))
        e('v_mul_f32 v%d, %s, v%d' % (R + 8, f2u(1.0 / 64), R + 8))
        for k in range(8):
            e('v_pk_add_f32 %s, %s, %s op_sel_hi:[1,0] neg_lo:[0,1] neg_hi:[0,1]' % (P(X + 2 * k), P(X + 2 * k), P(R + 8)))
        for k in range(8):
            a = P(R + 2 * (k & 1))
            e('v_pk_fma_f32 %s, %s, %s, %s' % (a, P(X + 2 * k), P(X + 2 * k), a) if k >= 2 else 'v_pk_mul_f32 %s, %s, %s' % (a, P(X + 2 * k), P(X + 2 * k)))
        e('v_pk_add_f32 %s, %s, %s\nv_add_f32 v%d, v%d, v%d' % (P(R), P(R), P(R + 2), R + 9, R, R + 1))
        self.put(self.lanesum(R + 9, R + 10))
        e('v_lshlrev_b32 v%d, 3, v%d\nv_mov_b32 v%d, 0x%x\nv_cmp_gt_u32 vcc, 16, v%d' % (R, vL, R + 1, OOB, vL))
        e('s_lshl_b32 s%d, s%d, 10\ns_lshl_b32 s%d, s%d, 7\ns_add_u32 s%d, s%d, s%d' % (sT0, sTBG, sT1, sJ, sT0, sT0, sT1))
        e('v_cndmask_b32 v%d, v%d, v%d, vcc' % (R, R + 1, R))
        e('s_add_u32 s%d, s%d, 0x%x' % (sT0, sT0, ST_OFF))
        e('buffer_store_dwordx2 %s, v%d, %s, s%d offen sc1' % (P(R + 8), R, srd(SWS), sT0), tag='x1st')
        e('s_lshl_b32 s%d, s%d, 19\ns_lshl_b32 s%d, s%d, 8\ns_add_u32 s%d, s%d, s%d' % (sOA, sJ, sT0, sW, sOA, sOA, sT0))
        self.flag_addr(1, sTBG)
        e('s_lshl_b32 s%d, s%d, 14\ns_add_u32 s%d, s%d, 0x%x' % (sOB, sTBG, sOB, sOB, X1_OFF))
        e('v_lshrrev_b32 v%d, 4, v%d\nv_lshlrev_b32 v%d, 8, v%d' % (vT, vL, vT, vT))
        e('v_and_b32 v%d, 15, v%d\nv_lshl_or_b32 v%d, v%d, 3, v%d' % (vT + 1, vL, vT, vT + 1, vT))
        e('v_lshl_add_u32 v%d, s%d, 10, v%d\nv_add_u32 v%d, 0x%x, v%d' % (vT, sTBG, vT, vT + 4, ST_OFF, vT))
        e('v_lshrrev_b32 v%d, 4, v%d\nv_mul_u32_u24 v%d, 3584, v%d\nv_lshl_add_u32 v%d, v%d, 4, v%d' % (vT, vL, vT, vT, vT + 3, vT + 1, vT))
        e('v_lshrrev_b32 v%d, 4, v%d\nv_lshlrev_b32 v%d, 3, v%d\nv_lshl_or_b32 v%d, v%d, 10, v%d' % (vT, vL, vT, vT, vT + 2, vT + 1, vT))
        self.stamp()
        e('@sec attention')

    def wo_slot(self, q):
        return self.wslot(q, SWO, vDA, sOA, (16384, 16384), 'wo%d' % q)

    def krd(self, u, f):
        kb, ks = f >> 2, f & 3
        return 'ds_read_b128 %s, v%d offset:%d' % (vr('a', aK + 32 * (u & 1) + 4 * f, 4), vKA + ks, KRING + 8192 * (u & 3) + 4096 * kb)

    def vrd(self, u, h):
        db, g = h >> 1, h & 1
        return 'ds_read_b64_tr_b16 %s, v%d offset:%d' % (vr('a', aV + 32 * (u & 1) + 4 * db + 2 * g, 2), vTR + db, 8192 * (u & 3) + 4096 * g)

    def rowsum(self, h):
        return 'v_smfmac_f32_16x16x64_bf16 %s, %s, %s, v%d' % (vr('a', aL + 4 * h, 4), vr('a', aONES, 4), vr('v', vP + 8 * h, 8), vIDX)

    def attention(self):
        e = self.s
        e('@sec attention setup')
        self.tr256(base_c=VRING)
        e('v_and_b32 v%d, 15, v%d\nv_lshrrev_b32 v%d, 4, v%d' % (vT, vL, vT + 1, vL))
        e('v_xor_b32 v%d, v%d, v%d\nv_lshlrev_b32 v%d, 4, v%d' % (vT + 1, vT + 1, vT, vT + 1, vT + 1))
        e('v_lshl_or_b32 v%d, v%d, 8, v%d' % (vKA, vT, vT + 1))
        for ks in range(1, 4):
            e('v_xor_b32 v%d, 0x%x, v%d' % (vKA + ks, 64 * ks, vKA))
        e('s_barrier', need=['kv-1'])
        for f in range(8):
            e(self.krd(0, f))
        e('v_lshrrev_b32 v%d, 4, v%d\nv_xor_b32 v%d, v%d, v%d\nv_and_b32 v%d, 2, v%d' % (vT, vL, vT, vT, vL, vT, vT))
        e('v_mov_b32 v%d, 0x3f803f80\nv_cmp_eq_u32 vcc, 0, v%d' % (vT + 1, vT))
        e('v_bfe_i32 v%d, v%d, 0, 1\nv_and_b32 v%d, 0xaaaaaaaa, v%d\nv_or_b32 v%d, 0x44444444, v%d' % (vT, vL, vT, vT, vIDX, vT))
        e('v_cndmask_b32 v%d, 0, v%d, vcc' % (vT + 1, vT + 1))
        for r in range(4):
            e('v_accvgpr_write_b32 a%d, v%d' % (aONES + r, vT + 1))
        for r in range(8):
            e('v_accvgpr_write_b32 a%d, 0' % (aL + r))
        late = int(self.o.get('late', 0))
        NS, A_END, P3_AT, TAIL = 256, 48, 40, 224
        e('s_mov_b32 s%d, %d\ns_mov_b32 s%d, 0' % (sCNT, (TAIL - A_END) // 16, sPASS))
        e('s_lshl_b32 s%d, s%d, 17\ns_lshl_b32 s%d, s%d, 6\ns_add_u32 s%d, s%d, s%d' % (sOA, sW, sT0, sJ, sOA, sOA, sT0))
        m = 32 // self.nsh
        e('s_lshl_b32 s%d, s%d, 2\ns_add_u32 s%d, s%d, s%d' % (sT3, sSH, sT3, sT3, sW))
        e('s_lshl_b32 s%d, s%d, 19\ns_mul_i32 s%d, s%d, %d\ns_add_u32 s%d, s%d, s%d' % (sWA, sJ, sT1, sT3, 4096 * m, sWA, sWA, sT1))
        e('s_mul_i32 s%d, s%d, %d\ns_mul_i32 s%d, s%d, %d\ns_add_u32 s%d, s%d, s%d' % (sWB, sJ, 224 * 1024, sT1, sT3, 1792 * m, sWB, sWB, sT1))
        e('s_mul_i32 s%d, s%d, 448\ns_mul_i32 s%d, s%d, %d\ns_add_u32 s%d, s%d, s%d' % (sWC, sJ, sT3, sT3, 4 * 3584 * m, sWC, sWC, sT3))
        U = vX + 48
        setup = [x.replace('v%d' % (vT + 2), 'v%d' % (U + 2)).replace('v%d' % (vT + 1), 'v%d' % (U + 1)).replace('v%d' % vT, 'v%d' % U)
                 for x in self.dma128_offsets(vDA, 1024, False, split=True)]
        setup += ('v_and_b32 v%d, 3, v%d\nv_min_u32 v%d, 2, v%d\n' % (U, vL, U, U) +
                  'v_add3_u32 v%d, v%d, s%d, -1\nv_med3_i32 v%d, v%d, 0, 31\nv_lshlrev_b32 v%d, 3, v%d' % (U, U, sT, U, U, vPOFF, U)).split('\n')
        setup2 = []
        F, G = vT + 4, vT
        setup2 += ('v_bfe_u32 v%d, v%d, 1, 1\nv_lshl_add_u32 v%d, v%d, 1, -1\n' % (U, vL, U, U) +
                   'v_bfe_u32 v%d, v%d, 3, 1\nv_mul_i32_i24 v%d, v%d, v%d\n' % (U + 1, vL, U, U, U + 1) +
                   'v_add_u32 v%d, s%d, v%d\nv_max_i32 v%d, 0, v%d\nv_min_i32 v%d, 0x7f, v%d\n' % (U, sTBG, U, U, U, U, U) +
                   'v_and_b32 v%d, 7, v%d\nv_lshl_or_b32 v%d, v%d, 3, v%d\n' % (U + 1, vL, U, U, U + 1) +
                   'v_lshlrev_b32 v%d, 7, v%d\nv_add_u32 v%d, 0x%x, v%d' % (U, U, F, FLAG_OFF, U)).split('\n')
        setup2 += ('v_and_b32 v%d, 15, v%d\nv_lshl_add_u32 v%d, s%d, 4, v%d\nv_and_b32 v%d, 48, v%d' % (U, vL, U, sTBG, U, U + 1, vL)).split('\n')
        for g, dlt in enumerate((-1, 1, -2, 2)):
            setup2 += ['v_add_u32 v%d, %d, v%d' % (U + 2, dlt, U), 'v_and_or_b32 v%d, v%d, 15, v%d' % (U + 3, U + 2, U + 1),
                       'v_bfe_u32 v%d, v%d, 4, 8' % (U + 2, U + 2), 'v_lshl_or_b32 v%d, v%d, 10, v%d' % (U + 3, U + 2, U + 3),
                       'v_lshlrev_b32 v%d, 4, v%d' % (U + 3, U + 3), 'v_add_u32 v%d, 0x%x, v%d' % (G + g, 4096 * g, U + 3)]
        self.put(setup)
        D = vr('a', aDUMMY, 4)
        warm = []
        nt = ' nt' if int(self.o.get('nt', 1)) else ''
        for r in range(m):
            nx = lambda s, d: ['s_add_u32 s%d, s%d, %d' % (s, s, d)] if r + 1 < m else []
            warm += [Job('buffer_load_dwordx4 %s, v%d, %s, s%d offen offset:%d' % (D, vACT, srd(SWO), sWA, 1024 * i), post=nx(sWA, 4096) if i == 3 else []) for i in range(4)]
            warm += [Job('buffer_load_dwordx4 %s, v%d, %s, s%d offen offset:%d' % (D, vT + 3, srd(SW3), sWC, o), post=nx(sWC, 4 * 3584) if o else []) for o in (0, 192)]
            warm += [Job('buffer_load_dwordx4 %s, v%d, %s, s%d offen offset:%d' % (D, vACT, srd(SW4), sWB, o), post=nx(sWB, 1792) if o else []) for o in (0, 768)]
        warm.append(Job('buffer_load_dwordx4 %s, v%d, %s, s%d offen' % (D, vACT, srd(SCODE), sCW)))
        w2 = self.wslot(1, SW2, vDA, sOA, (32768, 32768), 'w2') + self.wslot(2, SW2, vDA, sOA, (32768, 32768), 'w2')
        hg = [Job('buffer_load_dwordx4 %s, v%d, %s, 0 offen offset:%d sc1%s' % (vr('v', vX + 4 * k, 4), G + (k >> 2), srd(SH), 1024 * (k & 3), '')) for k in range(16)]
        xg = [Job('buffer_load_dwordx2 %s, v%d, %s, 0 offen offset:%d sc1' % (vr('a', aSTAT + 2 * k, 2), vT + 4, srd(SWS), 128 * k)) for k in range(2)]
        xg += self.gather('v', vX, sOB, range(16), nt)
        side, chk, fill = {}, {}, {}

        def spread(jobs, n, stop, rate=3):
            jobs = list(jobs)
            while jobs:
                assert n < stop, 'side jobs do not fit'
                room = (3 if (n & 7) >= 4 or n >= 248 else 1) - (n in chk) - len(side.get(n, []))
                if (n & 7) == 7:
                    room = min(room, 2 - len(side.get(n, [])))
                room = min(room, rate)
                while room > 0 and jobs:
                    side.setdefault(n, []).append(jobs.pop(0))
                    room -= 1
                n += 1
        chk[13] = self.poll_check(SDBG, 8) + [Ins('v_mov_b32 v%d, v%d' % (vPOFF, F))]
        chk[21] = self.poll_check(SWS, 1)
        chk[TAIL + 4] = self.poll_check(SWS, 1)
        spread([self.flag_store(0, ['hst'])], 4, 5)
        spread([self.poll_load(SDBG)], 7, 8)
        spread([self.poll_load(SWS)], 15, 16)
        spread(w2, 4, 16)
        spread(hg, 22, 38, 1)
        spread([self.flag_store(1, ['x1st'])], 47, 48)
        spread(warm[:10], 44, 48)
        spread(warm[10:], TAIL + 5, TAIL + 16)
        spread([self.poll_load(SWS)], TAIL, TAIL + 1)
        spread([Job('buffer_load_dwordx2 %s, v%d, %s, s%d offen offset:%d' % (vr('a', aRES + 2 * nb, 2), vT + 2, srd(SX), sXO, 512 * (nb >> 1) + 32 * (nb & 1)))
                for nb in range(4)], TAIL + 12, TAIL + 16, 1)
        spread(xg[:2], TAIL + 4, TAIL + 5)
        spread(xg[2:], TAIL + 5, TAIL + 21, 1)
        spread(self.wo_slot(0) + self.wo_slot(1) + self.wo_slot(2), 244, 256)
        fill[4] = setup2
        e('@sec attention A')
        carry = []
        for n in range(NS + 4):
            u, qb, T, r8 = n >> 2, n & 3, n >> 3, n & 7
            if n in (0, 8, 16, 24, 32, A_END) and int(self.o.get('astamp', 0)):
                self.stamp('step%d' % n)
            if n == P3_AT:
                self.p3()
            if n % 16 == 0 and A_END <= n < TAIL:
                e('@rep L_attn %d' % (n // 16))
            if n == TAIL:
                e('@endrep L_attn')
                if int(self.o.get('astamp', 0)):
                    self.stamp('loop')
            p = Plan()
            if n < NS:
                for kb in range(2):
                    d = vr('v', vS + 8 * (n & 1) + 4 * kb, 4)
                    for ks in range(4):
                        p.add(mfma(d, vr('a', aK + 32 * (u & 1) + 16 * kb + 4 * ks, 4), vr('a', aQ + 16 * qb + 4 * ks, 4), '0' if ks == 0 else None))
            if n >= 4:
                for db in range(8):
                    p.add(mfma(vr('v', vACC + 16 * db + 4 * qb, 4), vr('a', aV + 32 * ((u - 1) & 1) + 4 * db, 4), vr('v', vP + 4 * qb, 4),
                               '0' if n < 8 else None))
            ex, cv = [], []
            if 1 <= n <= NS:
                sb, pb = vS + 8 * ((n - 1) & 1), vP + 4 * ((n - 1) & 3)
                ex = ['v_exp_f32 v%d, v%d' % (sb + r, sb + r) for r in range(8)]
                cv = ['v_cvt_pk_bf16_f32 v%d, v%d, v%d' % (pb + r, sb + 2 * r, sb + 2 * r + 1) for r in range(4)]
            ds = []
            if u + 1 < 64:
                ds += [self.krd(u + 1, 2 * qb), self.krd(u + 1, 2 * qb + 1)]
            if u < 64:
                ds += [self.vrd(u, 4 * qb + h) for h in range(4)]
            dm = []
            if r8 < 4:
                which, unit = (('K', 2 * T + 3), ('V', 2 * T + 2), ('K', 2 * T + 4), ('V', 2 * T + 3))[r8]
                if unit < 64:
                    dm = self.kv_dma(which, unit, 'kv%d' % T)
            dm = self.flat(dm + side.get(n, []))
            sm = self.rowsum(0) if (qb == 3 and n < NS) else self.rowsum(1) if (qb == 1 and n >= 5) else None
            g = p.g
            if len(p.mf) == 16:
                loop_end = n % 16 == 15 and A_END <= n < TAIL
                if r8 == 0 and n < NS:
                    g[0]['sc'].append('s_barrier')
                if r8 == 7 and n < NS - 1:
                    g[14]['sc'].append(Ins('@need', need=['kv%d' % T if 2 * T + 2 < 64 else '*lg', '*lg'] + (['w2'] if n == P3_AT - 9 else [])))
                if loop_end:
                    g[10]['sc'].append('s_sub_u32 s%d, s%d, 1' % (sCNT, sCNT))
                    g[12]['sc'].append('s_cmp_lg_u32 s%d, 0' % sCNT)
                    g[15]['end'].append('s_cbranch_scc1 L_attn')
                vs = [9, 13] if r8 == 7 else [5, 9, 13]
                if n in chk:
                    g[vs[0] if n >= TAIL else vs[-1]]['end'] += chk[n]
                    vs = vs[1:] if n >= TAIL else vs[:-1]
                assert len(dm) <= len(vs), (n, len(dm))
                used = vs[:len(dm)]
                prev, pend = p.jobs(dm, used)
                p.scalars(pend, prev + 1, 16)
                if r8 == 7:
                    dpos = (1, 1, 3, 5, 5, 7)
                else:
                    dpos = [x for x in range(1, 16, 2) if x not in used and not g[x]['end']]
                    if len(dpos) < len(ds):
                        dpos = [1] + dpos
                for k, x in enumerate(ds):
                    g[dpos[k]]['ds'].append(x)
                for k, x in enumerate(ex):
                    g[2 * k]['va'].append(x)
                for k, x in enumerate(cv):
                    g[4 * k + 3]['va'].append(x)
                carry = carry + fill.get(n, [])
                nfill = min(len(carry), 8)
                left = p.fill(carry[:nfill])
                g[15]['va'] += left
                carry = carry[nfill:]
                if sm:
                    g[7]['end'].append(sm)
            else:
                seq = [pre + [d] + post for pre, d, post in dm]
                if n == 2:
                    seq[0] = ['s_barrier'] + seq[0]
                seq += [[x] for x in ds]
                for k, x in enumerate(seq):
                    g[min(k, 7)]['ds'] += x
                lag = 2 if n < 4 else 0
                for k in range(len(ex)):
                    g[min(k + lag, 7)]['va'].append(ex[k])
                    if k % 2 == 1:
                        g[min(k + lag + 1, 7)]['va'].append(cv[k // 2])
                if sm:
                    g[3]['end'].append(sm)
            p.emit(self)
        assert not carry
        self.stamp()
        self.o_epilogue()

    def o_epilogue(self):
        e = self.s
        e('@sec O epilogue')
        e('L_oepi:')
        for r in range(8):
            e('v_accvgpr_read_b32 v%d, a%d' % (vS + r, aL + r))
        for qb in range(4):
            e('v_add_f32 v%d, v%d, v%d' % (vS + 2 * qb, vS + 2 * qb, vS + 2 * qb + 1))
        B = vS + 8
        for qb in range(4):
            e('v_subrev_u32 v%d, 0x2b800000, v%d' % (B + qb, vS + 2 * qb))
        e('v_max3_u32 v%d, v%d, v%d, v%d\nv_max_u32 v%d, v%d, v%d' % (B, B, B + 1, B + 2, B, B, B + 3))
        e('v_cmp_lt_u32 vcc, 0x28000000, v%d' % B)
        e('v_and_b32 v%d, 3, v%d\nv_lshlrev_b32 v%d, 12, v%d\nv_lshl_add_u32 v%d, s%d, 2, v%d' % (B + 1, vL, B + 1, B + 1, B + 1, sW, B + 1))
        e('s_or_b32 s%d, vcc_lo, vcc_hi' % sT0)
        e('v_mov_b32 v%d, s%d' % (B, sT0))
        e('ds_write_b32 v%d, v%d' % (B + 1, B))
        for qb in range(4):
            e('v_rcp_f32 v%d, v%d' % (vS + 2 * qb, vS + 2 * qb))
        e('v_lshl_add_u32 v%d, s%d, 12, v%d' % (vT + 3, sW, vACT))
        e('s_lshl_b32 s%d, s%d, 12\nv_mov_b32 v%d, s%d' % (sT0, sW, B + 1, sT0))
        e('s_barrier', need=['*lg'])
        e('ds_read_b128 %s, v%d' % (vr('v', B + 4, 4), B + 1))
        for qb in range(4):
            for ks in range(4):
                a = vACC + 32 * ks + 4 * qb
                for h in (0, 2, 16, 18):
                    e('v_pk_mul_f32 %s, %s, %s op_sel_hi:[1,0]' % (vr('v', a + h, 2), vr('v', a + h, 2), vr('v', vS + 2 * qb, 2)))
                self.put(self.pack_frag(a, a + 16))
                if qb == 0 and ks == 0:
                    e('v_or3_b32 v%d, v%d, v%d, v%d\nv_or_b32 v%d, v%d, v%d' % (B, B + 4, B + 5, B + 6, B, B, B + 7))
                    e('v_cmp_ne_u32 vcc, 0, v%d\ns_cbranch_vccnz L_slow\nL_ofine:' % B)
                e('ds_write_b128 v%d, %s offset:%d' % (vT + 3, vr('v', a + 16, 4), (16 * qb + ks) * 1024))
        self.stamp()
        self.slow_path()

    def slow_path(self):
        main, self.s = self.s, Stream()
        e = self.s
        M = vT
        e('L_slow:\ns_cmp_lg_u32 s%d, 0\ns_cbranch_scc1 L_ofine\ns_mov_b32 s%d, 1' % (sPASS, sPASS))
        e('s_waitcnt vmcnt(0) lgkmcnt(0)')
        for ps in range(2):
            e('s_mov_b32 s%d, 0\ns_mov_b32 s%d, 0\ns_mov_b32 s%d, 64' % (sKO, sVO, sCNT))
            if ps == 0:
                for qb in range(4):
                    e('v_mov_b32 v%d, 0xff800000' % (M + qb))
            else:
                for qb in range(4):
                    for op in ('v_permlane32_swap_b32', 'v_permlane16_swap_b32'):
                        e('v_mov_b32 v%d, v%d\n%s v%d, v%d\nv_max_f32 v%d, v%d, v%d' % (vS, M + qb, op, vS, M + qb, M + qb, M + qb, vS))
                for r in range(128):
                    e('v_mov_b32 v%d, 0' % (vACC + r))
                for r in range(8):
                    e('v_accvgpr_write_b32 a%d, 0' % (aL + r))
            e('L_slow%d:\ns_barrier' % ps)
            self.emit_jobs(self.kv_dma('K', 0, 'k') + (self.kv_dma('V', 0, 'k') if ps else []))
            e('s_barrier', need=['k'])
            self.put([self.krd(0, f) for f in range(8)] + ([self.vrd(0, h) for h in range(16)] if ps else []))
            e('s_waitcnt lgkmcnt(0)')
            for qb in range(4):
                for kb in range(2):
                    for ks in range(4):
                        e(mfma(vr('v', vS + 4 * kb, 4), vr('a', aK + 16 * kb + 4 * ks, 4), vr('a', aQ + 16 * qb + 4 * ks, 4), '0' if ks == 0 else None))
                if ps == 0:
                    for r in range(0, 8, 2):
                        e('v_max3_f32 v%d, v%d, v%d, v%d' % (M + qb, M + qb, vS + r, vS + r + 1))
                    continue
                for r in range(8):
                    e('v_sub_f32 v%d, v%d, v%d' % (vS + r, vS + r, M + qb))
                for r in range(8):
                    e('v_exp_f32 v%d, v%d' % (vS + r, vS + r))
                for r in range(4):
                    e('v_cvt_pk_bf16_f32 v%d, v%d, v%d' % (vP + 4 * qb + r, vS + 2 * r, vS + 2 * r + 1))
                for db in range(8):
                    e(mfma(vr('v', vACC + 16 * db + 4 * qb, 4), vr('a', aV + 4 * db, 4), vr('v', vP + 4 * qb, 4)))
                if qb & 1:
                    e(self.rowsum(qb >> 1))
            e('s_nop 7\ns_sub_u32 s%d, s%d, 1\ns_cmp_lg_u32 s%d, 0\ns_cbranch_scc1 L_slow%d' % (sCNT, sCNT, sCNT, ps))
        e('s_barrier\ns_branch L_oepi')
        e.insert_waits()
        e.pad_hazards()
        self.tail.append(e.text())
        self.s = main

    def whalf(self, h):
        buf, vo, so, step = (SW3, vDB, sOB, 32 * 3584) if h < 48 else (SW4, vDA, sOA, 512 - 6 * 32768 if h == 54 else 32768)
        return [Job(Ins('buffer_load_dwordx4 v%d, %s, s%d offen offset:%d lds' % (vo + i, srd(buf), so, 1024 * i), tag='w%d' % h),
                    m0='s_add_u32 m0, s%d, 0x%x' % (sRING, (h % 6) * 4096),
                    post=['s_add_u32 s%d, s%d, 0x%x' % (so, so, step & 0xffffffff)] if i == 3 else []) for i in range(4)]

    def flag_addr(self, phase, blk_s, two=False, t=vT):
        e = self.s
        e('v_and_b32 v%d, 7, v%d\nv_lshl_or_b32 v%d, s%d, 3, v%d' % (t, vL, t, blk_s, t))
        if two:
            e('v_and_b32 v%d, 8, v%d\nv_lshl_add_u32 v%d, v%d, 1, v%d' % (vPOFF, vL, t, vPOFF, t))
        e('v_lshlrev_b32 v%d, 7, v%d\nv_add_u32 v%d, 0x%x, v%d' % (t, t, vPOFF, FLAG_OFF + phase * 131072, t))

    def p6(self):
        e = self.s
        e('@sec P6 setup')
        self.tr256(base_s=sRING)
        e('s_mov_b32 s%d, s%d' % (sOB, sW3))
        e('s_barrier', need=['*lg'])
        e('@sec P6')
        A = vS
        f = self.dma128_offsets(vDB, 3584, False)
        cut = [k for k, x in enumerate(f) if x.startswith('v_add_u32 v%d,' % vDB)][0] + 1
        f[cut:cut] = ['v_lshrrev_b32 v%d, 6, v%d' % (vT + 1, vT + 1), 'v_lshl_add_u32 v%d, s%d, 1, v%d' % (vT + 1, sW, vT + 1),
                      'v_cmp_eq_u32 vcc, s%d, v%d' % (sINV, vT + 1), 'v_mov_b32 v%d, 0x%x' % (vT, OOB), 'v_lshl_add_u32 v%d, s%d, 14, v%d' % (vT + 3, sW, vACT),
                      'v_cndmask_b32 v%d, v%d, v%d, vcc' % (vDB, vDB, vT)]
        f += ['v_lshrrev_b32 v%d, 2, v%d' % (vKA, vL), 'v_bfe_u32 v%d, v%d, 3, 2' % (vT, vL), 'v_lshlrev_b32 v%d, 5, v%d' % (vT, vT),
              'v_lshl_or_b32 v%d, v%d, 7, v%d' % (vKA, vKA, vT), 'v_and_b32 v%d, 3, v%d' % (vT, vL), 'v_lshl_or_b32 v%d, v%d, 3, v%d' % (vKA, vT, vKA),
              'v_add_u32 v%d, s%d, v%d' % (vKA, sRING, vKA)] + ['v_xor_b32 v%d, 0x%x, v%d' % (vKA + b, b << 5, vKA) for b in range(1, 4)]
        f += ['v_accvgpr_read_b32 v%d, a%d' % (A + r, aSTAT + r) for r in range(4)]
        f += ['v_add_f32 v%d, v%d, v%d' % (A + 4, A, A + 2)] + self.lanesum(A + 4, A + 8)
        f += ['v_mul_f32 v%d, 0x3e000000, v%d' % (A + 4, A + 4), 'v_sub_f32 v%d, v%d, v%d' % (A, A, A + 4), 'v_sub_f32 v%d, v%d, v%d' % (A + 2, A + 2, A + 4),
              'v_mul_f32 v%d, v%d, v%d' % (A, A, A), 'v_fmac_f32 v%d, v%d, v%d' % (A, A + 2, A + 2), 'v_add_f32 v%d, v%d, v%d' % (A + 1, A + 1, A + 3),
              'v_fmac_f32 v%d, 0x42800000, v%d' % (A + 1, A)] + self.lanesum(A + 1, A + 8)
        f += ['v_mov_b32 v%d, %s' % (A + 5, f2u(1e-5)), 'v_fmac_f32 v%d, %s, v%d' % (A + 5, f2u(1.0 / 512), A + 1), 'v_rsq_f32 v%d, v%d' % (A + 5, A + 5),
              'v_sub_f32 v%d, 0, v%d' % (A + 4, A + 4), 'v_mul_f32 v%d, v%d, v%d' % (A + 4, A + 4, A + 5)]
        for k in range(64):
            t = vP + 2 * (k % 4)
            f += ['v_lshlrev_b32 v%d, 16, v%d' % (t, vX + k), 'v_and_b32 v%d, 0xffff0000, v%d' % (t + 1, vX + k),
                  'v_fma_f32 v%d, v%d, v%d, v%d' % (t, t, A + 5, A + 4), 'v_fma_f32 v%d, v%d, v%d, v%d' % (t + 1, t + 1, A + 5, A + 4),
                  'v_cvt_pk_bf16_f32 v%d, v%d, v%d' % (vX + k, t, t + 1)]
        dmas = {ks: self.wo_slot(ks + 2) for ks in range(1, 14)}
        dmas[14], dmas[15] = self.whalf(32) + self.whalf(33), self.whalf(34) + self.whalf(35)
        self.g64(16, lambda ks: 'wo%d' % ks, dmas, fill=f, fill_from=0)
        self.stamp()
        e('@sec s epilogue')
        e('s_barrier')
        self.sst = [self.part_store(vACC + 32 * pp + 16 + 4 * tb, sSPO, 65536 * pp + 16384 * tb, 'sst') for pp in range(4) for tb in range(4)]
        NE = int(self.o.get('s_early', 8))
        jobs = self.flat(self.whalf(36) + self.whalf(37) + self.sst[:NE])
        self.sst = self.sst[NE:]
        for k in range(16):
            if jobs and k:
                pre, d, post = jobs.pop(0)
                self.put(pre + [d] + post)
            e('ds_write_b128 v%d, %s offset:%d' % (vT + 3, vr('v', vX + 4 * k, 4), 1024 * k))
            a = vACC + 32 * (k >> 2) + 4 * (k & 3)
            self.put(self.pack_frag(a, a + 16))
        for pre, d, post in jobs:
            self.put(pre + [d] + post)
        e('s_mov_b32 s%d, s%d' % (sOA, sW4))
        e('s_barrier', need=['*lg'])
        self.stamp()

    XO, HW, A7, FY, SEL = vTR, vTR + 1, vTR + 2, vTR + 3, vX

    def p5(self):
        e = self.s
        e('@sec P5')
        XO, HW, A7, FY, SEL = self.XO, self.HW, self.A7, self.FY, self.SEL
        dmas = {gi: self.whalf(32 + gi + 5) for gi in range(1, 16)}
        p, start, pend = self.g64h(16, 32, (4, 4, 4, 4), lambda gi, b: vACC + 32 * b, lambda gi: gi == 0,
                                   lambda gi, tb: (vACT, (tb * 16 + gi) * 1024), dmas)
        f = self.dma128_offsets(vDA, 1024, False)
        f += ('v_and_b32 v%d, 15, v%d\nv_lshlrev_b32 v%d, 10, v%d\n' % (vT, vL, vT, vT) +
              'v_lshrrev_b32 v%d, 4, v%d\nv_lshl_or_b32 v%d, v%d, 3, v%d\n' % (vT + 1, vL, XO, vT + 1, vT) +
              'v_bfe_u32 v%d, v%d, 2, 2\nv_and_b32 v%d, 1, v%d\nv_lshlrev_b32 v%d, 4, v%d\n' % (vT, vL, vT + 2, vL, vT + 2, vT + 2) +
              'v_mov_b32 v%d, 0x3f80\nv_lshlrev_b32 v%d, v%d, v%d\n' % (vT + 3, vT + 2, vT + 2, vT + 3) +
              'v_cmp_eq_u32 vcc, v%d, v%d\nv_mov_b32 v%d, 0\nv_mov_b32 v%d, 0\n' % (vT, vT + 1, SEL, SEL + 1) +
              'v_cndmask_b32 v%d, 0, v%d, vcc\nv_and_b32 v%d, 2, v%d\nv_cmp_eq_u32 vcc, 0, v%d\n' % (vT + 2, vT + 2, vT, vL, vT) +
              'v_mov_b32 v%d, 0\nv_mov_b32 v%d, 0\nv_cndmask_b32 v%d, 0, v%d, vcc\n' % (SEL + 4, SEL + 5, SEL + 2, vT + 2) +
              'v_sub_u32 v%d, v%d, v%d\n' % (SEL + 3, vT + 2, SEL + 2) +
              'v_lshl_add_u32 v%d, s%d, 11, v%d\nv_and_b32 v%d, s%d, v%d\nv_lshl_add_u32 v%d, v%d, 10, v%d\n' % (HW, sW, vACT, vT, sJ, vONE, A7, vT, vACT) +
              'v_lshlrev_b32 v%d, 7, v%d\nv_mov_b32 v%d, 0x%x\nv_cmp_gt_u32 vcc, 4, v%d\n' % (vT, vL, vT + 1, OOB, vL) +
              'v_and_b32 v%d, 31, v%d\nv_lshl_add_u32 v%d, v%d, 2, s%d\n' % (vT + 3, vL, vPOFF, vT + 3, sCF) +
              'v_cndmask_b32 v%d, v%d, v%d, vcc\nv_cmp_gt_u32 vcc, 2, v%d\n' % (vFLAG, vT + 1, vT, vL) +
              'v_mov_b32 v%d, %s\nv_mov_b32 v%d, 0\nv_cndmask_b32 v%d, v%d, v%d, vcc' % (vT + 2, f2u(-K1), vT + 3, FY, vT + 1, vT)).split('\n')
        assert not p.fill(f, 0, start[10])
        p.scalars(['s_mov_b32 s%d, %s' % (sC0 + k, f2u(-K2)) for k in range(2)], 0, 16)
        p.emit(self)
        self.put(pend)
        self.stamp()
        e('@sec gelu')
        e('s_barrier')
        o, n = [], 0
        for pp in range(2):
            for tb in range(4):
                d = vS + 4 * (n % 4)
                for g in range(2):
                    o += self.gelu4(vACC + 32 * (2 * pp + g) + 4 * tb, d + 2 * g, vP + 4 * g)
                n += 1
                o.append('ds_write_b128 v%d, %s offset:%d' % (HW, vr('v', d, 4), (tb * 16 + pp) * 1024))
        cut = len(o) - int(self.o.get('sflag', 20))
        self.sprinkle(o[:cut], self.flat(self.whalf(53) + self.sst), every=int(self.o.get('gelu_every', 10)))
        e('buffer_store_dword v%d, v%d, %s, s%d offen sc1' % (vONE, vFLAG, srd(SWS), sFS), need=['sst'])
        self.put(o[cut:])
        e('s_barrier', need=['*lg'])
        self.stamp()

    def ready(self, cls, dst):
        if cls == 's':
            return ['s_lshr_b32 s%d, vcc_lo, 8' % dst, 's_and_b32 s%d, s%d, vcc_lo' % (dst, dst), 's_and_b32 s%d, s%d, 0xff' % (dst, dst)]
        return ['s_bfe_u32 s%d, vcc_lo, 0x80010' % dst]

    def masked(self, cls, done, M, regs, off):
        chk = ['v_cmp_eq_u32 vcc, 1, v%d' % vPRES] + self.ready(cls, done) + ['s_not_b32 s%d, s%d' % (sT0, done)]
        va, jobs = [], []
        for q in range(8):
            va += ['v_bfe_u32 v%d, s%d, %d, 1' % (M + q, sT0, q), 'v_lshl_or_b32 v%d, v%d, 30, v%d' % (M + q, M + q, vACT)]
            for p in range(2):
                k = 2 * q + p
                jobs.append(Job('buffer_load_dwordx4 %s, v%d, %s, s%d offen offset:%d sc1' % (vr('a', regs + 4 * k, 4), M + q, srd(SWS), sRET, 1024 * (k % 4)),
                                pre=['s_add_u32 s%d, s%d, 0x%x' % (sRET, sSPI, off + 1024 * k)] if k % 4 == 0 else []))
        return chk, va, jobs

    def reduce(self, acc, regs, ks, first=False):
        for k in ks:
            for g in range(2):
                self.s(mfma(vr('v', acc + 4 * (2 * (k & 1) + g), 4), vr('v', self.SEL + 2 - 2 * g, 4), vr('a', regs + 4 * k, 4), '0' if (first and k < 2) else None))

    def collect(self, cls, done, acc, regs, off):
        e, L = self.s, 'L_%s' % cls
        NEW, N = sT0, sT1
        e('s_mov_b32 s%d, 0x80000' % sT3)
        e('%s_top:\ns_cmp_eq_u32 s%d, 0xff\ns_cbranch_scc1 %s_end' % (L, done, L))
        e('%s_poll:' % L)
        e.add(self.poll_load(SWS).ins)
        e('s_waitcnt vmcnt(0)\nv_cmp_eq_u32 vcc, 1, v%d' % vPRES)
        self.put(self.ready(cls, NEW))
        e('s_andn2_b32 s%d, s%d, s%d\ns_cbranch_scc1 %s_go' % (NEW, NEW, done, L))
        e('s_sub_u32 s%d, s%d, 1\ns_cbranch_scc0 %s_poll\ns_branch %s_end' % (sT3, sT3, L, L))
        e('%s_go:\ns_or_b32 s%d, s%d, s%d\ns_bcnt1_i32_b32 s%d, s%d' % (L, done, done, NEW, N, NEW))
        for n in range(1, 8):
            e('s_cmp_eq_u32 s%d, %d\ns_cbranch_scc1 %s_ld%d' % (N, n, L, 8 - n))
        for q in range(8):
            e('%s_ld%d:\ns_ff1_i32_b32 s%d, s%d\ns_bitset0_b32 s%d, s%d' % (L, q, sT2, NEW, NEW, sT2))
            e('s_lshl_b32 s%d, s%d, 11\ns_add_u32 s%d, s%d, s%d' % (sT2, sT2, sT2, sT2, off))
            for p in range(2):
                e('buffer_load_dwordx4 %s, v%d, %s, s%d offen offset:%d sc1' % (vr('a', regs + 8 * q + 4 * p, 4), vACT, srd(SWS), sT2, 1024 * p))
        for n in range(1, 8):
            e('s_cmp_eq_u32 s%d, %d\ns_cbranch_scc1 %s_mm%d' % (N, n, L, 8 - n))
        for q in range(8):
            e('%s_mm%d:' % (L, q))
            self.reduce(acc, regs, (2 * q, 2 * q + 1))
        e('s_branch %s_top\n%s_end:' % (L, L))

    def p7_final(self):
        e = self.s
        XO, A7, FY, SEL = self.XO, self.A7, self.FY, self.SEL
        e('@sec P7')
        dmas = {gi: self.whalf(48 + gi + 5) for gi in range(1, 9)}
        p, st, pend = self.g64h(14, 48, (4, 4, 4, 4), lambda gi, b: vACC + 64 * (gi // 7) + 16 * b, lambda gi: gi % 7 == 0,
                                lambda gi, tb: (A7, (tb * 16 + gi % 7) * 1024), dmas)

        def ystore(ps):
            return [self.part_store(vACC + 64 * ps + 32 * pp + 16 + 4 * tb, sYPO, 65536 * pp + 16384 * tb + 1024 * ps, 'yst')
                    for pp in range(2) for tb in range(4)]

        def ypack(ps):
            o = []
            for k in range(8):
                a = vACC + 64 * ps + 32 * (k >> 2) + 4 * (k & 3)
                o += self.pack_frag(a, a + 16)
            return o
        sDS, sDY = sKO, sVO
        g0 = int(self.o.get('spoll', 1))
        chk, va, sg = self.masked('s', sDS, vS, 64, 0)
        p.jobs(self.flat([self.poll_load(SWS)]), [st[g0] + 7])
        p.g[st[g0 + 2] + 7]['end'] += chk
        rate = (7, 11, 15) if int(self.o.get('srate', 2)) == 3 else (7, 15)
        pos = [st[g] + o for g in range(g0 + 3, 14) for o in rate][:16]
        assert len(pos) == 16
        for grp, q in zip(self.flat(sg), pos):
            p.jobs([grp], [q], lo=q - 3)
        for q in range(8):
            assert not p.fill(va[2 * q:2 * q + 2], st[g0 + 2] + 8, pos[2 * q])
        pos = [st[g] + o for g in (10, 11) for o in (2, 6, 10, 14)]
        for grp, q in zip(self.flat(ystore(0)), pos):
            p.jobs([grp], [q], lo=q - 2)
        gy = int(self.o.get('ypoll', 9))
        p.jobs(self.flat([self.poll_load(SWS)]), [st[gy] + 14])
        pk = ypack(0)
        for k in range(8):
            assert not p.fill(pk[4 * k:4 * k + 4], st[7] + 2, pos[k])
        p.scalars(['s_add_u32 s%d, s%d, 0x%x' % (sOB, sSPI, YP_OFF - SP_OFF)], 0, 16)
        p.emit(self)
        self.stamp()
        e('@sec y epilogue')
        self.sprinkle(ypack(1), self.flat(ystore(1)), start=4, every=4)
        self.stamp('B issued')
        chk, va, yg = self.masked('y', sDY, vS + 8, 192, YP_OFF - SP_OFF)
        XF, SS, ZZ, E = vX + 32, vACC, vACC + 32, vS
        yo = int(self.o.get('yorder', 0))
        flag = Ins('buffer_store_dword v%d, v%d, %s, s%d offen sc1' % (vONE, FY, srd(SWS), sFY), need=['yst'])
        if yo == 0:
            self.put(chk + va)
            self.emit_jobs(yg)
            e.add(flag)
            self.stamp('B acked')
        self.reduce(XF, aRES, (0, 1), True)
        self.reduce(ZZ, aX1, (0, 1), True)
        self.reduce(SS, 64, range(16), True)
        if yo == 0:
            self.reduce(ZZ, 192, range(16))
        else:
            e('s_mov_b32 s%d, 0' % sDY)
            e.add(flag)
        self.stamp('reduced')
        self.collect('s', sDS, SS, 64, sSPI)
        self.stamp('s done')
        self.collect('y', sDY, ZZ, 192, sOB)
        self.stamp('y done')
        P = lambda b: vr('v', b, 2)
        for r in range(16):
            e('v_mul_f32 v%d, %s, v%d' % (E + r, f2u(-math.log2(math.e)), ZZ + r))
        for r in range(16):
            e('v_exp_f32 v%d, v%d' % (E + r, E + r))
        for r in range(0, 16, 2):
            e('v_pk_add_f32 %s, %s, 1.0 op_sel_hi:[1,0]' % (P(E + r), P(E + r)))
        for r in range(0, 16, 2):
            e('v_pk_mul_f32 %s, %s, %s' % (P(SS + r), P(SS + r), P(ZZ + r)))
        for nb in range(4):
            for r in range(4 * nb, 4 * nb + 4):
                e('v_rcp_f32 v%d, v%d' % (E + r, E + r))
            for r in range(4 * nb, 4 * nb + 4, 2):
                e('v_pk_fma_f32 %s, %s, %s, %s' % (P(E + r), P(E + r), P(SS + r), P(XF + r)))
            for k in range(2 * nb, 2 * nb + 2):
                e('v_cvt_pk_bf16_f32 v%d, v%d, v%d' % (vP + k, E + 2 * k, E + 2 * k + 1))
            e('buffer_store_dwordx2 %s, v%d, %s, s%d offen offset:%d' % (P(vP + 2 * nb), XO, srd(SOUT), sXO, 512 * (nb >> 1) + 32 * (nb & 1)))
        if self.prof:
            e('s_waitcnt vmcnt(0)')
            self.stamp('end')
            e('v_accvgpr_read_b32 v%d, a%d\nv_accvgpr_read_b32 v%d, a%d' % (vT, aPROF, vT + 1, aPROF + 1))
            e('s_lshl_b32 s%d, s2, 11\ns_lshl_b32 s%d, s%d, 9\ns_add_u32 s%d, s%d, s%d' % (sT0, sT1, sW, sT0, sT0, sT1))
            e('s_add_u32 s%d, s%d, 0x%x\nv_lshlrev_b32 v%d, 3, v%d' % (sT0, sT0, PROF_OFF, vT + 2, vL))
            e('buffer_store_dwordx2 %s, v%d, %s, s%d offen' % (vr('v', vT, 2), vT + 2, srd(SWS), sT0))

    def build(self, verbose=False):
        self.prologue()
        self.p0_p2()
        self.q_p1()
        self.attention()
        self.p6()
        self.p5()
        self.p7_final()
        s = self.s
        s.insert_waits()
        pads = s.pad_hazards()
        est = s.estimate()
        s.fold()
        if int(self.o.get('align', 1)):
            fixes = s.align()
            if verbose:
                print('alignment fixes:', fixes)
        if verbose:
            print('hazard pads:', pads)
            for name, cyc, nm in est:
                print('  %-18s est %6d cycles, %5d mfma (%6d)' % (name, cyc, nm, nm * 16))
            print('  total', sum(c for _, c, _ in est))
        ref = open('cdna_kernels/%s.s.ref' % NAME).read().split('\n')
        head = [l for l in ref if l.startswith(';') and '@launch' not in l]
        o = head + ['; @launch grid=(256,1,1) block=(256,1,1) lds=163840',
                    '.amdgcn_target "amdgcn-amd-amdhsa--gfx950"', '.text', '.globl %s_kernel' % NAME, '.p2align 8',
                    '.type %s_kernel,@function' % NAME, '%s_kernel:' % NAME]
        o.append(s.text())
        o.append('L_end:\n    s_endpgm')
        o += self.tail
        o.append('L_code_end:\n    s_endpgm')
        o.append('''.section .rodata,"a"
.p2align 6
.amdhsa_kernel %s_kernel
  .amdhsa_next_free_vgpr 512
  .amdhsa_next_free_sgpr 102
  .amdhsa_accum_offset 256
  .amdhsa_group_segment_fixed_size 0
  .amdhsa_kernarg_size 104
  .amdhsa_user_sgpr_count 2
  .amdhsa_user_sgpr_kernarg_segment_ptr 1
  .amdhsa_system_sgpr_workgroup_id_x 1
  .amdhsa_float_denorm_mode_32 3
.end_amdhsa_kernel''' % NAME)
        return '\n'.join(o) + '\n'


if __name__ == '__main__':
    out = sys.argv[1] if len(sys.argv) > 1 else 'k.s'
    opts = dict(a.split('=') for a in sys.argv[2:])
    open(out, 'w').write(Gen(False, opts).build(True))
    open(out.replace('.s', '_prof.s'), 'w').write(Gen(True, opts).build())
```

```python
import re

TRANS = ('v_exp_f32', 'v_log_f32', 'v_rcp_f32', 'v_rsq_f32', 'v_sqrt_f32')
_REG = re.compile(r'^(-?)(?:abs\()?([vas])(?:(\d+)|\[(\d+):(\d+)\])\)?$')


def regs_of(tok):
    tok = tok.strip()
    if tok in ('vcc', 'exec', 'm0', 'scc'):
        return [tok]
    if tok in ('vcc_lo', 'vcc_hi'):
        return ['vcc']
    if tok in ('exec_lo', 'exec_hi'):
        return ['exec']
    if tok.startswith('|') and tok.endswith('|'):
        tok = tok[1:-1]
    m = _REG.match(tok)
    if not m:
        return []
    f = m.group(2)
    if m.group(3) is not None:
        return [(f, int(m.group(3)))]
    return [(f, i) for i in range(int(m.group(4)), int(m.group(5)) + 1)]


class Ins:
    __slots__ = ('text', 'op', 'kind', 'rd', 'wr', 'tag', 'need', 'srcc', 'srcab', 'note', 'nst')

    def __init__(self, text, tag=None, need=None):
        self.text = text
        self.tag = tag
        self.need = need or []
        self.rd, self.wr, self.srcc, self.srcab = set(), set(), set(), set()
        self.nst = 1
        t = text.split(';')[0].strip()
        if t.endswith(':') or t.startswith('.') or t.startswith('@') or not t:
            self.op, self.kind, self.nst = t, 'meta', 0
            return
        parts = t.split(None, 1)
        op = self.op = parts[0]
        rest = parts[1] if len(parts) > 1 else ''
        ops, depth, cur = [], 0, ''
        for ch in rest:
            if ch == '[':
                depth += 1
            if ch == ']':
                depth -= 1
            if ch == ',' and depth == 0:
                ops.append(cur.strip())
                cur = ''
            else:
                cur += ch
        mods = ''
        if cur.strip():
            last = cur.strip().split(None, 1)
            ops.append(last[0])
            mods = last[1] if len(last) > 1 else ''
        R = [regs_of(o) for o in ops]
        rd, wr = self.rd, self.wr
        if op.startswith('v_mfma') or op.startswith('v_smfmac'):
            self.kind = 'mfma' if op.startswith('v_mfma') else 'smfma'
            wr.update(R[0])
            self.srcab.update(R[1] + R[2])
            if self.kind == 'mfma':
                self.srcc.update(R[3])
            else:
                self.srcc.update(R[0])
                self.srcab.update(R[3])
            rd.update(self.srcab | self.srcc)
        elif op.startswith('v_'):
            base = op.replace('_e32', '').replace('_e64', '')
            self.kind = 'trans' if base in TRANS else 'valu'
            wr.update(R[0])
            for r in R[1:]:
                rd.update(r)
            if base.startswith(('v_fmac', 'v_dot2c', 'v_writelane')):
                rd.update(R[0])
            if base.startswith(('v_swap', 'v_permlane')):
                rd.update(R[0])
                wr.update(R[1])
            if base.startswith('v_cmpx'):
                wr.add('exec')
            if base.startswith(('v_add_co', 'v_sub_co', 'v_addc_co')):
                wr.update(R[1])
        elif op.startswith(('ds_read', 'ds_bpermute')):
            self.kind = 'dsr'
            wr.update(R[0])
            for r in R[1:]:
                rd.update(r)
        elif op.startswith('ds_'):
            self.kind = 'dsw'
            for r in R:
                rd.update(r)
        elif op.startswith('buffer_load'):
            if re.search(r'\blds\b', mods):
                self.kind = 'dma'
                for r in R:
                    rd.update(r)
                rd.add('m0')
            else:
                self.kind = 'vld'
                wr.update(R[0])
                for r in R[1:]:
                    rd.update(r)
        elif op.startswith('buffer_'):
            self.kind = 'vst'
            for r in R:
                rd.update(r)
            if op.endswith(('x3', 'x4')):
                self.srcc.update(R[0])
        elif op == 's_waitcnt':
            self.kind = 'wait'
        elif op == 's_barrier':
            self.kind = 'bar'
        elif op == 's_nop':
            self.kind = 'nop'
            self.nst = int(ops[0], 0) + 1
        elif op.startswith(('s_load', 's_memtime', 's_memrealtime')):
            self.kind = 'smem'
            wr.update(R[0])
            for r in R[1:]:
                rd.update(r)
        elif op.startswith(('s_branch', 's_cbranch', 's_endpgm', 's_setpc', 's_sleep', 's_setprio')):
            self.kind = 'ctl'
        elif op.startswith('s_cmp') or op.startswith('s_bitcmp'):
            self.kind = 'salu'
            for r in R:
                rd.update(r)
        elif op.startswith('s_'):
            self.kind = 'salu'
            wr.update(R[0])
            for r in R[1:]:
                rd.update(r)
            if 'saveexec' in op:
                wr.add('exec')
        else:
            raise ValueError('unknown instruction: ' + text)


def isv(r):
    return isinstance(r, tuple) and r[0] in 'va'


def iss(r):
    return (isinstance(r, tuple) and r[0] == 's') or r == 'vcc'


EAGER = 10
VEC = ('valu', 'trans')
MF = ('mfma', 'smfma')
VM = ('vld', 'vst', 'dma')
LG = ('dsr', 'dsw')


def hazard(p, c):
    n = 0
    if p.kind in MF:
        if c.kind in MF:
            if p.wr & c.srcab:
                n = max(n, 8)
            if p.wr & c.srcc and p.wr != c.srcc:
                n = max(n, 6)
            if p.wr & c.wr and not (p.wr & c.srcc):
                n = max(n, 6 if p.wr != c.wr else 0)
        elif c.kind in VEC or c.kind in VM or c.kind in LG:
            if p.wr & (c.rd | c.wr):
                n = max(n, 8)
            if c.kind in VEC and p.srcc & c.wr:
                n = max(n, 3)
    elif p.kind in VEC:
        pv = {r for r in p.wr if isv(r)}
        ps = {r for r in p.wr if iss(r)}
        if c.kind in MF and pv & c.rd:
            n = max(n, 2)
        if c.kind in MF and 'exec' in p.wr:
            n = max(n, 4)
        if c.kind in VEC:
            if p.kind == 'trans' and pv & c.rd:
                n = max(n, 1)
            if (c.op.startswith('v_permlane') or 'dpp' in c.op) and pv & c.rd:
                n = max(n, 2)
            if c.op.startswith(('v_readlane', 'v_readfirstlane')) and pv & c.rd:
                n = max(n, 1)
            if ps & c.rd:
                n = max(n, 4 if c.op.startswith(('v_readlane', 'v_writelane')) else 2)
        if c.kind in VM and ps & c.rd:
            n = max(n, 5)
        if c.kind == 'salu' and ps & c.rd:
            n = max(n, 1)
    elif p.kind == 'salu':
        if 'm0' in p.wr and c.kind == 'dma':
            n = max(n, 1)
    elif p.kind == 'vst':
        if p.srcc & c.wr:
            n = max(n, 2)
    return n


class Stream:
    def __init__(self):
        self.l = []

    def __call__(self, text, tag=None, need=None):
        for line in text.strip('\n').split('\n'):
            if line.strip():
                self.l.append(Ins(line.strip(), tag, need))
        return self

    def add(self, ins):
        self.l.append(ins)

    def insert_waits(self):
        out = []
        issued = {'vm': [], 'lg': []}
        done = {'vm': 0, 'lg': 0}
        pend = {}
        tags = {}
        mark = []
        cnt = {'vm': 0, 'lg': 0}
        LIM = {'vm': 62, 'lg': 14}
        for ins in self.l:
            req = {'vm': -1, 'lg': -1}
            if ins.kind != 'meta':
                own = 'vm' if ins.kind in VM else 'lg' if ins.kind in LG else None
                for r in ins.rd | ins.wr:
                    if r in pend:
                        c, s = pend[r]
                        if c == own and r not in ins.rd:
                            continue
                        req[c] = max(req[c], s)
            for t in ins.need:
                if t == '*vm':
                    req['vm'] = cnt['vm'] - 1
                elif t == '*lg':
                    req['lg'] = cnt['lg'] - 1
                else:
                    assert t in tags, 'unknown tag ' + t
                    c, s = tags[t]
                    req[c] = max(req[c], s)
            w = {c: s for c, s in req.items() if s >= done[c]}
            if w:
                pos = len(out)
                k = pos - 1
                while k >= 0 and pos - k <= 4 and out[k].kind not in MF and out[k].kind not in ('meta', 'ctl', 'bar'):
                    k -= 1
                if k >= 0 and pos - k <= 4 and out[k].kind in MF:
                    mk = mark[k]
                    if all(mk[c] > s for c, s in w.items()):
                        pos = k + 1
                base = mark[pos - 1] if pos > 0 else {'vm': 0, 'lg': 0}
                if 'lg' in w:
                    k, nm = pos - 1, 0
                    while k >= 0 and nm < EAGER and pos - k < 60:
                        nm += out[k].kind in MF
                        k -= 1
                    if nm == EAGER and k >= 0:
                        w['lg'] = max(w['lg'], mark[k]['lg'] - 1)
                val = {c: min(base[c] - 1 - s, LIM[c]) for c, s in w.items()}
                merged = False
                for q in (pos - 1, pos):
                    if 0 <= q < len(out) and out[q].kind == 'wait' and getattr(out[q], 'note', None) is not None:
                        old = out[q].note
                        for c, v in val.items():
                            old[c] = min(old.get(c, 99), v)
                        out[q].text = wait_text(old)
                        merged = True
                        break
                if not merged:
                    wi = Ins(wait_text(val))
                    wi.note = dict(val)
                    out.insert(pos, wi)
                    mark.insert(pos, dict(base))
                for c, v in val.items():
                    done[c] = max(done[c], base[c] - v)
                for r in [r for r, (c, s) in pend.items() if s < done[c]]:
                    del pend[r]
            if ins.kind == 'wait':
                ins.note = None
                m = re.search(r'vmcnt\((\d+)\)', ins.text)
                if m:
                    done['vm'] = max(done['vm'], cnt['vm'] - int(m.group(1)))
                m = re.search(r'lgkmcnt\((\d+)\)', ins.text)
                if m:
                    done['lg'] = max(done['lg'], cnt['lg'] - int(m.group(1)))
                for r in [r for r, (c, s) in pend.items() if s < done[c]]:
                    del pend[r]
            c = 'vm' if ins.kind in VM else 'lg' if ins.kind in LG else None
            if c:
                s = cnt[c]
                cnt[c] += 1
                for r in ins.wr:
                    pend[r] = (c, s)
                if ins.tag:
                    tags[ins.tag] = (c, s)
            if ins.op == '@need':
                continue
            out.append(ins)
            mark.append(dict(cnt))
        self.l = out

    def pad_hazards(self):
        out = []
        pads = 0
        for ins in self.l:
            if ins.kind not in ('meta', 'wait', 'nop', 'bar', 'ctl'):
                dist, need = 0, 0
                for p in reversed(out):
                    if dist >= 8:
                        break
                    h = hazard(p, ins)
                    if h > dist:
                        need = max(need, h - dist)
                    dist += p.nst
                if need:
                    n = Ins('s_nop %d' % (need - 1))
                    n.note = 'pad'
                    out.append(n)
                    pads += 1
            out.append(ins)
        self.l = out
        return pads

    def fold(self):
        out, i, l = [], 0, self.l
        while i < len(l):
            ins = l[i]
            if ins.kind == 'meta' and ins.op.startswith('@rep '):
                name = ins.op.split()[1]
                bodies, cur = [], []
                i += 1
                while not (l[i].kind == 'meta' and l[i].op == '@endrep ' + name):
                    if l[i].kind == 'meta' and l[i].op.startswith('@rep ' + name + ' '):
                        bodies.append(cur)
                        cur = []
                    else:
                        cur.append(l[i])
                    i += 1
                bodies.append(cur)
                t0 = [x.text for x in bodies[0]]
                for k, b in enumerate(bodies[1:]):
                    tb = [x.text for x in b]
                    if tb != t0:
                        for a_, b_ in zip(t0, tb):
                            if a_ != b_:
                                raise AssertionError('loop %s copy %d differs: %r vs %r' % (name, k + 1, a_, b_))
                        raise AssertionError('loop %s copy %d length differs' % (name, k + 1))
                out.append(Ins('.p2align 3'))
                out.append(Ins(name + ':'))
                out += bodies[0]
                i += 1
            else:
                out.append(ins)
                i += 1
        self.l = out

    def align(self, pages=False):
        import subprocess, tempfile, os
        uniq = sorted({x.text for x in self.l if x.kind not in ('meta', 'ctl') and 'L_' not in x.text})
        d = tempfile.mkdtemp()
        open(d + '/a.s', 'w').write('.amdgcn_target "amdgcn-amd-amdhsa--gfx950"\n.text\n' + '\n'.join(uniq) + '\n')
        subprocess.check_call(['clang', '-x', 'assembler', '-target', 'amdgcn-amd-amdhsa', '-mcpu=gfx950', '-c', d + '/a.s', '-o', d + '/a.o'])
        dis = subprocess.check_output(['llvm-objdump', '-d', '--mcpu=gfx950', d + '/a.o']).decode()
        sz = [4 * len(m.group(1).split()) for m in re.finditer(r'// [0-9A-F]{12}: ([0-9A-F ]+)', dis)]
        assert len(sz) == len(uniq)
        size = dict(zip(uniq, sz))
        def sizeof(x):
            return 0 if x.kind == 'meta' else 4 if x.kind == 'ctl' else size.get(x.text, 8)
        out, off, fixes = [], 0, 0
        l = self.l
        anchored, page = False, -1
        self.pages, self.marks = [], {}
        for i, x in enumerate(l):
            if x.kind == 'meta' and x.text.startswith('.p2align'):
                al = 1 << int(x.text.split()[1])
                if al == 4096:
                    off, anchored = 0, True
                off = (off + al - 1) // al * al
            if x.kind == 'meta' and x.op.startswith('@mark '):
                self.marks[x.op[6:]] = max(page, off >> 12 if anchored else -1)
            if pages and anchored and off >> 12 > page and x.kind != 'meta' and (out[-1].kind in MF or off % 4096 >= 40 or
                                                                               not any(y.kind in MF for y in l[i:i + 5])):
                page = off >> 12
                out.append(Ins('L_pg%d:' % page))
                br = Ins('s_cbranch_execz L_end')
                self.pages.append(br)
                out.append(br)
                off += 4
            if off % 8 and x.kind in VEC and sizeof(x) == 8:
                run, k = 0, i
                while k < len(l) and l[k].kind not in MF and sizeof(l[k]) == 8:
                    run, k = run + 1, k + 1
                pv = out[-1]
                if run >= 3 and pv.kind in VEC and sizeof(pv) == 4 and not pv.op.startswith(('v_accvgpr', 'v_readfirst', 'v_permlane', 'v_swap')) and 'dpp' not in pv.op:
                    t = pv.text.replace(pv.op, pv.op + '_e64', 1)
                    size[t] = 8
                    pv.text = t
                    off += 4
                    fixes += 1
                elif run >= 6:
                    out.append(Ins('s_nop 0'))
                    off += 4
                    fixes += 1
            out.append(x)
            off += sizeof(x)
        self.l = out
        return fixes

    def estimate(self):
        res, sec = [], None
        t = mf = vec = 0
        t0, nm = 0, 0
        prev = None
        for ins in self.l:
            if ins.kind == 'meta':
                if ins.op.startswith('@sec '):
                    if sec:
                        res.append((sec, t - t0, nm))
                    sec, t0, nm = ins.op[5:], t, 0
                continue
            k = ins.kind
            if k in MF:
                s = max(t, mf, vec)
                mf, vec, t = s + 16, s + (8 if k == 'mfma' else 12), s + 4
                nm += 1
            elif k in VEC:
                s = max(t, vec)
                if ins.op.startswith(('v_pk_', 'v_dot2')):
                    s = max(s, mf)
                    mf = s + 4
                t = s + (8 if k == 'trans' or ins.op.startswith(('v_permlane', 'v_swap')) else 4)
            elif k in LG:
                s = max(t, vec) + (8 if prev in VEC else 0)
                t = s + 4
            elif k in VM:
                t = t + (8 if prev in VEC else 0) + 12
            elif k == 'nop':
                t += 4 * ins.nst
            else:
                t += 4
            prev = k
        if sec:
            res.append((sec, t - t0, nm))
        return res

    def text(self):
        o = []
        for ins in self.l:
            if ins.kind == 'meta':
                if ins.op.startswith('@'):
                    if ins.op.startswith('@sec '):
                        o.append('; ---- ' + ins.op[5:])
                    continue
                o.append(ins.text)
            else:
                o.append('    ' + ins.text)
        return '\n'.join(o) + '\n'


def wait_text(val):
    p = []
    if 'vm' in val:
        p.append('vmcnt(%d)' % val['vm'])
    if 'lg' in val:
        p.append('lgkmcnt(%d)' % val['lg'])
    return 's_waitcnt ' + ' '.join(p)


def vr(f, b, n=1):
    return '%s%d' % (f, b) if n == 1 else '%s[%d:%d]' % (f, b, b + n - 1)
```

```python
import math
import struct
import sys

sys.path.insert(0, 'work')
from asmgen import Ins, Stream, vr

NAME = 'recurrent_scan__gqa_block_cached__mixer_s_mlp__prompt'


def f2u(x):
    return '0x%08x' % struct.unpack('<I', struct.pack('<f', x))[0]


H_OFF = 0
X1_OFF = 0x200000
FLAG_OFF = 0x400000
ST_OFF = 0x600000
SP_OFF = 0x1000000
YP_OFF = 0x2000000
PROF_OFF = 0x8000000
OOB = 0x40000000

KRING, VRING = 0, 32768
WREG = 65536
WWAVE = 24576

SX, SK, SV, SWQ, SWO, SW1, SW2, SW3, SW4, SOUT, SDBG, SWS, SH, SCODE = range(4, 60, 4)
sT, sJ, sW, sTBG, sRING, sW2K = 60, 61, 62, 63, 64, 65
sO, sDONE, sKO, sVO, sCNT, sRET = 66, 67, 68, 69, 70, 71
sT0, sT1, sT2, sT3 = 72, 73, 74, 75
sC0 = 76
sPASS, sWSH = 78, 79
sST = 80
sHO, sX1O, sX1I, sSTO, sPO, sPI, sCF, sFP, sXO, sCW, sW3W, sW4W, sWOW = range(84, 97)

vL = 0
vTR = 1
vKA = 9
vACT = 13
vWN, vW3, vW2, vW1 = 14, 15, 16, 17
vDB = 18
vFLAG, vONE, vPOFF, vPRES = 22, 23, 24, 25
vT = 26
vIDX = 31
vS, vP = 32, 48
vX = 64
vACC = 128
aK, aV, aONES, aL, aX1, aQ = 0, 64, 128, 132, 140, 192
aPROF, aDUMMY, aSTAT, aRES = 150, 152, 156, 160

CSCALE = math.log2(math.e) / math.sqrt(128.0)
K1 = 2 * 0.7978845608028654 * math.log2(math.e)
K2 = K1 * 0.044715


def srd(n):
    return 's[%d:%d]' % (n, n + 3)


def mfma(d, a, b, c=None):
    return 'v_mfma_f32_16x16x32_bf16 %s, %s, %s, %s' % (d, a, b, d if c is None else c)


class Job:
    def __init__(self, ins, pre=(), m0=None, post=()):
        self.ins = ins if isinstance(ins, Ins) else Ins(ins)
        self.pre, self.m0, self.post = list(pre), m0, list(post)


class Plan:
    def __init__(self):
        self.mf, self.g = [], []

    def add(self, m):
        self.mf.append(m)
        self.g.append(dict(sc=[], ds=[], vm=[], va=[], end=[]))
        return len(self.mf) - 1

    def cap(self, j):
        g = self.g[j]
        if g['vm'] or g['end']:
            return 0
        c = 1 if self.mf[j].startswith('v_smfmac') else 2
        return c - len(g['ds']) - sum(vcost(x) for x in g['va']) - max(0, len(g['sc']) - 1)

    def jobs(self, groups, pos, lo=0, avoid=()):
        prev, pend = lo - 1, []
        for (pre, d, post), p in zip(groups, pos):
            self.scalars(pend + pre, prev + 1, p, avoid, late=True)
            assert not self.g[p]['vm'], 'gap %d already holds a memory instruction' % p
            self.g[p]['vm'].append(d)
            prev, pend = p, post
        return prev, pend

    def scalars(self, sc, a, b, avoid=(), late=False):
        if not sc:
            return
        c = [j for j in range(a, b) if not self.g[j]['vm'] and not self.g[j]['sc'] and j not in avoid]
        if len(c) < len(sc):
            c = [j for j in range(a, b) if not self.g[j]['vm']]
        if not c:
            self.g[b]['sc'] += sc
            return
        c = c[-len(sc):] if late else c[:len(sc)]
        for k, x in enumerate(sc):
            self.g[c[min(k, len(c) - 1)]]['sc'].append(x)

    def fill(self, va, start=0, end=None):
        va, j = list(va), start
        end = len(self.mf) if end is None else end
        while va and j < end:
            if self.cap(j) >= vcost(va[0]):
                self.g[j]['va'].append(va.pop(0))
            else:
                j += 1
        return va

    def emit(self, gen):
        for m, g in zip(self.mf, self.g):
            gen.put([m] + g['sc'] + g['vm'] + g['ds'] + g['va'] + g['end'])


def vcost(x):
    t = x.text if isinstance(x, Ins) else x
    return 2 if t.startswith(('v_exp', 'v_rcp', 'v_rsq', 'v_permlane')) else 1


class Gen:
    def __init__(self, prof=False, opts=None):
        self.s = Stream()
        self.tail = []
        self.prof = prof
        self.o = opts or {}
        self.nstamp = 0
        self.nlab = 0
        self.kv_nt = False

    def stamp(self, name=None):
        if not self.prof or (self.prof == 2 and name not in ('kernarg', 'end', 'P0 end', 'P2 end', 'pre', 'loop')):
            return
        e = self.s
        sec = [x.op[5:] for x in e.l if x.kind == 'meta' and x.op.startswith('@sec ')][-1]
        self.tail.append('; @@' + (name or sec))
        e('s_waitcnt lgkmcnt(0)')
        e('s_memtime s[%d:%d]\ns_memrealtime s[%d:%d]\ns_waitcnt lgkmcnt(0)' % (sST, sST + 1, sST + 2, sST + 3))
        for k in range(2):
            e('v_accvgpr_read_b32 v%d, a%d' % (vONE, aPROF + k))
            e('s_nop 1\nv_writelane_b32 v%d, s%d, %d' % (vONE, sST + 2 * k, self.nstamp))
            e('v_accvgpr_write_b32 a%d, v%d' % (aPROF + k, vONE))
        e('v_mov_b32 v%d, 1' % vONE)
        self.nstamp += 1

    def stamp_items(self, name):
        main, self.s = self.s, Stream()
        self.s('@sec ' + name)
        self.stamp(name)
        items, self.s = self.s.l[1:], main
        return items

    def poll_load(self, buf):
        return Job('buffer_load_dword v%d, v%d, %s, 0 offen sc1' % (vPRES, vPOFF, srd(buf)))

    def poll_check(self, buf, val):
        self.nlab += 1
        n = self.nlab
        cmp = 'v_cmp_ne_u32' if val == 1 else 'v_cmp_gt_u32'
        self.tail.append('''L_spin%(n)d:
    s_mov_b32 s%(c)d, 0x80000
L_spin%(n)d_loop:
    buffer_load_dword v%(r)d, v%(o)d, %(b)s, 0 offen sc1
    s_waitcnt vmcnt(0)
    %(cmp)s vcc, %(v)d, v%(r)d
    s_cbranch_vccz L_back%(n)d
    s_sub_u32 s%(c)d, s%(c)d, 1
    s_cbranch_scc0 L_spin%(n)d_loop
    s_branch L_back%(n)d''' % dict(n=n, c=sT3, r=vPRES, o=vPOFF, b=srd(buf), v=val, cmp=cmp))
        return [Ins('%s vcc, %d, v%d' % (cmp, val, vPRES)), Ins('s_cbranch_vccnz L_spin%d' % n), Ins('L_back%d:' % n)]

    def flag_store(self, phase, need):
        return Job(Ins('buffer_store_dword v%d, v%d, %s, s%d offen sc1' % (vONE, vFLAG, srd(SWS), sT2), need=need),
                   pre=['s_mov_b32 s%d, 0x%x' % (sT2, FLAG_OFF + phase * 131072)])

    def opt(self, k, d):
        return int(self.o.get(k, d))

    def touch(self, r):
        if not self.opt('touch', 1):
            return
        e = self.s
        e('@mark touch%d\ns_mov_b64 exec, 0' % r)
        for w in range(3):
            e('s_cmp_eq_u32 s%d, %d\ns_cbranch_scc1 L_touch%d_%d' % (sW, w, r, w))
        e('s_branch L_touch%d_3\nL_touched%d:\ns_mov_b64 exec, -1' % (r, r))

    def put(self, items):
        for x in items:
            self.s.add(x if isinstance(x, Ins) else Ins(x))

    def flat(self, jobs):
        res, m0 = [], None
        for jb in jobs:
            pre = list(jb.pre)
            if jb.m0 and jb.m0 != m0:
                pre.insert(0, jb.m0)
                m0 = jb.m0
            res.append((pre, jb.ins, list(jb.post)))
        return res

    def emit_jobs(self, jobs):
        for pre, d, post in self.flat(jobs):
            self.put(pre + [d] + post)

    def sprinkle(self, main, jobs, start=0, every=8):
        groups = self.flat(jobs)
        for k, x in enumerate(main):
            if groups and k >= start and (k - start) % every == 0:
                pre, d, post = groups.pop(0)
                self.put(pre + [d] + post)
            self.put([x])
        for pre, d, post in groups:
            self.put(pre + [d] + post)

    def whalf(self, name, k, h):
        buf, vo, stride, nat, off = {
            'wq': (SWQ, vDB, 8192, True, (k >> 1) * 32 * 8192 + (k & 1) * 128),
            'w1': (SW1, vW1, 1024, True, k * 32768),
            'w2': (SW2, vW2, 1024, False, k * 32768),
            'w3': (SW3, vW3, 3584, False, k * 32 * 3584),
            'w4': (SW4, vWN, 1024, False, (k % 7) * 32768 + (k // 7) * 512),
            'wo': (SWO, vWN, 1024, False, (k >> 1) * 32768 + (k & 1) * 512)}[name]
        rows = [16 * (a & 1) + 4 * (a >> 1) if nat else 8 * a for a in range(4)]
        return [Job(Ins('buffer_load_dwordx4 v%d, %s, s%d offen offset:%d %slds' % (vo, srd(buf), sO, 1024 * a, 'nt ' if name in self.o.get('wnt', 'wo').split(',') else ''), tag='%s%d' % (name, k)),
                    pre=['s_mov_b32 s%d, 0x%x' % (sO, off + rows[a] * stride - 1024 * a)],
                    m0='s_add_u32 m0, s%d, 0x%x' % (sRING, (h % 6) * 4096)) for a in range(4)]

    def waddr(self, dst, t, base):
        return ['v_lshrrev_b32 v%d, 2, v%d' % (dst, vL), 'v_bfe_u32 v%d, v%d, 3, 2' % (t, vL), 'v_lshlrev_b32 v%d, 5, v%d' % (t, t),
                'v_lshl_or_b32 v%d, v%d, 7, v%d' % (dst, dst, t), 'v_and_b32 v%d, 3, v%d' % (t, vL), 'v_lshl_or_b32 v%d, v%d, 3, v%d' % (dst, t, dst),
                'v_add_u32 v%d, %s, v%d' % (dst, base, dst)] + ['v_xor_b32 v%d, 0x%x, v%d' % (dst + b, b << 5, dst) for b in range(1, 4)]

    def vaddr_restore(self):
        return ['v_xor_b32 v%d, 0x80, v%d' % (vTR + db, vTR + 4 + db) for db in range(4)]

    def lanesum(self, r, t):
        o = []
        for op in ('v_permlane32_swap_b32', 'v_permlane16_swap_b32'):
            o += ['v_mov_b32 v%d, v%d' % (t, r), '%s v%d, v%d' % (op, t, r), 'v_add_f32 v%d, v%d, v%d' % (r, r, t)]
        return o

    def gelu4(self, src, dst, tmp, k1, scale=None):
        o = []
        e = o.append
        P = lambda b: vr('v', b, 2)
        if scale is not None:
            for h in (0, 2):
                e('v_pk_mul_f32 %s, %s, %s op_sel_hi:[1,0]' % (P(src + h), P(src + h), P(scale)))
        for h in (0, 2):
            e('v_pk_mul_f32 %s, %s, %s' % (P(tmp + h), P(src + h), P(src + h)))
        for h in (0, 2):
            e('v_pk_fma_f32 %s, %s, s[%d:%d], %s op_sel_hi:[1,1,0]' % (P(tmp + h), P(tmp + h), sC0, sC0 + 1, P(k1)))
        for h in (0, 2):
            e('v_pk_mul_f32 %s, %s, %s' % (P(tmp + h), P(tmp + h), P(src + h)))
        for r in range(4):
            e('v_exp_f32 v%d, v%d' % (tmp + r, tmp + r))
        for h in (0, 2):
            e('v_pk_add_f32 %s, %s, 1.0 op_sel_hi:[1,0]' % (P(tmp + h), P(tmp + h)))
        for r in range(4):
            e('v_rcp_f32 v%d, v%d' % (tmp + r, tmp + r))
        for h in (0, 2):
            e('v_pk_mul_f32 %s, %s, %s' % (P(tmp + h), P(tmp + h), P(src + h)))
        for h in (0, 2):
            e('v_cvt_pk_bf16_f32 v%d, v%d, v%d' % (dst + h // 2, tmp + h, tmp + h + 1))
        return o

    def pack(self, d, a0, a1):
        return ['v_cvt_pk_bf16_f32 v%d, v%d, v%d' % (d + 3, a1 + 2, a1 + 3), 'v_cvt_pk_bf16_f32 v%d, v%d, v%d' % (d + 2, a1, a1 + 1),
                'v_cvt_pk_bf16_f32 v%d, v%d, v%d' % (d, a0, a0 + 1), 'v_cvt_pk_bf16_f32 v%d, v%d, v%d' % (d + 1, a0 + 2, a0 + 3)]

    def g16(self, accf, acc, ring, ad):
        def rd(n):
            ks, nb = n >> 2, n & 3
            off = ((ks >> 2) & 1) * WWAVE + (ks & 3) * 4096
            return ['ds_read_b64_tr_b16 %s, v%d offset:%d' % (vr('a', ring + 4 * (n % 8) + 2 * g, 2), ad + nb, off + 2048 * g) for g in range(2)]
        AH = 6
        for n in range(AH):
            self.put(rd(n))
        p = Plan()
        for n in range(64):
            ks, nb = n >> 2, n & 3
            p.add(mfma(vr(accf, acc + 4 * nb, 4), vr('a', ring + 4 * (n % 8), 4), vr('v', vX + 4 * ks, 4), '0' if ks == 0 else None))
            if n + AH < 64:
                p.g[n]['ds'] += rd(n + AH)
            if 28 <= n + AH < 32:
                p.g[n]['va'].append('v_add_u32 v%d, 0x%x, v%d' % (ad + (n + AH) % 4, 2 * WWAVE, ad + (n + AH) % 4))
        p.emit(self)

    def gemm(self, ngr, h0, tagf, accf, firstf, actk, actf, dmas):
        WF, AF, AH = 0, 16, 3
        ak = [actk(gi) for gi in range(ngr)]
        par = [0]
        for gi in range(1, ngr):
            par.append(par[-1] ^ (ak[gi] != ak[gi - 1]))

        def wrd(n):
            gi, b = n >> 2, n & 3
            return [Ins('ds_read_b64_tr_b16 %s, v%d offset:%d' % (vr('a', WF + 4 * (n % 4) + 2 * g, 2), vTR + b, ((h0 + gi) % 6) * 4096 + 2048 * g),
                        need=[tagf(gi)] if (b == 0 and g == 0) else None) for g in range(2)]

        def ard(gi, tb):
            return 'ds_read_b128 %s, v%d offset:%d' % ((vr('a', AF + 16 * par[gi] + 4 * tb, 4),) + actf(ak[gi], tb))
        self.put([ard(0, tb) for tb in range(4)])
        for n in range(AH):
            self.put(wrd(n))
        p = Plan()
        jobs, pos = [], []
        for gi in range(ngr):
            j0 = 16 * gi
            for b in range(4):
                n = 4 * gi + b
                for tb in range(4):
                    p.add(mfma(vr('v', accf(gi, b) + 4 * tb, 4), vr('a', WF + 4 * (n % 4), 4), vr('a', AF + 16 * par[gi] + 4 * tb, 4),
                               '0' if firstf(gi) else None))
                if n + AH < 4 * ngr:
                    w = wrd(n + AH)
                    p.g[j0 + 4 * b]['ds'].append(w[0])
                    p.g[j0 + 4 * b + 1]['ds'].append(w[1])
            if gi + 1 < ngr and ak[gi + 1] != ak[gi]:
                shared = gi and ak[gi - 1] == ak[gi]
                for tb, o in enumerate((-7, -3, 1, 5) if shared else (1, 3, 4, 5)):
                    p.g[j0 + o]['ds'].append(ard(gi + 1, tb))
            d = dmas.get(gi, [])
            jobs += d
            pos += [j0 + o for o in ((2, 6, 10, 14) if len(d) <= 4 else (2, 3, 6, 7, 10, 11, 14, 15))[:len(d)]]
        p.jobs(self.flat(jobs), pos, avoid={j for j in range(16 * ngr) if j % 4 == 3 or j % 16 == 4})
        return p

    def part_store(self, reg, off, tag):
        return Job(Ins('buffer_store_dwordx4 %s, v%d, %s, s%d offen sc1' % (vr('v', reg, 4), vACT, srd(SWS), sT1), tag=tag),
                   pre=['s_add_u32 s%d, s%d, 0x%x' % (sT1, sPO, off)])

    def gather(self, f, dst, soff, off, flags):
        return [Job('buffer_load_dwordx4 %s, v%d, %s, s%d offen offset:%d %s' % (vr(f, dst + 4 * k, 4), vACT, srd(SWS), sRET, 1024 * (k % 4), flags),
                    pre=['s_add_u32 s%d, s%d, 0x%x' % (sRET, soff, off + 1024 * k)] if k % 4 == 0 else []) for k in range(16)]

    XS, XW, RA, F1 = vP + 8, vP + 9, vP + 10, vT + 4

    def prologue(self):
        e = self.s
        D = vr('a', aDUMMY, 4)
        e('@sec prologue')
        bufs = [(SX, 0, 0x200000), (SWQ, 24, 0x400000), (SWS, 96, 0x10000000), (SW1, 48, 0x80000), (SW2, 56, 0x80000), (SDBG, 88, 256), (SK, 8, 0x400000),
                (SV, 16, 0x400000), (SWO, 32, 0x400000), (SW3, 64, 0x1c0000), (SW4, 72, 0x1c0000), (SOUT, 80, 0x200000)]
        for b, off, _ in bufs[:2]:
            e('s_load_dwordx2 s[%d:%d], s[0:1], %d' % (b, b + 1, off))
        e('s_cmp_ge_u32 s2, 256\ns_cbranch_scc1 L_end')
        if self.prof:
            e('v_accvgpr_write_b32 a%d, 0\nv_accvgpr_write_b32 a%d, 0' % (aPROF, aPROF + 1))
        e('s_getpc_b64 s[%d:%d]\nL_pc:' % (SCODE, SCODE + 1))
        e('s_mov_b32 s%d, L_code_end-L_pc\ns_mov_b32 s%d, 0x20000' % (SCODE + 2, SCODE + 3))
        e('s_lshr_b32 s%d, s2, 3\nv_lshlrev_b32 v%d, 4, v0\nv_lshl_add_u32 v%d, s%d, 12, v%d' % (sT, vT + 3, vT, sT, vT + 3))
        e('buffer_load_dwordx4 %s, v%d, %s, 0 offen' % (D, vT, srd(SCODE)))
        e('v_readfirstlane_b32 s%d, v0\ns_and_b32 s%d, s2, 7\nv_and_b32 v0, 63, v0' % (sW, sJ))
        e('s_lshr_b32 s%d, s%d, 6' % (sW, sW))
        e('s_lshl_b32 s%d, s%d, 2\ns_add_u32 s%d, s%d, s%d' % (sTBG, sT, sTBG, sTBG, sW))
        e('v_lshrrev_b32 v%d, 2, v%d\nv_and_b32 v%d, 3, v%d' % (vT + 1, vL, vT + 2, vL))
        e('v_lshlrev_b32 v%d, 10, v%d\nv_lshl_or_b32 v%d, v%d, 4, v%d' % (vT + 4, vT + 1, vT + 4, vT + 2, vT + 4))
        e('v_lshlrev_b32 v%d, 4, v%d' % (vACT, vL))
        e('s_lshl_b32 s%d, s%d, 14\ns_lshl_b32 s%d, s%d, 13\ns_lshl_b32 s%d, s%d, 10' % (sCNT, sTBG, sVO, sTBG, sT1, sJ))
        e('s_mov_b32 s%d, 0x200000\ns_mov_b32 s%d, 0x20000' % (SX + 2, SX + 3))
        e('s_sub_u32 s%d, 0x400000, s%d\ns_mov_b32 s%d, 0x20000' % (SWQ + 2, sT1, SWQ + 3))
        e('s_waitcnt lgkmcnt(0)')
        self.stamp('kernarg')
        e('s_add_u32 s%d, s%d, s%d\ns_addc_u32 s%d, s%d, 0' % (SWQ, SWQ, sT1, SWQ + 1, SWQ + 1))
        for b, off, _ in bufs[2:]:
            e('s_load_dwordx2 s[%d:%d], s[0:1], %d' % (b, b + 1, off))
        wl = [Job('buffer_load_dwordx4 %s, v%d, %s, s%d offen' % (D, vACT, srd(SWQ), sVO), post=['s_add_u32 s%d, s%d, 0x100000' % (sVO, sVO)]) for i in range(4)]
        nf = self.opt('wq_first', 1)
        self.emit_jobs(wl[:nf])
        xl = [Job('buffer_load_dwordx4 %s, v%d, %s, s%d offen offset:%d' % (vr('v', vX + 4 * ks, 4), vT + 4, srd(SX), sCNT, 64 * ks)) for ks in range(16)]
        nx = self.opt('x_first', 8)
        self.emit_jobs(xl[:nx])
        self.stamp('x issued')
        mark = len(e.l)

        def lin(dst, c, *terms):
            for k, (reg, mul) in enumerate(terms):
                e('s_mul_i32 s%d, s%d, 0x%x' % (dst if k == 0 else sT0, reg, mul & 0xffffffff))
                if k:
                    e('s_add_u32 s%d, s%d, s%d' % (dst, dst, sT0))
            if c:
                e('s_add_u32 s%d, s%d, 0x%x' % (dst, dst, c))
        lin(sRING, WREG, (sW, WWAVE))
        lin(sW2K, 0, (sW, 2048))
        e('v_mov_b32 v%d, 1' % vONE)
        XS, XW, RA = self.XS, self.XW, self.RA
        e('v_lshlrev_b32 v%d, 1, v%d\nv_xor_b32 v%d, v%d, v%d\nv_lshl_or_b32 v%d, v%d, 4, v%d' % (vT, vT + 2, vT, vT, vT + 1, vT, vT + 2, vT))
        e('v_lshlrev_b32 v%d, 4, v%d\nv_lshl_add_u32 v%d, s%d, 14, v%d' % (vT, vT, XW, sW, vT))
        e('v_lshrrev_b32 v%d, 4, v%d\nv_lshlrev_b32 v%d, 5, v%d\nv_xor_b32 v%d, v%d, v%d' % (vT, vL, vT, vT, XS, vT, vACT))
        e('v_lshrrev_b32 v%d, 5, v%d\nv_and_b32 v%d, 15, v%d\nv_mul_u32_u24 v%d, 18, v%d\nv_xor_b32 v%d, v%d, v%d' % (vT, vL, vT + 1, vL, vT, vT, vT, vT, vT + 1))
        e('v_bfe_u32 v%d, v%d, 4, 1\nv_lshl_or_b32 v%d, v%d, 1, v%d\nv_lshlrev_b32 v%d, 3, v%d' % (vT + 1, vL, vT, vT, vT + 1, vT, vT))
        lin(sT1, 0, (sW, 16384), (sJ, 1024))
        e('v_add_u32 v%d, s%d, v%d\nv_xor_b32 v%d, 64, v%d' % (RA, sT1, vT, RA + 1, RA))
        C, RN, RK = vT, vT + 1, vT + 2
        e('v_and_b32 v%d, 7, v%d\nv_bfe_u32 v%d, v%d, 4, 2\nv_lshlrev_b32 v%d, 1, v%d\nv_xor_b32 v%d, v%d, v%d' % (C, vL, RN, vL, RN, RN, C, C, RN))
        e('v_lshlrev_b32 v%d, 4, v%d\nv_lshrrev_b32 v%d, 3, v%d' % (C, C, RN, vL))
        e('v_and_b32 v%d, 4, v%d\nv_add_u32 v%d, v%d, v%d' % (RK, RN, RK, RK, RN))
        e('v_lshl_add_u32 v%d, v%d, 13, v%d\nv_lshl_add_u32 v%d, s%d, 8, v%d' % (vDB, RK, C, vDB, sW, vDB))
        e('v_lshl_add_u32 v%d, v%d, 10, v%d\nv_lshl_add_u32 v%d, s%d, 17, v%d' % (vW1, RK, C, vW1, sW, vW1))
        e('v_lshl_add_u32 v%d, v%d, 10, v%d' % (vWN, RN, C))
        e('v_and_b32 v%d, 64, v%d\nv_mad_u32_u24 v%d, v%d, 7, v%d' % (RK, C, vW2, RK, vWN))
        W1W, W2W = vP, vP + 1
        e('v_mov_b32 v%d, v%d\nv_mov_b32 v%d, v%d' % (W1W, vWN, W2W, vW2))
        e('v_lshl_add_u32 v%d, s%d, 17, v%d\nv_lshl_add_u32 v%d, s%d, 7, v%d' % (vW2, sW, vW2, vWN, sW, vWN))
        JO = sT3
        e('s_and_b32 s%d, s%d, 1' % (JO, sJ))
        lin(sT1, 7, (JO, -7))
        e('v_mul_u32_u24 v%d, 3584, v%d\nv_lshl_add_u32 v%d, s%d, 7, v%d\nv_add_u32 v%d, v%d, v%d' % (RN, RN, C, sW, C, vW3, RN, C))
        e('v_lshrrev_b32 v%d, 6, v%d\nv_cmp_eq_u32 vcc, s%d, v%d\nv_mov_b32 v%d, 0x%x' % (C, C, sT1, C, vT + 5, OOB))
        lin(sKO, 0, (sT, 16384))
        e('v_cndmask_b32 v%d, v%d, v%d, vcc' % (vW3, vW3, vT + 5))
        RS, Z = vP + 2, vP + 3
        e('v_lshrrev_b32 v%d, 2, v%d\nv_lshlrev_b32 v%d, 17, v%d' % (RS, vL, RS, RS))
        e('v_and_b32 v%d, 3, v%d\nv_lshl_or_b32 v%d, v%d, 10, v%d' % (Z, vL, RS, Z, RS))
        e('v_cmp_gt_u32 vcc, 0x80, v%d' % (vT + 3))
        lin(sT1, 0, (sTBG, 1024), (sJ, 128))
        e('v_cndmask_b32 v%d, v%d, v%d, vcc' % (RS, vT + 5, RS))
        e('v_lshrrev_b32 v%d, 9, v%d\nv_cmp_eq_u32 vcc, 1, v%d' % (Z, vT + 3, Z))
        e('v_lshlrev_b32 v%d, 2, v%d\nv_add_u32 v%d, 0x%x, v%d' % (Z, vL, Z, 0x40000 - 128, Z))
        e('v_cndmask_b32 v%d, v%d, v%d, vcc' % (RS, RS, Z))
        e('v_cmp_eq_u32 vcc, 0, v%d\nv_mov_b32 v%d, s%d\ns_add_u32 s%d, s%d, 0x%x' % (vL, vFLAG, sT1, sRET, sT1, FLAG_OFF))
        e('v_cndmask_b32 v%d, v%d, v%d, vcc' % (vFLAG, vT + 5, vFLAG))
        e('v_cmp_eq_u32 vcc, 0, v%d\nv_mov_b32 v%d, 0\ns_add_u32 s%d, s%d, 0x%x' % (vT + 3, Z, sSTO, sT1, ST_OFF))
        e('v_cndmask_b32 v%d, v%d, 0, vcc' % (vPOFF, vT + 5))
        e('v_and_b32 v%d, 15, v%d\nv_lshrrev_b32 v%d, 4, v%d' % (vT, vL, vT + 1, vL))
        e('v_xor_b32 v%d, v%d, v%d\nv_lshlrev_b32 v%d, 4, v%d\nv_lshl_or_b32 v%d, v%d, 8, v%d' % (vT + 1, vT + 1, vT, vT + 1, vT + 1, vKA, vT, vT + 1))
        for ks in range(1, 4):
            e('v_xor_b32 v%d, 0x%x, v%d' % (vKA + ks, 64 * ks, vKA))
        e('v_lshrrev_b32 v%d, 2, v%d\nv_and_b32 v%d, 7, v%d\nv_lshlrev_b32 v%d, 5, v%d' % (vT, vL, vT + 1, vT, vT + 1, vT + 1))
        e('v_lshl_or_b32 v%d, v%d, 8, v%d\nv_and_b32 v%d, 3, v%d\nv_lshl_or_b32 v%d, v%d, 3, v%d' % (vT, vT, vT + 1, vT + 1, vL, vT, vT + 1, vT))
        for db in range(4, 8):
            e('v_xor_b32 v%d, 0x%x, v%d' % (vTR + db, VRING | db << 5, vT))
        self.put(self.waddr(vTR, vT, 's%d' % sRING))
        e('v_lshrrev_b32 v%d, 4, v%d\nv_xor_b32 v%d, v%d, v%d\nv_and_b32 v%d, 2, v%d' % (vT, vL, vT, vT, vL, vT, vT))
        e('v_mov_b32 v%d, 0x3f803f80\nv_cmp_eq_u32 vcc, 0, v%d' % (vT + 1, vT))
        e('v_bfe_i32 v%d, v%d, 0, 1\nv_and_b32 v%d, 0xaaaaaaaa, v%d\nv_or_b32 v%d, 0x44444444, v%d' % (vT, vL, vT, vT, vIDX, vT))
        e('v_cndmask_b32 v%d, 0, v%d, vcc' % (vT + 1, vT + 1))
        for r in range(4):
            e('v_accvgpr_write_b32 a%d, v%d' % (aONES + r, vT + 1))
        for r in range(8):
            e('v_accvgpr_write_b32 a%d, 0' % (aL + r))
        lin(sHO, 0, (sTBG, 1 << 14), (sJ, 1 << 11))
        lin(sX1I, X1_OFF, (sTBG, 1 << 14))
        lin(sX1O, 0, (sJ, 1 << 10), (sX1I, 1))
        lin(sPO, 0, (sT, 1 << 19), (sJ, 1 << 11), (sW, 1 << 17))
        lin(sPI, 0, (sT, 1 << 19), (sJ, 1 << 16), (sW, 1 << 14))
        lin(sCF, FLAG_OFF + 0x40000, (sT, 1 << 12), (sJ, 1 << 7))
        lin(sFP, FLAG_OFF + 0x40000, (sT, 1 << 12), (sW, 256), (sJ, 4))
        lin(sXO, 0, (sTBG, 1 << 14), (sJ, 64))
        lin(sCW, 0, (sTBG, 1024))
        lin(sW3W, 0, (sTBG, 4 * 3584))
        lin(sW4W, 0, (sTBG, 1792))
        lin(sWOW, 0, (sTBG, 4096))
        e('s_lshr_b32 s%d, s%d, 1\ns_lshl_b32 s%d, s%d, 13' % (sWSH, sTBG, sWSH, sWSH))
        e('s_mov_b32 s%d, %s\ns_mov_b32 s%d, %s\ns_mov_b32 s%d, 0' % (sC0, f2u(-K2), sC0 + 1, f2u(-K2), sPASS))
        e('s_waitcnt lgkmcnt(0)')
        shift = {SW1: [(sJ, 128)], SW2: [(sJ, 64)], SK: [(sJ, 1 << 19)], SV: [(sJ, 1 << 19)], SWO: [(sJ, 1 << 19)],
                 SW3: [(sJ, 448), (JO, -64)], SW4: [(sJ, 224 * 1024)]}
        for b, _, size in bufs[2:]:
            if b in shift:
                lin(sT1, 0, *shift[b])
                e('s_add_u32 s%d, s%d, s%d\ns_addc_u32 s%d, s%d, 0\ns_sub_u32 s%d, 0x%x, s%d' % (b, b, sT1, b + 1, b + 1, b + 2, size, sT1))
            else:
                e('s_mov_b32 s%d, 0x%x' % (b + 2, size))
            e('s_mov_b32 s%d, 0x20000' % (b + 3))
        e('s_mov_b32 s%d, s%d\ns_mov_b32 s%d, s%d\ns_mov_b32 s%d, 0x200000\ns_mov_b32 s%d, 0x20000' % (SH, SWS, SH + 1, SWS + 1, SH + 2, SH + 3))
        ns = self.opt('x_setup', 0)
        setup, e.l = e.l[mark:], e.l[:mark]
        self.sprinkle(setup, xl[nx:nx + ns], start=self.opt('xs_start', 20), every=self.opt('xs_every', 25))
        self.xrest = xl[nx + ns:]
        self.early = wl[nf:] + [Job(Ins('buffer_store_dword v%d, v%d, %s, s%d offen sc1' % (Z, RS, srd(SWS), sRET), tag='reset')),
                                Job('buffer_load_dwordx4 %s, v%d, %s, s%d offen' % (D, W1W, srd(SW1), sWSH)),
                                Job('buffer_load_dwordx4 %s, v%d, %s, s%d offen' % (D, W2W, srd(SW2), sWSH))]
        self.stamp('setup')
        self.touch(0)
        self.stamp('touched')
        e('s_branch L_go\n.p2align 12\nL_go:')

    def p0(self):
        e = self.s
        e('@sec P0 layernorm')
        P = lambda b: vr('v', b, 2)
        A, X0 = vS, vS + 8
        o = ['v_lshlrev_b32 v%d, 16, v%d' % (X0 + 1, vX), 'v_mov_b32_dpp v%d, v%d quad_perm:[0,0,0,0] row_mask:0xf bank_mask:0xf' % (X0, X0 + 1)]
        for k in range(64):
            d = vACC + 2 * k
            o += ['v_lshlrev_b32 v%d, 16, v%d' % (d, vX + k), 'v_and_b32 v%d, 0xffff0000, v%d' % (d + 1, vX + k),
                  'v_pk_add_f32 %s, %s, %s op_sel_hi:[1,0] neg_lo:[0,1] neg_hi:[0,1]' % (P(d), P(d), P(X0))]
            if k == 0:
                o += ['v_pk_mul_f32 %s, %s, %s' % (P(A + 2), P(d), P(d))]
            else:
                o += ['v_pk_add_f32 %s, %s, %s' % (P(A), P(A) if k > 1 else P(vACC), P(d)), 'v_pk_fma_f32 %s, %s, %s, %s' % (P(A + 2), P(d), P(d), P(A + 2))]
        wq = []
        for k in range(6):
            wq += self.whalf('wq', k, k)
        nd = self.opt('p1_dma', 2)
        jobs = []
        while self.xrest or (wq and nd):
            jobs += self.xrest[:1] + wq[:nd if self.xrest else nd + 1]
            wq = wq[nd if self.xrest else nd + 1:]
            self.xrest = self.xrest[1:]
        self.sprinkle(o, jobs, start=self.opt('p1_start', 2), every=20 // (nd + 1) if nd else 10)
        self.stamp('x landed')
        o = ['v_add_f32 v%d, v%d, v%d' % (A, A, A + 1), 'v_add_f32 v%d, v%d, v%d' % (A + 2, A + 2, A + 3)]
        for qp in ('[1,0,3,2]', '[2,3,0,1]'):
            for r in (A, A + 2):
                o.append('v_add_f32_dpp v%d, v%d, v%d quad_perm:%s row_mask:0xf bank_mask:0xf' % (r, r, r, qp))
        M, V, R = A, A + 2, A + 4
        o += ['v_mul_f32 v%d, %s, v%d' % (M, f2u(1.0 / 512), M), 'v_mul_f32 v%d, %s, v%d' % (V, f2u(1.0 / 512), V),
              'v_fma_f32 v%d, -v%d, v%d, v%d' % (V, M, M, V), 'v_max_f32 v%d, 0, v%d' % (V, V),
              'v_add_f32 v%d, %s, v%d' % (R, f2u(1e-5), V), 'v_rsq_f32 v%d, v%d' % (R, R),
              'v_and_b32 v%d, 0xf0, v%d' % (A + 7, vACT),
              'v_mul_f32 v%d, v%d, v%d' % (A + 6, R, R), 'v_fmaak_f32 v%d, v%d, v%d, %s' % (A + 6, A + 6, V, f2u(1e-5)), 'v_rsq_f32 v%d, v%d' % (A + 6, A + 6),
              'v_mul_f32 v%d, %s, v%d' % (R, f2u(CSCALE), R), 'v_mul_f32 v%d, %s, v%d' % (A + 6, f2u(1.0 / CSCALE), A + 6),
              'v_mul_f32_e64 v%d, -v%d, v%d' % (M, M, R), 'ds_bpermute_b32 v%d, v%d, v%d' % (self.F1, A + 7, A + 6)]
        for ks in range(16):
            for k in range(4 * ks, 4 * ks + 4):
                d = P(vACC + 2 * k)
                o.append('v_pk_fma_f32 %s, %s, %s, %s op_sel_hi:[1,0,0]' % (d, d, P(R), P(M)))
            for k in range(4 * ks, 4 * ks + 4):
                o.append('v_cvt_pk_bf16_f32 v%d, v%d, v%d' % (vX + k, vACC + 2 * k, vACC + 2 * k + 1))
            o.append('ds_write_b128 v%d, %s offset:%d' % (self.XW, vr('v', vX + 4 * ks, 4), 1024 * ks))
        nw, nl = 4 * self.opt('ln_w', 4), self.opt('ln_jobs', 22)
        jobs = wq[:nw] + self.early + wq[nw:]
        self.p2_first = jobs[nl:]
        self.sprinkle(o, jobs[:nl], start=self.opt('ln_start', 0), every=self.opt('ln_every', 2 if nd else 7))
        for nb in range(4):
            e('ds_read_b64 %s, v%d offset:%d' % (vr('a', aRES + 2 * nb, 2), self.RA + (nb & 1), 8192 * (nb >> 1) + 512 * (nb & 1)))
        e('v_lshl_add_u32 v%d, s%d, 14, v%d' % (self.XW, sW, self.XS))
        e('s_barrier', need=['*lg'])
        self.stamp('P0 end')

    def kv_dma(self, which, unit, tag):
        buf, ring, so, vo = (SK, KRING, sKO, vDB) if which == 'K' else (SV, VRING, sVO, vDB + 2)
        fl = self.o.get('kvflag', 'nt_').replace('_', ' ') if self.kv_nt else ''
        m0 = 's_add_u32 m0, s%d, 0x%x' % (sW2K, ring + 8192 * (unit & 3))
        return [Job(Ins('buffer_load_dwordx4 v%d, %s, s%d offen %slds' % (vo, srd(buf), so, fl), tag=tag), m0=m0),
                Job(Ins('buffer_load_dwordx4 v%d, %s, s%d offen offset:1024 %slds' % (vo + 1, srd(buf), so, fl), tag=tag), m0=m0,
                    post=['s_add_u32 s%d, s%d, 0x2000' % (so, so), 's_and_b32 s%d, s%d, 0x7ffff' % (so, so)])]

    def p2(self):
        e = self.s
        e('@sec P2')
        piece = lambda h: self.whalf('wq', h, h) if h < 32 else self.whalf('w1', h - 32, h)
        dmas = {gi: piece(gi + 5) for gi in range(1, 31)}
        dmas[0] = self.p2_first
        p = self.gemm(32, 0, lambda gi: 'wq%d' % gi, lambda gi, b: vACC + 64 * (gi & 1) + 16 * b, lambda gi: gi < 2, lambda gi: gi >> 1,
                      lambda k, tb: (self.XS, (tb * 16 + k) * 1024), dmas)
        for ks in range(16):
            p.g[16 * (ks + 2) + 7]['ds'].append('ds_read_b128 %s, v%d offset:%d' % (vr('v', vX + 4 * ks, 4), self.XW, 1024 * ks))
        assert not p.fill(self.waddr(vP + 12, vT, '0x%x' % (WREG + 8192)) + ['v_mov_b32 v%d, %s' % (vP + 10, f2u(-K1))], 16)
        f = ('v_lshrrev_b32 v%d, 4, v%d\nv_and_b32 v%d, 15, v%d\nv_lshl_add_u32 v%d, v%d, 8, s%d\n' % (vT, vL, vT + 1, vL, vT + 2, vT, sW2K) +
             'v_bfe_u32 v%d, v%d, 8, 4\nv_xor_b32 v%d, v%d, v%d\n' % (vT + 3, vT + 2, vT + 3, vT + 3, vT + 1) +
             'v_lshl_add_u32 v%d, v%d, 4, v%d\nv_xor_b32 v%d, 64, v%d\n' % (vDB, vT + 3, vT + 2, vDB + 1, vDB) +
             'v_lshlrev_b32 v%d, 1, v%d\nv_xor_b32 v%d, v%d, v%d\n' % (vT + 3, vT, vT + 3, vT + 3, vT + 1) +
             'v_lshl_add_u32 v%d, v%d, 4, v%d\nv_xor_b32 v%d, 0x80, v%d' % (vDB + 2, vT + 3, vT + 2, vDB + 3, vDB + 2)).split('\n')
        assert not p.fill(f, 16 * 27)
        assert not p.fill(self.vaddr_restore(), 16 * 31 + 2)
        p.jobs(self.flat([Job(Ins('buffer_atomic_add v%d, v%d, %s, s%d offen sc1' % (vONE, vPOFF, srd(SDBG), sT0), need=['reset']),
                              pre=['s_lshl_b32 s%d, s%d, 3' % (sT0, sT), 's_mov_b32 s%d, s%d' % (sVO, sKO)])]), [16 * 31 + 10], lo=16 * 31 + 5)
        p.emit(self)
        self.stamp('P2 end')

    def q_p1(self):
        e = self.s
        e('@sec Q epilogue')
        e('s_barrier', need=['*lg'])
        jobs = []
        for which, u in (('K', 0), ('K', 1), ('V', 0), ('K', 2), ('V', 1)):
            jobs += self.kv_dma(which, u, 'kv-1')
        o = []
        fr = [(qb, ks) for qb in range(4) for ks in range(4)]
        for n in range(0, 16, 2):
            ts = []
            for qb, ks in fr[n:n + 2]:
                a = vACC + 32 * ks + 4 * qb
                o += self.pack(a + 16, a, a + 16)
                ts.append(a + 16)
            for op in ('v_permlane32_swap_b32', 'v_permlane16_swap_b32'):
                for t in ts:
                    o += ['%s v%d, v%d' % (op, t, t + 2), '%s v%d, v%d' % (op, t + 1, t + 3)]
            for (qb, ks), t in zip(fr[n:n + 2], ts):
                o += ['v_accvgpr_write_b32 a%d, v%d' % (aQ + 16 * qb + 4 * ks + r, t + r) for r in range(4)]
        self.sprinkle(o, jobs, every=self.opt('q_every', 2))
        self.stamp()
        e('@sec P1')
        e('s_barrier', need=['w13'])
        self.g16('v', vS, 0, vP + 12)
        for nb in range(4):
            self.put(self.gelu4(vS + 4 * nb, vX + 2 * nb, vP + 4 * (nb & 1), vP + 10, scale=self.F1))
        for p in range(2):
            e('buffer_store_dwordx4 %s, v%d, %s, s%d offen offset:%d sc1' % (vr('v', vX + 4 * p, 4), vACT, srd(SH), sHO, 1024 * p), tag='hst')
        self.stamp()

    def p3(self):
        e = self.s
        self.stamp()
        e('@sec P3')
        acc = aV
        self.put(self.waddr(vT, vT + 4, '0x%x' % (WREG + 8192)))
        self.g16('a', acc, aK + 32, vT)
        X, R, PK = vX, vX + 16, vX + 32
        P = lambda b: vr('v', b, 2)
        for k in range(8):
            e('v_accvgpr_read_b32 v%d, a%d' % (PK + k, aRES + k))
        for k in range(8):
            e('v_lshlrev_b32 v%d, 16, v%d\nv_and_b32 v%d, 0xffff0000, v%d' % (R + 2 * k, PK + k, R + 2 * k + 1, PK + k))
        e('v_mov_b32 v%d, %s' % (PK + 8, f2u(1.0 / CSCALE)))
        for k in range(16):
            e('v_accvgpr_read_b32 v%d, a%d' % (X + k, acc + k))
        for k in range(8):
            e('v_pk_fma_f32 %s, %s, %s, %s op_sel_hi:[1,0,1]' % (P(X + 2 * k), P(R + 2 * k), P(PK + 8), P(X + 2 * k)))
        for k in range(8):
            e('v_cvt_pk_bf16_f32 v%d, v%d, v%d' % (PK + k, X + 2 * k, X + 2 * k + 1))
        e('s_add_u32 s%d, s%d, 0x2000' % (sT1, sX1O))
        for p in range(2):
            e('buffer_store_dwordx4 %s, v%d, %s, s%d offen sc1' % (vr('v', PK + 4 * p, 4), vACT, srd(SWS), sT1 if p else sX1O))
        for k in range(8):
            e('v_lshlrev_b32 v%d, 16, v%d\nv_and_b32 v%d, 0xffff0000, v%d' % (X + 2 * k, PK + k, X + 2 * k + 1, PK + k))
            e('v_accvgpr_write_b32 a%d, v%d' % (aX1 + k, PK + k))
        for k in range(4):
            e('v_pk_add_f32 %s, %s, %s' % (P(R + 2 * k), P(X + 2 * k), P(X + 8 + 2 * k)))
        e('v_pk_add_f32 %s, %s, %s\nv_pk_add_f32 %s, %s, %s' % (P(R), P(R), P(R + 2), P(R + 4), P(R + 4), P(R + 6)))
        e('v_pk_add_f32 %s, %s, %s\nv_add_f32 v%d, v%d, v%d' % (P(R), P(R), P(R + 4), R + 8, R, R + 1))
        self.put(self.lanesum(R + 8, R + 10))
        e('v_mul_f32 v%d, %s, v%d' % (R + 8, f2u(1.0 / 64), R + 8))
        for k in range(8):
            e('v_pk_add_f32 %s, %s, %s op_sel_hi:[1,0] neg_lo:[0,1] neg_hi:[0,1]' % (P(X + 2 * k), P(X + 2 * k), P(R + 8)))
        for k in range(8):
            e('v_pk_fma_f32 %s, %s, %s, %s' % (P(R), P(X + 2 * k), P(X + 2 * k), P(R)) if k else 'v_pk_mul_f32 %s, %s, %s' % (P(R), P(X), P(X)))
        e('v_add_f32 v%d, v%d, v%d' % (R + 9, R, R + 1))
        e('v_lshlrev_b32 v%d, 3, v%d\nv_mov_b32 v%d, 0x%x\nv_cmp_gt_u32 vcc, 16, v%d' % (R, vL, R + 1, OOB, vL))
        self.put(self.lanesum(R + 9, R + 10))
        e('v_cndmask_b32 v%d, v%d, v%d, vcc' % (R, R + 1, R))
        e('buffer_store_dwordx2 %s, v%d, %s, s%d offen sc1' % (P(R + 8), R, srd(SWS), sSTO), tag='x1st')
        self.stamp()
        e('@sec attention 1b')

    def krd(self, u, f):
        kb, ks = f >> 2, f & 3
        return 'ds_read_b128 %s, v%d offset:%d' % (vr('a', aK + 32 * (u & 1) + 4 * f, 4), vKA + ks, KRING + 8192 * (u & 3) + 4096 * kb)

    def vrd(self, u, h):
        db, g = h >> 1, h & 1
        return 'ds_read_b64_tr_b16 %s, v%d offset:%d' % (vr('a', aV + 32 * (u & 1) + 4 * db + 2 * g, 2), vTR + db, 8192 * (u & 3) + 4096 * g)

    def rowsum(self, h):
        return 'v_smfmac_f32_16x16x64_bf16 %s, %s, %s, v%d' % (vr('a', aL + 4 * h, 4), vr('a', aONES, 4), vr('v', vP + 8 * h, 8), vIDX)

    def segment(self, seg, NS, sched, loop=None, inline=None):
        e = self.s
        NU = NS // 4
        side, chk, fill = {}, {}, {}

        def spread(jobs, n, stop, rate=3):
            jobs = list(jobs)
            while jobs:
                assert n < stop, 'side jobs do not fit'
                room = (3 if (n & 7) >= 4 or n >= NS - 8 else 1) - (n in chk) - len(side.get(n, []))
                if (n & 7) == 7:
                    room = min(room, 2 - (n in chk) - len(side.get(n, [])))
                room = min(room, rate)
                while room > 0 and jobs:
                    side.setdefault(n, []).append(jobs.pop(0))
                    room -= 1
                n += 1
        sched(spread, chk, fill)
        lab = 'L_attn%d' % seg
        if loop:
            e('s_mov_b32 s%d, %d' % (sCNT, (loop[1] - loop[0]) // 16))
        e('s_barrier', need=['kv-1', '*lg'])
        self.put([self.krd(0, f) for f in range(8)])
        carry, dead = [], 0
        for n in range(NS + 4):
            u, qb, T, r8 = n >> 2, n & 3, n >> 3, n & 7
            if inline and n in inline:
                inline[n]()
            inloop = loop and loop[0] <= n < loop[1]
            if self.opt('astamp', 0) and n % 8 == 0 and not (loop and loop[0] <= n <= loop[1]) and not (inline and n in inline):
                self.stamp('s%d_%d' % (seg, n))
            if loop and n == loop[0]:
                self.stamp('pre')
            if inloop and (n - loop[0]) % 16 == 0:
                e('@rep %s %d' % (lab, n))
            if loop and n == loop[1]:
                e('@endrep ' + lab)
                self.stamp('loop')
            p = Plan()
            if n < NS:
                for kb in range(2):
                    d = vr('v', vS + 8 * (n & 1) + 4 * kb, 4)
                    for ks in range(4):
                        p.add(mfma(d, vr('a', aK + 32 * (u & 1) + 16 * kb + 4 * ks, 4), vr('a', aQ + 16 * qb + 4 * ks, 4), '0' if ks == 0 else None))
            if n >= 4:
                for db in range(8):
                    p.add(mfma(vr('v', vACC + 16 * db + 4 * qb, 4), vr('a', aV + 32 * ((u - 1) & 1) + 4 * db, 4), vr('v', vP + 4 * qb, 4),
                               '0' if (n < 8 and seg == 0) else None))
            order = self.opt('morder', 0)
            if order and len(p.mf) == 16:
                m = p.mf
                if order == 1:
                    p.mf = m[:4] + m[8:12] + m[4:8] + m[12:]
                if order == 2:
                    p.mf = [m[k // 2 + 4 * (k % 2)] for k in range(8)] + m[8:]
                if order == 3:
                    p.mf = [m[k // 2 + 8 * (k % 2)] for k in range(16)]
            ex, cv = [], []
            if 1 <= n <= NS:
                sb, pb = vS + 8 * ((n - 1) & 1), vP + 4 * ((n - 1) & 3)
                ex = ['v_exp_f32 v%d, v%d' % (sb + r, sb + r) for r in range(8)]
                cv = ['v_cvt_pk_bf16_f32 v%d, v%d, v%d' % (pb + r, sb + 2 * r, sb + 2 * r + 1) for r in range(4)]
            ds = []
            if u + 1 < NU:
                ds += [self.krd(u + 1, 2 * qb), self.krd(u + 1, 2 * qb + 1)]
            if u < NU:
                ds += [self.vrd(u, 4 * qb + h) for h in range(4)]
            self.kv_nt = n >= self.opt('nt_from%d' % seg, (999, 32)[seg]) and n < self.opt('nt_to%d' % seg, 999)
            dm = self.kv_dma('K', 2, 'k2') if (n == 0 and seg) else []
            if r8 < 4:
                which, unit = (('K', 2 * T + 3), ('V', 2 * T + 2), ('K', 2 * T + 4), ('V', 2 * T + 3))[r8]
                if unit < NU:
                    dm += self.kv_dma(which, unit, 'kv%d' % T)
            dm = self.flat(dm + side.get(n, []))
            sm = self.rowsum(0) if (qb == 3 and n < NS) else self.rowsum(1) if (qb == 1 and n >= 5) else None
            g = p.g
            if n in fill:
                assert not carry
                carry, dead = fill[n]
            if len(p.mf) == 16:
                if r8 == 0:
                    g[0]['sc'].append('s_barrier')
                if n == 4 and seg:
                    g[0]['sc'].append(Ins('s_barrier', need=['k2']))
                if r8 == 7 and n < NS - 1:
                    g[14]['sc'].append(Ins('@need', need=['kv%d' % T if 2 * T + 2 < NU else '*lg', '*lg']))
                if inloop and (n - loop[0]) % 16 == 15:
                    g[10]['sc'].append('s_sub_u32 s%d, s%d, 1' % (sCNT, sCNT))
                    g[12]['sc'].append('s_cmp_lg_u32 s%d, 0' % sCNT)
                    g[15]['end'].append('s_cbranch_scc1 ' + lab)
                vs = [9, 13] if r8 == 7 else [5, 9, 13]
                if n in chk:
                    g[vs.pop()]['end'] += chk[n]
                assert len(dm) <= len(vs), (n, len(dm))
                used = vs[:len(dm)]
                prev, pend = p.jobs(dm, used)
                p.scalars(pend, prev + 1, 16)
                if r8 == 7:
                    dpos = (1, 1, 3, 5, 5, 7)
                else:
                    dpos = [x for x in range(1, 16, 2) if x not in used and not g[x]['end']]
                    if len(dpos) < len(ds):
                        dpos = [1] + dpos
                for k, x in enumerate(ds):
                    g[dpos[k]]['ds'].append(x)
                for k, x in enumerate(ex):
                    g[2 * k]['va'].append(x)
                for k, x in enumerate(cv):
                    g[4 * k + 3]['va'].append(x)
                if sm:
                    g[7]['end'].append(sm)
            else:
                seq = [pre + [d] + post for pre, d, post in dm]
                if n == 2:
                    seq[0] = ['s_barrier'] + seq[0]
                seq += [[x] for x in ds]
                for k, x in enumerate(seq):
                    g[k * 8 // max(8, len(seq))]['ds'] += x
                lag = 2 if n < 4 else 0
                for k in range(len(ex)):
                    g[min(k + lag, 7)]['va'].append(ex[k])
                    if k % 2 == 1:
                        g[min(k + lag + 1, 7)]['va'].append(cv[k // 2])
                if sm:
                    g[3]['end'].append(sm)
            carry = p.fill(carry)
            if carry and n + 1 >= dead:
                g[-1]['va'] += carry
                carry = []
            p.emit(self)
        self.stamp()

    def warm(self, buf, vo, so, offs):
        return [Job('buffer_load_dwordx4 %s, v%d, %s, s%d offen offset:%d' % (vr('a', aDUMMY, 4), vo, srd(buf), so, o)) for o in offs]

    def attention1(self):
        e = self.s
        e('@sec attention 1a')
        U, F, G = vX + 48, vT + 4, vT
        N1, P3 = self.opt('n1', 96), self.opt('p3', 40)
        f0 = ('v_and_b32 v%d, 3, v%d\nv_min_u32 v%d, 2, v%d\n' % (U, vL, U, U) +
              'v_add3_u32 v%d, v%d, s%d, -1\nv_med3_i32 v%d, v%d, 0, 31\nv_lshlrev_b32 v%d, 3, v%d' % (U, U, sT, U, U, vPOFF, U)).split('\n')
        f1 = ('v_bfe_u32 v%d, v%d, 1, 1\nv_lshl_add_u32 v%d, v%d, 1, -1\n' % (U, vL, U, U) +
              'v_bfe_u32 v%d, v%d, 3, 1\nv_mul_i32_i24 v%d, v%d, v%d\n' % (U + 1, vL, U, U, U + 1) +
              'v_add_u32 v%d, s%d, v%d\nv_max_i32 v%d, 0, v%d\nv_min_i32 v%d, 0x7f, v%d\n' % (U, sTBG, U, U, U, U, U) +
              'v_and_b32 v%d, 7, v%d\nv_lshl_or_b32 v%d, v%d, 3, v%d\n' % (U + 1, vL, U, U, U + 1) +
              'v_lshlrev_b32 v%d, 7, v%d\nv_add_u32 v%d, 0x%x, v%d' % (U, U, F, FLAG_OFF, U)).split('\n')
        f2 = ('v_and_b32 v%d, 15, v%d\nv_lshl_add_u32 v%d, s%d, 4, v%d\nv_and_b32 v%d, 48, v%d' % (U, vL, U, sTBG, U, U + 1, vL)).split('\n')
        for g, dlt in enumerate((-1, 1, -2, 2)):
            f2 += ['v_add_u32 v%d, %d, v%d' % (U + 2, dlt, U), 'v_and_or_b32 v%d, v%d, 15, v%d' % (U + 3, U + 2, U + 1),
                   'v_bfe_u32 v%d, v%d, 4, 8' % (U + 2, U + 2), 'v_lshl_or_b32 v%d, v%d, 10, v%d' % (U + 3, U + 2, U + 3),
                   'v_lshlrev_b32 v%d, 4, v%d' % (U + 3, U + 3), 'v_add_u32 v%d, 0x%x, v%d' % (G + g, 4096 * g, U + 3)]
        f3 = ('v_lshrrev_b32 v%d, 4, v%d\nv_and_b32 v%d, 15, v%d\nv_mul_u32_u24 v%d, 3584, v%d\n' % (vT, vL, vT + 1, vL, vT + 2, vT) +
              'v_lshl_add_u32 v%d, v%d, 4, v%d\nv_lshlrev_b32 v%d, 8, v%d\nv_lshl_or_b32 v%d, v%d, 3, v%d\n' % (vT + 3, vT + 1, vT + 2, vT, vT, vT, vT + 1, vT) +
              'v_lshl_add_u32 v%d, s%d, 10, v%d\nv_add_u32 v%d, 0x%x, v%d\n' % (vT, sTBG, vT, vT + 4, ST_OFF, vT) +
              'v_and_b32 v%d, 7, v%d\nv_lshl_or_b32 v%d, s%d, 3, v%d\n' % (vT, vL, vT, sTBG, vT) +
              'v_lshlrev_b32 v%d, 7, v%d\nv_add_u32 v%d, 0x%x, v%d' % (vT, vT, vPOFF, FLAG_OFF + 131072, vT)).split('\n')
        A = vS
        f4 = ['v_accvgpr_read_b32 v%d, a%d' % (A + r, aSTAT + r) for r in range(4)]
        f4 += ['v_add_f32 v%d, v%d, v%d' % (A + 4, A, A + 2)] + self.lanesum(A + 4, A + 8)
        f4 += ['v_mul_f32 v%d, 0x3e000000, v%d' % (A + 4, A + 4), 'v_sub_f32 v%d, v%d, v%d' % (A, A, A + 4), 'v_sub_f32 v%d, v%d, v%d' % (A + 2, A + 2, A + 4),
               'v_mul_f32 v%d, v%d, v%d' % (A, A, A), 'v_fmac_f32 v%d, v%d, v%d' % (A, A + 2, A + 2), 'v_add_f32 v%d, v%d, v%d' % (A + 1, A + 1, A + 3),
               'v_fmac_f32 v%d, 0x42800000, v%d' % (A + 1, A)] + self.lanesum(A + 1, A + 8)
        f4 += ['v_mov_b32 v%d, %s' % (A + 6, f2u(1e-5)), 'v_fmac_f32 v%d, %s, v%d' % (A + 6, f2u(1.0 / 512), A + 1), 'v_rsq_f32 v%d, v%d' % (A + 6, A + 6),
               'v_lshl_add_u32 v%d, s%d, 14, v%d' % (vT + 3, sW, vACT), 'v_mul_f32_e64 v%d, -v%d, v%d' % (A + 4, A + 4, A + 6)]
        f4 += self.waddr(vTR, vT, 's%d' % sRING)
        self.put(f0)

        def sched(spread, chk, fill):
            c0, c1, c2 = 10, P3 - 15, N1 - 25
            chk[c0] = self.poll_check(SDBG, 8) + [Ins('v_mov_b32 v%d, v%d' % (vPOFF, F))]
            chk[c1] = self.poll_check(SWS, 1)
            chk[c2] = self.poll_check(SWS, 1)
            fill[4], fill[10], fill[P3], fill[N1 + 1] = (f1, 10), (f2, c1 + 1), (f3, P3 + 4), (f4, N1 + 4)
            spread([self.flag_store(0, ['hst']), self.poll_load(SDBG)], 4, 6, 1)
            spread([self.poll_load(SWS)], c1 - 5, c1 - 4)
            w2 = []
            for k in range(4):
                w2 += self.whalf('w2', k, 2 + k)
            spread(w2, 4, P3 - 16, 2)
            spread([Job('buffer_load_dwordx4 %s, v%d, %s, 0 offen offset:%d sc1' % (vr('v', vX + 4 * k, 4), G + (k >> 2), srd(SH), 1024 * (k & 3)))
                    for k in range(16)], c1 + 1, P3 - 2, 2)
            spread([self.flag_store(1, ['x1st'])], P3 + 4, P3 + 5)
            spread(self.warm(SW3, vT + 3, sW3W, (0, 256)) + self.warm(SW4, vACT, sW4W, (0, 768)) + self.warm(SCODE, vACT, sCW, (0,)), P3 + 5, P3 + 8, 2)
            spread([self.poll_load(SWS)], c2 - 5, c2 - 4)
            spread([Job('buffer_load_dwordx2 %s, v%d, %s, 0 offen offset:%d sc1' % (vr('a', aSTAT + 2 * k, 2), vT + 4, srd(SWS), 128 * k)) for k in range(2)]
                   + self.gather('v', vX, sX1I, 0, 'sc1 nt'), c2 + 1, N1 - 5, 1)
            w3 = []
            for k in range(6):
                w3 += self.whalf('w3', k, k)
            spread(w3, N1 - 20, N1)
        self.segment(0, N1, sched, inline={P3: self.p3})

    def h2a(self, tb, slot):
        return 16384 + (tb & 1) * 8192 + (tb >> 1) * 32768 + slot * 1024

    def mlp(self):
        e = self.s
        P = lambda b: vr('v', b, 2)
        e('@sec LN x1')
        e('s_barrier', need=['*lg'])
        for ks in range(16):
            t = vP + 8 * (ks & 1)
            for k in range(4):
                e('v_lshlrev_b32 v%d, 16, v%d\nv_and_b32 v%d, 0xffff0000, v%d' % (t + 2 * k, vX + 4 * ks + k, t + 2 * k + 1, vX + 4 * ks + k))
            for k in range(4):
                e('v_pk_fma_f32 %s, %s, %s, %s op_sel_hi:[1,0,0]' % (P(t + 2 * k), P(t + 2 * k), P(vS + 6), P(vS + 4)))
            for k in range(4):
                e('v_cvt_pk_bf16_f32 v%d, v%d, v%d' % (vX + 4 * ks + k, t + 2 * k, t + 2 * k + 1))
            e('ds_write_b128 v%d, %s offset:%d' % (vT + 3, vr('v', vX + 4 * ks, 4), 1024 * ks))
        e('s_barrier', need=['*lg'])
        self.stamp()
        e('@sec P5')
        piece = lambda h: self.whalf('w3', h, h) if h < 16 else self.whalf('w4', h - 16, h)
        p = self.gemm(16, 0, lambda gi: 'w3%d' % gi, lambda gi, b: vX + 16 * b, lambda gi: gi == 0, lambda gi: gi,
                      lambda k, tb: (vACT, (tb * 16 + k) * 1024), {gi: piece(gi + 5) for gi in range(1, 16)})
        HW, A7, KC = vT, vT + 1, vT + 2
        f = ('v_lshl_add_u32 v%d, s%d, 11, v%d\nv_and_b32 v%d, s%d, v%d\nv_lshl_add_u32 v%d, v%d, 10, v%d\n' % (HW, sW, vACT, A7, sJ, vONE, A7, A7, vACT) +
             'v_mov_b32 v%d, %s\n' % (KC, f2u(-K1)) +
             'v_lshlrev_b32 v%d, 7, v%d\nv_mov_b32 v%d, 0x%x\nv_cmp_gt_u32 vcc, 2, v%d\n' % (vS, vL, vS + 1, OOB, vL) +
             'v_and_b32 v%d, 7, v%d\nv_lshl_add_u32 v%d, v%d, 2, s%d\nv_cndmask_b32 v%d, v%d, v%d, vcc\n' % (vS + 2, vL, vPOFF, vS + 2, sCF, vFLAG, vS + 1, vS) +
             'v_and_b32 v%d, 15, v%d\nv_lshlrev_b32 v%d, 10, v%d\n' % (vS, vL, vS, vS) +
             'v_lshrrev_b32 v%d, 4, v%d\nv_lshl_or_b32 v%d, v%d, 3, v%d' % (vS + 1, vL, vW1, vS + 1, vS)).split('\n')
        assert not p.fill(f)
        p.emit(self)
        self.stamp()
        e('@sec gelu')
        e('s_barrier')
        o, n = [], 0
        for pp in range(2):
            for tb in range(4):
                d = vS + 4 * (n % 4)
                for g in range(2):
                    o += self.gelu4(vX + 16 * (2 * pp + g) + 4 * tb, d + 2 * g, vP + 4 * g, KC)
                n += 1
                o.append('ds_write_b128 v%d, %s offset:%d' % (HW, vr('v', d, 4), self.h2a(tb, pp)))
        jobs = piece(21)
        for which, u in (('K', 0), ('K', 1), ('V', 0), ('V', 1)):
            jobs += self.kv_dma(which, u, 'kv-1')
        self.sprinkle(o, jobs, start=self.opt('gelu_start', 41), every=self.opt('gelu_every', 20))
        self.touch(1)
        e('s_barrier', need=['*lg'])
        self.stamp()
        e('@sec P7')
        accB = (vS, vP, vX, vX + 32)
        p = self.gemm(14, 16, lambda gi: 'w4%d' % gi, lambda gi, b: accB[b] if gi >= 7 else vX + 16 * b, lambda gi: gi % 7 == 0, lambda gi: gi % 7,
                      lambda k, tb: (A7, self.h2a(tb, k)), {gi: piece(16 + gi + 5) for gi in range(1, 9)})
        for pp, (lo, hi) in enumerate(((16 * 6 + 10, 16 * 7 + 8), (16 * 7 + 3, 16 * 7 + 12))):
            pk = []
            for tb in range(4):
                a = vX + 32 * pp + 4 * tb
                pk += self.pack(a + 16, a, a + 16)
            p.g[hi - 1]['va'] += p.fill(pk, lo, hi)
        pk = self.vaddr_restore()
        for tb in range(4):
            pk += self.pack(vP + 4 * tb, vS + 4 * tb, vP + 4 * tb)
        rest = p.fill(pk[:4], 16 * 13 + 2) + p.fill(pk[4:], 16 * 13 + 9)
        p.emit(self)
        self.put(rest)
        for tb in range(4):
            self.put(self.pack(vX + 32 + 4 * tb, vX + 4 * tb, vX + 32 + 4 * tb))
        for r in range(0, 16, 2):
            e('v_pk_mov_b32 %s, %s, %s op_sel:[0,1]' % (P(vX + r), P(vP + r), P(vP + r)))
        self.yfrag = {(0, 0): vX + 16, (0, 1): vX + 48, (1, 0): vX, (1, 1): vX + 32}
        self.stamp()

    def part_flag(self, word, need):
        return Job(Ins('buffer_store_dword v%d, v%d, %s, s%d offen offset:%d sc1' % (vONE, vFLAG, srd(SWS), sFP, 4 * word), need=need))

    def attention2(self):
        e = self.s
        e('@sec attention 2a')
        N2 = 256 - self.opt('n1', 96)
        H, T = self.opt('head2', 32), N2 - self.opt('tail2', 32)

        def sched(spread, chk, fill):
            chk[T + 5] = self.poll_check(SWS, 1) + [Ins('v_add_u32 v%d, 32, v%d' % (vPOFF, vPOFF))]
            spread([self.part_store(self.yfrag[h, pp] + 4 * tb, YP_OFF + 65536 * pp + 16384 * tb + 1024 * h, 'yst')
                    for h in range(2) for pp in range(2) for tb in range(4)], 4, H - 8, 1)
            spread([self.part_flag(0, ['yst'])], H - 4, H - 3)
            spread(self.warm(SWO, vACT, sWOW, (0, 1024, 2048, 3072)) + self.warm(SCODE, vACT, sCW, (0,)), H - 3, H, 2)
            spread([self.poll_load(SWS)], T, T + 1)
            spread([Job('buffer_load_dwordx2 %s, v%d, %s, s%d offen offset:%d' % (vr('a', aRES + 2 * nb, 2), vW1, srd(SX), sXO, 512 * (nb >> 1) + 32 * (nb & 1)))
                    for nb in range(4)], T + 4, T + 8, 2)
            spread(self.gather('v', vX, sPI, YP_OFF, 'sc1 nt'), T + 6, N2 - 6, 1)
            wo = []
            for k in range(6):
                wo += self.whalf('wo', k, k)
            spread(wo, N2 - 12, N2)
        self.segment(1, N2, sched, loop=(H, T))
        self.o_epilogue()

    def o_epilogue(self):
        e = self.s
        e('@sec O epilogue')
        e('L_oepi:')
        for r in range(8):
            e('v_accvgpr_read_b32 v%d, a%d' % (vS + r, aL + r))
        for qb in range(4):
            e('v_add_f32 v%d, v%d, v%d' % (vS + 2 * qb, vS + 2 * qb, vS + 2 * qb + 1))
        B = vS + 8
        for qb in range(4):
            e('v_subrev_u32 v%d, 0x2b800000, v%d' % (B + qb, vS + 2 * qb))
        e('v_max3_u32 v%d, v%d, v%d, v%d\nv_max_u32 v%d, v%d, v%d' % (B, B, B + 1, B + 2, B, B, B + 3))
        e('v_cmp_lt_u32 vcc, 0x28000000, v%d' % B)
        e('v_and_b32 v%d, 3, v%d\nv_lshlrev_b32 v%d, 12, v%d\nv_lshl_add_u32 v%d, s%d, 2, v%d' % (B + 1, vL, B + 1, B + 1, B + 1, sW, B + 1))
        e('s_or_b32 s%d, vcc_lo, vcc_hi' % sT0)
        e('v_mov_b32 v%d, s%d' % (B, sT0))
        e('ds_write_b32 v%d, v%d' % (B + 1, B))
        for qb in range(4):
            e('v_rcp_f32 v%d, v%d' % (vS + 2 * qb, vS + 2 * qb))
        e('v_lshl_add_u32 v%d, s%d, 12, v%d' % (vP, sW, vACT))
        e('s_lshl_b32 s%d, s%d, 12\nv_mov_b32 v%d, s%d' % (sT0, sW, B + 1, sT0))
        e('s_barrier', need=['*lg'])
        e('ds_read_b128 %s, v%d' % (vr('v', B + 4, 4), B + 1))
        for qb in range(4):
            for ks in range(4):
                a = vACC + 32 * ks + 4 * qb
                for h in (0, 2, 16, 18):
                    e('v_pk_mul_f32 %s, %s, %s op_sel_hi:[1,0]' % (vr('v', a + h, 2), vr('v', a + h, 2), vr('v', vS + 2 * qb, 2)))
                self.put(self.pack(a + 16, a, a + 16))
                if qb == 0 and ks < 2:
                    if ks == 0:
                        continue
                    e('v_or3_b32 v%d, v%d, v%d, v%d\nv_or_b32 v%d, v%d, v%d' % (B, B + 4, B + 5, B + 6, B, B, B + 7))
                    e('v_cmp_ne_u32 vcc, 0, v%d\ns_cbranch_vccnz L_slow\nL_ofine:' % B)
                    e('ds_write_b128 v%d, %s' % (vP, vr('v', vACC + 16, 4)))
                e('ds_write_b128 v%d, %s offset:%d' % (vP, vr('v', a + 16, 4), (16 * qb + ks) * 1024))
        self.put(self.waddr(vTR, vT, 's%d' % sRING))
        e('s_barrier', need=['*lg'])
        self.stamp()
        self.slow_path()

    def slow_path(self):
        main, self.s = self.s, Stream()
        e = self.s
        M = vT
        e('L_slow:\ns_cmp_lg_u32 s%d, 0\ns_cbranch_scc1 L_ofine\ns_mov_b32 s%d, 1' % (sPASS, sPASS))
        e('s_waitcnt vmcnt(0) lgkmcnt(0)')
        for ps in range(2):
            e('s_mov_b32 s%d, 0\ns_mov_b32 s%d, 0\ns_mov_b32 s%d, 64' % (sKO, sVO, sCNT))
            if ps == 0:
                for qb in range(4):
                    e('v_mov_b32 v%d, 0xff800000' % (M + qb))
            else:
                for qb in range(4):
                    for op in ('v_permlane32_swap_b32', 'v_permlane16_swap_b32'):
                        e('v_mov_b32 v%d, v%d\n%s v%d, v%d\nv_max_f32 v%d, v%d, v%d' % (vS, M + qb, op, vS, M + qb, M + qb, M + qb, vS))
                for r in range(128):
                    e('v_mov_b32 v%d, 0' % (vACC + r))
                for r in range(8):
                    e('v_accvgpr_write_b32 a%d, 0' % (aL + r))
            e('L_slow%d:\ns_barrier' % ps)
            self.emit_jobs(self.kv_dma('K', 0, 'k') + (self.kv_dma('V', 0, 'k') if ps else []))
            e('s_barrier', need=['k'])
            self.put([self.krd(0, f) for f in range(8)] + ([self.vrd(0, h) for h in range(16)] if ps else []))
            e('s_waitcnt lgkmcnt(0)')
            for qb in range(4):
                for kb in range(2):
                    for ks in range(4):
                        e(mfma(vr('v', vS + 4 * kb, 4), vr('a', aK + 16 * kb + 4 * ks, 4), vr('a', aQ + 16 * qb + 4 * ks, 4), '0' if ks == 0 else None))
                if ps == 0:
                    for r in range(0, 8, 2):
                        e('v_max3_f32 v%d, v%d, v%d, v%d' % (M + qb, M + qb, vS + r, vS + r + 1))
                    continue
                for r in range(8):
                    e('v_sub_f32 v%d, v%d, v%d' % (vS + r, vS + r, M + qb))
                for r in range(8):
                    e('v_exp_f32 v%d, v%d' % (vS + r, vS + r))
                for r in range(4):
                    e('v_cvt_pk_bf16_f32 v%d, v%d, v%d' % (vP + 4 * qb + r, vS + 2 * r, vS + 2 * r + 1))
                for db in range(8):
                    e(mfma(vr('v', vACC + 16 * db + 4 * qb, 4), vr('a', aV + 4 * db, 4), vr('v', vP + 4 * qb, 4)))
                if qb & 1:
                    e(self.rowsum(qb >> 1))
            e('s_nop 7\ns_sub_u32 s%d, s%d, 1\ns_cmp_lg_u32 s%d, 0\ns_cbranch_scc1 L_slow%d' % (sCNT, sCNT, sCNT, ps))
        e('s_barrier\ns_branch L_oepi')
        e.insert_waits()
        e.pad_hazards()
        self.tail.append(e.text())
        self.s = main

    SEL = vT

    def reduce(self, acc, f, regs, ks, first=False):
        return [mfma(vr('v', acc + 4 * (2 * (k & 1) + g), 4), vr('v', self.SEL + 2 - 2 * g, 4), vr(f, regs + 4 * k, 4), '0' if (first and k < 2) else None)
                for k in ks for g in range(2)]

    def collect(self, acc, regs, base):
        e, L = self.s, 'L_c'
        NEW, N = sT0, sT1
        e('s_mov_b32 s%d, 0x80000' % sT3)
        e('%s_top:\ns_cmp_eq_u32 s%d, 0xff\ns_cbranch_scc1 %s_end' % (L, sDONE, L))
        e('%s_poll:' % L)
        e.add(self.poll_load(SWS).ins)
        e('s_waitcnt vmcnt(0)\nv_cmp_eq_u32 vcc, 1, v%d\ns_and_b32 s%d, vcc_lo, 0xff' % (vPRES, NEW))
        e('s_andn2_b32 s%d, s%d, s%d\ns_cbranch_scc1 %s_go' % (NEW, NEW, sDONE, L))
        e('s_sub_u32 s%d, s%d, 1\ns_cbranch_scc0 %s_poll\ns_branch %s_end' % (sT3, sT3, L, L))
        e('%s_go:\ns_or_b32 s%d, s%d, s%d\ns_bcnt1_i32_b32 s%d, s%d' % (L, sDONE, sDONE, NEW, N, NEW))
        for n in range(1, 8):
            e('s_cmp_eq_u32 s%d, %d\ns_cbranch_scc1 %s_ld%d' % (N, n, L, 8 - n))
        for q in range(8):
            e('%s_ld%d:\ns_ff1_i32_b32 s%d, s%d\ns_bitset0_b32 s%d, s%d' % (L, q, sT2, NEW, NEW, sT2))
            e('s_lshl_b32 s%d, s%d, 11\ns_add_u32 s%d, s%d, s%d' % (sT2, sT2, sT2, sT2, base))
            for p in range(2):
                e('buffer_load_dwordx4 %s, v%d, %s, s%d offen offset:%d sc1' % (vr('a', regs + 8 * q + 4 * p, 4), vACT, srd(SWS), sT2, 1024 * p))
        for n in range(1, 8):
            e('s_cmp_eq_u32 s%d, %d\ns_cbranch_scc1 %s_mm%d' % (N, n, L, 8 - n))
        for q in range(8):
            e('%s_mm%d:' % (L, q))
            self.put(self.reduce(acc, 'a', regs, (2 * q, 2 * q + 1)))
        e('s_branch %s_top\n%s_end:' % (L, L))

    def p6_final(self):
        e = self.s
        P = lambda b: vr('v', b, 2)
        e('@sec P6')
        NE = self.opt('p6_early', 6)
        od = list(range(32 - 2 * NE)) + list(range(32 - 2 * NE, 32, 2)) + list(range(33 - 2 * NE, 32, 2))
        p = self.gemm(32, 0, lambda gi: 'wo%d' % od[gi], lambda gi, b: vACC + 64 * (od[gi] & 1) + 16 * b, lambda gi: gi < 2, lambda gi: od[gi] >> 1,
                      lambda k, tb: (vACT, (tb * 16 + k) * 1024), {gi: self.whalf('wo', od[gi + 5], gi + 5) for gi in range(1, 27)})
        pk, st = [[], []], [[], []]
        for h in range(2):
            for pp in range(2):
                for tb in range(4):
                    a = vACC + 64 * h + 32 * pp + 4 * tb
                    pk[h].append(self.pack(a + 16, a, a + 16))
                    st[h].append(self.part_store(a + 16, SP_OFF + 65536 * pp + 16384 * tb + 1024 * h, 'sst'))
        if NE:
            pos = [16 * g + o for g in range(max(27, 33 - NE), 32) for o in (2, 10)][:8]
            for k, q in enumerate(pos):
                p.jobs(self.flat([st[0][k]]), [q], lo=q - 2)
            for k, q in enumerate(pos):
                assert not p.fill(pk[0][k], 16 * (32 - NE) + 2, q)
            pk[0], st[0] = pk[0][len(pos):], st[0][len(pos):]
        SEL, ZZ, XF, SS, E, M = self.SEL, vS, vP, vX, vX + 16, vX + 32
        t = vKA
        f = ('v_lshrrev_b32 v%d, 4, v%d\nv_bfe_u32 v%d, v%d, 2, 2\nv_and_b32 v%d, 1, v%d\nv_lshlrev_b32 v%d, 4, v%d\n' % (t + 1, vL, t, vL, t + 2, vL, t + 2, t + 2) +
             'v_mov_b32 v%d, 0x3f80\nv_lshlrev_b32 v%d, v%d, v%d\n' % (t + 3, t + 2, t + 2, t + 3) +
             'v_cmp_eq_u32 vcc, v%d, v%d\nv_mov_b32 v%d, 0\nv_mov_b32 v%d, 0\n' % (t, t + 1, SEL, SEL + 1) +
             'v_cndmask_b32 v%d, 0, v%d, vcc\nv_and_b32 v%d, 2, v%d\nv_cmp_eq_u32 vcc, 0, v%d\n' % (t + 2, t + 2, t, vL, t) +
             'v_mov_b32 v%d, 0\nv_mov_b32 v%d, 0\nv_cndmask_b32 v%d, 0, v%d, vcc\n' % (SEL + 4, SEL + 5, SEL + 2, t + 2) +
             'v_sub_u32 v%d, v%d, v%d' % (SEL + 3, t + 2, SEL + 2)).split('\n')
        assert not p.fill(f, 0, 32)
        red = self.reduce(XF, 'a', aRES, (0, 1), True) + self.reduce(ZZ, 'a', aX1, (0, 1), True) + self.reduce(ZZ, 'v', vX, range(16))
        for k, m in enumerate(red):
            p.g[16 * (4 + k // 4) + 4 * (k % 4) + 1]['end'].append(m)
        gate = []
        for r in range(16):
            gate += ['v_mul_f32 v%d, %s, v%d' % (E + r, f2u(-math.log2(math.e)), ZZ + r)]
        for op in ('v_exp_f32 v%d, v%d', 'v_add_f32 v%d, 1.0, v%d', 'v_rcp_f32 v%d, v%d'):
            gate += [op % (E + r, E + r) for r in range(16)]
        gate += ['v_mul_f32 v%d, v%d, v%d' % (ZZ + r, ZZ + r, E + r) for r in range(16)]
        g0 = self.opt('spoll', 0)
        if g0:
            p.jobs(self.flat([self.poll_load(SWS)]), [16 * g0 + 7])
            p.g[16 * (g0 + 2) + 7]['end'] += ['v_cmp_eq_u32 vcc, 1, v%d' % vPRES, 's_and_b32 s%d, vcc_lo, 0xff' % sDONE, 's_not_b32 s%d, s%d' % (sT0, sDONE)]
            pos = [16 * g + o for g in range(g0 + 3, 32) for o in ((6, 7, 14, 15) if g >= 27 else (7, 15))][:16]
            assert len(pos) == 16
            jobs = self.gather('a', 64, sPI, SP_OFF, 'sc1')
            for k, jb in enumerate(jobs):
                jb.ins = Ins(jb.ins.text.replace(' v%d,' % vACT, ' v%d,' % (M + k // 2)))
                p.jobs(self.flat([jb]), [pos[k]], lo=pos[k] - 2)
            for q in range(8):
                assert not p.fill(['v_bfe_u32 v%d, s%d, %d, 1' % (M + q, sT0, q), 'v_lshl_or_b32 v%d, v%d, 30, v%d' % (M + q, M + q, vACT)],
                                  16 * (g0 + 2) + 8, pos[2 * q])
        rest = p.fill(gate, 16 * 14 + 4)
        assert not rest
        p.scalars(['s_add_u32 s%d, s%d, 0x%x' % (sKO, sPI, SP_OFF)] + ([] if g0 else ['s_mov_b32 s%d, 0' % sDONE]), 0, 16)
        p.emit(self)
        self.stamp('P6')
        e('@sec s epilogue')
        self.sprinkle(sum(pk[0] + pk[1], []), st[0] + st[1], start=4, every=4)
        self.stamp('issued')
        if g0:
            self.put(self.reduce(SS, 'a', 64, range(16), True))
        else:
            self.put(['v_mov_b32 v%d, 0' % (SS + r) for r in range(16)])
        self.emit_jobs([self.part_flag(8, ['sst'])])
        self.stamp('acked')
        self.collect(SS, 64, sKO)
        self.stamp('collected')
        for nb in range(4):
            for r in range(4 * nb, 4 * nb + 4, 2):
                e('v_pk_fma_f32 %s, %s, %s, %s' % (P(XF + r), P(SS + r), P(ZZ + r), P(XF + r)))
            for k in range(2 * nb, 2 * nb + 2):
                e('v_cvt_pk_bf16_f32 v%d, v%d, v%d' % (E + k, XF + 2 * k, XF + 2 * k + 1))
            e('buffer_store_dwordx2 %s, v%d, %s, s%d offen offset:%d' % (P(E + 2 * nb), vW1, srd(SOUT), sXO, 512 * (nb >> 1) + 32 * (nb & 1)))
        if self.prof:
            e('s_waitcnt vmcnt(0)')
            self.stamp('end')
            e('v_accvgpr_read_b32 v%d, a%d\nv_accvgpr_read_b32 v%d, a%d' % (vT, aPROF, vT + 1, aPROF + 1))
            e('s_lshl_b32 s%d, s2, 11\ns_lshl_b32 s%d, s%d, 9\ns_add_u32 s%d, s%d, s%d' % (sT0, sT1, sW, sT0, sT0, sT1))
            e('s_add_u32 s%d, s%d, 0x%x\nv_lshlrev_b32 v%d, 3, v%d' % (sT0, sT0, PROF_OFF, vT + 2, vL))
            e('buffer_store_dwordx2 %s, v%d, %s, s%d offen' % (vr('v', vT, 2), vT + 2, srd(SWS), sT0))

    def build(self, verbose=False):
        for phase in (self.prologue, self.p0, self.p2, self.q_p1, self.attention1, self.mlp, self.attention2, self.p6_final):
            phase()
        s = self.s
        s.insert_waits()
        pads = s.pad_hazards()
        est = s.estimate()
        s.fold()
        fixes = s.align(self.opt('touch', 1))
        if self.opt('touch', 1):
            n, cut = len(s.pages), self.opt('touch_cut', 15)
            assert s.marks['touch1'] < cut + 1 or cut >= n
            for r, (lo, hi) in enumerate(((0, min(cut, n)), (min(cut, n), n))):
                for k in range(lo, hi):
                    s.pages[k].text = 's_cbranch_execz ' + ('L_pg%d' % (k + 4) if k + 4 < hi else 'L_touched%d' % r)
                for x in s.l:
                    for w in range(4):
                        if x.text.endswith(' L_touch%d_%d' % (r, w)):
                            x.text = x.text.replace('L_touch%d_%d' % (r, w), 'L_pg%d' % (lo + w) if lo + w < hi else 'L_touched%d' % r)
        if verbose:
            print('alignment fixes:', fixes, 'pages:', len(s.pages), s.marks)
        if verbose:
            print('hazard pads:', pads)
            for name, cyc, nm in est:
                print('  %-18s est %6d cycles, %5d mfma (%6d)' % (name, cyc, nm, nm * 16))
            print('  total', sum(c for _, c, _ in est))
        ref = open('cdna_kernels/%s.s.ref' % NAME).read().split('\n')
        head = [l for l in ref if l.startswith(';') and '@launch' not in l]
        o = head + ['; @launch grid=(256,1,1) block=(256,1,1) lds=163840',
                    '.amdgcn_target "amdgcn-amd-amdhsa--gfx950"', '.text', '.globl %s_kernel' % NAME, '.p2align 8',
                    '.type %s_kernel,@function' % NAME, '%s_kernel:' % NAME]
        o.append(s.text())
        o.append('L_end:\n    s_endpgm')
        o += self.tail
        o.append('L_code_end:\n    s_endpgm')
        o.append('''.section .rodata,"a"
.p2align 6
.amdhsa_kernel %s_kernel
  .amdhsa_next_free_vgpr 512
  .amdhsa_next_free_sgpr 102
  .amdhsa_accum_offset 256
  .amdhsa_group_segment_fixed_size 0
  .amdhsa_kernarg_size 104
  .amdhsa_user_sgpr_count 2
  .amdhsa_user_sgpr_kernarg_segment_ptr 1
  .amdhsa_system_sgpr_workgroup_id_x 1
  .amdhsa_float_denorm_mode_32 3
.end_amdhsa_kernel''' % NAME)
        return '\n'.join(o) + '\n'


if __name__ == '__main__':
    out = sys.argv[1] if len(sys.argv) > 1 else 'k.s'
    opts = dict(a.split('=') for a in sys.argv[2:])
    open(out, 'w').write(Gen(False, opts).build(True))
    open(out.replace('.s', '_prof.s'), 'w').write(Gen(True, opts).build())
    open(out.replace('.s', '_lite.s'), 'w').write(Gen(2, opts).build())
```

```python
import math
import struct
import sys

sys.path.insert(0, 'work')
from asmgen import Ins, Stream, vr

NAME = 'recurrent_scan__gqa_block_cached__mixer_s_mlp__prompt'


def f2u(x):
    return '0x%08x' % struct.unpack('<I', struct.pack('<f', x))[0]


H_OFF = 0
X1_OFF = 0x200000
FLAG_OFF = 0x400000
ST_OFF = 0x600000
SP_OFF = 0x1000000
YP_OFF = 0x2000000
PROF_OFF = 0x8000000
OOB = 0x40000000

KRING, VRING = 0, 32768
WREG = 65536
WWAVE = 24576

SX, SK, SV, SWQ, SWO, SW1, SW2, SW3, SW4, SOUT, SDBG, SWS, SH, SCODE = range(4, 60, 4)
sT, sJ, sW, sTBG, sRING, sW2K = 60, 61, 62, 63, 64, 65
sO, sDONE, sKO, sVO, sCNT, sRET = 66, 67, 68, 69, 70, 71
sT0, sT1, sT2, sT3 = 72, 73, 74, 75
sC0 = 76
sPASS, sWSH = 78, 79
sST = 80
sHO, sX1O, sX1I, sSTO, sPO, sPI, sCF, sFP, sXO, sCW, sW3W, sW4W, sWOW = range(84, 97)

vL = 0
vTR = 1
vKA = 9
vACT = 13
vWN, vW3, vW2, vW1 = 14, 15, 16, 17
vDB = 18
vFLAG, vONE, vPOFF, vPRES = 22, 23, 24, 25
vT = 26
vIDX = 31
vS, vP = 32, 48
vX = 64
vACC = 128
aK, aV, aONES, aL, aX1, aQ = 0, 64, 128, 132, 140, 192
aPROF, aDUMMY, aSTAT, aRES = 150, 152, 156, 160

CSCALE = math.log2(math.e) / math.sqrt(128.0)
K1 = 2 * 0.7978845608028654 * math.log2(math.e)
K2 = K1 * 0.044715


def srd(n):
    return 's[%d:%d]' % (n, n + 3)


def mfma(d, a, b, c=None):
    return 'v_mfma_f32_16x16x32_bf16 %s, %s, %s, %s' % (d, a, b, d if c is None else c)


class Job:
    def __init__(self, ins, pre=(), m0=None, post=()):
        self.ins = ins if isinstance(ins, Ins) else Ins(ins)
        self.pre, self.m0, self.post = list(pre), m0, list(post)


class Plan:
    def __init__(self):
        self.mf, self.g = [], []

    def add(self, m):
        self.mf.append(m)
        self.g.append(dict(sc=[], ds=[], vm=[], va=[], end=[]))
        return len(self.mf) - 1

    def cap(self, j):
        g = self.g[j]
        if g['vm'] or g['end']:
            return 0
        c = 1 if self.mf[j].startswith('v_smfmac') else 2
        return c - len(g['ds']) - sum(vcost(x) for x in g['va']) - max(0, len(g['sc']) - 1)

    def jobs(self, groups, pos, lo=0, avoid=()):
        prev, pend = lo - 1, []
        for (pre, d, post), p in zip(groups, pos):
            self.scalars(pend + pre, prev + 1, p, avoid, late=True)
            assert not self.g[p]['vm'], 'gap %d already holds a memory instruction' % p
            self.g[p]['vm'].append(d)
            prev, pend = p, post
        return prev, pend

    def scalars(self, sc, a, b, avoid=(), late=False):
        if not sc:
            return
        c = [j for j in range(a, b) if not self.g[j]['vm'] and not self.g[j]['sc'] and j not in avoid]
        if len(c) < len(sc):
            c = [j for j in range(a, b) if not self.g[j]['vm']]
        if not c:
            self.g[b]['sc'] += sc
            return
        c = c[-len(sc):] if late else c[:len(sc)]
        for k, x in enumerate(sc):
            self.g[c[min(k, len(c) - 1)]]['sc'].append(x)

    def fill(self, va, start=0, end=None):
        va, j = list(va), start
        end = len(self.mf) if end is None else end
        while va and j < end:
            if self.cap(j) >= vcost(va[0]):
                self.g[j]['va'].append(va.pop(0))
            else:
                j += 1
        return va

    def emit(self, gen):
        for m, g in zip(self.mf, self.g):
            gen.put([m] + g['sc'] + g['vm'] + g['ds'] + g['va'] + g['end'])


def vcost(x):
    t = x.text if isinstance(x, Ins) else x
    return 2 if t.startswith(('v_exp', 'v_rcp', 'v_rsq', 'v_permlane')) else 1


class Gen:
    def __init__(self, prof=False, opts=None):
        self.s = Stream()
        self.tail = []
        self.prof = prof
        self.o = opts or {}
        self.nstamp = 0
        self.nlab = 0
        self.kv_nt = False

    def stamp(self, name=None):
        if 'diag' in self.o:
            a, b, k = self.o['diag'].split(':')
            sec = name or [x.op[5:] for x in self.s.l if x.kind == 'meta' and x.op.startswith('@sec ')][-1]
            for r, want in ((98, a), (100, b)):
                if sec.replace(' ', '_') == want:
                    self.s('s_waitcnt lgkmcnt(0)\ns_memrealtime s[%d:%d]\ns_waitcnt lgkmcnt(0)' % (r, r + 1))
            return
        if not self.prof or (self.prof == 2 and name not in ('kernarg', 'end', 'P0 end', 'P2 end', 'pre', 'loop')):
            return
        e = self.s
        sec = [x.op[5:] for x in e.l if x.kind == 'meta' and x.op.startswith('@sec ')][-1]
        self.tail.append('; @@' + (name or sec))
        e('s_waitcnt lgkmcnt(0)')
        e('s_memtime s[%d:%d]\ns_memrealtime s[%d:%d]\ns_waitcnt lgkmcnt(0)' % (sST, sST + 1, sST + 2, sST + 3))
        for k in range(2):
            e('v_accvgpr_read_b32 v%d, a%d' % (vONE, aPROF + k))
            e('s_nop 1\nv_writelane_b32 v%d, s%d, %d' % (vONE, sST + 2 * k, self.nstamp))
            e('v_accvgpr_write_b32 a%d, v%d' % (aPROF + k, vONE))
        e('v_mov_b32 v%d, 1' % vONE)
        self.nstamp += 1

    def stamp_items(self, name):
        main, self.s = self.s, Stream()
        self.s('@sec ' + name)
        self.stamp(name)
        items, self.s = self.s.l[1:], main
        return items

    def poll_load(self, buf):
        return Job('buffer_load_dword v%d, v%d, %s, 0 offen sc1' % (vPRES, vPOFF, srd(buf)))

    def poll_check(self, buf, val):
        self.nlab += 1
        n = self.nlab
        cmp = 'v_cmp_ne_u32' if val == 1 else 'v_cmp_gt_u32'
        self.tail.append('''L_spin%(n)d:
    s_mov_b32 s%(c)d, 0x80000
L_spin%(n)d_loop:
    buffer_load_dword v%(r)d, v%(o)d, %(b)s, 0 offen sc1
    s_waitcnt vmcnt(0)
    %(cmp)s vcc, %(v)d, v%(r)d
    s_cbranch_vccz L_back%(n)d
    s_sub_u32 s%(c)d, s%(c)d, 1
    s_cbranch_scc0 L_spin%(n)d_loop
    s_branch L_back%(n)d''' % dict(n=n, c=sT3, r=vPRES, o=vPOFF, b=srd(buf), v=val, cmp=cmp))
        return [Ins('%s vcc, %d, v%d' % (cmp, val, vPRES)), Ins('s_cbranch_vccnz L_spin%d' % n), Ins('L_back%d:' % n)]

    def flag_store(self, phase, need):
        return Job(Ins('buffer_store_dword v%d, v%d, %s, s%d offen sc1' % (vONE, vFLAG, srd(SWS), sT2), need=need),
                   pre=['s_mov_b32 s%d, 0x%x' % (sT2, FLAG_OFF + phase * 131072)])

    def opt(self, k, d):
        return int(self.o.get(k, d))

    def touch(self, r):
        if not self.opt('touch', 1):
            return
        e = self.s
        e('@mark touch%d\ns_mov_b64 exec, 0' % r)
        for w in range(3):
            e('s_cmp_eq_u32 s%d, %d\ns_cbranch_scc1 L_touch%d_%d' % (sW, w, r, w))
        e('s_branch L_touch%d_3\nL_touched%d:\ns_mov_b64 exec, -1' % (r, r))

    def put(self, items):
        for x in items:
            self.s.add(x if isinstance(x, Ins) else Ins(x))

    def flat(self, jobs):
        res, m0 = [], None
        for jb in jobs:
            pre = list(jb.pre)
            if jb.m0 and jb.m0 != m0:
                pre.insert(0, jb.m0)
                m0 = jb.m0
            res.append((pre, jb.ins, list(jb.post)))
        return res

    def emit_jobs(self, jobs):
        for pre, d, post in self.flat(jobs):
            self.put(pre + [d] + post)

    def sprinkle(self, main, jobs, start=0, every=8):
        groups = self.flat(jobs)
        for k, x in enumerate(main):
            if groups and k >= start and (k - start) % every == 0:
                pre, d, post = groups.pop(0)
                self.put(pre + [d] + post)
            self.put([x])
        for pre, d, post in groups:
            self.put(pre + [d] + post)

    def whalf(self, name, k, h):
        buf, vo, stride, nat, off = {
            'wq': (SWQ, vDB, 8192, True, (k >> 1) * 32 * 8192 + (k & 1) * 128),
            'w1': (SW1, vW1, 1024, True, k * 32768),
            'w2': (SW2, vW2, 1024, False, k * 32768),
            'w3': (SW3, vW3, 3584, False, k * 32 * 3584),
            'w4': (SW4, vWN, 1024, False, (k % 7) * 32768 + (k // 7) * 512),
            'wo': (SWO, vWN, 1024, False, (k >> 1) * 32768 + (k & 1) * 512)}[name]
        rows = [16 * (a & 1) + 4 * (a >> 1) if nat else 8 * a for a in range(4)]
        return [Job(Ins('buffer_load_dwordx4 v%d, %s, s%d offen offset:%d %slds' % (vo, srd(buf), sO, 1024 * a, 'nt ' if name in self.o.get('wnt', 'none').split(',') else ''), tag='%s%d' % (name, k)),
                    pre=['s_mov_b32 s%d, 0x%x' % (sO, off + rows[a] * stride - 1024 * a)],
                    m0='s_add_u32 m0, s%d, 0x%x' % (sRING, (h % 6) * 4096)) for a in range(4)]

    def waddr(self, dst, t, base):
        return ['v_lshrrev_b32 v%d, 2, v%d' % (dst, vL), 'v_bfe_u32 v%d, v%d, 3, 2' % (t, vL), 'v_lshlrev_b32 v%d, 5, v%d' % (t, t),
                'v_lshl_or_b32 v%d, v%d, 7, v%d' % (dst, dst, t), 'v_and_b32 v%d, 3, v%d' % (t, vL), 'v_lshl_or_b32 v%d, v%d, 3, v%d' % (dst, t, dst),
                'v_add_u32 v%d, %s, v%d' % (dst, base, dst)] + ['v_xor_b32 v%d, 0x%x, v%d' % (dst + b, b << 5, dst) for b in range(1, 4)]

    def vaddr_restore(self):
        return ['v_xor_b32 v%d, 0x80, v%d' % (vTR + db, vTR + 4 + db) for db in range(4)]

    def lanesum(self, r, t):
        o = []
        for op in ('v_permlane32_swap_b32', 'v_permlane16_swap_b32'):
            o += ['v_mov_b32 v%d, v%d' % (t, r), '%s v%d, v%d' % (op, t, r), 'v_add_f32 v%d, v%d, v%d' % (r, r, t)]
        return o

    def gelu4(self, src, dst, tmp, k1, scale=None):
        o = []
        e = o.append
        P = lambda b: vr('v', b, 2)
        if scale is not None:
            for h in (0, 2):
                e('v_pk_mul_f32 %s, %s, %s op_sel_hi:[1,0]' % (P(src + h), P(src + h), P(scale)))
        for h in (0, 2):
            e('v_pk_mul_f32 %s, %s, %s' % (P(tmp + h), P(src + h), P(src + h)))
        for h in (0, 2):
            e('v_pk_fma_f32 %s, %s, s[%d:%d], %s op_sel_hi:[1,1,0]' % (P(tmp + h), P(tmp + h), sC0, sC0 + 1, P(k1)))
        for h in (0, 2):
            e('v_pk_mul_f32 %s, %s, %s' % (P(tmp + h), P(tmp + h), P(src + h)))
        for r in range(4):
            e('v_exp_f32 v%d, v%d' % (tmp + r, tmp + r))
        for h in (0, 2):
            e('v_pk_add_f32 %s, %s, 1.0 op_sel_hi:[1,0]' % (P(tmp + h), P(tmp + h)))
        for r in range(4):
            e('v_rcp_f32 v%d, v%d' % (tmp + r, tmp + r))
        for h in (0, 2):
            e('v_pk_mul_f32 %s, %s, %s' % (P(tmp + h), P(tmp + h), P(src + h)))
        for h in (0, 2):
            e('v_cvt_pk_bf16_f32 v%d, v%d, v%d' % (dst + h // 2, tmp + h, tmp + h + 1))
        return o

    def pack(self, d, a0, a1):
        return ['v_cvt_pk_bf16_f32 v%d, v%d, v%d' % (d + 3, a1 + 2, a1 + 3), 'v_cvt_pk_bf16_f32 v%d, v%d, v%d' % (d + 2, a1, a1 + 1),
                'v_cvt_pk_bf16_f32 v%d, v%d, v%d' % (d, a0, a0 + 1), 'v_cvt_pk_bf16_f32 v%d, v%d, v%d' % (d + 1, a0 + 2, a0 + 3)]

    def g16(self, accf, acc, ring, ad):
        def rd(n):
            ks, nb = n >> 2, n & 3
            off = ((ks >> 2) & 1) * WWAVE + (ks & 3) * 4096
            return ['ds_read_b64_tr_b16 %s, v%d offset:%d' % (vr('a', ring + 4 * (n % 8) + 2 * g, 2), ad + nb, off + 2048 * g) for g in range(2)]
        AH = 6
        for n in range(AH):
            self.put(rd(n))
        p = Plan()
        for n in range(64):
            ks, nb = n >> 2, n & 3
            p.add(mfma(vr(accf, acc + 4 * nb, 4), vr('a', ring + 4 * (n % 8), 4), vr('v', vX + 4 * ks, 4), '0' if ks == 0 else None))
            if n + AH < 64:
                p.g[n]['ds'] += rd(n + AH)
            if 28 <= n + AH < 32:
                p.g[n]['va'].append('v_add_u32 v%d, 0x%x, v%d' % (ad + (n + AH) % 4, 2 * WWAVE, ad + (n + AH) % 4))
        p.emit(self)

    def gemm(self, ngr, h0, tagf, accf, firstf, actk, actf, dmas):
        WF, AF, AH = 0, 16, 3
        ak = [actk(gi) for gi in range(ngr)]
        par = [0]
        for gi in range(1, ngr):
            par.append(par[-1] ^ (ak[gi] != ak[gi - 1]))

        def wrd(n):
            gi, b = n >> 2, n & 3
            return [Ins('ds_read_b64_tr_b16 %s, v%d offset:%d' % (vr('a', WF + 4 * (n % 4) + 2 * g, 2), vTR + b, ((h0 + gi) % 6) * 4096 + 2048 * g),
                        need=[tagf(gi)] if (b == 0 and g == 0) else None) for g in range(2)]

        def ard(gi, tb):
            return 'ds_read_b128 %s, v%d offset:%d' % ((vr('a', AF + 16 * par[gi] + 4 * tb, 4),) + actf(ak[gi], tb))
        self.put([ard(0, tb) for tb in range(4)])
        for n in range(AH):
            self.put(wrd(n))
        p = Plan()
        jobs, pos = [], []
        for gi in range(ngr):
            j0 = 16 * gi
            for b in range(4):
                n = 4 * gi + b
                for tb in range(4):
                    p.add(mfma(vr('v', accf(gi, b) + 4 * tb, 4), vr('a', WF + 4 * (n % 4), 4), vr('a', AF + 16 * par[gi] + 4 * tb, 4),
                               '0' if firstf(gi) else None))
                if n + AH < 4 * ngr:
                    w = wrd(n + AH)
                    p.g[j0 + 4 * b]['ds'].append(w[0])
                    p.g[j0 + 4 * b + 1]['ds'].append(w[1])
            if gi + 1 < ngr and ak[gi + 1] != ak[gi]:
                shared = gi and ak[gi - 1] == ak[gi]
                for tb, o in enumerate((-7, -3, 1, 5) if shared else (1, 3, 4, 5)):
                    p.g[j0 + o]['ds'].append(ard(gi + 1, tb))
            d = dmas.get(gi, [])
            jobs += d
            pos += [j0 + o for o in ((2, 6, 10, 14) if len(d) <= 4 else (2, 3, 6, 7, 10, 11, 14, 15))[:len(d)]]
        p.jobs(self.flat(jobs), pos, avoid={j for j in range(16 * ngr) if j % 4 == 3 or j % 16 == 4})
        return p

    def part_store(self, reg, off, tag):
        return Job(Ins('buffer_store_dwordx4 %s, v%d, %s, s%d offen sc1' % (vr('v', reg, 4), vACT, srd(SWS), sT1), tag=tag),
                   pre=['s_add_u32 s%d, s%d, 0x%x' % (sT1, sPO, off)])

    def gather(self, f, dst, soff, off, flags):
        return [Job('buffer_load_dwordx4 %s, v%d, %s, s%d offen offset:%d %s' % (vr(f, dst + 4 * k, 4), vACT, srd(SWS), sRET, 1024 * (k % 4), flags),
                    pre=['s_add_u32 s%d, s%d, 0x%x' % (sRET, soff, off + 1024 * k)] if k % 4 == 0 else []) for k in range(16)]

    XS, XW, RA, F1 = vP + 8, vP + 9, vP + 10, vT + 4

    def prologue(self):
        e = self.s
        D = vr('a', aDUMMY, 4)
        e('@sec prologue')
        bufs = [(SX, 0, 0x200000), (SWQ, 24, 0x400000), (SWS, 96, 0x10000000), (SW1, 48, 0x80000), (SW2, 56, 0x80000), (SDBG, 88, 256), (SK, 8, 0x400000),
                (SV, 16, 0x400000), (SWO, 32, 0x400000), (SW3, 64, 0x1c0000), (SW4, 72, 0x1c0000), (SOUT, 80, 0x200000)]
        for b, off, _ in bufs[:2]:
            e('s_load_dwordx2 s[%d:%d], s[0:1], %d' % (b, b + 1, off))
        e('s_cmp_ge_u32 s2, 256\ns_cbranch_scc1 L_end')
        if self.o.get('diag', '').startswith('start'):
            e('s_memrealtime s[98:99]')
        if self.prof:
            e('v_accvgpr_write_b32 a%d, 0\nv_accvgpr_write_b32 a%d, 0' % (aPROF, aPROF + 1))
        e('s_getpc_b64 s[%d:%d]\nL_pc:' % (SCODE, SCODE + 1))
        e('s_mov_b32 s%d, L_code_end-L_pc\ns_mov_b32 s%d, 0x20000' % (SCODE + 2, SCODE + 3))
        e('s_lshr_b32 s%d, s2, 3\nv_lshlrev_b32 v%d, 4, v0\nv_lshl_add_u32 v%d, s%d, 12, v%d' % (sT, vT + 3, vT, sT, vT + 3))
        e('buffer_load_dwordx4 %s, v%d, %s, 0 offen' % (D, vT, srd(SCODE)))
        e('v_readfirstlane_b32 s%d, v0\ns_and_b32 s%d, s2, 7\nv_and_b32 v0, 63, v0' % (sW, sJ))
        e('s_lshr_b32 s%d, s%d, 6' % (sW, sW))
        e('s_lshl_b32 s%d, s%d, 2\ns_add_u32 s%d, s%d, s%d' % (sTBG, sT, sTBG, sTBG, sW))
        e('v_lshrrev_b32 v%d, 2, v%d\nv_and_b32 v%d, 3, v%d' % (vT + 1, vL, vT + 2, vL))
        e('v_lshlrev_b32 v%d, 10, v%d\nv_lshl_or_b32 v%d, v%d, 4, v%d' % (vT + 4, vT + 1, vT + 4, vT + 2, vT + 4))
        e('v_lshlrev_b32 v%d, 4, v%d' % (vACT, vL))
        e('s_lshl_b32 s%d, s%d, 14\ns_lshl_b32 s%d, s%d, 13\ns_lshl_b32 s%d, s%d, 10' % (sCNT, sTBG, sVO, sTBG, sT1, sJ))
        e('s_mov_b32 s%d, 0x200000\ns_mov_b32 s%d, 0x20000' % (SX + 2, SX + 3))
        e('s_sub_u32 s%d, 0x400000, s%d\ns_mov_b32 s%d, 0x20000' % (SWQ + 2, sT1, SWQ + 3))
        e('s_waitcnt lgkmcnt(0)')
        self.stamp('kernarg')
        e('s_add_u32 s%d, s%d, s%d\ns_addc_u32 s%d, s%d, 0' % (SWQ, SWQ, sT1, SWQ + 1, SWQ + 1))
        for b, off, _ in bufs[2:]:
            e('s_load_dwordx2 s[%d:%d], s[0:1], %d' % (b, b + 1, off))
        wl = [Job('buffer_load_dwordx4 %s, v%d, %s, s%d offen' % (D, vACT, srd(SWQ), sVO), post=['s_add_u32 s%d, s%d, 0x100000' % (sVO, sVO)]) for i in range(4)]
        nf = self.opt('wq_first', 1)
        self.emit_jobs(wl[:nf])
        xl = [Job('buffer_load_dwordx4 %s, v%d, %s, s%d offen offset:%d' % (vr('v', vX + 4 * ks, 4), vT + 4, srd(SX), sCNT, 64 * ks)) for ks in range(16)]
        nx = self.opt('x_first', 8)
        self.emit_jobs(xl[:nx])
        self.stamp('x issued')
        mark = len(e.l)

        def lin(dst, c, *terms):
            for k, (reg, mul) in enumerate(terms):
                e('s_mul_i32 s%d, s%d, 0x%x' % (dst if k == 0 else sT0, reg, mul & 0xffffffff))
                if k:
                    e('s_add_u32 s%d, s%d, s%d' % (dst, dst, sT0))
            if c:
                e('s_add_u32 s%d, s%d, 0x%x' % (dst, dst, c))
        lin(sRING, WREG, (sW, WWAVE))
        lin(sW2K, 0, (sW, 2048))
        e('v_mov_b32 v%d, 1' % vONE)
        XS, XW, RA = self.XS, self.XW, self.RA
        e('v_lshlrev_b32 v%d, 1, v%d\nv_xor_b32 v%d, v%d, v%d\nv_lshl_or_b32 v%d, v%d, 4, v%d' % (vT, vT + 2, vT, vT, vT + 1, vT, vT + 2, vT))
        e('v_lshlrev_b32 v%d, 4, v%d\nv_lshl_add_u32 v%d, s%d, 14, v%d' % (vT, vT, XW, sW, vT))
        e('v_lshrrev_b32 v%d, 4, v%d\nv_lshlrev_b32 v%d, 5, v%d\nv_xor_b32 v%d, v%d, v%d' % (vT, vL, vT, vT, XS, vT, vACT))
        e('v_lshrrev_b32 v%d, 5, v%d\nv_and_b32 v%d, 15, v%d\nv_mul_u32_u24 v%d, 18, v%d\nv_xor_b32 v%d, v%d, v%d' % (vT, vL, vT + 1, vL, vT, vT, vT, vT, vT + 1))
        e('v_bfe_u32 v%d, v%d, 4, 1\nv_lshl_or_b32 v%d, v%d, 1, v%d\nv_lshlrev_b32 v%d, 3, v%d' % (vT + 1, vL, vT, vT, vT + 1, vT, vT))
        lin(sT1, 0, (sW, 16384), (sJ, 1024))
        e('v_add_u32 v%d, s%d, v%d\nv_xor_b32 v%d, 64, v%d' % (RA, sT1, vT, RA + 1, RA))
        C, RN, RK = vT, vT + 1, vT + 2
        e('v_and_b32 v%d, 7, v%d\nv_bfe_u32 v%d, v%d, 4, 2\nv_lshlrev_b32 v%d, 1, v%d\nv_xor_b32 v%d, v%d, v%d' % (C, vL, RN, vL, RN, RN, C, C, RN))
        e('v_lshlrev_b32 v%d, 4, v%d\nv_lshrrev_b32 v%d, 3, v%d' % (C, C, RN, vL))
        e('v_and_b32 v%d, 4, v%d\nv_add_u32 v%d, v%d, v%d' % (RK, RN, RK, RK, RN))
        e('v_lshl_add_u32 v%d, v%d, 13, v%d\nv_lshl_add_u32 v%d, s%d, 8, v%d' % (vDB, RK, C, vDB, sW, vDB))
        e('v_lshl_add_u32 v%d, v%d, 10, v%d\nv_lshl_add_u32 v%d, s%d, 17, v%d' % (vW1, RK, C, vW1, sW, vW1))
        e('v_lshl_add_u32 v%d, v%d, 10, v%d' % (vWN, RN, C))
        e('v_and_b32 v%d, 64, v%d\nv_mad_u32_u24 v%d, v%d, 7, v%d' % (RK, C, vW2, RK, vWN))
        W1W, W2W = vP, vP + 1
        e('v_mov_b32 v%d, v%d\nv_mov_b32 v%d, v%d' % (W1W, vWN, W2W, vW2))
        e('v_lshl_add_u32 v%d, s%d, 17, v%d\nv_lshl_add_u32 v%d, s%d, 7, v%d' % (vW2, sW, vW2, vWN, sW, vWN))
        JO = sT3
        e('s_and_b32 s%d, s%d, 1' % (JO, sJ))
        lin(sT1, 7, (JO, -7))
        e('v_mul_u32_u24 v%d, 3584, v%d\nv_lshl_add_u32 v%d, s%d, 7, v%d\nv_add_u32 v%d, v%d, v%d' % (RN, RN, C, sW, C, vW3, RN, C))
        e('v_lshrrev_b32 v%d, 6, v%d\nv_cmp_eq_u32 vcc, s%d, v%d\nv_mov_b32 v%d, 0x%x' % (C, C, sT1, C, vT + 5, OOB))
        lin(sKO, 0, (sT, 16384))
        e('v_cndmask_b32 v%d, v%d, v%d, vcc' % (vW3, vW3, vT + 5))
        RS, Z = vP + 2, vP + 3
        e('v_lshrrev_b32 v%d, 2, v%d\nv_lshlrev_b32 v%d, 17, v%d' % (RS, vL, RS, RS))
        e('v_and_b32 v%d, 3, v%d\nv_lshl_or_b32 v%d, v%d, 10, v%d' % (Z, vL, RS, Z, RS))
        e('v_cmp_gt_u32 vcc, 0x80, v%d' % (vT + 3))
        lin(sT1, 0, (sTBG, 1024), (sJ, 128))
        e('v_cndmask_b32 v%d, v%d, v%d, vcc' % (RS, vT + 5, RS))
        e('v_lshrrev_b32 v%d, 9, v%d\nv_cmp_eq_u32 vcc, 1, v%d' % (Z, vT + 3, Z))
        e('v_lshlrev_b32 v%d, 2, v%d\nv_add_u32 v%d, 0x%x, v%d' % (Z, vL, Z, 0x40000 - 128, Z))
        e('v_cndmask_b32 v%d, v%d, v%d, vcc' % (RS, RS, Z))
        e('v_cmp_eq_u32 vcc, 0, v%d\nv_mov_b32 v%d, s%d\ns_add_u32 s%d, s%d, 0x%x' % (vL, vFLAG, sT1, sRET, sT1, FLAG_OFF))
        e('v_cndmask_b32 v%d, v%d, v%d, vcc' % (vFLAG, vT + 5, vFLAG))
        e('v_cmp_eq_u32 vcc, 0, v%d\nv_mov_b32 v%d, 0\ns_add_u32 s%d, s%d, 0x%x' % (vT + 3, Z, sSTO, sT1, ST_OFF))
        e('v_cndmask_b32 v%d, v%d, 0, vcc' % (vPOFF, vT + 5))
        e('v_and_b32 v%d, 15, v%d\nv_lshrrev_b32 v%d, 4, v%d' % (vT, vL, vT + 1, vL))
        e('v_xor_b32 v%d, v%d, v%d\nv_lshlrev_b32 v%d, 4, v%d\nv_lshl_or_b32 v%d, v%d, 8, v%d' % (vT + 1, vT + 1, vT, vT + 1, vT + 1, vKA, vT, vT + 1))
        for ks in range(1, 4):
            e('v_xor_b32 v%d, 0x%x, v%d' % (vKA + ks, 64 * ks, vKA))
        e('v_lshrrev_b32 v%d, 2, v%d\nv_and_b32 v%d, 7, v%d\nv_lshlrev_b32 v%d, 5, v%d' % (vT, vL, vT + 1, vT, vT + 1, vT + 1))
        e('v_lshl_or_b32 v%d, v%d, 8, v%d\nv_and_b32 v%d, 3, v%d\nv_lshl_or_b32 v%d, v%d, 3, v%d' % (vT, vT, vT + 1, vT + 1, vL, vT, vT + 1, vT))
        for db in range(4, 8):
            e('v_xor_b32 v%d, 0x%x, v%d' % (vTR + db, VRING | db << 5, vT))
        self.put(self.waddr(vTR, vT, 's%d' % sRING))
        e('v_lshrrev_b32 v%d, 4, v%d\nv_xor_b32 v%d, v%d, v%d\nv_and_b32 v%d, 2, v%d' % (vT, vL, vT, vT, vL, vT, vT))
        e('v_mov_b32 v%d, 0x3f803f80\nv_cmp_eq_u32 vcc, 0, v%d' % (vT + 1, vT))
        e('v_bfe_i32 v%d, v%d, 0, 1\nv_and_b32 v%d, 0xaaaaaaaa, v%d\nv_or_b32 v%d, 0x44444444, v%d' % (vT, vL, vT, vT, vIDX, vT))
        e('v_cndmask_b32 v%d, 0, v%d, vcc' % (vT + 1, vT + 1))
        for r in range(4):
            e('v_accvgpr_write_b32 a%d, v%d' % (aONES + r, vT + 1))
        for r in range(8):
            e('v_accvgpr_write_b32 a%d, 0' % (aL + r))
        lin(sHO, 0, (sTBG, 1 << 14), (sJ, 1 << 11))
        lin(sX1I, X1_OFF, (sTBG, 1 << 14))
        lin(sX1O, 0, (sJ, 1 << 10), (sX1I, 1))
        lin(sPO, 0, (sT, 1 << 19), (sJ, 1 << 11), (sW, 1 << 17))
        lin(sPI, 0, (sT, 1 << 19), (sJ, 1 << 16), (sW, 1 << 14))
        lin(sCF, FLAG_OFF + 0x40000, (sT, 1 << 12), (sJ, 1 << 7))
        lin(sFP, FLAG_OFF + 0x40000, (sT, 1 << 12), (sW, 256), (sJ, 4))
        lin(sXO, 0, (sTBG, 1 << 14), (sJ, 64))
        lin(sCW, 0, (sTBG, 1024))
        lin(sW3W, 0, (sTBG, 4 * 3584))
        lin(sW4W, 0, (sTBG, 1792))
        lin(sWOW, 0, (sTBG, 4096))
        e('s_lshr_b32 s%d, s%d, 1\ns_lshl_b32 s%d, s%d, 13' % (sWSH, sTBG, sWSH, sWSH))
        e('s_mov_b32 s%d, %s\ns_mov_b32 s%d, %s\ns_mov_b32 s%d, 0' % (sC0, f2u(-K2), sC0 + 1, f2u(-K2), sPASS))
        e('s_waitcnt lgkmcnt(0)')
        shift = {SW1: [(sJ, 128)], SW2: [(sJ, 64)], SK: [(sJ, 1 << 19)], SV: [(sJ, 1 << 19)], SWO: [(sJ, 1 << 19)],
                 SW3: [(sJ, 448), (JO, -64)], SW4: [(sJ, 224 * 1024)]}
        for b, _, size in bufs[2:]:
            if b in shift:
                lin(sT1, 0, *shift[b])
                e('s_add_u32 s%d, s%d, s%d\ns_addc_u32 s%d, s%d, 0\ns_sub_u32 s%d, 0x%x, s%d' % (b, b, sT1, b + 1, b + 1, b + 2, size, sT1))
            else:
                e('s_mov_b32 s%d, 0x%x' % (b + 2, size))
            e('s_mov_b32 s%d, 0x20000' % (b + 3))
        e('s_mov_b32 s%d, s%d\ns_mov_b32 s%d, s%d\ns_mov_b32 s%d, 0x200000\ns_mov_b32 s%d, 0x20000' % (SH, SWS, SH + 1, SWS + 1, SH + 2, SH + 3))
        ns = self.opt('x_setup', 0)
        setup, e.l = e.l[mark:], e.l[:mark]
        self.sprinkle(setup, xl[nx:nx + ns], start=self.opt('xs_start', 20), every=self.opt('xs_every', 25))
        self.xrest = xl[nx + ns:]
        self.early = wl[nf:] + [Job(Ins('buffer_store_dword v%d, v%d, %s, s%d offen sc1' % (Z, RS, srd(SWS), sRET), tag='reset')),
                                Job('buffer_load_dwordx4 %s, v%d, %s, s%d offen' % (D, W1W, srd(SW1), sWSH)),
                                Job('buffer_load_dwordx4 %s, v%d, %s, s%d offen' % (D, W2W, srd(SW2), sWSH))]
        self.stamp('setup')
        self.touch(0)
        self.stamp('touched')
        e('s_branch L_go\n.p2align 12\nL_go:')

    def p0(self):
        e = self.s
        e('@sec P0 layernorm')
        P = lambda b: vr('v', b, 2)
        A, X0 = vS, vS + 8
        o = ['v_lshlrev_b32 v%d, 16, v%d' % (X0 + 1, vX), 'v_mov_b32_dpp v%d, v%d quad_perm:[0,0,0,0] row_mask:0xf bank_mask:0xf' % (X0, X0 + 1)]
        for k in range(64):
            d = vACC + 2 * k
            o += ['v_lshlrev_b32 v%d, 16, v%d' % (d, vX + k), 'v_and_b32 v%d, 0xffff0000, v%d' % (d + 1, vX + k),
                  'v_pk_add_f32 %s, %s, %s op_sel_hi:[1,0] neg_lo:[0,1] neg_hi:[0,1]' % (P(d), P(d), P(X0))]
            if k == 0:
                o += ['v_pk_mul_f32 %s, %s, %s' % (P(A + 2), P(d), P(d))]
            else:
                o += ['v_pk_add_f32 %s, %s, %s' % (P(A), P(A) if k > 1 else P(vACC), P(d)), 'v_pk_fma_f32 %s, %s, %s, %s' % (P(A + 2), P(d), P(d), P(A + 2))]
        wq = []
        for k in range(6):
            wq += self.whalf('wq', k, k)
        nd = self.opt('p1_dma', 2)
        jobs = []
        while self.xrest or (wq and nd):
            jobs += self.xrest[:1] + wq[:nd if self.xrest else nd + 1]
            wq = wq[nd if self.xrest else nd + 1:]
            self.xrest = self.xrest[1:]
        self.sprinkle(o, jobs, start=self.opt('p1_start', 2), every=20 // (nd + 1) if nd else 10)
        self.stamp('x landed')
        o = ['v_add_f32 v%d, v%d, v%d' % (A, A, A + 1), 'v_add_f32 v%d, v%d, v%d' % (A + 2, A + 2, A + 3)]
        for qp in ('[1,0,3,2]', '[2,3,0,1]'):
            for r in (A, A + 2):
                o.append('v_add_f32_dpp v%d, v%d, v%d quad_perm:%s row_mask:0xf bank_mask:0xf' % (r, r, r, qp))
        M, V, R = A, A + 2, A + 4
        o += ['v_mul_f32 v%d, %s, v%d' % (M, f2u(1.0 / 512), M), 'v_mul_f32 v%d, %s, v%d' % (V, f2u(1.0 / 512), V),
              'v_fma_f32 v%d, -v%d, v%d, v%d' % (V, M, M, V), 'v_max_f32 v%d, 0, v%d' % (V, V),
              'v_add_f32 v%d, %s, v%d' % (R, f2u(1e-5), V), 'v_rsq_f32 v%d, v%d' % (R, R),
              'v_and_b32 v%d, 0xf0, v%d' % (A + 7, vACT),
              'v_mul_f32 v%d, v%d, v%d' % (A + 6, R, R), 'v_fmaak_f32 v%d, v%d, v%d, %s' % (A + 6, A + 6, V, f2u(1e-5)), 'v_rsq_f32 v%d, v%d' % (A + 6, A + 6),
              'v_mul_f32 v%d, %s, v%d' % (R, f2u(CSCALE), R), 'v_mul_f32 v%d, %s, v%d' % (A + 6, f2u(1.0 / CSCALE), A + 6),
              'v_mul_f32_e64 v%d, -v%d, v%d' % (M, M, R), 'ds_bpermute_b32 v%d, v%d, v%d' % (self.F1, A + 7, A + 6)]
        for ks in range(16):
            for k in range(4 * ks, 4 * ks + 4):
                d = P(vACC + 2 * k)
                o.append('v_pk_fma_f32 %s, %s, %s, %s op_sel_hi:[1,0,0]' % (d, d, P(R), P(M)))
            for k in range(4 * ks, 4 * ks + 4):
                o.append('v_cvt_pk_bf16_f32 v%d, v%d, v%d' % (vX + k, vACC + 2 * k, vACC + 2 * k + 1))
            o.append('ds_write_b128 v%d, %s offset:%d' % (self.XW, vr('v', vX + 4 * ks, 4), 1024 * ks))
        nw, nl = 4 * self.opt('ln_w', 4), self.opt('ln_jobs', 22)
        jobs = wq[:nw] + self.early + wq[nw:]
        self.p2_first = jobs[nl:]
        self.sprinkle(o, jobs[:nl], start=self.opt('ln_start', 0), every=self.opt('ln_every', 2 if nd else 7))
        for nb in range(4):
            e('ds_read_b64 %s, v%d offset:%d' % (vr('a', aRES + 2 * nb, 2), self.RA + (nb & 1), 8192 * (nb >> 1) + 512 * (nb & 1)))
        e('v_lshl_add_u32 v%d, s%d, 14, v%d' % (self.XW, sW, self.XS))
        e('s_barrier', need=['*lg'])
        self.stamp('P0 end')

    def kv_dma(self, which, unit, tag):
        buf, ring, so, vo = (SK, KRING, sKO, vDB) if which == 'K' else (SV, VRING, sVO, vDB + 2)
        fl = self.o.get('kvflag', 'nt_').replace('_', ' ') if self.kv_nt else ''
        m0 = 's_add_u32 m0, s%d, 0x%x' % (sW2K, ring + 8192 * (unit & 3))
        return [Job(Ins('buffer_load_dwordx4 v%d, %s, s%d offen %slds' % (vo, srd(buf), so, fl), tag=tag), m0=m0),
                Job(Ins('buffer_load_dwordx4 v%d, %s, s%d offen offset:1024 %slds' % (vo + 1, srd(buf), so, fl), tag=tag), m0=m0,
                    post=['s_add_u32 s%d, s%d, 0x2000' % (so, so), 's_and_b32 s%d, s%d, 0x7ffff' % (so, so)])]

    def p2(self):
        e = self.s
        e('@sec P2')
        piece = lambda h: self.whalf('wq', h, h) if h < 32 else self.whalf('w1', h - 32, h)
        dmas = {gi: piece(gi + 5) for gi in range(1, 31)}
        dmas[0] = self.p2_first
        p = self.gemm(32, 0, lambda gi: 'wq%d' % gi, lambda gi, b: vACC + 64 * (gi & 1) + 16 * b, lambda gi: gi < 2, lambda gi: gi >> 1,
                      lambda k, tb: (self.XS, (tb * 16 + k) * 1024), dmas)
        for ks in range(16):
            p.g[16 * (ks + 2) + 7]['ds'].append('ds_read_b128 %s, v%d offset:%d' % (vr('v', vX + 4 * ks, 4), self.XW, 1024 * ks))
        assert not p.fill(self.waddr(vP + 12, vT, '0x%x' % (WREG + 8192)) + ['v_mov_b32 v%d, %s' % (vP + 10, f2u(-K1))], 16)
        f = ('v_lshrrev_b32 v%d, 4, v%d\nv_and_b32 v%d, 15, v%d\nv_lshl_add_u32 v%d, v%d, 8, s%d\n' % (vT, vL, vT + 1, vL, vT + 2, vT, sW2K) +
             'v_bfe_u32 v%d, v%d, 8, 4\nv_xor_b32 v%d, v%d, v%d\n' % (vT + 3, vT + 2, vT + 3, vT + 3, vT + 1) +
             'v_lshl_add_u32 v%d, v%d, 4, v%d\nv_xor_b32 v%d, 64, v%d\n' % (vDB, vT + 3, vT + 2, vDB + 1, vDB) +
             'v_lshlrev_b32 v%d, 1, v%d\nv_xor_b32 v%d, v%d, v%d\n' % (vT + 3, vT, vT + 3, vT + 3, vT + 1) +
             'v_lshl_add_u32 v%d, v%d, 4, v%d\nv_xor_b32 v%d, 0x80, v%d' % (vDB + 2, vT + 3, vT + 2, vDB + 3, vDB + 2)).split('\n')
        assert not p.fill(f, 16 * 27)
        assert not p.fill(self.vaddr_restore(), 16 * 31 + 2)
        p.jobs(self.flat([Job(Ins('buffer_atomic_add v%d, v%d, %s, s%d offen sc1' % (vONE, vPOFF, srd(SDBG), sT0), need=['reset']),
                              pre=['s_lshl_b32 s%d, s%d, 3' % (sT0, sT), 's_mov_b32 s%d, s%d' % (sVO, sKO)])]), [16 * 31 + 10], lo=16 * 31 + 5)
        p.emit(self)
        self.stamp('P2 end')

    def q_p1(self):
        e = self.s
        e('@sec Q epilogue')
        if self.o.get('diag', '').startswith('xcc'):
            e('s_getreg_b32 s98, hwreg(HW_REG_XCC_ID)\ns_sub_u32 s98, s98, s%d\ns_and_b32 s98, s98, 7\ns_lshl_b32 s98, 1, s98' % sJ)
            e('v_mov_b32 v%d, s98\nbuffer_atomic_or v%d, v%d, %s, 0 offen offset:4 sc1' % (vT, vT, vPOFF, srd(SDBG)))
        e('s_barrier', need=['*lg'])
        jobs = []
        for which, u in (('K', 0), ('K', 1), ('V', 0), ('K', 2), ('V', 1)):
            jobs += self.kv_dma(which, u, 'kv-1')
        o = []
        fr = [(qb, ks) for qb in range(4) for ks in range(4)]
        for n in range(0, 16, 2):
            ts = []
            for qb, ks in fr[n:n + 2]:
                a = vACC + 32 * ks + 4 * qb
                o += self.pack(a + 16, a, a + 16)
                ts.append(a + 16)
            for op in ('v_permlane32_swap_b32', 'v_permlane16_swap_b32'):
                for t in ts:
                    o += ['%s v%d, v%d' % (op, t, t + 2), '%s v%d, v%d' % (op, t + 1, t + 3)]
            for (qb, ks), t in zip(fr[n:n + 2], ts):
                o += ['v_accvgpr_write_b32 a%d, v%d' % (aQ + 16 * qb + 4 * ks + r, t + r) for r in range(4)]
        self.sprinkle(o, jobs, every=self.opt('q_every', 2))
        self.stamp()
        e('@sec P1')
        e('s_barrier', need=['w13'])
        self.g16('v', vS, 0, vP + 12)
        for nb in range(4):
            self.put(self.gelu4(vS + 4 * nb, vX + 2 * nb, vP + 4 * (nb & 1), vP + 10, scale=self.F1))
        for p in range(2):
            e('buffer_store_dwordx4 %s, v%d, %s, s%d offen offset:%d sc1' % (vr('v', vX + 4 * p, 4), vACT, srd(SH), sHO, 1024 * p), tag='hst')
        self.stamp()

    def p3(self):
        e = self.s
        self.stamp()
        e('@sec P3')
        acc = aV
        self.put(self.waddr(vT, vT + 4, '0x%x' % (WREG + 8192)))
        self.g16('a', acc, aK + 32, vT)
        X, R, PK = vX, vX + 16, vX + 32
        P = lambda b: vr('v', b, 2)
        for k in range(8):
            e('v_accvgpr_read_b32 v%d, a%d' % (PK + k, aRES + k))
        for k in range(8):
            e('v_lshlrev_b32 v%d, 16, v%d\nv_and_b32 v%d, 0xffff0000, v%d' % (R + 2 * k, PK + k, R + 2 * k + 1, PK + k))
        e('v_mov_b32 v%d, %s' % (PK + 8, f2u(1.0 / CSCALE)))
        for k in range(16):
            e('v_accvgpr_read_b32 v%d, a%d' % (X + k, acc + k))
        for k in range(8):
            e('v_pk_fma_f32 %s, %s, %s, %s op_sel_hi:[1,0,1]' % (P(X + 2 * k), P(R + 2 * k), P(PK + 8), P(X + 2 * k)))
        for k in range(8):
            e('v_cvt_pk_bf16_f32 v%d, v%d, v%d' % (PK + k, X + 2 * k, X + 2 * k + 1))
        e('s_add_u32 s%d, s%d, 0x2000' % (sT1, sX1O))
        for p in range(2):
            e('buffer_store_dwordx4 %s, v%d, %s, s%d offen sc1' % (vr('v', PK + 4 * p, 4), vACT, srd(SWS), sT1 if p else sX1O))
        for k in range(8):
            e('v_lshlrev_b32 v%d, 16, v%d\nv_and_b32 v%d, 0xffff0000, v%d' % (X + 2 * k, PK + k, X + 2 * k + 1, PK + k))
            e('v_accvgpr_write_b32 a%d, v%d' % (aX1 + k, PK + k))
        for k in range(4):
            e('v_pk_add_f32 %s, %s, %s' % (P(R + 2 * k), P(X + 2 * k), P(X + 8 + 2 * k)))
        e('v_pk_add_f32 %s, %s, %s\nv_pk_add_f32 %s, %s, %s' % (P(R), P(R), P(R + 2), P(R + 4), P(R + 4), P(R + 6)))
        e('v_pk_add_f32 %s, %s, %s\nv_add_f32 v%d, v%d, v%d' % (P(R), P(R), P(R + 4), R + 8, R, R + 1))
        self.put(self.lanesum(R + 8, R + 10))
        e('v_mul_f32 v%d, %s, v%d' % (R + 8, f2u(1.0 / 64), R + 8))
        for k in range(8):
            e('v_pk_add_f32 %s, %s, %s op_sel_hi:[1,0] neg_lo:[0,1] neg_hi:[0,1]' % (P(X + 2 * k), P(X + 2 * k), P(R + 8)))
        for k in range(8):
            e('v_pk_fma_f32 %s, %s, %s, %s' % (P(R), P(X + 2 * k), P(X + 2 * k), P(R)) if k else 'v_pk_mul_f32 %s, %s, %s' % (P(R), P(X), P(X)))
        e('v_add_f32 v%d, v%d, v%d' % (R + 9, R, R + 1))
        e('v_lshlrev_b32 v%d, 3, v%d\nv_mov_b32 v%d, 0x%x\nv_cmp_gt_u32 vcc, 16, v%d' % (R, vL, R + 1, OOB, vL))
        self.put(self.lanesum(R + 9, R + 10))
        e('v_cndmask_b32 v%d, v%d, v%d, vcc' % (R, R + 1, R))
        e('buffer_store_dwordx2 %s, v%d, %s, s%d offen sc1' % (P(R + 8), R, srd(SWS), sSTO), tag='x1st')
        self.stamp()
        e('@sec attention 1b')

    def krd(self, u, f):
        kb, ks = f >> 2, f & 3
        return 'ds_read_b128 %s, v%d offset:%d' % (vr('a', aK + 32 * (u & 1) + 4 * f, 4), vKA + ks, KRING + 8192 * (u & 3) + 4096 * kb)

    def vrd(self, u, h):
        db, g = h >> 1, h & 1
        return 'ds_read_b64_tr_b16 %s, v%d offset:%d' % (vr('a', aV + 32 * (u & 1) + 4 * db + 2 * g, 2), vTR + db, 8192 * (u & 3) + 4096 * g)

    def rowsum(self, h):
        return 'v_smfmac_f32_16x16x64_bf16 %s, %s, %s, v%d' % (vr('a', aL + 4 * h, 4), vr('a', aONES, 4), vr('v', vP + 8 * h, 8), vIDX)

    def segment(self, seg, NS, sched, loop=None, inline=None):
        e = self.s
        NU = NS // 4
        side, chk, fill = {}, {}, {}

        def spread(jobs, n, stop, rate=3):
            jobs = list(jobs)
            while jobs:
                assert n < stop, 'side jobs do not fit'
                room = (3 if (n & 7) >= 4 or n >= NS - 8 else 1) - (n in chk) - len(side.get(n, []))
                if (n & 7) == 7:
                    room = min(room, 2 - (n in chk) - len(side.get(n, [])))
                room = min(room, rate)
                while room > 0 and jobs:
                    side.setdefault(n, []).append(jobs.pop(0))
                    room -= 1
                n += 1
        sched(spread, chk, fill)
        lab = 'L_attn%d' % seg
        if loop:
            e('s_mov_b32 s%d, %d' % (sCNT, (loop[1] - loop[0]) // 16))
        e('s_barrier', need=['kv-1', '*lg'])
        self.put([self.krd(0, f) for f in range(8)])
        carry, dead = [], 0
        for n in range(NS + 4):
            u, qb, T, r8 = n >> 2, n & 3, n >> 3, n & 7
            if inline and n in inline:
                inline[n]()
            inloop = loop and loop[0] <= n < loop[1]
            if self.opt('astamp', 0) and n % 8 == 0 and not (loop and loop[0] <= n <= loop[1]) and not (inline and n in inline):
                self.stamp('s%d_%d' % (seg, n))
            if loop and n == loop[0]:
                self.stamp('pre')
            if inloop and (n - loop[0]) % 16 == 0:
                e('@rep %s %d' % (lab, n))
            if loop and n == loop[1]:
                e('@endrep ' + lab)
                self.stamp('loop')
            p = Plan()
            if n < NS:
                for kb in range(2):
                    d = vr('v', vS + 8 * (n & 1) + 4 * kb, 4)
                    for ks in range(4):
                        p.add(mfma(d, vr('a', aK + 32 * (u & 1) + 16 * kb + 4 * ks, 4), vr('a', aQ + 16 * qb + 4 * ks, 4), '0' if ks == 0 else None))
            if n >= 4:
                for db in range(8):
                    p.add(mfma(vr('v', vACC + 16 * db + 4 * qb, 4), vr('a', aV + 32 * ((u - 1) & 1) + 4 * db, 4), vr('v', vP + 4 * qb, 4),
                               '0' if (n < 8 and seg == 0) else None))
            order = self.opt('morder', 0)
            if order and len(p.mf) == 16:
                m = p.mf
                if order == 1:
                    p.mf = m[:4] + m[8:12] + m[4:8] + m[12:]
                if order == 2:
                    p.mf = [m[k // 2 + 4 * (k % 2)] for k in range(8)] + m[8:]
                if order == 3:
                    p.mf = [m[k // 2 + 8 * (k % 2)] for k in range(16)]
            ex, cv = [], []
            if 1 <= n <= NS:
                sb, pb = vS + 8 * ((n - 1) & 1), vP + 4 * ((n - 1) & 3)
                ex = ['v_exp_f32 v%d, v%d' % (sb + r, sb + r) for r in range(8)]
                cv = ['v_cvt_pk_bf16_f32 v%d, v%d, v%d' % (pb + r, sb + 2 * r, sb + 2 * r + 1) for r in range(4)]
            ds = []
            if u + 1 < NU:
                ds += [self.krd(u + 1, 2 * qb), self.krd(u + 1, 2 * qb + 1)]
            if u < NU:
                ds += [self.vrd(u, 4 * qb + h) for h in range(4)]
            self.kv_nt = n >= self.opt('nt_from%d' % seg, 999) and n < self.opt('nt_to%d' % seg, 999)
            dm = self.kv_dma('K', 2, 'k2') if (n == 0 and seg) else []
            if r8 < 4:
                which, unit = (('K', 2 * T + 3), ('V', 2 * T + 2), ('K', 2 * T + 4), ('V', 2 * T + 3))[r8]
                if unit < NU:
                    dm += self.kv_dma(which, unit, 'kv%d' % T)
            dm = self.flat(dm + side.get(n, []))
            sm = self.rowsum(0) if (qb == 3 and n < NS) else self.rowsum(1) if (qb == 1 and n >= 5) else None
            g = p.g
            if n in fill:
                assert not carry
                carry, dead = fill[n]
            if len(p.mf) == 16:
                if r8 == 0:
                    g[0]['sc'].append('s_barrier')
                if n == 4 and seg:
                    g[0]['sc'].append(Ins('s_barrier', need=['k2']))
                if r8 == 7 and n < NS - 1:
                    g[14]['sc'].append(Ins('@need', need=['kv%d' % T if 2 * T + 2 < NU else '*lg', '*lg']))
                if inloop and (n - loop[0]) % 16 == 15:
                    g[10]['sc'].append('s_sub_u32 s%d, s%d, 1' % (sCNT, sCNT))
                    g[12]['sc'].append('s_cmp_lg_u32 s%d, 0' % sCNT)
                    g[15]['end'].append('s_cbranch_scc1 ' + lab)
                vs = [9, 13] if r8 == 7 else [5, 9, 13]
                if n in chk:
                    g[vs.pop()]['end'] += chk[n]
                assert len(dm) <= len(vs), (n, len(dm))
                used = vs[:len(dm)]
                prev, pend = p.jobs(dm, used)
                p.scalars(pend, prev + 1, 16)
                if r8 == 7:
                    dpos = (1, 1, 3, 5, 5, 7)
                else:
                    dpos = [x for x in range(1, 16, 2) if x not in used and not g[x]['end']]
                    if len(dpos) < len(ds):
                        dpos = [1] + dpos
                for k, x in enumerate(ds):
                    g[dpos[k]]['ds'].append(x)
                for k, x in enumerate(ex):
                    g[2 * k]['va'].append(x)
                for k, x in enumerate(cv):
                    g[4 * k + 3]['va'].append(x)
                if sm:
                    g[7]['end'].append(sm)
            else:
                seq = [pre + [d] + post for pre, d, post in dm]
                if n == 2:
                    seq[0] = ['s_barrier'] + seq[0]
                seq += [[x] for x in ds]
                for k, x in enumerate(seq):
                    g[k * 8 // max(8, len(seq))]['ds'] += x
                lag = 2 if n < 4 else 0
                for k in range(len(ex)):
                    g[min(k + lag, 7)]['va'].append(ex[k])
                    if k % 2 == 1:
                        g[min(k + lag + 1, 7)]['va'].append(cv[k // 2])
                if sm:
                    g[3]['end'].append(sm)
            carry = p.fill(carry)
            if carry and n + 1 >= dead:
                g[-1]['va'] += carry
                carry = []
            p.emit(self)
        self.stamp()

    def warm(self, buf, vo, so, offs):
        return [Job('buffer_load_dwordx4 %s, v%d, %s, s%d offen offset:%d' % (vr('a', aDUMMY, 4), vo, srd(buf), so, o)) for o in offs]

    def attention1(self):
        e = self.s
        e('@sec attention 1a')
        U, F, G = vX + 48, vT + 4, vT
        N1, P3 = self.opt('n1', 96), self.opt('p3', 40)
        f0 = ('v_and_b32 v%d, 3, v%d\nv_min_u32 v%d, 2, v%d\n' % (U, vL, U, U) +
              'v_add3_u32 v%d, v%d, s%d, -1\nv_med3_i32 v%d, v%d, 0, 31\nv_lshlrev_b32 v%d, 3, v%d' % (U, U, sT, U, U, vPOFF, U)).split('\n')
        f1 = ('v_bfe_u32 v%d, v%d, 1, 1\nv_lshl_add_u32 v%d, v%d, 1, -1\n' % (U, vL, U, U) +
              'v_bfe_u32 v%d, v%d, 3, 1\nv_mul_i32_i24 v%d, v%d, v%d\n' % (U + 1, vL, U, U, U + 1) +
              'v_add_u32 v%d, s%d, v%d\nv_max_i32 v%d, 0, v%d\nv_min_i32 v%d, 0x7f, v%d\n' % (U, sTBG, U, U, U, U, U) +
              'v_and_b32 v%d, 7, v%d\nv_lshl_or_b32 v%d, v%d, 3, v%d\n' % (U + 1, vL, U, U, U + 1) +
              'v_lshlrev_b32 v%d, 7, v%d\nv_add_u32 v%d, 0x%x, v%d' % (U, U, F, FLAG_OFF, U)).split('\n')
        f2 = ('v_and_b32 v%d, 15, v%d\nv_lshl_add_u32 v%d, s%d, 4, v%d\nv_and_b32 v%d, 48, v%d' % (U, vL, U, sTBG, U, U + 1, vL)).split('\n')
        for g, dlt in enumerate((-1, 1, -2, 2)):
            f2 += ['v_add_u32 v%d, %d, v%d' % (U + 2, dlt, U), 'v_and_or_b32 v%d, v%d, 15, v%d' % (U + 3, U + 2, U + 1),
                   'v_bfe_u32 v%d, v%d, 4, 8' % (U + 2, U + 2), 'v_lshl_or_b32 v%d, v%d, 10, v%d' % (U + 3, U + 2, U + 3),
                   'v_lshlrev_b32 v%d, 4, v%d' % (U + 3, U + 3), 'v_add_u32 v%d, 0x%x, v%d' % (G + g, 4096 * g, U + 3)]
        f3 = ('v_lshrrev_b32 v%d, 4, v%d\nv_and_b32 v%d, 15, v%d\nv_mul_u32_u24 v%d, 3584, v%d\n' % (vT, vL, vT + 1, vL, vT + 2, vT) +
              'v_lshl_add_u32 v%d, v%d, 4, v%d\nv_lshlrev_b32 v%d, 8, v%d\nv_lshl_or_b32 v%d, v%d, 3, v%d\n' % (vT + 3, vT + 1, vT + 2, vT, vT, vT, vT + 1, vT) +
              'v_lshl_add_u32 v%d, s%d, 10, v%d\nv_add_u32 v%d, 0x%x, v%d\n' % (vT, sTBG, vT, vT + 4, ST_OFF, vT) +
              'v_and_b32 v%d, 7, v%d\nv_lshl_or_b32 v%d, s%d, 3, v%d\n' % (vT, vL, vT, sTBG, vT) +
              'v_lshlrev_b32 v%d, 7, v%d\nv_add_u32 v%d, 0x%x, v%d' % (vT, vT, vPOFF, FLAG_OFF + 131072, vT)).split('\n')
        A = vS
        f4 = ['v_accvgpr_read_b32 v%d, a%d' % (A + r, aSTAT + r) for r in range(4)]
        f4 += ['v_add_f32 v%d, v%d, v%d' % (A + 4, A, A + 2)] + self.lanesum(A + 4, A + 8)
        f4 += ['v_mul_f32 v%d, 0x3e000000, v%d' % (A + 4, A + 4), 'v_sub_f32 v%d, v%d, v%d' % (A, A, A + 4), 'v_sub_f32 v%d, v%d, v%d' % (A + 2, A + 2, A + 4),
               'v_mul_f32 v%d, v%d, v%d' % (A, A, A), 'v_fmac_f32 v%d, v%d, v%d' % (A, A + 2, A + 2), 'v_add_f32 v%d, v%d, v%d' % (A + 1, A + 1, A + 3),
               'v_fmac_f32 v%d, 0x42800000, v%d' % (A + 1, A)] + self.lanesum(A + 1, A + 8)
        f4 += ['v_mov_b32 v%d, %s' % (A + 6, f2u(1e-5)), 'v_fmac_f32 v%d, %s, v%d' % (A + 6, f2u(1.0 / 512), A + 1), 'v_rsq_f32 v%d, v%d' % (A + 6, A + 6),
               'v_lshl_add_u32 v%d, s%d, 14, v%d' % (vT + 3, sW, vACT), 'v_mul_f32_e64 v%d, -v%d, v%d' % (A + 4, A + 4, A + 6)]
        f4 += self.waddr(vTR, vT, 's%d' % sRING)
        self.put(f0)

        def sched(spread, chk, fill):
            c0, c1, c2 = 10, P3 - 15, N1 - 25
            chk[c0] = self.poll_check(SDBG, 8) + [Ins('v_mov_b32 v%d, v%d' % (vPOFF, F))]
            chk[c1] = self.poll_check(SWS, 1)
            chk[c2] = self.poll_check(SWS, 1)
            fill[4], fill[10], fill[P3], fill[N1 + 1] = (f1, 10), (f2, c1 + 1), (f3, P3 + 4), (f4, N1 + 4)
            spread([self.flag_store(0, ['hst']), self.poll_load(SDBG)], 4, 6, 1)
            spread([self.poll_load(SWS)], c1 - 5, c1 - 4)
            w2 = []
            for k in range(4):
                w2 += self.whalf('w2', k, 2 + k)
            spread(w2, 4, P3 - 16, 2)
            spread([Job('buffer_load_dwordx4 %s, v%d, %s, 0 offen offset:%d sc1' % (vr('v', vX + 4 * k, 4), G + (k >> 2), srd(SH), 1024 * (k & 3)))
                    for k in range(16)], c1 + 1, P3 - 2, 2)
            spread([self.flag_store(1, ['x1st'])], P3 + 4, P3 + 5)
            spread(self.warm(SW3, vT + 3, sW3W, (0, 256)) + self.warm(SW4, vACT, sW4W, (0, 768)) + self.warm(SCODE, vACT, sCW, (0,)), P3 + 5, P3 + 8, 2)
            spread([self.poll_load(SWS)], c2 - 5, c2 - 4)
            spread([Job('buffer_load_dwordx2 %s, v%d, %s, 0 offen offset:%d sc1' % (vr('a', aSTAT + 2 * k, 2), vT + 4, srd(SWS), 128 * k)) for k in range(2)]
                   + self.gather('v', vX, sX1I, 0, 'sc1 nt'), c2 + 1, N1 - 5, 1)
            w3 = []
            for k in range(6):
                w3 += self.whalf('w3', k, k)
            spread(w3, N1 - 20, N1)
        self.segment(0, N1, sched, inline={P3: self.p3})

    def h2a(self, tb, slot):
        return 16384 + (tb & 1) * 8192 + (tb >> 1) * 32768 + slot * 1024

    def mlp(self):
        e = self.s
        P = lambda b: vr('v', b, 2)
        e('@sec LN x1')
        e('s_barrier', need=['*lg'])
        for ks in range(16):
            t = vP + 8 * (ks & 1)
            for k in range(4):
                e('v_lshlrev_b32 v%d, 16, v%d\nv_and_b32 v%d, 0xffff0000, v%d' % (t + 2 * k, vX + 4 * ks + k, t + 2 * k + 1, vX + 4 * ks + k))
            for k in range(4):
                e('v_pk_fma_f32 %s, %s, %s, %s op_sel_hi:[1,0,0]' % (P(t + 2 * k), P(t + 2 * k), P(vS + 6), P(vS + 4)))
            for k in range(4):
                e('v_cvt_pk_bf16_f32 v%d, v%d, v%d' % (vX + 4 * ks + k, t + 2 * k, t + 2 * k + 1))
            e('ds_write_b128 v%d, %s offset:%d' % (vT + 3, vr('v', vX + 4 * ks, 4), 1024 * ks))
        e('s_barrier', need=['*lg'])
        self.stamp()
        e('@sec P5')
        piece = lambda h: self.whalf('w3', h, h) if h < 16 else self.whalf('w4', h - 16, h)
        p = self.gemm(16, 0, lambda gi: 'w3%d' % gi, lambda gi, b: vX + 16 * b, lambda gi: gi == 0, lambda gi: gi,
                      lambda k, tb: (vACT, (tb * 16 + k) * 1024), {gi: piece(gi + 5) for gi in range(1, 16)})
        HW, A7, KC = vT, vT + 1, vT + 2
        f = ('v_lshl_add_u32 v%d, s%d, 11, v%d\nv_and_b32 v%d, s%d, v%d\nv_lshl_add_u32 v%d, v%d, 10, v%d\n' % (HW, sW, vACT, A7, sJ, vONE, A7, A7, vACT) +
             'v_mov_b32 v%d, %s\n' % (KC, f2u(-K1)) +
             'v_lshlrev_b32 v%d, 7, v%d\nv_mov_b32 v%d, 0x%x\nv_cmp_gt_u32 vcc, 2, v%d\n' % (vS, vL, vS + 1, OOB, vL) +
             'v_and_b32 v%d, 7, v%d\nv_lshl_add_u32 v%d, v%d, 2, s%d\nv_cndmask_b32 v%d, v%d, v%d, vcc\n' % (vS + 2, vL, vPOFF, vS + 2, sCF, vFLAG, vS + 1, vS) +
             'v_and_b32 v%d, 15, v%d\nv_lshlrev_b32 v%d, 10, v%d\n' % (vS, vL, vS, vS) +
             'v_lshrrev_b32 v%d, 4, v%d\nv_lshl_or_b32 v%d, v%d, 3, v%d' % (vS + 1, vL, vW1, vS + 1, vS)).split('\n')
        assert not p.fill(f)
        p.emit(self)
        self.stamp()
        e('@sec gelu')
        e('s_barrier')
        o, n = [], 0
        for pp in range(2):
            for tb in range(4):
                d = vS + 4 * (n % 4)
                for g in range(2):
                    o += self.gelu4(vX + 16 * (2 * pp + g) + 4 * tb, d + 2 * g, vP + 4 * g, KC)
                n += 1
                o.append('ds_write_b128 v%d, %s offset:%d' % (HW, vr('v', d, 4), self.h2a(tb, pp)))
        jobs = piece(21)
        for which, u in (('K', 0), ('K', 1), ('V', 0), ('V', 1)):
            jobs += self.kv_dma(which, u, 'kv-1')
        self.sprinkle(o, jobs, start=self.opt('gelu_start', 41), every=self.opt('gelu_every', 20))
        self.touch(1)
        e('s_barrier', need=['*lg'])
        self.stamp()
        e('@sec P7')
        accB = (vS, vP, vX, vX + 32)
        p = self.gemm(14, 16, lambda gi: 'w4%d' % gi, lambda gi, b: accB[b] if gi >= 7 else vX + 16 * b, lambda gi: gi % 7 == 0, lambda gi: gi % 7,
                      lambda k, tb: (A7, self.h2a(tb, k)), {gi: piece(16 + gi + 5) for gi in range(1, 9)})
        for pp, (lo, hi) in enumerate(((16 * 6 + 10, 16 * 7 + 8), (16 * 7 + 3, 16 * 7 + 12))):
            pk = []
            for tb in range(4):
                a = vX + 32 * pp + 4 * tb
                pk += self.pack(a + 16, a, a + 16)
            p.g[hi - 1]['va'] += p.fill(pk, lo, hi)
        pk = self.vaddr_restore()
        for tb in range(4):
            pk += self.pack(vP + 4 * tb, vS + 4 * tb, vP + 4 * tb)
        rest = p.fill(pk[:4], 16 * 13 + 2) + p.fill(pk[4:], 16 * 13 + 9)
        p.emit(self)
        self.put(rest)
        for tb in range(4):
            self.put(self.pack(vX + 32 + 4 * tb, vX + 4 * tb, vX + 32 + 4 * tb))
        for r in range(0, 16, 2):
            e('v_pk_mov_b32 %s, %s, %s op_sel:[0,1]' % (P(vX + r), P(vP + r), P(vP + r)))
        self.yfrag = {(0, 0): vX + 16, (0, 1): vX + 48, (1, 0): vX, (1, 1): vX + 32}
        self.stamp()

    def part_flag(self, word, need):
        return Job(Ins('buffer_store_dword v%d, v%d, %s, s%d offen offset:%d sc1' % (vONE, vFLAG, srd(SWS), sFP, 4 * word), need=need))

    def attention2(self):
        e = self.s
        e('@sec attention 2a')
        N2 = 256 - self.opt('n1', 96)
        H, T = self.opt('head2', 32), N2 - self.opt('tail2', 32)

        def sched(spread, chk, fill):
            chk[T + 5] = self.poll_check(SWS, 1) + [Ins('v_add_u32 v%d, 32, v%d' % (vPOFF, vPOFF))]
            spread([self.part_store(self.yfrag[h, pp] + 4 * tb, YP_OFF + 65536 * pp + 16384 * tb + 1024 * h, 'yst')
                    for h in range(2) for pp in range(2) for tb in range(4)], 4, H - 8, 1)
            spread([self.part_flag(0, ['yst'])], H - 4, H - 3)
            spread(self.warm(SWO, vACT, sWOW, (0, 1024, 2048, 3072)) + self.warm(SCODE, vACT, sCW, (0,)), H - 3, H, 2)
            spread([self.poll_load(SWS)], T, T + 1)
            spread([Job('buffer_load_dwordx2 %s, v%d, %s, s%d offen offset:%d' % (vr('a', aRES + 2 * nb, 2), vW1, srd(SX), sXO, 512 * (nb >> 1) + 32 * (nb & 1)))
                    for nb in range(4)], T + 4, T + 8, 2)
            spread(self.gather('v', vX, sPI, YP_OFF, 'sc1 nt'), T + 6, N2 - 6, 1)
            wo = []
            for k in range(6):
                wo += self.whalf('wo', k, k)
            spread(wo, N2 - 12, N2)
        self.segment(1, N2, sched, loop=(H, T))
        self.o_epilogue()

    def o_epilogue(self):
        e = self.s
        e('@sec O epilogue')
        e('L_oepi:')
        for r in range(8):
            e('v_accvgpr_read_b32 v%d, a%d' % (vS + r, aL + r))
        for qb in range(4):
            e('v_add_f32 v%d, v%d, v%d' % (vS + 2 * qb, vS + 2 * qb, vS + 2 * qb + 1))
        B = vS + 8
        for qb in range(4):
            e('v_subrev_u32 v%d, 0x2b800000, v%d' % (B + qb, vS + 2 * qb))
        e('v_max3_u32 v%d, v%d, v%d, v%d\nv_max_u32 v%d, v%d, v%d' % (B, B, B + 1, B + 2, B, B, B + 3))
        e('v_cmp_lt_u32 vcc, 0x28000000, v%d' % B)
        e('v_and_b32 v%d, 3, v%d\nv_lshlrev_b32 v%d, 12, v%d\nv_lshl_add_u32 v%d, s%d, 2, v%d' % (B + 1, vL, B + 1, B + 1, B + 1, sW, B + 1))
        e('s_or_b32 s%d, vcc_lo, vcc_hi' % sT0)
        e('v_mov_b32 v%d, s%d' % (B, sT0))
        e('ds_write_b32 v%d, v%d' % (B + 1, B))
        for qb in range(4):
            e('v_rcp_f32 v%d, v%d' % (vS + 2 * qb, vS + 2 * qb))
        e('v_lshl_add_u32 v%d, s%d, 12, v%d' % (vP, sW, vACT))
        e('s_lshl_b32 s%d, s%d, 12\nv_mov_b32 v%d, s%d' % (sT0, sW, B + 1, sT0))
        e('s_barrier', need=['*lg'])
        e('ds_read_b128 %s, v%d' % (vr('v', B + 4, 4), B + 1))
        for qb in range(4):
            for ks in range(4):
                a = vACC + 32 * ks + 4 * qb
                for h in (0, 2, 16, 18):
                    e('v_pk_mul_f32 %s, %s, %s op_sel_hi:[1,0]' % (vr('v', a + h, 2), vr('v', a + h, 2), vr('v', vS + 2 * qb, 2)))
                self.put(self.pack(a + 16, a, a + 16))
                if qb == 0 and ks < 2:
                    if ks == 0:
                        continue
                    e('v_or3_b32 v%d, v%d, v%d, v%d\nv_or_b32 v%d, v%d, v%d' % (B, B + 4, B + 5, B + 6, B, B, B + 7))
                    e('v_cmp_ne_u32 vcc, 0, v%d\ns_cbranch_vccnz L_slow\nL_ofine:' % B)
                    e('ds_write_b128 v%d, %s' % (vP, vr('v', vACC + 16, 4)))
                e('ds_write_b128 v%d, %s offset:%d' % (vP, vr('v', a + 16, 4), (16 * qb + ks) * 1024))
        self.put(self.waddr(vTR, vT, 's%d' % sRING))
        e('s_barrier', need=['*lg'])
        self.stamp()
        self.slow_path()

    def slow_path(self):
        main, self.s = self.s, Stream()
        e = self.s
        M = vT
        e('L_slow:\ns_cmp_lg_u32 s%d, 0\ns_cbranch_scc1 L_ofine\ns_mov_b32 s%d, 1' % (sPASS, sPASS))
        e('s_waitcnt vmcnt(0) lgkmcnt(0)')
        for ps in range(2):
            e('s_mov_b32 s%d, 0\ns_mov_b32 s%d, 0\ns_mov_b32 s%d, 64' % (sKO, sVO, sCNT))
            if ps == 0:
                for qb in range(4):
                    e('v_mov_b32 v%d, 0xff800000' % (M + qb))
            else:
                for qb in range(4):
                    for op in ('v_permlane32_swap_b32', 'v_permlane16_swap_b32'):
                        e('v_mov_b32 v%d, v%d\n%s v%d, v%d\nv_max_f32 v%d, v%d, v%d' % (vS, M + qb, op, vS, M + qb, M + qb, M + qb, vS))
                for r in range(128):
                    e('v_mov_b32 v%d, 0' % (vACC + r))
                for r in range(8):
                    e('v_accvgpr_write_b32 a%d, 0' % (aL + r))
            e('L_slow%d:\ns_barrier' % ps)
            self.emit_jobs(self.kv_dma('K', 0, 'k') + (self.kv_dma('V', 0, 'k') if ps else []))
            e('s_barrier', need=['k'])
            self.put([self.krd(0, f) for f in range(8)] + ([self.vrd(0, h) for h in range(16)] if ps else []))
            e('s_waitcnt lgkmcnt(0)')
            for qb in range(4):
                for kb in range(2):
                    for ks in range(4):
                        e(mfma(vr('v', vS + 4 * kb, 4), vr('a', aK + 16 * kb + 4 * ks, 4), vr('a', aQ + 16 * qb + 4 * ks, 4), '0' if ks == 0 else None))
                if ps == 0:
                    for r in range(0, 8, 2):
                        e('v_max3_f32 v%d, v%d, v%d, v%d' % (M + qb, M + qb, vS + r, vS + r + 1))
                    continue
                for r in range(8):
                    e('v_sub_f32 v%d, v%d, v%d' % (vS + r, vS + r, M + qb))
                for r in range(8):
                    e('v_exp_f32 v%d, v%d' % (vS + r, vS + r))
                for r in range(4):
                    e('v_cvt_pk_bf16_f32 v%d, v%d, v%d' % (vP + 4 * qb + r, vS + 2 * r, vS + 2 * r + 1))
                for db in range(8):
                    e(mfma(vr('v', vACC + 16 * db + 4 * qb, 4), vr('a', aV + 4 * db, 4), vr('v', vP + 4 * qb, 4)))
                if qb & 1:
                    e(self.rowsum(qb >> 1))
            e('s_nop 7\ns_sub_u32 s%d, s%d, 1\ns_cmp_lg_u32 s%d, 0\ns_cbranch_scc1 L_slow%d' % (sCNT, sCNT, sCNT, ps))
        e('s_barrier\ns_branch L_oepi')
        e.insert_waits()
        e.pad_hazards()
        self.tail.append(e.text())
        self.s = main

    SEL = vT

    def reduce(self, acc, f, regs, ks, first=False):
        return [mfma(vr('v', acc + 4 * (2 * (k & 1) + g), 4), vr('v', self.SEL + 2 - 2 * g, 4), vr(f, regs + 4 * k, 4), '0' if (first and k < 2) else None)
                for k in ks for g in range(2)]

    def collect(self, acc, regs, base):
        e, L = self.s, 'L_c'
        NEW, N = sT0, sT1
        e('s_mov_b32 s%d, 0x80000' % sT3)
        e('%s_top:\ns_cmp_eq_u32 s%d, 0xff\ns_cbranch_scc1 %s_end' % (L, sDONE, L))
        e('%s_poll:' % L)
        e.add(self.poll_load(SWS).ins)
        e('s_waitcnt vmcnt(0)\nv_cmp_eq_u32 vcc, 1, v%d\ns_and_b32 s%d, vcc_lo, 0xff' % (vPRES, NEW))
        e('s_andn2_b32 s%d, s%d, s%d\ns_cbranch_scc1 %s_go' % (NEW, NEW, sDONE, L))
        e('s_sub_u32 s%d, s%d, 1\ns_cbranch_scc0 %s_poll\ns_branch %s_end' % (sT3, sT3, L, L))
        e('%s_go:\ns_or_b32 s%d, s%d, s%d\ns_bcnt1_i32_b32 s%d, s%d' % (L, sDONE, sDONE, NEW, N, NEW))
        for n in range(1, 8):
            e('s_cmp_eq_u32 s%d, %d\ns_cbranch_scc1 %s_ld%d' % (N, n, L, 8 - n))
        for q in range(8):
            e('%s_ld%d:\ns_ff1_i32_b32 s%d, s%d\ns_bitset0_b32 s%d, s%d' % (L, q, sT2, NEW, NEW, sT2))
            e('s_lshl_b32 s%d, s%d, 11\ns_add_u32 s%d, s%d, s%d' % (sT2, sT2, sT2, sT2, base))
            for p in range(2):
                e('buffer_load_dwordx4 %s, v%d, %s, s%d offen offset:%d sc1' % (vr('a', regs + 8 * q + 4 * p, 4), vACT, srd(SWS), sT2, 1024 * p))
        for n in range(1, 8):
            e('s_cmp_eq_u32 s%d, %d\ns_cbranch_scc1 %s_mm%d' % (N, n, L, 8 - n))
        for q in range(8):
            e('%s_mm%d:' % (L, q))
            self.put(self.reduce(acc, 'a', regs, (2 * q, 2 * q + 1)))
        e('s_branch %s_top\n%s_end:' % (L, L))

    def p6_final(self):
        e = self.s
        P = lambda b: vr('v', b, 2)
        e('@sec P6')
        NE = self.opt('p6_early', 6)
        od = list(range(32 - 2 * NE)) + list(range(32 - 2 * NE, 32, 2)) + list(range(33 - 2 * NE, 32, 2))
        p = self.gemm(32, 0, lambda gi: 'wo%d' % od[gi], lambda gi, b: vACC + 64 * (od[gi] & 1) + 16 * b, lambda gi: gi < 2, lambda gi: od[gi] >> 1,
                      lambda k, tb: (vACT, (tb * 16 + k) * 1024), {gi: self.whalf('wo', od[gi + 5], gi + 5) for gi in range(1, 27)})
        pk, st = [[], []], [[], []]
        for h in range(2):
            for pp in range(2):
                for tb in range(4):
                    a = vACC + 64 * h + 32 * pp + 4 * tb
                    pk[h].append(self.pack(a + 16, a, a + 16))
                    st[h].append(self.part_store(a + 16, SP_OFF + 65536 * pp + 16384 * tb + 1024 * h, 'sst'))
        if NE:
            pos = [16 * g + o for g in range(max(27, 33 - NE), 32) for o in (2, 10)][:8]
            for k, q in enumerate(pos):
                p.jobs(self.flat([st[0][k]]), [q], lo=q - 2)
            for k, q in enumerate(pos):
                assert not p.fill(pk[0][k], 16 * (32 - NE) + 2, q)
            pk[0], st[0] = pk[0][len(pos):], st[0][len(pos):]
        SEL, ZZ, XF, SS, E, M = self.SEL, vS, vP, vX, vX + 16, vX + 32
        t = vKA
        f = ('v_lshrrev_b32 v%d, 4, v%d\nv_bfe_u32 v%d, v%d, 2, 2\nv_and_b32 v%d, 1, v%d\nv_lshlrev_b32 v%d, 4, v%d\n' % (t + 1, vL, t, vL, t + 2, vL, t + 2, t + 2) +
             'v_mov_b32 v%d, 0x3f80\nv_lshlrev_b32 v%d, v%d, v%d\n' % (t + 3, t + 2, t + 2, t + 3) +
             'v_cmp_eq_u32 vcc, v%d, v%d\nv_mov_b32 v%d, 0\nv_mov_b32 v%d, 0\n' % (t, t + 1, SEL, SEL + 1) +
             'v_cndmask_b32 v%d, 0, v%d, vcc\nv_and_b32 v%d, 2, v%d\nv_cmp_eq_u32 vcc, 0, v%d\n' % (t + 2, t + 2, t, vL, t) +
             'v_mov_b32 v%d, 0\nv_mov_b32 v%d, 0\nv_cndmask_b32 v%d, 0, v%d, vcc\n' % (SEL + 4, SEL + 5, SEL + 2, t + 2) +
             'v_sub_u32 v%d, v%d, v%d' % (SEL + 3, t + 2, SEL + 2)).split('\n')
        assert not p.fill(f, 0, 32)
        red = self.reduce(XF, 'a', aRES, (0, 1), True) + self.reduce(ZZ, 'a', aX1, (0, 1), True) + self.reduce(ZZ, 'v', vX, range(16))
        for k, m in enumerate(red):
            p.g[16 * (4 + k // 4) + 4 * (k % 4) + 1]['end'].append(m)
        gate = []
        for r in range(16):
            gate += ['v_mul_f32 v%d, %s, v%d' % (E + r, f2u(-math.log2(math.e)), ZZ + r)]
        for op in ('v_exp_f32 v%d, v%d', 'v_add_f32 v%d, 1.0, v%d', 'v_rcp_f32 v%d, v%d'):
            gate += [op % (E + r, E + r) for r in range(16)]
        gate += ['v_mul_f32 v%d, v%d, v%d' % (ZZ + r, ZZ + r, E + r) for r in range(16)]
        g0 = self.opt('spoll', 0)
        if g0:
            p.jobs(self.flat([self.poll_load(SWS)]), [16 * g0 + 7])
            p.g[16 * (g0 + 2) + 7]['end'] += ['v_cmp_eq_u32 vcc, 1, v%d' % vPRES, 's_and_b32 s%d, vcc_lo, 0xff' % sDONE, 's_not_b32 s%d, s%d' % (sT0, sDONE)]
            pos = [16 * g + o for g in range(g0 + 3, 32) for o in ((6, 7, 14, 15) if g >= 27 else (7, 15))][:16]
            assert len(pos) == 16
            jobs = self.gather('a', 64, sPI, SP_OFF, 'sc1')
            for k, jb in enumerate(jobs):
                jb.ins = Ins(jb.ins.text.replace(' v%d,' % vACT, ' v%d,' % (M + k // 2)))
                p.jobs(self.flat([jb]), [pos[k]], lo=pos[k] - 2)
            for q in range(8):
                assert not p.fill(['v_bfe_u32 v%d, s%d, %d, 1' % (M + q, sT0, q), 'v_lshl_or_b32 v%d, v%d, 30, v%d' % (M + q, M + q, vACT)],
                                  16 * (g0 + 2) + 8, pos[2 * q])
        rest = p.fill(gate, 16 * 14 + 4)
        assert not rest
        p.scalars(['s_add_u32 s%d, s%d, 0x%x' % (sKO, sPI, SP_OFF)] + ([] if g0 else ['s_mov_b32 s%d, 0' % sDONE]), 0, 16)
        p.emit(self)
        self.stamp('P6')
        e('@sec s epilogue')
        self.sprinkle(sum(pk[0] + pk[1], []), st[0] + st[1], start=4, every=4)
        self.stamp('issued')
        if g0:
            self.put(self.reduce(SS, 'a', 64, range(16), True))
        else:
            self.put(['v_mov_b32 v%d, 0' % (SS + r) for r in range(16)])
        self.emit_jobs([self.part_flag(8, ['sst'])])
        self.stamp('acked')
        self.collect(SS, 64, sKO)
        self.stamp('collected')
        for nb in range(4):
            for r in range(4 * nb, 4 * nb + 4, 2):
                e('v_pk_fma_f32 %s, %s, %s, %s' % (P(XF + r), P(SS + r), P(ZZ + r), P(XF + r)))
            for k in range(2 * nb, 2 * nb + 2):
                e('v_cvt_pk_bf16_f32 v%d, v%d, v%d' % (E + k, XF + 2 * k, XF + 2 * k + 1))
            e('buffer_store_dwordx2 %s, v%d, %s, s%d offen offset:%d' % (P(E + 2 * nb), vW1, srd(SOUT), sXO, 512 * (nb >> 1) + 32 * (nb & 1)))
        if 'diag' in self.o:
            self.stamp('end')
            if self.o['diag'].startswith('xcc'):
                e('v_mov_b32 v%d, 4\nbuffer_load_dword v%d, v%d, %s, 0 offen sc1\ns_waitcnt vmcnt(0)' % (vT, vT + 1, vT, srd(SDBG)))
                e('v_readfirstlane_b32 s100, v%d\ns_nop 3\ns_bcnt1_i32_b32 s100, s100\ns_mul_i32 s100, s100, 1000\ns_mov_b32 s98, 1000' % (vT + 1))
            e('s_sub_u32 s100, s100, s98\ns_mul_i32 s100, s100, %s\ns_min_u32 s100, s100, 100000' % self.o['diag'].split(':')[2])
            e('s_memrealtime s[98:99]\ns_waitcnt lgkmcnt(0)\ns_add_u32 s100, s100, s98')
            e('L_diag:\ns_memrealtime s[98:99]\ns_waitcnt lgkmcnt(0)\ns_sub_u32 s98, s98, s100\ns_cmp_lt_i32 s98, 0\ns_cbranch_scc1 L_diag')
        if self.prof:
            e('s_waitcnt vmcnt(0)')
            self.stamp('end')
            e('v_accvgpr_read_b32 v%d, a%d\nv_accvgpr_read_b32 v%d, a%d' % (vT, aPROF, vT + 1, aPROF + 1))
            e('s_lshl_b32 s%d, s2, 11\ns_lshl_b32 s%d, s%d, 9\ns_add_u32 s%d, s%d, s%d' % (sT0, sT1, sW, sT0, sT0, sT1))
            e('s_add_u32 s%d, s%d, 0x%x\nv_lshlrev_b32 v%d, 3, v%d' % (sT0, sT0, PROF_OFF, vT + 2, vL))
            e('buffer_store_dwordx2 %s, v%d, %s, s%d offen' % (vr('v', vT, 2), vT + 2, srd(SWS), sT0))

    def build(self, verbose=False):
        for phase in (self.prologue, self.p0, self.p2, self.q_p1, self.attention1, self.mlp, self.attention2, self.p6_final):
            phase()
        s = self.s
        s.insert_waits()
        pads = s.pad_hazards()
        est = s.estimate()
        s.fold()
        fixes = s.align(self.opt('touch', 1))
        if self.opt('touch', 1):
            n, cut = len(s.pages), self.opt('touch_cut', 15)
            assert s.marks['touch1'] < cut + 1 or cut >= n
            for r, (lo, hi) in enumerate(((0, min(cut, n)), (min(cut, n), n))):
                for k in range(lo, hi):
                    s.pages[k].text = 's_cbranch_execz ' + ('L_pg%d' % (k + 4) if k + 4 < hi else 'L_touched%d' % r)
                for x in s.l:
                    for w in range(4):
                        if x.text.endswith(' L_touch%d_%d' % (r, w)):
                            x.text = x.text.replace('L_touch%d_%d' % (r, w), 'L_pg%d' % (lo + w) if lo + w < hi else 'L_touched%d' % r)
        if verbose:
            print('alignment fixes:', fixes, 'pages:', len(s.pages), s.marks)
        if verbose:
            print('hazard pads:', pads)
            for name, cyc, nm in est:
                print('  %-18s est %6d cycles, %5d mfma (%6d)' % (name, cyc, nm, nm * 16))
            print('  total', sum(c for _, c, _ in est))
        ref = open('cdna_kernels/%s.s.ref' % NAME).read().split('\n')
        head = [l for l in ref if l.startswith(';') and '@launch' not in l]
        o = head + ['; @launch grid=(256,1,1) block=(256,1,1) lds=163840',
                    '.amdgcn_target "amdgcn-amd-amdhsa--gfx950"', '.text', '.globl %s_kernel' % NAME, '.p2align 8',
                    '.type %s_kernel,@function' % NAME, '%s_kernel:' % NAME]
        o.append(s.text())
        o.append('L_end:\n    s_endpgm')
        o += self.tail
        o.append('L_code_end:\n    s_endpgm')
        o.append('''.section .rodata,"a"
.p2align 6
.amdhsa_kernel %s_kernel
  .amdhsa_next_free_vgpr 512
  .amdhsa_next_free_sgpr 102
  .amdhsa_accum_offset 256
  .amdhsa_group_segment_fixed_size 0
  .amdhsa_kernarg_size 104
  .amdhsa_user_sgpr_count 2
  .amdhsa_user_sgpr_kernarg_segment_ptr 1
  .amdhsa_system_sgpr_workgroup_id_x 1
  .amdhsa_float_denorm_mode_32 3
.end_amdhsa_kernel''' % NAME)
        return '\n'.join(o) + '\n'


if __name__ == '__main__':
    out = sys.argv[1] if len(sys.argv) > 1 else 'k.s'
    opts = dict(a.split('=') for a in sys.argv[2:])
    open(out, 'w').write(Gen(False, opts).build(True))
    open(out.replace('.s', '_prof.s'), 'w').write(Gen(True, opts).build())
    open(out.replace('.s', '_lite.s'), 'w').write(Gen(2, opts).build())
```

```python
import math
import struct
import sys

sys.path.insert(0, 'work')
from asmgen import Ins, Stream, vr

NAME = 'recurrent_scan__gqa_block_cached__mixer_s_mlp__prompt'


def f2u(x):
    return '0x%08x' % struct.unpack('<I', struct.pack('<f', x))[0]


H_OFF = 0
X1_OFF = 0x200000
FLAG_OFF = 0x400000
ST_OFF = 0x600000
SP_OFF = 0x1000000
YP_OFF = 0x2000000
PROF_OFF = 0x8000000
OOB = 0x40000000

KRING, VRING = 0, 32768
WREG = 65536
WWAVE = 24576

SX, SK, SV, SWQ, SWO, SW1, SW2, SW3, SW4, SOUT, SDBG, SWS, SH, SCODE = range(4, 60, 4)
sT, sJ, sW, sTBG, sRING, sW2K = 60, 61, 62, 63, 64, 65
sO, sDONE, sKO, sVO, sCNT, sRET = 66, 67, 68, 69, 70, 71
sT0, sT1, sT2, sT3 = 72, 73, 74, 75
sC0 = 76
sPASS, sWSH = 78, 79
sST = 80
sHO, sX1O, sX1I, sSTO, sPO, sPI, sCF, sFP, sXO, sCW, sW3W, sW4W, sWOW = range(84, 97)

vL = 0
vTR = 1
vKA = 9
vACT = 13
vWN, vW3, vW2, vW1 = 14, 15, 16, 17
vDB = 18
vFLAG, vONE, vPOFF, vPRES = 22, 23, 24, 25
vT = 26
vIDX = 31
vS, vP = 32, 48
vX = 64
vACC = 128
aK, aV, aONES, aL, aX1, aQ = 0, 64, 128, 132, 140, 192
aPROF, aDUMMY, aSTAT, aRES = 150, 152, 156, 160

CSCALE = math.log2(math.e) / math.sqrt(128.0)
K1 = 2 * 0.7978845608028654 * math.log2(math.e)
K2 = K1 * 0.044715


def srd(n):
    return 's[%d:%d]' % (n, n + 3)


def mfma(d, a, b, c=None):
    return 'v_mfma_f32_16x16x32_bf16 %s, %s, %s, %s' % (d, a, b, d if c is None else c)


class Job:
    def __init__(self, ins, pre=(), m0=None, post=()):
        self.ins = ins if isinstance(ins, Ins) else Ins(ins)
        self.pre, self.m0, self.post = list(pre), m0, list(post)


class Plan:
    def __init__(self):
        self.mf, self.g = [], []

    def add(self, m):
        self.mf.append(m)
        self.g.append(dict(sc=[], ds=[], vm=[], va=[], end=[]))
        return len(self.mf) - 1

    def cap(self, j):
        g = self.g[j]
        if g['vm'] or g['end']:
            return 0
        c = 1 if self.mf[j].startswith('v_smfmac') else 2
        return c - len(g['ds']) - sum(vcost(x) for x in g['va']) - max(0, len(g['sc']) - 1)

    def jobs(self, groups, pos, lo=0, avoid=()):
        prev, pend = lo - 1, []
        for (pre, d, post), p in zip(groups, pos):
            self.scalars(pend + pre, prev + 1, p, avoid, late=True)
            assert not self.g[p]['vm'], 'gap %d already holds a memory instruction' % p
            self.g[p]['vm'].append(d)
            prev, pend = p, post
        return prev, pend

    def scalars(self, sc, a, b, avoid=(), late=False):
        if not sc:
            return
        c = [j for j in range(a, b) if not self.g[j]['vm'] and not self.g[j]['sc'] and j not in avoid]
        if len(c) < len(sc):
            c = [j for j in range(a, b) if not self.g[j]['vm']]
        if not c:
            self.g[b]['sc'] += sc
            return
        c = c[-len(sc):] if late else c[:len(sc)]
        for k, x in enumerate(sc):
            self.g[c[min(k, len(c) - 1)]]['sc'].append(x)

    def fill(self, va, start=0, end=None):
        va, j = list(va), start
        end = len(self.mf) if end is None else end
        while va and j < end:
            if self.cap(j) >= vcost(va[0]):
                self.g[j]['va'].append(va.pop(0))
            else:
                j += 1
        return va

    def emit(self, gen):
        for m, g in zip(self.mf, self.g):
            gen.put([m] + g['sc'] + g['vm'] + g['ds'] + g['va'] + g['end'])


def vcost(x):
    t = x.text if isinstance(x, Ins) else x
    return 2 if t.startswith(('v_exp', 'v_rcp', 'v_rsq', 'v_permlane')) else 1


class Gen:
    def __init__(self, prof=False, opts=None):
        self.s = Stream()
        self.tail = []
        self.prof = prof
        self.o = opts or {}
        self.nstamp = 0
        self.nlab = 0
        self.kv_nt = False

    def stamp(self, name=None):
        if 'diag' in self.o:
            a, b, k = self.o['diag'].split(':')
            sec = name or [x.op[5:] for x in self.s.l if x.kind == 'meta' and x.op.startswith('@sec ')][-1]
            for r, want in ((98, a), (100, b)):
                if sec.replace(' ', '_') == want:
                    self.s('s_waitcnt lgkmcnt(0)\ns_memrealtime s[%d:%d]\ns_waitcnt lgkmcnt(0)' % (r, r + 1))
            return
        if not self.prof or (self.prof == 2 and name not in ('kernarg', 'end', 'P0 end', 'P2 end', 'pre', 'loop')):
            return
        e = self.s
        sec = [x.op[5:] for x in e.l if x.kind == 'meta' and x.op.startswith('@sec ')][-1]
        self.tail.append('; @@' + (name or sec))
        e('s_waitcnt lgkmcnt(0)')
        e('s_memtime s[%d:%d]\ns_memrealtime s[%d:%d]\ns_waitcnt lgkmcnt(0)' % (sST, sST + 1, sST + 2, sST + 3))
        for k in range(2):
            e('v_accvgpr_read_b32 v%d, a%d' % (vONE, aPROF + k))
            e('s_nop 1\nv_writelane_b32 v%d, s%d, %d' % (vONE, sST + 2 * k, self.nstamp))
            e('v_accvgpr_write_b32 a%d, v%d' % (aPROF + k, vONE))
        e('v_mov_b32 v%d, 1' % vONE)
        self.nstamp += 1

    def stamp_items(self, name):
        main, self.s = self.s, Stream()
        self.s('@sec ' + name)
        self.stamp(name)
        items, self.s = self.s.l[1:], main
        return items

    def poll_load(self, buf):
        return Job('buffer_load_dword v%d, v%d, %s, 0 offen sc1' % (vPRES, vPOFF, srd(buf)))

    def poll_check(self, buf, val):
        self.nlab += 1
        n = self.nlab
        cmp = 'v_cmp_ne_u32' if val == 1 else 'v_cmp_gt_u32'
        self.tail.append('''L_spin%(n)d:
    s_mov_b32 s%(c)d, 0x80000
L_spin%(n)d_loop:
    buffer_load_dword v%(r)d, v%(o)d, %(b)s, 0 offen sc1
    s_waitcnt vmcnt(0)
    %(cmp)s vcc, %(v)d, v%(r)d
    s_cbranch_vccz L_back%(n)d
    s_sub_u32 s%(c)d, s%(c)d, 1
    s_cbranch_scc0 L_spin%(n)d_loop
    s_branch L_back%(n)d''' % dict(n=n, c=sT3, r=vPRES, o=vPOFF, b=srd(buf), v=val, cmp=cmp))
        return [Ins('%s vcc, %d, v%d' % (cmp, val, vPRES)), Ins('s_cbranch_vccnz L_spin%d' % n), Ins('L_back%d:' % n)]

    def flag_store(self, phase, need):
        return Job(Ins('buffer_store_dword v%d, v%d, %s, s%d offen sc1' % (vONE, vFLAG, srd(SWS), sT2), need=need),
                   pre=['s_mov_b32 s%d, 0x%x' % (sT2, FLAG_OFF + phase * 131072)])

    def opt(self, k, d):
        return int(self.o.get(k, d))

    def touch(self, r):
        if not self.opt('touch', 1):
            return
        e = self.s
        e('@mark touch%d\ns_mov_b64 exec, 0' % r)
        for w in range(3):
            e('s_cmp_eq_u32 s%d, %d\ns_cbranch_scc1 L_touch%d_%d' % (sW, w, r, w))
        e('s_branch L_touch%d_3\nL_touched%d:\ns_mov_b64 exec, -1' % (r, r))

    def put(self, items):
        for x in items:
            self.s.add(x if isinstance(x, Ins) else Ins(x))

    def flat(self, jobs):
        res, m0 = [], None
        for jb in jobs:
            pre = list(jb.pre)
            if jb.m0 and jb.m0 != m0:
                pre.insert(0, jb.m0)
                m0 = jb.m0
            res.append((pre, jb.ins, list(jb.post)))
        return res

    def emit_jobs(self, jobs):
        for pre, d, post in self.flat(jobs):
            self.put(pre + [d] + post)

    def sprinkle(self, main, jobs, start=0, every=8):
        groups = self.flat(jobs)
        for k, x in enumerate(main):
            if groups and k >= start and (k - start) % every == 0:
                pre, d, post = groups.pop(0)
                self.put(pre + [d] + post)
            self.put([x])
        for pre, d, post in groups:
            self.put(pre + [d] + post)

    def whalf(self, name, k, h):
        buf, vo, stride, nat, off = {
            'wq': (SWQ, vDB, 8192, True, (k >> 1) * 32 * 8192 + (k & 1) * 128),
            'w1': (SW1, vW1, 1024, True, k * 32768),
            'w2': (SW2, vW2, 1024, False, k * 32768),
            'w3': (SW3, vW3, 3584, False, k * 32 * 3584),
            'w4': (SW4, vWN, 1024, False, (k % 7) * 32768 + (k // 7) * 512),
            'wo': (SWO, vWN, 1024, False, (k >> 1) * 32768 + (k & 1) * 512)}[name]
        rows = [16 * (a & 1) + 4 * (a >> 1) if nat else 8 * a for a in range(4)]
        return [Job(Ins('buffer_load_dwordx4 v%d, %s, s%d offen offset:%d %slds' % (vo, srd(buf), sO, 1024 * a, 'nt ' if name in self.o.get('wnt', 'none').split(',') else ''), tag='%s%d' % (name, k)),
                    pre=['s_mov_b32 s%d, 0x%x' % (sO, off + rows[a] * stride - 1024 * a)],
                    m0='s_add_u32 m0, s%d, 0x%x' % (sRING, (h % 6) * 4096)) for a in range(4)]

    def waddr(self, dst, t, base):
        return ['v_lshrrev_b32 v%d, 2, v%d' % (dst, vL), 'v_bfe_u32 v%d, v%d, 3, 2' % (t, vL), 'v_lshlrev_b32 v%d, 5, v%d' % (t, t),
                'v_lshl_or_b32 v%d, v%d, 7, v%d' % (dst, dst, t), 'v_and_b32 v%d, 3, v%d' % (t, vL), 'v_lshl_or_b32 v%d, v%d, 3, v%d' % (dst, t, dst),
                'v_add_u32 v%d, %s, v%d' % (dst, base, dst)] + ['v_xor_b32 v%d, 0x%x, v%d' % (dst + b, b << 5, dst) for b in range(1, 4)]

    def vaddr_restore(self):
        return ['v_xor_b32 v%d, 0x80, v%d' % (vTR + db, vTR + 4 + db) for db in range(4)]

    def lanesum(self, r, t):
        o = []
        for op in ('v_permlane32_swap_b32', 'v_permlane16_swap_b32'):
            o += ['v_mov_b32 v%d, v%d' % (t, r), '%s v%d, v%d' % (op, t, r), 'v_add_f32 v%d, v%d, v%d' % (r, r, t)]
        return o

    def gelu4(self, src, dst, tmp, k1, scale=None):
        o = []
        e = o.append
        P = lambda b: vr('v', b, 2)
        if scale is not None:
            for h in (0, 2):
                e('v_pk_mul_f32 %s, %s, %s op_sel_hi:[1,0]' % (P(src + h), P(src + h), P(scale)))
        for h in (0, 2):
            e('v_pk_mul_f32 %s, %s, %s' % (P(tmp + h), P(src + h), P(src + h)))
        for h in (0, 2):
            e('v_pk_fma_f32 %s, %s, s[%d:%d], %s op_sel_hi:[1,1,0]' % (P(tmp + h), P(tmp + h), sC0, sC0 + 1, P(k1)))
        for h in (0, 2):
            e('v_pk_mul_f32 %s, %s, %s' % (P(tmp + h), P(tmp + h), P(src + h)))
        for r in range(4):
            e('v_exp_f32 v%d, v%d' % (tmp + r, tmp + r))
        for h in (0, 2):
            e('v_pk_add_f32 %s, %s, 1.0 op_sel_hi:[1,0]' % (P(tmp + h), P(tmp + h)))
        for r in range(4):
            e('v_rcp_f32 v%d, v%d' % (tmp + r, tmp + r))
        for h in (0, 2):
            e('v_pk_mul_f32 %s, %s, %s' % (P(tmp + h), P(tmp + h), P(src + h)))
        for h in (0, 2):
            e('v_cvt_pk_bf16_f32 v%d, v%d, v%d' % (dst + h // 2, tmp + h, tmp + h + 1))
        return o

    def pack(self, d, a0, a1):
        return ['v_cvt_pk_bf16_f32 v%d, v%d, v%d' % (d + 3, a1 + 2, a1 + 3), 'v_cvt_pk_bf16_f32 v%d, v%d, v%d' % (d + 2, a1, a1 + 1),
                'v_cvt_pk_bf16_f32 v%d, v%d, v%d' % (d, a0, a0 + 1), 'v_cvt_pk_bf16_f32 v%d, v%d, v%d' % (d + 1, a0 + 2, a0 + 3)]

    def g16(self, accf, acc, ring, ad):
        def kn(n):
            return (n & 15, n >> 4) if self.opt('chain16', 1) else (n >> 2, n & 3)

        def rd(n):
            ks, nb = kn(n)
            off = ((ks >> 2) & 1) * WWAVE + (ks & 3) * 4096
            return ['ds_read_b64_tr_b16 %s, v%d offset:%d' % (vr('a', ring + 4 * (n % 8) + 2 * g, 2), ad + nb, off + 2048 * g) for g in range(2)]
        AH = 6
        for n in range(AH):
            self.put(rd(n))
        p = Plan()
        for n in range(64):
            ks, nb = kn(n)
            p.add(mfma(vr(accf, acc + 4 * nb, 4), vr('a', ring + 4 * (n % 8), 4), vr('v', vX + 4 * ks, 4), '0' if ks == 0 else None))
            if n + AH < 64:
                p.g[n]['ds'] += rd(n + AH)
                if kn(n + AH)[0] == 7:
                    a = ad + kn(n + AH)[1]
                    p.g[n]['va'].append('v_add_u32 v%d, 0x%x, v%d' % (a, 2 * WWAVE, a))
        p.emit(self)

    def gemm(self, ngr, h0, tagf, accf, firstf, actk, actf, dmas):
        WF, AF, AH = 0, 16, 3
        ak = [actk(gi) for gi in range(ngr)]
        par = [0]
        for gi in range(1, ngr):
            par.append(par[-1] ^ (ak[gi] != ak[gi - 1]))

        def wrd(n):
            gi, b = n >> 2, n & 3
            return [Ins('ds_read_b64_tr_b16 %s, v%d offset:%d' % (vr('a', WF + 4 * (n % 4) + 2 * g, 2), vTR + b, ((h0 + gi) % 6) * 4096 + 2048 * g),
                        need=[tagf(gi)] if (b == 0 and g == 0) else None) for g in range(2)]

        def ard(gi, tb):
            return 'ds_read_b128 %s, v%d offset:%d' % ((vr('a', AF + 16 * par[gi] + 4 * tb, 4),) + actf(ak[gi], tb))
        self.put([ard(0, tb) for tb in range(4)])
        for n in range(AH):
            self.put(wrd(n))
        p = Plan()
        jobs, pos = [], []
        for gi in range(ngr):
            j0 = 16 * gi
            for b in range(4):
                n = 4 * gi + b
                for tb in (range(3, -1, -1) if (b & 1 and self.opt('snake', 1)) else range(4)):
                    p.add(mfma(vr('v', accf(gi, b) + 4 * tb, 4), vr('a', WF + 4 * (n % 4), 4), vr('a', AF + 16 * par[gi] + 4 * tb, 4),
                               '0' if firstf(gi) else None))
                if n + AH < 4 * ngr:
                    w = wrd(n + AH)
                    p.g[j0 + 4 * b]['ds'].append(w[0])
                    p.g[j0 + 4 * b + 1]['ds'].append(w[1])
            if gi + 1 < ngr and ak[gi + 1] != ak[gi]:
                shared = gi and ak[gi - 1] == ak[gi]
                for tb, o in enumerate((-7, -3, 1, 5) if shared else (1, 3, 4, 5)):
                    p.g[j0 + o]['ds'].append(ard(gi + 1, tb))
            d = dmas.get(gi, [])
            jobs += d
            pos += [j0 + o for o in ((2, 6, 10, 14) if len(d) <= 4 else (2, 3, 6, 7, 10, 11, 14, 15))[:len(d)]]
        p.jobs(self.flat(jobs), pos, avoid={j for j in range(16 * ngr) if j % 4 == 3 or j % 16 == 4})
        return p

    def part_store(self, reg, off, tag):
        return Job(Ins('buffer_store_dwordx4 %s, v%d, %s, s%d offen sc1' % (vr('v', reg, 4), vACT, srd(SWS), sT1), tag=tag),
                   pre=['s_add_u32 s%d, s%d, 0x%x' % (sT1, sPO, off)])

    def gather(self, f, dst, soff, off, flags):
        return [Job('buffer_load_dwordx4 %s, v%d, %s, s%d offen offset:%d %s' % (vr(f, dst + 4 * k, 4), vACT, srd(SWS), sRET, 1024 * (k % 4), flags),
                    pre=['s_add_u32 s%d, s%d, 0x%x' % (sRET, soff, off + 1024 * k)] if k % 4 == 0 else []) for k in range(16)]

    XS, XW, RA, F1 = vP + 8, vP + 9, vP + 10, vT + 4

    def prologue(self):
        e = self.s
        D = vr('a', aDUMMY, 4)
        e('@sec prologue')
        bufs = [(SX, 0, 0x200000), (SWQ, 24, 0x400000), (SWS, 96, 0x10000000), (SW1, 48, 0x80000), (SW2, 56, 0x80000), (SDBG, 88, 256), (SK, 8, 0x400000),
                (SV, 16, 0x400000), (SWO, 32, 0x400000), (SW3, 64, 0x1c0000), (SW4, 72, 0x1c0000), (SOUT, 80, 0x200000)]
        for b, off, _ in bufs[:2]:
            e('s_load_dwordx2 s[%d:%d], s[0:1], %d' % (b, b + 1, off))
        e('s_cmp_ge_u32 s2, 256\ns_cbranch_scc1 L_end')
        if self.o.get('diag', '').startswith('start'):
            e('s_memrealtime s[98:99]')
        if self.prof:
            e('v_accvgpr_write_b32 a%d, 0\nv_accvgpr_write_b32 a%d, 0' % (aPROF, aPROF + 1))
        e('s_getpc_b64 s[%d:%d]\nL_pc:' % (SCODE, SCODE + 1))
        e('s_mov_b32 s%d, L_code_end-L_pc\ns_mov_b32 s%d, 0x20000' % (SCODE + 2, SCODE + 3))
        e('s_lshr_b32 s%d, s2, 3\nv_lshlrev_b32 v%d, 4, v0\nv_lshl_add_u32 v%d, s%d, 12, v%d' % (sT, vT + 3, vT, sT, vT + 3))
        e('buffer_load_dwordx4 %s, v%d, %s, 0 offen' % (D, vT, srd(SCODE)))
        e('v_readfirstlane_b32 s%d, v0\ns_and_b32 s%d, s2, 7\nv_and_b32 v0, 63, v0' % (sW, sJ))
        e('s_lshr_b32 s%d, s%d, 6' % (sW, sW))
        e('s_lshl_b32 s%d, s%d, 2\ns_add_u32 s%d, s%d, s%d' % (sTBG, sT, sTBG, sTBG, sW))
        e('v_lshrrev_b32 v%d, 2, v%d\nv_and_b32 v%d, 3, v%d' % (vT + 1, vL, vT + 2, vL))
        e('v_lshlrev_b32 v%d, 10, v%d\nv_lshl_or_b32 v%d, v%d, 4, v%d' % (vT + 4, vT + 1, vT + 4, vT + 2, vT + 4))
        e('v_lshlrev_b32 v%d, 4, v%d' % (vACT, vL))
        e('s_lshl_b32 s%d, s%d, 14\ns_lshl_b32 s%d, s%d, 13\ns_lshl_b32 s%d, s%d, 10' % (sCNT, sTBG, sVO, sTBG, sT1, sJ))
        e('s_mov_b32 s%d, 0x200000\ns_mov_b32 s%d, 0x20000' % (SX + 2, SX + 3))
        e('s_sub_u32 s%d, 0x400000, s%d\ns_mov_b32 s%d, 0x20000' % (SWQ + 2, sT1, SWQ + 3))
        e('s_waitcnt lgkmcnt(0)')
        self.stamp('kernarg')
        e('s_add_u32 s%d, s%d, s%d\ns_addc_u32 s%d, s%d, 0' % (SWQ, SWQ, sT1, SWQ + 1, SWQ + 1))
        for b, off, _ in bufs[2:]:
            e('s_load_dwordx2 s[%d:%d], s[0:1], %d' % (b, b + 1, off))
        wl = [Job('buffer_load_dwordx4 %s, v%d, %s, s%d offen' % (D, vACT, srd(SWQ), sVO), post=['s_add_u32 s%d, s%d, 0x100000' % (sVO, sVO)]) for i in range(4)]
        nf = self.opt('wq_first', 1)
        self.emit_jobs(wl[:nf])
        xl = [Job('buffer_load_dwordx4 %s, v%d, %s, s%d offen offset:%d' % (vr('v', vX + 4 * ks, 4), vT + 4, srd(SX), sCNT, 64 * ks)) for ks in range(16)]
        nx = self.opt('x_first', 8)
        self.emit_jobs(xl[:nx])
        self.stamp('x issued')
        mark = len(e.l)

        def lin(dst, c, *terms):
            for k, (reg, mul) in enumerate(terms):
                e('s_mul_i32 s%d, s%d, 0x%x' % (dst if k == 0 else sT0, reg, mul & 0xffffffff))
                if k:
                    e('s_add_u32 s%d, s%d, s%d' % (dst, dst, sT0))
            if c:
                e('s_add_u32 s%d, s%d, 0x%x' % (dst, dst, c))
        lin(sRING, WREG, (sW, WWAVE))
        lin(sW2K, 0, (sW, 2048))
        e('v_mov_b32 v%d, 1' % vONE)
        XS, XW, RA = self.XS, self.XW, self.RA
        e('v_lshlrev_b32 v%d, 1, v%d\nv_xor_b32 v%d, v%d, v%d\nv_lshl_or_b32 v%d, v%d, 4, v%d' % (vT, vT + 2, vT, vT, vT + 1, vT, vT + 2, vT))
        e('v_lshlrev_b32 v%d, 4, v%d\nv_lshl_add_u32 v%d, s%d, 14, v%d' % (vT, vT, XW, sW, vT))
        e('v_lshrrev_b32 v%d, 4, v%d\nv_lshlrev_b32 v%d, 5, v%d\nv_xor_b32 v%d, v%d, v%d' % (vT, vL, vT, vT, XS, vT, vACT))
        e('v_lshrrev_b32 v%d, 5, v%d\nv_and_b32 v%d, 15, v%d\nv_mul_u32_u24 v%d, 18, v%d\nv_xor_b32 v%d, v%d, v%d' % (vT, vL, vT + 1, vL, vT, vT, vT, vT, vT + 1))
        e('v_bfe_u32 v%d, v%d, 4, 1\nv_lshl_or_b32 v%d, v%d, 1, v%d\nv_lshlrev_b32 v%d, 3, v%d' % (vT + 1, vL, vT, vT, vT + 1, vT, vT))
        lin(sT1, 0, (sW, 16384), (sJ, 1024))
        e('v_add_u32 v%d, s%d, v%d\nv_xor_b32 v%d, 64, v%d' % (RA, sT1, vT, RA + 1, RA))
        C, RN, RK = vT, vT + 1, vT + 2
        e('v_and_b32 v%d, 7, v%d\nv_bfe_u32 v%d, v%d, 4, 2\nv_lshlrev_b32 v%d, 1, v%d\nv_xor_b32 v%d, v%d, v%d' % (C, vL, RN, vL, RN, RN, C, C, RN))
        e('v_lshlrev_b32 v%d, 4, v%d\nv_lshrrev_b32 v%d, 3, v%d' % (C, C, RN, vL))
        e('v_and_b32 v%d, 4, v%d\nv_add_u32 v%d, v%d, v%d' % (RK, RN, RK, RK, RN))
        e('v_lshl_add_u32 v%d, v%d, 13, v%d\nv_lshl_add_u32 v%d, s%d, 8, v%d' % (vDB, RK, C, vDB, sW, vDB))
        e('v_lshl_add_u32 v%d, v%d, 10, v%d\nv_lshl_add_u32 v%d, s%d, 17, v%d' % (vW1, RK, C, vW1, sW, vW1))
        e('v_lshl_add_u32 v%d, v%d, 10, v%d' % (vWN, RN, C))
        e('v_and_b32 v%d, 64, v%d\nv_mad_u32_u24 v%d, v%d, 7, v%d' % (RK, C, vW2, RK, vWN))
        W1W, W2W = vP, vP + 1
        e('v_mov_b32 v%d, v%d\nv_mov_b32 v%d, v%d' % (W1W, vWN, W2W, vW2))
        e('v_lshl_add_u32 v%d, s%d, 17, v%d\nv_lshl_add_u32 v%d, s%d, 7, v%d' % (vW2, sW, vW2, vWN, sW, vWN))
        JO = sT3
        e('s_and_b32 s%d, s%d, 1' % (JO, sJ))
        lin(sT1, 7, (JO, -7))
        e('v_mul_u32_u24 v%d, 3584, v%d\nv_lshl_add_u32 v%d, s%d, 7, v%d\nv_add_u32 v%d, v%d, v%d' % (RN, RN, C, sW, C, vW3, RN, C))
        e('v_lshrrev_b32 v%d, 6, v%d\nv_cmp_eq_u32 vcc, s%d, v%d\nv_mov_b32 v%d, 0x%x' % (C, C, sT1, C, vT + 5, OOB))
        lin(sKO, 0, (sT, 16384))
        e('v_cndmask_b32 v%d, v%d, v%d, vcc' % (vW3, vW3, vT + 5))
        RS, Z = vP + 2, vP + 3
        e('v_lshrrev_b32 v%d, 2, v%d\nv_lshlrev_b32 v%d, 17, v%d' % (RS, vL, RS, RS))
        e('v_and_b32 v%d, 3, v%d\nv_lshl_or_b32 v%d, v%d, 10, v%d' % (Z, vL, RS, Z, RS))
        e('v_cmp_gt_u32 vcc, 0x80, v%d' % (vT + 3))
        lin(sT1, 0, (sTBG, 1024), (sJ, 128))
        e('v_cndmask_b32 v%d, v%d, v%d, vcc' % (RS, vT + 5, RS))
        e('v_lshrrev_b32 v%d, 9, v%d\nv_cmp_eq_u32 vcc, 1, v%d' % (Z, vT + 3, Z))
        e('v_lshlrev_b32 v%d, 2, v%d\nv_add_u32 v%d, 0x%x, v%d' % (Z, vL, Z, 0x40000 - 128, Z))
        e('v_cndmask_b32 v%d, v%d, v%d, vcc' % (RS, RS, Z))
        e('v_cmp_eq_u32 vcc, 0, v%d\nv_mov_b32 v%d, s%d\ns_add_u32 s%d, s%d, 0x%x' % (vL, vFLAG, sT1, sRET, sT1, FLAG_OFF))
        e('v_cndmask_b32 v%d, v%d, v%d, vcc' % (vFLAG, vT + 5, vFLAG))
        e('v_cmp_eq_u32 vcc, 0, v%d\nv_mov_b32 v%d, 0\ns_add_u32 s%d, s%d, 0x%x' % (vT + 3, Z, sSTO, sT1, ST_OFF))
        e('v_cndmask_b32 v%d, v%d, 0, vcc' % (vPOFF, vT + 5))
        e('v_and_b32 v%d, 15, v%d\nv_lshrrev_b32 v%d, 4, v%d' % (vT, vL, vT + 1, vL))
        e('v_xor_b32 v%d, v%d, v%d\nv_lshlrev_b32 v%d, 4, v%d\nv_lshl_or_b32 v%d, v%d, 8, v%d' % (vT + 1, vT + 1, vT, vT + 1, vT + 1, vKA, vT, vT + 1))
        for ks in range(1, 4):
            e('v_xor_b32 v%d, 0x%x, v%d' % (vKA + ks, 64 * ks, vKA))
        e('v_lshrrev_b32 v%d, 2, v%d\nv_and_b32 v%d, 7, v%d\nv_lshlrev_b32 v%d, 5, v%d' % (vT, vL, vT + 1, vT, vT + 1, vT + 1))
        e('v_lshl_or_b32 v%d, v%d, 8, v%d\nv_and_b32 v%d, 3, v%d\nv_lshl_or_b32 v%d, v%d, 3, v%d' % (vT, vT, vT + 1, vT + 1, vL, vT, vT + 1, vT))
        for db in range(4, 8):
            e('v_xor_b32 v%d, 0x%x, v%d' % (vTR + db, VRING | db << 5, vT))
        self.put(self.waddr(vTR, vT, 's%d' % sRING))
        e('v_lshrrev_b32 v%d, 4, v%d\nv_xor_b32 v%d, v%d, v%d\nv_and_b32 v%d, 2, v%d' % (vT, vL, vT, vT, vL, vT, vT))
        e('v_mov_b32 v%d, 0x3f803f80\nv_cmp_eq_u32 vcc, 0, v%d' % (vT + 1, vT))
        e('v_bfe_i32 v%d, v%d, 0, 1\nv_and_b32 v%d, 0xaaaaaaaa, v%d\nv_or_b32 v%d, 0x44444444, v%d' % (vT, vL, vT, vT, vIDX, vT))
        e('v_cndmask_b32 v%d, 0, v%d, vcc' % (vT + 1, vT + 1))
        for r in range(4):
            e('v_accvgpr_write_b32 a%d, v%d' % (aONES + r, vT + 1))
        for r in range(8):
            e('v_accvgpr_write_b32 a%d, 0' % (aL + r))
        lin(sHO, 0, (sTBG, 1 << 14), (sJ, 1 << 11))
        lin(sX1I, X1_OFF, (sTBG, 1 << 14))
        lin(sX1O, 0, (sJ, 1 << 10), (sX1I, 1))
        lin(sPO, 0, (sT, 1 << 19), (sJ, 1 << 11), (sW, 1 << 17))
        lin(sPI, 0, (sT, 1 << 19), (sJ, 1 << 16), (sW, 1 << 14))
        lin(sCF, FLAG_OFF + 0x40000, (sT, 1 << 12), (sJ, 1 << 7))
        lin(sFP, FLAG_OFF + 0x40000, (sT, 1 << 12), (sW, 256), (sJ, 4))
        lin(sXO, 0, (sTBG, 1 << 14), (sJ, 64))
        lin(sCW, 0, (sTBG, 1024))
        lin(sW3W, 0, (sTBG, 4 * 3584))
        lin(sW4W, 0, (sTBG, 1792))
        lin(sWOW, 0, (sTBG, 4096))
        e('s_lshr_b32 s%d, s%d, 1\ns_lshl_b32 s%d, s%d, 13' % (sWSH, sTBG, sWSH, sWSH))
        e('s_mov_b32 s%d, %s\ns_mov_b32 s%d, %s\ns_mov_b32 s%d, 0' % (sC0, f2u(-K2), sC0 + 1, f2u(-K2), sPASS))
        e('s_waitcnt lgkmcnt(0)')
        shift = {SW1: [(sJ, 128)], SW2: [(sJ, 64)], SK: [(sJ, 1 << 19)], SV: [(sJ, 1 << 19)], SWO: [(sJ, 1 << 19)],
                 SW3: [(sJ, 448), (JO, -64)], SW4: [(sJ, 224 * 1024)]}
        for b, _, size in bufs[2:]:
            if b in shift:
                lin(sT1, 0, *shift[b])
                e('s_add_u32 s%d, s%d, s%d\ns_addc_u32 s%d, s%d, 0\ns_sub_u32 s%d, 0x%x, s%d' % (b, b, sT1, b + 1, b + 1, b + 2, size, sT1))
            else:
                e('s_mov_b32 s%d, 0x%x' % (b + 2, size))
            e('s_mov_b32 s%d, 0x20000' % (b + 3))
        e('s_mov_b32 s%d, s%d\ns_mov_b32 s%d, s%d\ns_mov_b32 s%d, 0x200000\ns_mov_b32 s%d, 0x20000' % (SH, SWS, SH + 1, SWS + 1, SH + 2, SH + 3))
        ns = self.opt('x_setup', 0)
        setup, e.l = e.l[mark:], e.l[:mark]
        self.sprinkle(setup, xl[nx:nx + ns], start=self.opt('xs_start', 20), every=self.opt('xs_every', 25))
        self.xrest = xl[nx + ns:]
        self.early = wl[nf:] + [Job(Ins('buffer_store_dword v%d, v%d, %s, s%d offen sc1' % (Z, RS, srd(SWS), sRET), tag='reset')),
                                Job('buffer_load_dwordx4 %s, v%d, %s, s%d offen' % (D, W1W, srd(SW1), sWSH)),
                                Job('buffer_load_dwordx4 %s, v%d, %s, s%d offen' % (D, W2W, srd(SW2), sWSH))]
        self.stamp('setup')
        self.touch(0)
        self.stamp('touched')
        e('s_branch L_go\n.p2align 12\nL_go:')

    def p0(self):
        e = self.s
        e('@sec P0 layernorm')
        P = lambda b: vr('v', b, 2)
        A, X0 = vS, vS + 8
        o = ['v_lshlrev_b32 v%d, 16, v%d' % (X0 + 1, vX), 'v_mov_b32_dpp v%d, v%d quad_perm:[0,0,0,0] row_mask:0xf bank_mask:0xf' % (X0, X0 + 1)]
        for k in range(64):
            d = vACC + 2 * k
            o += ['v_lshlrev_b32 v%d, 16, v%d' % (d, vX + k), 'v_and_b32 v%d, 0xffff0000, v%d' % (d + 1, vX + k),
                  'v_pk_add_f32 %s, %s, %s op_sel_hi:[1,0] neg_lo:[0,1] neg_hi:[0,1]' % (P(d), P(d), P(X0))]
            if k == 0:
                o += ['v_pk_mul_f32 %s, %s, %s' % (P(A + 2), P(d), P(d))]
            else:
                o += ['v_pk_add_f32 %s, %s, %s' % (P(A), P(A) if k > 1 else P(vACC), P(d)), 'v_pk_fma_f32 %s, %s, %s, %s' % (P(A + 2), P(d), P(d), P(A + 2))]
        wq = []
        for k in range(6):
            wq += self.whalf('wq', k, k)
        nd = self.opt('p1_dma', 2)
        jobs = []
        while self.xrest or (wq and nd):
            jobs += self.xrest[:1] + wq[:nd if self.xrest else nd + 1]
            wq = wq[nd if self.xrest else nd + 1:]
            self.xrest = self.xrest[1:]
        self.sprinkle(o, jobs, start=self.opt('p1_start', 2), every=20 // (nd + 1) if nd else 10)
        self.stamp('x landed')
        o = ['v_add_f32 v%d, v%d, v%d' % (A, A, A + 1), 'v_add_f32 v%d, v%d, v%d' % (A + 2, A + 2, A + 3)]
        for qp in ('[1,0,3,2]', '[2,3,0,1]'):
            for r in (A, A + 2):
                o.append('v_add_f32_dpp v%d, v%d, v%d quad_perm:%s row_mask:0xf bank_mask:0xf' % (r, r, r, qp))
        M, V, R = A, A + 2, A + 4
        o += ['v_mul_f32 v%d, %s, v%d' % (M, f2u(1.0 / 512), M), 'v_mul_f32 v%d, %s, v%d' % (V, f2u(1.0 / 512), V),
              'v_fma_f32 v%d, -v%d, v%d, v%d' % (V, M, M, V), 'v_max_f32 v%d, 0, v%d' % (V, V),
              'v_add_f32 v%d, %s, v%d' % (R, f2u(1e-5), V), 'v_rsq_f32 v%d, v%d' % (R, R),
              'v_and_b32 v%d, 0xf0, v%d' % (A + 7, vACT),
              'v_mul_f32 v%d, v%d, v%d' % (A + 6, R, R), 'v_fmaak_f32 v%d, v%d, v%d, %s' % (A + 6, A + 6, V, f2u(1e-5)), 'v_rsq_f32 v%d, v%d' % (A + 6, A + 6),
              'v_mul_f32 v%d, %s, v%d' % (R, f2u(CSCALE), R), 'v_mul_f32 v%d, %s, v%d' % (A + 6, f2u(1.0 / CSCALE), A + 6),
              'v_mul_f32_e64 v%d, -v%d, v%d' % (M, M, R), 'ds_bpermute_b32 v%d, v%d, v%d' % (self.F1, A + 7, A + 6)]
        for ks in range(16):
            for k in range(4 * ks, 4 * ks + 4):
                d = P(vACC + 2 * k)
                o.append('v_pk_fma_f32 %s, %s, %s, %s op_sel_hi:[1,0,0]' % (d, d, P(R), P(M)))
            for k in range(4 * ks, 4 * ks + 4):
                o.append('v_cvt_pk_bf16_f32 v%d, v%d, v%d' % (vX + k, vACC + 2 * k, vACC + 2 * k + 1))
            o.append('ds_write_b128 v%d, %s offset:%d' % (self.XW, vr('v', vX + 4 * ks, 4), 1024 * ks))
        nw, nl = 4 * self.opt('ln_w', 4), self.opt('ln_jobs', 22)
        jobs = wq[:nw] + self.early + wq[nw:]
        self.p2_first = jobs[nl:]
        self.sprinkle(o, jobs[:nl], start=self.opt('ln_start', 0), every=self.opt('ln_every', 2 if nd else 7))
        for nb in range(4):
            e('ds_read_b64 %s, v%d offset:%d' % (vr('a', aRES + 2 * nb, 2), self.RA + (nb & 1), 8192 * (nb >> 1) + 512 * (nb & 1)))
        e('v_lshl_add_u32 v%d, s%d, 14, v%d' % (self.XW, sW, self.XS))
        e('s_barrier', need=['*lg'])
        self.stamp('P0 end')

    def kv_dma(self, which, unit, tag):
        buf, ring, so, vo = (SK, KRING, sKO, vDB) if which == 'K' else (SV, VRING, sVO, vDB + 2)
        fl = self.o.get('kvflag', 'nt_').replace('_', ' ') if self.kv_nt else ''
        m0 = 's_add_u32 m0, s%d, 0x%x' % (sW2K, ring + 8192 * (unit & 3))
        return [Job(Ins('buffer_load_dwordx4 v%d, %s, s%d offen %slds' % (vo, srd(buf), so, fl), tag=tag), m0=m0),
                Job(Ins('buffer_load_dwordx4 v%d, %s, s%d offen offset:1024 %slds' % (vo + 1, srd(buf), so, fl), tag=tag), m0=m0,
                    post=['s_add_u32 s%d, s%d, 0x2000' % (so, so), 's_and_b32 s%d, s%d, 0x7ffff' % (so, so)])]

    def p2(self):
        e = self.s
        e('@sec P2')
        piece = lambda h: self.whalf('wq', h, h) if h < 32 else self.whalf('w1', h - 32, h)
        dmas = {gi: piece(gi + 5) for gi in range(1, 31)}
        dmas[0] = self.p2_first
        p = self.gemm(32, 0, lambda gi: 'wq%d' % gi, lambda gi, b: vACC + 64 * (gi & 1) + 16 * b, lambda gi: gi < 2, lambda gi: gi >> 1,
                      lambda k, tb: (self.XS, (tb * 16 + k) * 1024), dmas)
        for ks in range(16):
            p.g[16 * (ks + 2) + 7]['ds'].append('ds_read_b128 %s, v%d offset:%d' % (vr('v', vX + 4 * ks, 4), self.XW, 1024 * ks))
        assert not p.fill(self.waddr(vP + 12, vT, '0x%x' % (WREG + 8192)) + ['v_mov_b32 v%d, %s' % (vP + 10, f2u(-K1))], 16)
        f = ('v_lshrrev_b32 v%d, 4, v%d\nv_and_b32 v%d, 15, v%d\nv_lshl_add_u32 v%d, v%d, 8, s%d\n' % (vT, vL, vT + 1, vL, vT + 2, vT, sW2K) +
             'v_bfe_u32 v%d, v%d, 8, 4\nv_xor_b32 v%d, v%d, v%d\n' % (vT + 3, vT + 2, vT + 3, vT + 3, vT + 1) +
             'v_lshl_add_u32 v%d, v%d, 4, v%d\nv_xor_b32 v%d, 64, v%d\n' % (vDB, vT + 3, vT + 2, vDB + 1, vDB) +
             'v_lshlrev_b32 v%d, 1, v%d\nv_xor_b32 v%d, v%d, v%d\n' % (vT + 3, vT, vT + 3, vT + 3, vT + 1) +
             'v_lshl_add_u32 v%d, v%d, 4, v%d\nv_xor_b32 v%d, 0x80, v%d' % (vDB + 2, vT + 3, vT + 2, vDB + 3, vDB + 2)).split('\n')
        assert not p.fill(f, 16 * 27)
        assert not p.fill(self.vaddr_restore(), 16 * 31 + 2)
        p.jobs(self.flat([Job(Ins('buffer_atomic_add v%d, v%d, %s, s%d offen sc1' % (vONE, vPOFF, srd(SDBG), sT0), need=['reset']),
                              pre=['s_lshl_b32 s%d, s%d, 3' % (sT0, sT), 's_mov_b32 s%d, s%d' % (sVO, sKO)])]), [16 * 31 + 10], lo=16 * 31 + 5)
        p.emit(self)
        self.stamp('P2 end')

    def q_p1(self):
        e = self.s
        e('@sec Q epilogue')
        if self.o.get('diag', '').startswith('xcc'):
            e('s_getreg_b32 s98, hwreg(HW_REG_XCC_ID)\ns_sub_u32 s98, s98, s%d\ns_and_b32 s98, s98, 7\ns_lshl_b32 s98, 1, s98' % sJ)
            e('v_mov_b32 v%d, s98\nbuffer_atomic_or v%d, v%d, %s, 0 offen offset:4 sc1' % (vT, vT, vPOFF, srd(SDBG)))
        e('s_barrier', need=['*lg'])
        jobs = []
        for which, u in (('K', 0), ('K', 1), ('V', 0), ('K', 2), ('V', 1)):
            jobs += self.kv_dma(which, u, 'kv-1')
        o = []
        fr = [(qb, ks) for qb in range(4) for ks in range(4)]
        for n in range(0, 16, 2):
            ts = []
            for qb, ks in fr[n:n + 2]:
                a = vACC + 32 * ks + 4 * qb
                o += self.pack(a + 16, a, a + 16)
                ts.append(a + 16)
            for op in ('v_permlane32_swap_b32', 'v_permlane16_swap_b32'):
                for t in ts:
                    o += ['%s v%d, v%d' % (op, t, t + 2), '%s v%d, v%d' % (op, t + 1, t + 3)]
            for (qb, ks), t in zip(fr[n:n + 2], ts):
                o += ['v_accvgpr_write_b32 a%d, v%d' % (aQ + 16 * qb + 4 * ks + r, t + r) for r in range(4)]
        self.sprinkle(o, jobs, every=self.opt('q_every', 2))
        self.stamp()
        e('@sec P1')
        e('s_barrier', need=['w13'])
        self.g16('v', vS, 0, vP + 12)
        for nb in range(4):
            self.put(self.gelu4(vS + 4 * nb, vX + 2 * nb, vP + 4 * (nb & 1), vP + 10, scale=self.F1))
        for p in range(2):
            e('buffer_store_dwordx4 %s, v%d, %s, s%d offen offset:%d sc1' % (vr('v', vX + 4 * p, 4), vACT, srd(SH), sHO, 1024 * p), tag='hst')
        self.stamp()

    def p3(self):
        e = self.s
        self.stamp()
        e('@sec P3')
        acc = aV
        self.put(self.waddr(vT, vT + 4, '0x%x' % (WREG + 8192)))
        self.g16('a', acc, aK + 32, vT)
        X, R, PK = vX, vX + 16, vX + 32
        P = lambda b: vr('v', b, 2)
        for k in range(8):
            e('v_accvgpr_read_b32 v%d, a%d' % (PK + k, aRES + k))
        for k in range(8):
            e('v_lshlrev_b32 v%d, 16, v%d\nv_and_b32 v%d, 0xffff0000, v%d' % (R + 2 * k, PK + k, R + 2 * k + 1, PK + k))
        e('v_mov_b32 v%d, %s' % (PK + 8, f2u(1.0 / CSCALE)))
        for k in range(16):
            e('v_accvgpr_read_b32 v%d, a%d' % (X + k, acc + k))
        for k in range(8):
            e('v_pk_fma_f32 %s, %s, %s, %s op_sel_hi:[1,0,1]' % (P(X + 2 * k), P(R + 2 * k), P(PK + 8), P(X + 2 * k)))
        for k in range(8):
            e('v_cvt_pk_bf16_f32 v%d, v%d, v%d' % (PK + k, X + 2 * k, X + 2 * k + 1))
        e('s_add_u32 s%d, s%d, 0x2000' % (sT1, sX1O))
        for p in range(2):
            e('buffer_store_dwordx4 %s, v%d, %s, s%d offen sc1' % (vr('v', PK + 4 * p, 4), vACT, srd(SWS), sT1 if p else sX1O))
        for k in range(8):
            e('v_lshlrev_b32 v%d, 16, v%d\nv_and_b32 v%d, 0xffff0000, v%d' % (X + 2 * k, PK + k, X + 2 * k + 1, PK + k))
            e('v_accvgpr_write_b32 a%d, v%d' % (aX1 + k, PK + k))
        for k in range(4):
            e('v_pk_add_f32 %s, %s, %s' % (P(R + 2 * k), P(X + 2 * k), P(X + 8 + 2 * k)))
        e('v_pk_add_f32 %s, %s, %s\nv_pk_add_f32 %s, %s, %s' % (P(R), P(R), P(R + 2), P(R + 4), P(R + 4), P(R + 6)))
        e('v_pk_add_f32 %s, %s, %s\nv_add_f32 v%d, v%d, v%d' % (P(R), P(R), P(R + 4), R + 8, R, R + 1))
        self.put(self.lanesum(R + 8, R + 10))
        e('v_mul_f32 v%d, %s, v%d' % (R + 8, f2u(1.0 / 64), R + 8))
        for k in range(8):
            e('v_pk_add_f32 %s, %s, %s op_sel_hi:[1,0] neg_lo:[0,1] neg_hi:[0,1]' % (P(X + 2 * k), P(X + 2 * k), P(R + 8)))
        for k in range(8):
            e('v_pk_fma_f32 %s, %s, %s, %s' % (P(R), P(X + 2 * k), P(X + 2 * k), P(R)) if k else 'v_pk_mul_f32 %s, %s, %s' % (P(R), P(X), P(X)))
        e('v_add_f32 v%d, v%d, v%d' % (R + 9, R, R + 1))
        e('v_lshlrev_b32 v%d, 3, v%d\nv_mov_b32 v%d, 0x%x\nv_cmp_gt_u32 vcc, 16, v%d' % (R, vL, R + 1, OOB, vL))
        self.put(self.lanesum(R + 9, R + 10))
        e('v_cndmask_b32 v%d, v%d, v%d, vcc' % (R, R + 1, R))
        e('buffer_store_dwordx2 %s, v%d, %s, s%d offen sc1' % (P(R + 8), R, srd(SWS), sSTO), tag='x1st')
        self.stamp()
        e('@sec attention 1b')

    def krd(self, u, f):
        kb, ks = f >> 2, f & 3
        return 'ds_read_b128 %s, v%d offset:%d' % (vr('a', aK + 32 * (u & 1) + 4 * f, 4), vKA + ks, KRING + 8192 * (u & 3) + 4096 * kb)

    def vrd(self, u, h):
        db, g = h >> 1, h & 1
        return 'ds_read_b64_tr_b16 %s, v%d offset:%d' % (vr('a', aV + 32 * (u & 1) + 4 * db + 2 * g, 2), vTR + db, 8192 * (u & 3) + 4096 * g)

    def rowsum(self, h):
        return 'v_smfmac_f32_16x16x64_bf16 %s, %s, %s, v%d' % (vr('a', aL + 4 * h, 4), vr('a', aONES, 4), vr('v', vP + 8 * h, 8), vIDX)

    def segment(self, seg, NS, sched, loop=None, inline=None):
        e = self.s
        NU = NS // 4
        side, chk, fill = {}, {}, {}

        def spread(jobs, n, stop, rate=3):
            jobs = list(jobs)
            while jobs:
                assert n < stop, 'side jobs do not fit'
                room = (3 if (n & 7) >= 4 or n >= NS - 8 else 1) - (n in chk) - len(side.get(n, []))
                if (n & 7) == 7:
                    room = min(room, 2 - (n in chk) - len(side.get(n, [])))
                room = min(room, rate)
                while room > 0 and jobs:
                    side.setdefault(n, []).append(jobs.pop(0))
                    room -= 1
                n += 1
        sched(spread, chk, fill)
        lab = 'L_attn%d' % seg
        if loop:
            e('s_mov_b32 s%d, %d' % (sCNT, (loop[1] - loop[0]) // 16))
        e('s_barrier', need=['kv-1', '*lg'])
        self.put([self.krd(0, f) for f in range(8)])
        carry, dead = [], 0
        for n in range(NS + 4):
            u, qb, T, r8 = n >> 2, n & 3, n >> 3, n & 7
            if inline and n in inline:
                inline[n]()
            inloop = loop and loop[0] <= n < loop[1]
            if self.opt('astamp', 0) and n % 8 == 0 and not (loop and loop[0] <= n <= loop[1]) and not (inline and n in inline):
                self.stamp('s%d_%d' % (seg, n))
            if loop and n == loop[0]:
                self.stamp('pre')
            if inloop and (n - loop[0]) % 16 == 0:
                e('@rep %s %d' % (lab, n))
            if loop and n == loop[1]:
                e('@endrep ' + lab)
                self.stamp('loop')
            p = Plan()
            if n < NS:
                for kb in range(2):
                    d = vr('v', vS + 8 * (n & 1) + 4 * kb, 4)
                    for i, ks in enumerate(range(3, -1, -1) if (kb and self.opt('qsnake', 1)) else range(4)):
                        p.add(mfma(d, vr('a', aK + 32 * (u & 1) + 16 * kb + 4 * ks, 4), vr('a', aQ + 16 * qb + 4 * ks, 4), '0' if i == 0 else None))
            if n >= 4:
                for db in range(8):
                    p.add(mfma(vr('v', vACC + 16 * db + 4 * qb, 4), vr('a', aV + 32 * ((u - 1) & 1) + 4 * db, 4), vr('v', vP + 4 * qb, 4),
                               '0' if (n < 8 and seg == 0) else None))
            order = self.opt('morder', 0)
            if order and len(p.mf) == 16:
                m = p.mf
                if order == 1:
                    p.mf = m[:4] + m[8:12] + m[4:8] + m[12:]
                if order == 2:
                    p.mf = [m[k // 2 + 4 * (k % 2)] for k in range(8)] + m[8:]
                if order == 3:
                    p.mf = [m[k // 2 + 8 * (k % 2)] for k in range(16)]
            ex, cv = [], []
            if 1 <= n <= NS:
                sb, pb = vS + 8 * ((n - 1) & 1), vP + 4 * ((n - 1) & 3)
                ex = ['v_exp_f32 v%d, v%d' % (sb + r, sb + r) for r in range(8)]
                cv = ['v_cvt_pk_bf16_f32 v%d, v%d, v%d' % (pb + r, sb + 2 * r, sb + 2 * r + 1) for r in range(4)]
            ds = []
            if u + 1 < NU:
                ds += [self.krd(u + 1, 2 * qb), self.krd(u + 1, 2 * qb + 1)]
            if u < NU:
                ds += [self.vrd(u, 4 * qb + h) for h in range(4)]
            self.kv_nt = n >= self.opt('nt_from%d' % seg, 999) and n < self.opt('nt_to%d' % seg, 999)
            dm = self.kv_dma('K', 2, 'k2') if (n == 0 and seg) else []
            if r8 < 4:
                which, unit = (('K', 2 * T + 3), ('V', 2 * T + 2), ('K', 2 * T + 4), ('V', 2 * T + 3))[r8]
                if unit < NU:
                    dm += self.kv_dma(which, unit, 'kv%d' % T)
            dm = self.flat(dm + side.get(n, []))
            sm = self.rowsum(0) if (qb == 3 and n < NS) else self.rowsum(1) if (qb == 1 and n >= 5) else None
            g = p.g
            if n in fill:
                assert not carry
                carry, dead = fill[n]
            if len(p.mf) == 16:
                if r8 == 0:
                    g[0]['sc'].append('s_barrier')
                if n == 4 and seg:
                    g[0]['sc'].append(Ins('s_barrier', need=['k2']))
                if r8 == 7 and n < NS - 1:
                    g[14]['sc'].append(Ins('@need', need=['kv%d' % T if 2 * T + 2 < NU else '*lg', '*lg']))
                if inloop and (n - loop[0]) % 16 == 15:
                    g[10]['sc'].append('s_sub_u32 s%d, s%d, 1' % (sCNT, sCNT))
                    g[12]['sc'].append('s_cmp_lg_u32 s%d, 0' % sCNT)
                    g[15]['end'].append('s_cbranch_scc1 ' + lab)
                vs = [9, 13] if r8 == 7 else [5, 9, 13]
                if n in chk:
                    g[vs.pop()]['end'] += chk[n]
                assert len(dm) <= len(vs), (n, len(dm))
                used = vs[:len(dm)]
                prev, pend = p.jobs(dm, used)
                p.scalars(pend, prev + 1, 16)
                if r8 == 7:
                    dpos = (1, 1, 3, 5, 5, 7)
                else:
                    dpos = [x for x in range(1, 16, 2) if x not in used and not g[x]['end']]
                    if len(dpos) < len(ds):
                        dpos = [1] + dpos
                for k, x in enumerate(ds):
                    g[dpos[k]]['ds'].append(x)
                for k, x in enumerate(ex):
                    g[2 * k]['va'].append(x)
                for k, x in enumerate(cv):
                    g[4 * k + 3]['va'].append(x)
                if sm:
                    g[7]['end'].append(sm)
            else:
                seq = [pre + [d] + post for pre, d, post in dm]
                if n == 2:
                    seq[0] = ['s_barrier'] + seq[0]
                seq += [[x] for x in ds]
                for k, x in enumerate(seq):
                    g[k * 8 // max(8, len(seq))]['ds'] += x
                lag = 2 if n < 4 else 0
                for k in range(len(ex)):
                    g[min(k + lag, 7)]['va'].append(ex[k])
                    if k % 2 == 1:
                        g[min(k + lag + 1, 7)]['va'].append(cv[k // 2])
                if sm:
                    g[3]['end'].append(sm)
            carry = p.fill(carry)
            if carry and n + 1 >= dead:
                g[-1]['va'] += carry
                carry = []
            p.emit(self)
        self.stamp()

    def warm(self, buf, vo, so, offs):
        return [Job('buffer_load_dwordx4 %s, v%d, %s, s%d offen offset:%d' % (vr('a', aDUMMY, 4), vo, srd(buf), so, o)) for o in offs]

    def attention1(self):
        e = self.s
        e('@sec attention 1a')
        U, F, G = vX + 48, vT + 4, vT
        N1, P3 = self.opt('n1', 96), self.opt('p3', 40)
        f0 = ('v_and_b32 v%d, 3, v%d\nv_min_u32 v%d, 2, v%d\n' % (U, vL, U, U) +
              'v_add3_u32 v%d, v%d, s%d, -1\nv_med3_i32 v%d, v%d, 0, 31\nv_lshlrev_b32 v%d, 3, v%d' % (U, U, sT, U, U, vPOFF, U)).split('\n')
        f1 = ('v_bfe_u32 v%d, v%d, 1, 1\nv_lshl_add_u32 v%d, v%d, 1, -1\n' % (U, vL, U, U) +
              'v_bfe_u32 v%d, v%d, 3, 1\nv_mul_i32_i24 v%d, v%d, v%d\n' % (U + 1, vL, U, U, U + 1) +
              'v_add_u32 v%d, s%d, v%d\nv_max_i32 v%d, 0, v%d\nv_min_i32 v%d, 0x7f, v%d\n' % (U, sTBG, U, U, U, U, U) +
              'v_and_b32 v%d, 7, v%d\nv_lshl_or_b32 v%d, v%d, 3, v%d\n' % (U + 1, vL, U, U, U + 1) +
              'v_lshlrev_b32 v%d, 7, v%d\nv_add_u32 v%d, 0x%x, v%d' % (U, U, F, FLAG_OFF, U)).split('\n')
        f2 = ('v_and_b32 v%d, 15, v%d\nv_lshl_add_u32 v%d, s%d, 4, v%d\nv_and_b32 v%d, 48, v%d' % (U, vL, U, sTBG, U, U + 1, vL)).split('\n')
        for g, dlt in enumerate((-1, 1, -2, 2)):
            f2 += ['v_add_u32 v%d, %d, v%d' % (U + 2, dlt, U), 'v_and_or_b32 v%d, v%d, 15, v%d' % (U + 3, U + 2, U + 1),
                   'v_bfe_u32 v%d, v%d, 4, 8' % (U + 2, U + 2), 'v_lshl_or_b32 v%d, v%d, 10, v%d' % (U + 3, U + 2, U + 3),
                   'v_lshlrev_b32 v%d, 4, v%d' % (U + 3, U + 3), 'v_add_u32 v%d, 0x%x, v%d' % (G + g, 4096 * g, U + 3)]
        f3 = ('v_lshrrev_b32 v%d, 4, v%d\nv_and_b32 v%d, 15, v%d\nv_mul_u32_u24 v%d, 3584, v%d\n' % (vT, vL, vT + 1, vL, vT + 2, vT) +
              'v_lshl_add_u32 v%d, v%d, 4, v%d\nv_lshlrev_b32 v%d, 8, v%d\nv_lshl_or_b32 v%d, v%d, 3, v%d\n' % (vT + 3, vT + 1, vT + 2, vT, vT, vT, vT + 1, vT) +
              'v_lshl_add_u32 v%d, s%d, 10, v%d\nv_add_u32 v%d, 0x%x, v%d\n' % (vT, sTBG, vT, vT + 4, ST_OFF, vT) +
              'v_and_b32 v%d, 7, v%d\nv_lshl_or_b32 v%d, s%d, 3, v%d\n' % (vT, vL, vT, sTBG, vT) +
              'v_lshlrev_b32 v%d, 7, v%d\nv_add_u32 v%d, 0x%x, v%d' % (vT, vT, vPOFF, FLAG_OFF + 131072, vT)).split('\n')
        A = vS
        f4 = ['v_accvgpr_read_b32 v%d, a%d' % (A + r, aSTAT + r) for r in range(4)]
        f4 += ['v_add_f32 v%d, v%d, v%d' % (A + 4, A, A + 2)] + self.lanesum(A + 4, A + 8)
        f4 += ['v_mul_f32 v%d, 0x3e000000, v%d' % (A + 4, A + 4), 'v_sub_f32 v%d, v%d, v%d' % (A, A, A + 4), 'v_sub_f32 v%d, v%d, v%d' % (A + 2, A + 2, A + 4),
               'v_mul_f32 v%d, v%d, v%d' % (A, A, A), 'v_fmac_f32 v%d, v%d, v%d' % (A, A + 2, A + 2), 'v_add_f32 v%d, v%d, v%d' % (A + 1, A + 1, A + 3),
               'v_fmac_f32 v%d, 0x42800000, v%d' % (A + 1, A)] + self.lanesum(A + 1, A + 8)
        f4 += ['v_mov_b32 v%d, %s' % (A + 6, f2u(1e-5)), 'v_fmac_f32 v%d, %s, v%d' % (A + 6, f2u(1.0 / 512), A + 1), 'v_rsq_f32 v%d, v%d' % (A + 6, A + 6),
               'v_lshl_add_u32 v%d, s%d, 14, v%d' % (vT + 3, sW, vACT), 'v_mul_f32_e64 v%d, -v%d, v%d' % (A + 4, A + 4, A + 6)]
        f4 += self.waddr(vTR, vT, 's%d' % sRING)
        self.put(f0)

        def sched(spread, chk, fill):
            c0, c1, c2 = 10, P3 - 15, N1 - 25
            chk[c0] = self.poll_check(SDBG, 8) + [Ins('v_mov_b32 v%d, v%d' % (vPOFF, F))]
            chk[c1] = self.poll_check(SWS, 1)
            chk[c2] = self.poll_check(SWS, 1)
            fill[4], fill[10], fill[P3], fill[N1 + 1] = (f1, 10), (f2, c1 + 1), (f3, P3 + 4), (f4, N1 + 4)
            spread([self.flag_store(0, ['hst']), self.poll_load(SDBG)], 4, 6, 1)
            spread([self.poll_load(SWS)], c1 - 5, c1 - 4)
            w2 = []
            for k in range(4):
                w2 += self.whalf('w2', k, 2 + k)
            spread(w2, 4, P3 - 16, 2)
            spread([Job('buffer_load_dwordx4 %s, v%d, %s, 0 offen offset:%d sc1' % (vr('v', vX + 4 * k, 4), G + (k >> 2), srd(SH), 1024 * (k & 3)))
                    for k in range(16)], c1 + 1, P3 - 2, 2)
            spread([self.flag_store(1, ['x1st'])], P3 + 4, P3 + 5)
            spread(self.warm(SW3, vT + 3, sW3W, (0, 256)) + self.warm(SW4, vACT, sW4W, (0, 768)) + self.warm(SCODE, vACT, sCW, (0,)), P3 + 5, P3 + 8, 2)
            spread([self.poll_load(SWS)], c2 - 5, c2 - 4)
            spread([Job('buffer_load_dwordx2 %s, v%d, %s, 0 offen offset:%d sc1' % (vr('a', aSTAT + 2 * k, 2), vT + 4, srd(SWS), 128 * k)) for k in range(2)]
                   + self.gather('v', vX, sX1I, 0, 'sc1 nt'), c2 + 1, N1 - 5, 1)
            w3 = []
            for k in range(6):
                w3 += self.whalf('w3', k, k)
            spread(w3, N1 - 20, N1)
        self.segment(0, N1, sched, inline={P3: self.p3})

    def h2a(self, tb, slot):
        return 16384 + (tb & 1) * 8192 + (tb >> 1) * 32768 + slot * 1024

    def mlp(self):
        e = self.s
        P = lambda b: vr('v', b, 2)
        e('@sec LN x1')
        e('s_barrier', need=['*lg'])
        for ks in range(16):
            t = vP + 8 * (ks & 1)
            for k in range(4):
                e('v_lshlrev_b32 v%d, 16, v%d\nv_and_b32 v%d, 0xffff0000, v%d' % (t + 2 * k, vX + 4 * ks + k, t + 2 * k + 1, vX + 4 * ks + k))
            for k in range(4):
                e('v_pk_fma_f32 %s, %s, %s, %s op_sel_hi:[1,0,0]' % (P(t + 2 * k), P(t + 2 * k), P(vS + 6), P(vS + 4)))
            for k in range(4):
                e('v_cvt_pk_bf16_f32 v%d, v%d, v%d' % (vX + 4 * ks + k, t + 2 * k, t + 2 * k + 1))
            e('ds_write_b128 v%d, %s offset:%d' % (vT + 3, vr('v', vX + 4 * ks, 4), 1024 * ks))
        e('s_barrier', need=['*lg'])
        self.stamp()
        e('@sec P5')
        piece = lambda h: self.whalf('w3', h, h) if h < 16 else self.whalf('w4', h - 16, h)
        p = self.gemm(16, 0, lambda gi: 'w3%d' % gi, lambda gi, b: vX + 16 * b, lambda gi: gi == 0, lambda gi: gi,
                      lambda k, tb: (vACT, (tb * 16 + k) * 1024), {gi: piece(gi + 5) for gi in range(1, 16)})
        HW, A7, KC = vT, vT + 1, vT + 2
        f = ('v_lshl_add_u32 v%d, s%d, 11, v%d\nv_and_b32 v%d, s%d, v%d\nv_lshl_add_u32 v%d, v%d, 10, v%d\n' % (HW, sW, vACT, A7, sJ, vONE, A7, A7, vACT) +
             'v_mov_b32 v%d, %s\n' % (KC, f2u(-K1)) +
             'v_lshlrev_b32 v%d, 7, v%d\nv_mov_b32 v%d, 0x%x\nv_cmp_gt_u32 vcc, 2, v%d\n' % (vS, vL, vS + 1, OOB, vL) +
             'v_and_b32 v%d, 7, v%d\nv_lshl_add_u32 v%d, v%d, 2, s%d\nv_cndmask_b32 v%d, v%d, v%d, vcc\n' % (vS + 2, vL, vPOFF, vS + 2, sCF, vFLAG, vS + 1, vS) +
             'v_and_b32 v%d, 15, v%d\nv_lshlrev_b32 v%d, 10, v%d\n' % (vS, vL, vS, vS) +
             'v_lshrrev_b32 v%d, 4, v%d\nv_lshl_or_b32 v%d, v%d, 3, v%d' % (vS + 1, vL, vW1, vS + 1, vS) +
             '\nv_lshl_or_b32 v%d, v%d, 4, v%d' % (vW2, vS + 1, vS)).split('\n')
        assert not p.fill(f)
        p.emit(self)
        self.stamp()
        e('@sec gelu')
        e('s_barrier')
        o, n = [], 0
        for pp in range(2):
            for tb in range(4):
                d = vS + 4 * (n % 4)
                for g in range(2):
                    o += self.gelu4(vX + 16 * (2 * pp + g) + 4 * tb, d + 2 * g, vP + 4 * g, KC)
                n += 1
                o.append('ds_write_b128 v%d, %s offset:%d' % (HW, vr('v', d, 4), self.h2a(tb, pp)))
        jobs = piece(21)
        for which, u in (('K', 0), ('K', 1), ('V', 0), ('V', 1)):
            jobs += self.kv_dma(which, u, 'kv-1')
        self.sprinkle(o, jobs, start=self.opt('gelu_start', 41), every=self.opt('gelu_every', 20))
        self.touch(1)
        e('s_barrier', need=['*lg'])
        self.stamp()
        e('@sec P7')
        accB = (vS, vP, vX, vX + 32)
        p = self.gemm(14, 16, lambda gi: 'w4%d' % gi, lambda gi, b: accB[b] if gi >= 7 else vX + 16 * b, lambda gi: gi % 7 == 0, lambda gi: gi % 7,
                      lambda k, tb: (A7, self.h2a(tb, k)), {gi: piece(16 + gi + 5) for gi in range(1, 9)})
        for pp, (lo, hi) in enumerate(((16 * 6 + 10, 16 * 7 + 8), (16 * 7 + 3, 16 * 7 + 12))):
            pk = []
            for tb in range(4):
                a = vX + 32 * pp + 4 * tb
                pk += self.pack(a + 16, a, a + 16)
            p.g[hi - 1]['va'] += p.fill(pk, lo, hi)
        pk = self.vaddr_restore()
        for tb in range(4):
            pk += self.pack(vP + 4 * tb, vS + 4 * tb, vP + 4 * tb)
        rest = p.fill(pk[:4], 16 * 13 + 2) + p.fill(pk[4:], 16 * 13 + 9)
        p.emit(self)
        self.put(rest)
        for tb in range(4):
            self.put(self.pack(vX + 32 + 4 * tb, vX + 4 * tb, vX + 32 + 4 * tb))
        for r in range(0, 16, 2):
            e('v_pk_mov_b32 %s, %s, %s op_sel:[0,1]' % (P(vX + r), P(vP + r), P(vP + r)))
        self.yfrag = {(0, 0): vX + 16, (0, 1): vX + 48, (1, 0): vX, (1, 1): vX + 32}
        self.stamp()

    def part_flag(self, word, need):
        return Job(Ins('buffer_store_dword v%d, v%d, %s, s%d offen offset:%d sc1' % (vONE, vFLAG, srd(SWS), sFP, 4 * word), need=need))

    def attention2(self):
        e = self.s
        e('@sec attention 2a')
        N2 = 256 - self.opt('n1', 96)
        H, T = self.opt('head2', 32), N2 - self.opt('tail2', 32)

        def sched(spread, chk, fill):
            chk[T + 5] = self.poll_check(SWS, 1) + [Ins('v_add_u32 v%d, 32, v%d' % (vPOFF, vPOFF))]
            spread([self.part_store(self.yfrag[h, pp] + 4 * tb, YP_OFF + 65536 * pp + 16384 * tb + 1024 * h, 'yst')
                    for h in range(2) for pp in range(2) for tb in range(4)], 4, H - 8, 1)
            spread([self.part_flag(0, ['yst'])], H - 4, H - 3)
            spread(self.warm(SWO, vACT, sWOW, (0, 1024, 2048, 3072)) + self.warm(SCODE, vACT, sCW, (0,)), H - 3, H, 2)
            spread([self.poll_load(SWS)], T, T + 1)
            spread([Job('buffer_load_dwordx2 %s, v%d, %s, s%d offen offset:%d' % (vr('a', aRES + 2 * nb, 2), vW1, srd(SX), sXO, 512 * (nb >> 1) + 32 * (nb & 1)))
                    for nb in range(4)], T + 4, T + 8, 2)
            spread(self.gather('v', vX, sPI, YP_OFF, 'sc1 nt'), T + 6, N2 - 6, 1)
            wo = []
            for k in range(6):
                wo += self.whalf('wo', k, k)
            spread(wo, N2 - 12, N2)
        self.segment(1, N2, sched, loop=(H, T))
        self.o_epilogue()

    def o_epilogue(self):
        e = self.s
        e('@sec O epilogue')
        e('L_oepi:')
        for r in range(8):
            e('v_accvgpr_read_b32 v%d, a%d' % (vS + r, aL + r))
        for qb in range(4):
            e('v_add_f32 v%d, v%d, v%d' % (vS + 2 * qb, vS + 2 * qb, vS + 2 * qb + 1))
        B = vS + 8
        for qb in range(4):
            e('v_subrev_u32 v%d, 0x2b800000, v%d' % (B + qb, vS + 2 * qb))
        e('v_max3_u32 v%d, v%d, v%d, v%d\nv_max_u32 v%d, v%d, v%d' % (B, B, B + 1, B + 2, B, B, B + 3))
        e('v_cmp_lt_u32 vcc, 0x28000000, v%d' % B)
        e('v_and_b32 v%d, 3, v%d\nv_lshlrev_b32 v%d, 12, v%d\nv_lshl_add_u32 v%d, s%d, 2, v%d' % (B + 1, vL, B + 1, B + 1, B + 1, sW, B + 1))
        e('s_or_b32 s%d, vcc_lo, vcc_hi' % sT0)
        e('v_mov_b32 v%d, s%d' % (B, sT0))
        e('ds_write_b32 v%d, v%d' % (B + 1, B))
        for qb in range(4):
            e('v_rcp_f32 v%d, v%d' % (vS + 2 * qb, vS + 2 * qb))
        e('v_lshl_add_u32 v%d, s%d, 12, v%d' % (vP, sW, vACT))
        e('s_lshl_b32 s%d, s%d, 12\nv_mov_b32 v%d, s%d' % (sT0, sW, B + 1, sT0))
        e('s_barrier', need=['*lg'])
        e('ds_read_b128 %s, v%d' % (vr('v', B + 4, 4), B + 1))
        for qb in range(4):
            for ks in range(4):
                a = vACC + 32 * ks + 4 * qb
                for h in (0, 2, 16, 18):
                    e('v_pk_mul_f32 %s, %s, %s op_sel_hi:[1,0]' % (vr('v', a + h, 2), vr('v', a + h, 2), vr('v', vS + 2 * qb, 2)))
                self.put(self.pack(a + 16, a, a + 16))
                if qb == 0 and ks < 2:
                    if ks == 0:
                        continue
                    e('v_or3_b32 v%d, v%d, v%d, v%d\nv_or_b32 v%d, v%d, v%d' % (B, B + 4, B + 5, B + 6, B, B, B + 7))
                    e('v_cmp_ne_u32 vcc, 0, v%d\ns_cbranch_vccnz L_slow\nL_ofine:' % B)
                    e('ds_write_b128 v%d, %s' % (vP, vr('v', vACC + 16, 4)))
                e('ds_write_b128 v%d, %s offset:%d' % (vP, vr('v', a + 16, 4), (16 * qb + ks) * 1024))
        self.put(self.waddr(vTR, vT, 's%d' % sRING))
        e('s_barrier', need=['*lg'])
        self.stamp()
        self.slow_path()

    def slow_path(self):
        main, self.s = self.s, Stream()
        e = self.s
        M = vT
        e('L_slow:\ns_cmp_lg_u32 s%d, 0\ns_cbranch_scc1 L_ofine\ns_mov_b32 s%d, 1' % (sPASS, sPASS))
        e('s_waitcnt vmcnt(0) lgkmcnt(0)')
        for ps in range(2):
            e('s_mov_b32 s%d, 0\ns_mov_b32 s%d, 0\ns_mov_b32 s%d, 64' % (sKO, sVO, sCNT))
            if ps == 0:
                for qb in range(4):
                    e('v_mov_b32 v%d, 0xff800000' % (M + qb))
            else:
                for qb in range(4):
                    for op in ('v_permlane32_swap_b32', 'v_permlane16_swap_b32'):
                        e('v_mov_b32 v%d, v%d\n%s v%d, v%d\nv_max_f32 v%d, v%d, v%d' % (vS, M + qb, op, vS, M + qb, M + qb, M + qb, vS))
                for r in range(128):
                    e('v_mov_b32 v%d, 0' % (vACC + r))
                for r in range(8):
                    e('v_accvgpr_write_b32 a%d, 0' % (aL + r))
            e('L_slow%d:\ns_barrier' % ps)
            self.emit_jobs(self.kv_dma('K', 0, 'k') + (self.kv_dma('V', 0, 'k') if ps else []))
            e('s_barrier', need=['k'])
            self.put([self.krd(0, f) for f in range(8)] + ([self.vrd(0, h) for h in range(16)] if ps else []))
            e('s_waitcnt lgkmcnt(0)')
            for qb in range(4):
                for kb in range(2):
                    for ks in range(4):
                        e(mfma(vr('v', vS + 4 * kb, 4), vr('a', aK + 16 * kb + 4 * ks, 4), vr('a', aQ + 16 * qb + 4 * ks, 4), '0' if ks == 0 else None))
                if ps == 0:
                    for r in range(0, 8, 2):
                        e('v_max3_f32 v%d, v%d, v%d, v%d' % (M + qb, M + qb, vS + r, vS + r + 1))
                    continue
                for r in range(8):
                    e('v_sub_f32 v%d, v%d, v%d' % (vS + r, vS + r, M + qb))
                for r in range(8):
                    e('v_exp_f32 v%d, v%d' % (vS + r, vS + r))
                for r in range(4):
                    e('v_cvt_pk_bf16_f32 v%d, v%d, v%d' % (vP + 4 * qb + r, vS + 2 * r, vS + 2 * r + 1))
                for db in range(8):
                    e(mfma(vr('v', vACC + 16 * db + 4 * qb, 4), vr('a', aV + 4 * db, 4), vr('v', vP + 4 * qb, 4)))
                if qb & 1:
                    e(self.rowsum(qb >> 1))
            e('s_nop 7\ns_sub_u32 s%d, s%d, 1\ns_cmp_lg_u32 s%d, 0\ns_cbranch_scc1 L_slow%d' % (sCNT, sCNT, sCNT, ps))
        e('s_barrier\ns_branch L_oepi')
        e.insert_waits()
        e.pad_hazards()
        self.tail.append(e.text())
        self.s = main

    SEL = vT

    def reduce(self, acc, f, regs, ks, first=False):
        return [mfma(vr('v', acc + 4 * (2 * (k & 1) + g), 4), vr('v', self.SEL + 2 - 2 * g, 4), vr(f, regs + 4 * k, 4), '0' if (first and k < 2) else None)
                for k in ks for g in range(2)]

    def collect(self, acc, regs, base):
        e, L = self.s, 'L_c'
        NEW, N = sT0, sT1
        e('s_mov_b32 s%d, 0x80000' % sT3)
        e('%s_top:\ns_cmp_eq_u32 s%d, 0xff\ns_cbranch_scc1 %s_end' % (L, sDONE, L))
        e('%s_poll:' % L)
        e.add(self.poll_load(SWS).ins)
        e('s_waitcnt vmcnt(0)\nv_cmp_eq_u32 vcc, 1, v%d\ns_and_b32 s%d, vcc_lo, 0xff' % (vPRES, NEW))
        e('s_andn2_b32 s%d, s%d, s%d\ns_cbranch_scc1 %s_go' % (NEW, NEW, sDONE, L))
        e('s_sub_u32 s%d, s%d, 1\ns_cbranch_scc0 %s_poll\ns_branch %s_end' % (sT3, sT3, L, L))
        e('%s_go:\ns_or_b32 s%d, s%d, s%d\ns_bcnt1_i32_b32 s%d, s%d' % (L, sDONE, sDONE, NEW, N, NEW))
        for n in range(1, 8):
            e('s_cmp_eq_u32 s%d, %d\ns_cbranch_scc1 %s_ld%d' % (N, n, L, 8 - n))
        for q in range(8):
            e('%s_ld%d:\ns_ff1_i32_b32 s%d, s%d\ns_bitset0_b32 s%d, s%d' % (L, q, sT2, NEW, NEW, sT2))
            e('s_lshl_b32 s%d, s%d, 11\ns_add_u32 s%d, s%d, s%d' % (sT2, sT2, sT2, sT2, base))
            for p in range(2):
                e('buffer_load_dwordx4 %s, v%d, %s, s%d offen offset:%d sc1' % (vr('a', regs + 8 * q + 4 * p, 4), vACT, srd(SWS), sT2, 1024 * p))
        for n in range(1, 8):
            e('s_cmp_eq_u32 s%d, %d\ns_cbranch_scc1 %s_mm%d' % (N, n, L, 8 - n))
        for q in range(8):
            e('%s_mm%d:' % (L, q))
            self.put(self.reduce(acc, 'a', regs, (2 * q, 2 * q + 1)))
        e('s_branch %s_top\n%s_end:' % (L, L))

    def p6_final(self):
        e = self.s
        P = lambda b: vr('v', b, 2)
        e('@sec P6')
        NE = self.opt('p6_early', 6)
        od = list(range(32 - 2 * NE)) + list(range(32 - 2 * NE, 32, 2)) + list(range(33 - 2 * NE, 32, 2))
        p = self.gemm(32, 0, lambda gi: 'wo%d' % od[gi], lambda gi, b: vACC + 64 * (od[gi] & 1) + 16 * b, lambda gi: gi < 2, lambda gi: od[gi] >> 1,
                      lambda k, tb: (vACT, (tb * 16 + k) * 1024), {gi: self.whalf('wo', od[gi + 5], gi + 5) for gi in range(1, 27)})
        pk, st = [[], []], [[], []]
        for h in range(2):
            for pp in range(2):
                for tb in range(4):
                    a = vACC + 64 * h + 32 * pp + 4 * tb
                    pk[h].append(self.pack(a + 16, a, a + 16))
                    st[h].append(self.part_store(a + 16, SP_OFF + 65536 * pp + 16384 * tb + 1024 * h, 'sst'))
        if NE:
            pos = [16 * g + o for g in range(max(27, 33 - NE), 32) for o in (2, 10)][:8]
            for k, q in enumerate(pos):
                p.jobs(self.flat([st[0][k]]), [q], lo=q - 2)
            for k, q in enumerate(pos):
                assert not p.fill(pk[0][k], 16 * (32 - NE) + 2, q)
            pk[0], st[0] = pk[0][len(pos):], st[0][len(pos):]
        SEL, ZZ, XF, SS, E, M = self.SEL, vS, vP, vX, vX + 16, vX + 32
        t = vKA
        f = ('v_lshrrev_b32 v%d, 4, v%d\nv_bfe_u32 v%d, v%d, 2, 2\nv_and_b32 v%d, 1, v%d\nv_lshlrev_b32 v%d, 4, v%d\n' % (t + 1, vL, t, vL, t + 2, vL, t + 2, t + 2) +
             'v_mov_b32 v%d, 0x3f80\nv_lshlrev_b32 v%d, v%d, v%d\n' % (t + 3, t + 2, t + 2, t + 3) +
             'v_cmp_eq_u32 vcc, v%d, v%d\nv_mov_b32 v%d, 0\nv_mov_b32 v%d, 0\n' % (t, t + 1, SEL, SEL + 1) +
             'v_cndmask_b32 v%d, 0, v%d, vcc\nv_and_b32 v%d, 2, v%d\nv_cmp_eq_u32 vcc, 0, v%d\n' % (t + 2, t + 2, t, vL, t) +
             'v_mov_b32 v%d, 0\nv_mov_b32 v%d, 0\nv_cndmask_b32 v%d, 0, v%d, vcc\n' % (SEL + 4, SEL + 5, SEL + 2, t + 2) +
             'v_sub_u32 v%d, v%d, v%d' % (SEL + 3, t + 2, SEL + 2)).split('\n')
        assert not p.fill(f, 0, 32)
        red = self.reduce(XF, 'a', aRES, (0, 1), True) + self.reduce(ZZ, 'a', aX1, (0, 1), True) + self.reduce(ZZ, 'v', vX, range(16))
        for k, m in enumerate(red):
            p.g[16 * (4 + k // 4) + 4 * (k % 4) + 1]['end'].append(m)
        gate = []
        for r in range(16):
            gate += ['v_mul_f32 v%d, %s, v%d' % (E + r, f2u(-math.log2(math.e)), ZZ + r)]
        for op in ('v_exp_f32 v%d, v%d', 'v_add_f32 v%d, 1.0, v%d', 'v_rcp_f32 v%d, v%d'):
            gate += [op % (E + r, E + r) for r in range(16)]
        gate += ['v_mul_f32 v%d, v%d, v%d' % (ZZ + r, ZZ + r, E + r) for r in range(16)]
        g0 = self.opt('spoll', 0)
        if g0:
            p.jobs(self.flat([self.poll_load(SWS)]), [16 * g0 + 7])
            p.g[16 * (g0 + 2) + 7]['end'] += ['v_cmp_eq_u32 vcc, 1, v%d' % vPRES, 's_and_b32 s%d, vcc_lo, 0xff' % sDONE, 's_not_b32 s%d, s%d' % (sT0, sDONE)]
            pos = [16 * g + o for g in range(g0 + 3, 32) for o in ((6, 7, 14, 15) if g >= 27 else (7, 15))][:16]
            assert len(pos) == 16
            jobs = self.gather('a', 64, sPI, SP_OFF, 'sc1')
            for k, jb in enumerate(jobs):
                jb.ins = Ins(jb.ins.text.replace(' v%d,' % vACT, ' v%d,' % (M + k // 2)))
                p.jobs(self.flat([jb]), [pos[k]], lo=pos[k] - 2)
            for q in range(8):
                assert not p.fill(['v_bfe_u32 v%d, s%d, %d, 1' % (M + q, sT0, q), 'v_lshl_or_b32 v%d, v%d, 30, v%d' % (M + q, M + q, vACT)],
                                  16 * (g0 + 2) + 8, pos[2 * q])
        rest = p.fill(gate, 16 * 14 + 4)
        assert not rest
        p.scalars(['s_add_u32 s%d, s%d, 0x%x' % (sKO, sPI, SP_OFF)] + ([] if g0 else ['s_mov_b32 s%d, 0' % sDONE]), 0, 16)
        p.emit(self)
        self.stamp('P6')
        e('@sec s epilogue')
        self.sprinkle(sum(pk[0] + pk[1], []), st[0] + st[1], start=4, every=4)
        self.stamp('issued')
        if g0:
            self.put(self.reduce(SS, 'a', 64, range(16), True))
        else:
            self.put(['v_mov_b32 v%d, 0' % (SS + r) for r in range(16)])
        self.emit_jobs([self.part_flag(8, ['sst'])])
        self.stamp('acked')
        self.collect(SS, 64, sKO)
        self.stamp('collected')
        for nb in range(4):
            for r in range(4 * nb, 4 * nb + 4, 2):
                e('v_pk_fma_f32 %s, %s, %s, %s' % (P(XF + r), P(SS + r), P(ZZ + r), P(XF + r)))
            for k in range(2 * nb, 2 * nb + 2):
                e('v_cvt_pk_bf16_f32 v%d, v%d, v%d' % (E + k, XF + 2 * k, XF + 2 * k + 1))
            om = self.opt('outmode', 2)
            if om < 2:
                e('buffer_store_dwordx2 %s, v%d, %s, s%d offen offset:%d%s' % (P(E + 2 * nb), vW1, srd(SOUT), sXO, 512 * (nb >> 1) + 32 * (nb & 1), ' sc1' * om))
            elif nb & 1:
                t = E + 2 * nb - 2
                for op in ('v_permlane32_swap_b32', 'v_permlane16_swap_b32'):
                    e('%s v%d, v%d\n%s v%d, v%d' % (op, t, t + 2, op, t + 1, t + 3))
                e('buffer_store_dwordx4 %s, v%d, %s, s%d offen offset:%d sc1' % (vr('v', t, 4), vW2, srd(SOUT), sXO, 512 * (nb >> 1)))
        if 'diag' in self.o:
            self.stamp('end')
            if self.o['diag'].startswith('xcc'):
                e('v_mov_b32 v%d, 4\nbuffer_load_dword v%d, v%d, %s, 0 offen sc1\ns_waitcnt vmcnt(0)' % (vT, vT + 1, vT, srd(SDBG)))
                e('v_readfirstlane_b32 s100, v%d\ns_nop 3\ns_bcnt1_i32_b32 s100, s100\ns_mul_i32 s100, s100, 1000\ns_mov_b32 s98, 1000' % (vT + 1))
            e('s_sub_u32 s100, s100, s98\ns_mul_i32 s100, s100, %s\ns_min_u32 s100, s100, 100000' % self.o['diag'].split(':')[2])
            e('s_memrealtime s[98:99]\ns_waitcnt lgkmcnt(0)\ns_add_u32 s100, s100, s98')
            e('L_diag:\ns_memrealtime s[98:99]\ns_waitcnt lgkmcnt(0)\ns_sub_u32 s98, s98, s100\ns_cmp_lt_i32 s98, 0\ns_cbranch_scc1 L_diag')
        if self.prof:
            e('s_waitcnt vmcnt(0)')
            self.stamp('end')
            e('v_accvgpr_read_b32 v%d, a%d\nv_accvgpr_read_b32 v%d, a%d' % (vT, aPROF, vT + 1, aPROF + 1))
            e('s_lshl_b32 s%d, s2, 11\ns_lshl_b32 s%d, s%d, 9\ns_add_u32 s%d, s%d, s%d' % (sT0, sT1, sW, sT0, sT0, sT1))
            e('s_add_u32 s%d, s%d, 0x%x\nv_lshlrev_b32 v%d, 3, v%d' % (sT0, sT0, PROF_OFF, vT + 2, vL))
            e('buffer_store_dwordx2 %s, v%d, %s, s%d offen' % (vr('v', vT, 2), vT + 2, srd(SWS), sT0))

    def build(self, verbose=False):
        for phase in (self.prologue, self.p0, self.p2, self.q_p1, self.attention1, self.mlp, self.attention2, self.p6_final):
            phase()
        s = self.s
        s.insert_waits()
        pads = s.pad_hazards()
        est = s.estimate()
        s.fold()
        fixes = s.align(self.opt('touch', 1))
        if self.opt('touch', 1):
            n, cut = len(s.pages), self.opt('touch_cut', 15)
            assert s.marks['touch1'] < cut + 1 or cut >= n
            for r, (lo, hi) in enumerate(((0, min(cut, n)), (min(cut, n), n))):
                for k in range(lo, hi):
                    s.pages[k].text = 's_cbranch_execz ' + ('L_pg%d' % (k + 4) if k + 4 < hi else 'L_touched%d' % r)
                for x in s.l:
                    for w in range(4):
                        if x.text.endswith(' L_touch%d_%d' % (r, w)):
                            x.text = x.text.replace('L_touch%d_%d' % (r, w), 'L_pg%d' % (lo + w) if lo + w < hi else 'L_touched%d' % r)
        if verbose:
            print('alignment fixes:', fixes, 'pages:', len(s.pages), s.marks)
        if verbose:
            print('hazard pads:', pads)
            for name, cyc, nm in est:
                print('  %-18s est %6d cycles, %5d mfma (%6d)' % (name, cyc, nm, nm * 16))
            print('  total', sum(c for _, c, _ in est))
        ref = open('cdna_kernels/%s.s.ref' % NAME).read().split('\n')
        head = [l for l in ref if l.startswith(';') and '@launch' not in l]
        o = head + ['; @launch grid=(256,1,1) block=(256,1,1) lds=163840',
                    '.amdgcn_target "amdgcn-amd-amdhsa--gfx950"', '.text', '.globl %s_kernel' % NAME, '.p2align 8',
                    '.type %s_kernel,@function' % NAME, '%s_kernel:' % NAME]
        o.append(s.text())
        o.append('L_end:\n    s_endpgm')
        o += self.tail
        o.append('L_code_end:\n    s_endpgm')
        o.append('''.section .rodata,"a"
.p2align 6
.amdhsa_kernel %s_kernel
  .amdhsa_next_free_vgpr 512
  .amdhsa_next_free_sgpr 102
  .amdhsa_accum_offset 256
  .amdhsa_group_segment_fixed_size 0
  .amdhsa_kernarg_size 104
  .amdhsa_user_sgpr_count 2
  .amdhsa_user_sgpr_kernarg_segment_ptr 1
  .amdhsa_system_sgpr_workgroup_id_x 1
  .amdhsa_float_denorm_mode_32 3
.end_amdhsa_kernel''' % NAME)
        return '\n'.join(o) + '\n'


if __name__ == '__main__':
    out = sys.argv[1] if len(sys.argv) > 1 else 'k.s'
    opts = dict(a.split('=') for a in sys.argv[2:])
    open(out, 'w').write(Gen(False, opts).build(True))
    open(out.replace('.s', '_prof.s'), 'w').write(Gen(True, opts).build())
    open(out.replace('.s', '_lite.s'), 'w').write(Gen(2, opts).build())
```

```python
import re

TRANS = ('v_exp_f32', 'v_log_f32', 'v_rcp_f32', 'v_rsq_f32', 'v_sqrt_f32')
_REG = re.compile(r'^(-?)(?:abs\()?([vas])(?:(\d+)|\[(\d+):(\d+)\])\)?$')


def regs_of(tok):
    tok = tok.strip()
    if tok in ('vcc', 'exec', 'm0', 'scc'):
        return [tok]
    if tok in ('vcc_lo', 'vcc_hi'):
        return ['vcc']
    if tok in ('exec_lo', 'exec_hi'):
        return ['exec']
    if tok.startswith('|') and tok.endswith('|'):
        tok = tok[1:-1]
    m = _REG.match(tok)
    if not m:
        return []
    f = m.group(2)
    if m.group(3) is not None:
        return [(f, int(m.group(3)))]
    return [(f, i) for i in range(int(m.group(4)), int(m.group(5)) + 1)]


class Ins:
    __slots__ = ('text', 'op', 'kind', 'rd', 'wr', 'tag', 'need', 'srcc', 'srcab', 'note', 'nst')

    def __init__(self, text, tag=None, need=None):
        self.text = text
        self.tag = tag
        self.need = need or []
        self.rd, self.wr, self.srcc, self.srcab = set(), set(), set(), set()
        self.nst = 1
        t = text.split(';')[0].strip()
        if t.endswith(':') or t.startswith('.') or t.startswith('@') or not t:
            self.op, self.kind, self.nst = t, 'meta', 0
            return
        parts = t.split(None, 1)
        op = self.op = parts[0]
        rest = parts[1] if len(parts) > 1 else ''
        ops, depth, cur = [], 0, ''
        for ch in rest:
            if ch == '[':
                depth += 1
            if ch == ']':
                depth -= 1
            if ch == ',' and depth == 0:
                ops.append(cur.strip())
                cur = ''
            else:
                cur += ch
        mods = ''
        if cur.strip():
            last = cur.strip().split(None, 1)
            ops.append(last[0])
            mods = last[1] if len(last) > 1 else ''
        R = [regs_of(o) for o in ops]
        rd, wr = self.rd, self.wr
        if op.startswith('v_mfma') or op.startswith('v_smfmac'):
            self.kind = 'mfma' if op.startswith('v_mfma') else 'smfma'
            wr.update(R[0])
            self.srcab.update(R[1] + R[2])
            if self.kind == 'mfma':
                self.srcc.update(R[3])
            else:
                self.srcc.update(R[0])
                self.srcab.update(R[3])
            rd.update(self.srcab | self.srcc)
        elif op.startswith('v_'):
            base = op.replace('_e32', '').replace('_e64', '')
            self.kind = 'trans' if base in TRANS else 'valu'
            wr.update(R[0])
            for r in R[1:]:
                rd.update(r)
            if base.startswith(('v_fmac', 'v_dot2c', 'v_writelane')):
                rd.update(R[0])
            if base.startswith(('v_swap', 'v_permlane')):
                rd.update(R[0])
                wr.update(R[1])
            if base.startswith('v_cmpx'):
                wr.add('exec')
            if base.startswith(('v_add_co', 'v_sub_co', 'v_addc_co')):
                wr.update(R[1])
        elif op.startswith(('ds_read', 'ds_bpermute')):
            self.kind = 'dsr'
            wr.update(R[0])
            for r in R[1:]:
                rd.update(r)
        elif op.startswith('ds_'):
            self.kind = 'dsw'
            for r in R:
                rd.update(r)
        elif op.startswith(('buffer_load', 'global_load')):
            if re.search(r'\blds\b', mods):
                self.kind = 'dma'
                for r in R:
                    rd.update(r)
                rd.add('m0')
            else:
                self.kind = 'vld'
                wr.update(R[0])
                for r in R[1:]:
                    rd.update(r)
        elif op.startswith('buffer_'):
            self.kind = 'vst'
            for r in R:
                rd.update(r)
            if op.startswith('buffer_atomic') and re.search(r'\bsc0\b', mods):
                wr.update(R[0])
            if op.endswith(('x3', 'x4')):
                self.srcc.update(R[0])
        elif op == 's_waitcnt':
            self.kind = 'wait'
        elif op == 's_barrier':
            self.kind = 'bar'
        elif op == 's_nop':
            self.kind = 'nop'
            self.nst = int(ops[0], 0) + 1
        elif op.startswith(('s_load', 's_memtime', 's_memrealtime')):
            self.kind = 'smem'
            wr.update(R[0])
            for r in R[1:]:
                rd.update(r)
        elif op.startswith(('s_branch', 's_cbranch', 's_endpgm', 's_setpc', 's_sleep', 's_setprio')):
            self.kind = 'ctl'
        elif op.startswith('s_cmp') or op.startswith('s_bitcmp'):
            self.kind = 'salu'
            for r in R:
                rd.update(r)
        elif op.startswith('s_'):
            self.kind = 'salu'
            wr.update(R[0])
            for r in R[1:]:
                rd.update(r)
            if 'saveexec' in op:
                wr.add('exec')
        else:
            raise ValueError('unknown instruction: ' + text)


def isv(r):
    return isinstance(r, tuple) and r[0] in 'va'


def iss(r):
    return (isinstance(r, tuple) and r[0] == 's') or r == 'vcc'


EAGER = 10
VEC = ('valu', 'trans')
MF = ('mfma', 'smfma')
VM = ('vld', 'vst', 'dma')
LG = ('dsr', 'dsw')


def hazard(p, c):
    n = 0
    if p.kind in MF:
        if c.kind in MF:
            if p.wr & c.srcab:
                n = max(n, 8)
            if p.wr & c.srcc and p.wr != c.srcc:
                n = max(n, 6)
            if p.wr & c.wr and not (p.wr & c.srcc):
                n = max(n, 6 if p.wr != c.wr else 0)
        elif c.kind in VEC or c.kind in VM or c.kind in LG:
            if p.wr & (c.rd | c.wr):
                n = max(n, 8)
            if c.kind in VEC and p.srcc & c.wr:
                n = max(n, 3)
    elif p.kind in VEC:
        pv = {r for r in p.wr if isv(r)}
        ps = {r for r in p.wr if iss(r)}
        if c.kind in MF and pv & c.rd:
            n = max(n, 2)
        if c.kind in MF and 'exec' in p.wr:
            n = max(n, 4)
        if c.kind in VEC:
            if p.kind == 'trans' and pv & c.rd:
                n = max(n, 1)
            if (c.op.startswith('v_permlane') or 'dpp' in c.op) and pv & c.rd:
                n = max(n, 2)
            if c.op.startswith(('v_readlane', 'v_readfirstlane')) and pv & c.rd:
                n = max(n, 1)
            if ps & c.rd:
                n = max(n, 4 if c.op.startswith(('v_readlane', 'v_writelane')) else 2)
        if c.kind in VM and ps & c.rd:
            n = max(n, 5)
        if c.kind == 'salu' and ps & c.rd:
            n = max(n, 1)
    elif p.kind == 'salu':
        if 'm0' in p.wr and c.kind == 'dma':
            n = max(n, 1)
    elif p.kind == 'vst':
        if p.srcc & c.wr:
            n = max(n, 2)
    return n


class Stream:
    def __init__(self, known=()):
        self.l = []
        self.known = set(known)

    def __call__(self, text, tag=None, need=None):
        for line in text.strip('\n').split('\n'):
            if line.strip():
                self.l.append(Ins(line.strip(), tag, need))
        return self

    def add(self, ins):
        self.l.append(ins)

    def insert_waits(self):
        out = []
        issued = {'vm': [], 'lg': []}
        done = {'vm': 0, 'lg': 0}
        pend = {}
        tags = {}
        mark = []
        cnt = {'vm': 0, 'lg': 0}
        LIM = {'vm': 62, 'lg': 14}
        for ins in self.l:
            req = {'vm': -1, 'lg': -1}
            if ins.kind != 'meta':
                own = 'vm' if ins.kind in VM else 'lg' if ins.kind in LG else None
                for r in ins.rd | ins.wr:
                    if r in pend:
                        c, s = pend[r]
                        if c == own and r not in ins.rd:
                            continue
                        req[c] = max(req[c], s)
            for t in ins.need:
                if t == '*vm':
                    req['vm'] = cnt['vm'] - 1
                elif t == '*lg':
                    req['lg'] = cnt['lg'] - 1
                elif t in self.known:
                    pass
                else:
                    assert t in tags, 'unknown tag ' + t
                    c, s = tags[t]
                    req[c] = max(req[c], s)
            w = {c: s for c, s in req.items() if s >= done[c]}
            if w:
                pos = len(out)
                k = pos - 1
                while k >= 0 and pos - k <= 4 and out[k].kind not in MF and out[k].kind not in ('meta', 'ctl', 'bar'):
                    k -= 1
                if k >= 0 and pos - k <= 4 and out[k].kind in MF:
                    mk = mark[k]
                    if all(mk[c] > s for c, s in w.items()):
                        pos = k + 1
                base = mark[pos - 1] if pos > 0 else {'vm': 0, 'lg': 0}
                if 'lg' in w:
                    k, nm = pos - 1, 0
                    while k >= 0 and nm < EAGER and pos - k < 60:
                        nm += out[k].kind in MF
                        k -= 1
                    if nm == EAGER and k >= 0:
                        w['lg'] = max(w['lg'], mark[k]['lg'] - 1)
                val = {c: min(base[c] - 1 - s, LIM[c]) for c, s in w.items()}
                merged = False
                for q in (pos - 1, pos):
                    if 0 <= q < len(out) and out[q].kind == 'wait' and getattr(out[q], 'note', None) is not None:
                        old = out[q].note
                        for c, v in val.items():
                            old[c] = min(old.get(c, 99), v)
                        out[q].text = wait_text(old)
                        merged = True
                        break
                if not merged:
                    wi = Ins(wait_text(val))
                    wi.note = dict(val)
                    out.insert(pos, wi)
                    mark.insert(pos, dict(base))
                for c, v in val.items():
                    done[c] = max(done[c], base[c] - v)
                for r in [r for r, (c, s) in pend.items() if s < done[c]]:
                    del pend[r]
            if ins.kind == 'wait':
                ins.note = None
            if ins.kind == 'wait' and 'stamp' not in ins.text:
                m = re.search(r'vmcnt\((\d+)\)', ins.text)
                if m:
                    done['vm'] = max(done['vm'], cnt['vm'] - int(m.group(1)))
                m = re.search(r'lgkmcnt\((\d+)\)', ins.text)
                if m:
                    done['lg'] = max(done['lg'], cnt['lg'] - int(m.group(1)))
                for r in [r for r, (c, s) in pend.items() if s < done[c]]:
                    del pend[r]
            c = 'vm' if ins.kind in VM else 'lg' if ins.kind in LG else None
            if c:
                s = cnt[c]
                cnt[c] += 1
                for r in ins.wr:
                    pend[r] = (c, s)
                if ins.tag:
                    tags[ins.tag] = (c, s)
            if ins.op == '@need':
                continue
            out.append(ins)
            mark.append(dict(cnt))
        self.l = out

    def pad_hazards(self):
        out = []
        pads = 0
        for ins in self.l:
            if ins.kind not in ('meta', 'wait', 'nop', 'bar', 'ctl'):
                dist, need = 0, 0
                for p in reversed(out):
                    if dist >= 8:
                        break
                    h = hazard(p, ins)
                    if h > dist:
                        need = max(need, h - dist)
                    dist += p.nst
                if need:
                    n = Ins('s_nop %d' % (need - 1))
                    n.note = 'pad'
                    out.append(n)
                    pads += 1
            out.append(ins)
        self.l = out
        return pads

    def fold(self):
        out, i, l = [], 0, self.l
        while i < len(l):
            ins = l[i]
            if ins.kind == 'meta' and ins.op.startswith('@rep '):
                name = ins.op.split()[1]
                bodies, cur = [], []
                i += 1
                while not (l[i].kind == 'meta' and l[i].op == '@endrep ' + name):
                    if l[i].kind == 'meta' and l[i].op.startswith('@rep ' + name + ' '):
                        bodies.append(cur)
                        cur = []
                    else:
                        cur.append(l[i])
                    i += 1
                bodies.append(cur)
                t0 = [x.text for x in bodies[0]]
                for k, b in enumerate(bodies[1:]):
                    tb = [x.text for x in b]
                    if tb != t0:
                        for a_, b_ in zip(t0, tb):
                            if a_ != b_:
                                raise AssertionError('loop %s copy %d differs: %r vs %r' % (name, k + 1, a_, b_))
                        raise AssertionError('loop %s copy %d length differs' % (name, k + 1))
                out.append(Ins('.p2align 3'))
                out.append(Ins(name + ':'))
                out += bodies[0]
                i += 1
            else:
                out.append(ins)
                i += 1
        self.l = out

    def align(self, pages=False):
        import subprocess, tempfile, os
        uniq = sorted({x.text for x in self.l if x.kind not in ('meta', 'ctl') and 'L_' not in x.text})
        d = tempfile.mkdtemp()
        open(d + '/a.s', 'w').write('.amdgcn_target "amdgcn-amd-amdhsa--gfx950"\n.text\n' + '\n'.join(uniq) + '\n')
        subprocess.check_call(['clang', '-x', 'assembler', '-target', 'amdgcn-amd-amdhsa', '-mcpu=gfx950', '-c', d + '/a.s', '-o', d + '/a.o'])
        dis = subprocess.check_output(['llvm-objdump', '-d', '--mcpu=gfx950', d + '/a.o']).decode()
        sz = [4 * len(m.group(1).split()) for m in re.finditer(r'// [0-9A-F]{12}: ([0-9A-F ]+)', dis)]
        assert len(sz) == len(uniq)
        size = dict(zip(uniq, sz))
        def sizeof(x):
            return 0 if x.kind == 'meta' else 4 if x.kind == 'ctl' else size.get(x.text, 8)
        out, off, fixes = [], 0, 0
        l = self.l
        anchored, page = False, -1
        self.pages, self.marks = [], {}
        for i, x in enumerate(l):
            if x.kind == 'meta' and x.text.startswith('.p2align'):
                al = 1 << int(x.text.split()[1])
                if al == 4096:
                    off, anchored = 0, True
                off = (off + al - 1) // al * al
            if x.kind == 'meta' and x.op.startswith('@mark '):
                self.marks[x.op[6:]] = page
            if pages and anchored and off >> 12 > page and x.kind != 'meta' and (out[-1].kind in MF or off % 4096 >= 40 or
                                                                               not any(y.kind in MF for y in l[i:i + 5])):
                page = off >> 12
                out.append(Ins('L_pg%d:' % page))
                br = Ins('s_cbranch_execz L_end')
                self.pages.append(br)
                out.append(br)
                off += 4
            if off % 8 and x.kind in VEC and sizeof(x) == 8:
                run, k = 0, i
                while k < len(l) and l[k].kind not in MF and sizeof(l[k]) == 8:
                    run, k = run + 1, k + 1
                pv = out[-1]
                if run >= 3 and pv.kind in VEC and sizeof(pv) == 4 and not pv.op.startswith(('v_accvgpr', 'v_readfirst', 'v_permlane', 'v_swap')) and 'dpp' not in pv.op:
                    t = pv.text.replace(pv.op, pv.op + '_e64', 1)
                    size[t] = 8
                    pv.text = t
                    off += 4
                    fixes += 1
                elif run >= 6:
                    out.append(Ins('s_nop 0'))
                    off += 4
                    fixes += 1
            out.append(x)
            off += sizeof(x)
        self.l = out
        return fixes

    def estimate(self):
        res, sec = [], None
        t = mf = vec = 0
        t0, nm = 0, 0
        prev = None
        for ins in self.l:
            if ins.kind == 'meta':
                if ins.op.startswith('@sec '):
                    if sec:
                        res.append((sec, t - t0, nm))
                    sec, t0, nm = ins.op[5:], t, 0
                continue
            k = ins.kind
            if k in MF:
                s = max(t, mf, vec)
                mf, vec, t = s + 16, s + (8 if k == 'mfma' else 12), s + 4
                nm += 1
            elif k in VEC:
                s = max(t, vec)
                if ins.op.startswith(('v_pk_', 'v_dot2')):
                    s = max(s, mf)
                    mf = s + 4
                t = s + (8 if k == 'trans' or ins.op.startswith(('v_permlane', 'v_swap')) else 4)
            elif k in LG:
                s = max(t, vec) + (8 if prev in VEC else 0)
                t = s + 4
            elif k in VM:
                t = t + (8 if prev in VEC else 0) + 12
            elif k == 'nop':
                t += 4 * ins.nst
            else:
                t += 4
            prev = k
        if sec:
            res.append((sec, t - t0, nm))
        return res

    def text(self):
        o = []
        for ins in self.l:
            if ins.kind == 'meta':
                if ins.op.startswith('@'):
                    if ins.op.startswith('@sec '):
                        o.append('; ---- ' + ins.op[5:])
                    continue
                o.append(ins.text)
            else:
                o.append('    ' + ins.text)
        return '\n'.join(o) + '\n'


def wait_text(val):
    p = []
    if 'vm' in val:
        p.append('vmcnt(%d)' % val['vm'])
    if 'lg' in val:
        p.append('lgkmcnt(%d)' % val['lg'])
    return 's_waitcnt ' + ' '.join(p)


def vr(f, b, n=1):
    return '%s%d' % (f, b) if n == 1 else '%s[%d:%d]' % (f, b, b + n - 1)
```

```python
import math
import struct
import sys

sys.path.insert(0, 'work')
from asmgen import Ins, Stream, vr

NAME = 'recurrent_scan__gqa_block_cached__mixer_s_mlp__prompt'


def f2u(x):
    return '0x%08x' % struct.unpack('<I', struct.pack('<f', x))[0]


H_OFF = 0
X1_OFF = 0x200000
FLAG_OFF = 0x400000
ST_OFF = 0x600000
SP_OFF = 0x1000000
YP_OFF = 0x2000000
PROF_OFF = 0x8000000
OOB = 0x40000000

KRING, VRING = 0, 32768
WREG = 65536
WWAVE = 24576

SX, SK, SV, SWQ, SWO, SW1, SW2, SW3, SW4, SOUT, SDBG, SWS, SH, SCODE = range(4, 60, 4)
sT, sJ, sW, sTBG, sRING, sW2K = 60, 61, 62, 63, 64, 65
sO, sDONE, sKO, sVO, sCNT, sRET = 66, 67, 68, 69, 70, 71
sT0, sT1, sT2, sT3 = 72, 73, 74, 75
sC0 = 76
sPASS, sWSH = 78, 79
sST = 80
sHO, sX1O, sX1I, sSTO, sPO, sPI, sCF, sFP, sXO, sCW, sW3W, sW4W, sWOW, sSTEP = range(84, 98)
sRANK, sYO = sHO, sX1O

vL = 0
vTR = 1
vKA = 9
vACT = 13
vWN, vW3, vW2, vW1 = 14, 15, 16, 17
vDB = 18
vFLAG, vONE, vPOFF, vPRES = 22, 23, 24, 25
vT = 26
vIDX = 31
vS, vP = 32, 48
vX = 64
vACC = 128
aK, aV, aONES, aL, aX1, aQ = 0, 64, 128, 132, 140, 192
aPROF, aDUMMY, aSTAT, aRES, aONE2 = 150, 152, 156, 160, 168

CSCALE = math.log2(math.e) / math.sqrt(128.0)
K1 = 2 * 0.7978845608028654 * math.log2(math.e)
K2 = K1 * 0.044715


def srd(n):
    return 's[%d:%d]' % (n, n + 3)


def mfma(d, a, b, c=None):
    return 'v_mfma_f32_16x16x32_bf16 %s, %s, %s, %s' % (d, a, b, d if c is None else c)


class Job:
    def __init__(self, ins, pre=(), m0=None, post=()):
        self.ins = ins if isinstance(ins, Ins) else Ins(ins)
        self.pre, self.m0, self.post = list(pre), m0, list(post)


class Plan:
    def __init__(self):
        self.mf, self.g = [], []

    def add(self, m):
        self.mf.append(m)
        self.g.append(dict(sc=[], ds=[], vm=[], va=[], end=[]))
        return len(self.mf) - 1

    def cap(self, j):
        g = self.g[j]
        if g['vm'] or g['end']:
            return 0
        c = 1 if self.mf[j].startswith('v_smfmac') else 2
        return c - len(g['ds']) - sum(vcost(x) for x in g['va']) - max(0, len(g['sc']) - 1)

    def jobs(self, groups, pos, lo=0, avoid=()):
        prev, pend = lo - 1, []
        for (pre, d, post), p in zip(groups, pos):
            self.scalars(pend + pre, prev + 1, p, avoid, late=True)
            assert not self.g[p]['vm'], 'gap %d already holds a memory instruction' % p
            self.g[p]['vm'].append(d)
            prev, pend = p, post
        return prev, pend

    def scalars(self, sc, a, b, avoid=(), late=False):
        if not sc:
            return
        c = [j for j in range(a, b) if not self.g[j]['vm'] and not self.g[j]['sc'] and j not in avoid]
        if len(c) < len(sc):
            c = [j for j in range(a, b) if not self.g[j]['vm']]
        if not c:
            self.g[b]['sc'] += sc
            return
        c = c[-len(sc):] if late else c[:len(sc)]
        for k, x in enumerate(sc):
            self.g[c[min(k, len(c) - 1)]]['sc'].append(x)

    def fill(self, va, start=0, end=None):
        va, j = list(va), start
        end = len(self.mf) if end is None else end
        while va and j < end:
            if self.cap(j) >= vcost(va[0]):
                self.g[j]['va'].append(va.pop(0))
            else:
                j += 1
        return va

    def empty(self, start, n, step=1):
        res, j = [], start
        while len(res) < n:
            if not any(self.g[j][k] for k in ('sc', 'ds', 'vm', 'va', 'end')):
                res.append(j)
                j += step
            else:
                j += 1
        return res

    def emit(self, gen):
        for m, g in zip(self.mf, self.g):
            gen.put([m] + g['sc'] + g['vm'] + g['ds'] + g['va'] + g['end'])


def vcost(x):
    t = x.text if isinstance(x, Ins) else x
    return 2 if t.startswith(('v_exp', 'v_rcp', 'v_rsq', 'v_permlane')) else 1


class Gen:
    def __init__(self, prof=False, opts=None):
        self.s = Stream()
        self.tail = []
        self.prof = prof
        self.o = opts or {}
        self.nstamp = 0
        self.nlab = 0
        self.kv_nt = False

    def stamp(self, name=None):
        if 'diag' in self.o:
            a, b, k = self.o['diag'].split(':')
            sec = name or [x.op[5:] for x in self.s.l if x.kind == 'meta' and x.op.startswith('@sec ')][-1]
            for r, want in ((98, a), (100, b)):
                if sec.replace(' ', '_') == want:
                    self.s('s_waitcnt lgkmcnt(0) ; stamp\ns_memrealtime s[%d:%d]\ns_waitcnt lgkmcnt(0) ; stamp' % (r, r + 1))
            return
        if not self.prof or (self.prof == 2 and name not in ('kernarg', 'end', 'P0 end', 'P2 end', 'pre', 'loop')):
            return
        e = self.s
        sec = [x.op[5:] for x in e.l if x.kind == 'meta' and x.op.startswith('@sec ')][-1]
        self.tail.append('; @@' + (name or sec))
        e('s_waitcnt lgkmcnt(0) ; stamp')
        e('s_memtime s[%d:%d]\ns_memrealtime s[%d:%d]\ns_waitcnt lgkmcnt(0) ; stamp' % (sST, sST + 1, sST + 2, sST + 3))
        for k in range(2):
            e('v_accvgpr_read_b32 v%d, a%d' % (vONE, aPROF + k))
            e('s_nop 1\nv_writelane_b32 v%d, s%d, %d' % (vONE, sST + 2 * k, self.nstamp))
            e('v_accvgpr_write_b32 a%d, v%d' % (aPROF + k, vONE))
        e('v_mov_b32 v%d, 1' % vONE)
        self.nstamp += 1

    def stamp_items(self, name):
        main, self.s = self.s, Stream()
        self.s('@sec ' + name)
        self.stamp(name)
        items, self.s = self.s.l[1:], main
        return items

    def poll_load(self, buf):
        return Job('buffer_load_dword v%d, v%d, %s, 0 offen sc1' % (vPRES, vPOFF, srd(buf)))

    def poll_check(self, buf, val):
        self.nlab += 1
        n = self.nlab
        cmp = 'v_cmp_ne_u32' if val == 1 else 'v_cmp_gt_u32' if val else 'v_cmp_eq_u32'
        self.tail.append('''L_spin%(n)d:
    s_mov_b32 s%(c)d, 0x80000
L_spin%(n)d_loop:
    buffer_load_dword v%(r)d, v%(o)d, %(b)s, 0 offen sc1
    s_waitcnt vmcnt(0)
    %(cmp)s vcc, %(v)d, v%(r)d
    s_cbranch_vccz L_back%(n)d
    s_sub_u32 s%(c)d, s%(c)d, 1
    s_cbranch_scc0 L_spin%(n)d_loop
    s_branch L_back%(n)d''' % dict(n=n, c=sT3, r=vPRES, o=vPOFF, b=srd(buf), v=val, cmp=cmp))
        return [Ins('%s vcc, %d, v%d' % (cmp, val, vPRES)), Ins('s_cbranch_vccnz L_spin%d' % n), Ins('L_back%d:' % n)]

    def flag_store(self, phase, need):
        return Job(Ins('buffer_store_dword v%d, v%d, %s, s%d offen sc1' % (vONE, vFLAG, srd(SWS), sT2), need=need),
                   pre=['s_mov_b32 s%d, 0x%x' % (sT2, FLAG_OFF + phase * 131072)])

    def opt(self, k, d):
        return int(self.o.get(k, d))

    def touch(self, r):
        if not self.opt('touch', 1):
            return
        e = self.s
        e('@mark touch%d\ns_mov_b64 exec, 0' % r)
        for w in range(3):
            e('s_cmp_eq_u32 s%d, %d\ns_cbranch_scc1 L_touch%d_%d' % (sW, w, r, w))
        e('s_branch L_touch%d_3\nL_touched%d:\ns_mov_b64 exec, -1' % (r, r))

    def put(self, items):
        for x in items:
            self.s.add(x if isinstance(x, Ins) else Ins(x))

    def flat(self, jobs):
        res, m0 = [], None
        for jb in jobs:
            pre = list(jb.pre)
            if jb.m0 and jb.m0 != m0:
                pre.insert(0, jb.m0)
                m0 = jb.m0
            res.append((pre, jb.ins, list(jb.post)))
        return res

    def emit_jobs(self, jobs):
        for pre, d, post in self.flat(jobs):
            self.put(pre + [d] + post)

    def sprinkle(self, main, jobs, start=0, every=8):
        groups = self.flat(jobs)
        for k, x in enumerate(main):
            if groups and k >= start and (k - start) % every == 0:
                pre, d, post = groups.pop(0)
                self.put(pre + [d] + post)
            self.put([x])
        for pre, d, post in groups:
            self.put(pre + [d] + post)

    def whalf(self, name, k, h, small=False):
        buf, vo, stride, nat, off = {
            'wq': (SWQ, vDB, 8192, True, (k >> 1) * 32 * 8192 + (k & 1) * 128),
            'w1': (SW1, vW1, 1024, True, k * 32768),
            'w2': (SW2, vW2, 1024, False, k * 32768),
            'w3': (SW3, vW3, 3584, False, k * (64 if small else 32) * 3584),
            'w4': (SW4, vW2, 1024, False, (k % (4 if small else 8)) * 32768 + (k // (4 if small else 8)) * 512),
            'wo': (SWO, vWN, 1024, False, (k >> 1) * 32768 + (k & 1) * 512)}[name]
        rows = [16 * (a & 1) + 4 * (a >> 1) if nat else 8 * a for a in range(4)]
        return [Job(Ins('buffer_load_dwordx4 v%d, %s, s%d offen offset:%d %slds' % (vo, srd(buf), sO, 1024 * a, 'nt ' if name in self.o.get('wnt', 'none').split(',') else ''), tag='%s%d' % (name, k)),
                    pre=['s_mov_b32 s%d, 0x%x' % (sO, off + rows[a] * stride - 1024 * a)] if small is not None else
                    ['s_mul_i32 s%d, s%d, %d' % (sO, sSTEP, k) if a == 0 else 's_add_u32 s%d, s%d, 0x%x' % (sO, sO, 8 * stride - 1024)],
                    m0='s_add_u32 m0, s%d, 0x%x' % (sRING, (h % 6) * 4096)) for a in range(4)]

    def waddr(self, dst, t, base):
        return ['v_lshrrev_b32 v%d, 2, v%d' % (dst, vL), 'v_bfe_u32 v%d, v%d, 3, 2' % (t, vL), 'v_lshlrev_b32 v%d, 5, v%d' % (t, t),
                'v_lshl_or_b32 v%d, v%d, 7, v%d' % (dst, dst, t), 'v_and_b32 v%d, 3, v%d' % (t, vL), 'v_lshl_or_b32 v%d, v%d, 3, v%d' % (dst, t, dst),
                'v_add_u32 v%d, %s, v%d' % (dst, base, dst)] + ['v_xor_b32 v%d, 0x%x, v%d' % (dst + b, b << 5, dst) for b in range(1, 4)]

    def vaddr_restore(self):
        return ['v_xor_b32 v%d, 0x80, v%d' % (vTR + db, vTR + 4 + db) for db in range(4)]

    def lanesum(self, r, t):
        o = []
        for op in ('v_permlane32_swap_b32', 'v_permlane16_swap_b32'):
            o += ['v_mov_b32 v%d, v%d' % (t, r), '%s v%d, v%d' % (op, t, r), 'v_add_f32 v%d, v%d, v%d' % (r, r, t)]
        return o

    def gelu4(self, src, dst, tmp, k1, scale=None):
        o = []
        e = o.append
        P = lambda b: vr('v', b, 2)
        if scale is not None:
            for h in (0, 2):
                e('v_pk_mul_f32 %s, %s, %s op_sel_hi:[1,0]' % (P(src + h), P(src + h), P(scale)))
        for h in (0, 2):
            e('v_pk_mul_f32 %s, %s, %s' % (P(tmp + h), P(src + h), P(src + h)))
        for h in (0, 2):
            e('v_pk_fma_f32 %s, %s, s[%d:%d], %s op_sel_hi:[1,1,0]' % (P(tmp + h), P(tmp + h), sC0, sC0 + 1, P(k1)))
        for h in (0, 2):
            e('v_pk_mul_f32 %s, %s, %s' % (P(tmp + h), P(tmp + h), P(src + h)))
        for r in range(4):
            e('v_exp_f32 v%d, v%d' % (tmp + r, tmp + r))
        for h in (0, 2):
            e('v_pk_add_f32 %s, %s, 1.0 op_sel_hi:[1,0]' % (P(tmp + h), P(tmp + h)))
        for r in range(4):
            e('v_rcp_f32 v%d, v%d' % (tmp + r, tmp + r))
        for h in (0, 2):
            e('v_pk_mul_f32 %s, %s, %s' % (P(tmp + h), P(tmp + h), P(src + h)))
        for h in (0, 2):
            e('v_cvt_pk_bf16_f32 v%d, v%d, v%d' % (dst + h // 2, tmp + h, tmp + h + 1))
        return o

    def pack(self, d, a0, a1):
        return ['v_cvt_pk_bf16_f32 v%d, v%d, v%d' % (d + 3, a1 + 2, a1 + 3), 'v_cvt_pk_bf16_f32 v%d, v%d, v%d' % (d + 2, a1, a1 + 1),
                'v_cvt_pk_bf16_f32 v%d, v%d, v%d' % (d, a0, a0 + 1), 'v_cvt_pk_bf16_f32 v%d, v%d, v%d' % (d + 1, a0 + 2, a0 + 3)]

    def g16(self, accf, acc, ring, ad, fill=()):
        def kn(n):
            return (n & 15, n >> 4) if self.opt('chain16', 1) else (n >> 2, n & 3)

        def rd(n):
            ks, nb = kn(n)
            off = ((ks >> 2) & 1) * WWAVE + (ks & 3) * 4096
            return ['ds_read_b64_tr_b16 %s, v%d offset:%d' % (vr('a', ring + 4 * (n % 8) + 2 * g, 2), ad + nb, off + 2048 * g) for g in range(2)]
        AH = 6
        for n in range(AH):
            self.put(rd(n))
        p = Plan()
        for n in range(64):
            ks, nb = kn(n)
            p.add(mfma(vr(accf, acc + 4 * nb, 4), vr('a', ring + 4 * (n % 8), 4), vr('v', vX + 4 * ks, 4), '0' if ks == 0 else None))
            if n + AH < 64:
                p.g[n]['ds'] += rd(n + AH)
                if kn(n + AH)[0] == 7:
                    a = ad + kn(n + AH)[1]
                    p.g[n]['va'].append('v_add_u32 v%d, 0x%x, v%d' % (a, 2 * WWAVE, a))
            p.g[n]['va'] += fill[n:n + 1]
        p.emit(self)

    def gemm(self, h0, groups, actf, later, first_jobs=()):
        WF, AF, LEAD = 0, 32, 9
        p, par, h, blk, owner = Plan(), [], h0, [], []
        p.st = []
        for G, (tags, ak, acc, first) in enumerate(groups):
            par.append(par[-1] ^ (ak != groups[G - 1][1]) if G else 0)
            p.st.append(len(p.mf))
            c, flip = len(ak), 0
            for b in range(len(acc)):
                n = len(blk)
                blk.append(len(p.mf))
                for tb in (range(3, -1, -1) if b & 1 else range(4)):
                    for i, kk in enumerate(range(c - 1, -1, -1) if flip else range(c)):
                        p.add(mfma(vr('v', acc[b] + 4 * tb, 4), vr('a', WF + 8 * (n % 4) + 4 * kk, 4), vr('a', AF + 32 * par[G] + 16 * kk + 4 * tb, 4),
                                   '0' if (first and i == 0) else None))
                    flip ^= 1
            owner += [blk[-1]] * len(tags)
        N = len(p.mf)
        jobs, pos, q = list(first_jobs), [4 * k + 1 for k in range(len(first_jobs))], 4 * len(first_jobs) + 1
        rest = []
        for k, piece in enumerate(later):
            while k < len(owner) and q < owner[k]:
                q += 4
            for jb in piece:
                if q < N and k < len(owner) and not rest:
                    jobs.append(jb)
                    pos.append(q)
                    q += 4
                else:
                    rest.append(jb)
        p.rest, p.dma_end = rest, q
        p.jobs(self.flat(jobs), pos, avoid={x - 1 for x in blk})
        pre = []

        def place(ins, lo, use):
            for each, lead in ((1, LEAD), (2, LEAD), (2, LEAD - 2), (2, LEAD - 4)):
                c = [j for j in range(max(lo - 1, 0), use - lead + 1) if not p.g[j]['vm'] and (j + 1 not in blk or each == 2)
                     for _ in range(each - len(p.g[j]['ds']))]
                if len(c) >= len(ins) or lo == 0:
                    break
            assert len(c) >= len(ins) or lo == 0
            c = c[-len(ins):]
            pre.extend(ins[:len(ins) - len(c)])
            for j, x in zip(c, ins[len(ins) - len(c):]):
                p.g[j]['ds'].append(x)
        h, n = h0, 0
        for G, (tags, ak, acc, first) in enumerate(groups):
            for b in range(len(acc)):
                src = [(kk, b) if len(tags) == 2 else (0, b + 2 * kk) for kk in range(2)]
                ins = [Ins('ds_read_b64_tr_b16 %s, v%d offset:%d' % (vr('a', WF + 8 * (n % 4) + 4 * kk + 2 * g, 2), vTR + lb, ((h + pc) % 6) * 4096 + 2048 * g),
                           need=[tags[pc]]) for kk, (pc, lb) in enumerate(src) for g in range(2)]
                place(ins, blk[n - 3] if n >= 4 else 0, blk[n])
                n += 1
            h += len(tags)
        for G, (tags, ak, acc, first) in enumerate(groups):
            if G == 0 or ak != groups[G - 1][1]:
                ins = ['ds_read_b128 %s, v%d offset:%d' % ((vr('a', AF + 32 * par[G] + 16 * kk + 4 * tb, 4),) + actf(k, tb)) for tb in range(4) for kk, k in enumerate(ak)]
                prev = [x for x in range(G) if par[x] == par[G]]
                lo = p.st[prev[-1] + 1] if prev else 0
                if G == 0:
                    pre[:0] = ins
                    continue
                span = max(1, (p.st[G] - LEAD - lo) // len(ins))
                for k, x in enumerate(ins):
                    j = lo + k * span
                    while p.g[j]['vm'] or len(p.g[j]['ds']) >= 2 or (j + 1 in blk and span > 1):
                        j += 1
                    assert j < p.st[G] - 4 + k
                    p.g[j]['ds'].append(x)
        self.put(pre)
        return p

    def part_store(self, reg, off, tag, base=sPO):
        return Job(Ins('buffer_store_dwordx4 %s, v%d, %s, s%d offen sc1' % (vr('v', reg, 4), vACT, srd(SWS), sT1), tag=tag),
                   pre=['s_add_u32 s%d, s%d, 0x%x' % (sT1, base, off)])

    def gather(self, f, dst, soff, off, flags):
        return [Job('buffer_load_dwordx4 %s, v%d, %s, s%d offen offset:%d %s' % (vr(f, dst + 4 * k, 4), vACT, srd(SWS), sRET, 1024 * (k % 4), flags),
                    pre=['s_add_u32 s%d, s%d, 0x%x' % (sRET, soff, off + 1024 * k)] if k % 4 == 0 else []) for k in range(16)]

    LR, LB = vW1, vFLAG
    XS, XW, RA, F1 = vP + 8, vP + 9, vP + 10, vT + 4

    def prologue(self):
        e = self.s
        D = vr('a', aDUMMY, 4)
        e('@sec prologue')
        bufs = [(SX, 0, 0x200000), (SWQ, 24, 0x400000), (SWS, 96, 0x10000000), (SW1, 48, 0x80000), (SW2, 56, 0x80000), (SDBG, 88, 256), (SK, 8, 0x400000),
                (SV, 16, 0x400000), (SWO, 32, 0x400000), (SW3, 64, 0x1c0000), (SW4, 72, 0x1c0000), (SOUT, 80, 0x200000)]
        for b, off, _ in bufs[:2]:
            e('s_load_dwordx2 s[%d:%d], s[0:1], %d' % (b, b + 1, off))
        e('s_cmp_ge_u32 s2, 256\ns_cbranch_scc1 L_end')
        if self.o.get('diag', '').startswith('start'):
            e('s_memrealtime s[98:99]')
        if self.prof:
            e('v_accvgpr_write_b32 a%d, 0\nv_accvgpr_write_b32 a%d, 0' % (aPROF, aPROF + 1))
        e('s_getpc_b64 s[%d:%d]\nL_pc:' % (SCODE, SCODE + 1))
        e('s_mov_b32 s%d, L_code_end-L_pc\ns_mov_b32 s%d, 0x20000' % (SCODE + 2, SCODE + 3))
        e('s_lshr_b32 s%d, s2, 3\nv_lshlrev_b32 v%d, 4, v0\nv_lshl_add_u32 v%d, s%d, 12, v%d' % (sT, vT + 3, vT, sT, vT + 3))
        e('buffer_load_dwordx4 %s, v%d, %s, 0 offen' % (D, vT, srd(SCODE)))
        e('v_readfirstlane_b32 s%d, v0\ns_and_b32 s%d, s2, 7\nv_and_b32 v0, 63, v0' % (sW, sJ))
        e('s_lshr_b32 s%d, s%d, 6' % (sW, sW))
        e('s_lshl_b32 s%d, s%d, 2\ns_add_u32 s%d, s%d, s%d' % (sTBG, sT, sTBG, sTBG, sW))
        e('v_lshrrev_b32 v%d, 2, v%d\nv_and_b32 v%d, 3, v%d' % (vT + 1, vL, vT + 2, vL))
        e('v_lshlrev_b32 v%d, 10, v%d\nv_lshl_or_b32 v%d, v%d, 4, v%d' % (vT + 4, vT + 1, vT + 4, vT + 2, vT + 4))
        e('v_lshlrev_b32 v%d, 4, v%d' % (vACT, vL))
        e('s_lshl_b32 s%d, s%d, 14\ns_lshl_b32 s%d, s%d, 13\ns_lshl_b32 s%d, s%d, 10' % (sCNT, sTBG, sVO, sTBG, sT1, sJ))
        e('s_mov_b32 s%d, 0x200000\ns_mov_b32 s%d, 0x20000' % (SX + 2, SX + 3))
        e('s_sub_u32 s%d, 0x400000, s%d\ns_mov_b32 s%d, 0x20000' % (SWQ + 2, sT1, SWQ + 3))
        e('s_waitcnt lgkmcnt(0)')
        self.stamp('kernarg')
        e('s_add_u32 s%d, s%d, s%d\ns_addc_u32 s%d, s%d, 0' % (SWQ, SWQ, sT1, SWQ + 1, SWQ + 1))
        for b, off, _ in bufs[2:]:
            e('s_load_dwordx2 s[%d:%d], s[0:1], %d' % (b, b + 1, off))
        wl = [Job('buffer_load_dwordx4 %s, v%d, %s, s%d offen' % (D, vACT, srd(SWQ), sVO), post=['s_add_u32 s%d, s%d, 0x100000' % (sVO, sVO)]) for i in range(4)]
        nf = self.opt('wq_first', 1)
        self.emit_jobs(wl[:nf])
        xl = [Job('buffer_load_dwordx4 %s, v%d, %s, s%d offen offset:%d' % (vr('v', vX + 4 * ks, 4), vT + 4, srd(SX), sCNT, 64 * ks)) for ks in range(16)]
        nx = self.opt('x_first', 8)
        self.emit_jobs(xl[:nx])
        self.stamp('x issued')
        mark = len(e.l)

        def lin(dst, c, *terms):
            for k, (reg, mul) in enumerate(terms):
                e('s_mul_i32 s%d, s%d, 0x%x' % (dst if k == 0 else sT0, reg, mul & 0xffffffff))
                if k:
                    e('s_add_u32 s%d, s%d, s%d' % (dst, dst, sT0))
            if c:
                e('s_add_u32 s%d, s%d, 0x%x' % (dst, dst, c))
        lin(sRING, WREG, (sW, WWAVE))
        lin(sW2K, 0, (sW, 2048))
        e('v_mov_b32 v%d, 1' % vONE)
        XS, XW, RA = self.XS, self.XW, self.RA
        e('v_lshlrev_b32 v%d, 1, v%d\nv_xor_b32 v%d, v%d, v%d\nv_lshl_or_b32 v%d, v%d, 4, v%d' % (vT, vT + 2, vT, vT, vT + 1, vT, vT + 2, vT))
        e('v_lshlrev_b32 v%d, 4, v%d\nv_lshl_add_u32 v%d, s%d, 14, v%d' % (vT, vT, XW, sW, vT))
        e('v_lshrrev_b32 v%d, 4, v%d\nv_lshlrev_b32 v%d, 5, v%d\nv_xor_b32 v%d, v%d, v%d' % (vT, vL, vT, vT, XS, vT, vACT))
        e('v_lshrrev_b32 v%d, 5, v%d\nv_and_b32 v%d, 15, v%d\nv_mul_u32_u24 v%d, 18, v%d\nv_xor_b32 v%d, v%d, v%d' % (vT, vL, vT + 1, vL, vT, vT, vT, vT, vT + 1))
        e('v_bfe_u32 v%d, v%d, 4, 1\nv_lshl_or_b32 v%d, v%d, 1, v%d\nv_lshlrev_b32 v%d, 3, v%d' % (vT + 1, vL, vT, vT, vT + 1, vT, vT))
        lin(sT1, 0, (sW, 16384), (sJ, 1024))
        e('v_add_u32 v%d, s%d, v%d\nv_xor_b32 v%d, 64, v%d' % (RA, sT1, vT, RA + 1, RA))
        C, RN, RK = vT, vT + 1, vT + 2
        e('v_and_b32 v%d, 7, v%d\nv_bfe_u32 v%d, v%d, 4, 2\nv_lshlrev_b32 v%d, 1, v%d\nv_xor_b32 v%d, v%d, v%d' % (C, vL, RN, vL, RN, RN, C, C, RN))
        e('v_lshlrev_b32 v%d, 4, v%d\nv_lshrrev_b32 v%d, 3, v%d' % (C, C, RN, vL))
        e('v_and_b32 v%d, 4, v%d\nv_add_u32 v%d, v%d, v%d' % (RK, RN, RK, RK, RN))
        e('v_lshl_add_u32 v%d, v%d, 13, v%d\nv_lshl_add_u32 v%d, s%d, 8, v%d' % (vDB, RK, C, vDB, sW, vDB))
        e('v_lshl_add_u32 v%d, v%d, 10, v%d\nv_lshl_add_u32 v%d, s%d, 17, v%d' % (vW1, RK, C, vW1, sW, vW1))
        e('v_lshl_add_u32 v%d, v%d, 10, v%d' % (vWN, RN, C))
        e('v_and_b32 v%d, 64, v%d\nv_mad_u32_u24 v%d, v%d, 7, v%d' % (RK, C, vW2, RK, vWN))
        W1W, W2W = vP, vP + 1
        e('v_mov_b32 v%d, v%d\nv_mov_b32 v%d, v%d' % (W1W, vWN, W2W, vW2))
        e('v_lshl_add_u32 v%d, s%d, 17, v%d\nv_lshl_add_u32 v%d, s%d, 7, v%d' % (vW2, sW, vW2, vWN, sW, vWN))
        e('v_mul_u32_u24 v%d, 3584, v%d\nv_lshl_add_u32 v%d, s%d, 7, v%d\nv_add_u32 v%d, v%d, v%d' % (RN, RN, C, sW, C, vW3, RN, C))
        e('v_mov_b32 v%d, 0x%x' % (vT + 5, OOB))
        lin(sKO, 0, (sT, 16384))
        RS, Z = vP + 2, vP + 3
        e('v_lshrrev_b32 v%d, 2, v%d\nv_lshlrev_b32 v%d, 17, v%d' % (RS, vL, RS, RS))
        e('v_and_b32 v%d, 3, v%d\nv_lshl_or_b32 v%d, v%d, 10, v%d' % (Z, vL, RS, Z, RS))
        e('v_cmp_gt_u32 vcc, 0x80, v%d' % (vT + 3))
        lin(sT1, 0, (sTBG, 1024), (sJ, 128))
        e('v_cndmask_b32 v%d, v%d, v%d, vcc' % (RS, vT + 5, RS))
        e('v_lshrrev_b32 v%d, 9, v%d\nv_cmp_eq_u32 vcc, 1, v%d' % (Z, vT + 3, Z))
        e('v_lshlrev_b32 v%d, 2, v%d\nv_add_u32 v%d, 0x%x, v%d' % (Z, vL, Z, 0x40000 - 128, Z))
        e('v_cndmask_b32 v%d, v%d, v%d, vcc' % (RS, RS, Z))
        e('v_cmp_eq_u32 vcc, 0, v%d\nv_mov_b32 v%d, s%d\ns_add_u32 s%d, s%d, 0x%x' % (vL, vFLAG, sT1, sRET, sT1, FLAG_OFF))
        e('v_cndmask_b32 v%d, v%d, v%d, vcc' % (vFLAG, vT + 5, vFLAG))
        e('v_cmp_eq_u32 vcc, 0, v%d\nv_mov_b32 v%d, 0\ns_add_u32 s%d, s%d, 0x%x' % (vT + 3, Z, sSTO, sT1, ST_OFF))
        e('v_cndmask_b32 v%d, v%d, 0, vcc' % (vPOFF, vT + 5))
        e('v_and_b32 v%d, 15, v%d\nv_lshrrev_b32 v%d, 4, v%d' % (vT, vL, vT + 1, vL))
        e('v_xor_b32 v%d, v%d, v%d\nv_lshlrev_b32 v%d, 4, v%d\nv_lshl_or_b32 v%d, v%d, 8, v%d' % (vT + 1, vT + 1, vT, vT + 1, vT + 1, vKA, vT, vT + 1))
        for ks in range(1, 4):
            e('v_xor_b32 v%d, 0x%x, v%d' % (vKA + ks, 64 * ks, vKA))
        e('v_lshrrev_b32 v%d, 2, v%d\nv_and_b32 v%d, 7, v%d\nv_lshlrev_b32 v%d, 5, v%d' % (vT, vL, vT + 1, vT, vT + 1, vT + 1))
        e('v_lshl_or_b32 v%d, v%d, 8, v%d\nv_and_b32 v%d, 3, v%d\nv_lshl_or_b32 v%d, v%d, 3, v%d' % (vT, vT, vT + 1, vT + 1, vL, vT, vT + 1, vT))
        for db in range(4, 8):
            e('v_xor_b32 v%d, 0x%x, v%d' % (vTR + db, VRING | db << 5, vT))
        self.put(self.waddr(vTR, vT, 's%d' % sRING))
        e('v_bfe_i32 v%d, v%d, 1, 1\nv_and_b32 v%d, 0x3f803f80, v%d\nv_xor_b32 v%d, 0x3f803f80, v%d' % (vT, vL, vT + 1, vT, vT + 2, vT + 1))
        e('v_bfe_i32 v%d, v%d, 0, 1\nv_and_b32 v%d, 0xaaaaaaaa, v%d\nv_or_b32 v%d, 0x44444444, v%d' % (vT, vL, vT, vT, vIDX, vT))
        for r in range(4):
            e('v_accvgpr_write_b32 a%d, v%d\nv_accvgpr_write_b32 a%d, v%d' % (aONES + r, vT + 2, aONE2 + r, vT + 1))
        for r in range(8):
            e('v_accvgpr_write_b32 a%d, 0' % (aL + r))
        lin(sHO, 0, (sTBG, 1 << 14), (sJ, 1 << 11))
        lin(sX1I, X1_OFF, (sTBG, 1 << 14))
        lin(sX1O, 0, (sJ, 1 << 10), (sX1I, 1))
        lin(sPO, 0, (sT, 1 << 19), (sJ, 1 << 11), (sW, 1 << 17))
        lin(sPI, 0, (sT, 1 << 19), (sJ, 1 << 16), (sW, 1 << 14))
        lin(sCF, FLAG_OFF + 0x40000, (sT, 1 << 12), (sJ, 1 << 7))
        lin(sFP, FLAG_OFF + 0x40000, (sT, 1 << 12), (sW, 256), (sJ, 4))
        lin(sXO, 0, (sTBG, 1 << 14), (sJ, 64))
        lin(sCW, 0, (sTBG, 1024))
        lin(sW3W, 0, (sTBG, 4 * 3584))
        lin(sWOW, 0, (sTBG, 4096))
        e('s_lshr_b32 s%d, s%d, 1\ns_lshl_b32 s%d, s%d, 13' % (sWSH, sTBG, sWSH, sWSH))
        e('s_mov_b32 s%d, %s\ns_mov_b32 s%d, %s\ns_mov_b32 s%d, 0' % (sC0, f2u(-K2), sC0 + 1, f2u(-K2), sPASS))
        e('s_waitcnt lgkmcnt(0)')
        shift = {SW1: [(sJ, 128)], SW2: [(sJ, 64)], SK: [(sJ, 1 << 19)], SV: [(sJ, 1 << 19)], SWO: [(sJ, 1 << 19)]}
        for b, _, size in bufs[2:]:
            if b in shift:
                lin(sT1, 0, *shift[b])
                e('s_add_u32 s%d, s%d, s%d\ns_addc_u32 s%d, s%d, 0\ns_sub_u32 s%d, 0x%x, s%d' % (b, b, sT1, b + 1, b + 1, b + 2, size, sT1))
            else:
                e('s_mov_b32 s%d, 0x%x' % (b + 2, size))
            e('s_mov_b32 s%d, 0x20000' % (b + 3))
        e('s_mov_b32 s%d, s%d\ns_mov_b32 s%d, s%d\ns_mov_b32 s%d, 0x200000\ns_mov_b32 s%d, 0x20000' % (SH, SWS, SH + 1, SWS + 1, SH + 2, SH + 3))
        ns = self.opt('x_setup', 0)
        setup, e.l = e.l[mark:], e.l[:mark]
        self.sprinkle(setup, xl[nx:nx + ns], start=self.opt('xs_start', 20), every=self.opt('xs_every', 25))
        self.xrest = xl[nx + ns:]
        self.early = wl[nf:] + [Job(Ins('buffer_store_dword v%d, v%d, %s, s%d offen sc1' % (Z, RS, srd(SWS), sRET), tag='reset')),
                                Job('buffer_load_dwordx4 %s, v%d, %s, s%d offen' % (D, W1W, srd(SW1), sWSH)),
                                Job('buffer_load_dwordx4 %s, v%d, %s, s%d offen' % (D, W2W, srd(SW2), sWSH))]
        self.stamp('setup')
        self.touch(0)
        self.stamp('touched')
        e('s_branch L_go\n.p2align 12\nL_go:')

    def p0(self):
        e = self.s
        e('@sec P0 layernorm')
        P = lambda b: vr('v', b, 2)
        A, X0 = vS, vS + 8
        o = ['v_lshlrev_b32 v%d, 16, v%d' % (X0 + 1, vX), 'v_mov_b32_dpp v%d, v%d quad_perm:[0,0,0,0] row_mask:0xf bank_mask:0xf' % (X0, X0 + 1)]
        for k in range(64):
            d = vACC + 2 * k
            o += ['v_lshlrev_b32 v%d, 16, v%d' % (d, vX + k), 'v_and_b32 v%d, 0xffff0000, v%d' % (d + 1, vX + k),
                  'v_pk_add_f32 %s, %s, %s op_sel_hi:[1,0] neg_lo:[0,1] neg_hi:[0,1]' % (P(d), P(d), P(X0))]
            if k == 0:
                o += ['v_pk_mul_f32 %s, %s, %s' % (P(A + 2), P(d), P(d))]
            else:
                o += ['v_pk_add_f32 %s, %s, %s' % (P(A), P(A) if k > 1 else P(vACC), P(d)), 'v_pk_fma_f32 %s, %s, %s, %s' % (P(A + 2), P(d), P(d), P(A + 2))]
        wq = []
        for k in range(6):
            wq += self.whalf('wq', self.pair_order(0)[k], k)
        nd = self.opt('p1_dma', 2)
        jobs = []
        while self.xrest or (wq and nd):
            jobs += self.xrest[:1] + wq[:nd if self.xrest else nd + 1]
            wq = wq[nd if self.xrest else nd + 1:]
            self.xrest = self.xrest[1:]
        self.sprinkle(o, jobs, start=self.opt('p1_start', 2), every=20 // (nd + 1) if nd else 10)
        self.stamp('x landed')
        o = ['v_add_f32 v%d, v%d, v%d' % (A, A, A + 1), 'v_add_f32 v%d, v%d, v%d' % (A + 2, A + 2, A + 3)]
        for qp in ('[1,0,3,2]', '[2,3,0,1]'):
            for r in (A, A + 2):
                o.append('v_add_f32_dpp v%d, v%d, v%d quad_perm:%s row_mask:0xf bank_mask:0xf' % (r, r, r, qp))
        M, V, R = A, A + 2, A + 4
        o += ['v_mul_f32 v%d, %s, v%d' % (M, f2u(1.0 / 512), M), 'v_mul_f32 v%d, %s, v%d' % (V, f2u(1.0 / 512), V),
              'v_fma_f32 v%d, -v%d, v%d, v%d' % (V, M, M, V), 'v_max_f32 v%d, 0, v%d' % (V, V),
              'v_add_f32 v%d, %s, v%d' % (R, f2u(1e-5), V), 'v_rsq_f32 v%d, v%d' % (R, R),
              'v_and_b32 v%d, 0xf0, v%d' % (A + 7, vACT),
              'v_mul_f32 v%d, v%d, v%d' % (A + 6, R, R), 'v_fmaak_f32 v%d, v%d, v%d, %s' % (A + 6, A + 6, V, f2u(1e-5)), 'v_rsq_f32 v%d, v%d' % (A + 6, A + 6),
              'v_mul_f32 v%d, %s, v%d' % (R, f2u(CSCALE), R), 'v_mul_f32 v%d, %s, v%d' % (A + 6, f2u(1.0 / CSCALE), A + 6),
              'v_mul_f32_e64 v%d, -v%d, v%d' % (M, M, R), 'ds_bpermute_b32 v%d, v%d, v%d' % (self.F1, A + 7, A + 6)]
        for ks in range(16):
            for k in range(4 * ks, 4 * ks + 4):
                d = P(vACC + 2 * k)
                o.append('v_pk_fma_f32 %s, %s, %s, %s op_sel_hi:[1,0,0]' % (d, d, P(R), P(M)))
            for k in range(4 * ks, 4 * ks + 4):
                o.append('v_cvt_pk_bf16_f32 v%d, v%d, v%d' % (vX + k, vACC + 2 * k, vACC + 2 * k + 1))
            o.append('ds_write_b128 v%d, %s offset:%d' % (self.XW, vr('v', vX + 4 * ks, 4), 1024 * ks))
        nw, nl = 4 * self.opt('ln_w', 4), self.opt('ln_jobs', 22)
        jobs = wq[:nw] + self.early + wq[nw:]
        self.p2_first = jobs[nl:]
        self.sprinkle(o, jobs[:nl], start=self.opt('ln_start', 0), every=self.opt('ln_every', 2 if nd else 7))
        for nb in range(4):
            e('ds_read_b64 %s, v%d offset:%d' % (vr('a', aRES + 2 * nb, 2), self.RA + (nb & 1), 8192 * (nb >> 1) + 512 * (nb & 1)))
        e('v_lshl_add_u32 v%d, s%d, 14, v%d' % (self.XW, sW, self.XS))
        e('s_barrier', need=['*lg'])
        self.stamp('P0 end')

    def kv_dma(self, which, unit, tag):
        buf, ring, so, vo = (SK, KRING, sKO, vDB) if which == 'K' else (SV, VRING, sVO, vDB + 2)
        fl = self.o.get('kvflag', 'nt_').replace('_', ' ') if self.kv_nt else ''
        m0 = 's_add_u32 m0, s%d, 0x%x' % (sW2K, ring + 8192 * (unit & 3))
        return [Job(Ins('buffer_load_dwordx4 v%d, %s, s%d offen %slds' % (vo, srd(buf), so, fl), tag=tag), m0=m0),
                Job(Ins('buffer_load_dwordx4 v%d, %s, s%d offen offset:1024 %slds' % (vo + 1, srd(buf), so, fl), tag=tag), m0=m0,
                    post=['s_add_u32 s%d, s%d, 0x2000' % (so, so), 's_and_b32 s%d, s%d, 0x7ffff' % (so, so)])]

    def pair_order(self, early):
        sg = [(kp, hf) for kp in range(8 - early) for hf in range(2)] + [(kp, hf) for hf in range(2) for kp in range(8 - early, 8)]
        return [2 * (2 * kp + kk) + hf for kp, hf in sg for kk in range(2)]

    def pair_groups(self, name, od):
        return [(['%s%d' % (name, k) for k in od[h:h + 2]], [k >> 1 for k in od[h:h + 2]],
                 [vACC + 64 * (od[h] & 1) + 16 * b for b in range(4)], od[h] < 2) for h in range(0, 32, 2)]

    def p2(self):
        e = self.s
        e('@sec P2')
        od = self.pair_order(0)
        later = [self.whalf('wq', od[h], h) if h < 32 else self.whalf('w1', h - 32, h) for h in range(6, 36)]
        if self.opt('kvwarm', 0):
            later[25] = later[25] + self.warm(SK, vACT, sWOW, (0, 1024, 2048, 3072)) + self.warm(SV, vACT, sWOW, (0, 1024, 2048, 3072))
        p = self.gemm(0, self.pair_groups('wq', od), lambda k, tb: (self.XS, (tb * 16 + k) * 1024),
                      later, self.p2_first)
        self.q_first = p.rest
        for ks in range(16):
            p.g[16 * (ks + 2) + 7]['ds'].append('ds_read_b128 %s, v%d offset:%d' % (vr('v', vX + 4 * ks, 4), self.XW, 1024 * ks))
        assert not p.fill(self.waddr(vP + 12, vT, '0x%x' % (WREG + 8192)) + ['v_mov_b32 v%d, %s' % (vP + 10, f2u(-K1))], 16)
        f = ('v_lshrrev_b32 v%d, 4, v%d\nv_and_b32 v%d, 15, v%d\nv_lshl_add_u32 v%d, v%d, 8, s%d\n' % (vT, vL, vT + 1, vL, vT + 2, vT, sW2K) +
             'v_bfe_u32 v%d, v%d, 8, 4\nv_xor_b32 v%d, v%d, v%d\n' % (vT + 3, vT + 2, vT + 3, vT + 3, vT + 1) +
             'v_lshl_add_u32 v%d, v%d, 4, v%d\nv_xor_b32 v%d, 64, v%d\n' % (vDB, vT + 3, vT + 2, vDB + 1, vDB) +
             'v_lshlrev_b32 v%d, 1, v%d\nv_xor_b32 v%d, v%d, v%d\n' % (vT + 3, vT, vT + 3, vT + 3, vT + 1) +
             'v_lshl_add_u32 v%d, v%d, 4, v%d\nv_xor_b32 v%d, 0x80, v%d' % (vDB + 2, vT + 3, vT + 2, vDB + 3, vDB + 2)).split('\n')
        assert not p.fill(f, 32 * 14)
        assert not p.fill(self.vaddr_restore(), 16 * 31 + 2)
        p.jobs(self.flat([Job(Ins('buffer_atomic_add v%d, v%d, %s, s%d offen sc1' % (vONE, vPOFF, srd(SDBG), sT0), need=['reset']),
                              pre=['s_lshl_b32 s%d, s%d, 3' % (sT0, sT), 's_mov_b32 s%d, s%d' % (sVO, sKO)])]), p.empty(16 * 31 + 10, 1), lo=16 * 31 + 5)
        p.emit(self)
        self.stamp('P2 end')

    def q_p1(self):
        e = self.s
        e('@sec Q epilogue')
        if self.o.get('diag', '').startswith('xcc'):
            e('s_getreg_b32 s98, hwreg(HW_REG_XCC_ID)\ns_sub_u32 s98, s98, s%d\ns_and_b32 s98, s98, 7\ns_lshl_b32 s98, 1, s98' % sJ)
            e('v_mov_b32 v%d, s98\nbuffer_atomic_or v%d, v%d, %s, 0 offen offset:4 sc1' % (vT, vT, vPOFF, srd(SDBG)))
        e('s_barrier', need=['*lg'])
        jobs = self.q_first + self.tile_dma(0, 'kv0')
        o, wr = [], []
        fr = [(qb, ks) for qb in range(4) for ks in range(4)]
        for n in range(0, 16, 2):
            ts = []
            for qb, ks in fr[n:n + 2]:
                a = vACC + 32 * ks + 4 * qb
                o += self.pack(a + 16, a, a + 16)
                ts.append(a + 16)
            for op in ('v_permlane32_swap_b32', 'v_permlane16_swap_b32'):
                for t in ts:
                    o += ['%s v%d, v%d' % (op, t, t + 2), '%s v%d, v%d' % (op, t + 1, t + 3)]
            for (qb, ks), t in zip(fr[n:n + 2], ts):
                (wr if self.opt('q_in_p1', 1) else o).extend('v_accvgpr_write_b32 a%d, v%d' % (aQ + 16 * qb + 4 * ks + r, t + r) for r in range(4))
        self.sprinkle(o, jobs, every=self.opt('q_every', 4))
        self.stamp()
        e('@sec P1')
        e('s_barrier', need=['w13'])
        self.g16('v', vS, 0, vP + 12, wr)
        o = []
        for nb in range(4):
            o += self.gelu4(vS + 4 * nb, vX + 2 * nb, vP + 4 * (nb & 1), vP + 10, scale=self.F1)
        self.sprinkle(o, self.tile_dma(1, 'kv1'), every=11)
        for p in range(2):
            e('buffer_store_dwordx4 %s, v%d, %s, s%d offen offset:%d sc1' % (vr('v', vX + 4 * p, 4), vACT, srd(SH), sHO, 1024 * p), tag='hst')
        self.stamp()

    def p3(self, kreads):
        e = self.s
        self.stamp()
        e('@sec P3')
        acc = aK
        self.put(self.waddr(vT, vT + 4, '0x%x' % (WREG + 8192)))
        self.g16('a', acc, aK + 32, vT)
        X, R, PK = vX, vX + 16, vX + 32
        P = lambda b: vr('v', b, 2)
        for k in range(8):
            e('v_accvgpr_read_b32 v%d, a%d' % (PK + k, aRES + k))
        for k in range(8):
            e('v_lshlrev_b32 v%d, 16, v%d\nv_and_b32 v%d, 0xffff0000, v%d' % (R + 2 * k, PK + k, R + 2 * k + 1, PK + k))
        e('v_mov_b32 v%d, %s' % (PK + 8, f2u(1.0 / CSCALE)))
        for k in range(16):
            e('v_accvgpr_read_b32 v%d, a%d' % (X + k, acc + k))
        mark = len(e.l)
        for k in range(8):
            e('v_pk_fma_f32 %s, %s, %s, %s op_sel_hi:[1,0,1]' % (P(X + 2 * k), P(R + 2 * k), P(PK + 8), P(X + 2 * k)))
        for k in range(8):
            e('v_cvt_pk_bf16_f32 v%d, v%d, v%d' % (PK + k, X + 2 * k, X + 2 * k + 1))
        e('s_add_u32 s%d, s%d, 0x2000' % (sT1, sX1O))
        for p in range(2):
            e('buffer_store_dwordx4 %s, v%d, %s, s%d offen sc1' % (vr('v', PK + 4 * p, 4), vACT, srd(SWS), sT1 if p else sX1O))
        for k in range(8):
            e('v_lshlrev_b32 v%d, 16, v%d\nv_and_b32 v%d, 0xffff0000, v%d' % (X + 2 * k, PK + k, X + 2 * k + 1, PK + k))
            e('v_accvgpr_write_b32 a%d, v%d' % (aX1 + k, PK + k))
        for k in range(4):
            e('v_pk_add_f32 %s, %s, %s' % (P(R + 2 * k), P(X + 2 * k), P(X + 8 + 2 * k)))
        e('v_pk_add_f32 %s, %s, %s\nv_pk_add_f32 %s, %s, %s' % (P(R), P(R), P(R + 2), P(R + 4), P(R + 4), P(R + 6)))
        e('v_pk_add_f32 %s, %s, %s\nv_add_f32 v%d, v%d, v%d' % (P(R), P(R), P(R + 4), R + 8, R, R + 1))
        self.put(self.lanesum(R + 8, R + 10))
        e('v_mul_f32 v%d, %s, v%d' % (R + 8, f2u(1.0 / 64), R + 8))
        for k in range(8):
            e('v_pk_add_f32 %s, %s, %s op_sel_hi:[1,0] neg_lo:[0,1] neg_hi:[0,1]' % (P(X + 2 * k), P(X + 2 * k), P(R + 8)))
        for k in range(8):
            e('v_pk_fma_f32 %s, %s, %s, %s' % (P(R), P(X + 2 * k), P(X + 2 * k), P(R)) if k else 'v_pk_mul_f32 %s, %s, %s' % (P(R), P(X), P(X)))
        e('v_add_f32 v%d, v%d, v%d' % (R + 9, R, R + 1))
        e('v_lshlrev_b32 v%d, 3, v%d\nv_mov_b32 v%d, 0x%x\nv_cmp_gt_u32 vcc, 16, v%d' % (R, vL, R + 1, OOB, vL))
        self.put(self.lanesum(R + 9, R + 10))
        e('v_cndmask_b32 v%d, v%d, v%d, vcc' % (R, R + 1, R))
        e('buffer_store_dwordx2 %s, v%d, %s, s%d offen sc1' % (P(R + 8), R, srd(SWS), sSTO), tag='x1st')
        epi, e.l = e.l[mark:], e.l[:mark]
        for k, x in enumerate(epi):
            if k % 16 == 0:
                self.put(kreads[k // 4:k // 4 + 4])
            e.add(x)
        self.stamp()
        e('@sec attention 1b')

    def krd(self, u, f):
        kb, ks = f >> 2, f & 3
        return 'ds_read_b128 %s, v%d offset:%d' % (vr('a', aK + 32 * (u & 1) + 4 * f, 4), vKA + ks, KRING + 8192 * (u & 3) + 4096 * kb)

    def vrd(self, u, h):
        db, g = h >> 1, h & 1
        return 'ds_read_b64_tr_b16 %s, v%d offset:%d' % (vr('a', aV + 32 * (u & 1) + 4 * db + 2 * g, 2), vTR + db, 8192 * (u & 3) + 4096 * g)

    def rowsum(self, d, ones, p):
        return 'v_smfmac_f32_16x16x64_bf16 %s, %s, %s, v%d' % (vr('a', aL + 4 * d, 4), vr('a', ones, 4), vr('v', p, 8), vIDX)

    KV_GAPS = ((5, 1), (5, 5), (5, 9), (5, 13), (6, 1), (6, 5), (6, 13), (7, 1))
    SIDE_GAPS = {7: (5, 13), 0: (1, 5, 9, 13), 1: (1, 5), 4: (9, 13)}

    def tile_dma(self, T, tag):
        return sum([self.kv_dma(w, 2 * T + k, tag + w) for w in 'KV' for k in range(2)], [])

    def segment(self, seg, NS, sched, loop=None, inline=None):
        e = self.s
        NT, inline = NS // 8, inline or {}
        side, chk, fill = {}, {}, {}

        def slots(n):
            T, h = n >> 3, n & 7
            if n < 3 or n >= NS:
                return []
            g = list(self.SIDE_GAPS.get(h, ()))
            if T + 2 >= NT:
                g += [x for hh, x in self.KV_GAPS if hh == h]
            return sorted(g)

        def spread(jobs, n, stop, rate=4):
            jobs = list(jobs)
            while jobs:
                assert n < stop, 'side jobs do not fit'
                room = min(rate, len(slots(n)) - (n in chk) - len(side.get(n, [])))
                while room > 0 and jobs:
                    side.setdefault(n, []).append(jobs.pop(0))
                    room -= 1
                n += 1
        sched(spread, chk, fill)
        lab = 'L_attn%d' % seg
        plans, use = [], {}
        for n in range(NS + 3):
            T, h = n >> 3, n & 7
            p = Plan()
            if n < NS:
                for kb in range(2):
                    d = vr('v', vS + 8 * (n & 1) + 4 * kb, 4)
                    for i, ks in enumerate(range(3, -1, -1) if kb else range(4)):
                        j = p.add(mfma(d, vr('a', aK + 32 * (n & 1) + 16 * kb + 4 * ks, 4), vr('a', aQ + 16 * (h >> 1) + 4 * ks, 4), '0' if i == 0 else None))
                        use.setdefault(('K', T, n & 1, 4 * kb + ks), []).append((n, j))
            if n >= 3:
                m, dh = (n - 3) >> 1, (n - 3) & 1
                for db in range(4 * dh, 4 * dh + 4):
                    for i, kk in enumerate((1, 0) if db & 1 else (0, 1)):
                        j = p.add(mfma(vr('v', vACC + 16 * db + 4 * (m & 3), 4), vr('a', aV + 32 * kk + 4 * db, 4), vr('v', vP + 8 * (m & 1) + 4 * kk, 4),
                                       '0' if (m < 4 and seg == 0 and i == 0) else None))
                        use.setdefault(('V', m >> 2, kk, db), []).append((n, j))
            g, full = p.g, len(p.mf) == 16
            if 1 <= n <= NS:
                sb, pb = vS + 8 * ((n - 1) & 1), vP + 4 * ((n - 1) & 3)
                lag = 2 if n < 3 else 0
                for k in range(8):
                    g[2 * k if full else min(k + lag, 7)]['va'].append('v_exp_f32 v%d, v%d' % (sb + k, sb + k))
                    if k & 1:
                        g[2 * k + 1 if full else min(k + lag + 1, 7)]['va'].append('v_cvt_pk_bf16_f32 v%d, v%d, v%d' % (pb + k // 2, sb + k - 1, sb + k))
            jobs, pos = [], []
            self.kv_nt = False
            if seg and n < 2:
                jobs, pos = self.tile_dma(1, 'kv1')[4 * n:4 * n + 4], [0, 2, 4, 6]
            if T + 2 < NT and n < NS:
                for jb, (hh, x) in zip(self.tile_dma(T + 2, 'kv%d' % (T + 2)), self.KV_GAPS):
                    if hh == h:
                        jobs.append(jb)
                        pos.append(x)
            free = slots(n)
            if n in chk:
                g[free.pop()]['end'] += chk[n]
            jobs += side.get(n, [])
            pos += free[:len(side.get(n, []))]
            assert pos == sorted(pos)
            if full and h == 4:
                late_v = seg and T == 0
                g[14]['sc'].append(Ins('@need', need=(['kv%d%s' % (T + 1, 'K' if late_v else 'V')] if T + 1 < NT else []) + ['*lg']))
                g[15]['sc'].append('s_barrier')
            if seg and n == 9:
                g[0]['sc'].append(Ins('s_barrier', need=['kv1V']))
            if loop and loop[0] <= n < loop[1] and (n - loop[0]) % 16 == 15:
                g[10]['sc'].append('s_sub_u32 s%d, s%d, 1' % (sCNT, sCNT))
                g[12]['sc'].append('s_cmp_lg_u32 s%d, 0' % sCNT)
            prev, pend = p.jobs(self.flat(jobs), pos)
            p.scalars(pend, prev + 1, 10 if prev < 8 and full else len(g))
            plans.append(p)
        reads, pre, held = [], [], {}
        for (w, T, k, f), u in use.items():
            ins = [self.krd(2 * T + k, f)] if w == 'K' else [self.vrd(2 * T + k, 2 * f + x) for x in range(2)]
            if w == 'K' and 8 * T in inline:
                held.setdefault(8 * T, []).extend(ins)
            elif w == 'K' and T == 0 and k == 0:
                pre += ins
            else:
                reads.append((u[0], use[w, T - 1, k, f][-1] if T else (0, 0), ins))
        reads.sort()
        for first, (n, j), ins in reads:
            for x in ins:
                while True:
                    p = plans[n]
                    g = p.g[j]
                    if len(p.mf) == 16:
                        ok = j & 1 and p.cap(j) > 0
                    else:
                        ok = not g['vm'] and len(g['ds']) < 2
                    if ok:
                        break
                    n, j = (n, j + 1) if j + 1 < len(p.mf) else (n + 1, 0)
                g['ds'].append(x)
                assert (n, j) < first and not ((n & 7) == 4 and j > 8)
        if loop:
            e('s_mov_b32 s%d, %d' % (sCNT, (loop[1] - loop[0]) // 16))
        e('s_barrier', need=['kv0V', '*lg'])
        self.put(pre)
        carry, dead = [], 0
        for n, p in enumerate(plans):
            if n in inline:
                inline[n](held[n])
            inloop = loop and loop[0] <= n < loop[1]
            if self.opt('astamp', 0) and n % 8 == 0 and not (loop and loop[0] <= n <= loop[1]) and n not in inline:
                self.stamp('s%d_%d' % (seg, n))
            if loop and n == loop[0]:
                self.stamp('pre')
            if inloop and (n - loop[0]) % 16 == 0:
                e('@rep %s %d' % (lab, n))
            if loop and n == loop[1]:
                e('@endrep ' + lab)
                self.stamp('loop')
            if n in fill:
                assert not carry
                carry, dead = fill[n]
            carry = p.fill(carry)
            if carry and n + 1 >= dead:
                p.g[-1]['va'] += carry
                carry = []
            if n >= 3 and n & 1:
                m = (n - 3) >> 1
                p.g[7 if len(p.mf) == 16 else 3]['end'].append(self.rowsum((m >> 1) & 1, aONE2 if m & 1 else aONES, vP + 8 * (m & 1)))
            if inloop and (n - loop[0]) % 16 == 15:
                p.g[15]['end'].append('s_cbranch_scc1 ' + lab)
            p.emit(self)
        self.stamp()

    def warm(self, buf, vo, so, offs):
        return [Job('buffer_load_dwordx4 %s, v%d, %s, s%d offen offset:%d' % (vr('a', aDUMMY, 4), vo, srd(buf), so, o)) for o in offs]

    def attention1(self):
        e = self.s
        e('@sec attention 1a')
        U, F, G = vX + 48, vT + 4, vT
        N1, P3 = self.opt('n1', 176), self.opt('p3', 40)
        L0, L1 = P3 + 8, N1 - 48
        f0 = ('v_and_b32 v%d, 3, v%d\nv_min_u32 v%d, 2, v%d\n' % (U, vL, U, U) +
              'v_add3_u32 v%d, v%d, s%d, -1\nv_med3_i32 v%d, v%d, 0, 31\nv_lshlrev_b32 v%d, 3, v%d' % (U, U, sT, U, U, vPOFF, U)).split('\n')
        f1 = ('v_bfe_u32 v%d, v%d, 1, 1\nv_lshl_add_u32 v%d, v%d, 1, -1\n' % (U, vL, U, U) +
              'v_bfe_u32 v%d, v%d, 3, 1\nv_mul_i32_i24 v%d, v%d, v%d\n' % (U + 1, vL, U, U, U + 1) +
              'v_add_u32 v%d, s%d, v%d\nv_max_i32 v%d, 0, v%d\nv_min_i32 v%d, 0x7f, v%d\n' % (U, sTBG, U, U, U, U, U) +
              'v_and_b32 v%d, 7, v%d\nv_lshl_or_b32 v%d, v%d, 3, v%d\n' % (U + 1, vL, U, U, U + 1) +
              'v_lshlrev_b32 v%d, 7, v%d\nv_add_u32 v%d, 0x%x, v%d' % (U, U, F, FLAG_OFF, U)).split('\n')
        f2 = ('v_and_b32 v%d, 15, v%d\nv_lshl_add_u32 v%d, s%d, 4, v%d\nv_and_b32 v%d, 48, v%d' % (U, vL, U, sTBG, U, U + 1, vL)).split('\n')
        for g, dlt in enumerate((-1, 1, -2, 2)):
            f2 += ['v_add_u32 v%d, %d, v%d' % (U + 2, dlt, U), 'v_and_or_b32 v%d, v%d, 15, v%d' % (U + 3, U + 2, U + 1),
                   'v_bfe_u32 v%d, v%d, 4, 8' % (U + 2, U + 2), 'v_lshl_or_b32 v%d, v%d, 10, v%d' % (U + 3, U + 2, U + 3),
                   'v_lshlrev_b32 v%d, 4, v%d' % (U + 3, U + 3), 'v_add_u32 v%d, 0x%x, v%d' % (G + g, 4096 * g, U + 3)]
        f3 = ('v_lshrrev_b32 v%d, 4, v%d\nv_and_b32 v%d, 15, v%d\nv_mul_u32_u24 v%d, 3584, v%d\n' % (vT, vL, vT + 1, vL, vT + 2, vT) +
              'v_lshl_add_u32 v%d, v%d, 4, v%d\nv_lshlrev_b32 v%d, 8, v%d\nv_lshl_or_b32 v%d, v%d, 3, v%d\n' % (vT + 3, vT + 1, vT + 2, vT, vT, vT, vT + 1, vT) +
              'v_lshl_add_u32 v%d, s%d, 10, v%d\nv_add_u32 v%d, 0x%x, v%d\n' % (vT, sTBG, vT, vT + 4, ST_OFF, vT) +
              'v_and_b32 v%d, 7, v%d\nv_lshl_or_b32 v%d, s%d, 3, v%d\n' % (vT, vL, vT, sTBG, vT) +
              'v_lshlrev_b32 v%d, 7, v%d\nv_add_u32 v%d, 0x%x, v%d' % (vT, vT, vPOFF, FLAG_OFF + 131072, vT)).split('\n')
        R, M, O = vT, vT + 1, vT + 2
        f3 += ['v_or_b32 v%d, s%d, v%d' % (M, sW, vL), 'v_cmp_eq_u32 vcc, 0, v%d' % M, 'v_mov_b32 v%d, 0x%x' % (O, OOB), 'v_mov_b32 v%d, 1' % R,
               'v_cndmask_b32 v%d, v%d, 0, vcc' % (M, O)]
        dbg = lambda op, off: Job('%s v%d, v%d, %s, s%d offen offset:%d %ssc1' % (op, R, M, srd(SDBG), sT2, off, 'sc0 ' * ('atomic' in op)),
                                  pre=['s_lshl_b32 s%d, s%d, 3' % (sT2, sJ) if off != 68 else 's_mov_b32 s%d, 0' % sT2])
        CB, SM = sT0, sT1
        slices = ['v_readfirstlane_b32 s%d, v%d' % (sRANK, vPRES), 'v_and_b32 v%d, 64, v%d' % (O, vWN), 's_sub_u32 s%d, s%d, 1' % (sRANK, sRANK),
                  's_and_b32 s%d, s%d, 7' % (sRANK, sRANK),
                  's_lshl_b32 s%d, s%d, 9' % (CB, sRANK), 's_min_u32 s%d, s%d, 0xd00' % (CB, CB),
                  's_add_u32 s%d, s%d, s%d' % (sW3W, sW3W, CB), 's_lshl_b32 s%d, s%d, 9' % (sT2, CB), 'v_add_u32 v%d, s%d, v%d' % (vW2, sT2, vWN),
                  's_cmp_ge_u32 s%d, 6' % sRANK, 's_cselect_b32 s%d, 1, 0' % SM, 's_cselect_b32 s%d, 10, 11' % sW4W, 's_cselect_b32 s%d, 1791, 0' % sSTEP,
                  's_lshl_b32 s%d, s%d, s%d' % (sW4W, sTBG, sW4W), 's_add_u32 s%d, s%d, s%d' % (sW4W, sW4W, sT2),
                  'v_mad_u32_u24 v%d, s%d, v%d, v%d' % (vW3, sSTEP, O, vW3), 's_lshl_b32 s%d, 0x%x, s%d' % (sSTEP, 32 * 3584, SM),
                  's_mul_i32 s%d, s%d, s%d' % (SM, SM, sW), 's_lshl_b32 s%d, s%d, 6' % (SM, SM), 's_sub_u32 s%d, s%d, s%d' % (CB, CB, SM),
                  'v_add_u32 v%d, s%d, v%d' % (vW3, CB, vW3),
                  's_sub_u32 s%d, s%d, s%d' % (sT2, sRANK, sJ), 's_lshl_b32 s%d, s%d, 11' % (sT2, sT2), 's_add_u32 s%d, s%d, s%d' % (sYO, sPO, sT2)]
        A, LR, LB, LT = vX + 56, self.LR, self.LB, vT + 4
        f4 = ['v_accvgpr_read_b32 v%d, a%d' % (A + r, aSTAT + r) for r in range(4)]
        f4 += ['v_add_f32 v%d, v%d, v%d' % (A + 4, A, A + 2)] + self.lanesum(A + 4, A + 5)
        f4 += ['v_mul_f32 v%d, 0x3e000000, v%d' % (A + 4, A + 4), 'v_sub_f32 v%d, v%d, v%d' % (A, A, A + 4), 'v_sub_f32 v%d, v%d, v%d' % (A + 2, A + 2, A + 4),
               'v_mul_f32 v%d, v%d, v%d' % (A, A, A), 'v_fmac_f32 v%d, v%d, v%d' % (A, A + 2, A + 2), 'v_add_f32 v%d, v%d, v%d' % (A + 1, A + 1, A + 3),
               'v_fmac_f32 v%d, 0x42800000, v%d' % (A + 1, A)] + self.lanesum(A + 1, A + 5)
        f4 += ['v_mov_b32 v%d, %s' % (LR, f2u(1e-5)), 'v_fmac_f32 v%d, %s, v%d' % (LR, f2u(1.0 / 512), A + 1), 'v_rsq_f32 v%d, v%d' % (LR, LR),
               'v_sub_f32 v%d, 0, v%d' % (A + 4, A + 4), 'v_mul_f32 v%d, v%d, v%d' % (LB, A + 4, LR)]
        f5, self.ln_done = [], self.opt('ln_fill', 6)
        for k in range(vX, vX + 4 * self.ln_done):
            f5 += ['v_lshlrev_b32 v%d, 16, v%d' % (LT, k), 'v_and_b32 v%d, 0xffff0000, v%d' % (k, k), 'v_fma_f32 v%d, v%d, v%d, v%d' % (LT, LT, LR, LB),
                   'v_fma_f32 v%d, v%d, v%d, v%d' % (k, k, LR, LB), 'v_cvt_pk_bf16_f32 v%d, v%d, v%d' % (k, LT, k)]
        f6 = ['v_lshl_add_u32 v%d, s%d, 14, v%d' % (vT + 3, sW, vACT)] + self.waddr(vTR, vT, 's%d' % sRING)
        f6 += ['v_mov_b32 v%d, v%d' % (vS + 6, LR), 'v_mov_b32 v%d, v%d' % (vS + 4, LB)]
        self.put(f0)

        def sched(spread, chk, fill):
            c0, c1 = 12, P3 - 20
            chk[c0] = self.poll_check(SDBG, 8) + [Ins('v_mov_b32 v%d, v%d' % (vPOFF, F))]
            chk[c1] = self.poll_check(SWS, 1)
            chk[L1 + 4] = self.poll_check(SWS, 1) + ['v_mov_b32 v%d, 132' % vPOFF, 'v_lshl_add_u32 v%d, s%d, 3, v%d' % (vPOFF, sJ, vPOFF)]
            chk[L1 + 7] = ['v_cmp_eq_u32 vcc, %d, v%d' % (self.opt('quant', 3), R), 'v_mov_b32 v%d, 1' % R, 'v_cndmask_b32 v%d, v%d, v%d, vcc' % (M, O, M)]
            chk[L1 + 15] = ['v_add_u32 v%d, 1, v%d' % (R, R)]
            chk[L1 + 28] = self.poll_check(SDBG, 0) + slices
            fill[4], fill[c0], fill[P3] = (f1, c0), (f2, c1 + 1), (f3, P3 + 6)
            fill[L1 + 12], fill[L1 + 23], fill[N1 + 2] = (f4, L1 + 23), (f5, N1 + 2), (f6, N1 + 3)
            spread([self.flag_store(0, ['hst'])], 4, 5)
            spread([self.poll_load(SDBG)], 7, 8)
            spread([self.poll_load(SWS)], c1 - 5, c1 - 4)
            w2 = []
            for k in range(4):
                w2 += self.whalf('w2', k, 2 + k)
            spread(w2, 4, P3 - 19)
            spread([Job('buffer_load_dwordx4 %s, v%d, %s, 0 offen offset:%d sc1' % (vr('v', vX + 4 * k, 4), G + (k >> 2), srd(SH), 1024 * (k & 3)))
                    for k in range(16)], c1 + 1, P3 - 3, 2)
            spread([self.flag_store(1, ['x1st'])], P3 + 4, P3 + 5)
            spread([self.poll_load(SWS), dbg('buffer_atomic_add', 4)], L1, L1 + 1)
            spread([dbg('buffer_atomic_add', 68)], L1 + 8, L1 + 9)
            spread([dbg('buffer_store_dword', 132)], L1 + 16, L1 + 17)
            spread([self.poll_load(SDBG)], L1 + 24, L1 + 25)
            spread([Job('buffer_load_dwordx2 %s, v%d, %s, 0 offen offset:%d sc1' % (vr('a', aSTAT + 2 * k, 2), vT + 4, srd(SWS), 128 * k)) for k in range(2)]
                   + self.gather('v', vX, sX1I, 0, 'sc1' + ' nt' * self.opt('nt1', 0)), L1 + 7, L1 + 29, 2)
            spread(self.warm(SCODE, vACT, sCW, (0,)), L1 + 1, L1 + 2)
            spread(self.warm(SW3, vT + 3, sW3W, (0, 256)) + self.warm(SW4, vACT, sW4W, (0, 1024)), L1 + 31, L1 + 33, 2)
            spread(sum([self.whalf('w3', k, k, None) for k in range(4)], []), N1 - 8, N1)
        self.segment(0, N1, sched, loop=(L0, L1), inline={P3: self.p3})

    def h2a(self, tb, slot):
        return 16384 + (tb & 1) * 8192 + (tb >> 1) * 32768 + slot * 1024

    def mlp(self):
        e = self.s
        P = lambda b: vr('v', b, 2)
        e('@sec LN x1')
        o, wr = [], ['ds_write_b128 v%d, %s offset:%d' % (vT + 3, vr('v', vX + 4 * ks, 4), 1024 * ks) for ks in range(16)]
        for ks in range(self.ln_done, 16):
            t = vP + 8 * (ks & 1)
            for k in range(4):
                o += ['v_lshlrev_b32 v%d, 16, v%d' % (t + 2 * k, vX + 4 * ks + k), 'v_and_b32 v%d, 0xffff0000, v%d' % (t + 2 * k + 1, vX + 4 * ks + k)]
            if ks - self.ln_done < self.ln_done:
                o.append(wr[ks - self.ln_done])
            for k in range(4):
                o.append('v_pk_fma_f32 %s, %s, %s, %s op_sel_hi:[1,0,0]' % (P(t + 2 * k), P(t + 2 * k), P(vS + 6), P(vS + 4)))
            for k in range(4):
                o.append('v_cvt_pk_bf16_f32 v%d, v%d, v%d' % (vX + 4 * ks + k, t + 2 * k, t + 2 * k + 1))
            o.append(wr[ks])
        o += wr[16 - self.ln_done:self.ln_done]
        self.sprinkle(o, self.whalf('w3', 4, 4, None) + self.whalf('w3', 5, 5, None), every=9)
        self.touch(1)
        e('s_cmp_ge_u32 s%d, 6' % sRANK)
        e('s_barrier', need=['*lg', '*vm'])
        self.stamp()
        e('s_cbranch_scc1 L_mlp_small')
        n0, names = self.nstamp, len(self.tail)
        main, self.s = self.s, Stream(known=['w3%d' % k for k in range(6)])
        self.s('L_mlp_small:')
        self.mlp_body(True)
        self.s('s_waitcnt vmcnt(0) lgkmcnt(0)\ns_branch L_mlp_done')
        self.s.insert_waits()
        self.s.pad_hazards()
        self.aside, self.s = self.s, main
        self.nstamp, self.tail[names:] = n0, []
        self.mlp_body(False)
        e('L_mlp_done:')

    def mlp_body(self, small):
        e = self.s
        P = lambda b: vr('v', b, 2)
        e('@sec P5')
        n3 = 8 if small else 16
        piece = lambda h: self.whalf('w3', h, h, small) if h < n3 else self.whalf('w4', h - n3, h, small)
        groups = [(['w3%d' % (k // 2)] if small else ['w3%d' % k, 'w3%d' % (k + 1)], [k, k + 1], [vX + 16 * b for b in range(n3 // 4)], k == 0) for k in range(0, 16, 2)]
        p = self.gemm(0, groups, lambda k, tb: (vACT, (tb * 16 + k) * 1024), [piece(h) for h in range(6, n3 + 6)])
        HW, KC = vT, vT + 2
        f = ('v_lshl_add_u32 v%d, s%d, %d, v%d\nv_mov_b32 v%d, %s\n' % (HW, sW, 10 if small else 11, vACT, KC, f2u(-K1)) +
             'v_lshlrev_b32 v%d, 7, v%d\nv_mov_b32 v%d, 0x%x\nv_cmp_gt_u32 vcc, 2, v%d\n' % (vS, vL, vS + 1, OOB, vL) +
             'v_and_b32 v%d, 7, v%d\nv_lshl_add_u32 v%d, v%d, 2, s%d\nv_cndmask_b32 v%d, v%d, v%d, vcc\n' % (vS + 2, vL, vPOFF, vS + 2, sCF, vFLAG, vS + 1, vS) +
             'v_and_b32 v%d, 15, v%d\nv_lshlrev_b32 v%d, 10, v%d\n' % (vS, vL, vS, vS) +
             'v_lshrrev_b32 v%d, 4, v%d\nv_lshl_or_b32 v%d, v%d, 3, v%d' % (vS + 1, vL, vW1, vS + 1, vS)).split('\n')
        assert not p.fill(f)
        p.emit(self)
        self.stamp()
        e('@sec gelu')
        e('s_barrier')
        o, n = [], 0
        for pp in range(n3 // 8):
            for tb in range(4):
                d = vS + 4 * (n % 4)
                for g in range(2):
                    o += self.gelu4(vX + 16 * (2 * pp + g) + 4 * tb, d + 2 * g, vP + 4 * g, KC)
                n += 1
                o.append('ds_write_b128 v%d, %s offset:%d' % (HW, vr('v', d, 4), self.h2a(tb, pp)))
        jobs = p.rest + self.tile_dma(0, 'kv0')
        self.sprinkle(o, jobs, start=self.opt('gelu_start', 41) * n3 // 16, every=self.opt('gelu_every', 20) * n3 // 16)
        e('s_barrier', need=['*lg'])
        self.stamp()
        e('@sec P7')
        accB, ng = (vS, vP, vX, vX + 32), n3 // 4
        groups = [(['w4%d' % (2 * (ng * ps + k) + i) for i in range(2)], [2 * k, 2 * k + 1], accB if ps else [vX + 16 * b for b in range(4)], k == 0)
                  for ps in range(2) for k in range(ng)]
        p = self.gemm(n3, groups, lambda k, tb: (vACT, self.h2a(tb, k)), [piece(h) for h in range(n3 + 6, 2 * n3)])
        assert not p.rest
        for pp, (lo, hi) in enumerate(((p.st[ng - 1] + 18, p.st[ng] + 16), (p.st[ng] + 2, p.st[ng] + 24))):
            pk = []
            for tb in range(4):
                a = vX + 32 * pp + 4 * tb
                pk += self.pack(a + 16, a, a + 16)
            p.g[hi - 1]['va'] += p.fill(pk, lo, hi)
        pk = self.vaddr_restore()
        for tb in range(4):
            pk += self.pack(vP + 4 * tb, vS + 4 * tb, vP + 4 * tb)
        rest = p.fill(pk, p.st[-1] + 17)
        p.emit(self)
        self.put(rest)
        for tb in range(4):
            self.put(self.pack(vX + 32 + 4 * tb, vX + 4 * tb, vX + 32 + 4 * tb))
        for r in range(0, 16, 2):
            e('v_pk_mov_b32 %s, %s, %s op_sel:[0,1]' % (P(vX + r), P(vP + r), P(vP + r)))
        self.yfrag = {(0, 0): vX + 16, (0, 1): vX + 48, (1, 0): vX, (1, 1): vX + 32}
        self.stamp()

    def part_flag(self, word, need):
        return Job(Ins('buffer_store_dword v%d, v%d, %s, s%d offen offset:%d sc1' % (vONE, vFLAG, srd(SWS), sFP, 4 * word), need=need))

    def attention2(self):
        e = self.s
        e('@sec attention 2a')
        N2 = 256 - self.opt('n1', 176)
        H, T = self.opt('head2', 32), N2 - self.opt('tail2', 32)

        def sched(spread, chk, fill):
            chk[T + 4] = self.poll_check(SWS, 1) + [Ins('v_add_u32 v%d, 32, v%d' % (vPOFF, vPOFF))]
            spread([self.part_store(self.yfrag[h, pp] + 4 * tb, YP_OFF + 65536 * pp + 16384 * tb + 1024 * h, 'yst', sYO)
                    for h in range(2) for pp in range(2) for tb in range(4)], 4, H - 8, 2)
            spread([self.part_flag(0, ['yst'])], H - 8, H - 7)
            spread(self.warm(SWO, vACT, sWOW, (0, 1024, 2048, 3072)) + self.warm(SCODE, vACT, sCW, (0,)), H - 8, H - 6)
            spread([self.poll_load(SWS)], T, T + 1)
            spread([Job('buffer_load_dwordx2 %s, v%d, %s, s%d offen offset:%d' % (vr('a', aRES + 2 * nb, 2), vW1, srd(SX), sXO, 512 * (nb >> 1) + 32 * (nb & 1)))
                    for nb in range(4)], T, T + 2)
            spread(self.gather('v', vX, sPI, YP_OFF, 'sc1' + ' nt' * self.opt('nt2', 1)), T + 5, N2 - 8, 2)
            wo = []
            for k in range(6):
                wo += self.whalf('wo', self.pair_order(0)[k], k)
            spread(wo, N2 - 11, N2)
        self.segment(1, N2, sched, loop=(H, T) if T >= H + 32 else None)
        self.o_epilogue()

    def o_epilogue(self):
        e = self.s
        e('@sec O epilogue')
        e('L_oepi:')
        for r in range(8):
            e('v_accvgpr_read_b32 v%d, a%d' % (vS + r, aL + r))
        for qb in range(4):
            e('v_add_f32 v%d, v%d, v%d' % (vS + 2 * qb, vS + 2 * qb, vS + 2 * qb + 1))
        B = vS + 8
        for qb in range(4):
            e('v_subrev_u32 v%d, 0x2b800000, v%d' % (B + qb, vS + 2 * qb))
        e('v_max3_u32 v%d, v%d, v%d, v%d\nv_max_u32 v%d, v%d, v%d' % (B, B, B + 1, B + 2, B, B, B + 3))
        e('v_cmp_lt_u32 vcc, 0x28000000, v%d' % B)
        e('v_and_b32 v%d, 3, v%d\nv_lshlrev_b32 v%d, 12, v%d\nv_lshl_add_u32 v%d, s%d, 2, v%d' % (B + 1, vL, B + 1, B + 1, B + 1, sW, B + 1))
        e('s_or_b32 s%d, vcc_lo, vcc_hi' % sT0)
        e('v_mov_b32 v%d, s%d' % (B, sT0))
        e('ds_write_b32 v%d, v%d' % (B + 1, B))
        for qb in range(4):
            e('v_rcp_f32 v%d, v%d' % (vS + 2 * qb, vS + 2 * qb))
        e('v_lshl_add_u32 v%d, s%d, 12, v%d' % (vP, sW, vACT))
        e('s_lshl_b32 s%d, s%d, 12\nv_mov_b32 v%d, s%d' % (sT0, sW, B + 1, sT0))
        e('s_barrier', need=['*lg'])
        e('ds_read_b128 %s, v%d' % (vr('v', B + 4, 4), B + 1))
        for qb in range(4):
            for ks in range(4):
                a = vACC + 32 * ks + 4 * qb
                for h in (0, 2, 16, 18):
                    e('v_pk_mul_f32 %s, %s, %s op_sel_hi:[1,0]' % (vr('v', a + h, 2), vr('v', a + h, 2), vr('v', vS + 2 * qb, 2)))
                self.put(self.pack(a + 16, a, a + 16))
                if qb == 0 and ks < 2:
                    if ks == 0:
                        continue
                    e('v_or3_b32 v%d, v%d, v%d, v%d\nv_or_b32 v%d, v%d, v%d' % (B, B + 4, B + 5, B + 6, B, B, B + 7))
                    e('v_cmp_ne_u32 vcc, 0, v%d\ns_cbranch_vccnz L_slow\nL_ofine:' % B)
                    e('ds_write_b128 v%d, %s' % (vP, vr('v', vACC + 16, 4)))
                e('ds_write_b128 v%d, %s offset:%d' % (vP, vr('v', a + 16, 4), (16 * qb + ks) * 1024))
        self.put(self.waddr(vTR, vT, 's%d' % sRING))
        e('s_barrier', need=['*lg'])
        self.stamp()
        self.slow_path()

    def slow_path(self):
        main, self.s = self.s, Stream()
        e = self.s
        M = vT
        e('L_slow:\ns_cmp_lg_u32 s%d, 0\ns_cbranch_scc1 L_ofine\ns_mov_b32 s%d, 1' % (sPASS, sPASS))
        e('s_waitcnt vmcnt(0) lgkmcnt(0)')
        for ps in range(2):
            e('s_mov_b32 s%d, 0\ns_mov_b32 s%d, 0\ns_mov_b32 s%d, 64' % (sKO, sVO, sCNT))
            if ps == 0:
                for qb in range(4):
                    e('v_mov_b32 v%d, 0xff800000' % (M + qb))
            else:
                for qb in range(4):
                    for op in ('v_permlane32_swap_b32', 'v_permlane16_swap_b32'):
                        e('v_mov_b32 v%d, v%d\n%s v%d, v%d\nv_max_f32 v%d, v%d, v%d' % (vS, M + qb, op, vS, M + qb, M + qb, M + qb, vS))
                e('v_lshrrev_b32 v%d, 4, v%d\nv_xor_b32 v%d, v%d, v%d\nv_bfe_i32 v%d, v%d, 1, 1' % (vS, vL, vS, vS, vL, vS, vS))
                e('v_not_b32 v%d, v%d\nv_and_b32 v%d, 0x3f803f80, v%d' % (vS, vS, vS, vS))
                for r in range(4):
                    e('v_accvgpr_write_b32 a%d, v%d' % (aONES + r, vS))
                for r in range(128):
                    e('v_mov_b32 v%d, 0' % (vACC + r))
                for r in range(8):
                    e('v_accvgpr_write_b32 a%d, 0' % (aL + r))
            e('L_slow%d:\ns_barrier' % ps)
            self.emit_jobs(self.kv_dma('K', 0, 'k') + (self.kv_dma('V', 0, 'k') if ps else []))
            e('s_barrier', need=['k'])
            self.put([self.krd(0, f) for f in range(8)] + ([self.vrd(0, h) for h in range(16)] if ps else []))
            e('s_waitcnt lgkmcnt(0)')
            for qb in range(4):
                for kb in range(2):
                    for ks in range(4):
                        e(mfma(vr('v', vS + 4 * kb, 4), vr('a', aK + 16 * kb + 4 * ks, 4), vr('a', aQ + 16 * qb + 4 * ks, 4), '0' if ks == 0 else None))
                if ps == 0:
                    for r in range(0, 8, 2):
                        e('v_max3_f32 v%d, v%d, v%d, v%d' % (M + qb, M + qb, vS + r, vS + r + 1))
                    continue
                for r in range(8):
                    e('v_sub_f32 v%d, v%d, v%d' % (vS + r, vS + r, M + qb))
                for r in range(8):
                    e('v_exp_f32 v%d, v%d' % (vS + r, vS + r))
                for r in range(4):
                    e('v_cvt_pk_bf16_f32 v%d, v%d, v%d' % (vP + 4 * qb + r, vS + 2 * r, vS + 2 * r + 1))
                for db in range(8):
                    e(mfma(vr('v', vACC + 16 * db + 4 * qb, 4), vr('a', aV + 4 * db, 4), vr('v', vP + 4 * qb, 4)))
                if qb & 1:
                    e(self.rowsum(qb >> 1, aONES, vP + 4 * (qb - 1)))
            e('s_nop 7\ns_sub_u32 s%d, s%d, 1\ns_cmp_lg_u32 s%d, 0\ns_cbranch_scc1 L_slow%d' % (sCNT, sCNT, sCNT, ps))
        e('s_barrier\ns_branch L_oepi')
        e.insert_waits()
        e.pad_hazards()
        self.tail.append(e.text())
        self.s = main

    SEL = vT

    def reduce(self, acc, f, regs, ks, first=False):
        return [mfma(vr('v', acc + 4 * (2 * (k & 1) + g), 4), vr('v', self.SEL + 2 - 2 * g, 4), vr(f, regs + 4 * k, 4), '0' if (first and k < 2) else None)
                for k in ks for g in range(2)]

    def collect(self, acc, regs, base):
        e, L = self.s, 'L_c'
        NEW, N = sT0, sT1
        e('s_mov_b32 s%d, 0x80000' % sT3)
        e('%s_top:\ns_cmp_eq_u32 s%d, 0xff\ns_cbranch_scc1 %s_end' % (L, sDONE, L))
        e('%s_poll:' % L)
        e.add(self.poll_load(SWS).ins)
        e('s_waitcnt vmcnt(0)\nv_cmp_eq_u32 vcc, 1, v%d\ns_and_b32 s%d, vcc_lo, 0xff' % (vPRES, NEW))
        e('s_andn2_b32 s%d, s%d, s%d\ns_cbranch_scc1 %s_go' % (NEW, NEW, sDONE, L))
        e('s_sub_u32 s%d, s%d, 1\ns_cbranch_scc0 %s_poll\ns_branch %s_end' % (sT3, sT3, L, L))
        e('%s_go:\ns_or_b32 s%d, s%d, s%d\ns_bcnt1_i32_b32 s%d, s%d' % (L, sDONE, sDONE, NEW, N, NEW))
        for n in range(1, 8):
            e('s_cmp_eq_u32 s%d, %d\ns_cbranch_scc1 %s_ld%d' % (N, n, L, 8 - n))
        for q in range(8):
            e('%s_ld%d:\ns_ff1_i32_b32 s%d, s%d\ns_bitset0_b32 s%d, s%d' % (L, q, sT2, NEW, NEW, sT2))
            e('s_lshl_b32 s%d, s%d, 11\ns_add_u32 s%d, s%d, s%d' % (sT2, sT2, sT2, sT2, base))
            for p in range(2):
                e('buffer_load_dwordx4 %s, v%d, %s, s%d offen offset:%d sc1' % (vr('a', regs + 8 * q + 4 * p, 4), vACT, srd(SWS), sT2, 1024 * p))
        for n in range(1, 8):
            e('s_cmp_eq_u32 s%d, %d\ns_cbranch_scc1 %s_mm%d' % (N, n, L, 8 - n))
        for q in range(8):
            e('%s_mm%d:' % (L, q))
            self.put(self.reduce(acc, 'a', regs, (2 * q, 2 * q + 1)))
        e('s_branch %s_top\n%s_end:' % (L, L))

    def p6_final(self):
        e = self.s
        P = lambda b: vr('v', b, 2)
        e('@sec P6')
        NE = self.opt('p6_early', 3)
        od = self.pair_order(NE)
        p = self.gemm(0, self.pair_groups('wo', od), lambda k, tb: (vACT, (tb * 16 + k) * 1024), [self.whalf('wo', od[h], h) for h in range(6, 32)])
        pk, st = [[], []], [[], []]
        for h in range(2):
            for pp in range(2):
                for tb in range(4):
                    a = vACC + 64 * h + 32 * pp + 4 * tb
                    pk[h].append(self.pack(a + 16, a, a + 16))
                    st[h].append(self.part_store(a + 16, SP_OFF + 65536 * pp + 16384 * tb + 1024 * h, 'sst'))
        if NE:
            pos = list(range(p.dma_end, 512, 8))[:8]
            for k, q in enumerate(pos):
                p.jobs(self.flat([st[0][k]]), [q], lo=q - 2)
            for k, q in enumerate(pos):
                assert not p.fill(pk[0][k], 32 * (16 - NE) + 2, q)
            pk[0], st[0] = pk[0][len(pos):], st[0][len(pos):]
        SEL, ZZ, XF, SS, E, M = self.SEL, vS, vP, vX, vX + 16, vX + 32
        t = vKA
        f = ('v_lshrrev_b32 v%d, 4, v%d\nv_bfe_u32 v%d, v%d, 2, 2\nv_and_b32 v%d, 1, v%d\nv_lshlrev_b32 v%d, 4, v%d\n' % (t + 1, vL, t, vL, t + 2, vL, t + 2, t + 2) +
             'v_mov_b32 v%d, 0x3f80\nv_lshlrev_b32 v%d, v%d, v%d\n' % (t + 3, t + 2, t + 2, t + 3) +
             'v_cmp_eq_u32 vcc, v%d, v%d\nv_mov_b32 v%d, 0\nv_mov_b32 v%d, 0\n' % (t, t + 1, SEL, SEL + 1) +
             'v_cndmask_b32 v%d, 0, v%d, vcc\nv_and_b32 v%d, 2, v%d\nv_cmp_eq_u32 vcc, 0, v%d\n' % (t + 2, t + 2, t, vL, t) +
             'v_mov_b32 v%d, 0\nv_mov_b32 v%d, 0\nv_cndmask_b32 v%d, 0, v%d, vcc\n' % (SEL + 4, SEL + 5, SEL + 2, t + 2) +
             'v_sub_u32 v%d, v%d, v%d\n' % (SEL + 3, t + 2, SEL + 2) +
             'v_lshl_add_u32 v%d, v%d, 3, v%d' % (vW2, t + 1, vW1)).split('\n')
        assert not p.fill(f, 0, 32)
        red = self.reduce(XF, 'a', aRES, (0, 1), True) + self.reduce(ZZ, 'a', aX1, (0, 1), True) + self.reduce(ZZ, 'v', vX, range(16))
        for k, m in enumerate(red):
            p.g[16 * (4 + k // 4) + 4 * (k % 4) + 3]['end'].append(m)
        gate = []
        for r in range(16):
            gate += ['v_mul_f32 v%d, %s, v%d' % (E + r, f2u(-math.log2(math.e)), ZZ + r)]
        for op in ('v_exp_f32 v%d, v%d', 'v_add_f32 v%d, 1.0, v%d', 'v_rcp_f32 v%d, v%d'):
            gate += [op % (E + r, E + r) for r in range(16)]
        gate += ['v_mul_f32 v%d, v%d, v%d' % (ZZ + r, ZZ + r, E + r) for r in range(16)]
        g0 = self.opt('spoll', 1)
        if g0:
            p.jobs(self.flat([self.poll_load(SWS)]), p.empty(self.opt('spoll_at', 506), 1))
        rest = p.fill(gate, 16 * 14 + 4)
        assert not rest
        p.scalars(['s_add_u32 s%d, s%d, 0x%x' % (sKO, sPI, SP_OFF)] + ([] if g0 else ['s_mov_b32 s%d, 0' % sDONE]), 0, 16)
        p.emit(self)
        self.stamp('P6')
        e('@sec s epilogue')
        self.sprinkle(sum(pk[0] + pk[1], []), st[0] + st[1], start=4, every=4)
        self.stamp('issued')
        if g0:
            e('v_cmp_eq_u32 vcc, 1, v%d\ns_and_b32 s%d, vcc_lo, 0xff\ns_not_b32 s%d, s%d' % (vPRES, sDONE, sT0, sDONE))
            jobs = self.gather('a', 64, sPI, SP_OFF, 'sc1')
            for k, jb in enumerate(jobs):
                q = M + k // 2
                jb.ins = Ins(jb.ins.text.replace(' v%d,' % vACT, ' v%d,' % q))
                if k % 2 == 0:
                    jb.pre += ['v_bfe_u32 v%d, s%d, %d, 1' % (q, sT0, k // 2), 'v_lshl_or_b32 v%d, v%d, 30, v%d' % (q, q, vACT)]
            nb4 = self.opt('sbefore', 6)
            self.emit_jobs(jobs[:nb4] + [self.part_flag(8, ['sst'])] + jobs[nb4:])
            self.stamp('acked')
            self.put(self.reduce(SS, 'a', 64, range(16), True))
        else:
            self.put(['v_mov_b32 v%d, 0' % (SS + r) for r in range(16)])
            self.emit_jobs([self.part_flag(8, ['sst'])])
            self.stamp('acked')
        self.collect(SS, 64, sKO)
        self.stamp('collected')
        for nb in range(4):
            for r in range(4 * nb, 4 * nb + 4, 2):
                e('v_pk_fma_f32 %s, %s, %s, %s' % (P(XF + r), P(SS + r), P(ZZ + r), P(XF + r)))
            for k in range(2 * nb, 2 * nb + 2):
                e('v_cvt_pk_bf16_f32 v%d, v%d, v%d' % (E + k, XF + 2 * k, XF + 2 * k + 1))
            om = self.opt('outmode', 2)
            if om < 2:
                e('buffer_store_dwordx2 %s, v%d, %s, s%d offen offset:%d%s' % (P(E + 2 * nb), vW1, srd(SOUT), sXO, 512 * (nb >> 1) + 32 * (nb & 1), ' sc1' * om))
            elif nb & 1:
                t = E + 2 * nb - 2
                for op in ('v_permlane32_swap_b32', 'v_permlane16_swap_b32'):
                    e('%s v%d, v%d\n%s v%d, v%d' % (op, t, t + 2, op, t + 1, t + 3))
                e('buffer_store_dwordx4 %s, v%d, %s, s%d offen offset:%d sc1' % (vr('v', t, 4), vW2, srd(SOUT), sXO, 512 * (nb >> 1)))
        if 'diag' in self.o:
            self.stamp('end')
            if self.o['diag'].startswith('xcc'):
                e('v_mov_b32 v%d, 4\nbuffer_load_dword v%d, v%d, %s, 0 offen sc1\ns_waitcnt vmcnt(0)' % (vT, vT + 1, vT, srd(SDBG)))
                e('v_readfirstlane_b32 s100, v%d\ns_nop 3\ns_bcnt1_i32_b32 s100, s100\ns_mul_i32 s100, s100, 1000\ns_mov_b32 s98, 1000' % (vT + 1))
            e('s_sub_u32 s100, s100, s98\ns_mul_i32 s100, s100, %s\ns_min_u32 s100, s100, 100000' % self.o['diag'].split(':')[2])
            e('s_memrealtime s[98:99]\ns_waitcnt lgkmcnt(0)\ns_add_u32 s100, s100, s98')
            e('L_diag:\ns_memrealtime s[98:99]\ns_waitcnt lgkmcnt(0)\ns_sub_u32 s98, s98, s100\ns_cmp_lt_i32 s98, 0\ns_cbranch_scc1 L_diag')
        if self.prof:
            e('s_waitcnt vmcnt(0)')
            self.stamp('end')
            e('v_accvgpr_read_b32 v%d, a%d\nv_accvgpr_read_b32 v%d, a%d' % (vT, aPROF, vT + 1, aPROF + 1))
            e('s_lshl_b32 s%d, s2, 11\ns_lshl_b32 s%d, s%d, 9\ns_add_u32 s%d, s%d, s%d' % (sT0, sT1, sW, sT0, sT0, sT1))
            e('s_add_u32 s%d, s%d, 0x%x\nv_lshlrev_b32 v%d, 3, v%d' % (sT0, sT0, PROF_OFF, vT + 2, vL))
            e('buffer_store_dwordx2 %s, v%d, %s, s%d offen' % (vr('v', vT, 2), vT + 2, srd(SWS), sT0))

    def build(self, verbose=False):
        for phase in (self.prologue, self.p0, self.p2, self.q_p1, self.attention1, self.mlp, self.attention2, self.p6_final):
            phase()
        s = self.s
        s.insert_waits()
        pads = s.pad_hazards()
        est = s.estimate()
        s.fold()
        s.l += [Ins('L_end:'), Ins('s_endpgm')] + self.aside.l
        fixes = s.align(self.opt('touch', 1))
        if self.opt('touch', 1):
            n, cut = len(s.pages), self.opt('touch_cut', 15)
            assert s.marks['touch1'] < cut + 1 or cut >= n
            for r, (lo, hi) in enumerate(((0, min(cut, n)), (min(cut, n), n))):
                for k in range(lo, hi):
                    s.pages[k].text = 's_cbranch_execz ' + ('L_pg%d' % (k + 4) if k + 4 < hi else 'L_touched%d' % r)
                for x in s.l:
                    for w in range(4):
                        if x.text.endswith(' L_touch%d_%d' % (r, w)):
                            x.text = x.text.replace('L_touch%d_%d' % (r, w), 'L_pg%d' % (lo + w) if lo + w < hi else 'L_touched%d' % r)
        if verbose:
            print('alignment fixes:', fixes, 'pages:', len(s.pages), s.marks)
        if verbose:
            print('hazard pads:', pads)
            for name, cyc, nm in est:
                print('  %-18s est %6d cycles, %5d mfma (%6d)' % (name, cyc, nm, nm * 16))
            print('  total', sum(c for _, c, _ in est))
        ref = open('cdna_kernels/%s.s.ref' % NAME).read().split('\n')
        head = [l for l in ref if l.startswith(';') and '@launch' not in l]
        o = head + ['; @launch grid=(256,1,1) block=(256,1,1) lds=163840',
                    '.amdgcn_target "amdgcn-amd-amdhsa--gfx950"', '.text', '.globl %s_kernel' % NAME, '.p2align 8',
                    '.type %s_kernel,@function' % NAME, '%s_kernel:' % NAME]
        o.append(s.text())
        o += self.tail
        o.append('L_code_end:\n    s_endpgm')
        o.append('''.section .rodata,"a"
.p2align 6
.amdhsa_kernel %s_kernel
  .amdhsa_next_free_vgpr 512
  .amdhsa_next_free_sgpr 102
  .amdhsa_accum_offset 256
  .amdhsa_group_segment_fixed_size 0
  .amdhsa_kernarg_size 104
  .amdhsa_user_sgpr_count 2
  .amdhsa_user_sgpr_kernarg_segment_ptr 1
  .amdhsa_system_sgpr_workgroup_id_x 1
  .amdhsa_float_denorm_mode_32 3
.end_amdhsa_kernel''' % NAME)
        return '\n'.join(o) + '\n'


if __name__ == '__main__':
    out = sys.argv[1] if len(sys.argv) > 1 else 'k.s'
    opts = dict(a.split('=') for a in sys.argv[2:])
    SP_OFF, YP_OFF = int(opts.get('sp', hex(SP_OFF)), 0), int(opts.get('yp', hex(YP_OFF)), 0)
    open(out, 'w').write(Gen(False, opts).build(True))
    open(out.replace('.s', '_prof.s'), 'w').write(Gen(True, opts).build())
    open(out.replace('.s', '_lite.s'), 'w').write(Gen(2, opts).build())
```

```python
import math
import struct
import sys

sys.path.insert(0, 'work')
from asmgen import Ins, Stream, vr

NAME = 'recurrent_scan__gqa_block_cached__mixer_s_mlp__prompt'


def f2u(x):
    return '0x%08x' % struct.unpack('<I', struct.pack('<f', x))[0]


H_OFF = 0
X1_OFF = 0x200000
FLAG_OFF = 0x400000
ST_OFF = 0x600000
SP_OFF = 0x1000000
YP_OFF = 0x2000000
PROF_OFF = 0x8000000
OOB = 0x40000000

KRING, VRING = 0, 32768
WREG = 65536
WWAVE = 24576

SX, SK, SV, SWQ, SWO, SW1, SW2, SW3, SW4, SOUT, SDBG, SWS, SH, SCODE = range(4, 60, 4)
sT, sJ, sW, sTBG, sRING, sW2K = 60, 61, 62, 63, 64, 65
sO, sDONE, sKO, sVO, sCNT, sRET = 66, 67, 68, 69, 70, 71
sT0, sT1, sT2, sT3 = 72, 73, 74, 75
sC0 = 76
sPASS, sWSH = 78, 79
sST = 80
sHO, sX1O, sX1I, sSTO, sPO, sPI, sCF, sFP, sXO, sCW, sW3W, sW4W, sWOW, sSTEP = range(84, 98)
sRANK, sYO = sHO, sX1O

vL = 0
vTR = 1
vKA = 9
vACT = 13
vWN, vW3, vW2, vW1 = 14, 15, 16, 17
vDB = 18
vFLAG, vONE, vPOFF, vPRES = 22, 23, 24, 25
vT = 26
vIDX = 31
vS, vP = 32, 48
vX = 64
vACC = 128
aK, aV, aONES, aL, aX1, aQ = 0, 64, 128, 132, 140, 192
aPROF, aDUMMY, aSTAT, aRES, aONE2 = 150, 152, 156, 160, 168

CSCALE = math.log2(math.e) / math.sqrt(128.0)
K1 = 2 * 0.7978845608028654 * math.log2(math.e)
K2 = K1 * 0.044715


def srd(n):
    return 's[%d:%d]' % (n, n + 3)


def mfma(d, a, b, c=None):
    return 'v_mfma_f32_16x16x32_bf16 %s, %s, %s, %s' % (d, a, b, d if c is None else c)


class Job:
    def __init__(self, ins, pre=(), m0=None, post=()):
        self.ins = ins if isinstance(ins, Ins) else Ins(ins)
        self.pre, self.m0, self.post = list(pre), m0, list(post)


class Plan:
    def __init__(self):
        self.mf, self.g = [], []

    def add(self, m):
        self.mf.append(m)
        self.g.append(dict(sc=[], ds=[], vm=[], va=[], end=[]))
        return len(self.mf) - 1

    def cap(self, j):
        g = self.g[j]
        if g['vm'] or g['end']:
            return 0
        c = 1 if self.mf[j].startswith('v_smfmac') else 2
        return c - len(g['ds']) - sum(vcost(x) for x in g['va']) - max(0, len(g['sc']) - 1)

    def jobs(self, groups, pos, lo=0, avoid=()):
        prev, pend = lo - 1, []
        for (pre, d, post), p in zip(groups, pos):
            self.scalars(pend + pre, prev + 1, p, avoid, late=True)
            assert not self.g[p]['vm'], 'gap %d already holds a memory instruction' % p
            self.g[p]['vm'].append(d)
            prev, pend = p, post
        return prev, pend

    def scalars(self, sc, a, b, avoid=(), late=False):
        if not sc:
            return
        c = [j for j in range(a, b) if not self.g[j]['vm'] and not self.g[j]['sc'] and j not in avoid]
        if len(c) < len(sc):
            c = [j for j in range(a, b) if not self.g[j]['vm']]
        if not c:
            self.g[b]['sc'] += sc
            return
        c = c[-len(sc):] if late else c[:len(sc)]
        for k, x in enumerate(sc):
            self.g[c[min(k, len(c) - 1)]]['sc'].append(x)

    def fill(self, va, start=0, end=None):
        va, j = list(va), start
        end = len(self.mf) if end is None else end
        while va and j < end:
            if self.cap(j) >= vcost(va[0]):
                self.g[j]['va'].append(va.pop(0))
            else:
                j += 1
        return va

    def empty(self, start, n, step=1):
        res, j = [], start
        while len(res) < n:
            if not any(self.g[j][k] for k in ('sc', 'ds', 'vm', 'va', 'end')):
                res.append(j)
                j += step
            else:
                j += 1
        return res

    def emit(self, gen):
        for m, g in zip(self.mf, self.g):
            gen.put([m] + g['sc'] + g['vm'] + g['ds'] + g['va'] + g['end'])


def vcost(x):
    t = x.text if isinstance(x, Ins) else x
    return 2 if t.startswith(('v_exp', 'v_rcp', 'v_rsq', 'v_permlane')) else 1


class Gen:
    def __init__(self, prof=False, opts=None):
        self.s = Stream()
        self.tail = []
        self.prof = prof
        self.o = opts or {}
        self.nstamp = 0
        self.nlab = 0
        self.kv_nt = False

    def stamp(self, name=None):
        if 'diag' in self.o:
            a, b, k = self.o['diag'].split(':')
            sec = name or [x.op[5:] for x in self.s.l if x.kind == 'meta' and x.op.startswith('@sec ')][-1]
            for r, want in ((98, a), (100, b)):
                if sec.replace(' ', '_') == want:
                    self.s('s_waitcnt lgkmcnt(0) ; stamp\ns_memrealtime s[%d:%d]\ns_waitcnt lgkmcnt(0) ; stamp' % (r, r + 1))
            return
        if not self.prof or (self.prof == 2 and name not in ('kernarg', 'end', 'P0 end', 'P2 end', 'pre', 'loop')):
            return
        e = self.s
        self.tail.append('; @@' + (name or [x.op[5:] for x in e.l if x.kind == 'meta' and x.op.startswith('@sec ')][-1]))
        e('s_waitcnt lgkmcnt(0) ; stamp')
        e('s_memtime s[%d:%d]\ns_memrealtime s[%d:%d]\ns_waitcnt lgkmcnt(0) ; stamp' % (sST, sST + 1, sST + 2, sST + 3))
        for k in range(2):
            e('v_accvgpr_read_b32 v%d, a%d' % (vONE, aPROF + k))
            e('s_nop 1\nv_writelane_b32 v%d, s%d, %d' % (vONE, sST + 2 * k, self.nstamp))
            e('v_accvgpr_write_b32 a%d, v%d' % (aPROF + k, vONE))
        e('v_mov_b32 v%d, 1' % vONE)
        self.nstamp += 1

    def stamp_items(self, name):
        main, self.s = self.s, Stream()
        self.s('@sec ' + name)
        self.stamp(name)
        items, self.s = self.s.l[1:], main
        return items

    def poll_load(self, buf):
        return Job('buffer_load_dword v%d, v%d, %s, 0 offen sc1' % (vPRES, vPOFF, srd(buf)))

    def poll_check(self, buf, val):
        self.nlab += 1
        n = self.nlab
        cmp = 'v_cmp_ne_u32' if val == 1 else 'v_cmp_gt_u32' if val else 'v_cmp_eq_u32'
        self.tail.append('''L_spin%(n)d:
    s_mov_b32 s%(c)d, 0x80000
L_spin%(n)d_loop:
    buffer_load_dword v%(r)d, v%(o)d, %(b)s, 0 offen sc1
    s_waitcnt vmcnt(0)
    %(cmp)s vcc, %(v)d, v%(r)d
    s_cbranch_vccz L_back%(n)d
    s_sub_u32 s%(c)d, s%(c)d, 1
    s_cbranch_scc0 L_spin%(n)d_loop
    s_branch L_back%(n)d''' % dict(n=n, c=sT3, r=vPRES, o=vPOFF, b=srd(buf), v=val, cmp=cmp))
        return [Ins('%s vcc, %d, v%d' % (cmp, val, vPRES)), Ins('s_cbranch_vccnz L_spin%d' % n), Ins('L_back%d:' % n)]

    def flag_store(self, phase, need):
        return Job(Ins('buffer_store_dword v%d, v%d, %s, s%d offen sc1' % (vONE, vFLAG, srd(SWS), sT2), need=need),
                   pre=['s_mov_b32 s%d, 0x%x' % (sT2, FLAG_OFF + phase * 131072)])

    def opt(self, k, d):
        return int(self.o.get(k, d))

    def touch(self, r):
        if not self.opt('touch', 1):
            return
        e = self.s
        e('@mark touch%d\ns_mov_b64 exec, 0' % r)
        for w in range(3):
            e('s_cmp_eq_u32 s%d, %d\ns_cbranch_scc1 L_touch%d_%d' % (sW, w, r, w))
        e('s_branch L_touch%d_3\nL_touched%d:\ns_mov_b64 exec, -1' % (r, r))

    def put(self, items):
        for x in items:
            self.s.add(x if isinstance(x, Ins) else Ins(x))

    def flat(self, jobs):
        res, m0 = [], None
        for jb in jobs:
            pre = list(jb.pre)
            if jb.m0 and jb.m0 != m0:
                pre.insert(0, jb.m0)
                m0 = jb.m0
            res.append((pre, jb.ins, list(jb.post)))
        return res

    def emit_jobs(self, jobs):
        for pre, d, post in self.flat(jobs):
            self.put(pre + [d] + post)

    def sprinkle(self, main, jobs, start=0, every=8):
        groups = self.flat(jobs)
        for k, x in enumerate(main):
            if groups and k >= start and (k - start) % every == 0:
                pre, d, post = groups.pop(0)
                self.put(pre + [d] + post)
            self.put([x])
        for pre, d, post in groups:
            self.put(pre + [d] + post)

    def whalf(self, name, k, h, small=False):
        buf, vo, stride, nat, off = {
            'wq': (SWQ, vDB, 8192, True, (k >> 1) * 32 * 8192 + (k & 1) * 128),
            'w1': (SW1, vW1, 1024, True, k * 32768),
            'w2': (SW2, vW2, 1024, False, k * 32768),
            'w3': (SW3, vW3, 3584, False, k * (64 if small else 32) * 3584),
            'w4': (SW4, vW2, 1024, False, (k % (4 if small else 8)) * 32768 + (k // (4 if small else 8)) * 512),
            'wo': (SWO, vWN, 1024, False, (k >> 1) * 32768 + (k & 1) * 512)}[name]
        rows = [16 * (a & 1) + 4 * (a >> 1) if nat else 8 * a for a in range(4)]
        return [Job(Ins('buffer_load_dwordx4 v%d, %s, s%d offen offset:%d %slds' % (vo, srd(buf), sO, 1024 * a, 'nt ' if name in self.o.get('wnt', 'none').split(',') else ''), tag='%s%d' % (name, k)),
                    pre=['s_mov_b32 s%d, 0x%x' % (sO, off + rows[a] * stride - 1024 * a)] if small is not None else
                    ['s_mul_i32 s%d, s%d, %d' % (sO, sSTEP, k) if a == 0 else 's_add_u32 s%d, s%d, 0x%x' % (sO, sO, 8 * stride - 1024)],
                    m0='s_add_u32 m0, s%d, 0x%x' % (sRING, (h % 6) * 4096)) for a in range(4)]

    def waddr(self, dst, t, base):
        return ['v_lshrrev_b32 v%d, 2, v%d' % (dst, vL), 'v_bfe_u32 v%d, v%d, 3, 2' % (t, vL), 'v_lshlrev_b32 v%d, 5, v%d' % (t, t),
                'v_lshl_or_b32 v%d, v%d, 7, v%d' % (dst, dst, t), 'v_and_b32 v%d, 3, v%d' % (t, vL), 'v_lshl_or_b32 v%d, v%d, 3, v%d' % (dst, t, dst),
                'v_add_u32 v%d, %s, v%d' % (dst, base, dst)] + ['v_xor_b32 v%d, 0x%x, v%d' % (dst + b, b << 5, dst) for b in range(1, 4)]

    def vaddr_restore(self):
        return ['v_xor_b32 v%d, 0x80, v%d' % (vTR + db, vTR + 4 + db) for db in range(4)]

    def lanesum(self, r, t):
        o = []
        for op in ('v_permlane32_swap_b32', 'v_permlane16_swap_b32'):
            o += ['v_mov_b32 v%d, v%d' % (t, r), '%s v%d, v%d' % (op, t, r), 'v_add_f32 v%d, v%d, v%d' % (r, r, t)]
        return o

    def gelu4(self, src, dst, tmp, k1, scale=None):
        o = []
        e = o.append
        P = lambda b: vr('v', b, 2)
        if scale is not None:
            for h in (0, 2):
                e('v_pk_mul_f32 %s, %s, %s op_sel_hi:[1,0]' % (P(src + h), P(src + h), P(scale)))
        for h in (0, 2):
            e('v_pk_mul_f32 %s, %s, %s' % (P(tmp + h), P(src + h), P(src + h)))
        for h in (0, 2):
            e('v_pk_fma_f32 %s, %s, s[%d:%d], %s op_sel_hi:[1,1,0]' % (P(tmp + h), P(tmp + h), sC0, sC0 + 1, P(k1)))
        for h in (0, 2):
            e('v_pk_mul_f32 %s, %s, %s' % (P(tmp + h), P(tmp + h), P(src + h)))
        for r in range(4):
            e('v_exp_f32 v%d, v%d' % (tmp + r, tmp + r))
        for h in (0, 2):
            e('v_pk_add_f32 %s, %s, 1.0 op_sel_hi:[1,0]' % (P(tmp + h), P(tmp + h)))
        for r in range(4):
            e('v_rcp_f32 v%d, v%d' % (tmp + r, tmp + r))
        for h in (0, 2):
            e('v_pk_mul_f32 %s, %s, %s' % (P(tmp + h), P(tmp + h), P(src + h)))
        for h in (0, 2):
            e('v_cvt_pk_bf16_f32 v%d, v%d, v%d' % (dst + h // 2, tmp + h, tmp + h + 1))
        return o

    def pack(self, d, a0, a1):
        return ['v_cvt_pk_bf16_f32 v%d, v%d, v%d' % (d + 3, a1 + 2, a1 + 3), 'v_cvt_pk_bf16_f32 v%d, v%d, v%d' % (d + 2, a1, a1 + 1),
                'v_cvt_pk_bf16_f32 v%d, v%d, v%d' % (d, a0, a0 + 1), 'v_cvt_pk_bf16_f32 v%d, v%d, v%d' % (d + 1, a0 + 2, a0 + 3)]

    def g16(self, accf, acc, ring, ad, fill=()):
        def kn(n):
            return (n & 15, n >> 4) if self.opt('chain16', 1) else (n >> 2, n & 3)

        def rd(n):
            ks, nb = kn(n)
            off = ((ks >> 2) & 1) * WWAVE + (ks & 3) * 4096
            return ['ds_read_b64_tr_b16 %s, v%d offset:%d' % (vr('a', ring + 4 * (n % 8) + 2 * g, 2), ad + nb, off + 2048 * g) for g in range(2)]
        AH = 6
        for n in range(AH):
            self.put(rd(n))
        p = Plan()
        for n in range(64):
            ks, nb = kn(n)
            p.add(mfma(vr(accf, acc + 4 * nb, 4), vr('a', ring + 4 * (n % 8), 4), vr('v', vX + 4 * ks, 4), '0' if ks == 0 else None))
            if n + AH < 64:
                p.g[n]['ds'] += rd(n + AH)
                if kn(n + AH)[0] == 7:
                    a = ad + kn(n + AH)[1]
                    p.g[n]['va'].append('v_add_u32 v%d, 0x%x, v%d' % (a, 2 * WWAVE, a))
            p.g[n]['va'] += fill[n:n + 1]
        p.emit(self)

    def gemm(self, h0, groups, actf, later, first_jobs=(), sync=None, last_jobs=()):
        WF, AF, LEAD = 0, 32, 9
        p, par, h, blk, owner = Plan(), [], h0, [], []
        p.st = []
        for G, (tags, ak, acc, first) in enumerate(groups):
            par.append(par[-1] ^ (ak != groups[G - 1][1]) if G else 0)
            p.st.append(len(p.mf))
            c, flip = len(ak), 0
            for b in range(len(acc)):
                n = len(blk)
                blk.append(len(p.mf))
                for tb in (range(3, -1, -1) if b & 1 else range(4)):
                    for i, kk in enumerate(range(c - 1, -1, -1) if flip else range(c)):
                        p.add(mfma(vr('v', acc[b] + 4 * tb, 4), vr('a', WF + 8 * (n % 4) + 4 * kk, 4), vr('a', AF + 32 * par[G] + 16 * kk + 4 * tb, 4),
                                   '0' if (first and i == 0) else None))
                    flip ^= 1
            owner += [blk[-1]] * len(tags)
        N = len(p.mf)
        jobs, pos, q = list(first_jobs), [2 * k + 1 for k in range(len(first_jobs))], 4 * ((len(first_jobs) + 1) // 2) + 1
        rest = []
        for k, piece in enumerate(later):
            while k < len(owner) and q < owner[k]:
                q += 4
            for jb in piece:
                if q < N and k < len(owner) and not rest:
                    jobs.append(jb)
                    pos.append(q)
                    q += 4
                else:
                    rest.append(jb)
        for jb in last_jobs:
            jobs.append(jb)
            pos.append(q)
            q += 4
        p.rest, p.dma_end = rest, q
        prev, pend = p.jobs(self.flat(jobs), pos, avoid={x - 1 for x in blk})
        p.scalars(pend, prev + 1, N)
        pre = []

        def place(ins, lo, use):
            for each, lead in ((1, LEAD), (2, LEAD), (2, LEAD - 2), (2, LEAD - 4)):
                c = [j for j in range(max(lo - 1, 0), use - lead + 1) if not p.g[j]['vm'] and (j + 1 not in blk or each == 2)
                     for _ in range(each - len(p.g[j]['ds']))]
                if len(c) >= len(ins) or lo == 0:
                    break
            assert len(c) >= len(ins) or lo == 0
            c = c[-len(ins):]
            pre.extend(ins[:len(ins) - len(c)])
            for j, x in zip(c, ins[len(ins) - len(c):]):
                p.g[j]['ds'].append(x)
        h, n = h0, 0
        for G, (tags, ak, acc, first) in enumerate(groups):
            for b in range(len(acc)):
                src = [(kk, b) if len(tags) == 2 else (0, b + 2 * kk) for kk in range(2)]
                ins = [Ins('ds_read_b64_tr_b16 %s, v%d offset:%d' % (vr('a', WF + 8 * (n % 4) + 4 * kk + 2 * g, 2), vTR + lb, ((h + pc) % 6) * 4096 + 2048 * g),
                           need=[tags[pc]]) for kk, (pc, lb) in enumerate(src) for g in range(2)]
                place(ins, blk[n - 3] if n >= 4 else 0, blk[n])
                n += 1
            h += len(tags)
        for G, (tags, ak, acc, first) in enumerate(groups):
            if G == 0 or ak != groups[G - 1][1]:
                ins = ['ds_read_b128 %s, v%d offset:%d' % ((vr('a', AF + 32 * par[G] + 16 * kk + 4 * tb, 4),) + actf(k, tb)) for tb in range(4) for kk, k in enumerate(ak)]
                prev = [x for x in range(G) if par[x] == par[G]]
                lo = p.st[prev[-1] + 1] if prev else 0
                if G == 0:
                    act0 = [ins[k] for k in (0, 1, 3, 2, 4, 5, 7, 6)]
                    continue
                span = max(1, (p.st[G] - LEAD - lo) // len(ins))
                for k, x in enumerate(ins):
                    j = lo + k * span
                    while p.g[j]['vm'] or len(p.g[j]['ds']) >= 2 or (j + 1 in blk and span > 1):
                        j += 1
                    assert j < p.st[G] - 4 + k
                    p.g[j]['ds'].append(x)
        main, self.s = self.s, Stream()
        sync()
        bar, self.s = self.s.l, main
        for x in bar:
            if x.kind == 'bar':
                lg = [y for y in self.s.l if y.kind in ('dsr', 'dsw')]
                if lg:
                    lg[-1].tag = 'lastlds'
                self.put(pre)
                x.need = ['lastlds'] if lg else []
            self.s.add(x)
        self.put(act0)
        return p

    def part_store(self, reg, off, tag, base=sPO, vo=vACT):
        return Job(Ins('buffer_store_dwordx4 %s, v%d, %s, s%d offen sc1' % (vr('v', reg, 4), vo, srd(SWS), sT1), tag=tag),
                   pre=['s_add_u32 s%d, s%d, 0x%x' % (sT1, base, off)])

    def gather(self, f, dst, soff, off, flags):
        return [Job('buffer_load_dwordx4 %s, v%d, %s, s%d offen offset:%d %s' % (vr(f, dst + 4 * k, 4), vACT, srd(SWS), sRET, 1024 * (k % 4), flags),
                    pre=['s_add_u32 s%d, s%d, 0x%x' % (sRET, soff, off + 1024 * k)] if k % 4 == 0 else []) for k in range(16)]

    LR, LB = vW1, vFLAG
    XS, XW, RA, F1 = vP + 8, vP + 9, vP + 10, vT + 4

    def prologue(self):
        e = self.s
        D = vr('a', aDUMMY, 4)
        e('@sec prologue')
        bufs = [(SX, 0, 0x200000), (SWQ, 24, 0x400000), (SWS, 96, 0x10000000), (SW1, 48, 0x80000), (SW2, 56, 0x80000), (SDBG, 88, 256), (SK, 8, 0x400000),
                (SV, 16, 0x400000), (SWO, 32, 0x400000), (SW3, 64, 0x1c0000), (SW4, 72, 0x1c0000), (SOUT, 80, 0x200000)]
        for b, off, _ in bufs[:2]:
            e('s_load_dwordx2 s[%d:%d], s[0:1], %d' % (b, b + 1, off))
        e('s_cmp_ge_u32 s2, 256\ns_cbranch_scc1 L_end')
        if self.o.get('diag', '').startswith('start'):
            e('s_memrealtime s[98:99]')
        if self.prof:
            e('v_accvgpr_write_b32 a%d, 0\nv_accvgpr_write_b32 a%d, 0' % (aPROF, aPROF + 1))
        e('s_getpc_b64 s[%d:%d]\nL_pc:' % (SCODE, SCODE + 1))
        e('s_mov_b32 s%d, L_code_end-L_pc\ns_mov_b32 s%d, 0x20000' % (SCODE + 2, SCODE + 3))
        e('s_lshr_b32 s%d, s2, 3\nv_lshlrev_b32 v%d, 4, v0\nv_lshl_add_u32 v%d, s%d, 12, v%d' % (sT, vT + 3, vT, sT, vT + 3))
        e('buffer_load_dwordx4 %s, v%d, %s, 0 offen' % (D, vT, srd(SCODE)))
        e('v_readfirstlane_b32 s%d, v0\ns_and_b32 s%d, s2, 7\nv_and_b32 v0, 63, v0' % (sW, sJ))
        e('s_lshr_b32 s%d, s%d, 6' % (sW, sW))
        e('s_lshl_b32 s%d, s%d, 2\ns_add_u32 s%d, s%d, s%d' % (sTBG, sT, sTBG, sTBG, sW))
        e('v_lshrrev_b32 v%d, 2, v%d\nv_and_b32 v%d, 3, v%d' % (vT + 1, vL, vT + 2, vL))
        e('v_lshlrev_b32 v%d, 10, v%d\nv_lshl_or_b32 v%d, v%d, 4, v%d' % (vT + 4, vT + 1, vT + 4, vT + 2, vT + 4))
        e('v_lshlrev_b32 v%d, 4, v%d' % (vACT, vL))
        e('s_lshl_b32 s%d, s%d, 14\ns_lshl_b32 s%d, s%d, 13\ns_lshl_b32 s%d, s%d, 10' % (sCNT, sTBG, sVO, sTBG, sT1, sJ))
        e('s_mov_b32 s%d, 0x200000\ns_mov_b32 s%d, 0x20000' % (SX + 2, SX + 3))
        e('s_sub_u32 s%d, 0x400000, s%d\ns_mov_b32 s%d, 0x20000' % (SWQ + 2, sT1, SWQ + 3))
        e('s_waitcnt lgkmcnt(0)')
        self.stamp('kernarg')
        e('s_add_u32 s%d, s%d, s%d\ns_addc_u32 s%d, s%d, 0' % (SWQ, SWQ, sT1, SWQ + 1, SWQ + 1))
        for b, off, _ in bufs[2:]:
            e('s_load_dwordx2 s[%d:%d], s[0:1], %d' % (b, b + 1, off))
        wl = [Job('buffer_load_dwordx4 %s, v%d, %s, s%d offen' % (D, vACT, srd(SWQ), sVO), post=['s_add_u32 s%d, s%d, 0x100000' % (sVO, sVO)]) for i in range(4)]
        nf = self.opt('wq_first', 1)
        self.emit_jobs(wl[:nf])
        xl = [Job('buffer_load_dwordx4 %s, v%d, %s, s%d offen offset:%d' % (vr('v', vX + 4 * ks, 4), vT + 4, srd(SX), sCNT, 64 * ks)) for ks in range(16)]
        nx = self.opt('x_first', 8)
        self.emit_jobs(xl[:nx])
        self.stamp('x issued')
        mark = len(e.l)

        def lin(dst, c, *terms):
            for k, (reg, mul) in enumerate(terms):
                e('s_mul_i32 s%d, s%d, 0x%x' % (dst if k == 0 else sT0, reg, mul & 0xffffffff))
                if k:
                    e('s_add_u32 s%d, s%d, s%d' % (dst, dst, sT0))
            if c:
                e('s_add_u32 s%d, s%d, 0x%x' % (dst, dst, c))
        lin(sRING, WREG, (sW, WWAVE))
        lin(sW2K, 0, (sW, 2048))
        e('v_mov_b32 v%d, 1' % vONE)
        XS, XW, RA = self.XS, self.XW, self.RA
        e('v_lshlrev_b32 v%d, 1, v%d\nv_xor_b32 v%d, v%d, v%d\nv_lshl_or_b32 v%d, v%d, 4, v%d' % (vT, vT + 2, vT, vT, vT + 1, vT, vT + 2, vT))
        e('v_lshlrev_b32 v%d, 4, v%d\nv_lshl_add_u32 v%d, s%d, 14, v%d' % (vT, vT, XW, sW, vT))
        e('v_lshrrev_b32 v%d, 4, v%d\nv_lshlrev_b32 v%d, 5, v%d\nv_xor_b32 v%d, v%d, v%d' % (vT, vL, vT, vT, XS, vT, vACT))
        e('v_lshrrev_b32 v%d, 5, v%d\nv_and_b32 v%d, 15, v%d\nv_mul_u32_u24 v%d, 18, v%d\nv_xor_b32 v%d, v%d, v%d' % (vT, vL, vT + 1, vL, vT, vT, vT, vT, vT + 1))
        e('v_bfe_u32 v%d, v%d, 4, 1\nv_lshl_or_b32 v%d, v%d, 1, v%d\nv_lshlrev_b32 v%d, 3, v%d' % (vT + 1, vL, vT, vT, vT + 1, vT, vT))
        lin(sT1, 0, (sW, 16384), (sJ, 1024))
        e('v_add_u32 v%d, s%d, v%d\nv_xor_b32 v%d, 64, v%d' % (RA, sT1, vT, RA + 1, RA))
        C, RN, RK = vT, vT + 1, vT + 2
        e('v_and_b32 v%d, 7, v%d\nv_bfe_u32 v%d, v%d, 4, 2\nv_lshlrev_b32 v%d, 1, v%d\nv_xor_b32 v%d, v%d, v%d' % (C, vL, RN, vL, RN, RN, C, C, RN))
        e('v_lshlrev_b32 v%d, 4, v%d\nv_lshrrev_b32 v%d, 3, v%d' % (C, C, RN, vL))
        e('v_and_b32 v%d, 4, v%d\nv_add_u32 v%d, v%d, v%d' % (RK, RN, RK, RK, RN))
        e('v_lshl_add_u32 v%d, v%d, 13, v%d\nv_lshl_add_u32 v%d, s%d, 8, v%d' % (vDB, RK, C, vDB, sW, vDB))
        e('v_lshl_add_u32 v%d, v%d, 10, v%d\nv_lshl_add_u32 v%d, s%d, 17, v%d' % (vW1, RK, C, vW1, sW, vW1))
        e('v_lshl_add_u32 v%d, v%d, 10, v%d' % (vWN, RN, C))
        e('v_and_b32 v%d, 64, v%d\nv_mad_u32_u24 v%d, v%d, 7, v%d' % (RK, C, vW2, RK, vWN))
        W1W, W2W = vP, vP + 1
        e('v_mov_b32 v%d, v%d\nv_mov_b32 v%d, v%d' % (W1W, vWN, W2W, vW2))
        e('v_lshl_add_u32 v%d, s%d, 17, v%d\nv_lshl_add_u32 v%d, s%d, 7, v%d' % (vW2, sW, vW2, vWN, sW, vWN))
        e('v_mul_u32_u24 v%d, 3584, v%d\nv_lshl_add_u32 v%d, s%d, 7, v%d\nv_add_u32 v%d, v%d, v%d' % (RN, RN, C, sW, C, vW3, RN, C))
        e('v_mov_b32 v%d, 0x%x' % (vT + 5, OOB))
        lin(sKO, 0, (sT, 16384))
        RS, Z = vP + 2, vP + 3
        e('v_lshrrev_b32 v%d, 2, v%d\nv_lshlrev_b32 v%d, 17, v%d' % (RS, vL, RS, RS))
        e('v_and_b32 v%d, 3, v%d\nv_lshl_or_b32 v%d, v%d, 10, v%d' % (Z, vL, RS, Z, RS))
        e('v_cmp_gt_u32 vcc, 0x80, v%d' % (vT + 3))
        lin(sT1, 0, (sTBG, 1024), (sJ, 128))
        e('v_cndmask_b32 v%d, v%d, v%d, vcc' % (RS, vT + 5, RS))
        e('v_lshrrev_b32 v%d, 9, v%d\nv_cmp_eq_u32 vcc, 1, v%d' % (Z, vT + 3, Z))
        e('v_lshlrev_b32 v%d, 2, v%d\nv_add_u32 v%d, 0x%x, v%d' % (Z, vL, Z, 0x40000 - 128, Z))
        e('v_cndmask_b32 v%d, v%d, v%d, vcc' % (RS, RS, Z))
        e('v_cmp_eq_u32 vcc, 0, v%d\nv_mov_b32 v%d, s%d\ns_add_u32 s%d, s%d, 0x%x' % (vL, vFLAG, sT1, sRET, sT1, FLAG_OFF))
        e('v_cndmask_b32 v%d, v%d, v%d, vcc' % (vFLAG, vT + 5, vFLAG))
        e('v_cmp_eq_u32 vcc, 0, v%d\nv_mov_b32 v%d, 0\ns_add_u32 s%d, s%d, 0x%x' % (vT + 3, Z, sSTO, sT1, ST_OFF))
        e('v_cndmask_b32 v%d, v%d, 0, vcc' % (vPOFF, vT + 5))
        e('v_and_b32 v%d, 15, v%d\nv_lshrrev_b32 v%d, 4, v%d' % (vT, vL, vT + 1, vL))
        e('v_xor_b32 v%d, v%d, v%d\nv_lshlrev_b32 v%d, 4, v%d\nv_lshl_or_b32 v%d, v%d, 8, v%d' % (vT + 1, vT + 1, vT, vT + 1, vT + 1, vKA, vT, vT + 1))
        for ks in range(1, 4):
            e('v_xor_b32 v%d, 0x%x, v%d' % (vKA + ks, 64 * ks, vKA))
        e('v_lshrrev_b32 v%d, 2, v%d\nv_and_b32 v%d, 7, v%d\nv_lshlrev_b32 v%d, 5, v%d' % (vT, vL, vT + 1, vT, vT + 1, vT + 1))
        e('v_lshl_or_b32 v%d, v%d, 8, v%d\nv_and_b32 v%d, 3, v%d\nv_lshl_or_b32 v%d, v%d, 3, v%d' % (vT, vT, vT + 1, vT + 1, vL, vT, vT + 1, vT))
        for db in range(4, 8):
            e('v_xor_b32 v%d, 0x%x, v%d' % (vTR + db, VRING | db << 5, vT))
        self.put(self.waddr(vTR, vT, 's%d' % sRING))
        e('v_bfe_i32 v%d, v%d, 1, 1\nv_and_b32 v%d, 0x3f803f80, v%d\nv_xor_b32 v%d, 0x3f803f80, v%d' % (vT, vL, vT + 1, vT, vT + 2, vT + 1))
        e('v_bfe_i32 v%d, v%d, 0, 1\nv_and_b32 v%d, 0xaaaaaaaa, v%d\nv_or_b32 v%d, 0x44444444, v%d' % (vT, vL, vT, vT, vIDX, vT))
        for r in range(4):
            e('v_accvgpr_write_b32 a%d, v%d\nv_accvgpr_write_b32 a%d, v%d' % (aONES + r, vT + 2, aONE2 + r, vT + 1))
        for r in range(8):
            e('v_accvgpr_write_b32 a%d, 0' % (aL + r))
        lin(sHO, 0, (sTBG, 1 << 14), (sJ, 1 << 11))
        lin(sX1I, X1_OFF, (sTBG, 1 << 14))
        lin(sX1O, 0, (sJ, 1 << 10), (sX1I, 1))
        lin(sPO, 0, (sT, 1 << 19), (sJ, 1 << 11), (sW, 1 << 17))
        lin(sPI, 0, (sT, 1 << 19), (sJ, 1 << 16), (sW, 1 << 14))
        lin(sCF, FLAG_OFF + 0x40000, (sT, 1 << 12), (sJ, 1 << 7))
        lin(sFP, FLAG_OFF + 0x40000, (sT, 1 << 12), (sW, 256), (sJ, 4))
        lin(sXO, 0, (sTBG, 1 << 14), (sJ, 64))
        lin(sCW, 0, (sTBG, 1024))
        lin(sW3W, 0, (sTBG, 4 * 3584))
        lin(sWOW, 0, (sTBG, 4096))
        e('s_lshr_b32 s%d, s%d, 1\ns_lshl_b32 s%d, s%d, 13' % (sWSH, sTBG, sWSH, sWSH))
        e('s_mov_b32 s%d, %s\ns_mov_b32 s%d, %s\ns_mov_b32 s%d, 0' % (sC0, f2u(-K2), sC0 + 1, f2u(-K2), sPASS))
        e('s_waitcnt lgkmcnt(0)')
        shift = {SW1: [(sJ, 128)], SW2: [(sJ, 64)], SK: [(sJ, 1 << 19)], SV: [(sJ, 1 << 19)], SWO: [(sJ, 1 << 19)]}
        for b, _, size in bufs[2:]:
            if b in shift:
                lin(sT1, 0, *shift[b])
                e('s_add_u32 s%d, s%d, s%d\ns_addc_u32 s%d, s%d, 0\ns_sub_u32 s%d, 0x%x, s%d' % (b, b, sT1, b + 1, b + 1, b + 2, size, sT1))
            else:
                e('s_mov_b32 s%d, 0x%x' % (b + 2, size))
            e('s_mov_b32 s%d, 0x20000' % (b + 3))
        e('s_mov_b32 s%d, s%d\ns_mov_b32 s%d, s%d\ns_mov_b32 s%d, 0x200000\ns_mov_b32 s%d, 0x20000' % (SH, SWS, SH + 1, SWS + 1, SH + 2, SH + 3))
        ns = self.opt('x_setup', 0)
        setup, e.l = e.l[mark:], e.l[:mark]
        self.sprinkle(setup, xl[nx:nx + ns], start=self.opt('xs_start', 20), every=self.opt('xs_every', 25))
        self.xrest = xl[nx + ns:]
        self.early = wl[nf:] + [Job(Ins('buffer_store_dword v%d, v%d, %s, s%d offen sc1' % (Z, RS, srd(SWS), sRET), tag='reset')),
                                Job('buffer_load_dwordx4 %s, v%d, %s, s%d offen' % (D, W1W, srd(SW1), sWSH)),
                                Job('buffer_load_dwordx4 %s, v%d, %s, s%d offen' % (D, W2W, srd(SW2), sWSH))]
        self.stamp('setup')
        self.touch(0)
        self.stamp('touched')
        e('s_branch L_go\n.p2align 12\nL_go:')

    def p0(self):
        e = self.s
        e('@sec P0 layernorm')
        P = lambda b: vr('v', b, 2)
        A, X0 = vS, vS + 8
        o = ['v_lshlrev_b32 v%d, 16, v%d' % (X0 + 1, vX), 'v_mov_b32_dpp v%d, v%d quad_perm:[0,0,0,0] row_mask:0xf bank_mask:0xf' % (X0, X0 + 1)]
        for k in range(64):
            d = vACC + 2 * k
            o += ['v_lshlrev_b32 v%d, 16, v%d' % (d, vX + k), 'v_and_b32 v%d, 0xffff0000, v%d' % (d + 1, vX + k),
                  'v_pk_add_f32 %s, %s, %s op_sel_hi:[1,0] neg_lo:[0,1] neg_hi:[0,1]' % (P(d), P(d), P(X0))]
            if k == 0:
                o += ['v_pk_mul_f32 %s, %s, %s' % (P(A + 2), P(d), P(d))]
            else:
                o += ['v_pk_add_f32 %s, %s, %s' % (P(A), P(A) if k > 1 else P(vACC), P(d)), 'v_pk_fma_f32 %s, %s, %s, %s' % (P(A + 2), P(d), P(d), P(A + 2))]
        wq = []
        for k in range(6):
            wq += self.whalf('wq', self.pair_order(0)[k], k)
        nd = self.opt('p1_dma', 2)
        jobs = []
        while self.xrest or (wq and nd):
            jobs += self.xrest[:1] + wq[:nd if self.xrest else nd + 1]
            wq = wq[nd if self.xrest else nd + 1:]
            self.xrest = self.xrest[1:]
        self.sprinkle(o, jobs, start=self.opt('p1_start', 2), every=20 // (nd + 1) if nd else 10)
        self.stamp('x landed')
        o = ['v_add_f32 v%d, v%d, v%d' % (A, A, A + 1), 'v_add_f32 v%d, v%d, v%d' % (A + 2, A + 2, A + 3)]
        for qp in ('[1,0,3,2]', '[2,3,0,1]'):
            for r in (A, A + 2):
                o.append('v_add_f32_dpp v%d, v%d, v%d quad_perm:%s row_mask:0xf bank_mask:0xf' % (r, r, r, qp))
        M, V, R = A, A + 2, A + 4
        o += ['v_mul_f32 v%d, %s, v%d' % (M, f2u(1.0 / 512), M), 'v_mul_f32 v%d, %s, v%d' % (V, f2u(1.0 / 512), V),
              'v_fma_f32 v%d, -v%d, v%d, v%d' % (V, M, M, V), 'v_max_f32 v%d, 0, v%d' % (V, V),
              'v_add_f32 v%d, %s, v%d' % (R, f2u(1e-5), V), 'v_rsq_f32 v%d, v%d' % (R, R),
              'v_and_b32 v%d, 0xf0, v%d' % (A + 7, vACT),
              'v_mul_f32 v%d, v%d, v%d' % (A + 6, R, R), 'v_fmaak_f32 v%d, v%d, v%d, %s' % (A + 6, A + 6, V, f2u(1e-5)), 'v_rsq_f32 v%d, v%d' % (A + 6, A + 6),
              'v_mul_f32 v%d, %s, v%d' % (R, f2u(CSCALE), R), 'v_mul_f32 v%d, %s, v%d' % (A + 6, f2u(1.0 / CSCALE), A + 6),
              'v_mul_f32_e64 v%d, -v%d, v%d' % (M, M, R), 'ds_bpermute_b32 v%d, v%d, v%d' % (self.F1, A + 7, A + 6)]
        for ks in range(16):
            for k in range(4 * ks, 4 * ks + 4):
                d = P(vACC + 2 * k)
                o.append('v_pk_fma_f32 %s, %s, %s, %s op_sel_hi:[1,0,0]' % (d, d, P(R), P(M)))
            for k in range(4 * ks, 4 * ks + 4):
                o.append('v_cvt_pk_bf16_f32 v%d, v%d, v%d' % (vX + k, vACC + 2 * k, vACC + 2 * k + 1))
            o.append('ds_write_b128 v%d, %s offset:%d' % (self.XW, vr('v', vX + 4 * ks, 4), 1024 * ks))
        nw, nl = 4 * self.opt('ln_w', 4), self.opt('ln_jobs', 22)
        jobs = wq[:nw] + self.early + wq[nw:]
        self.p2_first = jobs[nl:]
        self.sprinkle(o, jobs[:nl], start=self.opt('ln_start', 0), every=self.opt('ln_every', 2 if nd else 7))
        for nb in range(4):
            e('ds_read_b64 %s, v%d offset:%d' % (vr('a', aRES + 2 * nb, 2), self.RA + (nb & 1), 8192 * (nb >> 1) + 512 * (nb & 1)))
        e('v_lshl_add_u32 v%d, s%d, 14, v%d' % (self.XW, sW, self.XS))

    def kv_dma(self, which, unit, tag):
        buf, ring, so, vo = (SK, KRING, sKO, vDB) if which == 'K' else (SV, VRING, sVO, vDB + 2)
        fl = self.o.get('kvflag', 'nt_').replace('_', ' ') if self.kv_nt else ''
        m0 = 's_add_u32 m0, s%d, 0x%x' % (sW2K, ring + 8192 * (unit & 3))
        return [Job(Ins('buffer_load_dwordx4 v%d, %s, s%d offen %slds' % (vo, srd(buf), so, fl), tag=tag), m0=m0),
                Job(Ins('buffer_load_dwordx4 v%d, %s, s%d offen offset:1024 %slds' % (vo + 1, srd(buf), so, fl), tag=tag), m0=m0,
                    post=['s_add_u32 s%d, s%d, 0x2000' % (so, so), 's_and_b32 s%d, s%d, 0x7ffff' % (so, so)])]

    def pair_order(self, early):
        sg = [(kp, hf) for kp in range(8 - early) for hf in range(2)] + [(kp, hf) for hf in range(2) for kp in range(8 - early, 8)]
        return [2 * (2 * kp + kk) + hf for kp, hf in sg for kk in range(2)]

    def pair_groups(self, name, od):
        return [(['%s%d' % (name, k) for k in od[h:h + 2]], [k >> 1 for k in od[h:h + 2]],
                 [vACC + 64 * (od[h] & 1) + 16 * b for b in range(4)], od[h] < 2) for h in range(0, 32, 2)]

    def p2(self):
        e = self.s
        e('@sec P2')
        od = self.pair_order(0)
        later = [self.whalf('wq', od[h], h) if h < 32 else self.whalf('w1', h - 32, h) for h in range(6, 36)]
        if self.opt('kvwarm', 0):
            later[25] = later[25] + self.warm(SK, vACT, sWOW, (0, 1024, 2048, 3072)) + self.warm(SV, vACT, sWOW, (0, 1024, 2048, 3072))
        p = self.gemm(0, self.pair_groups('wq', od), lambda k, tb: (self.XS, (tb * 16 + k) * 1024),
                      later, self.p2_first, lambda: (self.s('s_barrier', need=['*lg']), self.stamp('P0 end')))
        self.q_first = p.rest
        for ks in range(16):
            p.g[16 * (ks + 2) + 7]['ds'].append('ds_read_b128 %s, v%d offset:%d' % (vr('v', vX + 4 * ks, 4), self.XW, 1024 * ks))
        assert not p.fill(self.waddr(vP + 12, vT, '0x%x' % (WREG + 8192)) + ['v_mov_b32 v%d, %s' % (vP + 10, f2u(-K1))], 16)
        f = ('v_lshrrev_b32 v%d, 4, v%d\nv_and_b32 v%d, 15, v%d\nv_lshl_add_u32 v%d, v%d, 8, s%d\n' % (vT, vL, vT + 1, vL, vT + 2, vT, sW2K) +
             'v_bfe_u32 v%d, v%d, 8, 4\nv_xor_b32 v%d, v%d, v%d\n' % (vT + 3, vT + 2, vT + 3, vT + 3, vT + 1) +
             'v_lshl_add_u32 v%d, v%d, 4, v%d\nv_xor_b32 v%d, 64, v%d\n' % (vDB, vT + 3, vT + 2, vDB + 1, vDB) +
             'v_lshlrev_b32 v%d, 1, v%d\nv_xor_b32 v%d, v%d, v%d\n' % (vT + 3, vT, vT + 3, vT + 3, vT + 1) +
             'v_lshl_add_u32 v%d, v%d, 4, v%d\nv_xor_b32 v%d, 0x80, v%d' % (vDB + 2, vT + 3, vT + 2, vDB + 3, vDB + 2)).split('\n')
        assert not p.fill(f, 32 * 14)
        assert not p.fill(self.vaddr_restore(), 16 * 31 + 2)
        p.jobs(self.flat([Job(Ins('buffer_atomic_add v%d, v%d, %s, s%d offen sc1' % (vONE, vPOFF, srd(SDBG), sT0), need=['reset']),
                              pre=['s_lshl_b32 s%d, s%d, 3' % (sT0, sT), 's_mov_b32 s%d, s%d' % (sVO, sKO)])]), p.empty(16 * 31 + 10, 1), lo=16 * 31 + 5)
        p.emit(self)
        self.stamp('P2 end')

    def q_p1(self):
        e = self.s
        e('@sec Q epilogue')
        if self.o.get('diag', '').startswith('xcc'):
            e('s_getreg_b32 s98, hwreg(HW_REG_XCC_ID)\ns_sub_u32 s98, s98, s%d\ns_and_b32 s98, s98, 7\ns_lshl_b32 s98, 1, s98' % sJ)
            e('v_mov_b32 v%d, s98\nbuffer_atomic_or v%d, v%d, %s, 0 offen offset:4 sc1' % (vT, vT, vPOFF, srd(SDBG)))
        e('s_barrier', need=['*lg'])
        jobs = self.q_first + self.tile_dma(0, 'kv0')
        o, wr = [], []
        fr = [(qb, ks) for qb in range(4) for ks in range(4)]
        for n in range(0, 16, 2):
            ts = []
            for qb, ks in fr[n:n + 2]:
                a = vACC + 32 * ks + 4 * qb
                o += self.pack(a + 16, a, a + 16)
                ts.append(a + 16)
            for op in ('v_permlane32_swap_b32', 'v_permlane16_swap_b32'):
                for t in ts:
                    o += ['%s v%d, v%d' % (op, t, t + 2), '%s v%d, v%d' % (op, t + 1, t + 3)]
            for (qb, ks), t in zip(fr[n:n + 2], ts):
                (wr if self.opt('q_in_p1', 1) else o).extend('v_accvgpr_write_b32 a%d, v%d' % (aQ + 16 * qb + 4 * ks + r, t + r) for r in range(4))
        self.sprinkle(o, jobs, every=self.opt('q_every', 4))
        self.stamp()
        e('@sec P1')
        e('s_barrier', need=['w13'])
        self.g16('v', vS, 0, vP + 12, wr)
        o = []
        for nb in range(4):
            o += self.gelu4(vS + 4 * nb, vX + 2 * nb, vP + 4 * (nb & 1), vP + 10, scale=self.F1)
        self.sprinkle(o, self.tile_dma(1, 'kv1'), every=11)
        for p in range(2):
            e('buffer_store_dwordx4 %s, v%d, %s, s%d offen offset:%d sc1' % (vr('v', vX + 4 * p, 4), vACT, srd(SH), sHO, 1024 * p), tag='hst')
        self.stamp()

    def p3(self, kreads):
        e = self.s
        self.stamp()
        e('@sec P3')
        acc = aK
        self.put(self.waddr(vT, vT + 4, '0x%x' % (WREG + 8192)))
        self.g16('a', acc, aK + 32, vT)
        X, R, PK = vX, vX + 16, vX + 32
        P = lambda b: vr('v', b, 2)
        for k in range(8):
            e('v_accvgpr_read_b32 v%d, a%d' % (PK + k, aRES + k))
        for k in range(8):
            e('v_lshlrev_b32 v%d, 16, v%d\nv_and_b32 v%d, 0xffff0000, v%d' % (R + 2 * k, PK + k, R + 2 * k + 1, PK + k))
        e('v_mov_b32 v%d, %s' % (PK + 8, f2u(1.0 / CSCALE)))
        for k in range(16):
            e('v_accvgpr_read_b32 v%d, a%d' % (X + k, acc + k))
        mark = len(e.l)
        for k in range(8):
            e('v_pk_fma_f32 %s, %s, %s, %s op_sel_hi:[1,0,1]' % (P(X + 2 * k), P(R + 2 * k), P(PK + 8), P(X + 2 * k)))
        for k in range(8):
            e('v_cvt_pk_bf16_f32 v%d, v%d, v%d' % (PK + k, X + 2 * k, X + 2 * k + 1))
        e('s_add_u32 s%d, s%d, 0x2000' % (sT1, sX1O))
        for p in range(2):
            e('buffer_store_dwordx4 %s, v%d, %s, s%d offen sc1' % (vr('v', PK + 4 * p, 4), vACT, srd(SWS), sT1 if p else sX1O))
        for k in range(8):
            e('v_lshlrev_b32 v%d, 16, v%d\nv_and_b32 v%d, 0xffff0000, v%d' % (X + 2 * k, PK + k, X + 2 * k + 1, PK + k))
            e('v_accvgpr_write_b32 a%d, v%d' % (aX1 + k, PK + k))
        for k in range(4):
            e('v_pk_add_f32 %s, %s, %s' % (P(R + 2 * k), P(X + 2 * k), P(X + 8 + 2 * k)))
        e('v_pk_add_f32 %s, %s, %s\nv_pk_add_f32 %s, %s, %s' % (P(R), P(R), P(R + 2), P(R + 4), P(R + 4), P(R + 6)))
        e('v_pk_add_f32 %s, %s, %s\nv_add_f32 v%d, v%d, v%d' % (P(R), P(R), P(R + 4), R + 8, R, R + 1))
        self.put(self.lanesum(R + 8, R + 10))
        e('v_mul_f32 v%d, %s, v%d' % (R + 8, f2u(1.0 / 64), R + 8))
        for k in range(8):
            e('v_pk_add_f32 %s, %s, %s op_sel_hi:[1,0] neg_lo:[0,1] neg_hi:[0,1]' % (P(X + 2 * k), P(X + 2 * k), P(R + 8)))
        for k in range(8):
            e('v_pk_fma_f32 %s, %s, %s, %s' % (P(R), P(X + 2 * k), P(X + 2 * k), P(R)) if k else 'v_pk_mul_f32 %s, %s, %s' % (P(R), P(X), P(X)))
        e('v_add_f32 v%d, v%d, v%d' % (R + 9, R, R + 1))
        e('v_lshlrev_b32 v%d, 3, v%d\nv_mov_b32 v%d, 0x%x\nv_cmp_gt_u32 vcc, 16, v%d' % (R, vL, R + 1, OOB, vL))
        self.put(self.lanesum(R + 9, R + 10))
        e('v_cndmask_b32 v%d, v%d, v%d, vcc' % (R, R + 1, R))
        e('buffer_store_dwordx2 %s, v%d, %s, s%d offen sc1' % (P(R + 8), R, srd(SWS), sSTO), tag='x1st')
        epi, e.l = e.l[mark:], e.l[:mark]
        for k, x in enumerate(epi):
            if k % 16 == 0:
                self.put(kreads[k // 4:k // 4 + 4])
            e.add(x)
        self.stamp()
        e('@sec attention 1b')

    def krd(self, u, f):
        kb, ks = f >> 2, f & 3
        return 'ds_read_b128 %s, v%d offset:%d' % (vr('a', aK + 32 * (u & 1) + 4 * f, 4), vKA + ks, KRING + 8192 * (u & 3) + 4096 * kb)

    def vrd(self, u, h):
        db, g = h >> 1, h & 1
        return 'ds_read_b64_tr_b16 %s, v%d offset:%d' % (vr('a', aV + 32 * (u & 1) + 4 * db + 2 * g, 2), vTR + db, 8192 * (u & 3) + 4096 * g)

    def rowsum(self, d, ones, p):
        return 'v_smfmac_f32_16x16x64_bf16 %s, %s, %s, v%d' % (vr('a', aL + 4 * d, 4), vr('a', ones, 4), vr('v', p, 8), vIDX)

    KV_GAPS = ((5, 1), (5, 5), (5, 9), (5, 13), (6, 1), (6, 5), (6, 13), (7, 1))
    SIDE_GAPS = {7: (5, 13), 0: (1, 5, 9, 13), 1: (1, 5), 4: (9, 13)}

    def tile_dma(self, T, tag):
        return sum([self.kv_dma(w, 2 * T + k, tag + w) for w in 'KV' for k in range(2)], [])

    def segment(self, seg, NS, sched, loop=None, inline=None):
        e = self.s
        NT, inline = NS // 8, inline or {}
        side, chk, fill = {}, {}, {}

        def slots(n):
            T, h = n >> 3, n & 7
            if n < 3 or n >= NS:
                return []
            g = list(self.SIDE_GAPS.get(h, ()))
            if T + 2 >= NT:
                g += [x for hh, x in self.KV_GAPS if hh == h]
            return sorted(g)

        def spread(jobs, n, stop, rate=4):
            jobs = list(jobs)
            while jobs:
                assert n < stop, 'side jobs do not fit'
                room = min(rate, len(slots(n)) - (n in chk) - len(side.get(n, [])))
                while room > 0 and jobs:
                    side.setdefault(n, []).append(jobs.pop(0))
                    room -= 1
                n += 1
        sched(spread, chk, fill)
        lab = 'L_attn%d' % seg
        plans, use = [], {}
        for n in range(NS + 3):
            T, h = n >> 3, n & 7
            p = Plan()
            if n < NS:
                for kb in range(2):
                    d = vr('v', vS + 8 * (n & 1) + 4 * kb, 4)
                    for i, ks in enumerate(range(3, -1, -1) if kb else range(4)):
                        j = p.add(mfma(d, vr('a', aK + 32 * (n & 1) + 16 * kb + 4 * ks, 4), vr('a', aQ + 16 * (h >> 1) + 4 * ks, 4), '0' if i == 0 else None))
                        use.setdefault(('K', T, n & 1, 4 * kb + ks), []).append((n, j))
            if n >= 3:
                m, dh = (n - 3) >> 1, (n - 3) & 1
                for db in range(4 * dh, 4 * dh + 4):
                    for i, kk in enumerate((1, 0) if db & 1 else (0, 1)):
                        j = p.add(mfma(vr('v', vACC + 16 * db + 4 * (m & 3), 4), vr('a', aV + 32 * kk + 4 * db, 4), vr('v', vP + 8 * (m & 1) + 4 * kk, 4),
                                       '0' if (m < 4 and seg == 0 and i == 0) else None))
                        use.setdefault(('V', m >> 2, kk, db), []).append((n, j))
            g, full = p.g, len(p.mf) == 16
            if 1 <= n <= NS:
                sb, pb = vS + 8 * ((n - 1) & 1), vP + 4 * ((n - 1) & 3)
                lag = 2 if n < 3 else 0
                for k in range(8):
                    g[2 * k if full else min(k + lag, 7)]['va'].append('v_exp_f32 v%d, v%d' % (sb + k, sb + k))
                    if k & 1:
                        g[2 * k + 1 if full else min(k + lag + 1, 7)]['va'].append('v_cvt_pk_bf16_f32 v%d, v%d, v%d' % (pb + k // 2, sb + k - 1, sb + k))
            jobs, pos = [], []
            self.kv_nt = False
            if seg and n < 2:
                jobs, pos = self.tile_dma(1, 'kv1')[4 * n:4 * n + 4], [0, 2, 4, 6]
            if T + 2 < NT and n < NS:
                for jb, (hh, x) in zip(self.tile_dma(T + 2, 'kv%d' % (T + 2)), self.KV_GAPS):
                    if hh == h:
                        jobs.append(jb)
                        pos.append(x)
            free = slots(n)
            if n in chk:
                g[free.pop()]['end'] += chk[n]
            jobs += side.get(n, [])
            pos += free[:len(side.get(n, []))]
            assert pos == sorted(pos)
            if full and h == 4:
                late_v = seg and T == 0
                g[14]['sc'].append(Ins('@need', need=(['kv%d%s' % (T + 1, 'K' if late_v else 'V')] if T + 1 < NT else []) + ['*lg']))
                g[15]['sc'].append('s_barrier')
            if seg and n == 9:
                g[0]['sc'].append(Ins('s_barrier', need=['kv1V']))
            if loop and loop[0] <= n < loop[1] and (n - loop[0]) % 16 == 15:
                g[10]['sc'].append('s_sub_u32 s%d, s%d, 1' % (sCNT, sCNT))
                g[12]['sc'].append('s_cmp_lg_u32 s%d, 0' % sCNT)
            prev, pend = p.jobs(self.flat(jobs), pos)
            p.scalars(pend, prev + 1, 10 if prev < 8 and full else len(g))
            plans.append(p)
        reads, pre, held = [], [], {}
        for (w, T, k, f), u in use.items():
            ins = [self.krd(2 * T + k, f)] if w == 'K' else [self.vrd(2 * T + k, 2 * f + x) for x in range(2)]
            if w == 'K' and 8 * T in inline:
                held.setdefault(8 * T, []).extend(ins)
            elif w == 'K' and T == 0 and k == 0:
                pre += ins
            else:
                reads.append((u[0], use[w, T - 1, k, f][-1] if T else (0, 0), ins))
        reads.sort()
        for first, (n, j), ins in reads:
            for x in ins:
                while True:
                    p = plans[n]
                    g = p.g[j]
                    if len(p.mf) == 16:
                        ok = j & 1 and p.cap(j) > 0
                    else:
                        ok = not g['vm'] and len(g['ds']) < 2
                    if ok:
                        break
                    n, j = (n, j + 1) if j + 1 < len(p.mf) else (n + 1, 0)
                g['ds'].append(x)
                assert (n, j) < first and not ((n & 7) == 4 and j > 8)
        if loop:
            e('s_mov_b32 s%d, %d' % (sCNT, (loop[1] - loop[0]) // 16))
        e('s_barrier', need=['kv0V', '*lg'])
        self.put(pre)
        carry, dead = [], 0
        for n, p in enumerate(plans):
            if n in inline:
                inline[n](held[n])
            inloop = loop and loop[0] <= n < loop[1]
            if self.opt('astamp', 0) and n % 8 == 0 and not (loop and loop[0] <= n <= loop[1]) and n not in inline:
                self.stamp('s%d_%d' % (seg, n))
            if loop and n == loop[0]:
                self.stamp('pre')
            if inloop and (n - loop[0]) % 16 == 0:
                e('@rep %s %d' % (lab, n))
            if loop and n == loop[1]:
                e('@endrep ' + lab)
                self.stamp('loop')
            if n in fill:
                assert not carry
                carry, dead = fill[n]
            carry = p.fill(carry)
            if carry and n + 1 >= dead:
                p.g[-1]['va'] += carry
                carry = []
            if n >= 3 and n & 1:
                m = (n - 3) >> 1
                p.g[7 if len(p.mf) == 16 else 3]['end'].append(self.rowsum((m >> 1) & 1, aONE2 if m & 1 else aONES, vP + 8 * (m & 1)))
            if inloop and (n - loop[0]) % 16 == 15:
                p.g[15]['end'].append('s_cbranch_scc1 ' + lab)
            p.emit(self)
        self.stamp()

    def warm(self, buf, vo, so, offs):
        return [Job('buffer_load_dwordx4 %s, v%d, %s, s%d offen offset:%d' % (vr('a', aDUMMY, 4), vo, srd(buf), so, o)) for o in offs]

    def attention1(self):
        e = self.s
        e('@sec attention 1a')
        U, F, G = vX + 48, vT + 4, vT
        N1, P3 = self.opt('n1', 176), self.opt('p3', 40)
        L0, L1 = P3 + 8, N1 - 48
        f0 = ('v_and_b32 v%d, 3, v%d\nv_min_u32 v%d, 2, v%d\n' % (U, vL, U, U) +
              'v_add3_u32 v%d, v%d, s%d, -1\nv_med3_i32 v%d, v%d, 0, 31\nv_lshlrev_b32 v%d, 3, v%d' % (U, U, sT, U, U, vPOFF, U)).split('\n')
        f1 = ('v_bfe_u32 v%d, v%d, 1, 1\nv_lshl_add_u32 v%d, v%d, 1, -1\n' % (U, vL, U, U) +
              'v_bfe_u32 v%d, v%d, 3, 1\nv_mul_i32_i24 v%d, v%d, v%d\n' % (U + 1, vL, U, U, U + 1) +
              'v_add_u32 v%d, s%d, v%d\nv_max_i32 v%d, 0, v%d\nv_min_i32 v%d, 0x7f, v%d\n' % (U, sTBG, U, U, U, U, U) +
              'v_and_b32 v%d, 7, v%d\nv_lshl_or_b32 v%d, v%d, 3, v%d\n' % (U + 1, vL, U, U, U + 1) +
              'v_lshlrev_b32 v%d, 7, v%d\nv_add_u32 v%d, 0x%x, v%d' % (U, U, F, FLAG_OFF, U)).split('\n')
        f2 = ('v_and_b32 v%d, 15, v%d\nv_lshl_add_u32 v%d, s%d, 4, v%d\nv_and_b32 v%d, 48, v%d' % (U, vL, U, sTBG, U, U + 1, vL)).split('\n')
        for g, dlt in enumerate((-1, 1, -2, 2)):
            f2 += ['v_add_u32 v%d, %d, v%d' % (U + 2, dlt, U), 'v_and_or_b32 v%d, v%d, 15, v%d' % (U + 3, U + 2, U + 1),
                   'v_bfe_u32 v%d, v%d, 4, 8' % (U + 2, U + 2), 'v_lshl_or_b32 v%d, v%d, 10, v%d' % (U + 3, U + 2, U + 3),
                   'v_lshlrev_b32 v%d, 4, v%d' % (U + 3, U + 3), 'v_add_u32 v%d, 0x%x, v%d' % (G + g, 4096 * g, U + 3)]
        f3 = ('v_lshrrev_b32 v%d, 4, v%d\nv_and_b32 v%d, 15, v%d\nv_mul_u32_u24 v%d, 3584, v%d\n' % (vT, vL, vT + 1, vL, vT + 2, vT) +
              'v_lshl_add_u32 v%d, v%d, 4, v%d\nv_lshlrev_b32 v%d, 8, v%d\nv_lshl_or_b32 v%d, v%d, 3, v%d\n' % (vT + 3, vT + 1, vT + 2, vT, vT, vT, vT + 1, vT) +
              'v_lshl_add_u32 v%d, s%d, 10, v%d\nv_add_u32 v%d, 0x%x, v%d\n' % (vT, sTBG, vT, vT + 4, ST_OFF, vT) +
              'v_and_b32 v%d, 7, v%d\nv_lshl_or_b32 v%d, s%d, 3, v%d\n' % (vT, vL, vT, sTBG, vT) +
              'v_lshlrev_b32 v%d, 7, v%d\nv_add_u32 v%d, 0x%x, v%d' % (vT, vT, vPOFF, FLAG_OFF + 131072, vT)).split('\n')
        R, M, O = vT, vT + 1, vT + 2
        f3 += ['v_or_b32 v%d, s%d, v%d' % (M, sW, vL), 'v_cmp_eq_u32 vcc, 0, v%d' % M, 'v_mov_b32 v%d, 0x%x' % (O, OOB), 'v_mov_b32 v%d, 1' % R,
               'v_cndmask_b32 v%d, v%d, 0, vcc' % (M, O)]
        dbg = lambda op, off: Job('%s v%d, v%d, %s, s%d offen offset:%d %ssc1' % (op, R, M, srd(SDBG), sT2, off, 'sc0 ' * ('atomic' in op)),
                                  pre=['s_lshl_b32 s%d, s%d, 3' % (sT2, sJ) if off != 68 else 's_mov_b32 s%d, 0' % sT2])
        CB, SM = sT0, sT1
        slices = ['v_readfirstlane_b32 s%d, v%d' % (sRANK, vPRES), 'v_and_b32 v%d, 64, v%d' % (O, vWN), 's_sub_u32 s%d, s%d, 1' % (sRANK, sRANK),
                  's_and_b32 s%d, s%d, 7' % (sRANK, sRANK),
                  's_lshl_b32 s%d, s%d, 9' % (CB, sRANK), 's_min_u32 s%d, s%d, 0xd00' % (CB, CB),
                  's_add_u32 s%d, s%d, s%d' % (sW3W, sW3W, CB), 's_lshl_b32 s%d, s%d, 9' % (sT2, CB), 'v_add_u32 v%d, s%d, v%d' % (vW2, sT2, vWN),
                  's_cmp_ge_u32 s%d, 6' % sRANK, 's_cselect_b32 s%d, 1, 0' % SM, 's_cselect_b32 s%d, 10, 11' % sW4W, 's_cselect_b32 s%d, 1791, 0' % sSTEP,
                  's_lshl_b32 s%d, s%d, s%d' % (sW4W, sTBG, sW4W), 's_add_u32 s%d, s%d, s%d' % (sW4W, sW4W, sT2),
                  'v_mad_u32_u24 v%d, s%d, v%d, v%d' % (vW3, sSTEP, O, vW3), 's_lshl_b32 s%d, 0x%x, s%d' % (sSTEP, 32 * 3584, SM),
                  's_mul_i32 s%d, s%d, s%d' % (SM, SM, sW), 's_lshl_b32 s%d, s%d, 6' % (SM, SM), 's_sub_u32 s%d, s%d, s%d' % (CB, CB, SM),
                  'v_add_u32 v%d, s%d, v%d' % (vW3, CB, vW3),
                  's_sub_u32 s%d, s%d, s%d' % (sT2, sRANK, sJ), 's_lshl_b32 s%d, s%d, 11' % (sT2, sT2), 's_add_u32 s%d, s%d, s%d' % (sYO, sPO, sT2)]
        A, LR, LB, LT = vX + 56, self.LR, self.LB, vT + 4
        f4 = ['v_accvgpr_read_b32 v%d, a%d' % (A + r, aSTAT + r) for r in range(4)]
        f4 += ['v_add_f32 v%d, v%d, v%d' % (A + 4, A, A + 2)] + self.lanesum(A + 4, A + 5)
        f4 += ['v_mul_f32 v%d, 0x3e000000, v%d' % (A + 4, A + 4), 'v_sub_f32 v%d, v%d, v%d' % (A, A, A + 4), 'v_sub_f32 v%d, v%d, v%d' % (A + 2, A + 2, A + 4),
               'v_mul_f32 v%d, v%d, v%d' % (A, A, A), 'v_fmac_f32 v%d, v%d, v%d' % (A, A + 2, A + 2), 'v_add_f32 v%d, v%d, v%d' % (A + 1, A + 1, A + 3),
               'v_fmac_f32 v%d, 0x42800000, v%d' % (A + 1, A)] + self.lanesum(A + 1, A + 5)
        f4 += ['v_mov_b32 v%d, %s' % (LR, f2u(1e-5)), 'v_fmac_f32 v%d, %s, v%d' % (LR, f2u(1.0 / 512), A + 1), 'v_rsq_f32 v%d, v%d' % (LR, LR),
               'v_sub_f32 v%d, 0, v%d' % (A + 4, A + 4), 'v_mul_f32 v%d, v%d, v%d' % (LB, A + 4, LR)]
        f5, self.ln_done = [], self.opt('ln_fill', 6)
        for k in range(vX, vX + 4 * self.ln_done):
            f5 += ['v_lshlrev_b32 v%d, 16, v%d' % (LT, k), 'v_and_b32 v%d, 0xffff0000, v%d' % (k, k), 'v_fma_f32 v%d, v%d, v%d, v%d' % (LT, LT, LR, LB),
                   'v_fma_f32 v%d, v%d, v%d, v%d' % (k, k, LR, LB), 'v_cvt_pk_bf16_f32 v%d, v%d, v%d' % (k, LT, k)]
        f6 = ['v_lshl_add_u32 v%d, s%d, 14, v%d' % (vT + 3, sW, vACT)] + self.waddr(vTR, vT, 's%d' % sRING)
        f6 += ['v_mov_b32 v%d, v%d' % (vS + 6, LR), 'v_mov_b32 v%d, v%d' % (vS + 4, LB)]
        self.put(f0)

        def sched(spread, chk, fill):
            c0, c1 = 12, P3 - 20
            chk[c0] = self.poll_check(SDBG, 8) + [Ins('v_mov_b32 v%d, v%d' % (vPOFF, F))]
            chk[c1] = self.poll_check(SWS, 1)
            chk[L1 + 4] = self.poll_check(SWS, 1) + ['v_mov_b32 v%d, 132' % vPOFF, 'v_lshl_add_u32 v%d, s%d, 3, v%d' % (vPOFF, sJ, vPOFF)]
            chk[L1 + 7] = ['v_cmp_eq_u32 vcc, %d, v%d' % (self.opt('quant', 3), R), 'v_mov_b32 v%d, 1' % R, 'v_cndmask_b32 v%d, v%d, v%d, vcc' % (M, O, M)]
            chk[L1 + 15] = ['v_add_u32 v%d, 1, v%d' % (R, R)]
            chk[L1 + 28] = self.poll_check(SDBG, 0) + slices
            fill[4], fill[c0], fill[P3] = (f1, c0), (f2, c1 + 1), (f3, P3 + 6)
            fill[L1 + 12], fill[L1 + 23], fill[N1 + 2] = (f4, L1 + 23), (f5, N1 + 2), (f6, N1 + 3)
            spread([self.flag_store(0, ['hst'])], 4, 5)
            spread([self.poll_load(SDBG)], 7, 8)
            spread([self.poll_load(SWS)], c1 - 5, c1 - 4)
            w2 = []
            for k in range(4):
                w2 += self.whalf('w2', k, 2 + k)
            spread(w2, 4, P3 - 19)
            spread([Job('buffer_load_dwordx4 %s, v%d, %s, 0 offen offset:%d sc1' % (vr('v', vX + 4 * k, 4), G + (k >> 2), srd(SH), 1024 * (k & 3)))
                    for k in range(16)], c1 + 1, P3 - 3, 2)
            spread([self.flag_store(1, ['x1st'])], P3 + 4, P3 + 5)
            spread([self.poll_load(SWS), dbg('buffer_atomic_add', 4)], L1, L1 + 1)
            spread([dbg('buffer_atomic_add', 68)], L1 + 8, L1 + 9)
            spread([dbg('buffer_store_dword', 132)], L1 + 16, L1 + 17)
            spread([self.poll_load(SDBG)], L1 + 24, L1 + 25)
            spread([Job('buffer_load_dwordx2 %s, v%d, %s, 0 offen offset:%d sc1' % (vr('a', aSTAT + 2 * k, 2), vT + 4, srd(SWS), 128 * k)) for k in range(2)]
                   + self.gather('v', vX, sX1I, 0, 'sc1' + ' nt' * self.opt('nt1', 0)), L1 + 7, L1 + 29, 2)
            spread(self.warm(SCODE, vACT, sCW, (0,)), L1 + 1, L1 + 2)
            spread(self.warm(SW3, vT + 3, sW3W, (0, 256)) + self.warm(SW4, vACT, sW4W, (0, 1024)), L1 + 31, L1 + 33, 2)
            spread(sum([self.whalf('w3', k, k, None) for k in range(4)], []), N1 - 8, N1)
        self.segment(0, N1, sched, loop=(L0, L1), inline={P3: self.p3})

    def h2a(self, tb, slot):
        return 16384 + (tb & 1) * 8192 + (tb >> 1) * 32768 + slot * 1024

    def mlp(self):
        e = self.s
        P = lambda b: vr('v', b, 2)
        e('@sec LN x1')
        o, wr = [], ['ds_write_b128 v%d, %s offset:%d' % (vT + 3, vr('v', vX + 4 * ks, 4), 1024 * ks) for ks in range(16)]
        for ks in range(self.ln_done, 16):
            t = vP + 8 * (ks & 1)
            for k in range(4):
                o += ['v_lshlrev_b32 v%d, 16, v%d' % (t + 2 * k, vX + 4 * ks + k), 'v_and_b32 v%d, 0xffff0000, v%d' % (t + 2 * k + 1, vX + 4 * ks + k)]
            if ks - self.ln_done < self.ln_done:
                o.append(wr[ks - self.ln_done])
            for k in range(4):
                o.append('v_pk_fma_f32 %s, %s, %s, %s op_sel_hi:[1,0,0]' % (P(t + 2 * k), P(t + 2 * k), P(vS + 6), P(vS + 4)))
            for k in range(4):
                o.append('v_cvt_pk_bf16_f32 v%d, v%d, v%d' % (vX + 4 * ks + k, t + 2 * k, t + 2 * k + 1))
            o.append(wr[ks])
        o += wr[16 - self.ln_done:self.ln_done]
        self.put(o)
        self.touch(1)
        self.stamp()
        e('s_cmp_ge_u32 s%d, 6\ns_cbranch_scc1 L_mlp_small' % sRANK)
        n0, names = self.nstamp, len(self.tail)
        main, self.s = self.s, Stream(known=['w3%d' % k for k in range(4)])
        self.s('L_mlp_small:\ns_waitcnt vmcnt(0) lgkmcnt(0)')
        self.mlp_body(True)
        self.s('s_waitcnt vmcnt(0) lgkmcnt(0)\ns_branch L_mlp_done')
        self.s.insert_waits()
        self.s.pad_hazards()
        self.aside, self.s = self.s, main
        self.nstamp, self.tail[names:] = n0, []
        self.mlp_body(False)
        e('L_mlp_done:')

    def mlp_body(self, small):
        e = self.s
        P = lambda b: vr('v', b, 2)
        e('@sec P5')
        n3 = 8 if small else 16
        sync = lambda: self.s('s_barrier', need=['*lg'])
        piece = lambda h: self.whalf('w3', h, h, small) if h < n3 else self.whalf('w4', h - n3, h, small)
        groups = [(['w3%d' % (k // 2)] if small else ['w3%d' % k, 'w3%d' % (k + 1)], [k, k + 1], [vX + 16 * b for b in range(n3 // 4)], k == 0) for k in range(0, 16, 2)]
        p = self.gemm(0, groups, lambda k, tb: (vACT, (tb * 16 + k) * 1024), [piece(h) for h in range(6, n3 + 6)], piece(4) + piece(5), sync)
        HW, KC = vT, vT + 2
        f = ('v_lshl_add_u32 v%d, s%d, %d, v%d\nv_mov_b32 v%d, %s\n' % (HW, sW, 10 if small else 11, vACT, KC, f2u(-K1)) +
             'v_lshlrev_b32 v%d, 7, v%d\nv_mov_b32 v%d, 0x%x\nv_cmp_gt_u32 vcc, 2, v%d\n' % (vS, vL, vS + 1, OOB, vL) +
             'v_and_b32 v%d, 7, v%d\nv_lshl_add_u32 v%d, v%d, 2, s%d\nv_cndmask_b32 v%d, v%d, v%d, vcc\n' % (vS + 2, vL, vPOFF, vS + 2, sCF, vFLAG, vS + 1, vS) +
             'v_and_b32 v%d, 15, v%d\nv_lshlrev_b32 v%d, 10, v%d\n' % (vS, vL, vS, vS) +
             'v_lshrrev_b32 v%d, 4, v%d\nv_lshl_or_b32 v%d, v%d, 3, v%d' % (vS + 1, vL, vW1, vS + 1, vS)).split('\n')
        assert not p.fill(f)
        p.emit(self)
        self.stamp()
        e('@sec gelu')
        e('s_barrier')
        o, n = [], 0
        for pp in range(n3 // 8):
            for tb in range(4):
                d = vS + 4 * (n % 4)
                for g in range(2):
                    o += self.gelu4(vX + 16 * (2 * pp + g) + 4 * tb, d + 2 * g, vP + 4 * g, KC)
                n += 1
                o.append('ds_write_b128 v%d, %s offset:%d' % (HW, vr('v', d, 4), self.h2a(tb, pp)))
        self.put(o)
        self.stamp()
        e('@sec P7')
        accB, ng = (vS, vP, vX, vX + 32), n3 // 4
        groups = [(['w4%d' % (2 * (ng * ps + k) + i) for i in range(2)], [2 * k, 2 * k + 1], accB if ps else [vX + 16 * b for b in range(4)], k == 0)
                  for ps in range(2) for k in range(ng)]
        p = self.gemm(n3, groups, lambda k, tb: (vACT, self.h2a(tb, k)), [piece(h) for h in range(n3 + 6, 2 * n3)], p.rest, sync, self.tile_dma(0, 'kv0'))
        assert not p.rest
        for pp, (lo, hi) in enumerate(((p.st[ng - 1] + 18, p.st[ng] + 16), (p.st[ng] + 2, p.st[ng] + 24))):
            pk = []
            for tb in range(4):
                a = vX + 32 * pp + 4 * tb
                pk += self.pack(a + 16, a, a + 16)
            p.g[hi - 1]['va'] += p.fill(pk, lo, hi)
        pk = self.vaddr_restore()
        for tb in range(4):
            pk += self.pack(vP + 4 * tb, vS + 4 * tb, vP + 4 * tb)
        rest = p.fill(pk, p.st[-1] + 17)
        p.emit(self)
        self.put(rest)
        for tb in range(4):
            self.put(self.pack(vX + 32 + 4 * tb, vX + 4 * tb, vX + 32 + 4 * tb))
        for r in range(0, 16, 2):
            e('v_pk_mov_b32 %s, %s, %s op_sel:[0,1]' % (P(vX + r), P(vP + r), P(vP + r)))
        self.yfrag = {(0, 0): vX + 16, (0, 1): vX + 48, (1, 0): vX, (1, 1): vX + 32}
        self.stamp()

    def part_flag(self, word, need):
        return Job(Ins('buffer_store_dword v%d, v%d, %s, s%d offen offset:%d sc1' % (vONE, vFLAG, srd(SWS), sFP, 4 * word), need=need))

    def attention2(self):
        e = self.s
        e('@sec attention 2a')
        N2 = 256 - self.opt('n1', 176)
        H, T = self.opt('head2', 32), N2 - self.opt('tail2', 32)

        def sched(spread, chk, fill):
            chk[T + 4] = self.poll_check(SWS, 1) + [Ins('v_add_u32 v%d, 32, v%d' % (vPOFF, vPOFF))]
            spread([self.part_store(self.yfrag[h, pp] + 4 * tb, YP_OFF + 65536 * pp + 16384 * tb + 1024 * h, 'yst', sYO)
                    for h in range(2) for pp in range(2) for tb in range(4)], 4, H - 8, 2)
            spread([self.part_flag(0, ['yst'])], H - 8, H - 7)
            spread(self.warm(SWO, vACT, sWOW, (0, 1024, 2048, 3072)) + self.warm(SCODE, vACT, sCW, (0,)), H - 8, H - 6)
            spread([self.poll_load(SWS)], T, T + 1)
            spread([Job('buffer_load_dwordx2 %s, v%d, %s, s%d offen offset:%d' % (vr('a', aRES + 2 * nb, 2), vW1, srd(SX), sXO, 512 * (nb >> 1) + 32 * (nb & 1)))
                    for nb in range(4)], T, T + 2)
            spread(self.gather('v', vX, sPI, YP_OFF, 'sc1' + ' nt' * self.opt('nt2', 1)), T + 5, N2 - 8, 2)
            wo = []
            for k in range(6):
                wo += self.whalf('wo', self.pair_order(0)[k], k)
            spread(wo, N2 - 11, N2)
        self.segment(1, N2, sched, loop=(H, T) if T >= H + 32 else None)
        self.o_epilogue()

    def o_epilogue(self):
        e = self.s
        e('@sec O epilogue')
        e('L_oepi:')
        for r in range(8):
            e('v_accvgpr_read_b32 v%d, a%d' % (vS + r, aL + r))
        for qb in range(4):
            e('v_add_f32 v%d, v%d, v%d' % (vS + 2 * qb, vS + 2 * qb, vS + 2 * qb + 1))
        B = vS + 8
        for qb in range(4):
            e('v_subrev_u32 v%d, 0x2b800000, v%d' % (B + qb, vS + 2 * qb))
        e('v_max3_u32 v%d, v%d, v%d, v%d\nv_max_u32 v%d, v%d, v%d' % (B, B, B + 1, B + 2, B, B, B + 3))
        e('v_cmp_lt_u32 vcc, 0x28000000, v%d' % B)
        e('v_and_b32 v%d, 3, v%d\nv_lshlrev_b32 v%d, 12, v%d\nv_lshl_add_u32 v%d, s%d, 2, v%d' % (B + 1, vL, B + 1, B + 1, B + 1, sW, B + 1))
        e('s_or_b32 s%d, vcc_lo, vcc_hi' % sT0)
        e('v_mov_b32 v%d, s%d' % (B, sT0))
        e('ds_write_b32 v%d, v%d' % (B + 1, B))
        for qb in range(4):
            e('v_rcp_f32 v%d, v%d' % (vS + 2 * qb, vS + 2 * qb))
        e('v_lshl_add_u32 v%d, s%d, 12, v%d' % (vP, sW, vACT))
        e('s_lshl_b32 s%d, s%d, 12\nv_mov_b32 v%d, s%d' % (sT0, sW, B + 1, sT0))
        e('s_barrier', need=['*lg'])
        e('ds_read_b128 %s, v%d' % (vr('v', B + 4, 4), B + 1))
        for qb in range(4):
            for ks in range(4):
                a = vACC + 32 * ks + 4 * qb
                for h in (0, 2, 16, 18):
                    e('v_pk_mul_f32 %s, %s, %s op_sel_hi:[1,0]' % (vr('v', a + h, 2), vr('v', a + h, 2), vr('v', vS + 2 * qb, 2)))
                self.put(self.pack(a + 16, a, a + 16))
                if qb == 0 and ks < 2:
                    if ks == 0:
                        continue
                    e('v_or3_b32 v%d, v%d, v%d, v%d\nv_or_b32 v%d, v%d, v%d' % (B, B + 4, B + 5, B + 6, B, B, B + 7))
                    e('v_cmp_ne_u32 vcc, 0, v%d\ns_cbranch_vccnz L_slow\nL_ofine:' % B)
                    e('ds_write_b128 v%d, %s' % (vP, vr('v', vACC + 16, 4)))
                e('ds_write_b128 v%d, %s offset:%d' % (vP, vr('v', a + 16, 4), (16 * qb + ks) * 1024))
        self.put(self.waddr(vTR, vT, 's%d' % sRING))
        self.stamp()
        self.slow_path()

    def slow_path(self):
        main, self.s = self.s, Stream()
        e = self.s
        M = vT
        e('L_slow:\ns_cmp_lg_u32 s%d, 0\ns_cbranch_scc1 L_ofine\ns_mov_b32 s%d, 1' % (sPASS, sPASS))
        e('s_waitcnt vmcnt(0) lgkmcnt(0)')
        for ps in range(2):
            e('s_mov_b32 s%d, 0\ns_mov_b32 s%d, 0\ns_mov_b32 s%d, 64' % (sKO, sVO, sCNT))
            if ps == 0:
                for qb in range(4):
                    e('v_mov_b32 v%d, 0xff800000' % (M + qb))
            else:
                for qb in range(4):
                    for op in ('v_permlane32_swap_b32', 'v_permlane16_swap_b32'):
                        e('v_mov_b32 v%d, v%d\n%s v%d, v%d\nv_max_f32 v%d, v%d, v%d' % (vS, M + qb, op, vS, M + qb, M + qb, M + qb, vS))
                e('v_lshrrev_b32 v%d, 4, v%d\nv_xor_b32 v%d, v%d, v%d\nv_bfe_i32 v%d, v%d, 1, 1' % (vS, vL, vS, vS, vL, vS, vS))
                e('v_not_b32 v%d, v%d\nv_and_b32 v%d, 0x3f803f80, v%d' % (vS, vS, vS, vS))
                for r in range(4):
                    e('v_accvgpr_write_b32 a%d, v%d' % (aONES + r, vS))
                for r in range(128):
                    e('v_mov_b32 v%d, 0' % (vACC + r))
                for r in range(8):
                    e('v_accvgpr_write_b32 a%d, 0' % (aL + r))
            e('L_slow%d:\ns_barrier' % ps)
            self.emit_jobs(self.kv_dma('K', 0, 'k') + (self.kv_dma('V', 0, 'k') if ps else []))
            e('s_barrier', need=['k'])
            self.put([self.krd(0, f) for f in range(8)] + ([self.vrd(0, h) for h in range(16)] if ps else []))
            e('s_waitcnt lgkmcnt(0)')
            for qb in range(4):
                for kb in range(2):
                    for ks in range(4):
                        e(mfma(vr('v', vS + 4 * kb, 4), vr('a', aK + 16 * kb + 4 * ks, 4), vr('a', aQ + 16 * qb + 4 * ks, 4), '0' if ks == 0 else None))
                if ps == 0:
                    for r in range(0, 8, 2):
                        e('v_max3_f32 v%d, v%d, v%d, v%d' % (M + qb, M + qb, vS + r, vS + r + 1))
                    continue
                for r in range(8):
                    e('v_sub_f32 v%d, v%d, v%d' % (vS + r, vS + r, M + qb))
                for r in range(8):
                    e('v_exp_f32 v%d, v%d' % (vS + r, vS + r))
                for r in range(4):
                    e('v_cvt_pk_bf16_f32 v%d, v%d, v%d' % (vP + 4 * qb + r, vS + 2 * r, vS + 2 * r + 1))
                for db in range(8):
                    e(mfma(vr('v', vACC + 16 * db + 4 * qb, 4), vr('a', aV + 4 * db, 4), vr('v', vP + 4 * qb, 4)))
                if qb & 1:
                    e(self.rowsum(qb >> 1, aONES, vP + 4 * (qb - 1)))
            e('s_nop 7\ns_sub_u32 s%d, s%d, 1\ns_cmp_lg_u32 s%d, 0\ns_cbranch_scc1 L_slow%d' % (sCNT, sCNT, sCNT, ps))
        e('s_barrier\ns_branch L_oepi')
        e.insert_waits()
        e.pad_hazards()
        self.tail.append(e.text())
        self.s = main

    SEL = vT

    def reduce(self, acc, f, regs, ks, first=False):
        return [mfma(vr('v', acc + 4 * (2 * (k & 1) + g), 4), vr('v', self.SEL + 2 - 2 * g, 4), vr(f, regs + 4 * k, 4), '0' if (first and k < 2) else None)
                for k in ks for g in range(2)]

    def collect(self, acc, regs, base):
        e, L = self.s, 'L_c'
        NEW, N = sT0, sT1
        e('s_mov_b32 s%d, 0x80000' % sT3)
        e('%s_top:\ns_cmp_eq_u32 s%d, 0xff\ns_cbranch_scc1 %s_end' % (L, sDONE, L))
        e('%s_poll:' % L)
        e.add(self.poll_load(SWS).ins)
        e('s_waitcnt vmcnt(0)\nv_cmp_eq_u32 vcc, 1, v%d\ns_and_b32 s%d, vcc_lo, 0xff' % (vPRES, NEW))
        if self.opt('allatonce', 0):
            e('s_or_b32 s%d, s%d, s%d\ns_cmp_eq_u32 s%d, 0xff\ns_cselect_b32 s%d, s%d, 0' % (NEW, NEW, sDONE, NEW, NEW, NEW))
        e('s_andn2_b32 s%d, s%d, s%d\ns_cbranch_scc1 %s_go' % (NEW, NEW, sDONE, L))
        if self.opt('backoff', 0):
            e('s_sleep %d' % self.opt('backoff', 0))
        e('s_sub_u32 s%d, s%d, 1\ns_cbranch_scc0 %s_poll\ns_branch %s_end' % (sT3, sT3, L, L))
        e('%s_go:\ns_or_b32 s%d, s%d, s%d\ns_bcnt1_i32_b32 s%d, s%d' % (L, sDONE, sDONE, NEW, N, NEW))
        for n in range(1, 8):
            e('s_cmp_eq_u32 s%d, %d\ns_cbranch_scc1 %s_ld%d' % (N, n, L, 8 - n))
        for q in range(8):
            e('%s_ld%d:\ns_ff1_i32_b32 s%d, s%d\ns_bitset0_b32 s%d, s%d' % (L, q, sT2, NEW, NEW, sT2))
            e('s_lshl_b32 s%d, s%d, 11\ns_add_u32 s%d, s%d, s%d' % (sT2, sT2, sT2, sT2, base))
            for p in range(2):
                e('buffer_load_dwordx4 %s, v%d, %s, s%d offen offset:%d sc1' % (vr('a', regs + 8 * q + 4 * p, 4), vACT, srd(SWS), sT2, 1024 * p))
        for n in range(1, 8):
            e('s_cmp_eq_u32 s%d, %d\ns_cbranch_scc1 %s_mm%d' % (N, n, L, 8 - n))
        for q in range(8):
            e('%s_mm%d:' % (L, q))
            self.put(self.reduce(acc, 'a', regs, (2 * q, 2 * q + 1)))
        e('s_branch %s_top\n%s_end:' % (L, L))

    def p6_final(self):
        e = self.s
        P = lambda b: vr('v', b, 2)
        e('@sec P6')
        NE, own = self.opt('p6_early', 3), self.opt('own', 1)
        od = self.pair_order(NE)
        p = self.gemm(0, self.pair_groups('wo', od), lambda k, tb: (vACT, (tb * 16 + k) * 1024), [self.whalf('wo', od[h], h) for h in range(6, 32)],
                      sync=lambda: self.s('s_barrier', need=['*lg']))
        pk, st = [[], []], [[], []]
        for h in range(2):
            for pp in range(2):
                for tb in range(4):
                    a = vACC + 64 * h + 32 * pp + 4 * tb
                    pk[h].append(self.pack(a + 16, a, a + 16))
                    st[h].append(self.part_store(a + 16, SP_OFF + 65536 * pp + 16384 * tb + 1024 * h, 'sst', vo=vDB + pp if own else vACT))
        if NE:
            pos = list(range(p.dma_end, 512, 8))[:8]
            for k, q in enumerate(pos):
                p.jobs(self.flat([st[0][k]]), [q], lo=q - 2)
            for k, q in enumerate(pos):
                assert not p.fill(pk[0][k], 32 * (16 - NE) + 2, q)
            pk[0], st[0] = pk[0][len(pos):], st[0][len(pos):]
        SEL, ZZ, XF, SS, E, M = self.SEL, vS, vP, vX, vX + 16, vX + 32
        t = vKA
        f = ('v_lshrrev_b32 v%d, 4, v%d\nv_bfe_u32 v%d, v%d, 2, 2\nv_and_b32 v%d, 1, v%d\nv_lshlrev_b32 v%d, 4, v%d\n' % (t + 1, vL, t, vL, t + 2, vL, t + 2, t + 2) +
             'v_mov_b32 v%d, 0x3f80\nv_lshlrev_b32 v%d, v%d, v%d\n' % (t + 3, t + 2, t + 2, t + 3) +
             'v_cmp_eq_u32 vcc, v%d, v%d\nv_mov_b32 v%d, 0\nv_mov_b32 v%d, 0\n' % (t, t + 1, SEL, SEL + 1) +
             'v_cndmask_b32 v%d, 0, v%d, vcc\nv_and_b32 v%d, 2, v%d\nv_cmp_eq_u32 vcc, 0, v%d\n' % (t + 2, t + 2, t, vL, t) +
             'v_mov_b32 v%d, 0\nv_mov_b32 v%d, 0\nv_cndmask_b32 v%d, 0, v%d, vcc\n' % (SEL + 4, SEL + 5, SEL + 2, t + 2) +
             'v_sub_u32 v%d, v%d, v%d\n' % (SEL + 3, t + 2, SEL + 2) +
             'v_lshl_add_u32 v%d, v%d, 3, v%d' % (vW2, t + 1, vW1)).split('\n')
        p.scalars(['s_lshl_b32 s%d, s%d, 1' % (sVO, sW), 's_sub_u32 s%d, s%d, s%d' % (sVO, sJ, sVO), 's_lshr_b32 s%d, s%d, 1' % (sCNT, sJ),
                   's_mul_i32 s%d, s%d, %d' % (sCNT, sCNT, WWAVE), 's_add_u32 s%d, s%d, s%d' % (sCNT, sCNT, sW2K), 's_add_u32 s%d, s%d, %d' % (sCNT, sCNT, WREG)], 0, 16)
        f += ['v_mov_b32 v%d, 0x%x' % (t, OOB), 'v_mov_b32 v%d, s%d' % (t + 1, sVO), 'v_cmp_eq_u32 vcc, 0, v%d' % (t + 1),
              'v_add_u32 v%d, s%d, v%d' % (vDB + 2, sRING, vACT), 'v_add_u32 v%d, s%d, v%d' % (vDB + 3, sCNT, vACT),
              'v_cndmask_b32 v%d, v%d, v%d, vcc' % (vDB, vACT, t), 'v_cmp_eq_u32 vcc, 1, v%d' % (t + 1),
              'v_cndmask_b32 v%d, v%d, v%d, vcc' % (vDB + 1, vACT, t)]
        assert not p.fill(f, 0, 48)
        red = self.reduce(XF, 'a', aRES, (0, 1), True) + self.reduce(ZZ, 'a', aX1, (0, 1), True) + self.reduce(ZZ, 'v', vX, range(16))
        for k, m in enumerate(red):
            p.g[16 * (4 + k // 4) + 4 * (k % 4) + 3]['end'].append(m)
        gate = []
        for r in range(16):
            gate += ['v_mul_f32 v%d, %s, v%d' % (E + r, f2u(-math.log2(math.e)), ZZ + r)]
        for op in ('v_exp_f32 v%d, v%d', 'v_add_f32 v%d, 1.0, v%d', 'v_rcp_f32 v%d, v%d'):
            gate += [op % (E + r, E + r) for r in range(16)]
        gate += ['v_mul_f32 v%d, v%d, v%d' % (ZZ + r, ZZ + r, E + r) for r in range(16)]
        g0 = self.opt('spoll', 1)
        if g0:
            p.jobs(self.flat([self.poll_load(SWS)]), p.empty(self.opt('spoll_at', 506), 1))
        rest = p.fill(gate, 16 * 14 + 4)
        assert not rest
        p.scalars(['s_add_u32 s%d, s%d, 0x%x' % (sKO, sPI, SP_OFF)], 16, 32)
        if self.opt('p6stamp', 0):
            for q in (127, 255, 383, p.dma_end - 2, 479):
                p.g[q]['end'] += self.stamp_items('q%d' % q)
        p.emit(self)
        self.stamp('P6')
        e('@sec s epilogue')
        self.sprinkle(sum(pk[0] + pk[1], []), st[0] + st[1], start=4, every=4)
        self.stamp('issued')
        if own:
            for pp in range(2):
                e('s_cmp_lg_u32 s%d, %d\ns_cbranch_scc1 L_other%d' % (sVO, pp, pp))
                for h in range(2):
                    for tb in range(4):
                        e('ds_write_b128 v%d, %s offset:%d' % (vDB + 2, vr('v', vACC + 64 * h + 32 * pp + 16 + 4 * tb, 4), 2048 * tb + 1024 * h))
                e('L_other%d:' % pp)
            e('s_waitcnt lgkmcnt(0)\ns_barrier')
            for h in range(2):
                e('ds_read_b128 %s, v%d offset:%d' % (vr('a', 4 * h, 4), vDB + 3, 1024 * h))
            e('s_lshl_b32 s%d, 1, s%d' % (sDONE, sJ))
            self.put(self.reduce(SS, 'a', 0, (0, 1), True))
        else:
            e('s_mov_b32 s%d, 0' % sDONE)
            self.put(['v_mov_b32 v%d, 0' % (SS + r) for r in range(16)])
        if g0:
            e('v_cmp_eq_u32 vcc, 1, v%d\ns_and_b32 s%d, vcc_lo, 0xff' % (vPRES, sT2))
            e('s_orn2_b32 s%d, s%d, s%d\ns_or_b32 s%d, s%d, s%d' % (sT0, sDONE, sT2, sDONE, sDONE, sT2))
            jobs = self.gather('a', 64, sPI, SP_OFF, 'sc1')
            for k, jb in enumerate(jobs):
                q = M + k // 2
                jb.ins = Ins(jb.ins.text.replace(' v%d,' % vACT, ' v%d,' % q))
                if k % 2 == 0:
                    jb.pre += ['v_bfe_u32 v%d, s%d, %d, 1' % (q, sT0, k // 2), 'v_lshl_or_b32 v%d, v%d, 30, v%d' % (q, q, vACT)]
            nb4 = self.opt('sbefore', 6)
            self.emit_jobs(jobs[:nb4] + [self.part_flag(8, ['sst'])] + jobs[nb4:])
            self.stamp('acked')
            self.put(self.reduce(SS, 'a', 64, range(16)))
        else:
            self.emit_jobs([self.part_flag(8, ['sst'])])
            self.stamp('acked')
        self.collect(SS, 64, sKO)
        self.stamp('collected')
        for nb in range(4):
            for r in range(4 * nb, 4 * nb + 4, 2):
                e('v_pk_fma_f32 %s, %s, %s, %s' % (P(XF + r), P(SS + r), P(ZZ + r), P(XF + r)))
            for k in range(2 * nb, 2 * nb + 2):
                e('v_cvt_pk_bf16_f32 v%d, v%d, v%d' % (E + k, XF + 2 * k, XF + 2 * k + 1))
            om = self.opt('outmode', 2)
            if om < 2:
                e('buffer_store_dwordx2 %s, v%d, %s, s%d offen offset:%d%s' % (P(E + 2 * nb), vW1, srd(SOUT), sXO, 512 * (nb >> 1) + 32 * (nb & 1), ' sc1' * om))
            elif nb & 1:
                t = E + 2 * nb - 2
                for op in ('v_permlane32_swap_b32', 'v_permlane16_swap_b32'):
                    e('%s v%d, v%d\n%s v%d, v%d' % (op, t, t + 2, op, t + 1, t + 3))
                e('buffer_store_dwordx4 %s, v%d, %s, s%d offen offset:%d sc1' % (vr('v', t, 4), vW2, srd(SOUT), sXO, 512 * (nb >> 1)))
        if 'diag' in self.o:
            self.stamp('end')
            if self.o['diag'].startswith('xcc'):
                e('v_mov_b32 v%d, 4\nbuffer_load_dword v%d, v%d, %s, 0 offen sc1\ns_waitcnt vmcnt(0)' % (vT, vT + 1, vT, srd(SDBG)))
                e('v_readfirstlane_b32 s100, v%d\ns_nop 3\ns_bcnt1_i32_b32 s100, s100\ns_mul_i32 s100, s100, 1000\ns_mov_b32 s98, 1000' % (vT + 1))
            e('s_sub_u32 s100, s100, s98\ns_mul_i32 s100, s100, %s\ns_min_u32 s100, s100, 100000' % self.o['diag'].split(':')[2])
            e('s_memrealtime s[98:99]\ns_waitcnt lgkmcnt(0)\ns_add_u32 s100, s100, s98')
            e('L_diag:\ns_memrealtime s[98:99]\ns_waitcnt lgkmcnt(0)\ns_sub_u32 s98, s98, s100\ns_cmp_lt_i32 s98, 0\ns_cbranch_scc1 L_diag')
        if self.prof:
            e('s_waitcnt vmcnt(0)')
            self.stamp('end')
            e('v_accvgpr_read_b32 v%d, a%d\nv_accvgpr_read_b32 v%d, a%d' % (vT, aPROF, vT + 1, aPROF + 1))
            e('s_lshl_b32 s%d, s2, 11\ns_lshl_b32 s%d, s%d, 9\ns_add_u32 s%d, s%d, s%d' % (sT0, sT1, sW, sT0, sT0, sT1))
            e('s_add_u32 s%d, s%d, 0x%x\nv_lshlrev_b32 v%d, 3, v%d' % (sT0, sT0, PROF_OFF, vT + 2, vL))
            e('buffer_store_dwordx2 %s, v%d, %s, s%d offen' % (vr('v', vT, 2), vT + 2, srd(SWS), sT0))

    def build(self, verbose=False):
        for phase in (self.prologue, self.p0, self.p2, self.q_p1, self.attention1, self.mlp, self.attention2, self.p6_final):
            phase()
        s = self.s
        s.insert_waits()
        pads = s.pad_hazards()
        est = s.estimate()
        s.fold()
        s.l += [Ins('L_end:'), Ins('s_endpgm')] + self.aside.l
        fixes = s.align(self.opt('touch', 1))
        if self.opt('touch', 1):
            n, cut = len(s.pages), self.opt('touch_cut', 15)
            assert s.marks['touch1'] < cut + 1 or cut >= n
            for r, (lo, hi) in enumerate(((0, min(cut, n)), (min(cut, n), n))):
                for k in range(lo, hi):
                    s.pages[k].text = 's_cbranch_execz ' + ('L_pg%d' % (k + 4) if k + 4 < hi else 'L_touched%d' % r)
                for x in s.l:
                    for w in range(4):
                        if x.text.endswith(' L_touch%d_%d' % (r, w)):
                            x.text = x.text.replace('L_touch%d_%d' % (r, w), 'L_pg%d' % (lo + w) if lo + w < hi else 'L_touched%d' % r)
        if verbose:
            print('alignment fixes:', fixes, 'pages:', len(s.pages), s.marks)
        if verbose:
            print('hazard pads:', pads)
            for name, cyc, nm in est:
                print('  %-18s est %6d cycles, %5d mfma (%6d)' % (name, cyc, nm, nm * 16))
            print('  total', sum(c for _, c, _ in est))
        ref = open('cdna_kernels/%s.s.ref' % NAME).read().split('\n')
        head = [l for l in ref if l.startswith(';') and '@launch' not in l]
        o = head + ['; @launch grid=(256,1,1) block=(256,1,1) lds=163840',
                    '.amdgcn_target "amdgcn-amd-amdhsa--gfx950"', '.text', '.globl %s_kernel' % NAME, '.p2align 8',
                    '.type %s_kernel,@function' % NAME, '%s_kernel:' % NAME]
        o.append(s.text())
        o += self.tail
        o.append('L_code_end:\n    s_endpgm')
        o.append('''.section .rodata,"a"
.p2align 6
.amdhsa_kernel %s_kernel
  .amdhsa_next_free_vgpr 512
  .amdhsa_next_free_sgpr 102
  .amdhsa_accum_offset 256
  .amdhsa_group_segment_fixed_size 0
  .amdhsa_kernarg_size 104
  .amdhsa_user_sgpr_count 2
  .amdhsa_user_sgpr_kernarg_segment_ptr 1
  .amdhsa_system_sgpr_workgroup_id_x 1
  .amdhsa_float_denorm_mode_32 3
.end_amdhsa_kernel''' % NAME)
        return '\n'.join(o) + '\n'


if __name__ == '__main__':
    out = sys.argv[1] if len(sys.argv) > 1 else 'k.s'
    opts = dict(a.split('=') for a in sys.argv[2:])
    SP_OFF, YP_OFF = int(opts.get('sp', hex(SP_OFF)), 0), int(opts.get('yp', hex(YP_OFF)), 0)
    open(out, 'w').write(Gen(False, opts).build(True))
    open(out.replace('.s', '_prof.s'), 'w').write(Gen(True, opts).build())
    open(out.replace('.s', '_lite.s'), 'w').write(Gen(2, opts).build())
```

```python
import math
import struct
import sys

sys.path.insert(0, 'work')
from asmgen import Ins, Stream, vr

NAME = 'recurrent_scan__gqa_block_cached__mixer_s_mlp__prompt'


def f2u(x):
    return '0x%08x' % struct.unpack('<I', struct.pack('<f', x))[0]


H_OFF = 0
X1_OFF = 0x200000
FLAG_OFF = 0x400000
ST_OFF = 0x600000
SP_OFF = 0x1000000
YP_OFF = 0x2000000
PROF_OFF = 0x8000000
OOB = 0x40000000

KRING, VRING = 0, 32768
WREG = 65536
WWAVE = 24576

SX, SK, SV, SWQ, SWO, SW1, SW2, SW3, SW4, SOUT, SDBG, SWS, SH, SCODE = range(4, 60, 4)
sT, sJ, sW, sTBG, sRING, sW2K = 60, 61, 62, 63, 64, 65
sO, sDONE, sKO, sVO, sCNT, sRET = 66, 67, 68, 69, 70, 71
sT0, sT1, sT2, sT3 = 72, 73, 74, 75
sC0 = 76
sPASS, sWSH = 78, 79
sST = 80
sHO, sX1O, sX1I, sSTO, sPO, sPI, sCF, sFP, sXO, sCW, sW3W, sW4W, sWOW, sSTEP = range(84, 98)
sRANK, sYO = sHO, sX1O

vL = 0
vTR = 1
vKA = 9
vACT = 13
vWN, vW3, vW2, vW1 = 14, 15, 16, 17
vDB = 18
vFLAG, vONE, vPOFF, vPRES = 22, 23, 24, 25
vT = 26
vIDX = 31
vS, vP = 32, 48
vX = 64
vACC = 128
aK, aV, aONES, aL, aX1, aQ = 0, 64, 128, 132, 140, 192
aPROF, aDUMMY, aSTAT, aRES, aONE2 = 150, 152, 156, 160, 168

CSCALE = math.log2(math.e) / math.sqrt(128.0)
K1 = 2 * 0.7978845608028654 * math.log2(math.e)
K2 = K1 * 0.044715


def srd(n):
    return 's[%d:%d]' % (n, n + 3)


def mfma(d, a, b, c=None):
    return 'v_mfma_f32_16x16x32_bf16 %s, %s, %s, %s' % (d, a, b, d if c is None else c)


class Job:
    def __init__(self, ins, pre=(), m0=None, post=()):
        self.ins = ins if isinstance(ins, Ins) else Ins(ins)
        self.pre, self.m0, self.post = list(pre), m0, list(post)


class Plan:
    def __init__(self):
        self.mf, self.g = [], []

    def add(self, m):
        self.mf.append(m)
        self.g.append(dict(sc=[], ds=[], vm=[], va=[], end=[]))
        return len(self.mf) - 1

    def cap(self, j):
        g = self.g[j]
        if g['vm'] or g['end']:
            return 0
        c = 1 if self.mf[j].startswith('v_smfmac') else 2
        return c - len(g['ds']) - sum(vcost(x) for x in g['va']) - max(0, len(g['sc']) - 1)

    def jobs(self, groups, pos, lo=0, avoid=()):
        prev, pend = lo - 1, []
        for (pre, d, post), p in zip(groups, pos):
            self.scalars(pend + pre, prev + 1, p, avoid, late=True)
            assert not self.g[p]['vm'], 'gap %d already holds a memory instruction' % p
            self.g[p]['vm'].append(d)
            prev, pend = p, post
        return prev, pend

    def scalars(self, sc, a, b, avoid=(), late=False):
        if not sc:
            return
        c = [j for j in range(a, b) if not self.g[j]['vm'] and not self.g[j]['sc'] and j not in avoid]
        if len(c) < len(sc):
            c = [j for j in range(a, b) if not self.g[j]['vm']]
        if not c:
            self.g[b]['sc'] += sc
            return
        c = c[-len(sc):] if late else c[:len(sc)]
        for k, x in enumerate(sc):
            self.g[c[min(k, len(c) - 1)]]['sc'].append(x)

    def fill(self, va, start=0, end=None):
        va, j = list(va), start
        end = len(self.mf) if end is None else end
        while va and j < end:
            if self.cap(j) >= vcost(va[0]):
                self.g[j]['va'].append(va.pop(0))
            else:
                j += 1
        return va

    def empty(self, start, n, step=1):
        res, j = [], start
        while len(res) < n:
            if not any(self.g[j][k] for k in ('sc', 'ds', 'vm', 'va', 'end')):
                res.append(j)
                j += step
            else:
                j += 1
        return res

    def emit(self, gen):
        for m, g in zip(self.mf, self.g):
            gen.put([m] + g['sc'] + g['vm'] + g['ds'] + g['va'] + g['end'])


def vcost(x):
    t = x.text if isinstance(x, Ins) else x
    return 2 if t.startswith(('v_exp', 'v_rcp', 'v_rsq', 'v_permlane')) else 1


class Gen:
    def __init__(self, prof=False, opts=None):
        self.s = Stream()
        self.tail = []
        self.prof = prof
        self.o = opts or {}
        self.nstamp = 0
        self.nlab = 0
        self.kv_nt = False

    def stamp(self, name=None):
        if 'diag' in self.o:
            a, b, k = self.o['diag'].split(':')
            sec = name or [x.op[5:] for x in self.s.l if x.kind == 'meta' and x.op.startswith('@sec ')][-1]
            for r, want in ((98, a), (100, b)):
                if sec.replace(' ', '_') == want:
                    self.s('s_waitcnt lgkmcnt(0) ; stamp\ns_memrealtime s[%d:%d]\ns_waitcnt lgkmcnt(0) ; stamp' % (r, r + 1))
            return
        if not self.prof or (self.prof == 2 and name not in ('kernarg', 'end', 'P0 end', 'P2 end', 'pre', 'loop')):
            return
        e = self.s
        self.tail.append('; @@' + (name or [x.op[5:] for x in e.l if x.kind == 'meta' and x.op.startswith('@sec ')][-1]))
        e('s_waitcnt lgkmcnt(0) ; stamp')
        e('s_memtime s[%d:%d]\ns_memrealtime s[%d:%d]\ns_waitcnt lgkmcnt(0) ; stamp' % (sST, sST + 1, sST + 2, sST + 3))
        for k in range(2):
            e('v_accvgpr_read_b32 v%d, a%d' % (vONE, aPROF + k))
            e('s_nop 1\nv_writelane_b32 v%d, s%d, %d' % (vONE, sST + 2 * k, self.nstamp))
            e('v_accvgpr_write_b32 a%d, v%d' % (aPROF + k, vONE))
        e('v_mov_b32 v%d, 1' % vONE)
        self.nstamp += 1

    def stamp_items(self, name):
        main, self.s = self.s, Stream()
        self.s('@sec ' + name)
        self.stamp(name)
        items, self.s = self.s.l[1:], main
        return items

    def poll_load(self, buf):
        return Job('buffer_load_dword v%d, v%d, %s, 0 offen sc1' % (vPRES, vPOFF, srd(buf)))

    def poll_check(self, buf, val):
        self.nlab += 1
        n = self.nlab
        cmp = 'v_cmp_ne_u32' if val == 1 else 'v_cmp_gt_u32' if val else 'v_cmp_eq_u32'
        self.tail.append('''L_spin%(n)d:
    s_mov_b32 s%(c)d, 0x80000
L_spin%(n)d_loop:
    buffer_load_dword v%(r)d, v%(o)d, %(b)s, 0 offen sc1
    s_waitcnt vmcnt(0)
    %(cmp)s vcc, %(v)d, v%(r)d
    s_cbranch_vccz L_back%(n)d
    s_sub_u32 s%(c)d, s%(c)d, 1
    s_cbranch_scc0 L_spin%(n)d_loop
    s_branch L_back%(n)d''' % dict(n=n, c=sT3, r=vPRES, o=vPOFF, b=srd(buf), v=val, cmp=cmp))
        return [Ins('%s vcc, %d, v%d' % (cmp, val, vPRES)), Ins('s_cbranch_vccnz L_spin%d' % n), Ins('L_back%d:' % n)]

    def flag_store(self, phase, need):
        return Job(Ins('buffer_store_dword v%d, v%d, %s, s%d offen sc1' % (vONE, vFLAG, srd(SWS), sT2), need=need),
                   pre=['s_mov_b32 s%d, 0x%x' % (sT2, FLAG_OFF + phase * 131072)])

    def opt(self, k, d):
        return int(self.o.get(k, d))

    def touch(self, r):
        if not self.opt('touch', 1):
            return
        e = self.s
        e('@mark touch%d\ns_mov_b64 exec, 0' % r)
        for w in range(3):
            e('s_cmp_eq_u32 s%d, %d\ns_cbranch_scc1 L_touch%d_%d' % (sW, w, r, w))
        e('s_branch L_touch%d_3\nL_touched%d:\ns_mov_b64 exec, -1' % (r, r))

    def put(self, items):
        for x in items:
            self.s.add(x if isinstance(x, Ins) else Ins(x))

    def flat(self, jobs):
        res, m0 = [], None
        for jb in jobs:
            pre = list(jb.pre)
            if jb.m0 and jb.m0 != m0:
                pre.insert(0, jb.m0)
                m0 = jb.m0
            res.append((pre, jb.ins, list(jb.post)))
        return res

    def emit_jobs(self, jobs):
        for pre, d, post in self.flat(jobs):
            self.put(pre + [d] + post)

    def sprinkle(self, main, jobs, start=0, every=8):
        groups = self.flat(jobs)
        for k, x in enumerate(main):
            if groups and k >= start and (k - start) % every == 0:
                pre, d, post = groups.pop(0)
                self.put(pre + [d] + post)
            self.put([x])
        for pre, d, post in groups:
            self.put(pre + [d] + post)

    def whalf(self, name, k, h, small=False):
        buf, vo, stride, nat, off = {
            'wq': (SWQ, vDB, 8192, True, (k >> 1) * 32 * 8192 + (k & 1) * 128),
            'w1': (SW1, vW1, 1024, True, k * 32768),
            'w2': (SW2, vW2, 1024, False, k * 32768),
            'w3': (SW3, vW3, 3584, False, k * (64 if small else 32) * 3584),
            'w4': (SW4, vW2, 1024, False, (k % (4 if small else 8)) * 32768 + (k // (4 if small else 8)) * 512),
            'wo': (SWO, vWN, 1024, False, (k >> 1) * 32768 + (k & 1) * 512)}[name]
        rows = [16 * (a & 1) + 4 * (a >> 1) if nat else 8 * a for a in range(4)]
        return [Job(Ins('buffer_load_dwordx4 v%d, %s, s%d offen offset:%d %slds' % (vo, srd(buf), sO, 1024 * a, 'nt ' if name in self.o.get('wnt', 'none').split(',') else ''), tag='%s%d' % (name, k)),
                    pre=['s_mov_b32 s%d, 0x%x' % (sO, off + rows[a] * stride - 1024 * a)] if small is not None else
                    ['s_mul_i32 s%d, s%d, %d' % (sO, sSTEP, k) if a == 0 else 's_add_u32 s%d, s%d, 0x%x' % (sO, sO, 8 * stride - 1024)],
                    m0='s_add_u32 m0, s%d, 0x%x' % (sRING, (h % 6) * 4096)) for a in range(4)]

    def waddr(self, dst, t, base):
        return ['v_lshrrev_b32 v%d, 2, v%d' % (dst, vL), 'v_bfe_u32 v%d, v%d, 3, 2' % (t, vL), 'v_lshlrev_b32 v%d, 5, v%d' % (t, t),
                'v_lshl_or_b32 v%d, v%d, 7, v%d' % (dst, dst, t), 'v_and_b32 v%d, 3, v%d' % (t, vL), 'v_lshl_or_b32 v%d, v%d, 3, v%d' % (dst, t, dst),
                'v_add_u32 v%d, %s, v%d' % (dst, base, dst)] + ['v_xor_b32 v%d, 0x%x, v%d' % (dst + b, b << 5, dst) for b in range(1, 4)]

    def vaddr_restore(self):
        return ['v_xor_b32 v%d, 0x80, v%d' % (vTR + db, vTR + 4 + db) for db in range(4)]

    def lanesum(self, r, t):
        o = []
        for op in ('v_permlane32_swap_b32', 'v_permlane16_swap_b32'):
            o += ['v_mov_b32 v%d, v%d' % (t, r), '%s v%d, v%d' % (op, t, r), 'v_add_f32 v%d, v%d, v%d' % (r, r, t)]
        return o

    def gelu4(self, src, dst, tmp, k1, scale=None):
        o = []
        e = o.append
        P = lambda b: vr('v', b, 2)
        if scale is not None:
            for h in (0, 2):
                e('v_pk_mul_f32 %s, %s, %s op_sel_hi:[1,0]' % (P(src + h), P(src + h), P(scale)))
        for h in (0, 2):
            e('v_pk_mul_f32 %s, %s, %s' % (P(tmp + h), P(src + h), P(src + h)))
        for h in (0, 2):
            e('v_pk_fma_f32 %s, %s, s[%d:%d], %s op_sel_hi:[1,1,0]' % (P(tmp + h), P(tmp + h), sC0, sC0 + 1, P(k1)))
        for h in (0, 2):
            e('v_pk_mul_f32 %s, %s, %s' % (P(tmp + h), P(tmp + h), P(src + h)))
        for r in range(4):
            e('v_exp_f32 v%d, v%d' % (tmp + r, tmp + r))
        for h in (0, 2):
            e('v_pk_add_f32 %s, %s, 1.0 op_sel_hi:[1,0]' % (P(tmp + h), P(tmp + h)))
        for r in range(4):
            e('v_rcp_f32 v%d, v%d' % (tmp + r, tmp + r))
        for h in (0, 2):
            e('v_pk_mul_f32 %s, %s, %s' % (P(tmp + h), P(tmp + h), P(src + h)))
        for h in (0, 2):
            e('v_cvt_pk_bf16_f32 v%d, v%d, v%d' % (dst + h // 2, tmp + h, tmp + h + 1))
        return o

    def pack(self, d, a0, a1):
        return ['v_cvt_pk_bf16_f32 v%d, v%d, v%d' % (d + 3, a1 + 2, a1 + 3), 'v_cvt_pk_bf16_f32 v%d, v%d, v%d' % (d + 2, a1, a1 + 1),
                'v_cvt_pk_bf16_f32 v%d, v%d, v%d' % (d, a0, a0 + 1), 'v_cvt_pk_bf16_f32 v%d, v%d, v%d' % (d + 1, a0 + 2, a0 + 3)]

    def g16(self, accf, acc, ring, ad, fill=()):
        def kn(n):
            return (n & 15, n >> 4) if self.opt('chain16', 1) else (n >> 2, n & 3)

        def rd(n):
            ks, nb = kn(n)
            off = ((ks >> 2) & 1) * WWAVE + (ks & 3) * 4096
            return ['ds_read_b64_tr_b16 %s, v%d offset:%d' % (vr('a', ring + 4 * (n % 8) + 2 * g, 2), ad + nb, off + 2048 * g) for g in range(2)]
        AH = 6
        for n in range(AH):
            self.put(rd(n))
        p = Plan()
        for n in range(64):
            ks, nb = kn(n)
            p.add(mfma(vr(accf, acc + 4 * nb, 4), vr('a', ring + 4 * (n % 8), 4), vr('v', vX + 4 * ks, 4), '0' if ks == 0 else None))
            if n + AH < 64:
                p.g[n]['ds'] += rd(n + AH)
                if kn(n + AH)[0] == 7:
                    a = ad + kn(n + AH)[1]
                    p.g[n]['va'].append('v_add_u32 v%d, 0x%x, v%d' % (a, 2 * WWAVE, a))
            p.g[n]['va'] += fill[n:n + 1]
        p.emit(self)

    def gemm(self, h0, groups, actf, later, first_jobs=(), sync=None, last_jobs=()):
        WF, AF, LEAD = 0, 32, 9
        p, par, h, blk, owner = Plan(), [], h0, [], []
        p.st = []
        for G, (tags, ak, acc, first) in enumerate(groups):
            par.append(par[-1] ^ (ak != groups[G - 1][1]) if G else 0)
            p.st.append(len(p.mf))
            c, flip = len(ak), 0
            for b in range(len(acc)):
                n = len(blk)
                blk.append(len(p.mf))
                for tb in (range(3, -1, -1) if b & 1 else range(4)):
                    for i, kk in enumerate(range(c - 1, -1, -1) if flip else range(c)):
                        p.add(mfma(vr('v', acc[b] + 4 * tb, 4), vr('a', WF + 8 * (n % 4) + 4 * kk, 4), vr('a', AF + 32 * par[G] + 16 * kk + 4 * tb, 4),
                                   '0' if (first and i == 0) else None))
                    flip ^= 1
            owner += [blk[-1]] * len(tags)
        N = len(p.mf)
        jobs, pos, q = list(first_jobs), [2 * k + 1 for k in range(len(first_jobs))], 4 * ((len(first_jobs) + 1) // 2) + 1
        rest = []
        for k, piece in enumerate(later):
            while k < len(owner) and q < owner[k]:
                q += 4
            for jb in piece:
                if q < N and k < len(owner) and not rest:
                    jobs.append(jb)
                    pos.append(q)
                    q += 4
                else:
                    rest.append(jb)
        for jb in last_jobs:
            jobs.append(jb)
            pos.append(q)
            q += 4
        p.rest, p.dma_end = rest, q
        prev, pend = p.jobs(self.flat(jobs), pos, avoid={x - 1 for x in blk})
        p.scalars(pend, prev + 1, N)
        pre = []

        def place(ins, lo, use):
            for each, lead in ((1, LEAD), (2, LEAD), (2, LEAD - 2), (2, LEAD - 4)):
                c = [j for j in range(max(lo - 1, 0), use - lead + 1) if not p.g[j]['vm'] and (j + 1 not in blk or each == 2)
                     for _ in range(each - len(p.g[j]['ds']))]
                if len(c) >= len(ins) or lo == 0:
                    break
            assert len(c) >= len(ins) or lo == 0
            c = c[-len(ins):]
            pre.extend(ins[:len(ins) - len(c)])
            for j, x in zip(c, ins[len(ins) - len(c):]):
                p.g[j]['ds'].append(x)
        h, n = h0, 0
        for G, (tags, ak, acc, first) in enumerate(groups):
            for b in range(len(acc)):
                src = [(kk, b) if len(tags) == 2 else (0, b + 2 * kk) for kk in range(2)]
                ins = [Ins('ds_read_b64_tr_b16 %s, v%d offset:%d' % (vr('a', WF + 8 * (n % 4) + 4 * kk + 2 * g, 2), vTR + lb, ((h + pc) % 6) * 4096 + 2048 * g),
                           need=[tags[pc]]) for kk, (pc, lb) in enumerate(src) for g in range(2)]
                place(ins, blk[n - 3] if n >= 4 else 0, blk[n])
                n += 1
            h += len(tags)
        for G, (tags, ak, acc, first) in enumerate(groups):
            if G == 0 or ak != groups[G - 1][1]:
                ins = ['ds_read_b128 %s, v%d offset:%d' % ((vr('a', AF + 32 * par[G] + 16 * kk + 4 * tb, 4),) + actf(k, tb)) for tb in range(4) for kk, k in enumerate(ak)]
                prev = [x for x in range(G) if par[x] == par[G]]
                lo = p.st[prev[-1] + 1] if prev else 0
                if G == 0:
                    act0 = [ins[k] for k in (0, 1, 3, 2, 4, 5, 7, 6)]
                    continue
                span = max(1, (p.st[G] - LEAD - lo) // len(ins))
                for k, x in enumerate(ins):
                    j = lo + k * span
                    while p.g[j]['vm'] or len(p.g[j]['ds']) >= 2 or (j + 1 in blk and span > 1):
                        j += 1
                    assert j < p.st[G] - 4 + k
                    p.g[j]['ds'].append(x)
        main, self.s = self.s, Stream()
        sync()
        bar, self.s = self.s.l, main
        for x in bar:
            if x.kind == 'bar':
                lg = [y for y in self.s.l if y.kind in ('dsr', 'dsw')]
                if lg:
                    lg[-1].tag = 'lastlds'
                self.put(pre)
                x.need = ['lastlds'] if lg else []
            self.s.add(x)
        self.put(act0)
        return p

    def part_store(self, reg, off, tag, base=sPO, vo=vACT):
        return Job(Ins('buffer_store_dwordx4 %s, v%d, %s, s%d offen sc1' % (vr('v', reg, 4), vo, srd(SWS), sT1), tag=tag),
                   pre=['s_add_u32 s%d, s%d, 0x%x' % (sT1, base, off)])

    def gather(self, f, dst, soff, off, flags):
        return [Job('buffer_load_dwordx4 %s, v%d, %s, s%d offen offset:%d %s' % (vr(f, dst + 4 * k, 4), vACT, srd(SWS), sRET, 1024 * (k % 4), flags),
                    pre=['s_add_u32 s%d, s%d, 0x%x' % (sRET, soff, off + 1024 * k)] if k % 4 == 0 else []) for k in range(16)]

    LR, LB = vW1, vFLAG
    XS, XW, RA, F1 = vP + 8, vP + 9, vP + 10, vT + 4

    def prologue(self):
        e = self.s
        D = vr('a', aDUMMY, 4)
        e('@sec prologue')
        bufs = [(SX, 0, 0x200000), (SWQ, 24, 0x400000), (SWS, 96, 0x10000000), (SW1, 48, 0x80000), (SW2, 56, 0x80000), (SDBG, 88, 256), (SK, 8, 0x400000),
                (SV, 16, 0x400000), (SWO, 32, 0x400000), (SW3, 64, 0x1c0000), (SW4, 72, 0x1c0000), (SOUT, 80, 0x200000)]
        for b, off, _ in bufs[:2]:
            e('s_load_dwordx2 s[%d:%d], s[0:1], %d' % (b, b + 1, off))
        e('s_cmp_ge_u32 s2, 256\ns_cbranch_scc1 L_end')
        if self.o.get('diag', '').startswith('start'):
            e('s_memrealtime s[98:99]')
        if self.prof:
            e('v_accvgpr_write_b32 a%d, 0\nv_accvgpr_write_b32 a%d, 0' % (aPROF, aPROF + 1))
        e('s_getpc_b64 s[%d:%d]\nL_pc:' % (SCODE, SCODE + 1))
        e('s_mov_b32 s%d, L_code_end-L_pc\ns_mov_b32 s%d, 0x20000' % (SCODE + 2, SCODE + 3))
        e('s_lshr_b32 s%d, s2, 3\nv_lshlrev_b32 v%d, 4, v0\nv_lshl_add_u32 v%d, s%d, 12, v%d' % (sT, vT + 3, vT, sT, vT + 3))
        e('buffer_load_dwordx4 %s, v%d, %s, 0 offen' % (D, vT, srd(SCODE)))
        e('v_readfirstlane_b32 s%d, v0\ns_and_b32 s%d, s2, 7\nv_and_b32 v0, 63, v0' % (sW, sJ))
        e('s_lshr_b32 s%d, s%d, 6' % (sW, sW))
        e('s_lshl_b32 s%d, s%d, 2\ns_add_u32 s%d, s%d, s%d' % (sTBG, sT, sTBG, sTBG, sW))
        e('v_lshrrev_b32 v%d, 2, v%d\nv_and_b32 v%d, 3, v%d' % (vT + 1, vL, vT + 2, vL))
        e('v_lshlrev_b32 v%d, 10, v%d\nv_lshl_or_b32 v%d, v%d, 4, v%d' % (vT + 4, vT + 1, vT + 4, vT + 2, vT + 4))
        e('v_lshlrev_b32 v%d, 4, v%d' % (vACT, vL))
        e('s_lshl_b32 s%d, s%d, 14\ns_lshl_b32 s%d, s%d, 13\ns_lshl_b32 s%d, s%d, 10' % (sCNT, sTBG, sVO, sTBG, sT1, sJ))
        e('s_mov_b32 s%d, 0x200000\ns_mov_b32 s%d, 0x20000' % (SX + 2, SX + 3))
        e('s_sub_u32 s%d, 0x400000, s%d\ns_mov_b32 s%d, 0x20000' % (SWQ + 2, sT1, SWQ + 3))
        e('s_waitcnt lgkmcnt(0)')
        self.stamp('kernarg')
        e('s_add_u32 s%d, s%d, s%d\ns_addc_u32 s%d, s%d, 0' % (SWQ, SWQ, sT1, SWQ + 1, SWQ + 1))
        for b, off, _ in bufs[2:]:
            e('s_load_dwordx2 s[%d:%d], s[0:1], %d' % (b, b + 1, off))
        wl = [Job('buffer_load_dwordx4 %s, v%d, %s, s%d offen' % (D, vACT, srd(SWQ), sVO), post=['s_add_u32 s%d, s%d, 0x100000' % (sVO, sVO)]) for i in range(4)]
        nf = self.opt('wq_first', 2)
        self.emit_jobs(wl[:nf])
        xl = [Job('buffer_load_dwordx4 %s, v%d, %s, s%d offen offset:%d' % (vr('v', vX + 4 * ks, 4), vT + 4, srd(SX), sCNT, 64 * ks)) for ks in range(16)]
        nx = self.opt('x_first', 10)
        self.emit_jobs(xl[:nx])
        self.stamp('x issued')
        mark = len(e.l)

        def lin(dst, c, *terms):
            for k, (reg, mul) in enumerate(terms):
                e('s_mul_i32 s%d, s%d, 0x%x' % (dst if k == 0 else sT0, reg, mul & 0xffffffff))
                if k:
                    e('s_add_u32 s%d, s%d, s%d' % (dst, dst, sT0))
            if c:
                e('s_add_u32 s%d, s%d, 0x%x' % (dst, dst, c))
        lin(sRING, WREG, (sW, WWAVE))
        lin(sW2K, 0, (sW, 2048))
        e('v_mov_b32 v%d, 1' % vONE)
        XS, XW, RA = self.XS, self.XW, self.RA
        e('v_lshlrev_b32 v%d, 1, v%d\nv_xor_b32 v%d, v%d, v%d\nv_lshl_or_b32 v%d, v%d, 4, v%d' % (vT, vT + 2, vT, vT, vT + 1, vT, vT + 2, vT))
        e('v_lshlrev_b32 v%d, 4, v%d\nv_lshl_add_u32 v%d, s%d, 14, v%d' % (vT, vT, XW, sW, vT))
        e('v_lshrrev_b32 v%d, 4, v%d\nv_lshlrev_b32 v%d, 5, v%d\nv_xor_b32 v%d, v%d, v%d' % (vT, vL, vT, vT, XS, vT, vACT))
        e('v_lshrrev_b32 v%d, 5, v%d\nv_and_b32 v%d, 15, v%d\nv_mul_u32_u24 v%d, 18, v%d\nv_xor_b32 v%d, v%d, v%d' % (vT, vL, vT + 1, vL, vT, vT, vT, vT, vT + 1))
        e('v_bfe_u32 v%d, v%d, 4, 1\nv_lshl_or_b32 v%d, v%d, 1, v%d\nv_lshlrev_b32 v%d, 3, v%d' % (vT + 1, vL, vT, vT, vT + 1, vT, vT))
        lin(sT1, 0, (sW, 16384), (sJ, 1024))
        e('v_add_u32 v%d, s%d, v%d\nv_xor_b32 v%d, 64, v%d' % (RA, sT1, vT, RA + 1, RA))
        C, RN, RK = vT, vT + 1, vT + 2
        e('v_and_b32 v%d, 7, v%d\nv_bfe_u32 v%d, v%d, 4, 2\nv_lshlrev_b32 v%d, 1, v%d\nv_xor_b32 v%d, v%d, v%d' % (C, vL, RN, vL, RN, RN, C, C, RN))
        e('v_lshlrev_b32 v%d, 4, v%d\nv_lshrrev_b32 v%d, 3, v%d' % (C, C, RN, vL))
        e('v_and_b32 v%d, 4, v%d\nv_add_u32 v%d, v%d, v%d' % (RK, RN, RK, RK, RN))
        e('v_lshl_add_u32 v%d, v%d, 13, v%d\nv_lshl_add_u32 v%d, s%d, 8, v%d' % (vDB, RK, C, vDB, sW, vDB))
        e('v_lshl_add_u32 v%d, v%d, 10, v%d\nv_lshl_add_u32 v%d, s%d, 17, v%d' % (vW1, RK, C, vW1, sW, vW1))
        e('v_lshl_add_u32 v%d, v%d, 10, v%d' % (vWN, RN, C))
        e('v_and_b32 v%d, 64, v%d\nv_mad_u32_u24 v%d, v%d, 7, v%d' % (RK, C, vW2, RK, vWN))
        W1W, W2W = vP, vP + 1
        e('v_mov_b32 v%d, v%d\nv_mov_b32 v%d, v%d' % (W1W, vWN, W2W, vW2))
        e('v_lshl_add_u32 v%d, s%d, 17, v%d\nv_lshl_add_u32 v%d, s%d, 7, v%d' % (vW2, sW, vW2, vWN, sW, vWN))
        e('v_mul_u32_u24 v%d, 3584, v%d\nv_lshl_add_u32 v%d, s%d, 7, v%d\nv_add_u32 v%d, v%d, v%d' % (RN, RN, C, sW, C, vW3, RN, C))
        e('v_mov_b32 v%d, 0x%x' % (vT + 5, OOB))
        lin(sKO, 0, (sT, 16384))
        RS, Z = vP + 2, vP + 3
        e('v_lshrrev_b32 v%d, 2, v%d\nv_lshlrev_b32 v%d, 17, v%d' % (RS, vL, RS, RS))
        e('v_and_b32 v%d, 3, v%d\nv_lshl_or_b32 v%d, v%d, 10, v%d' % (Z, vL, RS, Z, RS))
        e('v_cmp_gt_u32 vcc, 0x80, v%d' % (vT + 3))
        lin(sT1, 0, (sTBG, 1024), (sJ, 128))
        e('v_cndmask_b32 v%d, v%d, v%d, vcc' % (RS, vT + 5, RS))
        e('v_lshrrev_b32 v%d, 9, v%d\nv_cmp_eq_u32 vcc, 1, v%d' % (Z, vT + 3, Z))
        e('v_lshlrev_b32 v%d, 2, v%d\nv_add_u32 v%d, 0x%x, v%d' % (Z, vL, Z, 0x40000 - 128, Z))
        e('v_cndmask_b32 v%d, v%d, v%d, vcc' % (RS, RS, Z))
        e('v_cmp_eq_u32 vcc, 0, v%d\nv_mov_b32 v%d, s%d\ns_add_u32 s%d, s%d, 0x%x' % (vL, vFLAG, sT1, sRET, sT1, FLAG_OFF))
        e('v_cndmask_b32 v%d, v%d, v%d, vcc' % (vFLAG, vT + 5, vFLAG))
        e('v_cmp_eq_u32 vcc, 0, v%d\nv_mov_b32 v%d, 0\ns_add_u32 s%d, s%d, 0x%x' % (vT + 3, Z, sSTO, sT1, ST_OFF))
        e('v_cndmask_b32 v%d, v%d, 0, vcc' % (vPOFF, vT + 5))
        e('v_and_b32 v%d, 15, v%d\nv_lshrrev_b32 v%d, 4, v%d' % (vT, vL, vT + 1, vL))
        e('v_xor_b32 v%d, v%d, v%d\nv_lshlrev_b32 v%d, 4, v%d\nv_lshl_or_b32 v%d, v%d, 8, v%d' % (vT + 1, vT + 1, vT, vT + 1, vT + 1, vKA, vT, vT + 1))
        for ks in range(1, 4):
            e('v_xor_b32 v%d, 0x%x, v%d' % (vKA + ks, 64 * ks, vKA))
        e('v_lshrrev_b32 v%d, 2, v%d\nv_and_b32 v%d, 7, v%d\nv_lshlrev_b32 v%d, 5, v%d' % (vT, vL, vT + 1, vT, vT + 1, vT + 1))
        e('v_lshl_or_b32 v%d, v%d, 8, v%d\nv_and_b32 v%d, 3, v%d\nv_lshl_or_b32 v%d, v%d, 3, v%d' % (vT, vT, vT + 1, vT + 1, vL, vT, vT + 1, vT))
        for db in range(4, 8):
            e('v_xor_b32 v%d, 0x%x, v%d' % (vTR + db, VRING | db << 5, vT))
        self.put(self.waddr(vTR, vT, 's%d' % sRING))
        e('v_bfe_i32 v%d, v%d, 1, 1\nv_and_b32 v%d, 0x3f803f80, v%d\nv_xor_b32 v%d, 0x3f803f80, v%d' % (vT, vL, vT + 1, vT, vT + 2, vT + 1))
        e('v_bfe_i32 v%d, v%d, 0, 1\nv_and_b32 v%d, 0xaaaaaaaa, v%d\nv_or_b32 v%d, 0x44444444, v%d' % (vT, vL, vT, vT, vIDX, vT))
        for r in range(4):
            e('v_accvgpr_write_b32 a%d, v%d\nv_accvgpr_write_b32 a%d, v%d' % (aONES + r, vT + 2, aONE2 + r, vT + 1))
        for r in range(8):
            e('v_accvgpr_write_b32 a%d, 0' % (aL + r))
        lin(sHO, 0, (sTBG, 1 << 14), (sJ, 1 << 11))
        lin(sX1I, X1_OFF, (sTBG, 1 << 14))
        lin(sX1O, 0, (sJ, 1 << 10), (sX1I, 1))
        lin(sPO, 0, (sT, 1 << 19), (sJ, 1 << 11), (sW, 1 << 17))
        lin(sPI, 0, (sT, 1 << 19), (sJ, 1 << 16), (sW, 1 << 14))
        lin(sCF, FLAG_OFF + 0x40000, (sT, 1 << 12), (sJ, 1 << 7))
        lin(sFP, FLAG_OFF + 0x40000, (sT, 1 << 12), (sW, 256), (sJ, 4))
        lin(sXO, 0, (sTBG, 1 << 14), (sJ, 64))
        lin(sCW, 0, (sTBG, 1024))
        lin(sW3W, 0, (sTBG, 4 * 3584))
        lin(sWOW, 0, (sTBG, 4096))
        e('s_lshr_b32 s%d, s%d, 1\ns_lshl_b32 s%d, s%d, 13' % (sWSH, sTBG, sWSH, sWSH))
        e('s_mov_b32 s%d, %s\ns_mov_b32 s%d, %s\ns_mov_b32 s%d, 0' % (sC0, f2u(-K2), sC0 + 1, f2u(-K2), sPASS))
        e('s_waitcnt lgkmcnt(0)')
        shift = {SW1: [(sJ, 128)], SW2: [(sJ, 64)], SK: [(sJ, 1 << 19)], SV: [(sJ, 1 << 19)], SWO: [(sJ, 1 << 19)]}
        for b, _, size in bufs[2:]:
            if b in shift:
                lin(sT1, 0, *shift[b])
                e('s_add_u32 s%d, s%d, s%d\ns_addc_u32 s%d, s%d, 0\ns_sub_u32 s%d, 0x%x, s%d' % (b, b, sT1, b + 1, b + 1, b + 2, size, sT1))
            else:
                e('s_mov_b32 s%d, 0x%x' % (b + 2, size))
            e('s_mov_b32 s%d, 0x20000' % (b + 3))
        e('s_mov_b32 s%d, s%d\ns_mov_b32 s%d, s%d\ns_mov_b32 s%d, 0x200000\ns_mov_b32 s%d, 0x20000' % (SH, SWS, SH + 1, SWS + 1, SH + 2, SH + 3))
        ns = self.opt('x_setup', 0)
        setup, e.l = e.l[mark:], e.l[:mark]
        self.sprinkle(setup, xl[nx:nx + ns], start=self.opt('xs_start', 20), every=self.opt('xs_every', 25))
        self.xrest = xl[nx + ns:]
        self.early = wl[nf:] + [Job(Ins('buffer_store_dword v%d, v%d, %s, s%d offen sc1' % (Z, RS, srd(SWS), sRET), tag='reset')),
                                Job('buffer_load_dwordx4 %s, v%d, %s, s%d offen' % (D, W1W, srd(SW1), sWSH)),
                                Job('buffer_load_dwordx4 %s, v%d, %s, s%d offen' % (D, W2W, srd(SW2), sWSH))]
        self.early += (self.warm(SK, vACT, sWOW, (0, 1024, 2048, 3072)) + self.warm(SV, vACT, sWOW, (0, 1024, 2048, 3072)))[:self.opt('kv_early', 2)]
        self.stamp('setup')
        self.touch(0)
        self.stamp('touched')
        e('s_branch L_go\n.p2align 12\nL_go:')

    def p0(self):
        e = self.s
        e('@sec P0 layernorm')
        P = lambda b: vr('v', b, 2)
        A, X0 = vS, vS + 8
        o = ['v_lshlrev_b32 v%d, 16, v%d' % (X0 + 1, vX), 'v_mov_b32_dpp v%d, v%d quad_perm:[0,0,0,0] row_mask:0xf bank_mask:0xf' % (X0, X0 + 1)]
        for k in range(64):
            d = vACC + 2 * k
            o += ['v_lshlrev_b32 v%d, 16, v%d' % (d, vX + k), 'v_and_b32 v%d, 0xffff0000, v%d' % (d + 1, vX + k),
                  'v_pk_add_f32 %s, %s, %s op_sel_hi:[1,0] neg_lo:[0,1] neg_hi:[0,1]' % (P(d), P(d), P(X0))]
            if k == 0:
                o += ['v_pk_mul_f32 %s, %s, %s' % (P(A + 2), P(d), P(d))]
            else:
                o += ['v_pk_add_f32 %s, %s, %s' % (P(A), P(A) if k > 1 else P(vACC), P(d)), 'v_pk_fma_f32 %s, %s, %s, %s' % (P(A + 2), P(d), P(d), P(A + 2))]
        wq = []
        for k in range(6):
            wq += self.whalf('wq', self.pair_order(0)[k], k)
        nd = self.opt('p1_dma', 2)
        jobs = []
        while self.xrest or (wq and nd):
            jobs += self.xrest[:1] + wq[:nd if self.xrest else nd + 1]
            wq = wq[nd if self.xrest else nd + 1:]
            self.xrest = self.xrest[1:]
        self.sprinkle(o, jobs, start=self.opt('p1_start', 2), every=20 // (nd + 1) if nd else 10)
        self.stamp('x landed')
        o = ['v_add_f32 v%d, v%d, v%d' % (A, A, A + 1), 'v_add_f32 v%d, v%d, v%d' % (A + 2, A + 2, A + 3)]
        for qp in ('[1,0,3,2]', '[2,3,0,1]'):
            for r in (A, A + 2):
                o.append('v_add_f32_dpp v%d, v%d, v%d quad_perm:%s row_mask:0xf bank_mask:0xf' % (r, r, r, qp))
        M, V, R = A, A + 2, A + 4
        o += ['v_mul_f32 v%d, %s, v%d' % (M, f2u(1.0 / 512), M), 'v_mul_f32 v%d, %s, v%d' % (V, f2u(1.0 / 512), V),
              'v_fma_f32 v%d, -v%d, v%d, v%d' % (V, M, M, V), 'v_max_f32 v%d, 0, v%d' % (V, V),
              'v_add_f32 v%d, %s, v%d' % (R, f2u(1e-5), V), 'v_rsq_f32 v%d, v%d' % (R, R),
              'v_and_b32 v%d, 0xf0, v%d' % (A + 7, vACT),
              'v_mul_f32 v%d, v%d, v%d' % (A + 6, R, R), 'v_fmaak_f32 v%d, v%d, v%d, %s' % (A + 6, A + 6, V, f2u(1e-5)), 'v_rsq_f32 v%d, v%d' % (A + 6, A + 6),
              'v_mul_f32 v%d, %s, v%d' % (R, f2u(CSCALE), R), 'v_mul_f32 v%d, %s, v%d' % (A + 6, f2u(1.0 / CSCALE), A + 6),
              'v_mul_f32_e64 v%d, -v%d, v%d' % (M, M, R), 'ds_bpermute_b32 v%d, v%d, v%d' % (self.F1, A + 7, A + 6)]
        for ks in range(16):
            for k in range(4 * ks, 4 * ks + 4):
                d = P(vACC + 2 * k)
                o.append('v_pk_fma_f32 %s, %s, %s, %s op_sel_hi:[1,0,0]' % (d, d, P(R), P(M)))
            for k in range(4 * ks, 4 * ks + 4):
                o.append('v_cvt_pk_bf16_f32 v%d, v%d, v%d' % (vX + k, vACC + 2 * k, vACC + 2 * k + 1))
            o.append('ds_write_b128 v%d, %s offset:%d' % (self.XW, vr('v', vX + 4 * ks, 4), 1024 * ks))
        nw, nl = 4 * self.opt('ln_w', 4), self.opt('ln_jobs', 22)
        jobs = wq[:nw] + self.early + wq[nw:]
        self.p2_first = jobs[nl:]
        self.sprinkle(o, jobs[:nl], start=self.opt('ln_start', 0), every=self.opt('ln_every', 2 if nd else 7))
        for nb in range(4):
            e('ds_read_b64 %s, v%d offset:%d' % (vr('a', aRES + 2 * nb, 2), self.RA + (nb & 1), 8192 * (nb >> 1) + 512 * (nb & 1)))
        e('v_lshl_add_u32 v%d, s%d, 14, v%d' % (self.XW, sW, self.XS))

    def kv_dma(self, which, unit, tag):
        buf, ring, so, vo = (SK, KRING, sKO, vDB) if which == 'K' else (SV, VRING, sVO, vDB + 2)
        fl = self.o.get('kvflag', 'nt_').replace('_', ' ') if self.kv_nt else ''
        m0 = 's_add_u32 m0, s%d, 0x%x' % (sW2K, ring + 8192 * (unit & 3))
        return [Job(Ins('buffer_load_dwordx4 v%d, %s, s%d offen %slds' % (vo, srd(buf), so, fl), tag=tag), m0=m0),
                Job(Ins('buffer_load_dwordx4 v%d, %s, s%d offen offset:1024 %slds' % (vo + 1, srd(buf), so, fl), tag=tag), m0=m0,
                    post=['s_add_u32 s%d, s%d, 0x2000' % (so, so), 's_and_b32 s%d, s%d, 0x7ffff' % (so, so)])]

    def pair_order(self, early):
        sg = [(kp, hf) for kp in range(8 - early) for hf in range(2)] + [(kp, hf) for hf in range(2) for kp in range(8 - early, 8)]
        return [2 * (2 * kp + kk) + hf for kp, hf in sg for kk in range(2)]

    def pair_groups(self, name, od):
        return [(['%s%d' % (name, k) for k in od[h:h + 2]], [k >> 1 for k in od[h:h + 2]],
                 [vACC + 64 * (od[h] & 1) + 16 * b for b in range(4)], od[h] < 2) for h in range(0, 32, 2)]

    def p2(self):
        e = self.s
        e('@sec P2')
        od = self.pair_order(0)
        later = [self.whalf('wq', od[h], h) if h < 32 else self.whalf('w1', h - 32, h) for h in range(6, 36)]
        if self.opt('kvwarm', 0):
            later[25] = later[25] + self.warm(SK, vACT, sWOW, (0, 1024, 2048, 3072)) + self.warm(SV, vACT, sWOW, (0, 1024, 2048, 3072))
        p = self.gemm(0, self.pair_groups('wq', od), lambda k, tb: (self.XS, (tb * 16 + k) * 1024),
                      later, self.p2_first, lambda: (self.s('s_barrier', need=['*lg']), self.stamp('P0 end')))
        self.q_first = p.rest
        for ks in range(16):
            p.g[16 * (ks + 2) + 7]['ds'].append('ds_read_b128 %s, v%d offset:%d' % (vr('v', vX + 4 * ks, 4), self.XW, 1024 * ks))
        assert not p.fill(self.waddr(vP + 12, vT, '0x%x' % (WREG + 8192)) + ['v_mov_b32 v%d, %s' % (vP + 10, f2u(-K1))], 16)
        f = ('v_lshrrev_b32 v%d, 4, v%d\nv_and_b32 v%d, 15, v%d\nv_lshl_add_u32 v%d, v%d, 8, s%d\n' % (vT, vL, vT + 1, vL, vT + 2, vT, sW2K) +
             'v_bfe_u32 v%d, v%d, 8, 4\nv_xor_b32 v%d, v%d, v%d\n' % (vT + 3, vT + 2, vT + 3, vT + 3, vT + 1) +
             'v_lshl_add_u32 v%d, v%d, 4, v%d\nv_xor_b32 v%d, 64, v%d\n' % (vDB, vT + 3, vT + 2, vDB + 1, vDB) +
             'v_lshlrev_b32 v%d, 1, v%d\nv_xor_b32 v%d, v%d, v%d\n' % (vT + 3, vT, vT + 3, vT + 3, vT + 1) +
             'v_lshl_add_u32 v%d, v%d, 4, v%d\nv_xor_b32 v%d, 0x80, v%d' % (vDB + 2, vT + 3, vT + 2, vDB + 3, vDB + 2)).split('\n')
        assert not p.fill(f, 32 * 14)
        assert not p.fill(self.vaddr_restore(), 16 * 31 + 2)
        p.jobs(self.flat([Job(Ins('buffer_atomic_add v%d, v%d, %s, s%d offen sc1' % (vONE, vPOFF, srd(SDBG), sT0), need=['reset']),
                              pre=['s_lshl_b32 s%d, s%d, 3' % (sT0, sT), 's_mov_b32 s%d, s%d' % (sVO, sKO)])]), p.empty(16 * 31 + 10, 1), lo=16 * 31 + 5)
        p.emit(self)
        self.stamp('P2 end')

    def q_p1(self):
        e = self.s
        e('@sec Q epilogue')
        if self.o.get('diag', '').startswith('xcc'):
            e('s_getreg_b32 s98, hwreg(HW_REG_XCC_ID)\ns_sub_u32 s98, s98, s%d\ns_and_b32 s98, s98, 7\ns_lshl_b32 s98, 1, s98' % sJ)
            e('v_mov_b32 v%d, s98\nbuffer_atomic_or v%d, v%d, %s, 0 offen offset:4 sc1' % (vT, vT, vPOFF, srd(SDBG)))
        e('s_barrier', need=['*lg'])
        jobs = self.q_first + self.tile_dma(0, 'kv0')
        o, wr = [], []
        fr = [(qb, ks) for qb in range(4) for ks in range(4)]
        for n in range(0, 16, 2):
            ts = []
            for qb, ks in fr[n:n + 2]:
                a = vACC + 32 * ks + 4 * qb
                o += self.pack(a + 16, a, a + 16)
                ts.append(a + 16)
            for op in ('v_permlane32_swap_b32', 'v_permlane16_swap_b32'):
                for t in ts:
                    o += ['%s v%d, v%d' % (op, t, t + 2), '%s v%d, v%d' % (op, t + 1, t + 3)]
            for (qb, ks), t in zip(fr[n:n + 2], ts):
                (wr if self.opt('q_in_p1', 1) else o).extend('v_accvgpr_write_b32 a%d, v%d' % (aQ + 16 * qb + 4 * ks + r, t + r) for r in range(4))
        self.sprinkle(o, jobs, every=self.opt('q_every', 4))
        self.stamp()
        e('@sec P1')
        e('s_barrier', need=['w13'])
        self.g16('v', vS, 0, vP + 12, wr)
        o = []
        for nb in range(4):
            o += self.gelu4(vS + 4 * nb, vX + 2 * nb, vP + 4 * (nb & 1), vP + 10, scale=self.F1)
        self.sprinkle(o, self.tile_dma(1, 'kv1'), every=11)
        for p in range(2):
            e('buffer_store_dwordx4 %s, v%d, %s, s%d offen offset:%d sc1' % (vr('v', vX + 4 * p, 4), vACT, srd(SH), sHO, 1024 * p), tag='hst')
        self.stamp()

    def p3(self, kreads):
        e = self.s
        self.stamp()
        e('@sec P3')
        acc = aK
        self.put(self.waddr(vT, vT + 4, '0x%x' % (WREG + 8192)))
        self.g16('a', acc, aK + 32, vT)
        X, R, PK = vX, vX + 16, vX + 32
        P = lambda b: vr('v', b, 2)
        for k in range(8):
            e('v_accvgpr_read_b32 v%d, a%d' % (PK + k, aRES + k))
        for k in range(8):
            e('v_lshlrev_b32 v%d, 16, v%d\nv_and_b32 v%d, 0xffff0000, v%d' % (R + 2 * k, PK + k, R + 2 * k + 1, PK + k))
        e('v_mov_b32 v%d, %s' % (PK + 8, f2u(1.0 / CSCALE)))
        for k in range(16):
            e('v_accvgpr_read_b32 v%d, a%d' % (X + k, acc + k))
        mark = len(e.l)
        for k in range(8):
            e('v_pk_fma_f32 %s, %s, %s, %s op_sel_hi:[1,0,1]' % (P(X + 2 * k), P(R + 2 * k), P(PK + 8), P(X + 2 * k)))
        for k in range(8):
            e('v_cvt_pk_bf16_f32 v%d, v%d, v%d' % (PK + k, X + 2 * k, X + 2 * k + 1))
        e('s_add_u32 s%d, s%d, 0x2000' % (sT1, sX1O))
        for p in range(2):
            e('buffer_store_dwordx4 %s, v%d, %s, s%d offen sc1' % (vr('v', PK + 4 * p, 4), vACT, srd(SWS), sT1 if p else sX1O))
        for k in range(8):
            e('v_lshlrev_b32 v%d, 16, v%d\nv_and_b32 v%d, 0xffff0000, v%d' % (X + 2 * k, PK + k, X + 2 * k + 1, PK + k))
            e('v_accvgpr_write_b32 a%d, v%d' % (aX1 + k, PK + k))
        for k in range(4):
            e('v_pk_add_f32 %s, %s, %s' % (P(R + 2 * k), P(X + 2 * k), P(X + 8 + 2 * k)))
        e('v_pk_add_f32 %s, %s, %s\nv_pk_add_f32 %s, %s, %s' % (P(R), P(R), P(R + 2), P(R + 4), P(R + 4), P(R + 6)))
        e('v_pk_add_f32 %s, %s, %s\nv_add_f32 v%d, v%d, v%d' % (P(R), P(R), P(R + 4), R + 8, R, R + 1))
        self.put(self.lanesum(R + 8, R + 10))
        e('v_mul_f32 v%d, %s, v%d' % (R + 8, f2u(1.0 / 64), R + 8))
        for k in range(8):
            e('v_pk_add_f32 %s, %s, %s op_sel_hi:[1,0] neg_lo:[0,1] neg_hi:[0,1]' % (P(X + 2 * k), P(X + 2 * k), P(R + 8)))
        for k in range(8):
            e('v_pk_fma_f32 %s, %s, %s, %s' % (P(R), P(X + 2 * k), P(X + 2 * k), P(R)) if k else 'v_pk_mul_f32 %s, %s, %s' % (P(R), P(X), P(X)))
        e('v_add_f32 v%d, v%d, v%d' % (R + 9, R, R + 1))
        e('v_lshlrev_b32 v%d, 3, v%d\nv_mov_b32 v%d, 0x%x\nv_cmp_gt_u32 vcc, 16, v%d' % (R, vL, R + 1, OOB, vL))
        self.put(self.lanesum(R + 9, R + 10))
        e('v_cndmask_b32 v%d, v%d, v%d, vcc' % (R, R + 1, R))
        e('buffer_store_dwordx2 %s, v%d, %s, s%d offen sc1' % (P(R + 8), R, srd(SWS), sSTO), tag='x1st')
        epi, e.l = e.l[mark:], e.l[:mark]
        for k, x in enumerate(epi):
            if k % 16 == 0:
                self.put(kreads[k // 4:k // 4 + 4])
            e.add(x)
        self.stamp()
        e('@sec attention 1b')

    def krd(self, u, f):
        kb, ks = f >> 2, f & 3
        return 'ds_read_b128 %s, v%d offset:%d' % (vr('a', aK + 32 * (u & 1) + 4 * f, 4), vKA + ks, KRING + 8192 * (u & 3) + 4096 * kb)

    def vrd(self, u, h):
        db, g = h >> 1, h & 1
        return 'ds_read_b64_tr_b16 %s, v%d offset:%d' % (vr('a', aV + 32 * (u & 1) + 4 * db + 2 * g, 2), vTR + db, 8192 * (u & 3) + 4096 * g)

    def rowsum(self, d, ones, p):
        return 'v_smfmac_f32_16x16x64_bf16 %s, %s, %s, v%d' % (vr('a', aL + 4 * d, 4), vr('a', ones, 4), vr('v', p, 8), vIDX)

    KV_GAPS = ((5, 1), (5, 5), (5, 9), (5, 13), (6, 1), (6, 5), (6, 13), (7, 1))
    SIDE_GAPS = {7: (5, 13), 0: (1, 5, 9, 13), 1: (1, 5), 4: (9, 13)}

    def tile_dma(self, T, tag):
        return sum([self.kv_dma(w, 2 * T + k, tag + w) for w in 'KV' for k in range(2)], [])

    def segment(self, seg, NS, sched, loop=None, inline=None):
        e = self.s
        NT, inline = NS // 8, inline or {}
        side, chk, fill = {}, {}, {}

        def slots(n):
            T, h = n >> 3, n & 7
            if n < 3 or n >= NS:
                return []
            g = list(self.SIDE_GAPS.get(h, ()))
            if T + 2 >= NT:
                g += [x for hh, x in self.KV_GAPS if hh == h]
            return sorted(g)

        def spread(jobs, n, stop, rate=4):
            jobs = list(jobs)
            while jobs:
                assert n < stop, 'side jobs do not fit'
                room = min(rate, len(slots(n)) - (n in chk) - len(side.get(n, [])))
                while room > 0 and jobs:
                    side.setdefault(n, []).append(jobs.pop(0))
                    room -= 1
                n += 1
        sched(spread, chk, fill)
        lab = 'L_attn%d' % seg
        plans, use = [], {}
        for n in range(NS + 3):
            T, h = n >> 3, n & 7
            p = Plan()
            if n < NS:
                for kb in range(2):
                    d = vr('v', vS + 8 * (n & 1) + 4 * kb, 4)
                    for i, ks in enumerate(range(3, -1, -1) if kb else range(4)):
                        j = p.add(mfma(d, vr('a', aK + 32 * (n & 1) + 16 * kb + 4 * ks, 4), vr('a', aQ + 16 * (h >> 1) + 4 * ks, 4), '0' if i == 0 else None))
                        use.setdefault(('K', T, n & 1, 4 * kb + ks), []).append((n, j))
            if n >= 3:
                m, dh = (n - 3) >> 1, (n - 3) & 1
                for db in range(4 * dh, 4 * dh + 4):
                    for i, kk in enumerate((1, 0) if db & 1 else (0, 1)):
                        j = p.add(mfma(vr('v', vACC + 16 * db + 4 * (m & 3), 4), vr('a', aV + 32 * kk + 4 * db, 4), vr('v', vP + 8 * (m & 1) + 4 * kk, 4),
                                       '0' if (m < 4 and seg == 0 and i == 0) else None))
                        use.setdefault(('V', m >> 2, kk, db), []).append((n, j))
            g, full = p.g, len(p.mf) == 16
            if 1 <= n <= NS:
                sb, pb = vS + 8 * ((n - 1) & 1), vP + 4 * ((n - 1) & 3)
                lag = 2 if n < 3 else 0
                for k in range(8):
                    g[2 * k if full else min(k + lag, 7)]['va'].append('v_exp_f32 v%d, v%d' % (sb + k, sb + k))
                    if k & 1:
                        g[2 * k + 1 if full else min(k + lag + 1, 7)]['va'].append('v_cvt_pk_bf16_f32 v%d, v%d, v%d' % (pb + k // 2, sb + k - 1, sb + k))
            jobs, pos = [], []
            self.kv_nt = False
            if seg and n < 2:
                jobs, pos = self.tile_dma(1, 'kv1')[4 * n:4 * n + 4], [0, 2, 4, 6]
            if T + 2 < NT and n < NS:
                for jb, (hh, x) in zip(self.tile_dma(T + 2, 'kv%d' % (T + 2)), self.KV_GAPS):
                    if hh == h:
                        jobs.append(jb)
                        pos.append(x)
            free = slots(n)
            if n in chk:
                g[free.pop()]['end'] += chk[n]
            jobs += side.get(n, [])
            pos += free[:len(side.get(n, []))]
            assert pos == sorted(pos)
            if full and h == 4:
                late_v = seg and T == 0
                g[14]['sc'].append(Ins('@need', need=(['kv%d%s' % (T + 1, 'K' if late_v else 'V')] if T + 1 < NT else []) + ['*lg']))
                g[15]['sc'].append('s_barrier')
            if seg and n == 9:
                g[0]['sc'].append(Ins('s_barrier', need=['kv1V']))
            if loop and loop[0] <= n < loop[1] and (n - loop[0]) % 16 == 15:
                g[10]['sc'].append('s_sub_u32 s%d, s%d, 1' % (sCNT, sCNT))
                g[12]['sc'].append('s_cmp_lg_u32 s%d, 0' % sCNT)
            prev, pend = p.jobs(self.flat(jobs), pos)
            p.scalars(pend, prev + 1, 10 if prev < 8 and full else len(g))
            plans.append(p)
        reads, pre, held = [], [], {}
        for (w, T, k, f), u in use.items():
            ins = [self.krd(2 * T + k, f)] if w == 'K' else [self.vrd(2 * T + k, 2 * f + x) for x in range(2)]
            if w == 'K' and 8 * T in inline:
                held.setdefault(8 * T, []).extend(ins)
            elif w == 'K' and T == 0 and k == 0:
                pre += ins
            else:
                reads.append((u[0], use[w, T - 1, k, f][-1] if T else (0, 0), ins))
        reads.sort()
        for first, (n, j), ins in reads:
            for x in ins:
                while True:
                    p = plans[n]
                    g = p.g[j]
                    if len(p.mf) == 16:
                        ok = j & 1 and p.cap(j) > 0
                    else:
                        ok = not g['vm'] and len(g['ds']) < 2
                    if ok:
                        break
                    n, j = (n, j + 1) if j + 1 < len(p.mf) else (n + 1, 0)
                g['ds'].append(x)
                assert (n, j) < first and not ((n & 7) == 4 and j > 8)
        if loop:
            e('s_mov_b32 s%d, %d' % (sCNT, (loop[1] - loop[0]) // 16))
        e('s_barrier', need=['kv0V', '*lg'])
        self.put(pre)
        carry, dead = [], 0
        for n, p in enumerate(plans):
            if n in inline:
                inline[n](held[n])
            inloop = loop and loop[0] <= n < loop[1]
            if self.opt('astamp', 0) and n % 8 == 0 and not (loop and loop[0] <= n <= loop[1]) and n not in inline:
                self.stamp('s%d_%d' % (seg, n))
            if loop and n == loop[0]:
                self.stamp('pre')
            if inloop and (n - loop[0]) % 16 == 0:
                e('@rep %s %d' % (lab, n))
            if loop and n == loop[1]:
                e('@endrep ' + lab)
                self.stamp('loop')
            if n in fill:
                assert not carry
                carry, dead = fill[n]
            carry = p.fill(carry)
            if carry and n + 1 >= dead:
                p.g[-1]['va'] += carry
                carry = []
            if n >= 3 and n & 1:
                m = (n - 3) >> 1
                p.g[7 if len(p.mf) == 16 else 3]['end'].append(self.rowsum((m >> 1) & 1, aONE2 if m & 1 else aONES, vP + 8 * (m & 1)))
            if inloop and (n - loop[0]) % 16 == 15:
                p.g[15]['end'].append('s_cbranch_scc1 ' + lab)
            p.emit(self)
        self.stamp()

    def warm(self, buf, vo, so, offs):
        return [Job('buffer_load_dwordx4 %s, v%d, %s, s%d offen offset:%d' % (vr('a', aDUMMY, 4), vo, srd(buf), so, o)) for o in offs]

    def attention1(self):
        e = self.s
        e('@sec attention 1a')
        U, F, G = vX + 48, vT + 4, vT
        N1, P3 = self.opt('n1', 176), self.opt('p3', 40)
        L0, L1 = P3 + 8, N1 - 48
        f0 = ('v_and_b32 v%d, 3, v%d\nv_min_u32 v%d, 2, v%d\n' % (U, vL, U, U) +
              'v_add3_u32 v%d, v%d, s%d, -1\nv_med3_i32 v%d, v%d, 0, 31\nv_lshlrev_b32 v%d, 3, v%d' % (U, U, sT, U, U, vPOFF, U)).split('\n')
        f1 = ('v_bfe_u32 v%d, v%d, 1, 1\nv_lshl_add_u32 v%d, v%d, 1, -1\n' % (U, vL, U, U) +
              'v_bfe_u32 v%d, v%d, 3, 1\nv_mul_i32_i24 v%d, v%d, v%d\n' % (U + 1, vL, U, U, U + 1) +
              'v_add_u32 v%d, s%d, v%d\nv_max_i32 v%d, 0, v%d\nv_min_i32 v%d, 0x7f, v%d\n' % (U, sTBG, U, U, U, U, U) +
              'v_and_b32 v%d, 7, v%d\nv_lshl_or_b32 v%d, v%d, 3, v%d\n' % (U + 1, vL, U, U, U + 1) +
              'v_lshlrev_b32 v%d, 7, v%d\nv_add_u32 v%d, 0x%x, v%d' % (U, U, F, FLAG_OFF, U)).split('\n')
        f2 = ('v_and_b32 v%d, 15, v%d\nv_lshl_add_u32 v%d, s%d, 4, v%d\nv_and_b32 v%d, 48, v%d' % (U, vL, U, sTBG, U, U + 1, vL)).split('\n')
        for g, dlt in enumerate((-1, 1, -2, 2)):
            f2 += ['v_add_u32 v%d, %d, v%d' % (U + 2, dlt, U), 'v_and_or_b32 v%d, v%d, 15, v%d' % (U + 3, U + 2, U + 1),
                   'v_bfe_u32 v%d, v%d, 4, 8' % (U + 2, U + 2), 'v_lshl_or_b32 v%d, v%d, 10, v%d' % (U + 3, U + 2, U + 3),
                   'v_lshlrev_b32 v%d, 4, v%d' % (U + 3, U + 3), 'v_add_u32 v%d, 0x%x, v%d' % (G + g, 4096 * g, U + 3)]
        f3 = ('v_lshrrev_b32 v%d, 4, v%d\nv_and_b32 v%d, 15, v%d\nv_mul_u32_u24 v%d, 3584, v%d\n' % (vT, vL, vT + 1, vL, vT + 2, vT) +
              'v_lshl_add_u32 v%d, v%d, 4, v%d\nv_lshlrev_b32 v%d, 8, v%d\nv_lshl_or_b32 v%d, v%d, 3, v%d\n' % (vT + 3, vT + 1, vT + 2, vT, vT, vT, vT + 1, vT) +
              'v_lshl_add_u32 v%d, s%d, 10, v%d\nv_add_u32 v%d, 0x%x, v%d\n' % (vT, sTBG, vT, vT + 4, ST_OFF, vT) +
              'v_and_b32 v%d, 7, v%d\nv_lshl_or_b32 v%d, s%d, 3, v%d\n' % (vT, vL, vT, sTBG, vT) +
              'v_lshlrev_b32 v%d, 7, v%d\nv_add_u32 v%d, 0x%x, v%d' % (vT, vT, vPOFF, FLAG_OFF + 131072, vT)).split('\n')
        R, M, O = vT, vT + 1, vT + 2
        f3 += ['v_or_b32 v%d, s%d, v%d' % (M, sW, vL), 'v_cmp_eq_u32 vcc, 0, v%d' % M, 'v_mov_b32 v%d, 0x%x' % (O, OOB), 'v_mov_b32 v%d, 1' % R,
               'v_cndmask_b32 v%d, v%d, 0, vcc' % (M, O)]
        dbg = lambda op, off: Job('%s v%d, v%d, %s, s%d offen offset:%d %ssc1' % (op, R, M, srd(SDBG), sT2, off, 'sc0 ' * ('atomic' in op)),
                                  pre=['s_lshl_b32 s%d, s%d, 3' % (sT2, sJ) if off != 68 else 's_mov_b32 s%d, 0' % sT2])
        CB, SM = sT0, sT1
        slices = ['v_readfirstlane_b32 s%d, v%d' % (sRANK, vPRES), 'v_and_b32 v%d, 64, v%d' % (O, vWN), 's_sub_u32 s%d, s%d, 1' % (sRANK, sRANK),
                  's_and_b32 s%d, s%d, 7' % (sRANK, sRANK),
                  's_lshl_b32 s%d, s%d, 9' % (CB, sRANK), 's_min_u32 s%d, s%d, 0xd00' % (CB, CB),
                  's_add_u32 s%d, s%d, s%d' % (sW3W, sW3W, CB), 's_lshl_b32 s%d, s%d, 9' % (sT2, CB), 'v_add_u32 v%d, s%d, v%d' % (vW2, sT2, vWN),
                  's_cmp_ge_u32 s%d, 6' % sRANK, 's_cselect_b32 s%d, 1, 0' % SM, 's_cselect_b32 s%d, 10, 11' % sW4W, 's_cselect_b32 s%d, 1791, 0' % sSTEP,
                  's_lshl_b32 s%d, s%d, s%d' % (sW4W, sTBG, sW4W), 's_add_u32 s%d, s%d, s%d' % (sW4W, sW4W, sT2),
                  'v_mad_u32_u24 v%d, s%d, v%d, v%d' % (vW3, sSTEP, O, vW3), 's_lshl_b32 s%d, 0x%x, s%d' % (sSTEP, 32 * 3584, SM),
                  's_mul_i32 s%d, s%d, s%d' % (SM, SM, sW), 's_lshl_b32 s%d, s%d, 6' % (SM, SM), 's_sub_u32 s%d, s%d, s%d' % (CB, CB, SM),
                  'v_add_u32 v%d, s%d, v%d' % (vW3, CB, vW3),
                  's_sub_u32 s%d, s%d, s%d' % (sT2, sRANK, sJ), 's_lshl_b32 s%d, s%d, 11' % (sT2, sT2), 's_add_u32 s%d, s%d, s%d' % (sYO, sPO, sT2)]
        A, LR, LB, LT = vX + 56, self.LR, self.LB, vT + 4
        f4 = ['v_accvgpr_read_b32 v%d, a%d' % (A + r, aSTAT + r) for r in range(4)]
        f4 += ['v_add_f32 v%d, v%d, v%d' % (A + 4, A, A + 2)] + self.lanesum(A + 4, A + 5)
        f4 += ['v_mul_f32 v%d, 0x3e000000, v%d' % (A + 4, A + 4), 'v_sub_f32 v%d, v%d, v%d' % (A, A, A + 4), 'v_sub_f32 v%d, v%d, v%d' % (A + 2, A + 2, A + 4),
               'v_mul_f32 v%d, v%d, v%d' % (A, A, A), 'v_fmac_f32 v%d, v%d, v%d' % (A, A + 2, A + 2), 'v_add_f32 v%d, v%d, v%d' % (A + 1, A + 1, A + 3),
               'v_fmac_f32 v%d, 0x42800000, v%d' % (A + 1, A)] + self.lanesum(A + 1, A + 5)
        f4 += ['v_mov_b32 v%d, %s' % (LR, f2u(1e-5)), 'v_fmac_f32 v%d, %s, v%d' % (LR, f2u(1.0 / 512), A + 1), 'v_rsq_f32 v%d, v%d' % (LR, LR),
               'v_sub_f32 v%d, 0, v%d' % (A + 4, A + 4), 'v_mul_f32 v%d, v%d, v%d' % (LB, A + 4, LR)]
        f5, self.ln_done = [], self.opt('ln_fill', 6)
        for k in range(vX, vX + 4 * self.ln_done):
            f5 += ['v_lshlrev_b32 v%d, 16, v%d' % (LT, k), 'v_and_b32 v%d, 0xffff0000, v%d' % (k, k), 'v_fma_f32 v%d, v%d, v%d, v%d' % (LT, LT, LR, LB),
                   'v_fma_f32 v%d, v%d, v%d, v%d' % (k, k, LR, LB), 'v_cvt_pk_bf16_f32 v%d, v%d, v%d' % (k, LT, k)]
        f6 = ['v_lshl_add_u32 v%d, s%d, 14, v%d' % (vT + 3, sW, vACT)] + self.waddr(vTR, vT, 's%d' % sRING)
        f6 += ['v_mov_b32 v%d, v%d' % (vS + 6, LR), 'v_mov_b32 v%d, v%d' % (vS + 4, LB)]
        self.put(f0)

        def sched(spread, chk, fill):
            c0, c1 = 12, P3 - 20
            chk[c0] = self.poll_check(SDBG, 8) + [Ins('v_mov_b32 v%d, v%d' % (vPOFF, F))]
            chk[c1] = self.poll_check(SWS, 1)
            chk[L1 + 4] = self.poll_check(SWS, 1) + ['v_mov_b32 v%d, 132' % vPOFF, 'v_lshl_add_u32 v%d, s%d, 3, v%d' % (vPOFF, sJ, vPOFF)]
            chk[L1 + 7] = ['v_cmp_eq_u32 vcc, %d, v%d' % (self.opt('quant', 15), R), 'v_mov_b32 v%d, 1' % R, 'v_cndmask_b32 v%d, v%d, v%d, vcc' % (M, O, M)]
            chk[L1 + 15] = ['v_add_u32 v%d, 1, v%d' % (R, R)]
            chk[L1 + 28] = self.poll_check(SDBG, 0) + slices
            fill[4], fill[c0], fill[P3] = (f1, c0), (f2, c1 + 1), (f3, P3 + 6)
            fill[L1 + 12], fill[L1 + 23], fill[N1 + 2] = (f4, L1 + 23), (f5, N1 + 2), (f6, N1 + 3)
            spread([self.flag_store(0, ['hst'])], 4, 5)
            spread([self.poll_load(SDBG)], 7, 8)
            spread([self.poll_load(SWS)], c1 - 5, c1 - 4)
            w2 = []
            for k in range(4):
                w2 += self.whalf('w2', k, 2 + k)
            spread(w2, 4, P3 - 19)
            spread([Job('buffer_load_dwordx4 %s, v%d, %s, 0 offen offset:%d sc1' % (vr('v', vX + 4 * k, 4), G + (k >> 2), srd(SH), 1024 * (k & 3)))
                    for k in range(16)], c1 + 1, P3 - 3, 2)
            spread([self.flag_store(1, ['x1st'])], P3 + 4, P3 + 5)
            spread([self.poll_load(SWS), dbg('buffer_atomic_add', 4)], L1, L1 + 1)
            spread([dbg('buffer_atomic_add', 68)], L1 + 8, L1 + 9)
            spread([dbg('buffer_store_dword', 132)], L1 + 16, L1 + 17)
            spread([self.poll_load(SDBG)], L1 + 24, L1 + 25)
            spread([Job('buffer_load_dwordx2 %s, v%d, %s, 0 offen offset:%d sc1' % (vr('a', aSTAT + 2 * k, 2), vT + 4, srd(SWS), 128 * k)) for k in range(2)]
                   + self.gather('v', vX, sX1I, 0, 'sc1' + ' nt' * self.opt('nt1', 0)), L1 + 7, L1 + 29, 2)
            spread(self.warm(SCODE, vACT, sCW, (0,)), L1 + 1, L1 + 2)
            spread(self.warm(SW3, vT + 3, sW3W, (0, 256)) + self.warm(SW4, vACT, sW4W, (0, 1024)), L1 + 31, L1 + 33, 2)
            spread(sum([self.whalf('w3', k, k, None) for k in range(4)], []), N1 - 8, N1)
        self.segment(0, N1, sched, loop=(L0, L1), inline={P3: self.p3})

    def h2a(self, tb, slot):
        return 16384 + (tb & 1) * 8192 + (tb >> 1) * 32768 + slot * 1024

    def mlp(self):
        e = self.s
        P = lambda b: vr('v', b, 2)
        e('@sec LN x1')
        o, wr = [], ['ds_write_b128 v%d, %s offset:%d' % (vT + 3, vr('v', vX + 4 * ks, 4), 1024 * ks) for ks in range(16)]
        for ks in range(self.ln_done, 16):
            t = vP + 8 * (ks & 1)
            for k in range(4):
                o += ['v_lshlrev_b32 v%d, 16, v%d' % (t + 2 * k, vX + 4 * ks + k), 'v_and_b32 v%d, 0xffff0000, v%d' % (t + 2 * k + 1, vX + 4 * ks + k)]
            if ks - self.ln_done < self.ln_done:
                o.append(wr[ks - self.ln_done])
            for k in range(4):
                o.append('v_pk_fma_f32 %s, %s, %s, %s op_sel_hi:[1,0,0]' % (P(t + 2 * k), P(t + 2 * k), P(vS + 6), P(vS + 4)))
            for k in range(4):
                o.append('v_cvt_pk_bf16_f32 v%d, v%d, v%d' % (vX + 4 * ks + k, t + 2 * k, t + 2 * k + 1))
            o.append(wr[ks])
        o += wr[16 - self.ln_done:self.ln_done]
        self.put(o)
        self.touch(1)
        self.stamp()
        e('s_cmp_ge_u32 s%d, 6\ns_cbranch_scc1 L_mlp_small' % sRANK)
        n0, names = self.nstamp, len(self.tail)
        main, self.s = self.s, Stream(known=['w3%d' % k for k in range(4)])
        self.s('L_mlp_small:\ns_waitcnt vmcnt(0) lgkmcnt(0)')
        self.mlp_body(True)
        self.s('s_waitcnt vmcnt(0) lgkmcnt(0)\ns_branch L_mlp_done')
        self.s.insert_waits()
        self.s.pad_hazards()
        self.aside, self.s = self.s, main
        self.nstamp, self.tail[names:] = n0, []
        self.mlp_body(False)
        e('L_mlp_done:')

    def mlp_body(self, small):
        e = self.s
        P = lambda b: vr('v', b, 2)
        e('@sec P5')
        n3 = 8 if small else 16
        sync = lambda: self.s('s_barrier', need=['*lg'])
        piece = lambda h: self.whalf('w3', h, h, small) if h < n3 else self.whalf('w4', h - n3, h, small)
        groups = [(['w3%d' % (k // 2)] if small else ['w3%d' % k, 'w3%d' % (k + 1)], [k, k + 1], [vX + 16 * b for b in range(n3 // 4)], k == 0) for k in range(0, 16, 2)]
        p = self.gemm(0, groups, lambda k, tb: (vACT, (tb * 16 + k) * 1024), [piece(h) for h in range(6, n3 + 6)], piece(4) + piece(5), sync)
        HW, KC = vT, vT + 2
        f = ('v_lshl_add_u32 v%d, s%d, %d, v%d\nv_mov_b32 v%d, %s\n' % (HW, sW, 10 if small else 11, vACT, KC, f2u(-K1)) +
             'v_lshlrev_b32 v%d, 7, v%d\nv_mov_b32 v%d, 0x%x\nv_cmp_gt_u32 vcc, 2, v%d\n' % (vS, vL, vS + 1, OOB, vL) +
             'v_and_b32 v%d, 7, v%d\nv_lshl_add_u32 v%d, v%d, 2, s%d\nv_cndmask_b32 v%d, v%d, v%d, vcc\n' % (vS + 2, vL, vPOFF, vS + 2, sCF, vFLAG, vS + 1, vS) +
             'v_and_b32 v%d, 15, v%d\nv_lshlrev_b32 v%d, 10, v%d\n' % (vS, vL, vS, vS) +
             'v_lshrrev_b32 v%d, 4, v%d\nv_lshl_or_b32 v%d, v%d, 3, v%d' % (vS + 1, vL, vW1, vS + 1, vS)).split('\n')
        assert not p.fill(f)
        p.emit(self)
        self.stamp()
        e('@sec gelu')
        e('s_barrier')
        o, n = [], 0
        for pp in range(n3 // 8):
            for tb in range(4):
                d = vS + 4 * (n % 4)
                for g in range(2):
                    o += self.gelu4(vX + 16 * (2 * pp + g) + 4 * tb, d + 2 * g, vP + 4 * g, KC)
                n += 1
                o.append('ds_write_b128 v%d, %s offset:%d' % (HW, vr('v', d, 4), self.h2a(tb, pp)))
        self.put(o)
        self.stamp()
        e('@sec P7')
        accB, ng = (vS, vP, vX, vX + 32), n3 // 4
        groups = [(['w4%d' % (2 * (ng * ps + k) + i) for i in range(2)], [2 * k, 2 * k + 1], accB if ps else [vX + 16 * b for b in range(4)], k == 0)
                  for ps in range(2) for k in range(ng)]
        p = self.gemm(n3, groups, lambda k, tb: (vACT, self.h2a(tb, k)), [piece(h) for h in range(n3 + 6, 2 * n3)], p.rest, sync, self.tile_dma(0, 'kv0'))
        assert not p.rest
        for pp, (lo, hi) in enumerate(((p.st[ng - 1] + 18, p.st[ng] + 16), (p.st[ng] + 2, p.st[ng] + 24))):
            pk = []
            for tb in range(4):
                a = vX + 32 * pp + 4 * tb
                pk += self.pack(a + 16, a, a + 16)
            p.g[hi - 1]['va'] += p.fill(pk, lo, hi)
        pk = self.vaddr_restore()
        for tb in range(4):
            pk += self.pack(vP + 4 * tb, vS + 4 * tb, vP + 4 * tb)
        rest = p.fill(pk, p.st[-1] + 17)
        p.emit(self)
        self.put(rest)
        for tb in range(4):
            self.put(self.pack(vX + 32 + 4 * tb, vX + 4 * tb, vX + 32 + 4 * tb))
        for r in range(0, 16, 2):
            e('v_pk_mov_b32 %s, %s, %s op_sel:[0,1]' % (P(vX + r), P(vP + r), P(vP + r)))
        self.yfrag = {(0, 0): vX + 16, (0, 1): vX + 48, (1, 0): vX, (1, 1): vX + 32}
        self.stamp()

    def part_flag(self, word, need):
        return Job(Ins('buffer_store_dword v%d, v%d, %s, s%d offen offset:%d sc1' % (vONE, vFLAG, srd(SWS), sFP, 4 * word), need=need))

    def attention2(self):
        e = self.s
        e('@sec attention 2a')
        N2 = 256 - self.opt('n1', 176)
        H, T = self.opt('head2', 32), N2 - self.opt('tail2', 32)

        def sched(spread, chk, fill):
            chk[T + 4] = self.poll_check(SWS, 1)
            spread([self.part_store(self.yfrag[h, pp] + 4 * tb, YP_OFF + 65536 * pp + 16384 * tb + 1024 * h, 'yst', sYO)
                    for h in range(2) for pp in range(2) for tb in range(4)], 4, H - 8, 2)
            spread([self.part_flag(0, ['yst'])], H - 8, H - 7)
            spread(self.warm(SWO, vACT, sWOW, (0, 1024, 2048, 3072)) + self.warm(SCODE, vACT, sCW, (0,)), H - 8, H - 6)
            spread([self.poll_load(SWS)], T, T + 1)
            spread([Job('buffer_load_dwordx2 %s, v%d, %s, s%d offen offset:%d' % (vr('a', aRES + 2 * nb, 2), vW1, srd(SX), sXO, 512 * (nb >> 1) + 32 * (nb & 1)))
                    for nb in range(4)], T, T + 2)
            spread(self.gather('v', vX, sPI, YP_OFF, 'sc1' + ' nt' * self.opt('nt2', 1)), T + 5, N2 - 8, 2)
            wo = []
            for k in range(6):
                wo += self.whalf('wo', self.pair_order(0)[k], k)
            spread(wo, N2 - 11, N2)
        self.segment(1, N2, sched, loop=(H, T) if T >= H + 32 else None)
        self.o_epilogue()

    def o_epilogue(self):
        e = self.s
        e('@sec O epilogue')
        e('L_oepi:')
        for r in range(8):
            e('v_accvgpr_read_b32 v%d, a%d' % (vS + r, aL + r))
        for qb in range(4):
            e('v_add_f32 v%d, v%d, v%d' % (vS + 2 * qb, vS + 2 * qb, vS + 2 * qb + 1))
        B = vS + 8
        for qb in range(4):
            e('v_subrev_u32 v%d, 0x2b800000, v%d' % (B + qb, vS + 2 * qb))
        e('v_max3_u32 v%d, v%d, v%d, v%d\nv_max_u32 v%d, v%d, v%d' % (B, B, B + 1, B + 2, B, B, B + 3))
        e('v_cmp_lt_u32 vcc, 0x28000000, v%d' % B)
        e('v_and_b32 v%d, 3, v%d\nv_lshlrev_b32 v%d, 12, v%d\nv_lshl_add_u32 v%d, s%d, 2, v%d' % (B + 1, vL, B + 1, B + 1, B + 1, sW, B + 1))
        e('s_or_b32 s%d, vcc_lo, vcc_hi' % sT0)
        e('v_mov_b32 v%d, s%d' % (B, sT0))
        e('ds_write_b32 v%d, v%d' % (B + 1, B))
        for qb in range(4):
            e('v_rcp_f32 v%d, v%d' % (vS + 2 * qb, vS + 2 * qb))
        e('v_lshl_add_u32 v%d, s%d, 12, v%d' % (vP, sW, vACT))
        e('s_lshl_b32 s%d, s%d, 12\nv_mov_b32 v%d, s%d' % (sT0, sW, B + 1, sT0))
        e('s_barrier', need=['*lg'])
        e('ds_read_b128 %s, v%d' % (vr('v', B + 4, 4), B + 1))
        for qb in range(4):
            for ks in range(4):
                a = vACC + 32 * ks + 4 * qb
                for h in (0, 2, 16, 18):
                    e('v_pk_mul_f32 %s, %s, %s op_sel_hi:[1,0]' % (vr('v', a + h, 2), vr('v', a + h, 2), vr('v', vS + 2 * qb, 2)))
                self.put(self.pack(a + 16, a, a + 16))
                if qb == 0 and ks < 2:
                    if ks == 0:
                        continue
                    e('v_or3_b32 v%d, v%d, v%d, v%d\nv_or_b32 v%d, v%d, v%d' % (B, B + 4, B + 5, B + 6, B, B, B + 7))
                    e('v_cmp_ne_u32 vcc, 0, v%d\ns_cbranch_vccnz L_slow\nL_ofine:' % B)
                    e('ds_write_b128 v%d, %s' % (vP, vr('v', vACC + 16, 4)))
                e('ds_write_b128 v%d, %s offset:%d' % (vP, vr('v', a + 16, 4), (16 * qb + ks) * 1024))
        self.put(self.waddr(vTR, vT, 's%d' % sRING))
        self.stamp()
        self.slow_path()

    def slow_path(self):
        main, self.s = self.s, Stream()
        e = self.s
        M = vT
        e('L_slow:\ns_cmp_lg_u32 s%d, 0\ns_cbranch_scc1 L_ofine\ns_mov_b32 s%d, 1' % (sPASS, sPASS))
        e('s_waitcnt vmcnt(0) lgkmcnt(0)')
        for ps in range(2):
            e('s_mov_b32 s%d, 0\ns_mov_b32 s%d, 0\ns_mov_b32 s%d, 64' % (sKO, sVO, sCNT))
            if ps == 0:
                for qb in range(4):
                    e('v_mov_b32 v%d, 0xff800000' % (M + qb))
            else:
                for qb in range(4):
                    for op in ('v_permlane32_swap_b32', 'v_permlane16_swap_b32'):
                        e('v_mov_b32 v%d, v%d\n%s v%d, v%d\nv_max_f32 v%d, v%d, v%d' % (vS, M + qb, op, vS, M + qb, M + qb, M + qb, vS))
                e('v_lshrrev_b32 v%d, 4, v%d\nv_xor_b32 v%d, v%d, v%d\nv_bfe_i32 v%d, v%d, 1, 1' % (vS, vL, vS, vS, vL, vS, vS))
                e('v_not_b32 v%d, v%d\nv_and_b32 v%d, 0x3f803f80, v%d' % (vS, vS, vS, vS))
                for r in range(4):
                    e('v_accvgpr_write_b32 a%d, v%d' % (aONES + r, vS))
                for r in range(128):
                    e('v_mov_b32 v%d, 0' % (vACC + r))
                for r in range(8):
                    e('v_accvgpr_write_b32 a%d, 0' % (aL + r))
            e('L_slow%d:\ns_barrier' % ps)
            self.emit_jobs(self.kv_dma('K', 0, 'k') + (self.kv_dma('V', 0, 'k') if ps else []))
            e('s_barrier', need=['k'])
            self.put([self.krd(0, f) for f in range(8)] + ([self.vrd(0, h) for h in range(16)] if ps else []))
            e('s_waitcnt lgkmcnt(0)')
            for qb in range(4):
                for kb in range(2):
                    for ks in range(4):
                        e(mfma(vr('v', vS + 4 * kb, 4), vr('a', aK + 16 * kb + 4 * ks, 4), vr('a', aQ + 16 * qb + 4 * ks, 4), '0' if ks == 0 else None))
                if ps == 0:
                    for r in range(0, 8, 2):
                        e('v_max3_f32 v%d, v%d, v%d, v%d' % (M + qb, M + qb, vS + r, vS + r + 1))
                    continue
                for r in range(8):
                    e('v_sub_f32 v%d, v%d, v%d' % (vS + r, vS + r, M + qb))
                for r in range(8):
                    e('v_exp_f32 v%d, v%d' % (vS + r, vS + r))
                for r in range(4):
                    e('v_cvt_pk_bf16_f32 v%d, v%d, v%d' % (vP + 4 * qb + r, vS + 2 * r, vS + 2 * r + 1))
                for db in range(8):
                    e(mfma(vr('v', vACC + 16 * db + 4 * qb, 4), vr('a', aV + 4 * db, 4), vr('v', vP + 4 * qb, 4)))
                if qb & 1:
                    e(self.rowsum(qb >> 1, aONES, vP + 4 * (qb - 1)))
            e('s_nop 7\ns_sub_u32 s%d, s%d, 1\ns_cmp_lg_u32 s%d, 0\ns_cbranch_scc1 L_slow%d' % (sCNT, sCNT, sCNT, ps))
        e('s_barrier\ns_branch L_oepi')
        e.insert_waits()
        e.pad_hazards()
        self.tail.append(e.text())
        self.s = main

    SEL = vT

    def reduce(self, acc, f, regs, ks, first=False):
        return [mfma(vr('v', acc + 4 * (2 * (k & 1) + g), 4), vr('v', self.SEL + 2 - 2 * g, 4), vr(f, regs + 4 * k, 4), '0' if (first and k < 2) else None)
                for k in ks for g in range(2)]

    def collect(self, acc, regs, base):
        e, L = self.s, 'L_c'
        NEW, N = sT0, sT1
        e('s_mov_b32 s%d, 0x80000' % sT3)
        e('%s_wait:\ns_waitcnt vmcnt(0)\nv_cmp_eq_u32 vcc, 1, v%d\ns_and_b32 s%d, vcc_lo, 0xff' % (L, vPRES, NEW))
        e('s_andn2_b32 s%d, s%d, s%d\ns_cbranch_scc0 %s_poll' % (NEW, NEW, sDONE, L))
        e('s_or_b32 s%d, s%d, s%d\ns_bcnt1_i32_b32 s%d, s%d' % (sDONE, sDONE, NEW, N, NEW))
        for n in range(1, 7):
            e('s_cmp_eq_u32 s%d, %d\ns_cbranch_scc1 %s_ld%d' % (N, n, L, 7 - n))
        for q in range(7):
            e('%s_ld%d:\ns_ff1_i32_b32 s%d, s%d\ns_bitset0_b32 s%d, s%d' % (L, q, sT2, NEW, NEW, sT2))
            e('s_lshl_b32 s%d, s%d, 11\ns_add_u32 s%d, s%d, s%d' % (sT2, sT2, sT2, sT2, base))
            for p in range(2):
                e('buffer_load_dwordx4 %s, v%d, %s, s%d offen offset:%d sc1' % (vr('a', regs + 8 * q + 4 * p, 4), vACT, srd(SWS), sT2, 1024 * p))
        e.add(self.poll_load(SWS).ins)
        for n in range(1, 7):
            e('s_cmp_eq_u32 s%d, %d\ns_cbranch_scc1 %s_mm%d' % (N, n, L, 7 - n))
        for q in range(7):
            e('%s_mm%d:' % (L, q))
            self.put(self.reduce(acc, 'a', regs, (2 * q, 2 * q + 1)))
        e('s_cmp_lg_u32 s%d, 0xff\ns_cbranch_scc1 %s_wait\n%s_end:' % (sDONE, L, L))
        self.tail.append('%s_poll:\n    %s\n    s_sub_u32 s%d, s%d, 1\n    s_cbranch_scc0 %s_wait\n    s_branch %s_end' % (L, self.poll_load(SWS).ins.text, sT3, sT3, L, L))

    def p6_final(self):
        e = self.s
        P = lambda b: vr('v', b, 2)
        e('@sec P6')
        NE = self.opt('p6_early', 3)
        od = self.pair_order(NE)
        p = self.gemm(0, self.pair_groups('wo', od), lambda k, tb: (vACT, (tb * 16 + k) * 1024), [self.whalf('wo', od[h], h) for h in range(6, 32)],
                      sync=lambda: self.s('s_barrier', need=['*lg']))
        pk, st = [[], []], [[], []]
        for h in range(2):
            for pp in range(2):
                for tb in range(4):
                    a = vACC + 64 * h + 32 * pp + 4 * tb
                    pk[h].append(self.pack(a + 16, a, a + 16))
                    st[h].append(self.part_store(a + 16, SP_OFF + 65536 * pp + 16384 * tb + 1024 * h, 'sst', vo=vDB + pp))
        if NE:
            pos = list(range(p.dma_end + self.opt('a_start', 32), 512, self.opt('a_step', 4)))[:8]
            for k, q in enumerate(pos):
                p.jobs(self.flat([st[0][k]]), [q], lo=q - 2)
            for k, q in enumerate(pos):
                assert not p.fill(pk[0][k], 32 * (16 - NE) + 2, q)
            pk[0], st[0] = pk[0][len(pos):], st[0][len(pos):]
        SEL, ZZ, XF, SS, E = self.SEL, vS, vP, vACC, vACC + 32
        t = vKA
        f = ('v_lshrrev_b32 v%d, 4, v%d\nv_bfe_u32 v%d, v%d, 2, 2\nv_and_b32 v%d, 1, v%d\nv_lshlrev_b32 v%d, 4, v%d\n' % (t + 1, vL, t, vL, t + 2, vL, t + 2, t + 2) +
             'v_mov_b32 v%d, 0x3f80\nv_lshlrev_b32 v%d, v%d, v%d\n' % (t + 3, t + 2, t + 2, t + 3) +
             'v_cmp_eq_u32 vcc, v%d, v%d\nv_mov_b32 v%d, 0\nv_mov_b32 v%d, 0\n' % (t, t + 1, SEL, SEL + 1) +
             'v_cndmask_b32 v%d, 0, v%d, vcc\nv_and_b32 v%d, 2, v%d\nv_cmp_eq_u32 vcc, 0, v%d\n' % (t + 2, t + 2, t, vL, t) +
             'v_mov_b32 v%d, 0\nv_mov_b32 v%d, 0\nv_cndmask_b32 v%d, 0, v%d, vcc\n' % (SEL + 4, SEL + 5, SEL + 2, t + 2) +
             'v_sub_u32 v%d, v%d, v%d\n' % (SEL + 3, t + 2, SEL + 2) +
             'v_lshl_add_u32 v%d, v%d, 3, v%d' % (vW2, t + 1, vW1)).split('\n')
        p.scalars(['s_lshl_b32 s%d, s%d, 1' % (sVO, sW), 's_sub_u32 s%d, s%d, s%d' % (sVO, sJ, sVO), 's_lshr_b32 s%d, s%d, 1' % (sCNT, sJ),
                   's_mul_i32 s%d, s%d, %d' % (sCNT, sCNT, WWAVE), 's_add_u32 s%d, s%d, s%d' % (sCNT, sCNT, sW2K), 's_add_u32 s%d, s%d, %d' % (sCNT, sCNT, WREG)], 0, 16)
        f += ['v_mov_b32 v%d, 0x%x' % (t, OOB), 'v_mov_b32 v%d, s%d' % (t + 1, sVO), 'v_cmp_eq_u32 vcc, 0, v%d' % (t + 1),
              'v_add_u32 v%d, s%d, v%d' % (vDB + 2, sRING, vACT), 'v_add_u32 v%d, s%d, v%d' % (vDB + 3, sCNT, vACT),
              'v_cndmask_b32 v%d, v%d, v%d, vcc' % (vDB, vACT, t), 'v_cmp_eq_u32 vcc, 1, v%d' % (t + 1),
              'v_add_u32 v%d, 32, v%d' % (vPOFF, vPOFF), 'v_cndmask_b32 v%d, v%d, v%d, vcc' % (vDB + 1, vACT, t)]
        assert not p.fill(f, 0, 48)
        red = self.reduce(XF, 'a', aRES, (0, 1), True) + self.reduce(ZZ, 'a', aX1, (0, 1), True) + self.reduce(ZZ, 'v', vX, range(16))
        gate = ['s_mov_b32 s%d, %s' % (sC0 + k, f2u(-math.log2(math.e))) for k in range(2)]
        gate += ['v_pk_mul_f32 %s, %s, s[%d:%d]' % (P(E + r), P(ZZ + r), sC0, sC0 + 1) for r in range(0, 16, 2)]
        gate += ['v_exp_f32 v%d, v%d' % (E + r, E + r) for r in range(16)]
        gate += ['v_pk_add_f32 %s, %s, 1.0 op_sel_hi:[1,0]' % (P(E + r), P(E + r)) for r in range(0, 16, 2)]
        gate += ['v_rcp_f32 v%d, v%d' % (E + r, E + r) for r in range(16)]
        gate += ['v_pk_mul_f32 %s, %s, %s' % (P(ZZ + r), P(ZZ + r), P(E + r)) for r in range(0, 16, 2)]
        p.scalars(['s_lshl_b32 s%d, 1, s%d' % (sDONE, sJ), 's_add_u32 s%d, s%d, 0x%x' % (sKO, sPI, SP_OFF)], 16, 24)
        if self.opt('p6stamp', 0):
            for q in (127, 255, 383, p.dma_end - 2, 479):
                p.g[q]['end'] += self.stamp_items('q%d' % q)
        p.emit(self)
        self.stamp('P6')
        e('@sec s epilogue')
        self.sprinkle(sum(pk[0] + pk[1], []), st[0] + st[1], start=4, every=4)
        self.stamp('issued')
        for pp in range(2):
            e('s_cmp_lg_u32 s%d, %d\ns_cbranch_scc1 L_other%d' % (sVO, pp, pp))
            for h in range(2):
                for tb in range(4):
                    e('ds_write_b128 v%d, %s offset:%d' % (vDB + 2, vr('v', vACC + 64 * h + 32 * pp + 16 + 4 * tb, 4), 2048 * tb + 1024 * h))
            e('L_other%d:' % pp)
        e('s_waitcnt lgkmcnt(0)\ns_barrier')
        for h in range(2):
            e('ds_read_b128 %s, v%d offset:%d' % (vr('a', 4 * h, 4), vDB + 3, 1024 * h))
        self.put(red + self.reduce(SS, 'a', 0, (0, 1), True))
        gb = self.opt('gate_before', 0)
        self.put(gate[:gb])
        self.emit_jobs([self.part_flag(8, ['sst']), self.poll_load(SWS)])
        self.stamp('acked')
        self.put(gate[gb:])
        self.collect(SS, 64, sKO)
        self.stamp('collected')
        for nb in range(4):
            for r in range(4 * nb, 4 * nb + 4, 2):
                e('v_pk_fma_f32 %s, %s, %s, %s' % (P(XF + r), P(SS + r), P(ZZ + r), P(XF + r)))
            for k in range(2 * nb, 2 * nb + 2):
                e('v_cvt_pk_bf16_f32 v%d, v%d, v%d' % (E + k, XF + 2 * k, XF + 2 * k + 1))
            om = self.opt('outmode', 2)
            if om < 2:
                e('buffer_store_dwordx2 %s, v%d, %s, s%d offen offset:%d%s' % (P(E + 2 * nb), vW1, srd(SOUT), sXO, 512 * (nb >> 1) + 32 * (nb & 1), ' sc1' * om))
            elif nb & 1:
                t = E + 2 * nb - 2
                for op in ('v_permlane32_swap_b32', 'v_permlane16_swap_b32'):
                    e('%s v%d, v%d\n%s v%d, v%d' % (op, t, t + 2, op, t + 1, t + 3))
                e('buffer_store_dwordx4 %s, v%d, %s, s%d offen offset:%d sc1' % (vr('v', t, 4), vW2, srd(SOUT), sXO, 512 * (nb >> 1)))
        if 'diag' in self.o:
            self.stamp('end')
            if self.o['diag'].startswith('xcc'):
                e('v_mov_b32 v%d, 4\nbuffer_load_dword v%d, v%d, %s, 0 offen sc1\ns_waitcnt vmcnt(0)' % (vT, vT + 1, vT, srd(SDBG)))
                e('v_readfirstlane_b32 s100, v%d\ns_nop 3\ns_bcnt1_i32_b32 s100, s100\ns_mul_i32 s100, s100, 1000\ns_mov_b32 s98, 1000' % (vT + 1))
            e('s_sub_u32 s100, s100, s98\ns_mul_i32 s100, s100, %s\ns_min_u32 s100, s100, 100000' % self.o['diag'].split(':')[2])
            e('s_memrealtime s[98:99]\ns_waitcnt lgkmcnt(0)\ns_add_u32 s100, s100, s98')
            e('L_diag:\ns_memrealtime s[98:99]\ns_waitcnt lgkmcnt(0)\ns_sub_u32 s98, s98, s100\ns_cmp_lt_i32 s98, 0\ns_cbranch_scc1 L_diag')
        if self.prof:
            e('s_waitcnt vmcnt(0)')
            self.stamp('end')
            e('v_accvgpr_read_b32 v%d, a%d\nv_accvgpr_read_b32 v%d, a%d' % (vT, aPROF, vT + 1, aPROF + 1))
            e('s_lshl_b32 s%d, s2, 11\ns_lshl_b32 s%d, s%d, 9\ns_add_u32 s%d, s%d, s%d' % (sT0, sT1, sW, sT0, sT0, sT1))
            e('s_add_u32 s%d, s%d, 0x%x\nv_lshlrev_b32 v%d, 3, v%d' % (sT0, sT0, PROF_OFF, vT + 2, vL))
            e('buffer_store_dwordx2 %s, v%d, %s, s%d offen' % (vr('v', vT, 2), vT + 2, srd(SWS), sT0))

    def build(self, verbose=False):
        for phase in (self.prologue, self.p0, self.p2, self.q_p1, self.attention1, self.mlp, self.attention2, self.p6_final):
            phase()
        s = self.s
        s.insert_waits()
        pads = s.pad_hazards()
        est = s.estimate()
        s.fold()
        s.l += [Ins('L_end:'), Ins('s_endpgm')] + self.aside.l
        fixes = s.align(self.opt('touch', 1))
        if self.opt('touch', 1):
            n, cut = len(s.pages), self.opt('touch_cut', 15)
            assert s.marks['touch1'] < cut + 1 or cut >= n
            for r, (lo, hi) in enumerate(((0, min(cut, n)), (min(cut, n), n))):
                for k in range(lo, hi):
                    s.pages[k].text = 's_cbranch_execz ' + ('L_pg%d' % (k + 4) if k + 4 < hi else 'L_touched%d' % r)
                for x in s.l:
                    for w in range(4):
                        if x.text.endswith(' L_touch%d_%d' % (r, w)):
                            x.text = x.text.replace('L_touch%d_%d' % (r, w), 'L_pg%d' % (lo + w) if lo + w < hi else 'L_touched%d' % r)
        if verbose:
            print('alignment fixes:', fixes, 'pages:', len(s.pages), s.marks)
        if verbose:
            print('hazard pads:', pads)
            for name, cyc, nm in est:
                print('  %-18s est %6d cycles, %5d mfma (%6d)' % (name, cyc, nm, nm * 16))
            print('  total', sum(c for _, c, _ in est))
        ref = open('cdna_kernels/%s.s.ref' % NAME).read().split('\n')
        head = [l for l in ref if l.startswith(';') and '@launch' not in l]
        o = head + ['; @launch grid=(256,1,1) block=(256,1,1) lds=163840',
                    '.amdgcn_target "amdgcn-amd-amdhsa--gfx950"', '.text', '.globl %s_kernel' % NAME, '.p2align 8',
                    '.type %s_kernel,@function' % NAME, '%s_kernel:' % NAME]
        o.append(s.text())
        o += self.tail
        o.append('L_code_end:\n    s_endpgm')
        o.append('''.section .rodata,"a"
.p2align 6
.amdhsa_kernel %s_kernel
  .amdhsa_next_free_vgpr 512
  .amdhsa_next_free_sgpr 102
  .amdhsa_accum_offset 256
  .amdhsa_group_segment_fixed_size 0
  .amdhsa_kernarg_size 104
  .amdhsa_user_sgpr_count 2
  .amdhsa_user_sgpr_kernarg_segment_ptr 1
  .amdhsa_system_sgpr_workgroup_id_x 1
  .amdhsa_float_denorm_mode_32 3
.end_amdhsa_kernel''' % NAME)
        return '\n'.join(o) + '\n'


if __name__ == '__main__':
    out = sys.argv[1] if len(sys.argv) > 1 else 'k.s'
    opts = dict(a.split('=') for a in sys.argv[2:])
    SP_OFF, YP_OFF = int(opts.get('sp', hex(SP_OFF)), 0), int(opts.get('yp', hex(YP_OFF)), 0)
    open(out, 'w').write(Gen(False, opts).build(True))
    open(out.replace('.s', '_prof.s'), 'w').write(Gen(True, opts).build())
    open(out.replace('.s', '_lite.s'), 'w').write(Gen(2, opts).build())
```

```python
import math
import struct
import sys

sys.path.insert(0, 'work')
from asmgen import Ins, Stream, vr

NAME = 'recurrent_scan__gqa_block_cached__mixer_s_mlp__prompt'


def f2u(x):
    return '0x%08x' % struct.unpack('<I', struct.pack('<f', x))[0]


H_OFF = 0
X1_OFF = 0x200000
FLAG_OFF = 0x400000
ST_OFF = 0x600000
SP_OFF = 0x1000000
YP_OFF = 0x2000000
PROF_OFF = 0x8000000
OOB = 0x40000000

KRING, VRING = 0, 32768
WREG = 65536
WWAVE = 24576

SX, SK, SV, SWQ, SWO, SW1, SW2, SW3, SW4, SOUT, SDBG, SWS, SH, SCODE = range(4, 60, 4)
sT, sJ, sW, sTBG, sRING, sW2K = 60, 61, 62, 63, 64, 65
sO, sDONE, sKO, sVO, sCNT, sRET = 66, 67, 68, 69, 70, 71
sT0, sT1, sT2, sT3 = 72, 73, 74, 75
sC0 = 76
sPASS, sWSH = 78, 79
sST = 80
sHO, sX1O, sX1I, sSTO, sPO, sPI, sCF, sFP, sXO, sCW, sW3W, sW4W, sWOW, sSTEP = range(84, 98)
sRANK, sYO = sHO, sX1O

vL = 0
vTR = 1
vKA = 9
vACT = 13
vWN, vW3, vW2, vW1 = 14, 15, 16, 17
vDB = 18
vFLAG, vONE, vPOFF, vPRES = 22, 23, 24, 25
vT = 26
vIDX = 31
vS, vP = 32, 48
vX = 64
vACC = 128
aK, aV, aONES, aL, aX1, aQ = 0, 64, 128, 132, 140, 192
aPROF, aDUMMY, aSTAT, aRES, aONE2 = 150, 152, 156, 160, 168

CSCALE = math.log2(math.e) / math.sqrt(128.0)
K1 = 2 * 0.7978845608028654 * math.log2(math.e)
K2 = K1 * 0.044715


def srd(n):
    return 's[%d:%d]' % (n, n + 3)


def mfma(d, a, b, c=None):
    return 'v_mfma_f32_16x16x32_bf16 %s, %s, %s, %s' % (d, a, b, d if c is None else c)


class Job:
    def __init__(self, ins, pre=(), m0=None, post=()):
        self.ins = ins if isinstance(ins, Ins) else Ins(ins)
        self.pre, self.m0, self.post = list(pre), m0, list(post)


class Plan:
    def __init__(self):
        self.mf, self.g = [], []

    def add(self, m):
        self.mf.append(m)
        self.g.append(dict(sc=[], ds=[], vm=[], va=[], end=[]))
        return len(self.mf) - 1

    def cap(self, j):
        g = self.g[j]
        if g['vm'] or g['end']:
            return 0
        c = 1 if self.mf[j].startswith('v_smfmac') else 2
        return c - len(g['ds']) - sum(vcost(x) for x in g['va']) - max(0, len(g['sc']) - 1)

    def jobs(self, groups, pos, lo=0, avoid=()):
        prev, pend = lo - 1, []
        for (pre, d, post), p in zip(groups, pos):
            self.scalars(pend + pre, prev + 1, p, avoid, late=True)
            assert not self.g[p]['vm'], 'gap %d already holds a memory instruction' % p
            self.g[p]['vm'].append(d)
            prev, pend = p, post
        return prev, pend

    def scalars(self, sc, a, b, avoid=(), late=False):
        if not sc:
            return
        c = [j for j in range(a, b) if not self.g[j]['vm'] and not self.g[j]['sc'] and j not in avoid]
        if len(c) < len(sc):
            c = [j for j in range(a, b) if not self.g[j]['vm']]
        if not c:
            self.g[b]['sc'] += sc
            return
        c = c[-len(sc):] if late else c[:len(sc)]
        for k, x in enumerate(sc):
            self.g[c[min(k, len(c) - 1)]]['sc'].append(x)

    def fill(self, va, start=0, end=None):
        va, j = list(va), start
        end = len(self.mf) if end is None else end
        while va and j < end:
            if self.cap(j) >= vcost(va[0]):
                self.g[j]['va'].append(va.pop(0))
            else:
                j += 1
        return va

    def empty(self, start, n, step=1):
        res, j = [], start
        while len(res) < n:
            if not any(self.g[j][k] for k in ('sc', 'ds', 'vm', 'va', 'end')):
                res.append(j)
                j += step
            else:
                j += 1
        return res

    def emit(self, gen):
        for m, g in zip(self.mf, self.g):
            gen.put([m] + g['sc'] + g['vm'] + g['ds'] + g['va'] + g['end'])


def vcost(x):
    t = x.text if isinstance(x, Ins) else x
    return 2 if t.startswith(('v_exp', 'v_rcp', 'v_rsq', 'v_permlane')) else 1


class Gen:
    def __init__(self, prof=False, opts=None):
        self.s = Stream()
        self.tail = []
        self.prof = prof
        self.o = opts or {}
        self.nstamp = 0
        self.nlab = 0
        self.kv_nt = False

    def stamp(self, name=None):
        if 'diag' in self.o:
            a, b, k = self.o['diag'].split(':')
            sec = name or [x.op[5:] for x in self.s.l if x.kind == 'meta' and x.op.startswith('@sec ')][-1]
            for r, want in ((98, a), (100, b)):
                if sec.replace(' ', '_') == want:
                    self.s('s_waitcnt lgkmcnt(0) ; stamp\ns_memrealtime s[%d:%d]\ns_waitcnt lgkmcnt(0) ; stamp' % (r, r + 1))
            return
        if not self.prof or (self.prof == 2 and name not in ('kernarg', 'end', 'P0 end', 'P2 end', 'pre', 'loop')):
            return
        e = self.s
        self.tail.append('; @@' + (name or [x.op[5:] for x in e.l if x.kind == 'meta' and x.op.startswith('@sec ')][-1]))
        e('s_waitcnt lgkmcnt(0) ; stamp')
        e('s_memtime s[%d:%d]\ns_memrealtime s[%d:%d]\ns_waitcnt lgkmcnt(0) ; stamp' % (sST, sST + 1, sST + 2, sST + 3))
        for k in range(2):
            e('v_accvgpr_read_b32 v%d, a%d' % (vONE, aPROF + k))
            e('s_nop 1\nv_writelane_b32 v%d, s%d, %d' % (vONE, sST + 2 * k, self.nstamp))
            e('v_accvgpr_write_b32 a%d, v%d' % (aPROF + k, vONE))
        e('v_mov_b32 v%d, 1' % vONE)
        self.nstamp += 1

    def stamp_items(self, name):
        main, self.s = self.s, Stream()
        self.s('@sec ' + name)
        self.stamp(name)
        items, self.s = self.s.l[1:], main
        return items

    def poll_load(self, buf):
        return Job('buffer_load_dword v%d, v%d, %s, 0 offen sc1' % (vPRES, vPOFF, srd(buf)))

    def poll_check(self, buf, val):
        self.nlab += 1
        n = self.nlab
        cmp = 'v_cmp_ne_u32' if val == 1 else 'v_cmp_gt_u32' if val else 'v_cmp_eq_u32'
        self.tail.append('''L_spin%(n)d:
    s_mov_b32 s%(c)d, 0x80000
L_spin%(n)d_loop:
    buffer_load_dword v%(r)d, v%(o)d, %(b)s, 0 offen sc1
    s_waitcnt vmcnt(0)
    %(cmp)s vcc, %(v)d, v%(r)d
    s_cbranch_vccz L_back%(n)d
    s_sub_u32 s%(c)d, s%(c)d, 1
    s_cbranch_scc0 L_spin%(n)d_loop
    s_branch L_back%(n)d''' % dict(n=n, c=sT3, r=vPRES, o=vPOFF, b=srd(buf), v=val, cmp=cmp))
        return [Ins('%s vcc, %d, v%d' % (cmp, val, vPRES)), Ins('s_cbranch_vccnz L_spin%d' % n), Ins('L_back%d:' % n)]

    def flag_store(self, phase, need):
        return Job(Ins('buffer_store_dword v%d, v%d, %s, s%d offen sc1' % (vONE, vFLAG, srd(SWS), sT2), need=need),
                   pre=['s_mov_b32 s%d, 0x%x' % (sT2, FLAG_OFF + phase * 131072)])

    def opt(self, k, d):
        return int(self.o.get(k, d))

    def touch(self, r):
        if not self.opt('touch', 1):
            return
        e = self.s
        e('@mark touch%d\ns_mov_b64 exec, 0' % r)
        for w in range(3):
            e('s_cmp_eq_u32 s%d, %d\ns_cbranch_scc1 L_touch%d_%d' % (sW, w, r, w))
        e('s_branch L_touch%d_3\nL_touched%d:\ns_mov_b64 exec, -1' % (r, r))

    def put(self, items):
        for x in items:
            self.s.add(x if isinstance(x, Ins) else Ins(x))

    def flat(self, jobs):
        res, m0 = [], None
        for jb in jobs:
            pre = list(jb.pre)
            if jb.m0 and jb.m0 != m0:
                pre.insert(0, jb.m0)
                m0 = jb.m0
            res.append((pre, jb.ins, list(jb.post)))
        return res

    def emit_jobs(self, jobs):
        for pre, d, post in self.flat(jobs):
            self.put(pre + [d] + post)

    def sprinkle(self, main, jobs, start=0, every=8):
        groups = self.flat(jobs)
        for k, x in enumerate(main):
            if groups and k >= start and (k - start) % every == 0:
                pre, d, post = groups.pop(0)
                self.put(pre + [d] + post)
            self.put([x])
        for pre, d, post in groups:
            self.put(pre + [d] + post)

    def whalf(self, name, k, h, small=False):
        buf, vo, stride, nat, off = {
            'wq': (SWQ, vDB, 8192, True, (k >> 1) * 32 * 8192 + (k & 1) * 128),
            'w1': (SW1, vW1, 1024, True, k * 32768),
            'w2': (SW2, vW2, 1024, False, k * 32768),
            'w3': (SW3, vW3, 3584, False, k * (64 if small else 32) * 3584),
            'w4': (SW4, vW2, 1024, False, (k % (4 if small else 8)) * 32768 + (k // (4 if small else 8)) * 512),
            'wo': (SWO, vWN, 1024, False, (k >> 1) * 32768 + (k & 1) * 512)}[name]
        rows = [16 * (a & 1) + 4 * (a >> 1) if nat else 8 * a for a in range(4)]
        return [Job(Ins('buffer_load_dwordx4 v%d, %s, s%d offen offset:%d %slds' % (vo, srd(buf), sO, 1024 * a, 'nt ' if name in self.o.get('wnt', 'none').split(',') else ''), tag='%s%d' % (name, k)),
                    pre=['s_mov_b32 s%d, 0x%x' % (sO, off + rows[a] * stride - 1024 * a)] if small is not None else
                    ['s_mul_i32 s%d, s%d, %d' % (sO, sSTEP, k) if a == 0 else 's_add_u32 s%d, s%d, 0x%x' % (sO, sO, 8 * stride - 1024)],
                    m0='s_add_u32 m0, s%d, 0x%x' % (sRING, (h % 6) * 4096)) for a in range(4)]

    def waddr(self, dst, t, base):
        return ['v_lshrrev_b32 v%d, 2, v%d' % (dst, vL), 'v_bfe_u32 v%d, v%d, 3, 2' % (t, vL), 'v_lshlrev_b32 v%d, 5, v%d' % (t, t),
                'v_lshl_or_b32 v%d, v%d, 7, v%d' % (dst, dst, t), 'v_and_b32 v%d, 3, v%d' % (t, vL), 'v_lshl_or_b32 v%d, v%d, 3, v%d' % (dst, t, dst),
                'v_add_u32 v%d, %s, v%d' % (dst, base, dst)] + ['v_xor_b32 v%d, 0x%x, v%d' % (dst + b, b << 5, dst) for b in range(1, 4)]

    def vaddr_restore(self):
        return ['v_xor_b32 v%d, 0x80, v%d' % (vTR + db, vTR + 4 + db) for db in range(4)]

    def lanesum(self, r, t):
        o = []
        for op in ('v_permlane32_swap_b32', 'v_permlane16_swap_b32'):
            o += ['v_mov_b32 v%d, v%d' % (t, r), '%s v%d, v%d' % (op, t, r), 'v_add_f32 v%d, v%d, v%d' % (r, r, t)]
        return o

    def gelu4(self, src, dst, tmp, k1, scale=None):
        o = []
        e = o.append
        P = lambda b: vr('v', b, 2)
        if scale is not None:
            for h in (0, 2):
                e('v_pk_mul_f32 %s, %s, %s op_sel_hi:[1,0]' % (P(src + h), P(src + h), P(scale)))
        for h in (0, 2):
            e('v_pk_mul_f32 %s, %s, %s' % (P(tmp + h), P(src + h), P(src + h)))
        for h in (0, 2):
            e('v_pk_fma_f32 %s, %s, s[%d:%d], %s op_sel_hi:[1,1,0]' % (P(tmp + h), P(tmp + h), sC0, sC0 + 1, P(k1)))
        for h in (0, 2):
            e('v_pk_mul_f32 %s, %s, %s' % (P(tmp + h), P(tmp + h), P(src + h)))
        for r in range(4):
            e('v_exp_f32 v%d, v%d' % (tmp + r, tmp + r))
        for h in (0, 2):
            e('v_pk_add_f32 %s, %s, 1.0 op_sel_hi:[1,0]' % (P(tmp + h), P(tmp + h)))
        for r in range(4):
            e('v_rcp_f32 v%d, v%d' % (tmp + r, tmp + r))
        for h in (0, 2):
            e('v_pk_mul_f32 %s, %s, %s' % (P(tmp + h), P(tmp + h), P(src + h)))
        for h in (0, 2):
            e('v_cvt_pk_bf16_f32 v%d, v%d, v%d' % (dst + h // 2, tmp + h, tmp + h + 1))
        return o

    def pack(self, d, a0, a1):
        return ['v_cvt_pk_bf16_f32 v%d, v%d, v%d' % (d + 3, a1 + 2, a1 + 3), 'v_cvt_pk_bf16_f32 v%d, v%d, v%d' % (d + 2, a1, a1 + 1),
                'v_cvt_pk_bf16_f32 v%d, v%d, v%d' % (d, a0, a0 + 1), 'v_cvt_pk_bf16_f32 v%d, v%d, v%d' % (d + 1, a0 + 2, a0 + 3)]

    def g16(self, accf, acc, ring, ad, fill=()):
        def kn(n):
            return (n & 15, n >> 4) if self.opt('chain16', 1) else (n >> 2, n & 3)

        def rd(n):
            ks, nb = kn(n)
            off = ((ks >> 2) & 1) * WWAVE + (ks & 3) * 4096
            return ['ds_read_b64_tr_b16 %s, v%d offset:%d' % (vr('a', ring + 4 * (n % 8) + 2 * g, 2), ad + nb, off + 2048 * g) for g in range(2)]
        AH = 6
        for n in range(AH):
            self.put(rd(n))
        p = Plan()
        for n in range(64):
            ks, nb = kn(n)
            p.add(mfma(vr(accf, acc + 4 * nb, 4), vr('a', ring + 4 * (n % 8), 4), vr('v', vX + 4 * ks, 4), '0' if ks == 0 else None))
            if n + AH < 64:
                p.g[n]['ds'] += rd(n + AH)
                if kn(n + AH)[0] == 7:
                    a = ad + kn(n + AH)[1]
                    p.g[n]['va'].append('v_add_u32 v%d, 0x%x, v%d' % (a, 2 * WWAVE, a))
            p.g[n]['va'] += fill[n:n + 1]
        p.emit(self)

    def gemm(self, h0, groups, actf, later, first_jobs=(), sync=None, last_jobs=()):
        WF, AF, LEAD = 0, 32, 9
        p, par, h, blk, owner = Plan(), [], h0, [], []
        p.st = []
        for G, (tags, ak, acc, first) in enumerate(groups):
            par.append(par[-1] ^ (ak != groups[G - 1][1]) if G else 0)
            p.st.append(len(p.mf))
            c, flip = len(ak), 0
            for b in range(len(acc)):
                n = len(blk)
                blk.append(len(p.mf))
                for tb in (range(3, -1, -1) if b & 1 else range(4)):
                    for i, kk in enumerate(range(c - 1, -1, -1) if flip else range(c)):
                        p.add(mfma(vr('v', acc[b] + 4 * tb, 4), vr('a', WF + 8 * (n % 4) + 4 * kk, 4), vr('a', AF + 32 * par[G] + 16 * kk + 4 * tb, 4),
                                   '0' if (first and i == 0) else None))
                    flip ^= 1
            owner += [blk[-1]] * len(tags)
        N = len(p.mf)
        jobs, pos, q = list(first_jobs), [2 * k + 1 for k in range(len(first_jobs))], 4 * ((len(first_jobs) + 1) // 2) + 1
        rest = []
        for k, piece in enumerate(later):
            while k < len(owner) and q < owner[k]:
                q += 4
            for jb in piece:
                if q < N and k < len(owner) and not rest:
                    jobs.append(jb)
                    pos.append(q)
                    q += 4
                else:
                    rest.append(jb)
        for jb in last_jobs:
            jobs.append(jb)
            pos.append(q)
            q += 4
        p.rest, p.dma_end = rest, q
        prev, pend = p.jobs(self.flat(jobs), pos, avoid={x - 1 for x in blk})
        p.scalars(pend, prev + 1, N)
        pre = []

        def place(ins, lo, use):
            for each, lead in ((1, LEAD), (2, LEAD), (2, LEAD - 2), (2, LEAD - 4)):
                c = [j for j in range(max(lo - 1, 0), use - lead + 1) if not p.g[j]['vm'] and (j + 1 not in blk or each == 2)
                     for _ in range(each - len(p.g[j]['ds']))]
                if len(c) >= len(ins) or lo == 0:
                    break
            assert len(c) >= len(ins) or lo == 0
            c = c[-len(ins):]
            pre.extend(ins[:len(ins) - len(c)])
            for j, x in zip(c, ins[len(ins) - len(c):]):
                p.g[j]['ds'].append(x)
        h, n = h0, 0
        for G, (tags, ak, acc, first) in enumerate(groups):
            for b in range(len(acc)):
                src = [(kk, b) if len(tags) == 2 else (0, b + 2 * kk) for kk in range(2)]
                ins = [Ins('ds_read_b64_tr_b16 %s, v%d offset:%d' % (vr('a', WF + 8 * (n % 4) + 4 * kk + 2 * g, 2), vTR + lb, ((h + pc) % 6) * 4096 + 2048 * g),
                           need=[tags[pc]]) for kk, (pc, lb) in enumerate(src) for g in range(2)]
                place(ins, blk[n - 3] if n >= 4 else 0, blk[n])
                n += 1
            h += len(tags)
        for G, (tags, ak, acc, first) in enumerate(groups):
            if G == 0 or ak != groups[G - 1][1]:
                ins = ['ds_read_b128 %s, v%d offset:%d' % ((vr('a', AF + 32 * par[G] + 16 * kk + 4 * tb, 4),) + actf(k, tb)) for tb in range(4) for kk, k in enumerate(ak)]
                prev = [x for x in range(G) if par[x] == par[G]]
                lo = p.st[prev[-1] + 1] if prev else 0
                if G == 0:
                    act0 = [ins[k] for k in (0, 1, 3, 2, 4, 5, 7, 6)]
                    continue
                span = max(1, (p.st[G] - LEAD - lo) // len(ins))
                for k, x in enumerate(ins):
                    j = lo + k * span
                    while p.g[j]['vm'] or len(p.g[j]['ds']) >= 2 or (j + 1 in blk and span > 1):
                        j += 1
                    assert j < p.st[G] - 4 + k
                    p.g[j]['ds'].append(x)
        main, self.s = self.s, Stream()
        sync()
        bar, self.s = self.s.l, main
        for x in bar:
            if x.kind == 'bar':
                lg = [y for y in self.s.l if y.kind in ('dsr', 'dsw')]
                if lg:
                    lg[-1].tag = 'lastlds'
                self.put(pre)
                x.need = ['lastlds'] if lg else []
            self.s.add(x)
        self.put(act0)
        return p

    def part_store(self, reg, off, tag, base=sPO, vo=vACT):
        return Job(Ins('buffer_store_dwordx4 %s, v%d, %s, s%d offen sc1' % (vr('v', reg, 4), vo, srd(SWS), sT1), tag=tag),
                   pre=['s_add_u32 s%d, s%d, 0x%x' % (sT1, base, off)])

    def gather(self, f, dst, soff, off, flags):
        return [Job('buffer_load_dwordx4 %s, v%d, %s, s%d offen offset:%d %s' % (vr(f, dst + 4 * k, 4), vACT, srd(SWS), sRET, 1024 * (k % 4), flags),
                    pre=['s_add_u32 s%d, s%d, 0x%x' % (sRET, soff, off + 1024 * k)] if k % 4 == 0 else []) for k in range(16)]

    LR, LB = vW1, vFLAG
    XS, XW, RA, F1 = vP + 8, vP + 9, vP + 10, vT + 4

    def prologue(self):
        e = self.s
        D = vr('a', aDUMMY, 4)
        e('@sec prologue')
        bufs = [(SX, 0, 0x200000), (SWQ, 24, 0x400000), (SWS, 96, 0x10000000), (SW1, 48, 0x80000), (SW2, 56, 0x80000), (SDBG, 88, 256), (SK, 8, 0x400000),
                (SV, 16, 0x400000), (SWO, 32, 0x400000), (SW3, 64, 0x1c0000), (SW4, 72, 0x1c0000), (SOUT, 80, 0x200000)]
        for b, off, _ in bufs[:2]:
            e('s_load_dwordx2 s[%d:%d], s[0:1], %d' % (b, b + 1, off))
        e('s_cmp_ge_u32 s2, 256\ns_cbranch_scc1 L_end')
        if self.o.get('diag', '').startswith('start'):
            e('s_memrealtime s[98:99]')
        if self.prof:
            e('v_accvgpr_write_b32 a%d, 0\nv_accvgpr_write_b32 a%d, 0' % (aPROF, aPROF + 1))
        e('s_getpc_b64 s[%d:%d]\nL_pc:' % (SCODE, SCODE + 1))
        e('s_mov_b32 s%d, L_code_end-L_pc\ns_mov_b32 s%d, 0x20000' % (SCODE + 2, SCODE + 3))
        e('s_lshr_b32 s%d, s2, 3\nv_lshlrev_b32 v%d, 4, v0\nv_lshl_add_u32 v%d, s%d, 12, v%d' % (sT, vT + 3, vT, sT, vT + 3))
        e('buffer_load_dwordx4 %s, v%d, %s, 0 offen' % (D, vT, srd(SCODE)))
        e('v_readfirstlane_b32 s%d, v0\ns_and_b32 s%d, s2, 7\nv_and_b32 v0, 63, v0' % (sW, sJ))
        e('s_lshr_b32 s%d, s%d, 6' % (sW, sW))
        e('s_lshl_b32 s%d, s%d, 2\ns_add_u32 s%d, s%d, s%d' % (sTBG, sT, sTBG, sTBG, sW))
        e('v_lshrrev_b32 v%d, 2, v%d\nv_and_b32 v%d, 3, v%d' % (vT + 1, vL, vT + 2, vL))
        e('v_lshlrev_b32 v%d, 10, v%d\nv_lshl_or_b32 v%d, v%d, 4, v%d' % (vT + 4, vT + 1, vT + 4, vT + 2, vT + 4))
        e('v_lshlrev_b32 v%d, 4, v%d' % (vACT, vL))
        e('s_lshl_b32 s%d, s%d, 14\ns_lshl_b32 s%d, s%d, 13\ns_lshl_b32 s%d, s%d, 10' % (sCNT, sTBG, sVO, sTBG, sT1, sJ))
        e('s_mov_b32 s%d, 0x200000\ns_mov_b32 s%d, 0x20000' % (SX + 2, SX + 3))
        e('s_sub_u32 s%d, 0x400000, s%d\ns_mov_b32 s%d, 0x20000' % (SWQ + 2, sT1, SWQ + 3))
        e('s_waitcnt lgkmcnt(0)')
        self.stamp('kernarg')
        e('s_add_u32 s%d, s%d, s%d\ns_addc_u32 s%d, s%d, 0' % (SWQ, SWQ, sT1, SWQ + 1, SWQ + 1))
        for b, off, _ in bufs[2:]:
            e('s_load_dwordx2 s[%d:%d], s[0:1], %d' % (b, b + 1, off))
        wl = [Job('buffer_load_dwordx4 %s, v%d, %s, s%d offen' % (D, vACT, srd(SWQ), sVO), post=['s_add_u32 s%d, s%d, 0x100000' % (sVO, sVO)]) for i in range(4)]
        nf = self.opt('wq_first', 2)
        self.emit_jobs(wl[:nf])
        xl = [Job('buffer_load_dwordx4 %s, v%d, %s, s%d offen offset:%d' % (vr('v', vX + 4 * ks, 4), vT + 4, srd(SX), sCNT, 64 * ks)) for ks in range(16)]
        nx = self.opt('x_first', 10)
        self.emit_jobs(xl[:nx])
        self.stamp('x issued')
        mark = len(e.l)

        def lin(dst, c, *terms):
            for k, (reg, mul) in enumerate(terms):
                e('s_mul_i32 s%d, s%d, 0x%x' % (dst if k == 0 else sT0, reg, mul & 0xffffffff))
                if k:
                    e('s_add_u32 s%d, s%d, s%d' % (dst, dst, sT0))
            if c:
                e('s_add_u32 s%d, s%d, 0x%x' % (dst, dst, c))
        lin(sRING, WREG, (sW, WWAVE))
        lin(sW2K, 0, (sW, 2048))
        e('v_mov_b32 v%d, 1' % vONE)
        XS, XW, RA = self.XS, self.XW, self.RA
        e('v_lshlrev_b32 v%d, 1, v%d\nv_xor_b32 v%d, v%d, v%d\nv_lshl_or_b32 v%d, v%d, 4, v%d' % (vT, vT + 2, vT, vT, vT + 1, vT, vT + 2, vT))
        e('v_lshlrev_b32 v%d, 4, v%d\nv_lshl_add_u32 v%d, s%d, 14, v%d' % (vT, vT, XW, sW, vT))
        e('v_lshrrev_b32 v%d, 4, v%d\nv_lshlrev_b32 v%d, 5, v%d\nv_xor_b32 v%d, v%d, v%d' % (vT, vL, vT, vT, XS, vT, vACT))
        e('v_lshrrev_b32 v%d, 5, v%d\nv_and_b32 v%d, 15, v%d\nv_mul_u32_u24 v%d, 18, v%d\nv_xor_b32 v%d, v%d, v%d' % (vT, vL, vT + 1, vL, vT, vT, vT, vT, vT + 1))
        e('v_bfe_u32 v%d, v%d, 4, 1\nv_lshl_or_b32 v%d, v%d, 1, v%d\nv_lshlrev_b32 v%d, 3, v%d' % (vT + 1, vL, vT, vT, vT + 1, vT, vT))
        lin(sT1, 0, (sW, 16384), (sJ, 1024))
        e('v_add_u32 v%d, s%d, v%d\nv_xor_b32 v%d, 64, v%d' % (RA, sT1, vT, RA + 1, RA))
        C, RN, RK = vT, vT + 1, vT + 2
        e('v_and_b32 v%d, 7, v%d\nv_bfe_u32 v%d, v%d, 4, 2\nv_lshlrev_b32 v%d, 1, v%d\nv_xor_b32 v%d, v%d, v%d' % (C, vL, RN, vL, RN, RN, C, C, RN))
        e('v_lshlrev_b32 v%d, 4, v%d\nv_lshrrev_b32 v%d, 3, v%d' % (C, C, RN, vL))
        e('v_and_b32 v%d, 4, v%d\nv_add_u32 v%d, v%d, v%d' % (RK, RN, RK, RK, RN))
        e('v_lshl_add_u32 v%d, v%d, 13, v%d\nv_lshl_add_u32 v%d, s%d, 8, v%d' % (vDB, RK, C, vDB, sW, vDB))
        e('v_lshl_add_u32 v%d, v%d, 10, v%d\nv_lshl_add_u32 v%d, s%d, 17, v%d' % (vW1, RK, C, vW1, sW, vW1))
        e('v_lshl_add_u32 v%d, v%d, 10, v%d' % (vWN, RN, C))
        e('v_and_b32 v%d, 64, v%d\nv_mad_u32_u24 v%d, v%d, 7, v%d' % (RK, C, vW2, RK, vWN))
        W1W, W2W = vP, vP + 1
        e('v_mov_b32 v%d, v%d\nv_mov_b32 v%d, v%d' % (W1W, vWN, W2W, vW2))
        e('v_lshl_add_u32 v%d, s%d, 17, v%d\nv_lshl_add_u32 v%d, s%d, 7, v%d' % (vW2, sW, vW2, vWN, sW, vWN))
        e('v_mul_u32_u24 v%d, 3584, v%d\nv_lshl_add_u32 v%d, s%d, 7, v%d\nv_add_u32 v%d, v%d, v%d' % (RN, RN, C, sW, C, vW3, RN, C))
        e('v_mov_b32 v%d, 0x%x' % (vT + 5, OOB))
        lin(sKO, 0, (sT, 16384))
        RS, Z = vP + 2, vP + 3
        e('v_lshrrev_b32 v%d, 2, v%d\nv_lshlrev_b32 v%d, 17, v%d' % (RS, vL, RS, RS))
        e('v_and_b32 v%d, 3, v%d\nv_lshl_or_b32 v%d, v%d, 10, v%d' % (Z, vL, RS, Z, RS))
        e('v_cmp_gt_u32 vcc, 0x80, v%d' % (vT + 3))
        lin(sT1, 0, (sTBG, 1024), (sJ, 128))
        e('v_cndmask_b32 v%d, v%d, v%d, vcc' % (RS, vT + 5, RS))
        e('v_lshrrev_b32 v%d, 9, v%d\nv_cmp_eq_u32 vcc, 1, v%d' % (Z, vT + 3, Z))
        e('v_lshlrev_b32 v%d, 2, v%d\nv_add_u32 v%d, 0x%x, v%d' % (Z, vL, Z, 0x40000 - 128, Z))
        e('v_cndmask_b32 v%d, v%d, v%d, vcc' % (RS, RS, Z))
        e('v_cmp_eq_u32 vcc, 0, v%d\nv_mov_b32 v%d, s%d\ns_add_u32 s%d, s%d, 0x%x' % (vL, vFLAG, sT1, sRET, sT1, FLAG_OFF))
        e('v_cndmask_b32 v%d, v%d, v%d, vcc' % (vFLAG, vT + 5, vFLAG))
        e('v_cmp_eq_u32 vcc, 0, v%d\nv_mov_b32 v%d, 0\ns_add_u32 s%d, s%d, 0x%x' % (vT + 3, Z, sSTO, sT1, ST_OFF))
        e('v_cndmask_b32 v%d, v%d, 0, vcc' % (vPOFF, vT + 5))
        e('v_and_b32 v%d, 15, v%d\nv_lshrrev_b32 v%d, 4, v%d' % (vT, vL, vT + 1, vL))
        e('v_xor_b32 v%d, v%d, v%d\nv_lshlrev_b32 v%d, 4, v%d\nv_lshl_or_b32 v%d, v%d, 8, v%d' % (vT + 1, vT + 1, vT, vT + 1, vT + 1, vKA, vT, vT + 1))
        for ks in range(1, 4):
            e('v_xor_b32 v%d, 0x%x, v%d' % (vKA + ks, 64 * ks, vKA))
        e('v_lshrrev_b32 v%d, 2, v%d\nv_and_b32 v%d, 7, v%d\nv_lshlrev_b32 v%d, 5, v%d' % (vT, vL, vT + 1, vT, vT + 1, vT + 1))
        e('v_lshl_or_b32 v%d, v%d, 8, v%d\nv_and_b32 v%d, 3, v%d\nv_lshl_or_b32 v%d, v%d, 3, v%d' % (vT, vT, vT + 1, vT + 1, vL, vT, vT + 1, vT))
        for db in range(4, 8):
            e('v_xor_b32 v%d, 0x%x, v%d' % (vTR + db, VRING | db << 5, vT))
        self.put(self.waddr(vTR, vT, 's%d' % sRING))
        e('v_bfe_i32 v%d, v%d, 1, 1\nv_and_b32 v%d, 0x3f803f80, v%d\nv_xor_b32 v%d, 0x3f803f80, v%d' % (vT, vL, vT + 1, vT, vT + 2, vT + 1))
        e('v_bfe_i32 v%d, v%d, 0, 1\nv_and_b32 v%d, 0xaaaaaaaa, v%d\nv_or_b32 v%d, 0x44444444, v%d' % (vT, vL, vT, vT, vIDX, vT))
        for r in range(4):
            e('v_accvgpr_write_b32 a%d, v%d\nv_accvgpr_write_b32 a%d, v%d' % (aONES + r, vT + 2, aONE2 + r, vT + 1))
        for r in range(8):
            e('v_accvgpr_write_b32 a%d, 0' % (aL + r))
        lin(sHO, 0, (sTBG, 1 << 14), (sJ, 1 << 11))
        lin(sX1I, X1_OFF, (sTBG, 1 << 14))
        lin(sX1O, 0, (sJ, 1 << 10), (sX1I, 1))
        lin(sPO, 0, (sT, 1 << 19), (sJ, 1 << 11), (sW, 1 << 17))
        lin(sPI, 0, (sT, 1 << 19), (sJ, 1 << 16), (sW, 1 << 14))
        lin(sCF, FLAG_OFF + 0x40000, (sT, 1 << 12), (sJ, 1 << 7))
        lin(sFP, FLAG_OFF + 0x40000, (sT, 1 << 12), (sW, 256), (sJ, 4))
        lin(sXO, 0, (sTBG, 1 << 14), (sJ, 64))
        lin(sCW, 0, (sTBG, 1024))
        lin(sW3W, 0, (sTBG, 4 * 3584))
        lin(sWOW, 0, (sTBG, 4096))
        e('s_lshr_b32 s%d, s%d, 1\ns_lshl_b32 s%d, s%d, 13' % (sWSH, sTBG, sWSH, sWSH))
        e('s_mov_b32 s%d, %s\ns_mov_b32 s%d, %s\ns_mov_b32 s%d, 0' % (sC0, f2u(-K2), sC0 + 1, f2u(-K2), sPASS))
        e('s_waitcnt lgkmcnt(0)')
        shift = {SW1: [(sJ, 128)], SW2: [(sJ, 64)], SK: [(sJ, 1 << 19)], SV: [(sJ, 1 << 19)], SWO: [(sJ, 1 << 19)]}
        for b, _, size in bufs[2:]:
            if b in shift:
                lin(sT1, 0, *shift[b])
                e('s_add_u32 s%d, s%d, s%d\ns_addc_u32 s%d, s%d, 0\ns_sub_u32 s%d, 0x%x, s%d' % (b, b, sT1, b + 1, b + 1, b + 2, size, sT1))
            else:
                e('s_mov_b32 s%d, 0x%x' % (b + 2, size))
            e('s_mov_b32 s%d, 0x20000' % (b + 3))
        e('s_mov_b32 s%d, s%d\ns_mov_b32 s%d, s%d\ns_mov_b32 s%d, 0x200000\ns_mov_b32 s%d, 0x20000' % (SH, SWS, SH + 1, SWS + 1, SH + 2, SH + 3))
        ns = self.opt('x_setup', 0)
        setup, e.l = e.l[mark:], e.l[:mark]
        self.sprinkle(setup, xl[nx:nx + ns], start=self.opt('xs_start', 20), every=self.opt('xs_every', 25))
        self.xrest = xl[nx + ns:]
        self.early = wl[nf:] + [Job(Ins('buffer_store_dword v%d, v%d, %s, s%d offen sc1' % (Z, RS, srd(SWS), sRET), tag='reset')),
                                Job('buffer_load_dwordx4 %s, v%d, %s, s%d offen' % (D, W1W, srd(SW1), sWSH)),
                                Job('buffer_load_dwordx4 %s, v%d, %s, s%d offen' % (D, W2W, srd(SW2), sWSH))]
        self.early += (self.warm(SK, vACT, sWOW, (0, 1024, 2048, 3072)) + self.warm(SV, vACT, sWOW, (0, 1024, 2048, 3072)))[:self.opt('kv_early', 2)]
        self.stamp('setup')
        self.touch(0)
        self.stamp('touched')
        e('s_branch L_go\n.p2align 12\nL_go:')

    def p0(self):
        e = self.s
        e('@sec P0 layernorm')
        P = lambda b: vr('v', b, 2)
        A, X0 = vS, vS + 8
        o = ['v_lshlrev_b32 v%d, 16, v%d' % (X0 + 1, vX), 'v_mov_b32_dpp v%d, v%d quad_perm:[0,0,0,0] row_mask:0xf bank_mask:0xf' % (X0, X0 + 1)]
        for k in range(64):
            d = vACC + 2 * k
            o += ['v_lshlrev_b32 v%d, 16, v%d' % (d, vX + k), 'v_and_b32 v%d, 0xffff0000, v%d' % (d + 1, vX + k),
                  'v_pk_add_f32 %s, %s, %s op_sel_hi:[1,0] neg_lo:[0,1] neg_hi:[0,1]' % (P(d), P(d), P(X0))]
            if k == 0:
                o += ['v_pk_mul_f32 %s, %s, %s' % (P(A + 2), P(d), P(d))]
            else:
                o += ['v_pk_add_f32 %s, %s, %s' % (P(A), P(A) if k > 1 else P(vACC), P(d)), 'v_pk_fma_f32 %s, %s, %s, %s' % (P(A + 2), P(d), P(d), P(A + 2))]
        wq = []
        for k in range(6):
            wq += self.whalf('wq', self.pair_order(0)[k], k)
        nd = self.opt('p1_dma', 2)
        jobs = []
        while self.xrest or (wq and nd):
            jobs += self.xrest[:1] + wq[:nd if self.xrest else nd + 1]
            wq = wq[nd if self.xrest else nd + 1:]
            self.xrest = self.xrest[1:]
        self.sprinkle(o, jobs, start=self.opt('p1_start', 2), every=20 // (nd + 1) if nd else 10)
        self.stamp('x landed')
        o = ['v_add_f32 v%d, v%d, v%d' % (A, A, A + 1), 'v_add_f32 v%d, v%d, v%d' % (A + 2, A + 2, A + 3)]
        for qp in ('[1,0,3,2]', '[2,3,0,1]'):
            for r in (A, A + 2):
                o.append('v_add_f32_dpp v%d, v%d, v%d quad_perm:%s row_mask:0xf bank_mask:0xf' % (r, r, r, qp))
        M, V, R = A, A + 2, A + 4
        o += ['v_mul_f32 v%d, %s, v%d' % (M, f2u(1.0 / 512), M), 'v_mul_f32 v%d, %s, v%d' % (V, f2u(1.0 / 512), V),
              'v_fma_f32 v%d, -v%d, v%d, v%d' % (V, M, M, V), 'v_max_f32 v%d, 0, v%d' % (V, V),
              'v_add_f32 v%d, %s, v%d' % (R, f2u(1e-5), V), 'v_rsq_f32 v%d, v%d' % (R, R),
              'v_and_b32 v%d, 0xf0, v%d' % (A + 7, vACT),
              'v_mul_f32 v%d, v%d, v%d' % (A + 6, R, R), 'v_fmaak_f32 v%d, v%d, v%d, %s' % (A + 6, A + 6, V, f2u(1e-5)), 'v_rsq_f32 v%d, v%d' % (A + 6, A + 6),
              'v_mul_f32 v%d, %s, v%d' % (R, f2u(CSCALE), R), 'v_mul_f32 v%d, %s, v%d' % (A + 6, f2u(1.0 / CSCALE), A + 6),
              'v_mul_f32_e64 v%d, -v%d, v%d' % (M, M, R), 'ds_bpermute_b32 v%d, v%d, v%d' % (self.F1, A + 7, A + 6)]
        for ks in range(16):
            for k in range(4 * ks, 4 * ks + 4):
                d = P(vACC + 2 * k)
                o.append('v_pk_fma_f32 %s, %s, %s, %s op_sel_hi:[1,0,0]' % (d, d, P(R), P(M)))
            for k in range(4 * ks, 4 * ks + 4):
                o.append('v_cvt_pk_bf16_f32 v%d, v%d, v%d' % (vX + k, vACC + 2 * k, vACC + 2 * k + 1))
            o.append('ds_write_b128 v%d, %s offset:%d' % (self.XW, vr('v', vX + 4 * ks, 4), 1024 * ks))
        nw, nl = 4 * self.opt('ln_w', 4), self.opt('ln_jobs', 22)
        jobs = wq[:nw] + self.early + wq[nw:]
        self.p2_first = jobs[nl:]
        self.sprinkle(o, jobs[:nl], start=self.opt('ln_start', 0), every=self.opt('ln_every', 2 if nd else 7))
        for nb in range(4):
            e('ds_read_b64 %s, v%d offset:%d' % (vr('a', aRES + 2 * nb, 2), self.RA + (nb & 1), 8192 * (nb >> 1) + 512 * (nb & 1)))
        e('v_lshl_add_u32 v%d, s%d, 14, v%d' % (self.XW, sW, self.XS))

    def kv_dma(self, which, unit, tag):
        buf, ring, so, vo = (SK, KRING, sKO, vDB) if which == 'K' else (SV, VRING, sVO, vDB + 2)
        fl = self.o.get('kvflag', 'nt_').replace('_', ' ') if self.kv_nt else ''
        m0 = 's_add_u32 m0, s%d, 0x%x' % (sW2K, ring + 8192 * (unit & 3))
        return [Job(Ins('buffer_load_dwordx4 v%d, %s, s%d offen %slds' % (vo, srd(buf), so, fl), tag=tag), m0=m0),
                Job(Ins('buffer_load_dwordx4 v%d, %s, s%d offen offset:1024 %slds' % (vo + 1, srd(buf), so, fl), tag=tag), m0=m0,
                    post=['s_add_u32 s%d, s%d, 0x2000' % (so, so), 's_and_b32 s%d, s%d, 0x7ffff' % (so, so)])]

    def pair_order(self, early):
        sg = [(kp, hf) for kp in range(8 - early) for hf in range(2)] + [(kp, hf) for hf in range(2) for kp in range(8 - early, 8)]
        return [2 * (2 * kp + kk) + hf for kp, hf in sg for kk in range(2)]

    def pair_groups(self, name, od):
        return [(['%s%d' % (name, k) for k in od[h:h + 2]], [k >> 1 for k in od[h:h + 2]],
                 [vACC + 64 * (od[h] & 1) + 16 * b for b in range(4)], od[h] < 2) for h in range(0, 32, 2)]

    def p2(self):
        e = self.s
        e('@sec P2')
        od = self.pair_order(0)
        later = [self.whalf('wq', od[h], h) if h < 32 else self.whalf('w1', h - 32, h) for h in range(6, 36)]
        if self.opt('kvwarm', 0):
            later[25] = later[25] + self.warm(SK, vACT, sWOW, (0, 1024, 2048, 3072)) + self.warm(SV, vACT, sWOW, (0, 1024, 2048, 3072))
        p = self.gemm(0, self.pair_groups('wq', od), lambda k, tb: (self.XS, (tb * 16 + k) * 1024),
                      later, self.p2_first, lambda: (self.s('s_barrier', need=['*lg']), self.stamp('P0 end')))
        self.q_first = p.rest
        for ks in range(16):
            p.g[16 * (ks + 2) + 7]['ds'].append('ds_read_b128 %s, v%d offset:%d' % (vr('v', vX + 4 * ks, 4), self.XW, 1024 * ks))
        assert not p.fill(self.waddr(vP + 12, vT, '0x%x' % (WREG + 8192)) + ['v_mov_b32 v%d, %s' % (vP + 10, f2u(-K1))], 16)
        f = ('v_lshrrev_b32 v%d, 4, v%d\nv_and_b32 v%d, 15, v%d\nv_lshl_add_u32 v%d, v%d, 8, s%d\n' % (vT, vL, vT + 1, vL, vT + 2, vT, sW2K) +
             'v_bfe_u32 v%d, v%d, 8, 4\nv_xor_b32 v%d, v%d, v%d\n' % (vT + 3, vT + 2, vT + 3, vT + 3, vT + 1) +
             'v_lshl_add_u32 v%d, v%d, 4, v%d\nv_xor_b32 v%d, 64, v%d\n' % (vDB, vT + 3, vT + 2, vDB + 1, vDB) +
             'v_lshlrev_b32 v%d, 1, v%d\nv_xor_b32 v%d, v%d, v%d\n' % (vT + 3, vT, vT + 3, vT + 3, vT + 1) +
             'v_lshl_add_u32 v%d, v%d, 4, v%d\nv_xor_b32 v%d, 0x80, v%d' % (vDB + 2, vT + 3, vT + 2, vDB + 3, vDB + 2)).split('\n')
        assert not p.fill(f, 32 * 14)
        assert not p.fill(self.vaddr_restore(), 16 * 31 + 2)
        p.jobs(self.flat([Job(Ins('buffer_atomic_add v%d, v%d, %s, s%d offen sc1' % (vONE, vPOFF, srd(SDBG), sT0), need=['reset']),
                              pre=['s_lshl_b32 s%d, s%d, 3' % (sT0, sT), 's_mov_b32 s%d, s%d' % (sVO, sKO)])]), p.empty(16 * 31 + 10, 1), lo=16 * 31 + 5)
        p.emit(self)
        self.stamp('P2 end')

    def q_p1(self):
        e = self.s
        e('@sec Q epilogue')
        if self.o.get('diag', '').startswith('xcc'):
            e('s_getreg_b32 s98, hwreg(HW_REG_XCC_ID)\ns_sub_u32 s98, s98, s%d\ns_and_b32 s98, s98, 7\ns_lshl_b32 s98, 1, s98' % sJ)
            e('v_mov_b32 v%d, s98\nbuffer_atomic_or v%d, v%d, %s, 0 offen offset:4 sc1' % (vT, vT, vPOFF, srd(SDBG)))
        e('s_barrier', need=['*lg'])
        jobs = self.q_first + self.tile_dma(0, 'kv0')
        o, wr = [], []
        fr = [(qb, ks) for qb in range(4) for ks in range(4)]
        for n in range(0, 16, 2):
            ts = []
            for qb, ks in fr[n:n + 2]:
                a = vACC + 32 * ks + 4 * qb
                o += self.pack(a + 16, a, a + 16)
                ts.append(a + 16)
            for op in ('v_permlane32_swap_b32', 'v_permlane16_swap_b32'):
                for t in ts:
                    o += ['%s v%d, v%d' % (op, t, t + 2), '%s v%d, v%d' % (op, t + 1, t + 3)]
            for (qb, ks), t in zip(fr[n:n + 2], ts):
                (wr if self.opt('q_in_p1', 1) else o).extend('v_accvgpr_write_b32 a%d, v%d' % (aQ + 16 * qb + 4 * ks + r, t + r) for r in range(4))
        self.sprinkle(o, jobs, every=self.opt('q_every', 4))
        self.stamp()
        e('@sec P1')
        e('s_barrier', need=['w13'])
        self.g16('v', vS, 0, vP + 12, wr)
        o = []
        for nb in range(4):
            o += self.gelu4(vS + 4 * nb, vX + 2 * nb, vP + 4 * (nb & 1), vP + 10, scale=self.F1)
        self.sprinkle(o, self.tile_dma(1, 'kv1'), every=11)
        for p in range(2):
            e('buffer_store_dwordx4 %s, v%d, %s, s%d offen offset:%d sc1' % (vr('v', vX + 4 * p, 4), vACT, srd(SH), sHO, 1024 * p), tag='hst')
        self.stamp()

    def p3(self, kreads):
        e = self.s
        self.stamp()
        e('@sec P3')
        acc = aK
        self.put(self.waddr(vT, vT + 4, '0x%x' % (WREG + 8192)))
        self.g16('a', acc, aK + 32, vT)
        X, R, PK = vX, vX + 16, vX + 32
        P = lambda b: vr('v', b, 2)
        for k in range(8):
            e('v_accvgpr_read_b32 v%d, a%d' % (PK + k, aRES + k))
        for k in range(8):
            e('v_lshlrev_b32 v%d, 16, v%d\nv_and_b32 v%d, 0xffff0000, v%d' % (R + 2 * k, PK + k, R + 2 * k + 1, PK + k))
        e('v_mov_b32 v%d, %s' % (PK + 8, f2u(1.0 / CSCALE)))
        for k in range(16):
            e('v_accvgpr_read_b32 v%d, a%d' % (X + k, acc + k))
        mark = len(e.l)
        for k in range(8):
            e('v_pk_fma_f32 %s, %s, %s, %s op_sel_hi:[1,0,1]' % (P(X + 2 * k), P(R + 2 * k), P(PK + 8), P(X + 2 * k)))
        for k in range(8):
            e('v_cvt_pk_bf16_f32 v%d, v%d, v%d' % (PK + k, X + 2 * k, X + 2 * k + 1))
        e('s_add_u32 s%d, s%d, 0x2000' % (sT1, sX1O))
        for p in range(2):
            e('buffer_store_dwordx4 %s, v%d, %s, s%d offen sc1' % (vr('v', PK + 4 * p, 4), vACT, srd(SWS), sT1 if p else sX1O))
        for k in range(8):
            e('v_lshlrev_b32 v%d, 16, v%d\nv_and_b32 v%d, 0xffff0000, v%d' % (X + 2 * k, PK + k, X + 2 * k + 1, PK + k))
            e('v_accvgpr_write_b32 a%d, v%d' % (aX1 + k, PK + k))
        for k in range(4):
            e('v_pk_add_f32 %s, %s, %s' % (P(R + 2 * k), P(X + 2 * k), P(X + 8 + 2 * k)))
        e('v_pk_add_f32 %s, %s, %s\nv_pk_add_f32 %s, %s, %s' % (P(R), P(R), P(R + 2), P(R + 4), P(R + 4), P(R + 6)))
        e('v_pk_add_f32 %s, %s, %s\nv_add_f32 v%d, v%d, v%d' % (P(R), P(R), P(R + 4), R + 8, R, R + 1))
        self.put(self.lanesum(R + 8, R + 10))
        e('v_mul_f32 v%d, %s, v%d' % (R + 8, f2u(1.0 / 64), R + 8))
        for k in range(8):
            e('v_pk_add_f32 %s, %s, %s op_sel_hi:[1,0] neg_lo:[0,1] neg_hi:[0,1]' % (P(X + 2 * k), P(X + 2 * k), P(R + 8)))
        for k in range(8):
            e('v_pk_fma_f32 %s, %s, %s, %s' % (P(R), P(X + 2 * k), P(X + 2 * k), P(R)) if k else 'v_pk_mul_f32 %s, %s, %s' % (P(R), P(X), P(X)))
        e('v_add_f32 v%d, v%d, v%d' % (R + 9, R, R + 1))
        e('v_lshlrev_b32 v%d, 3, v%d\nv_mov_b32 v%d, 0x%x\nv_cmp_gt_u32 vcc, 16, v%d' % (R, vL, R + 1, OOB, vL))
        self.put(self.lanesum(R + 9, R + 10))
        e('v_cndmask_b32 v%d, v%d, v%d, vcc' % (R, R + 1, R))
        e('buffer_store_dwordx2 %s, v%d, %s, s%d offen sc1' % (P(R + 8), R, srd(SWS), sSTO), tag='x1st')
        epi, e.l = e.l[mark:], e.l[:mark]
        for k, x in enumerate(epi):
            if k % 16 == 0:
                self.put(kreads[k // 4:k // 4 + 4])
            e.add(x)
        self.stamp()
        e('@sec attention 1b')

    def krd(self, u, f):
        kb, ks = f >> 2, f & 3
        return 'ds_read_b128 %s, v%d offset:%d' % (vr('a', aK + 32 * (u & 1) + 4 * f, 4), vKA + ks, KRING + 8192 * (u & 3) + 4096 * kb)

    def vrd(self, u, h):
        db, g = h >> 1, h & 1
        return 'ds_read_b64_tr_b16 %s, v%d offset:%d' % (vr('a', aV + 32 * (u & 1) + 4 * db + 2 * g, 2), vTR + db, 8192 * (u & 3) + 4096 * g)

    def rowsum(self, d, ones, p):
        return 'v_smfmac_f32_16x16x64_bf16 %s, %s, %s, v%d' % (vr('a', aL + 4 * d, 4), vr('a', ones, 4), vr('v', p, 8), vIDX)

    KV_GAPS = ((5, 1), (5, 5), (5, 9), (5, 13), (6, 1), (6, 5), (6, 13), (7, 1))
    SIDE_GAPS = {7: (5, 13), 0: (1, 5, 9, 13), 1: (1, 5), 4: (9, 13)}

    def tile_dma(self, T, tag):
        return sum([self.kv_dma(w, 2 * T + k, tag + w) for w in 'KV' for k in range(2)], [])

    def segment(self, seg, NS, sched, loop=None, inline=None):
        e = self.s
        NT, inline = NS // 8, inline or {}
        side, chk, fill = {}, {}, {}

        def slots(n):
            T, h = n >> 3, n & 7
            if n < 3 or n >= NS:
                return []
            g = list(self.SIDE_GAPS.get(h, ()))
            if T + 2 >= NT:
                g += [x for hh, x in self.KV_GAPS if hh == h]
            return sorted(g)

        def spread(jobs, n, stop, rate=4):
            jobs = list(jobs)
            while jobs:
                assert n < stop, 'side jobs do not fit'
                room = min(rate, len(slots(n)) - (n in chk) - len(side.get(n, [])))
                while room > 0 and jobs:
                    side.setdefault(n, []).append(jobs.pop(0))
                    room -= 1
                n += 1
        sched(spread, chk, fill)
        lab = 'L_attn%d' % seg
        plans, use = [], {}
        for n in range(NS + 3):
            T, h = n >> 3, n & 7
            p = Plan()
            if n < NS:
                for kb in range(2):
                    d = vr('v', vS + 8 * (n & 1) + 4 * kb, 4)
                    for i, ks in enumerate(range(3, -1, -1) if kb else range(4)):
                        j = p.add(mfma(d, vr('a', aK + 32 * (n & 1) + 16 * kb + 4 * ks, 4), vr('a', aQ + 16 * (h >> 1) + 4 * ks, 4), self.o.get('c0', '-4.0') if i == 0 else None))
                        use.setdefault(('K', T, n & 1, 4 * kb + ks), []).append((n, j))
            if n >= 3:
                m, dh = (n - 3) >> 1, (n - 3) & 1
                for db in range(4 * dh, 4 * dh + 4):
                    for i, kk in enumerate((1, 0) if db & 1 else (0, 1)):
                        j = p.add(mfma(vr('v', vACC + 16 * db + 4 * (m & 3), 4), vr('a', aV + 32 * kk + 4 * db, 4), vr('v', vP + 8 * (m & 1) + 4 * kk, 4),
                                       '0' if (m < 4 and seg == 0 and i == 0) else None))
                        use.setdefault(('V', m >> 2, kk, db), []).append((n, j))
            g, full = p.g, len(p.mf) == 16
            if 1 <= n <= NS:
                sb, pb = vS + 8 * ((n - 1) & 1), vP + 4 * ((n - 1) & 3)
                lag = 2 if n < 3 else 0
                for k in range(8):
                    g[2 * k if full else min(k + lag, 7)]['va'].append('v_exp_f32 v%d, v%d' % (sb + k, sb + k))
                    if k & 1:
                        g[2 * k + 1 if full else min(k + lag + 1, 7)]['va'].append('v_cvt_pk_bf16_f32 v%d, v%d, v%d' % (pb + k // 2, sb + k - 1, sb + k))
            jobs, pos = [], []
            self.kv_nt = False
            if seg and n < 2:
                jobs, pos = self.tile_dma(1, 'kv1')[4 * n:4 * n + 4], [0, 2, 4, 6]
            if T + 2 < NT and n < NS:
                for jb, (hh, x) in zip(self.tile_dma(T + 2, 'kv%d' % (T + 2)), self.KV_GAPS):
                    if hh == h:
                        jobs.append(jb)
                        pos.append(x)
            free = slots(n)
            if n in chk:
                g[free.pop()]['end'] += chk[n]
            jobs += side.get(n, [])
            pos += free[:len(side.get(n, []))]
            assert pos == sorted(pos)
            if full and h == 4:
                late_v = seg and T == 0
                g[14]['sc'].append(Ins('@need', need=(['kv%d%s' % (T + 1, 'K' if late_v else 'V')] if T + 1 < NT else []) + ['*lg']))
                g[15]['sc'].append('s_barrier')
            if seg and n == 9:
                g[0]['sc'].append(Ins('s_barrier', need=['kv1V']))
            if loop and loop[0] <= n < loop[1] and (n - loop[0]) % 16 == 15:
                g[10]['sc'].append('s_sub_u32 s%d, s%d, 1' % (sCNT, sCNT))
                g[12]['sc'].append('s_cmp_lg_u32 s%d, 0' % sCNT)
            prev, pend = p.jobs(self.flat(jobs), pos)
            p.scalars(pend, prev + 1, 10 if prev < 8 and full else len(g))
            plans.append(p)
        reads, pre, held = [], [], {}
        for (w, T, k, f), u in use.items():
            ins = [self.krd(2 * T + k, f)] if w == 'K' else [self.vrd(2 * T + k, 2 * f + x) for x in range(2)]
            if w == 'K' and 8 * T in inline:
                held.setdefault(8 * T, []).extend(ins)
            elif w == 'K' and T == 0 and k == 0:
                pre += ins
            else:
                reads.append((u[0], use[w, T - 1, k, f][-1] if T else (0, 0), ins))
        reads.sort()
        for first, (n, j), ins in reads:
            for x in ins:
                while True:
                    p = plans[n]
                    g = p.g[j]
                    if len(p.mf) == 16:
                        ok = j & 1 and p.cap(j) > 0
                    else:
                        ok = not g['vm'] and len(g['ds']) < 2
                    if ok:
                        break
                    n, j = (n, j + 1) if j + 1 < len(p.mf) else (n + 1, 0)
                g['ds'].append(x)
                assert (n, j) < first and not ((n & 7) == 4 and j > 8)
        if loop:
            e('s_mov_b32 s%d, %d' % (sCNT, (loop[1] - loop[0]) // 16))
        e('s_barrier', need=['kv0V', '*lg'])
        self.put(pre)
        carry, dead = [], 0
        for n, p in enumerate(plans):
            if n in inline:
                inline[n](held[n])
            inloop = loop and loop[0] <= n < loop[1]
            if self.opt('astamp', 0) and n % 8 == 0 and not (loop and loop[0] <= n <= loop[1]) and n not in inline:
                self.stamp('s%d_%d' % (seg, n))
            if loop and n == loop[0]:
                self.stamp('pre')
            if inloop and (n - loop[0]) % 16 == 0:
                e('@rep %s %d' % (lab, n))
            if loop and n == loop[1]:
                e('@endrep ' + lab)
                self.stamp('loop')
            if n in fill:
                assert not carry
                carry, dead = fill[n]
            carry = p.fill(carry)
            if carry and n + 1 >= dead:
                p.g[-1]['va'] += carry
                carry = []
            if n >= 3 and n & 1:
                m = (n - 3) >> 1
                p.g[7 if len(p.mf) == 16 else 3]['end'].append(self.rowsum((m >> 1) & 1, aONE2 if m & 1 else aONES, vP + 8 * (m & 1)))
            if inloop and (n - loop[0]) % 16 == 15:
                p.g[15]['end'].append('s_cbranch_scc1 ' + lab)
            p.emit(self)
        self.stamp()

    def warm(self, buf, vo, so, offs):
        return [Job('buffer_load_dwordx4 %s, v%d, %s, s%d offen offset:%d' % (vr('a', aDUMMY, 4), vo, srd(buf), so, o)) for o in offs]

    def attention1(self):
        e = self.s
        e('@sec attention 1a')
        U, F, G = vX + 48, vT + 4, vT
        N1, P3 = self.opt('n1', 176), self.opt('p3', 40)
        L0, L1 = P3 + 8, N1 - 48
        f0 = ('v_and_b32 v%d, 3, v%d\nv_min_u32 v%d, 2, v%d\n' % (U, vL, U, U) +
              'v_add3_u32 v%d, v%d, s%d, -1\nv_med3_i32 v%d, v%d, 0, 31\nv_lshlrev_b32 v%d, 3, v%d' % (U, U, sT, U, U, vPOFF, U)).split('\n')
        f1 = ('v_bfe_u32 v%d, v%d, 1, 1\nv_lshl_add_u32 v%d, v%d, 1, -1\n' % (U, vL, U, U) +
              'v_bfe_u32 v%d, v%d, 3, 1\nv_mul_i32_i24 v%d, v%d, v%d\n' % (U + 1, vL, U, U, U + 1) +
              'v_add_u32 v%d, s%d, v%d\nv_max_i32 v%d, 0, v%d\nv_min_i32 v%d, 0x7f, v%d\n' % (U, sTBG, U, U, U, U, U) +
              'v_and_b32 v%d, 7, v%d\nv_lshl_or_b32 v%d, v%d, 3, v%d\n' % (U + 1, vL, U, U, U + 1) +
              'v_lshlrev_b32 v%d, 7, v%d\nv_add_u32 v%d, 0x%x, v%d' % (U, U, F, FLAG_OFF, U)).split('\n')
        f2 = ('v_and_b32 v%d, 15, v%d\nv_lshl_add_u32 v%d, s%d, 4, v%d\nv_and_b32 v%d, 48, v%d' % (U, vL, U, sTBG, U, U + 1, vL)).split('\n')
        for g, dlt in enumerate((-1, 1, -2, 2)):
            f2 += ['v_add_u32 v%d, %d, v%d' % (U + 2, dlt, U), 'v_and_or_b32 v%d, v%d, 15, v%d' % (U + 3, U + 2, U + 1),
                   'v_bfe_u32 v%d, v%d, 4, 8' % (U + 2, U + 2), 'v_lshl_or_b32 v%d, v%d, 10, v%d' % (U + 3, U + 2, U + 3),
                   'v_lshlrev_b32 v%d, 4, v%d' % (U + 3, U + 3), 'v_add_u32 v%d, 0x%x, v%d' % (G + g, 4096 * g, U + 3)]
        f3 = ('v_lshrrev_b32 v%d, 4, v%d\nv_and_b32 v%d, 15, v%d\nv_mul_u32_u24 v%d, 3584, v%d\n' % (vT, vL, vT + 1, vL, vT + 2, vT) +
              'v_lshl_add_u32 v%d, v%d, 4, v%d\nv_lshlrev_b32 v%d, 8, v%d\nv_lshl_or_b32 v%d, v%d, 3, v%d\n' % (vT + 3, vT + 1, vT + 2, vT, vT, vT, vT + 1, vT) +
              'v_lshl_add_u32 v%d, s%d, 10, v%d\nv_add_u32 v%d, 0x%x, v%d\n' % (vT, sTBG, vT, vT + 4, ST_OFF, vT) +
              'v_and_b32 v%d, 7, v%d\nv_lshl_or_b32 v%d, s%d, 3, v%d\n' % (vT, vL, vT, sTBG, vT) +
              'v_lshlrev_b32 v%d, 7, v%d\nv_add_u32 v%d, 0x%x, v%d' % (vT, vT, vPOFF, FLAG_OFF + 131072, vT)).split('\n')
        R, M, O = vT, vT + 1, vT + 2
        f3 += ['v_or_b32 v%d, s%d, v%d' % (M, sW, vL), 'v_cmp_eq_u32 vcc, 0, v%d' % M, 'v_mov_b32 v%d, 0x%x' % (O, OOB), 'v_mov_b32 v%d, 1' % R,
               'v_cndmask_b32 v%d, v%d, 0, vcc' % (M, O)]
        dbg = lambda op, off: Job('%s v%d, v%d, %s, s%d offen offset:%d %ssc1' % (op, R, M, srd(SDBG), sT2, off, 'sc0 ' * ('atomic' in op)),
                                  pre=['s_lshl_b32 s%d, s%d, 3' % (sT2, sJ) if off != 68 else 's_mov_b32 s%d, 0' % sT2])
        CB, SM = sT0, sT1
        slices = ['v_readfirstlane_b32 s%d, v%d' % (sRANK, vPRES), 'v_and_b32 v%d, 64, v%d' % (O, vWN), 's_sub_u32 s%d, s%d, 1' % (sRANK, sRANK),
                  's_and_b32 s%d, s%d, 7' % (sRANK, sRANK),
                  's_lshl_b32 s%d, s%d, 9' % (CB, sRANK), 's_min_u32 s%d, s%d, 0xd00' % (CB, CB),
                  's_add_u32 s%d, s%d, s%d' % (sW3W, sW3W, CB), 's_lshl_b32 s%d, s%d, 9' % (sT2, CB), 'v_add_u32 v%d, s%d, v%d' % (vW2, sT2, vWN),
                  's_cmp_ge_u32 s%d, 6' % sRANK, 's_cselect_b32 s%d, 1, 0' % SM, 's_cselect_b32 s%d, 10, 11' % sW4W, 's_cselect_b32 s%d, 1791, 0' % sSTEP,
                  's_lshl_b32 s%d, s%d, s%d' % (sW4W, sTBG, sW4W), 's_add_u32 s%d, s%d, s%d' % (sW4W, sW4W, sT2),
                  'v_mad_u32_u24 v%d, s%d, v%d, v%d' % (vW3, sSTEP, O, vW3), 's_lshl_b32 s%d, 0x%x, s%d' % (sSTEP, 32 * 3584, SM),
                  's_mul_i32 s%d, s%d, s%d' % (SM, SM, sW), 's_lshl_b32 s%d, s%d, 6' % (SM, SM), 's_sub_u32 s%d, s%d, s%d' % (CB, CB, SM),
                  'v_add_u32 v%d, s%d, v%d' % (vW3, CB, vW3),
                  's_sub_u32 s%d, s%d, s%d' % (sT2, sRANK, sJ), 's_lshl_b32 s%d, s%d, 11' % (sT2, sT2), 's_add_u32 s%d, s%d, s%d' % (sYO, sPO, sT2)]
        A, LR, LB, LT = vX + 56, self.LR, self.LB, vT + 4
        f4 = ['v_accvgpr_read_b32 v%d, a%d' % (A + r, aSTAT + r) for r in range(4)]
        f4 += ['v_add_f32 v%d, v%d, v%d' % (A + 4, A, A + 2)] + self.lanesum(A + 4, A + 5)
        f4 += ['v_mul_f32 v%d, 0x3e000000, v%d' % (A + 4, A + 4), 'v_sub_f32 v%d, v%d, v%d' % (A, A, A + 4), 'v_sub_f32 v%d, v%d, v%d' % (A + 2, A + 2, A + 4),
               'v_mul_f32 v%d, v%d, v%d' % (A, A, A), 'v_fmac_f32 v%d, v%d, v%d' % (A, A + 2, A + 2), 'v_add_f32 v%d, v%d, v%d' % (A + 1, A + 1, A + 3),
               'v_fmac_f32 v%d, 0x42800000, v%d' % (A + 1, A)] + self.lanesum(A + 1, A + 5)
        f4 += ['v_mov_b32 v%d, %s' % (LR, f2u(1e-5)), 'v_fmac_f32 v%d, %s, v%d' % (LR, f2u(1.0 / 512), A + 1), 'v_rsq_f32 v%d, v%d' % (LR, LR),
               'v_sub_f32 v%d, 0, v%d' % (A + 4, A + 4), 'v_mul_f32 v%d, v%d, v%d' % (LB, A + 4, LR)]
        f5, self.ln_done = [], self.opt('ln_fill', 6)
        for k in range(vX, vX + 4 * self.ln_done):
            f5 += ['v_lshlrev_b32 v%d, 16, v%d' % (LT, k), 'v_and_b32 v%d, 0xffff0000, v%d' % (k, k), 'v_fma_f32 v%d, v%d, v%d, v%d' % (LT, LT, LR, LB),
                   'v_fma_f32 v%d, v%d, v%d, v%d' % (k, k, LR, LB), 'v_cvt_pk_bf16_f32 v%d, v%d, v%d' % (k, LT, k)]
        f6 = ['v_lshl_add_u32 v%d, s%d, 14, v%d' % (vT + 3, sW, vACT)] + self.waddr(vTR, vT, 's%d' % sRING)
        f6 += ['v_mov_b32 v%d, v%d' % (vS + 6, LR), 'v_mov_b32 v%d, v%d' % (vS + 4, LB)]
        self.put(f0)

        def sched(spread, chk, fill):
            c0, c1 = 12, P3 - 20
            chk[c0] = self.poll_check(SDBG, 8) + [Ins('v_mov_b32 v%d, v%d' % (vPOFF, F))]
            chk[c1] = self.poll_check(SWS, 1)
            chk[L1 + 4] = self.poll_check(SWS, 1) + ['v_mov_b32 v%d, 132' % vPOFF, 'v_lshl_add_u32 v%d, s%d, 3, v%d' % (vPOFF, sJ, vPOFF)]
            chk[L1 + 7] = ['v_cmp_eq_u32 vcc, %d, v%d' % (self.opt('quant', 15), R), 'v_mov_b32 v%d, 1' % R, 'v_cndmask_b32 v%d, v%d, v%d, vcc' % (M, O, M)]
            chk[L1 + 15] = ['v_add_u32 v%d, 1, v%d' % (R, R)]
            chk[L1 + 28] = self.poll_check(SDBG, 0) + slices
            fill[4], fill[c0], fill[P3] = (f1, c0), (f2, c1 + 1), (f3, P3 + 6)
            fill[L1 + 12], fill[L1 + 23], fill[N1 + 2] = (f4, L1 + 23), (f5, N1 + 2), (f6, N1 + 3)
            spread([self.flag_store(0, ['hst'])], 4, 5)
            spread([self.poll_load(SDBG)], 7, 8)
            spread([self.poll_load(SWS)], c1 - 5, c1 - 4)
            w2 = []
            for k in range(4):
                w2 += self.whalf('w2', k, 2 + k)
            spread(w2, 4, P3 - 19)
            spread([Job('buffer_load_dwordx4 %s, v%d, %s, 0 offen offset:%d sc1' % (vr('v', vX + 4 * k, 4), G + (k >> 2), srd(SH), 1024 * (k & 3)))
                    for k in range(16)], c1 + 1, P3 - 3, 2)
            spread([self.flag_store(1, ['x1st'])], P3 + 4, P3 + 5)
            spread([self.poll_load(SWS), dbg('buffer_atomic_add', 4)], L1, L1 + 1)
            spread([dbg('buffer_atomic_add', 68)], L1 + 8, L1 + 9)
            spread([dbg('buffer_store_dword', 132)], L1 + 16, L1 + 17)
            spread([self.poll_load(SDBG)], L1 + 24, L1 + 25)
            spread([Job('buffer_load_dwordx2 %s, v%d, %s, 0 offen offset:%d sc1' % (vr('a', aSTAT + 2 * k, 2), vT + 4, srd(SWS), 128 * k)) for k in range(2)]
                   + self.gather('v', vX, sX1I, 0, 'sc1' + ' nt' * self.opt('nt1', 0)), L1 + 7, L1 + 29, 2)
            spread(self.warm(SCODE, vACT, sCW, (0,)), L1 + 1, L1 + 2)
            spread(self.warm(SW3, vT + 3, sW3W, (0, 256)) + self.warm(SW4, vACT, sW4W, (0, 1024)), L1 + 31, L1 + 33, 2)
            spread(sum([self.whalf('w3', k, k, None) for k in range(4)], []), N1 - 8, N1)
        self.segment(0, N1, sched, loop=(L0, L1), inline={P3: self.p3})

    def h2a(self, tb, slot):
        return 16384 + (tb & 1) * 8192 + (tb >> 1) * 32768 + slot * 1024

    def mlp(self):
        e = self.s
        P = lambda b: vr('v', b, 2)
        e('@sec LN x1')
        o, wr = [], ['ds_write_b128 v%d, %s offset:%d' % (vT + 3, vr('v', vX + 4 * ks, 4), 1024 * ks) for ks in range(16)]
        for ks in range(self.ln_done, 16):
            t = vP + 8 * (ks & 1)
            for k in range(4):
                o += ['v_lshlrev_b32 v%d, 16, v%d' % (t + 2 * k, vX + 4 * ks + k), 'v_and_b32 v%d, 0xffff0000, v%d' % (t + 2 * k + 1, vX + 4 * ks + k)]
            if ks - self.ln_done < self.ln_done:
                o.append(wr[ks - self.ln_done])
            for k in range(4):
                o.append('v_pk_fma_f32 %s, %s, %s, %s op_sel_hi:[1,0,0]' % (P(t + 2 * k), P(t + 2 * k), P(vS + 6), P(vS + 4)))
            for k in range(4):
                o.append('v_cvt_pk_bf16_f32 v%d, v%d, v%d' % (vX + 4 * ks + k, t + 2 * k, t + 2 * k + 1))
            o.append(wr[ks])
        o += wr[16 - self.ln_done:self.ln_done]
        self.put(o)
        self.touch(1)
        self.stamp()
        e('s_cmp_ge_u32 s%d, 6\ns_cbranch_scc1 L_mlp_small' % sRANK)
        n0, names = self.nstamp, len(self.tail)
        main, self.s = self.s, Stream(known=['w3%d' % k for k in range(4)])
        self.s('L_mlp_small:\ns_waitcnt vmcnt(0) lgkmcnt(0)')
        self.mlp_body(True)
        self.s('s_waitcnt vmcnt(0) lgkmcnt(0)\ns_branch L_mlp_done')
        self.s.insert_waits()
        self.s.pad_hazards()
        self.aside, self.s = self.s, main
        self.nstamp, self.tail[names:] = n0, []
        self.mlp_body(False)
        e('L_mlp_done:')

    def mlp_body(self, small):
        e = self.s
        P = lambda b: vr('v', b, 2)
        e('@sec P5')
        n3 = 8 if small else 16
        sync = lambda: self.s('s_barrier', need=['*lg'])
        piece = lambda h: self.whalf('w3', h, h, small) if h < n3 else self.whalf('w4', h - n3, h, small)
        groups = [(['w3%d' % (k // 2)] if small else ['w3%d' % k, 'w3%d' % (k + 1)], [k, k + 1], [vX + 16 * b for b in range(n3 // 4)], k == 0) for k in range(0, 16, 2)]
        p = self.gemm(0, groups, lambda k, tb: (vACT, (tb * 16 + k) * 1024), [piece(h) for h in range(6, n3 + 6)], piece(4) + piece(5), sync)
        HW, KC = vT, vT + 2
        f = ('v_lshl_add_u32 v%d, s%d, %d, v%d\nv_mov_b32 v%d, %s\n' % (HW, sW, 10 if small else 11, vACT, KC, f2u(-K1)) +
             'v_lshlrev_b32 v%d, 7, v%d\nv_mov_b32 v%d, 0x%x\nv_cmp_gt_u32 vcc, 2, v%d\n' % (vS, vL, vS + 1, OOB, vL) +
             'v_and_b32 v%d, 7, v%d\nv_lshl_add_u32 v%d, v%d, 2, s%d\nv_cndmask_b32 v%d, v%d, v%d, vcc\n' % (vS + 2, vL, vPOFF, vS + 2, sCF, vFLAG, vS + 1, vS) +
             'v_and_b32 v%d, 15, v%d\nv_lshlrev_b32 v%d, 10, v%d\n' % (vS, vL, vS, vS) +
             'v_lshrrev_b32 v%d, 4, v%d\nv_lshl_or_b32 v%d, v%d, 3, v%d' % (vS + 1, vL, vW1, vS + 1, vS)).split('\n')
        assert not p.fill(f)
        p.emit(self)
        self.stamp()
        e('@sec gelu')
        e('s_barrier')
        o, n = [], 0
        for pp in range(n3 // 8):
            for tb in range(4):
                d = vS + 4 * (n % 4)
                for g in range(2):
                    o += self.gelu4(vX + 16 * (2 * pp + g) + 4 * tb, d + 2 * g, vP + 4 * g, KC)
                n += 1
                o.append('ds_write_b128 v%d, %s offset:%d' % (HW, vr('v', d, 4), self.h2a(tb, pp)))
        self.put(o)
        self.stamp()
        e('@sec P7')
        accB, ng = (vS, vP, vX, vX + 32), n3 // 4
        groups = [(['w4%d' % (2 * (ng * ps + k) + i) for i in range(2)], [2 * k, 2 * k + 1], accB if ps else [vX + 16 * b for b in range(4)], k == 0)
                  for ps in range(2) for k in range(ng)]
        p = self.gemm(n3, groups, lambda k, tb: (vACT, self.h2a(tb, k)), [piece(h) for h in range(n3 + 6, 2 * n3)], p.rest, sync, self.tile_dma(0, 'kv0'))
        assert not p.rest
        for pp, (lo, hi) in enumerate(((p.st[ng - 1] + 18, p.st[ng] + 16), (p.st[ng] + 2, p.st[ng] + 24))):
            pk = []
            for tb in range(4):
                a = vX + 32 * pp + 4 * tb
                pk += self.pack(a + 16, a, a + 16)
            p.g[hi - 1]['va'] += p.fill(pk, lo, hi)
        pk = self.vaddr_restore()
        for tb in range(4):
            pk += self.pack(vP + 4 * tb, vS + 4 * tb, vP + 4 * tb)
        rest = p.fill(pk, p.st[-1] + 17)
        p.emit(self)
        self.put(rest)
        for tb in range(4):
            self.put(self.pack(vX + 32 + 4 * tb, vX + 4 * tb, vX + 32 + 4 * tb))
        for r in range(0, 16, 2):
            e('v_pk_mov_b32 %s, %s, %s op_sel:[0,1]' % (P(vX + r), P(vP + r), P(vP + r)))
        self.yfrag = {(0, 0): vX + 16, (0, 1): vX + 48, (1, 0): vX, (1, 1): vX + 32}
        self.stamp()

    def part_flag(self, word, need):
        return Job(Ins('buffer_store_dword v%d, v%d, %s, s%d offen offset:%d sc1' % (vONE, vFLAG, srd(SWS), sFP, 4 * word), need=need))

    def attention2(self):
        e = self.s
        e('@sec attention 2a')
        N2 = 256 - self.opt('n1', 176)
        H, T = self.opt('head2', 32), N2 - self.opt('tail2', 32)

        def sched(spread, chk, fill):
            chk[T + 4] = self.poll_check(SWS, 1)
            spread([self.part_store(self.yfrag[h, pp] + 4 * tb, YP_OFF + 65536 * pp + 16384 * tb + 1024 * h, 'yst', sYO)
                    for h in range(2) for pp in range(2) for tb in range(4)], 4, H - 8, 2)
            spread([self.part_flag(0, ['yst'])], H - 8, H - 7)
            spread(self.warm(SWO, vACT, sWOW, (0, 1024, 2048, 3072)) + self.warm(SCODE, vACT, sCW, (0,)), H - 8, H - 6)
            spread([self.poll_load(SWS)], T, T + 1)
            spread([Job('buffer_load_dwordx2 %s, v%d, %s, s%d offen offset:%d' % (vr('a', aRES + 2 * nb, 2), vW1, srd(SX), sXO, 512 * (nb >> 1) + 32 * (nb & 1)))
                    for nb in range(4)], T, T + 2)
            spread(self.gather('v', vX, sPI, YP_OFF, 'sc1' + ' nt' * self.opt('nt2', 1)), T + 5, N2 - 8, 2)
            wo = []
            for k in range(6):
                wo += self.whalf('wo', self.pair_order(0)[k], k)
            spread(wo, N2 - 11, N2)
        self.segment(1, N2, sched, loop=(H, T) if T >= H + 32 else None)
        self.o_epilogue()

    def o_epilogue(self):
        e = self.s
        e('@sec O epilogue')
        e('L_oepi:')
        for r in range(8):
            e('v_accvgpr_read_b32 v%d, a%d' % (vS + r, aL + r))
        for qb in range(4):
            e('v_add_f32 v%d, v%d, v%d' % (vS + 2 * qb, vS + 2 * qb, vS + 2 * qb + 1))
        B = vS + 8
        for qb in range(4):
            e('v_subrev_u32 v%d, 0x2b800000, v%d' % (B + qb, vS + 2 * qb))
        e('v_max3_u32 v%d, v%d, v%d, v%d\nv_max_u32 v%d, v%d, v%d' % (B, B, B + 1, B + 2, B, B, B + 3))
        e('v_cmp_lt_u32 vcc, 0x28000000, v%d' % B)
        e('v_and_b32 v%d, 3, v%d\nv_lshlrev_b32 v%d, 12, v%d\nv_lshl_add_u32 v%d, s%d, 2, v%d' % (B + 1, vL, B + 1, B + 1, B + 1, sW, B + 1))
        e('s_or_b32 s%d, vcc_lo, vcc_hi' % sT0)
        e('v_mov_b32 v%d, s%d' % (B, sT0))
        e('ds_write_b32 v%d, v%d' % (B + 1, B))
        for qb in range(4):
            e('v_rcp_f32 v%d, v%d' % (vS + 2 * qb, vS + 2 * qb))
        e('v_lshl_add_u32 v%d, s%d, 12, v%d' % (vP, sW, vACT))
        e('s_lshl_b32 s%d, s%d, 12\nv_mov_b32 v%d, s%d' % (sT0, sW, B + 1, sT0))
        e('s_barrier', need=['*lg'])
        e('ds_read_b128 %s, v%d' % (vr('v', B + 4, 4), B + 1))
        for qb in range(4):
            for ks in range(4):
                a = vACC + 32 * ks + 4 * qb
                for h in (0, 2, 16, 18):
                    e('v_pk_mul_f32 %s, %s, %s op_sel_hi:[1,0]' % (vr('v', a + h, 2), vr('v', a + h, 2), vr('v', vS + 2 * qb, 2)))
                self.put(self.pack(a + 16, a, a + 16))
                if qb == 0 and ks < 2:
                    if ks == 0:
                        continue
                    e('v_or3_b32 v%d, v%d, v%d, v%d\nv_or_b32 v%d, v%d, v%d' % (B, B + 4, B + 5, B + 6, B, B, B + 7))
                    e('v_cmp_ne_u32 vcc, 0, v%d\ns_cbranch_vccnz L_slow\nL_ofine:' % B)
                    e('ds_write_b128 v%d, %s' % (vP, vr('v', vACC + 16, 4)))
                e('ds_write_b128 v%d, %s offset:%d' % (vP, vr('v', a + 16, 4), (16 * qb + ks) * 1024))
        self.put(self.waddr(vTR, vT, 's%d' % sRING))
        self.stamp()
        self.slow_path()

    def slow_path(self):
        main, self.s = self.s, Stream()
        e = self.s
        M = vT
        e('L_slow:\ns_cmp_lg_u32 s%d, 0\ns_cbranch_scc1 L_ofine\ns_mov_b32 s%d, 1' % (sPASS, sPASS))
        e('s_waitcnt vmcnt(0) lgkmcnt(0)')
        for ps in range(2):
            e('s_mov_b32 s%d, 0\ns_mov_b32 s%d, 0\ns_mov_b32 s%d, 64' % (sKO, sVO, sCNT))
            if ps == 0:
                for qb in range(4):
                    e('v_mov_b32 v%d, 0xff800000' % (M + qb))
            else:
                for qb in range(4):
                    for op in ('v_permlane32_swap_b32', 'v_permlane16_swap_b32'):
                        e('v_mov_b32 v%d, v%d\n%s v%d, v%d\nv_max_f32 v%d, v%d, v%d' % (vS, M + qb, op, vS, M + qb, M + qb, M + qb, vS))
                e('v_lshrrev_b32 v%d, 4, v%d\nv_xor_b32 v%d, v%d, v%d\nv_bfe_i32 v%d, v%d, 1, 1' % (vS, vL, vS, vS, vL, vS, vS))
                e('v_not_b32 v%d, v%d\nv_and_b32 v%d, 0x3f803f80, v%d' % (vS, vS, vS, vS))
                for r in range(4):
                    e('v_accvgpr_write_b32 a%d, v%d' % (aONES + r, vS))
                for r in range(128):
                    e('v_mov_b32 v%d, 0' % (vACC + r))
                for r in range(8):
                    e('v_accvgpr_write_b32 a%d, 0' % (aL + r))
            e('L_slow%d:\ns_barrier' % ps)
            self.emit_jobs(self.kv_dma('K', 0, 'k') + (self.kv_dma('V', 0, 'k') if ps else []))
            e('s_barrier', need=['k'])
            self.put([self.krd(0, f) for f in range(8)] + ([self.vrd(0, h) for h in range(16)] if ps else []))
            e('s_waitcnt lgkmcnt(0)')
            for qb in range(4):
                for kb in range(2):
                    for ks in range(4):
                        e(mfma(vr('v', vS + 4 * kb, 4), vr('a', aK + 16 * kb + 4 * ks, 4), vr('a', aQ + 16 * qb + 4 * ks, 4), '0' if ks == 0 else None))
                if ps == 0:
                    for r in range(0, 8, 2):
                        e('v_max3_f32 v%d, v%d, v%d, v%d' % (M + qb, M + qb, vS + r, vS + r + 1))
                    continue
                for r in range(8):
                    e('v_sub_f32 v%d, v%d, v%d' % (vS + r, vS + r, M + qb))
                for r in range(8):
                    e('v_exp_f32 v%d, v%d' % (vS + r, vS + r))
                for r in range(4):
                    e('v_cvt_pk_bf16_f32 v%d, v%d, v%d' % (vP + 4 * qb + r, vS + 2 * r, vS + 2 * r + 1))
                for db in range(8):
                    e(mfma(vr('v', vACC + 16 * db + 4 * qb, 4), vr('a', aV + 4 * db, 4), vr('v', vP + 4 * qb, 4)))
                if qb & 1:
                    e(self.rowsum(qb >> 1, aONES, vP + 4 * (qb - 1)))
            e('s_nop 7\ns_sub_u32 s%d, s%d, 1\ns_cmp_lg_u32 s%d, 0\ns_cbranch_scc1 L_slow%d' % (sCNT, sCNT, sCNT, ps))
        e('s_barrier\ns_branch L_oepi')
        e.insert_waits()
        e.pad_hazards()
        self.tail.append(e.text())
        self.s = main

    SEL = vT

    def reduce(self, acc, f, regs, ks, first=False):
        return [mfma(vr('v', acc + 4 * (2 * (k & 1) + g), 4), vr('v', self.SEL + 2 - 2 * g, 4), vr(f, regs + 4 * k, 4), '0' if (first and k < 2) else None)
                for k in ks for g in range(2)]

    def collect(self, acc, regs, base):
        e, L = self.s, 'L_c'
        NEW, N = sT0, sT1
        e('s_mov_b32 s%d, 0x80000' % sT3)
        if self.opt('pollfirst', 0):
            e('s_waitcnt vmcnt(1)\ns_branch %s_got' % L)
        e('%s_wait:\ns_waitcnt vmcnt(0)\nL_c_got:\nv_cmp_eq_u32 vcc, 1, v%d\ns_and_b32 s%d, vcc_lo, 0xff' % (L, vPRES, NEW))
        e('s_andn2_b32 s%d, s%d, s%d\ns_cbranch_scc0 %s_poll' % (NEW, NEW, sDONE, L))
        e('s_or_b32 s%d, s%d, s%d\ns_bcnt1_i32_b32 s%d, s%d' % (sDONE, sDONE, NEW, N, NEW))
        for n in range(1, 7):
            e('s_cmp_eq_u32 s%d, %d\ns_cbranch_scc1 %s_ld%d' % (N, n, L, 7 - n))
        for q in range(7):
            e('%s_ld%d:\ns_ff1_i32_b32 s%d, s%d\ns_bitset0_b32 s%d, s%d' % (L, q, sT2, NEW, NEW, sT2))
            e('s_lshl_b32 s%d, s%d, 11\ns_add_u32 s%d, s%d, s%d' % (sT2, sT2, sT2, sT2, base))
            for p in range(2):
                e('buffer_load_dwordx4 %s, v%d, %s, s%d offen offset:%d sc1' % (vr('a', regs + 8 * q + 4 * p, 4), vACT, srd(SWS), sT2, 1024 * p))
        e.add(self.poll_load(SWS).ins)
        for n in range(1, 7):
            e('s_cmp_eq_u32 s%d, %d\ns_cbranch_scc1 %s_mm%d' % (N, n, L, 7 - n))
        for q in range(7):
            e('%s_mm%d:' % (L, q))
            self.put(self.reduce(acc, 'a', regs, (2 * q, 2 * q + 1)))
        e('s_cmp_lg_u32 s%d, 0xff\ns_cbranch_scc1 %s_wait\n%s_end:' % (sDONE, L, L))
        self.tail.append('%s_poll:\n    %s\n    s_sub_u32 s%d, s%d, 1\n    s_cbranch_scc0 %s_wait\n    s_branch %s_end' % (L, self.poll_load(SWS).ins.text, sT3, sT3, L, L))

    def p6_final(self):
        e = self.s
        P = lambda b: vr('v', b, 2)
        e('@sec P6')
        NE = self.opt('p6_early', 3)
        od = self.pair_order(NE)
        p = self.gemm(0, self.pair_groups('wo', od), lambda k, tb: (vACT, (tb * 16 + k) * 1024), [self.whalf('wo', od[h], h) for h in range(6, 32)],
                      sync=lambda: self.s('s_barrier', need=['*lg']))
        pk, st = [[], []], [[], []]
        for h in range(2):
            for pp in range(2):
                for tb in range(4):
                    a = vACC + 64 * h + 32 * pp + 4 * tb
                    pk[h].append(self.pack(a + 16, a, a + 16))
                    st[h].append(self.part_store(a + 16, SP_OFF + 65536 * pp + 16384 * tb + 1024 * h, 'sst', vo=vDB + pp))
        if NE:
            pos = list(range(p.dma_end + self.opt('a_start', 32), 512, self.opt('a_step', 4)))[:8]
            for k, q in enumerate(pos):
                p.jobs(self.flat([st[0][k]]), [q], lo=q - 2)
            for k, q in enumerate(pos):
                assert not p.fill(pk[0][k], 32 * (16 - NE) + 2, q)
            pk[0], st[0] = pk[0][len(pos):], st[0][len(pos):]
        SEL, ZZ, XF, SS, E = self.SEL, vS, vP, vACC, vACC + 32
        t = vKA
        f = ('v_lshrrev_b32 v%d, 4, v%d\nv_bfe_u32 v%d, v%d, 2, 2\nv_and_b32 v%d, 1, v%d\nv_lshlrev_b32 v%d, 4, v%d\n' % (t + 1, vL, t, vL, t + 2, vL, t + 2, t + 2) +
             'v_mov_b32 v%d, 0x3f80\nv_lshlrev_b32 v%d, v%d, v%d\n' % (t + 3, t + 2, t + 2, t + 3) +
             'v_cmp_eq_u32 vcc, v%d, v%d\nv_mov_b32 v%d, 0\nv_mov_b32 v%d, 0\n' % (t, t + 1, SEL, SEL + 1) +
             'v_cndmask_b32 v%d, 0, v%d, vcc\nv_and_b32 v%d, 2, v%d\nv_cmp_eq_u32 vcc, 0, v%d\n' % (t + 2, t + 2, t, vL, t) +
             'v_mov_b32 v%d, 0\nv_mov_b32 v%d, 0\nv_cndmask_b32 v%d, 0, v%d, vcc\n' % (SEL + 4, SEL + 5, SEL + 2, t + 2) +
             'v_sub_u32 v%d, v%d, v%d\n' % (SEL + 3, t + 2, SEL + 2) +
             'v_lshl_add_u32 v%d, v%d, 3, v%d' % (vW2, t + 1, vW1)).split('\n')
        p.scalars(['s_lshl_b32 s%d, s%d, 1' % (sVO, sW), 's_sub_u32 s%d, s%d, s%d' % (sVO, sJ, sVO), 's_lshr_b32 s%d, s%d, 1' % (sCNT, sJ),
                   's_mul_i32 s%d, s%d, %d' % (sCNT, sCNT, WWAVE), 's_add_u32 s%d, s%d, s%d' % (sCNT, sCNT, sW2K), 's_add_u32 s%d, s%d, %d' % (sCNT, sCNT, WREG)], 0, 16)
        f += ['v_mov_b32 v%d, 0x%x' % (t, OOB), 'v_mov_b32 v%d, s%d' % (t + 1, sVO), 'v_cmp_eq_u32 vcc, 0, v%d' % (t + 1),
              'v_add_u32 v%d, s%d, v%d' % (vDB + 2, sRING, vACT), 'v_add_u32 v%d, s%d, v%d' % (vDB + 3, sCNT, vACT),
              'v_cndmask_b32 v%d, v%d, v%d, vcc' % (vDB, vACT, t), 'v_cmp_eq_u32 vcc, 1, v%d' % (t + 1),
              'v_add_u32 v%d, 32, v%d' % (vPOFF, vPOFF), 'v_cndmask_b32 v%d, v%d, v%d, vcc' % (vDB + 1, vACT, t)]
        assert not p.fill(f, 0, 48)
        red = self.reduce(XF, 'a', aRES, (0, 1), True) + self.reduce(ZZ, 'a', aX1, (0, 1), True) + self.reduce(ZZ, 'v', vX, range(16))
        gate = ['s_mov_b32 s%d, %s' % (sC0 + k, f2u(-math.log2(math.e))) for k in range(2)]
        gate += ['v_pk_mul_f32 %s, %s, s[%d:%d]' % (P(E + r), P(ZZ + r), sC0, sC0 + 1) for r in range(0, 16, 2)]
        gate += ['v_exp_f32 v%d, v%d' % (E + r, E + r) for r in range(16)]
        gate += ['v_pk_add_f32 %s, %s, 1.0 op_sel_hi:[1,0]' % (P(E + r), P(E + r)) for r in range(0, 16, 2)]
        gate += ['v_rcp_f32 v%d, v%d' % (E + r, E + r) for r in range(16)]
        gate += ['v_pk_mul_f32 %s, %s, %s' % (P(ZZ + r), P(ZZ + r), P(E + r)) for r in range(0, 16, 2)]
        p.scalars(['s_lshl_b32 s%d, 1, s%d' % (sDONE, sJ), 's_add_u32 s%d, s%d, 0x%x' % (sKO, sPI, SP_OFF)], 16, 24)
        if self.opt('p6stamp', 0):
            for q in (127, 255, 383, p.dma_end - 2, 479):
                p.g[q]['end'] += self.stamp_items('q%d' % q)
        p.emit(self)
        self.stamp('P6')
        e('@sec s epilogue')
        self.sprinkle(sum(pk[0] + pk[1], []), st[0] + st[1], start=4, every=4)
        self.stamp('issued')
        for pp in range(2):
            e('s_cmp_lg_u32 s%d, %d\ns_cbranch_scc1 L_other%d' % (sVO, pp, pp))
            for h in range(2):
                for tb in range(4):
                    e('ds_write_b128 v%d, %s offset:%d' % (vDB + 2, vr('v', vACC + 64 * h + 32 * pp + 16 + 4 * tb, 4), 2048 * tb + 1024 * h))
            e('L_other%d:' % pp)
        e('s_waitcnt lgkmcnt(0)\ns_barrier')
        for h in range(2):
            e('ds_read_b128 %s, v%d offset:%d' % (vr('a', 4 * h, 4), vDB + 3, 1024 * h))
        self.put(red + self.reduce(SS, 'a', 0, (0, 1), True))
        gb = self.opt('gate_before', 0)
        pf = self.opt('pollfirst', 0)
        self.emit_jobs([self.poll_load(SWS)] * pf)
        self.put(gate[:gb])
        self.emit_jobs([self.part_flag(8, ['sst'])] + [self.poll_load(SWS)] * (1 - pf))
        self.stamp('acked')
        self.put(gate[gb:])
        self.collect(SS, 64, sKO)
        self.stamp('collected')
        for nb in range(4):
            for r in range(4 * nb, 4 * nb + 4, 2):
                e('v_pk_fma_f32 %s, %s, %s, %s' % (P(XF + r), P(SS + r), P(ZZ + r), P(XF + r)))
            for k in range(2 * nb, 2 * nb + 2):
                e('v_cvt_pk_bf16_f32 v%d, v%d, v%d' % (E + k, XF + 2 * k, XF + 2 * k + 1))
            om = self.opt('outmode', 2)
            if om < 2:
                e('buffer_store_dwordx2 %s, v%d, %s, s%d offen offset:%d%s' % (P(E + 2 * nb), vW1, srd(SOUT), sXO, 512 * (nb >> 1) + 32 * (nb & 1), ' sc1' * om))
            elif nb & 1:
                t = E + 2 * nb - 2
                for op in ('v_permlane32_swap_b32', 'v_permlane16_swap_b32'):
                    e('%s v%d, v%d\n%s v%d, v%d' % (op, t, t + 2, op, t + 1, t + 3))
                e('buffer_store_dwordx4 %s, v%d, %s, s%d offen offset:%d sc1' % (vr('v', t, 4), vW2, srd(SOUT), sXO, 512 * (nb >> 1)))
        if 'diag' in self.o:
            self.stamp('end')
            if self.o['diag'].startswith('xcc'):
                e('v_mov_b32 v%d, 4\nbuffer_load_dword v%d, v%d, %s, 0 offen sc1\ns_waitcnt vmcnt(0)' % (vT, vT + 1, vT, srd(SDBG)))
                e('v_readfirstlane_b32 s100, v%d\ns_nop 3\ns_bcnt1_i32_b32 s100, s100\ns_mul_i32 s100, s100, 1000\ns_mov_b32 s98, 1000' % (vT + 1))
            e('s_sub_u32 s100, s100, s98\ns_mul_i32 s100, s100, %s\ns_min_u32 s100, s100, 100000' % self.o['diag'].split(':')[2])
            e('s_memrealtime s[98:99]\ns_waitcnt lgkmcnt(0)\ns_add_u32 s100, s100, s98')
            e('L_diag:\ns_memrealtime s[98:99]\ns_waitcnt lgkmcnt(0)\ns_sub_u32 s98, s98, s100\ns_cmp_lt_i32 s98, 0\ns_cbranch_scc1 L_diag')
        if self.prof:
            e('s_waitcnt vmcnt(0)')
            self.stamp('end')
            e('v_accvgpr_read_b32 v%d, a%d\nv_accvgpr_read_b32 v%d, a%d' % (vT, aPROF, vT + 1, aPROF + 1))
            e('s_lshl_b32 s%d, s2, 11\ns_lshl_b32 s%d, s%d, 9\ns_add_u32 s%d, s%d, s%d' % (sT0, sT1, sW, sT0, sT0, sT1))
            e('s_add_u32 s%d, s%d, 0x%x\nv_lshlrev_b32 v%d, 3, v%d' % (sT0, sT0, PROF_OFF, vT + 2, vL))
            e('buffer_store_dwordx2 %s, v%d, %s, s%d offen' % (vr('v', vT, 2), vT + 2, srd(SWS), sT0))

    def build(self, verbose=False):
        for phase in (self.prologue, self.p0, self.p2, self.q_p1, self.attention1, self.mlp, self.attention2, self.p6_final):
            phase()
        s = self.s
        s.insert_waits()
        pads = s.pad_hazards()
        est = s.estimate()
        s.fold()
        s.l += [Ins('L_end:'), Ins('s_endpgm'), Ins('@mark main_end')] + self.aside.l
        fixes = s.align(self.opt('touch', 1))
        if self.opt('touch', 1):
            n, cut = s.marks['main_end'] + 1, self.opt('touch_cut', 15)
            assert s.marks['touch1'] < cut + 1 or cut >= n
            for r, (lo, hi) in enumerate(((0, min(cut, n)), (min(cut, n), n))):
                for k in range(lo, hi):
                    s.pages[k].text = 's_cbranch_execz ' + ('L_pg%d' % (k + 4) if k + 4 < hi else 'L_touched%d' % r)
                for x in s.l:
                    for w in range(4):
                        if x.text.endswith(' L_touch%d_%d' % (r, w)):
                            x.text = x.text.replace('L_touch%d_%d' % (r, w), 'L_pg%d' % (lo + w) if lo + w < hi else 'L_touched%d' % r)
        if verbose:
            print('alignment fixes:', fixes, 'pages:', len(s.pages), s.marks)
        if verbose:
            print('hazard pads:', pads)
            for name, cyc, nm in est:
                print('  %-18s est %6d cycles, %5d mfma (%6d)' % (name, cyc, nm, nm * 16))
            print('  total', sum(c for _, c, _ in est))
        ref = open('cdna_kernels/%s.s.ref' % NAME).read().split('\n')
        head = [l for l in ref if l.startswith(';') and '@launch' not in l]
        o = head + ['; @launch grid=(256,1,1) block=(256,1,1) lds=163840',
                    '.amdgcn_target "amdgcn-amd-amdhsa--gfx950"', '.text', '.globl %s_kernel' % NAME, '.p2align 8',
                    '.type %s_kernel,@function' % NAME, '%s_kernel:' % NAME]
        o.append(s.text())
        o += self.tail
        o.append('L_code_end:\n    s_endpgm')
        o.append('''.section .rodata,"a"
.p2align 6
.amdhsa_kernel %s_kernel
  .amdhsa_next_free_vgpr 512
  .amdhsa_next_free_sgpr 102
  .amdhsa_accum_offset 256
  .amdhsa_group_segment_fixed_size 0
  .amdhsa_kernarg_size 104
  .amdhsa_user_sgpr_count 2
  .amdhsa_user_sgpr_kernarg_segment_ptr 1
  .amdhsa_system_sgpr_workgroup_id_x 1
  .amdhsa_float_denorm_mode_32 3
.end_amdhsa_kernel''' % NAME)
        return '\n'.join(o) + '\n'


if __name__ == '__main__':
    out = sys.argv[1] if len(sys.argv) > 1 else 'k.s'
    opts = dict(a.split('=') for a in sys.argv[2:])
    SP_OFF, YP_OFF = int(opts.get('sp', hex(SP_OFF)), 0), int(opts.get('yp', hex(YP_OFF)), 0)
    open(out, 'w').write(Gen(False, opts).build(True))
    open(out.replace('.s', '_prof.s'), 'w').write(Gen(True, opts).build())
    open(out.replace('.s', '_lite.s'), 'w').write(Gen(2, opts).build())
```

```python
import math
import struct
import sys

sys.path.insert(0, 'work')
from asmgen import Ins, Stream, vr

NAME = 'recurrent_scan__gqa_block_cached__mixer_s_mlp__prompt'


def f2u(x):
    return '0x%08x' % struct.unpack('<I', struct.pack('<f', x))[0]


H_OFF = 0
X1_OFF = 0x200000
FLAG_OFF = 0x400000
ST_OFF = 0x600000
SP_OFF = 0x1000000
YP_OFF = 0x2000000
PROF_OFF = 0x8000000
OOB = 0x40000000

KRING, VRING = 0, 32768
WREG = 65536
WWAVE = 24576

SX, SK, SV, SWQ, SWO, SW1, SW2, SW3, SW4, SOUT, SDBG, SWS, SH, SCODE = range(4, 60, 4)
sT, sJ, sW, sTBG, sRING, sW2K = 60, 61, 62, 63, 64, 65
sO, sDONE, sKO, sVO, sCNT, sRET = 66, 67, 68, 69, 70, 71
sT0, sT1, sT2, sT3 = 72, 73, 74, 75
sC0 = 76
sPASS, sWSH = 78, 79
sST = 80
sHO, sX1O, sX1I, sSTO, sPO, sPI, sCF, sFP, sXO, sCW, sW3W, sW4W, sWOW, sSTEP = range(84, 98)
sRANK, sYO = sHO, sX1O

vL = 0
vTR = 1
vKA = 9
vACT = 13
vWN, vW3, vW2, vW1 = 14, 15, 16, 17
vDB = 18
vFLAG, vONE, vPOFF, vPRES = 22, 23, 24, 25
vT = 26
vIDX = 31
vS, vP = 32, 48
vX = 64
vACC = 128
aK, aV, aONES, aL, aX1, aQ = 0, 64, 128, 132, 140, 192
aPROF, aDUMMY, aSTAT, aRES, aONE2 = 150, 152, 156, 160, 168

CSCALE = math.log2(math.e) / math.sqrt(128.0)
K1 = 2 * 0.7978845608028654 * math.log2(math.e)
K2 = K1 * 0.044715


def srd(n):
    return 's[%d:%d]' % (n, n + 3)


def mfma(d, a, b, c=None):
    return 'v_mfma_f32_16x16x32_bf16 %s, %s, %s, %s' % (d, a, b, d if c is None else c)


class Job:
    def __init__(self, ins, pre=(), m0=None, post=()):
        self.ins = ins if isinstance(ins, Ins) else Ins(ins)
        self.pre, self.m0, self.post = list(pre), m0, list(post)


class Plan:
    def __init__(self):
        self.mf, self.g = [], []

    def add(self, m):
        self.mf.append(m)
        self.g.append(dict(sc=[], ds=[], vm=[], va=[], end=[]))
        return len(self.mf) - 1

    def cap(self, j):
        g = self.g[j]
        if g['vm'] or g['end']:
            return 0
        c = 1 if self.mf[j].startswith('v_smfmac') else 2
        return c - len(g['ds']) - sum(vcost(x) for x in g['va']) - max(0, len(g['sc']) - 1)

    def jobs(self, groups, pos, lo=0, avoid=()):
        prev, pend = lo - 1, []
        for (pre, d, post), p in zip(groups, pos):
            self.scalars(pend + pre, prev + 1, p, avoid, late=True)
            assert not self.g[p]['vm'], 'gap %d already holds a memory instruction' % p
            self.g[p]['vm'].append(d)
            prev, pend = p, post
        return prev, pend

    def scalars(self, sc, a, b, avoid=(), late=False):
        if not sc:
            return
        c = [j for j in range(a, b) if not self.g[j]['vm'] and not self.g[j]['sc'] and j not in avoid]
        if len(c) < len(sc):
            c = [j for j in range(a, b) if not self.g[j]['vm']]
        if not c:
            self.g[b]['sc'] += sc
            return
        c = c[-len(sc):] if late else c[:len(sc)]
        for k, x in enumerate(sc):
            self.g[c[min(k, len(c) - 1)]]['sc'].append(x)

    def fill(self, va, start=0, end=None):
        va, j = list(va), start
        end = len(self.mf) if end is None else end
        while va and j < end:
            if self.cap(j) >= vcost(va[0]):
                self.g[j]['va'].append(va.pop(0))
            else:
                j += 1
        return va

    def empty(self, start, n, step=1):
        res, j = [], start
        while len(res) < n:
            if not any(self.g[j][k] for k in ('sc', 'ds', 'vm', 'va', 'end')):
                res.append(j)
                j += step
            else:
                j += 1
        return res

    def emit(self, gen):
        for m, g in zip(self.mf, self.g):
            gen.put([m] + g['sc'] + g['vm'] + g['ds'] + g['va'] + g['end'])


def vcost(x):
    t = x.text if isinstance(x, Ins) else x
    return 2 if t.startswith(('v_exp', 'v_rcp', 'v_rsq', 'v_permlane')) else 1


class Gen:
    def __init__(self, prof=False, opts=None):
        self.s = Stream()
        self.tail = []
        self.prof = prof
        self.o = opts or {}
        self.nstamp = 0
        self.nlab = 0
        self.kv_nt = False

    def stamp(self, name=None):
        if 'diag' in self.o:
            a, b, k = self.o['diag'].split(':')
            sec = name or [x.op[5:] for x in self.s.l if x.kind == 'meta' and x.op.startswith('@sec ')][-1]
            for r, want in ((98, a), (100, b)):
                if sec.replace(' ', '_') == want:
                    self.s('s_waitcnt lgkmcnt(0) ; stamp\ns_memrealtime s[%d:%d]\ns_waitcnt lgkmcnt(0) ; stamp' % (r, r + 1))
            return
        if not self.prof or (self.prof == 2 and name not in ('kernarg', 'end', 'P0 end', 'P2 end', 'pre', 'loop')):
            return
        e = self.s
        self.tail.append('; @@' + (name or [x.op[5:] for x in e.l if x.kind == 'meta' and x.op.startswith('@sec ')][-1]))
        e('s_waitcnt lgkmcnt(0) ; stamp')
        e('s_memtime s[%d:%d]\ns_memrealtime s[%d:%d]\ns_waitcnt lgkmcnt(0) ; stamp' % (sST, sST + 1, sST + 2, sST + 3))
        for k in range(2):
            e('v_accvgpr_read_b32 v%d, a%d' % (vONE, aPROF + k))
            e('s_nop 1\nv_writelane_b32 v%d, s%d, %d' % (vONE, sST + 2 * k, self.nstamp))
            e('v_accvgpr_write_b32 a%d, v%d' % (aPROF + k, vONE))
        e('v_mov_b32 v%d, 1' % vONE)
        self.nstamp += 1

    def stamp_items(self, name):
        main, self.s = self.s, Stream()
        self.s('@sec ' + name)
        self.stamp(name)
        items, self.s = self.s.l[1:], main
        return items

    def poll_load(self, buf):
        return Job('buffer_load_dword v%d, v%d, %s, 0 offen sc1' % (vPRES, vPOFF, srd(buf)))

    def poll_check(self, buf, val):
        self.nlab += 1
        n = self.nlab
        cmp = 'v_cmp_ne_u32' if val == 1 else 'v_cmp_gt_u32' if val else 'v_cmp_eq_u32'
        self.tail.append('''L_spin%(n)d:
    s_mov_b32 s%(c)d, 0x80000
L_spin%(n)d_loop:
    buffer_load_dword v%(r)d, v%(o)d, %(b)s, 0 offen sc1
    s_waitcnt vmcnt(0)
    %(cmp)s vcc, %(v)d, v%(r)d
    s_cbranch_vccz L_back%(n)d
    s_sub_u32 s%(c)d, s%(c)d, 1
    s_cbranch_scc0 L_spin%(n)d_loop
    s_branch L_back%(n)d''' % dict(n=n, c=sT3, r=vPRES, o=vPOFF, b=srd(buf), v=val, cmp=cmp))
        return [Ins('%s vcc, %d, v%d' % (cmp, val, vPRES)), Ins('s_cbranch_vccnz L_spin%d' % n), Ins('L_back%d:' % n)]

    def flag_store(self, phase, need):
        return Job(Ins('buffer_store_dword v%d, v%d, %s, s%d offen sc1' % (vONE, vFLAG, srd(SWS), sT2), need=need),
                   pre=['s_mov_b32 s%d, 0x%x' % (sT2, FLAG_OFF + phase * 131072)])

    def opt(self, k, d):
        return int(self.o.get(k, d))

    def touch(self, r):
        if not self.opt('touch', 1):
            return
        e = self.s
        e('@mark touch%d\ns_mov_b64 exec, 0' % r)
        for w in range(3):
            e('s_cmp_eq_u32 s%d, %d\ns_cbranch_scc1 L_touch%d_%d' % (sW, w, r, w))
        e('s_branch L_touch%d_3\nL_touched%d:\ns_mov_b64 exec, -1' % (r, r))

    def put(self, items):
        for x in items:
            self.s.add(x if isinstance(x, Ins) else Ins(x))

    def flat(self, jobs):
        res, m0 = [], None
        for jb in jobs:
            pre = list(jb.pre)
            if jb.m0 and jb.m0 != m0:
                pre.insert(0, jb.m0)
                m0 = jb.m0
            res.append((pre, jb.ins, list(jb.post)))
        return res

    def emit_jobs(self, jobs):
        for pre, d, post in self.flat(jobs):
            self.put(pre + [d] + post)

    def sprinkle(self, main, jobs, start=0, every=8):
        groups = self.flat(jobs)
        for k, x in enumerate(main):
            if groups and k >= start and (k - start) % every == 0:
                pre, d, post = groups.pop(0)
                self.put(pre + [d] + post)
            self.put([x])
        for pre, d, post in groups:
            self.put(pre + [d] + post)

    def whalf(self, name, k, h, small=False):
        buf, vo, stride, nat, off = {
            'wq': (SWQ, vDB, 8192, True, (k >> 1) * 32 * 8192 + (k & 1) * 128),
            'w1': (SW1, vW1, 1024, True, k * 32768),
            'w2': (SW2, vW2, 1024, False, k * 32768),
            'w3': (SW3, vW3, 3584, False, k * (64 if small else 32) * 3584),
            'w4': (SW4, vW2, 1024, False, (k % (4 if small else 8)) * 32768 + (k // (4 if small else 8)) * 512),
            'wo': (SWO, vWN, 1024, False, (k >> 1) * 32768 + (k & 1) * 512)}[name]
        rows = [16 * (a & 1) + 4 * (a >> 1) if nat else 8 * a for a in range(4)]
        return [Job(Ins('buffer_load_dwordx4 v%d, %s, s%d offen offset:%d %slds' % (vo, srd(buf), sO, 1024 * a, 'nt ' if name in self.o.get('wnt', 'none').split(',') else ''), tag='%s%d' % (name, k)),
                    pre=['s_mov_b32 s%d, 0x%x' % (sO, off + rows[a] * stride - 1024 * a)] if small is not None else
                    ['s_mul_i32 s%d, s%d, %d' % (sO, sSTEP, k) if a == 0 else 's_add_u32 s%d, s%d, 0x%x' % (sO, sO, 8 * stride - 1024)],
                    m0='s_add_u32 m0, s%d, 0x%x' % (sRING, (h % 6) * 4096)) for a in range(4)]

    def waddr(self, dst, t, base):
        return ['v_lshrrev_b32 v%d, 2, v%d' % (dst, vL), 'v_bfe_u32 v%d, v%d, 3, 2' % (t, vL), 'v_lshlrev_b32 v%d, 5, v%d' % (t, t),
                'v_lshl_or_b32 v%d, v%d, 7, v%d' % (dst, dst, t), 'v_and_b32 v%d, 3, v%d' % (t, vL), 'v_lshl_or_b32 v%d, v%d, 3, v%d' % (dst, t, dst),
                'v_add_u32 v%d, %s, v%d' % (dst, base, dst)] + ['v_xor_b32 v%d, 0x%x, v%d' % (dst + b, b << 5, dst) for b in range(1, 4)]

    def vaddr_restore(self):
        return ['v_xor_b32 v%d, 0x80, v%d' % (vTR + db, vTR + 4 + db) for db in range(4)]

    def lanesum(self, r, t):
        o = []
        for op in ('v_permlane32_swap_b32', 'v_permlane16_swap_b32'):
            o += ['v_mov_b32 v%d, v%d' % (t, r), '%s v%d, v%d' % (op, t, r), 'v_add_f32 v%d, v%d, v%d' % (r, r, t)]
        return o

    def gelu4(self, src, dst, tmp, k1, scale=None):
        o = []
        e = o.append
        P = lambda b: vr('v', b, 2)
        if scale is not None:
            for h in (0, 2):
                e('v_pk_mul_f32 %s, %s, %s op_sel_hi:[1,0]' % (P(src + h), P(src + h), P(scale)))
        for h in (0, 2):
            e('v_pk_mul_f32 %s, %s, %s' % (P(tmp + h), P(src + h), P(src + h)))
        for h in (0, 2):
            e('v_pk_fma_f32 %s, %s, s[%d:%d], %s op_sel_hi:[1,1,0]' % (P(tmp + h), P(tmp + h), sC0, sC0 + 1, P(k1)))
        for h in (0, 2):
            e('v_pk_mul_f32 %s, %s, %s' % (P(tmp + h), P(tmp + h), P(src + h)))
        for r in range(4):
            e('v_exp_f32 v%d, v%d' % (tmp + r, tmp + r))
        for h in (0, 2):
            e('v_pk_add_f32 %s, %s, 1.0 op_sel_hi:[1,0]' % (P(tmp + h), P(tmp + h)))
        for r in range(4):
            e('v_rcp_f32 v%d, v%d' % (tmp + r, tmp + r))
        for h in (0, 2):
            e('v_pk_mul_f32 %s, %s, %s' % (P(tmp + h), P(tmp + h), P(src + h)))
        for h in (0, 2):
            e('v_cvt_pk_bf16_f32 v%d, v%d, v%d' % (dst + h // 2, tmp + h, tmp + h + 1))
        return o

    def pack(self, d, a0, a1):
        return ['v_cvt_pk_bf16_f32 v%d, v%d, v%d' % (d + 3, a1 + 2, a1 + 3), 'v_cvt_pk_bf16_f32 v%d, v%d, v%d' % (d + 2, a1, a1 + 1),
                'v_cvt_pk_bf16_f32 v%d, v%d, v%d' % (d, a0, a0 + 1), 'v_cvt_pk_bf16_f32 v%d, v%d, v%d' % (d + 1, a0 + 2, a0 + 3)]

    def g16(self, accf, acc, ring, ad, fill=()):
        def kn(n):
            return (n & 15, n >> 4) if self.opt('chain16', 1) else (n >> 2, n & 3)

        def rd(n):
            ks, nb = kn(n)
            off = ((ks >> 2) & 1) * WWAVE + (ks & 3) * 4096
            return ['ds_read_b64_tr_b16 %s, v%d offset:%d' % (vr('a', ring + 4 * (n % 8) + 2 * g, 2), ad + nb, off + 2048 * g) for g in range(2)]
        AH = 6
        for n in range(AH):
            self.put(rd(n))
        p = Plan()
        for n in range(64):
            ks, nb = kn(n)
            p.add(mfma(vr(accf, acc + 4 * nb, 4), vr('a', ring + 4 * (n % 8), 4), vr('v', vX + 4 * ks, 4), '0' if ks == 0 else None))
            if n + AH < 64:
                p.g[n]['ds'] += rd(n + AH)
                if kn(n + AH)[0] == 7:
                    a = ad + kn(n + AH)[1]
                    p.g[n]['va'].append('v_add_u32 v%d, 0x%x, v%d' % (a, 2 * WWAVE, a))
            p.g[n]['va'] += fill[n:n + 1]
        p.emit(self)

    def gemm(self, h0, groups, actf, later, first_jobs=(), sync=None, last_jobs=(), WF=0, AF=32, held=None):
        LEAD, held = 9, held or {}
        p, par, h, blk, owner = Plan(), [], h0, [], []
        p.st = []
        for G, (tags, ak, acc, first) in enumerate(groups):
            par.append(par[-1] ^ (ak != groups[G - 1][1]) if G else 0)
            p.st.append(len(p.mf))
            c, flip = len(ak), 0
            for b in range(len(acc)):
                n = len(blk)
                blk.append(len(p.mf))
                for tb in (range(3, -1, -1) if b & 1 else range(4)):
                    for i, kk in enumerate(range(c - 1, -1, -1) if flip else range(c)):
                        p.add(mfma(vr('v', acc[b] + 4 * tb, 4), vr('a', (held[G] + 8 * b if G in held else WF + 8 * (n % 4)) + 4 * kk, 4),
                                   vr('a', AF + 32 * par[G] + 16 * kk + 4 * tb, 4),
                                   '0' if (first and i == 0) else None))
                    flip ^= 1
            owner += [blk[-1]] * len(tags)
        N = len(p.mf)
        jobs, pos, q = list(first_jobs), [2 * k + 1 for k in range(len(first_jobs))], 4 * ((len(first_jobs) + 1) // 2) + 1
        rest = []
        for k, piece in enumerate(later):
            while k < len(owner) and q < owner[k]:
                q += 4
            for jb in piece:
                if q < N and k < len(owner) and not rest:
                    jobs.append(jb)
                    pos.append(q)
                    q += 4
                else:
                    rest.append(jb)
        for jb in last_jobs:
            jobs.append(jb)
            pos.append(q)
            q += 4
        p.rest, p.dma_end = rest, q
        prev, pend = p.jobs(self.flat(jobs), pos, avoid={x - 1 for x in blk})
        p.scalars(pend, prev + 1, N)
        pre = []

        def place(ins, lo, use):
            for each, lead in ((1, LEAD), (2, LEAD), (2, LEAD - 2), (2, LEAD - 4)):
                c = [j for j in range(max(lo - 1, 0), use - lead + 1) if not p.g[j]['vm'] and (j + 1 not in blk or each == 2)
                     for _ in range(each - len(p.g[j]['ds']))]
                if len(c) >= len(ins) or lo == 0:
                    break
            assert len(c) >= len(ins) or lo == 0
            c = c[-len(ins):]
            pre.extend(ins[:len(ins) - len(c)])
            for j, x in zip(c, ins[len(ins) - len(c):]):
                p.g[j]['ds'].append(x)
        h, n = h0, 0
        for G, (tags, ak, acc, first) in enumerate(groups):
            for b in range(len(acc) * (G not in held)):
                src = [(kk, b) if len(tags) == 2 else (0, b + 2 * kk) for kk in range(2)]
                ins = [Ins('ds_read_b64_tr_b16 %s, v%d offset:%d' % (vr('a', WF + 8 * (n % 4) + 4 * kk + 2 * g, 2), vTR + lb, ((h + pc) % 6) * 4096 + 2048 * g),
                           need=[tags[pc]]) for kk, (pc, lb) in enumerate(src) for g in range(2)]
                place(ins, blk[n - 3] if n >= 4 else 0, blk[n])
                n += 1
            h += len(tags)
        for G, (tags, ak, acc, first) in enumerate(groups):
            if G == 0 or ak != groups[G - 1][1]:
                ins = ['ds_read_b128 %s, v%d offset:%d' % ((vr('a', AF + 32 * par[G] + 16 * kk + 4 * tb, 4),) + actf(k, tb)) for tb in range(4) for kk, k in enumerate(ak)]
                prev = [x for x in range(G) if par[x] == par[G]]
                lo = p.st[prev[-1] + 1] if prev else 0
                if G == 0:
                    act0 = [ins[k] for k in (0, 1, 3, 2, 4, 5, 7, 6)]
                    continue
                span = max(1, (p.st[G] - LEAD - lo) // len(ins))
                for k, x in enumerate(ins):
                    j = lo + k * span
                    while p.g[j]['vm'] or len(p.g[j]['ds']) >= 2 or (j + 1 in blk and span > 1):
                        j += 1
                    assert j < p.st[G] - 4 + k
                    p.g[j]['ds'].append(x)
        main, self.s = self.s, Stream()
        sync()
        bar, self.s = self.s.l, main
        for x in bar:
            if x.kind == 'bar':
                lg = [y for y in self.s.l if y.kind in ('dsr', 'dsw')]
                if lg:
                    lg[-1].tag = 'lastlds'
                self.put(pre)
                x.need = ['lastlds'] if lg else []
            self.s.add(x)
        self.put(act0)
        return p

    def part_store(self, reg, off, tag, base=sPO, vo=vACT):
        return Job(Ins('buffer_store_dwordx4 %s, v%d, %s, s%d offen sc1' % (vr('v', reg, 4), vo, srd(SWS), sT1), tag=tag),
                   pre=['s_add_u32 s%d, s%d, 0x%x' % (sT1, base, off)])

    def gather(self, f, dst, soff, off, flags):
        return [Job('buffer_load_dwordx4 %s, v%d, %s, s%d offen offset:%d %s' % (vr(f, dst + 4 * k, 4), vACT, srd(SWS), sRET, 1024 * (k % 4), flags),
                    pre=['s_add_u32 s%d, s%d, 0x%x' % (sRET, soff, off + 1024 * k)] if k % 4 == 0 else []) for k in range(16)]

    LR, LB = vW1, vFLAG
    XS, XW, RA, F1 = vP + 8, vP + 9, vP + 10, vT + 4

    def prologue(self):
        e = self.s
        D = vr('a', aDUMMY, 4)
        e('@sec prologue')
        bufs = [(SX, 0, 0x200000), (SWQ, 24, 0x400000), (SWS, 96, 0x10000000), (SW1, 48, 0x80000), (SW2, 56, 0x80000), (SDBG, 88, 256), (SK, 8, 0x400000),
                (SV, 16, 0x400000), (SWO, 32, 0x400000), (SW3, 64, 0x1c0000), (SW4, 72, 0x1c0000), (SOUT, 80, 0x200000)]
        for b, off, _ in bufs[:2]:
            e('s_load_dwordx2 s[%d:%d], s[0:1], %d' % (b, b + 1, off))
        e('s_cmp_ge_u32 s2, 256\ns_cbranch_scc1 L_end')
        if self.o.get('diag', '').startswith('start'):
            e('s_memrealtime s[98:99]')
        if self.prof:
            e('v_accvgpr_write_b32 a%d, 0\nv_accvgpr_write_b32 a%d, 0' % (aPROF, aPROF + 1))
        e('s_getpc_b64 s[%d:%d]\nL_pc:' % (SCODE, SCODE + 1))
        e('s_mov_b32 s%d, L_code_end-L_pc\ns_mov_b32 s%d, 0x20000' % (SCODE + 2, SCODE + 3))
        e('s_lshr_b32 s%d, s2, 3\nv_lshlrev_b32 v%d, 4, v0\nv_lshl_add_u32 v%d, s%d, 12, v%d' % (sT, vT + 3, vT, sT, vT + 3))
        e('buffer_load_dwordx4 %s, v%d, %s, 0 offen' % (D, vT, srd(SCODE)))
        e('v_readfirstlane_b32 s%d, v0\ns_and_b32 s%d, s2, 7\nv_and_b32 v0, 63, v0' % (sW, sJ))
        e('s_lshr_b32 s%d, s%d, 6' % (sW, sW))
        e('s_lshl_b32 s%d, s%d, 2\ns_add_u32 s%d, s%d, s%d' % (sTBG, sT, sTBG, sTBG, sW))
        e('v_lshrrev_b32 v%d, 2, v%d\nv_and_b32 v%d, 3, v%d' % (vT + 1, vL, vT + 2, vL))
        e('v_lshlrev_b32 v%d, 10, v%d\nv_lshl_or_b32 v%d, v%d, 4, v%d' % (vT + 4, vT + 1, vT + 4, vT + 2, vT + 4))
        e('v_lshlrev_b32 v%d, 4, v%d' % (vACT, vL))
        e('s_lshl_b32 s%d, s%d, 14\ns_lshl_b32 s%d, s%d, 13\ns_lshl_b32 s%d, s%d, 10' % (sCNT, sTBG, sVO, sTBG, sT1, sJ))
        e('s_mov_b32 s%d, 0x200000\ns_mov_b32 s%d, 0x20000' % (SX + 2, SX + 3))
        e('s_sub_u32 s%d, 0x400000, s%d\ns_mov_b32 s%d, 0x20000' % (SWQ + 2, sT1, SWQ + 3))
        e('s_waitcnt lgkmcnt(0)')
        self.stamp('kernarg')
        e('s_add_u32 s%d, s%d, s%d\ns_addc_u32 s%d, s%d, 0' % (SWQ, SWQ, sT1, SWQ + 1, SWQ + 1))
        for b, off, _ in bufs[2:]:
            e('s_load_dwordx2 s[%d:%d], s[0:1], %d' % (b, b + 1, off))
        wl = [Job('buffer_load_dwordx4 %s, v%d, %s, s%d offen' % (D, vACT, srd(SWQ), sVO), post=['s_add_u32 s%d, s%d, 0x100000' % (sVO, sVO)]) for i in range(4)]
        nf = self.opt('wq_first', 2)
        self.emit_jobs(wl[:nf])
        xl = [Job('buffer_load_dwordx4 %s, v%d, %s, s%d offen offset:%d' % (vr('v', vX + 4 * ks, 4), vT + 4, srd(SX), sCNT, 64 * ks)) for ks in range(16)]
        nx = self.opt('x_first', 10)
        self.emit_jobs(xl[:nx])
        self.stamp('x issued')
        mark = len(e.l)

        def lin(dst, c, *terms):
            for k, (reg, mul) in enumerate(terms):
                e('s_mul_i32 s%d, s%d, 0x%x' % (dst if k == 0 else sT0, reg, mul & 0xffffffff))
                if k:
                    e('s_add_u32 s%d, s%d, s%d' % (dst, dst, sT0))
            if c:
                e('s_add_u32 s%d, s%d, 0x%x' % (dst, dst, c))
        lin(sRING, WREG, (sW, WWAVE))
        lin(sW2K, 0, (sW, 2048))
        e('v_mov_b32 v%d, 1' % vONE)
        XS, XW, RA = self.XS, self.XW, self.RA
        e('v_lshlrev_b32 v%d, 1, v%d\nv_xor_b32 v%d, v%d, v%d\nv_lshl_or_b32 v%d, v%d, 4, v%d' % (vT, vT + 2, vT, vT, vT + 1, vT, vT + 2, vT))
        e('v_lshlrev_b32 v%d, 4, v%d\nv_lshl_add_u32 v%d, s%d, 14, v%d' % (vT, vT, XW, sW, vT))
        e('v_lshrrev_b32 v%d, 4, v%d\nv_lshlrev_b32 v%d, 5, v%d\nv_xor_b32 v%d, v%d, v%d' % (vT, vL, vT, vT, XS, vT, vACT))
        e('v_lshrrev_b32 v%d, 5, v%d\nv_and_b32 v%d, 15, v%d\nv_mul_u32_u24 v%d, 18, v%d\nv_xor_b32 v%d, v%d, v%d' % (vT, vL, vT + 1, vL, vT, vT, vT, vT, vT + 1))
        e('v_bfe_u32 v%d, v%d, 4, 1\nv_lshl_or_b32 v%d, v%d, 1, v%d\nv_lshlrev_b32 v%d, 3, v%d' % (vT + 1, vL, vT, vT, vT + 1, vT, vT))
        lin(sT1, 0, (sW, 16384), (sJ, 1024))
        e('v_add_u32 v%d, s%d, v%d\nv_xor_b32 v%d, 64, v%d' % (RA, sT1, vT, RA + 1, RA))
        C, RN, RK = vT, vT + 1, vT + 2
        e('v_and_b32 v%d, 7, v%d\nv_bfe_u32 v%d, v%d, 4, 2\nv_lshlrev_b32 v%d, 1, v%d\nv_xor_b32 v%d, v%d, v%d' % (C, vL, RN, vL, RN, RN, C, C, RN))
        e('v_lshlrev_b32 v%d, 4, v%d\nv_lshrrev_b32 v%d, 3, v%d' % (C, C, RN, vL))
        e('v_and_b32 v%d, 4, v%d\nv_add_u32 v%d, v%d, v%d' % (RK, RN, RK, RK, RN))
        e('v_lshl_add_u32 v%d, v%d, 13, v%d\nv_lshl_add_u32 v%d, s%d, 8, v%d' % (vDB, RK, C, vDB, sW, vDB))
        e('v_lshl_add_u32 v%d, v%d, 10, v%d\nv_lshl_add_u32 v%d, s%d, 17, v%d' % (vW1, RK, C, vW1, sW, vW1))
        e('v_lshl_add_u32 v%d, v%d, 10, v%d' % (vWN, RN, C))
        e('v_and_b32 v%d, 64, v%d\nv_mad_u32_u24 v%d, v%d, 7, v%d' % (RK, C, vW2, RK, vWN))
        W1W, W2W = vP, vP + 1
        e('v_mov_b32 v%d, v%d\nv_mov_b32 v%d, v%d' % (W1W, vWN, W2W, vW2))
        e('v_lshl_add_u32 v%d, s%d, 17, v%d\nv_lshl_add_u32 v%d, s%d, 7, v%d' % (vW2, sW, vW2, vWN, sW, vWN))
        e('v_mul_u32_u24 v%d, 3584, v%d\nv_lshl_add_u32 v%d, s%d, 7, v%d\nv_add_u32 v%d, v%d, v%d' % (RN, RN, C, sW, C, vW3, RN, C))
        e('v_mov_b32 v%d, 0x%x' % (vT + 5, OOB))
        lin(sKO, 0, (sT, 16384))
        RS, Z = vP + 2, vP + 3
        e('v_lshrrev_b32 v%d, 2, v%d\nv_lshlrev_b32 v%d, 17, v%d' % (RS, vL, RS, RS))
        e('v_and_b32 v%d, 3, v%d\nv_lshl_or_b32 v%d, v%d, 10, v%d' % (Z, vL, RS, Z, RS))
        e('v_cmp_gt_u32 vcc, 0x80, v%d' % (vT + 3))
        lin(sT1, 0, (sTBG, 1024), (sJ, 128))
        e('v_cndmask_b32 v%d, v%d, v%d, vcc' % (RS, vT + 5, RS))
        e('v_lshrrev_b32 v%d, 9, v%d\nv_cmp_eq_u32 vcc, 1, v%d' % (Z, vT + 3, Z))
        e('v_lshlrev_b32 v%d, 2, v%d\nv_add_u32 v%d, 0x%x, v%d' % (Z, vL, Z, 0x40000 - 128, Z))
        e('v_cndmask_b32 v%d, v%d, v%d, vcc' % (RS, RS, Z))
        e('v_cmp_eq_u32 vcc, 0, v%d\nv_mov_b32 v%d, s%d\ns_add_u32 s%d, s%d, 0x%x' % (vL, vFLAG, sT1, sRET, sT1, FLAG_OFF))
        e('v_cndmask_b32 v%d, v%d, v%d, vcc' % (vFLAG, vT + 5, vFLAG))
        e('v_cmp_eq_u32 vcc, 0, v%d\nv_mov_b32 v%d, 0\ns_add_u32 s%d, s%d, 0x%x' % (vT + 3, Z, sSTO, sT1, ST_OFF))
        e('v_cndmask_b32 v%d, v%d, 0, vcc' % (vPOFF, vT + 5))
        e('v_and_b32 v%d, 15, v%d\nv_lshrrev_b32 v%d, 4, v%d' % (vT, vL, vT + 1, vL))
        e('v_xor_b32 v%d, v%d, v%d\nv_lshlrev_b32 v%d, 4, v%d\nv_lshl_or_b32 v%d, v%d, 8, v%d' % (vT + 1, vT + 1, vT, vT + 1, vT + 1, vKA, vT, vT + 1))
        for ks in range(1, 4):
            e('v_xor_b32 v%d, 0x%x, v%d' % (vKA + ks, 64 * ks, vKA))
        e('v_lshrrev_b32 v%d, 2, v%d\nv_and_b32 v%d, 7, v%d\nv_lshlrev_b32 v%d, 5, v%d' % (vT, vL, vT + 1, vT, vT + 1, vT + 1))
        e('v_lshl_or_b32 v%d, v%d, 8, v%d\nv_and_b32 v%d, 3, v%d\nv_lshl_or_b32 v%d, v%d, 3, v%d' % (vT, vT, vT + 1, vT + 1, vL, vT, vT + 1, vT))
        for db in range(4, 8):
            e('v_xor_b32 v%d, 0x%x, v%d' % (vTR + db, VRING | db << 5, vT))
        self.put(self.waddr(vTR, vT, 's%d' % sRING))
        e('v_bfe_i32 v%d, v%d, 1, 1\nv_and_b32 v%d, 0x3f803f80, v%d\nv_xor_b32 v%d, 0x3f803f80, v%d' % (vT, vL, vT + 1, vT, vT + 2, vT + 1))
        e('v_bfe_i32 v%d, v%d, 0, 1\nv_and_b32 v%d, 0xaaaaaaaa, v%d\nv_or_b32 v%d, 0x44444444, v%d' % (vT, vL, vT, vT, vIDX, vT))
        for r in range(4):
            e('v_accvgpr_write_b32 a%d, v%d\nv_accvgpr_write_b32 a%d, v%d' % (aONES + r, vT + 2, aONE2 + r, vT + 1))
        for r in range(8):
            e('v_accvgpr_write_b32 a%d, 0' % (aL + r))
        lin(sHO, 0, (sTBG, 1 << 14), (sJ, 1 << 11))
        lin(sX1I, X1_OFF, (sTBG, 1 << 14))
        lin(sX1O, 0, (sJ, 1 << 10), (sX1I, 1))
        lin(sPO, 0, (sT, 1 << 19), (sJ, 1 << 11), (sW, 1 << 17))
        lin(sPI, 0, (sT, 1 << 19), (sJ, 1 << 16), (sW, 1 << 14))
        lin(sCF, FLAG_OFF + 0x40000, (sT, 1 << 12), (sJ, 1 << 7))
        lin(sFP, FLAG_OFF + 0x40000, (sT, 1 << 12), (sW, 256), (sJ, 4))
        lin(sXO, 0, (sTBG, 1 << 14), (sJ, 64))
        lin(sCW, 0, (sTBG, 1024))
        lin(sW3W, 0, (sTBG, 4 * 3584))
        lin(sWOW, 0, (sTBG, 4096))
        e('s_lshr_b32 s%d, s%d, 1\ns_lshl_b32 s%d, s%d, 13' % (sWSH, sTBG, sWSH, sWSH))
        e('s_mov_b32 s%d, %s\ns_mov_b32 s%d, %s\ns_mov_b32 s%d, 0' % (sC0, f2u(-K2), sC0 + 1, f2u(-K2), sPASS))
        e('s_waitcnt lgkmcnt(0)')
        shift = {SW1: [(sJ, 128)], SW2: [(sJ, 64)], SK: [(sJ, 1 << 19)], SV: [(sJ, 1 << 19)], SWO: [(sJ, 1 << 19)]}
        for b, _, size in bufs[2:]:
            if b in shift:
                lin(sT1, 0, *shift[b])
                e('s_add_u32 s%d, s%d, s%d\ns_addc_u32 s%d, s%d, 0\ns_sub_u32 s%d, 0x%x, s%d' % (b, b, sT1, b + 1, b + 1, b + 2, size, sT1))
            else:
                e('s_mov_b32 s%d, 0x%x' % (b + 2, size))
            e('s_mov_b32 s%d, 0x20000' % (b + 3))
        e('s_mov_b32 s%d, s%d\ns_mov_b32 s%d, s%d\ns_mov_b32 s%d, 0x200000\ns_mov_b32 s%d, 0x20000' % (SH, SWS, SH + 1, SWS + 1, SH + 2, SH + 3))
        ns = self.opt('x_setup', 0)
        setup, e.l = e.l[mark:], e.l[:mark]
        self.sprinkle(setup, xl[nx:nx + ns], start=self.opt('xs_start', 20), every=self.opt('xs_every', 25))
        self.xrest = xl[nx + ns:]
        self.early = wl[nf:] + [Job(Ins('buffer_store_dword v%d, v%d, %s, s%d offen sc1' % (Z, RS, srd(SWS), sRET), tag='reset')),
                                Job('buffer_load_dwordx4 %s, v%d, %s, s%d offen' % (D, W1W, srd(SW1), sWSH)),
                                Job('buffer_load_dwordx4 %s, v%d, %s, s%d offen' % (D, W2W, srd(SW2), sWSH))]
        self.early += (self.warm(SK, vACT, sWOW, (0, 1024, 2048, 3072)) + self.warm(SV, vACT, sWOW, (0, 1024, 2048, 3072)))[:self.opt('kv_early', 2)]
        self.stamp('setup')
        self.touch(0)
        self.stamp('touched')
        e('s_branch L_go\n.p2align 12\nL_go:')

    def p0(self):
        e = self.s
        e('@sec P0 layernorm')
        P = lambda b: vr('v', b, 2)
        A, X0 = vS, vS + 8
        o = ['v_lshlrev_b32 v%d, 16, v%d' % (X0 + 1, vX), 'v_mov_b32_dpp v%d, v%d quad_perm:[0,0,0,0] row_mask:0xf bank_mask:0xf' % (X0, X0 + 1)]
        for k in range(64):
            d = vACC + 2 * k
            o += ['v_lshlrev_b32 v%d, 16, v%d' % (d, vX + k), 'v_and_b32 v%d, 0xffff0000, v%d' % (d + 1, vX + k),
                  'v_pk_add_f32 %s, %s, %s op_sel_hi:[1,0] neg_lo:[0,1] neg_hi:[0,1]' % (P(d), P(d), P(X0))]
            if k == 0:
                o += ['v_pk_mul_f32 %s, %s, %s' % (P(A + 2), P(d), P(d))]
            else:
                o += ['v_pk_add_f32 %s, %s, %s' % (P(A), P(A) if k > 1 else P(vACC), P(d)), 'v_pk_fma_f32 %s, %s, %s, %s' % (P(A + 2), P(d), P(d), P(A + 2))]
        wq = []
        for k in range(6):
            wq += self.whalf('wq', self.pair_order(0)[k], k)
        nd = self.opt('p1_dma', 2)
        jobs = []
        while self.xrest or (wq and nd):
            jobs += self.xrest[:1] + wq[:nd if self.xrest else nd + 1]
            wq = wq[nd if self.xrest else nd + 1:]
            self.xrest = self.xrest[1:]
        self.sprinkle(o, jobs, start=self.opt('p1_start', 2), every=20 // (nd + 1) if nd else 10)
        self.stamp('x landed')
        o = ['v_add_f32 v%d, v%d, v%d' % (A, A, A + 1), 'v_add_f32 v%d, v%d, v%d' % (A + 2, A + 2, A + 3)]
        for qp in ('[1,0,3,2]', '[2,3,0,1]'):
            for r in (A, A + 2):
                o.append('v_add_f32_dpp v%d, v%d, v%d quad_perm:%s row_mask:0xf bank_mask:0xf' % (r, r, r, qp))
        M, V, R = A, A + 2, A + 4
        o += ['v_mul_f32 v%d, %s, v%d' % (M, f2u(1.0 / 512), M), 'v_mul_f32 v%d, %s, v%d' % (V, f2u(1.0 / 512), V),
              'v_fma_f32 v%d, -v%d, v%d, v%d' % (V, M, M, V), 'v_max_f32 v%d, 0, v%d' % (V, V),
              'v_add_f32 v%d, %s, v%d' % (R, f2u(1e-5), V), 'v_rsq_f32 v%d, v%d' % (R, R),
              'v_and_b32 v%d, 0xf0, v%d' % (A + 7, vACT),
              'v_mul_f32 v%d, v%d, v%d' % (A + 6, R, R), 'v_fmaak_f32 v%d, v%d, v%d, %s' % (A + 6, A + 6, V, f2u(1e-5)), 'v_rsq_f32 v%d, v%d' % (A + 6, A + 6),
              'v_mul_f32 v%d, %s, v%d' % (R, f2u(CSCALE), R), 'v_mul_f32 v%d, %s, v%d' % (A + 6, f2u(1.0 / CSCALE), A + 6),
              'v_mul_f32_e64 v%d, -v%d, v%d' % (M, M, R), 'ds_bpermute_b32 v%d, v%d, v%d' % (self.F1, A + 7, A + 6)]
        for ks in range(16):
            for k in range(4 * ks, 4 * ks + 4):
                d = P(vACC + 2 * k)
                o.append('v_pk_fma_f32 %s, %s, %s, %s op_sel_hi:[1,0,0]' % (d, d, P(R), P(M)))
            for k in range(4 * ks, 4 * ks + 4):
                o.append('v_cvt_pk_bf16_f32 v%d, v%d, v%d' % (vX + k, vACC + 2 * k, vACC + 2 * k + 1))
            o.append('ds_write_b128 v%d, %s offset:%d' % (self.XW, vr('v', vX + 4 * ks, 4), 1024 * ks))
        nw, nl = 4 * self.opt('ln_w', 4), self.opt('ln_jobs', 22)
        jobs = wq[:nw] + self.early + wq[nw:]
        self.p2_first = jobs[nl:]
        self.sprinkle(o, jobs[:nl], start=self.opt('ln_start', 0), every=self.opt('ln_every', 2 if nd else 7))
        for nb in range(4):
            e('ds_read_b64 %s, v%d offset:%d' % (vr('a', aRES + 2 * nb, 2), self.RA + (nb & 1), 8192 * (nb >> 1) + 512 * (nb & 1)))
        e('v_lshl_add_u32 v%d, s%d, 14, v%d' % (self.XW, sW, self.XS))

    def kv_dma(self, which, unit, tag):
        buf, ring, so, vo = (SK, KRING, sKO, vDB) if which == 'K' else (SV, VRING, sVO, vDB + 2)
        fl = self.o.get('kvflag', 'nt_').replace('_', ' ') if self.kv_nt else ''
        m0 = 's_add_u32 m0, s%d, 0x%x' % (sW2K, ring + 8192 * (unit & 3))
        return [Job(Ins('buffer_load_dwordx4 v%d, %s, s%d offen %slds' % (vo, srd(buf), so, fl), tag=tag), m0=m0),
                Job(Ins('buffer_load_dwordx4 v%d, %s, s%d offen offset:1024 %slds' % (vo + 1, srd(buf), so, fl), tag=tag), m0=m0,
                    post=['s_add_u32 s%d, s%d, 0x2000' % (so, so), 's_and_b32 s%d, s%d, 0x7ffff' % (so, so)])]

    def pair_order(self, early):
        sg = [(kp, hf) for kp in range(8 - early) for hf in range(2)] + [(kp, hf) for hf in range(2) for kp in range(8 - early, 8)]
        return [2 * (2 * kp + kk) + hf for kp, hf in sg for kk in range(2)]

    def pair_groups(self, name, od):
        return [(['%s%d' % (name, k) for k in od[h:h + 2]], [k >> 1 for k in od[h:h + 2]],
                 [vACC + 64 * (od[h] & 1) + 16 * b for b in range(4)], od[h] < 2) for h in range(0, 32, 2)]

    def p2(self):
        e = self.s
        e('@sec P2')
        od = self.pair_order(0)
        later = [self.whalf('wq', od[h], h) if h < 32 else self.whalf('w1', h - 32, h) for h in range(6, 36)]
        if self.opt('kvwarm', 0):
            later[25] = later[25] + self.warm(SK, vACT, sWOW, (0, 1024, 2048, 3072)) + self.warm(SV, vACT, sWOW, (0, 1024, 2048, 3072))
        p = self.gemm(0, self.pair_groups('wq', od), lambda k, tb: (self.XS, (tb * 16 + k) * 1024),
                      later, self.p2_first, lambda: (self.s('s_barrier', need=['*lg']), self.stamp('P0 end')))
        self.q_first = p.rest
        for ks in range(16):
            p.g[16 * (ks + 2) + 7]['ds'].append('ds_read_b128 %s, v%d offset:%d' % (vr('v', vX + 4 * ks, 4), self.XW, 1024 * ks))
        assert not p.fill(self.waddr(vP + 12, vT, '0x%x' % (WREG + 8192)) + ['v_mov_b32 v%d, %s' % (vP + 10, f2u(-K1))], 16)
        f = ('v_lshrrev_b32 v%d, 4, v%d\nv_and_b32 v%d, 15, v%d\nv_lshl_add_u32 v%d, v%d, 8, s%d\n' % (vT, vL, vT + 1, vL, vT + 2, vT, sW2K) +
             'v_bfe_u32 v%d, v%d, 8, 4\nv_xor_b32 v%d, v%d, v%d\n' % (vT + 3, vT + 2, vT + 3, vT + 3, vT + 1) +
             'v_lshl_add_u32 v%d, v%d, 4, v%d\nv_xor_b32 v%d, 64, v%d\n' % (vDB, vT + 3, vT + 2, vDB + 1, vDB) +
             'v_lshlrev_b32 v%d, 1, v%d\nv_xor_b32 v%d, v%d, v%d\n' % (vT + 3, vT, vT + 3, vT + 3, vT + 1) +
             'v_lshl_add_u32 v%d, v%d, 4, v%d\nv_xor_b32 v%d, 0x80, v%d' % (vDB + 2, vT + 3, vT + 2, vDB + 3, vDB + 2)).split('\n')
        assert not p.fill(f, 32 * 14)
        assert not p.fill(self.vaddr_restore(), 16 * 31 + 2)
        p.jobs(self.flat([Job(Ins('buffer_atomic_add v%d, v%d, %s, s%d offen sc1' % (vONE, vPOFF, srd(SDBG), sT0), need=['reset']),
                              pre=['s_lshl_b32 s%d, s%d, 3' % (sT0, sT), 's_mov_b32 s%d, s%d' % (sVO, sKO)])]), p.empty(16 * 31 + 10, 1), lo=16 * 31 + 5)
        p.emit(self)
        self.stamp('P2 end')

    def q_p1(self):
        e = self.s
        e('@sec Q epilogue')
        if self.o.get('diag', '').startswith('xcc'):
            e('s_getreg_b32 s98, hwreg(HW_REG_XCC_ID)\ns_sub_u32 s98, s98, s%d\ns_and_b32 s98, s98, 7\ns_lshl_b32 s98, 1, s98' % sJ)
            e('v_mov_b32 v%d, s98\nbuffer_atomic_or v%d, v%d, %s, 0 offen offset:4 sc1' % (vT, vT, vPOFF, srd(SDBG)))
        e('s_barrier', need=['*lg'])
        jobs = self.q_first + self.tile_dma(0, 'kv0')
        o, wr = [], []
        fr = [(qb, ks) for qb in range(4) for ks in range(4)]
        for n in range(0, 16, 2):
            ts = []
            for qb, ks in fr[n:n + 2]:
                a = vACC + 32 * ks + 4 * qb
                o += self.pack(a + 16, a, a + 16)
                ts.append(a + 16)
            for op in ('v_permlane32_swap_b32', 'v_permlane16_swap_b32'):
                for t in ts:
                    o += ['%s v%d, v%d' % (op, t, t + 2), '%s v%d, v%d' % (op, t + 1, t + 3)]
            for (qb, ks), t in zip(fr[n:n + 2], ts):
                (wr if self.opt('q_in_p1', 1) else o).extend('v_accvgpr_write_b32 a%d, v%d' % (aQ + 16 * qb + 4 * ks + r, t + r) for r in range(4))
        self.sprinkle(o, jobs, every=self.opt('q_every', 4))
        self.stamp()
        e('@sec P1')
        e('s_barrier', need=['w13'])
        self.g16('v', vS, 0, vP + 12, wr)
        o = []
        for nb in range(4):
            o += self.gelu4(vS + 4 * nb, vX + 2 * nb, vP + 4 * (nb & 1), vP + 10, scale=self.F1)
        self.sprinkle(o, self.tile_dma(1, 'kv1'), every=11)
        for p in range(2):
            e('buffer_store_dwordx4 %s, v%d, %s, s%d offen offset:%d sc1' % (vr('v', vX + 4 * p, 4), vACT, srd(SH), sHO, 1024 * p), tag='hst')
        self.stamp()

    def p3(self, kreads):
        e = self.s
        self.stamp()
        e('@sec P3')
        acc = aK
        self.put(self.waddr(vT, vT + 4, '0x%x' % (WREG + 8192)))
        self.g16('a', acc, aK + 32, vT)
        X, R, PK = vX, vX + 16, vX + 32
        P = lambda b: vr('v', b, 2)
        for k in range(8):
            e('v_accvgpr_read_b32 v%d, a%d' % (PK + k, aRES + k))
        for k in range(8):
            e('v_lshlrev_b32 v%d, 16, v%d\nv_and_b32 v%d, 0xffff0000, v%d' % (R + 2 * k, PK + k, R + 2 * k + 1, PK + k))
        e('v_mov_b32 v%d, %s' % (PK + 8, f2u(1.0 / CSCALE)))
        for k in range(16):
            e('v_accvgpr_read_b32 v%d, a%d' % (X + k, acc + k))
        mark = len(e.l)
        for k in range(8):
            e('v_pk_fma_f32 %s, %s, %s, %s op_sel_hi:[1,0,1]' % (P(X + 2 * k), P(R + 2 * k), P(PK + 8), P(X + 2 * k)))
        for k in range(8):
            e('v_cvt_pk_bf16_f32 v%d, v%d, v%d' % (PK + k, X + 2 * k, X + 2 * k + 1))
        e('s_add_u32 s%d, s%d, 0x2000' % (sT1, sX1O))
        for p in range(2):
            e('buffer_store_dwordx4 %s, v%d, %s, s%d offen sc1' % (vr('v', PK + 4 * p, 4), vACT, srd(SWS), sT1 if p else sX1O))
        for k in range(8):
            e('v_lshlrev_b32 v%d, 16, v%d\nv_and_b32 v%d, 0xffff0000, v%d' % (X + 2 * k, PK + k, X + 2 * k + 1, PK + k))
            e('v_accvgpr_write_b32 a%d, v%d' % (aX1 + k, PK + k))
        for k in range(4):
            e('v_pk_add_f32 %s, %s, %s' % (P(R + 2 * k), P(X + 2 * k), P(X + 8 + 2 * k)))
        e('v_pk_add_f32 %s, %s, %s\nv_pk_add_f32 %s, %s, %s' % (P(R), P(R), P(R + 2), P(R + 4), P(R + 4), P(R + 6)))
        e('v_pk_add_f32 %s, %s, %s\nv_add_f32 v%d, v%d, v%d' % (P(R), P(R), P(R + 4), R + 8, R, R + 1))
        self.put(self.lanesum(R + 8, R + 10))
        e('v_mul_f32 v%d, %s, v%d' % (R + 8, f2u(1.0 / 64), R + 8))
        for k in range(8):
            e('v_pk_add_f32 %s, %s, %s op_sel_hi:[1,0] neg_lo:[0,1] neg_hi:[0,1]' % (P(X + 2 * k), P(X + 2 * k), P(R + 8)))
        for k in range(8):
            e('v_pk_fma_f32 %s, %s, %s, %s' % (P(R), P(X + 2 * k), P(X + 2 * k), P(R)) if k else 'v_pk_mul_f32 %s, %s, %s' % (P(R), P(X), P(X)))
        e('v_add_f32 v%d, v%d, v%d' % (R + 9, R, R + 1))
        e('v_lshlrev_b32 v%d, 3, v%d\nv_mov_b32 v%d, 0x%x\nv_cmp_gt_u32 vcc, 16, v%d' % (R, vL, R + 1, OOB, vL))
        self.put(self.lanesum(R + 9, R + 10))
        e('v_cndmask_b32 v%d, v%d, v%d, vcc' % (R, R + 1, R))
        e('buffer_store_dwordx2 %s, v%d, %s, s%d offen sc1' % (P(R + 8), R, srd(SWS), sSTO), tag='x1st')
        epi, e.l = e.l[mark:], e.l[:mark]
        for k, x in enumerate(epi):
            if k % 16 == 0:
                self.put(kreads[k // 4:k // 4 + 4])
            e.add(x)
        self.stamp()
        e('@sec attention 1b')

    def krd(self, u, f, base=aK):
        kb, ks = f >> 2, f & 3
        return 'ds_read_b128 %s, v%d offset:%d' % (vr('a', base + 32 * (u & 1) + 4 * f, 4), vKA + ks, KRING + 8192 * (u & 3) + 4096 * kb)

    def vrd(self, u, h):
        db, g = h >> 1, h & 1
        return 'ds_read_b64_tr_b16 %s, v%d offset:%d' % (vr('a', aV + 32 * (u & 1) + 4 * db + 2 * g, 2), vTR + db, 8192 * (u & 3) + 4096 * g)

    def rowsum(self, d, ones, p):
        return 'v_smfmac_f32_16x16x64_bf16 %s, %s, %s, v%d' % (vr('a', aL + 4 * d, 4), vr('a', ones, 4), vr('v', p, 8), vIDX)

    KV_GAPS = ((5, 1), (5, 5), (5, 9), (5, 13), (6, 1), (6, 5), (6, 13), (7, 1))
    SIDE_GAPS = {7: (5, 13), 0: (1, 5, 9, 13), 1: (1, 5), 4: (9, 13)}

    def tile_dma(self, T, tag):
        return sum([self.kv_dma(w, 2 * T + k, tag + w) for w in 'KV' for k in range(2)], [])

    def segment(self, seg, NS, sched, loop=None, inline=None, extra=()):
        e = self.s
        NT, inline = NS // 8, inline or {}
        side, chk, fill = {}, {}, {}

        def slots(n):
            T, h = n >> 3, n & 7
            if n < 3 or n >= NS:
                return [1, 3, 5, 7] if n > NS else []
            g = list(self.SIDE_GAPS.get(h, ()))
            if T + 2 >= NT:
                g += [x for hh, x in self.KV_GAPS if hh == h]
            if T + 1 == NT:
                g += {4: [5], 6: [9], 7: [9]}.get(h, [])
            return sorted(g)

        def spread(jobs, n, stop, rate=4):
            jobs = list(jobs)
            while jobs:
                assert n < stop, 'side jobs do not fit'
                room = min(rate, len(slots(n)) - (n in chk) - len(side.get(n, [])))
                while room > 0 and jobs:
                    side.setdefault(n, []).append(jobs.pop(0))
                    room -= 1
                n += 1
        sched(spread, chk, fill)
        lab = 'L_attn%d' % seg
        plans, use = [], {}
        for n in range(NS + 3):
            T, h = n >> 3, n & 7
            p = Plan()
            if n < NS:
                for kb in range(2):
                    d = vr('v', vS + 8 * (n & 1) + 4 * kb, 4)
                    for i, ks in enumerate(range(3, -1, -1) if kb else range(4)):
                        j = p.add(mfma(d, vr('a', aK + 32 * (n & 1) + 16 * kb + 4 * ks, 4), vr('a', aQ + 16 * (h >> 1) + 4 * ks, 4), self.o.get('c0', '-4.0') if i == 0 else None))
                        use.setdefault(('K', T, n & 1, 4 * kb + ks), []).append((n, j))
            if n >= 3:
                m, dh = (n - 3) >> 1, (n - 3) & 1
                for db in range(4 * dh, 4 * dh + 4):
                    for i, kk in enumerate((1, 0) if db & 1 else (0, 1)):
                        j = p.add(mfma(vr('v', vACC + 16 * db + 4 * (m & 3), 4), vr('a', aV + 32 * kk + 4 * db, 4), vr('v', vP + 8 * (m & 1) + 4 * kk, 4),
                                       '0' if (m < 4 and seg == 0 and i == 0) else None))
                        use.setdefault(('V', m >> 2, kk, db), []).append((n, j))
            g, full = p.g, len(p.mf) == 16
            if 1 <= n <= NS:
                sb, pb = vS + 8 * ((n - 1) & 1), vP + 4 * ((n - 1) & 3)
                lag = 2 if n < 3 else 0
                for k in range(8):
                    g[2 * k if full else min(k + lag, 7)]['va'].append('v_exp_f32 v%d, v%d' % (sb + k, sb + k))
                    if k & 1:
                        g[2 * k + 1 if full else min(k + lag + 1, 7)]['va'].append('v_cvt_pk_bf16_f32 v%d, v%d, v%d' % (pb + k // 2, sb + k - 1, sb + k))
            jobs, pos = [], []
            self.kv_nt = False
            if seg and n < 2:
                jobs, pos = self.tile_dma(1, 'kv1')[4 * n:4 * n + 4], [0, 2, 4, 6]
            if T + 2 < NT and n < NS:
                for jb, (hh, x) in zip(self.tile_dma(T + 2, 'kv%d' % (T + 2)), self.KV_GAPS):
                    if hh == h:
                        jobs.append(jb)
                        pos.append(x)
            free = slots(n)
            if n in chk:
                g[free.pop()]['end'] += chk[n]
            jobs += side.get(n, [])
            pos += free[:len(side.get(n, []))]
            assert pos == sorted(pos)
            if full and h == 4:
                late_v = seg and T == 0
                g[14]['sc'].append(Ins('@need', need=(['kv%d%s' % (T + 1, 'K' if late_v else 'V')] if T + 1 < NT else []) + ['*lg']))
                g[15]['sc'].append('s_barrier')
            if seg and n == 9:
                g[0]['sc'].append(Ins('s_barrier', need=['kv1V']))
            if loop and loop[0] <= n < loop[1] and (n - loop[0]) % 16 == 15:
                g[10]['sc'].append('s_sub_u32 s%d, s%d, 1' % (sCNT, sCNT))
                g[12]['sc'].append('s_cmp_lg_u32 s%d, 0' % sCNT)
            prev, pend = p.jobs(self.flat(jobs), pos)
            p.scalars(pend, prev + 1, 10 if prev < 8 and full else len(g))
            plans.append(p)
        reads, pre, held = [], [], {}
        for (w, T, k, f), u in use.items():
            ins = [self.krd(2 * T + k, f)] if w == 'K' else [self.vrd(2 * T + k, 2 * f + x) for x in range(2)]
            if w == 'K' and 8 * T in inline:
                held.setdefault(8 * T, []).extend(ins)
            elif w == 'K' and T == 0 and k == 0:
                pre += ins
            else:
                reads.append((u[0], use[w, T - 1, k, f][-1] if T else (0, 0), ins))
        reads.sort()
        reads += [((NS + 3, 0), at, ins) for at, ins in extra]
        for first, (n, j), ins in reads:
            for x in ins:
                while True:
                    p = plans[n]
                    g = p.g[j]
                    if len(p.mf) == 16:
                        ok = j & 1 and p.cap(j) > 0
                    else:
                        ok = not g['vm'] and len(g['ds']) < 2
                    if ok:
                        break
                    n, j = (n, j + 1) if j + 1 < len(p.mf) else (n + 1, 0)
                g['ds'].append(x)
                assert (n, j) < first and not ((n & 7) == 4 and j > 8), (n, j)
        if loop:
            e('s_mov_b32 s%d, %d' % (sCNT, (loop[1] - loop[0]) // 16))
        e('s_barrier', need=['kv0V', '*lg'])
        self.put(pre)
        carry, dead = [], 0
        for n, p in enumerate(plans):
            if n in inline:
                inline[n](held[n])
            inloop = loop and loop[0] <= n < loop[1]
            if self.opt('astamp', 0) and n % 8 == 0 and not (loop and loop[0] <= n <= loop[1]) and n not in inline:
                self.stamp('s%d_%d' % (seg, n))
            if loop and n == loop[0]:
                self.stamp('pre')
            if inloop and (n - loop[0]) % 16 == 0:
                e('@rep %s %d' % (lab, n))
            if loop and n == loop[1]:
                e('@endrep ' + lab)
                self.stamp('loop')
            if n in fill:
                assert not carry
                carry, dead = fill[n]
            carry = p.fill(carry)
            if carry and n + 1 >= dead:
                p.g[-1]['va'] += carry
                carry = []
            if n >= 3 and n & 1:
                m = (n - 3) >> 1
                p.g[7 if len(p.mf) == 16 else 3]['end'].append(self.rowsum((m >> 1) & 1, aONE2 if m & 1 else aONES, vP + 8 * (m & 1)))
            if inloop and (n - loop[0]) % 16 == 15:
                p.g[15]['end'].append('s_cbranch_scc1 ' + lab)
            p.emit(self)
        self.stamp()

    def warm(self, buf, vo, so, offs):
        return [Job('buffer_load_dwordx4 %s, v%d, %s, s%d offen offset:%d' % (vr('a', aDUMMY, 4), vo, srd(buf), so, o)) for o in offs]

    def attention1(self):
        e = self.s
        e('@sec attention 1a')
        U, F, G = vX + 48, vT + 4, vT
        N1, P3 = self.opt('n1', 176), self.opt('p3', 40)
        L0, L1 = P3 + 8, N1 - 48
        f0 = ('v_and_b32 v%d, 3, v%d\nv_min_u32 v%d, 2, v%d\n' % (U, vL, U, U) +
              'v_add3_u32 v%d, v%d, s%d, -1\nv_med3_i32 v%d, v%d, 0, 31\nv_lshlrev_b32 v%d, 3, v%d' % (U, U, sT, U, U, vPOFF, U)).split('\n')
        f1 = ('v_bfe_u32 v%d, v%d, 1, 1\nv_lshl_add_u32 v%d, v%d, 1, -1\n' % (U, vL, U, U) +
              'v_bfe_u32 v%d, v%d, 3, 1\nv_mul_i32_i24 v%d, v%d, v%d\n' % (U + 1, vL, U, U, U + 1) +
              'v_add_u32 v%d, s%d, v%d\nv_max_i32 v%d, 0, v%d\nv_min_i32 v%d, 0x7f, v%d\n' % (U, sTBG, U, U, U, U, U) +
              'v_and_b32 v%d, 7, v%d\nv_lshl_or_b32 v%d, v%d, 3, v%d\n' % (U + 1, vL, U, U, U + 1) +
              'v_lshlrev_b32 v%d, 7, v%d\nv_add_u32 v%d, 0x%x, v%d' % (U, U, F, FLAG_OFF, U)).split('\n')
        f2 = ('v_and_b32 v%d, 15, v%d\nv_lshl_add_u32 v%d, s%d, 4, v%d\nv_and_b32 v%d, 48, v%d' % (U, vL, U, sTBG, U, U + 1, vL)).split('\n')
        for g, dlt in enumerate((-1, 1, -2, 2)):
            f2 += ['v_add_u32 v%d, %d, v%d' % (U + 2, dlt, U), 'v_and_or_b32 v%d, v%d, 15, v%d' % (U + 3, U + 2, U + 1),
                   'v_bfe_u32 v%d, v%d, 4, 8' % (U + 2, U + 2), 'v_lshl_or_b32 v%d, v%d, 10, v%d' % (U + 3, U + 2, U + 3),
                   'v_lshlrev_b32 v%d, 4, v%d' % (U + 3, U + 3), 'v_add_u32 v%d, 0x%x, v%d' % (G + g, 4096 * g, U + 3)]
        f3 = ('v_lshrrev_b32 v%d, 4, v%d\nv_and_b32 v%d, 15, v%d\nv_mul_u32_u24 v%d, 3584, v%d\n' % (vT, vL, vT + 1, vL, vT + 2, vT) +
              'v_lshl_add_u32 v%d, v%d, 4, v%d\nv_lshlrev_b32 v%d, 8, v%d\nv_lshl_or_b32 v%d, v%d, 3, v%d\n' % (vT + 3, vT + 1, vT + 2, vT, vT, vT, vT + 1, vT) +
              'v_lshl_add_u32 v%d, s%d, 10, v%d\nv_add_u32 v%d, 0x%x, v%d\n' % (vT, sTBG, vT, vT + 4, ST_OFF, vT) +
              'v_and_b32 v%d, 7, v%d\nv_lshl_or_b32 v%d, s%d, 3, v%d\n' % (vT, vL, vT, sTBG, vT) +
              'v_lshlrev_b32 v%d, 7, v%d\nv_add_u32 v%d, 0x%x, v%d' % (vT, vT, vPOFF, FLAG_OFF + 131072, vT)).split('\n')
        R, M, O = vT, vT + 1, vT + 2
        f3 += ['v_or_b32 v%d, s%d, v%d' % (M, sW, vL), 'v_cmp_eq_u32 vcc, 0, v%d' % M, 'v_mov_b32 v%d, 0x%x' % (O, OOB), 'v_mov_b32 v%d, 1' % R,
               'v_cndmask_b32 v%d, v%d, 0, vcc' % (M, O)]
        dbg = lambda op, off: Job('%s v%d, v%d, %s, s%d offen offset:%d %ssc1' % (op, R, M, srd(SDBG), sT2, off, 'sc0 ' * ('atomic' in op)),
                                  pre=['s_lshl_b32 s%d, s%d, 3' % (sT2, sJ) if off != 68 else 's_mov_b32 s%d, 0' % sT2])
        CB, SM = sT0, sT1
        slices = ['v_readfirstlane_b32 s%d, v%d' % (sRANK, vPRES), 'v_and_b32 v%d, 64, v%d' % (O, vWN), 's_sub_u32 s%d, s%d, 1' % (sRANK, sRANK),
                  's_and_b32 s%d, s%d, 7' % (sRANK, sRANK),
                  's_lshl_b32 s%d, s%d, 9' % (CB, sRANK), 's_min_u32 s%d, s%d, 0xd00' % (CB, CB),
                  's_add_u32 s%d, s%d, s%d' % (sW3W, sW3W, CB), 's_lshl_b32 s%d, s%d, 9' % (sT2, CB), 'v_add_u32 v%d, s%d, v%d' % (vW2, sT2, vWN),
                  's_cmp_ge_u32 s%d, 6' % sRANK, 's_cselect_b32 s%d, 1, 0' % SM, 's_cselect_b32 s%d, 10, 11' % sW4W, 's_cselect_b32 s%d, 1791, 0' % sSTEP,
                  's_lshl_b32 s%d, s%d, s%d' % (sW4W, sTBG, sW4W), 's_add_u32 s%d, s%d, s%d' % (sW4W, sW4W, sT2),
                  'v_mad_u32_u24 v%d, s%d, v%d, v%d' % (vW3, sSTEP, O, vW3), 's_lshl_b32 s%d, 0x%x, s%d' % (sSTEP, 32 * 3584, SM),
                  's_mul_i32 s%d, s%d, s%d' % (SM, SM, sW), 's_lshl_b32 s%d, s%d, 6' % (SM, SM), 's_sub_u32 s%d, s%d, s%d' % (CB, CB, SM),
                  'v_add_u32 v%d, s%d, v%d' % (vW3, CB, vW3),
                  's_sub_u32 s%d, s%d, s%d' % (sT2, sRANK, sJ), 's_lshl_b32 s%d, s%d, 11' % (sT2, sT2), 's_add_u32 s%d, s%d, s%d' % (sYO, sPO, sT2)]
        A, LR, LB, LT = vX + 56, self.LR, self.LB, vT + 4
        f4 = ['v_accvgpr_read_b32 v%d, a%d' % (A + r, aSTAT + r) for r in range(4)]
        f4 += ['v_add_f32 v%d, v%d, v%d' % (A + 4, A, A + 2)] + self.lanesum(A + 4, A + 5)
        f4 += ['v_mul_f32 v%d, 0x3e000000, v%d' % (A + 4, A + 4), 'v_sub_f32 v%d, v%d, v%d' % (A, A, A + 4), 'v_sub_f32 v%d, v%d, v%d' % (A + 2, A + 2, A + 4),
               'v_mul_f32 v%d, v%d, v%d' % (A, A, A), 'v_fmac_f32 v%d, v%d, v%d' % (A, A + 2, A + 2), 'v_add_f32 v%d, v%d, v%d' % (A + 1, A + 1, A + 3),
               'v_fmac_f32 v%d, 0x42800000, v%d' % (A + 1, A)] + self.lanesum(A + 1, A + 5)
        f4 += ['v_mov_b32 v%d, %s' % (LR, f2u(1e-5)), 'v_fmac_f32 v%d, %s, v%d' % (LR, f2u(1.0 / 512), A + 1), 'v_rsq_f32 v%d, v%d' % (LR, LR),
               'v_sub_f32 v%d, 0, v%d' % (A + 4, A + 4), 'v_mul_f32 v%d, v%d, v%d' % (LB, A + 4, LR)]
        f5, self.ln_done = [], self.opt('ln_fill', 5)
        for k in range(vX, vX + 4 * self.ln_done):
            f5 += ['v_lshlrev_b32 v%d, 16, v%d' % (LT, k), 'v_and_b32 v%d, 0xffff0000, v%d' % (k, k), 'v_fma_f32 v%d, v%d, v%d, v%d' % (LT, LT, LR, LB),
                   'v_fma_f32 v%d, v%d, v%d, v%d' % (k, k, LR, LB), 'v_cvt_pk_bf16_f32 v%d, v%d, v%d' % (k, LT, k)]
        f6 = ['v_lshl_add_u32 v%d, s%d, 14, v%d' % (vT + 3, sW, vACT)] + self.waddr(vTR, vT, 's%d' % sRING)
        f6 += ['v_mov_b32 v%d, v%d' % (vS + 6, LR), 'v_mov_b32 v%d, v%d' % (vS + 4, LB)]
        self.put(f0)

        def sched(spread, chk, fill):
            c0, c1 = 12, P3 - 20
            chk[c0] = self.poll_check(SDBG, 8) + [Ins('v_mov_b32 v%d, v%d' % (vPOFF, F))]
            chk[c1] = self.poll_check(SWS, 1)
            chk[L1 + 4] = self.poll_check(SWS, 1) + ['v_mov_b32 v%d, 132' % vPOFF, 'v_lshl_add_u32 v%d, s%d, 3, v%d' % (vPOFF, sJ, vPOFF)]
            chk[L1 + 7] = ['v_cmp_eq_u32 vcc, %d, v%d' % (self.opt('quant', 15), R), 'v_mov_b32 v%d, 1' % R, 'v_cndmask_b32 v%d, v%d, v%d, vcc' % (M, O, M)]
            chk[L1 + 15] = ['v_add_u32 v%d, 1, v%d' % (R, R)]
            chk[L1 + 28] = self.poll_check(SDBG, 0) + slices
            fill[4], fill[c0], fill[P3] = (f1, c0), (f2, c1 + 1), (f3, P3 + 6)
            fill[L1 + 12], fill[L1 + 23], fill[N1 + 2] = (f4, L1 + 23), (f5, N1 + 2), (f6, N1 + 3)
            spread([self.flag_store(0, ['hst'])], 4, 5)
            spread([self.poll_load(SDBG)], 7, 8)
            spread([self.poll_load(SWS)], c1 - 5, c1 - 4)
            w2 = []
            for k in range(4):
                w2 += self.whalf('w2', k, 2 + k)
            spread(w2, 4, P3 - 19)
            spread([Job('buffer_load_dwordx4 %s, v%d, %s, 0 offen offset:%d sc1' % (vr('v', vX + 4 * k, 4), G + (k >> 2), srd(SH), 1024 * (k & 3)))
                    for k in range(16)], c1 + 1, P3 - 3, 2)
            spread([self.flag_store(1, ['x1st'])], P3 + 4, P3 + 5)
            spread([self.poll_load(SWS), dbg('buffer_atomic_add', 4)], L1, L1 + 1)
            spread([dbg('buffer_atomic_add', 68)], L1 + 8, L1 + 9)
            spread([dbg('buffer_store_dword', 132)], L1 + 16, L1 + 17)
            spread([self.poll_load(SDBG)], L1 + 24, L1 + 25)
            spread([Job('buffer_load_dwordx2 %s, v%d, %s, 0 offen offset:%d sc1' % (vr('a', aSTAT + 2 * k, 2), vT + 4, srd(SWS), 128 * k)) for k in range(2)]
                   + self.gather('v', vX, sX1I, 0, 'sc1' + ' nt' * self.opt('nt1', 0)), L1 + 7, L1 + 29, 2)
            spread(self.warm(SW3, vT + 3, sW3W, (0, 256)) + self.warm(SW4, vACT, sW4W, (0, 1024)) + self.warm(SCODE, vACT, sCW, (0,)), L1 + 31, L1 + 33, 3)
            spread(sum([self.whalf('w3', k, k, None) for k in range(self.opt('w3pre', 6))], []), N1 - self.opt('w3at', 9), N1 + 2)
        self.segment(0, N1, sched, loop=(L0, L1), inline={P3: self.p3})

    def h2a(self, tb, slot):
        return 16384 + (tb & 1) * 8192 + (tb >> 1) * 32768 + slot * 1024

    def mlp(self):
        e = self.s
        P = lambda b: vr('v', b, 2)
        e('@sec LN x1')
        o, wr = [], ['ds_write_b128 v%d, %s offset:%d' % (vT + 3, vr('v', vX + 4 * ks, 4), 1024 * ks) for ks in range(16)]
        for ks in range(self.ln_done, 16):
            t = vP + 8 * (ks & 1)
            for k in range(4):
                o += ['v_lshlrev_b32 v%d, 16, v%d' % (t + 2 * k, vX + 4 * ks + k), 'v_and_b32 v%d, 0xffff0000, v%d' % (t + 2 * k + 1, vX + 4 * ks + k)]
            if ks - self.ln_done < self.ln_done:
                o.append(wr[ks - self.ln_done])
            for k in range(4):
                o.append('v_pk_fma_f32 %s, %s, %s, %s op_sel_hi:[1,0,0]' % (P(t + 2 * k), P(t + 2 * k), P(vS + 6), P(vS + 4)))
            for k in range(4):
                o.append('v_cvt_pk_bf16_f32 v%d, v%d, v%d' % (vX + 4 * ks + k, t + 2 * k, t + 2 * k + 1))
            o.append(wr[ks])
        o += wr[16 - self.ln_done:self.ln_done]
        self.put(o)
        self.touch(1)
        self.stamp()
        e('s_cmp_ge_u32 s%d, 6\ns_cbranch_scc1 L_mlp_small' % sRANK)
        n0, names = self.nstamp, len(self.tail)
        main, self.s = self.s, Stream(known=['w3%d' % k for k in range(self.opt('w3pre', 6))])
        self.s('L_mlp_small:\ns_waitcnt vmcnt(0) lgkmcnt(0)')
        self.mlp_body(True)
        self.s('s_waitcnt vmcnt(0) lgkmcnt(0)\ns_branch L_mlp_done')
        self.s.insert_waits()
        self.s.pad_hazards()
        self.aside, self.s = self.s, main
        self.nstamp, self.tail[names:] = n0, []
        self.mlp_body(False)
        e('L_mlp_done:')

    def mlp_body(self, small):
        e = self.s
        P = lambda b: vr('v', b, 2)
        e('@sec P5')
        n3 = 8 if small else 16
        sync = lambda: self.s('s_barrier', need=['*lg'])
        piece = lambda h: self.whalf('w3', h, h, small) if h < n3 else self.whalf('w4', h - n3, h, small)
        groups = [(['w3%d' % (k // 2)] if small else ['w3%d' % k, 'w3%d' % (k + 1)], [k, k + 1], [vX + 16 * b for b in range(n3 // 4)], k == 0) for k in range(0, 16, 2)]
        p = self.gemm(0, groups, lambda k, tb: (vACT, (tb * 16 + k) * 1024), [piece(h) for h in range(6, n3 + 6)], sum([piece(h) for h in range(self.opt('w3pre', 6), 6)], []), sync)
        HW, KC = vT, vT + 2
        f = ('v_lshl_add_u32 v%d, s%d, %d, v%d\nv_mov_b32 v%d, %s\n' % (HW, sW, 10 if small else 11, vACT, KC, f2u(-K1)) +
             'v_lshlrev_b32 v%d, 7, v%d\nv_mov_b32 v%d, 0x%x\nv_cmp_gt_u32 vcc, 2, v%d\n' % (vS, vL, vS + 1, OOB, vL) +
             'v_and_b32 v%d, 7, v%d\nv_lshl_add_u32 v%d, v%d, 2, s%d\nv_cndmask_b32 v%d, v%d, v%d, vcc\n' % (vS + 2, vL, vPOFF, vS + 2, sCF, vFLAG, vS + 1, vS) +
             'v_and_b32 v%d, 15, v%d\nv_lshlrev_b32 v%d, 10, v%d\n' % (vS, vL, vS, vS) +
             'v_lshrrev_b32 v%d, 4, v%d\nv_lshl_or_b32 v%d, v%d, 3, v%d' % (vS + 1, vL, vW1, vS + 1, vS)).split('\n')
        assert not p.fill(f)
        p.emit(self)
        self.stamp()
        e('@sec gelu')
        e('s_barrier')
        o, n = [], 0
        for pp in range(n3 // 8):
            for tb in range(4):
                d = vS + 4 * (n % 4)
                for g in range(2):
                    o += self.gelu4(vX + 16 * (2 * pp + g) + 4 * tb, d + 2 * g, vP + 4 * g, KC)
                n += 1
                o.append('ds_write_b128 v%d, %s offset:%d' % (HW, vr('v', d, 4), self.h2a(tb, pp)))
        self.put(o)
        self.stamp()
        e('@sec P7')
        accB, ng = (vS, vP, vX, vX + 32), n3 // 4
        groups = [(['w4%d' % (2 * (ng * ps + k) + i) for i in range(2)], [2 * k, 2 * k + 1], accB if ps else [vX + 16 * b for b in range(4)], k == 0)
                  for ps in range(2) for k in range(ng)]
        p = self.gemm(n3, groups, lambda k, tb: (vACT, self.h2a(tb, k)), [piece(h) for h in range(n3 + 6, 2 * n3)], p.rest, sync, self.tile_dma(0, 'kv0'))
        assert not p.rest
        for pp, (lo, hi) in enumerate(((p.st[ng - 1] + 18, p.st[ng] + 16), (p.st[ng] + 2, p.st[ng] + 24))):
            pk = []
            for tb in range(4):
                a = vX + 32 * pp + 4 * tb
                pk += self.pack(a + 16, a, a + 16)
            p.g[hi - 1]['va'] += p.fill(pk, lo, hi)
        pk = self.vaddr_restore()
        for tb in range(4):
            pk += self.pack(vP + 4 * tb, vS + 4 * tb, vP + 4 * tb)
        rest = p.fill(pk, p.st[-1] + 17)
        p.emit(self)
        self.put(rest)
        for tb in range(4):
            self.put(self.pack(vX + 32 + 4 * tb, vX + 4 * tb, vX + 32 + 4 * tb))
        for r in range(0, 16, 2):
            e('v_pk_mov_b32 %s, %s, %s op_sel:[0,1]' % (P(vX + r), P(vP + r), P(vP + r)))
        self.yfrag = {(0, 0): vX + 16, (0, 1): vX + 48, (1, 0): vX, (1, 1): vX + 32}
        self.stamp()

    def part_flag(self, word, need):
        return Job(Ins('buffer_store_dword v%d, v%d, %s, s%d offen offset:%d sc1' % (vONE, vFLAG, srd(SWS), sFP, 4 * word), need=need))

    def attention2(self):
        e = self.s
        e('@sec attention 2a')
        N2 = 256 - self.opt('n1', 176)
        H, T = self.opt('head2', 32), N2 - self.opt('tail2', 32)

        def sched(spread, chk, fill):
            chk[T + 4] = self.poll_check(SWS, 1)
            spread([self.part_store(self.yfrag[h, pp] + 4 * tb, YP_OFF + 65536 * pp + 16384 * tb + 1024 * h, 'yst', sYO)
                    for h in range(2) for pp in range(2) for tb in range(4)], 4, H - 8, 2)
            spread([self.part_flag(0, ['yst'])], H - 8, H - 7)
            spread(self.warm(SWO, vACT, sWOW, (0, 1024, 2048, 3072)) + self.warm(SCODE, vACT, sCW, (0,)), H - 8, H - 6)
            spread([self.poll_load(SWS)], T, T + 1)
            spread([Job('buffer_load_dwordx2 %s, v%d, %s, s%d offen offset:%d' % (vr('a', aRES + 2 * nb, 2), vW1, srd(SX), sXO, 512 * (nb >> 1) + 32 * (nb & 1)))
                    for nb in range(4)], T, T + 2)
            spread(self.gather('v', vX, sPI, YP_OFF, 'sc1' + ' nt' * self.opt('nt2', 1)), T + 5, N2 - 8, 2)
            od = self.pair_order(self.opt('p6_early', 4))
            spread(sum([self.whalf('wo', od[k], h) for k, h in ((28, 2), (29, 3), (30, 4), (31, 5), (0, 0), (1, 1))], []), N2 - 12, N2 - 1)
            late = self.whalf('wo', od[2], 2) + self.whalf('wo', od[3], 3)
            late[0].ins.need = ['held0']
            spread(late, N2 + 1, N2 + 3)
            fill[N2 - 4] = (self.waddr(vT, vT + 4, 's%d' % sRING), N2 - 2)
        od = self.pair_order(self.opt('p6_early', 4))
        extra = [((N2 - 2 + g, 8), [Ins('ds_read_b64_tr_b16 %s, v%d offset:%d' % (vr('a', aK + 32 * g + 8 * b + 4 * kk + 2 * x, 2), vT + b, (2 + 2 * g + kk) * 4096 + 2048 * x),
                                        need=['wo%d' % od[28 + 2 * g + kk]], tag='held%d' % g) for b in range(4) for kk in range(2) for x in range(2)]) for g in range(2)]
        self.segment(1, N2, sched, loop=(H, T) if T >= H + 32 else None, extra=extra)
        self.o_epilogue()

    def o_epilogue(self):
        e = self.s
        e('@sec O epilogue')
        e('L_oepi:')
        for r in range(8):
            e('v_accvgpr_read_b32 v%d, a%d' % (vS + r, aL + r))
        for qb in range(4):
            e('v_add_f32 v%d, v%d, v%d' % (vS + 2 * qb, vS + 2 * qb, vS + 2 * qb + 1))
        B = vS + 8
        for qb in range(4):
            e('v_subrev_u32 v%d, 0x2b800000, v%d' % (B + qb, vS + 2 * qb))
        e('v_max3_u32 v%d, v%d, v%d, v%d\nv_max_u32 v%d, v%d, v%d' % (B, B, B + 1, B + 2, B, B, B + 3))
        e('v_cmp_lt_u32 vcc, 0x28000000, v%d' % B)
        e('v_and_b32 v%d, 3, v%d\nv_lshlrev_b32 v%d, 12, v%d\nv_lshl_add_u32 v%d, s%d, 2, v%d' % (B + 1, vL, B + 1, B + 1, B + 1, sW, B + 1))
        e('s_or_b32 s%d, vcc_lo, vcc_hi' % sT0)
        e('v_mov_b32 v%d, s%d' % (B, sT0))
        e('ds_write_b32 v%d, v%d' % (B + 1, B))
        for qb in range(4):
            e('v_rcp_f32 v%d, v%d' % (vS + 2 * qb, vS + 2 * qb))
        e('v_lshl_add_u32 v%d, s%d, 12, v%d' % (vP, sW, vACT))
        e('s_lshl_b32 s%d, s%d, 12\nv_mov_b32 v%d, s%d' % (sT0, sW, B + 1, sT0))
        e('s_barrier', need=['*lg'])
        e('ds_read_b128 %s, v%d' % (vr('v', B + 4, 4), B + 1))
        for qb in range(4):
            for ks in range(4):
                a = vACC + 32 * ks + 4 * qb
                for h in (0, 2, 16, 18):
                    e('v_pk_mul_f32 %s, %s, %s op_sel_hi:[1,0]' % (vr('v', a + h, 2), vr('v', a + h, 2), vr('v', vS + 2 * qb, 2)))
                self.put(self.pack(a + 16, a, a + 16))
                if qb == 0 and ks < 2:
                    if ks == 0:
                        continue
                    e('v_or3_b32 v%d, v%d, v%d, v%d\nv_or_b32 v%d, v%d, v%d' % (B, B + 4, B + 5, B + 6, B, B, B + 7))
                    e('v_cmp_ne_u32 vcc, 0, v%d\ns_cbranch_vccnz L_slow\nL_ofine:' % B)
                    e('ds_write_b128 v%d, %s' % (vP, vr('v', vACC + 16, 4)))
                e('ds_write_b128 v%d, %s offset:%d' % (vP, vr('v', a + 16, 4), (16 * qb + ks) * 1024))
        self.put(self.waddr(vTR, vT, 's%d' % sRING))
        self.stamp()
        self.slow_path()

    def slow_path(self):
        main, self.s = self.s, Stream()
        e = self.s
        M = vT
        e('L_slow:\ns_cmp_lg_u32 s%d, 0\ns_cbranch_scc1 L_ofine\ns_mov_b32 s%d, 1' % (sPASS, sPASS))
        e('s_waitcnt vmcnt(0) lgkmcnt(0)')
        for ps in range(2):
            e('s_mov_b32 s%d, 0\ns_mov_b32 s%d, 0\ns_mov_b32 s%d, 64' % (sKO, sVO, sCNT))
            if ps == 0:
                for qb in range(4):
                    e('v_mov_b32 v%d, 0xff800000' % (M + qb))
            else:
                for qb in range(4):
                    for op in ('v_permlane32_swap_b32', 'v_permlane16_swap_b32'):
                        e('v_mov_b32 v%d, v%d\n%s v%d, v%d\nv_max_f32 v%d, v%d, v%d' % (vS, M + qb, op, vS, M + qb, M + qb, M + qb, vS))
                e('v_lshrrev_b32 v%d, 4, v%d\nv_xor_b32 v%d, v%d, v%d\nv_bfe_i32 v%d, v%d, 1, 1' % (vS, vL, vS, vS, vL, vS, vS))
                e('v_not_b32 v%d, v%d\nv_and_b32 v%d, 0x3f803f80, v%d' % (vS, vS, vS, vS))
                for r in range(4):
                    e('v_accvgpr_write_b32 a%d, v%d' % (aONES + r, vS))
                for r in range(128):
                    e('v_mov_b32 v%d, 0' % (vACC + r))
                for r in range(8):
                    e('v_accvgpr_write_b32 a%d, 0' % (aL + r))
            e('L_slow%d:\ns_barrier' % ps)
            self.emit_jobs(self.kv_dma('K', 0, 'k') + (self.kv_dma('V', 0, 'k') if ps else []))
            e('s_barrier', need=['k'])
            self.put([self.krd(0, f, aV + 32) for f in range(8)] + ([self.vrd(0, h) for h in range(16)] if ps else []))
            e('s_waitcnt lgkmcnt(0)')
            for qb in range(4):
                for kb in range(2):
                    for ks in range(4):
                        e(mfma(vr('v', vS + 4 * kb, 4), vr('a', aV + 32 + 16 * kb + 4 * ks, 4), vr('a', aQ + 16 * qb + 4 * ks, 4), '0' if ks == 0 else None))
                if ps == 0:
                    for r in range(0, 8, 2):
                        e('v_max3_f32 v%d, v%d, v%d, v%d' % (M + qb, M + qb, vS + r, vS + r + 1))
                    continue
                for r in range(8):
                    e('v_sub_f32 v%d, v%d, v%d' % (vS + r, vS + r, M + qb))
                for r in range(8):
                    e('v_exp_f32 v%d, v%d' % (vS + r, vS + r))
                for r in range(4):
                    e('v_cvt_pk_bf16_f32 v%d, v%d, v%d' % (vP + 4 * qb + r, vS + 2 * r, vS + 2 * r + 1))
                for db in range(8):
                    e(mfma(vr('v', vACC + 16 * db + 4 * qb, 4), vr('a', aV + 4 * db, 4), vr('v', vP + 4 * qb, 4)))
                if qb & 1:
                    e(self.rowsum(qb >> 1, aONES, vP + 4 * (qb - 1)))
            e('s_nop 7\ns_sub_u32 s%d, s%d, 1\ns_cmp_lg_u32 s%d, 0\ns_cbranch_scc1 L_slow%d' % (sCNT, sCNT, sCNT, ps))
        e('s_barrier\ns_branch L_oepi')
        e.insert_waits()
        e.pad_hazards()
        self.tail.append(e.text())
        self.s = main

    SEL = vT

    def reduce(self, acc, f, regs, ks, first=False):
        return [mfma(vr('v', acc + 4 * (2 * (k & 1) + g), 4), vr('v', self.SEL + 2 - 2 * g, 4), vr(f, regs + 4 * k, 4), '0' if (first and k < 2) else None)
                for k in ks for g in range(2)]

    def collect(self, acc, regs, base):
        e, L = self.s, 'L_c'
        NEW, N = sT0, sT1
        e('s_mov_b32 s%d, 0x80000' % sT3)
        if self.opt('pollfirst', 0):
            e('s_waitcnt vmcnt(1)\ns_branch %s_got' % L)
        e('%s_wait:\ns_waitcnt vmcnt(0)\nL_c_got:\nv_cmp_eq_u32 vcc, 1, v%d\ns_and_b32 s%d, vcc_lo, 0xff' % (L, vPRES, NEW))
        e('s_andn2_b32 s%d, s%d, s%d\ns_cbranch_scc0 %s_poll' % (NEW, NEW, sDONE, L))
        e('s_or_b32 s%d, s%d, s%d\ns_bcnt1_i32_b32 s%d, s%d' % (sDONE, sDONE, NEW, N, NEW))
        for n in range(1, 7):
            e('s_cmp_eq_u32 s%d, %d\ns_cbranch_scc1 %s_ld%d' % (N, n, L, 7 - n))
        for q in range(7):
            e('%s_ld%d:\ns_ff1_i32_b32 s%d, s%d\ns_bitset0_b32 s%d, s%d' % (L, q, sT2, NEW, NEW, sT2))
            e('s_lshl_b32 s%d, s%d, 11\ns_add_u32 s%d, s%d, s%d' % (sT2, sT2, sT2, sT2, base))
            for p in range(2):
                e('buffer_load_dwordx4 %s, v%d, %s, s%d offen offset:%d sc1' % (vr('a', regs + 8 * q + 4 * p, 4), vACT, srd(SWS), sT2, 1024 * p))
        e.add(self.poll_load(SWS).ins)
        for n in range(1, 7):
            e('s_cmp_eq_u32 s%d, %d\ns_cbranch_scc1 %s_mm%d' % (N, n, L, 7 - n))
        for q in range(7):
            e('%s_mm%d:' % (L, q))
            self.put(self.reduce(acc, 'a', regs, (2 * q, 2 * q + 1)))
        e('s_cmp_lg_u32 s%d, 0xff\ns_cbranch_scc1 %s_wait\n%s_end:' % (sDONE, L, L))
        self.tail.append('%s_poll:\n    %s\n    s_sub_u32 s%d, s%d, 1\n    s_cbranch_scc0 %s_wait\n    s_branch %s_end' % (L, self.poll_load(SWS).ins.text, sT3, sT3, L, L))

    def p6_final(self):
        e = self.s
        P = lambda b: vr('v', b, 2)
        e('@sec P6')
        NE = self.opt('p6_early', 4)
        od = self.pair_order(NE)
        p = self.gemm(0, self.pair_groups('wo', od), lambda k, tb: (vACT, (tb * 16 + k) * 1024), [self.whalf('wo', od[h], h) for h in range(6, 28)],
                      self.whalf('wo', od[4], 4) + self.whalf('wo', od[5], 5), lambda: self.s('s_barrier', need=['*lg']),
                      WF=aQ, AF=aV, held={14: aK, 15: aK + 32})
        pk, st = [[], []], [[], []]
        for h in range(2):
            for pp in range(2):
                for tb in range(4):
                    a = vACC + 64 * h + 32 * pp + 4 * tb
                    pk[h].append(self.pack(a + 16, a, a + 16))
                    st[h].append(self.part_store(a + 16, SP_OFF + 65536 * pp + 16384 * tb + 1024 * h, 'sst', vo=vDB + pp))
        if NE:
            pos = list(range(p.dma_end + self.opt('a_start', 16), 512, self.opt('a_step', 8)))[:8]
            for k, q in enumerate(pos):
                p.jobs(self.flat([st[0][k]]), [q], lo=q - 2)
            for k, q in enumerate(pos):
                assert not p.fill(pk[0][k], 32 * (16 - NE) + 2, q)
            pk[0], st[0] = pk[0][len(pos):], st[0][len(pos):]
        SEL, ZZ, XF, SS, E = self.SEL, vS, vP, vACC, vACC + 32
        t = vKA
        f = ('v_lshrrev_b32 v%d, 4, v%d\nv_bfe_u32 v%d, v%d, 2, 2\nv_and_b32 v%d, 1, v%d\nv_lshlrev_b32 v%d, 4, v%d\n' % (t + 1, vL, t, vL, t + 2, vL, t + 2, t + 2) +
             'v_mov_b32 v%d, 0x3f80\nv_lshlrev_b32 v%d, v%d, v%d\n' % (t + 3, t + 2, t + 2, t + 3) +
             'v_cmp_eq_u32 vcc, v%d, v%d\nv_mov_b32 v%d, 0\nv_mov_b32 v%d, 0\n' % (t, t + 1, SEL, SEL + 1) +
             'v_cndmask_b32 v%d, 0, v%d, vcc\nv_and_b32 v%d, 2, v%d\nv_cmp_eq_u32 vcc, 0, v%d\n' % (t + 2, t + 2, t, vL, t) +
             'v_mov_b32 v%d, 0\nv_mov_b32 v%d, 0\nv_cndmask_b32 v%d, 0, v%d, vcc\n' % (SEL + 4, SEL + 5, SEL + 2, t + 2) +
             'v_sub_u32 v%d, v%d, v%d\n' % (SEL + 3, t + 2, SEL + 2) +
             'v_lshl_add_u32 v%d, v%d, 3, v%d' % (vW2, t + 1, vW1)).split('\n')
        p.scalars(['s_lshl_b32 s%d, s%d, 1' % (sVO, sW), 's_sub_u32 s%d, s%d, s%d' % (sVO, sJ, sVO), 's_lshr_b32 s%d, s%d, 1' % (sCNT, sJ),
                   's_mul_i32 s%d, s%d, %d' % (sCNT, sCNT, WWAVE), 's_add_u32 s%d, s%d, s%d' % (sCNT, sCNT, sW2K), 's_add_u32 s%d, s%d, %d' % (sCNT, sCNT, WREG)], 0, 16)
        f += ['v_mov_b32 v%d, 0x%x' % (t, OOB), 'v_mov_b32 v%d, s%d' % (t + 1, sVO), 'v_cmp_eq_u32 vcc, 0, v%d' % (t + 1),
              'v_add_u32 v%d, s%d, v%d' % (vDB + 2, sRING, vACT), 'v_add_u32 v%d, s%d, v%d' % (vDB + 3, sCNT, vACT),
              'v_cndmask_b32 v%d, v%d, v%d, vcc' % (vDB, vACT, t), 'v_cmp_eq_u32 vcc, 1, v%d' % (t + 1),
              'v_add_u32 v%d, 32, v%d' % (vPOFF, vPOFF), 'v_cndmask_b32 v%d, v%d, v%d, vcc' % (vDB + 1, vACT, t)]
        assert not p.fill(f, 0, 48)
        red = self.reduce(XF, 'a', aRES, (0, 1), True) + self.reduce(ZZ, 'a', aX1, (0, 1), True) + self.reduce(ZZ, 'v', vX, range(16))
        gate = ['s_mov_b32 s%d, %s' % (sC0 + k, f2u(-math.log2(math.e))) for k in range(2)]
        gate += ['v_pk_mul_f32 %s, %s, s[%d:%d]' % (P(E + r), P(ZZ + r), sC0, sC0 + 1) for r in range(0, 16, 2)]
        gate += ['v_exp_f32 v%d, v%d' % (E + r, E + r) for r in range(16)]
        gate += ['v_pk_add_f32 %s, %s, 1.0 op_sel_hi:[1,0]' % (P(E + r), P(E + r)) for r in range(0, 16, 2)]
        gate += ['v_rcp_f32 v%d, v%d' % (E + r, E + r) for r in range(16)]
        gate += ['v_pk_mul_f32 %s, %s, %s' % (P(ZZ + r), P(ZZ + r), P(E + r)) for r in range(0, 16, 2)]
        p.scalars(['s_lshl_b32 s%d, 1, s%d' % (sDONE, sJ), 's_add_u32 s%d, s%d, 0x%x' % (sKO, sPI, SP_OFF)], 16, 24)
        if self.opt('p6stamp', 0):
            for q in (127, 255, 383, p.dma_end - 2, 479):
                p.g[q]['end'] += self.stamp_items('q%d' % q)
        p.emit(self)
        self.stamp('P6')
        e('@sec s epilogue')
        self.sprinkle(sum(pk[0] + pk[1], []), st[0] + st[1], start=4, every=4)
        self.stamp('issued')
        for pp in range(2):
            e('s_cmp_lg_u32 s%d, %d\ns_cbranch_scc1 L_other%d' % (sVO, pp, pp))
            for h in range(2):
                for tb in range(4):
                    e('ds_write_b128 v%d, %s offset:%d' % (vDB + 2, vr('v', vACC + 64 * h + 32 * pp + 16 + 4 * tb, 4), 2048 * tb + 1024 * h))
            e('L_other%d:' % pp)
        e('s_waitcnt lgkmcnt(0)\ns_barrier')
        for h in range(2):
            e('ds_read_b128 %s, v%d offset:%d' % (vr('a', 4 * h, 4), vDB + 3, 1024 * h))
        self.put(red + self.reduce(SS, 'a', 0, (0, 1), True))
        gb = self.opt('gate_before', 0)
        pf = self.opt('pollfirst', 0)
        self.emit_jobs([self.poll_load(SWS)] * pf)
        self.put(gate[:gb])
        self.emit_jobs([self.part_flag(8, ['sst'])] + [self.poll_load(SWS)] * (1 - pf))
        self.stamp('acked')
        self.put(gate[gb:])
        self.collect(SS, 64, sKO)
        self.stamp('collected')
        for nb in range(4):
            for r in range(4 * nb, 4 * nb + 4, 2):
                e('v_pk_fma_f32 %s, %s, %s, %s' % (P(XF + r), P(SS + r), P(ZZ + r), P(XF + r)))
            for k in range(2 * nb, 2 * nb + 2):
                e('v_cvt_pk_bf16_f32 v%d, v%d, v%d' % (E + k, XF + 2 * k, XF + 2 * k + 1))
            om = self.opt('outmode', 2)
            if om < 2:
                e('buffer_store_dwordx2 %s, v%d, %s, s%d offen offset:%d%s' % (P(E + 2 * nb), vW1, srd(SOUT), sXO, 512 * (nb >> 1) + 32 * (nb & 1), ' sc1' * om))
            elif nb & 1:
                t = E + 2 * nb - 2
                for op in ('v_permlane32_swap_b32', 'v_permlane16_swap_b32'):
                    e('%s v%d, v%d\n%s v%d, v%d' % (op, t, t + 2, op, t + 1, t + 3))
                e('buffer_store_dwordx4 %s, v%d, %s, s%d offen offset:%d sc1' % (vr('v', t, 4), vW2, srd(SOUT), sXO, 512 * (nb >> 1)))
        if 'diag' in self.o:
            self.stamp('end')
            if self.o['diag'].startswith('xcc'):
                e('v_mov_b32 v%d, 4\nbuffer_load_dword v%d, v%d, %s, 0 offen sc1\ns_waitcnt vmcnt(0)' % (vT, vT + 1, vT, srd(SDBG)))
                e('v_readfirstlane_b32 s100, v%d\ns_nop 3\ns_bcnt1_i32_b32 s100, s100\ns_mul_i32 s100, s100, 1000\ns_mov_b32 s98, 1000' % (vT + 1))
            e('s_sub_u32 s100, s100, s98\ns_mul_i32 s100, s100, %s\ns_min_u32 s100, s100, 100000' % self.o['diag'].split(':')[2])
            e('s_memrealtime s[98:99]\ns_waitcnt lgkmcnt(0)\ns_add_u32 s100, s100, s98')
            e('L_diag:\ns_memrealtime s[98:99]\ns_waitcnt lgkmcnt(0)\ns_sub_u32 s98, s98, s100\ns_cmp_lt_i32 s98, 0\ns_cbranch_scc1 L_diag')
        if self.prof:
            e('s_waitcnt vmcnt(0)')
            self.stamp('end')
            e('v_accvgpr_read_b32 v%d, a%d\nv_accvgpr_read_b32 v%d, a%d' % (vT, aPROF, vT + 1, aPROF + 1))
            e('s_lshl_b32 s%d, s2, 11\ns_lshl_b32 s%d, s%d, 9\ns_add_u32 s%d, s%d, s%d' % (sT0, sT1, sW, sT0, sT0, sT1))
            e('s_add_u32 s%d, s%d, 0x%x\nv_lshlrev_b32 v%d, 3, v%d' % (sT0, sT0, PROF_OFF, vT + 2, vL))
            e('buffer_store_dwordx2 %s, v%d, %s, s%d offen' % (vr('v', vT, 2), vT + 2, srd(SWS), sT0))

    def build(self, verbose=False):
        for phase in (self.prologue, self.p0, self.p2, self.q_p1, self.attention1, self.mlp, self.attention2, self.p6_final):
            phase()
        s = self.s
        s.insert_waits()
        pads = s.pad_hazards()
        est = s.estimate()
        s.fold()
        s.l += [Ins('L_end:'), Ins('s_endpgm'), Ins('@mark main_end')] + self.aside.l
        fixes = s.align(self.opt('touch', 1))
        if self.opt('touch', 1):
            n, cut = s.marks['main_end'] + 1, self.opt('touch_cut', 15)
            assert s.marks['touch1'] < cut + 1 or cut >= n
            for r, (lo, hi) in enumerate(((0, min(cut, n)), (min(cut, n), n))):
                for k in range(lo, hi):
                    s.pages[k].text = 's_cbranch_execz ' + ('L_pg%d' % (k + 4) if k + 4 < hi else 'L_touched%d' % r)
                for x in s.l:
                    for w in range(4):
                        if x.text.endswith(' L_touch%d_%d' % (r, w)):
                            x.text = x.text.replace('L_touch%d_%d' % (r, w), 'L_pg%d' % (lo + w) if lo + w < hi else 'L_touched%d' % r)
        if verbose:
            print('alignment fixes:', fixes, 'pages:', len(s.pages), s.marks)
        if verbose:
            print('hazard pads:', pads)
            for name, cyc, nm in est:
                print('  %-18s est %6d cycles, %5d mfma (%6d)' % (name, cyc, nm, nm * 16))
            print('  total', sum(c for _, c, _ in est))
        ref = open('cdna_kernels/%s.s.ref' % NAME).read().split('\n')
        head = [l for l in ref if l.startswith(';') and '@launch' not in l]
        o = head + ['; @launch grid=(256,1,1) block=(256,1,1) lds=163840',
                    '.amdgcn_target "amdgcn-amd-amdhsa--gfx950"', '.text', '.globl %s_kernel' % NAME, '.p2align 8',
                    '.type %s_kernel,@function' % NAME, '%s_kernel:' % NAME]
        o.append(s.text())
        o += self.tail
        o.append('L_code_end:\n    s_endpgm')
        o.append('''.section .rodata,"a"
.p2align 6
.amdhsa_kernel %s_kernel
  .amdhsa_next_free_vgpr 512
  .amdhsa_next_free_sgpr 102
  .amdhsa_accum_offset 256
  .amdhsa_group_segment_fixed_size 0
  .amdhsa_kernarg_size 104
  .amdhsa_user_sgpr_count 2
  .amdhsa_user_sgpr_kernarg_segment_ptr 1
  .amdhsa_system_sgpr_workgroup_id_x 1
  .amdhsa_float_denorm_mode_32 3
.end_amdhsa_kernel''' % NAME)
        return '\n'.join(o) + '\n'


if __name__ == '__main__':
    out = sys.argv[1] if len(sys.argv) > 1 else 'k.s'
    opts = dict(a.split('=') for a in sys.argv[2:])
    SP_OFF, YP_OFF = int(opts.get('sp', hex(SP_OFF)), 0), int(opts.get('yp', hex(YP_OFF)), 0)
    open(out, 'w').write(Gen(False, opts).build(True))
    open(out.replace('.s', '_prof.s'), 'w').write(Gen(True, opts).build())
    open(out.replace('.s', '_lite.s'), 'w').write(Gen(2, opts).build())
```

```python
import math
import struct
import sys

sys.path.insert(0, 'work')
from asmgen import Ins, Stream, vr

NAME = 'recurrent_scan__gqa_block_cached__mixer_s_mlp__prompt'


def f2u(x):
    return '0x%08x' % struct.unpack('<I', struct.pack('<f', x))[0]


H_OFF = 0
X1_OFF = 0x200000
FLAG_OFF = 0x400000
ST_OFF = 0x600000
SP_OFF = 0x1000000
YP_OFF = 0x2000000
PROF_OFF = 0x8000000
OOB = 0x40000000

KRING, VRING = 0, 32768
WREG = 65536
WWAVE = 24576

SX, SK, SV, SWQ, SWO, SW1, SW2, SW3, SW4, SOUT, SDBG, SWS, SH, SCODE = range(4, 60, 4)
sT, sJ, sW, sTBG, sRING, sW2K = 60, 61, 62, 63, 64, 65
sO, sDONE, sKO, sVO, sCNT, sRET = 66, 67, 68, 69, 70, 71
sT0, sT1, sT2, sT3 = 72, 73, 74, 75
sC0 = 76
sPASS, sWSH = 78, 79
sST = 80
sHO, sX1O, sX1I, sSTO, sPO, sPI, sCF, sFP, sXO, sCW, sW3W, sW4W, sWOW, sSTEP = range(84, 98)
sRANK, sYO = sHO, sX1O

vL = 0
vTR = 1
vKA = 9
vACT = 13
vWN, vW3, vW2, vW1 = 14, 15, 16, 17
vDB = 18
vFLAG, vONE, vPOFF, vPRES = 22, 23, 24, 25
vT = 26
vIDX = 31
vS, vP = 32, 48
vX = 64
vACC = 128
aK, aV, aONES, aL, aX1, aQ = 0, 64, 128, 132, 140, 192
aPROF, aDUMMY, aSTAT, aRES, aONE2 = 150, 152, 156, 160, 168

LITE = (3, 59, 98, 99, 100, 101, 82, 83)
CSCALE = math.log2(math.e) / math.sqrt(128.0)
K1 = 2 * 0.7978845608028654 * math.log2(math.e)
K2 = K1 * 0.044715


def srd(n):
    return 's[%d:%d]' % (n, n + 3)


def mfma(d, a, b, c=None):
    return 'v_mfma_f32_16x16x32_bf16 %s, %s, %s, %s' % (d, a, b, d if c is None else c)


DOC = """; One persistent launch, one workgroup per CU: workgroup b handles token block t = b/8 (64 tokens) and kv head
; j = b%8; wave w owns query head 4j+w.  All products are computed transposed (tokens on MFMA columns) with
; v_mfma_f32_16x16x32_bf16; weights, K and V stream global -> LDS by DMA and are read with transposing loads.
; the sums are checked after the loop and otherwise the workgroup repeats the attention with the true row maximum
; cleared by their owner at start and used only after the arrival counters in d_debug show the clears are done."""


class Job:
    def __init__(self, ins, pre=(), m0=None, post=()):
        self.ins = ins if isinstance(ins, Ins) else Ins(ins)
        self.pre, self.m0, self.post = list(pre), m0, list(post)


class Plan:
    def __init__(self):
        self.mf, self.g = [], []

    def add(self, m):
        self.mf.append(m)
        self.g.append(dict(sc=[], ds=[], vm=[], va=[], end=[]))
        return len(self.mf) - 1

    def cap(self, j):
        g = self.g[j]
        if g['vm'] or g['end']:
            return 0
        c = 1 if self.mf[j].startswith('v_smfmac') else 2
        return c - len(g['ds']) - sum(vcost(x) for x in g['va']) - max(0, len(g['sc']) - 1)

    def jobs(self, groups, pos, lo=0, avoid=()):
        prev, pend = lo - 1, []
        for (pre, d, post), p in zip(groups, pos):
            self.scalars(pend + pre, prev + 1, p, avoid, late=True)
            assert not self.g[p]['vm'], 'gap %d already holds a memory instruction' % p
            self.g[p]['vm'].append(d)
            prev, pend = p, post
        return prev, pend

    def scalars(self, sc, a, b, avoid=(), late=False):
        if not sc:
            return
        c = [j for j in range(a, b) if not self.g[j]['vm'] and not self.g[j]['sc'] and j not in avoid]
        if len(c) < len(sc):
            c = [j for j in range(a, b) if not self.g[j]['vm']]
        if not c:
            self.g[b]['sc'] += sc
            return
        c = c[-len(sc):] if late else c[:len(sc)]
        for k, x in enumerate(sc):
            self.g[c[min(k, len(c) - 1)]]['sc'].append(x)

    def fill(self, va, start=0, end=None):
        va, j = list(va), start
        end = len(self.mf) if end is None else end
        while va and j < end:
            if self.cap(j) >= vcost(va[0]):
                self.g[j]['va'].append(va.pop(0))
            else:
                j += 1
        return va

    def empty(self, start, n, step=1):
        res, j = [], start
        while len(res) < n:
            if not any(self.g[j][k] for k in ('sc', 'ds', 'vm', 'va', 'end')):
                res.append(j)
                j += step
            else:
                j += 1
        return res

    def emit(self, gen):
        for m, g in zip(self.mf, self.g):
            gen.put([m] + g['sc'] + g['vm'] + g['ds'] + g['va'] + g['end'])


def vcost(x):
    t = x.text if isinstance(x, Ins) else x
    return 2 if t.startswith(('v_exp', 'v_rcp', 'v_rsq', 'v_permlane')) else 1


class Gen:
    def __init__(self, prof=False, opts=None):
        self.s = Stream()
        self.tail = []
        self.prof = prof
        self.o = opts or {}
        self.nstamp = 0
        self.nlab = 0
        self.kv_nt = False

    def stamp(self, name=None):
        if 'diag' in self.o:
            a, b, k = self.o['diag'].split(':')
            sec = name or [x.op[5:] for x in self.s.l if x.kind == 'meta' and x.op.startswith('@sec ')][-1]
            for r, want in ((98, a), (100, b)):
                if sec.replace(' ', '_') == want:
                    self.s('s_waitcnt lgkmcnt(0) ; stamp\ns_memrealtime s[%d:%d]\ns_waitcnt lgkmcnt(0) ; stamp' % (r, r + 1))
            return
        if not self.prof or (self.prof == 2 and name not in ('kernarg', 'end', 'P0 end', 'P2 end', 'pre', 'loop')):
            return
        e = self.s
        if self.prof == 2:
            e('s_waitcnt lgkmcnt(0) ; stamp\ns_memrealtime s[%d:%d]\ns_waitcnt lgkmcnt(0) ; stamp\ns_mov_b32 s%d, s%d' % (sST, sST + 1, LITE[self.nstamp], sST))
            self.nstamp += 1
            return
        self.tail.append('; @@' + (name or [x.op[5:] for x in e.l if x.kind == 'meta' and x.op.startswith('@sec ')][-1]))
        e('s_waitcnt lgkmcnt(0) ; stamp')
        e('s_memtime s[%d:%d]\ns_memrealtime s[%d:%d]\ns_waitcnt lgkmcnt(0) ; stamp' % (sST, sST + 1, sST + 2, sST + 3))
        for k in range(2):
            e('v_accvgpr_read_b32 v%d, a%d' % (vONE, aPROF + k))
            e('s_nop 1\nv_writelane_b32 v%d, s%d, %d' % (vONE, sST + 2 * k, self.nstamp))
            e('v_accvgpr_write_b32 a%d, v%d' % (aPROF + k, vONE))
        e('v_mov_b32 v%d, 1' % vONE)
        self.nstamp += 1

    def stamp_items(self, name):
        main, self.s = self.s, Stream()
        self.s('@sec ' + name)
        self.stamp(name)
        items, self.s = self.s.l[1:], main
        return items

    def poll_load(self, buf):
        return Job('buffer_load_dword v%d, v%d, %s, 0 offen sc1' % (vPRES, vPOFF, srd(buf)))

    def poll_check(self, buf, val):
        self.nlab += 1
        n = self.nlab
        cmp = 'v_cmp_ne_u32' if val == 1 else 'v_cmp_gt_u32' if val else 'v_cmp_eq_u32'
        self.tail.append('''L_spin%(n)d:
    s_mov_b32 s%(c)d, 0x80000
L_spin%(n)d_loop:
    buffer_load_dword v%(r)d, v%(o)d, %(b)s, 0 offen sc1
    s_waitcnt vmcnt(0)
    %(cmp)s vcc, %(v)d, v%(r)d
    s_cbranch_vccz L_back%(n)d
    s_sub_u32 s%(c)d, s%(c)d, 1
    s_cbranch_scc0 L_spin%(n)d_loop
    s_branch L_back%(n)d''' % dict(n=n, c=sT3, r=vPRES, o=vPOFF, b=srd(buf), v=val, cmp=cmp))
        return [Ins('%s vcc, %d, v%d' % (cmp, val, vPRES)), Ins('s_cbranch_vccnz L_spin%d' % n), Ins('L_back%d:' % n)]

    def flag_store(self, phase, need):
        return Job(Ins('buffer_store_dword v%d, v%d, %s, s%d offen sc1' % (vONE, vFLAG, srd(SWS), sT2), need=need),
                   pre=['s_mov_b32 s%d, 0x%x' % (sT2, FLAG_OFF + phase * 131072)])

    def opt(self, k, d):
        return int(self.o.get(k, d))

    def touch(self, r):
        if not self.opt('touch', 1):
            return
        e = self.s
        e('@mark touch%d\ns_mov_b64 exec, 0' % r)
        for w in range(3):
            e('s_cmp_eq_u32 s%d, %d\ns_cbranch_scc1 L_touch%d_%d' % (sW, w, r, w))
        e('s_branch L_touch%d_3\nL_touched%d:\ns_mov_b64 exec, -1' % (r, r))

    def put(self, items):
        for x in items:
            self.s.add(x if isinstance(x, Ins) else Ins(x))

    def flat(self, jobs):
        res, m0 = [], None
        for jb in jobs:
            pre = list(jb.pre)
            if jb.m0 and jb.m0 != m0:
                pre.insert(0, jb.m0)
                m0 = jb.m0
            res.append((pre, jb.ins, list(jb.post)))
        return res

    def emit_jobs(self, jobs):
        for pre, d, post in self.flat(jobs):
            self.put(pre + [d] + post)

    def sprinkle(self, main, jobs, start=0, every=8):
        groups = self.flat(jobs)
        for k, x in enumerate(main):
            if groups and k >= start and (k - start) % every == 0:
                pre, d, post = groups.pop(0)
                self.put(pre + [d] + post)
            self.put([x])
        for pre, d, post in groups:
            self.put(pre + [d] + post)

    def whalf(self, name, k, h, small=False):
        buf, vo, stride, nat, off = {
            'wq': (SWQ, vDB, 8192, True, (k >> 1) * 32 * 8192 + (k & 1) * 128),
            'w1': (SW1, vW1, 1024, True, k * 32768),
            'w2': (SW2, vW2, 1024, False, k * 32768),
            'w3': (SW3, vW3, 3584, False, k * (64 if small else 32) * 3584),
            'w4': (SW4, vW2, 1024, False, (k % (4 if small else 8)) * 32768 + (k // (4 if small else 8)) * 512),
            'wo': (SWO, vWN, 1024, False, (k >> 1) * 32768 + (k & 1) * 512)}[name]
        rows = [16 * (a & 1) + 4 * (a >> 1) if nat else 8 * a for a in range(4)]
        return [Job(Ins('buffer_load_dwordx4 v%d, %s, s%d offen offset:%d %slds' % (vo, srd(buf), sO, 1024 * a, 'nt ' if name in self.o.get('wnt', 'none').split(',') else ''), tag='%s%d' % (name, k)),
                    pre=['s_mov_b32 s%d, 0x%x' % (sO, off + rows[a] * stride - 1024 * a)] if small is not None else
                    ['s_mul_i32 s%d, s%d, %d' % (sO, sSTEP, k) if a == 0 else 's_add_u32 s%d, s%d, 0x%x' % (sO, sO, 8 * stride - 1024)],
                    m0='s_add_u32 m0, s%d, 0x%x' % (sRING, (h % 6) * 4096)) for a in range(4)]

    def waddr(self, dst, t, base):
        return ['v_lshrrev_b32 v%d, 2, v%d' % (dst, vL), 'v_bfe_u32 v%d, v%d, 3, 2' % (t, vL), 'v_lshlrev_b32 v%d, 5, v%d' % (t, t),
                'v_lshl_or_b32 v%d, v%d, 7, v%d' % (dst, dst, t), 'v_and_b32 v%d, 3, v%d' % (t, vL), 'v_lshl_or_b32 v%d, v%d, 3, v%d' % (dst, t, dst),
                'v_add_u32 v%d, %s, v%d' % (dst, base, dst)] + ['v_xor_b32 v%d, 0x%x, v%d' % (dst + b, b << 5, dst) for b in range(1, 4)]

    def vaddr_restore(self):
        return ['v_xor_b32 v%d, 0x80, v%d' % (vTR + db, vTR + 4 + db) for db in range(4)]

    def lanesum(self, r, t):
        o = []
        for op in ('v_permlane32_swap_b32', 'v_permlane16_swap_b32'):
            o += ['v_mov_b32 v%d, v%d' % (t, r), '%s v%d, v%d' % (op, t, r), 'v_add_f32 v%d, v%d, v%d' % (r, r, t)]
        return o

    def gelu4(self, src, dst, tmp, k1, scale=None):
        o = []
        e = o.append
        P = lambda b: vr('v', b, 2)
        if scale is not None:
            for h in (0, 2):
                e('v_pk_mul_f32 %s, %s, %s op_sel_hi:[1,0]' % (P(src + h), P(src + h), P(scale)))
        for h in (0, 2):
            e('v_pk_mul_f32 %s, %s, %s' % (P(tmp + h), P(src + h), P(src + h)))
        for h in (0, 2):
            e('v_pk_fma_f32 %s, %s, s[%d:%d], %s op_sel_hi:[1,1,0]' % (P(tmp + h), P(tmp + h), sC0, sC0 + 1, P(k1)))
        for h in (0, 2):
            e('v_pk_mul_f32 %s, %s, %s' % (P(tmp + h), P(tmp + h), P(src + h)))
        for r in range(4):
            e('v_exp_f32 v%d, v%d' % (tmp + r, tmp + r))
        for h in (0, 2):
            e('v_pk_add_f32 %s, %s, 1.0 op_sel_hi:[1,0]' % (P(tmp + h), P(tmp + h)))
        for r in range(4):
            e('v_rcp_f32 v%d, v%d' % (tmp + r, tmp + r))
        for h in (0, 2):
            e('v_pk_mul_f32 %s, %s, %s' % (P(tmp + h), P(tmp + h), P(src + h)))
        for h in (0, 2):
            e('v_cvt_pk_bf16_f32 v%d, v%d, v%d' % (dst + h // 2, tmp + h, tmp + h + 1))
        return o

    def pack(self, d, a0, a1):
        return ['v_cvt_pk_bf16_f32 v%d, v%d, v%d' % (d + 3, a1 + 2, a1 + 3), 'v_cvt_pk_bf16_f32 v%d, v%d, v%d' % (d + 2, a1, a1 + 1),
                'v_cvt_pk_bf16_f32 v%d, v%d, v%d' % (d, a0, a0 + 1), 'v_cvt_pk_bf16_f32 v%d, v%d, v%d' % (d + 1, a0 + 2, a0 + 3)]

    def g16(self, accf, acc, ring, ad, fill=()):
        def kn(n):
            return (n & 15, n >> 4) if self.opt('chain16', 1) else (n >> 2, n & 3)

        def rd(n):
            ks, nb = kn(n)
            off = ((ks >> 2) & 1) * WWAVE + (ks & 3) * 4096
            return ['ds_read_b64_tr_b16 %s, v%d offset:%d' % (vr('a', ring + 4 * (n % 8) + 2 * g, 2), ad + nb, off + 2048 * g) for g in range(2)]
        AH = 6
        for n in range(AH):
            self.put(rd(n))
        p = Plan()
        for n in range(64):
            ks, nb = kn(n)
            p.add(mfma(vr(accf, acc + 4 * nb, 4), vr('a', ring + 4 * (n % 8), 4), vr('v', vX + 4 * ks, 4), '0' if ks == 0 else None))
            if n + AH < 64:
                p.g[n]['ds'] += rd(n + AH)
                if kn(n + AH)[0] == 7:
                    a = ad + kn(n + AH)[1]
                    p.g[n]['va'].append('v_add_u32 v%d, 0x%x, v%d' % (a, 2 * WWAVE, a))
            p.g[n]['va'] += fill[n:n + 1]
        p.emit(self)

    def gemm(self, h0, groups, actf, later, first_jobs=(), sync=None, last_jobs=(), WF=0, AF=32):
        LEAD = 9
        p, par, h, blk, free, srcs = Plan(), [], h0, [], {}, []
        p.st = []
        for G, (tags, ak, acc, first, *src) in enumerate(groups):
            par.append(par[-1] ^ (ak != groups[G - 1][1]) if G else 0)
            p.st.append(len(p.mf))
            flip = 0
            for b in range(len(acc)):
                n = len(blk)
                blk.append(len(p.mf))
                srcs.append(src[0][b] if src else [(h + kk, b, tags[kk]) if len(tags) == 2 else (h, b + 2 * kk, tags[0]) for kk in range(2)])
                for x in srcs[-1]:
                    if isinstance(x, tuple):
                        free[x[0]] = blk[-1]
                for tb in (range(3, -1, -1) if b & 1 else range(4)):
                    for i, kk in enumerate((1, 0) if flip else (0, 1)):
                        w = srcs[-1][kk]
                        p.add(mfma(vr('v', acc[b] + 4 * tb, 4), vr('a', WF + 8 * (n % 4) + 4 * kk if isinstance(w, tuple) else w, 4),
                                   vr('a', AF + 32 * par[G] + 16 * kk + 4 * tb, 4), '0' if (first and i == 0) else None))
                    flip ^= 1
            h += len(tags)
        owner = [free[x] for x in sorted(free)]
        N = len(p.mf)
        jobs, pos, q = list(first_jobs), [2 * k + 1 for k in range(len(first_jobs))], 4 * ((len(first_jobs) + 1) // 2) + 1
        rest = []
        for k, piece in enumerate(later):
            while k < len(owner) and q < owner[k]:
                q += 4
            for jb in piece:
                if q < N and k < len(owner) and not rest:
                    jobs.append(jb)
                    pos.append(q)
                    q += 4
                else:
                    rest.append(jb)
        for jb in last_jobs:
            jobs.append(jb)
            pos.append(q)
            q += 4
        p.rest, p.dma_end = rest, q
        prev, pend = p.jobs(self.flat(jobs), pos, avoid={x - 1 for x in blk})
        p.scalars(pend, prev + 1, N)
        pre = []

        def place(ins, lo, use):
            for each, lead in ((1, LEAD), (2, LEAD), (2, LEAD - 2), (2, LEAD - 4)):
                c = [j for j in range(max(lo - 1, 0), use - lead + 1) if not p.g[j]['vm'] and (j + 1 not in blk or each == 2)
                     for _ in range(each - len(p.g[j]['ds']))]
                if len(c) >= len(ins) or lo == 0:
                    break
            assert len(c) >= len(ins) or lo == 0
            c = c[-len(ins):]
            pre.extend(ins[:len(ins) - len(c)])
            for j, x in zip(c, ins[len(ins) - len(c):]):
                p.g[j]['ds'].append(x)
        for n, src in enumerate(srcs):
            ins = [Ins('ds_read_b64_tr_b16 %s, v%d offset:%d' % (vr('a', WF + 8 * (n % 4) + 4 * kk + 2 * g, 2), vTR + x[1], (x[0] % 6) * 4096 + 2048 * g),
                       need=[x[2]]) for kk, x in enumerate(src) if isinstance(x, tuple) for g in range(2)]
            if ins:
                place(ins, blk[n - 3] if n >= 4 else 0, blk[n])
        for G, (tags, ak, *_) in enumerate(groups):
            if G == 0 or ak != groups[G - 1][1]:
                ins = ['ds_read_b128 %s, v%d offset:%d' % ((vr('a', AF + 32 * par[G] + 16 * kk + 4 * tb, 4),) + actf(k, tb)) for tb in range(4) for kk, k in enumerate(ak)]
                prev = [x for x in range(G) if par[x] == par[G]]
                lo = p.st[prev[-1] + 1] if prev else 0
                if G == 0:
                    act0 = [ins[k] for k in (0, 1, 3, 2, 4, 5, 7, 6)]
                    continue
                span = max(1, (p.st[G] - LEAD - lo) // len(ins))
                for k, x in enumerate(ins):
                    j = lo + k * span
                    while p.g[j]['vm'] or len(p.g[j]['ds']) >= 2 or (j + 1 in blk and span > 1):
                        j += 1
                    assert j < p.st[G] - 4 + k
                    p.g[j]['ds'].append(x)
        main, self.s = self.s, Stream()
        sync()
        bar, self.s = self.s.l, main
        for x in bar:
            if x.kind == 'bar':
                lg = [y for y in self.s.l if y.kind in ('dsr', 'dsw')]
                if lg:
                    lg[-1].tag = 'lastlds'
                self.put(pre)
                x.need = ['lastlds'] if lg else []
            self.s.add(x)
        self.put(act0)
        return p

    def part_store(self, reg, off, tag, base=sPO, vo=vACT):
        return Job(Ins('buffer_store_dwordx4 %s, v%d, %s, s%d offen sc1' % (vr('v', reg, 4), vo, srd(SWS), sT1), tag=tag),
                   pre=['s_add_u32 s%d, s%d, 0x%x' % (sT1, base, off)])

    def gather(self, f, dst, soff, off, flags):
        return [Job('buffer_load_dwordx4 %s, v%d, %s, s%d offen offset:%d %s' % (vr(f, dst + 4 * k, 4), vACT, srd(SWS), sRET, 1024 * (k % 4), flags),
                    pre=['s_add_u32 s%d, s%d, 0x%x' % (sRET, soff, off + 1024 * k)] if k % 4 == 0 else []) for k in range(16)]

    LR, LB = vW1, vFLAG
    XS, XW, RA, F1 = vP + 8, vP + 9, vP + 10, vT + 4

    def prologue(self):
        e = self.s
        D = vr('a', aDUMMY, 4)
        e('@sec prologue')
        bufs = [(SX, 0, 0x200000), (SWQ, 24, 0x400000), (SWS, 96, 0x10000000), (SW1, 48, 0x80000), (SW2, 56, 0x80000), (SDBG, 88, 256), (SK, 8, 0x400000),
                (SV, 16, 0x400000), (SWO, 32, 0x400000), (SW3, 64, 0x1c0000), (SW4, 72, 0x1c0000), (SOUT, 80, 0x200000)]
        for b, off, _ in bufs[:2]:
            e('s_load_dwordx2 s[%d:%d], s[0:1], %d' % (b, b + 1, off))
        e('s_cmp_ge_u32 s2, 256\ns_cbranch_scc1 L_end')
        if self.o.get('diag', '').startswith('start'):
            e('s_memrealtime s[98:99]')
        if self.prof:
            e('v_accvgpr_write_b32 a%d, 0\nv_accvgpr_write_b32 a%d, 0' % (aPROF, aPROF + 1))
        e('s_getpc_b64 s[%d:%d]\nL_pc:' % (SCODE, SCODE + 1))
        e('s_mov_b32 s%d, L_code_end-L_pc-16' % (SCODE + 2))
        e('s_lshr_b32 s%d, s2, 3\nv_lshlrev_b32 v%d, 4, v0\nv_lshl_add_u32 v%d, s%d, 12, v%d' % (sT, vT + 3, vT, sT, vT + 3))
        self.put(self.code_addr()[1:])
        self.emit_jobs(self.code_warm())
        e('v_readfirstlane_b32 s%d, v0\ns_and_b32 s%d, s2, 7\nv_and_b32 v0, 63, v0' % (sW, sJ))
        e('s_lshr_b32 s%d, s%d, 6' % (sW, sW))
        e('s_lshl_b32 s%d, s%d, 2\ns_add_u32 s%d, s%d, s%d' % (sTBG, sT, sTBG, sTBG, sW))
        e('v_lshrrev_b32 v%d, 2, v%d\nv_and_b32 v%d, 3, v%d' % (vT + 1, vL, vT + 2, vL))
        e('v_lshlrev_b32 v%d, 10, v%d\nv_lshl_or_b32 v%d, v%d, 4, v%d' % (vT + 4, vT + 1, vT + 4, vT + 2, vT + 4))
        e('v_lshlrev_b32 v%d, 4, v%d' % (vACT, vL))
        e('s_lshl_b32 s%d, s%d, 14\ns_lshl_b32 s%d, s%d, 13\ns_lshl_b32 s%d, s%d, 10' % (sCNT, sTBG, sVO, sTBG, sT1, sJ))
        e('s_mov_b32 s%d, 0x200000\ns_mov_b32 s%d, 0x20000' % (SX + 2, SX + 3))
        e('s_sub_u32 s%d, 0x400000, s%d\ns_mov_b32 s%d, 0x20000' % (SWQ + 2, sT1, SWQ + 3))
        e('s_waitcnt lgkmcnt(0)')
        self.stamp('kernarg')
        e('s_add_u32 s%d, s%d, s%d\ns_addc_u32 s%d, s%d, 0' % (SWQ, SWQ, sT1, SWQ + 1, SWQ + 1))
        for b, off, _ in bufs[2:]:
            e('s_load_dwordx2 s[%d:%d], s[0:1], %d' % (b, b + 1, off))
        wl = [Job('buffer_load_dwordx4 %s, v%d, %s, s%d offen' % (D, vACT, srd(SWQ), sVO), post=['s_add_u32 s%d, s%d, 0x100000' % (sVO, sVO)]) for i in range(4)]
        nf = self.opt('wq_first', 2)
        self.emit_jobs(wl[:nf])
        xl = [Job('buffer_load_dwordx4 %s, v%d, %s, s%d offen offset:%d' % (vr('v', vX + 4 * ks, 4), vT + 4, srd(SX), sCNT, 64 * ks)) for ks in range(16)]
        nx = self.opt('x_first', 10)
        self.emit_jobs(xl[:nx])
        self.stamp('x issued')
        mark = len(e.l)

        def lin(dst, c, *terms):
            for k, (reg, mul) in enumerate(terms):
                e('s_mul_i32 s%d, s%d, 0x%x' % (dst if k == 0 else sT0, reg, mul & 0xffffffff))
                if k:
                    e('s_add_u32 s%d, s%d, s%d' % (dst, dst, sT0))
            if c:
                e('s_add_u32 s%d, s%d, 0x%x' % (dst, dst, c))
        lin(sRING, WREG, (sW, WWAVE))
        lin(sW2K, 0, (sW, 2048))
        e('v_mov_b32 v%d, 1' % vONE)
        XS, XW, RA = self.XS, self.XW, self.RA
        e('v_lshlrev_b32 v%d, 1, v%d\nv_xor_b32 v%d, v%d, v%d\nv_lshl_or_b32 v%d, v%d, 4, v%d' % (vT, vT + 2, vT, vT, vT + 1, vT, vT + 2, vT))
        e('v_lshlrev_b32 v%d, 4, v%d\nv_lshl_add_u32 v%d, s%d, 14, v%d' % (vT, vT, XW, sW, vT))
        e('v_lshrrev_b32 v%d, 4, v%d\nv_lshlrev_b32 v%d, 5, v%d\nv_xor_b32 v%d, v%d, v%d' % (vT, vL, vT, vT, XS, vT, vACT))
        e('v_lshrrev_b32 v%d, 5, v%d\nv_and_b32 v%d, 15, v%d\nv_mul_u32_u24 v%d, 18, v%d\nv_xor_b32 v%d, v%d, v%d' % (vT, vL, vT + 1, vL, vT, vT, vT, vT, vT + 1))
        e('v_bfe_u32 v%d, v%d, 4, 1\nv_lshl_or_b32 v%d, v%d, 1, v%d\nv_lshlrev_b32 v%d, 3, v%d' % (vT + 1, vL, vT, vT, vT + 1, vT, vT))
        lin(sT1, 0, (sW, 16384), (sJ, 1024))
        e('v_add_u32 v%d, s%d, v%d\nv_xor_b32 v%d, 64, v%d' % (RA, sT1, vT, RA + 1, RA))
        C, RN, RK = vT, vT + 1, vT + 2
        e('v_and_b32 v%d, 7, v%d\nv_bfe_u32 v%d, v%d, 4, 2\nv_lshlrev_b32 v%d, 1, v%d\nv_xor_b32 v%d, v%d, v%d' % (C, vL, RN, vL, RN, RN, C, C, RN))
        e('v_lshlrev_b32 v%d, 4, v%d\nv_lshrrev_b32 v%d, 3, v%d' % (C, C, RN, vL))
        e('v_and_b32 v%d, 4, v%d\nv_add_u32 v%d, v%d, v%d' % (RK, RN, RK, RK, RN))
        e('v_lshl_add_u32 v%d, v%d, 13, v%d\nv_lshl_add_u32 v%d, s%d, 8, v%d' % (vDB, RK, C, vDB, sW, vDB))
        e('v_lshl_add_u32 v%d, v%d, 10, v%d\nv_lshl_add_u32 v%d, s%d, 17, v%d' % (vW1, RK, C, vW1, sW, vW1))
        e('v_lshl_add_u32 v%d, v%d, 10, v%d' % (vWN, RN, C))
        e('v_and_b32 v%d, 64, v%d\nv_mad_u32_u24 v%d, v%d, 7, v%d' % (RK, C, vW2, RK, vWN))
        W1W, W2W = vP, vP + 1
        e('v_mov_b32 v%d, v%d\nv_mov_b32 v%d, v%d' % (W1W, vWN, W2W, vW2))
        e('v_lshl_add_u32 v%d, s%d, 17, v%d\nv_lshl_add_u32 v%d, s%d, 7, v%d' % (vW2, sW, vW2, vWN, sW, vWN))
        e('v_mul_u32_u24 v%d, 3584, v%d\nv_lshl_add_u32 v%d, s%d, 7, v%d\nv_add_u32 v%d, v%d, v%d' % (RN, RN, C, sW, C, vW3, RN, C))
        e('v_mov_b32 v%d, 0x%x' % (vT + 5, OOB))
        lin(sKO, 0, (sT, 16384))
        RS, Z = vP + 2, vP + 3
        e('v_lshrrev_b32 v%d, 2, v%d\nv_lshlrev_b32 v%d, 17, v%d' % (RS, vL, RS, RS))
        e('v_and_b32 v%d, 3, v%d\nv_lshl_or_b32 v%d, v%d, 10, v%d' % (Z, vL, RS, Z, RS))
        e('v_cmp_gt_u32 vcc, 0x80, v%d' % (vT + 3))
        lin(sT1, 0, (sTBG, 1024), (sJ, 128))
        e('v_cndmask_b32 v%d, v%d, v%d, vcc' % (RS, vT + 5, RS))
        e('v_lshrrev_b32 v%d, 9, v%d\nv_cmp_eq_u32 vcc, 1, v%d' % (Z, vT + 3, Z))
        e('v_lshlrev_b32 v%d, 2, v%d\nv_add_u32 v%d, 0x%x, v%d' % (Z, vL, Z, 0x40000 - 128, Z))
        e('v_cndmask_b32 v%d, v%d, v%d, vcc' % (RS, RS, Z))
        e('v_cmp_eq_u32 vcc, 0, v%d\nv_mov_b32 v%d, s%d\ns_add_u32 s%d, s%d, 0x%x' % (vL, vFLAG, sT1, sRET, sT1, FLAG_OFF))
        e('v_cndmask_b32 v%d, v%d, v%d, vcc' % (vFLAG, vT + 5, vFLAG))
        e('v_cmp_eq_u32 vcc, 0, v%d\nv_mov_b32 v%d, 0\ns_add_u32 s%d, s%d, 0x%x' % (vT + 3, Z, sSTO, sT1, ST_OFF))
        e('v_cndmask_b32 v%d, v%d, 0, vcc' % (vPOFF, vT + 5))
        e('v_and_b32 v%d, 15, v%d\nv_lshrrev_b32 v%d, 4, v%d' % (vT, vL, vT + 1, vL))
        e('v_xor_b32 v%d, v%d, v%d\nv_lshlrev_b32 v%d, 4, v%d\nv_lshl_or_b32 v%d, v%d, 8, v%d' % (vT + 1, vT + 1, vT, vT + 1, vT + 1, vKA, vT, vT + 1))
        for ks in range(1, 4):
            e('v_xor_b32 v%d, 0x%x, v%d' % (vKA + ks, 64 * ks, vKA))
        e('v_lshrrev_b32 v%d, 2, v%d\nv_and_b32 v%d, 7, v%d\nv_lshlrev_b32 v%d, 5, v%d' % (vT, vL, vT + 1, vT, vT + 1, vT + 1))
        e('v_lshl_or_b32 v%d, v%d, 8, v%d\nv_and_b32 v%d, 3, v%d\nv_lshl_or_b32 v%d, v%d, 3, v%d' % (vT, vT, vT + 1, vT + 1, vL, vT, vT + 1, vT))
        for db in range(4, 8):
            e('v_xor_b32 v%d, 0x%x, v%d' % (vTR + db, VRING | db << 5, vT))
        self.put(self.waddr(vTR, vT, 's%d' % sRING))
        e('v_bfe_i32 v%d, v%d, 1, 1\nv_and_b32 v%d, 0x3f803f80, v%d\nv_xor_b32 v%d, 0x3f803f80, v%d' % (vT, vL, vT + 1, vT, vT + 2, vT + 1))
        e('v_bfe_i32 v%d, v%d, 0, 1\nv_and_b32 v%d, 0xaaaaaaaa, v%d\nv_or_b32 v%d, 0x44444444, v%d' % (vT, vL, vT, vT, vIDX, vT))
        for r in range(4):
            e('v_accvgpr_write_b32 a%d, v%d\nv_accvgpr_write_b32 a%d, v%d' % (aONES + r, vT + 2, aONE2 + r, vT + 1))
        for r in range(8):
            e('v_accvgpr_write_b32 a%d, 0' % (aL + r))
        lin(sHO, 0, (sTBG, 1 << 14), (sJ, 1 << 11))
        lin(sX1I, X1_OFF, (sTBG, 1 << 14))
        lin(sX1O, 0, (sJ, 1 << 10), (sX1I, 1))
        lin(sPO, 0, (sT, 1 << 19), (sJ, 1 << 11), (sW, 1 << 17))
        lin(sPI, 0, (sT, 1 << 19), (sJ, 1 << 16), (sW, 1 << 14))
        lin(sCF, FLAG_OFF + 0x40000, (sT, 1 << 12), (sJ, 1 << 7))
        lin(sFP, FLAG_OFF + 0x40000, (sT, 1 << 12), (sW, 256), (sJ, 4))
        lin(sXO, 0, (sTBG, 1 << 14), (sJ, 64))
        lin(sCW, 0, (sTBG, 1024))
        lin(sW3W, 0, (sTBG, 4 * 3584))
        lin(sWOW, 0, (sTBG, 4096))
        e('s_lshr_b32 s%d, s%d, 1\ns_lshl_b32 s%d, s%d, 13' % (sWSH, sTBG, sWSH, sWSH))
        e('s_mov_b32 s%d, %s\ns_mov_b32 s%d, %s\ns_mov_b32 s%d, 0' % (sC0, f2u(-K2), sC0 + 1, f2u(-K2), sPASS))
        e('s_waitcnt lgkmcnt(0)')
        shift = {SW1: [(sJ, 128)], SW2: [(sJ, 64)], SK: [(sJ, 1 << 19)], SV: [(sJ, 1 << 19)], SWO: [(sJ, 1 << 19)]}
        for b, _, size in bufs[2:]:
            if b in shift:
                lin(sT1, 0, *shift[b])
                e('s_add_u32 s%d, s%d, s%d\ns_addc_u32 s%d, s%d, 0\ns_sub_u32 s%d, 0x%x, s%d' % (b, b, sT1, b + 1, b + 1, b + 2, size, sT1))
            else:
                e('s_mov_b32 s%d, 0x%x' % (b + 2, size))
            e('s_mov_b32 s%d, 0x20000' % (b + 3))
        e('s_mov_b32 s%d, s%d\ns_mov_b32 s%d, s%d\ns_mov_b32 s%d, 0x200000\ns_mov_b32 s%d, 0x20000' % (SH, SWS, SH + 1, SWS + 1, SH + 2, SH + 3))
        ns = self.opt('x_setup', 0)
        setup, e.l = e.l[mark:], e.l[:mark]
        self.sprinkle(setup, xl[nx:nx + ns], start=self.opt('xs_start', 20), every=self.opt('xs_every', 25))
        self.xrest = xl[nx + ns:]
        self.early = wl[nf:] + [Job(Ins('buffer_store_dword v%d, v%d, %s, s%d offen sc1' % (Z, RS, srd(SWS), sRET), tag='reset')),
                                Job('buffer_load_dwordx4 %s, v%d, %s, s%d offen' % (D, W1W, srd(SW1), sWSH)),
                                Job('buffer_load_dwordx4 %s, v%d, %s, s%d offen' % (D, W2W, srd(SW2), sWSH))]
        self.early += (self.warm(SK, vACT, sWOW, (0, 1024, 2048, 3072)) + self.warm(SV, vACT, sWOW, (0, 1024, 2048, 3072)))[:self.opt('kv_early', 2)]
        self.stamp('setup')
        self.touch(0)
        self.stamp('touched')
        e('s_branch L_go\n.p2align 12\nL_go:')

    def p0(self):
        e = self.s
        e('@sec P0 layernorm')
        P = lambda b: vr('v', b, 2)
        A, X0 = vS, vS + 8
        o = ['v_lshlrev_b32 v%d, 16, v%d' % (X0 + 1, vX), 'v_mov_b32_dpp v%d, v%d quad_perm:[0,0,0,0] row_mask:0xf bank_mask:0xf' % (X0, X0 + 1)]
        for k in range(64):
            d = vACC + 2 * k
            o += ['v_lshlrev_b32 v%d, 16, v%d' % (d, vX + k), 'v_and_b32 v%d, 0xffff0000, v%d' % (d + 1, vX + k),
                  'v_pk_add_f32 %s, %s, %s op_sel_hi:[1,0] neg_lo:[0,1] neg_hi:[0,1]' % (P(d), P(d), P(X0))]
            if k == 0:
                o += ['v_pk_mul_f32 %s, %s, %s' % (P(A + 2), P(d), P(d))]
            else:
                o += ['v_pk_add_f32 %s, %s, %s' % (P(A), P(A) if k > 1 else P(vACC), P(d)), 'v_pk_fma_f32 %s, %s, %s, %s' % (P(A + 2), P(d), P(d), P(A + 2))]
        wq = []
        for k in range(6):
            wq += self.whalf('wq', self.pair_order(0)[k], k)
        nd = self.opt('p1_dma', 2)
        jobs = []
        while self.xrest or (wq and nd):
            jobs += self.xrest[:1] + wq[:nd if self.xrest else nd + 1]
            wq = wq[nd if self.xrest else nd + 1:]
            self.xrest = self.xrest[1:]
        self.sprinkle(o, jobs, start=self.opt('p1_start', 2), every=20 // (nd + 1) if nd else 10)
        self.stamp('x landed')
        o = ['v_add_f32 v%d, v%d, v%d' % (A, A, A + 1), 'v_add_f32 v%d, v%d, v%d' % (A + 2, A + 2, A + 3)]
        for qp in ('[1,0,3,2]', '[2,3,0,1]'):
            for r in (A, A + 2):
                o.append('v_add_f32_dpp v%d, v%d, v%d quad_perm:%s row_mask:0xf bank_mask:0xf' % (r, r, r, qp))
        M, V, R = A, A + 2, A + 4
        o += ['v_mul_f32 v%d, %s, v%d' % (M, f2u(1.0 / 512), M), 'v_mul_f32 v%d, %s, v%d' % (V, f2u(1.0 / 512), V),
              'v_fma_f32 v%d, -v%d, v%d, v%d' % (V, M, M, V), 'v_max_f32 v%d, 0, v%d' % (V, V),
              'v_add_f32 v%d, %s, v%d' % (R, f2u(1e-5), V), 'v_rsq_f32 v%d, v%d' % (R, R),
              'v_and_b32 v%d, 0xf0, v%d' % (A + 7, vACT),
              'v_mul_f32 v%d, v%d, v%d' % (A + 6, R, R), 'v_fmaak_f32 v%d, v%d, v%d, %s' % (A + 6, A + 6, V, f2u(1e-5)), 'v_rsq_f32 v%d, v%d' % (A + 6, A + 6),
              'v_mul_f32 v%d, %s, v%d' % (R, f2u(CSCALE), R), 'v_mul_f32 v%d, %s, v%d' % (A + 6, f2u(1.0 / CSCALE), A + 6),
              'v_mul_f32_e64 v%d, -v%d, v%d' % (M, M, R), 'ds_bpermute_b32 v%d, v%d, v%d' % (self.F1, A + 7, A + 6)]
        for ks in range(16):
            for k in range(4 * ks, 4 * ks + 4):
                d = P(vACC + 2 * k)
                o.append('v_pk_fma_f32 %s, %s, %s, %s op_sel_hi:[1,0,0]' % (d, d, P(R), P(M)))
            for k in range(4 * ks, 4 * ks + 4):
                o.append('v_cvt_pk_bf16_f32 v%d, v%d, v%d' % (vX + k, vACC + 2 * k, vACC + 2 * k + 1))
            o.append('ds_write_b128 v%d, %s offset:%d' % (self.XW, vr('v', vX + 4 * ks, 4), 1024 * ks))
        nw, nl = 4 * self.opt('ln_w', 4), self.opt('ln_jobs', 22)
        jobs = wq[:nw] + self.early + wq[nw:]
        self.p2_first = jobs[nl:]
        self.sprinkle(o, jobs[:nl], start=self.opt('ln_start', 0), every=self.opt('ln_every', 2 if nd else 7))
        for nb in range(4):
            e('ds_read_b64 %s, v%d offset:%d' % (vr('a', aRES + 2 * nb, 2), self.RA + (nb & 1), 8192 * (nb >> 1) + 512 * (nb & 1)))
        e('v_lshl_add_u32 v%d, s%d, 14, v%d' % (self.XW, sW, self.XS))

    def kv_dma(self, which, unit, tag):
        buf, ring, so, vo = (SK, KRING, sKO, vDB) if which == 'K' else (SV, VRING, sVO, vDB + 2)
        fl = self.o.get('kvflag', 'nt_').replace('_', ' ') if self.kv_nt else ''
        m0 = 's_add_u32 m0, s%d, 0x%x' % (sW2K, ring + 8192 * (unit & 3))
        return [Job(Ins('buffer_load_dwordx4 v%d, %s, s%d offen %slds' % (vo, srd(buf), so, fl), tag=tag), m0=m0),
                Job(Ins('buffer_load_dwordx4 v%d, %s, s%d offen offset:1024 %slds' % (vo + 1, srd(buf), so, fl), tag=tag), m0=m0,
                    post=['s_add_u32 s%d, s%d, 0x2000' % (so, so), 's_and_b32 s%d, s%d, 0x7ffff' % (so, so)])]

    def pair_order(self, early):
        sg = [(kp, hf) for kp in range(8 - early) for hf in range(2)] + [(kp, hf) for hf in range(2) for kp in range(8 - early, 8)]
        return [2 * (2 * kp + kk) + hf for kp, hf in sg for kk in range(2)]

    def pair_groups(self, name, od):
        return [(['%s%d' % (name, k) for k in od[h:h + 2]], [k >> 1 for k in od[h:h + 2]],
                 [vACC + 64 * (od[h] & 1) + 16 * b for b in range(4)], od[h] < 2) for h in range(0, 32, 2)]

    def p2(self):
        e = self.s
        e('@sec P2')
        od = self.pair_order(0)
        later = [self.whalf('wq', od[h], h) if h < 32 else self.whalf('w1', h - 32, h) for h in range(6, 36)]
        if self.opt('kvwarm', 0):
            later[25] = later[25] + self.warm(SK, vACT, sWOW, (0, 1024, 2048, 3072)) + self.warm(SV, vACT, sWOW, (0, 1024, 2048, 3072))
        p = self.gemm(0, self.pair_groups('wq', od), lambda k, tb: (self.XS, (tb * 16 + k) * 1024),
                      later, self.p2_first, lambda: (self.s('s_barrier', need=['*lg']), self.stamp('P0 end')))
        self.q_first = p.rest
        for ks in range(16):
            p.g[16 * (ks + 2) + 7]['ds'].append('ds_read_b128 %s, v%d offset:%d' % (vr('v', vX + 4 * ks, 4), self.XW, 1024 * ks))
        assert not p.fill(self.waddr(vP + 12, vT, '0x%x' % (WREG + 8192)) + ['v_mov_b32 v%d, %s' % (vP + 10, f2u(-K1))], 16)
        f = ('v_lshrrev_b32 v%d, 4, v%d\nv_and_b32 v%d, 15, v%d\nv_lshl_add_u32 v%d, v%d, 8, s%d\n' % (vT, vL, vT + 1, vL, vT + 2, vT, sW2K) +
             'v_bfe_u32 v%d, v%d, 8, 4\nv_xor_b32 v%d, v%d, v%d\n' % (vT + 3, vT + 2, vT + 3, vT + 3, vT + 1) +
             'v_lshl_add_u32 v%d, v%d, 4, v%d\nv_xor_b32 v%d, 64, v%d\n' % (vDB, vT + 3, vT + 2, vDB + 1, vDB) +
             'v_lshlrev_b32 v%d, 1, v%d\nv_xor_b32 v%d, v%d, v%d\n' % (vT + 3, vT, vT + 3, vT + 3, vT + 1) +
             'v_lshl_add_u32 v%d, v%d, 4, v%d\nv_xor_b32 v%d, 0x80, v%d' % (vDB + 2, vT + 3, vT + 2, vDB + 3, vDB + 2)).split('\n')
        assert not p.fill(f, 32 * 14)
        assert not p.fill(self.vaddr_restore(), 16 * 31 + 2)
        p.jobs(self.flat([Job(Ins('buffer_atomic_add v%d, v%d, %s, s%d offen sc1' % (vONE, vPOFF, srd(SDBG), sT0), need=['reset']),
                              pre=['s_lshl_b32 s%d, s%d, 3' % (sT0, sT), 's_mov_b32 s%d, s%d' % (sVO, sKO)])]), p.empty(16 * 31 + 10, 1), lo=16 * 31 + 5)
        p.emit(self)
        self.stamp('P2 end')

    def q_p1(self):
        e = self.s
        e('@sec Q epilogue')
        if self.o.get('diag', '').startswith('xcc'):
            e('s_getreg_b32 s98, hwreg(HW_REG_XCC_ID)\ns_sub_u32 s98, s98, s%d\ns_and_b32 s98, s98, 7\ns_lshl_b32 s98, 1, s98' % sJ)
            e('v_mov_b32 v%d, s98\nbuffer_atomic_or v%d, v%d, %s, 0 offen offset:4 sc1' % (vT, vT, vPOFF, srd(SDBG)))
        e('s_barrier', need=['*lg'])
        jobs = self.q_first + self.tile_dma(0, 'kv0')
        o, wr = [], []
        fr = [(qb, ks) for qb in range(4) for ks in range(4)]
        for n in range(0, 16, 2):
            ts = []
            for qb, ks in fr[n:n + 2]:
                a = vACC + 32 * ks + 4 * qb
                o += self.pack(a + 16, a, a + 16)
                ts.append(a + 16)
            for op in ('v_permlane32_swap_b32', 'v_permlane16_swap_b32'):
                for t in ts:
                    o += ['%s v%d, v%d' % (op, t, t + 2), '%s v%d, v%d' % (op, t + 1, t + 3)]
            for (qb, ks), t in zip(fr[n:n + 2], ts):
                (wr if self.opt('q_in_p1', 1) else o).extend('v_accvgpr_write_b32 a%d, v%d' % (aQ + 16 * qb + 4 * ks + r, t + r) for r in range(4))
        self.sprinkle(o, jobs, every=self.opt('q_every', 4))
        self.stamp()
        e('@sec P1')
        e('s_barrier', need=['w13'])
        self.g16('v', vS, 0, vP + 12, wr)
        o = []
        for nb in range(4):
            o += self.gelu4(vS + 4 * nb, vX + 2 * nb, vP + 4 * (nb & 1), vP + 10, scale=self.F1)
        self.sprinkle(o, self.tile_dma(1, 'kv1'), every=11)
        for p in range(2):
            e('buffer_store_dwordx4 %s, v%d, %s, s%d offen offset:%d sc1' % (vr('v', vX + 4 * p, 4), vACT, srd(SH), sHO, 1024 * p), tag='hst')
        self.stamp()

    def p3(self, kreads):
        e = self.s
        self.stamp()
        e('@sec P3')
        acc = aK
        self.put(self.waddr(vT, vT + 4, '0x%x' % (WREG + 8192)))
        self.g16('a', acc, aK + 32, vT)
        X, R, PK = vX, vX + 16, vX + 32
        P = lambda b: vr('v', b, 2)
        for k in range(8):
            e('v_accvgpr_read_b32 v%d, a%d' % (PK + k, aRES + k))
        for k in range(8):
            e('v_lshlrev_b32 v%d, 16, v%d\nv_and_b32 v%d, 0xffff0000, v%d' % (R + 2 * k, PK + k, R + 2 * k + 1, PK + k))
        e('v_mov_b32 v%d, %s' % (PK + 8, f2u(1.0 / CSCALE)))
        for k in range(16):
            e('v_accvgpr_read_b32 v%d, a%d' % (X + k, acc + k))
        mark = len(e.l)
        for k in range(8):
            e('v_pk_fma_f32 %s, %s, %s, %s op_sel_hi:[1,0,1]' % (P(X + 2 * k), P(R + 2 * k), P(PK + 8), P(X + 2 * k)))
        for k in range(8):
            e('v_cvt_pk_bf16_f32 v%d, v%d, v%d' % (PK + k, X + 2 * k, X + 2 * k + 1))
        e('s_add_u32 s%d, s%d, 0x2000' % (sT1, sX1O))
        for p in range(2):
            e('buffer_store_dwordx4 %s, v%d, %s, s%d offen sc1' % (vr('v', PK + 4 * p, 4), vACT, srd(SWS), sT1 if p else sX1O))
        for k in range(8):
            e('v_lshlrev_b32 v%d, 16, v%d\nv_and_b32 v%d, 0xffff0000, v%d' % (X + 2 * k, PK + k, X + 2 * k + 1, PK + k))
            e('v_accvgpr_write_b32 a%d, v%d' % (aX1 + k, PK + k))
        for k in range(4):
            e('v_pk_add_f32 %s, %s, %s' % (P(R + 2 * k), P(X + 2 * k), P(X + 8 + 2 * k)))
        e('v_pk_add_f32 %s, %s, %s\nv_pk_add_f32 %s, %s, %s' % (P(R), P(R), P(R + 2), P(R + 4), P(R + 4), P(R + 6)))
        e('v_pk_add_f32 %s, %s, %s\nv_add_f32 v%d, v%d, v%d' % (P(R), P(R), P(R + 4), R + 8, R, R + 1))
        self.put(self.lanesum(R + 8, R + 10))
        e('v_mul_f32 v%d, %s, v%d' % (R + 8, f2u(1.0 / 64), R + 8))
        for k in range(8):
            e('v_pk_add_f32 %s, %s, %s op_sel_hi:[1,0] neg_lo:[0,1] neg_hi:[0,1]' % (P(X + 2 * k), P(X + 2 * k), P(R + 8)))
        for k in range(8):
            e('v_pk_fma_f32 %s, %s, %s, %s' % (P(R), P(X + 2 * k), P(X + 2 * k), P(R)) if k else 'v_pk_mul_f32 %s, %s, %s' % (P(R), P(X), P(X)))
        e('v_add_f32 v%d, v%d, v%d' % (R + 9, R, R + 1))
        e('v_lshlrev_b32 v%d, 3, v%d\nv_mov_b32 v%d, 0x%x\nv_cmp_gt_u32 vcc, 16, v%d' % (R, vL, R + 1, OOB, vL))
        self.put(self.lanesum(R + 9, R + 10))
        e('v_cndmask_b32 v%d, v%d, v%d, vcc' % (R, R + 1, R))
        e('buffer_store_dwordx2 %s, v%d, %s, s%d offen sc1' % (P(R + 8), R, srd(SWS), sSTO), tag='x1st')
        epi, e.l = e.l[mark:], e.l[:mark]
        for k, x in enumerate(epi):
            if k % 16 == 0:
                self.put(kreads[k // 4:k // 4 + 4])
            e.add(x)
        self.stamp()
        e('@sec attention 1b')

    def krd(self, u, f, base=aK):
        kb, ks = f >> 2, f & 3
        return 'ds_read_b128 %s, v%d offset:%d' % (vr('a', base + 32 * (u & 1) + 4 * f, 4), vKA + ks, KRING + 8192 * (u & 3) + 4096 * kb)

    def vrd(self, u, h):
        db, g = h >> 1, h & 1
        return 'ds_read_b64_tr_b16 %s, v%d offset:%d' % (vr('a', aV + 32 * (u & 1) + 4 * db + 2 * g, 2), vTR + db, 8192 * (u & 3) + 4096 * g)

    def rowsum(self, d, ones, p):
        return 'v_smfmac_f32_16x16x64_bf16 %s, %s, %s, v%d' % (vr('a', aL + 4 * d, 4), vr('a', ones, 4), vr('v', p, 8), vIDX)

    KV_GAPS = ((5, 1), (5, 5), (5, 9), (5, 13), (6, 1), (6, 5), (6, 13), (7, 1))
    SIDE_GAPS = {7: (5, 13), 0: (1, 5, 9, 13), 1: (1, 5), 4: (9, 13)}

    def tile_dma(self, T, tag):
        return sum([self.kv_dma(w, 2 * T + k, tag + w) for w in 'KV' for k in range(2)], [])

    def segment(self, seg, NS, sched, loop=None, inline=None, extra=()):
        e = self.s
        NT, inline = NS // 8, inline or {}
        side, chk, fill = {}, {}, {}

        def slots(n):
            T, h = n >> 3, n & 7
            if n < 3 or n >= NS:
                return [1, 3, 5, 7] if n > NS else []
            g = list(self.SIDE_GAPS.get(h, ()))
            if T + 2 >= NT:
                g += [x for hh, x in self.KV_GAPS if hh == h]
            if T + 1 == NT:
                g += {4: [5], 6: [9], 7: [9]}.get(h, [])
            return sorted(g)

        def spread(jobs, n, stop, rate=4):
            jobs = list(jobs)
            while jobs:
                assert n < stop, 'side jobs do not fit'
                room = min(rate, len(slots(n)) - (n in chk) - len(side.get(n, [])))
                while room > 0 and jobs:
                    side.setdefault(n, []).append(jobs.pop(0))
                    room -= 1
                n += 1
        sched(spread, chk, fill)
        lab = 'L_attn%d' % seg
        plans, use = [], {}
        for n in range(NS + 3):
            T, h = n >> 3, n & 7
            p = Plan()
            if n < NS:
                for kb in range(2):
                    d = vr('v', vS + 8 * (n & 1) + 4 * kb, 4)
                    for i, ks in enumerate(range(3, -1, -1) if kb else range(4)):
                        j = p.add(mfma(d, vr('a', aK + 32 * (n & 1) + 16 * kb + 4 * ks, 4), vr('a', aQ + 16 * (h >> 1) + 4 * ks, 4), self.o.get('c0', '-4.0') if i == 0 else None))
                        use.setdefault(('K', T, n & 1, 4 * kb + ks), []).append((n, j))
            if n >= 3:
                m, dh = (n - 3) >> 1, (n - 3) & 1
                for db in range(4 * dh, 4 * dh + 4):
                    for i, kk in enumerate((1, 0) if db & 1 else (0, 1)):
                        j = p.add(mfma(vr('v', vACC + 16 * db + 4 * (m & 3), 4), vr('a', aV + 32 * kk + 4 * db, 4), vr('v', vP + 8 * (m & 1) + 4 * kk, 4),
                                       '0' if (m < 4 and seg == 0 and i == 0) else None))
                        use.setdefault(('V', m >> 2, kk, db), []).append((n, j))
            g, full = p.g, len(p.mf) == 16
            if 1 <= n <= NS:
                sb, pb = vS + 8 * ((n - 1) & 1), vP + 4 * ((n - 1) & 3)
                lag = 2 if n < 3 else 0
                for k in range(8):
                    g[2 * k if full else min(k + lag, 7)]['va'].append('v_exp_f32 v%d, v%d' % (sb + k, sb + k))
                    if k & 1:
                        g[2 * k + 1 if full else min(k + lag + 1, 7)]['va'].append('v_cvt_pk_bf16_f32 v%d, v%d, v%d' % (pb + k // 2, sb + k - 1, sb + k))
            jobs, pos = [], []
            self.kv_nt = False
            if seg and n < 2:
                jobs, pos = self.tile_dma(1, 'kv1')[4 * n:4 * n + 4], [0, 2, 4, 6]
            if T + 2 < NT and n < NS:
                for jb, (hh, x) in zip(self.tile_dma(T + 2, 'kv%d' % (T + 2)), self.KV_GAPS):
                    if hh == h:
                        jobs.append(jb)
                        pos.append(x)
            free = slots(n)
            if n in chk:
                g[free.pop()]['end'] += chk[n]
            jobs += side.get(n, [])
            pos += free[:len(side.get(n, []))]
            assert pos == sorted(pos)
            if full and h == 4:
                late_v = seg and T == 0
                g[14]['sc'].append(Ins('@need', need=(['kv%d%s' % (T + 1, 'K' if late_v else 'V')] if T + 1 < NT else []) + ['*lg']))
                g[15]['sc'].append('s_barrier')
            if seg and n == 9:
                g[0]['sc'].append(Ins('s_barrier', need=['kv1V']))
            if loop and loop[0] <= n < loop[1] and (n - loop[0]) % 16 == 15:
                g[10]['sc'].append('s_sub_u32 s%d, s%d, 1' % (sCNT, sCNT))
                g[12]['sc'].append('s_cmp_lg_u32 s%d, 0' % sCNT)
            prev, pend = p.jobs(self.flat(jobs), pos)
            p.scalars(pend, prev + 1, 10 if prev < 8 and full else len(g))
            plans.append(p)
        reads, pre, held = [], [], {}
        for (w, T, k, f), u in use.items():
            ins = [self.krd(2 * T + k, f)] if w == 'K' else [self.vrd(2 * T + k, 2 * f + x) for x in range(2)]
            if w == 'K' and 8 * T in inline:
                held.setdefault(8 * T, []).extend(ins)
            elif w == 'K' and T == 0 and k == 0:
                pre += ins
            else:
                reads.append((u[0], use[w, T - 1, k, f][-1] if T else (0, 0), ins))
        reads.sort()
        reads += [((NS + 3, 0), at, ins) for at, ins in extra]
        for first, (n, j), ins in reads:
            for x in ins:
                while True:
                    p = plans[n]
                    g = p.g[j]
                    if len(p.mf) == 16:
                        ok = j & 1 and p.cap(j) > 0
                    else:
                        ok = not g['vm'] and len(g['ds']) < 2
                    if ok:
                        break
                    n, j = (n, j + 1) if j + 1 < len(p.mf) else (n + 1, 0)
                g['ds'].append(x)
                assert (n, j) < first and not ((n & 7) == 4 and j > 8), (n, j)
        if loop:
            e('s_mov_b32 s%d, %d' % (sCNT, (loop[1] - loop[0]) // 16))
        e('s_barrier', need=['kv0V', '*lg'])
        self.put(pre)
        carry, dead = [], 0
        for n, p in enumerate(plans):
            if n in inline:
                inline[n](held[n])
            inloop = loop and loop[0] <= n < loop[1]
            if self.opt('astamp', 0) and n % 8 == 0 and not (loop and loop[0] <= n <= loop[1]) and n not in inline:
                self.stamp('s%d_%d' % (seg, n))
            if loop and n == loop[0]:
                self.stamp('pre')
            if inloop and (n - loop[0]) % 16 == 0:
                e('@rep %s %d' % (lab, n))
            if loop and n == loop[1]:
                e('@endrep ' + lab)
                self.stamp('loop')
            if n in fill:
                assert not carry
                carry, dead = fill[n]
            carry = p.fill(carry)
            if carry and n + 1 >= dead:
                p.g[-1]['va'] += carry
                carry = []
            if n >= 3 and n & 1:
                m = (n - 3) >> 1
                p.g[7 if len(p.mf) == 16 else 3]['end'].append(self.rowsum((m >> 1) & 1, aONE2 if m & 1 else aONES, vP + 8 * (m & 1)))
            if inloop and (n - loop[0]) % 16 == 15:
                p.g[15]['end'].append('s_cbranch_scc1 ' + lab)
            p.emit(self)
        self.stamp()

    def code_addr(self):
        return ['v_add_u32 v%d, s%d, v%d' % (vT, sCW, vACT), 'v_min_u32 v%d, s%d, v%d' % (vT, SCODE + 2, vT), 'v_mov_b32 v%d, 0' % (vT + 1),
                'v_lshl_add_u64 %s, %s, 0, s[%d:%d]' % (vr('v', vT, 2), vr('v', vT, 2), SCODE, SCODE + 1)]

    def code_warm(self):
        return [Job('global_load_dwordx4 %s, %s, off' % (vr('a', aDUMMY, 4), vr('v', vT, 2)))]

    def warm(self, buf, vo, so, offs):
        return [Job('buffer_load_dwordx4 %s, v%d, %s, s%d offen offset:%d' % (vr('a', aDUMMY, 4), vo, srd(buf), so, o)) for o in offs]

    def attention1(self):
        e = self.s
        e('@sec attention 1a')
        U, F, G = vX + 48, vT + 4, vT
        N1, P3 = self.opt('n1', 176), self.opt('p3', 40)
        L0, L1 = P3 + 8, N1 - 48
        f0 = ('v_and_b32 v%d, 3, v%d\nv_min_u32 v%d, 2, v%d\n' % (U, vL, U, U) +
              'v_add3_u32 v%d, v%d, s%d, -1\nv_med3_i32 v%d, v%d, 0, 31\nv_lshlrev_b32 v%d, 3, v%d' % (U, U, sT, U, U, vPOFF, U)).split('\n')
        f1 = ('v_bfe_u32 v%d, v%d, 1, 1\nv_lshl_add_u32 v%d, v%d, 1, -1\n' % (U, vL, U, U) +
              'v_bfe_u32 v%d, v%d, 3, 1\nv_mul_i32_i24 v%d, v%d, v%d\n' % (U + 1, vL, U, U, U + 1) +
              'v_add_u32 v%d, s%d, v%d\nv_max_i32 v%d, 0, v%d\nv_min_i32 v%d, 0x7f, v%d\n' % (U, sTBG, U, U, U, U, U) +
              'v_and_b32 v%d, 7, v%d\nv_lshl_or_b32 v%d, v%d, 3, v%d\n' % (U + 1, vL, U, U, U + 1) +
              'v_lshlrev_b32 v%d, 7, v%d\nv_add_u32 v%d, 0x%x, v%d' % (U, U, F, FLAG_OFF, U)).split('\n')
        f2 = ('v_and_b32 v%d, 15, v%d\nv_lshl_add_u32 v%d, s%d, 4, v%d\nv_and_b32 v%d, 48, v%d' % (U, vL, U, sTBG, U, U + 1, vL)).split('\n')
        for g, dlt in enumerate((-1, 1, -2, 2)):
            f2 += ['v_add_u32 v%d, %d, v%d' % (U + 2, dlt, U), 'v_and_or_b32 v%d, v%d, 15, v%d' % (U + 3, U + 2, U + 1),
                   'v_bfe_u32 v%d, v%d, 4, 8' % (U + 2, U + 2), 'v_lshl_or_b32 v%d, v%d, 10, v%d' % (U + 3, U + 2, U + 3),
                   'v_lshlrev_b32 v%d, 4, v%d' % (U + 3, U + 3), 'v_add_u32 v%d, 0x%x, v%d' % (G + g, 4096 * g, U + 3)]
        f3 = ('v_lshrrev_b32 v%d, 4, v%d\nv_and_b32 v%d, 15, v%d\nv_mul_u32_u24 v%d, 3584, v%d\n' % (vT, vL, vT + 1, vL, vT + 2, vT) +
              'v_lshl_add_u32 v%d, v%d, 4, v%d\nv_lshlrev_b32 v%d, 8, v%d\nv_lshl_or_b32 v%d, v%d, 3, v%d\n' % (vT + 3, vT + 1, vT + 2, vT, vT, vT, vT + 1, vT) +
              'v_lshl_add_u32 v%d, s%d, 10, v%d\nv_add_u32 v%d, 0x%x, v%d\n' % (vT, sTBG, vT, vT + 4, ST_OFF, vT) +
              'v_and_b32 v%d, 7, v%d\nv_lshl_or_b32 v%d, s%d, 3, v%d\n' % (vT, vL, vT, sTBG, vT) +
              'v_lshlrev_b32 v%d, 7, v%d\nv_add_u32 v%d, 0x%x, v%d' % (vT, vT, vPOFF, FLAG_OFF + 131072, vT)).split('\n')
        R, M, O = vT, vT + 1, vT + 2
        f3 += ['v_or_b32 v%d, s%d, v%d' % (M, sW, vL), 'v_cmp_eq_u32 vcc, 0, v%d' % M, 'v_mov_b32 v%d, 0x%x' % (O, OOB), 'v_mov_b32 v%d, 1' % R,
               'v_cndmask_b32 v%d, v%d, 0, vcc' % (M, O)]
        dbg = lambda op, off: Job('%s v%d, v%d, %s, s%d offen offset:%d %ssc1' % (op, R, M, srd(SDBG), sT2, off, 'sc0 ' * ('atomic' in op)),
                                  pre=['s_lshl_b32 s%d, s%d, 3' % (sT2, sJ) if off != 68 else 's_mov_b32 s%d, 0' % sT2])
        CB, SM = sT0, sT1
        slices = ['v_readfirstlane_b32 s%d, v%d' % (sRANK, vPRES), 'v_and_b32 v%d, 64, v%d' % (O, vWN), 's_sub_u32 s%d, s%d, 1' % (sRANK, sRANK),
                  's_and_b32 s%d, s%d, 7' % (sRANK, sRANK),
                  's_lshl_b32 s%d, s%d, 9' % (CB, sRANK), 's_min_u32 s%d, s%d, 0xd00' % (CB, CB),
                  's_add_u32 s%d, s%d, s%d' % (sW3W, sW3W, CB), 's_lshl_b32 s%d, s%d, 9' % (sT2, CB), 'v_add_u32 v%d, s%d, v%d' % (vW2, sT2, vWN),
                  's_cmp_ge_u32 s%d, 6' % sRANK, 's_cselect_b32 s%d, 1, 0' % SM, 's_cselect_b32 s%d, 10, 11' % sW4W, 's_cselect_b32 s%d, 1791, 0' % sSTEP,
                  's_lshl_b32 s%d, s%d, s%d' % (sW4W, sTBG, sW4W), 's_add_u32 s%d, s%d, s%d' % (sW4W, sW4W, sT2),
                  'v_mad_u32_u24 v%d, s%d, v%d, v%d' % (vW3, sSTEP, O, vW3), 's_lshl_b32 s%d, 0x%x, s%d' % (sSTEP, 32 * 3584, SM),
                  's_mul_i32 s%d, s%d, s%d' % (SM, SM, sW), 's_lshl_b32 s%d, s%d, 6' % (SM, SM), 's_sub_u32 s%d, s%d, s%d' % (CB, CB, SM),
                  'v_add_u32 v%d, s%d, v%d' % (vW3, CB, vW3),
                  's_sub_u32 s%d, s%d, s%d' % (sT2, sRANK, sJ), 's_lshl_b32 s%d, s%d, 11' % (sT2, sT2), 's_add_u32 s%d, s%d, s%d' % (sYO, sPO, sT2)]
        A, LR, LB, LT = vX + 56, self.LR, self.LB, vT + 4
        f4 = ['v_accvgpr_read_b32 v%d, a%d' % (A + r, aSTAT + r) for r in range(4)]
        f4 += ['v_add_f32 v%d, v%d, v%d' % (A + 4, A, A + 2)] + self.lanesum(A + 4, A + 5)
        f4 += ['v_mul_f32 v%d, 0x3e000000, v%d' % (A + 4, A + 4), 'v_sub_f32 v%d, v%d, v%d' % (A, A, A + 4), 'v_sub_f32 v%d, v%d, v%d' % (A + 2, A + 2, A + 4),
               'v_mul_f32 v%d, v%d, v%d' % (A, A, A), 'v_fmac_f32 v%d, v%d, v%d' % (A, A + 2, A + 2), 'v_add_f32 v%d, v%d, v%d' % (A + 1, A + 1, A + 3),
               'v_fmac_f32 v%d, 0x42800000, v%d' % (A + 1, A)] + self.lanesum(A + 1, A + 5)
        f4 += ['v_mov_b32 v%d, %s' % (LR, f2u(1e-5)), 'v_fmac_f32 v%d, %s, v%d' % (LR, f2u(1.0 / 512), A + 1), 'v_rsq_f32 v%d, v%d' % (LR, LR),
               'v_sub_f32 v%d, 0, v%d' % (A + 4, A + 4), 'v_mul_f32 v%d, v%d, v%d' % (LB, A + 4, LR)]
        f5, self.ln_done = [], self.opt('ln_fill', 5)
        for k in range(vX, vX + 4 * self.ln_done):
            f5 += ['v_lshlrev_b32 v%d, 16, v%d' % (LT, k), 'v_and_b32 v%d, 0xffff0000, v%d' % (k, k), 'v_fma_f32 v%d, v%d, v%d, v%d' % (LT, LT, LR, LB),
                   'v_fma_f32 v%d, v%d, v%d, v%d' % (k, k, LR, LB), 'v_cvt_pk_bf16_f32 v%d, v%d, v%d' % (k, LT, k)]
        f6 = ['v_lshl_add_u32 v%d, s%d, 14, v%d' % (vT + 3, sW, vACT)] + self.waddr(vTR, vT, 's%d' % sRING)
        f6 += ['v_mov_b32 v%d, v%d' % (vS + 6, LR), 'v_mov_b32 v%d, v%d' % (vS + 4, LB)]
        self.put(f0)

        def sched(spread, chk, fill):
            c0, c1 = 12, P3 - 20
            chk[c0] = self.poll_check(SDBG, 8) + [Ins('v_mov_b32 v%d, v%d' % (vPOFF, F))]
            chk[c1] = self.poll_check(SWS, 1)
            chk[L1 + 4] = self.poll_check(SWS, 1) + ['v_mov_b32 v%d, 132' % vPOFF, 'v_lshl_add_u32 v%d, s%d, 3, v%d' % (vPOFF, sJ, vPOFF)]
            chk[L1 + 7] = ['v_cmp_eq_u32 vcc, %d, v%d' % (self.opt('quant', 15), R), 'v_mov_b32 v%d, 1' % R, 'v_cndmask_b32 v%d, v%d, v%d, vcc' % (M, O, M)]
            chk[L1 + 15] = ['v_add_u32 v%d, 1, v%d' % (R, R)]
            chk[L1 + 28] = self.poll_check(SDBG, 0) + slices + self.code_addr()
            fill[4], fill[c0], fill[P3] = (f1, c0), (f2, c1 + 1), (f3, P3 + 6)
            fill[L1 + 12], fill[L1 + 23], fill[N1 + 2] = (f4, L1 + 23), (f5, N1 + 2), (f6, N1 + 3)
            spread([self.flag_store(0, ['hst'])], 4, 5)
            spread([self.poll_load(SDBG)], 7, 8)
            spread([self.poll_load(SWS)], c1 - 5, c1 - 4)
            w2 = []
            for k in range(4):
                w2 += self.whalf('w2', k, 2 + k)
            spread(w2, 4, P3 - 19)
            spread([Job('buffer_load_dwordx4 %s, v%d, %s, 0 offen offset:%d sc1' % (vr('v', vX + 4 * k, 4), G + (k >> 2), srd(SH), 1024 * (k & 3)))
                    for k in range(16)], c1 + 1, P3 - 3, 2)
            spread([self.flag_store(1, ['x1st'])], P3 + 4, P3 + 5)
            spread([self.poll_load(SWS), dbg('buffer_atomic_add', 4)], L1, L1 + 1)
            spread([dbg('buffer_atomic_add', 68)], L1 + 8, L1 + 9)
            spread([dbg('buffer_store_dword', 132)], L1 + 16, L1 + 17)
            spread([self.poll_load(SDBG)], L1 + 24, L1 + 25)
            spread([Job('buffer_load_dwordx2 %s, v%d, %s, 0 offen offset:%d sc1' % (vr('a', aSTAT + 2 * k, 2), vT + 4, srd(SWS), 128 * k)) for k in range(2)]
                   + self.gather('v', vX, sX1I, 0, 'sc1' + ' nt' * self.opt('nt1', 0)), L1 + 7, L1 + 29, 2)
            spread(self.warm(SW3, vT + 3, sW3W, (0, 256)) + self.warm(SW4, vACT, sW4W, (0, 1024)) + self.code_warm(), L1 + 31, L1 + 33, 3)
            spread(sum([self.whalf('w3', k, k, None) for k in range(self.opt('w3pre', 6))], []), N1 - self.opt('w3at', 9), N1 + 2)
        self.segment(0, N1, sched, loop=(L0, L1), inline={P3: self.p3})

    def h2a(self, tb, slot):
        return 16384 + (tb & 1) * 8192 + (tb >> 1) * 32768 + slot * 1024

    def mlp(self):
        e = self.s
        P = lambda b: vr('v', b, 2)
        e('@sec LN x1')
        o, wr = [], ['ds_write_b128 v%d, %s offset:%d' % (vT + 3, vr('v', vX + 4 * ks, 4), 1024 * ks) for ks in range(16)]
        for ks in range(self.ln_done, 16):
            t = vP + 8 * (ks & 1)
            for k in range(4):
                o += ['v_lshlrev_b32 v%d, 16, v%d' % (t + 2 * k, vX + 4 * ks + k), 'v_and_b32 v%d, 0xffff0000, v%d' % (t + 2 * k + 1, vX + 4 * ks + k)]
            if ks - self.ln_done < self.ln_done:
                o.append(wr[ks - self.ln_done])
            for k in range(4):
                o.append('v_pk_fma_f32 %s, %s, %s, %s op_sel_hi:[1,0,0]' % (P(t + 2 * k), P(t + 2 * k), P(vS + 6), P(vS + 4)))
            for k in range(4):
                o.append('v_cvt_pk_bf16_f32 v%d, v%d, v%d' % (vX + 4 * ks + k, t + 2 * k, t + 2 * k + 1))
            o.append(wr[ks])
        o += wr[16 - self.ln_done:self.ln_done]
        self.put(o)
        self.touch(1)
        self.stamp()
        e('s_cmp_ge_u32 s%d, 6\ns_cbranch_scc1 L_mlp_small' % sRANK)
        n0, names = self.nstamp, len(self.tail)
        main, self.s = self.s, Stream(known=['w3%d' % k for k in range(self.opt('w3pre', 6))])
        self.s('L_mlp_small:\ns_waitcnt vmcnt(0) lgkmcnt(0)')
        self.mlp_body(True)
        self.s('s_waitcnt vmcnt(0) lgkmcnt(0)\ns_branch L_mlp_done')
        self.s.insert_waits()
        self.s.pad_hazards()
        self.aside, self.s = self.s, main
        self.nstamp, self.tail[names:] = n0, []
        self.mlp_body(False)
        e('L_mlp_done:')

    def mlp_body(self, small):
        e = self.s
        P = lambda b: vr('v', b, 2)
        e('@sec P5')
        n3 = 8 if small else 16
        sync = lambda: self.s('s_barrier', need=['*lg'])
        piece = lambda h: self.whalf('w3', h, h, small) if h < n3 else self.whalf('w4', h - n3, h, small)
        groups = [(['w3%d' % (k // 2)] if small else ['w3%d' % k, 'w3%d' % (k + 1)], [k, k + 1], [vX + 16 * b for b in range(n3 // 4)], k == 0) for k in range(0, 16, 2)]
        p = self.gemm(0, groups, lambda k, tb: (vACT, (tb * 16 + k) * 1024), [piece(h) for h in range(6, n3 + 6)], sum([piece(h) for h in range(self.opt('w3pre', 6), 6)], []), sync)
        HW, KC = vT, vT + 2
        f = ('v_lshl_add_u32 v%d, s%d, %d, v%d\nv_mov_b32 v%d, %s\n' % (HW, sW, 10 if small else 11, vACT, KC, f2u(-K1)) +
             'v_lshlrev_b32 v%d, 7, v%d\nv_mov_b32 v%d, 0x%x\nv_cmp_gt_u32 vcc, 2, v%d\n' % (vS, vL, vS + 1, OOB, vL) +
             'v_and_b32 v%d, 7, v%d\nv_lshl_add_u32 v%d, v%d, 2, s%d\nv_cndmask_b32 v%d, v%d, v%d, vcc\n' % (vS + 2, vL, vPOFF, vS + 2, sCF, vFLAG, vS + 1, vS) +
             'v_and_b32 v%d, 15, v%d\nv_lshlrev_b32 v%d, 10, v%d\n' % (vS, vL, vS, vS) +
             'v_lshrrev_b32 v%d, 4, v%d\nv_lshl_or_b32 v%d, v%d, 3, v%d' % (vS + 1, vL, vW1, vS + 1, vS)).split('\n')
        assert not p.fill(f)
        p.emit(self)
        self.stamp()
        e('@sec gelu')
        e('s_barrier')
        o, n = [], 0
        for pp in range(n3 // 8):
            for tb in range(4):
                d = vS + 4 * (n % 4)
                for g in range(2):
                    o += self.gelu4(vX + 16 * (2 * pp + g) + 4 * tb, d + 2 * g, vP + 4 * g, KC)
                n += 1
                o.append('ds_write_b128 v%d, %s offset:%d' % (HW, vr('v', d, 4), self.h2a(tb, pp)))
        self.put(o)
        self.stamp()
        e('@sec P7')
        accB, ng = (vS, vP, vX, vX + 32), n3 // 4
        groups = [(['w4%d' % (2 * (ng * ps + k) + i) for i in range(2)], [2 * k, 2 * k + 1], accB if ps else [vX + 16 * b for b in range(4)], k == 0)
                  for ps in range(2) for k in range(ng)]
        p = self.gemm(n3, groups, lambda k, tb: (vACT, self.h2a(tb, k)), [piece(h) for h in range(n3 + 6, 2 * n3)], p.rest, sync, self.tile_dma(0, 'kv0'))
        assert not p.rest
        for pp, (lo, hi) in enumerate(((p.st[ng - 1] + 18, p.st[ng] + 16), (p.st[ng] + 2, p.st[ng] + 24))):
            pk = []
            for tb in range(4):
                a = vX + 32 * pp + 4 * tb
                pk += self.pack(a + 16, a, a + 16)
            p.g[hi - 1]['va'] += p.fill(pk, lo, hi)
        pk = self.vaddr_restore()
        for tb in range(4):
            pk += self.pack(vP + 4 * tb, vS + 4 * tb, vP + 4 * tb)
        rest = p.fill(pk, p.st[-1] + 17)
        p.emit(self)
        self.put(rest)
        for tb in range(4):
            self.put(self.pack(vX + 32 + 4 * tb, vX + 4 * tb, vX + 32 + 4 * tb))
        for r in range(0, 16, 2):
            e('v_pk_mov_b32 %s, %s, %s op_sel:[0,1]' % (P(vX + r), P(vP + r), P(vP + r)))
        self.yfrag = {(0, 0): vX + 16, (0, 1): vX + 48, (1, 0): vX, (1, 1): vX + 32}
        self.stamp()

    def part_flag(self, word, need):
        return Job(Ins('buffer_store_dword v%d, v%d, %s, s%d offen offset:%d sc1' % (vONE, vFLAG, srd(SWS), sFP, 4 * word), need=need))

    def held(self):
        h = {14 + g: [[aK + 32 * g + 8 * b + 4 * kk for kk in range(2)] for b in range(4)] for g in range(2)}
        if self.opt('hold3', 1) and self.prof != 1:
            idle = (148, 152, 156, 172, 176, 180, 184, 188)
            h[13] = [[idle[2 * b + kk] for kk in range(2)] for b in range(4)]
        return h

    def attention2(self):
        e = self.s
        e('@sec attention 2a')
        N2 = 256 - self.opt('n1', 176)
        H, T = self.opt('head2', 32), N2 - self.opt('tail2', 32)

        def sched(spread, chk, fill):
            chk[T + 4] = self.poll_check(SWS, 1)
            spread([self.part_store(self.yfrag[h, pp] + 4 * tb, YP_OFF + 65536 * pp + 16384 * tb + 1024 * h, 'yst', sYO)
                    for h in range(2) for pp in range(2) for tb in range(4)], 4, H - 8, 2)
            spread([self.part_flag(0, ['yst'])], H - 8, H - 7)
            spread(self.warm(SWO, vACT, sWOW, (0, 1024, 2048, 3072)) + self.code_warm(), H - 8, H - 6)
            spread([self.poll_load(SWS)], T, T + 1)
            spread([Job('buffer_load_dwordx2 %s, v%d, %s, s%d offen offset:%d' % (vr('a', aRES + 2 * nb, 2), vW1, srd(SX), sXO, 512 * (nb >> 1) + 32 * (nb & 1)))
                    for nb in range(4)], T, T + 2)
            spread(self.gather('v', vX, sPI, YP_OFF, 'sc1' + ' nt' * self.opt('nt2', 1)), T + 5, N2 - 8, 2)
            if nh == 3:
                spread(self.whalf('wo', od[26], 0) + self.whalf('wo', od[27], 1), T - 9, T - 6)
            first = sum([self.whalf('wo', od[k], h) for k, h in ((28, 2), (29, 3), (30, 4), (31, 5), (0, 0), (1, 1))], [])
            spread(first, N2 - 12, N2 - 1)
            late = self.whalf('wo', od[2], 2) + self.whalf('wo', od[3], 3)
            late[0].ins.need = ['held14']
            spread(late, N2 + 1, N2 + 3)
            fill[H - 12] = (self.code_addr(), H - 8)
            fill[H - 4] = (self.waddr(vT, vT + 4, 's%d' % sRING), H)
        od, nh = self.pair_order(self.opt('p6_early', 5)), len(self.held())
        slot, at = {13: 0, 14: 2, 15: 4}, {13: (T - 3, 0), 14: (N2 - 2, 8), 15: (N2 - 1, 8)}
        extra = [(at[G], [Ins('ds_read_b64_tr_b16 %s, v%d offset:%d' % (vr('a', regs[b][kk] + 2 * x, 2), vT + b, (slot[G] + kk) * 4096 + 2048 * x),
                              need=['wo%d' % od[2 * G + kk]], tag='held%d' % G) for b in range(4) for kk in range(2) for x in range(2)])
                 for G, regs in sorted(self.held().items())]
        self.segment(1, N2, sched, loop=(H, T) if T >= H + 32 else None, extra=extra)
        self.o_epilogue()

    def o_epilogue(self):
        e = self.s
        e('@sec O epilogue')
        e('L_oepi:')
        for r in range(8):
            e('v_accvgpr_read_b32 v%d, a%d' % (vS + r, aL + r))
        for qb in range(4):
            e('v_add_f32 v%d, v%d, v%d' % (vS + 2 * qb, vS + 2 * qb, vS + 2 * qb + 1))
        B = vS + 8
        for qb in range(4):
            e('v_subrev_u32 v%d, 0x2b800000, v%d' % (B + qb, vS + 2 * qb))
        e('v_max3_u32 v%d, v%d, v%d, v%d\nv_max_u32 v%d, v%d, v%d' % (B, B, B + 1, B + 2, B, B, B + 3))
        e('v_cmp_lt_u32 vcc, 0x28000000, v%d' % B)
        e('v_and_b32 v%d, 3, v%d\nv_lshlrev_b32 v%d, 12, v%d\nv_lshl_add_u32 v%d, s%d, 2, v%d' % (B + 1, vL, B + 1, B + 1, B + 1, sW, B + 1))
        e('s_or_b32 s%d, vcc_lo, vcc_hi' % sT0)
        e('v_mov_b32 v%d, s%d' % (B, sT0))
        e('ds_write_b32 v%d, v%d' % (B + 1, B))
        for qb in range(4):
            e('v_rcp_f32 v%d, v%d' % (vS + 2 * qb, vS + 2 * qb))
        e('v_lshl_add_u32 v%d, s%d, 12, v%d' % (vP, sW, vACT))
        e('s_lshl_b32 s%d, s%d, 12\nv_mov_b32 v%d, s%d' % (sT0, sW, B + 1, sT0))
        e('s_barrier', need=['*lg'])
        e('ds_read_b128 %s, v%d' % (vr('v', B + 4, 4), B + 1))
        for qb in range(4):
            for ks in range(4):
                a = vACC + 32 * ks + 4 * qb
                for h in (0, 2, 16, 18):
                    e('v_pk_mul_f32 %s, %s, %s op_sel_hi:[1,0]' % (vr('v', a + h, 2), vr('v', a + h, 2), vr('v', vS + 2 * qb, 2)))
                self.put(self.pack(a + 16, a, a + 16))
                if qb == 0 and ks < 2:
                    if ks == 0:
                        continue
                    e('v_or3_b32 v%d, v%d, v%d, v%d\nv_or_b32 v%d, v%d, v%d' % (B, B + 4, B + 5, B + 6, B, B, B + 7))
                    e('v_cmp_ne_u32 vcc, 0, v%d\ns_cbranch_vccnz L_slow\nL_ofine:' % B)
                    e('ds_write_b128 v%d, %s' % (vP, vr('v', vACC + 16, 4)))
                e('ds_write_b128 v%d, %s offset:%d' % (vP, vr('v', a + 16, 4), (16 * qb + ks) * 1024))
        self.put(self.waddr(vTR, vT, 's%d' % sRING))
        self.stamp()
        self.slow_path()

    def slow_path(self):
        main, self.s = self.s, Stream()
        e = self.s
        M = vT
        e('L_slow:\ns_cmp_lg_u32 s%d, 0\ns_cbranch_scc1 L_ofine\ns_mov_b32 s%d, 1' % (sPASS, sPASS))
        e('s_waitcnt vmcnt(0) lgkmcnt(0)')
        for ps in range(2):
            e('s_mov_b32 s%d, 0\ns_mov_b32 s%d, 0\ns_mov_b32 s%d, 64' % (sKO, sVO, sCNT))
            if ps == 0:
                for qb in range(4):
                    e('v_mov_b32 v%d, 0xff800000' % (M + qb))
            else:
                for qb in range(4):
                    for op in ('v_permlane32_swap_b32', 'v_permlane16_swap_b32'):
                        e('v_mov_b32 v%d, v%d\n%s v%d, v%d\nv_max_f32 v%d, v%d, v%d' % (vS, M + qb, op, vS, M + qb, M + qb, M + qb, vS))
                e('v_lshrrev_b32 v%d, 4, v%d\nv_xor_b32 v%d, v%d, v%d\nv_bfe_i32 v%d, v%d, 1, 1' % (vS, vL, vS, vS, vL, vS, vS))
                e('v_not_b32 v%d, v%d\nv_and_b32 v%d, 0x3f803f80, v%d' % (vS, vS, vS, vS))
                for r in range(4):
                    e('v_accvgpr_write_b32 a%d, v%d' % (aONES + r, vS))
                for r in range(128):
                    e('v_mov_b32 v%d, 0' % (vACC + r))
                for r in range(8):
                    e('v_accvgpr_write_b32 a%d, 0' % (aL + r))
            e('L_slow%d:\ns_barrier' % ps)
            self.emit_jobs(self.kv_dma('K', 0, 'k') + (self.kv_dma('V', 0, 'k') if ps else []))
            e('s_barrier', need=['k'])
            self.put([self.krd(0, f, aV + 32) for f in range(8)] + ([self.vrd(0, h) for h in range(16)] if ps else []))
            e('s_waitcnt lgkmcnt(0)')
            for qb in range(4):
                for kb in range(2):
                    for ks in range(4):
                        e(mfma(vr('v', vS + 4 * kb, 4), vr('a', aV + 32 + 16 * kb + 4 * ks, 4), vr('a', aQ + 16 * qb + 4 * ks, 4), '0' if ks == 0 else None))
                if ps == 0:
                    for r in range(0, 8, 2):
                        e('v_max3_f32 v%d, v%d, v%d, v%d' % (M + qb, M + qb, vS + r, vS + r + 1))
                    continue
                for r in range(8):
                    e('v_sub_f32 v%d, v%d, v%d' % (vS + r, vS + r, M + qb))
                for r in range(8):
                    e('v_exp_f32 v%d, v%d' % (vS + r, vS + r))
                for r in range(4):
                    e('v_cvt_pk_bf16_f32 v%d, v%d, v%d' % (vP + 4 * qb + r, vS + 2 * r, vS + 2 * r + 1))
                for db in range(8):
                    e(mfma(vr('v', vACC + 16 * db + 4 * qb, 4), vr('a', aV + 4 * db, 4), vr('v', vP + 4 * qb, 4)))
                if qb & 1:
                    e(self.rowsum(qb >> 1, aONES, vP + 4 * (qb - 1)))
            e('s_nop 7\ns_sub_u32 s%d, s%d, 1\ns_cmp_lg_u32 s%d, 0\ns_cbranch_scc1 L_slow%d' % (sCNT, sCNT, sCNT, ps))
        e('s_barrier\ns_branch L_oepi')
        e.insert_waits()
        e.pad_hazards()
        self.tail.append(e.text())
        self.s = main

    SEL = vT

    def reduce(self, acc, f, regs, ks, first=False):
        return [mfma(vr('v', acc + 4 * (2 * (k & 1) + g), 4), vr('v', self.SEL + 2 - 2 * g, 4), vr(f, regs + 4 * k, 4), '0' if (first and k < 2) else None)
                for k in ks for g in range(2)]

    def collect(self, acc, regs, base):
        e, L = self.s, 'L_c'
        NEW, N = sT0, sT1
        e('s_mov_b32 s%d, 0x80000' % sT3)
        if self.opt('pollfirst', 0):
            e('s_waitcnt vmcnt(1)\ns_branch %s_got' % L)
        e('%s_wait:\ns_waitcnt vmcnt(0)\nL_c_got:\nv_cmp_eq_u32 vcc, 1, v%d\ns_and_b32 s%d, vcc_lo, 0xff' % (L, vPRES, NEW))
        e('s_andn2_b32 s%d, s%d, s%d\ns_cbranch_scc0 %s_poll' % (NEW, NEW, sDONE, L))
        e('s_or_b32 s%d, s%d, s%d\ns_bcnt1_i32_b32 s%d, s%d' % (sDONE, sDONE, NEW, N, NEW))
        for n in range(1, 7):
            e('s_cmp_eq_u32 s%d, %d\ns_cbranch_scc1 %s_ld%d' % (N, n, L, 7 - n))
        for q in range(7):
            e('%s_ld%d:\ns_ff1_i32_b32 s%d, s%d\ns_bitset0_b32 s%d, s%d' % (L, q, sT2, NEW, NEW, sT2))
            e('s_lshl_b32 s%d, s%d, 11\ns_add_u32 s%d, s%d, s%d' % (sT2, sT2, sT2, sT2, base))
            for p in range(2):
                e('buffer_load_dwordx4 %s, v%d, %s, s%d offen offset:%d sc1' % (vr('a', regs + 8 * q + 4 * p, 4), vACT, srd(SWS), sT2, 1024 * p))
        e.add(self.poll_load(SWS).ins)
        for n in range(1, 7):
            e('s_cmp_eq_u32 s%d, %d\ns_cbranch_scc1 %s_mm%d' % (N, n, L, 7 - n))
        for q in range(7):
            e('%s_mm%d:' % (L, q))
            self.put(self.reduce(acc, 'a', regs, (2 * q, 2 * q + 1)))
        e('s_cmp_lg_u32 s%d, 0xff\ns_cbranch_scc1 %s_wait\n%s_end:' % (sDONE, L, L))
        self.tail.append('%s_poll:\n    %s\n    s_sub_u32 s%d, s%d, 1\n    s_cbranch_scc0 %s_wait\n    s_branch %s_end' % (L, self.poll_load(SWS).ins.text, sT3, sT3, L, L))

    def p6_final(self):
        e = self.s
        P = lambda b: vr('v', b, 2)
        e('@sec P6')
        NE, held = self.opt('p6_early', 5), self.held()
        od = self.pair_order(NE)
        groups = [g + (held[G],) if G in held else g for G, g in enumerate(self.pair_groups('wo', od))]
        NQ = self.opt('p6_quarter', 4)
        if NQ:
            src = lambda G: held[G] if G in held else [[(2 * G + kk, b, groups[G][0][kk]) for kk in range(2)] for b in range(4)]
            seq = sorted(range(16 - NQ, 16), key=lambda G: G not in held)
            groups[16 - NQ:] = [([], groups[G][1], groups[G][2][2 * pp:2 * pp + 2], False, src(G)[2 * pp:2 * pp + 2])
                                for pp in range(2) for G in (seq[::-1] if pp else seq)]
        p = self.gemm(0, groups, lambda k, tb: (vACT, (tb * 16 + k) * 1024), [self.whalf('wo', od[h], h) for h in range(6, 32 - 2 * len(held))],
                      self.whalf('wo', od[4], 4) + self.whalf('wo', od[5], 5), lambda: self.s('s_barrier', need=['*lg']), WF=aQ, AF=aV)
        pk, st = [], []
        for h in range(2):
            for pp in range(2):
                for tb in range(4):
                    a = vACC + 64 * h + 32 * pp + 4 * tb
                    pk.append(self.pack(a + 16, a, a + 16))
                    st.append(self.part_store(a + 16, SP_OFF + 65536 * pp + 16384 * tb + 1024 * h, 'sst', vo=vDB + pp))
        q, pos = p.dma_end + self.opt('a_start', 16), []
        ready = [32 * (16 - NE) + 2] * 8 + [512 - 16 * NQ + 2] * (4 if NQ else 0)
        for k, r in enumerate(ready):
            q = max(q, r + 6)
            while len(p.g[q]['ds']) > 1 or p.g[q]['vm']:
                q += 1
            p.jobs(self.flat([st[k]]), [q], lo=q - 2)
            pos.append(q)
            q += self.opt('a_step', 8)
        for k, q in enumerate(pos):
            p.g[q - 1]['va'] += p.fill(pk[k], ready[k], q)
        pk, st = pk[len(pos):], st[len(pos):]
        SEL, ZZ, XF, SS, E = self.SEL, vS, vP, vACC, vACC + 32
        t = vKA
        f = ('v_lshrrev_b32 v%d, 4, v%d\nv_bfe_u32 v%d, v%d, 2, 2\nv_and_b32 v%d, 1, v%d\nv_lshlrev_b32 v%d, 4, v%d\n' % (t + 1, vL, t, vL, t + 2, vL, t + 2, t + 2) +
             'v_mov_b32 v%d, 0x3f80\nv_lshlrev_b32 v%d, v%d, v%d\n' % (t + 3, t + 2, t + 2, t + 3) +
             'v_cmp_eq_u32 vcc, v%d, v%d\nv_mov_b32 v%d, 0\nv_mov_b32 v%d, 0\n' % (t, t + 1, SEL, SEL + 1) +
             'v_cndmask_b32 v%d, 0, v%d, vcc\nv_and_b32 v%d, 2, v%d\nv_cmp_eq_u32 vcc, 0, v%d\n' % (t + 2, t + 2, t, vL, t) +
             'v_mov_b32 v%d, 0\nv_mov_b32 v%d, 0\nv_cndmask_b32 v%d, 0, v%d, vcc\n' % (SEL + 4, SEL + 5, SEL + 2, t + 2) +
             'v_sub_u32 v%d, v%d, v%d\n' % (SEL + 3, t + 2, SEL + 2) +
             'v_lshl_add_u32 v%d, v%d, 3, v%d' % (vW2, t + 1, vW1)).split('\n')
        p.scalars(['s_lshl_b32 s%d, s%d, 1' % (sVO, sW), 's_sub_u32 s%d, s%d, s%d' % (sVO, sJ, sVO), 's_lshr_b32 s%d, s%d, 1' % (sCNT, sJ),
                   's_mul_i32 s%d, s%d, %d' % (sCNT, sCNT, WWAVE), 's_add_u32 s%d, s%d, s%d' % (sCNT, sCNT, sW2K), 's_add_u32 s%d, s%d, %d' % (sCNT, sCNT, WREG)], 0, 16)
        f += ['v_mov_b32 v%d, 0x%x' % (t, OOB), 'v_mov_b32 v%d, s%d' % (t + 1, sVO), 'v_cmp_eq_u32 vcc, 0, v%d' % (t + 1),
              'v_add_u32 v%d, s%d, v%d' % (vDB + 2, sRING, vACT), 'v_add_u32 v%d, s%d, v%d' % (vDB + 3, sCNT, vACT),
              'v_cndmask_b32 v%d, v%d, v%d, vcc' % (vDB, vACT, t), 'v_cmp_eq_u32 vcc, 1, v%d' % (t + 1),
              'v_add_u32 v%d, 32, v%d' % (vPOFF, vPOFF), 'v_cndmask_b32 v%d, v%d, v%d, vcc' % (vDB + 1, vACT, t)]
        assert not p.fill(f, 0, 48)
        red = self.reduce(XF, 'a', aRES, (0, 1), True) + self.reduce(ZZ, 'a', aX1, (0, 1), True) + self.reduce(ZZ, 'v', vX, range(16))
        gate = ['s_mov_b32 s%d, %s' % (sC0 + k, f2u(-math.log2(math.e))) for k in range(2)]
        gate += ['v_pk_mul_f32 %s, %s, s[%d:%d]' % (P(E + r), P(ZZ + r), sC0, sC0 + 1) for r in range(0, 16, 2)]
        gate += ['v_exp_f32 v%d, v%d' % (E + r, E + r) for r in range(16)]
        gate += ['v_pk_add_f32 %s, %s, 1.0 op_sel_hi:[1,0]' % (P(E + r), P(E + r)) for r in range(0, 16, 2)]
        gate += ['v_rcp_f32 v%d, v%d' % (E + r, E + r) for r in range(16)]
        gate += ['v_pk_mul_f32 %s, %s, %s' % (P(ZZ + r), P(ZZ + r), P(E + r)) for r in range(0, 16, 2)]
        p.scalars(['s_lshl_b32 s%d, 1, s%d' % (sDONE, sJ), 's_add_u32 s%d, s%d, 0x%x' % (sKO, sPI, SP_OFF)], 16, 24)
        if self.opt('p6stamp', 0):
            for q in (127, 255, 383, p.dma_end - 2, 479):
                p.g[q]['end'] += self.stamp_items('q%d' % q)
        p.emit(self)
        self.stamp('P6')
        e('@sec s epilogue')
        self.sprinkle(sum(pk, []), st, start=4, every=4)
        self.stamp('issued')
        for pp in range(2):
            e('s_cmp_lg_u32 s%d, %d\ns_cbranch_scc1 L_other%d' % (sVO, pp, pp))
            for h in range(2):
                for tb in range(4):
                    e('ds_write_b128 v%d, %s offset:%d' % (vDB + 2, vr('v', vACC + 64 * h + 32 * pp + 16 + 4 * tb, 4), 2048 * tb + 1024 * h))
            e('L_other%d:' % pp)
        e('s_waitcnt lgkmcnt(0)\ns_barrier')
        for h in range(2):
            e('ds_read_b128 %s, v%d offset:%d' % (vr('a', 4 * h, 4), vDB + 3, 1024 * h))
        self.put(red + self.reduce(SS, 'a', 0, (0, 1), True))
        gb = self.opt('gate_before', 0)
        pf = self.opt('pollfirst', 0)
        self.emit_jobs([self.poll_load(SWS)] * pf)
        self.put(gate[:gb])
        self.emit_jobs([self.part_flag(8, ['sst'])] + [self.poll_load(SWS)] * (1 - pf))
        self.stamp('acked')
        self.put(gate[gb:])
        self.collect(SS, 64, sKO)
        self.stamp('collected')
        for nb in range(4):
            for r in range(4 * nb, 4 * nb + 4, 2):
                e('v_pk_fma_f32 %s, %s, %s, %s' % (P(XF + r), P(SS + r), P(ZZ + r), P(XF + r)))
            for k in range(2 * nb, 2 * nb + 2):
                e('v_cvt_pk_bf16_f32 v%d, v%d, v%d' % (E + k, XF + 2 * k, XF + 2 * k + 1))
            om = self.opt('outmode', 2)
            if om < 2:
                e('buffer_store_dwordx2 %s, v%d, %s, s%d offen offset:%d%s' % (P(E + 2 * nb), vW1, srd(SOUT), sXO, 512 * (nb >> 1) + 32 * (nb & 1), ' sc1' * om))
            elif nb & 1:
                t = E + 2 * nb - 2
                for op in ('v_permlane32_swap_b32', 'v_permlane16_swap_b32'):
                    e('%s v%d, v%d\n%s v%d, v%d' % (op, t, t + 2, op, t + 1, t + 3))
                e('buffer_store_dwordx4 %s, v%d, %s, s%d offen offset:%d sc1' % (vr('v', t, 4), vW2, srd(SOUT), sXO, 512 * (nb >> 1)))
        if 'diag' in self.o:
            self.stamp('end')
            if self.o['diag'].startswith('xcc'):
                e('v_mov_b32 v%d, 4\nbuffer_load_dword v%d, v%d, %s, 0 offen sc1\ns_waitcnt vmcnt(0)' % (vT, vT + 1, vT, srd(SDBG)))
                e('v_readfirstlane_b32 s100, v%d\ns_nop 3\ns_bcnt1_i32_b32 s100, s100\ns_mul_i32 s100, s100, 1000\ns_mov_b32 s98, 1000' % (vT + 1))
            e('s_sub_u32 s100, s100, s98\ns_mul_i32 s100, s100, %s\ns_min_u32 s100, s100, 100000' % self.o['diag'].split(':')[2])
            e('s_memrealtime s[98:99]\ns_waitcnt lgkmcnt(0)\ns_add_u32 s100, s100, s98')
            e('L_diag:\ns_memrealtime s[98:99]\ns_waitcnt lgkmcnt(0)\ns_sub_u32 s98, s98, s100\ns_cmp_lt_i32 s98, 0\ns_cbranch_scc1 L_diag')
        if self.prof:
            e('s_waitcnt vmcnt(0)')
            self.stamp('end')
            e('v_accvgpr_read_b32 v%d, a%d\nv_accvgpr_read_b32 v%d, a%d' % (vT, aPROF, vT + 1, aPROF + 1))
            for k in range(self.nstamp * (self.prof == 2)):
                e('v_writelane_b32 v%d, s%d, %d\nv_writelane_b32 v%d, s%d, %d' % (vT, LITE[k], k, vT + 1, LITE[k], k))
            e('s_lshl_b32 s%d, s2, 11\ns_lshl_b32 s%d, s%d, 9\ns_add_u32 s%d, s%d, s%d' % (sT0, sT1, sW, sT0, sT0, sT1))
            e('s_add_u32 s%d, s%d, 0x%x\nv_lshlrev_b32 v%d, 3, v%d' % (sT0, sT0, PROF_OFF, vT + 2, vL))
            e('buffer_store_dwordx2 %s, v%d, %s, s%d offen' % (vr('v', vT, 2), vT + 2, srd(SWS), sT0))

    def build(self, verbose=False):
        for phase in (self.prologue, self.p0, self.p2, self.q_p1, self.attention1, self.mlp, self.attention2, self.p6_final):
            phase()
        s = self.s
        s.insert_waits()
        pads = s.pad_hazards()
        est = s.estimate()
        s.fold()
        s.l += [Ins('L_end:'), Ins('s_endpgm'), Ins('@mark main_end')] + self.aside.l
        fixes = s.align(self.opt('touch', 1))
        if self.opt('touch', 1):
            n, cut = s.marks['main_end'] + 1, self.opt('touch_cut', 15)
            assert s.marks['touch1'] < cut + 1 or cut >= n
            for r, (lo, hi) in enumerate(((0, min(cut, n)), (min(cut, n), n))):
                for k in range(lo, hi):
                    s.pages[k].text = 's_cbranch_execz ' + ('L_pg%d' % (k + 4) if k + 4 < hi else 'L_touched%d' % r)
                for x in s.l:
                    for w in range(4):
                        if x.text.endswith(' L_touch%d_%d' % (r, w)):
                            x.text = x.text.replace('L_touch%d_%d' % (r, w), 'L_pg%d' % (lo + w) if lo + w < hi else 'L_touched%d' % r)
        if verbose:
            print('alignment fixes:', fixes, 'pages:', len(s.pages), s.marks)
        if verbose:
            print('hazard pads:', pads)
            for name, cyc, nm in est:
                print('  %-18s est %6d cycles, %5d mfma (%6d)' % (name, cyc, nm, nm * 16))
            print('  total', sum(c for _, c, _ in est))
        ref = open('cdna_kernels/%s.s.ref' % NAME).read().split('\n')
        head = [l for l in ref if l.startswith(';') and '@launch' not in l]
        o = head + ['; @launch grid=(256,1,1) block=(256,1,1) lds=163840',
                    '.amdgcn_target "amdgcn-amd-amdhsa--gfx950"', '.text', '.globl %s_kernel' % NAME, '.p2align 8',
                    '.type %s_kernel,@function' % NAME, '%s_kernel:' % NAME]
        o.append(DOC)
        o.append(s.text())
        o += self.tail
        o.append('L_code_end:\n    s_endpgm')
        o.append('''.section .rodata,"a"
.p2align 6
.amdhsa_kernel %s_kernel
  .amdhsa_next_free_vgpr 512
  .amdhsa_next_free_sgpr 102
  .amdhsa_accum_offset 256
  .amdhsa_group_segment_fixed_size 0
  .amdhsa_kernarg_size 104
  .amdhsa_user_sgpr_count 2
  .amdhsa_user_sgpr_kernarg_segment_ptr 1
  .amdhsa_system_sgpr_workgroup_id_x 1
  .amdhsa_float_denorm_mode_32 3
.end_amdhsa_kernel''' % NAME)
        return '\n'.join(o) + '\n'


if __name__ == '__main__':
    out = sys.argv[1] if len(sys.argv) > 1 else 'k.s'
    opts = dict(a.split('=') for a in sys.argv[2:])
    SP_OFF, YP_OFF = int(opts.get('sp', hex(SP_OFF)), 0), int(opts.get('yp', hex(YP_OFF)), 0)
    open(out, 'w').write(Gen(False, opts).build(True))
    open(out.replace('.s', '_prof.s'), 'w').write(Gen(True, opts).build())
    open(out.replace('.s', '_lite.s'), 'w').write(Gen(2, opts).build())
```

```python
import math
import struct
import sys

sys.path.insert(0, 'work')
from asmgen import Ins, Stream, vr

NAME = 'recurrent_scan__gqa_block_cached__mixer_s_mlp__prompt'


def f2u(x):
    return '0x%08x' % struct.unpack('<I', struct.pack('<f', x))[0]


H_OFF = 0
X1_OFF = 0x200000
FLAG_OFF = 0x400000
ST_OFF = 0x600000
SP_OFF = 0x1000000
YP_OFF = 0x2000000
PROF_OFF = 0x8000000
OOB = 0x40000000

KRING, VRING = 0, 32768
WREG = 65536
WWAVE = 24576

SX, SK, SV, SWQ, SWO, SW1, SW2, SW3, SW4, SOUT, SDBG, SWS, SH, SCODE = range(4, 60, 4)
sT, sJ, sW, sTBG, sRING, sW2K = 60, 61, 62, 63, 64, 65
sO, sDONE, sKO, sVO, sCNT, sRET = 66, 67, 68, 69, 70, 71
sT0, sT1, sT2, sT3 = 72, 73, 74, 75
sC0 = 76
sPASS, sWSH = 78, 79
sST = 80
sHO, sX1O, sX1I, sSTO, sPO, sPI, sCF, sFP, sXO, sCW, sW3W, sW4W, sWOW, sSTEP = range(84, 98)
sRANK, sYO = sHO, sX1O

vL = 0
vTR = 1
vKA = 9
vACT = 13
vWN, vW3, vW2, vW1 = 14, 15, 16, 17
vDB = 18
vFLAG, vONE, vPOFF, vPRES = 22, 23, 24, 25
vT = 26
vIDX = 31
vS, vP = 32, 48
vX = 64
vACC = 128
aK, aV, aONES, aL, aX1, aQ = 0, 64, 128, 132, 140, 192
aPROF, aDUMMY, aSTAT, aRES, aONE2 = 150, 152, 156, 160, 168

LITE = (3, 59, 98, 99, 100, 101, 82, 83)
CSCALE = math.log2(math.e) / math.sqrt(128.0)
K1 = 2 * 0.7978845608028654 * math.log2(math.e)
K2 = K1 * 0.044715


def srd(n):
    return 's[%d:%d]' % (n, n + 3)


def mfma(d, a, b, c=None):
    return 'v_mfma_f32_16x16x32_bf16 %s, %s, %s, %s' % (d, a, b, d if c is None else c)


DOC = """; One persistent launch, one workgroup per CU: workgroup b handles token block t = b/8 (64 tokens) and kv head
; j = b%8; wave w owns query head 4j+w.  All products are computed transposed (tokens on MFMA columns) with
; v_mfma_f32_16x16x32_bf16; weights, K and V stream global -> LDS by DMA and are read with transposing loads.
; the sums are checked after the loop and otherwise the workgroup repeats the attention with the true row maximum
; cleared by their owner at start and used only after the arrival counters in d_debug show the clears are done."""


class Job:
    def __init__(self, ins, pre=(), m0=None, post=()):
        self.ins = ins if isinstance(ins, Ins) else Ins(ins)
        self.pre, self.m0, self.post = list(pre), m0, list(post)


class Plan:
    def __init__(self):
        self.mf, self.g = [], []

    def add(self, m):
        self.mf.append(m)
        self.g.append(dict(sc=[], ds=[], vm=[], va=[], end=[]))
        return len(self.mf) - 1

    def cap(self, j):
        g = self.g[j]
        if g['vm'] or g['end']:
            return 0
        c = 1 if self.mf[j].startswith('v_smfmac') else 2
        return c - len(g['ds']) - sum(vcost(x) for x in g['va']) - max(0, len(g['sc']) - 1)

    def jobs(self, groups, pos, lo=0, avoid=()):
        prev, pend = lo - 1, []
        for (pre, d, post), p in zip(groups, pos):
            self.scalars(pend + pre, prev + 1, p, avoid, late=True)
            assert not self.g[p]['vm'], 'gap %d already holds a memory instruction' % p
            self.g[p]['vm'].append(d)
            prev, pend = p, post
        return prev, pend

    def scalars(self, sc, a, b, avoid=(), late=False):
        if not sc:
            return
        c = [j for j in range(a, b) if not self.g[j]['vm'] and not self.g[j]['sc'] and j not in avoid]
        if len(c) < len(sc):
            c = [j for j in range(a, b) if not self.g[j]['vm']]
        if not c:
            self.g[b]['sc'] += sc
            return
        c = c[-len(sc):] if late else c[:len(sc)]
        for k, x in enumerate(sc):
            self.g[c[min(k, len(c) - 1)]]['sc'].append(x)

    def fill(self, va, start=0, end=None):
        va, j = list(va), start
        end = len(self.mf) if end is None else end
        while va and j < end:
            if self.cap(j) >= vcost(va[0]):
                self.g[j]['va'].append(va.pop(0))
            else:
                j += 1
        return va

    def empty(self, start, n, step=1):
        res, j = [], start
        while len(res) < n:
            if not any(self.g[j][k] for k in ('sc', 'ds', 'vm', 'va', 'end')):
                res.append(j)
                j += step
            else:
                j += 1
        return res

    def emit(self, gen):
        for m, g in zip(self.mf, self.g):
            gen.put([m] + g['sc'] + g['vm'] + g['ds'] + g['va'] + g['end'])


def vcost(x):
    t = x.text if isinstance(x, Ins) else x
    return 2 if t.startswith(('v_exp', 'v_rcp', 'v_rsq', 'v_permlane')) else 1


class Gen:
    def __init__(self, prof=False, opts=None):
        self.s = Stream()
        self.tail = []
        self.prof = prof
        self.o = opts or {}
        self.nstamp = 0
        self.nlab = 0
        self.kv_nt = False

    def stamp(self, name=None):
        if 'diag' in self.o:
            a, b, k = self.o['diag'].split(':')
            sec = name or [x.op[5:] for x in self.s.l if x.kind == 'meta' and x.op.startswith('@sec ')][-1]
            for r, want in ((98, a), (100, b)):
                if sec.replace(' ', '_') == want:
                    self.s('s_waitcnt lgkmcnt(0) ; stamp\ns_memrealtime s[%d:%d]\ns_waitcnt lgkmcnt(0) ; stamp' % (r, r + 1))
            return
        if not self.prof or (self.prof == 2 and name not in ('kernarg', 'end', 'P0 end', 'P2 end', 'pre', 'loop')):
            return
        e = self.s
        if self.prof == 2:
            e('s_waitcnt lgkmcnt(0) ; stamp\ns_memrealtime s[%d:%d]\ns_waitcnt lgkmcnt(0) ; stamp\ns_mov_b32 s%d, s%d' % (sST, sST + 1, LITE[self.nstamp], sST))
            self.nstamp += 1
            return
        self.tail.append('; @@' + (name or [x.op[5:] for x in e.l if x.kind == 'meta' and x.op.startswith('@sec ')][-1]))
        e('s_waitcnt lgkmcnt(0) ; stamp')
        e('s_memtime s[%d:%d]\ns_memrealtime s[%d:%d]\ns_waitcnt lgkmcnt(0) ; stamp' % (sST, sST + 1, sST + 2, sST + 3))
        for k in range(2):
            e('v_accvgpr_read_b32 v%d, a%d' % (vONE, aPROF + k))
            e('s_nop 1\nv_writelane_b32 v%d, s%d, %d' % (vONE, sST + 2 * k, self.nstamp))
            e('v_accvgpr_write_b32 a%d, v%d' % (aPROF + k, vONE))
        e('v_mov_b32 v%d, 1' % vONE)
        self.nstamp += 1

    def stamp_items(self, name):
        main, self.s = self.s, Stream()
        self.s('@sec ' + name)
        self.stamp(name)
        items, self.s = self.s.l[1:], main
        return items

    def poll_load(self, buf):
        return Job('buffer_load_dword v%d, v%d, %s, 0 offen sc1' % (vPRES, vPOFF, srd(buf)))

    def poll_check(self, buf, val):
        self.nlab += 1
        n = self.nlab
        cmp = 'v_cmp_ne_u32' if val == 1 else 'v_cmp_gt_u32' if val else 'v_cmp_eq_u32'
        self.tail.append('''L_spin%(n)d:
    s_mov_b32 s%(c)d, 0x80000
L_spin%(n)d_loop:
    buffer_load_dword v%(r)d, v%(o)d, %(b)s, 0 offen sc1
    s_waitcnt vmcnt(0)
    %(cmp)s vcc, %(v)d, v%(r)d
    s_cbranch_vccz L_back%(n)d
    s_sub_u32 s%(c)d, s%(c)d, 1
    s_cbranch_scc0 L_spin%(n)d_loop
    s_branch L_back%(n)d''' % dict(n=n, c=sT3, r=vPRES, o=vPOFF, b=srd(buf), v=val, cmp=cmp))
        return [Ins('%s vcc, %d, v%d' % (cmp, val, vPRES)), Ins('s_cbranch_vccnz L_spin%d' % n), Ins('L_back%d:' % n)]

    def flag_store(self, phase, need):
        return Job(Ins('buffer_store_dword v%d, v%d, %s, s%d offen sc1' % (vONE, vFLAG, srd(SWS), sT2), need=need),
                   pre=['s_mov_b32 s%d, 0x%x' % (sT2, FLAG_OFF + phase * 131072)])

    def opt(self, k, d):
        return int(self.o.get(k, d))

    def touch(self, r):
        if not self.opt('touch', 1):
            return
        e = self.s
        e('@mark touch%d\ns_mov_b64 exec, 0' % r)
        for w in range(3):
            e('s_cmp_eq_u32 s%d, %d\ns_cbranch_scc1 L_touch%d_%d' % (sW, w, r, w))
        e('s_branch L_touch%d_3\nL_touched%d:\ns_mov_b64 exec, -1' % (r, r))

    def put(self, items):
        for x in items:
            self.s.add(x if isinstance(x, Ins) else Ins(x))

    def flat(self, jobs):
        res, m0 = [], None
        for jb in jobs:
            pre = list(jb.pre)
            if jb.m0 and jb.m0 != m0:
                pre.insert(0, jb.m0)
                m0 = jb.m0
            res.append((pre, jb.ins, list(jb.post)))
        return res

    def emit_jobs(self, jobs):
        for pre, d, post in self.flat(jobs):
            self.put(pre + [d] + post)

    def sprinkle(self, main, jobs, start=0, every=8):
        groups = self.flat(jobs)
        for k, x in enumerate(main):
            if groups and k >= start and (k - start) % every == 0:
                pre, d, post = groups.pop(0)
                self.put(pre + [d] + post)
            self.put([x])
        for pre, d, post in groups:
            self.put(pre + [d] + post)

    def whalf(self, name, k, h, small=False):
        buf, vo, stride, nat, off = {
            'wq': (SWQ, vDB, 8192, True, (k >> 1) * 32 * 8192 + (k & 1) * 128),
            'w1': (SW1, vW1, 1024, True, k * 32768),
            'w2': (SW2, vW2, 1024, False, k * 32768),
            'w3': (SW3, vW3, 3584, False, k * (64 if small else 32) * 3584),
            'w4': (SW4, vW2, 1024, False, (k % (4 if small else 8)) * 32768 + (k // (4 if small else 8)) * 512),
            'wo': (SWO, vWN, 1024, False, (k >> 1) * 32768 + (k & 1) * 512)}[name]
        rows = [16 * (a & 1) + 4 * (a >> 1) if nat else 8 * a for a in range(4)]
        return [Job(Ins('buffer_load_dwordx4 v%d, %s, s%d offen offset:%d %slds' % (vo, srd(buf), sO, 1024 * a, 'nt ' if name in self.o.get('wnt', 'none').split(',') else ''), tag='%s%d' % (name, k)),
                    pre=['s_mov_b32 s%d, 0x%x' % (sO, off + rows[a] * stride - 1024 * a)] if small is not None else
                    ['s_mul_i32 s%d, s%d, %d' % (sO, sSTEP, k) if a == 0 else 's_add_u32 s%d, s%d, 0x%x' % (sO, sO, 8 * stride - 1024)],
                    m0='s_add_u32 m0, s%d, 0x%x' % (sRING, (h % 6) * 4096)) for a in range(4)]

    def waddr(self, dst, t, base):
        return ['v_lshrrev_b32 v%d, 2, v%d' % (dst, vL), 'v_bfe_u32 v%d, v%d, 3, 2' % (t, vL), 'v_lshlrev_b32 v%d, 5, v%d' % (t, t),
                'v_lshl_or_b32 v%d, v%d, 7, v%d' % (dst, dst, t), 'v_and_b32 v%d, 3, v%d' % (t, vL), 'v_lshl_or_b32 v%d, v%d, 3, v%d' % (dst, t, dst),
                'v_add_u32 v%d, %s, v%d' % (dst, base, dst)] + ['v_xor_b32 v%d, 0x%x, v%d' % (dst + b, b << 5, dst) for b in range(1, 4)]

    def vaddr_restore(self):
        return ['v_xor_b32 v%d, 0x80, v%d' % (vTR + db, vTR + 4 + db) for db in range(4)]

    def lanesum(self, r, t):
        o = []
        for op in ('v_permlane32_swap_b32', 'v_permlane16_swap_b32'):
            o += ['v_mov_b32 v%d, v%d' % (t, r), '%s v%d, v%d' % (op, t, r), 'v_add_f32 v%d, v%d, v%d' % (r, r, t)]
        return o

    def gelu4(self, src, dst, tmp, k1, scale=None):
        o = []
        e = o.append
        P = lambda b: vr('v', b, 2)
        if scale is not None:
            for h in (0, 2):
                e('v_pk_mul_f32 %s, %s, %s op_sel_hi:[1,0]' % (P(src + h), P(src + h), P(scale)))
        for h in (0, 2):
            e('v_pk_mul_f32 %s, %s, %s' % (P(tmp + h), P(src + h), P(src + h)))
        for h in (0, 2):
            e('v_pk_fma_f32 %s, %s, s[%d:%d], %s op_sel_hi:[1,1,0]' % (P(tmp + h), P(tmp + h), sC0, sC0 + 1, P(k1)))
        for h in (0, 2):
            e('v_pk_mul_f32 %s, %s, %s' % (P(tmp + h), P(tmp + h), P(src + h)))
        for r in range(4):
            e('v_exp_f32 v%d, v%d' % (tmp + r, tmp + r))
        for h in (0, 2):
            e('v_pk_add_f32 %s, %s, 1.0 op_sel_hi:[1,0]' % (P(tmp + h), P(tmp + h)))
        for r in range(4):
            e('v_rcp_f32 v%d, v%d' % (tmp + r, tmp + r))
        for h in (0, 2):
            e('v_pk_mul_f32 %s, %s, %s' % (P(tmp + h), P(tmp + h), P(src + h)))
        for h in (0, 2):
            e('v_cvt_pk_bf16_f32 v%d, v%d, v%d' % (dst + h // 2, tmp + h, tmp + h + 1))
        return o

    def pack(self, d, a0, a1):
        return ['v_cvt_pk_bf16_f32 v%d, v%d, v%d' % (d + 3, a1 + 2, a1 + 3), 'v_cvt_pk_bf16_f32 v%d, v%d, v%d' % (d + 2, a1, a1 + 1),
                'v_cvt_pk_bf16_f32 v%d, v%d, v%d' % (d, a0, a0 + 1), 'v_cvt_pk_bf16_f32 v%d, v%d, v%d' % (d + 1, a0 + 2, a0 + 3)]

    def g16(self, accf, acc, ring, ad, fill=()):
        def kn(n):
            return (n & 15, n >> 4) if self.opt('chain16', 1) else (n >> 2, n & 3)

        def rd(n):
            ks, nb = kn(n)
            off = ((ks >> 2) & 1) * WWAVE + (ks & 3) * 4096
            return ['ds_read_b64_tr_b16 %s, v%d offset:%d' % (vr('a', ring + 4 * (n % 8) + 2 * g, 2), ad + nb, off + 2048 * g) for g in range(2)]
        AH = 6
        for n in range(AH):
            self.put(rd(n))
        p = Plan()
        for n in range(64):
            ks, nb = kn(n)
            p.add(mfma(vr(accf, acc + 4 * nb, 4), vr('a', ring + 4 * (n % 8), 4), vr('v', vX + 4 * ks, 4), '0' if ks == 0 else None))
            if n + AH < 64:
                p.g[n]['ds'] += rd(n + AH)
                if kn(n + AH)[0] == 7:
                    a = ad + kn(n + AH)[1]
                    p.g[n]['va'].append('v_add_u32 v%d, 0x%x, v%d' % (a, 2 * WWAVE, a))
            p.g[n]['va'] += fill[n:n + 1]
        p.emit(self)

    def gemm(self, h0, groups, actf, later, first_jobs=(), sync=None, last_jobs=(), WF=0, AF=32):
        LEAD = 9
        p, par, h, blk, free, srcs = Plan(), [], h0, [], {}, []
        p.st = []
        for G, (tags, ak, acc, first, *src) in enumerate(groups):
            par.append(par[-1] ^ (ak != groups[G - 1][1]) if G else 0)
            p.st.append(len(p.mf))
            flip = 0
            for b in range(len(acc)):
                n = len(blk)
                blk.append(len(p.mf))
                srcs.append(src[0][b] if src else [(h + kk, b, tags[kk]) if len(tags) == 2 else (h, b + 2 * kk, tags[0]) for kk in range(2)])
                for x in srcs[-1]:
                    if isinstance(x, tuple):
                        free[x[0]] = blk[-1]
                for tb in (range(3, -1, -1) if b & 1 else range(4)):
                    for i, kk in enumerate((1, 0) if flip else (0, 1)):
                        w = srcs[-1][kk]
                        p.add(mfma(vr('v', acc[b] + 4 * tb, 4), vr('a', WF + 8 * (n % 4) + 4 * kk if isinstance(w, tuple) else w, 4),
                                   vr('a', AF + 32 * par[G] + 16 * kk + 4 * tb, 4), '0' if (first and i == 0) else None))
                    flip ^= 1
            h += len(tags)
        owner = [free[x] for x in sorted(free)]
        N = len(p.mf)
        jobs, pos, q = list(first_jobs), [2 * k + 1 for k in range(len(first_jobs))], 4 * ((len(first_jobs) + 1) // 2) + 1
        rest = []
        for k, piece in enumerate(later):
            while k < len(owner) and q < owner[k]:
                q += 4
            for jb in piece:
                if q < N and k < len(owner) and not rest:
                    jobs.append(jb)
                    pos.append(q)
                    q += 4
                else:
                    rest.append(jb)
        for jb in last_jobs:
            jobs.append(jb)
            pos.append(q)
            q += 4
        p.rest, p.dma_end = rest, q
        prev, pend = p.jobs(self.flat(jobs), pos, avoid={x - 1 for x in blk})
        p.scalars(pend, prev + 1, N)
        pre = []

        def place(ins, lo, use):
            for each, lead in ((1, LEAD), (2, LEAD), (2, LEAD - 2), (2, LEAD - 4)):
                c = [j for j in range(max(lo - 1, 0), use - lead + 1) if not p.g[j]['vm'] and (j + 1 not in blk or each == 2)
                     for _ in range(each - len(p.g[j]['ds']))]
                if len(c) >= len(ins) or lo == 0:
                    break
            assert len(c) >= len(ins) or lo == 0
            c = c[-len(ins):]
            pre.extend(ins[:len(ins) - len(c)])
            for j, x in zip(c, ins[len(ins) - len(c):]):
                p.g[j]['ds'].append(x)
        for n, src in enumerate(srcs):
            ins = [Ins('ds_read_b64_tr_b16 %s, v%d offset:%d' % (vr('a', WF + 8 * (n % 4) + 4 * kk + 2 * g, 2), vTR + x[1], (x[0] % 6) * 4096 + 2048 * g),
                       need=[x[2]]) for kk, x in enumerate(src) if isinstance(x, tuple) for g in range(2)]
            if ins:
                place(ins, blk[n - 3] if n >= 4 else 0, blk[n])
        for G, (tags, ak, *_) in enumerate(groups):
            if G == 0 or ak != groups[G - 1][1]:
                ins = ['ds_read_b128 %s, v%d offset:%d' % ((vr('a', AF + 32 * par[G] + 16 * kk + 4 * tb, 4),) + actf(k, tb)) for tb in range(4) for kk, k in enumerate(ak)]
                prev = [x for x in range(G) if par[x] == par[G]]
                lo = p.st[prev[-1] + 1] if prev else 0
                if G == 0:
                    act0 = [ins[k] for k in (0, 1, 3, 2, 4, 5, 7, 6)]
                    continue
                span = max(1, (p.st[G] - LEAD - lo) // len(ins))
                for k, x in enumerate(ins):
                    j = lo + k * span
                    while p.g[j]['vm'] or len(p.g[j]['ds']) >= 2 or (j + 1 in blk and span > 1):
                        j += 1
                    assert j < p.st[G] - 4 + k
                    p.g[j]['ds'].append(x)
        main, self.s = self.s, Stream()
        sync()
        bar, self.s = self.s.l, main
        for x in bar:
            if x.kind == 'bar':
                lg = [y for y in self.s.l if y.kind in ('dsr', 'dsw')]
                if lg:
                    lg[-1].tag = 'lastlds'
                self.put(pre)
                x.need = ['lastlds'] if lg else []
            self.s.add(x)
        self.put(act0)
        return p

    def part_store(self, reg, off, tag, base=sPO, vo=vACT):
        return Job(Ins('buffer_store_dwordx4 %s, v%d, %s, s%d offen sc1' % (vr('v', reg, 4), vo, srd(SWS), sT1), tag=tag),
                   pre=['s_add_u32 s%d, s%d, 0x%x' % (sT1, base, off)])

    def gather(self, f, dst, soff, off, flags):
        return [Job('buffer_load_dwordx4 %s, v%d, %s, s%d offen offset:%d %s' % (vr(f, dst + 4 * k, 4), vACT, srd(SWS), sRET, 1024 * (k % 4), flags),
                    pre=['s_add_u32 s%d, s%d, 0x%x' % (sRET, soff, off + 1024 * k)] if k % 4 == 0 else []) for k in range(16)]

    LR, LB = vW1, vFLAG
    XS, XW, RA, F1 = vP + 8, vP + 9, vP + 10, vT + 4

    def prologue(self):
        e = self.s
        D = vr('a', aDUMMY, 4)
        e('@sec prologue')
        bufs = [(SX, 0, 0x200000), (SWQ, 24, 0x400000), (SWS, 96, 0x10000000), (SW1, 48, 0x80000), (SW2, 56, 0x80000), (SDBG, 88, 256), (SK, 8, 0x400000),
                (SV, 16, 0x400000), (SWO, 32, 0x400000), (SW3, 64, 0x1c0000), (SW4, 72, 0x1c0000), (SOUT, 80, 0x200000)]
        for b, off, _ in bufs[:2]:
            e('s_load_dwordx2 s[%d:%d], s[0:1], %d' % (b, b + 1, off))
        e('s_cmp_ge_u32 s2, 256\ns_cbranch_scc1 L_end')
        if self.o.get('diag', '').startswith('start'):
            e('s_memrealtime s[98:99]')
        if self.prof:
            e('v_accvgpr_write_b32 a%d, 0\nv_accvgpr_write_b32 a%d, 0' % (aPROF, aPROF + 1))
        e('s_getpc_b64 s[%d:%d]\nL_pc:' % (SCODE, SCODE + 1))
        e('s_mov_b32 s%d, L_code_end-L_pc-16' % (SCODE + 2))
        e('s_lshr_b32 s%d, s2, 3\nv_lshlrev_b32 v%d, 4, v0\nv_lshl_add_u32 v%d, s%d, 12, v%d' % (sT, vT + 3, vT, sT, vT + 3))
        self.put(self.code_addr()[1:])
        self.emit_jobs(self.code_warm())
        e('v_readfirstlane_b32 s%d, v0\ns_and_b32 s%d, s2, 7\nv_and_b32 v0, 63, v0' % (sW, sJ))
        e('s_lshr_b32 s%d, s%d, 6' % (sW, sW))
        e('s_lshl_b32 s%d, s%d, 2\ns_add_u32 s%d, s%d, s%d' % (sTBG, sT, sTBG, sTBG, sW))
        e('v_lshrrev_b32 v%d, 2, v%d\nv_and_b32 v%d, 3, v%d' % (vT + 1, vL, vT + 2, vL))
        e('v_lshlrev_b32 v%d, 10, v%d\nv_lshl_or_b32 v%d, v%d, 4, v%d' % (vT + 4, vT + 1, vT + 4, vT + 2, vT + 4))
        e('v_lshlrev_b32 v%d, 4, v%d' % (vACT, vL))
        e('s_lshl_b32 s%d, s%d, 14\ns_lshl_b32 s%d, s%d, 13\ns_lshl_b32 s%d, s%d, 10' % (sCNT, sTBG, sVO, sTBG, sT1, sJ))
        e('s_mov_b32 s%d, 0x200000\ns_mov_b32 s%d, 0x20000' % (SX + 2, SX + 3))
        e('s_sub_u32 s%d, 0x400000, s%d\ns_mov_b32 s%d, 0x20000' % (SWQ + 2, sT1, SWQ + 3))
        e('s_waitcnt lgkmcnt(0)')
        self.stamp('kernarg')
        e('s_add_u32 s%d, s%d, s%d\ns_addc_u32 s%d, s%d, 0' % (SWQ, SWQ, sT1, SWQ + 1, SWQ + 1))
        for b, off, _ in bufs[2:]:
            e('s_load_dwordx2 s[%d:%d], s[0:1], %d' % (b, b + 1, off))
        wl = [Job('buffer_load_dwordx4 %s, v%d, %s, s%d offen' % (D, vACT, srd(SWQ), sVO), post=['s_add_u32 s%d, s%d, 0x100000' % (sVO, sVO)]) for i in range(4)]
        nf = self.opt('wq_first', 2)
        self.emit_jobs(wl[:nf])
        xl = [Job('buffer_load_dwordx4 %s, v%d, %s, s%d offen offset:%d' % (vr('v', vX + 4 * ks, 4), vT + 4, srd(SX), sCNT, 64 * ks)) for ks in range(16)]
        nx = self.opt('x_first', 10)
        self.emit_jobs(xl[:nx])
        self.stamp('x issued')
        mark = len(e.l)

        def lin(dst, c, *terms):
            for k, (reg, mul) in enumerate(terms):
                e('s_mul_i32 s%d, s%d, 0x%x' % (dst if k == 0 else sT0, reg, mul & 0xffffffff))
                if k:
                    e('s_add_u32 s%d, s%d, s%d' % (dst, dst, sT0))
            if c:
                e('s_add_u32 s%d, s%d, 0x%x' % (dst, dst, c))
        lin(sRING, WREG, (sW, WWAVE))
        lin(sW2K, 0, (sW, 2048))
        e('v_mov_b32 v%d, 1' % vONE)
        XS, XW, RA = self.XS, self.XW, self.RA
        e('v_lshlrev_b32 v%d, 1, v%d\nv_xor_b32 v%d, v%d, v%d\nv_lshl_or_b32 v%d, v%d, 4, v%d' % (vT, vT + 2, vT, vT, vT + 1, vT, vT + 2, vT))
        e('v_lshlrev_b32 v%d, 4, v%d\nv_lshl_add_u32 v%d, s%d, 14, v%d' % (vT, vT, XW, sW, vT))
        e('v_lshrrev_b32 v%d, 4, v%d\nv_lshlrev_b32 v%d, 5, v%d\nv_xor_b32 v%d, v%d, v%d' % (vT, vL, vT, vT, XS, vT, vACT))
        e('v_lshrrev_b32 v%d, 5, v%d\nv_and_b32 v%d, 15, v%d\nv_mul_u32_u24 v%d, 18, v%d\nv_xor_b32 v%d, v%d, v%d' % (vT, vL, vT + 1, vL, vT, vT, vT, vT, vT + 1))
        e('v_bfe_u32 v%d, v%d, 4, 1\nv_lshl_or_b32 v%d, v%d, 1, v%d\nv_lshlrev_b32 v%d, 3, v%d' % (vT + 1, vL, vT, vT, vT + 1, vT, vT))
        lin(sT1, 0, (sW, 16384), (sJ, 1024))
        e('v_add_u32 v%d, s%d, v%d\nv_xor_b32 v%d, 64, v%d' % (RA, sT1, vT, RA + 1, RA))
        C, RN, RK = vT, vT + 1, vT + 2
        e('v_and_b32 v%d, 7, v%d\nv_bfe_u32 v%d, v%d, 4, 2\nv_lshlrev_b32 v%d, 1, v%d\nv_xor_b32 v%d, v%d, v%d' % (C, vL, RN, vL, RN, RN, C, C, RN))
        e('v_lshlrev_b32 v%d, 4, v%d\nv_lshrrev_b32 v%d, 3, v%d' % (C, C, RN, vL))
        e('v_and_b32 v%d, 4, v%d\nv_add_u32 v%d, v%d, v%d' % (RK, RN, RK, RK, RN))
        e('v_lshl_add_u32 v%d, v%d, 13, v%d\nv_lshl_add_u32 v%d, s%d, 8, v%d' % (vDB, RK, C, vDB, sW, vDB))
        e('v_lshl_add_u32 v%d, v%d, 10, v%d\nv_lshl_add_u32 v%d, s%d, 17, v%d' % (vW1, RK, C, vW1, sW, vW1))
        e('v_lshl_add_u32 v%d, v%d, 10, v%d' % (vWN, RN, C))
        e('v_and_b32 v%d, 64, v%d\nv_mad_u32_u24 v%d, v%d, 7, v%d' % (RK, C, vW2, RK, vWN))
        W1W, W2W = vP, vP + 1
        e('v_mov_b32 v%d, v%d\nv_mov_b32 v%d, v%d' % (W1W, vWN, W2W, vW2))
        e('v_lshl_add_u32 v%d, s%d, 17, v%d\nv_lshl_add_u32 v%d, s%d, 7, v%d' % (vW2, sW, vW2, vWN, sW, vWN))
        e('v_mul_u32_u24 v%d, 3584, v%d\nv_lshl_add_u32 v%d, s%d, 7, v%d\nv_add_u32 v%d, v%d, v%d' % (RN, RN, C, sW, C, vW3, RN, C))
        e('v_mov_b32 v%d, 0x%x' % (vT + 5, OOB))
        lin(sKO, 0, (sT, 16384))
        RS, Z = vP + 2, vP + 3
        e('v_lshrrev_b32 v%d, 2, v%d\nv_lshlrev_b32 v%d, 17, v%d' % (RS, vL, RS, RS))
        e('v_and_b32 v%d, 3, v%d\nv_lshl_or_b32 v%d, v%d, 10, v%d' % (Z, vL, RS, Z, RS))
        e('v_cmp_gt_u32 vcc, 0x80, v%d' % (vT + 3))
        lin(sT1, 0, (sTBG, 1024), (sJ, 128))
        e('v_cndmask_b32 v%d, v%d, v%d, vcc' % (RS, vT + 5, RS))
        e('v_lshrrev_b32 v%d, 9, v%d\nv_cmp_eq_u32 vcc, 1, v%d' % (Z, vT + 3, Z))
        e('v_lshlrev_b32 v%d, 2, v%d\nv_add_u32 v%d, 0x%x, v%d' % (Z, vL, Z, 0x40000 - 128, Z))
        e('v_cndmask_b32 v%d, v%d, v%d, vcc' % (RS, RS, Z))
        e('v_cmp_eq_u32 vcc, 0, v%d\nv_mov_b32 v%d, s%d\ns_add_u32 s%d, s%d, 0x%x' % (vL, vFLAG, sT1, sRET, sT1, FLAG_OFF))
        e('v_cndmask_b32 v%d, v%d, v%d, vcc' % (vFLAG, vT + 5, vFLAG))
        e('v_cmp_eq_u32 vcc, 0, v%d\nv_mov_b32 v%d, 0\ns_add_u32 s%d, s%d, 0x%x' % (vT + 3, Z, sSTO, sT1, ST_OFF))
        e('v_cndmask_b32 v%d, v%d, 0, vcc' % (vPOFF, vT + 5))
        e('v_and_b32 v%d, 15, v%d\nv_lshrrev_b32 v%d, 4, v%d' % (vT, vL, vT + 1, vL))
        e('v_xor_b32 v%d, v%d, v%d\nv_lshlrev_b32 v%d, 4, v%d\nv_lshl_or_b32 v%d, v%d, 8, v%d' % (vT + 1, vT + 1, vT, vT + 1, vT + 1, vKA, vT, vT + 1))
        for ks in range(1, 4):
            e('v_xor_b32 v%d, 0x%x, v%d' % (vKA + ks, 64 * ks, vKA))
        e('v_lshrrev_b32 v%d, 2, v%d\nv_and_b32 v%d, 7, v%d\nv_lshlrev_b32 v%d, 5, v%d' % (vT, vL, vT + 1, vT, vT + 1, vT + 1))
        e('v_lshl_or_b32 v%d, v%d, 8, v%d\nv_and_b32 v%d, 3, v%d\nv_lshl_or_b32 v%d, v%d, 3, v%d' % (vT, vT, vT + 1, vT + 1, vL, vT, vT + 1, vT))
        for db in range(4, 8):
            e('v_xor_b32 v%d, 0x%x, v%d' % (vTR + db, VRING | db << 5, vT))
        self.put(self.waddr(vTR, vT, 's%d' % sRING))
        e('v_bfe_i32 v%d, v%d, 1, 1\nv_and_b32 v%d, 0x3f803f80, v%d\nv_xor_b32 v%d, 0x3f803f80, v%d' % (vT, vL, vT + 1, vT, vT + 2, vT + 1))
        e('v_bfe_i32 v%d, v%d, 0, 1\nv_and_b32 v%d, 0xaaaaaaaa, v%d\nv_or_b32 v%d, 0x44444444, v%d' % (vT, vL, vT, vT, vIDX, vT))
        for r in range(4):
            e('v_accvgpr_write_b32 a%d, v%d\nv_accvgpr_write_b32 a%d, v%d' % (aONES + r, vT + 2, aONE2 + r, vT + 1))
        for r in range(8):
            e('v_accvgpr_write_b32 a%d, 0' % (aL + r))
        lin(sHO, 0, (sTBG, 1 << 14), (sJ, 1 << 11))
        lin(sX1I, X1_OFF, (sTBG, 1 << 14))
        lin(sX1O, 0, (sJ, 1 << 10), (sX1I, 1))
        lin(sPO, 0, (sT, 1 << 19), (sJ, 1 << 11), (sW, 1 << 17))
        lin(sPI, 0, (sT, 1 << 19), (sJ, 1 << 16), (sW, 1 << 14))
        lin(sCF, FLAG_OFF + 0x40000, (sT, 1 << 12), (sJ, 1 << 7))
        lin(sFP, FLAG_OFF + 0x40000, (sT, 1 << 12), (sW, 256), (sJ, 4))
        lin(sXO, 0, (sTBG, 1 << 14), (sJ, 64))
        lin(sCW, 0, (sTBG, 1024))
        lin(sW3W, 0, (sTBG, 4 * 3584))
        lin(sWOW, 0, (sTBG, 4096))
        e('s_lshr_b32 s%d, s%d, 1\ns_lshl_b32 s%d, s%d, 13' % (sWSH, sTBG, sWSH, sWSH))
        e('s_mov_b32 s%d, %s\ns_mov_b32 s%d, %s\ns_mov_b32 s%d, 0' % (sC0, f2u(-K2), sC0 + 1, f2u(-K2), sPASS))
        e('s_waitcnt lgkmcnt(0)')
        shift = {SW1: [(sJ, 128)], SW2: [(sJ, 64)], SK: [(sJ, 1 << 19)], SV: [(sJ, 1 << 19)], SWO: [(sJ, 1 << 19)]}
        for b, _, size in bufs[2:]:
            if b in shift:
                lin(sT1, 0, *shift[b])
                e('s_add_u32 s%d, s%d, s%d\ns_addc_u32 s%d, s%d, 0\ns_sub_u32 s%d, 0x%x, s%d' % (b, b, sT1, b + 1, b + 1, b + 2, size, sT1))
            else:
                e('s_mov_b32 s%d, 0x%x' % (b + 2, size))
            e('s_mov_b32 s%d, 0x20000' % (b + 3))
        e('s_mov_b32 s%d, s%d\ns_mov_b32 s%d, s%d\ns_mov_b32 s%d, 0x200000\ns_mov_b32 s%d, 0x20000' % (SH, SWS, SH + 1, SWS + 1, SH + 2, SH + 3))
        ns = self.opt('x_setup', 0)
        setup, e.l = e.l[mark:], e.l[:mark]
        self.sprinkle(setup, xl[nx:nx + ns], start=self.opt('xs_start', 20), every=self.opt('xs_every', 25))
        self.xrest = xl[nx + ns:]
        self.early = wl[nf:] + [Job(Ins('buffer_store_dword v%d, v%d, %s, s%d offen sc1' % (Z, RS, srd(SWS), sRET), tag='reset')),
                                Job('buffer_load_dwordx4 %s, v%d, %s, s%d offen' % (D, W1W, srd(SW1), sWSH)),
                                Job('buffer_load_dwordx4 %s, v%d, %s, s%d offen' % (D, W2W, srd(SW2), sWSH))]
        self.early += (self.warm(SK, vACT, sWOW, (0, 1024, 2048, 3072)) + self.warm(SV, vACT, sWOW, (0, 1024, 2048, 3072)))[:self.opt('kv_early', 2)]
        self.stamp('setup')
        self.touch(0)
        self.stamp('touched')
        e('s_branch L_go\n.p2align 12\nL_go:')

    def p0(self):
        e = self.s
        e('@sec P0 layernorm')
        P = lambda b: vr('v', b, 2)
        A, X0 = vS, vS + 8
        o = ['v_lshlrev_b32 v%d, 16, v%d' % (X0 + 1, vX), 'v_mov_b32_dpp v%d, v%d quad_perm:[0,0,0,0] row_mask:0xf bank_mask:0xf' % (X0, X0 + 1)]
        for k in range(64):
            d = vACC + 2 * k
            o += ['v_lshlrev_b32 v%d, 16, v%d' % (d, vX + k), 'v_and_b32 v%d, 0xffff0000, v%d' % (d + 1, vX + k),
                  'v_pk_add_f32 %s, %s, %s op_sel_hi:[1,0] neg_lo:[0,1] neg_hi:[0,1]' % (P(d), P(d), P(X0))]
            if k == 0:
                o += ['v_pk_mul_f32 %s, %s, %s' % (P(A + 2), P(d), P(d))]
            else:
                o += ['v_pk_add_f32 %s, %s, %s' % (P(A), P(A) if k > 1 else P(vACC), P(d)), 'v_pk_fma_f32 %s, %s, %s, %s' % (P(A + 2), P(d), P(d), P(A + 2))]
        wq = []
        for k in range(6):
            wq += self.whalf('wq', self.pair_order(0)[k], k)
        nd = self.opt('p1_dma', 2)
        jobs = []
        while self.xrest or (wq and nd):
            jobs += self.xrest[:1] + wq[:nd if self.xrest else nd + 1]
            wq = wq[nd if self.xrest else nd + 1:]
            self.xrest = self.xrest[1:]
        self.sprinkle(o, jobs, start=self.opt('p1_start', 2), every=20 // (nd + 1) if nd else 10)
        self.stamp('x landed')
        o = ['v_add_f32 v%d, v%d, v%d' % (A, A, A + 1), 'v_add_f32 v%d, v%d, v%d' % (A + 2, A + 2, A + 3)]
        for qp in ('[1,0,3,2]', '[2,3,0,1]'):
            for r in (A, A + 2):
                o.append('v_add_f32_dpp v%d, v%d, v%d quad_perm:%s row_mask:0xf bank_mask:0xf' % (r, r, r, qp))
        M, V, R = A, A + 2, A + 4
        o += ['v_mul_f32 v%d, %s, v%d' % (M, f2u(1.0 / 512), M), 'v_mul_f32 v%d, %s, v%d' % (V, f2u(1.0 / 512), V),
              'v_fma_f32 v%d, -v%d, v%d, v%d' % (V, M, M, V), 'v_max_f32 v%d, 0, v%d' % (V, V),
              'v_add_f32 v%d, %s, v%d' % (R, f2u(1e-5), V), 'v_rsq_f32 v%d, v%d' % (R, R),
              'v_and_b32 v%d, 0xf0, v%d' % (A + 7, vACT),
              'v_mul_f32 v%d, v%d, v%d' % (A + 6, R, R), 'v_fmaak_f32 v%d, v%d, v%d, %s' % (A + 6, A + 6, V, f2u(1e-5)), 'v_rsq_f32 v%d, v%d' % (A + 6, A + 6),
              'v_mul_f32 v%d, %s, v%d' % (R, f2u(CSCALE), R), 'v_mul_f32 v%d, %s, v%d' % (A + 6, f2u(1.0 / CSCALE), A + 6),
              'v_mul_f32_e64 v%d, -v%d, v%d' % (M, M, R), 'ds_bpermute_b32 v%d, v%d, v%d' % (self.F1, A + 7, A + 6)]
        for ks in range(16):
            for k in range(4 * ks, 4 * ks + 4):
                d = P(vACC + 2 * k)
                o.append('v_pk_fma_f32 %s, %s, %s, %s op_sel_hi:[1,0,0]' % (d, d, P(R), P(M)))
            for k in range(4 * ks, 4 * ks + 4):
                o.append('v_cvt_pk_bf16_f32 v%d, v%d, v%d' % (vX + k, vACC + 2 * k, vACC + 2 * k + 1))
            o.append('ds_write_b128 v%d, %s offset:%d' % (self.XW, vr('v', vX + 4 * ks, 4), 1024 * ks))
        nw, nl = 4 * self.opt('ln_w', 4), self.opt('ln_jobs', 22)
        jobs = wq[:nw] + self.early + wq[nw:]
        self.p2_first = jobs[nl:]
        self.sprinkle(o, jobs[:nl], start=self.opt('ln_start', 0), every=self.opt('ln_every', 2 if nd else 7))
        for nb in range(4):
            e('ds_read_b64 %s, v%d offset:%d' % (vr('a', aRES + 2 * nb, 2), self.RA + (nb & 1), 8192 * (nb >> 1) + 512 * (nb & 1)))
        e('v_lshl_add_u32 v%d, s%d, 14, v%d' % (self.XW, sW, self.XS))

    def kv_dma(self, which, unit, tag):
        buf, ring, so, vo = (SK, KRING, sKO, vDB) if which == 'K' else (SV, VRING, sVO, vDB + 2)
        fl = self.o.get('kvflag', 'nt_').replace('_', ' ') if self.kv_nt else ''
        m0 = 's_add_u32 m0, s%d, 0x%x' % (sW2K, ring + 8192 * (unit & 3))
        return [Job(Ins('buffer_load_dwordx4 v%d, %s, s%d offen %slds' % (vo, srd(buf), so, fl), tag=tag), m0=m0),
                Job(Ins('buffer_load_dwordx4 v%d, %s, s%d offen offset:1024 %slds' % (vo + 1, srd(buf), so, fl), tag=tag), m0=m0,
                    post=['s_add_u32 s%d, s%d, 0x2000' % (so, so), 's_and_b32 s%d, s%d, 0x7ffff' % (so, so)])]

    def pair_order(self, early):
        sg = [(kp, hf) for kp in range(8 - early) for hf in range(2)] + [(kp, hf) for hf in range(2) for kp in range(8 - early, 8)]
        return [2 * (2 * kp + kk) + hf for kp, hf in sg for kk in range(2)]

    def pair_groups(self, name, od):
        return [(['%s%d' % (name, k) for k in od[h:h + 2]], [k >> 1 for k in od[h:h + 2]],
                 [vACC + 64 * (od[h] & 1) + 16 * b for b in range(4)], od[h] < 2) for h in range(0, 32, 2)]

    def p2(self):
        e = self.s
        e('@sec P2')
        od = self.pair_order(0)
        later = [self.whalf('wq', od[h], h) if h < 32 else self.whalf('w1', h - 32, h) for h in range(6, 36)]
        if self.opt('kvwarm', 0):
            later[25] = later[25] + self.warm(SK, vACT, sWOW, (0, 1024, 2048, 3072)) + self.warm(SV, vACT, sWOW, (0, 1024, 2048, 3072))
        p = self.gemm(0, self.pair_groups('wq', od), lambda k, tb: (self.XS, (tb * 16 + k) * 1024),
                      later, self.p2_first, lambda: (self.s('s_barrier', need=['*lg']), self.stamp('P0 end')))
        self.q_first = p.rest
        for ks in range(16):
            p.g[16 * (ks + 2) + 7]['ds'].append('ds_read_b128 %s, v%d offset:%d' % (vr('v', vX + 4 * ks, 4), self.XW, 1024 * ks))
        assert not p.fill(self.waddr(vP + 12, vT, '0x%x' % (WREG + 8192)) + ['v_mov_b32 v%d, %s' % (vP + 10, f2u(-K1))], 16)
        f = ('v_lshrrev_b32 v%d, 4, v%d\nv_and_b32 v%d, 15, v%d\nv_lshl_add_u32 v%d, v%d, 8, s%d\n' % (vT, vL, vT + 1, vL, vT + 2, vT, sW2K) +
             'v_bfe_u32 v%d, v%d, 8, 4\nv_xor_b32 v%d, v%d, v%d\n' % (vT + 3, vT + 2, vT + 3, vT + 3, vT + 1) +
             'v_lshl_add_u32 v%d, v%d, 4, v%d\nv_xor_b32 v%d, 64, v%d\n' % (vDB, vT + 3, vT + 2, vDB + 1, vDB) +
             'v_lshlrev_b32 v%d, 1, v%d\nv_xor_b32 v%d, v%d, v%d\n' % (vT + 3, vT, vT + 3, vT + 3, vT + 1) +
             'v_lshl_add_u32 v%d, v%d, 4, v%d\nv_xor_b32 v%d, 0x80, v%d' % (vDB + 2, vT + 3, vT + 2, vDB + 3, vDB + 2)).split('\n')
        assert not p.fill(f, 32 * 14)
        assert not p.fill(self.vaddr_restore(), 16 * 31 + 2)
        p.jobs(self.flat([Job(Ins('buffer_atomic_add v%d, v%d, %s, s%d offen sc1' % (vONE, vPOFF, srd(SDBG), sT0), need=['reset']),
                              pre=['s_lshl_b32 s%d, s%d, 3' % (sT0, sT), 's_mov_b32 s%d, s%d' % (sVO, sKO)])]), p.empty(16 * 31 + 10, 1), lo=16 * 31 + 5)
        p.emit(self)
        self.stamp('P2 end')

    def q_p1(self):
        e = self.s
        e('@sec Q epilogue')
        if self.o.get('diag', '').startswith('xcc'):
            e('s_getreg_b32 s98, hwreg(HW_REG_XCC_ID)\ns_sub_u32 s98, s98, s%d\ns_and_b32 s98, s98, 7\ns_lshl_b32 s98, 1, s98' % sJ)
            e('v_mov_b32 v%d, s98\nbuffer_atomic_or v%d, v%d, %s, 0 offen offset:4 sc1' % (vT, vT, vPOFF, srd(SDBG)))
        e('s_barrier', need=['*lg'])
        jobs = self.q_first + self.tile_dma(0, 'kv0')
        o, wr = [], []
        fr = [(qb, ks) for qb in range(4) for ks in range(4)]
        for n in range(0, 16, 2):
            ts = []
            for qb, ks in fr[n:n + 2]:
                a = vACC + 32 * ks + 4 * qb
                o += self.pack(a + 16, a, a + 16)
                ts.append(a + 16)
            for op in ('v_permlane32_swap_b32', 'v_permlane16_swap_b32'):
                for t in ts:
                    o += ['%s v%d, v%d' % (op, t, t + 2), '%s v%d, v%d' % (op, t + 1, t + 3)]
            for (qb, ks), t in zip(fr[n:n + 2], ts):
                (wr if self.opt('q_in_p1', 1) else o).extend('v_accvgpr_write_b32 a%d, v%d' % (aQ + 16 * qb + 4 * ks + r, t + r) for r in range(4))
        self.sprinkle(o, jobs, every=self.opt('q_every', 4))
        self.stamp()
        e('@sec P1')
        e('s_barrier', need=['w13'])
        self.g16('v', vS, 0, vP + 12, wr)
        o = []
        for nb in range(4):
            o += self.gelu4(vS + 4 * nb, vX + 2 * nb, vP + 4 * (nb & 1), vP + 10, scale=self.F1)
        self.sprinkle(o, self.tile_dma(1, 'kv1'), every=11)
        for p in range(2):
            e('buffer_store_dwordx4 %s, v%d, %s, s%d offen offset:%d sc1' % (vr('v', vX + 4 * p, 4), vACT, srd(SH), sHO, 1024 * p), tag='hst')
        self.stamp()

    def p3(self, kreads):
        e = self.s
        self.stamp()
        e('@sec P3')
        acc = aK
        self.put(self.waddr(vT, vT + 4, '0x%x' % (WREG + 8192)))
        self.g16('a', acc, aK + 32, vT)
        X, R, PK = vX, vX + 16, vX + 32
        P = lambda b: vr('v', b, 2)
        for k in range(8):
            e('v_accvgpr_read_b32 v%d, a%d' % (PK + k, aRES + k))
        for k in range(8):
            e('v_lshlrev_b32 v%d, 16, v%d\nv_and_b32 v%d, 0xffff0000, v%d' % (R + 2 * k, PK + k, R + 2 * k + 1, PK + k))
        e('v_mov_b32 v%d, %s' % (PK + 8, f2u(1.0 / CSCALE)))
        for k in range(16):
            e('v_accvgpr_read_b32 v%d, a%d' % (X + k, acc + k))
        mark = len(e.l)
        for k in range(8):
            e('v_pk_fma_f32 %s, %s, %s, %s op_sel_hi:[1,0,1]' % (P(X + 2 * k), P(R + 2 * k), P(PK + 8), P(X + 2 * k)))
        for k in range(8):
            e('v_cvt_pk_bf16_f32 v%d, v%d, v%d' % (PK + k, X + 2 * k, X + 2 * k + 1))
        e('s_add_u32 s%d, s%d, 0x2000' % (sT1, sX1O))
        for p in range(2):
            e('buffer_store_dwordx4 %s, v%d, %s, s%d offen sc1' % (vr('v', PK + 4 * p, 4), vACT, srd(SWS), sT1 if p else sX1O))
        for k in range(8):
            e('v_lshlrev_b32 v%d, 16, v%d\nv_and_b32 v%d, 0xffff0000, v%d' % (X + 2 * k, PK + k, X + 2 * k + 1, PK + k))
            e('v_accvgpr_write_b32 a%d, v%d' % (aX1 + k, PK + k))
        for k in range(4):
            e('v_pk_add_f32 %s, %s, %s' % (P(R + 2 * k), P(X + 2 * k), P(X + 8 + 2 * k)))
        e('v_pk_add_f32 %s, %s, %s\nv_pk_add_f32 %s, %s, %s' % (P(R), P(R), P(R + 2), P(R + 4), P(R + 4), P(R + 6)))
        e('v_pk_add_f32 %s, %s, %s\nv_add_f32 v%d, v%d, v%d' % (P(R), P(R), P(R + 4), R + 8, R, R + 1))
        self.put(self.lanesum(R + 8, R + 10))
        e('v_mul_f32 v%d, %s, v%d' % (R + 8, f2u(1.0 / 64), R + 8))
        for k in range(8):
            e('v_pk_add_f32 %s, %s, %s op_sel_hi:[1,0] neg_lo:[0,1] neg_hi:[0,1]' % (P(X + 2 * k), P(X + 2 * k), P(R + 8)))
        for k in range(8):
            e('v_pk_fma_f32 %s, %s, %s, %s' % (P(R), P(X + 2 * k), P(X + 2 * k), P(R)) if k else 'v_pk_mul_f32 %s, %s, %s' % (P(R), P(X), P(X)))
        e('v_add_f32 v%d, v%d, v%d' % (R + 9, R, R + 1))
        e('v_lshlrev_b32 v%d, 3, v%d\nv_mov_b32 v%d, 0x%x\nv_cmp_gt_u32 vcc, 16, v%d' % (R, vL, R + 1, OOB, vL))
        self.put(self.lanesum(R + 9, R + 10))
        e('v_cndmask_b32 v%d, v%d, v%d, vcc' % (R, R + 1, R))
        e('buffer_store_dwordx2 %s, v%d, %s, s%d offen sc1' % (P(R + 8), R, srd(SWS), sSTO), tag='x1st')
        epi, e.l = e.l[mark:], e.l[:mark]
        for k, x in enumerate(epi):
            if k % 16 == 0:
                self.put(kreads[k // 4:k // 4 + 4])
            e.add(x)
        self.stamp()
        e('@sec attention 1b')

    def krd(self, u, f, base=aK):
        kb, ks = f >> 2, f & 3
        return 'ds_read_b128 %s, v%d offset:%d' % (vr('a', base + 32 * (u & 1) + 4 * f, 4), vKA + ks, KRING + 8192 * (u & 3) + 4096 * kb)

    def vrd(self, u, h):
        db, g = h >> 1, h & 1
        return 'ds_read_b64_tr_b16 %s, v%d offset:%d' % (vr('a', aV + 32 * (u & 1) + 4 * db + 2 * g, 2), vTR + db, 8192 * (u & 3) + 4096 * g)

    def rowsum(self, d, ones, p):
        return 'v_smfmac_f32_16x16x64_bf16 %s, %s, %s, v%d' % (vr('a', aL + 4 * d, 4), vr('a', ones, 4), vr('v', p, 8), vIDX)

    KV_GAPS = ((5, 1), (5, 5), (5, 9), (5, 13), (6, 1), (6, 5), (6, 13), (7, 1))
    SIDE_GAPS = {7: (5, 13), 0: (1, 5, 9, 13), 1: (1, 5), 4: (9, 13)}

    def tile_dma(self, T, tag):
        return sum([self.kv_dma(w, 2 * T + k, tag + w) for w in 'KV' for k in range(2)], [])

    def segment(self, seg, NS, sched, loop=None, inline=None, extra=()):
        e = self.s
        NT, inline = NS // 8, inline or {}
        side, chk, fill = {}, {}, {}

        def slots(n):
            T, h = n >> 3, n & 7
            if n < 3 or n >= NS:
                return [1, 3, 5, 7] if n > NS else []
            g = list(self.SIDE_GAPS.get(h, ()))
            if T + 2 >= NT:
                g += [x for hh, x in self.KV_GAPS if hh == h]
            if T + 1 == NT:
                g += {4: [5], 6: [9], 7: [9]}.get(h, [])
            return sorted(g)

        def spread(jobs, n, stop, rate=4):
            jobs = list(jobs)
            while jobs:
                assert n < stop, 'side jobs do not fit'
                room = min(rate, len(slots(n)) - (n in chk) - len(side.get(n, [])))
                while room > 0 and jobs:
                    side.setdefault(n, []).append(jobs.pop(0))
                    room -= 1
                n += 1
        sched(spread, chk, fill)
        lab = 'L_attn%d' % seg
        plans, use = [], {}
        for n in range(NS + 3):
            T, h = n >> 3, n & 7
            p = Plan()
            if n < NS:
                for kb in range(2):
                    d = vr('v', vS + 8 * (n & 1) + 4 * kb, 4)
                    for i, ks in enumerate(range(3, -1, -1) if kb else range(4)):
                        j = p.add(mfma(d, vr('a', aK + 32 * (n & 1) + 16 * kb + 4 * ks, 4), vr('a', aQ + 16 * (h >> 1) + 4 * ks, 4), self.o.get('c0', '-4.0') if i == 0 else None))
                        use.setdefault(('K', T, n & 1, 4 * kb + ks), []).append((n, j))
            if n >= 3:
                m, dh = (n - 3) >> 1, (n - 3) & 1
                for db in range(4 * dh, 4 * dh + 4):
                    for i, kk in enumerate((1, 0) if db & 1 else (0, 1)):
                        j = p.add(mfma(vr('v', vACC + 16 * db + 4 * (m & 3), 4), vr('a', aV + 32 * kk + 4 * db, 4), vr('v', vP + 8 * (m & 1) + 4 * kk, 4),
                                       '0' if (m < 4 and seg == 0 and i == 0) else None))
                        use.setdefault(('V', m >> 2, kk, db), []).append((n, j))
            g, full = p.g, len(p.mf) == 16
            if 1 <= n <= NS:
                sb, pb = vS + 8 * ((n - 1) & 1), vP + 4 * ((n - 1) & 3)
                lag = 2 if n < 3 else 0
                for k in range(8):
                    g[2 * k if full else min(k + lag, 7)]['va'].append('v_exp_f32 v%d, v%d' % (sb + k, sb + k))
                    if k & 1:
                        g[2 * k + 1 if full else min(k + lag + 1, 7)]['va'].append('v_cvt_pk_bf16_f32 v%d, v%d, v%d' % (pb + k // 2, sb + k - 1, sb + k))
            jobs, pos = [], []
            self.kv_nt = False
            if seg and n < 2:
                jobs, pos = self.tile_dma(1, 'kv1')[4 * n:4 * n + 4], [0, 2, 4, 6]
            if T + 2 < NT and n < NS:
                for jb, (hh, x) in zip(self.tile_dma(T + 2, 'kv%d' % (T + 2)), self.KV_GAPS):
                    if hh == h:
                        jobs.append(jb)
                        pos.append(x)
            free = slots(n)
            if n in chk:
                g[free.pop()]['end'] += chk[n]
            jobs += side.get(n, [])
            pos += free[:len(side.get(n, []))]
            assert pos == sorted(pos)
            if full and h == 4:
                late_v = seg and T == 0
                g[14]['sc'].append(Ins('@need', need=(['kv%d%s' % (T + 1, 'K' if late_v else 'V')] if T + 1 < NT else []) + ['*lg']))
                g[15]['sc'].append('s_barrier')
            if seg and n == 9:
                g[0]['sc'].append(Ins('s_barrier', need=['kv1V']))
            if loop and loop[0] <= n < loop[1] and (n - loop[0]) % 16 == 15:
                g[10]['sc'].append('s_sub_u32 s%d, s%d, 1' % (sCNT, sCNT))
                g[12]['sc'].append('s_cmp_lg_u32 s%d, 0' % sCNT)
            prev, pend = p.jobs(self.flat(jobs), pos)
            p.scalars(pend, prev + 1, 10 if prev < 8 and full else len(g))
            plans.append(p)
        reads, pre, held = [], [], {}
        for (w, T, k, f), u in use.items():
            ins = [self.krd(2 * T + k, f)] if w == 'K' else [self.vrd(2 * T + k, 2 * f + x) for x in range(2)]
            if w == 'K' and 8 * T in inline:
                held.setdefault(8 * T, []).extend(ins)
            elif w == 'K' and T == 0 and k == 0:
                pre += ins
            else:
                reads.append((u[0], use[w, T - 1, k, f][-1] if T else (0, 0), ins))
        reads.sort()
        reads += [((NS + 3, 0), at, ins) for at, ins in extra]
        for first, (n, j), ins in reads:
            for x in ins:
                while True:
                    p = plans[n]
                    g = p.g[j]
                    if len(p.mf) == 16:
                        ok = j & 1 and p.cap(j) > 0
                    else:
                        ok = not g['vm'] and len(g['ds']) < 2
                    if ok:
                        break
                    n, j = (n, j + 1) if j + 1 < len(p.mf) else (n + 1, 0)
                g['ds'].append(x)
                assert (n, j) < first and not ((n & 7) == 4 and j > 8), (n, j)
        if loop:
            e('s_mov_b32 s%d, %d' % (sCNT, (loop[1] - loop[0]) // 16))
        e('s_barrier', need=['kv0V', '*lg'])
        self.put(pre)
        carry, dead = [], 0
        for n, p in enumerate(plans):
            if n in inline:
                inline[n](held[n])
            inloop = loop and loop[0] <= n < loop[1]
            if self.opt('astamp', 0) and n % 8 == 0 and not (loop and loop[0] <= n <= loop[1]) and n not in inline:
                self.stamp('s%d_%d' % (seg, n))
            if loop and n == loop[0]:
                self.stamp('pre')
            if inloop and (n - loop[0]) % 16 == 0:
                e('@rep %s %d' % (lab, n))
            if loop and n == loop[1]:
                e('@endrep ' + lab)
                self.stamp('loop')
            if n in fill:
                assert not carry
                carry, dead = fill[n]
            carry = p.fill(carry)
            if carry and n + 1 >= dead:
                p.g[-1]['va'] += carry
                carry = []
            if n >= 3 and n & 1:
                m = (n - 3) >> 1
                p.g[7 if len(p.mf) == 16 else 3]['end'].append(self.rowsum((m >> 1) & 1, aONE2 if m & 1 else aONES, vP + 8 * (m & 1)))
            if inloop and (n - loop[0]) % 16 == 15:
                p.g[15]['end'].append('s_cbranch_scc1 ' + lab)
            p.emit(self)
        self.stamp()

    def code_addr(self):
        return ['v_add_u32 v%d, s%d, v%d' % (vT, sCW, vACT), 'v_min_u32 v%d, s%d, v%d' % (vT, SCODE + 2, vT), 'v_mov_b32 v%d, 0' % (vT + 1),
                'v_lshl_add_u64 %s, %s, 0, s[%d:%d]' % (vr('v', vT, 2), vr('v', vT, 2), SCODE, SCODE + 1)]

    def code_warm(self):
        return [Job('global_load_dwordx4 %s, %s, off' % (vr('a', aDUMMY, 4), vr('v', vT, 2)))]

    def warm(self, buf, vo, so, offs):
        return [Job('buffer_load_dwordx4 %s, v%d, %s, s%d offen offset:%d' % (vr('a', aDUMMY, 4), vo, srd(buf), so, o)) for o in offs]

    def attention1(self):
        e = self.s
        e('@sec attention 1a')
        U, F, G = vX + 48, vT + 4, vT
        N1, P3 = self.opt('n1', 176), self.opt('p3', 40)
        L0, L1 = P3 + 8, N1 - 48
        f0 = ('v_and_b32 v%d, 3, v%d\nv_min_u32 v%d, 2, v%d\n' % (U, vL, U, U) +
              'v_add3_u32 v%d, v%d, s%d, -1\nv_med3_i32 v%d, v%d, 0, 31\nv_lshlrev_b32 v%d, 3, v%d' % (U, U, sT, U, U, vPOFF, U)).split('\n')
        f1 = ('v_bfe_u32 v%d, v%d, 1, 1\nv_lshl_add_u32 v%d, v%d, 1, -1\n' % (U, vL, U, U) +
              'v_bfe_u32 v%d, v%d, 3, 1\nv_mul_i32_i24 v%d, v%d, v%d\n' % (U + 1, vL, U, U, U + 1) +
              'v_add_u32 v%d, s%d, v%d\nv_max_i32 v%d, 0, v%d\nv_min_i32 v%d, 0x7f, v%d\n' % (U, sTBG, U, U, U, U, U) +
              'v_and_b32 v%d, 7, v%d\nv_lshl_or_b32 v%d, v%d, 3, v%d\n' % (U + 1, vL, U, U, U + 1) +
              'v_lshlrev_b32 v%d, 7, v%d\nv_add_u32 v%d, 0x%x, v%d' % (U, U, F, FLAG_OFF, U)).split('\n')
        f2 = ('v_and_b32 v%d, 15, v%d\nv_lshl_add_u32 v%d, s%d, 4, v%d\nv_and_b32 v%d, 48, v%d' % (U, vL, U, sTBG, U, U + 1, vL)).split('\n')
        for g, dlt in enumerate((-1, 1, -2, 2)):
            f2 += ['v_add_u32 v%d, %d, v%d' % (U + 2, dlt, U), 'v_and_or_b32 v%d, v%d, 15, v%d' % (U + 3, U + 2, U + 1),
                   'v_bfe_u32 v%d, v%d, 4, 8' % (U + 2, U + 2), 'v_lshl_or_b32 v%d, v%d, 10, v%d' % (U + 3, U + 2, U + 3),
                   'v_lshlrev_b32 v%d, 4, v%d' % (U + 3, U + 3), 'v_add_u32 v%d, 0x%x, v%d' % (G + g, 4096 * g, U + 3)]
        f3 = ('v_lshrrev_b32 v%d, 4, v%d\nv_and_b32 v%d, 15, v%d\nv_mul_u32_u24 v%d, 3584, v%d\n' % (vT, vL, vT + 1, vL, vT + 2, vT) +
              'v_lshl_add_u32 v%d, v%d, 4, v%d\nv_lshlrev_b32 v%d, 8, v%d\nv_lshl_or_b32 v%d, v%d, 3, v%d\n' % (vT + 3, vT + 1, vT + 2, vT, vT, vT, vT + 1, vT) +
              'v_lshl_add_u32 v%d, s%d, 10, v%d\nv_add_u32 v%d, 0x%x, v%d\n' % (vT, sTBG, vT, vT + 4, ST_OFF, vT) +
              'v_and_b32 v%d, 7, v%d\nv_lshl_or_b32 v%d, s%d, 3, v%d\n' % (vT, vL, vT, sTBG, vT) +
              'v_lshlrev_b32 v%d, 7, v%d\nv_add_u32 v%d, 0x%x, v%d' % (vT, vT, vPOFF, FLAG_OFF + 131072, vT)).split('\n')
        R, M, O = vT, vT + 1, vT + 2
        f3 += ['v_or_b32 v%d, s%d, v%d' % (M, sW, vL), 'v_cmp_eq_u32 vcc, 0, v%d' % M, 'v_mov_b32 v%d, 0x%x' % (O, OOB), 'v_mov_b32 v%d, 1' % R,
               'v_cndmask_b32 v%d, v%d, 0, vcc' % (M, O)]
        dbg = lambda op, off: Job('%s v%d, v%d, %s, s%d offen offset:%d %ssc1' % (op, R, M, srd(SDBG), sT2, off, 'sc0 ' * ('atomic' in op)),
                                  pre=['s_lshl_b32 s%d, s%d, 3' % (sT2, sJ) if off != 68 else 's_mov_b32 s%d, 0' % sT2])
        CB, SM = sT0, sT1
        slices = ['v_readfirstlane_b32 s%d, v%d' % (sRANK, vPRES), 'v_and_b32 v%d, 64, v%d' % (O, vWN), 's_sub_u32 s%d, s%d, 1' % (sRANK, sRANK),
                  's_and_b32 s%d, s%d, 7' % (sRANK, sRANK),
                  's_lshl_b32 s%d, s%d, 9' % (CB, sRANK), 's_min_u32 s%d, s%d, 0xd00' % (CB, CB),
                  's_add_u32 s%d, s%d, s%d' % (sW3W, sW3W, CB), 's_lshl_b32 s%d, s%d, 9' % (sT2, CB), 'v_add_u32 v%d, s%d, v%d' % (vW2, sT2, vWN),
                  's_cmp_ge_u32 s%d, 6' % sRANK, 's_cselect_b32 s%d, 1, 0' % SM, 's_cselect_b32 s%d, 10, 11' % sW4W, 's_cselect_b32 s%d, 1791, 0' % sSTEP,
                  's_lshl_b32 s%d, s%d, s%d' % (sW4W, sTBG, sW4W), 's_add_u32 s%d, s%d, s%d' % (sW4W, sW4W, sT2),
                  'v_mad_u32_u24 v%d, s%d, v%d, v%d' % (vW3, sSTEP, O, vW3), 's_lshl_b32 s%d, 0x%x, s%d' % (sSTEP, 32 * 3584, SM),
                  's_mul_i32 s%d, s%d, s%d' % (SM, SM, sW), 's_lshl_b32 s%d, s%d, 6' % (SM, SM), 's_sub_u32 s%d, s%d, s%d' % (CB, CB, SM),
                  'v_add_u32 v%d, s%d, v%d' % (vW3, CB, vW3),
                  's_sub_u32 s%d, s%d, s%d' % (sT2, sRANK, sJ), 's_lshl_b32 s%d, s%d, 11' % (sT2, sT2), 's_add_u32 s%d, s%d, s%d' % (sYO, sPO, sT2)]
        A, LR, LB, LT = vX + 56, self.LR, self.LB, vT + 4
        f4 = ['v_accvgpr_read_b32 v%d, a%d' % (A + r, aSTAT + r) for r in range(4)]
        f4 += ['v_add_f32 v%d, v%d, v%d' % (A + 4, A, A + 2)] + self.lanesum(A + 4, A + 5)
        f4 += ['v_mul_f32 v%d, 0x3e000000, v%d' % (A + 4, A + 4), 'v_sub_f32 v%d, v%d, v%d' % (A, A, A + 4), 'v_sub_f32 v%d, v%d, v%d' % (A + 2, A + 2, A + 4),
               'v_mul_f32 v%d, v%d, v%d' % (A, A, A), 'v_fmac_f32 v%d, v%d, v%d' % (A, A + 2, A + 2), 'v_add_f32 v%d, v%d, v%d' % (A + 1, A + 1, A + 3),
               'v_fmac_f32 v%d, 0x42800000, v%d' % (A + 1, A)] + self.lanesum(A + 1, A + 5)
        f4 += ['v_mov_b32 v%d, %s' % (LR, f2u(1e-5)), 'v_fmac_f32 v%d, %s, v%d' % (LR, f2u(1.0 / 512), A + 1), 'v_rsq_f32 v%d, v%d' % (LR, LR),
               'v_sub_f32 v%d, 0, v%d' % (A + 4, A + 4), 'v_mul_f32 v%d, v%d, v%d' % (LB, A + 4, LR)]
        f5, self.ln_done = [], self.opt('ln_fill', 5)
        for k in range(vX, vX + 4 * self.ln_done):
            f5 += ['v_lshlrev_b32 v%d, 16, v%d' % (LT, k), 'v_and_b32 v%d, 0xffff0000, v%d' % (k, k), 'v_fma_f32 v%d, v%d, v%d, v%d' % (LT, LT, LR, LB),
                   'v_fma_f32 v%d, v%d, v%d, v%d' % (k, k, LR, LB), 'v_cvt_pk_bf16_f32 v%d, v%d, v%d' % (k, LT, k)]
        f6 = ['v_lshl_add_u32 v%d, s%d, 14, v%d' % (vT + 3, sW, vACT)] + self.waddr(vTR, vT, 's%d' % sRING)
        f6 += ['v_mov_b32 v%d, v%d' % (vS + 6, LR), 'v_mov_b32 v%d, v%d' % (vS + 4, LB)]
        self.put(f0)

        def sched(spread, chk, fill):
            c0, c1 = 12, P3 - 20
            chk[c0] = self.poll_check(SDBG, 8) + [Ins('v_mov_b32 v%d, v%d' % (vPOFF, F))]
            chk[c1] = self.poll_check(SWS, 1)
            chk[L1 + 4] = self.poll_check(SWS, 1) + ['v_mov_b32 v%d, 132' % vPOFF, 'v_lshl_add_u32 v%d, s%d, 3, v%d' % (vPOFF, sJ, vPOFF)]
            chk[L1 + 7] = ['v_cmp_eq_u32 vcc, %d, v%d' % (self.opt('quant', 15), R), 'v_mov_b32 v%d, 1' % R, 'v_cndmask_b32 v%d, v%d, v%d, vcc' % (M, O, M)]
            chk[L1 + 15] = ['v_add_u32 v%d, 1, v%d' % (R, R)]
            chk[L1 + 28] = self.poll_check(SDBG, 0) + slices + self.code_addr()
            fill[4], fill[c0], fill[P3] = (f1, c0), (f2, c1 + 1), (f3, P3 + 6)
            fill[L1 + 12], fill[L1 + 23], fill[N1 + 2] = (f4, L1 + 23), (f5, N1 + 2), (f6, N1 + 3)
            spread([self.flag_store(0, ['hst'])], 4, 5)
            spread([self.poll_load(SDBG)], 7, 8)
            spread([self.poll_load(SWS)], c1 - 5, c1 - 4)
            w2 = []
            for k in range(4):
                w2 += self.whalf('w2', k, 2 + k)
            spread(w2, 4, P3 - 19)
            spread([Job('buffer_load_dwordx4 %s, v%d, %s, 0 offen offset:%d sc1' % (vr('v', vX + 4 * k, 4), G + (k >> 2), srd(SH), 1024 * (k & 3)))
                    for k in range(16)], c1 + 1, P3 - 3, 2)
            spread([self.flag_store(1, ['x1st'])], P3 + 4, P3 + 5)
            spread([self.poll_load(SWS), dbg('buffer_atomic_add', 4)], L1, L1 + 1)
            spread([dbg('buffer_atomic_add', 68)], L1 + 8, L1 + 9)
            spread([dbg('buffer_store_dword', 132)], L1 + 16, L1 + 17)
            spread([self.poll_load(SDBG)], L1 + 24, L1 + 25)
            spread([Job('buffer_load_dwordx2 %s, v%d, %s, 0 offen offset:%d sc1' % (vr('a', aSTAT + 2 * k, 2), vT + 4, srd(SWS), 128 * k)) for k in range(2)]
                   + self.gather('v', vX, sX1I, 0, 'sc1' + ' nt' * self.opt('nt1', 0)), L1 + 7, L1 + 29, 2)
            spread(self.warm(SW3, vT + 3, sW3W, (0, 256)) + self.warm(SW4, vACT, sW4W, (0, 1024)) + self.code_warm(), L1 + 31, L1 + 33, 3)
            spread(sum([self.whalf('w3', k, k, None) for k in range(self.opt('w3pre', 6))], []), N1 - self.opt('w3at', 9), N1 + 2)
        self.segment(0, N1, sched, loop=(L0, L1), inline={P3: self.p3})

    def h2a(self, tb, slot):
        return 16384 + (tb & 1) * 8192 + (tb >> 1) * 32768 + slot * 1024

    def mlp(self):
        e = self.s
        P = lambda b: vr('v', b, 2)
        e('@sec LN x1')
        o, wr = [], ['ds_write_b128 v%d, %s offset:%d' % (vT + 3, vr('v', vX + 4 * ks, 4), 1024 * ks) for ks in range(16)]
        for ks in range(self.ln_done, 16):
            t = vP + 8 * (ks & 1)
            for k in range(4):
                o += ['v_lshlrev_b32 v%d, 16, v%d' % (t + 2 * k, vX + 4 * ks + k), 'v_and_b32 v%d, 0xffff0000, v%d' % (t + 2 * k + 1, vX + 4 * ks + k)]
            if ks - self.ln_done < self.ln_done:
                o.append(wr[ks - self.ln_done])
            for k in range(4):
                o.append('v_pk_fma_f32 %s, %s, %s, %s op_sel_hi:[1,0,0]' % (P(t + 2 * k), P(t + 2 * k), P(vS + 6), P(vS + 4)))
            for k in range(4):
                o.append('v_cvt_pk_bf16_f32 v%d, v%d, v%d' % (vX + 4 * ks + k, t + 2 * k, t + 2 * k + 1))
            o.append(wr[ks])
        o += wr[16 - self.ln_done:self.ln_done]
        self.put(o)
        self.touch(1)
        self.stamp()
        e('s_cmp_ge_u32 s%d, 6\ns_cbranch_scc1 L_mlp_small' % sRANK)
        n0, names = self.nstamp, len(self.tail)
        main, self.s = self.s, Stream(known=['w3%d' % k for k in range(self.opt('w3pre', 6))])
        self.s('L_mlp_small:\ns_waitcnt vmcnt(0) lgkmcnt(0)')
        self.mlp_body(True)
        self.s('s_waitcnt vmcnt(0) lgkmcnt(0)\ns_branch L_mlp_done')
        self.s.insert_waits()
        self.s.pad_hazards()
        self.aside, self.s = self.s, main
        self.nstamp, self.tail[names:] = n0, []
        self.mlp_body(False)
        e('L_mlp_done:')

    def mlp_body(self, small):
        e = self.s
        P = lambda b: vr('v', b, 2)
        e('@sec P5')
        n3 = 8 if small else 16
        sync = lambda: self.s('s_barrier', need=['*lg'])
        piece = lambda h: self.whalf('w3', h, h, small) if h < n3 else self.whalf('w4', h - n3, h, small)
        groups = [(['w3%d' % (k // 2)] if small else ['w3%d' % k, 'w3%d' % (k + 1)], [k, k + 1], [vX + 16 * b for b in range(n3 // 4)], k == 0) for k in range(0, 16, 2)]
        p = self.gemm(0, groups, lambda k, tb: (vACT, (tb * 16 + k) * 1024), [piece(h) for h in range(6, n3 + 6)], sum([piece(h) for h in range(self.opt('w3pre', 6), 6)], []), sync)
        HW, KC = vT, vT + 2
        f = ('v_lshl_add_u32 v%d, s%d, %d, v%d\nv_mov_b32 v%d, %s\n' % (HW, sW, 10 if small else 11, vACT, KC, f2u(-K1)) +
             'v_lshlrev_b32 v%d, 7, v%d\nv_mov_b32 v%d, 0x%x\nv_cmp_gt_u32 vcc, 2, v%d\n' % (vS, vL, vS + 1, OOB, vL) +
             'v_and_b32 v%d, 7, v%d\nv_lshl_add_u32 v%d, v%d, 2, s%d\nv_cndmask_b32 v%d, v%d, v%d, vcc\n' % (vS + 2, vL, vPOFF, vS + 2, sCF, vFLAG, vS + 1, vS) +
             'v_and_b32 v%d, 15, v%d\nv_lshlrev_b32 v%d, 10, v%d\n' % (vS, vL, vS, vS) +
             'v_lshrrev_b32 v%d, 4, v%d\nv_lshl_or_b32 v%d, v%d, 3, v%d' % (vS + 1, vL, vW1, vS + 1, vS)).split('\n')
        assert not p.fill(f)
        p.emit(self)
        self.stamp()
        e('@sec gelu')
        e('s_barrier')
        o, n = [], 0
        for pp in range(n3 // 8):
            for tb in range(4):
                d = vS + 4 * (n % 4)
                for g in range(2):
                    o += self.gelu4(vX + 16 * (2 * pp + g) + 4 * tb, d + 2 * g, vP + 4 * g, KC)
                n += 1
                o.append('ds_write_b128 v%d, %s offset:%d' % (HW, vr('v', d, 4), self.h2a(tb, pp)))
        self.put(o)
        self.stamp()
        e('@sec P7')
        accB, ng = (vS, vP, vX, vX + 32), n3 // 4
        groups = [(['w4%d' % (2 * (ng * ps + k) + i) for i in range(2)], [2 * k, 2 * k + 1], accB if ps else [vX + 16 * b for b in range(4)], k == 0)
                  for ps in range(2) for k in range(ng)]
        p = self.gemm(n3, groups, lambda k, tb: (vACT, self.h2a(tb, k)), [piece(h) for h in range(n3 + 6, 2 * n3)], p.rest, sync, self.tile_dma(0, 'kv0'))
        assert not p.rest
        for pp, (lo, hi) in enumerate(((p.st[ng - 1] + 18, p.st[ng] + 16), (p.st[ng] + 2, p.st[ng] + 24))):
            pk = []
            for tb in range(4):
                a = vX + 32 * pp + 4 * tb
                pk += self.pack(a + 16, a, a + 16)
            p.g[hi - 1]['va'] += p.fill(pk, lo, hi)
        pk = self.vaddr_restore()
        for tb in range(4):
            pk += self.pack(vP + 4 * tb, vS + 4 * tb, vP + 4 * tb)
        rest = p.fill(pk, p.st[-1] + 17)
        p.emit(self)
        self.put(rest)
        for tb in range(4):
            self.put(self.pack(vX + 32 + 4 * tb, vX + 4 * tb, vX + 32 + 4 * tb))
        for r in range(0, 16, 2):
            e('v_pk_mov_b32 %s, %s, %s op_sel:[0,1]' % (P(vX + r), P(vP + r), P(vP + r)))
        self.yfrag = {(0, 0): vX + 16, (0, 1): vX + 48, (1, 0): vX, (1, 1): vX + 32}
        self.stamp()

    def part_flag(self, word, need):
        return Job(Ins('buffer_store_dword v%d, v%d, %s, s%d offen offset:%d sc1' % (vONE, vFLAG, srd(SWS), sFP, 4 * word), need=need))

    def held(self):
        h = {14 + g: [[aK + 32 * g + 8 * b + 4 * kk for kk in range(2)] for b in range(4)] for g in range(2)}
        if self.opt('hold3', 1) and self.prof != 1:
            idle = (148, 152, 156, 172, 176, 180, 184, 188)
            h[13] = [[idle[2 * b + kk] for kk in range(2)] for b in range(4)]
            if self.opt('hold4', 0):
                h[12] = [[aQ + 32 + 8 * b + 4 * kk for kk in range(2)] for b in range(4)]
        return h

    def attention2(self):
        e = self.s
        e('@sec attention 2a')
        N2 = 256 - self.opt('n1', 176)
        H, T = self.opt('head2', 32), N2 - self.opt('tail2', 32)

        def sched(spread, chk, fill):
            chk[T + 4] = self.poll_check(SWS, 1)
            spread([self.part_store(self.yfrag[h, pp] + 4 * tb, YP_OFF + 65536 * pp + 16384 * tb + 1024 * h, 'yst', sYO)
                    for h in range(2) for pp in range(2) for tb in range(4)], 4, H - 8, 2)
            spread([self.part_flag(0, ['yst'])], H - 8, H - 7)
            spread(self.warm(SWO, vACT, sWOW, (0, 1024, 2048, 3072)) + self.code_warm(), H - 8, H - 6)
            spread([self.poll_load(SWS)], T, T + 1)
            spread([Job('buffer_load_dwordx2 %s, v%d, %s, s%d offen offset:%d' % (vr('a', aRES + 2 * nb, 2), vW1, srd(SX), sXO, 512 * (nb >> 1) + 32 * (nb & 1)))
                    for nb in range(4)], T, T + 2)
            spread(self.gather('v', vX, sPI, YP_OFF, 'sc1' + ' nt' * self.opt('nt2', 1)), T + 5, N2 - 8, 2)
            if nh >= 3:
                spread(self.whalf('wo', od[26], 0) + self.whalf('wo', od[27], 1), T - 9, T - 6)
            first = sum([self.whalf('wo', od[k], h) for k, h in ((28, 4), (29, 5), (30, 2), (31, 3), (0, 0), (1, 1))], [])
            spread(first, N2 - 12, N2 - 1)
            late = self.whalf('wo', od[2], 2) + self.whalf('wo', od[3], 3)
            late[0].ins.need = ['held15']
            if nh == 4:
                self.oepi_jobs, late = late, self.whalf('wo', od[24], 4) + self.whalf('wo', od[25], 5)
                late[0].ins.need = ['held14']
            spread(late, N2 + 1, N2 + 3)
            fill[H - 12] = (self.code_addr(), H - 8)
            fill[H - 4] = (self.waddr(vT, vT + 4, 's%d' % sRING), H)
        od, nh = self.pair_order(self.opt('p6_early', 5)), len(self.held())
        slot, at = {12: 4, 13: 0, 14: 4, 15: 2}, {12: None, 13: (T - 3, 0), 14: (N2 - 2, 8), 15: (N2 - 1, 8)}
        self.oepi_jobs = []
        extra = [(at[G], [Ins('ds_read_b64_tr_b16 %s, v%d offset:%d' % (vr('a', regs[b][kk] + 2 * x, 2), (vT if at[G] else vTR) + b, (slot[G] + kk) * 4096 + 2048 * x),
                              need=['wo%d' % od[2 * G + kk]], tag='held%d' % G) for b in range(4) for kk in range(2) for x in range(2)])
                 for G, regs in sorted(self.held().items())]
        self.oepi_reads = sum([ins for a, ins in extra if not a], [])
        extra = [x for x in extra if x[0]]
        self.segment(1, N2, sched, loop=(H, T) if T >= H + 32 else None, extra=extra)
        self.o_epilogue()

    def o_epilogue(self):
        e = self.s
        e('@sec O epilogue')
        e('L_oepi:')
        jobs = self.flat(self.oepi_jobs)
        for r in range(8):
            e('v_accvgpr_read_b32 v%d, a%d' % (vS + r, aL + r))
        for qb in range(4):
            e('v_add_f32 v%d, v%d, v%d' % (vS + 2 * qb, vS + 2 * qb, vS + 2 * qb + 1))
        B = vS + 8
        for qb in range(4):
            e('v_subrev_u32 v%d, 0x2b800000, v%d' % (B + qb, vS + 2 * qb))
        e('v_max3_u32 v%d, v%d, v%d, v%d\nv_max_u32 v%d, v%d, v%d' % (B, B, B + 1, B + 2, B, B, B + 3))
        e('v_cmp_lt_u32 vcc, 0x28000000, v%d' % B)
        e('v_and_b32 v%d, 3, v%d\nv_lshlrev_b32 v%d, 12, v%d\nv_lshl_add_u32 v%d, s%d, 2, v%d' % (B + 1, vL, B + 1, B + 1, B + 1, sW, B + 1))
        e('s_or_b32 s%d, vcc_lo, vcc_hi' % sT0)
        e('v_mov_b32 v%d, s%d' % (B, sT0))
        e('ds_write_b32 v%d, v%d' % (B + 1, B))
        for qb in range(4):
            e('v_rcp_f32 v%d, v%d' % (vS + 2 * qb, vS + 2 * qb))
        e('v_lshl_add_u32 v%d, s%d, 12, v%d' % (vP, sW, vACT))
        e('s_lshl_b32 s%d, s%d, 12\nv_mov_b32 v%d, s%d' % (sT0, sW, B + 1, sT0))
        e('s_barrier', need=['*lg'])
        e('ds_read_b128 %s, v%d' % (vr('v', B + 4, 4), B + 1))
        for qb in range(4):
            for ks in range(4):
                a = vACC + 32 * ks + 4 * qb
                for h in (0, 2, 16, 18):
                    e('v_pk_mul_f32 %s, %s, %s op_sel_hi:[1,0]' % (vr('v', a + h, 2), vr('v', a + h, 2), vr('v', vS + 2 * qb, 2)))
                self.put(self.pack(a + 16, a, a + 16))
                if qb == 0 and ks < 2:
                    if ks == 0:
                        continue
                    e('v_or3_b32 v%d, v%d, v%d, v%d\nv_or_b32 v%d, v%d, v%d' % (B, B + 4, B + 5, B + 6, B, B, B + 7))
                    e('v_cmp_ne_u32 vcc, 0, v%d\ns_cbranch_vccnz L_slow\nL_ofine:' % B)
                    e('ds_write_b128 v%d, %s' % (vP, vr('v', vACC + 16, 4)))
                e('ds_write_b128 v%d, %s offset:%d' % (vP, vr('v', a + 16, 4), (16 * qb + ks) * 1024))
                for pre, d, post in jobs[4 * qb + ks - 1:4 * qb + ks]:
                    self.put(pre + [d] + post)
        self.put(self.waddr(vTR, vT, 's%d' % sRING) + self.oepi_reads)
        self.stamp()
        self.slow_path()

    def slow_path(self):
        main, self.s = self.s, Stream()
        e = self.s
        M = vT
        e('L_slow:\ns_cmp_lg_u32 s%d, 0\ns_cbranch_scc1 L_ofine\ns_mov_b32 s%d, 1' % (sPASS, sPASS))
        e('s_waitcnt vmcnt(0) lgkmcnt(0)')
        for ps in range(2):
            e('s_mov_b32 s%d, 0\ns_mov_b32 s%d, 0\ns_mov_b32 s%d, 64' % (sKO, sVO, sCNT))
            if ps == 0:
                for qb in range(4):
                    e('v_mov_b32 v%d, 0xff800000' % (M + qb))
            else:
                for qb in range(4):
                    for op in ('v_permlane32_swap_b32', 'v_permlane16_swap_b32'):
                        e('v_mov_b32 v%d, v%d\n%s v%d, v%d\nv_max_f32 v%d, v%d, v%d' % (vS, M + qb, op, vS, M + qb, M + qb, M + qb, vS))
                e('v_lshrrev_b32 v%d, 4, v%d\nv_xor_b32 v%d, v%d, v%d\nv_bfe_i32 v%d, v%d, 1, 1' % (vS, vL, vS, vS, vL, vS, vS))
                e('v_not_b32 v%d, v%d\nv_and_b32 v%d, 0x3f803f80, v%d' % (vS, vS, vS, vS))
                for r in range(4):
                    e('v_accvgpr_write_b32 a%d, v%d' % (aONES + r, vS))
                for r in range(128):
                    e('v_mov_b32 v%d, 0' % (vACC + r))
                for r in range(8):
                    e('v_accvgpr_write_b32 a%d, 0' % (aL + r))
            e('L_slow%d:\ns_barrier' % ps)
            self.emit_jobs(self.kv_dma('K', 0, 'k') + (self.kv_dma('V', 0, 'k') if ps else []))
            e('s_barrier', need=['k'])
            self.put([self.krd(0, f, aV + 32) for f in range(8)] + ([self.vrd(0, h) for h in range(16)] if ps else []))
            e('s_waitcnt lgkmcnt(0)')
            for qb in range(4):
                for kb in range(2):
                    for ks in range(4):
                        e(mfma(vr('v', vS + 4 * kb, 4), vr('a', aV + 32 + 16 * kb + 4 * ks, 4), vr('a', aQ + 16 * qb + 4 * ks, 4), '0' if ks == 0 else None))
                if ps == 0:
                    for r in range(0, 8, 2):
                        e('v_max3_f32 v%d, v%d, v%d, v%d' % (M + qb, M + qb, vS + r, vS + r + 1))
                    continue
                for r in range(8):
                    e('v_sub_f32 v%d, v%d, v%d' % (vS + r, vS + r, M + qb))
                for r in range(8):
                    e('v_exp_f32 v%d, v%d' % (vS + r, vS + r))
                for r in range(4):
                    e('v_cvt_pk_bf16_f32 v%d, v%d, v%d' % (vP + 4 * qb + r, vS + 2 * r, vS + 2 * r + 1))
                for db in range(8):
                    e(mfma(vr('v', vACC + 16 * db + 4 * qb, 4), vr('a', aV + 4 * db, 4), vr('v', vP + 4 * qb, 4)))
                if qb & 1:
                    e(self.rowsum(qb >> 1, aONES, vP + 4 * (qb - 1)))
            e('s_nop 7\ns_sub_u32 s%d, s%d, 1\ns_cmp_lg_u32 s%d, 0\ns_cbranch_scc1 L_slow%d' % (sCNT, sCNT, sCNT, ps))
        e('s_barrier\ns_branch L_oepi')
        e.insert_waits()
        e.pad_hazards()
        self.tail.append(e.text())
        self.s = main

    SEL = vT

    def reduce(self, acc, f, regs, ks, first=False):
        return [mfma(vr('v', acc + 4 * (2 * (k & 1) + g), 4), vr('v', self.SEL + 2 - 2 * g, 4), vr(f, regs + 4 * k, 4), '0' if (first and k < 2) else None)
                for k in ks for g in range(2)]

    def collect(self, acc, regs, base, once):
        e, L = self.s, 'L_c'
        NEW, N = sT0, sT1
        e('s_mov_b32 s%d, 0x80000\ns_mov_b32 s%d, 0\ns_waitcnt vmcnt(1)\ns_branch %s_got' % (sT3, sCNT, L))
        e('%s_wait:\ns_waitcnt vmcnt(0)\n%s_got:\nv_cmp_eq_u32 vcc, 1, v%d\ns_and_b32 s%d, vcc_lo, 0xff' % (L, L, vPRES, NEW))
        e('s_andn2_b32 s%d, s%d, s%d\ns_or_b32 s%d, s%d, s%d\ns_bcnt1_i32_b32 s%d, s%d' % (NEW, NEW, sDONE, sDONE, sDONE, NEW, N, NEW))
        for n in range(7):
            e('s_cmp_eq_u32 s%d, %d\ns_cbranch_scc1 %s_ld%d' % (N, n, L, 7 - n))
        for q in range(7):
            e('%s_ld%d:\ns_ff1_i32_b32 s%d, s%d\ns_bitset0_b32 s%d, s%d' % (L, q, sT2, NEW, NEW, sT2))
            e('s_lshl_b32 s%d, s%d, 11\ns_add_u32 s%d, s%d, s%d' % (sT2, sT2, sT2, sT2, base))
            for p in range(2):
                e('buffer_load_dwordx4 %s, v%d, %s, s%d offen offset:%d sc1' % (vr('a', regs + 8 * q + 4 * p, 4), vACT, srd(SWS), sT2, 1024 * p))
        e('%s_ld7:' % L)
        e.add(self.poll_load(SWS).ins)
        e('s_cmp_lg_u32 s%d, 0\ns_cbranch_scc1 %s_again\ns_mov_b32 s%d, 1' % (sCNT, L, sCNT))
        self.put(once)
        e('%s_again:' % L)
        for n in range(7):
            e('s_cmp_eq_u32 s%d, %d\ns_cbranch_scc1 %s_mm%d' % (N, n, L, 7 - n))
        for q in range(7):
            e('%s_mm%d:' % (L, q))
            self.put(self.reduce(acc, 'a', regs, (2 * q, 2 * q + 1)))
        e('s_cmp_lg_u32 s%d, 0xff\ns_cbranch_scc1 %s_wait\n%s_end:' % (sDONE, L, L))
        self.tail.append('%s_mm7:\n    s_sub_u32 s%d, s%d, 1\n    s_cbranch_scc0 %s_wait\n    s_branch %s_end' % (L, sT3, sT3, L, L))

    def p6_final(self):
        e = self.s
        P = lambda b: vr('v', b, 2)
        e('@sec P6')
        NE, held = self.opt('p6_early', 5), self.held()
        od = self.pair_order(NE)
        groups = [g + (held[G],) if G in held else g for G, g in enumerate(self.pair_groups('wo', od))]
        NQ = self.opt('p6_quarter', 4)
        if NQ:
            src = lambda G: held[G] if G in held else [[(2 * G + kk, b, groups[G][0][kk]) for kk in range(2)] for b in range(4)]
            seq = sorted(range(16 - NQ, 16), key=lambda G: G not in held)
            groups[16 - NQ:] = [([], groups[G][1], groups[G][2][2 * pp:2 * pp + 2], False, src(G)[2 * pp:2 * pp + 2])
                                for pp in range(2) for G in (seq[::-1] if pp else seq)]
        p = self.gemm(0, groups, lambda k, tb: (vACT, (tb * 16 + k) * 1024), [self.whalf('wo', od[h], h) for h in range(6, 32 - 2 * len(held))],
                      self.whalf('wo', od[4], 4) + self.whalf('wo', od[5], 5), lambda: self.s('s_barrier', need=['*lg']), WF=aQ, AF=aV)
        pk, st = [], []
        for h in range(2):
            for pp in range(2):
                for tb in range(4):
                    a = vACC + 64 * h + 32 * pp + 4 * tb
                    pk.append(self.pack(a + 16, a, a + 16))
                    st.append(self.part_store(a + 16, SP_OFF + 65536 * pp + 16384 * tb + 1024 * h, 'sst', vo=vDB + pp))
        q, pos = p.dma_end + self.opt('a_start', 16), []
        ready = [32 * (16 - NE) + 2] * 8 + [512 - 16 * NQ + 2] * (4 if NQ else 0)
        for k, r in enumerate(ready):
            q = max(q, r + 6)
            if q > 508:
                break
            while len(p.g[q]['ds']) > 1 or p.g[q]['vm']:
                q += 1
            p.jobs(self.flat([st[k]]), [q], lo=q - 2)
            pos.append(q)
            q += self.opt('a_step', 8)
        for k, q in enumerate(pos):
            p.g[q - 1]['va'] += p.fill(pk[k], ready[k], q)
        pk, st = pk[len(pos):], st[len(pos):]
        SEL, ZZ, XF, SS, E = self.SEL, vS, vP, vACC, vACC + 32
        t = vKA
        f = ('v_lshrrev_b32 v%d, 4, v%d\nv_bfe_u32 v%d, v%d, 2, 2\nv_and_b32 v%d, 1, v%d\nv_lshlrev_b32 v%d, 4, v%d\n' % (t + 1, vL, t, vL, t + 2, vL, t + 2, t + 2) +
             'v_mov_b32 v%d, 0x3f80\nv_lshlrev_b32 v%d, v%d, v%d\n' % (t + 3, t + 2, t + 2, t + 3) +
             'v_cmp_eq_u32 vcc, v%d, v%d\nv_mov_b32 v%d, 0\nv_mov_b32 v%d, 0\n' % (t, t + 1, SEL, SEL + 1) +
             'v_cndmask_b32 v%d, 0, v%d, vcc\nv_and_b32 v%d, 2, v%d\nv_cmp_eq_u32 vcc, 0, v%d\n' % (t + 2, t + 2, t, vL, t) +
             'v_mov_b32 v%d, 0\nv_mov_b32 v%d, 0\nv_cndmask_b32 v%d, 0, v%d, vcc\n' % (SEL + 4, SEL + 5, SEL + 2, t + 2) +
             'v_sub_u32 v%d, v%d, v%d\n' % (SEL + 3, t + 2, SEL + 2) +
             'v_lshl_add_u32 v%d, v%d, 3, v%d' % (vW2, t + 1, vW1)).split('\n')
        p.scalars(['s_lshl_b32 s%d, s%d, 1' % (sVO, sW), 's_sub_u32 s%d, s%d, s%d' % (sVO, sJ, sVO), 's_lshr_b32 s%d, s%d, 1' % (sCNT, sJ),
                   's_mul_i32 s%d, s%d, %d' % (sCNT, sCNT, WWAVE), 's_add_u32 s%d, s%d, s%d' % (sCNT, sCNT, sW2K), 's_add_u32 s%d, s%d, %d' % (sCNT, sCNT, WREG)], 0, 16)
        f += ['v_mov_b32 v%d, 0x%x' % (t, OOB), 'v_mov_b32 v%d, s%d' % (t + 1, sVO), 'v_cmp_eq_u32 vcc, 0, v%d' % (t + 1),
              'v_add_u32 v%d, s%d, v%d' % (vDB + 2, sRING, vACT), 'v_add_u32 v%d, s%d, v%d' % (vDB + 3, sCNT, vACT),
              'v_cndmask_b32 v%d, v%d, v%d, vcc' % (vDB, vACT, t), 'v_cmp_eq_u32 vcc, 1, v%d' % (t + 1),
              'v_add_u32 v%d, 32, v%d' % (vPOFF, vPOFF), 'v_cndmask_b32 v%d, v%d, v%d, vcc' % (vDB + 1, vACT, t)]
        assert not p.fill(f, 0, 48)
        red = self.reduce(XF, 'a', aRES, (0, 1), True) + self.reduce(ZZ, 'a', aX1, (0, 1), True) + self.reduce(ZZ, 'v', vX, range(16))
        gate = ['s_mov_b32 s%d, %s' % (sC0 + k, f2u(-math.log2(math.e))) for k in range(2)]
        gate += ['v_pk_mul_f32 %s, %s, s[%d:%d]' % (P(E + r), P(ZZ + r), sC0, sC0 + 1) for r in range(0, 16, 2)]
        gate += ['v_exp_f32 v%d, v%d' % (E + r, E + r) for r in range(16)]
        gate += ['v_pk_add_f32 %s, %s, 1.0 op_sel_hi:[1,0]' % (P(E + r), P(E + r)) for r in range(0, 16, 2)]
        gate += ['v_rcp_f32 v%d, v%d' % (E + r, E + r) for r in range(16)]
        gate += ['v_pk_mul_f32 %s, %s, %s' % (P(ZZ + r), P(ZZ + r), P(E + r)) for r in range(0, 16, 2)]
        p.scalars(['s_lshl_b32 s%d, 1, s%d' % (sDONE, sJ), 's_add_u32 s%d, s%d, 0x%x' % (sKO, sPI, SP_OFF)], 16, 24)
        if self.opt('p6stamp', 0):
            for q in (127, 255, 383, p.dma_end - 2, 479):
                p.g[q]['end'] += self.stamp_items('q%d' % q)
        p.emit(self)
        self.stamp('P6')
        e('@sec s epilogue')
        self.sprinkle(sum(pk, []), st, start=4, every=4)
        self.stamp('issued')
        self.emit_jobs([self.poll_load(SWS)])
        for pp in range(2):
            e('s_cmp_lg_u32 s%d, %d\ns_cbranch_scc1 L_other%d' % (sVO, pp, pp))
            for h in range(2):
                for tb in range(4):
                    e('ds_write_b128 v%d, %s offset:%d' % (vDB + 2, vr('v', vACC + 64 * h + 32 * pp + 16 + 4 * tb, 4), 2048 * tb + 1024 * h))
            e('L_other%d:' % pp)
        e('s_waitcnt lgkmcnt(0)\ns_barrier')
        for h in range(2):
            e('ds_read_b128 %s, v%d offset:%d' % (vr('a', 4 * h, 4), vDB + 3, 1024 * h))
        work, nb4 = red + gate, self.opt('before_flag', 0)
        self.put(self.reduce(SS, 'a', 0, (0, 1), True) + work[:nb4])
        self.emit_jobs([self.part_flag(8, ['sst'])])
        self.stamp('acked')
        self.collect(SS, 64, sKO, work[nb4:])
        self.stamp('collected')
        for nb in range(4):
            for r in range(4 * nb, 4 * nb + 4, 2):
                e('v_pk_fma_f32 %s, %s, %s, %s' % (P(XF + r), P(SS + r), P(ZZ + r), P(XF + r)))
            for k in range(2 * nb, 2 * nb + 2):
                e('v_cvt_pk_bf16_f32 v%d, v%d, v%d' % (E + k, XF + 2 * k, XF + 2 * k + 1))
            om = self.opt('outmode', 2)
            if om < 2:
                e('buffer_store_dwordx2 %s, v%d, %s, s%d offen offset:%d%s' % (P(E + 2 * nb), vW1, srd(SOUT), sXO, 512 * (nb >> 1) + 32 * (nb & 1), ' sc1' * om))
            elif nb & 1:
                t = E + 2 * nb - 2
                for op in ('v_permlane32_swap_b32', 'v_permlane16_swap_b32'):
                    e('%s v%d, v%d\n%s v%d, v%d' % (op, t, t + 2, op, t + 1, t + 3))
                e('buffer_store_dwordx4 %s, v%d, %s, s%d offen offset:%d sc1' % (vr('v', t, 4), vW2, srd(SOUT), sXO, 512 * (nb >> 1)))
        if 'diag' in self.o:
            self.stamp('end')
            if self.o['diag'].startswith('xcc'):
                e('v_mov_b32 v%d, 4\nbuffer_load_dword v%d, v%d, %s, 0 offen sc1\ns_waitcnt vmcnt(0)' % (vT, vT + 1, vT, srd(SDBG)))
                e('v_readfirstlane_b32 s100, v%d\ns_nop 3\ns_bcnt1_i32_b32 s100, s100\ns_mul_i32 s100, s100, 1000\ns_mov_b32 s98, 1000' % (vT + 1))
            e('s_sub_u32 s100, s100, s98\ns_mul_i32 s100, s100, %s\ns_min_u32 s100, s100, 100000' % self.o['diag'].split(':')[2])
            e('s_memrealtime s[98:99]\ns_waitcnt lgkmcnt(0)\ns_add_u32 s100, s100, s98')
            e('L_diag:\ns_memrealtime s[98:99]\ns_waitcnt lgkmcnt(0)\ns_sub_u32 s98, s98, s100\ns_cmp_lt_i32 s98, 0\ns_cbranch_scc1 L_diag')
        if self.prof:
            e('s_waitcnt vmcnt(0)')
            self.stamp('end')
            e('v_accvgpr_read_b32 v%d, a%d\nv_accvgpr_read_b32 v%d, a%d' % (vT, aPROF, vT + 1, aPROF + 1))
            for k in range(self.nstamp * (self.prof == 2)):
                e('v_writelane_b32 v%d, s%d, %d\nv_writelane_b32 v%d, s%d, %d' % (vT, LITE[k], k, vT + 1, LITE[k], k))
            e('s_lshl_b32 s%d, s2, 11\ns_lshl_b32 s%d, s%d, 9\ns_add_u32 s%d, s%d, s%d' % (sT0, sT1, sW, sT0, sT0, sT1))
            e('s_add_u32 s%d, s%d, 0x%x\nv_lshlrev_b32 v%d, 3, v%d' % (sT0, sT0, PROF_OFF, vT + 2, vL))
            e('buffer_store_dwordx2 %s, v%d, %s, s%d offen' % (vr('v', vT, 2), vT + 2, srd(SWS), sT0))

    def build(self, verbose=False):
        for phase in (self.prologue, self.p0, self.p2, self.q_p1, self.attention1, self.mlp, self.attention2, self.p6_final):
            phase()
        s = self.s
        s.insert_waits()
        pads = s.pad_hazards()
        est = s.estimate()
        s.fold()
        s.l += [Ins('L_end:'), Ins('s_endpgm'), Ins('@mark main_end')] + self.aside.l
        fixes = s.align(self.opt('touch', 1))
        if self.opt('touch', 1):
            n, cut = s.marks['main_end'] + 1, self.opt('touch_cut', 15)
            assert s.marks['touch1'] < cut + 1 or cut >= n
            for r, (lo, hi) in enumerate(((0, min(cut, n)), (min(cut, n), n))):
                for k in range(lo, hi):
                    s.pages[k].text = 's_cbranch_execz ' + ('L_pg%d' % (k + 4) if k + 4 < hi else 'L_touched%d' % r)
                for x in s.l:
                    for w in range(4):
                        if x.text.endswith(' L_touch%d_%d' % (r, w)):
                            x.text = x.text.replace('L_touch%d_%d' % (r, w), 'L_pg%d' % (lo + w) if lo + w < hi else 'L_touched%d' % r)
        if verbose:
            print('alignment fixes:', fixes, 'pages:', len(s.pages), s.marks)
        if verbose:
            print('hazard pads:', pads)
            for name, cyc, nm in est:
                print('  %-18s est %6d cycles, %5d mfma (%6d)' % (name, cyc, nm, nm * 16))
            print('  total', sum(c for _, c, _ in est))
        ref = open('cdna_kernels/%s.s.ref' % NAME).read().split('\n')
        head = [l for l in ref if l.startswith(';') and '@launch' not in l]
        o = head + ['; @launch grid=(256,1,1) block=(256,1,1) lds=163840',
                    '.amdgcn_target "amdgcn-amd-amdhsa--gfx950"', '.text', '.globl %s_kernel' % NAME, '.p2align 8',
                    '.type %s_kernel,@function' % NAME, '%s_kernel:' % NAME]
        o.append(DOC)
        o.append(s.text())
        o += self.tail
        o.append('L_code_end:\n    s_endpgm')
        o.append('''.section .rodata,"a"
.p2align 6
.amdhsa_kernel %s_kernel
  .amdhsa_next_free_vgpr 512
  .amdhsa_next_free_sgpr 102
  .amdhsa_accum_offset 256
  .amdhsa_group_segment_fixed_size 0
  .amdhsa_kernarg_size 104
  .amdhsa_user_sgpr_count 2
  .amdhsa_user_sgpr_kernarg_segment_ptr 1
  .amdhsa_system_sgpr_workgroup_id_x 1
  .amdhsa_float_denorm_mode_32 3
.end_amdhsa_kernel''' % NAME)
        return '\n'.join(o) + '\n'


if __name__ == '__main__':
    out = sys.argv[1] if len(sys.argv) > 1 else 'k.s'
    opts = dict(a.split('=') for a in sys.argv[2:])
    SP_OFF, YP_OFF = int(opts.get('sp', hex(SP_OFF)), 0), int(opts.get('yp', hex(YP_OFF)), 0)
    open(out, 'w').write(Gen(False, opts).build(True))
    open(out.replace('.s', '_prof.s'), 'w').write(Gen(True, opts).build())
    open(out.replace('.s', '_lite.s'), 'w').write(Gen(2, opts).build())
```

```python
import math
import struct
import sys

sys.path.insert(0, 'work')
from asmgen import Ins, Stream, vr

NAME = 'recurrent_scan__gqa_block_cached__mixer_s_mlp__prompt'


def f2u(x):
    return '0x%08x' % struct.unpack('<I', struct.pack('<f', x))[0]


H_OFF = 0
X1_OFF = 0x200000
FLAG_OFF = 0x400000
ST_OFF = 0x600000
SP_OFF = 0x1000000
YP_OFF = 0x2000000
PROF_OFF = 0x8000000
OOB = 0x40000000

KRING, VRING = 0, 32768
WREG = 65536
WWAVE = 24576

SX, SK, SV, SWQ, SWO, SW1, SW2, SW3, SW4, SOUT, SDBG, SWS, SH, SCODE = range(4, 60, 4)
sT, sJ, sW, sTBG, sRING, sW2K = 60, 61, 62, 63, 64, 65
sO, sDONE, sKO, sVO, sCNT, sRET = 66, 67, 68, 69, 70, 71
sT0, sT1, sT2, sT3 = 72, 73, 74, 75
sC0 = 76
sPASS, sWSH = 78, 79
sST = 80
sHO, sX1O, sX1I, sSTO, sPO, sPI, sCF, sFP, sXO, sCW, sW3W, sW4W, sWOW, sSTEP = range(84, 98)
sRANK, sYO = sHO, sX1O

vL = 0
vTR = 1
vKA = 9
vACT = 13
vWN, vW3, vW2, vW1 = 14, 15, 16, 17
vDB = 18
vFLAG, vONE, vPOFF, vPRES = 22, 23, 24, 25
vT = 26
vIDX = 31
vS, vP = 32, 48
vX = 64
vACC = 128
aK, aV, aONES, aL, aX1, aQ = 0, 64, 128, 132, 140, 192
aPROF, aDUMMY, aSTAT, aRES, aONE2 = 150, 152, 156, 160, 168

LITE = (3, 59, 98, 99, 100, 101, 82, 83)
CSCALE = math.log2(math.e) / math.sqrt(128.0)
K1 = 2 * 0.7978845608028654 * math.log2(math.e)
K2 = K1 * 0.044715


def srd(n):
    return 's[%d:%d]' % (n, n + 3)


def mfma(d, a, b, c=None):
    return 'v_mfma_f32_16x16x32_bf16 %s, %s, %s, %s' % (d, a, b, d if c is None else c)


DOC = """; One persistent launch, one workgroup per CU: workgroup b handles token block t = b/8 (64 tokens) and kv head
; j = b%8; wave w owns query head 4j+w.  All products are computed transposed (tokens on MFMA columns) with
; v_mfma_f32_16x16x32_bf16; weights, K and V stream global -> LDS by DMA and are read with transposing loads.
; the sums are checked after the loop and otherwise the workgroup repeats the attention with the true row maximum
; cleared by their owner at start and used only after the arrival counters in d_debug show the clears are done."""


class Job:
    def __init__(self, ins, pre=(), m0=None, post=()):
        self.ins = ins if isinstance(ins, Ins) else Ins(ins)
        self.pre, self.m0, self.post = list(pre), m0, list(post)


class Plan:
    def __init__(self):
        self.mf, self.g = [], []

    def add(self, m):
        self.mf.append(m)
        self.g.append(dict(sc=[], ds=[], vm=[], va=[], end=[]))
        return len(self.mf) - 1

    def cap(self, j):
        g = self.g[j]
        if g['vm'] or g['end']:
            return 0
        c = 1 if self.mf[j].startswith('v_smfmac') else 2
        return c - len(g['ds']) - sum(vcost(x) for x in g['va']) - max(0, len(g['sc']) - 1)

    def jobs(self, groups, pos, lo=0, avoid=()):
        prev, pend = lo - 1, []
        for (pre, d, post), p in zip(groups, pos):
            self.scalars(pend + pre, prev + 1, p, avoid, late=True)
            assert not self.g[p]['vm'], 'gap %d already holds a memory instruction' % p
            self.g[p]['vm'].append(d)
            prev, pend = p, post
        return prev, pend

    def scalars(self, sc, a, b, avoid=(), late=False):
        if not sc:
            return
        c = [j for j in range(a, b) if not self.g[j]['vm'] and not self.g[j]['sc'] and j not in avoid]
        if len(c) < len(sc):
            c = [j for j in range(a, b) if not self.g[j]['vm']]
        if not c:
            self.g[b]['sc'] += sc
            return
        c = c[-len(sc):] if late else c[:len(sc)]
        for k, x in enumerate(sc):
            self.g[c[min(k, len(c) - 1)]]['sc'].append(x)

    def fill(self, va, start=0, end=None):
        va, j = list(va), start
        end = len(self.mf) if end is None else end
        while va and j < end:
            if self.cap(j) >= vcost(va[0]):
                self.g[j]['va'].append(va.pop(0))
            else:
                j += 1
        return va

    def empty(self, start, n, step=1):
        res, j = [], start
        while len(res) < n:
            if not any(self.g[j][k] for k in ('sc', 'ds', 'vm', 'va', 'end')):
                res.append(j)
                j += step
            else:
                j += 1
        return res

    def emit(self, gen):
        for m, g in zip(self.mf, self.g):
            gen.put([m] + g['sc'] + g['vm'] + g['ds'] + g['va'] + g['end'])


def vcost(x):
    t = x.text if isinstance(x, Ins) else x
    return 2 if t.startswith(('v_exp', 'v_rcp', 'v_rsq', 'v_permlane')) else 1


class Gen:
    def __init__(self, prof=False, opts=None):
        self.s = Stream()
        self.tail = []
        self.prof = prof
        self.o = opts or {}
        self.nstamp = 0
        self.nlab = 0
        self.kv_nt = False

    def stamp(self, name=None):
        if 'diag' in self.o:
            a, b, k = self.o['diag'].split(':')
            sec = name or [x.op[5:] for x in self.s.l if x.kind == 'meta' and x.op.startswith('@sec ')][-1]
            for r, want in ((98, a), (100, b)):
                if sec.replace(' ', '_') == want:
                    self.s('s_waitcnt lgkmcnt(0) ; stamp\ns_memrealtime s[%d:%d]\ns_waitcnt lgkmcnt(0) ; stamp' % (r, r + 1))
            return
        if not self.prof or (self.prof == 2 and name not in ('kernarg', 'end', 'P0 end', 'P2 end', 'pre', 'loop')):
            return
        e = self.s
        if self.prof == 2:
            e('s_waitcnt lgkmcnt(0) ; stamp\ns_memrealtime s[%d:%d]\ns_waitcnt lgkmcnt(0) ; stamp\ns_mov_b32 s%d, s%d' % (sST, sST + 1, LITE[self.nstamp], sST))
            self.nstamp += 1
            return
        self.tail.append('; @@' + (name or [x.op[5:] for x in e.l if x.kind == 'meta' and x.op.startswith('@sec ')][-1]))
        e('s_waitcnt lgkmcnt(0) ; stamp')
        e('s_memtime s[%d:%d]\ns_memrealtime s[%d:%d]\ns_waitcnt lgkmcnt(0) ; stamp' % (sST, sST + 1, sST + 2, sST + 3))
        for k in range(2):
            e('v_accvgpr_read_b32 v%d, a%d' % (vONE, aPROF + k))
            e('s_nop 1\nv_writelane_b32 v%d, s%d, %d' % (vONE, sST + 2 * k, self.nstamp))
            e('v_accvgpr_write_b32 a%d, v%d' % (aPROF + k, vONE))
        e('v_mov_b32 v%d, 1' % vONE)
        self.nstamp += 1

    def stamp_items(self, name):
        main, self.s = self.s, Stream()
        self.s('@sec ' + name)
        self.stamp(name)
        items, self.s = self.s.l[1:], main
        return items

    def poll_load(self, buf):
        return Job('buffer_load_dword v%d, v%d, %s, 0 offen sc1' % (vPRES, vPOFF, srd(buf)))

    def poll_check(self, buf, val):
        self.nlab += 1
        n = self.nlab
        cmp = 'v_cmp_ne_u32' if val == 1 else 'v_cmp_gt_u32' if val else 'v_cmp_eq_u32'
        self.tail.append('''L_spin%(n)d:
    s_mov_b32 s%(c)d, 0x80000
L_spin%(n)d_loop:
    buffer_load_dword v%(r)d, v%(o)d, %(b)s, 0 offen sc1
    s_waitcnt vmcnt(0)
    %(cmp)s vcc, %(v)d, v%(r)d
    s_cbranch_vccz L_back%(n)d
    s_sub_u32 s%(c)d, s%(c)d, 1
    s_cbranch_scc0 L_spin%(n)d_loop
    s_branch L_back%(n)d''' % dict(n=n, c=sT3, r=vPRES, o=vPOFF, b=srd(buf), v=val, cmp=cmp))
        return [Ins('%s vcc, %d, v%d' % (cmp, val, vPRES)), Ins('s_cbranch_vccnz L_spin%d' % n), Ins('L_back%d:' % n)]

    def flag_store(self, phase, need):
        return Job(Ins('buffer_store_dword v%d, v%d, %s, s%d offen sc1' % (vONE, vFLAG, srd(SWS), sT2), need=need),
                   pre=['s_mov_b32 s%d, 0x%x' % (sT2, FLAG_OFF + phase * 131072)])

    def opt(self, k, d):
        return int(self.o.get(k, d))

    def touch(self, r):
        if not self.opt('touch', 1):
            return
        e = self.s
        e('@mark touch%d\ns_mov_b64 exec, 0' % r)
        for w in range(3):
            e('s_cmp_eq_u32 s%d, %d\ns_cbranch_scc1 L_touch%d_%d' % (sW, w, r, w))
        e('s_branch L_touch%d_3\nL_touched%d:\ns_mov_b64 exec, -1' % (r, r))

    def put(self, items):
        for x in items:
            self.s.add(x if isinstance(x, Ins) else Ins(x))

    def flat(self, jobs):
        res, m0 = [], None
        for jb in jobs:
            pre = list(jb.pre)
            if jb.m0 and jb.m0 != m0:
                pre.insert(0, jb.m0)
                m0 = jb.m0
            res.append((pre, jb.ins, list(jb.post)))
        return res

    def emit_jobs(self, jobs):
        for pre, d, post in self.flat(jobs):
            self.put(pre + [d] + post)

    def sprinkle(self, main, jobs, start=0, every=8):
        groups = self.flat(jobs)
        for k, x in enumerate(main):
            if groups and k >= start and (k - start) % every == 0:
                pre, d, post = groups.pop(0)
                self.put(pre + [d] + post)
            self.put([x])
        for pre, d, post in groups:
            self.put(pre + [d] + post)

    def whalf(self, name, k, h, small=False):
        buf, vo, stride, nat, off = {
            'wq': (SWQ, vDB, 8192, True, (k >> 1) * 32 * 8192 + (k & 1) * 128),
            'w1': (SW1, vW1, 1024, True, k * 32768),
            'w2': (SW2, vW2, 1024, False, k * 32768),
            'w3': (SW3, vW3, 3584, False, k * (64 if small else 32) * 3584),
            'w4': (SW4, vW2, 1024, False, (k % (4 if small else 8)) * 32768 + (k // (4 if small else 8)) * 512),
            'wo': (SWO, vWN, 1024, False, (k >> 1) * 32768 + (k & 1) * 512)}[name]
        rows = [16 * (a & 1) + 4 * (a >> 1) if nat else 8 * a for a in range(4)]
        return [Job(Ins('buffer_load_dwordx4 v%d, %s, s%d offen offset:%d %slds' % (vo, srd(buf), sO, 1024 * a, 'nt ' if name in self.o.get('wnt', 'none').split(',') else ''), tag='%s%d' % (name, k)),
                    pre=['s_mov_b32 s%d, 0x%x' % (sO, off + rows[a] * stride - 1024 * a)] if small is not None else
                    ['s_mul_i32 s%d, s%d, %d' % (sO, sSTEP, k) if a == 0 else 's_add_u32 s%d, s%d, 0x%x' % (sO, sO, 8 * stride - 1024)],
                    m0='s_add_u32 m0, s%d, 0x%x' % (sRING, (h % 6) * 4096)) for a in range(4)]

    def waddr(self, dst, t, base):
        return ['v_lshrrev_b32 v%d, 2, v%d' % (dst, vL), 'v_bfe_u32 v%d, v%d, 3, 2' % (t, vL), 'v_lshlrev_b32 v%d, 5, v%d' % (t, t),
                'v_lshl_or_b32 v%d, v%d, 7, v%d' % (dst, dst, t), 'v_and_b32 v%d, 3, v%d' % (t, vL), 'v_lshl_or_b32 v%d, v%d, 3, v%d' % (dst, t, dst),
                'v_add_u32 v%d, %s, v%d' % (dst, base, dst)] + ['v_xor_b32 v%d, 0x%x, v%d' % (dst + b, b << 5, dst) for b in range(1, 4)]

    def vaddr_restore(self):
        return ['v_xor_b32 v%d, 0x80, v%d' % (vTR + db, vTR + 4 + db) for db in range(4)]

    def lanesum(self, r, t):
        o = []
        for op in ('v_permlane32_swap_b32', 'v_permlane16_swap_b32'):
            o += ['v_mov_b32 v%d, v%d' % (t, r), '%s v%d, v%d' % (op, t, r), 'v_add_f32 v%d, v%d, v%d' % (r, r, t)]
        return o

    def gelu4(self, src, dst, tmp, k1, scale=None):
        o = []
        e = o.append
        P = lambda b: vr('v', b, 2)
        if scale is not None:
            for h in (0, 2):
                e('v_pk_mul_f32 %s, %s, %s op_sel_hi:[1,0]' % (P(src + h), P(src + h), P(scale)))
        for h in (0, 2):
            e('v_pk_mul_f32 %s, %s, %s' % (P(tmp + h), P(src + h), P(src + h)))
        for h in (0, 2):
            e('v_pk_fma_f32 %s, %s, s[%d:%d], %s op_sel_hi:[1,1,0]' % (P(tmp + h), P(tmp + h), sC0, sC0 + 1, P(k1)))
        for h in (0, 2):
            e('v_pk_mul_f32 %s, %s, %s' % (P(tmp + h), P(tmp + h), P(src + h)))
        for r in range(4):
            e('v_exp_f32 v%d, v%d' % (tmp + r, tmp + r))
        for h in (0, 2):
            e('v_pk_add_f32 %s, %s, 1.0 op_sel_hi:[1,0]' % (P(tmp + h), P(tmp + h)))
        for r in range(4):
            e('v_rcp_f32 v%d, v%d' % (tmp + r, tmp + r))
        for h in (0, 2):
            e('v_pk_mul_f32 %s, %s, %s' % (P(tmp + h), P(tmp + h), P(src + h)))
        for h in (0, 2):
            e('v_cvt_pk_bf16_f32 v%d, v%d, v%d' % (dst + h // 2, tmp + h, tmp + h + 1))
        return o

    def pack(self, d, a0, a1):
        return ['v_cvt_pk_bf16_f32 v%d, v%d, v%d' % (d + 3, a1 + 2, a1 + 3), 'v_cvt_pk_bf16_f32 v%d, v%d, v%d' % (d + 2, a1, a1 + 1),
                'v_cvt_pk_bf16_f32 v%d, v%d, v%d' % (d, a0, a0 + 1), 'v_cvt_pk_bf16_f32 v%d, v%d, v%d' % (d + 1, a0 + 2, a0 + 3)]

    def g16(self, accf, acc, ring, ad, fill=()):
        def kn(n):
            return (n & 15, n >> 4) if self.opt('chain16', 1) else (n >> 2, n & 3)

        def rd(n):
            ks, nb = kn(n)
            off = ((ks >> 2) & 1) * WWAVE + (ks & 3) * 4096
            return ['ds_read_b64_tr_b16 %s, v%d offset:%d' % (vr('a', ring + 4 * (n % 8) + 2 * g, 2), ad + nb, off + 2048 * g) for g in range(2)]
        AH = 6
        for n in range(AH):
            self.put(rd(n))
        p = Plan()
        for n in range(64):
            ks, nb = kn(n)
            p.add(mfma(vr(accf, acc + 4 * nb, 4), vr('a', ring + 4 * (n % 8), 4), vr('v', vX + 4 * ks, 4), '0' if ks == 0 else None))
            if n + AH < 64:
                p.g[n]['ds'] += rd(n + AH)
                if kn(n + AH)[0] == 7:
                    a = ad + kn(n + AH)[1]
                    p.g[n]['va'].append('v_add_u32 v%d, 0x%x, v%d' % (a, 2 * WWAVE, a))
            p.g[n]['va'] += fill[n:n + 1]
        p.emit(self)

    def gemm(self, h0, groups, actf, later, first_jobs=(), sync=None, last_jobs=(), WF=0, AF=32):
        LEAD = 9
        p, par, h, blk, free, srcs = Plan(), [], h0, [], {}, []
        p.st = []
        for G, (tags, ak, acc, first, *src) in enumerate(groups):
            par.append(par[-1] ^ (ak != groups[G - 1][1]) if G else 0)
            p.st.append(len(p.mf))
            flip = 0
            for b in range(len(acc)):
                n = len(blk)
                blk.append(len(p.mf))
                srcs.append(src[0][b] if src else [(h + kk, b, tags[kk]) if len(tags) == 2 else (h, b + 2 * kk, tags[0]) for kk in range(2)])
                for x in srcs[-1]:
                    if isinstance(x, tuple):
                        free[x[0]] = blk[-1]
                for tb in (range(3, -1, -1) if b & 1 else range(4)):
                    for i, kk in enumerate((1, 0) if flip else (0, 1)):
                        w = srcs[-1][kk]
                        p.add(mfma(vr('v', acc[b] + 4 * tb, 4), vr('a', WF + 8 * (n % 4) + 4 * kk if isinstance(w, tuple) else w, 4),
                                   vr('a', AF + 32 * par[G] + 16 * kk + 4 * tb, 4), '0' if (first and i == 0) else None))
                    flip ^= 1
            h += len(tags)
        owner = [free[x] for x in sorted(free)]
        N = len(p.mf)
        jobs, pos, q = list(first_jobs), [2 * k + 1 for k in range(len(first_jobs))], 4 * ((len(first_jobs) + 1) // 2) + 1
        rest = []
        for k, piece in enumerate(later):
            while k < len(owner) and q < owner[k]:
                q += 4
            for jb in piece:
                if q < N and k < len(owner) and not rest:
                    jobs.append(jb)
                    pos.append(q)
                    q += 4
                else:
                    rest.append(jb)
        for jb in last_jobs:
            jobs.append(jb)
            pos.append(q)
            q += 4
        p.rest, p.dma_end = rest, q
        prev, pend = p.jobs(self.flat(jobs), pos, avoid={x - 1 for x in blk})
        p.scalars(pend, prev + 1, N)
        pre = []

        def place(ins, lo, use):
            for each, lead in ((1, LEAD), (2, LEAD), (2, LEAD - 2), (2, LEAD - 4)):
                c = [j for j in range(max(lo - 1, 0), use - lead + 1) if not p.g[j]['vm'] and (j + 1 not in blk or each == 2)
                     for _ in range(each - len(p.g[j]['ds']))]
                if len(c) >= len(ins) or lo == 0:
                    break
            assert len(c) >= len(ins) or lo == 0
            c = c[-len(ins):]
            pre.extend(ins[:len(ins) - len(c)])
            for j, x in zip(c, ins[len(ins) - len(c):]):
                p.g[j]['ds'].append(x)
        for n, src in enumerate(srcs):
            ins = [Ins('ds_read_b64_tr_b16 %s, v%d offset:%d' % (vr('a', WF + 8 * (n % 4) + 4 * kk + 2 * g, 2), vTR + x[1], (x[0] % 6) * 4096 + 2048 * g),
                       need=[x[2]]) for kk, x in enumerate(src) if isinstance(x, tuple) for g in range(2)]
            if ins:
                place(ins, blk[n - 3] if n >= 4 else 0, blk[n])
        for G, (tags, ak, *_) in enumerate(groups):
            if G == 0 or ak != groups[G - 1][1]:
                ins = ['ds_read_b128 %s, v%d offset:%d' % ((vr('a', AF + 32 * par[G] + 16 * kk + 4 * tb, 4),) + actf(k, tb)) for tb in range(4) for kk, k in enumerate(ak)]
                prev = [x for x in range(G) if par[x] == par[G]]
                lo = p.st[prev[-1] + 1] if prev else 0
                if G == 0:
                    act0 = [ins[k] for k in (0, 1, 3, 2, 4, 5, 7, 6)]
                    continue
                span = max(1, (p.st[G] - LEAD - lo) // len(ins))
                for k, x in enumerate(ins):
                    j = lo + k * span
                    while p.g[j]['vm'] or len(p.g[j]['ds']) >= 2 or (j + 1 in blk and span > 1):
                        j += 1
                    assert j < p.st[G] - 4 + k
                    p.g[j]['ds'].append(x)
        main, self.s = self.s, Stream()
        sync()
        bar, self.s = self.s.l, main
        for x in bar:
            if x.kind == 'bar':
                lg = [y for y in self.s.l if y.kind in ('dsr', 'dsw')]
                if lg:
                    lg[-1].tag = 'lastlds'
                self.put(pre)
                x.need = ['lastlds'] if lg else []
            self.s.add(x)
        self.put(act0)
        return p

    def part_store(self, reg, off, tag, base=sPO, vo=vACT):
        return Job(Ins('buffer_store_dwordx4 %s, v%d, %s, s%d offen sc1' % (vr('v', reg, 4), vo, srd(SWS), sT1), tag=tag),
                   pre=['s_add_u32 s%d, s%d, 0x%x' % (sT1, base, off)])

    def gather(self, f, dst, soff, off, flags):
        return [Job('buffer_load_dwordx4 %s, v%d, %s, s%d offen offset:%d %s' % (vr(f, dst + 4 * k, 4), vACT, srd(SWS), sRET, 1024 * (k % 4), flags),
                    pre=['s_add_u32 s%d, s%d, 0x%x' % (sRET, soff, off + 1024 * k)] if k % 4 == 0 else []) for k in range(16)]

    LR, LB = vW1, vFLAG
    XS, XW, RA, F1 = vP + 8, vP + 9, vP + 10, vT + 4

    def prologue(self):
        e = self.s
        D = vr('a', aDUMMY, 4)
        e('@sec prologue')
        bufs = [(SX, 0, 0x200000), (SWQ, 24, 0x400000), (SWS, 96, 0x10000000), (SW1, 48, 0x80000), (SW2, 56, 0x80000), (SDBG, 88, 256), (SK, 8, 0x400000),
                (SV, 16, 0x400000), (SWO, 32, 0x400000), (SW3, 64, 0x1c0000), (SW4, 72, 0x1c0000), (SOUT, 80, 0x200000)]
        for b, off, _ in bufs[:2]:
            e('s_load_dwordx2 s[%d:%d], s[0:1], %d' % (b, b + 1, off))
        e('s_cmp_ge_u32 s2, 256\ns_cbranch_scc1 L_end')
        if self.o.get('diag', '').startswith('start'):
            e('s_memrealtime s[98:99]')
        if self.prof:
            e('v_accvgpr_write_b32 a%d, 0\nv_accvgpr_write_b32 a%d, 0' % (aPROF, aPROF + 1))
        e('s_getpc_b64 s[%d:%d]\nL_pc:' % (SCODE, SCODE + 1))
        e('s_mov_b32 s%d, L_code_end-L_pc-16' % (SCODE + 2))
        e('s_lshr_b32 s%d, s2, 3\nv_lshlrev_b32 v%d, 4, v0\nv_lshl_add_u32 v%d, s%d, 12, v%d' % (sT, vT + 3, vT, sT, vT + 3))
        self.put(self.code_addr()[1:])
        self.emit_jobs(self.code_warm())
        e('v_readfirstlane_b32 s%d, v0\ns_and_b32 s%d, s2, 7\nv_and_b32 v0, 63, v0' % (sW, sJ))
        e('s_lshr_b32 s%d, s%d, 6' % (sW, sW))
        e('s_lshl_b32 s%d, s%d, 2\ns_add_u32 s%d, s%d, s%d' % (sTBG, sT, sTBG, sTBG, sW))
        e('v_lshrrev_b32 v%d, 2, v%d\nv_and_b32 v%d, 3, v%d' % (vT + 1, vL, vT + 2, vL))
        e('v_lshlrev_b32 v%d, 10, v%d\nv_lshl_or_b32 v%d, v%d, 4, v%d' % (vT + 4, vT + 1, vT + 4, vT + 2, vT + 4))
        e('v_lshlrev_b32 v%d, 4, v%d' % (vACT, vL))
        e('s_lshl_b32 s%d, s%d, 14\ns_lshl_b32 s%d, s%d, 13\ns_lshl_b32 s%d, s%d, 10' % (sCNT, sTBG, sVO, sTBG, sT1, sJ))
        e('s_mov_b32 s%d, 0x200000\ns_mov_b32 s%d, 0x20000' % (SX + 2, SX + 3))
        e('s_sub_u32 s%d, 0x400000, s%d\ns_mov_b32 s%d, 0x20000' % (SWQ + 2, sT1, SWQ + 3))
        e('s_waitcnt lgkmcnt(0)')
        self.stamp('kernarg')
        e('s_add_u32 s%d, s%d, s%d\ns_addc_u32 s%d, s%d, 0' % (SWQ, SWQ, sT1, SWQ + 1, SWQ + 1))
        for b, off, _ in bufs[2:]:
            e('s_load_dwordx2 s[%d:%d], s[0:1], %d' % (b, b + 1, off))
        wl = [Job('buffer_load_dwordx4 %s, v%d, %s, s%d offen' % (D, vACT, srd(SWQ), sVO), post=['s_add_u32 s%d, s%d, 0x100000' % (sVO, sVO)]) for i in range(4)]
        nf = self.opt('wq_first', 2)
        self.emit_jobs(wl[:nf])
        xl = [Job('buffer_load_dwordx4 %s, v%d, %s, s%d offen offset:%d' % (vr('v', vX + 4 * ks, 4), vT + 4, srd(SX), sCNT, 64 * ks)) for ks in range(16)]
        nx = self.opt('x_first', 10)
        self.emit_jobs(xl[:nx])
        self.stamp('x issued')
        mark = len(e.l)

        def lin(dst, c, *terms):
            for k, (reg, mul) in enumerate(terms):
                e('s_mul_i32 s%d, s%d, 0x%x' % (dst if k == 0 else sT0, reg, mul & 0xffffffff))
                if k:
                    e('s_add_u32 s%d, s%d, s%d' % (dst, dst, sT0))
            if c:
                e('s_add_u32 s%d, s%d, 0x%x' % (dst, dst, c))
        lin(sRING, WREG, (sW, WWAVE))
        lin(sW2K, 0, (sW, 2048))
        e('v_mov_b32 v%d, 1' % vONE)
        XS, XW, RA = self.XS, self.XW, self.RA
        e('v_lshlrev_b32 v%d, 1, v%d\nv_xor_b32 v%d, v%d, v%d\nv_lshl_or_b32 v%d, v%d, 4, v%d' % (vT, vT + 2, vT, vT, vT + 1, vT, vT + 2, vT))
        e('v_lshlrev_b32 v%d, 4, v%d\nv_lshl_add_u32 v%d, s%d, 14, v%d' % (vT, vT, XW, sW, vT))
        e('v_lshrrev_b32 v%d, 4, v%d\nv_lshlrev_b32 v%d, 5, v%d\nv_xor_b32 v%d, v%d, v%d' % (vT, vL, vT, vT, XS, vT, vACT))
        e('v_lshrrev_b32 v%d, 5, v%d\nv_and_b32 v%d, 15, v%d\nv_mul_u32_u24 v%d, 18, v%d\nv_xor_b32 v%d, v%d, v%d' % (vT, vL, vT + 1, vL, vT, vT, vT, vT, vT + 1))
        e('v_bfe_u32 v%d, v%d, 4, 1\nv_lshl_or_b32 v%d, v%d, 1, v%d\nv_lshlrev_b32 v%d, 3, v%d' % (vT + 1, vL, vT, vT, vT + 1, vT, vT))
        lin(sT1, 0, (sW, 16384), (sJ, 1024))
        e('v_add_u32 v%d, s%d, v%d\nv_xor_b32 v%d, 64, v%d' % (RA, sT1, vT, RA + 1, RA))
        C, RN, RK = vT, vT + 1, vT + 2
        e('v_and_b32 v%d, 7, v%d\nv_bfe_u32 v%d, v%d, 4, 2\nv_lshlrev_b32 v%d, 1, v%d\nv_xor_b32 v%d, v%d, v%d' % (C, vL, RN, vL, RN, RN, C, C, RN))
        e('v_lshlrev_b32 v%d, 4, v%d\nv_lshrrev_b32 v%d, 3, v%d' % (C, C, RN, vL))
        e('v_and_b32 v%d, 4, v%d\nv_add_u32 v%d, v%d, v%d' % (RK, RN, RK, RK, RN))
        e('v_lshl_add_u32 v%d, v%d, 13, v%d\nv_lshl_add_u32 v%d, s%d, 8, v%d' % (vDB, RK, C, vDB, sW, vDB))
        e('v_lshl_add_u32 v%d, v%d, 10, v%d\nv_lshl_add_u32 v%d, s%d, 17, v%d' % (vW1, RK, C, vW1, sW, vW1))
        e('v_lshl_add_u32 v%d, v%d, 10, v%d' % (vWN, RN, C))
        e('v_and_b32 v%d, 64, v%d\nv_mad_u32_u24 v%d, v%d, 7, v%d' % (RK, C, vW2, RK, vWN))
        W1W, W2W = vP, vP + 1
        e('v_mov_b32 v%d, v%d\nv_mov_b32 v%d, v%d' % (W1W, vWN, W2W, vW2))
        e('v_lshl_add_u32 v%d, s%d, 17, v%d\nv_lshl_add_u32 v%d, s%d, 7, v%d' % (vW2, sW, vW2, vWN, sW, vWN))
        e('v_mul_u32_u24 v%d, 3584, v%d\nv_lshl_add_u32 v%d, s%d, 7, v%d\nv_add_u32 v%d, v%d, v%d' % (RN, RN, C, sW, C, vW3, RN, C))
        e('v_mov_b32 v%d, 0x%x' % (vT + 5, OOB))
        lin(sKO, 0, (sT, 16384))
        RS, Z = vP + 2, vP + 3
        e('v_lshrrev_b32 v%d, 2, v%d\nv_lshlrev_b32 v%d, 17, v%d' % (RS, vL, RS, RS))
        e('v_and_b32 v%d, 3, v%d\nv_lshl_or_b32 v%d, v%d, 10, v%d' % (Z, vL, RS, Z, RS))
        e('v_cmp_gt_u32 vcc, 0x80, v%d' % (vT + 3))
        lin(sT1, 0, (sTBG, 1024), (sJ, 128))
        e('v_cndmask_b32 v%d, v%d, v%d, vcc' % (RS, vT + 5, RS))
        e('v_lshrrev_b32 v%d, 9, v%d\nv_cmp_eq_u32 vcc, 1, v%d' % (Z, vT + 3, Z))
        e('v_lshlrev_b32 v%d, 2, v%d\nv_add_u32 v%d, 0x%x, v%d' % (Z, vL, Z, 0x40000 - 128, Z))
        e('v_cndmask_b32 v%d, v%d, v%d, vcc' % (RS, RS, Z))
        e('v_cmp_eq_u32 vcc, 0, v%d\nv_mov_b32 v%d, s%d\ns_add_u32 s%d, s%d, 0x%x' % (vL, vFLAG, sT1, sRET, sT1, FLAG_OFF))
        e('v_cndmask_b32 v%d, v%d, v%d, vcc' % (vFLAG, vT + 5, vFLAG))
        e('v_cmp_eq_u32 vcc, 0, v%d\nv_mov_b32 v%d, 0\ns_add_u32 s%d, s%d, 0x%x' % (vT + 3, Z, sSTO, sT1, ST_OFF))
        e('v_cndmask_b32 v%d, v%d, 0, vcc' % (vPOFF, vT + 5))
        e('v_and_b32 v%d, 15, v%d\nv_lshrrev_b32 v%d, 4, v%d' % (vT, vL, vT + 1, vL))
        e('v_xor_b32 v%d, v%d, v%d\nv_lshlrev_b32 v%d, 4, v%d\nv_lshl_or_b32 v%d, v%d, 8, v%d' % (vT + 1, vT + 1, vT, vT + 1, vT + 1, vKA, vT, vT + 1))
        for ks in range(1, 4):
            e('v_xor_b32 v%d, 0x%x, v%d' % (vKA + ks, 64 * ks, vKA))
        e('v_lshrrev_b32 v%d, 2, v%d\nv_and_b32 v%d, 7, v%d\nv_lshlrev_b32 v%d, 5, v%d' % (vT, vL, vT + 1, vT, vT + 1, vT + 1))
        e('v_lshl_or_b32 v%d, v%d, 8, v%d\nv_and_b32 v%d, 3, v%d\nv_lshl_or_b32 v%d, v%d, 3, v%d' % (vT, vT, vT + 1, vT + 1, vL, vT, vT + 1, vT))
        for db in range(4, 8):
            e('v_xor_b32 v%d, 0x%x, v%d' % (vTR + db, VRING | db << 5, vT))
        self.put(self.waddr(vTR, vT, 's%d' % sRING))
        e('v_bfe_i32 v%d, v%d, 1, 1\nv_and_b32 v%d, 0x3f803f80, v%d\nv_xor_b32 v%d, 0x3f803f80, v%d' % (vT, vL, vT + 1, vT, vT + 2, vT + 1))
        e('v_bfe_i32 v%d, v%d, 0, 1\nv_and_b32 v%d, 0xaaaaaaaa, v%d\nv_or_b32 v%d, 0x44444444, v%d' % (vT, vL, vT, vT, vIDX, vT))
        for r in range(4):
            e('v_accvgpr_write_b32 a%d, v%d\nv_accvgpr_write_b32 a%d, v%d' % (aONES + r, vT + 2, aONE2 + r, vT + 1))
        for r in range(8):
            e('v_accvgpr_write_b32 a%d, 0' % (aL + r))
        lin(sHO, 0, (sTBG, 1 << 14), (sJ, 1 << 11))
        lin(sX1I, X1_OFF, (sTBG, 1 << 14))
        lin(sX1O, 0, (sJ, 1 << 10), (sX1I, 1))
        lin(sPO, 0, (sT, 1 << 19), (sJ, 1 << 11), (sW, 1 << 17))
        lin(sPI, 0, (sT, 1 << 19), (sJ, 1 << 16), (sW, 1 << 14))
        lin(sCF, FLAG_OFF + 0x40000, (sT, 1 << 12), (sJ, 1 << 7))
        lin(sFP, FLAG_OFF + 0x40000, (sT, 1 << 12), (sW, 256), (sJ, 4))
        lin(sXO, 0, (sTBG, 1 << 14), (sJ, 64))
        lin(sCW, 0, (sTBG, 1024))
        lin(sW3W, 0, (sTBG, 4 * 3584))
        lin(sWOW, 0, (sTBG, 4096))
        e('s_lshr_b32 s%d, s%d, 1\ns_lshl_b32 s%d, s%d, 13' % (sWSH, sTBG, sWSH, sWSH))
        e('s_mov_b32 s%d, %s\ns_mov_b32 s%d, %s\ns_mov_b32 s%d, 0' % (sC0, f2u(-K2), sC0 + 1, f2u(-K2), sPASS))
        e('s_waitcnt lgkmcnt(0)')
        shift = {SW1: [(sJ, 128)], SW2: [(sJ, 64)], SK: [(sJ, 1 << 19)], SV: [(sJ, 1 << 19)], SWO: [(sJ, 1 << 19)]}
        for b, _, size in bufs[2:]:
            if b in shift:
                lin(sT1, 0, *shift[b])
                e('s_add_u32 s%d, s%d, s%d\ns_addc_u32 s%d, s%d, 0\ns_sub_u32 s%d, 0x%x, s%d' % (b, b, sT1, b + 1, b + 1, b + 2, size, sT1))
            else:
                e('s_mov_b32 s%d, 0x%x' % (b + 2, size))
            e('s_mov_b32 s%d, 0x20000' % (b + 3))
        e('s_mov_b32 s%d, s%d\ns_mov_b32 s%d, s%d\ns_mov_b32 s%d, 0x200000\ns_mov_b32 s%d, 0x20000' % (SH, SWS, SH + 1, SWS + 1, SH + 2, SH + 3))
        ns = self.opt('x_setup', 0)
        setup, e.l = e.l[mark:], e.l[:mark]
        self.sprinkle(setup, xl[nx:nx + ns], start=self.opt('xs_start', 20), every=self.opt('xs_every', 25))
        self.xrest = xl[nx + ns:]
        self.early = wl[nf:] + [Job(Ins('buffer_store_dword v%d, v%d, %s, s%d offen sc1' % (Z, RS, srd(SWS), sRET), tag='reset')),
                                Job('buffer_load_dwordx4 %s, v%d, %s, s%d offen' % (D, W1W, srd(SW1), sWSH)),
                                Job('buffer_load_dwordx4 %s, v%d, %s, s%d offen' % (D, W2W, srd(SW2), sWSH))]
        self.early += (self.warm(SK, vACT, sWOW, (0, 1024, 2048, 3072)) + self.warm(SV, vACT, sWOW, (0, 1024, 2048, 3072)))[:self.opt('kv_early', 2)]
        self.stamp('setup')
        self.touch(0)
        self.stamp('touched')
        e('s_branch L_go\n.p2align 12\nL_go:')

    def p0(self):
        e = self.s
        e('@sec P0 layernorm')
        P = lambda b: vr('v', b, 2)
        A, X0 = vS, vS + 8
        o = ['v_lshlrev_b32 v%d, 16, v%d' % (X0 + 1, vX), 'v_mov_b32_dpp v%d, v%d quad_perm:[0,0,0,0] row_mask:0xf bank_mask:0xf' % (X0, X0 + 1)]
        for k in range(64):
            d = vACC + 2 * k
            o += ['v_lshlrev_b32 v%d, 16, v%d' % (d, vX + k), 'v_and_b32 v%d, 0xffff0000, v%d' % (d + 1, vX + k),
                  'v_pk_add_f32 %s, %s, %s op_sel_hi:[1,0] neg_lo:[0,1] neg_hi:[0,1]' % (P(d), P(d), P(X0))]
            if k == 0:
                o += ['v_pk_mul_f32 %s, %s, %s' % (P(A + 2), P(d), P(d))]
            else:
                o += ['v_pk_add_f32 %s, %s, %s' % (P(A), P(A) if k > 1 else P(vACC), P(d)), 'v_pk_fma_f32 %s, %s, %s, %s' % (P(A + 2), P(d), P(d), P(A + 2))]
        wq = []
        for k in range(6):
            wq += self.whalf('wq', self.pair_order(0)[k], k)
        nd = self.opt('p1_dma', 2)
        jobs = []
        while self.xrest or (wq and nd):
            jobs += self.xrest[:1] + wq[:nd if self.xrest else nd + 1]
            wq = wq[nd if self.xrest else nd + 1:]
            self.xrest = self.xrest[1:]
        self.sprinkle(o, jobs, start=self.opt('p1_start', 2), every=20 // (nd + 1) if nd else 10)
        self.stamp('x landed')
        o = ['v_add_f32 v%d, v%d, v%d' % (A, A, A + 1), 'v_add_f32 v%d, v%d, v%d' % (A + 2, A + 2, A + 3)]
        for qp in ('[1,0,3,2]', '[2,3,0,1]'):
            for r in (A, A + 2):
                o.append('v_add_f32_dpp v%d, v%d, v%d quad_perm:%s row_mask:0xf bank_mask:0xf' % (r, r, r, qp))
        M, V, R = A, A + 2, A + 4
        o += ['v_mul_f32 v%d, %s, v%d' % (M, f2u(1.0 / 512), M), 'v_mul_f32 v%d, %s, v%d' % (V, f2u(1.0 / 512), V),
              'v_fma_f32 v%d, -v%d, v%d, v%d' % (V, M, M, V), 'v_max_f32 v%d, 0, v%d' % (V, V),
              'v_add_f32 v%d, %s, v%d' % (R, f2u(1e-5), V), 'v_rsq_f32 v%d, v%d' % (R, R),
              'v_and_b32 v%d, 0xf0, v%d' % (A + 7, vACT),
              'v_mul_f32 v%d, v%d, v%d' % (A + 6, R, R), 'v_fmaak_f32 v%d, v%d, v%d, %s' % (A + 6, A + 6, V, f2u(1e-5)), 'v_rsq_f32 v%d, v%d' % (A + 6, A + 6),
              'v_mul_f32 v%d, %s, v%d' % (R, f2u(CSCALE), R), 'v_mul_f32 v%d, %s, v%d' % (A + 6, f2u(1.0 / CSCALE), A + 6),
              'v_mul_f32_e64 v%d, -v%d, v%d' % (M, M, R), 'ds_bpermute_b32 v%d, v%d, v%d' % (self.F1, A + 7, A + 6)]
        for ks in range(16):
            for k in range(4 * ks, 4 * ks + 4):
                d = P(vACC + 2 * k)
                o.append('v_pk_fma_f32 %s, %s, %s, %s op_sel_hi:[1,0,0]' % (d, d, P(R), P(M)))
            for k in range(4 * ks, 4 * ks + 4):
                o.append('v_cvt_pk_bf16_f32 v%d, v%d, v%d' % (vX + k, vACC + 2 * k, vACC + 2 * k + 1))
            o.append('ds_write_b128 v%d, %s offset:%d' % (self.XW, vr('v', vX + 4 * ks, 4), 1024 * ks))
        nw, nl = 4 * self.opt('ln_w', 4), self.opt('ln_jobs', 22)
        jobs = wq[:nw] + self.early + wq[nw:]
        self.p2_first = jobs[nl:]
        self.sprinkle(o, jobs[:nl], start=self.opt('ln_start', 0), every=self.opt('ln_every', 2 if nd else 7))
        for nb in range(4):
            e('ds_read_b64 %s, v%d offset:%d' % (vr('a', aRES + 2 * nb, 2), self.RA + (nb & 1), 8192 * (nb >> 1) + 512 * (nb & 1)))
        e('v_lshl_add_u32 v%d, s%d, 14, v%d' % (self.XW, sW, self.XS))

    def kv_dma(self, which, unit, tag):
        buf, ring, so, vo = (SK, KRING, sKO, vDB) if which == 'K' else (SV, VRING, sVO, vDB + 2)
        fl = self.o.get('kvflag', 'nt_').replace('_', ' ') if self.kv_nt else ''
        m0 = 's_add_u32 m0, s%d, 0x%x' % (sW2K, ring + 8192 * (unit & 3))
        return [Job(Ins('buffer_load_dwordx4 v%d, %s, s%d offen %slds' % (vo, srd(buf), so, fl), tag=tag), m0=m0),
                Job(Ins('buffer_load_dwordx4 v%d, %s, s%d offen offset:1024 %slds' % (vo + 1, srd(buf), so, fl), tag=tag), m0=m0,
                    post=['s_add_u32 s%d, s%d, 0x2000' % (so, so), 's_and_b32 s%d, s%d, 0x7ffff' % (so, so)])]

    def pair_order(self, early):
        sg = [(kp, hf) for kp in range(8 - early) for hf in range(2)] + [(kp, hf) for hf in range(2) for kp in range(8 - early, 8)]
        return [2 * (2 * kp + kk) + hf for kp, hf in sg for kk in range(2)]

    def pair_groups(self, name, od):
        return [(['%s%d' % (name, k) for k in od[h:h + 2]], [k >> 1 for k in od[h:h + 2]],
                 [vACC + 64 * (od[h] & 1) + 16 * b for b in range(4)], od[h] < 2) for h in range(0, 32, 2)]

    def p2(self):
        e = self.s
        e('@sec P2')
        od = self.pair_order(0)
        later = [self.whalf('wq', od[h], h) if h < 32 else self.whalf('w1', h - 32, h) for h in range(6, 36)]
        if self.opt('kvwarm', 0):
            later[25] = later[25] + self.warm(SK, vACT, sWOW, (0, 1024, 2048, 3072)) + self.warm(SV, vACT, sWOW, (0, 1024, 2048, 3072))
        p = self.gemm(0, self.pair_groups('wq', od), lambda k, tb: (self.XS, (tb * 16 + k) * 1024),
                      later, self.p2_first, lambda: (self.s('s_barrier', need=['*lg']), self.stamp('P0 end')))
        self.q_first = p.rest
        for ks in range(16):
            p.g[16 * (ks + 2) + 7]['ds'].append('ds_read_b128 %s, v%d offset:%d' % (vr('v', vX + 4 * ks, 4), self.XW, 1024 * ks))
        assert not p.fill(self.waddr(vP + 12, vT, '0x%x' % (WREG + 8192)) + ['v_mov_b32 v%d, %s' % (vP + 10, f2u(-K1))], 16)
        f = ('v_lshrrev_b32 v%d, 4, v%d\nv_and_b32 v%d, 15, v%d\nv_lshl_add_u32 v%d, v%d, 8, s%d\n' % (vT, vL, vT + 1, vL, vT + 2, vT, sW2K) +
             'v_bfe_u32 v%d, v%d, 8, 4\nv_xor_b32 v%d, v%d, v%d\n' % (vT + 3, vT + 2, vT + 3, vT + 3, vT + 1) +
             'v_lshl_add_u32 v%d, v%d, 4, v%d\nv_xor_b32 v%d, 64, v%d\n' % (vDB, vT + 3, vT + 2, vDB + 1, vDB) +
             'v_lshlrev_b32 v%d, 1, v%d\nv_xor_b32 v%d, v%d, v%d\n' % (vT + 3, vT, vT + 3, vT + 3, vT + 1) +
             'v_lshl_add_u32 v%d, v%d, 4, v%d\nv_xor_b32 v%d, 0x80, v%d' % (vDB + 2, vT + 3, vT + 2, vDB + 3, vDB + 2)).split('\n')
        assert not p.fill(f, 32 * 14)
        assert not p.fill(self.vaddr_restore(), 16 * 31 + 2)
        p.jobs(self.flat([Job(Ins('buffer_atomic_add v%d, v%d, %s, s%d offen sc1' % (vONE, vPOFF, srd(SDBG), sT0), need=['reset']),
                              pre=['s_lshl_b32 s%d, s%d, 3' % (sT0, sT), 's_mov_b32 s%d, s%d' % (sVO, sKO)])]), p.empty(16 * 31 + 10, 1), lo=16 * 31 + 5)
        p.emit(self)
        self.stamp('P2 end')

    def q_p1(self):
        e = self.s
        e('@sec Q epilogue')
        if self.o.get('diag', '').startswith('xcc'):
            e('s_getreg_b32 s98, hwreg(HW_REG_XCC_ID)\ns_sub_u32 s98, s98, s%d\ns_and_b32 s98, s98, 7\ns_lshl_b32 s98, 1, s98' % sJ)
            e('v_mov_b32 v%d, s98\nbuffer_atomic_or v%d, v%d, %s, 0 offen offset:4 sc1' % (vT, vT, vPOFF, srd(SDBG)))
        e('s_barrier', need=['*lg'])
        jobs = self.q_first + self.tile_dma(0, 'kv0')
        o, wr = [], []
        fr = [(qb, ks) for qb in range(4) for ks in range(4)]
        for n in range(0, 16, 2):
            ts = []
            for qb, ks in fr[n:n + 2]:
                a = vACC + 32 * ks + 4 * qb
                o += self.pack(a + 16, a, a + 16)
                ts.append(a + 16)
            for op in ('v_permlane32_swap_b32', 'v_permlane16_swap_b32'):
                for t in ts:
                    o += ['%s v%d, v%d' % (op, t, t + 2), '%s v%d, v%d' % (op, t + 1, t + 3)]
            for (qb, ks), t in zip(fr[n:n + 2], ts):
                (wr if self.opt('q_in_p1', 1) else o).extend('v_accvgpr_write_b32 a%d, v%d' % (aQ + 16 * qb + 4 * ks + r, t + r) for r in range(4))
        self.sprinkle(o, jobs, every=self.opt('q_every', 4))
        self.stamp()
        e('@sec P1')
        e('s_barrier', need=['w13'])
        self.g16('v', vS, 0, vP + 12, wr)
        o = []
        for nb in range(4):
            o += self.gelu4(vS + 4 * nb, vX + 2 * nb, vP + 4 * (nb & 1), vP + 10, scale=self.F1)
        self.sprinkle(o, self.tile_dma(1, 'kv1'), every=11)
        for p in range(2):
            e('buffer_store_dwordx4 %s, v%d, %s, s%d offen offset:%d sc1' % (vr('v', vX + 4 * p, 4), vACT, srd(SH), sHO, 1024 * p), tag='hst')
        self.stamp()

    def p3(self, kreads):
        e = self.s
        self.stamp()
        e('@sec P3')
        acc = aK
        self.put(self.waddr(vT, vT + 4, '0x%x' % (WREG + 8192)))
        self.g16('a', acc, aK + 32, vT)
        X, R, PK = vX, vX + 16, vX + 32
        P = lambda b: vr('v', b, 2)
        for k in range(8):
            e('v_accvgpr_read_b32 v%d, a%d' % (PK + k, aRES + k))
        for k in range(8):
            e('v_lshlrev_b32 v%d, 16, v%d\nv_and_b32 v%d, 0xffff0000, v%d' % (R + 2 * k, PK + k, R + 2 * k + 1, PK + k))
        e('v_mov_b32 v%d, %s' % (PK + 8, f2u(1.0 / CSCALE)))
        for k in range(16):
            e('v_accvgpr_read_b32 v%d, a%d' % (X + k, acc + k))
        mark = len(e.l)
        for k in range(8):
            e('v_pk_fma_f32 %s, %s, %s, %s op_sel_hi:[1,0,1]' % (P(X + 2 * k), P(R + 2 * k), P(PK + 8), P(X + 2 * k)))
        for k in range(8):
            e('v_cvt_pk_bf16_f32 v%d, v%d, v%d' % (PK + k, X + 2 * k, X + 2 * k + 1))
        e('s_add_u32 s%d, s%d, 0x2000' % (sT1, sX1O))
        for p in range(2):
            e('buffer_store_dwordx4 %s, v%d, %s, s%d offen sc1' % (vr('v', PK + 4 * p, 4), vACT, srd(SWS), sT1 if p else sX1O))
        for k in range(8):
            e('v_lshlrev_b32 v%d, 16, v%d\nv_and_b32 v%d, 0xffff0000, v%d' % (X + 2 * k, PK + k, X + 2 * k + 1, PK + k))
            e('v_accvgpr_write_b32 a%d, v%d' % (aX1 + k, PK + k))
        for k in range(4):
            e('v_pk_add_f32 %s, %s, %s' % (P(R + 2 * k), P(X + 2 * k), P(X + 8 + 2 * k)))
        e('v_pk_add_f32 %s, %s, %s\nv_pk_add_f32 %s, %s, %s' % (P(R), P(R), P(R + 2), P(R + 4), P(R + 4), P(R + 6)))
        e('v_pk_add_f32 %s, %s, %s\nv_add_f32 v%d, v%d, v%d' % (P(R), P(R), P(R + 4), R + 8, R, R + 1))
        self.put(self.lanesum(R + 8, R + 10))
        e('v_mul_f32 v%d, %s, v%d' % (R + 8, f2u(1.0 / 64), R + 8))
        for k in range(8):
            e('v_pk_add_f32 %s, %s, %s op_sel_hi:[1,0] neg_lo:[0,1] neg_hi:[0,1]' % (P(X + 2 * k), P(X + 2 * k), P(R + 8)))
        for k in range(8):
            e('v_pk_fma_f32 %s, %s, %s, %s' % (P(R), P(X + 2 * k), P(X + 2 * k), P(R)) if k else 'v_pk_mul_f32 %s, %s, %s' % (P(R), P(X), P(X)))
        e('v_add_f32 v%d, v%d, v%d' % (R + 9, R, R + 1))
        e('v_lshlrev_b32 v%d, 3, v%d\nv_mov_b32 v%d, 0x%x\nv_cmp_gt_u32 vcc, 16, v%d' % (R, vL, R + 1, OOB, vL))
        self.put(self.lanesum(R + 9, R + 10))
        e('v_cndmask_b32 v%d, v%d, v%d, vcc' % (R, R + 1, R))
        e('buffer_store_dwordx2 %s, v%d, %s, s%d offen sc1' % (P(R + 8), R, srd(SWS), sSTO), tag='x1st')
        epi, e.l = e.l[mark:], e.l[:mark]
        for k, x in enumerate(epi):
            if k % 16 == 0:
                self.put(kreads[k // 4:k // 4 + 4])
            e.add(x)
        self.stamp()
        e('@sec attention 1b')

    def krd(self, u, f, base=aK):
        kb, ks = f >> 2, f & 3
        return 'ds_read_b128 %s, v%d offset:%d' % (vr('a', base + 32 * (u & 1) + 4 * f, 4), vKA + ks, KRING + 8192 * (u & 3) + 4096 * kb)

    def vrd(self, u, h):
        db, g = h >> 1, h & 1
        return 'ds_read_b64_tr_b16 %s, v%d offset:%d' % (vr('a', aV + 32 * (u & 1) + 4 * db + 2 * g, 2), vTR + db, 8192 * (u & 3) + 4096 * g)

    def rowsum(self, d, ones, p):
        return 'v_smfmac_f32_16x16x64_bf16 %s, %s, %s, v%d' % (vr('a', aL + 4 * d, 4), vr('a', ones, 4), vr('v', p, 8), vIDX)

    KV_GAPS = ((5, 1), (5, 5), (5, 9), (5, 13), (6, 1), (6, 5), (6, 13), (7, 1))
    SIDE_GAPS = {7: (5, 13), 0: (1, 5, 9, 13), 1: (1, 5), 4: (9, 13)}

    def tile_dma(self, T, tag):
        return sum([self.kv_dma(w, 2 * T + k, tag + w) for w in 'KV' for k in range(2)], [])

    def segment(self, seg, NS, sched, loop=None, inline=None, extra=()):
        e = self.s
        NT, inline = NS // 8, inline or {}
        side, chk, fill = {}, {}, {}

        def slots(n):
            T, h = n >> 3, n & 7
            if n < 3 or n >= NS:
                return [1, 3, 5, 7] if n > NS else []
            g = list(self.SIDE_GAPS.get(h, ()))
            if T + 2 >= NT:
                g += [x for hh, x in self.KV_GAPS if hh == h]
            if T + 1 == NT:
                g += {4: [5], 6: [9], 7: [9]}.get(h, [])
            return sorted(g)

        def spread(jobs, n, stop, rate=4):
            jobs = list(jobs)
            while jobs:
                assert n < stop, 'side jobs do not fit'
                room = min(rate, len(slots(n)) - (n in chk) - len(side.get(n, [])))
                while room > 0 and jobs:
                    side.setdefault(n, []).append(jobs.pop(0))
                    room -= 1
                n += 1
        sched(spread, chk, fill)
        lab = 'L_attn%d' % seg
        plans, use = [], {}
        for n in range(NS + 3):
            T, h = n >> 3, n & 7
            p = Plan()
            if n < NS:
                for kb in range(2):
                    d = vr('v', vS + 8 * (n & 1) + 4 * kb, 4)
                    for i, ks in enumerate(range(3, -1, -1) if kb else range(4)):
                        j = p.add(mfma(d, vr('a', aK + 32 * (n & 1) + 16 * kb + 4 * ks, 4), vr('a', aQ + 16 * (h >> 1) + 4 * ks, 4), self.o.get('c0', '-4.0') if i == 0 else None))
                        use.setdefault(('K', T, n & 1, 4 * kb + ks), []).append((n, j))
            if n >= 3:
                m, dh = (n - 3) >> 1, (n - 3) & 1
                for db in range(4 * dh, 4 * dh + 4):
                    for i, kk in enumerate((1, 0) if db & 1 else (0, 1)):
                        j = p.add(mfma(vr('v', vACC + 16 * db + 4 * (m & 3), 4), vr('a', aV + 32 * kk + 4 * db, 4), vr('v', vP + 8 * (m & 1) + 4 * kk, 4),
                                       '0' if (m < 4 and seg == 0 and i == 0) else None))
                        use.setdefault(('V', m >> 2, kk, db), []).append((n, j))
            g, full = p.g, len(p.mf) == 16
            if 1 <= n <= NS:
                sb, pb = vS + 8 * ((n - 1) & 1), vP + 4 * ((n - 1) & 3)
                lag = 2 if n < 3 else 0
                for k in range(8):
                    g[2 * k if full else min(k + lag, 7)]['va'].append('v_exp_f32 v%d, v%d' % (sb + k, sb + k))
                    if k & 1:
                        g[2 * k + 1 if full else min(k + lag + 1, 7)]['va'].append('v_cvt_pk_bf16_f32 v%d, v%d, v%d' % (pb + k // 2, sb + k - 1, sb + k))
            jobs, pos = [], []
            self.kv_nt = False
            if seg and n < 2:
                jobs, pos = self.tile_dma(1, 'kv1')[4 * n:4 * n + 4], [0, 2, 4, 6]
            if T + 2 < NT and n < NS:
                for jb, (hh, x) in zip(self.tile_dma(T + 2, 'kv%d' % (T + 2)), self.KV_GAPS):
                    if hh == h:
                        jobs.append(jb)
                        pos.append(x)
            free = slots(n)
            if n in chk:
                g[free.pop()]['end'] += chk[n]
            jobs += side.get(n, [])
            pos += free[:len(side.get(n, []))]
            assert pos == sorted(pos)
            if full and h == 4:
                late_v = seg and T == 0
                g[14]['sc'].append(Ins('@need', need=(['kv%d%s' % (T + 1, 'K' if late_v else 'V')] if T + 1 < NT else []) + ['*lg']))
                g[15]['sc'].append('s_barrier')
            if seg and n == 9:
                g[0]['sc'].append(Ins('s_barrier', need=['kv1V']))
            if loop and loop[0] <= n < loop[1] and (n - loop[0]) % 16 == 15:
                g[10]['sc'].append('s_sub_u32 s%d, s%d, 1' % (sCNT, sCNT))
                g[12]['sc'].append('s_cmp_lg_u32 s%d, 0' % sCNT)
            prev, pend = p.jobs(self.flat(jobs), pos)
            p.scalars(pend, prev + 1, 10 if prev < 8 and full else len(g))
            plans.append(p)
        reads, pre, held = [], [], {}
        for (w, T, k, f), u in use.items():
            ins = [self.krd(2 * T + k, f)] if w == 'K' else [self.vrd(2 * T + k, 2 * f + x) for x in range(2)]
            if w == 'K' and 8 * T in inline:
                held.setdefault(8 * T, []).extend(ins)
            elif w == 'K' and T == 0 and k == 0:
                pre += ins
            else:
                reads.append((u[0], use[w, T - 1, k, f][-1] if T else (0, 0), ins))
        reads.sort()
        reads += [((NS + 3, 0), at, ins) for at, ins in extra]
        for first, (n, j), ins in reads:
            for x in ins:
                while True:
                    p = plans[n]
                    g = p.g[j]
                    if len(p.mf) == 16:
                        ok = j & 1 and p.cap(j) > 0
                    else:
                        ok = not g['vm'] and len(g['ds']) < 2
                    if ok:
                        break
                    n, j = (n, j + 1) if j + 1 < len(p.mf) else (n + 1, 0)
                g['ds'].append(x)
                assert (n, j) < first and not ((n & 7) == 4 and j > 8), (n, j)
        if loop:
            e('s_mov_b32 s%d, %d' % (sCNT, (loop[1] - loop[0]) // 16))
        e('s_barrier', need=['kv0V', '*lg'])
        self.put(pre)
        carry, dead = [], 0
        for n, p in enumerate(plans):
            if n in inline:
                inline[n](held[n])
            inloop = loop and loop[0] <= n < loop[1]
            if self.opt('astamp', 0) and n % 8 == 0 and not (loop and loop[0] <= n <= loop[1]) and n not in inline:
                self.stamp('s%d_%d' % (seg, n))
            if loop and n == loop[0]:
                self.stamp('pre')
            if inloop and (n - loop[0]) % 16 == 0:
                e('@rep %s %d' % (lab, n))
            if loop and n == loop[1]:
                e('@endrep ' + lab)
                self.stamp('loop')
            if n in fill:
                assert not carry
                carry, dead = fill[n]
            carry = p.fill(carry)
            if carry and n + 1 >= dead:
                p.g[-1]['va'] += carry
                carry = []
            if n >= 3 and n & 1:
                m = (n - 3) >> 1
                p.g[7 if len(p.mf) == 16 else 3]['end'].append(self.rowsum((m >> 1) & 1, aONE2 if m & 1 else aONES, vP + 8 * (m & 1)))
            if inloop and (n - loop[0]) % 16 == 15:
                p.g[15]['end'].append('s_cbranch_scc1 ' + lab)
            p.emit(self)
        self.stamp()

    def code_addr(self):
        return ['v_add_u32 v%d, s%d, v%d' % (vT, sCW, vACT), 'v_min_u32 v%d, s%d, v%d' % (vT, SCODE + 2, vT), 'v_mov_b32 v%d, 0' % (vT + 1),
                'v_lshl_add_u64 %s, %s, 0, s[%d:%d]' % (vr('v', vT, 2), vr('v', vT, 2), SCODE, SCODE + 1)]

    def code_warm(self):
        return [Job('global_load_dwordx4 %s, %s, off' % (vr('a', aDUMMY, 4), vr('v', vT, 2)))]

    def warm(self, buf, vo, so, offs):
        return [Job('buffer_load_dwordx4 %s, v%d, %s, s%d offen offset:%d' % (vr('a', aDUMMY, 4), vo, srd(buf), so, o)) for o in offs]

    def attention1(self):
        e = self.s
        e('@sec attention 1a')
        U, F, G = vX + 48, vT + 4, vT
        N1, P3 = self.opt('n1', 176), self.opt('p3', 40)
        L0, L1 = P3 + 8, N1 - 48
        f0 = ('v_and_b32 v%d, 3, v%d\nv_min_u32 v%d, 2, v%d\n' % (U, vL, U, U) +
              'v_add3_u32 v%d, v%d, s%d, -1\nv_med3_i32 v%d, v%d, 0, 31\nv_lshlrev_b32 v%d, 3, v%d' % (U, U, sT, U, U, vPOFF, U)).split('\n')
        f1 = ('v_bfe_u32 v%d, v%d, 1, 1\nv_lshl_add_u32 v%d, v%d, 1, -1\n' % (U, vL, U, U) +
              'v_bfe_u32 v%d, v%d, 3, 1\nv_mul_i32_i24 v%d, v%d, v%d\n' % (U + 1, vL, U, U, U + 1) +
              'v_add_u32 v%d, s%d, v%d\nv_max_i32 v%d, 0, v%d\nv_min_i32 v%d, 0x7f, v%d\n' % (U, sTBG, U, U, U, U, U) +
              'v_and_b32 v%d, 7, v%d\nv_lshl_or_b32 v%d, v%d, 3, v%d\n' % (U + 1, vL, U, U, U + 1) +
              'v_lshlrev_b32 v%d, 7, v%d\nv_add_u32 v%d, 0x%x, v%d' % (U, U, F, FLAG_OFF, U)).split('\n')
        f2 = ('v_and_b32 v%d, 15, v%d\nv_lshl_add_u32 v%d, s%d, 4, v%d\nv_and_b32 v%d, 48, v%d' % (U, vL, U, sTBG, U, U + 1, vL)).split('\n')
        for g, dlt in enumerate((-1, 1, -2, 2)):
            f2 += ['v_add_u32 v%d, %d, v%d' % (U + 2, dlt, U), 'v_and_or_b32 v%d, v%d, 15, v%d' % (U + 3, U + 2, U + 1),
                   'v_bfe_u32 v%d, v%d, 4, 8' % (U + 2, U + 2), 'v_lshl_or_b32 v%d, v%d, 10, v%d' % (U + 3, U + 2, U + 3),
                   'v_lshlrev_b32 v%d, 4, v%d' % (U + 3, U + 3), 'v_add_u32 v%d, 0x%x, v%d' % (G + g, 4096 * g, U + 3)]
        f3 = ('v_lshrrev_b32 v%d, 4, v%d\nv_and_b32 v%d, 15, v%d\nv_mul_u32_u24 v%d, 3584, v%d\n' % (vT, vL, vT + 1, vL, vT + 2, vT) +
              'v_lshl_add_u32 v%d, v%d, 4, v%d\nv_lshlrev_b32 v%d, 8, v%d\nv_lshl_or_b32 v%d, v%d, 3, v%d\n' % (vT + 3, vT + 1, vT + 2, vT, vT, vT, vT + 1, vT) +
              'v_lshl_add_u32 v%d, s%d, 10, v%d\nv_add_u32 v%d, 0x%x, v%d\n' % (vT, sTBG, vT, vT + 4, ST_OFF, vT) +
              'v_and_b32 v%d, 7, v%d\nv_lshl_or_b32 v%d, s%d, 3, v%d\n' % (vT, vL, vT, sTBG, vT) +
              'v_lshlrev_b32 v%d, 7, v%d\nv_add_u32 v%d, 0x%x, v%d' % (vT, vT, vPOFF, FLAG_OFF + 131072, vT)).split('\n')
        R, M, O = vT, vT + 1, vT + 2
        f3 += ['v_or_b32 v%d, s%d, v%d' % (M, sW, vL), 'v_cmp_eq_u32 vcc, 0, v%d' % M, 'v_mov_b32 v%d, 0x%x' % (O, OOB), 'v_mov_b32 v%d, 1' % R,
               'v_cndmask_b32 v%d, v%d, 0, vcc' % (M, O)]
        dbg = lambda op, off: Job('%s v%d, v%d, %s, s%d offen offset:%d %ssc1' % (op, R, M, srd(SDBG), sT2, off, 'sc0 ' * ('atomic' in op)),
                                  pre=['s_lshl_b32 s%d, s%d, 3' % (sT2, sJ) if off != 68 else 's_mov_b32 s%d, 0' % sT2])
        CB, SM = sT0, sT1
        slices = ['v_readfirstlane_b32 s%d, v%d' % (sRANK, vPRES), 'v_and_b32 v%d, 64, v%d' % (O, vWN), 's_sub_u32 s%d, s%d, 1' % (sRANK, sRANK),
                  's_and_b32 s%d, s%d, 7' % (sRANK, sRANK),
                  's_lshl_b32 s%d, s%d, 9' % (CB, sRANK), 's_min_u32 s%d, s%d, 0xd00' % (CB, CB),
                  's_add_u32 s%d, s%d, s%d' % (sW3W, sW3W, CB), 's_lshl_b32 s%d, s%d, 9' % (sT2, CB), 'v_add_u32 v%d, s%d, v%d' % (vW2, sT2, vWN),
                  's_cmp_ge_u32 s%d, 6' % sRANK, 's_cselect_b32 s%d, 1, 0' % SM, 's_cselect_b32 s%d, 10, 11' % sW4W, 's_cselect_b32 s%d, 1791, 0' % sSTEP,
                  's_lshl_b32 s%d, s%d, s%d' % (sW4W, sTBG, sW4W), 's_add_u32 s%d, s%d, s%d' % (sW4W, sW4W, sT2),
                  'v_mad_u32_u24 v%d, s%d, v%d, v%d' % (vW3, sSTEP, O, vW3), 's_lshl_b32 s%d, 0x%x, s%d' % (sSTEP, 32 * 3584, SM),
                  's_mul_i32 s%d, s%d, s%d' % (SM, SM, sW), 's_lshl_b32 s%d, s%d, 6' % (SM, SM), 's_sub_u32 s%d, s%d, s%d' % (CB, CB, SM),
                  'v_add_u32 v%d, s%d, v%d' % (vW3, CB, vW3),
                  's_sub_u32 s%d, s%d, s%d' % (sT2, sRANK, sJ), 's_lshl_b32 s%d, s%d, 11' % (sT2, sT2), 's_add_u32 s%d, s%d, s%d' % (sYO, sPO, sT2)]
        A, LR, LB, LT = vX + 56, self.LR, self.LB, vT + 4
        f4 = ['v_accvgpr_read_b32 v%d, a%d' % (A + r, aSTAT + r) for r in range(4)]
        f4 += ['v_add_f32 v%d, v%d, v%d' % (A + 4, A, A + 2)] + self.lanesum(A + 4, A + 5)
        f4 += ['v_mul_f32 v%d, 0x3e000000, v%d' % (A + 4, A + 4), 'v_sub_f32 v%d, v%d, v%d' % (A, A, A + 4), 'v_sub_f32 v%d, v%d, v%d' % (A + 2, A + 2, A + 4),
               'v_mul_f32 v%d, v%d, v%d' % (A, A, A), 'v_fmac_f32 v%d, v%d, v%d' % (A, A + 2, A + 2), 'v_add_f32 v%d, v%d, v%d' % (A + 1, A + 1, A + 3),
               'v_fmac_f32 v%d, 0x42800000, v%d' % (A + 1, A)] + self.lanesum(A + 1, A + 5)
        f4 += ['v_mov_b32 v%d, %s' % (LR, f2u(1e-5)), 'v_fmac_f32 v%d, %s, v%d' % (LR, f2u(1.0 / 512), A + 1), 'v_rsq_f32 v%d, v%d' % (LR, LR),
               'v_sub_f32 v%d, 0, v%d' % (A + 4, A + 4), 'v_mul_f32 v%d, v%d, v%d' % (LB, A + 4, LR)]
        f5, self.ln_done = [], self.opt('ln_fill', 5)
        for k in range(vX, vX + 4 * self.ln_done):
            f5 += ['v_lshlrev_b32 v%d, 16, v%d' % (LT, k), 'v_and_b32 v%d, 0xffff0000, v%d' % (k, k), 'v_fma_f32 v%d, v%d, v%d, v%d' % (LT, LT, LR, LB),
                   'v_fma_f32 v%d, v%d, v%d, v%d' % (k, k, LR, LB), 'v_cvt_pk_bf16_f32 v%d, v%d, v%d' % (k, LT, k)]
        f6 = ['v_lshl_add_u32 v%d, s%d, 14, v%d' % (vT + 3, sW, vACT)] + self.waddr(vTR, vT, 's%d' % sRING)
        f6 += ['v_mov_b32 v%d, v%d' % (vS + 6, LR), 'v_mov_b32 v%d, v%d' % (vS + 4, LB)]
        self.put(f0)

        def sched(spread, chk, fill):
            c0, c1 = 12, P3 - 20
            chk[c0] = self.poll_check(SDBG, 8) + [Ins('v_mov_b32 v%d, v%d' % (vPOFF, F))]
            chk[c1] = self.poll_check(SWS, 1)
            chk[L1 + 4] = self.poll_check(SWS, 1) + ['v_mov_b32 v%d, 132' % vPOFF, 'v_lshl_add_u32 v%d, s%d, 3, v%d' % (vPOFF, sJ, vPOFF)]
            chk[L1 + 7] = ['v_cmp_eq_u32 vcc, %d, v%d' % (self.opt('quant', 15), R), 'v_mov_b32 v%d, 1' % R, 'v_cndmask_b32 v%d, v%d, v%d, vcc' % (M, O, M)]
            chk[L1 + 15] = ['v_add_u32 v%d, 1, v%d' % (R, R)]
            chk[L1 + 28] = self.poll_check(SDBG, 0) + slices + self.code_addr()
            fill[4], fill[c0], fill[P3] = (f1, c0), (f2, c1 + 1), (f3, P3 + 6)
            fill[L1 + 12], fill[L1 + 23], fill[N1 + 2] = (f4, L1 + 23), (f5, N1 + 2), (f6, N1 + 3)
            spread([self.flag_store(0, ['hst'])], 4, 5)
            spread([self.poll_load(SDBG)], 7, 8)
            spread([self.poll_load(SWS)], c1 - 5, c1 - 4)
            w2 = []
            for k in range(4):
                w2 += self.whalf('w2', k, 2 + k)
            spread(w2, 4, P3 - 19)
            spread([Job('buffer_load_dwordx4 %s, v%d, %s, 0 offen offset:%d sc1' % (vr('v', vX + 4 * k, 4), G + (k >> 2), srd(SH), 1024 * (k & 3)))
                    for k in range(16)], c1 + 1, P3 - 3, 2)
            spread([self.flag_store(1, ['x1st'])], P3 + 4, P3 + 5)
            spread([self.poll_load(SWS), dbg('buffer_atomic_add', 4)], L1, L1 + 1)
            spread([dbg('buffer_atomic_add', 68)], L1 + 8, L1 + 9)
            spread([dbg('buffer_store_dword', 132)], L1 + 16, L1 + 17)
            spread([self.poll_load(SDBG)], L1 + 24, L1 + 25)
            spread([Job('buffer_load_dwordx2 %s, v%d, %s, 0 offen offset:%d sc1' % (vr('a', aSTAT + 2 * k, 2), vT + 4, srd(SWS), 128 * k)) for k in range(2)]
                   + self.gather('v', vX, sX1I, 0, 'sc1' + ' nt' * self.opt('nt1', 0)), L1 + 7, L1 + 29, 2)
            spread(self.warm(SW3, vT + 3, sW3W, (0, 256)) + self.warm(SW4, vACT, sW4W, (0, 1024)) + self.code_warm(), L1 + 31, L1 + 33, 3)
            spread(sum([self.whalf('w3', k, k, None) for k in range(self.opt('w3pre', 6))], []), N1 - self.opt('w3at', 9), N1 + 2)
        self.segment(0, N1, sched, loop=(L0, L1), inline={P3: self.p3})

    def h2a(self, tb, slot):
        return 16384 + (tb & 1) * 8192 + (tb >> 1) * 32768 + slot * 1024

    def mlp(self):
        e = self.s
        P = lambda b: vr('v', b, 2)
        e('@sec LN x1')
        o, wr = [], ['ds_write_b128 v%d, %s offset:%d' % (vT + 3, vr('v', vX + 4 * ks, 4), 1024 * ks) for ks in range(16)]
        for ks in range(self.ln_done, 16):
            t = vP + 8 * (ks & 1)
            for k in range(4):
                o += ['v_lshlrev_b32 v%d, 16, v%d' % (t + 2 * k, vX + 4 * ks + k), 'v_and_b32 v%d, 0xffff0000, v%d' % (t + 2 * k + 1, vX + 4 * ks + k)]
            if ks - self.ln_done < self.ln_done:
                o.append(wr[ks - self.ln_done])
            for k in range(4):
                o.append('v_pk_fma_f32 %s, %s, %s, %s op_sel_hi:[1,0,0]' % (P(t + 2 * k), P(t + 2 * k), P(vS + 6), P(vS + 4)))
            for k in range(4):
                o.append('v_cvt_pk_bf16_f32 v%d, v%d, v%d' % (vX + 4 * ks + k, t + 2 * k, t + 2 * k + 1))
            o.append(wr[ks])
        o += wr[16 - self.ln_done:self.ln_done]
        self.put(o)
        self.touch(1)
        self.stamp()
        e('s_cmp_ge_u32 s%d, 6\ns_cbranch_scc1 L_mlp_small' % sRANK)
        n0, names = self.nstamp, len(self.tail)
        main, self.s = self.s, Stream(known=['w3%d' % k for k in range(self.opt('w3pre', 6))])
        self.s('L_mlp_small:\ns_waitcnt vmcnt(0) lgkmcnt(0)')
        self.mlp_body(True)
        self.s('s_waitcnt vmcnt(0) lgkmcnt(0)\ns_branch L_mlp_done')
        self.s.insert_waits()
        self.s.pad_hazards()
        self.aside, self.s = self.s, main
        self.nstamp, self.tail[names:] = n0, []
        self.mlp_body(False)
        e('L_mlp_done:')

    def mlp_body(self, small):
        e = self.s
        P = lambda b: vr('v', b, 2)
        e('@sec P5')
        n3 = 8 if small else 16
        sync = lambda: self.s('s_barrier', need=['*lg'])
        piece = lambda h: self.whalf('w3', h, h, small) if h < n3 else self.whalf('w4', h - n3, h, small)
        groups = [(['w3%d' % (k // 2)] if small else ['w3%d' % k, 'w3%d' % (k + 1)], [k, k + 1], [vX + 16 * b for b in range(n3 // 4)], k == 0) for k in range(0, 16, 2)]
        p = self.gemm(0, groups, lambda k, tb: (vACT, (tb * 16 + k) * 1024), [piece(h) for h in range(6, n3 + 6)], sum([piece(h) for h in range(self.opt('w3pre', 6), 6)], []), sync)
        HW, KC = vT, vT + 2
        f = ('v_lshl_add_u32 v%d, s%d, %d, v%d\nv_mov_b32 v%d, %s\n' % (HW, sW, 10 if small else 11, vACT, KC, f2u(-K1)) +
             'v_lshlrev_b32 v%d, 7, v%d\nv_mov_b32 v%d, 0x%x\nv_cmp_gt_u32 vcc, 2, v%d\n' % (vS, vL, vS + 1, OOB, vL) +
             'v_and_b32 v%d, 7, v%d\nv_lshl_add_u32 v%d, v%d, 2, s%d\nv_cndmask_b32 v%d, v%d, v%d, vcc\n' % (vS + 2, vL, vPOFF, vS + 2, sCF, vFLAG, vS + 1, vS) +
             'v_and_b32 v%d, 15, v%d\nv_lshlrev_b32 v%d, 10, v%d\n' % (vS, vL, vS, vS) +
             'v_lshrrev_b32 v%d, 4, v%d\nv_lshl_or_b32 v%d, v%d, 3, v%d' % (vS + 1, vL, vW1, vS + 1, vS)).split('\n')
        assert not p.fill(f)
        p.emit(self)
        self.stamp()
        e('@sec gelu')
        e('s_barrier')
        o, n = [], 0
        for pp in range(n3 // 8):
            for tb in range(4):
                d = vS + 4 * (n % 4)
                for g in range(2):
                    o += self.gelu4(vX + 16 * (2 * pp + g) + 4 * tb, d + 2 * g, vP + 4 * g, KC)
                n += 1
                o.append('ds_write_b128 v%d, %s offset:%d' % (HW, vr('v', d, 4), self.h2a(tb, pp)))
        self.put(o)
        self.stamp()
        e('@sec P7')
        accB, ng = (vS, vP, vX, vX + 32), n3 // 4
        groups = [(['w4%d' % (2 * (ng * ps + k) + i) for i in range(2)], [2 * k, 2 * k + 1], accB if ps else [vX + 16 * b for b in range(4)], k == 0)
                  for ps in range(2) for k in range(ng)]
        p = self.gemm(n3, groups, lambda k, tb: (vACT, self.h2a(tb, k)), [piece(h) for h in range(n3 + 6, 2 * n3)], p.rest, sync, self.tile_dma(0, 'kv0'))
        assert not p.rest
        for pp, (lo, hi) in enumerate(((p.st[ng - 1] + 18, p.st[ng] + 16), (p.st[ng] + 2, p.st[ng] + 24))):
            pk = []
            for tb in range(3, -1, -1):
                a = vX + 32 * pp + 4 * tb
                pk += self.pack(a + 16, a, a + 16)
            p.g[hi - 1]['va'] += p.fill(pk, lo, hi)
        pk = self.vaddr_restore()
        for tb in range(3, -1, -1):
            pk += self.pack(vP + 4 * tb, vS + 4 * tb, vP + 4 * tb)
        rest = p.fill(pk, p.st[-1] + 17)
        p.emit(self)
        self.put(rest)
        for tb in range(3, -1, -1):
            self.put(self.pack(vX + 32 + 4 * tb, vX + 4 * tb, vX + 32 + 4 * tb))
        for r in range(0, 16, 2):
            e('v_pk_mov_b32 %s, %s, %s op_sel:[0,1]' % (P(vX + r), P(vP + r), P(vP + r)))
        self.yfrag = {(0, 0): vX + 16, (0, 1): vX + 48, (1, 0): vX, (1, 1): vX + 32}
        self.stamp()

    def part_flag(self, word, need):
        return Job(Ins('buffer_store_dword v%d, v%d, %s, s%d offen offset:%d sc1' % (vONE, vFLAG, srd(SWS), sFP, 4 * word), need=need))

    def held(self):
        h = {14 + g: [[aK + 32 * g + 8 * b + 4 * kk for kk in range(2)] for b in range(4)] for g in range(2)}
        if self.opt('hold3', 1) and self.prof != 1:
            idle = (148, 152, 156, 172, 176, 180, 184, 188)
            h[13] = [[idle[2 * b + kk] for kk in range(2)] for b in range(4)]
            if self.opt('hold4', 1):
                h[12] = [[aQ + 32 + 8 * b + 4 * kk for kk in range(2)] for b in range(4)]
        return h

    def attention2(self):
        e = self.s
        e('@sec attention 2a')
        N2 = 256 - self.opt('n1', 176)
        H, T = self.opt('head2', 32), N2 - self.opt('tail2', 32)

        def sched(spread, chk, fill):
            chk[T + 4] = self.poll_check(SWS, 1)
            spread([self.part_store(self.yfrag[h, pp] + 4 * tb, YP_OFF + 65536 * pp + 16384 * tb + 1024 * h, 'yst', sYO)
                    for h in range(2) for pp in range(2) for tb in range(4)], 4, H - 8, 2)
            spread([self.part_flag(0, ['yst'])], H - 8, H - 7)
            spread(self.warm(SWO, vACT, sWOW, (0, 1024, 2048, 3072)) + self.code_warm(), H - 8, H - 6)
            spread([self.poll_load(SWS)], T, T + 1)
            spread([Job('buffer_load_dwordx2 %s, v%d, %s, s%d offen offset:%d' % (vr('a', aRES + 2 * nb, 2), vW1, srd(SX), sXO, 512 * (nb >> 1) + 32 * (nb & 1)))
                    for nb in range(4)], T, T + 2)
            spread(self.gather('v', vX, sPI, YP_OFF, 'sc1' + ' nt' * self.opt('nt2', 1)), T + 5, N2 - 8, 2)
            if nh >= 3:
                spread(self.whalf('wo', od[26], 0) + self.whalf('wo', od[27], 1), T - 9, T - 6)
            first = sum([self.whalf('wo', od[k], h) for k, h in ((28, 4), (29, 5), (30, 2), (31, 3), (0, 0), (1, 1))], [])
            spread(first, N2 - 12, N2 - 1)
            late = self.whalf('wo', od[2], 2) + self.whalf('wo', od[3], 3)
            late[0].ins.need = ['held15']
            if nh == 4:
                self.oepi_jobs, late = late, self.whalf('wo', od[24], 4) + self.whalf('wo', od[25], 5)
                late[0].ins.need = ['held14']
            spread(late, N2 + 1, N2 + 3)
            fill[H - 12] = (self.code_addr(), H - 8)
            fill[H - 4] = (self.waddr(vT, vT + 4, 's%d' % sRING), H)
        od, nh = self.pair_order(self.opt('p6_early', 6)), len(self.held())
        slot, at = {12: 4, 13: 0, 14: 4, 15: 2}, {12: None, 13: (T - 3, 0), 14: (N2 - 2, 8), 15: (N2 - 1, 8)}
        self.oepi_jobs = []
        extra = [(at[G], [Ins('ds_read_b64_tr_b16 %s, v%d offset:%d' % (vr('a', regs[b][kk] + 2 * x, 2), (vT if at[G] else vTR) + b, (slot[G] + kk) * 4096 + 2048 * x),
                              need=['wo%d' % od[2 * G + kk]], tag='held%d' % G) for b in range(4) for kk in range(2) for x in range(2)])
                 for G, regs in sorted(self.held().items())]
        self.oepi_reads = sum([ins for a, ins in extra if not a], [])
        extra = [x for x in extra if x[0]]
        self.segment(1, N2, sched, loop=(H, T) if T >= H + 32 else None, extra=extra)
        self.o_epilogue()

    def o_epilogue(self):
        e = self.s
        e('@sec O epilogue')
        e('L_oepi:')
        jobs = self.flat(self.oepi_jobs)
        for r in range(8):
            e('v_accvgpr_read_b32 v%d, a%d' % (vS + r, aL + r))
        for qb in range(4):
            e('v_add_f32 v%d, v%d, v%d' % (vS + 2 * qb, vS + 2 * qb, vS + 2 * qb + 1))
        B = vS + 8
        for qb in range(4):
            e('v_subrev_u32 v%d, 0x2b800000, v%d' % (B + qb, vS + 2 * qb))
        e('v_max3_u32 v%d, v%d, v%d, v%d\nv_max_u32 v%d, v%d, v%d' % (B, B, B + 1, B + 2, B, B, B + 3))
        e('v_cmp_lt_u32 vcc, 0x28000000, v%d' % B)
        e('v_and_b32 v%d, 3, v%d\nv_lshlrev_b32 v%d, 12, v%d\nv_lshl_add_u32 v%d, s%d, 2, v%d' % (B + 1, vL, B + 1, B + 1, B + 1, sW, B + 1))
        e('s_or_b32 s%d, vcc_lo, vcc_hi' % sT0)
        e('v_mov_b32 v%d, s%d' % (B, sT0))
        e('ds_write_b32 v%d, v%d' % (B + 1, B))
        for qb in range(4):
            e('v_rcp_f32 v%d, v%d' % (vS + 2 * qb, vS + 2 * qb))
        e('v_lshl_add_u32 v%d, s%d, 12, v%d' % (vP, sW, vACT))
        e('s_lshl_b32 s%d, s%d, 12\nv_mov_b32 v%d, s%d' % (sT0, sW, B + 1, sT0))
        e('s_barrier', need=['*lg'])
        e('ds_read_b128 %s, v%d' % (vr('v', B + 4, 4), B + 1))
        for qb in range(4):
            for ks in range(4):
                a = vACC + 32 * ks + 4 * qb
                for h in (0, 2, 16, 18):
                    e('v_pk_mul_f32 %s, %s, %s op_sel_hi:[1,0]' % (vr('v', a + h, 2), vr('v', a + h, 2), vr('v', vS + 2 * qb, 2)))
                self.put(self.pack(a + 16, a, a + 16))
                if qb == 0 and ks < 2:
                    if ks == 0:
                        continue
                    e('v_or3_b32 v%d, v%d, v%d, v%d\nv_or_b32 v%d, v%d, v%d' % (B, B + 4, B + 5, B + 6, B, B, B + 7))
                    e('v_cmp_ne_u32 vcc, 0, v%d\ns_cbranch_vccnz L_slow\nL_ofine:' % B)
                    e('ds_write_b128 v%d, %s' % (vP, vr('v', vACC + 16, 4)))
                e('ds_write_b128 v%d, %s offset:%d' % (vP, vr('v', a + 16, 4), (16 * qb + ks) * 1024))
                for pre, d, post in jobs[4 * qb + ks - 1:4 * qb + ks]:
                    self.put(pre + [d] + post)
        self.put(self.waddr(vTR, vT, 's%d' % sRING) + self.oepi_reads)
        self.stamp()
        self.slow_path()

    def slow_path(self):
        main, self.s = self.s, Stream()
        e = self.s
        M = vT
        e('L_slow:\ns_cmp_lg_u32 s%d, 0\ns_cbranch_scc1 L_ofine\ns_mov_b32 s%d, 1' % (sPASS, sPASS))
        e('s_waitcnt vmcnt(0) lgkmcnt(0)')
        for ps in range(2):
            e('s_mov_b32 s%d, 0\ns_mov_b32 s%d, 0\ns_mov_b32 s%d, 64' % (sKO, sVO, sCNT))
            if ps == 0:
                for qb in range(4):
                    e('v_mov_b32 v%d, 0xff800000' % (M + qb))
            else:
                for qb in range(4):
                    for op in ('v_permlane32_swap_b32', 'v_permlane16_swap_b32'):
                        e('v_mov_b32 v%d, v%d\n%s v%d, v%d\nv_max_f32 v%d, v%d, v%d' % (vS, M + qb, op, vS, M + qb, M + qb, M + qb, vS))
                e('v_lshrrev_b32 v%d, 4, v%d\nv_xor_b32 v%d, v%d, v%d\nv_bfe_i32 v%d, v%d, 1, 1' % (vS, vL, vS, vS, vL, vS, vS))
                e('v_not_b32 v%d, v%d\nv_and_b32 v%d, 0x3f803f80, v%d' % (vS, vS, vS, vS))
                for r in range(4):
                    e('v_accvgpr_write_b32 a%d, v%d' % (aONES + r, vS))
                for r in range(128):
                    e('v_mov_b32 v%d, 0' % (vACC + r))
                for r in range(8):
                    e('v_accvgpr_write_b32 a%d, 0' % (aL + r))
            e('L_slow%d:\ns_barrier' % ps)
            self.emit_jobs(self.kv_dma('K', 0, 'k') + (self.kv_dma('V', 0, 'k') if ps else []))
            e('s_barrier', need=['k'])
            self.put([self.krd(0, f, aV + 32) for f in range(8)] + ([self.vrd(0, h) for h in range(16)] if ps else []))
            e('s_waitcnt lgkmcnt(0)')
            for qb in range(4):
                for kb in range(2):
                    for ks in range(4):
                        e(mfma(vr('v', vS + 4 * kb, 4), vr('a', aV + 32 + 16 * kb + 4 * ks, 4), vr('a', aQ + 16 * qb + 4 * ks, 4), '0' if ks == 0 else None))
                if ps == 0:
                    for r in range(0, 8, 2):
                        e('v_max3_f32 v%d, v%d, v%d, v%d' % (M + qb, M + qb, vS + r, vS + r + 1))
                    continue
                for r in range(8):
                    e('v_sub_f32 v%d, v%d, v%d' % (vS + r, vS + r, M + qb))
                for r in range(8):
                    e('v_exp_f32 v%d, v%d' % (vS + r, vS + r))
                for r in range(4):
                    e('v_cvt_pk_bf16_f32 v%d, v%d, v%d' % (vP + 4 * qb + r, vS + 2 * r, vS + 2 * r + 1))
                for db in range(8):
                    e(mfma(vr('v', vACC + 16 * db + 4 * qb, 4), vr('a', aV + 4 * db, 4), vr('v', vP + 4 * qb, 4)))
                if qb & 1:
                    e(self.rowsum(qb >> 1, aONES, vP + 4 * (qb - 1)))
            e('s_nop 7\ns_sub_u32 s%d, s%d, 1\ns_cmp_lg_u32 s%d, 0\ns_cbranch_scc1 L_slow%d' % (sCNT, sCNT, sCNT, ps))
        e('s_barrier\ns_branch L_oepi')
        e.insert_waits()
        e.pad_hazards()
        self.tail.append(e.text())
        self.s = main

    SEL = vT

    def reduce(self, acc, f, regs, ks, first=False):
        return [mfma(vr('v', acc + 4 * (2 * (k & 1) + g), 4), vr('v', self.SEL + 2 - 2 * g, 4), vr(f, regs + 4 * k, 4), '0' if (first and k < 2) else None)
                for k in ks for g in range(2)]

    def collect(self, acc, regs, base, once):
        e, L = self.s, 'L_c'
        NEW, N = sT0, sT1
        e('s_mov_b32 s%d, 0x80000\ns_mov_b32 s%d, 0\ns_waitcnt vmcnt(1)\ns_branch %s_got' % (sT3, sCNT, L))
        e('%s_wait:\ns_waitcnt vmcnt(0)\n%s_got:\nv_cmp_eq_u32 vcc, 1, v%d\ns_and_b32 s%d, vcc_lo, 0xff' % (L, L, vPRES, NEW))
        e('s_andn2_b32 s%d, s%d, s%d\ns_or_b32 s%d, s%d, s%d\ns_bcnt1_i32_b32 s%d, s%d' % (NEW, NEW, sDONE, sDONE, sDONE, NEW, N, NEW))
        for n in range(7):
            e('s_cmp_eq_u32 s%d, %d\ns_cbranch_scc1 %s_ld%d' % (N, n, L, 7 - n))
        for q in range(7):
            e('%s_ld%d:\ns_ff1_i32_b32 s%d, s%d\ns_bitset0_b32 s%d, s%d' % (L, q, sT2, NEW, NEW, sT2))
            e('s_lshl_b32 s%d, s%d, 11\ns_add_u32 s%d, s%d, s%d' % (sT2, sT2, sT2, sT2, base))
            for p in range(2):
                e('buffer_load_dwordx4 %s, v%d, %s, s%d offen offset:%d sc1' % (vr('a', regs + 8 * q + 4 * p, 4), vACT, srd(SWS), sT2, 1024 * p))
        e('%s_ld7:' % L)
        e.add(self.poll_load(SWS).ins)
        e('s_cmp_lg_u32 s%d, 0\ns_cbranch_scc1 %s_again\ns_mov_b32 s%d, 1' % (sCNT, L, sCNT))
        self.put(once)
        e('%s_again:' % L)
        for n in range(7):
            e('s_cmp_eq_u32 s%d, %d\ns_cbranch_scc1 %s_mm%d' % (N, n, L, 7 - n))
        for q in range(7):
            e('%s_mm%d:' % (L, q))
            self.put(self.reduce(acc, 'a', regs, (2 * q, 2 * q + 1)))
        e('s_cmp_lg_u32 s%d, 0xff\ns_cbranch_scc1 %s_wait\n%s_end:' % (sDONE, L, L))
        self.tail.append('%s_mm7:\n    s_sub_u32 s%d, s%d, 1\n    s_cbranch_scc0 %s_wait\n    s_branch %s_end' % (L, sT3, sT3, L, L))

    def p6_final(self):
        e = self.s
        P = lambda b: vr('v', b, 2)
        e('@sec P6')
        NE, held = self.opt('p6_early', 6), self.held()
        od = self.pair_order(NE)
        groups = [g + (held[G],) if G in held else g for G, g in enumerate(self.pair_groups('wo', od))]
        NQ = self.opt('p6_quarter', 4)
        if NQ:
            src = lambda G: held[G] if G in held else [[(2 * G + kk, b, groups[G][0][kk]) for kk in range(2)] for b in range(4)]
            seq = sorted(range(16 - NQ, 16), key=lambda G: G not in held)
            groups[16 - NQ:] = [([], groups[G][1], groups[G][2][2 * pp:2 * pp + 2], False, src(G)[2 * pp:2 * pp + 2])
                                for pp in range(2) for G in (seq[::-1] if pp else seq)]
        p = self.gemm(0, groups, lambda k, tb: (vACT, (tb * 16 + k) * 1024), [self.whalf('wo', od[h], h) for h in range(6, 32 - 2 * len(held))],
                      self.whalf('wo', od[4], 4) + self.whalf('wo', od[5], 5), lambda: self.s('s_barrier', need=['*lg']), WF=aQ, AF=aV)
        pk, st = [], []
        for h in range(2):
            for pp in range(2):
                for tb in range(3, -1, -1):
                    a = vACC + 64 * h + 32 * pp + 4 * tb
                    pk.append(self.pack(a + 16, a, a + 16))
                    st.append(self.part_store(a + 16, SP_OFF + 65536 * pp + 16384 * tb + 1024 * h, 'sst', vo=vDB + pp))
        q, pos = p.dma_end + self.opt('a_start', 16), []
        ready = [32 * (16 - NE) + 2] * 8 + [512 - 16 * NQ + 2] * (4 if NQ else 0)
        for k, r in enumerate(ready):
            q = max(q, r + 6)
            if q > 508:
                break
            while len(p.g[q]['ds']) > 1 or p.g[q]['vm']:
                q += 1
            p.jobs(self.flat([st[k]]), [q], lo=q - 2)
            pos.append(q)
            q += self.opt('a_step', 8)
        NG = self.opt('peek', 3) if self.prof != 1 else 0
        if NG:
            free = lambda q: [x for x in range(q, 512) if not p.g[x]['vm'] and len(p.g[x]['ds']) < 2 and not p.g[x]['end']][0]
            p.jobs(self.flat([self.poll_load(SWS)]), [free(pos[self.opt('peek_poll', 0)] - 6)])
            q = free(pos[7] + 2)
            p.g[q]['end'] += ['v_cmp_eq_u32 vcc, 1, v%d' % vPRES, 's_and_b32 s%d, vcc_lo, 0xff' % sT0, 's_andn2_b32 s%d, s%d, s%d' % (sT0, sT0, sDONE)]
            for g in range(NG):
                q = free(q + 1)
                p.g[q]['end'] += ['s_ff1_i32_b32 s%d, s%d' % (sT2, sT0), 's_bitset0_b32 s%d, s%d' % (sT0, sT2), 's_bitset1_b32 s%d, s%d' % (sDONE, sT2),
                                  's_and_b32 s%d, s%d, 0x%x' % (sT3, sT2, OOB), 'v_or_b32 v%d, s%d, v%d' % (vKA + g, sT3, vACT),
                                  's_and_b32 s%d, s%d, 7' % (sT2, sT2), 's_lshl_b32 s%d, s%d, 11' % (sT2, sT2), 's_add_u32 s%d, s%d, s%d' % (sRET, sT2, sKO)]
                for x in range(2):
                    q = free(q + self.opt('peek_step', 4))
                    p.jobs(self.flat([Job('buffer_load_dwordx4 %s, v%d, %s, s%d offen offset:%d sc1' % (vr('v', vS + 8 * g + 4 * x, 4), vKA + g, srd(SWS), sRET, 1024 * x))]), [q])
            p.g[free(q + 1)]['end'].append('s_and_b32 s%d, s%d, 0xff' % (sDONE, sDONE))
        for k, q in enumerate(pos):
            p.g[q - 1]['va'] += p.fill(pk[k], ready[k], q)
        pk, st = pk[len(pos):], st[len(pos):]
        SEL, ZZ, XF, SS, E = self.SEL, vS, vP, vACC, vACC + 32
        t = vKA
        f = ('v_lshrrev_b32 v%d, 4, v%d\nv_bfe_u32 v%d, v%d, 2, 2\nv_and_b32 v%d, 1, v%d\nv_lshlrev_b32 v%d, 4, v%d\n' % (t + 1, vL, t, vL, t + 2, vL, t + 2, t + 2) +
             'v_mov_b32 v%d, 0x3f80\nv_lshlrev_b32 v%d, v%d, v%d\n' % (t + 3, t + 2, t + 2, t + 3) +
             'v_cmp_eq_u32 vcc, v%d, v%d\nv_mov_b32 v%d, 0\nv_mov_b32 v%d, 0\n' % (t, t + 1, SEL, SEL + 1) +
             'v_cndmask_b32 v%d, 0, v%d, vcc\nv_and_b32 v%d, 2, v%d\nv_cmp_eq_u32 vcc, 0, v%d\n' % (t + 2, t + 2, t, vL, t) +
             'v_mov_b32 v%d, 0\nv_mov_b32 v%d, 0\nv_cndmask_b32 v%d, 0, v%d, vcc\n' % (SEL + 4, SEL + 5, SEL + 2, t + 2) +
             'v_sub_u32 v%d, v%d, v%d\n' % (SEL + 3, t + 2, SEL + 2) +
             'v_lshl_add_u32 v%d, v%d, 3, v%d' % (vW2, t + 1, vW1)).split('\n')
        p.scalars(['s_lshl_b32 s%d, s%d, 1' % (sVO, sW), 's_sub_u32 s%d, s%d, s%d' % (sVO, sJ, sVO), 's_lshr_b32 s%d, s%d, 1' % (sCNT, sJ),
                   's_mul_i32 s%d, s%d, %d' % (sCNT, sCNT, WWAVE), 's_add_u32 s%d, s%d, s%d' % (sCNT, sCNT, sW2K), 's_add_u32 s%d, s%d, %d' % (sCNT, sCNT, WREG)], 0, 16)
        f += ['v_mov_b32 v%d, 0x%x' % (t, OOB), 'v_mov_b32 v%d, s%d' % (t + 1, sVO), 'v_cmp_eq_u32 vcc, 0, v%d' % (t + 1),
              'v_add_u32 v%d, s%d, v%d' % (vDB + 2, sRING, vACT), 'v_add_u32 v%d, s%d, v%d' % (vDB + 3, sCNT, vACT),
              'v_cndmask_b32 v%d, v%d, v%d, vcc' % (vDB, vACT, t), 'v_cmp_eq_u32 vcc, 1, v%d' % (t + 1),
              'v_add_u32 v%d, 32, v%d' % (vPOFF, vPOFF), 'v_cndmask_b32 v%d, v%d, v%d, vcc' % (vDB + 1, vACT, t)]
        assert not p.fill(f, 0, 48)
        red = self.reduce(XF, 'a', aRES, (0, 1), True) + self.reduce(ZZ, 'a', aX1, (0, 1), True) + self.reduce(ZZ, 'v', vX, range(16))
        gate = ['s_mov_b32 s%d, %s' % (sC0 + k, f2u(-math.log2(math.e))) for k in range(2)]
        gate += ['v_pk_mul_f32 %s, %s, s[%d:%d]' % (P(E + r), P(ZZ + r), sC0, sC0 + 1) for r in range(0, 16, 2)]
        gate += ['v_exp_f32 v%d, v%d' % (E + r, E + r) for r in range(16)]
        gate += ['v_pk_add_f32 %s, %s, 1.0 op_sel_hi:[1,0]' % (P(E + r), P(E + r)) for r in range(0, 16, 2)]
        gate += ['v_rcp_f32 v%d, v%d' % (E + r, E + r) for r in range(16)]
        gate += ['v_pk_mul_f32 %s, %s, %s' % (P(ZZ + r), P(ZZ + r), P(E + r)) for r in range(0, 16, 2)]
        p.scalars(['s_lshl_b32 s%d, 1, s%d' % (sDONE, sJ), 's_add_u32 s%d, s%d, 0x%x' % (sKO, sPI, SP_OFF)], 16, 24)
        if self.opt('p6stamp', 0):
            for q in (127, 255, 383, p.dma_end - 2, 479):
                p.g[q]['end'] += self.stamp_items('q%d' % q)
        p.emit(self)
        self.stamp('P6')
        e('@sec s epilogue')
        self.sprinkle(sum(pk, []), st, start=4, every=4)
        self.stamp('issued')
        self.emit_jobs([self.poll_load(SWS)])
        for pp in range(2):
            e('s_cmp_lg_u32 s%d, %d\ns_cbranch_scc1 L_other%d' % (sVO, pp, pp))
            for h in range(2):
                for tb in range(4):
                    e('ds_write_b128 v%d, %s offset:%d' % (vDB + 2, vr('v', vACC + 64 * h + 32 * pp + 16 + 4 * tb, 4), 2048 * tb + 1024 * h))
            e('L_other%d:' % pp)
        e('s_waitcnt lgkmcnt(0)\ns_barrier')
        for h in range(2):
            e('ds_read_b128 %s, v%d offset:%d' % (vr('a', 4 * h, 4), vDB + 3, 1024 * h))
        work, nb4 = red + gate, self.opt('before_flag', 24)
        self.put(self.reduce(SS, 'a', 0, (0, 1), True) + self.reduce(SS, 'v', vS, range(2 * NG)) + work[:nb4])
        self.emit_jobs([self.part_flag(8, ['sst'])])
        self.stamp('acked')
        self.collect(SS, 64, sKO, work[nb4:])
        self.stamp('collected')
        for nb in range(4):
            for r in range(4 * nb, 4 * nb + 4, 2):
                e('v_pk_fma_f32 %s, %s, %s, %s' % (P(XF + r), P(SS + r), P(ZZ + r), P(XF + r)))
            for k in range(2 * nb, 2 * nb + 2):
                e('v_cvt_pk_bf16_f32 v%d, v%d, v%d' % (E + k, XF + 2 * k, XF + 2 * k + 1))
            om = self.opt('outmode', 2)
            if om < 2:
                e('buffer_store_dwordx2 %s, v%d, %s, s%d offen offset:%d%s' % (P(E + 2 * nb), vW1, srd(SOUT), sXO, 512 * (nb >> 1) + 32 * (nb & 1), ' sc1' * om))
            elif nb & 1:
                t = E + 2 * nb - 2
                for op in ('v_permlane32_swap_b32', 'v_permlane16_swap_b32'):
                    e('%s v%d, v%d\n%s v%d, v%d' % (op, t, t + 2, op, t + 1, t + 3))
                e('buffer_store_dwordx4 %s, v%d, %s, s%d offen offset:%d sc1' % (vr('v', t, 4), vW2, srd(SOUT), sXO, 512 * (nb >> 1)))
        if 'diag' in self.o:
            self.stamp('end')
            if self.o['diag'].startswith('xcc'):
                e('v_mov_b32 v%d, 4\nbuffer_load_dword v%d, v%d, %s, 0 offen sc1\ns_waitcnt vmcnt(0)' % (vT, vT + 1, vT, srd(SDBG)))
                e('v_readfirstlane_b32 s100, v%d\ns_nop 3\ns_bcnt1_i32_b32 s100, s100\ns_mul_i32 s100, s100, 1000\ns_mov_b32 s98, 1000' % (vT + 1))
            e('s_sub_u32 s100, s100, s98\ns_mul_i32 s100, s100, %s\ns_min_u32 s100, s100, 100000' % self.o['diag'].split(':')[2])
            e('s_memrealtime s[98:99]\ns_waitcnt lgkmcnt(0)\ns_add_u32 s100, s100, s98')
            e('L_diag:\ns_memrealtime s[98:99]\ns_waitcnt lgkmcnt(0)\ns_sub_u32 s98, s98, s100\ns_cmp_lt_i32 s98, 0\ns_cbranch_scc1 L_diag')
        if self.prof:
            e('s_waitcnt vmcnt(0)')
            self.stamp('end')
            e('v_accvgpr_read_b32 v%d, a%d\nv_accvgpr_read_b32 v%d, a%d' % (vT, aPROF, vT + 1, aPROF + 1))
            for k in range(self.nstamp * (self.prof == 2)):
                e('v_writelane_b32 v%d, s%d, %d\nv_writelane_b32 v%d, s%d, %d' % (vT, LITE[k], k, vT + 1, LITE[k], k))
            e('s_lshl_b32 s%d, s2, 11\ns_lshl_b32 s%d, s%d, 9\ns_add_u32 s%d, s%d, s%d' % (sT0, sT1, sW, sT0, sT0, sT1))
            e('s_add_u32 s%d, s%d, 0x%x\nv_lshlrev_b32 v%d, 3, v%d' % (sT0, sT0, PROF_OFF, vT + 2, vL))
            e('buffer_store_dwordx2 %s, v%d, %s, s%d offen' % (vr('v', vT, 2), vT + 2, srd(SWS), sT0))

    def build(self, verbose=False):
        for phase in (self.prologue, self.p0, self.p2, self.q_p1, self.attention1, self.mlp, self.attention2, self.p6_final):
            phase()
        s = self.s
        s.insert_waits()
        pads = s.pad_hazards()
        est = s.estimate()
        s.fold()
        s.l += [Ins('L_end:'), Ins('s_endpgm'), Ins('@mark main_end')] + self.aside.l
        fixes = s.align(self.opt('touch', 1))
        if self.opt('touch', 1):
            n, cut = s.marks['main_end'] + 1, self.opt('touch_cut', 15)
            assert s.marks['touch1'] < cut + 1 or cut >= n
            for r, (lo, hi) in enumerate(((0, min(cut, n)), (min(cut, n), n))):
                for k in range(lo, hi):
                    s.pages[k].text = 's_cbranch_execz ' + ('L_pg%d' % (k + 4) if k + 4 < hi else 'L_touched%d' % r)
                for x in s.l:
                    for w in range(4):
                        if x.text.endswith(' L_touch%d_%d' % (r, w)):
                            x.text = x.text.replace('L_touch%d_%d' % (r, w), 'L_pg%d' % (lo + w) if lo + w < hi else 'L_touched%d' % r)
        if verbose:
            print('alignment fixes:', fixes, 'pages:', len(s.pages), s.marks)
        if verbose:
            print('hazard pads:', pads)
            for name, cyc, nm in est:
                print('  %-18s est %6d cycles, %5d mfma (%6d)' % (name, cyc, nm, nm * 16))
            print('  total', sum(c for _, c, _ in est))
        ref = open('cdna_kernels/%s.s.ref' % NAME).read().split('\n')
        head = [l for l in ref if l.startswith(';') and '@launch' not in l]
        o = head + ['; @launch grid=(256,1,1) block=(256,1,1) lds=163840',
                    '.amdgcn_target "amdgcn-amd-amdhsa--gfx950"', '.text', '.globl %s_kernel' % NAME, '.p2align 8',
                    '.type %s_kernel,@function' % NAME, '%s_kernel:' % NAME]
        o.append(DOC)
        o.append(s.text())
        o += self.tail
        o.append('L_code_end:\n    s_endpgm')
        o.append('''.section .rodata,"a"
.p2align 6
.amdhsa_kernel %s_kernel
  .amdhsa_next_free_vgpr 512
  .amdhsa_next_free_sgpr 102
  .amdhsa_accum_offset 256
  .amdhsa_group_segment_fixed_size 0
  .amdhsa_kernarg_size 104
  .amdhsa_user_sgpr_count 2
  .amdhsa_user_sgpr_kernarg_segment_ptr 1
  .amdhsa_system_sgpr_workgroup_id_x 1
  .amdhsa_float_denorm_mode_32 3
.end_amdhsa_kernel''' % NAME)
        return '\n'.join(o) + '\n'


if __name__ == '__main__':
    out = sys.argv[1] if len(sys.argv) > 1 else 'k.s'
    opts = dict(a.split('=') for a in sys.argv[2:])
    SP_OFF, YP_OFF = int(opts.get('sp', hex(SP_OFF)), 0), int(opts.get('yp', hex(YP_OFF)), 0)
    open(out, 'w').write(Gen(False, opts).build(True))
    open(out.replace('.s', '_prof.s'), 'w').write(Gen(True, opts).build())
    open(out.replace('.s', '_lite.s'), 'w').write(Gen(2, opts).build())
```

```python
import math
import struct
import sys

sys.path.insert(0, 'work')
from asmgen import Ins, Stream, vr

NAME = 'recurrent_scan__gqa_block_cached__mixer_s_mlp__prompt'


def f2u(x):
    return '0x%08x' % struct.unpack('<I', struct.pack('<f', x))[0]


H_OFF = 0
X1_OFF = 0x200000
FLAG_OFF = 0x400000
ST_OFF = 0x600000
SP_OFF = 0x1000000
YP_OFF = 0x2000000
PROF_OFF = 0x8000000
OOB = 0x40000000

KRING, VRING = 0, 32768
WREG = 65536
WWAVE = 24576

SX, SK, SV, SWQ, SWO, SW1, SW2, SW3, SW4, SOUT, SDBG, SWS, SH, SCODE = range(4, 60, 4)
sT, sJ, sW, sTBG, sRING, sW2K = 60, 61, 62, 63, 64, 65
sO, sDONE, sKO, sVO, sCNT, sRET = 66, 67, 68, 69, 70, 71
sT0, sT1, sT2, sT3 = 72, 73, 74, 75
sC0 = 76
sPASS, sWSH = 78, 79
sST = 80
sHO, sX1O, sX1I, sSTO, sPO, sPI, sCF, sFP, sXO, sCW, sW3W, sW4W, sWOW, sSTEP = range(84, 98)
sRANK, sYO = sHO, sX1O

vL = 0
vTR = 1
vKA = 9
vACT = 13
vWN, vW3, vW2, vW1 = 14, 15, 16, 17
vDB = 18
vFLAG, vONE, vPOFF, vPRES = 22, 23, 24, 25
vT = 26
vIDX = 31
vS, vP = 32, 48
vX = 64
vACC = 128
aK, aV, aONES, aL, aX1, aQ = 0, 64, 128, 132, 140, 192
aPROF, aDUMMY, aSTAT, aRES, aONE2 = 150, 152, 156, 160, 168

LITE = (3, 59, 98, 99, 100, 101, 82, 83)
CSCALE = math.log2(math.e) / math.sqrt(128.0)
K1 = 2 * 0.7978845608028654 * math.log2(math.e)
K2 = K1 * 0.044715


def srd(n):
    return 's[%d:%d]' % (n, n + 3)


def mfma(d, a, b, c=None):
    return 'v_mfma_f32_16x16x32_bf16 %s, %s, %s, %s' % (d, a, b, d if c is None else c)


DOC = """; One persistent launch, one workgroup per CU: workgroup b handles token block t = b/8 (64 tokens) and kv head
; j = b%8; wave w owns query head 4j+w.  All products are computed transposed (tokens on MFMA columns) with
; v_mfma_f32_16x16x32_bf16; weights, K and V stream global -> LDS by DMA and are read with transposing loads.
; the sums are checked after the loop and otherwise the workgroup repeats the attention with the true row maximum
; cleared by their owner at start and used only after the arrival counters in d_debug show the clears are done."""


class Job:
    def __init__(self, ins, pre=(), m0=None, post=()):
        self.ins = ins if isinstance(ins, Ins) else Ins(ins)
        self.pre, self.m0, self.post = list(pre), m0, list(post)


class Plan:
    def __init__(self):
        self.mf, self.g = [], []

    def add(self, m):
        self.mf.append(m)
        self.g.append(dict(sc=[], ds=[], vm=[], va=[], end=[]))
        return len(self.mf) - 1

    def cap(self, j):
        g = self.g[j]
        if g['vm'] or g['end']:
            return 0
        c = 1 if self.mf[j].startswith('v_smfmac') else 2
        return c - len(g['ds']) - sum(vcost(x) for x in g['va']) - max(0, len(g['sc']) - 1)

    def jobs(self, groups, pos, lo=0, avoid=()):
        prev, pend = lo - 1, []
        for (pre, d, post), p in zip(groups, pos):
            self.scalars(pend + pre, prev + 1, p, avoid, late=True)
            assert not self.g[p]['vm'], 'gap %d already holds a memory instruction' % p
            self.g[p]['vm'].append(d)
            prev, pend = p, post
        return prev, pend

    def scalars(self, sc, a, b, avoid=(), late=False):
        if not sc:
            return
        c = [j for j in range(a, b) if not self.g[j]['vm'] and not self.g[j]['sc'] and j not in avoid]
        if len(c) < len(sc):
            c = [j for j in range(a, b) if not self.g[j]['vm']]
        if not c:
            self.g[b]['sc'] += sc
            return
        c = c[-len(sc):] if late else c[:len(sc)]
        for k, x in enumerate(sc):
            self.g[c[min(k, len(c) - 1)]]['sc'].append(x)

    def fill(self, va, start=0, end=None):
        va, j = list(va), start
        end = len(self.mf) if end is None else end
        while va and j < end:
            if self.cap(j) >= vcost(va[0]):
                self.g[j]['va'].append(va.pop(0))
            else:
                j += 1
        return va

    def empty(self, start, n, step=1):
        res, j = [], start
        while len(res) < n:
            if not any(self.g[j][k] for k in ('sc', 'ds', 'vm', 'va', 'end')):
                res.append(j)
                j += step
            else:
                j += 1
        return res

    def emit(self, gen):
        for m, g in zip(self.mf, self.g):
            gen.put([m] + g['sc'] + g['vm'] + g['ds'] + g['va'] + g['end'])


def vcost(x):
    t = x.text if isinstance(x, Ins) else x
    return 2 if t.startswith(('v_exp', 'v_rcp', 'v_rsq', 'v_permlane')) else 1


class Gen:
    def __init__(self, prof=False, opts=None):
        self.s = Stream()
        self.tail = []
        self.prof = prof
        self.o = opts or {}
        self.nstamp = 0
        self.nlab = 0
        self.kv_nt = False

    def stamp(self, name=None):
        if 'diag' in self.o:
            a, b, k = self.o['diag'].split(':')
            sec = name or [x.op[5:] for x in self.s.l if x.kind == 'meta' and x.op.startswith('@sec ')][-1]
            for r, want in ((98, a), (100, b)):
                if sec.replace(' ', '_') == want:
                    self.s('s_waitcnt lgkmcnt(0) ; stamp\ns_memrealtime s[%d:%d]\ns_waitcnt lgkmcnt(0) ; stamp' % (r, r + 1))
            return
        if not self.prof or (self.prof == 2 and name not in ('kernarg', 'end', 'P0 end', 'P2 end', 'pre', 'loop')):
            return
        e = self.s
        if self.prof == 2:
            e('s_waitcnt lgkmcnt(0) ; stamp\ns_memrealtime s[%d:%d]\ns_waitcnt lgkmcnt(0) ; stamp\ns_mov_b32 s%d, s%d' % (sST, sST + 1, LITE[self.nstamp], sST))
            self.nstamp += 1
            return
        self.tail.append('; @@' + (name or [x.op[5:] for x in e.l if x.kind == 'meta' and x.op.startswith('@sec ')][-1]))
        e('s_waitcnt lgkmcnt(0) ; stamp')
        e('s_memtime s[%d:%d]\ns_memrealtime s[%d:%d]\ns_waitcnt lgkmcnt(0) ; stamp' % (sST, sST + 1, sST + 2, sST + 3))
        for k in range(2):
            e('v_accvgpr_read_b32 v%d, a%d' % (vONE, aPROF + k))
            e('s_nop 1\nv_writelane_b32 v%d, s%d, %d' % (vONE, sST + 2 * k, self.nstamp))
            e('v_accvgpr_write_b32 a%d, v%d' % (aPROF + k, vONE))
        e('v_mov_b32 v%d, 1' % vONE)
        self.nstamp += 1

    def stamp_items(self, name):
        main, self.s = self.s, Stream()
        self.s('@sec ' + name)
        self.stamp(name)
        items, self.s = self.s.l[1:], main
        return items

    def poll_load(self, buf):
        return Job('buffer_load_dword v%d, v%d, %s, 0 offen sc1' % (vPRES, vPOFF, srd(buf)))

    def poll_check(self, buf, val):
        self.nlab += 1
        n = self.nlab
        cmp = 'v_cmp_ne_u32' if val == 1 else 'v_cmp_gt_u32' if val else 'v_cmp_eq_u32'
        self.tail.append('''L_spin%(n)d:
    s_mov_b32 s%(c)d, 0x80000
L_spin%(n)d_loop:
    buffer_load_dword v%(r)d, v%(o)d, %(b)s, 0 offen sc1
    s_waitcnt vmcnt(0)
    %(cmp)s vcc, %(v)d, v%(r)d
    s_cbranch_vccz L_back%(n)d
    s_sub_u32 s%(c)d, s%(c)d, 1
    s_cbranch_scc0 L_spin%(n)d_loop
    s_branch L_back%(n)d''' % dict(n=n, c=sT3, r=vPRES, o=vPOFF, b=srd(buf), v=val, cmp=cmp))
        return [Ins('%s vcc, %d, v%d' % (cmp, val, vPRES)), Ins('s_cbranch_vccnz L_spin%d' % n), Ins('L_back%d:' % n)]

    def flag_store(self, phase, need):
        return Job(Ins('buffer_store_dword v%d, v%d, %s, s%d offen sc1' % (vONE, vFLAG, srd(SWS), sT2), need=need),
                   pre=['s_mov_b32 s%d, 0x%x' % (sT2, FLAG_OFF + phase * 131072)])

    def opt(self, k, d):
        return int(self.o.get(k, d))

    def touch(self, r):
        if not self.opt('touch', 1):
            return
        e = self.s
        e('@mark touch%d\ns_mov_b64 exec, 0' % r)
        for w in range(3):
            e('s_cmp_eq_u32 s%d, %d\ns_cbranch_scc1 L_touch%d_%d' % (sW, w, r, w))
        e('s_branch L_touch%d_3\nL_touched%d:\ns_mov_b64 exec, -1' % (r, r))

    def put(self, items):
        for x in items:
            self.s.add(x if isinstance(x, Ins) else Ins(x))

    def flat(self, jobs):
        res, m0 = [], None
        for jb in jobs:
            pre = list(jb.pre)
            if jb.m0 and jb.m0 != m0:
                pre.insert(0, jb.m0)
                m0 = jb.m0
            res.append((pre, jb.ins, list(jb.post)))
        return res

    def emit_jobs(self, jobs):
        for pre, d, post in self.flat(jobs):
            self.put(pre + [d] + post)

    def sprinkle(self, main, jobs, start=0, every=8):
        groups = self.flat(jobs)
        for k, x in enumerate(main):
            if groups and k >= start and (k - start) % every == 0:
                pre, d, post = groups.pop(0)
                self.put(pre + [d] + post)
            self.put([x])
        for pre, d, post in groups:
            self.put(pre + [d] + post)

    def whalf(self, name, k, h, small=False):
        buf, vo, stride, nat, off = {
            'wq': (SWQ, vDB, 8192, True, (k >> 1) * 32 * 8192 + (k & 1) * 128),
            'w1': (SW1, vW1, 1024, True, k * 32768),
            'w2': (SW2, vW2, 1024, False, k * 32768),
            'w3': (SW3, vW3, 3584, False, k * (64 if small else 32) * 3584),
            'w4': (SW4, vW2, 1024, False, (k % (4 if small else 8)) * 32768 + (k // (4 if small else 8)) * 512),
            'wo': (SWO, vWN, 1024, False, (k >> 1) * 32768 + (k & 1) * 512)}[name]
        rows = [16 * (a & 1) + 4 * (a >> 1) if nat else 8 * a for a in range(4)]
        return [Job(Ins('buffer_load_dwordx4 v%d, %s, s%d offen offset:%d %slds' % (vo, srd(buf), sO, 1024 * a, 'nt ' if name in self.o.get('wnt', 'none').split(',') else ''), tag='%s%d' % (name, k)),
                    pre=['s_mov_b32 s%d, 0x%x' % (sO, off + rows[a] * stride - 1024 * a)] if small is not None else
                    ['s_mul_i32 s%d, s%d, %d' % (sO, sSTEP, k) if a == 0 else 's_add_u32 s%d, s%d, 0x%x' % (sO, sO, 8 * stride - 1024)],
                    m0='s_add_u32 m0, s%d, 0x%x' % (sRING, (h % 6) * 4096)) for a in range(4)]

    def waddr(self, dst, t, base):
        return ['v_lshrrev_b32 v%d, 2, v%d' % (dst, vL), 'v_bfe_u32 v%d, v%d, 3, 2' % (t, vL), 'v_lshlrev_b32 v%d, 5, v%d' % (t, t),
                'v_lshl_or_b32 v%d, v%d, 7, v%d' % (dst, dst, t), 'v_and_b32 v%d, 3, v%d' % (t, vL), 'v_lshl_or_b32 v%d, v%d, 3, v%d' % (dst, t, dst),
                'v_add_u32 v%d, %s, v%d' % (dst, base, dst)] + ['v_xor_b32 v%d, 0x%x, v%d' % (dst + b, b << 5, dst) for b in range(1, 4)]

    def vaddr_restore(self):
        return ['v_xor_b32 v%d, 0x80, v%d' % (vTR + db, vTR + 4 + db) for db in range(4)]

    def lanesum(self, r, t):
        o = []
        for op in ('v_permlane32_swap_b32', 'v_permlane16_swap_b32'):
            o += ['v_mov_b32 v%d, v%d' % (t, r), '%s v%d, v%d' % (op, t, r), 'v_add_f32 v%d, v%d, v%d' % (r, r, t)]
        return o

    def gelu4(self, src, dst, tmp, k1, scale=None):
        o = []
        e = o.append
        P = lambda b: vr('v', b, 2)
        if scale is not None:
            for h in (0, 2):
                e('v_pk_mul_f32 %s, %s, %s op_sel_hi:[1,0]' % (P(src + h), P(src + h), P(scale)))
        for h in (0, 2):
            e('v_pk_mul_f32 %s, %s, %s' % (P(tmp + h), P(src + h), P(src + h)))
        for h in (0, 2):
            e('v_pk_fma_f32 %s, %s, s[%d:%d], %s op_sel_hi:[1,1,0]' % (P(tmp + h), P(tmp + h), sC0, sC0 + 1, P(k1)))
        for h in (0, 2):
            e('v_pk_mul_f32 %s, %s, %s' % (P(tmp + h), P(tmp + h), P(src + h)))
        for r in range(4):
            e('v_exp_f32 v%d, v%d' % (tmp + r, tmp + r))
        for h in (0, 2):
            e('v_pk_add_f32 %s, %s, 1.0 op_sel_hi:[1,0]' % (P(tmp + h), P(tmp + h)))
        for r in range(4):
            e('v_rcp_f32 v%d, v%d' % (tmp + r, tmp + r))
        for h in (0, 2):
            e('v_pk_mul_f32 %s, %s, %s' % (P(tmp + h), P(tmp + h), P(src + h)))
        for h in (0, 2):
            e('v_cvt_pk_bf16_f32 v%d, v%d, v%d' % (dst + h // 2, tmp + h, tmp + h + 1))
        return o

    def pack(self, d, a0, a1):
        return ['v_cvt_pk_bf16_f32 v%d, v%d, v%d' % (d + 3, a1 + 2, a1 + 3), 'v_cvt_pk_bf16_f32 v%d, v%d, v%d' % (d + 2, a1, a1 + 1),
                'v_cvt_pk_bf16_f32 v%d, v%d, v%d' % (d, a0, a0 + 1), 'v_cvt_pk_bf16_f32 v%d, v%d, v%d' % (d + 1, a0 + 2, a0 + 3)]

    def g16(self, accf, acc, ring, ad, fill=()):
        def kn(n):
            return (n & 15, n >> 4) if self.opt('chain16', 1) else (n >> 2, n & 3)

        def rd(n):
            ks, nb = kn(n)
            off = ((ks >> 2) & 1) * WWAVE + (ks & 3) * 4096
            return ['ds_read_b64_tr_b16 %s, v%d offset:%d' % (vr('a', ring + 4 * (n % 8) + 2 * g, 2), ad + nb, off + 2048 * g) for g in range(2)]
        AH = 6
        for n in range(AH):
            self.put(rd(n))
        p = Plan()
        for n in range(64):
            ks, nb = kn(n)
            p.add(mfma(vr(accf, acc + 4 * nb, 4), vr('a', ring + 4 * (n % 8), 4), vr('v', vX + 4 * ks, 4), '0' if ks == 0 else None))
            if n + AH < 64:
                p.g[n]['ds'] += rd(n + AH)
                if kn(n + AH)[0] == 7:
                    a = ad + kn(n + AH)[1]
                    p.g[n]['va'].append('v_add_u32 v%d, 0x%x, v%d' % (a, 2 * WWAVE, a))
            p.g[n]['va'] += fill[n:n + 1]
        p.emit(self)

    def gemm(self, h0, groups, actf, later, first_jobs=(), sync=None, last_jobs=(), WF=0, AF=32):
        LEAD = 9
        p, par, h, blk, free, srcs = Plan(), [], h0, [], {}, []
        p.st = []
        for G, (tags, ak, acc, first, *src) in enumerate(groups):
            par.append(par[-1] ^ (ak != groups[G - 1][1]) if G else 0)
            p.st.append(len(p.mf))
            flip = 0
            for b in range(len(acc)):
                n = len(blk)
                blk.append(len(p.mf))
                srcs.append(src[0][b] if src else [(h + kk, b, tags[kk]) if len(tags) == 2 else (h, b + 2 * kk, tags[0]) for kk in range(2)])
                for x in srcs[-1]:
                    if isinstance(x, tuple):
                        free[x[0]] = blk[-1]
                for tb in (range(3, -1, -1) if b & 1 else range(4)):
                    for i, kk in enumerate((1, 0) if flip else (0, 1)):
                        w = srcs[-1][kk]
                        p.add(mfma(vr('v', acc[b] + 4 * tb, 4), vr('a', WF + 8 * (n % 4) + 4 * kk if isinstance(w, tuple) else w, 4),
                                   vr('a', AF + 32 * par[G] + 16 * kk + 4 * tb, 4), '0' if (first and i == 0) else None))
                    flip ^= 1
            h += len(tags)
        owner = [free[x] for x in sorted(free)]
        N = len(p.mf)
        jobs, pos, q = list(first_jobs), [2 * k + 1 for k in range(len(first_jobs))], 4 * ((len(first_jobs) + 1) // 2) + 1
        rest = []
        for k, piece in enumerate(later):
            while k < len(owner) and q < owner[k]:
                q += 4
            for jb in piece:
                if q < N and k < len(owner) and not rest:
                    jobs.append(jb)
                    pos.append(q)
                    q += 4
                else:
                    rest.append(jb)
        for jb in last_jobs:
            jobs.append(jb)
            pos.append(q)
            q += 4
        p.rest, p.dma_end = rest, q
        prev, pend = p.jobs(self.flat(jobs), pos, avoid={x - 1 for x in blk})
        p.scalars(pend, prev + 1, N)
        pre = []

        def place(ins, lo, use):
            for each, lead in ((1, LEAD), (2, LEAD), (2, LEAD - 2), (2, LEAD - 4)):
                c = [j for j in range(max(lo - 1, 0), use - lead + 1) if not p.g[j]['vm'] and (j + 1 not in blk or each == 2)
                     for _ in range(each - len(p.g[j]['ds']))]
                if len(c) >= len(ins) or lo == 0:
                    break
            assert len(c) >= len(ins) or lo == 0
            c = c[-len(ins):]
            pre.extend(ins[:len(ins) - len(c)])
            for j, x in zip(c, ins[len(ins) - len(c):]):
                p.g[j]['ds'].append(x)
        for n, src in enumerate(srcs):
            ins = [Ins('ds_read_b64_tr_b16 %s, v%d offset:%d' % (vr('a', WF + 8 * (n % 4) + 4 * kk + 2 * g, 2), vTR + x[1], (x[0] % 6) * 4096 + 2048 * g),
                       need=[x[2]]) for kk, x in enumerate(src) if isinstance(x, tuple) for g in range(2)]
            if ins:
                place(ins, blk[n - 3] if n >= 4 else 0, blk[n])
        for G, (tags, ak, *_) in enumerate(groups):
            if G == 0 or ak != groups[G - 1][1]:
                ins = ['ds_read_b128 %s, v%d offset:%d' % ((vr('a', AF + 32 * par[G] + 16 * kk + 4 * tb, 4),) + actf(k, tb)) for tb in range(4) for kk, k in enumerate(ak)]
                prev = [x for x in range(G) if par[x] == par[G]]
                lo = p.st[prev[-1] + 1] if prev else 0
                if G == 0:
                    act0 = [ins[k] for k in (0, 1, 3, 2, 4, 5, 7, 6)]
                    continue
                span = max(1, (p.st[G] - LEAD - lo) // len(ins))
                for k, x in enumerate(ins):
                    j = lo + k * span
                    while p.g[j]['vm'] or len(p.g[j]['ds']) >= 2 or (j + 1 in blk and span > 1):
                        j += 1
                    assert j < p.st[G] - 4 + k
                    p.g[j]['ds'].append(x)
        main, self.s = self.s, Stream()
        sync()
        bar, self.s = self.s.l, main
        for x in bar:
            if x.kind == 'bar':
                lg = [y for y in self.s.l if y.kind in ('dsr', 'dsw')]
                if lg:
                    lg[-1].tag = 'lastlds'
                self.put(pre)
                x.need = ['lastlds'] if lg else []
            self.s.add(x)
        self.put(act0)
        return p

    def part_store(self, reg, off, tag, base=sPO, vo=vACT):
        return Job(Ins('buffer_store_dwordx4 %s, v%d, %s, s%d offen sc1' % (vr('v', reg, 4), vo, srd(SWS), sT1), tag=tag),
                   pre=['s_add_u32 s%d, s%d, 0x%x' % (sT1, base, off)])

    def gather(self, f, dst, soff, off, flags):
        return [Job('buffer_load_dwordx4 %s, v%d, %s, s%d offen offset:%d %s' % (vr(f, dst + 4 * k, 4), vACT, srd(SWS), sRET, 1024 * (k % 4), flags),
                    pre=['s_add_u32 s%d, s%d, 0x%x' % (sRET, soff, off + 1024 * k)] if k % 4 == 0 else []) for k in range(16)]

    LR, LB = vW1, vFLAG
    XS, XW, RA, F1 = vP + 8, vP + 9, vP + 10, vT + 4

    def prologue(self):
        e = self.s
        D = vr('a', aDUMMY, 4)
        e('@sec prologue')
        bufs = [(SX, 0, 0x200000), (SWQ, 24, 0x400000), (SWS, 96, 0x10000000), (SW1, 48, 0x80000), (SW2, 56, 0x80000), (SDBG, 88, 256), (SK, 8, 0x400000),
                (SV, 16, 0x400000), (SWO, 32, 0x400000), (SW3, 64, 0x1c0000), (SW4, 72, 0x1c0000), (SOUT, 80, 0x200000)]
        for b, off, _ in bufs[:2]:
            e('s_load_dwordx2 s[%d:%d], s[0:1], %d' % (b, b + 1, off))
        e('s_cmp_ge_u32 s2, 256\ns_cbranch_scc1 L_end')
        if self.o.get('diag', '').startswith('start'):
            e('s_memrealtime s[98:99]')
        if self.prof:
            e('v_accvgpr_write_b32 a%d, 0\nv_accvgpr_write_b32 a%d, 0' % (aPROF, aPROF + 1))
        e('s_getpc_b64 s[%d:%d]\nL_pc:' % (SCODE, SCODE + 1))
        e('s_mov_b32 s%d, L_code_end-L_pc-16' % (SCODE + 2))
        e('s_lshr_b32 s%d, s2, 3\nv_lshlrev_b32 v%d, 4, v0\nv_lshl_add_u32 v%d, s%d, 12, v%d' % (sT, vT + 3, vT, sT, vT + 3))
        self.put(self.code_addr()[1:])
        self.emit_jobs(self.code_warm())
        e('v_readfirstlane_b32 s%d, v0\ns_and_b32 s%d, s2, 7\nv_and_b32 v0, 63, v0' % (sW, sJ))
        e('s_lshr_b32 s%d, s%d, 6' % (sW, sW))
        e('s_lshl_b32 s%d, s%d, 2\ns_add_u32 s%d, s%d, s%d' % (sTBG, sT, sTBG, sTBG, sW))
        e('v_lshrrev_b32 v%d, 2, v%d\nv_and_b32 v%d, 3, v%d' % (vT + 1, vL, vT + 2, vL))
        e('v_lshlrev_b32 v%d, 10, v%d\nv_lshl_or_b32 v%d, v%d, 4, v%d' % (vT + 4, vT + 1, vT + 4, vT + 2, vT + 4))
        e('v_lshlrev_b32 v%d, 4, v%d' % (vACT, vL))
        e('s_lshl_b32 s%d, s%d, 14\ns_lshl_b32 s%d, s%d, 13\ns_lshl_b32 s%d, s%d, 10' % (sCNT, sTBG, sVO, sTBG, sT1, sJ))
        e('s_mov_b32 s%d, 0x200000\ns_mov_b32 s%d, 0x20000' % (SX + 2, SX + 3))
        e('s_sub_u32 s%d, 0x400000, s%d\ns_mov_b32 s%d, 0x20000' % (SWQ + 2, sT1, SWQ + 3))
        e('s_waitcnt lgkmcnt(0)')
        self.stamp('kernarg')
        e('s_add_u32 s%d, s%d, s%d\ns_addc_u32 s%d, s%d, 0' % (SWQ, SWQ, sT1, SWQ + 1, SWQ + 1))
        for b, off, _ in bufs[2:]:
            e('s_load_dwordx2 s[%d:%d], s[0:1], %d' % (b, b + 1, off))
        wl = [Job('buffer_load_dwordx4 %s, v%d, %s, s%d offen' % (D, vACT, srd(SWQ), sVO), post=['s_add_u32 s%d, s%d, 0x100000' % (sVO, sVO)]) for i in range(4)]
        nf = self.opt('wq_first', 2)
        self.emit_jobs(wl[:nf])
        xl = [Job('buffer_load_dwordx4 %s, v%d, %s, s%d offen offset:%d' % (vr('v', vX + 4 * ks, 4), vT + 4, srd(SX), sCNT, 64 * ks)) for ks in range(16)]
        nx = self.opt('x_first', 10)
        self.emit_jobs(xl[:nx])
        self.stamp('x issued')
        mark = len(e.l)

        def lin(dst, c, *terms):
            for k, (reg, mul) in enumerate(terms):
                e('s_mul_i32 s%d, s%d, 0x%x' % (dst if k == 0 else sT0, reg, mul & 0xffffffff))
                if k:
                    e('s_add_u32 s%d, s%d, s%d' % (dst, dst, sT0))
            if c:
                e('s_add_u32 s%d, s%d, 0x%x' % (dst, dst, c))
        lin(sRING, WREG, (sW, WWAVE))
        lin(sW2K, 0, (sW, 2048))
        e('v_mov_b32 v%d, 1' % vONE)
        XS, XW, RA = self.XS, self.XW, self.RA
        e('v_lshlrev_b32 v%d, 1, v%d\nv_xor_b32 v%d, v%d, v%d\nv_lshl_or_b32 v%d, v%d, 4, v%d' % (vT, vT + 2, vT, vT, vT + 1, vT, vT + 2, vT))
        e('v_lshlrev_b32 v%d, 4, v%d\nv_lshl_add_u32 v%d, s%d, 14, v%d' % (vT, vT, XW, sW, vT))
        e('v_lshrrev_b32 v%d, 4, v%d\nv_lshlrev_b32 v%d, 5, v%d\nv_xor_b32 v%d, v%d, v%d' % (vT, vL, vT, vT, XS, vT, vACT))
        e('v_lshrrev_b32 v%d, 5, v%d\nv_and_b32 v%d, 15, v%d\nv_mul_u32_u24 v%d, 18, v%d\nv_xor_b32 v%d, v%d, v%d' % (vT, vL, vT + 1, vL, vT, vT, vT, vT, vT + 1))
        e('v_bfe_u32 v%d, v%d, 4, 1\nv_lshl_or_b32 v%d, v%d, 1, v%d\nv_lshlrev_b32 v%d, 3, v%d' % (vT + 1, vL, vT, vT, vT + 1, vT, vT))
        lin(sT1, 0, (sW, 16384), (sJ, 1024))
        e('v_add_u32 v%d, s%d, v%d\nv_xor_b32 v%d, 64, v%d' % (RA, sT1, vT, RA + 1, RA))
        C, RN, RK = vT, vT + 1, vT + 2
        e('v_and_b32 v%d, 7, v%d\nv_bfe_u32 v%d, v%d, 4, 2\nv_lshlrev_b32 v%d, 1, v%d\nv_xor_b32 v%d, v%d, v%d' % (C, vL, RN, vL, RN, RN, C, C, RN))
        e('v_lshlrev_b32 v%d, 4, v%d\nv_lshrrev_b32 v%d, 3, v%d' % (C, C, RN, vL))
        e('v_and_b32 v%d, 4, v%d\nv_add_u32 v%d, v%d, v%d' % (RK, RN, RK, RK, RN))
        e('v_lshl_add_u32 v%d, v%d, 13, v%d\nv_lshl_add_u32 v%d, s%d, 8, v%d' % (vDB, RK, C, vDB, sW, vDB))
        e('v_lshl_add_u32 v%d, v%d, 10, v%d\nv_lshl_add_u32 v%d, s%d, 17, v%d' % (vW1, RK, C, vW1, sW, vW1))
        e('v_lshl_add_u32 v%d, v%d, 10, v%d' % (vWN, RN, C))
        e('v_and_b32 v%d, 64, v%d\nv_mad_u32_u24 v%d, v%d, 7, v%d' % (RK, C, vW2, RK, vWN))
        W1W, W2W = vP, vP + 1
        e('v_mov_b32 v%d, v%d\nv_mov_b32 v%d, v%d' % (W1W, vWN, W2W, vW2))
        e('v_lshl_add_u32 v%d, s%d, 17, v%d\nv_lshl_add_u32 v%d, s%d, 7, v%d' % (vW2, sW, vW2, vWN, sW, vWN))
        e('v_mul_u32_u24 v%d, 3584, v%d\nv_lshl_add_u32 v%d, s%d, 7, v%d\nv_add_u32 v%d, v%d, v%d' % (RN, RN, C, sW, C, vW3, RN, C))
        e('v_mov_b32 v%d, 0x%x' % (vT + 5, OOB))
        lin(sKO, 0, (sT, 16384))
        RS, Z = vP + 2, vP + 3
        e('v_lshrrev_b32 v%d, 2, v%d\nv_lshlrev_b32 v%d, 17, v%d' % (RS, vL, RS, RS))
        e('v_and_b32 v%d, 3, v%d\nv_lshl_or_b32 v%d, v%d, 10, v%d' % (Z, vL, RS, Z, RS))
        e('v_cmp_gt_u32 vcc, 0x80, v%d' % (vT + 3))
        lin(sT1, 0, (sTBG, 1024), (sJ, 128))
        e('v_cndmask_b32 v%d, v%d, v%d, vcc' % (RS, vT + 5, RS))
        e('v_lshrrev_b32 v%d, 9, v%d\nv_cmp_eq_u32 vcc, 1, v%d' % (Z, vT + 3, Z))
        e('v_lshlrev_b32 v%d, 2, v%d\nv_add_u32 v%d, 0x%x, v%d' % (Z, vL, Z, 0x40000 - 128, Z))
        e('v_cndmask_b32 v%d, v%d, v%d, vcc' % (RS, RS, Z))
        e('v_cmp_eq_u32 vcc, 0, v%d\nv_mov_b32 v%d, s%d\ns_add_u32 s%d, s%d, 0x%x' % (vL, vFLAG, sT1, sRET, sT1, FLAG_OFF))
        e('v_cndmask_b32 v%d, v%d, v%d, vcc' % (vFLAG, vT + 5, vFLAG))
        e('v_cmp_eq_u32 vcc, 0, v%d\nv_mov_b32 v%d, 0\ns_add_u32 s%d, s%d, 0x%x' % (vT + 3, Z, sSTO, sT1, ST_OFF))
        e('v_cndmask_b32 v%d, v%d, 0, vcc' % (vPOFF, vT + 5))
        e('v_and_b32 v%d, 15, v%d\nv_lshrrev_b32 v%d, 4, v%d' % (vT, vL, vT + 1, vL))
        e('v_xor_b32 v%d, v%d, v%d\nv_lshlrev_b32 v%d, 4, v%d\nv_lshl_or_b32 v%d, v%d, 8, v%d' % (vT + 1, vT + 1, vT, vT + 1, vT + 1, vKA, vT, vT + 1))
        for ks in range(1, 4):
            e('v_xor_b32 v%d, 0x%x, v%d' % (vKA + ks, 64 * ks, vKA))
        e('v_lshrrev_b32 v%d, 2, v%d\nv_and_b32 v%d, 7, v%d\nv_lshlrev_b32 v%d, 5, v%d' % (vT, vL, vT + 1, vT, vT + 1, vT + 1))
        e('v_lshl_or_b32 v%d, v%d, 8, v%d\nv_and_b32 v%d, 3, v%d\nv_lshl_or_b32 v%d, v%d, 3, v%d' % (vT, vT, vT + 1, vT + 1, vL, vT, vT + 1, vT))
        for db in range(4, 8):
            e('v_xor_b32 v%d, 0x%x, v%d' % (vTR + db, VRING | db << 5, vT))
        self.put(self.waddr(vTR, vT, 's%d' % sRING))
        e('v_bfe_i32 v%d, v%d, 1, 1\nv_and_b32 v%d, 0x3f803f80, v%d\nv_xor_b32 v%d, 0x3f803f80, v%d' % (vT, vL, vT + 1, vT, vT + 2, vT + 1))
        e('v_bfe_i32 v%d, v%d, 0, 1\nv_and_b32 v%d, 0xaaaaaaaa, v%d\nv_or_b32 v%d, 0x44444444, v%d' % (vT, vL, vT, vT, vIDX, vT))
        for r in range(4):
            e('v_accvgpr_write_b32 a%d, v%d\nv_accvgpr_write_b32 a%d, v%d' % (aONES + r, vT + 2, aONE2 + r, vT + 1))
        for r in range(8):
            e('v_accvgpr_write_b32 a%d, 0' % (aL + r))
        lin(sHO, 0, (sTBG, 1 << 14), (sJ, 1 << 11))
        lin(sX1I, X1_OFF, (sTBG, 1 << 14))
        lin(sX1O, 0, (sJ, 1 << 10), (sX1I, 1))
        lin(sPO, 0, (sT, 1 << 19), (sJ, 1 << 11), (sW, 1 << 17))
        lin(sPI, 0, (sT, 1 << 19), (sJ, 1 << 16), (sW, 1 << 14))
        lin(sCF, FLAG_OFF + 0x40000, (sT, 1 << 12), (sJ, 1 << 7))
        lin(sFP, FLAG_OFF + 0x40000, (sT, 1 << 12), (sW, 256), (sJ, 4))
        lin(sXO, 0, (sTBG, 1 << 14), (sJ, 64))
        lin(sCW, 0, (sTBG, 1024))
        lin(sW3W, 0, (sTBG, 4 * 3584))
        lin(sWOW, 0, (sTBG, 4096))
        e('s_lshr_b32 s%d, s%d, 1\ns_lshl_b32 s%d, s%d, 13' % (sWSH, sTBG, sWSH, sWSH))
        e('s_mov_b32 s%d, %s\ns_mov_b32 s%d, %s\ns_mov_b32 s%d, 0' % (sC0, f2u(-K2), sC0 + 1, f2u(-K2), sPASS))
        e('s_waitcnt lgkmcnt(0)')
        shift = {SW1: [(sJ, 128)], SW2: [(sJ, 64)], SK: [(sJ, 1 << 19)], SV: [(sJ, 1 << 19)], SWO: [(sJ, 1 << 19)]}
        for b, _, size in bufs[2:]:
            if b in shift:
                lin(sT1, 0, *shift[b])
                e('s_add_u32 s%d, s%d, s%d\ns_addc_u32 s%d, s%d, 0\ns_sub_u32 s%d, 0x%x, s%d' % (b, b, sT1, b + 1, b + 1, b + 2, size, sT1))
            else:
                e('s_mov_b32 s%d, 0x%x' % (b + 2, size))
            e('s_mov_b32 s%d, 0x20000' % (b + 3))
        e('s_mov_b32 s%d, s%d\ns_mov_b32 s%d, s%d\ns_mov_b32 s%d, 0x200000\ns_mov_b32 s%d, 0x20000' % (SH, SWS, SH + 1, SWS + 1, SH + 2, SH + 3))
        ns = self.opt('x_setup', 0)
        setup, e.l = e.l[mark:], e.l[:mark]
        self.sprinkle(setup, xl[nx:nx + ns], start=self.opt('xs_start', 20), every=self.opt('xs_every', 25))
        self.xrest = xl[nx + ns:]
        self.early = wl[nf:] + [Job(Ins('buffer_store_dword v%d, v%d, %s, s%d offen sc1' % (Z, RS, srd(SWS), sRET), tag='reset')),
                                Job('buffer_load_dwordx4 %s, v%d, %s, s%d offen' % (D, W1W, srd(SW1), sWSH)),
                                Job('buffer_load_dwordx4 %s, v%d, %s, s%d offen' % (D, W2W, srd(SW2), sWSH))]
        self.early += (self.warm(SK, vACT, sWOW, (0, 1024, 2048, 3072)) + self.warm(SV, vACT, sWOW, (0, 1024, 2048, 3072)))[:self.opt('kv_early', 2)]
        self.stamp('setup')
        self.touch(0)
        self.stamp('touched')
        e('s_branch L_go\n.p2align 12\nL_go:')

    def p0(self):
        e = self.s
        e('@sec P0 layernorm')
        P = lambda b: vr('v', b, 2)
        A, X0 = vS, vS + 8
        o = ['v_lshlrev_b32 v%d, 16, v%d' % (X0 + 1, vX), 'v_mov_b32_dpp v%d, v%d quad_perm:[0,0,0,0] row_mask:0xf bank_mask:0xf' % (X0, X0 + 1)]
        for k in range(64):
            d = vACC + 2 * k
            o += ['v_lshlrev_b32 v%d, 16, v%d' % (d, vX + k), 'v_and_b32 v%d, 0xffff0000, v%d' % (d + 1, vX + k),
                  'v_pk_add_f32 %s, %s, %s op_sel_hi:[1,0] neg_lo:[0,1] neg_hi:[0,1]' % (P(d), P(d), P(X0))]
            if k == 0:
                o += ['v_pk_mul_f32 %s, %s, %s' % (P(A + 2), P(d), P(d))]
            else:
                o += ['v_pk_add_f32 %s, %s, %s' % (P(A), P(A) if k > 1 else P(vACC), P(d)), 'v_pk_fma_f32 %s, %s, %s, %s' % (P(A + 2), P(d), P(d), P(A + 2))]
        wq = []
        for k in range(6):
            wq += self.whalf('wq', self.pair_order(0)[k], k)
        nd = self.opt('p1_dma', 2)
        jobs = []
        while self.xrest or (wq and nd):
            jobs += self.xrest[:1] + wq[:nd if self.xrest else nd + 1]
            wq = wq[nd if self.xrest else nd + 1:]
            self.xrest = self.xrest[1:]
        self.sprinkle(o, jobs, start=self.opt('p1_start', 2), every=20 // (nd + 1) if nd else 10)
        self.stamp('x landed')
        o = ['v_add_f32 v%d, v%d, v%d' % (A, A, A + 1), 'v_add_f32 v%d, v%d, v%d' % (A + 2, A + 2, A + 3)]
        for qp in ('[1,0,3,2]', '[2,3,0,1]'):
            for r in (A, A + 2):
                o.append('v_add_f32_dpp v%d, v%d, v%d quad_perm:%s row_mask:0xf bank_mask:0xf' % (r, r, r, qp))
        M, V, R = A, A + 2, A + 4
        o += ['v_mul_f32 v%d, %s, v%d' % (M, f2u(1.0 / 512), M), 'v_mul_f32 v%d, %s, v%d' % (V, f2u(1.0 / 512), V),
              'v_fma_f32 v%d, -v%d, v%d, v%d' % (V, M, M, V), 'v_max_f32 v%d, 0, v%d' % (V, V),
              'v_add_f32 v%d, %s, v%d' % (R, f2u(1e-5), V), 'v_rsq_f32 v%d, v%d' % (R, R),
              'v_and_b32 v%d, 0xf0, v%d' % (A + 7, vACT),
              'v_mul_f32 v%d, v%d, v%d' % (A + 6, R, R), 'v_fmaak_f32 v%d, v%d, v%d, %s' % (A + 6, A + 6, V, f2u(1e-5)), 'v_rsq_f32 v%d, v%d' % (A + 6, A + 6),
              'v_mul_f32 v%d, %s, v%d' % (R, f2u(CSCALE), R), 'v_mul_f32 v%d, %s, v%d' % (A + 6, f2u(1.0 / CSCALE), A + 6),
              'v_mul_f32_e64 v%d, -v%d, v%d' % (M, M, R), 'ds_bpermute_b32 v%d, v%d, v%d' % (self.F1, A + 7, A + 6)]
        for ks in range(16):
            for k in range(4 * ks, 4 * ks + 4):
                d = P(vACC + 2 * k)
                o.append('v_pk_fma_f32 %s, %s, %s, %s op_sel_hi:[1,0,0]' % (d, d, P(R), P(M)))
            for k in range(4 * ks, 4 * ks + 4):
                o.append('v_cvt_pk_bf16_f32 v%d, v%d, v%d' % (vX + k, vACC + 2 * k, vACC + 2 * k + 1))
            o.append('ds_write_b128 v%d, %s offset:%d' % (self.XW, vr('v', vX + 4 * ks, 4), 1024 * ks))
        nw, nl = 4 * self.opt('ln_w', 4), self.opt('ln_jobs', 22)
        jobs = wq[:nw] + self.early + wq[nw:]
        self.p2_first = jobs[nl:]
        self.sprinkle(o, jobs[:nl], start=self.opt('ln_start', 0), every=self.opt('ln_every', 2 if nd else 7))
        for nb in range(4):
            e('ds_read_b64 %s, v%d offset:%d' % (vr('a', aRES + 2 * nb, 2), self.RA + (nb & 1), 8192 * (nb >> 1) + 512 * (nb & 1)))
        e('v_lshl_add_u32 v%d, s%d, 14, v%d' % (self.XW, sW, self.XS))

    def kv_dma(self, which, unit, tag):
        buf, ring, so, vo = (SK, KRING, sKO, vDB) if which == 'K' else (SV, VRING, sVO, vDB + 2)
        fl = self.o.get('kvflag', 'nt_').replace('_', ' ') if self.kv_nt else ''
        m0 = 's_add_u32 m0, s%d, 0x%x' % (sW2K, ring + 8192 * (unit & 3))
        return [Job(Ins('buffer_load_dwordx4 v%d, %s, s%d offen %slds' % (vo, srd(buf), so, fl), tag=tag), m0=m0),
                Job(Ins('buffer_load_dwordx4 v%d, %s, s%d offen offset:1024 %slds' % (vo + 1, srd(buf), so, fl), tag=tag), m0=m0,
                    post=['s_add_u32 s%d, s%d, 0x2000' % (so, so), 's_and_b32 s%d, s%d, 0x7ffff' % (so, so)])]

    def pair_order(self, early):
        sg = [(kp, hf) for kp in range(8 - early) for hf in range(2)] + [(kp, hf) for hf in range(2) for kp in range(8 - early, 8)]
        return [2 * (2 * kp + kk) + hf for kp, hf in sg for kk in range(2)]

    def pair_groups(self, name, od):
        return [(['%s%d' % (name, k) for k in od[h:h + 2]], [k >> 1 for k in od[h:h + 2]],
                 [vACC + 64 * (od[h] & 1) + 16 * b for b in range(4)], od[h] < 2) for h in range(0, 32, 2)]

    def p2(self):
        e = self.s
        e('@sec P2')
        od = self.pair_order(0)
        later = [self.whalf('wq', od[h], h) if h < 32 else self.whalf('w1', h - 32, h) for h in range(6, 36)]
        if self.opt('kvwarm', 0):
            later[25] = later[25] + self.warm(SK, vACT, sWOW, (0, 1024, 2048, 3072)) + self.warm(SV, vACT, sWOW, (0, 1024, 2048, 3072))
        p = self.gemm(0, self.pair_groups('wq', od), lambda k, tb: (self.XS, (tb * 16 + k) * 1024),
                      later, self.p2_first, lambda: (self.s('s_barrier', need=['*lg']), self.stamp('P0 end')))
        self.q_first = p.rest
        for ks in range(16):
            p.g[16 * (ks + 2) + 7]['ds'].append('ds_read_b128 %s, v%d offset:%d' % (vr('v', vX + 4 * ks, 4), self.XW, 1024 * ks))
        assert not p.fill(self.waddr(vP + 12, vT, '0x%x' % (WREG + 8192)) + ['v_mov_b32 v%d, %s' % (vP + 10, f2u(-K1))], 16)
        f = ('v_lshrrev_b32 v%d, 4, v%d\nv_and_b32 v%d, 15, v%d\nv_lshl_add_u32 v%d, v%d, 8, s%d\n' % (vT, vL, vT + 1, vL, vT + 2, vT, sW2K) +
             'v_bfe_u32 v%d, v%d, 8, 4\nv_xor_b32 v%d, v%d, v%d\n' % (vT + 3, vT + 2, vT + 3, vT + 3, vT + 1) +
             'v_lshl_add_u32 v%d, v%d, 4, v%d\nv_xor_b32 v%d, 64, v%d\n' % (vDB, vT + 3, vT + 2, vDB + 1, vDB) +
             'v_lshlrev_b32 v%d, 1, v%d\nv_xor_b32 v%d, v%d, v%d\n' % (vT + 3, vT, vT + 3, vT + 3, vT + 1) +
             'v_lshl_add_u32 v%d, v%d, 4, v%d\nv_xor_b32 v%d, 0x80, v%d' % (vDB + 2, vT + 3, vT + 2, vDB + 3, vDB + 2)).split('\n')
        assert not p.fill(f, 32 * 14)
        assert not p.fill(self.vaddr_restore(), 16 * 31 + 2)
        p.jobs(self.flat([Job(Ins('buffer_atomic_add v%d, v%d, %s, s%d offen sc1' % (vONE, vPOFF, srd(SDBG), sT0), need=['reset']),
                              pre=['s_lshl_b32 s%d, s%d, 3' % (sT0, sT), 's_mov_b32 s%d, s%d' % (sVO, sKO)])]), p.empty(16 * 31 + 10, 1), lo=16 * 31 + 5)
        p.emit(self)
        self.stamp('P2 end')

    def q_p1(self):
        e = self.s
        e('@sec Q epilogue')
        if self.o.get('diag', '').startswith('xcc'):
            e('s_getreg_b32 s98, hwreg(HW_REG_XCC_ID)\ns_sub_u32 s98, s98, s%d\ns_and_b32 s98, s98, 7\ns_lshl_b32 s98, 1, s98' % sJ)
            e('v_mov_b32 v%d, s98\nbuffer_atomic_or v%d, v%d, %s, 0 offen offset:4 sc1' % (vT, vT, vPOFF, srd(SDBG)))
        e('s_barrier', need=['*lg'])
        jobs = self.q_first + self.tile_dma(0, 'kv0')
        o, wr = [], []
        fr = [(qb, ks) for qb in range(4) for ks in range(4)]
        for n in range(0, 16, 2):
            ts = []
            for qb, ks in fr[n:n + 2]:
                a = vACC + 32 * ks + 4 * qb
                o += self.pack(a + 16, a, a + 16)
                ts.append(a + 16)
            for op in ('v_permlane32_swap_b32', 'v_permlane16_swap_b32'):
                for t in ts:
                    o += ['%s v%d, v%d' % (op, t, t + 2), '%s v%d, v%d' % (op, t + 1, t + 3)]
            for (qb, ks), t in zip(fr[n:n + 2], ts):
                (wr if self.opt('q_in_p1', 1) else o).extend('v_accvgpr_write_b32 a%d, v%d' % (aQ + 16 * qb + 4 * ks + r, t + r) for r in range(4))
        self.sprinkle(o, jobs, every=self.opt('q_every', 4))
        self.stamp()
        e('@sec P1')
        e('s_barrier', need=['w13'])
        self.g16('v', vS, 0, vP + 12, wr)
        o = []
        for nb in range(4):
            o += self.gelu4(vS + 4 * nb, vX + 2 * nb, vP + 4 * (nb & 1), vP + 10, scale=self.F1)
        self.sprinkle(o, self.tile_dma(1, 'kv1'), every=11)
        for p in range(2):
            e('buffer_store_dwordx4 %s, v%d, %s, s%d offen offset:%d sc1' % (vr('v', vX + 4 * p, 4), vACT, srd(SH), sHO, 1024 * p), tag='hst')
        self.stamp()

    def p3(self, kreads):
        e = self.s
        self.stamp()
        e('@sec P3')
        acc = aK
        self.put(self.waddr(vT, vT + 4, '0x%x' % (WREG + 8192)))
        self.g16('a', acc, aK + 32, vT)
        X, R, PK = vX, vX + 16, vX + 32
        P = lambda b: vr('v', b, 2)
        for k in range(8):
            e('v_accvgpr_read_b32 v%d, a%d' % (PK + k, aRES + k))
        for k in range(8):
            e('v_lshlrev_b32 v%d, 16, v%d\nv_and_b32 v%d, 0xffff0000, v%d' % (R + 2 * k, PK + k, R + 2 * k + 1, PK + k))
        e('v_mov_b32 v%d, %s' % (PK + 8, f2u(1.0 / CSCALE)))
        for k in range(16):
            e('v_accvgpr_read_b32 v%d, a%d' % (X + k, acc + k))
        mark = len(e.l)
        for k in range(8):
            e('v_pk_fma_f32 %s, %s, %s, %s op_sel_hi:[1,0,1]' % (P(X + 2 * k), P(R + 2 * k), P(PK + 8), P(X + 2 * k)))
        for k in range(8):
            e('v_cvt_pk_bf16_f32 v%d, v%d, v%d' % (PK + k, X + 2 * k, X + 2 * k + 1))
        e('s_add_u32 s%d, s%d, 0x2000' % (sT1, sX1O))
        for p in range(2):
            e('buffer_store_dwordx4 %s, v%d, %s, s%d offen sc1' % (vr('v', PK + 4 * p, 4), vACT, srd(SWS), sT1 if p else sX1O))
        for k in range(8):
            e('v_lshlrev_b32 v%d, 16, v%d\nv_and_b32 v%d, 0xffff0000, v%d' % (X + 2 * k, PK + k, X + 2 * k + 1, PK + k))
            e('v_accvgpr_write_b32 a%d, v%d' % (aX1 + k, PK + k))
        for k in range(4):
            e('v_pk_add_f32 %s, %s, %s' % (P(R + 2 * k), P(X + 2 * k), P(X + 8 + 2 * k)))
        e('v_pk_add_f32 %s, %s, %s\nv_pk_add_f32 %s, %s, %s' % (P(R), P(R), P(R + 2), P(R + 4), P(R + 4), P(R + 6)))
        e('v_pk_add_f32 %s, %s, %s\nv_add_f32 v%d, v%d, v%d' % (P(R), P(R), P(R + 4), R + 8, R, R + 1))
        self.put(self.lanesum(R + 8, R + 10))
        e('v_mul_f32 v%d, %s, v%d' % (R + 8, f2u(1.0 / 64), R + 8))
        for k in range(8):
            e('v_pk_add_f32 %s, %s, %s op_sel_hi:[1,0] neg_lo:[0,1] neg_hi:[0,1]' % (P(X + 2 * k), P(X + 2 * k), P(R + 8)))
        for k in range(8):
            e('v_pk_fma_f32 %s, %s, %s, %s' % (P(R), P(X + 2 * k), P(X + 2 * k), P(R)) if k else 'v_pk_mul_f32 %s, %s, %s' % (P(R), P(X), P(X)))
        e('v_add_f32 v%d, v%d, v%d' % (R + 9, R, R + 1))
        e('v_lshlrev_b32 v%d, 3, v%d\nv_mov_b32 v%d, 0x%x\nv_cmp_gt_u32 vcc, 16, v%d' % (R, vL, R + 1, OOB, vL))
        self.put(self.lanesum(R + 9, R + 10))
        e('v_cndmask_b32 v%d, v%d, v%d, vcc' % (R, R + 1, R))
        e('buffer_store_dwordx2 %s, v%d, %s, s%d offen sc1' % (P(R + 8), R, srd(SWS), sSTO), tag='x1st')
        epi, e.l = e.l[mark:], e.l[:mark]
        for k, x in enumerate(epi):
            if k % 16 == 0:
                self.put(kreads[k // 4:k // 4 + 4])
            e.add(x)
        self.stamp()
        e('@sec attention 1b')

    def krd(self, u, f, base=aK):
        kb, ks = f >> 2, f & 3
        return 'ds_read_b128 %s, v%d offset:%d' % (vr('a', base + 32 * (u & 1) + 4 * f, 4), vKA + ks, KRING + 8192 * (u & 3) + 4096 * kb)

    def vrd(self, u, h):
        db, g = h >> 1, h & 1
        return 'ds_read_b64_tr_b16 %s, v%d offset:%d' % (vr('a', aV + 32 * (u & 1) + 4 * db + 2 * g, 2), vTR + db, 8192 * (u & 3) + 4096 * g)

    def rowsum(self, d, ones, p):
        return 'v_smfmac_f32_16x16x64_bf16 %s, %s, %s, v%d' % (vr('a', aL + 4 * d, 4), vr('a', ones, 4), vr('v', p, 8), vIDX)

    KV_GAPS = ((5, 1), (5, 5), (5, 9), (5, 13), (6, 1), (6, 5), (6, 13), (7, 1))
    SIDE_GAPS = {7: (5, 13), 0: (1, 5, 9, 13), 1: (1, 5), 4: (9, 13)}

    def tile_dma(self, T, tag):
        return sum([self.kv_dma(w, 2 * T + k, tag + w) for w in 'KV' for k in range(2)], [])

    def segment(self, seg, NS, sched, loop=None, inline=None, extra=()):
        e = self.s
        NT, inline = NS // 8, inline or {}
        side, chk, fill = {}, {}, {}

        def slots(n):
            T, h = n >> 3, n & 7
            if n < 3 or n >= NS:
                return [1, 3, 5, 7] if n > NS else []
            g = list(self.SIDE_GAPS.get(h, ()))
            if T + 2 >= NT:
                g += [x for hh, x in self.KV_GAPS if hh == h]
            if T + 1 == NT:
                g += {4: [5], 6: [9], 7: [9]}.get(h, [])
            return sorted(g)

        def spread(jobs, n, stop, rate=4):
            jobs = list(jobs)
            while jobs:
                assert n < stop, 'side jobs do not fit'
                room = min(rate, len(slots(n)) - (n in chk) - len(side.get(n, [])))
                while room > 0 and jobs:
                    side.setdefault(n, []).append(jobs.pop(0))
                    room -= 1
                n += 1
        sched(spread, chk, fill)
        lab = 'L_attn%d' % seg
        plans, use = [], {}
        for n in range(NS + 3):
            T, h = n >> 3, n & 7
            p = Plan()
            if n < NS:
                for kb in range(2):
                    d = vr('v', vS + 8 * (n & 1) + 4 * kb, 4)
                    for i, ks in enumerate(range(3, -1, -1) if kb else range(4)):
                        j = p.add(mfma(d, vr('a', aK + 32 * (n & 1) + 16 * kb + 4 * ks, 4), vr('a', aQ + 16 * (h >> 1) + 4 * ks, 4), self.o.get('c0', '-4.0') if i == 0 else None))
                        use.setdefault(('K', T, n & 1, 4 * kb + ks), []).append((n, j))
            if n >= 3:
                m, dh = (n - 3) >> 1, (n - 3) & 1
                for db in range(4 * dh, 4 * dh + 4):
                    for i, kk in enumerate((1, 0) if db & 1 else (0, 1)):
                        j = p.add(mfma(vr('v', vACC + 16 * db + 4 * (m & 3), 4), vr('a', aV + 32 * kk + 4 * db, 4), vr('v', vP + 8 * (m & 1) + 4 * kk, 4),
                                       '0' if (m < 4 and seg == 0 and i == 0) else None))
                        use.setdefault(('V', m >> 2, kk, db), []).append((n, j))
            g, full = p.g, len(p.mf) == 16
            if 1 <= n <= NS:
                sb, pb = vS + 8 * ((n - 1) & 1), vP + 4 * ((n - 1) & 3)
                lag = 2 if n < 3 else 0
                for k in range(8):
                    g[2 * k if full else min(k + lag, 7)]['va'].append('v_exp_f32 v%d, v%d' % (sb + k, sb + k))
                    if k & 1:
                        g[2 * k + 1 if full else min(k + lag + 1, 7)]['va'].append('v_cvt_pk_bf16_f32 v%d, v%d, v%d' % (pb + k // 2, sb + k - 1, sb + k))
            jobs, pos = [], []
            self.kv_nt = False
            if seg and n < 2:
                jobs, pos = self.tile_dma(1, 'kv1')[4 * n:4 * n + 4], [0, 2, 4, 6]
            if T + 2 < NT and n < NS:
                for jb, (hh, x) in zip(self.tile_dma(T + 2, 'kv%d' % (T + 2)), self.KV_GAPS):
                    if hh == h:
                        jobs.append(jb)
                        pos.append(x)
            free = slots(n)
            if n in chk:
                g[free.pop()]['end'] += chk[n]
            jobs += side.get(n, [])
            pos += free[:len(side.get(n, []))]
            assert pos == sorted(pos)
            if full and h == 4:
                late_v = seg and T == 0
                g[14]['sc'].append(Ins('@need', need=(['kv%d%s' % (T + 1, 'K' if late_v else 'V')] if T + 1 < NT else []) + ['*lg']))
                g[15]['sc'].append('s_barrier')
            if seg and n == 9:
                g[0]['sc'].append(Ins('s_barrier', need=['kv1V']))
            if loop and loop[0] <= n < loop[1] and (n - loop[0]) % 16 == 15:
                g[10]['sc'].append('s_sub_u32 s%d, s%d, 1' % (sCNT, sCNT))
                g[12]['sc'].append('s_cmp_lg_u32 s%d, 0' % sCNT)
            prev, pend = p.jobs(self.flat(jobs), pos)
            p.scalars(pend, prev + 1, 10 if prev < 8 and full else len(g))
            plans.append(p)
        reads, pre, held = [], [], {}
        for (w, T, k, f), u in use.items():
            ins = [self.krd(2 * T + k, f)] if w == 'K' else [self.vrd(2 * T + k, 2 * f + x) for x in range(2)]
            if w == 'K' and 8 * T in inline:
                held.setdefault(8 * T, []).extend(ins)
            elif w == 'K' and T == 0 and k == 0:
                pre += ins
            else:
                reads.append((u[0], use[w, T - 1, k, f][-1] if T else (0, 0), ins))
        reads.sort()
        reads += [((NS + 3, 0), at, ins) for at, ins in extra]
        for first, (n, j), ins in reads:
            for x in ins:
                while True:
                    p = plans[n]
                    g = p.g[j]
                    if len(p.mf) == 16:
                        ok = j & 1 and p.cap(j) > 0
                    else:
                        ok = not g['vm'] and len(g['ds']) < 2
                    if ok:
                        break
                    n, j = (n, j + 1) if j + 1 < len(p.mf) else (n + 1, 0)
                g['ds'].append(x)
                assert (n, j) < first and not ((n & 7) == 4 and j > 8), (n, j)
        if loop:
            e('s_mov_b32 s%d, %d' % (sCNT, (loop[1] - loop[0]) // 16))
        e('s_barrier', need=['kv0V', '*lg'])
        self.put(pre)
        carry, dead = [], 0
        for n, p in enumerate(plans):
            if n in inline:
                inline[n](held[n])
            inloop = loop and loop[0] <= n < loop[1]
            if self.opt('astamp', 0) and n % 8 == 0 and not (loop and loop[0] <= n <= loop[1]) and n not in inline:
                self.stamp('s%d_%d' % (seg, n))
            if loop and n == loop[0]:
                self.stamp('pre')
            if inloop and (n - loop[0]) % 16 == 0:
                e('@rep %s %d' % (lab, n))
            if loop and n == loop[1]:
                e('@endrep ' + lab)
                self.stamp('loop')
            if n in fill:
                assert not carry
                carry, dead = fill[n]
            carry = p.fill(carry)
            if carry and n + 1 >= dead:
                p.g[-1]['va'] += carry
                carry = []
            if n >= 3 and n & 1:
                m = (n - 3) >> 1
                p.g[7 if len(p.mf) == 16 else 3]['end'].append(self.rowsum((m >> 1) & 1, aONE2 if m & 1 else aONES, vP + 8 * (m & 1)))
            if inloop and (n - loop[0]) % 16 == 15:
                p.g[15]['end'].append('s_cbranch_scc1 ' + lab)
            p.emit(self)
        self.stamp()

    def code_addr(self):
        return ['v_add_u32 v%d, s%d, v%d' % (vT, sCW, vACT), 'v_min_u32 v%d, s%d, v%d' % (vT, SCODE + 2, vT), 'v_mov_b32 v%d, 0' % (vT + 1),
                'v_lshl_add_u64 %s, %s, 0, s[%d:%d]' % (vr('v', vT, 2), vr('v', vT, 2), SCODE, SCODE + 1)]

    def code_warm(self):
        return [Job('global_load_dwordx4 %s, %s, off' % (vr('a', aDUMMY, 4), vr('v', vT, 2)))]

    def warm(self, buf, vo, so, offs):
        return [Job('buffer_load_dwordx4 %s, v%d, %s, s%d offen offset:%d' % (vr('a', aDUMMY, 4), vo, srd(buf), so, o)) for o in offs]

    def attention1(self):
        e = self.s
        e('@sec attention 1a')
        U, F, G = vX + 48, vT + 4, vT
        N1, P3 = self.opt('n1', 176), self.opt('p3', 40)
        L0, L1 = P3 + 8, N1 - 48
        f0 = ('v_and_b32 v%d, 3, v%d\nv_min_u32 v%d, 2, v%d\n' % (U, vL, U, U) +
              'v_add3_u32 v%d, v%d, s%d, -1\nv_med3_i32 v%d, v%d, 0, 31\nv_lshlrev_b32 v%d, 3, v%d' % (U, U, sT, U, U, vPOFF, U)).split('\n')
        f1 = ('v_bfe_u32 v%d, v%d, 1, 1\nv_lshl_add_u32 v%d, v%d, 1, -1\n' % (U, vL, U, U) +
              'v_bfe_u32 v%d, v%d, 3, 1\nv_mul_i32_i24 v%d, v%d, v%d\n' % (U + 1, vL, U, U, U + 1) +
              'v_add_u32 v%d, s%d, v%d\nv_max_i32 v%d, 0, v%d\nv_min_i32 v%d, 0x7f, v%d\n' % (U, sTBG, U, U, U, U, U) +
              'v_and_b32 v%d, 7, v%d\nv_lshl_or_b32 v%d, v%d, 3, v%d\n' % (U + 1, vL, U, U, U + 1) +
              'v_lshlrev_b32 v%d, 7, v%d\nv_add_u32 v%d, 0x%x, v%d' % (U, U, F, FLAG_OFF, U)).split('\n')
        f2 = ('v_and_b32 v%d, 15, v%d\nv_lshl_add_u32 v%d, s%d, 4, v%d\nv_and_b32 v%d, 48, v%d' % (U, vL, U, sTBG, U, U + 1, vL)).split('\n')
        for g, dlt in enumerate((-1, 1, -2, 2)):
            f2 += ['v_add_u32 v%d, %d, v%d' % (U + 2, dlt, U), 'v_and_or_b32 v%d, v%d, 15, v%d' % (U + 3, U + 2, U + 1),
                   'v_bfe_u32 v%d, v%d, 4, 8' % (U + 2, U + 2), 'v_lshl_or_b32 v%d, v%d, 10, v%d' % (U + 3, U + 2, U + 3),
                   'v_lshlrev_b32 v%d, 4, v%d' % (U + 3, U + 3), 'v_add_u32 v%d, 0x%x, v%d' % (G + g, 4096 * g, U + 3)]
        f3 = ('v_lshrrev_b32 v%d, 4, v%d\nv_and_b32 v%d, 15, v%d\nv_mul_u32_u24 v%d, 3584, v%d\n' % (vT, vL, vT + 1, vL, vT + 2, vT) +
              'v_lshl_add_u32 v%d, v%d, 4, v%d\nv_lshlrev_b32 v%d, 8, v%d\nv_lshl_or_b32 v%d, v%d, 3, v%d\n' % (vT + 3, vT + 1, vT + 2, vT, vT, vT, vT + 1, vT) +
              'v_lshl_add_u32 v%d, s%d, 10, v%d\nv_add_u32 v%d, 0x%x, v%d\n' % (vT, sTBG, vT, vT + 4, ST_OFF, vT) +
              'v_and_b32 v%d, 7, v%d\nv_lshl_or_b32 v%d, s%d, 3, v%d\n' % (vT, vL, vT, sTBG, vT) +
              'v_lshlrev_b32 v%d, 7, v%d\nv_add_u32 v%d, 0x%x, v%d' % (vT, vT, vPOFF, FLAG_OFF + 131072, vT)).split('\n')
        R, M, O = vT, vT + 1, vT + 2
        f3 += ['v_or_b32 v%d, s%d, v%d' % (M, sW, vL), 'v_cmp_eq_u32 vcc, 0, v%d' % M, 'v_mov_b32 v%d, 0x%x' % (O, OOB), 'v_mov_b32 v%d, 1' % R,
               'v_cndmask_b32 v%d, v%d, 0, vcc' % (M, O)]
        dbg = lambda op, off: Job('%s v%d, v%d, %s, s%d offen offset:%d %ssc1' % (op, R, M, srd(SDBG), sT2, off, 'sc0 ' * ('atomic' in op)),
                                  pre=['s_lshl_b32 s%d, s%d, 3' % (sT2, sJ) if off != 68 else 's_mov_b32 s%d, 0' % sT2])
        CB, SM = sT0, sT1
        slices = ['v_readfirstlane_b32 s%d, v%d' % (sRANK, vPRES), 'v_and_b32 v%d, 64, v%d' % (O, vWN), 's_sub_u32 s%d, s%d, 1' % (sRANK, sRANK),
                  's_and_b32 s%d, s%d, 7' % (sRANK, sRANK),
                  's_lshl_b32 s%d, s%d, 9' % (CB, sRANK), 's_min_u32 s%d, s%d, 0xd00' % (CB, CB),
                  's_add_u32 s%d, s%d, s%d' % (sW3W, sW3W, CB), 's_lshl_b32 s%d, s%d, 9' % (sT2, CB), 'v_add_u32 v%d, s%d, v%d' % (vW2, sT2, vWN),
                  's_cmp_ge_u32 s%d, 6' % sRANK, 's_cselect_b32 s%d, 1, 0' % SM, 's_cselect_b32 s%d, 10, 11' % sW4W, 's_cselect_b32 s%d, 1791, 0' % sSTEP,
                  's_lshl_b32 s%d, s%d, s%d' % (sW4W, sTBG, sW4W), 's_add_u32 s%d, s%d, s%d' % (sW4W, sW4W, sT2),
                  'v_mad_u32_u24 v%d, s%d, v%d, v%d' % (vW3, sSTEP, O, vW3), 's_lshl_b32 s%d, 0x%x, s%d' % (sSTEP, 32 * 3584, SM),
                  's_mul_i32 s%d, s%d, s%d' % (SM, SM, sW), 's_lshl_b32 s%d, s%d, 6' % (SM, SM), 's_sub_u32 s%d, s%d, s%d' % (CB, CB, SM),
                  'v_add_u32 v%d, s%d, v%d' % (vW3, CB, vW3),
                  's_sub_u32 s%d, s%d, s%d' % (sT2, sRANK, sJ), 's_lshl_b32 s%d, s%d, 11' % (sT2, sT2), 's_add_u32 s%d, s%d, s%d' % (sYO, sPO, sT2)]
        A, LR, LB, LT = vX + 56, self.LR, self.LB, vT + 4
        f4 = ['v_accvgpr_read_b32 v%d, a%d' % (A + r, aSTAT + r) for r in range(4)]
        f4 += ['v_add_f32 v%d, v%d, v%d' % (A + 4, A, A + 2)] + self.lanesum(A + 4, A + 5)
        f4 += ['v_mul_f32 v%d, 0x3e000000, v%d' % (A + 4, A + 4), 'v_sub_f32 v%d, v%d, v%d' % (A, A, A + 4), 'v_sub_f32 v%d, v%d, v%d' % (A + 2, A + 2, A + 4),
               'v_mul_f32 v%d, v%d, v%d' % (A, A, A), 'v_fmac_f32 v%d, v%d, v%d' % (A, A + 2, A + 2), 'v_add_f32 v%d, v%d, v%d' % (A + 1, A + 1, A + 3),
               'v_fmac_f32 v%d, 0x42800000, v%d' % (A + 1, A)] + self.lanesum(A + 1, A + 5)
        f4 += ['v_mov_b32 v%d, %s' % (LR, f2u(1e-5)), 'v_fmac_f32 v%d, %s, v%d' % (LR, f2u(1.0 / 512), A + 1), 'v_rsq_f32 v%d, v%d' % (LR, LR),
               'v_sub_f32 v%d, 0, v%d' % (A + 4, A + 4), 'v_mul_f32 v%d, v%d, v%d' % (LB, A + 4, LR)]
        f5, self.ln_done = [], self.opt('ln_fill', 5)
        for k in range(vX, vX + 4 * self.ln_done):
            f5 += ['v_lshlrev_b32 v%d, 16, v%d' % (LT, k), 'v_and_b32 v%d, 0xffff0000, v%d' % (k, k), 'v_fma_f32 v%d, v%d, v%d, v%d' % (LT, LT, LR, LB),
                   'v_fma_f32 v%d, v%d, v%d, v%d' % (k, k, LR, LB), 'v_cvt_pk_bf16_f32 v%d, v%d, v%d' % (k, LT, k)]
        f6 = ['v_lshl_add_u32 v%d, s%d, 14, v%d' % (vT + 3, sW, vACT)] + self.waddr(vTR, vT, 's%d' % sRING)
        f6 += ['v_mov_b32 v%d, v%d' % (vS + 6, LR), 'v_mov_b32 v%d, v%d' % (vS + 4, LB)]
        self.put(f0)

        def sched(spread, chk, fill):
            c0, c1 = 12, P3 - 20
            chk[c0] = self.poll_check(SDBG, 8) + [Ins('v_mov_b32 v%d, v%d' % (vPOFF, F))]
            chk[c1] = self.poll_check(SWS, 1)
            chk[L1 + 4] = self.poll_check(SWS, 1) + ['v_mov_b32 v%d, 132' % vPOFF, 'v_lshl_add_u32 v%d, s%d, 3, v%d' % (vPOFF, sJ, vPOFF)]
            chk[L1 + 7] = ['v_cmp_eq_u32 vcc, %d, v%d' % (self.opt('quant', 15), R), 'v_mov_b32 v%d, 1' % R, 'v_cndmask_b32 v%d, v%d, v%d, vcc' % (M, O, M)]
            chk[L1 + 15] = ['v_add_u32 v%d, 1, v%d' % (R, R)]
            chk[L1 + 28] = self.poll_check(SDBG, 0) + slices + self.code_addr()
            fill[4], fill[c0], fill[P3] = (f1, c0), (f2, c1 + 1), (f3, P3 + 6)
            fill[L1 + 12], fill[L1 + 23], fill[N1 + 2] = (f4, L1 + 23), (f5, N1 + 2), (f6, N1 + 3)
            spread([self.flag_store(0, ['hst'])], 4, 5)
            spread([self.poll_load(SDBG)], 7, 8)
            spread([self.poll_load(SWS)], c1 - 5, c1 - 4)
            w2 = []
            for k in range(4):
                w2 += self.whalf('w2', k, 2 + k)
            spread(w2, 4, P3 - 19)
            spread([Job('buffer_load_dwordx4 %s, v%d, %s, 0 offen offset:%d sc1' % (vr('v', vX + 4 * k, 4), G + (k >> 2), srd(SH), 1024 * (k & 3)))
                    for k in range(16)], c1 + 1, P3 - 3, 2)
            spread([self.flag_store(1, ['x1st'])], P3 + 4, P3 + 5)
            spread([self.poll_load(SWS), dbg('buffer_atomic_add', 4)], L1, L1 + 1)
            spread([dbg('buffer_atomic_add', 68)], L1 + 8, L1 + 9)
            spread([dbg('buffer_store_dword', 132)], L1 + 16, L1 + 17)
            spread([self.poll_load(SDBG)], L1 + 24, L1 + 25)
            spread([Job('buffer_load_dwordx2 %s, v%d, %s, 0 offen offset:%d sc1' % (vr('a', aSTAT + 2 * k, 2), vT + 4, srd(SWS), 128 * k)) for k in range(2)]
                   + self.gather('v', vX, sX1I, 0, 'sc1' + ' nt' * self.opt('nt1', 0)), L1 + 7, L1 + 29, 2)
            spread(self.warm(SW3, vT + 3, sW3W, (0, 256)) + self.warm(SW4, vACT, sW4W, (0, 1024)) + self.code_warm(), L1 + 31, L1 + 33, 3)
            spread(sum([self.whalf('w3', k, k, None) for k in range(self.opt('w3pre', 6))], []), N1 - self.opt('w3at', 9), N1 + 2)
        self.segment(0, N1, sched, loop=(L0, L1), inline={P3: self.p3})

    def h2a(self, tb, slot):
        return 16384 + (tb & 1) * 8192 + (tb >> 1) * 32768 + slot * 1024

    def mlp(self):
        e = self.s
        P = lambda b: vr('v', b, 2)
        e('@sec LN x1')
        o, wr = [], ['ds_write_b128 v%d, %s offset:%d' % (vT + 3, vr('v', vX + 4 * ks, 4), 1024 * ks) for ks in range(16)]
        for ks in range(self.ln_done, 16):
            t = vP + 8 * (ks & 1)
            for k in range(4):
                o += ['v_lshlrev_b32 v%d, 16, v%d' % (t + 2 * k, vX + 4 * ks + k), 'v_and_b32 v%d, 0xffff0000, v%d' % (t + 2 * k + 1, vX + 4 * ks + k)]
            if ks - self.ln_done < self.ln_done:
                o.append(wr[ks - self.ln_done])
            for k in range(4):
                o.append('v_pk_fma_f32 %s, %s, %s, %s op_sel_hi:[1,0,0]' % (P(t + 2 * k), P(t + 2 * k), P(vS + 6), P(vS + 4)))
            for k in range(4):
                o.append('v_cvt_pk_bf16_f32 v%d, v%d, v%d' % (vX + 4 * ks + k, t + 2 * k, t + 2 * k + 1))
            o.append(wr[ks])
        o += wr[16 - self.ln_done:self.ln_done]
        self.put(o)
        self.touch(1)
        self.stamp()
        e('s_cmp_ge_u32 s%d, 6\ns_cbranch_scc1 L_mlp_small' % sRANK)
        n0, names = self.nstamp, len(self.tail)
        main, self.s = self.s, Stream(known=['w3%d' % k for k in range(self.opt('w3pre', 6))])
        self.s('L_mlp_small:\ns_waitcnt vmcnt(0) lgkmcnt(0)')
        self.mlp_body(True)
        self.s('s_waitcnt vmcnt(0) lgkmcnt(0)\ns_branch L_mlp_done')
        self.s.insert_waits()
        self.s.pad_hazards()
        self.aside, self.s = self.s, main
        self.nstamp, self.tail[names:] = n0, []
        self.mlp_body(False)
        e('L_mlp_done:')

    def mlp_body(self, small):
        e = self.s
        P = lambda b: vr('v', b, 2)
        e('@sec P5')
        n3 = 8 if small else 16
        sync = lambda: self.s('s_barrier', need=['*lg'])
        piece = lambda h: self.whalf('w3', h, h, small) if h < n3 else self.whalf('w4', h - n3, h, small)
        groups = [(['w3%d' % (k // 2)] if small else ['w3%d' % k, 'w3%d' % (k + 1)], [k, k + 1], [vX + 16 * b for b in range(n3 // 4)], k == 0) for k in range(0, 16, 2)]
        p = self.gemm(0, groups, lambda k, tb: (vACT, (tb * 16 + k) * 1024), [piece(h) for h in range(6, n3 + 6)], sum([piece(h) for h in range(self.opt('w3pre', 6), 6)], []), sync)
        HW, KC = vT, vT + 2
        f = ('v_lshl_add_u32 v%d, s%d, %d, v%d\nv_mov_b32 v%d, %s\n' % (HW, sW, 10 if small else 11, vACT, KC, f2u(-K1)) +
             'v_lshlrev_b32 v%d, 7, v%d\nv_mov_b32 v%d, 0x%x\nv_cmp_gt_u32 vcc, 2, v%d\n' % (vS, vL, vS + 1, OOB, vL) +
             'v_and_b32 v%d, 7, v%d\nv_lshl_add_u32 v%d, v%d, 2, s%d\nv_cndmask_b32 v%d, v%d, v%d, vcc\n' % (vS + 2, vL, vPOFF, vS + 2, sCF, vFLAG, vS + 1, vS) +
             'v_and_b32 v%d, 15, v%d\nv_lshlrev_b32 v%d, 10, v%d\n' % (vS, vL, vS, vS) +
             'v_lshrrev_b32 v%d, 4, v%d\nv_lshl_or_b32 v%d, v%d, 3, v%d' % (vS + 1, vL, vW1, vS + 1, vS)).split('\n')
        assert not p.fill(f)
        p.emit(self)
        self.stamp()
        e('@sec gelu')
        e('s_barrier')
        o, n = [], 0
        for pp in range(n3 // 8):
            for tb in range(4):
                d = vS + 4 * (n % 4)
                for g in range(2):
                    o += self.gelu4(vX + 16 * (2 * pp + g) + 4 * tb, d + 2 * g, vP + 4 * g, KC)
                n += 1
                o.append('ds_write_b128 v%d, %s offset:%d' % (HW, vr('v', d, 4), self.h2a(tb, pp)))
        self.put(o)
        self.stamp()
        e('@sec P7')
        accB, ng = (vS, vP, vX, vX + 32), n3 // 4
        groups = [(['w4%d' % (2 * (ng * ps + k) + i) for i in range(2)], [2 * k, 2 * k + 1], accB if ps else [vX + 16 * b for b in range(4)], k == 0)
                  for ps in range(2) for k in range(ng)]
        p = self.gemm(n3, groups, lambda k, tb: (vACT, self.h2a(tb, k)), [piece(h) for h in range(n3 + 6, 2 * n3)], p.rest, sync, self.tile_dma(0, 'kv0'))
        assert not p.rest
        for pp, (lo, hi) in enumerate(((p.st[ng - 1] + 18, p.st[ng] + 16), (p.st[ng] + 2, p.st[ng] + 24))):
            pk = []
            for tb in range(3, -1, -1):
                a = vX + 32 * pp + 4 * tb
                pk += self.pack(a + 16, a, a + 16)
            p.g[hi - 1]['va'] += p.fill(pk, lo, hi)
        pk = self.vaddr_restore()
        for tb in range(3, -1, -1):
            pk += self.pack(vP + 4 * tb, vS + 4 * tb, vP + 4 * tb)
        rest = p.fill(pk, p.st[-1] + 17)
        p.emit(self)
        self.put(rest)
        for tb in range(3, -1, -1):
            self.put(self.pack(vX + 32 + 4 * tb, vX + 4 * tb, vX + 32 + 4 * tb))
        for r in range(0, 16, 2):
            e('v_pk_mov_b32 %s, %s, %s op_sel:[0,1]' % (P(vX + r), P(vP + r), P(vP + r)))
        self.yfrag = {(0, 0): vX + 16, (0, 1): vX + 48, (1, 0): vX, (1, 1): vX + 32}
        self.stamp()

    def part_flag(self, word, need):
        return Job(Ins('buffer_store_dword v%d, v%d, %s, s%d offen offset:%d sc1' % (vONE, vFLAG, srd(SWS), sFP, 4 * word), need=need))

    def held(self):
        h = {14 + g: [[aK + 32 * g + 8 * b + 4 * kk for kk in range(2)] for b in range(4)] for g in range(2)}
        if self.opt('hold3', 1) and self.prof != 1:
            idle = (148, 152, 156, 172, 176, 180, 184, 188)
            h[13] = [[idle[2 * b + kk] for kk in range(2)] for b in range(4)]
            if self.opt('hold4', 1):
                h[12] = [[aQ + 32 + 8 * b + 4 * kk for kk in range(2)] for b in range(4)]
        return h

    def attention2(self):
        e = self.s
        e('@sec attention 2a')
        N2 = 256 - self.opt('n1', 176)
        H, T = self.opt('head2', 32), N2 - self.opt('tail2', 32)

        def sched(spread, chk, fill):
            chk[T + 4] = self.poll_check(SWS, 1)
            spread([self.part_store(self.yfrag[h, pp] + 4 * tb, YP_OFF + 65536 * pp + 16384 * tb + 1024 * h, 'yst', sYO)
                    for h in range(2) for pp in range(2) for tb in range(4)], 4, H - 8, 2)
            spread([self.part_flag(0, ['yst'])], H - 8, H - 7)
            spread(self.warm(SWO, vACT, sWOW, (0, 1024, 2048, 3072)) + self.code_warm(), H - 8, H - 6)
            spread([self.poll_load(SWS)], T, T + 1)
            spread([Job('buffer_load_dwordx2 %s, v%d, %s, s%d offen offset:%d' % (vr('a', aRES + 2 * nb, 2), vW1, srd(SX), sXO, 512 * (nb >> 1) + 32 * (nb & 1)))
                    for nb in range(4)], T, T + 2)
            spread(self.gather('v', vX, sPI, YP_OFF, 'sc1' + ' nt' * self.opt('nt2', 1)), T + 5, N2 - 8, 2)
            if nh >= 3:
                spread(self.whalf('wo', od[26], 0) + self.whalf('wo', od[27], 1), T - 9, T - 6)
            first = sum([self.whalf('wo', od[k], h) for k, h in ((28, 4), (29, 5), (30, 2), (31, 3), (0, 0), (1, 1))], [])
            spread(first, N2 - 12, N2 - 1)
            late = self.whalf('wo', od[2], 2) + self.whalf('wo', od[3], 3)
            late[0].ins.need = ['held15']
            if nh == 4:
                self.oepi_jobs, late = late, self.whalf('wo', od[24], 4) + self.whalf('wo', od[25], 5)
                late[0].ins.need = ['held14']
            spread(late, N2 + 1, N2 + 3)
            fill[H - 12] = (self.code_addr(), H - 8)
            fill[H - 4] = (self.waddr(vT, vT + 4, 's%d' % sRING), H)
        od, nh = self.pair_order(self.opt('p6_early', 6)), len(self.held())
        slot, at = {12: 4, 13: 0, 14: 4, 15: 2}, {12: None, 13: (T - 3, 0), 14: (N2 - 2, 8), 15: (N2 - 1, 8)}
        self.oepi_jobs = []
        extra = [(at[G], [Ins('ds_read_b64_tr_b16 %s, v%d offset:%d' % (vr('a', regs[b][kk] + 2 * x, 2), (vT if at[G] else vTR) + b, (slot[G] + kk) * 4096 + 2048 * x),
                              need=['wo%d' % od[2 * G + kk]], tag='held%d' % G) for b in range(4) for kk in range(2) for x in range(2)])
                 for G, regs in sorted(self.held().items())]
        self.oepi_reads = sum([ins for a, ins in extra if not a], [])
        extra = [x for x in extra if x[0]]
        self.segment(1, N2, sched, loop=(H, T) if T >= H + 32 else None, extra=extra)
        self.o_epilogue()

    def o_epilogue(self):
        e = self.s
        e('@sec O epilogue')
        e('L_oepi:')
        jobs = self.flat(self.oepi_jobs)
        for r in range(8):
            e('v_accvgpr_read_b32 v%d, a%d' % (vS + r, aL + r))
        for qb in range(4):
            e('v_add_f32 v%d, v%d, v%d' % (vS + 2 * qb, vS + 2 * qb, vS + 2 * qb + 1))
        B = vS + 8
        for qb in range(4):
            e('v_subrev_u32 v%d, 0x2b800000, v%d' % (B + qb, vS + 2 * qb))
        e('v_max3_u32 v%d, v%d, v%d, v%d\nv_max_u32 v%d, v%d, v%d' % (B, B, B + 1, B + 2, B, B, B + 3))
        e('v_cmp_lt_u32 vcc, 0x28000000, v%d' % B)
        e('v_and_b32 v%d, 3, v%d\nv_lshlrev_b32 v%d, 12, v%d\nv_lshl_add_u32 v%d, s%d, 2, v%d' % (B + 1, vL, B + 1, B + 1, B + 1, sW, B + 1))
        e('s_or_b32 s%d, vcc_lo, vcc_hi' % sT0)
        e('v_mov_b32 v%d, s%d' % (B, sT0))
        e('ds_write_b32 v%d, v%d' % (B + 1, B))
        for qb in range(4):
            e('v_rcp_f32 v%d, v%d' % (vS + 2 * qb, vS + 2 * qb))
        e('v_lshl_add_u32 v%d, s%d, 12, v%d' % (vP, sW, vACT))
        e('s_lshl_b32 s%d, s%d, 12\nv_mov_b32 v%d, s%d' % (sT0, sW, B + 1, sT0))
        e('s_barrier', need=['*lg'])
        e('ds_read_b128 %s, v%d' % (vr('v', B + 4, 4), B + 1))
        for qb in range(4):
            for ks in range(4):
                a = vACC + 32 * ks + 4 * qb
                for h in (0, 2, 16, 18):
                    e('v_pk_mul_f32 %s, %s, %s op_sel_hi:[1,0]' % (vr('v', a + h, 2), vr('v', a + h, 2), vr('v', vS + 2 * qb, 2)))
                self.put(self.pack(a + 16, a, a + 16))
                if qb == 0 and ks < 2:
                    if ks == 0:
                        continue
                    e('v_or3_b32 v%d, v%d, v%d, v%d\nv_or_b32 v%d, v%d, v%d' % (B, B + 4, B + 5, B + 6, B, B, B + 7))
                    e('v_cmp_ne_u32 vcc, 0, v%d\ns_cbranch_vccnz L_slow\nL_ofine:' % B)
                    e('ds_write_b128 v%d, %s' % (vP, vr('v', vACC + 16, 4)))
                e('ds_write_b128 v%d, %s offset:%d' % (vP, vr('v', a + 16, 4), (16 * qb + ks) * 1024))
                for pre, d, post in jobs[4 * qb + ks - 1:4 * qb + ks]:
                    self.put(pre + [d] + post)
        self.put(self.waddr(vTR, vT, 's%d' % sRING) + self.oepi_reads)
        self.stamp()
        self.slow_path()

    def slow_path(self):
        main, self.s = self.s, Stream()
        e = self.s
        M = vT
        e('L_slow:\ns_cmp_lg_u32 s%d, 0\ns_cbranch_scc1 L_ofine\ns_mov_b32 s%d, 1' % (sPASS, sPASS))
        e('s_waitcnt vmcnt(0) lgkmcnt(0)')
        for ps in range(2):
            e('s_mov_b32 s%d, 0\ns_mov_b32 s%d, 0\ns_mov_b32 s%d, 64' % (sKO, sVO, sCNT))
            if ps == 0:
                for qb in range(4):
                    e('v_mov_b32 v%d, 0xff800000' % (M + qb))
            else:
                for qb in range(4):
                    for op in ('v_permlane32_swap_b32', 'v_permlane16_swap_b32'):
                        e('v_mov_b32 v%d, v%d\n%s v%d, v%d\nv_max_f32 v%d, v%d, v%d' % (vS, M + qb, op, vS, M + qb, M + qb, M + qb, vS))
                e('v_lshrrev_b32 v%d, 4, v%d\nv_xor_b32 v%d, v%d, v%d\nv_bfe_i32 v%d, v%d, 1, 1' % (vS, vL, vS, vS, vL, vS, vS))
                e('v_not_b32 v%d, v%d\nv_and_b32 v%d, 0x3f803f80, v%d' % (vS, vS, vS, vS))
                for r in range(4):
                    e('v_accvgpr_write_b32 a%d, v%d' % (aONES + r, vS))
                for r in range(128):
                    e('v_mov_b32 v%d, 0' % (vACC + r))
                for r in range(8):
                    e('v_accvgpr_write_b32 a%d, 0' % (aL + r))
            e('L_slow%d:\ns_barrier' % ps)
            self.emit_jobs(self.kv_dma('K', 0, 'k') + (self.kv_dma('V', 0, 'k') if ps else []))
            e('s_barrier', need=['k'])
            self.put([self.krd(0, f, aV + 32) for f in range(8)] + ([self.vrd(0, h) for h in range(16)] if ps else []))
            e('s_waitcnt lgkmcnt(0)')
            for qb in range(4):
                for kb in range(2):
                    for ks in range(4):
                        e(mfma(vr('v', vS + 4 * kb, 4), vr('a', aV + 32 + 16 * kb + 4 * ks, 4), vr('a', aQ + 16 * qb + 4 * ks, 4), '0' if ks == 0 else None))
                if ps == 0:
                    for r in range(0, 8, 2):
                        e('v_max3_f32 v%d, v%d, v%d, v%d' % (M + qb, M + qb, vS + r, vS + r + 1))
                    continue
                for r in range(8):
                    e('v_sub_f32 v%d, v%d, v%d' % (vS + r, vS + r, M + qb))
                for r in range(8):
                    e('v_exp_f32 v%d, v%d' % (vS + r, vS + r))
                for r in range(4):
                    e('v_cvt_pk_bf16_f32 v%d, v%d, v%d' % (vP + 4 * qb + r, vS + 2 * r, vS + 2 * r + 1))
                for db in range(8):
                    e(mfma(vr('v', vACC + 16 * db + 4 * qb, 4), vr('a', aV + 4 * db, 4), vr('v', vP + 4 * qb, 4)))
                if qb & 1:
                    e(self.rowsum(qb >> 1, aONES, vP + 4 * (qb - 1)))
            e('s_nop 7\ns_sub_u32 s%d, s%d, 1\ns_cmp_lg_u32 s%d, 0\ns_cbranch_scc1 L_slow%d' % (sCNT, sCNT, sCNT, ps))
        e('s_barrier\ns_branch L_oepi')
        e.insert_waits()
        e.pad_hazards()
        self.tail.append(e.text())
        self.s = main

    SEL = vT

    def reduce(self, acc, f, regs, ks, first=False):
        return [mfma(vr('v', acc + 4 * (2 * (k & 1) + g), 4), vr('v', self.SEL + 2 - 2 * g, 4), vr(f, regs + 4 * k, 4), '0' if (first and k < 2) else None)
                for k in ks for g in range(2)]

    def collect(self, h, done, acc, regs, base):
        e, L = self.s, 'L_c%d' % h
        NEW, N = sT0, sT1
        e('s_mov_b32 s%d, 0x80000\ns_branch %s_test' % (sT3, L))
        e('%s_wait:\ns_waitcnt vmcnt(0)\nv_cmp_eq_u32 vcc, 1, v%d\ns_bfe_u32 s%d, vcc_lo, 0x%x' % (L, vPRES, NEW, 0x80000 + 8 * h))
        e('s_andn2_b32 s%d, s%d, s%d\ns_cbranch_scc0 %s_poll' % (NEW, NEW, done, L))
        e('s_or_b32 s%d, s%d, s%d\ns_bcnt1_i32_b32 s%d, s%d' % (done, done, NEW, N, NEW))
        for n in range(1, 7):
            e('s_cmp_eq_u32 s%d, %d\ns_cbranch_scc1 %s_ld%d' % (N, n, L, 7 - n))
        for q in range(7):
            e('%s_ld%d:\ns_ff1_i32_b32 s%d, s%d\ns_bitset0_b32 s%d, s%d' % (L, q, sT2, NEW, NEW, sT2))
            e('s_lshl_b32 s%d, s%d, 11\ns_add_u32 s%d, s%d, s%d' % (sT2, sT2, sT2, sT2, base))
            e('buffer_load_dwordx4 %s, v%d, %s, s%d offen offset:%d sc1' % (vr('a', regs + 8 * q + 4 * h, 4), vACT, srd(SWS), sT2, 1024 * h))
        e.add(self.poll_load(SWS).ins)
        for n in range(1, 7):
            e('s_cmp_eq_u32 s%d, %d\ns_cbranch_scc1 %s_mm%d' % (N, n, L, 7 - n))
        for q in range(7):
            e('%s_mm%d:' % (L, q))
            self.put(self.reduce(acc, 'a', regs, (2 * q + h,)))
        e('%s_test:\ns_cmp_lg_u32 s%d, 0xff\ns_cbranch_scc1 %s_wait\n%s_end:' % (L, done, L, L))
        self.tail.append('%s_poll:\n    %s\n    s_sub_u32 s%d, s%d, 1\n    s_cbranch_scc0 %s_wait\n    s_branch %s_end' % (L, self.poll_load(SWS).ins.text, sT3, sT3, L, L))

    def p6_final(self):
        e = self.s
        P = lambda b: vr('v', b, 2)
        e('@sec P6')
        NE, held = self.opt('p6_early', 6), self.held()
        od = self.pair_order(NE)
        groups = [g + (held[G],) if G in held else g for G, g in enumerate(self.pair_groups('wo', od))]
        NQ = self.opt('p6_quarter', 4)
        if NQ:
            src = lambda G: held[G] if G in held else [[(2 * G + kk, b, groups[G][0][kk]) for kk in range(2)] for b in range(4)]
            seq = sorted(range(16 - NQ, 16), key=lambda G: G not in held)
            groups[16 - NQ:] = [([], groups[G][1], groups[G][2][2 * pp:2 * pp + 2], False, src(G)[2 * pp:2 * pp + 2])
                                for pp in range(2) for G in (seq[::-1] if pp else seq)]
        p = self.gemm(0, groups, lambda k, tb: (vACT, (tb * 16 + k) * 1024), [self.whalf('wo', od[h], h) for h in range(6, 32 - 2 * len(held))],
                      self.whalf('wo', od[4], 4) + self.whalf('wo', od[5], 5), lambda: self.s('s_barrier', need=['*lg']), WF=aQ, AF=aV)
        pk, st = [], []
        for h in range(2):
            for pp in range(2):
                for tb in range(3, -1, -1):
                    a = vACC + 64 * h + 32 * pp + 4 * tb
                    pk.append(self.pack(a + 16, a, a + 16))
                    st.append(self.part_store(a + 16, SP_OFF + 65536 * pp + 16384 * tb + 1024 * h, 'sst%d' % h, vo=vDB + pp))
        q, pos = p.dma_end + self.opt('a_start', 16), []
        ready = [32 * (16 - NE) + 2] * 8 + [512 - 16 * NQ + 2] * (4 if NQ else 0)
        for k, r in enumerate(ready):
            q = max(q, r + 6)
            if q > 508:
                break
            while len(p.g[q]['ds']) > 1 or p.g[q]['vm']:
                q += 1
            p.jobs(self.flat([st[k]]), [q], lo=q - 2)
            pos.append(q)
            q += self.opt('a_step', 8)
        free = lambda q: [x for x in range(q, 512) if not p.g[x]['vm'] and len(p.g[x]['ds']) < 2][0]
        p.jobs(self.flat([self.part_flag(8, ['sst0'])]), [free(max(self.opt('flag_a', 452), pos[7] + 40))])
        p.jobs(self.flat([self.poll_load(SWS)]), [free(self.opt('poll_a', 506))])
        for k, q in enumerate(pos):
            p.g[q - 1]['va'] += p.fill(pk[k], ready[k], q)
        pk, st = pk[len(pos):], st[len(pos):]
        SEL, ZZ, XF, SS, E = self.SEL, vS, vP, vACC, vACC + 32
        t = vKA
        f = ('v_lshrrev_b32 v%d, 4, v%d\nv_bfe_u32 v%d, v%d, 2, 2\nv_and_b32 v%d, 1, v%d\nv_lshlrev_b32 v%d, 4, v%d\n' % (t + 1, vL, t, vL, t + 2, vL, t + 2, t + 2) +
             'v_mov_b32 v%d, 0x3f80\nv_lshlrev_b32 v%d, v%d, v%d\n' % (t + 3, t + 2, t + 2, t + 3) +
             'v_cmp_eq_u32 vcc, v%d, v%d\nv_mov_b32 v%d, 0\nv_mov_b32 v%d, 0\n' % (t, t + 1, SEL, SEL + 1) +
             'v_cndmask_b32 v%d, 0, v%d, vcc\nv_and_b32 v%d, 2, v%d\nv_cmp_eq_u32 vcc, 0, v%d\n' % (t + 2, t + 2, t, vL, t) +
             'v_mov_b32 v%d, 0\nv_mov_b32 v%d, 0\nv_cndmask_b32 v%d, 0, v%d, vcc\n' % (SEL + 4, SEL + 5, SEL + 2, t + 2) +
             'v_sub_u32 v%d, v%d, v%d\n' % (SEL + 3, t + 2, SEL + 2) +
             'v_lshl_add_u32 v%d, v%d, 3, v%d' % (vW2, t + 1, vW1)).split('\n')
        p.scalars(['s_lshl_b32 s%d, s%d, 1' % (sVO, sW), 's_sub_u32 s%d, s%d, s%d' % (sVO, sJ, sVO), 's_lshr_b32 s%d, s%d, 1' % (sCNT, sJ),
                   's_mul_i32 s%d, s%d, %d' % (sCNT, sCNT, WWAVE), 's_add_u32 s%d, s%d, s%d' % (sCNT, sCNT, sW2K), 's_add_u32 s%d, s%d, %d' % (sCNT, sCNT, WREG)], 0, 16)
        f += ['v_mov_b32 v%d, 0x%x' % (t, OOB), 'v_mov_b32 v%d, s%d' % (t + 1, sVO), 'v_cmp_eq_u32 vcc, 0, v%d' % (t + 1),
              'v_add_u32 v%d, s%d, v%d' % (vDB + 2, sRING, vACT), 'v_add_u32 v%d, s%d, v%d' % (vDB + 3, sCNT, vACT),
              'v_cndmask_b32 v%d, v%d, v%d, vcc' % (vDB, vACT, t), 'v_cmp_eq_u32 vcc, 1, v%d' % (t + 1),
              'v_and_b32 v%d, 8, v%d' % (t + 2, vL), 'v_lshl_add_u32 v%d, v%d, 2, v%d' % (vPOFF, t + 2, vPOFF),
              'v_add_u32 v%d, 32, v%d' % (vPOFF, vPOFF), 'v_cndmask_b32 v%d, v%d, v%d, vcc' % (vDB + 1, vACT, t)]
        assert not p.fill(f, 0, 48)
        red = self.reduce(XF, 'a', aRES, (0, 1), True) + self.reduce(ZZ, 'a', aX1, (0, 1), True) + self.reduce(ZZ, 'v', vX, range(16))
        gate = ['s_mov_b32 s%d, %s' % (sC0 + k, f2u(-math.log2(math.e))) for k in range(2)]
        gate += ['v_pk_mul_f32 %s, %s, s[%d:%d]' % (P(E + r), P(ZZ + r), sC0, sC0 + 1) for r in range(0, 16, 2)]
        gate += ['v_exp_f32 v%d, v%d' % (E + r, E + r) for r in range(16)]
        gate += ['v_pk_add_f32 %s, %s, 1.0 op_sel_hi:[1,0]' % (P(E + r), P(E + r)) for r in range(0, 16, 2)]
        gate += ['v_rcp_f32 v%d, v%d' % (E + r, E + r) for r in range(16)]
        gate += ['v_pk_mul_f32 %s, %s, %s' % (P(ZZ + r), P(ZZ + r), P(E + r)) for r in range(0, 16, 2)]
        p.scalars(['s_lshl_b32 s%d, 1, s%d' % (sDONE, sJ), 's_add_u32 s%d, s%d, 0x%x' % (sKO, sPI, SP_OFF)], 16, 24)
        if self.opt('p6stamp', 0):
            for q in (127, 255, 383, p.dma_end - 2, 479):
                p.g[q]['end'] += self.stamp_items('q%d' % q)
        p.emit(self)
        self.stamp('P6')
        e('@sec s epilogue')
        self.sprinkle(sum(pk, []), st, start=4, every=4)
        self.stamp('issued')
        for pp in range(2):
            e('s_cmp_lg_u32 s%d, %d\ns_cbranch_scc1 L_other%d' % (sVO, pp, pp))
            for h in range(2):
                for tb in range(4):
                    e('ds_write_b128 v%d, %s offset:%d' % (vDB + 2, vr('v', vACC + 64 * h + 32 * pp + 16 + 4 * tb, 4), 2048 * tb + 1024 * h))
            e('L_other%d:' % pp)
        e('s_waitcnt lgkmcnt(0)\ns_barrier')
        for h in range(2):
            e('ds_read_b128 %s, v%d offset:%d' % (vr('a', 4 * h, 4), vDB + 3, 1024 * h))
        DA, M = sCNT, vACC + 64
        e('v_cmp_eq_u32 vcc, 1, v%d\ns_and_b32 s%d, vcc_lo, 0xff' % (vPRES, sT2))
        e('s_orn2_b32 s%d, s%d, s%d\ns_or_b32 s%d, s%d, s%d' % (sT0, sDONE, sT2, DA, sDONE, sT2))
        jobs = self.gather('a', 64, sPI, SP_OFF, 'sc1')[::2]
        for q, jb in enumerate(jobs):
            jb.ins = Ins(jb.ins.text.replace(' v%d,' % vACT, ' v%d,' % (M + q)))
            jb.pre += ['v_bfe_u32 v%d, s%d, %d, 1' % (M + q, sT0, q), 'v_lshl_or_b32 v%d, v%d, 30, v%d' % (M + q, M + q, vACT)]
        nb4 = self.opt('a_before', 8)
        self.emit_jobs(jobs[:nb4] + [self.part_flag(16, ['sst1'])] + jobs[nb4:])
        self.stamp('acked')
        work = self.reduce(SS, 'a', 0, (0, 1), True) + red + gate
        cut = self.opt('poll_b', 44)
        self.put(work[:cut])
        self.emit_jobs([self.poll_load(SWS)])
        self.put(work[cut:] + self.reduce(SS, 'a', 64, range(0, 16, 2)))
        self.collect(0, DA, SS, 64, sKO)
        self.collect(1, sDONE, SS, 64, sKO)
        self.stamp('collected')
        for nb in range(4):
            for r in range(4 * nb, 4 * nb + 4, 2):
                e('v_pk_fma_f32 %s, %s, %s, %s' % (P(XF + r), P(SS + r), P(ZZ + r), P(XF + r)))
            for k in range(2 * nb, 2 * nb + 2):
                e('v_cvt_pk_bf16_f32 v%d, v%d, v%d' % (E + k, XF + 2 * k, XF + 2 * k + 1))
            om = self.opt('outmode', 2)
            if om < 2:
                e('buffer_store_dwordx2 %s, v%d, %s, s%d offen offset:%d%s' % (P(E + 2 * nb), vW1, srd(SOUT), sXO, 512 * (nb >> 1) + 32 * (nb & 1), ' sc1' * om))
            elif nb & 1:
                t = E + 2 * nb - 2
                for op in ('v_permlane32_swap_b32', 'v_permlane16_swap_b32'):
                    e('%s v%d, v%d\n%s v%d, v%d' % (op, t, t + 2, op, t + 1, t + 3))
                e('buffer_store_dwordx4 %s, v%d, %s, s%d offen offset:%d sc1' % (vr('v', t, 4), vW2, srd(SOUT), sXO, 512 * (nb >> 1)))
        if 'diag' in self.o:
            self.stamp('end')
            if self.o['diag'].startswith('xcc'):
                e('v_mov_b32 v%d, 4\nbuffer_load_dword v%d, v%d, %s, 0 offen sc1\ns_waitcnt vmcnt(0)' % (vT, vT + 1, vT, srd(SDBG)))
                e('v_readfirstlane_b32 s100, v%d\ns_nop 3\ns_bcnt1_i32_b32 s100, s100\ns_mul_i32 s100, s100, 1000\ns_mov_b32 s98, 1000' % (vT + 1))
            e('s_sub_u32 s100, s100, s98\ns_mul_i32 s100, s100, %s\ns_min_u32 s100, s100, 100000' % self.o['diag'].split(':')[2])
            e('s_memrealtime s[98:99]\ns_waitcnt lgkmcnt(0)\ns_add_u32 s100, s100, s98')
            e('L_diag:\ns_memrealtime s[98:99]\ns_waitcnt lgkmcnt(0)\ns_sub_u32 s98, s98, s100\ns_cmp_lt_i32 s98, 0\ns_cbranch_scc1 L_diag')
        if self.prof:
            e('s_waitcnt vmcnt(0)')
            self.stamp('end')
            e('v_accvgpr_read_b32 v%d, a%d\nv_accvgpr_read_b32 v%d, a%d' % (vT, aPROF, vT + 1, aPROF + 1))
            for k in range(self.nstamp * (self.prof == 2)):
                e('v_writelane_b32 v%d, s%d, %d\nv_writelane_b32 v%d, s%d, %d' % (vT, LITE[k], k, vT + 1, LITE[k], k))
            e('s_lshl_b32 s%d, s2, 11\ns_lshl_b32 s%d, s%d, 9\ns_add_u32 s%d, s%d, s%d' % (sT0, sT1, sW, sT0, sT0, sT1))
            e('s_add_u32 s%d, s%d, 0x%x\nv_lshlrev_b32 v%d, 3, v%d' % (sT0, sT0, PROF_OFF, vT + 2, vL))
            e('buffer_store_dwordx2 %s, v%d, %s, s%d offen' % (vr('v', vT, 2), vT + 2, srd(SWS), sT0))

    def build(self, verbose=False):
        for phase in (self.prologue, self.p0, self.p2, self.q_p1, self.attention1, self.mlp, self.attention2, self.p6_final):
            phase()
        s = self.s
        s.insert_waits()
        pads = s.pad_hazards()
        est = s.estimate()
        s.fold()
        s.l += [Ins('L_end:'), Ins('s_endpgm'), Ins('@mark main_end')] + self.aside.l
        fixes = s.align(self.opt('touch', 1))
        if self.opt('touch', 1):
            n, cut = s.marks['main_end'] + 1, self.opt('touch_cut', 15)
            assert s.marks['touch1'] < cut + 1 or cut >= n
            for r, (lo, hi) in enumerate(((0, min(cut, n)), (min(cut, n), n))):
                for k in range(lo, hi):
                    s.pages[k].text = 's_cbranch_execz ' + ('L_pg%d' % (k + 4) if k + 4 < hi else 'L_touched%d' % r)
                for x in s.l:
                    for w in range(4):
                        if x.text.endswith(' L_touch%d_%d' % (r, w)):
                            x.text = x.text.replace('L_touch%d_%d' % (r, w), 'L_pg%d' % (lo + w) if lo + w < hi else 'L_touched%d' % r)
        if verbose:
            print('alignment fixes:', fixes, 'pages:', len(s.pages), s.marks)
        if verbose:
            print('hazard pads:', pads)
            for name, cyc, nm in est:
                print('  %-18s est %6d cycles, %5d mfma (%6d)' % (name, cyc, nm, nm * 16))
            print('  total', sum(c for _, c, _ in est))
        ref = open('cdna_kernels/%s.s.ref' % NAME).read().split('\n')
        head = [l for l in ref if l.startswith(';') and '@launch' not in l]
        o = head + ['; @launch grid=(256,1,1) block=(256,1,1) lds=163840',
                    '.amdgcn_target "amdgcn-amd-amdhsa--gfx950"', '.text', '.globl %s_kernel' % NAME, '.p2align 8',
                    '.type %s_kernel,@function' % NAME, '%s_kernel:' % NAME]
        o.append(DOC)
        o.append(s.text())
        o += self.tail
        o.append('L_code_end:\n    s_endpgm')
        o.append('''.section .rodata,"a"
.p2align 6
.amdhsa_kernel %s_kernel
  .amdhsa_next_free_vgpr 512
  .amdhsa_next_free_sgpr 102
  .amdhsa_accum_offset 256
  .amdhsa_group_segment_fixed_size 0
  .amdhsa_kernarg_size 104
  .amdhsa_user_sgpr_count 2
  .amdhsa_user_sgpr_kernarg_segment_ptr 1
  .amdhsa_system_sgpr_workgroup_id_x 1
  .amdhsa_float_denorm_mode_32 3
.end_amdhsa_kernel''' % NAME)
        return '\n'.join(o) + '\n'


if __name__ == '__main__':
    out = sys.argv[1] if len(sys.argv) > 1 else 'k.s'
    opts = dict(a.split('=') for a in sys.argv[2:])
    SP_OFF, YP_OFF = int(opts.get('sp', hex(SP_OFF)), 0), int(opts.get('yp', hex(YP_OFF)), 0)
    open(out, 'w').write(Gen(False, opts).build(True))
    open(out.replace('.s', '_prof.s'), 'w').write(Gen(True, opts).build())
    open(out.replace('.s', '_lite.s'), 'w').write(Gen(2, opts).build())
```

```python
import math
import struct
import sys

sys.path.insert(0, 'work')
from asmgen import Ins, Stream, vr

NAME = 'recurrent_scan__gqa_block_cached__mixer_s_mlp__prompt'


def f2u(x):
    return '0x%08x' % struct.unpack('<I', struct.pack('<f', x))[0]


H_OFF = 0
X1_OFF = 0x200000
FLAG_OFF = 0x400000
ST_OFF = 0x600000
SP_OFF = 0x1000000
YP_OFF = 0x2000000
PROF_OFF = 0x8000000
OOB = 0x40000000

KRING, VRING = 0, 32768
WREG = 65536
WWAVE = 24576

SX, SK, SV, SWQ, SWO, SW1, SW2, SW3, SW4, SOUT, SDBG, SWS, SH, SCODE = range(4, 60, 4)
sT, sJ, sW, sTBG, sRING, sW2K = 60, 61, 62, 63, 64, 65
sO, sDONE, sKO, sVO, sCNT, sRET = 66, 67, 68, 69, 70, 71
sT0, sT1, sT2, sT3 = 72, 73, 74, 75
sC0 = 76
sPASS, sWSH = 78, 79
sST = 80
sHO, sX1O, sX1I, sSTO, sPO, sPI, sCF, sFP, sXO, sCW, sW3W, sW4W, sWOW, sSTEP = range(84, 98)
sRANK, sYO = sHO, sX1O

vL = 0
vTR = 1
vKA = 9
vACT = 13
vWN, vW3, vW2, vW1 = 14, 15, 16, 17
vDB = 18
vFLAG, vONE, vPOFF, vPRES = 22, 23, 24, 25
vT = 26
vIDX = 31
vS, vP = 32, 48
vX = 64
vACC = 128
aK, aV, aONES, aL, aX1, aQ = 0, 64, 128, 132, 140, 192
aPROF, aDUMMY, aSTAT, aRES, aONE2 = 150, 152, 156, 160, 168

LITE = (3, 59, 98, 99, 100, 101, 82, 83)
CSCALE = math.log2(math.e) / math.sqrt(128.0)
K1 = 2 * 0.7978845608028654 * math.log2(math.e)
K2 = K1 * 0.044715


def srd(n):
    return 's[%d:%d]' % (n, n + 3)


def mfma(d, a, b, c=None):
    return 'v_mfma_f32_16x16x32_bf16 %s, %s, %s, %s' % (d, a, b, d if c is None else c)


DOC = """; One persistent launch, one workgroup per CU: workgroup b handles token block t = b/8 (64 tokens) and kv head
; j = b%8; wave w owns query head 4j+w.  All products are computed transposed (tokens on MFMA columns) with
; v_mfma_f32_16x16x32_bf16; weights, K and V stream global -> LDS by DMA and are read with transposing loads.
; the sums are checked after the loop and otherwise the workgroup repeats the attention with the true row maximum
; cleared by their owner at start and used only after the arrival counters in d_debug show the clears are done."""


class Job:
    def __init__(self, ins, pre=(), m0=None, post=()):
        self.ins = ins if isinstance(ins, Ins) else Ins(ins)
        self.pre, self.m0, self.post = list(pre), m0, list(post)


class Plan:
    def __init__(self):
        self.mf, self.g = [], []

    def add(self, m):
        self.mf.append(m)
        self.g.append(dict(sc=[], ds=[], vm=[], va=[], end=[]))
        return len(self.mf) - 1

    def cap(self, j):
        g = self.g[j]
        if g['vm'] or g['end']:
            return 0
        c = 1 if self.mf[j].startswith('v_smfmac') else 2
        return c - len(g['ds']) - sum(vcost(x) for x in g['va']) - max(0, len(g['sc']) - 1)

    def jobs(self, groups, pos, lo=0, avoid=()):
        prev, pend = lo - 1, []
        for (pre, d, post), p in zip(groups, pos):
            self.scalars(pend + pre, prev + 1, p, avoid, late=True)
            assert not self.g[p]['vm'], 'gap %d already holds a memory instruction' % p
            self.g[p]['vm'].append(d)
            prev, pend = p, post
        return prev, pend

    def scalars(self, sc, a, b, avoid=(), late=False):
        if not sc:
            return
        c = [j for j in range(a, b) if not self.g[j]['vm'] and not self.g[j]['sc'] and j not in avoid]
        if len(c) < len(sc):
            c = [j for j in range(a, b) if not self.g[j]['vm']]
        if not c:
            self.g[b]['sc'] += sc
            return
        c = c[-len(sc):] if late else c[:len(sc)]
        for k, x in enumerate(sc):
            self.g[c[min(k, len(c) - 1)]]['sc'].append(x)

    def fill(self, va, start=0, end=None):
        va, j = list(va), start
        end = len(self.mf) if end is None else end
        while va and j < end:
            if self.cap(j) >= vcost(va[0]):
                self.g[j]['va'].append(va.pop(0))
            else:
                j += 1
        return va

    def empty(self, start, n, step=1):
        res, j = [], start
        while len(res) < n:
            if not any(self.g[j][k] for k in ('sc', 'ds', 'vm', 'va', 'end')):
                res.append(j)
                j += step
            else:
                j += 1
        return res

    def emit(self, gen):
        for m, g in zip(self.mf, self.g):
            gen.put([m] + g['sc'] + g['vm'] + g['ds'] + g['va'] + g['end'])


def vcost(x):
    t = x.text if isinstance(x, Ins) else x
    return 2 if t.startswith(('v_exp', 'v_rcp', 'v_rsq', 'v_permlane')) else 1


class Gen:
    def __init__(self, prof=False, opts=None):
        self.s = Stream()
        self.tail = []
        self.prof = prof
        self.o = opts or {}
        self.nstamp = 0
        self.nlab = 0
        self.kv_nt = False

    def stamp(self, name=None):
        if 'diag' in self.o:
            a, b, k = self.o['diag'].split(':')
            sec = name or [x.op[5:] for x in self.s.l if x.kind == 'meta' and x.op.startswith('@sec ')][-1]
            for r, want in ((98, a), (100, b)):
                if sec.replace(' ', '_') == want:
                    self.s('s_waitcnt lgkmcnt(0) ; stamp\ns_memrealtime s[%d:%d]\ns_waitcnt lgkmcnt(0) ; stamp' % (r, r + 1))
            return
        if not self.prof or (self.prof == 2 and name not in ('kernarg', 'end', 'P0 end', 'P2 end', 'pre', 'loop')):
            return
        e = self.s
        if self.prof == 2:
            e('s_waitcnt lgkmcnt(0) ; stamp\ns_memrealtime s[%d:%d]\ns_waitcnt lgkmcnt(0) ; stamp\ns_mov_b32 s%d, s%d' % (sST, sST + 1, LITE[self.nstamp], sST))
            self.nstamp += 1
            return
        self.tail.append('; @@' + (name or [x.op[5:] for x in e.l if x.kind == 'meta' and x.op.startswith('@sec ')][-1]))
        e('s_waitcnt lgkmcnt(0) ; stamp')
        e('s_memtime s[%d:%d]\ns_memrealtime s[%d:%d]\ns_waitcnt lgkmcnt(0) ; stamp' % (sST, sST + 1, sST + 2, sST + 3))
        for k in range(2):
            e('v_accvgpr_read_b32 v%d, a%d' % (vONE, aPROF + k))
            e('s_nop 1\nv_writelane_b32 v%d, s%d, %d' % (vONE, sST + 2 * k, self.nstamp))
            e('v_accvgpr_write_b32 a%d, v%d' % (aPROF + k, vONE))
        e('v_mov_b32 v%d, 1' % vONE)
        self.nstamp += 1

    def stamp_items(self, name):
        main, self.s = self.s, Stream()
        self.s('@sec ' + name)
        self.stamp(name)
        items, self.s = self.s.l[1:], main
        return items

    def poll_load(self, buf):
        return Job('buffer_load_dword v%d, v%d, %s, 0 offen sc1' % (vPRES, vPOFF, srd(buf)))

    def poll_check(self, buf, val):
        self.nlab += 1
        n = self.nlab
        cmp = 'v_cmp_ne_u32' if val == 1 else 'v_cmp_gt_u32' if val else 'v_cmp_eq_u32'
        self.tail.append('''L_spin%(n)d:
    s_mov_b32 s%(c)d, 0x80000
L_spin%(n)d_loop:
    buffer_load_dword v%(r)d, v%(o)d, %(b)s, 0 offen sc1
    s_waitcnt vmcnt(0)
    %(cmp)s vcc, %(v)d, v%(r)d
    s_cbranch_vccz L_back%(n)d
    s_sub_u32 s%(c)d, s%(c)d, 1
    s_cbranch_scc0 L_spin%(n)d_loop
    s_branch L_back%(n)d''' % dict(n=n, c=sT3, r=vPRES, o=vPOFF, b=srd(buf), v=val, cmp=cmp))
        return [Ins('%s vcc, %d, v%d' % (cmp, val, vPRES)), Ins('s_cbranch_vccnz L_spin%d' % n), Ins('L_back%d:' % n)]

    def flag_store(self, phase, need):
        return Job(Ins('buffer_store_dword v%d, v%d, %s, s%d offen sc1' % (vONE, vFLAG, srd(SWS), sT2), need=need),
                   pre=['s_mov_b32 s%d, 0x%x' % (sT2, FLAG_OFF + phase * 131072)])

    def opt(self, k, d):
        return int(self.o.get(k, d))

    def touch(self, r):
        if not self.opt('touch', 1):
            return
        e = self.s
        e('@mark touch%d\ns_mov_b64 exec, 0' % r)
        for w in range(3):
            e('s_cmp_eq_u32 s%d, %d\ns_cbranch_scc1 L_touch%d_%d' % (sW, w, r, w))
        e('s_branch L_touch%d_3\nL_touched%d:\ns_mov_b64 exec, -1' % (r, r))

    def put(self, items):
        for x in items:
            self.s.add(x if isinstance(x, Ins) else Ins(x))

    def flat(self, jobs):
        res, m0 = [], None
        for jb in jobs:
            pre = list(jb.pre)
            if jb.m0 and jb.m0 != m0:
                pre.insert(0, jb.m0)
                m0 = jb.m0
            res.append((pre, jb.ins, list(jb.post)))
        return res

    def emit_jobs(self, jobs):
        for pre, d, post in self.flat(jobs):
            self.put(pre + [d] + post)

    def sprinkle(self, main, jobs, start=0, every=8):
        groups = self.flat(jobs)
        for k, x in enumerate(main):
            if groups and k >= start and (k - start) % every == 0:
                pre, d, post = groups.pop(0)
                self.put(pre + [d] + post)
            self.put([x])
        for pre, d, post in groups:
            self.put(pre + [d] + post)

    def whalf(self, name, k, h, small=False):
        buf, vo, stride, nat, off = {
            'wq': (SWQ, vDB, 8192, True, (k >> 1) * 32 * 8192 + (k & 1) * 128),
            'w1': (SW1, vW1, 1024, True, k * 32768),
            'w2': (SW2, vW2, 1024, False, k * 32768),
            'w3': (SW3, vW3, 3584, False, k * (64 if small else 32) * 3584),
            'w4': (SW4, vW2, 1024, False, (k % (4 if small else 8)) * 32768 + (k // (4 if small else 8)) * 512),
            'wo': (SWO, vWN, 1024, False, (k >> 1) * 32768 + (k & 1) * 512)}[name]
        rows = [16 * (a & 1) + 4 * (a >> 1) if nat else 8 * a for a in range(4)]
        return [Job(Ins('buffer_load_dwordx4 v%d, %s, s%d offen offset:%d %slds' % (vo, srd(buf), sO, 1024 * a, 'nt ' if name in self.o.get('wnt', 'none').split(',') else ''), tag='%s%d' % (name, k)),
                    pre=['s_mov_b32 s%d, 0x%x' % (sO, off + rows[a] * stride - 1024 * a)] if small is not None else
                    ['s_mul_i32 s%d, s%d, %d' % (sO, sSTEP, k) if a == 0 else 's_add_u32 s%d, s%d, 0x%x' % (sO, sO, 8 * stride - 1024)],
                    m0='s_add_u32 m0, s%d, 0x%x' % (sRING, (h % 6) * 4096)) for a in range(4)]

    def waddr(self, dst, t, base):
        return ['v_lshrrev_b32 v%d, 2, v%d' % (dst, vL), 'v_bfe_u32 v%d, v%d, 3, 2' % (t, vL), 'v_lshlrev_b32 v%d, 5, v%d' % (t, t),
                'v_lshl_or_b32 v%d, v%d, 7, v%d' % (dst, dst, t), 'v_and_b32 v%d, 3, v%d' % (t, vL), 'v_lshl_or_b32 v%d, v%d, 3, v%d' % (dst, t, dst),
                'v_add_u32 v%d, %s, v%d' % (dst, base, dst)] + ['v_xor_b32 v%d, 0x%x, v%d' % (dst + b, b << 5, dst) for b in range(1, 4)]

    def vaddr_restore(self):
        return ['v_xor_b32 v%d, 0x80, v%d' % (vTR + db, vTR + 4 + db) for db in range(4)]

    def lanesum(self, r, t):
        o = []
        for op in ('v_permlane32_swap_b32', 'v_permlane16_swap_b32'):
            o += ['v_mov_b32 v%d, v%d' % (t, r), '%s v%d, v%d' % (op, t, r), 'v_add_f32 v%d, v%d, v%d' % (r, r, t)]
        return o

    def gelu4(self, src, dst, tmp, k1, scale=None):
        o = []
        e = o.append
        P = lambda b: vr('v', b, 2)
        if scale is not None:
            for h in (0, 2):
                e('v_pk_mul_f32 %s, %s, %s op_sel_hi:[1,0]' % (P(src + h), P(src + h), P(scale)))
        for h in (0, 2):
            e('v_pk_mul_f32 %s, %s, %s' % (P(tmp + h), P(src + h), P(src + h)))
        for h in (0, 2):
            e('v_pk_fma_f32 %s, %s, s[%d:%d], %s op_sel_hi:[1,1,0]' % (P(tmp + h), P(tmp + h), sC0, sC0 + 1, P(k1)))
        for h in (0, 2):
            e('v_pk_mul_f32 %s, %s, %s' % (P(tmp + h), P(tmp + h), P(src + h)))
        for r in range(4):
            e('v_exp_f32 v%d, v%d' % (tmp + r, tmp + r))
        for h in (0, 2):
            e('v_pk_add_f32 %s, %s, 1.0 op_sel_hi:[1,0]' % (P(tmp + h), P(tmp + h)))
        for r in range(4):
            e('v_rcp_f32 v%d, v%d' % (tmp + r, tmp + r))
        for h in (0, 2):
            e('v_pk_mul_f32 %s, %s, %s' % (P(tmp + h), P(tmp + h), P(src + h)))
        for h in (0, 2):
            e('v_cvt_pk_bf16_f32 v%d, v%d, v%d' % (dst + h // 2, tmp + h, tmp + h + 1))
        return o

    def pack(self, d, a0, a1):
        return ['v_cvt_pk_bf16_f32 v%d, v%d, v%d' % (d + 3, a1 + 2, a1 + 3), 'v_cvt_pk_bf16_f32 v%d, v%d, v%d' % (d + 2, a1, a1 + 1),
                'v_cvt_pk_bf16_f32 v%d, v%d, v%d' % (d, a0, a0 + 1), 'v_cvt_pk_bf16_f32 v%d, v%d, v%d' % (d + 1, a0 + 2, a0 + 3)]

    def g16(self, accf, acc, ring, ad, fill=()):
        def kn(n):
            return (n & 15, n >> 4) if self.opt('chain16', 1) else (n >> 2, n & 3)

        def rd(n):
            ks, nb = kn(n)
            off = ((ks >> 2) & 1) * WWAVE + (ks & 3) * 4096
            return ['ds_read_b64_tr_b16 %s, v%d offset:%d' % (vr('a', ring + 4 * (n % 8) + 2 * g, 2), ad + nb, off + 2048 * g) for g in range(2)]
        AH = 6
        for n in range(AH):
            self.put(rd(n))
        p = Plan()
        for n in range(64):
            ks, nb = kn(n)
            p.add(mfma(vr(accf, acc + 4 * nb, 4), vr('a', ring + 4 * (n % 8), 4), vr('v', vX + 4 * ks, 4), '0' if ks == 0 else None))
            if n + AH < 64:
                p.g[n]['ds'] += rd(n + AH)
                if kn(n + AH)[0] == 7:
                    a = ad + kn(n + AH)[1]
                    p.g[n]['va'].append('v_add_u32 v%d, 0x%x, v%d' % (a, 2 * WWAVE, a))
            p.g[n]['va'] += fill[n:n + 1]
        p.emit(self)

    def gemm(self, h0, groups, actf, later, first_jobs=(), sync=None, last_jobs=(), WF=0, AF=32):
        LEAD = 9
        p, par, h, blk, free, srcs = Plan(), [], h0, [], {}, []
        p.st = []
        for G, (tags, ak, acc, first, *src) in enumerate(groups):
            par.append(par[-1] ^ (ak != groups[G - 1][1]) if G else 0)
            p.st.append(len(p.mf))
            flip = 0
            for b in range(len(acc)):
                n = len(blk)
                blk.append(len(p.mf))
                srcs.append(src[0][b] if src else [(h + kk, b, tags[kk]) if len(tags) == 2 else (h, b + 2 * kk, tags[0]) for kk in range(2)])
                for x in srcs[-1]:
                    if isinstance(x, tuple):
                        free[x[0]] = blk[-1]
                for tb in (range(3, -1, -1) if b & 1 else range(4)):
                    for i, kk in enumerate((1, 0) if flip else (0, 1)):
                        w = srcs[-1][kk]
                        p.add(mfma(vr('v', acc[b] + 4 * tb, 4), vr('a', WF + 8 * (n % 4) + 4 * kk if isinstance(w, tuple) else w, 4),
                                   vr('a', AF + 32 * par[G] + 16 * kk + 4 * tb, 4), '0' if (first and i == 0) else None))
                    flip ^= 1
            h += len(tags)
        owner = [free[x] for x in sorted(free)]
        N = len(p.mf)
        jobs, pos, q = list(first_jobs), [2 * k + 1 for k in range(len(first_jobs))], 4 * ((len(first_jobs) + 1) // 2) + 1
        rest = []
        for k, piece in enumerate(later):
            while k < len(owner) and q < owner[k]:
                q += 4
            for jb in piece:
                if q < N and k < len(owner) and not rest:
                    jobs.append(jb)
                    pos.append(q)
                    q += 4
                else:
                    rest.append(jb)
        for jb in last_jobs:
            jobs.append(jb)
            pos.append(q)
            q += 4
        p.rest, p.dma_end = rest, q
        prev, pend = p.jobs(self.flat(jobs), pos, avoid={x - 1 for x in blk})
        p.scalars(pend, prev + 1, N)
        pre = []

        def place(ins, lo, use):
            for each, lead in ((1, LEAD), (2, LEAD), (2, LEAD - 2), (2, LEAD - 4)):
                c = [j for j in range(max(lo - 1, 0), use - lead + 1) if not p.g[j]['vm'] and (j + 1 not in blk or each == 2)
                     for _ in range(each - len(p.g[j]['ds']))]
                if len(c) >= len(ins) or lo == 0:
                    break
            assert len(c) >= len(ins) or lo == 0
            c = c[-len(ins):]
            pre.extend(ins[:len(ins) - len(c)])
            for j, x in zip(c, ins[len(ins) - len(c):]):
                p.g[j]['ds'].append(x)
        for n, src in enumerate(srcs):
            ins = [Ins('ds_read_b64_tr_b16 %s, v%d offset:%d' % (vr('a', WF + 8 * (n % 4) + 4 * kk + 2 * g, 2), vTR + x[1], (x[0] % 6) * 4096 + 2048 * g),
                       need=[x[2]]) for kk, x in enumerate(src) if isinstance(x, tuple) for g in range(2)]
            if ins:
                place(ins, blk[n - 3] if n >= 4 else 0, blk[n])
        for G, (tags, ak, *_) in enumerate(groups):
            if G == 0 or ak != groups[G - 1][1]:
                ins = ['ds_read_b128 %s, v%d offset:%d' % ((vr('a', AF + 32 * par[G] + 16 * kk + 4 * tb, 4),) + actf(k, tb)) for tb in range(4) for kk, k in enumerate(ak)]
                prev = [x for x in range(G) if par[x] == par[G]]
                lo = p.st[prev[-1] + 1] if prev else 0
                if G == 0:
                    act0 = [ins[k] for k in (0, 1, 3, 2, 4, 5, 7, 6)]
                    continue
                span = max(1, (p.st[G] - LEAD - lo) // len(ins))
                for k, x in enumerate(ins):
                    j = lo + k * span
                    while p.g[j]['vm'] or len(p.g[j]['ds']) >= 2 or (j + 1 in blk and span > 1):
                        j += 1
                    assert j < p.st[G] - 4 + k
                    p.g[j]['ds'].append(x)
        main, self.s = self.s, Stream()
        sync()
        bar, self.s = self.s.l, main
        for x in bar:
            if x.kind == 'bar':
                lg = [y for y in self.s.l if y.kind in ('dsr', 'dsw')]
                if lg:
                    lg[-1].tag = 'lastlds'
                self.put(pre)
                x.need = ['lastlds'] if lg else []
            self.s.add(x)
        self.put(act0)
        return p

    def part_store(self, reg, off, tag, base=sPO, vo=vACT):
        return Job(Ins('buffer_store_dwordx4 %s, v%d, %s, s%d offen sc1' % (vr('v', reg, 4), vo, srd(SWS), sT1), tag=tag),
                   pre=['s_add_u32 s%d, s%d, 0x%x' % (sT1, base, off)])

    def gather(self, f, dst, soff, off, flags):
        return [Job('buffer_load_dwordx4 %s, v%d, %s, s%d offen offset:%d %s' % (vr(f, dst + 4 * k, 4), vACT, srd(SWS), sRET, 1024 * (k % 4), flags),
                    pre=['s_add_u32 s%d, s%d, 0x%x' % (sRET, soff, off + 1024 * k)] if k % 4 == 0 else []) for k in range(16)]

    LR, LB = vW1, vFLAG
    XS, XW, RA, F1 = vP + 8, vP + 9, vP + 10, vT + 4

    def prologue(self):
        e = self.s
        D = vr('a', aDUMMY, 4)
        e('@sec prologue')
        bufs = [(SX, 0, 0x200000), (SWQ, 24, 0x400000), (SWS, 96, 0x10000000), (SW1, 48, 0x80000), (SW2, 56, 0x80000), (SDBG, 88, 256), (SK, 8, 0x400000),
                (SV, 16, 0x400000), (SWO, 32, 0x400000), (SW3, 64, 0x1c0000), (SW4, 72, 0x1c0000), (SOUT, 80, 0x200000)]
        for b, off, _ in bufs[:2]:
            e('s_load_dwordx2 s[%d:%d], s[0:1], %d' % (b, b + 1, off))
        e('s_cmp_ge_u32 s2, 256\ns_cbranch_scc1 L_end')
        if self.o.get('diag', '').startswith('start'):
            e('s_memrealtime s[98:99]')
        if self.prof:
            e('v_accvgpr_write_b32 a%d, 0\nv_accvgpr_write_b32 a%d, 0' % (aPROF, aPROF + 1))
        e('s_getpc_b64 s[%d:%d]\nL_pc:' % (SCODE, SCODE + 1))
        e('s_mov_b32 s%d, L_code_end-L_pc-16' % (SCODE + 2))
        e('s_lshr_b32 s%d, s2, 3\nv_lshlrev_b32 v%d, 4, v0\nv_lshl_add_u32 v%d, s%d, 12, v%d' % (sT, vT + 3, vT, sT, vT + 3))
        self.put(self.code_addr()[1:])
        self.emit_jobs(self.code_warm())
        e('v_readfirstlane_b32 s%d, v0\ns_and_b32 s%d, s2, 7\nv_and_b32 v0, 63, v0' % (sW, sJ))
        e('s_lshr_b32 s%d, s%d, 6' % (sW, sW))
        e('s_lshl_b32 s%d, s%d, 2\ns_add_u32 s%d, s%d, s%d' % (sTBG, sT, sTBG, sTBG, sW))
        e('v_lshrrev_b32 v%d, 2, v%d\nv_and_b32 v%d, 3, v%d' % (vT + 1, vL, vT + 2, vL))
        e('v_lshlrev_b32 v%d, 10, v%d\nv_lshl_or_b32 v%d, v%d, 4, v%d' % (vT + 4, vT + 1, vT + 4, vT + 2, vT + 4))
        e('v_lshlrev_b32 v%d, 4, v%d' % (vACT, vL))
        e('s_lshl_b32 s%d, s%d, 14\ns_lshl_b32 s%d, s%d, 13\ns_lshl_b32 s%d, s%d, 10' % (sCNT, sTBG, sVO, sTBG, sT1, sJ))
        e('s_mov_b32 s%d, 0x200000\ns_mov_b32 s%d, 0x20000' % (SX + 2, SX + 3))
        e('s_sub_u32 s%d, 0x400000, s%d\ns_mov_b32 s%d, 0x20000' % (SWQ + 2, sT1, SWQ + 3))
        e('s_waitcnt lgkmcnt(0)')
        self.stamp('kernarg')
        e('s_add_u32 s%d, s%d, s%d\ns_addc_u32 s%d, s%d, 0' % (SWQ, SWQ, sT1, SWQ + 1, SWQ + 1))
        for b, off, _ in bufs[2:]:
            e('s_load_dwordx2 s[%d:%d], s[0:1], %d' % (b, b + 1, off))
        wl = [Job('buffer_load_dwordx4 %s, v%d, %s, s%d offen' % (D, vACT, srd(SWQ), sVO), post=['s_add_u32 s%d, s%d, 0x100000' % (sVO, sVO)]) for i in range(4)]
        nf = self.opt('wq_first', 2)
        self.emit_jobs(wl[:nf])
        xl = [Job('buffer_load_dwordx4 %s, v%d, %s, s%d offen offset:%d' % (vr('v', vX + 4 * ks, 4), vT + 4, srd(SX), sCNT, 64 * ks)) for ks in range(16)]
        nx = self.opt('x_first', 10)
        self.emit_jobs(xl[:nx])
        self.stamp('x issued')
        mark = len(e.l)

        def lin(dst, c, *terms):
            for k, (reg, mul) in enumerate(terms):
                e('s_mul_i32 s%d, s%d, 0x%x' % (dst if k == 0 else sT0, reg, mul & 0xffffffff))
                if k:
                    e('s_add_u32 s%d, s%d, s%d' % (dst, dst, sT0))
            if c:
                e('s_add_u32 s%d, s%d, 0x%x' % (dst, dst, c))
        lin(sRING, WREG, (sW, WWAVE))
        lin(sW2K, 0, (sW, 2048))
        e('v_mov_b32 v%d, 1' % vONE)
        XS, XW, RA = self.XS, self.XW, self.RA
        e('v_lshlrev_b32 v%d, 1, v%d\nv_xor_b32 v%d, v%d, v%d\nv_lshl_or_b32 v%d, v%d, 4, v%d' % (vT, vT + 2, vT, vT, vT + 1, vT, vT + 2, vT))
        e('v_lshlrev_b32 v%d, 4, v%d\nv_lshl_add_u32 v%d, s%d, 14, v%d' % (vT, vT, XW, sW, vT))
        e('v_lshrrev_b32 v%d, 4, v%d\nv_lshlrev_b32 v%d, 5, v%d\nv_xor_b32 v%d, v%d, v%d' % (vT, vL, vT, vT, XS, vT, vACT))
        e('v_lshrrev_b32 v%d, 5, v%d\nv_and_b32 v%d, 15, v%d\nv_mul_u32_u24 v%d, 18, v%d\nv_xor_b32 v%d, v%d, v%d' % (vT, vL, vT + 1, vL, vT, vT, vT, vT, vT + 1))
        e('v_bfe_u32 v%d, v%d, 4, 1\nv_lshl_or_b32 v%d, v%d, 1, v%d\nv_lshlrev_b32 v%d, 3, v%d' % (vT + 1, vL, vT, vT, vT + 1, vT, vT))
        lin(sT1, 0, (sW, 16384), (sJ, 1024))
        e('v_add_u32 v%d, s%d, v%d\nv_xor_b32 v%d, 64, v%d' % (RA, sT1, vT, RA + 1, RA))
        C, RN, RK = vT, vT + 1, vT + 2
        e('v_and_b32 v%d, 7, v%d\nv_bfe_u32 v%d, v%d, 4, 2\nv_lshlrev_b32 v%d, 1, v%d\nv_xor_b32 v%d, v%d, v%d' % (C, vL, RN, vL, RN, RN, C, C, RN))
        e('v_lshlrev_b32 v%d, 4, v%d\nv_lshrrev_b32 v%d, 3, v%d' % (C, C, RN, vL))
        e('v_and_b32 v%d, 4, v%d\nv_add_u32 v%d, v%d, v%d' % (RK, RN, RK, RK, RN))
        e('v_lshl_add_u32 v%d, v%d, 13, v%d\nv_lshl_add_u32 v%d, s%d, 8, v%d' % (vDB, RK, C, vDB, sW, vDB))
        e('v_lshl_add_u32 v%d, v%d, 10, v%d\nv_lshl_add_u32 v%d, s%d, 17, v%d' % (vW1, RK, C, vW1, sW, vW1))
        e('v_lshl_add_u32 v%d, v%d, 10, v%d' % (vWN, RN, C))
        e('v_and_b32 v%d, 64, v%d\nv_mad_u32_u24 v%d, v%d, 7, v%d' % (RK, C, vW2, RK, vWN))
        W1W, W2W = vP, vP + 1
        e('v_mov_b32 v%d, v%d\nv_mov_b32 v%d, v%d' % (W1W, vWN, W2W, vW2))
        e('v_lshl_add_u32 v%d, s%d, 17, v%d\nv_lshl_add_u32 v%d, s%d, 7, v%d' % (vW2, sW, vW2, vWN, sW, vWN))
        e('v_mul_u32_u24 v%d, 3584, v%d\nv_lshl_add_u32 v%d, s%d, 7, v%d\nv_add_u32 v%d, v%d, v%d' % (RN, RN, C, sW, C, vW3, RN, C))
        e('v_mov_b32 v%d, 0x%x' % (vT + 5, OOB))
        lin(sKO, 0, (sT, 16384))
        RS, Z = vP + 2, vP + 3
        e('v_lshrrev_b32 v%d, 2, v%d\nv_lshlrev_b32 v%d, 17, v%d' % (RS, vL, RS, RS))
        e('v_and_b32 v%d, 3, v%d\nv_lshl_or_b32 v%d, v%d, 10, v%d' % (Z, vL, RS, Z, RS))
        e('v_cmp_gt_u32 vcc, 0x80, v%d' % (vT + 3))
        lin(sT1, 0, (sTBG, 1024), (sJ, 128))
        e('v_cndmask_b32 v%d, v%d, v%d, vcc' % (RS, vT + 5, RS))
        e('v_lshrrev_b32 v%d, 9, v%d\nv_cmp_eq_u32 vcc, 1, v%d' % (Z, vT + 3, Z))
        e('v_lshlrev_b32 v%d, 2, v%d\nv_add_u32 v%d, 0x%x, v%d' % (Z, vL, Z, 0x40000 - 128, Z))
        e('v_cndmask_b32 v%d, v%d, v%d, vcc' % (RS, RS, Z))
        e('v_cmp_eq_u32 vcc, 0, v%d\nv_mov_b32 v%d, s%d\ns_add_u32 s%d, s%d, 0x%x' % (vL, vFLAG, sT1, sRET, sT1, FLAG_OFF))
        e('v_cndmask_b32 v%d, v%d, v%d, vcc' % (vFLAG, vT + 5, vFLAG))
        e('v_cmp_eq_u32 vcc, 0, v%d\nv_mov_b32 v%d, 0\ns_add_u32 s%d, s%d, 0x%x' % (vT + 3, Z, sSTO, sT1, ST_OFF))
        e('v_cndmask_b32 v%d, v%d, 0, vcc' % (vPOFF, vT + 5))
        e('v_and_b32 v%d, 15, v%d\nv_lshrrev_b32 v%d, 4, v%d' % (vT, vL, vT + 1, vL))
        e('v_xor_b32 v%d, v%d, v%d\nv_lshlrev_b32 v%d, 4, v%d\nv_lshl_or_b32 v%d, v%d, 8, v%d' % (vT + 1, vT + 1, vT, vT + 1, vT + 1, vKA, vT, vT + 1))
        for ks in range(1, 4):
            e('v_xor_b32 v%d, 0x%x, v%d' % (vKA + ks, 64 * ks, vKA))
        e('v_lshrrev_b32 v%d, 2, v%d\nv_and_b32 v%d, 7, v%d\nv_lshlrev_b32 v%d, 5, v%d' % (vT, vL, vT + 1, vT, vT + 1, vT + 1))
        e('v_lshl_or_b32 v%d, v%d, 8, v%d\nv_and_b32 v%d, 3, v%d\nv_lshl_or_b32 v%d, v%d, 3, v%d' % (vT, vT, vT + 1, vT + 1, vL, vT, vT + 1, vT))
        for db in range(4, 8):
            e('v_xor_b32 v%d, 0x%x, v%d' % (vTR + db, VRING | db << 5, vT))
        self.put(self.waddr(vTR, vT, 's%d' % sRING))
        e('v_bfe_i32 v%d, v%d, 1, 1\nv_and_b32 v%d, 0x3f803f80, v%d\nv_xor_b32 v%d, 0x3f803f80, v%d' % (vT, vL, vT + 1, vT, vT + 2, vT + 1))
        e('v_bfe_i32 v%d, v%d, 0, 1\nv_and_b32 v%d, 0xaaaaaaaa, v%d\nv_or_b32 v%d, 0x44444444, v%d' % (vT, vL, vT, vT, vIDX, vT))
        for r in range(4):
            e('v_accvgpr_write_b32 a%d, v%d\nv_accvgpr_write_b32 a%d, v%d' % (aONES + r, vT + 2, aONE2 + r, vT + 1))
        for r in range(8):
            e('v_accvgpr_write_b32 a%d, 0' % (aL + r))
        lin(sHO, 0, (sTBG, 1 << 14), (sJ, 1 << 11))
        lin(sX1I, X1_OFF, (sTBG, 1 << 14))
        lin(sX1O, 0, (sJ, 1 << 10), (sX1I, 1))
        lin(sPO, 0, (sT, 1 << 19), (sJ, 1 << 11), (sW, 1 << 17))
        lin(sPI, 0, (sT, 1 << 19), (sJ, 1 << 16), (sW, 1 << 14))
        lin(sCF, FLAG_OFF + 0x40000, (sT, 1 << 12), (sJ, 1 << 7))
        lin(sFP, FLAG_OFF + 0x40000, (sT, 1 << 12), (sW, 256), (sJ, 4))
        lin(sXO, 0, (sTBG, 1 << 14), (sJ, 64))
        lin(sCW, 0, (sTBG, 1024))
        lin(sW3W, 0, (sTBG, 4 * 3584))
        lin(sWOW, 0, (sTBG, 4096))
        e('s_lshr_b32 s%d, s%d, 1\ns_lshl_b32 s%d, s%d, 13' % (sWSH, sTBG, sWSH, sWSH))
        e('s_mov_b32 s%d, %s\ns_mov_b32 s%d, %s\ns_mov_b32 s%d, 0' % (sC0, f2u(-K2), sC0 + 1, f2u(-K2), sPASS))
        e('s_waitcnt lgkmcnt(0)')
        shift = {SW1: [(sJ, 128)], SW2: [(sJ, 64)], SK: [(sJ, 1 << 19)], SV: [(sJ, 1 << 19)], SWO: [(sJ, 1 << 19)]}
        for b, _, size in bufs[2:]:
            if b in shift:
                lin(sT1, 0, *shift[b])
                e('s_add_u32 s%d, s%d, s%d\ns_addc_u32 s%d, s%d, 0\ns_sub_u32 s%d, 0x%x, s%d' % (b, b, sT1, b + 1, b + 1, b + 2, size, sT1))
            else:
                e('s_mov_b32 s%d, 0x%x' % (b + 2, size))
            e('s_mov_b32 s%d, 0x20000' % (b + 3))
        e('s_mov_b32 s%d, s%d\ns_mov_b32 s%d, s%d\ns_mov_b32 s%d, 0x200000\ns_mov_b32 s%d, 0x20000' % (SH, SWS, SH + 1, SWS + 1, SH + 2, SH + 3))
        ns = self.opt('x_setup', 0)
        setup, e.l = e.l[mark:], e.l[:mark]
        self.sprinkle(setup, xl[nx:nx + ns], start=self.opt('xs_start', 20), every=self.opt('xs_every', 25))
        self.xrest = xl[nx + ns:]
        self.early = wl[nf:] + [Job(Ins('buffer_store_dword v%d, v%d, %s, s%d offen sc1' % (Z, RS, srd(SWS), sRET), tag='reset')),
                                Job('buffer_load_dwordx4 %s, v%d, %s, s%d offen' % (D, W1W, srd(SW1), sWSH)),
                                Job('buffer_load_dwordx4 %s, v%d, %s, s%d offen' % (D, W2W, srd(SW2), sWSH))]
        self.early += (self.warm(SK, vACT, sWOW, (0, 1024, 2048, 3072)) + self.warm(SV, vACT, sWOW, (0, 1024, 2048, 3072)))[:self.opt('kv_early', 2)]
        self.stamp('setup')
        self.touch(0)
        self.stamp('touched')
        e('s_branch L_go\n.p2align 12\nL_go:')

    def p0(self):
        e = self.s
        e('@sec P0 layernorm')
        P = lambda b: vr('v', b, 2)
        A, X0 = vS, vS + 8
        o = ['v_lshlrev_b32 v%d, 16, v%d' % (X0 + 1, vX), 'v_mov_b32_dpp v%d, v%d quad_perm:[0,0,0,0] row_mask:0xf bank_mask:0xf' % (X0, X0 + 1)]
        for k in range(64):
            d = vACC + 2 * k
            o += ['v_lshlrev_b32 v%d, 16, v%d' % (d, vX + k), 'v_and_b32 v%d, 0xffff0000, v%d' % (d + 1, vX + k),
                  'v_pk_add_f32 %s, %s, %s op_sel_hi:[1,0] neg_lo:[0,1] neg_hi:[0,1]' % (P(d), P(d), P(X0))]
            if k == 0:
                o += ['v_pk_mul_f32 %s, %s, %s' % (P(A + 2), P(d), P(d))]
            else:
                o += ['v_pk_add_f32 %s, %s, %s' % (P(A), P(A) if k > 1 else P(vACC), P(d)), 'v_pk_fma_f32 %s, %s, %s, %s' % (P(A + 2), P(d), P(d), P(A + 2))]
        wq = []
        for k in range(6):
            wq += self.whalf('wq', self.pair_order(0)[k], k)
        nd = self.opt('p1_dma', 2)
        jobs = []
        while self.xrest or (wq and nd):
            jobs += self.xrest[:1] + wq[:nd if self.xrest else nd + 1]
            wq = wq[nd if self.xrest else nd + 1:]
            self.xrest = self.xrest[1:]
        self.sprinkle(o, jobs, start=self.opt('p1_start', 2), every=20 // (nd + 1) if nd else 10)
        self.stamp('x landed')
        o = ['v_add_f32 v%d, v%d, v%d' % (A, A, A + 1), 'v_add_f32 v%d, v%d, v%d' % (A + 2, A + 2, A + 3)]
        for qp in ('[1,0,3,2]', '[2,3,0,1]'):
            for r in (A, A + 2):
                o.append('v_add_f32_dpp v%d, v%d, v%d quad_perm:%s row_mask:0xf bank_mask:0xf' % (r, r, r, qp))
        M, V, R = A, A + 2, A + 4
        o += ['v_mul_f32 v%d, %s, v%d' % (M, f2u(1.0 / 512), M), 'v_mul_f32 v%d, %s, v%d' % (V, f2u(1.0 / 512), V),
              'v_fma_f32 v%d, -v%d, v%d, v%d' % (V, M, M, V), 'v_max_f32 v%d, 0, v%d' % (V, V),
              'v_add_f32 v%d, %s, v%d' % (R, f2u(1e-5), V), 'v_rsq_f32 v%d, v%d' % (R, R),
              'v_and_b32 v%d, 0xf0, v%d' % (A + 7, vACT),
              'v_mul_f32 v%d, v%d, v%d' % (A + 6, R, R), 'v_fmaak_f32 v%d, v%d, v%d, %s' % (A + 6, A + 6, V, f2u(1e-5)), 'v_rsq_f32 v%d, v%d' % (A + 6, A + 6),
              'v_mul_f32 v%d, %s, v%d' % (R, f2u(CSCALE), R), 'v_mul_f32 v%d, %s, v%d' % (A + 6, f2u(1.0 / CSCALE), A + 6),
              'v_mul_f32_e64 v%d, -v%d, v%d' % (M, M, R), 'ds_bpermute_b32 v%d, v%d, v%d' % (self.F1, A + 7, A + 6)]
        for ks in range(16):
            for k in range(4 * ks, 4 * ks + 4):
                d = P(vACC + 2 * k)
                o.append('v_pk_fma_f32 %s, %s, %s, %s op_sel_hi:[1,0,0]' % (d, d, P(R), P(M)))
            for k in range(4 * ks, 4 * ks + 4):
                o.append('v_cvt_pk_bf16_f32 v%d, v%d, v%d' % (vX + k, vACC + 2 * k, vACC + 2 * k + 1))
            o.append('ds_write_b128 v%d, %s offset:%d' % (self.XW, vr('v', vX + 4 * ks, 4), 1024 * ks))
        nw, nl = 4 * self.opt('ln_w', 4), self.opt('ln_jobs', 22)
        jobs = wq[:nw] + self.early + wq[nw:]
        self.p2_first = jobs[nl:]
        self.sprinkle(o, jobs[:nl], start=self.opt('ln_start', 0), every=self.opt('ln_every', 2 if nd else 7))
        for nb in range(4):
            e('ds_read_b64 %s, v%d offset:%d' % (vr('a', aRES + 2 * nb, 2), self.RA + (nb & 1), 8192 * (nb >> 1) + 512 * (nb & 1)))
        e('v_lshl_add_u32 v%d, s%d, 14, v%d' % (self.XW, sW, self.XS))

    def kv_dma(self, which, unit, tag):
        buf, ring, so, vo = (SK, KRING, sKO, vDB) if which == 'K' else (SV, VRING, sVO, vDB + 2)
        fl = self.o.get('kvflag', 'nt_').replace('_', ' ') if self.kv_nt else ''
        m0 = 's_add_u32 m0, s%d, 0x%x' % (sW2K, ring + 8192 * (unit & 3))
        return [Job(Ins('buffer_load_dwordx4 v%d, %s, s%d offen %slds' % (vo, srd(buf), so, fl), tag=tag), m0=m0),
                Job(Ins('buffer_load_dwordx4 v%d, %s, s%d offen offset:1024 %slds' % (vo + 1, srd(buf), so, fl), tag=tag), m0=m0,
                    post=['s_add_u32 s%d, s%d, 0x2000' % (so, so), 's_and_b32 s%d, s%d, 0x7ffff' % (so, so)])]

    def pair_order(self, early):
        sg = [(kp, hf) for kp in range(8 - early) for hf in range(2)] + [(kp, hf) for hf in range(2) for kp in range(8 - early, 8)]
        return [2 * (2 * kp + kk) + hf for kp, hf in sg for kk in range(2)]

    def pair_groups(self, name, od):
        return [(['%s%d' % (name, k) for k in od[h:h + 2]], [k >> 1 for k in od[h:h + 2]],
                 [vACC + 64 * (od[h] & 1) + 16 * b for b in range(4)], od[h] < 2) for h in range(0, 32, 2)]

    def p2(self):
        e = self.s
        e('@sec P2')
        od = self.pair_order(0)
        later = [self.whalf('wq', od[h], h) if h < 32 else self.whalf('w1', h - 32, h) for h in range(6, 36)]
        if self.opt('kvwarm', 0):
            later[25] = later[25] + self.warm(SK, vACT, sWOW, (0, 1024, 2048, 3072)) + self.warm(SV, vACT, sWOW, (0, 1024, 2048, 3072))
        p = self.gemm(0, self.pair_groups('wq', od), lambda k, tb: (self.XS, (tb * 16 + k) * 1024),
                      later, self.p2_first, lambda: (self.s('s_barrier', need=['*lg']), self.stamp('P0 end')))
        self.q_first = p.rest
        for ks in range(16):
            p.g[16 * (ks + 2) + 7]['ds'].append('ds_read_b128 %s, v%d offset:%d' % (vr('v', vX + 4 * ks, 4), self.XW, 1024 * ks))
        assert not p.fill(self.waddr(vP + 12, vT, '0x%x' % (WREG + 8192)) + ['v_mov_b32 v%d, %s' % (vP + 10, f2u(-K1))], 16)
        f = ('v_lshrrev_b32 v%d, 4, v%d\nv_and_b32 v%d, 15, v%d\nv_lshl_add_u32 v%d, v%d, 8, s%d\n' % (vT, vL, vT + 1, vL, vT + 2, vT, sW2K) +
             'v_bfe_u32 v%d, v%d, 8, 4\nv_xor_b32 v%d, v%d, v%d\n' % (vT + 3, vT + 2, vT + 3, vT + 3, vT + 1) +
             'v_lshl_add_u32 v%d, v%d, 4, v%d\nv_xor_b32 v%d, 64, v%d\n' % (vDB, vT + 3, vT + 2, vDB + 1, vDB) +
             'v_lshlrev_b32 v%d, 1, v%d\nv_xor_b32 v%d, v%d, v%d\n' % (vT + 3, vT, vT + 3, vT + 3, vT + 1) +
             'v_lshl_add_u32 v%d, v%d, 4, v%d\nv_xor_b32 v%d, 0x80, v%d' % (vDB + 2, vT + 3, vT + 2, vDB + 3, vDB + 2)).split('\n')
        assert not p.fill(f, 32 * 14)
        assert not p.fill(self.vaddr_restore(), 16 * 31 + 2)
        p.jobs(self.flat([Job(Ins('buffer_atomic_add v%d, v%d, %s, s%d offen sc1' % (vONE, vPOFF, srd(SDBG), sT0), need=['reset']),
                              pre=['s_lshl_b32 s%d, s%d, 3' % (sT0, sT), 's_mov_b32 s%d, s%d' % (sVO, sKO)])]), p.empty(16 * 31 + 10, 1), lo=16 * 31 + 5)
        p.emit(self)
        self.stamp('P2 end')

    def q_p1(self):
        e = self.s
        e('@sec Q epilogue')
        if self.o.get('diag', '').startswith('xcc'):
            e('s_getreg_b32 s98, hwreg(HW_REG_XCC_ID)\ns_sub_u32 s98, s98, s%d\ns_and_b32 s98, s98, 7\ns_lshl_b32 s98, 1, s98' % sJ)
            e('v_mov_b32 v%d, s98\nbuffer_atomic_or v%d, v%d, %s, 0 offen offset:4 sc1' % (vT, vT, vPOFF, srd(SDBG)))
        e('s_barrier', need=['*lg'])
        jobs = self.q_first + self.tile_dma(0, 'kv0')
        o, wr = [], []
        fr = [(qb, ks) for qb in range(4) for ks in range(4)]
        for n in range(0, 16, 2):
            ts = []
            for qb, ks in fr[n:n + 2]:
                a = vACC + 32 * ks + 4 * qb
                o += self.pack(a + 16, a, a + 16)
                ts.append(a + 16)
            for op in ('v_permlane32_swap_b32', 'v_permlane16_swap_b32'):
                for t in ts:
                    o += ['%s v%d, v%d' % (op, t, t + 2), '%s v%d, v%d' % (op, t + 1, t + 3)]
            for (qb, ks), t in zip(fr[n:n + 2], ts):
                (wr if self.opt('q_in_p1', 1) else o).extend('v_accvgpr_write_b32 a%d, v%d' % (aQ + 16 * qb + 4 * ks + r, t + r) for r in range(4))
        self.sprinkle(o, jobs, every=self.opt('q_every', 4))
        self.stamp()
        e('@sec P1')
        e('s_barrier', need=['w13'])
        self.g16('v', vS, 0, vP + 12, wr)
        o = []
        for nb in range(4):
            o += self.gelu4(vS + 4 * nb, vX + 2 * nb, vP + 4 * (nb & 1), vP + 10, scale=self.F1)
        self.sprinkle(o, self.tile_dma(1, 'kv1'), every=11)
        for p in range(2):
            e('buffer_store_dwordx4 %s, v%d, %s, s%d offen offset:%d sc1' % (vr('v', vX + 4 * p, 4), vACT, srd(SH), sHO, 1024 * p), tag='hst')
        self.stamp()

    def p3(self, kreads):
        e = self.s
        self.stamp()
        e('@sec P3')
        acc = aK
        self.put(self.waddr(vT, vT + 4, '0x%x' % (WREG + 8192)))
        self.g16('a', acc, aK + 32, vT)
        X, R, PK = vX, vX + 16, vX + 32
        P = lambda b: vr('v', b, 2)
        for k in range(8):
            e('v_accvgpr_read_b32 v%d, a%d' % (PK + k, aRES + k))
        for k in range(8):
            e('v_lshlrev_b32 v%d, 16, v%d\nv_and_b32 v%d, 0xffff0000, v%d' % (R + 2 * k, PK + k, R + 2 * k + 1, PK + k))
        e('v_mov_b32 v%d, %s' % (PK + 8, f2u(1.0 / CSCALE)))
        for k in range(16):
            e('v_accvgpr_read_b32 v%d, a%d' % (X + k, acc + k))
        mark = len(e.l)
        for k in range(8):
            e('v_pk_fma_f32 %s, %s, %s, %s op_sel_hi:[1,0,1]' % (P(X + 2 * k), P(R + 2 * k), P(PK + 8), P(X + 2 * k)))
        for k in range(8):
            e('v_cvt_pk_bf16_f32 v%d, v%d, v%d' % (PK + k, X + 2 * k, X + 2 * k + 1))
        e('s_add_u32 s%d, s%d, 0x2000' % (sT1, sX1O))
        for p in range(2):
            e('buffer_store_dwordx4 %s, v%d, %s, s%d offen sc1' % (vr('v', PK + 4 * p, 4), vACT, srd(SWS), sT1 if p else sX1O))
        for k in range(8):
            e('v_lshlrev_b32 v%d, 16, v%d\nv_and_b32 v%d, 0xffff0000, v%d' % (X + 2 * k, PK + k, X + 2 * k + 1, PK + k))
            e('v_accvgpr_write_b32 a%d, v%d' % (aX1 + k, PK + k))
        for k in range(4):
            e('v_pk_add_f32 %s, %s, %s' % (P(R + 2 * k), P(X + 2 * k), P(X + 8 + 2 * k)))
        e('v_pk_add_f32 %s, %s, %s\nv_pk_add_f32 %s, %s, %s' % (P(R), P(R), P(R + 2), P(R + 4), P(R + 4), P(R + 6)))
        e('v_pk_add_f32 %s, %s, %s\nv_add_f32 v%d, v%d, v%d' % (P(R), P(R), P(R + 4), R + 8, R, R + 1))
        self.put(self.lanesum(R + 8, R + 10))
        e('v_mul_f32 v%d, %s, v%d' % (R + 8, f2u(1.0 / 64), R + 8))
        for k in range(8):
            e('v_pk_add_f32 %s, %s, %s op_sel_hi:[1,0] neg_lo:[0,1] neg_hi:[0,1]' % (P(X + 2 * k), P(X + 2 * k), P(R + 8)))
        for k in range(8):
            e('v_pk_fma_f32 %s, %s, %s, %s' % (P(R), P(X + 2 * k), P(X + 2 * k), P(R)) if k else 'v_pk_mul_f32 %s, %s, %s' % (P(R), P(X), P(X)))
        e('v_add_f32 v%d, v%d, v%d' % (R + 9, R, R + 1))
        e('v_lshlrev_b32 v%d, 3, v%d\nv_mov_b32 v%d, 0x%x\nv_cmp_gt_u32 vcc, 16, v%d' % (R, vL, R + 1, OOB, vL))
        self.put(self.lanesum(R + 9, R + 10))
        e('v_cndmask_b32 v%d, v%d, v%d, vcc' % (R, R + 1, R))
        e('buffer_store_dwordx2 %s, v%d, %s, s%d offen sc1' % (P(R + 8), R, srd(SWS), sSTO), tag='x1st')
        epi, e.l = e.l[mark:], e.l[:mark]
        for k, x in enumerate(epi):
            if k % 16 == 0:
                self.put(kreads[k // 4:k // 4 + 4])
            e.add(x)
        self.stamp()
        e('@sec attention 1b')

    def krd(self, u, f, base=aK):
        kb, ks = f >> 2, f & 3
        return 'ds_read_b128 %s, v%d offset:%d' % (vr('a', base + 32 * (u & 1) + 4 * f, 4), vKA + ks, KRING + 8192 * (u & 3) + 4096 * kb)

    def vrd(self, u, h):
        db, g = h >> 1, h & 1
        return 'ds_read_b64_tr_b16 %s, v%d offset:%d' % (vr('a', aV + 32 * (u & 1) + 4 * db + 2 * g, 2), vTR + db, 8192 * (u & 3) + 4096 * g)

    def rowsum(self, d, ones, p):
        return 'v_smfmac_f32_16x16x64_bf16 %s, %s, %s, v%d' % (vr('a', aL + 4 * d, 4), vr('a', ones, 4), vr('v', p, 8), vIDX)

    KV_GAPS = ((5, 1), (5, 5), (5, 9), (5, 13), (6, 1), (6, 5), (6, 13), (7, 1))
    SIDE_GAPS = {7: (5, 13), 0: (1, 5, 9, 13), 1: (1, 5), 4: (9, 13)}

    def tile_dma(self, T, tag):
        return sum([self.kv_dma(w, 2 * T + k, tag + w) for w in 'KV' for k in range(2)], [])

    def segment(self, seg, NS, sched, loop=None, inline=None, extra=()):
        e = self.s
        NT, inline = NS // 8, inline or {}
        side, chk, fill = {}, {}, {}

        def slots(n):
            T, h = n >> 3, n & 7
            if n < 3 or n >= NS:
                return [1, 3, 5, 7] if n > NS else []
            g = list(self.SIDE_GAPS.get(h, ()))
            if T + 2 >= NT:
                g += [x for hh, x in self.KV_GAPS if hh == h]
            if T + 1 == NT:
                g += {4: [5], 6: [9], 7: [9]}.get(h, [])
            return sorted(g)

        def spread(jobs, n, stop, rate=4):
            jobs = list(jobs)
            while jobs:
                assert n < stop, 'side jobs do not fit'
                room = min(rate, len(slots(n)) - (n in chk) - len(side.get(n, [])))
                while room > 0 and jobs:
                    side.setdefault(n, []).append(jobs.pop(0))
                    room -= 1
                n += 1
        sched(spread, chk, fill)
        lab = 'L_attn%d' % seg
        plans, use = [], {}
        for n in range(NS + 3):
            T, h = n >> 3, n & 7
            p = Plan()
            if n < NS:
                for kb in range(2):
                    d = vr('v', vS + 8 * (n & 1) + 4 * kb, 4)
                    for i, ks in enumerate(range(3, -1, -1) if kb else range(4)):
                        j = p.add(mfma(d, vr('a', aK + 32 * (n & 1) + 16 * kb + 4 * ks, 4), vr('a', aQ + 16 * (h >> 1) + 4 * ks, 4), self.o.get('c0', '-4.0') if i == 0 else None))
                        use.setdefault(('K', T, n & 1, 4 * kb + ks), []).append((n, j))
            if n >= 3:
                m, dh = (n - 3) >> 1, (n - 3) & 1
                for db in range(4 * dh, 4 * dh + 4):
                    for i, kk in enumerate((1, 0) if db & 1 else (0, 1)):
                        j = p.add(mfma(vr('v', vACC + 16 * db + 4 * (m & 3), 4), vr('a', aV + 32 * kk + 4 * db, 4), vr('v', vP + 8 * (m & 1) + 4 * kk, 4),
                                       '0' if (m < 4 and seg == 0 and i == 0) else None))
                        use.setdefault(('V', m >> 2, kk, db), []).append((n, j))
            g, full = p.g, len(p.mf) == 16
            if 1 <= n <= NS:
                sb, pb = vS + 8 * ((n - 1) & 1), vP + 4 * ((n - 1) & 3)
                lag = 2 if n < 3 else 0
                for k in range(8):
                    g[2 * k if full else min(k + lag, 7)]['va'].append('v_exp_f32 v%d, v%d' % (sb + k, sb + k))
                    if k & 1:
                        g[2 * k + 1 if full else min(k + lag + 1, 7)]['va'].append('v_cvt_pk_bf16_f32 v%d, v%d, v%d' % (pb + k // 2, sb + k - 1, sb + k))
            jobs, pos = [], []
            self.kv_nt = False
            if seg and n < 2:
                jobs, pos = self.tile_dma(1, 'kv1')[4 * n:4 * n + 4], [0, 2, 4, 6]
            if T + 2 < NT and n < NS:
                for jb, (hh, x) in zip(self.tile_dma(T + 2, 'kv%d' % (T + 2)), self.KV_GAPS):
                    if hh == h:
                        jobs.append(jb)
                        pos.append(x)
            free = slots(n)
            if n in chk:
                g[free.pop()]['end'] += chk[n]
            jobs += side.get(n, [])
            pos += free[:len(side.get(n, []))]
            assert pos == sorted(pos)
            if full and h == 4:
                late_v = seg and T == 0
                g[14]['sc'].append(Ins('@need', need=(['kv%d%s' % (T + 1, 'K' if late_v else 'V')] if T + 1 < NT else []) + ['*lg']))
                g[15]['sc'].append('s_barrier')
            if seg and n == 9:
                g[0]['sc'].append(Ins('s_barrier', need=['kv1V']))
            if loop and loop[0] <= n < loop[1] and (n - loop[0]) % 16 == 15:
                g[10]['sc'].append('s_sub_u32 s%d, s%d, 1' % (sCNT, sCNT))
                g[12]['sc'].append('s_cmp_lg_u32 s%d, 0' % sCNT)
            prev, pend = p.jobs(self.flat(jobs), pos)
            p.scalars(pend, prev + 1, 10 if prev < 8 and full else len(g))
            plans.append(p)
        reads, pre, held = [], [], {}
        for (w, T, k, f), u in use.items():
            ins = [self.krd(2 * T + k, f)] if w == 'K' else [self.vrd(2 * T + k, 2 * f + x) for x in range(2)]
            if w == 'K' and 8 * T in inline:
                held.setdefault(8 * T, []).extend(ins)
            elif w == 'K' and T == 0 and k == 0:
                pre += ins
            else:
                reads.append((u[0], use[w, T - 1, k, f][-1] if T else (0, 0), ins))
        reads.sort()
        reads += [((NS + 3, 0), at, ins) for at, ins in extra]
        for first, (n, j), ins in reads:
            for x in ins:
                while True:
                    p = plans[n]
                    g = p.g[j]
                    if len(p.mf) == 16:
                        ok = j & 1 and p.cap(j) > 0
                    else:
                        ok = not g['vm'] and len(g['ds']) < 2
                    if ok:
                        break
                    n, j = (n, j + 1) if j + 1 < len(p.mf) else (n + 1, 0)
                g['ds'].append(x)
                assert (n, j) < first and not ((n & 7) == 4 and j > 8), (n, j)
        if loop:
            e('s_mov_b32 s%d, %d' % (sCNT, (loop[1] - loop[0]) // 16))
        e('s_barrier', need=['kv0V', '*lg'])
        self.put(pre)
        carry, dead = [], 0
        for n, p in enumerate(plans):
            if n in inline:
                inline[n](held[n])
            inloop = loop and loop[0] <= n < loop[1]
            if self.opt('astamp', 0) and n % 8 == 0 and not (loop and loop[0] <= n <= loop[1]) and n not in inline:
                self.stamp('s%d_%d' % (seg, n))
            if loop and n == loop[0]:
                self.stamp('pre')
            if inloop and (n - loop[0]) % 16 == 0:
                e('@rep %s %d' % (lab, n))
            if loop and n == loop[1]:
                e('@endrep ' + lab)
                self.stamp('loop')
            if n in fill:
                assert not carry
                carry, dead = fill[n]
            carry = p.fill(carry)
            if carry and n + 1 >= dead:
                p.g[-1]['va'] += carry
                carry = []
            if n >= 3 and n & 1:
                m = (n - 3) >> 1
                p.g[7 if len(p.mf) == 16 else 3]['end'].append(self.rowsum((m >> 1) & 1, aONE2 if m & 1 else aONES, vP + 8 * (m & 1)))
            if inloop and (n - loop[0]) % 16 == 15:
                p.g[15]['end'].append('s_cbranch_scc1 ' + lab)
            p.emit(self)
        self.stamp()

    def code_addr(self):
        return ['v_add_u32 v%d, s%d, v%d' % (vT, sCW, vACT), 'v_min_u32 v%d, s%d, v%d' % (vT, SCODE + 2, vT), 'v_mov_b32 v%d, 0' % (vT + 1),
                'v_lshl_add_u64 %s, %s, 0, s[%d:%d]' % (vr('v', vT, 2), vr('v', vT, 2), SCODE, SCODE + 1)]

    def code_warm(self):
        return [Job('global_load_dwordx4 %s, %s, off' % (vr('a', aDUMMY, 4), vr('v', vT, 2)))]

    def warm(self, buf, vo, so, offs):
        return [Job('buffer_load_dwordx4 %s, v%d, %s, s%d offen offset:%d' % (vr('a', aDUMMY, 4), vo, srd(buf), so, o)) for o in offs]

    def attention1(self):
        e = self.s
        e('@sec attention 1a')
        U, F, G = vX + 48, vT + 4, vT
        N1, P3 = self.opt('n1', 176), self.opt('p3', 40)
        L0, L1 = P3 + 8, N1 - 48
        f0 = ('v_and_b32 v%d, 3, v%d\nv_min_u32 v%d, 2, v%d\n' % (U, vL, U, U) +
              'v_add3_u32 v%d, v%d, s%d, -1\nv_med3_i32 v%d, v%d, 0, 31\nv_lshlrev_b32 v%d, 3, v%d' % (U, U, sT, U, U, vPOFF, U)).split('\n')
        f1 = ('v_bfe_u32 v%d, v%d, 1, 1\nv_lshl_add_u32 v%d, v%d, 1, -1\n' % (U, vL, U, U) +
              'v_bfe_u32 v%d, v%d, 3, 1\nv_mul_i32_i24 v%d, v%d, v%d\n' % (U + 1, vL, U, U, U + 1) +
              'v_add_u32 v%d, s%d, v%d\nv_max_i32 v%d, 0, v%d\nv_min_i32 v%d, 0x7f, v%d\n' % (U, sTBG, U, U, U, U, U) +
              'v_and_b32 v%d, 7, v%d\nv_lshl_or_b32 v%d, v%d, 3, v%d\n' % (U + 1, vL, U, U, U + 1) +
              'v_lshlrev_b32 v%d, 7, v%d\nv_add_u32 v%d, 0x%x, v%d' % (U, U, F, FLAG_OFF, U)).split('\n')
        f2 = ('v_and_b32 v%d, 15, v%d\nv_lshl_add_u32 v%d, s%d, 4, v%d\nv_and_b32 v%d, 48, v%d' % (U, vL, U, sTBG, U, U + 1, vL)).split('\n')
        for g, dlt in enumerate((-1, 1, -2, 2)):
            f2 += ['v_add_u32 v%d, %d, v%d' % (U + 2, dlt, U), 'v_and_or_b32 v%d, v%d, 15, v%d' % (U + 3, U + 2, U + 1),
                   'v_bfe_u32 v%d, v%d, 4, 8' % (U + 2, U + 2), 'v_lshl_or_b32 v%d, v%d, 10, v%d' % (U + 3, U + 2, U + 3),
                   'v_lshlrev_b32 v%d, 4, v%d' % (U + 3, U + 3), 'v_add_u32 v%d, 0x%x, v%d' % (G + g, 4096 * g, U + 3)]
        f3 = ('v_lshrrev_b32 v%d, 4, v%d\nv_and_b32 v%d, 15, v%d\nv_mul_u32_u24 v%d, 3584, v%d\n' % (vT, vL, vT + 1, vL, vT + 2, vT) +
              'v_lshl_add_u32 v%d, v%d, 4, v%d\nv_lshlrev_b32 v%d, 8, v%d\nv_lshl_or_b32 v%d, v%d, 3, v%d\n' % (vT + 3, vT + 1, vT + 2, vT, vT, vT, vT + 1, vT) +
              'v_lshl_add_u32 v%d, s%d, 10, v%d\nv_add_u32 v%d, 0x%x, v%d\n' % (vT, sTBG, vT, vT + 4, ST_OFF, vT) +
              'v_and_b32 v%d, 7, v%d\nv_lshl_or_b32 v%d, s%d, 3, v%d\n' % (vT, vL, vT, sTBG, vT) +
              'v_lshlrev_b32 v%d, 7, v%d\nv_add_u32 v%d, 0x%x, v%d' % (vT, vT, vPOFF, FLAG_OFF + 131072, vT)).split('\n')
        R, M, O = vT, vT + 1, vT + 2
        f3 += ['v_or_b32 v%d, s%d, v%d' % (M, sW, vL), 'v_cmp_eq_u32 vcc, 0, v%d' % M, 'v_mov_b32 v%d, 0x%x' % (O, OOB), 'v_mov_b32 v%d, 1' % R,
               'v_cndmask_b32 v%d, v%d, 0, vcc' % (M, O)]
        dbg = lambda op, off: Job('%s v%d, v%d, %s, s%d offen offset:%d %ssc1' % (op, R, M, srd(SDBG), sT2, off, 'sc0 ' * ('atomic' in op)),
                                  pre=['s_lshl_b32 s%d, s%d, 3' % (sT2, sJ) if off != 68 else 's_mov_b32 s%d, 0' % sT2])
        CB, SM = sT0, sT1
        slices = ['v_readfirstlane_b32 s%d, v%d' % (sRANK, vPRES), 'v_and_b32 v%d, 64, v%d' % (O, vWN), 's_sub_u32 s%d, s%d, 1' % (sRANK, sRANK),
                  's_and_b32 s%d, s%d, 7' % (sRANK, sRANK),
                  's_lshl_b32 s%d, s%d, 9' % (CB, sRANK), 's_min_u32 s%d, s%d, 0xd00' % (CB, CB),
                  's_add_u32 s%d, s%d, s%d' % (sW3W, sW3W, CB), 's_lshl_b32 s%d, s%d, 9' % (sT2, CB), 'v_add_u32 v%d, s%d, v%d' % (vW2, sT2, vWN),
                  's_cmp_ge_u32 s%d, 6' % sRANK, 's_cselect_b32 s%d, 1, 0' % SM, 's_cselect_b32 s%d, 10, 11' % sW4W, 's_cselect_b32 s%d, 1791, 0' % sSTEP,
                  's_lshl_b32 s%d, s%d, s%d' % (sW4W, sTBG, sW4W), 's_add_u32 s%d, s%d, s%d' % (sW4W, sW4W, sT2),
                  'v_mad_u32_u24 v%d, s%d, v%d, v%d' % (vW3, sSTEP, O, vW3), 's_lshl_b32 s%d, 0x%x, s%d' % (sSTEP, 32 * 3584, SM),
                  's_mul_i32 s%d, s%d, s%d' % (SM, SM, sW), 's_lshl_b32 s%d, s%d, 6' % (SM, SM), 's_sub_u32 s%d, s%d, s%d' % (CB, CB, SM),
                  'v_add_u32 v%d, s%d, v%d' % (vW3, CB, vW3),
                  's_sub_u32 s%d, s%d, s%d' % (sT2, sRANK, sJ), 's_lshl_b32 s%d, s%d, 11' % (sT2, sT2), 's_add_u32 s%d, s%d, s%d' % (sYO, sPO, sT2)]
        A, LR, LB, LT = vX + 56, self.LR, self.LB, vT + 4
        f4 = ['v_accvgpr_read_b32 v%d, a%d' % (A + r, aSTAT + r) for r in range(4)]
        f4 += ['v_add_f32 v%d, v%d, v%d' % (A + 4, A, A + 2)] + self.lanesum(A + 4, A + 5)
        f4 += ['v_mul_f32 v%d, 0x3e000000, v%d' % (A + 4, A + 4), 'v_sub_f32 v%d, v%d, v%d' % (A, A, A + 4), 'v_sub_f32 v%d, v%d, v%d' % (A + 2, A + 2, A + 4),
               'v_mul_f32 v%d, v%d, v%d' % (A, A, A), 'v_fmac_f32 v%d, v%d, v%d' % (A, A + 2, A + 2), 'v_add_f32 v%d, v%d, v%d' % (A + 1, A + 1, A + 3),
               'v_fmac_f32 v%d, 0x42800000, v%d' % (A + 1, A)] + self.lanesum(A + 1, A + 5)
        f4 += ['v_mov_b32 v%d, %s' % (LR, f2u(1e-5)), 'v_fmac_f32 v%d, %s, v%d' % (LR, f2u(1.0 / 512), A + 1), 'v_rsq_f32 v%d, v%d' % (LR, LR),
               'v_sub_f32 v%d, 0, v%d' % (A + 4, A + 4), 'v_mul_f32 v%d, v%d, v%d' % (LB, A + 4, LR)]
        f5, self.ln_done = [], self.opt('ln_fill', 5)
        for k in range(vX, vX + 4 * self.ln_done):
            f5 += ['v_lshlrev_b32 v%d, 16, v%d' % (LT, k), 'v_and_b32 v%d, 0xffff0000, v%d' % (k, k), 'v_fma_f32 v%d, v%d, v%d, v%d' % (LT, LT, LR, LB),
                   'v_fma_f32 v%d, v%d, v%d, v%d' % (k, k, LR, LB), 'v_cvt_pk_bf16_f32 v%d, v%d, v%d' % (k, LT, k)]
        f6 = ['v_lshl_add_u32 v%d, s%d, 14, v%d' % (vT + 3, sW, vACT)] + self.waddr(vTR, vT, 's%d' % sRING)
        f6 += ['v_mov_b32 v%d, v%d' % (vS + 6, LR), 'v_mov_b32 v%d, v%d' % (vS + 4, LB)]
        self.put(f0)

        def sched(spread, chk, fill):
            c0, c1 = 12, P3 - 20
            chk[c0] = self.poll_check(SDBG, 8) + [Ins('v_mov_b32 v%d, v%d' % (vPOFF, F))]
            chk[c1] = self.poll_check(SWS, 1)
            chk[L1 + 4] = self.poll_check(SWS, 1) + ['v_mov_b32 v%d, 132' % vPOFF, 'v_lshl_add_u32 v%d, s%d, 3, v%d' % (vPOFF, sJ, vPOFF)]
            chk[L1 + 7] = ['v_cmp_eq_u32 vcc, %d, v%d' % (self.opt('quant', 15), R), 'v_mov_b32 v%d, 1' % R, 'v_cndmask_b32 v%d, v%d, v%d, vcc' % (M, O, M)]
            chk[L1 + 15] = ['v_add_u32 v%d, 1, v%d' % (R, R)]
            chk[L1 + 28] = self.poll_check(SDBG, 0) + slices + self.code_addr()
            fill[4], fill[c0], fill[P3] = (f1, c0), (f2, c1 + 1), (f3, P3 + 6)
            fill[L1 + 12], fill[L1 + 23], fill[N1 + 2] = (f4, L1 + 23), (f5, N1 + 2), (f6, N1 + 3)
            spread([self.flag_store(0, ['hst'])], 4, 5)
            spread([self.poll_load(SDBG)], 7, 8)
            spread([self.poll_load(SWS)], c1 - 5, c1 - 4)
            w2 = []
            for k in range(4):
                w2 += self.whalf('w2', k, 2 + k)
            spread(w2, 4, P3 - 19)
            spread([Job('buffer_load_dwordx4 %s, v%d, %s, 0 offen offset:%d sc1' % (vr('v', vX + 4 * k, 4), G + (k >> 2), srd(SH), 1024 * (k & 3)))
                    for k in range(16)], c1 + 1, P3 - 3, 2)
            spread([self.flag_store(1, ['x1st'])], P3 + 4, P3 + 5)
            spread([self.poll_load(SWS), dbg('buffer_atomic_add', 4)], L1, L1 + 1)
            spread([dbg('buffer_atomic_add', 68)], L1 + 8, L1 + 9)
            spread([dbg('buffer_store_dword', 132)], L1 + 16, L1 + 17)
            spread([self.poll_load(SDBG)], L1 + 24, L1 + 25)
            spread([Job('buffer_load_dwordx2 %s, v%d, %s, 0 offen offset:%d sc1' % (vr('a', aSTAT + 2 * k, 2), vT + 4, srd(SWS), 128 * k)) for k in range(2)]
                   + self.gather('v', vX, sX1I, 0, 'sc1' + ' nt' * self.opt('nt1', 0)), L1 + 7, L1 + 29, 2)
            spread(self.warm(SW3, vT + 3, sW3W, (0, 256)) + self.warm(SW4, vACT, sW4W, (0, 1024)) + self.code_warm(), L1 + 31, L1 + 33, 3)
            spread(sum([self.whalf('w3', k, k, None) for k in range(self.opt('w3pre', 6))], []), N1 - self.opt('w3at', 9), N1 + 2)
        self.segment(0, N1, sched, loop=(L0, L1), inline={P3: self.p3})

    def h2a(self, tb, slot):
        return 16384 + (tb & 1) * 8192 + (tb >> 1) * 32768 + slot * 1024

    def mlp(self):
        e = self.s
        P = lambda b: vr('v', b, 2)
        e('@sec LN x1')
        o, wr = [], ['ds_write_b128 v%d, %s offset:%d' % (vT + 3, vr('v', vX + 4 * ks, 4), 1024 * ks) for ks in range(16)]
        for ks in range(self.ln_done, 16):
            t = vP + 8 * (ks & 1)
            for k in range(4):
                o += ['v_lshlrev_b32 v%d, 16, v%d' % (t + 2 * k, vX + 4 * ks + k), 'v_and_b32 v%d, 0xffff0000, v%d' % (t + 2 * k + 1, vX + 4 * ks + k)]
            if ks - self.ln_done < self.ln_done:
                o.append(wr[ks - self.ln_done])
            for k in range(4):
                o.append('v_pk_fma_f32 %s, %s, %s, %s op_sel_hi:[1,0,0]' % (P(t + 2 * k), P(t + 2 * k), P(vS + 6), P(vS + 4)))
            for k in range(4):
                o.append('v_cvt_pk_bf16_f32 v%d, v%d, v%d' % (vX + 4 * ks + k, t + 2 * k, t + 2 * k + 1))
            o.append(wr[ks])
        o += wr[16 - self.ln_done:self.ln_done]
        self.put(o)
        self.touch(1)
        self.stamp()
        e('s_cmp_ge_u32 s%d, 6\ns_cbranch_scc1 L_mlp_small' % sRANK)
        n0, names = self.nstamp, len(self.tail)
        main, self.s = self.s, Stream(known=['w3%d' % k for k in range(self.opt('w3pre', 6))])
        self.s('L_mlp_small:\ns_waitcnt vmcnt(0) lgkmcnt(0)')
        self.mlp_body(True)
        self.s('s_waitcnt vmcnt(0) lgkmcnt(0)\ns_branch L_mlp_done')
        self.s.insert_waits()
        self.s.pad_hazards()
        self.aside, self.s = self.s, main
        self.nstamp, self.tail[names:] = n0, []
        self.mlp_body(False)
        e('L_mlp_done:')

    def mlp_body(self, small):
        e = self.s
        P = lambda b: vr('v', b, 2)
        e('@sec P5')
        n3 = 8 if small else 16
        sync = lambda: self.s('s_barrier', need=['*lg'])
        piece = lambda h: self.whalf('w3', h, h, small) if h < n3 else self.whalf('w4', h - n3, h, small)
        groups = [(['w3%d' % (k // 2)] if small else ['w3%d' % k, 'w3%d' % (k + 1)], [k, k + 1], [vX + 16 * b for b in range(n3 // 4)], k == 0) for k in range(0, 16, 2)]
        p = self.gemm(0, groups, lambda k, tb: (vACT, (tb * 16 + k) * 1024), [piece(h) for h in range(6, n3 + 6)], sum([piece(h) for h in range(self.opt('w3pre', 6), 6)], []), sync)
        HW, KC = vT, vT + 2
        f = ('v_lshl_add_u32 v%d, s%d, %d, v%d\nv_mov_b32 v%d, %s\n' % (HW, sW, 10 if small else 11, vACT, KC, f2u(-K1)) +
             'v_lshlrev_b32 v%d, 7, v%d\nv_mov_b32 v%d, 0x%x\nv_cmp_gt_u32 vcc, 2, v%d\n' % (vS, vL, vS + 1, OOB, vL) +
             'v_and_b32 v%d, 7, v%d\nv_lshl_add_u32 v%d, v%d, 2, s%d\nv_cndmask_b32 v%d, v%d, v%d, vcc\n' % (vS + 2, vL, vPOFF, vS + 2, sCF, vFLAG, vS + 1, vS) +
             'v_and_b32 v%d, 15, v%d\nv_lshlrev_b32 v%d, 10, v%d\n' % (vS, vL, vS, vS) +
             'v_lshrrev_b32 v%d, 4, v%d\nv_lshl_or_b32 v%d, v%d, 3, v%d' % (vS + 1, vL, vW1, vS + 1, vS)).split('\n')
        assert not p.fill(f)
        p.emit(self)
        self.stamp()
        e('@sec gelu')
        e('s_barrier')
        o, n = [], 0
        for pp in range(n3 // 8):
            for tb in range(4):
                d = vS + 4 * (n % 4)
                for g in range(2):
                    o += self.gelu4(vX + 16 * (2 * pp + g) + 4 * tb, d + 2 * g, vP + 4 * g, KC)
                n += 1
                o.append('ds_write_b128 v%d, %s offset:%d' % (HW, vr('v', d, 4), self.h2a(tb, pp)))
        self.put(o)
        self.stamp()
        e('@sec P7')
        accB, ng = (vS, vP, vX, vX + 32), n3 // 4
        groups = [(['w4%d' % (2 * (ng * ps + k) + i) for i in range(2)], [2 * k, 2 * k + 1], accB if ps else [vX + 16 * b for b in range(4)], k == 0)
                  for ps in range(2) for k in range(ng)]
        p = self.gemm(n3, groups, lambda k, tb: (vACT, self.h2a(tb, k)), [piece(h) for h in range(n3 + 6, 2 * n3)], p.rest, sync, self.tile_dma(0, 'kv0'))
        assert not p.rest
        for pp, (lo, hi) in enumerate(((p.st[ng - 1] + 18, p.st[ng] + 16), (p.st[ng] + 2, p.st[ng] + 24))):
            pk = []
            for tb in range(3, -1, -1):
                a = vX + 32 * pp + 4 * tb
                pk += self.pack(a + 16, a, a + 16)
            p.g[hi - 1]['va'] += p.fill(pk, lo, hi)
        pk = self.vaddr_restore()
        for tb in range(3, -1, -1):
            pk += self.pack(vP + 4 * tb, vS + 4 * tb, vP + 4 * tb)
        rest = p.fill(pk, p.st[-1] + 17)
        p.emit(self)
        self.put(rest)
        for tb in range(3, -1, -1):
            self.put(self.pack(vX + 32 + 4 * tb, vX + 4 * tb, vX + 32 + 4 * tb))
        for r in range(0, 16, 2):
            e('v_pk_mov_b32 %s, %s, %s op_sel:[0,1]' % (P(vX + r), P(vP + r), P(vP + r)))
        self.yfrag = {(0, 0): vX + 16, (0, 1): vX + 48, (1, 0): vX, (1, 1): vX + 32}
        self.stamp()

    def part_flag(self, word, need):
        return Job(Ins('buffer_store_dword v%d, v%d, %s, s%d offen offset:%d sc1' % (vONE, vFLAG, srd(SWS), sFP, 4 * word), need=need))

    def held(self):
        h = {14 + g: [[aK + 32 * g + 8 * b + 4 * kk for kk in range(2)] for b in range(4)] for g in range(2)}
        if self.opt('hold3', 1) and self.prof != 1:
            idle = (148, 152, 156, 172, 176, 180, 184, 188)
            h[13] = [[idle[2 * b + kk] for kk in range(2)] for b in range(4)]
            if self.opt('hold4', 1):
                h[12] = [[aQ + 32 + 8 * b + 4 * kk for kk in range(2)] for b in range(4)]
        return h

    def attention2(self):
        e = self.s
        e('@sec attention 2a')
        N2 = 256 - self.opt('n1', 176)
        H, T = self.opt('head2', 32), N2 - self.opt('tail2', 32)

        def sched(spread, chk, fill):
            chk[T + 4] = self.poll_check(SWS, 1)
            spread([self.part_store(self.yfrag[h, pp] + 4 * tb, YP_OFF + 65536 * pp + 16384 * tb + 1024 * h, 'yst', sYO)
                    for h in range(2) for pp in range(2) for tb in range(4)], 4, H - 8, 2)
            spread([self.part_flag(0, ['yst'])], H - 8, H - 7)
            spread(self.warm(SWO, vACT, sWOW, (0, 1024, 2048, 3072)) + self.code_warm(), H - 8, H - 6)
            spread([self.poll_load(SWS)], T, T + 1)
            spread([Job('buffer_load_dwordx2 %s, v%d, %s, s%d offen offset:%d' % (vr('a', aRES + 2 * nb, 2), vW1, srd(SX), sXO, 512 * (nb >> 1) + 32 * (nb & 1)))
                    for nb in range(4)], T, T + 2)
            spread(self.gather('v', vX, sPI, YP_OFF, 'sc1' + ' nt' * self.opt('nt2', 1)), T + 5, N2 - 8, 2)
            if nh >= 3:
                spread(self.whalf('wo', od[26], 0) + self.whalf('wo', od[27], 1), T - 9, T - 6)
            first = sum([self.whalf('wo', od[k], h) for k, h in ((28, 4), (29, 5), (30, 2), (31, 3), (0, 0), (1, 1))], [])
            spread(first, N2 - 12, N2 - 1)
            late = self.whalf('wo', od[2], 2) + self.whalf('wo', od[3], 3)
            late[0].ins.need = ['held15']
            if nh == 4:
                self.oepi_jobs, late = late, self.whalf('wo', od[24], 4) + self.whalf('wo', od[25], 5)
                late[0].ins.need = ['held14']
            spread(late, N2 + 1, N2 + 3)
            fill[H - 12] = (self.code_addr(), H - 8)
            fill[H - 4] = (self.waddr(vT, vT + 4, 's%d' % sRING), H)
        od, nh = self.pair_order(self.opt('p6_early', 6)), len(self.held())
        slot, at = {12: 4, 13: 0, 14: 4, 15: 2}, {12: None, 13: (T - 3, 0), 14: (N2 - 2, 8), 15: (N2 - 1, 8)}
        self.oepi_jobs = []
        extra = [(at[G], [Ins('ds_read_b64_tr_b16 %s, v%d offset:%d' % (vr('a', regs[b][kk] + 2 * x, 2), (vT if at[G] else vTR) + b, (slot[G] + kk) * 4096 + 2048 * x),
                              need=['wo%d' % od[2 * G + kk]], tag='held%d' % G) for b in range(4) for kk in range(2) for x in range(2)])
                 for G, regs in sorted(self.held().items())]
        self.oepi_reads = sum([ins for a, ins in extra if not a], [])
        extra = [x for x in extra if x[0]]
        self.segment(1, N2, sched, loop=(H, T) if T >= H + 32 else None, extra=extra)
        self.o_epilogue()

    def o_epilogue(self):
        e = self.s
        e('@sec O epilogue')
        e('L_oepi:')
        jobs = self.flat(self.oepi_jobs)
        for r in range(8):
            e('v_accvgpr_read_b32 v%d, a%d' % (vS + r, aL + r))
        for qb in range(4):
            e('v_add_f32 v%d, v%d, v%d' % (vS + 2 * qb, vS + 2 * qb, vS + 2 * qb + 1))
        B = vS + 8
        for qb in range(4):
            e('v_subrev_u32 v%d, 0x2b800000, v%d' % (B + qb, vS + 2 * qb))
        e('v_max3_u32 v%d, v%d, v%d, v%d\nv_max_u32 v%d, v%d, v%d' % (B, B, B + 1, B + 2, B, B, B + 3))
        e('v_cmp_lt_u32 vcc, 0x28000000, v%d' % B)
        e('v_and_b32 v%d, 3, v%d\nv_lshlrev_b32 v%d, 12, v%d\nv_lshl_add_u32 v%d, s%d, 2, v%d' % (B + 1, vL, B + 1, B + 1, B + 1, sW, B + 1))
        e('s_or_b32 s%d, vcc_lo, vcc_hi' % sT0)
        e('v_mov_b32 v%d, s%d' % (B, sT0))
        e('ds_write_b32 v%d, v%d' % (B + 1, B))
        for qb in range(4):
            e('v_rcp_f32 v%d, v%d' % (vS + 2 * qb, vS + 2 * qb))
        e('v_lshl_add_u32 v%d, s%d, 12, v%d' % (vP, sW, vACT))
        e('s_lshl_b32 s%d, s%d, 12\nv_mov_b32 v%d, s%d' % (sT0, sW, B + 1, sT0))
        e('s_barrier', need=['*lg'])
        e('ds_read_b128 %s, v%d' % (vr('v', B + 4, 4), B + 1))
        for qb in range(4):
            for ks in range(4):
                a = vACC + 32 * ks + 4 * qb
                for h in (0, 2, 16, 18):
                    e('v_pk_mul_f32 %s, %s, %s op_sel_hi:[1,0]' % (vr('v', a + h, 2), vr('v', a + h, 2), vr('v', vS + 2 * qb, 2)))
                self.put(self.pack(a + 16, a, a + 16))
                if qb == 0 and ks < 2:
                    if ks == 0:
                        continue
                    e('v_or3_b32 v%d, v%d, v%d, v%d\nv_or_b32 v%d, v%d, v%d' % (B, B + 4, B + 5, B + 6, B, B, B + 7))
                    e('v_cmp_ne_u32 vcc, 0, v%d\ns_cbranch_vccnz L_slow\nL_ofine:' % B)
                    e('ds_write_b128 v%d, %s' % (vP, vr('v', vACC + 16, 4)))
                e('ds_write_b128 v%d, %s offset:%d' % (vP, vr('v', a + 16, 4), (16 * qb + ks) * 1024))
                for pre, d, post in jobs[4 * qb + ks - 1:4 * qb + ks]:
                    self.put(pre + [d] + post)
        self.put(self.waddr(vTR, vT, 's%d' % sRING) + self.oepi_reads)
        self.stamp()
        self.slow_path()

    def slow_path(self):
        main, self.s = self.s, Stream()
        e = self.s
        M = vT
        e('L_slow:\ns_cmp_lg_u32 s%d, 0\ns_cbranch_scc1 L_ofine\ns_mov_b32 s%d, 1' % (sPASS, sPASS))
        e('s_waitcnt vmcnt(0) lgkmcnt(0)')
        for ps in range(2):
            e('s_mov_b32 s%d, 0\ns_mov_b32 s%d, 0\ns_mov_b32 s%d, 64' % (sKO, sVO, sCNT))
            if ps == 0:
                for qb in range(4):
                    e('v_mov_b32 v%d, 0xff800000' % (M + qb))
            else:
                for qb in range(4):
                    for op in ('v_permlane32_swap_b32', 'v_permlane16_swap_b32'):
                        e('v_mov_b32 v%d, v%d\n%s v%d, v%d\nv_max_f32 v%d, v%d, v%d' % (vS, M + qb, op, vS, M + qb, M + qb, M + qb, vS))
                e('v_lshrrev_b32 v%d, 4, v%d\nv_xor_b32 v%d, v%d, v%d\nv_bfe_i32 v%d, v%d, 1, 1' % (vS, vL, vS, vS, vL, vS, vS))
                e('v_not_b32 v%d, v%d\nv_and_b32 v%d, 0x3f803f80, v%d' % (vS, vS, vS, vS))
                for r in range(4):
                    e('v_accvgpr_write_b32 a%d, v%d' % (aONES + r, vS))
                for r in range(128):
                    e('v_mov_b32 v%d, 0' % (vACC + r))
                for r in range(8):
                    e('v_accvgpr_write_b32 a%d, 0' % (aL + r))
            e('L_slow%d:\ns_barrier' % ps)
            self.emit_jobs(self.kv_dma('K', 0, 'k') + (self.kv_dma('V', 0, 'k') if ps else []))
            e('s_barrier', need=['k'])
            self.put([self.krd(0, f, aV + 32) for f in range(8)] + ([self.vrd(0, h) for h in range(16)] if ps else []))
            e('s_waitcnt lgkmcnt(0)')
            for qb in range(4):
                for kb in range(2):
                    for ks in range(4):
                        e(mfma(vr('v', vS + 4 * kb, 4), vr('a', aV + 32 + 16 * kb + 4 * ks, 4), vr('a', aQ + 16 * qb + 4 * ks, 4), '0' if ks == 0 else None))
                if ps == 0:
                    for r in range(0, 8, 2):
                        e('v_max3_f32 v%d, v%d, v%d, v%d' % (M + qb, M + qb, vS + r, vS + r + 1))
                    continue
                for r in range(8):
                    e('v_sub_f32 v%d, v%d, v%d' % (vS + r, vS + r, M + qb))
                for r in range(8):
                    e('v_exp_f32 v%d, v%d' % (vS + r, vS + r))
                for r in range(4):
                    e('v_cvt_pk_bf16_f32 v%d, v%d, v%d' % (vP + 4 * qb + r, vS + 2 * r, vS + 2 * r + 1))
                for db in range(8):
                    e(mfma(vr('v', vACC + 16 * db + 4 * qb, 4), vr('a', aV + 4 * db, 4), vr('v', vP + 4 * qb, 4)))
                if qb & 1:
                    e(self.rowsum(qb >> 1, aONES, vP + 4 * (qb - 1)))
            e('s_nop 7\ns_sub_u32 s%d, s%d, 1\ns_cmp_lg_u32 s%d, 0\ns_cbranch_scc1 L_slow%d' % (sCNT, sCNT, sCNT, ps))
        e('s_barrier\ns_branch L_oepi')
        e.insert_waits()
        e.pad_hazards()
        self.tail.append(e.text())
        self.s = main

    SEL = vT

    def reduce(self, acc, f, regs, ks, first=False):
        return [mfma(vr('v', acc + 4 * (2 * (k & 1) + g), 4), vr('v', self.SEL + 2 - 2 * g, 4), vr(f, regs + 4 * k, 4), '0' if (first and k < 2) else None)
                for k in ks for g in range(2)]

    def collect(self, h, done, acc, regs, base):
        e, L = self.s, 'L_c%d' % h
        NEW, N = sT0, sT1
        e('s_mov_b32 s%d, 0x80000\ns_branch %s_test' % (sT3, L))
        e('%s_wait:\ns_waitcnt vmcnt(0)\nv_cmp_eq_u32 vcc, 1, v%d\ns_bfe_u32 s%d, vcc_lo, 0x%x' % (L, vPRES, NEW, 0x80000 + 8 * h))
        e('s_andn2_b32 s%d, s%d, s%d\ns_cbranch_scc0 %s_poll' % (NEW, NEW, done, L))
        e('s_or_b32 s%d, s%d, s%d\ns_bcnt1_i32_b32 s%d, s%d' % (done, done, NEW, N, NEW))
        for n in range(1, 7):
            e('s_cmp_eq_u32 s%d, %d\ns_cbranch_scc1 %s_ld%d' % (N, n, L, 7 - n))
        for q in range(7):
            e('%s_ld%d:\ns_ff1_i32_b32 s%d, s%d\ns_bitset0_b32 s%d, s%d' % (L, q, sT2, NEW, NEW, sT2))
            e('s_lshl_b32 s%d, s%d, 11\ns_add_u32 s%d, s%d, s%d' % (sT2, sT2, sT2, sT2, base))
            e('buffer_load_dwordx4 %s, v%d, %s, s%d offen offset:%d sc1' % (vr('a', regs + 8 * q + 4 * h, 4), vACT, srd(SWS), sT2, 1024 * h))
        e.add(self.poll_load(SWS).ins)
        for n in range(1, 7):
            e('s_cmp_eq_u32 s%d, %d\ns_cbranch_scc1 %s_mm%d' % (N, n, L, 7 - n))
        for q in range(7):
            e('%s_mm%d:' % (L, q))
            self.put(self.reduce(acc, 'a', regs, (2 * q + h,)))
        e('%s_test:\ns_cmp_lg_u32 s%d, 0xff\ns_cbranch_scc1 %s_wait\n%s_end:' % (L, done, L, L))
        self.tail.append('%s_poll:\n    %s\n    s_sub_u32 s%d, s%d, 1\n    s_cbranch_scc0 %s_wait\n    s_branch %s_end' % (L, self.poll_load(SWS).ins.text, sT3, sT3, L, L))

    def p6_final(self):
        e = self.s
        P = lambda b: vr('v', b, 2)
        e('@sec P6')
        NE, held = self.opt('p6_early', 6), self.held()
        od = self.pair_order(NE)
        groups = [g + (held[G],) if G in held else g for G, g in enumerate(self.pair_groups('wo', od))]
        NQ = self.opt('p6_quarter', 4)
        if NQ:
            src = lambda G: held[G] if G in held else [[(2 * G + kk, b, groups[G][0][kk]) for kk in range(2)] for b in range(4)]
            seq = sorted(range(16 - NQ, 16), key=lambda G: G not in held)
            groups[16 - NQ:] = [([], groups[G][1], groups[G][2][2 * pp:2 * pp + 2], False, src(G)[2 * pp:2 * pp + 2])
                                for pp in range(2) for G in (seq[::-1] if pp else seq)]
        p = self.gemm(0, groups, lambda k, tb: (vACT, (tb * 16 + k) * 1024), [self.whalf('wo', od[h], h) for h in range(6, 32 - 2 * len(held))],
                      self.whalf('wo', od[4], 4) + self.whalf('wo', od[5], 5), lambda: self.s('s_barrier', need=['*lg']), WF=aQ, AF=aV)
        pk, st = [], []
        for h in range(2):
            for pp in range(2):
                for tb in range(3, -1, -1):
                    a = vACC + 64 * h + 32 * pp + 4 * tb
                    pk.append(self.pack(a + 16, a, a + 16))
                    st.append(self.part_store(a + 16, SP_OFF + 65536 * pp + 16384 * tb + 1024 * h, 'sst%d' % h, vo=vDB + pp))
        q, pos = p.dma_end + self.opt('a_start', 16), []
        ready = [32 * (16 - NE) + 2] * 8 + [512 - 16 * NQ + 2] * (4 if NQ else 0)
        for k, r in enumerate(ready):
            q = max(q, r + 6)
            if q > 508:
                break
            while len(p.g[q]['ds']) > 1 or p.g[q]['vm']:
                q += 1
            p.jobs(self.flat([st[k]]), [q], lo=q - 2)
            pos.append(q)
            q += self.opt('a_step', 8)
        free = lambda q: [x for x in range(min(q, 500), 512) if not p.g[x]['vm'] and not p.g[x]['end'] and len(p.g[x]['ds']) < 2][0]
        p.jobs(self.flat([self.part_flag(8, ['sst0'])]), [free(max(self.opt('flag_a', 452), pos[7] + 40))])
        DA = sWSH

        def masked(h, done, f, regs, step, M):
            chk = ['v_cmp_eq_u32 vcc, 1, v%d' % vPRES, 's_bfe_u32 s%d, vcc_lo, 0x%x' % (sT2, 0x80000 + 8 * h),
                   's_orn2_b32 s%d, s%d, s%d' % (sT0, sDONE, sT2), 's_or_b32 s%d, s%d, s%d' % (done, sDONE, sT2)]
            va = [['v_bfe_u32 v%d, s%d, %d, 1' % (M + q, sT0, q), 'v_lshl_or_b32 v%d, v%d, 30, v%d' % (M + q, M + q, vACT)] for q in range(8)]
            jobs = [Job('buffer_load_dwordx4 %s, v%d, %s, s%d offen offset:%d sc1' % (vr(f, regs + step * q, 4), M + q, srd(SWS), sRET, 2048 * (q & 1) + 1024 * h),
                        pre=['s_add_u32 s%d, s%d, 0x%x' % (sRET, sKO, 2048 * q)] if q % 2 == 0 else []) for q in range(8)]
            return chk, va, jobs
        chk, va, jobs = masked(0, DA, 'v', vS, 4, vACC)
        p.jobs(self.flat([self.poll_load(SWS)]), [free(pos[self.opt('poll_a', 0)] - 5)])
        q0 = q = free(max(pos[7] + 1, self.opt('chk_a', 0)))
        p.g[q]['end'] += chk
        lq = []
        for jb in jobs:
            q = free(q + self.opt('la_step', 6))
            p.jobs(self.flat([jb]), [q], lo=q - 2)
            lq.append(q)
        for k, q in enumerate(pos):
            p.g[q - 1]['va'] += p.fill(pk[k], ready[k], q)
        for x, q in zip(va, lq):
            p.g[q - 1]['va'] += p.fill(x, q0 + 1, q)
        pk, st = pk[len(pos):], st[len(pos):]
        SEL, ZZ, XF, SS, E = self.SEL, vS, vP, vACC, vACC + 32
        t = vKA
        f = ('v_lshrrev_b32 v%d, 4, v%d\nv_bfe_u32 v%d, v%d, 2, 2\nv_and_b32 v%d, 1, v%d\nv_lshlrev_b32 v%d, 4, v%d\n' % (t + 1, vL, t, vL, t + 2, vL, t + 2, t + 2) +
             'v_mov_b32 v%d, 0x3f80\nv_lshlrev_b32 v%d, v%d, v%d\n' % (t + 3, t + 2, t + 2, t + 3) +
             'v_cmp_eq_u32 vcc, v%d, v%d\nv_mov_b32 v%d, 0\nv_mov_b32 v%d, 0\n' % (t, t + 1, SEL, SEL + 1) +
             'v_cndmask_b32 v%d, 0, v%d, vcc\nv_and_b32 v%d, 2, v%d\nv_cmp_eq_u32 vcc, 0, v%d\n' % (t + 2, t + 2, t, vL, t) +
             'v_mov_b32 v%d, 0\nv_mov_b32 v%d, 0\nv_cndmask_b32 v%d, 0, v%d, vcc\n' % (SEL + 4, SEL + 5, SEL + 2, t + 2) +
             'v_sub_u32 v%d, v%d, v%d\n' % (SEL + 3, t + 2, SEL + 2) +
             'v_lshl_add_u32 v%d, v%d, 3, v%d' % (vW2, t + 1, vW1)).split('\n')
        p.scalars(['s_lshl_b32 s%d, s%d, 1' % (sVO, sW), 's_sub_u32 s%d, s%d, s%d' % (sVO, sJ, sVO), 's_lshr_b32 s%d, s%d, 1' % (sCNT, sJ),
                   's_mul_i32 s%d, s%d, %d' % (sCNT, sCNT, WWAVE), 's_add_u32 s%d, s%d, s%d' % (sCNT, sCNT, sW2K), 's_add_u32 s%d, s%d, %d' % (sCNT, sCNT, WREG)], 0, 16)
        f += ['v_mov_b32 v%d, 0x%x' % (t, OOB), 'v_mov_b32 v%d, s%d' % (t + 1, sVO), 'v_cmp_eq_u32 vcc, 0, v%d' % (t + 1),
              'v_add_u32 v%d, s%d, v%d' % (vDB + 2, sRING, vACT), 'v_add_u32 v%d, s%d, v%d' % (vDB + 3, sCNT, vACT),
              'v_cndmask_b32 v%d, v%d, v%d, vcc' % (vDB, vACT, t), 'v_cmp_eq_u32 vcc, 1, v%d' % (t + 1),
              'v_and_b32 v%d, 8, v%d' % (t + 2, vL), 'v_lshl_add_u32 v%d, v%d, 2, v%d' % (vPOFF, t + 2, vPOFF),
              'v_add_u32 v%d, 32, v%d' % (vPOFF, vPOFF), 'v_cndmask_b32 v%d, v%d, v%d, vcc' % (vDB + 1, vACT, t)]
        assert not p.fill(f, 0, 48)
        red = self.reduce(XF, 'a', aRES, (0, 1), True) + self.reduce(ZZ, 'a', aX1, (0, 1), True) + self.reduce(ZZ, 'v', vX, range(16))
        gate = ['s_mov_b32 s%d, %s' % (sC0 + k, f2u(-math.log2(math.e))) for k in range(2)]
        gate += ['v_pk_mul_f32 %s, %s, s[%d:%d]' % (P(E + r), P(ZZ + r), sC0, sC0 + 1) for r in range(0, 16, 2)]
        gate += ['v_exp_f32 v%d, v%d' % (E + r, E + r) for r in range(16)]
        gate += ['v_pk_add_f32 %s, %s, 1.0 op_sel_hi:[1,0]' % (P(E + r), P(E + r)) for r in range(0, 16, 2)]
        gate += ['v_rcp_f32 v%d, v%d' % (E + r, E + r) for r in range(16)]
        gate += ['v_pk_mul_f32 %s, %s, %s' % (P(ZZ + r), P(ZZ + r), P(E + r)) for r in range(0, 16, 2)]
        p.scalars(['s_lshl_b32 s%d, 1, s%d' % (sDONE, sJ), 's_add_u32 s%d, s%d, 0x%x' % (sKO, sPI, SP_OFF)], 16, 24)
        if self.opt('p6stamp', 0):
            for q in (127, 255, 383, p.dma_end - 2, 479):
                p.g[q]['end'] += self.stamp_items('q%d' % q)
        p.emit(self)
        self.stamp('P6')
        e('@sec s epilogue')
        self.sprinkle(sum(pk, []), st, start=4, every=4)
        self.stamp('issued')
        self.emit_jobs([self.poll_load(SWS)])
        for pp in range(2):
            e('s_cmp_lg_u32 s%d, %d\ns_cbranch_scc1 L_other%d' % (sVO, pp, pp))
            for h in range(2):
                for tb in range(4):
                    e('ds_write_b128 v%d, %s offset:%d' % (vDB + 2, vr('v', vACC + 64 * h + 32 * pp + 16 + 4 * tb, 4), 2048 * tb + 1024 * h))
            e('L_other%d:' % pp)
        e('s_waitcnt lgkmcnt(0)\ns_barrier')
        for h in range(2):
            e('ds_read_b128 %s, v%d offset:%d' % (vr('a', 4 * h, 4), vDB + 3, 1024 * h))
        self.put(self.reduce(SS, 'a', 0, (0, 1), True))
        self.put([mfma(vr('v', SS + 4 * g, 4), vr('v', SEL + 2 - 2 * g, 4), vr('v', vS + 4 * q, 4)) for g in range(2) for q in range(8)])
        work, nb4 = red + gate, self.opt('before_flag', 8)
        self.put(work[:nb4])
        self.emit_jobs([self.part_flag(16, ['sst1'])])
        e('@mark flagged')
        self.stamp('acked')
        chk, va, jobs = masked(1, sDONE, 'a', 68, 8, vACC + 64)
        self.put(chk)
        for x, jb in zip(va, jobs):
            jb.pre += x
        self.emit_jobs(jobs)
        cut = self.opt('poll_b', 40)
        self.put(work[nb4:cut])
        self.emit_jobs([self.poll_load(SWS)])
        self.put(work[cut:] + self.reduce(SS, 'a', 64, range(1, 16, 2)))
        self.collect(0, DA, SS, 64, sKO)
        self.collect(1, sDONE, SS, 64, sKO)
        self.stamp('collected')
        for nb in range(4):
            for r in range(4 * nb, 4 * nb + 4, 2):
                e('v_pk_fma_f32 %s, %s, %s, %s' % (P(XF + r), P(SS + r), P(ZZ + r), P(XF + r)))
            for k in range(2 * nb, 2 * nb + 2):
                e('v_cvt_pk_bf16_f32 v%d, v%d, v%d' % (E + k, XF + 2 * k, XF + 2 * k + 1))
            om = self.opt('outmode', 2)
            if om < 2:
                e('buffer_store_dwordx2 %s, v%d, %s, s%d offen offset:%d%s' % (P(E + 2 * nb), vW1, srd(SOUT), sXO, 512 * (nb >> 1) + 32 * (nb & 1), ' sc1' * om))
            elif nb & 1:
                t = E + 2 * nb - 2
                for op in ('v_permlane32_swap_b32', 'v_permlane16_swap_b32'):
                    e('%s v%d, v%d\n%s v%d, v%d' % (op, t, t + 2, op, t + 1, t + 3))
                e('buffer_store_dwordx4 %s, v%d, %s, s%d offen offset:%d sc1' % (vr('v', t, 4), vW2, srd(SOUT), sXO, 512 * (nb >> 1)))
        if 'diag' in self.o:
            self.stamp('end')
            if self.o['diag'].startswith('xcc'):
                e('v_mov_b32 v%d, 4\nbuffer_load_dword v%d, v%d, %s, 0 offen sc1\ns_waitcnt vmcnt(0)' % (vT, vT + 1, vT, srd(SDBG)))
                e('v_readfirstlane_b32 s100, v%d\ns_nop 3\ns_bcnt1_i32_b32 s100, s100\ns_mul_i32 s100, s100, 1000\ns_mov_b32 s98, 1000' % (vT + 1))
            e('s_sub_u32 s100, s100, s98\ns_mul_i32 s100, s100, %s\ns_min_u32 s100, s100, 100000' % self.o['diag'].split(':')[2])
            e('s_memrealtime s[98:99]\ns_waitcnt lgkmcnt(0)\ns_add_u32 s100, s100, s98')
            e('L_diag:\ns_memrealtime s[98:99]\ns_waitcnt lgkmcnt(0)\ns_sub_u32 s98, s98, s100\ns_cmp_lt_i32 s98, 0\ns_cbranch_scc1 L_diag')
        if self.prof:
            e('s_waitcnt vmcnt(0)')
            self.stamp('end')
            e('v_accvgpr_read_b32 v%d, a%d\nv_accvgpr_read_b32 v%d, a%d' % (vT, aPROF, vT + 1, aPROF + 1))
            for k in range(self.nstamp * (self.prof == 2)):
                e('v_writelane_b32 v%d, s%d, %d\nv_writelane_b32 v%d, s%d, %d' % (vT, LITE[k], k, vT + 1, LITE[k], k))
            e('s_lshl_b32 s%d, s2, 11\ns_lshl_b32 s%d, s%d, 9\ns_add_u32 s%d, s%d, s%d' % (sT0, sT1, sW, sT0, sT0, sT1))
            e('s_add_u32 s%d, s%d, 0x%x\nv_lshlrev_b32 v%d, 3, v%d' % (sT0, sT0, PROF_OFF, vT + 2, vL))
            e('buffer_store_dwordx2 %s, v%d, %s, s%d offen' % (vr('v', vT, 2), vT + 2, srd(SWS), sT0))

    def build(self, verbose=False):
        for phase in (self.prologue, self.p0, self.p2, self.q_p1, self.attention1, self.mlp, self.attention2, self.p6_final):
            phase()
        s = self.s
        s.insert_waits()
        pads = s.pad_hazards()
        est = s.estimate()
        s.fold()
        s.l += [Ins('L_end:'), Ins('s_endpgm'), Ins('@mark main_end')] + self.aside.l
        fixes = s.align(self.opt('touch', 1))
        if self.opt('touch', 1):
            n, cut = s.marks['main_end'] + 1, self.opt('touch_cut', 15)
            assert s.marks['touch1'] < cut + 1 or cut >= n
            for r, (lo, hi) in enumerate(((0, min(cut, n)), (min(cut, n), n))):
                for k in range(lo, hi):
                    s.pages[k].text = 's_cbranch_execz ' + ('L_pg%d' % (k + 4) if k + 4 < hi else 'L_touched%d' % r)
                for x in s.l:
                    for w in range(4):
                        if x.text.endswith(' L_touch%d_%d' % (r, w)):
                            x.text = x.text.replace('L_touch%d_%d' % (r, w), 'L_pg%d' % (lo + w) if lo + w < hi else 'L_touched%d' % r)
        if verbose:
            print('alignment fixes:', fixes, 'pages:', len(s.pages), s.marks)
        if verbose:
            print('hazard pads:', pads)
            for name, cyc, nm in est:
                print('  %-18s est %6d cycles, %5d mfma (%6d)' % (name, cyc, nm, nm * 16))
            print('  total', sum(c for _, c, _ in est))
        ref = open('cdna_kernels/%s.s.ref' % NAME).read().split('\n')
        head = [l for l in ref if l.startswith(';') and '@launch' not in l]
        o = head + ['; @launch grid=(256,1,1) block=(256,1,1) lds=163840',
                    '.amdgcn_target "amdgcn-amd-amdhsa--gfx950"', '.text', '.globl %s_kernel' % NAME, '.p2align 8',
                    '.type %s_kernel,@function' % NAME, '%s_kernel:' % NAME]
        o.append(DOC)
        o.append(s.text())
        o += self.tail
        o.append('L_code_end:\n    s_endpgm')
        o.append('''.section .rodata,"a"
.p2align 6
.amdhsa_kernel %s_kernel
  .amdhsa_next_free_vgpr 512
  .amdhsa_next_free_sgpr 102
  .amdhsa_accum_offset 256
  .amdhsa_group_segment_fixed_size 0
  .amdhsa_kernarg_size 104
  .amdhsa_user_sgpr_count 2
  .amdhsa_user_sgpr_kernarg_segment_ptr 1
  .amdhsa_system_sgpr_workgroup_id_x 1
  .amdhsa_float_denorm_mode_32 3
.end_amdhsa_kernel''' % NAME)
        return '\n'.join(o) + '\n'


if __name__ == '__main__':
    out = sys.argv[1] if len(sys.argv) > 1 else 'k.s'
    opts = dict(a.split('=') for a in sys.argv[2:])
    SP_OFF, YP_OFF = int(opts.get('sp', hex(SP_OFF)), 0), int(opts.get('yp', hex(YP_OFF)), 0)
    open(out, 'w').write(Gen(False, opts).build(True))
    open(out.replace('.s', '_prof.s'), 'w').write(Gen(True, opts).build())
    open(out.replace('.s', '_lite.s'), 'w').write(Gen(2, opts).build())
```

```python
import math
import struct
import sys

sys.path.insert(0, 'work')
from asmgen import Ins, Stream, vr

NAME = 'recurrent_scan__gqa_block_cached__mixer_s_mlp__prompt'


def f2u(x):
    return '0x%08x' % struct.unpack('<I', struct.pack('<f', x))[0]


H_OFF = 0
X1_OFF = 0x200000
FLAG_OFF = 0x400000
ST_OFF = 0x600000
SP_OFF = 0x1000000
YP_OFF = 0x2000000
PROF_OFF = 0x8000000
OOB = 0x40000000

KRING, VRING = 0, 32768
WREG = 65536
WWAVE = 24576

SX, SK, SV, SWQ, SWO, SW1, SW2, SW3, SW4, SOUT, SDBG, SWS, SH, SCODE = range(4, 60, 4)
sT, sJ, sW, sTBG, sRING, sW2K = 60, 61, 62, 63, 64, 65
sO, sDONE, sKO, sVO, sCNT, sRET = 66, 67, 68, 69, 70, 71
sT0, sT1, sT2, sT3 = 72, 73, 74, 75
sC0 = 76
sPASS, sWSH = 78, 79
sST = 80
sHO, sX1O, sX1I, sSTO, sPO, sPI, sCF, sFP, sXO, sCW, sW3W, sW4W, sWOW, sSTEP = range(84, 98)
sRANK, sYO = sHO, sX1O

vL = 0
vTR = 1
vKA = 9
vACT = 13
vWN, vW3, vW2, vW1 = 14, 15, 16, 17
vDB = 18
vFLAG, vONE, vPOFF, vPRES = 22, 23, 24, 25
vT = 26
vIDX = 31
vS, vP = 32, 48
vX = 64
vACC = 128
aK, aV, aONES, aL, aX1, aQ = 0, 64, 128, 132, 140, 192
aPROF, aDUMMY, aSTAT, aRES, aONE2 = 150, 152, 156, 160, 168

LITE = (3, 59, 98, 99, 100, 101, 82, 83)
CSCALE = math.log2(math.e) / math.sqrt(128.0)
K1 = 2 * 0.7978845608028654 * math.log2(math.e)
K2 = K1 * 0.044715


def srd(n):
    return 's[%d:%d]' % (n, n + 3)


def mfma(d, a, b, c=None):
    return 'v_mfma_f32_16x16x32_bf16 %s, %s, %s, %s' % (d, a, b, d if c is None else c)


DOC = """; One persistent launch, one workgroup per CU: workgroup b handles token block t = b/8 (64 tokens) and kv head
; j = b%8; wave w owns query head 4j+w.  All products are computed transposed (tokens on MFMA columns) with
; v_mfma_f32_16x16x32_bf16; weights, K and V stream global -> LDS by DMA and are read with transposing loads.
; the sums are checked after the loop and otherwise the workgroup repeats the attention with the true row maximum
; cleared by their owner at start and used only after the arrival counters in d_debug show the clears are done."""


class Job:
    def __init__(self, ins, pre=(), m0=None, post=()):
        self.ins = ins if isinstance(ins, Ins) else Ins(ins)
        self.pre, self.m0, self.post = list(pre), m0, list(post)


class Plan:
    def __init__(self):
        self.mf, self.g = [], []

    def add(self, m):
        self.mf.append(m)
        self.g.append(dict(sc=[], ds=[], vm=[], va=[], end=[]))
        return len(self.mf) - 1

    def cap(self, j):
        g = self.g[j]
        if g['vm'] or g['end']:
            return 0
        c = 1 if self.mf[j].startswith('v_smfmac') else 2
        return c - len(g['ds']) - sum(vcost(x) for x in g['va']) - max(0, len(g['sc']) - 1)

    def jobs(self, groups, pos, lo=0, avoid=()):
        prev, pend = lo - 1, []
        for (pre, d, post), p in zip(groups, pos):
            self.scalars(pend + pre, prev + 1, p, avoid, late=True)
            assert not self.g[p]['vm'], 'gap %d already holds a memory instruction' % p
            self.g[p]['vm'].append(d)
            prev, pend = p, post
        return prev, pend

    def scalars(self, sc, a, b, avoid=(), late=False):
        if not sc:
            return
        c = [j for j in range(a, b) if not self.g[j]['vm'] and not self.g[j]['sc'] and j not in avoid]
        if len(c) < len(sc):
            c = [j for j in range(a, b) if not self.g[j]['vm']]
        if not c:
            self.g[b]['sc'] += sc
            return
        c = c[-len(sc):] if late else c[:len(sc)]
        for k, x in enumerate(sc):
            self.g[c[min(k, len(c) - 1)]]['sc'].append(x)

    def fill(self, va, start=0, end=None):
        va, j = list(va), start
        end = len(self.mf) if end is None else end
        while va and j < end:
            if self.cap(j) >= vcost(va[0]):
                self.g[j]['va'].append(va.pop(0))
            else:
                j += 1
        return va

    def empty(self, start, n, step=1):
        res, j = [], start
        while len(res) < n:
            if not any(self.g[j][k] for k in ('sc', 'ds', 'vm', 'va', 'end')):
                res.append(j)
                j += step
            else:
                j += 1
        return res

    def emit(self, gen):
        for m, g in zip(self.mf, self.g):
            gen.put([m] + g['sc'] + g['vm'] + g['ds'] + g['va'] + g['end'])


def vcost(x):
    t = x.text if isinstance(x, Ins) else x
    return 2 if t.startswith(('v_exp', 'v_rcp', 'v_rsq', 'v_permlane')) else 1


class Gen:
    def __init__(self, prof=False, opts=None):
        self.s = Stream()
        self.tail = []
        self.prof = prof
        self.o = opts or {}
        self.nstamp = 0
        self.nlab = 0
        self.kv_nt = False

    def stamp(self, name=None):
        if 'diag' in self.o:
            a, b, k = self.o['diag'].split(':')
            sec = name or [x.op[5:] for x in self.s.l if x.kind == 'meta' and x.op.startswith('@sec ')][-1]
            for r, want in ((98, a), (100, b)):
                if sec.replace(' ', '_') == want:
                    self.s('s_waitcnt lgkmcnt(0) ; stamp\ns_memrealtime s[%d:%d]\ns_waitcnt lgkmcnt(0) ; stamp' % (r, r + 1))
            return
        if not self.prof or (self.prof == 2 and name not in ('kernarg', 'end', 'P0 end', 'P2 end', 'pre', 'loop')):
            return
        e = self.s
        if self.prof == 2:
            e('s_waitcnt lgkmcnt(0) ; stamp\ns_memrealtime s[%d:%d]\ns_waitcnt lgkmcnt(0) ; stamp\ns_mov_b32 s%d, s%d' % (sST, sST + 1, LITE[self.nstamp], sST))
            self.nstamp += 1
            return
        self.tail.append('; @@' + (name or [x.op[5:] for x in e.l if x.kind == 'meta' and x.op.startswith('@sec ')][-1]))
        e('s_waitcnt lgkmcnt(0) ; stamp')
        e('s_memtime s[%d:%d]\ns_memrealtime s[%d:%d]\ns_waitcnt lgkmcnt(0) ; stamp' % (sST, sST + 1, sST + 2, sST + 3))
        for k in range(2):
            e('v_accvgpr_read_b32 v%d, a%d' % (vONE, aPROF + k))
            e('s_nop 1\nv_writelane_b32 v%d, s%d, %d' % (vONE, sST + 2 * k, self.nstamp))
            e('v_accvgpr_write_b32 a%d, v%d' % (aPROF + k, vONE))
        e('v_mov_b32 v%d, 1' % vONE)
        self.nstamp += 1

    def stamp_items(self, name):
        main, self.s = self.s, Stream()
        self.s('@sec ' + name)
        self.stamp(name)
        items, self.s = self.s.l[1:], main
        return items

    def poll_load(self, buf):
        return Job('buffer_load_dword v%d, v%d, %s, 0 offen sc1' % (vPRES, vPOFF, srd(buf)))

    def poll_check(self, buf, val):
        self.nlab += 1
        n = self.nlab
        cmp = 'v_cmp_ne_u32' if val == 1 else 'v_cmp_gt_u32' if val else 'v_cmp_eq_u32'
        self.tail.append('''L_spin%(n)d:
    s_mov_b32 s%(c)d, 0x80000
L_spin%(n)d_loop:
    buffer_load_dword v%(r)d, v%(o)d, %(b)s, 0 offen sc1
    s_waitcnt vmcnt(0)
    %(cmp)s vcc, %(v)d, v%(r)d
    s_cbranch_vccz L_back%(n)d
    s_sub_u32 s%(c)d, s%(c)d, 1
    s_cbranch_scc0 L_spin%(n)d_loop
    s_branch L_back%(n)d''' % dict(n=n, c=sT3, r=vPRES, o=vPOFF, b=srd(buf), v=val, cmp=cmp))
        return [Ins('%s vcc, %d, v%d' % (cmp, val, vPRES)), Ins('s_cbranch_vccnz L_spin%d' % n), Ins('L_back%d:' % n)]

    def flag_store(self, phase, need):
        return Job(Ins('buffer_store_dword v%d, v%d, %s, s%d offen sc1' % (vONE, vFLAG, srd(SWS), sT2), need=need),
                   pre=['s_mov_b32 s%d, 0x%x' % (sT2, FLAG_OFF + phase * 131072)])

    def opt(self, k, d):
        return int(self.o.get(k, d))

    def touch(self, r):
        if not self.opt('touch', 1):
            return
        e = self.s
        e('@mark touch%d\ns_mov_b64 exec, 0' % r)
        for w in range(3):
            e('s_cmp_eq_u32 s%d, %d\ns_cbranch_scc1 L_touch%d_%d' % (sW, w, r, w))
        e('s_branch L_touch%d_3\nL_touched%d:\ns_mov_b64 exec, -1' % (r, r))

    def put(self, items):
        for x in items:
            self.s.add(x if isinstance(x, Ins) else Ins(x))

    def flat(self, jobs):
        res, m0 = [], None
        for jb in jobs:
            pre = list(jb.pre)
            if jb.m0 and jb.m0 != m0:
                pre.insert(0, jb.m0)
                m0 = jb.m0
            res.append((pre, jb.ins, list(jb.post)))
        return res

    def emit_jobs(self, jobs):
        for pre, d, post in self.flat(jobs):
            self.put(pre + [d] + post)

    def sprinkle(self, main, jobs, start=0, every=8):
        groups = self.flat(jobs)
        for k, x in enumerate(main):
            if groups and k >= start and (k - start) % every == 0:
                pre, d, post = groups.pop(0)
                self.put(pre + [d] + post)
            self.put([x])
        for pre, d, post in groups:
            self.put(pre + [d] + post)

    def whalf(self, name, k, h, small=False):
        buf, vo, stride, nat, off = {
            'wq': (SWQ, vDB, 8192, True, (k >> 1) * 32 * 8192 + (k & 1) * 128),
            'w1': (SW1, vW1, 1024, True, k * 32768),
            'w2': (SW2, vW2, 1024, False, k * 32768),
            'w3': (SW3, vW3, 3584, False, k * (64 if small else 32) * 3584),
            'w4': (SW4, vW2, 1024, False, (k % (4 if small else 8)) * 32768 + (k // (4 if small else 8)) * 512),
            'wo': (SWO, vWN, 1024, False, (k >> 1) * 32768 + (k & 1) * 512)}[name]
        rows = [16 * (a & 1) + 4 * (a >> 1) if nat else 8 * a for a in range(4)]
        return [Job(Ins('buffer_load_dwordx4 v%d, %s, s%d offen offset:%d %slds' % (vo, srd(buf), sO, 1024 * a, 'nt ' if name in self.o.get('wnt', 'none').split(',') else ''), tag='%s%d' % (name, k)),
                    pre=['s_mov_b32 s%d, 0x%x' % (sO, off + rows[a] * stride - 1024 * a)] if small is not None else
                    ['s_mul_i32 s%d, s%d, %d' % (sO, sSTEP, k) if a == 0 else 's_add_u32 s%d, s%d, 0x%x' % (sO, sO, 8 * stride - 1024)],
                    m0='s_add_u32 m0, s%d, 0x%x' % (sRING, (h % 6) * 4096)) for a in range(4)]

    def waddr(self, dst, t, base):
        return ['v_lshrrev_b32 v%d, 2, v%d' % (dst, vL), 'v_bfe_u32 v%d, v%d, 3, 2' % (t, vL), 'v_lshlrev_b32 v%d, 5, v%d' % (t, t),
                'v_lshl_or_b32 v%d, v%d, 7, v%d' % (dst, dst, t), 'v_and_b32 v%d, 3, v%d' % (t, vL), 'v_lshl_or_b32 v%d, v%d, 3, v%d' % (dst, t, dst),
                'v_add_u32 v%d, %s, v%d' % (dst, base, dst)] + ['v_xor_b32 v%d, 0x%x, v%d' % (dst + b, b << 5, dst) for b in range(1, 4)]

    def vaddr_restore(self):
        return ['v_xor_b32 v%d, 0x80, v%d' % (vTR + db, vTR + 4 + db) for db in range(4)]

    def lanesum(self, r, t):
        o = []
        for op in ('v_permlane32_swap_b32', 'v_permlane16_swap_b32'):
            o += ['v_mov_b32 v%d, v%d' % (t, r), '%s v%d, v%d' % (op, t, r), 'v_add_f32 v%d, v%d, v%d' % (r, r, t)]
        return o

    def gelu4(self, src, dst, tmp, k1, scale=None):
        o = []
        e = o.append
        P = lambda b: vr('v', b, 2)
        if scale is not None:
            for h in (0, 2):
                e('v_pk_mul_f32 %s, %s, %s op_sel_hi:[1,0]' % (P(src + h), P(src + h), P(scale)))
        for h in (0, 2):
            e('v_pk_mul_f32 %s, %s, %s' % (P(tmp + h), P(src + h), P(src + h)))
        for h in (0, 2):
            e('v_pk_fma_f32 %s, %s, s[%d:%d], %s op_sel_hi:[1,1,0]' % (P(tmp + h), P(tmp + h), sC0, sC0 + 1, P(k1)))
        for h in (0, 2):
            e('v_pk_mul_f32 %s, %s, %s' % (P(tmp + h), P(tmp + h), P(src + h)))
        for r in range(4):
            e('v_exp_f32 v%d, v%d' % (tmp + r, tmp + r))
        for h in (0, 2):
            e('v_pk_add_f32 %s, %s, 1.0 op_sel_hi:[1,0]' % (P(tmp + h), P(tmp + h)))
        for r in range(4):
            e('v_rcp_f32 v%d, v%d' % (tmp + r, tmp + r))
        for h in (0, 2):
            e('v_pk_mul_f32 %s, %s, %s' % (P(tmp + h), P(tmp + h), P(src + h)))
        for h in (0, 2):
            e('v_cvt_pk_bf16_f32 v%d, v%d, v%d' % (dst + h // 2, tmp + h, tmp + h + 1))
        return o

    def pack(self, d, a0, a1):
        return ['v_cvt_pk_bf16_f32 v%d, v%d, v%d' % (d + 3, a1 + 2, a1 + 3), 'v_cvt_pk_bf16_f32 v%d, v%d, v%d' % (d + 2, a1, a1 + 1),
                'v_cvt_pk_bf16_f32 v%d, v%d, v%d' % (d, a0, a0 + 1), 'v_cvt_pk_bf16_f32 v%d, v%d, v%d' % (d + 1, a0 + 2, a0 + 3)]

    def g16(self, accf, acc, ring, ad, fill=()):
        def kn(n):
            return (n & 15, n >> 4) if self.opt('chain16', 1) else (n >> 2, n & 3)

        def rd(n):
            ks, nb = kn(n)
            off = ((ks >> 2) & 1) * WWAVE + (ks & 3) * 4096
            return ['ds_read_b64_tr_b16 %s, v%d offset:%d' % (vr('a', ring + 4 * (n % 8) + 2 * g, 2), ad + nb, off + 2048 * g) for g in range(2)]
        AH = 6
        for n in range(AH):
            self.put(rd(n))
        p = Plan()
        for n in range(64):
            ks, nb = kn(n)
            p.add(mfma(vr(accf, acc + 4 * nb, 4), vr('a', ring + 4 * (n % 8), 4), vr('v', vX + 4 * ks, 4), '0' if ks == 0 else None))
            if n + AH < 64:
                p.g[n]['ds'] += rd(n + AH)
                if kn(n + AH)[0] == 7:
                    a = ad + kn(n + AH)[1]
                    p.g[n]['va'].append('v_add_u32 v%d, 0x%x, v%d' % (a, 2 * WWAVE, a))
            p.g[n]['va'] += fill[n:n + 1]
        p.emit(self)

    def gemm(self, h0, groups, actf, later, first_jobs=(), sync=None, last_jobs=(), WF=0, AF=32, wf='a'):
        LEAD = 9
        p, par, h, blk, free, srcs = Plan(), [], h0, [], {}, []
        p.st = []
        for G, (tags, ak, acc, first, *src) in enumerate(groups):
            par.append(par[-1] ^ (ak != groups[G - 1][1]) if G else 0)
            p.st.append(len(p.mf))
            flip = 0
            for b in range(len(acc)):
                n = len(blk)
                blk.append(len(p.mf))
                srcs.append(src[0][b] if src else [(h + kk, b, tags[kk]) if len(tags) == 2 else (h, b + 2 * kk, tags[0]) for kk in range(2)])
                for x in srcs[-1]:
                    if isinstance(x, tuple):
                        free[x[0]] = blk[-1]
                for tb in (range(3, -1, -1) if b & 1 else range(4)):
                    for i, kk in enumerate((1, 0) if flip else (0, 1)):
                        w = srcs[-1][kk]
                        p.add(mfma(vr('v', acc[b] + 4 * tb, 4), vr(wf, WF + 8 * (n % 4) + 4 * kk, 4) if isinstance(w, tuple) else vr('a', w, 4),
                                   vr('a', AF + 32 * par[G] + 16 * kk + 4 * tb, 4), '0' if (first and i == 0) else None))
                    flip ^= 1
            h += len(tags)
        owner = [free[x] for x in sorted(free)]
        N = len(p.mf)
        jobs, pos, q = list(first_jobs), [2 * k + 1 for k in range(len(first_jobs))], 4 * ((len(first_jobs) + 1) // 2) + 1
        rest = []
        for k, piece in enumerate(later):
            while k < len(owner) and q < owner[k]:
                q += 4
            for jb in piece:
                if q < N and k < len(owner) and not rest:
                    jobs.append(jb)
                    pos.append(q)
                    q += 4
                else:
                    rest.append(jb)
        for jb in last_jobs:
            jobs.append(jb)
            pos.append(q)
            q += 4
        p.rest, p.dma_end = rest, q
        prev, pend = p.jobs(self.flat(jobs), pos, avoid={x - 1 for x in blk})
        p.scalars(pend, prev + 1, N)
        pre = []

        def place(ins, lo, use):
            for each, lead in ((1, LEAD), (2, LEAD), (2, LEAD - 2), (2, LEAD - 4)):
                c = [j for j in range(max(lo - 1, 0), use - lead + 1) if not p.g[j]['vm'] and (j + 1 not in blk or each == 2)
                     for _ in range(each - len(p.g[j]['ds']))]
                if len(c) >= len(ins) or lo == 0:
                    break
            assert len(c) >= len(ins) or lo == 0
            c = c[-len(ins):]
            pre.extend(ins[:len(ins) - len(c)])
            for j, x in zip(c, ins[len(ins) - len(c):]):
                p.g[j]['ds'].append(x)
        for n, src in enumerate(srcs):
            ins = [Ins('ds_read_b64_tr_b16 %s, v%d offset:%d' % (vr(wf, WF + 8 * (n % 4) + 4 * kk + 2 * g, 2), vTR + x[1], (x[0] % 6) * 4096 + 2048 * g),
                       need=[x[2]]) for kk, x in enumerate(src) if isinstance(x, tuple) for g in range(2)]
            if ins:
                place(ins, blk[n - 3] if n >= 4 else 0, blk[n])
        for G, (tags, ak, *_) in enumerate(groups):
            if G == 0 or ak != groups[G - 1][1]:
                ins = ['ds_read_b128 %s, v%d offset:%d' % ((vr('a', AF + 32 * par[G] + 16 * kk + 4 * tb, 4),) + actf(k, tb)) for tb in range(4) for kk, k in enumerate(ak)]
                prev = [x for x in range(G) if par[x] == par[G]]
                lo = p.st[prev[-1] + 1] if prev else 0
                if G == 0:
                    act0 = [ins[k] for k in (0, 1, 3, 2, 4, 5, 7, 6)]
                    continue
                span = max(1, (p.st[G] - LEAD - lo) // len(ins))
                for k, x in enumerate(ins):
                    j = lo + k * span
                    while p.g[j]['vm'] or len(p.g[j]['ds']) >= 2 or (j + 1 in blk and span > 1):
                        j += 1
                    assert j < p.st[G] - 4 + k
                    p.g[j]['ds'].append(x)
        main, self.s = self.s, Stream()
        sync()
        bar, self.s = self.s.l, main
        for x in bar:
            if x.kind == 'bar':
                lg = [y for y in self.s.l if y.kind in ('dsr', 'dsw')]
                if lg:
                    lg[-1].tag = 'lastlds'
                self.put(pre)
                x.need = ['lastlds'] if lg else []
            self.s.add(x)
        self.put(act0)
        return p

    def part_store(self, reg, off, tag, base=sPO, vo=vACT):
        return Job(Ins('buffer_store_dwordx4 %s, v%d, %s, s%d offen sc1' % (vr('v', reg, 4), vo, srd(SWS), sT1), tag=tag),
                   pre=['s_add_u32 s%d, s%d, 0x%x' % (sT1, base, off)])

    def gather(self, f, dst, soff, off, flags):
        return [Job('buffer_load_dwordx4 %s, v%d, %s, s%d offen offset:%d %s' % (vr(f, dst + 4 * k, 4), vACT, srd(SWS), sRET, 1024 * (k % 4), flags),
                    pre=['s_add_u32 s%d, s%d, 0x%x' % (sRET, soff, off + 1024 * k)] if k % 4 == 0 else []) for k in range(16)]

    LR, LB = vW1, vFLAG
    XS, XW, RA, F1 = vP + 8, vP + 9, vP + 10, vT + 4

    def prologue(self):
        e = self.s
        D = vr('a', aDUMMY, 4)
        e('@sec prologue')
        bufs = [(SX, 0, 0x200000), (SWQ, 24, 0x400000), (SWS, 96, 0x10000000), (SW1, 48, 0x80000), (SW2, 56, 0x80000), (SDBG, 88, 256), (SK, 8, 0x400000),
                (SV, 16, 0x400000), (SWO, 32, 0x400000), (SW3, 64, 0x1c0000), (SW4, 72, 0x1c0000), (SOUT, 80, 0x200000)]
        for b, off, _ in bufs[:2]:
            e('s_load_dwordx2 s[%d:%d], s[0:1], %d' % (b, b + 1, off))
        e('s_cmp_ge_u32 s2, 256\ns_cbranch_scc1 L_end')
        if self.o.get('diag', '').startswith('start'):
            e('s_memrealtime s[98:99]')
        if self.prof:
            e('v_accvgpr_write_b32 a%d, 0\nv_accvgpr_write_b32 a%d, 0' % (aPROF, aPROF + 1))
        e('s_getpc_b64 s[%d:%d]\nL_pc:' % (SCODE, SCODE + 1))
        e('s_mov_b32 s%d, L_code_end-L_pc-16' % (SCODE + 2))
        e('s_lshr_b32 s%d, s2, 3\nv_lshlrev_b32 v%d, 4, v0\nv_lshl_add_u32 v%d, s%d, 12, v%d' % (sT, vT + 3, vT, sT, vT + 3))
        self.put(self.code_addr()[1:])
        self.emit_jobs(self.code_warm())
        e('v_readfirstlane_b32 s%d, v0\ns_and_b32 s%d, s2, 7\nv_and_b32 v0, 63, v0' % (sW, sJ))
        e('s_lshr_b32 s%d, s%d, 6' % (sW, sW))
        e('s_lshl_b32 s%d, s%d, 2\ns_add_u32 s%d, s%d, s%d' % (sTBG, sT, sTBG, sTBG, sW))
        e('v_lshrrev_b32 v%d, 2, v%d\nv_and_b32 v%d, 3, v%d' % (vT + 1, vL, vT + 2, vL))
        e('v_lshlrev_b32 v%d, 10, v%d\nv_lshl_or_b32 v%d, v%d, 4, v%d' % (vT + 4, vT + 1, vT + 4, vT + 2, vT + 4))
        e('v_lshlrev_b32 v%d, 4, v%d' % (vACT, vL))
        e('s_lshl_b32 s%d, s%d, 14\ns_lshl_b32 s%d, s%d, 13\ns_lshl_b32 s%d, s%d, 10' % (sCNT, sTBG, sVO, sTBG, sT1, sJ))
        e('s_mov_b32 s%d, 0x200000\ns_mov_b32 s%d, 0x20000' % (SX + 2, SX + 3))
        e('s_sub_u32 s%d, 0x400000, s%d\ns_mov_b32 s%d, 0x20000' % (SWQ + 2, sT1, SWQ + 3))
        e('s_waitcnt lgkmcnt(0)')
        self.stamp('kernarg')
        e('s_add_u32 s%d, s%d, s%d\ns_addc_u32 s%d, s%d, 0' % (SWQ, SWQ, sT1, SWQ + 1, SWQ + 1))
        for b, off, _ in bufs[2:]:
            e('s_load_dwordx2 s[%d:%d], s[0:1], %d' % (b, b + 1, off))
        wl = [Job('buffer_load_dwordx4 %s, v%d, %s, s%d offen' % (D, vACT, srd(SWQ), sVO), post=['s_add_u32 s%d, s%d, 0x100000' % (sVO, sVO)]) for i in range(4)]
        nf = self.opt('wq_first', 2)
        self.emit_jobs(wl[:nf])
        xl = [Job('buffer_load_dwordx4 %s, v%d, %s, s%d offen offset:%d' % (vr('v', vX + 4 * ks, 4), vT + 4, srd(SX), sCNT, 64 * ks)) for ks in range(16)]
        nx = self.opt('x_first', 10)
        self.emit_jobs(xl[:nx])
        self.stamp('x issued')
        mark = len(e.l)

        def lin(dst, c, *terms):
            for k, (reg, mul) in enumerate(terms):
                e('s_mul_i32 s%d, s%d, 0x%x' % (dst if k == 0 else sT0, reg, mul & 0xffffffff))
                if k:
                    e('s_add_u32 s%d, s%d, s%d' % (dst, dst, sT0))
            if c:
                e('s_add_u32 s%d, s%d, 0x%x' % (dst, dst, c))
        lin(sRING, WREG, (sW, WWAVE))
        lin(sW2K, 0, (sW, 2048))
        e('v_mov_b32 v%d, 1' % vONE)
        XS, XW, RA = self.XS, self.XW, self.RA
        e('v_lshlrev_b32 v%d, 1, v%d\nv_xor_b32 v%d, v%d, v%d\nv_lshl_or_b32 v%d, v%d, 4, v%d' % (vT, vT + 2, vT, vT, vT + 1, vT, vT + 2, vT))
        e('v_lshlrev_b32 v%d, 4, v%d\nv_lshl_add_u32 v%d, s%d, 14, v%d' % (vT, vT, XW, sW, vT))
        e('v_lshrrev_b32 v%d, 4, v%d\nv_lshlrev_b32 v%d, 5, v%d\nv_xor_b32 v%d, v%d, v%d' % (vT, vL, vT, vT, XS, vT, vACT))
        e('v_lshrrev_b32 v%d, 5, v%d\nv_and_b32 v%d, 15, v%d\nv_mul_u32_u24 v%d, 18, v%d\nv_xor_b32 v%d, v%d, v%d' % (vT, vL, vT + 1, vL, vT, vT, vT, vT, vT + 1))
        e('v_bfe_u32 v%d, v%d, 4, 1\nv_lshl_or_b32 v%d, v%d, 1, v%d\nv_lshlrev_b32 v%d, 3, v%d' % (vT + 1, vL, vT, vT, vT + 1, vT, vT))
        lin(sT1, 0, (sW, 16384), (sJ, 1024))
        e('v_add_u32 v%d, s%d, v%d\nv_xor_b32 v%d, 64, v%d' % (RA, sT1, vT, RA + 1, RA))
        C, RN, RK = vT, vT + 1, vT + 2
        e('v_and_b32 v%d, 7, v%d\nv_bfe_u32 v%d, v%d, 4, 2\nv_lshlrev_b32 v%d, 1, v%d\nv_xor_b32 v%d, v%d, v%d' % (C, vL, RN, vL, RN, RN, C, C, RN))
        e('v_lshlrev_b32 v%d, 4, v%d\nv_lshrrev_b32 v%d, 3, v%d' % (C, C, RN, vL))
        e('v_and_b32 v%d, 4, v%d\nv_add_u32 v%d, v%d, v%d' % (RK, RN, RK, RK, RN))
        e('v_lshl_add_u32 v%d, v%d, 13, v%d\nv_lshl_add_u32 v%d, s%d, 8, v%d' % (vDB, RK, C, vDB, sW, vDB))
        e('v_lshl_add_u32 v%d, v%d, 10, v%d\nv_lshl_add_u32 v%d, s%d, 17, v%d' % (vW1, RK, C, vW1, sW, vW1))
        e('v_lshl_add_u32 v%d, v%d, 10, v%d' % (vWN, RN, C))
        e('v_and_b32 v%d, 64, v%d\nv_mad_u32_u24 v%d, v%d, 7, v%d' % (RK, C, vW2, RK, vWN))
        W1W, W2W = vP, vP + 1
        e('v_mov_b32 v%d, v%d\nv_mov_b32 v%d, v%d' % (W1W, vWN, W2W, vW2))
        e('v_lshl_add_u32 v%d, s%d, 17, v%d\nv_lshl_add_u32 v%d, s%d, 7, v%d' % (vW2, sW, vW2, vWN, sW, vWN))
        e('v_mul_u32_u24 v%d, 3584, v%d\nv_lshl_add_u32 v%d, s%d, 7, v%d\nv_add_u32 v%d, v%d, v%d' % (RN, RN, C, sW, C, vW3, RN, C))
        e('v_mov_b32 v%d, 0x%x' % (vT + 5, OOB))
        lin(sKO, 0, (sT, 16384))
        RS, Z = vP + 2, vP + 3
        e('v_lshrrev_b32 v%d, 2, v%d\nv_lshlrev_b32 v%d, 17, v%d' % (RS, vL, RS, RS))
        e('v_and_b32 v%d, 3, v%d\nv_lshl_or_b32 v%d, v%d, 10, v%d' % (Z, vL, RS, Z, RS))
        e('v_cmp_gt_u32 vcc, 0x80, v%d' % (vT + 3))
        lin(sT1, 0, (sTBG, 1024), (sJ, 128))
        e('v_cndmask_b32 v%d, v%d, v%d, vcc' % (RS, vT + 5, RS))
        e('v_lshrrev_b32 v%d, 9, v%d\nv_cmp_eq_u32 vcc, 1, v%d' % (Z, vT + 3, Z))
        e('v_lshlrev_b32 v%d, 2, v%d\nv_add_u32 v%d, 0x%x, v%d' % (Z, vL, Z, 0x40000 - 128, Z))
        e('v_cndmask_b32 v%d, v%d, v%d, vcc' % (RS, RS, Z))
        e('v_cmp_eq_u32 vcc, 0, v%d\nv_mov_b32 v%d, s%d\ns_add_u32 s%d, s%d, 0x%x' % (vL, vFLAG, sT1, sRET, sT1, FLAG_OFF))
        e('v_cndmask_b32 v%d, v%d, v%d, vcc' % (vFLAG, vT + 5, vFLAG))
        e('v_cmp_eq_u32 vcc, 0, v%d\nv_mov_b32 v%d, 0\ns_add_u32 s%d, s%d, 0x%x' % (vT + 3, Z, sSTO, sT1, ST_OFF))
        e('v_cndmask_b32 v%d, v%d, 0, vcc' % (vPOFF, vT + 5))
        e('v_and_b32 v%d, 15, v%d\nv_lshrrev_b32 v%d, 4, v%d' % (vT, vL, vT + 1, vL))
        e('v_xor_b32 v%d, v%d, v%d\nv_lshlrev_b32 v%d, 4, v%d\nv_lshl_or_b32 v%d, v%d, 8, v%d' % (vT + 1, vT + 1, vT, vT + 1, vT + 1, vKA, vT, vT + 1))
        for ks in range(1, 4):
            e('v_xor_b32 v%d, 0x%x, v%d' % (vKA + ks, 64 * ks, vKA))
        e('v_lshrrev_b32 v%d, 2, v%d\nv_and_b32 v%d, 7, v%d\nv_lshlrev_b32 v%d, 5, v%d' % (vT, vL, vT + 1, vT, vT + 1, vT + 1))
        e('v_lshl_or_b32 v%d, v%d, 8, v%d\nv_and_b32 v%d, 3, v%d\nv_lshl_or_b32 v%d, v%d, 3, v%d' % (vT, vT, vT + 1, vT + 1, vL, vT, vT + 1, vT))
        for db in range(4, 8):
            e('v_xor_b32 v%d, 0x%x, v%d' % (vTR + db, VRING | db << 5, vT))
        self.put(self.waddr(vTR, vT, 's%d' % sRING))
        e('v_bfe_i32 v%d, v%d, 1, 1\nv_and_b32 v%d, 0x3f803f80, v%d\nv_xor_b32 v%d, 0x3f803f80, v%d' % (vT, vL, vT + 1, vT, vT + 2, vT + 1))
        e('v_bfe_i32 v%d, v%d, 0, 1\nv_and_b32 v%d, 0xaaaaaaaa, v%d\nv_or_b32 v%d, 0x44444444, v%d' % (vT, vL, vT, vT, vIDX, vT))
        for r in range(4):
            e('v_accvgpr_write_b32 a%d, v%d\nv_accvgpr_write_b32 a%d, v%d' % (aONES + r, vT + 2, aONE2 + r, vT + 1))
        for r in range(8):
            e('v_accvgpr_write_b32 a%d, 0' % (aL + r))
        lin(sHO, 0, (sTBG, 1 << 14), (sJ, 1 << 11))
        lin(sX1I, X1_OFF, (sTBG, 1 << 14))
        lin(sX1O, 0, (sJ, 1 << 10), (sX1I, 1))
        lin(sPO, 0, (sT, 1 << 19), (sJ, 1 << 11), (sW, 1 << 17))
        lin(sPI, 0, (sT, 1 << 19), (sJ, 1 << 16), (sW, 1 << 14))
        lin(sCF, FLAG_OFF + 0x40000, (sT, 1 << 12), (sJ, 1 << 7))
        lin(sFP, FLAG_OFF + 0x40000, (sT, 1 << 12), (sW, 256), (sJ, 4))
        lin(sXO, 0, (sTBG, 1 << 14), (sJ, 64))
        lin(sCW, 0, (sTBG, 1024))
        lin(sW3W, 0, (sTBG, 4 * 3584))
        lin(sWOW, 0, (sTBG, 4096))
        e('s_lshr_b32 s%d, s%d, 1\ns_lshl_b32 s%d, s%d, 13' % (sWSH, sTBG, sWSH, sWSH))
        e('s_mov_b32 s%d, %s\ns_mov_b32 s%d, %s\ns_mov_b32 s%d, 0' % (sC0, f2u(-K2), sC0 + 1, f2u(-K2), sPASS))
        e('s_waitcnt lgkmcnt(0)')
        shift = {SW1: [(sJ, 128)], SW2: [(sJ, 64)], SK: [(sJ, 1 << 19)], SV: [(sJ, 1 << 19)], SWO: [(sJ, 1 << 19)]}
        for b, _, size in bufs[2:]:
            if b in shift:
                lin(sT1, 0, *shift[b])
                e('s_add_u32 s%d, s%d, s%d\ns_addc_u32 s%d, s%d, 0\ns_sub_u32 s%d, 0x%x, s%d' % (b, b, sT1, b + 1, b + 1, b + 2, size, sT1))
            else:
                e('s_mov_b32 s%d, 0x%x' % (b + 2, size))
            e('s_mov_b32 s%d, 0x20000' % (b + 3))
        e('s_mov_b32 s%d, s%d\ns_mov_b32 s%d, s%d\ns_mov_b32 s%d, 0x200000\ns_mov_b32 s%d, 0x20000' % (SH, SWS, SH + 1, SWS + 1, SH + 2, SH + 3))
        ns = self.opt('x_setup', 0)
        setup, e.l = e.l[mark:], e.l[:mark]
        self.sprinkle(setup, xl[nx:nx + ns], start=self.opt('xs_start', 20), every=self.opt('xs_every', 25))
        self.xrest = xl[nx + ns:]
        self.early = wl[nf:] + [Job(Ins('buffer_store_dword v%d, v%d, %s, s%d offen sc1' % (Z, RS, srd(SWS), sRET), tag='reset')),
                                Job('buffer_load_dwordx4 %s, v%d, %s, s%d offen' % (D, W1W, srd(SW1), sWSH)),
                                Job('buffer_load_dwordx4 %s, v%d, %s, s%d offen' % (D, W2W, srd(SW2), sWSH))]
        self.early += (self.warm(SK, vACT, sWOW, (0, 1024, 2048, 3072)) + self.warm(SV, vACT, sWOW, (0, 1024, 2048, 3072)))[:self.opt('kv_early', 2)]
        self.stamp('setup')
        self.touch(0)
        self.stamp('touched')
        e('s_branch L_go\n.p2align 12\nL_go:')

    def p0(self):
        e = self.s
        e('@sec P0 layernorm')
        P = lambda b: vr('v', b, 2)
        A, X0 = vS, vS + 8
        o = ['v_lshlrev_b32 v%d, 16, v%d' % (X0 + 1, vX), 'v_mov_b32_dpp v%d, v%d quad_perm:[0,0,0,0] row_mask:0xf bank_mask:0xf' % (X0, X0 + 1)]
        for k in range(64):
            d = vACC + 2 * k
            o += ['v_lshlrev_b32 v%d, 16, v%d' % (d, vX + k), 'v_and_b32 v%d, 0xffff0000, v%d' % (d + 1, vX + k),
                  'v_pk_add_f32 %s, %s, %s op_sel_hi:[1,0] neg_lo:[0,1] neg_hi:[0,1]' % (P(d), P(d), P(X0))]
            if k == 0:
                o += ['v_pk_mul_f32 %s, %s, %s' % (P(A + 2), P(d), P(d))]
            else:
                o += ['v_pk_add_f32 %s, %s, %s' % (P(A), P(A) if k > 1 else P(vACC), P(d)), 'v_pk_fma_f32 %s, %s, %s, %s' % (P(A + 2), P(d), P(d), P(A + 2))]
        wq = []
        for k in range(6):
            wq += self.whalf('wq', self.pair_order(0)[k], k)
        nd = self.opt('p1_dma', 2)
        jobs = []
        while self.xrest or (wq and nd):
            jobs += self.xrest[:1] + wq[:nd if self.xrest else nd + 1]
            wq = wq[nd if self.xrest else nd + 1:]
            self.xrest = self.xrest[1:]
        self.sprinkle(o, jobs, start=self.opt('p1_start', 2), every=20 // (nd + 1) if nd else 10)
        self.stamp('x landed')
        o = ['v_add_f32 v%d, v%d, v%d' % (A, A, A + 1), 'v_add_f32 v%d, v%d, v%d' % (A + 2, A + 2, A + 3)]
        for qp in ('[1,0,3,2]', '[2,3,0,1]'):
            for r in (A, A + 2):
                o.append('v_add_f32_dpp v%d, v%d, v%d quad_perm:%s row_mask:0xf bank_mask:0xf' % (r, r, r, qp))
        M, V, R = A, A + 2, A + 4
        o += ['v_mul_f32 v%d, %s, v%d' % (M, f2u(1.0 / 512), M), 'v_mul_f32 v%d, %s, v%d' % (V, f2u(1.0 / 512), V),
              'v_fma_f32 v%d, -v%d, v%d, v%d' % (V, M, M, V), 'v_max_f32 v%d, 0, v%d' % (V, V),
              'v_add_f32 v%d, %s, v%d' % (R, f2u(1e-5), V), 'v_rsq_f32 v%d, v%d' % (R, R),
              'v_and_b32 v%d, 0xf0, v%d' % (A + 7, vACT),
              'v_mul_f32 v%d, v%d, v%d' % (A + 6, R, R), 'v_fmaak_f32 v%d, v%d, v%d, %s' % (A + 6, A + 6, V, f2u(1e-5)), 'v_rsq_f32 v%d, v%d' % (A + 6, A + 6),
              'v_mul_f32 v%d, %s, v%d' % (R, f2u(CSCALE), R), 'v_mul_f32 v%d, %s, v%d' % (A + 6, f2u(1.0 / CSCALE), A + 6),
              'v_mul_f32_e64 v%d, -v%d, v%d' % (M, M, R), 'ds_bpermute_b32 v%d, v%d, v%d' % (self.F1, A + 7, A + 6)]
        for ks in range(16):
            for k in range(4 * ks, 4 * ks + 4):
                d = P(vACC + 2 * k)
                o.append('v_pk_fma_f32 %s, %s, %s, %s op_sel_hi:[1,0,0]' % (d, d, P(R), P(M)))
            for k in range(4 * ks, 4 * ks + 4):
                o.append('v_cvt_pk_bf16_f32 v%d, v%d, v%d' % (vX + k, vACC + 2 * k, vACC + 2 * k + 1))
            o.append('ds_write_b128 v%d, %s offset:%d' % (self.XW, vr('v', vX + 4 * ks, 4), 1024 * ks))
        nw, nl = 4 * self.opt('ln_w', 4), self.opt('ln_jobs', 22)
        jobs = wq[:nw] + self.early + wq[nw:]
        self.p2_first = jobs[nl:]
        self.sprinkle(o, jobs[:nl], start=self.opt('ln_start', 0), every=self.opt('ln_every', 2 if nd else 7))
        for nb in range(4):
            e('ds_read_b64 %s, v%d offset:%d' % (vr('a', aRES + 2 * nb, 2), self.RA + (nb & 1), 8192 * (nb >> 1) + 512 * (nb & 1)))
        e('v_lshl_add_u32 v%d, s%d, 14, v%d' % (self.XW, sW, self.XS))

    def kv_dma(self, which, unit, tag):
        buf, ring, so, vo = (SK, KRING, sKO, vDB) if which == 'K' else (SV, VRING, sVO, vDB + 2)
        fl = self.o.get('kvflag', 'nt_').replace('_', ' ') if self.kv_nt else ''
        m0 = 's_add_u32 m0, s%d, 0x%x' % (sW2K, ring + 8192 * (unit & 3))
        return [Job(Ins('buffer_load_dwordx4 v%d, %s, s%d offen %slds' % (vo, srd(buf), so, fl), tag=tag), m0=m0),
                Job(Ins('buffer_load_dwordx4 v%d, %s, s%d offen offset:1024 %slds' % (vo + 1, srd(buf), so, fl), tag=tag), m0=m0,
                    post=['s_add_u32 s%d, s%d, 0x2000' % (so, so), 's_and_b32 s%d, s%d, 0x7ffff' % (so, so)])]

    def pair_order(self, early):
        sg = [(kp, hf) for kp in range(8 - early) for hf in range(2)] + [(kp, hf) for hf in range(2) for kp in range(8 - early, 8)]
        return [2 * (2 * kp + kk) + hf for kp, hf in sg for kk in range(2)]

    def pair_groups(self, name, od):
        return [(['%s%d' % (name, k) for k in od[h:h + 2]], [k >> 1 for k in od[h:h + 2]],
                 [vACC + 64 * (od[h] & 1) + 16 * b for b in range(4)], od[h] < 2) for h in range(0, 32, 2)]

    def p2(self):
        e = self.s
        e('@sec P2')
        od = self.pair_order(0)
        later = [self.whalf('wq', od[h], h) if h < 32 else self.whalf('w1', h - 32, h) for h in range(6, 36)]
        if self.opt('kvwarm', 0):
            later[25] = later[25] + self.warm(SK, vACT, sWOW, (0, 1024, 2048, 3072)) + self.warm(SV, vACT, sWOW, (0, 1024, 2048, 3072))
        p = self.gemm(0, self.pair_groups('wq', od), lambda k, tb: (self.XS, (tb * 16 + k) * 1024),
                      later, self.p2_first, lambda: (self.s('s_barrier', need=['*lg']), self.stamp('P0 end')))
        self.q_first = p.rest
        for ks in range(16):
            p.g[16 * (ks + 2) + 7]['ds'].append('ds_read_b128 %s, v%d offset:%d' % (vr('v', vX + 4 * ks, 4), self.XW, 1024 * ks))
        assert not p.fill(self.waddr(vP + 12, vT, '0x%x' % (WREG + 8192)) + ['v_mov_b32 v%d, %s' % (vP + 10, f2u(-K1))], 16)
        f = ('v_lshrrev_b32 v%d, 4, v%d\nv_and_b32 v%d, 15, v%d\nv_lshl_add_u32 v%d, v%d, 8, s%d\n' % (vT, vL, vT + 1, vL, vT + 2, vT, sW2K) +
             'v_bfe_u32 v%d, v%d, 8, 4\nv_xor_b32 v%d, v%d, v%d\n' % (vT + 3, vT + 2, vT + 3, vT + 3, vT + 1) +
             'v_lshl_add_u32 v%d, v%d, 4, v%d\nv_xor_b32 v%d, 64, v%d\n' % (vDB, vT + 3, vT + 2, vDB + 1, vDB) +
             'v_lshlrev_b32 v%d, 1, v%d\nv_xor_b32 v%d, v%d, v%d\n' % (vT + 3, vT, vT + 3, vT + 3, vT + 1) +
             'v_lshl_add_u32 v%d, v%d, 4, v%d\nv_xor_b32 v%d, 0x80, v%d' % (vDB + 2, vT + 3, vT + 2, vDB + 3, vDB + 2)).split('\n')
        assert not p.fill(f, 32 * 14)
        assert not p.fill(self.vaddr_restore(), 16 * 31 + 2)
        p.jobs(self.flat([Job(Ins('buffer_atomic_add v%d, v%d, %s, s%d offen sc1' % (vONE, vPOFF, srd(SDBG), sT0), need=['reset']),
                              pre=['s_lshl_b32 s%d, s%d, 3' % (sT0, sT), 's_mov_b32 s%d, s%d' % (sVO, sKO)])]), p.empty(16 * 31 + 10, 1), lo=16 * 31 + 5)
        p.emit(self)
        self.stamp('P2 end')

    def q_p1(self):
        e = self.s
        e('@sec Q epilogue')
        if self.o.get('diag', '').startswith('xcc'):
            e('s_getreg_b32 s98, hwreg(HW_REG_XCC_ID)\ns_sub_u32 s98, s98, s%d\ns_and_b32 s98, s98, 7\ns_lshl_b32 s98, 1, s98' % sJ)
            e('v_mov_b32 v%d, s98\nbuffer_atomic_or v%d, v%d, %s, 0 offen offset:4 sc1' % (vT, vT, vPOFF, srd(SDBG)))
        e('s_barrier', need=['*lg'])
        jobs = self.q_first + self.tile_dma(0, 'kv0')
        o, wr = [], []
        fr = [(qb, ks) for qb in range(4) for ks in range(4)]
        for n in range(0, 16, 2):
            ts = []
            for qb, ks in fr[n:n + 2]:
                a = vACC + 32 * ks + 4 * qb
                o += self.pack(a + 16, a, a + 16)
                ts.append(a + 16)
            for op in ('v_permlane32_swap_b32', 'v_permlane16_swap_b32'):
                for t in ts:
                    o += ['%s v%d, v%d' % (op, t, t + 2), '%s v%d, v%d' % (op, t + 1, t + 3)]
            for (qb, ks), t in zip(fr[n:n + 2], ts):
                (wr if self.opt('q_in_p1', 1) else o).extend('v_accvgpr_write_b32 a%d, v%d' % (aQ + 16 * qb + 4 * ks + r, t + r) for r in range(4))
        self.sprinkle(o, jobs, every=self.opt('q_every', 4))
        self.stamp()
        e('@sec P1')
        e('s_barrier', need=['w13'])
        self.g16('v', vS, 0, vP + 12, wr)
        o = []
        for nb in range(4):
            o += self.gelu4(vS + 4 * nb, vX + 2 * nb, vP + 4 * (nb & 1), vP + 10, scale=self.F1)
        self.sprinkle(o, self.tile_dma(1, 'kv1'), every=11)
        for p in range(2):
            e('buffer_store_dwordx4 %s, v%d, %s, s%d offen offset:%d sc1' % (vr('v', vX + 4 * p, 4), vACT, srd(SH), sHO, 1024 * p), tag='hst')
        self.stamp()

    def p3(self, kreads):
        e = self.s
        self.stamp()
        e('@sec P3')
        acc = aK
        self.put(self.waddr(vT, vT + 4, '0x%x' % (WREG + 8192)))
        self.g16('a', acc, aK + 32, vT)
        X, R, PK = vX, vX + 16, vX + 32
        P = lambda b: vr('v', b, 2)
        for k in range(8):
            e('v_accvgpr_read_b32 v%d, a%d' % (PK + k, aRES + k))
        for k in range(8):
            e('v_lshlrev_b32 v%d, 16, v%d\nv_and_b32 v%d, 0xffff0000, v%d' % (R + 2 * k, PK + k, R + 2 * k + 1, PK + k))
        e('v_mov_b32 v%d, %s' % (PK + 8, f2u(1.0 / CSCALE)))
        for k in range(16):
            e('v_accvgpr_read_b32 v%d, a%d' % (X + k, acc + k))
        mark = len(e.l)
        for k in range(8):
            e('v_pk_fma_f32 %s, %s, %s, %s op_sel_hi:[1,0,1]' % (P(X + 2 * k), P(R + 2 * k), P(PK + 8), P(X + 2 * k)))
        for k in range(8):
            e('v_cvt_pk_bf16_f32 v%d, v%d, v%d' % (PK + k, X + 2 * k, X + 2 * k + 1))
        e('s_add_u32 s%d, s%d, 0x2000' % (sT1, sX1O))
        for p in range(2):
            e('buffer_store_dwordx4 %s, v%d, %s, s%d offen sc1' % (vr('v', PK + 4 * p, 4), vACT, srd(SWS), sT1 if p else sX1O))
        for k in range(8):
            e('v_lshlrev_b32 v%d, 16, v%d\nv_and_b32 v%d, 0xffff0000, v%d' % (X + 2 * k, PK + k, X + 2 * k + 1, PK + k))
            e('v_accvgpr_write_b32 a%d, v%d' % (aX1 + k, PK + k))
        for k in range(4):
            e('v_pk_add_f32 %s, %s, %s' % (P(R + 2 * k), P(X + 2 * k), P(X + 8 + 2 * k)))
        e('v_pk_add_f32 %s, %s, %s\nv_pk_add_f32 %s, %s, %s' % (P(R), P(R), P(R + 2), P(R + 4), P(R + 4), P(R + 6)))
        e('v_pk_add_f32 %s, %s, %s\nv_add_f32 v%d, v%d, v%d' % (P(R), P(R), P(R + 4), R + 8, R, R + 1))
        self.put(self.lanesum(R + 8, R + 10))
        e('v_mul_f32 v%d, %s, v%d' % (R + 8, f2u(1.0 / 64), R + 8))
        for k in range(8):
            e('v_pk_add_f32 %s, %s, %s op_sel_hi:[1,0] neg_lo:[0,1] neg_hi:[0,1]' % (P(X + 2 * k), P(X + 2 * k), P(R + 8)))
        for k in range(8):
            e('v_pk_fma_f32 %s, %s, %s, %s' % (P(R), P(X + 2 * k), P(X + 2 * k), P(R)) if k else 'v_pk_mul_f32 %s, %s, %s' % (P(R), P(X), P(X)))
        e('v_add_f32 v%d, v%d, v%d' % (R + 9, R, R + 1))
        e('v_lshlrev_b32 v%d, 3, v%d\nv_mov_b32 v%d, 0x%x\nv_cmp_gt_u32 vcc, 16, v%d' % (R, vL, R + 1, OOB, vL))
        self.put(self.lanesum(R + 9, R + 10))
        e('v_cndmask_b32 v%d, v%d, v%d, vcc' % (R, R + 1, R))
        e('buffer_store_dwordx2 %s, v%d, %s, s%d offen sc1' % (P(R + 8), R, srd(SWS), sSTO), tag='x1st')
        epi, e.l = e.l[mark:], e.l[:mark]
        for k, x in enumerate(epi):
            if k % 16 == 0:
                self.put(kreads[k // 4:k // 4 + 4])
            e.add(x)
        self.stamp()
        e('@sec attention 1b')

    def krd(self, u, f, base=aK):
        kb, ks = f >> 2, f & 3
        return 'ds_read_b128 %s, v%d offset:%d' % (vr('a', base + 32 * (u & 1) + 4 * f, 4), vKA + ks, KRING + 8192 * (u & 3) + 4096 * kb)

    def vrd(self, u, h):
        db, g = h >> 1, h & 1
        return 'ds_read_b64_tr_b16 %s, v%d offset:%d' % (vr('a', aV + 32 * (u & 1) + 4 * db + 2 * g, 2), vTR + db, 8192 * (u & 3) + 4096 * g)

    def rowsum(self, d, ones, p):
        return 'v_smfmac_f32_16x16x64_bf16 %s, %s, %s, v%d' % (vr('a', aL + 4 * d, 4), vr('a', ones, 4), vr('v', p, 8), vIDX)

    KV_GAPS = ((5, 1), (5, 5), (5, 9), (5, 13), (6, 1), (6, 5), (6, 13), (7, 1))
    SIDE_GAPS = {7: (5, 13), 0: (1, 5, 9, 13), 1: (1, 5), 4: (9, 13)}

    def tile_dma(self, T, tag):
        return sum([self.kv_dma(w, 2 * T + k, tag + w) for w in 'KV' for k in range(2)], [])

    def segment(self, seg, NS, sched, loop=None, inline=None, extra=()):
        e = self.s
        NT, inline = NS // 8, inline or {}
        side, chk, fill = {}, {}, {}

        def slots(n):
            T, h = n >> 3, n & 7
            if n < 3 or n >= NS:
                return [1, 3, 5, 7] if n > NS else []
            g = list(self.SIDE_GAPS.get(h, ()))
            if T + 2 >= NT:
                g += [x for hh, x in self.KV_GAPS if hh == h]
            if T + 1 == NT:
                g += {4: [5], 6: [9], 7: [9]}.get(h, [])
            return sorted(g)

        def spread(jobs, n, stop, rate=4):
            jobs = list(jobs)
            while jobs:
                assert n < stop, 'side jobs do not fit'
                room = min(rate, len(slots(n)) - (n in chk) - len(side.get(n, [])))
                while room > 0 and jobs:
                    side.setdefault(n, []).append(jobs.pop(0))
                    room -= 1
                n += 1
        sched(spread, chk, fill)
        lab = 'L_attn%d' % seg
        plans, use = [], {}
        for n in range(NS + 3):
            T, h = n >> 3, n & 7
            p = Plan()
            if n < NS:
                for kb in range(2):
                    d = vr('v', vS + 8 * (n & 1) + 4 * kb, 4)
                    for i, ks in enumerate(range(3, -1, -1) if kb else range(4)):
                        j = p.add(mfma(d, vr('a', aK + 32 * (n & 1) + 16 * kb + 4 * ks, 4), vr('a', aQ + 16 * (h >> 1) + 4 * ks, 4), self.o.get('c0', '-4.0') if i == 0 else None))
                        use.setdefault(('K', T, n & 1, 4 * kb + ks), []).append((n, j))
            if n >= 3:
                m, dh = (n - 3) >> 1, (n - 3) & 1
                for db in range(4 * dh, 4 * dh + 4):
                    for i, kk in enumerate((1, 0) if db & 1 else (0, 1)):
                        j = p.add(mfma(vr('v', vACC + 16 * db + 4 * (m & 3), 4), vr('a', aV + 32 * kk + 4 * db, 4), vr('v', vP + 8 * (m & 1) + 4 * kk, 4),
                                       '0' if (m < 4 and seg == 0 and i == 0) else None))
                        use.setdefault(('V', m >> 2, kk, db), []).append((n, j))
            g, full = p.g, len(p.mf) == 16
            if 1 <= n <= NS:
                sb, pb = vS + 8 * ((n - 1) & 1), vP + 4 * ((n - 1) & 3)
                lag = 2 if n < 3 else 0
                for k in range(8):
                    g[2 * k if full else min(k + lag, 7)]['va'].append('v_exp_f32 v%d, v%d' % (sb + k, sb + k))
                    if k & 1:
                        g[2 * k + 1 if full else min(k + lag + 1, 7)]['va'].append('v_cvt_pk_bf16_f32 v%d, v%d, v%d' % (pb + k // 2, sb + k - 1, sb + k))
            jobs, pos = [], []
            self.kv_nt = False
            if seg and n < 2:
                jobs, pos = self.tile_dma(1, 'kv1')[4 * n:4 * n + 4], [0, 2, 4, 6]
            if T + 2 < NT and n < NS:
                for jb, (hh, x) in zip(self.tile_dma(T + 2, 'kv%d' % (T + 2)), self.KV_GAPS):
                    if hh == h:
                        jobs.append(jb)
                        pos.append(x)
            free = slots(n)
            if n in chk:
                g[free.pop()]['end'] += chk[n]
            jobs += side.get(n, [])
            pos += free[:len(side.get(n, []))]
            assert pos == sorted(pos)
            if full and h == 4:
                late_v = seg and T == 0
                g[14]['sc'].append(Ins('@need', need=(['kv%d%s' % (T + 1, 'K' if late_v else 'V')] if T + 1 < NT else []) + ['*lg']))
                g[15]['sc'].append('s_barrier')
            if seg and n == 9:
                g[0]['sc'].append(Ins('s_barrier', need=['kv1V']))
            if loop and loop[0] <= n < loop[1] and (n - loop[0]) % 16 == 15:
                g[10]['sc'].append('s_sub_u32 s%d, s%d, 1' % (sCNT, sCNT))
                g[12]['sc'].append('s_cmp_lg_u32 s%d, 0' % sCNT)
            prev, pend = p.jobs(self.flat(jobs), pos)
            p.scalars(pend, prev + 1, 10 if prev < 8 and full else len(g))
            plans.append(p)
        reads, pre, held = [], [], {}
        for (w, T, k, f), u in use.items():
            ins = [self.krd(2 * T + k, f)] if w == 'K' else [self.vrd(2 * T + k, 2 * f + x) for x in range(2)]
            if w == 'K' and 8 * T in inline:
                held.setdefault(8 * T, []).extend(ins)
            elif w == 'K' and T == 0 and k == 0:
                pre += ins
            else:
                reads.append((u[0], use[w, T - 1, k, f][-1] if T else (0, 0), ins))
        reads.sort()
        reads += [((NS + 3, 0), at, ins) for at, ins in extra]
        for first, (n, j), ins in reads:
            for x in ins:
                while True:
                    p = plans[n]
                    g = p.g[j]
                    if len(p.mf) == 16:
                        ok = j & 1 and p.cap(j) > 0
                    else:
                        ok = not g['vm'] and len(g['ds']) < 2
                    if ok:
                        break
                    n, j = (n, j + 1) if j + 1 < len(p.mf) else (n + 1, 0)
                g['ds'].append(x)
                assert (n, j) < first and not ((n & 7) == 4 and j > 8), (n, j)
        if loop:
            e('s_mov_b32 s%d, %d' % (sCNT, (loop[1] - loop[0]) // 16))
        e('s_barrier', need=['kv0V', '*lg'])
        self.put(pre)
        carry, dead = [], 0
        for n, p in enumerate(plans):
            if n in inline:
                inline[n](held[n])
            inloop = loop and loop[0] <= n < loop[1]
            if self.opt('astamp', 0) and n % 8 == 0 and not (loop and loop[0] <= n <= loop[1]) and n not in inline:
                self.stamp('s%d_%d' % (seg, n))
            if loop and n == loop[0]:
                self.stamp('pre')
            if inloop and (n - loop[0]) % 16 == 0:
                e('@rep %s %d' % (lab, n))
            if loop and n == loop[1]:
                e('@endrep ' + lab)
                self.stamp('loop')
            if n in fill:
                assert not carry
                carry, dead = fill[n]
            carry = p.fill(carry)
            if carry and n + 1 >= dead:
                p.g[-1]['va'] += carry
                carry = []
            if n >= 3 and n & 1:
                m = (n - 3) >> 1
                p.g[7 if len(p.mf) == 16 else 3]['end'].append(self.rowsum((m >> 1) & 1, aONE2 if m & 1 else aONES, vP + 8 * (m & 1)))
            if inloop and (n - loop[0]) % 16 == 15:
                p.g[15]['end'].append('s_cbranch_scc1 ' + lab)
            p.emit(self)
        self.stamp()

    def code_addr(self):
        return ['v_add_u32 v%d, s%d, v%d' % (vT, sCW, vACT), 'v_min_u32 v%d, s%d, v%d' % (vT, SCODE + 2, vT), 'v_mov_b32 v%d, 0' % (vT + 1),
                'v_lshl_add_u64 %s, %s, 0, s[%d:%d]' % (vr('v', vT, 2), vr('v', vT, 2), SCODE, SCODE + 1)]

    def code_warm(self):
        return [Job('global_load_dwordx4 %s, %s, off' % (vr('a', aDUMMY, 4), vr('v', vT, 2)))]

    def warm(self, buf, vo, so, offs):
        return [Job('buffer_load_dwordx4 %s, v%d, %s, s%d offen offset:%d' % (vr('a', aDUMMY, 4), vo, srd(buf), so, o)) for o in offs]

    def attention1(self):
        e = self.s
        e('@sec attention 1a')
        U, F, G = vX + 48, vT + 4, vT
        N1, P3 = self.opt('n1', 176), self.opt('p3', 40)
        L0, L1 = P3 + 8, N1 - 48
        f0 = ('v_and_b32 v%d, 3, v%d\nv_min_u32 v%d, 2, v%d\n' % (U, vL, U, U) +
              'v_add3_u32 v%d, v%d, s%d, -1\nv_med3_i32 v%d, v%d, 0, 31\nv_lshlrev_b32 v%d, 3, v%d' % (U, U, sT, U, U, vPOFF, U)).split('\n')
        f1 = ('v_bfe_u32 v%d, v%d, 1, 1\nv_lshl_add_u32 v%d, v%d, 1, -1\n' % (U, vL, U, U) +
              'v_bfe_u32 v%d, v%d, 3, 1\nv_mul_i32_i24 v%d, v%d, v%d\n' % (U + 1, vL, U, U, U + 1) +
              'v_add_u32 v%d, s%d, v%d\nv_max_i32 v%d, 0, v%d\nv_min_i32 v%d, 0x7f, v%d\n' % (U, sTBG, U, U, U, U, U) +
              'v_and_b32 v%d, 7, v%d\nv_lshl_or_b32 v%d, v%d, 3, v%d\n' % (U + 1, vL, U, U, U + 1) +
              'v_lshlrev_b32 v%d, 7, v%d\nv_add_u32 v%d, 0x%x, v%d' % (U, U, F, FLAG_OFF, U)).split('\n')
        f2 = ('v_and_b32 v%d, 15, v%d\nv_lshl_add_u32 v%d, s%d, 4, v%d\nv_and_b32 v%d, 48, v%d' % (U, vL, U, sTBG, U, U + 1, vL)).split('\n')
        for g, dlt in enumerate((-1, 1, -2, 2)):
            f2 += ['v_add_u32 v%d, %d, v%d' % (U + 2, dlt, U), 'v_and_or_b32 v%d, v%d, 15, v%d' % (U + 3, U + 2, U + 1),
                   'v_bfe_u32 v%d, v%d, 4, 8' % (U + 2, U + 2), 'v_lshl_or_b32 v%d, v%d, 10, v%d' % (U + 3, U + 2, U + 3),
                   'v_lshlrev_b32 v%d, 4, v%d' % (U + 3, U + 3), 'v_add_u32 v%d, 0x%x, v%d' % (G + g, 4096 * g, U + 3)]
        f3 = ('v_lshrrev_b32 v%d, 4, v%d\nv_and_b32 v%d, 15, v%d\nv_mul_u32_u24 v%d, 3584, v%d\n' % (vT, vL, vT + 1, vL, vT + 2, vT) +
              'v_lshl_add_u32 v%d, v%d, 4, v%d\nv_lshlrev_b32 v%d, 8, v%d\nv_lshl_or_b32 v%d, v%d, 3, v%d\n' % (vT + 3, vT + 1, vT + 2, vT, vT, vT, vT + 1, vT) +
              'v_lshl_add_u32 v%d, s%d, 10, v%d\nv_add_u32 v%d, 0x%x, v%d\n' % (vT, sTBG, vT, vT + 4, ST_OFF, vT) +
              'v_and_b32 v%d, 7, v%d\nv_lshl_or_b32 v%d, s%d, 3, v%d\n' % (vT, vL, vT, sTBG, vT) +
              'v_lshlrev_b32 v%d, 7, v%d\nv_add_u32 v%d, 0x%x, v%d' % (vT, vT, vPOFF, FLAG_OFF + 131072, vT)).split('\n')
        R, M, O = vT, vT + 1, vT + 2
        f3 += ['v_or_b32 v%d, s%d, v%d' % (M, sW, vL), 'v_cmp_eq_u32 vcc, 0, v%d' % M, 'v_mov_b32 v%d, 0x%x' % (O, OOB), 'v_mov_b32 v%d, 1' % R,
               'v_cndmask_b32 v%d, v%d, 0, vcc' % (M, O)]
        dbg = lambda op, off: Job('%s v%d, v%d, %s, s%d offen offset:%d %ssc1' % (op, R, M, srd(SDBG), sT2, off, 'sc0 ' * ('atomic' in op)),
                                  pre=['s_lshl_b32 s%d, s%d, 3' % (sT2, sJ) if off != 68 else 's_mov_b32 s%d, 0' % sT2])
        CB, SM = sT0, sT1
        slices = ['v_readfirstlane_b32 s%d, v%d' % (sRANK, vPRES), 'v_and_b32 v%d, 64, v%d' % (O, vWN), 's_sub_u32 s%d, s%d, 1' % (sRANK, sRANK),
                  's_and_b32 s%d, s%d, 7' % (sRANK, sRANK),
                  's_lshl_b32 s%d, s%d, 9' % (CB, sRANK), 's_min_u32 s%d, s%d, 0xd00' % (CB, CB),
                  's_add_u32 s%d, s%d, s%d' % (sW3W, sW3W, CB), 's_lshl_b32 s%d, s%d, 9' % (sT2, CB), 'v_add_u32 v%d, s%d, v%d' % (vW2, sT2, vWN),
                  's_cmp_ge_u32 s%d, 6' % sRANK, 's_cselect_b32 s%d, 1, 0' % SM, 's_cselect_b32 s%d, 10, 11' % sW4W, 's_cselect_b32 s%d, 1791, 0' % sSTEP,
                  's_lshl_b32 s%d, s%d, s%d' % (sW4W, sTBG, sW4W), 's_add_u32 s%d, s%d, s%d' % (sW4W, sW4W, sT2),
                  'v_mad_u32_u24 v%d, s%d, v%d, v%d' % (vW3, sSTEP, O, vW3), 's_lshl_b32 s%d, 0x%x, s%d' % (sSTEP, 32 * 3584, SM),
                  's_mul_i32 s%d, s%d, s%d' % (SM, SM, sW), 's_lshl_b32 s%d, s%d, 6' % (SM, SM), 's_sub_u32 s%d, s%d, s%d' % (CB, CB, SM),
                  'v_add_u32 v%d, s%d, v%d' % (vW3, CB, vW3),
                  's_sub_u32 s%d, s%d, s%d' % (sT2, sRANK, sJ), 's_lshl_b32 s%d, s%d, 11' % (sT2, sT2), 's_add_u32 s%d, s%d, s%d' % (sYO, sPO, sT2)]
        A, LR, LB, LT = vX + 56, self.LR, self.LB, vT + 4
        f4 = ['v_accvgpr_read_b32 v%d, a%d' % (A + r, aSTAT + r) for r in range(4)]
        f4 += ['v_add_f32 v%d, v%d, v%d' % (A + 4, A, A + 2)] + self.lanesum(A + 4, A + 5)
        f4 += ['v_mul_f32 v%d, 0x3e000000, v%d' % (A + 4, A + 4), 'v_sub_f32 v%d, v%d, v%d' % (A, A, A + 4), 'v_sub_f32 v%d, v%d, v%d' % (A + 2, A + 2, A + 4),
               'v_mul_f32 v%d, v%d, v%d' % (A, A, A), 'v_fmac_f32 v%d, v%d, v%d' % (A, A + 2, A + 2), 'v_add_f32 v%d, v%d, v%d' % (A + 1, A + 1, A + 3),
               'v_fmac_f32 v%d, 0x42800000, v%d' % (A + 1, A)] + self.lanesum(A + 1, A + 5)
        f4 += ['v_mov_b32 v%d, %s' % (LR, f2u(1e-5)), 'v_fmac_f32 v%d, %s, v%d' % (LR, f2u(1.0 / 512), A + 1), 'v_rsq_f32 v%d, v%d' % (LR, LR),
               'v_sub_f32 v%d, 0, v%d' % (A + 4, A + 4), 'v_mul_f32 v%d, v%d, v%d' % (LB, A + 4, LR)]
        f5, self.ln_done = [], self.opt('ln_fill', 5)
        for k in range(vX, vX + 4 * self.ln_done):
            f5 += ['v_lshlrev_b32 v%d, 16, v%d' % (LT, k), 'v_and_b32 v%d, 0xffff0000, v%d' % (k, k), 'v_fma_f32 v%d, v%d, v%d, v%d' % (LT, LT, LR, LB),
                   'v_fma_f32 v%d, v%d, v%d, v%d' % (k, k, LR, LB), 'v_cvt_pk_bf16_f32 v%d, v%d, v%d' % (k, LT, k)]
        f6 = ['v_lshl_add_u32 v%d, s%d, 14, v%d' % (vT + 3, sW, vACT)] + self.waddr(vTR, vT, 's%d' % sRING)
        f6 += ['v_mov_b32 v%d, v%d' % (vS + 6, LR), 'v_mov_b32 v%d, v%d' % (vS + 4, LB)]
        self.put(f0)

        def sched(spread, chk, fill):
            c0, c1 = 12, P3 - 20
            chk[c0] = self.poll_check(SDBG, 8) + [Ins('v_mov_b32 v%d, v%d' % (vPOFF, F))]
            chk[c1] = self.poll_check(SWS, 1)
            chk[L1 + 4] = self.poll_check(SWS, 1) + ['v_mov_b32 v%d, 132' % vPOFF, 'v_lshl_add_u32 v%d, s%d, 3, v%d' % (vPOFF, sJ, vPOFF)]
            chk[L1 + 7] = ['v_cmp_eq_u32 vcc, %d, v%d' % (self.opt('quant', 15), R), 'v_mov_b32 v%d, 1' % R, 'v_cndmask_b32 v%d, v%d, v%d, vcc' % (M, O, M)]
            chk[L1 + 15] = ['v_add_u32 v%d, 1, v%d' % (R, R)]
            chk[L1 + 28] = self.poll_check(SDBG, 0) + slices + self.code_addr()
            fill[4], fill[c0], fill[P3] = (f1, c0), (f2, c1 + 1), (f3, P3 + 6)
            fill[L1 + 12], fill[L1 + 23], fill[N1 + 2] = (f4, L1 + 23), (f5, N1 + 2), (f6, N1 + 3)
            spread([self.flag_store(0, ['hst'])], 4, 5)
            spread([self.poll_load(SDBG)], 7, 8)
            spread([self.poll_load(SWS)], c1 - 5, c1 - 4)
            w2 = []
            for k in range(4):
                w2 += self.whalf('w2', k, 2 + k)
            spread(w2, 4, P3 - 19)
            spread([Job('buffer_load_dwordx4 %s, v%d, %s, 0 offen offset:%d sc1' % (vr('v', vX + 4 * k, 4), G + (k >> 2), srd(SH), 1024 * (k & 3)))
                    for k in range(16)], c1 + 1, P3 - 3, 2)
            spread([self.flag_store(1, ['x1st'])], P3 + 4, P3 + 5)
            spread([self.poll_load(SWS), dbg('buffer_atomic_add', 4)], L1, L1 + 1)
            spread([dbg('buffer_atomic_add', 68)], L1 + 8, L1 + 9)
            spread([dbg('buffer_store_dword', 132)], L1 + 16, L1 + 17)
            spread([self.poll_load(SDBG)], L1 + 24, L1 + 25)
            spread([Job('buffer_load_dwordx2 %s, v%d, %s, 0 offen offset:%d sc1' % (vr('a', aSTAT + 2 * k, 2), vT + 4, srd(SWS), 128 * k)) for k in range(2)]
                   + self.gather('v', vX, sX1I, 0, 'sc1' + ' nt' * self.opt('nt1', 0)), L1 + 7, L1 + 29, 2)
            spread(self.warm(SW3, vT + 3, sW3W, (0, 256)) + self.warm(SW4, vACT, sW4W, (0, 1024)) + self.code_warm(), L1 + 31, L1 + 33, 3)
            spread(sum([self.whalf('w3', k, k, None) for k in range(self.opt('w3pre', 6))], []), N1 - self.opt('w3at', 9), N1 + 2)
        self.segment(0, N1, sched, loop=(L0, L1), inline={P3: self.p3})

    def h2a(self, tb, slot):
        return 16384 + (tb & 1) * 8192 + (tb >> 1) * 32768 + slot * 1024

    def mlp(self):
        e = self.s
        P = lambda b: vr('v', b, 2)
        e('@sec LN x1')
        o, wr = [], ['ds_write_b128 v%d, %s offset:%d' % (vT + 3, vr('v', vX + 4 * ks, 4), 1024 * ks) for ks in range(16)]
        for ks in range(self.ln_done, 16):
            t = vP + 8 * (ks & 1)
            for k in range(4):
                o += ['v_lshlrev_b32 v%d, 16, v%d' % (t + 2 * k, vX + 4 * ks + k), 'v_and_b32 v%d, 0xffff0000, v%d' % (t + 2 * k + 1, vX + 4 * ks + k)]
            if ks - self.ln_done < self.ln_done:
                o.append(wr[ks - self.ln_done])
            for k in range(4):
                o.append('v_pk_fma_f32 %s, %s, %s, %s op_sel_hi:[1,0,0]' % (P(t + 2 * k), P(t + 2 * k), P(vS + 6), P(vS + 4)))
            for k in range(4):
                o.append('v_cvt_pk_bf16_f32 v%d, v%d, v%d' % (vX + 4 * ks + k, t + 2 * k, t + 2 * k + 1))
            o.append(wr[ks])
        o += wr[16 - self.ln_done:self.ln_done]
        self.put(o)
        self.touch(1)
        self.stamp()
        e('s_cmp_ge_u32 s%d, 6\ns_cbranch_scc1 L_mlp_small' % sRANK)
        n0, names = self.nstamp, len(self.tail)
        main, self.s = self.s, Stream(known=['w3%d' % k for k in range(self.opt('w3pre', 6))])
        self.s('L_mlp_small:\ns_waitcnt vmcnt(0) lgkmcnt(0)')
        self.mlp_body(True)
        self.s('s_waitcnt vmcnt(0) lgkmcnt(0)\ns_branch L_mlp_done')
        self.s.insert_waits()
        self.s.pad_hazards()
        self.aside, self.s = self.s, main
        self.nstamp, self.tail[names:] = n0, []
        self.mlp_body(False)
        e('L_mlp_done:')

    def mlp_body(self, small):
        e = self.s
        P = lambda b: vr('v', b, 2)
        e('@sec P5')
        n3 = 8 if small else 16
        sync = lambda: self.s('s_barrier', need=['*lg'])
        piece = lambda h: self.whalf('w3', h, h, small) if h < n3 else self.whalf('w4', h - n3, h, small)
        groups = [(['w3%d' % (k // 2)] if small else ['w3%d' % k, 'w3%d' % (k + 1)], [k, k + 1], [vX + 16 * b for b in range(n3 // 4)], k == 0) for k in range(0, 16, 2)]
        p = self.gemm(0, groups, lambda k, tb: (vACT, (tb * 16 + k) * 1024), [piece(h) for h in range(6, n3 + 6)], sum([piece(h) for h in range(self.opt('w3pre', 6), 6)], []), sync)
        HW, KC = vT, vT + 2
        f = ('v_lshl_add_u32 v%d, s%d, %d, v%d\nv_mov_b32 v%d, %s\n' % (HW, sW, 10 if small else 11, vACT, KC, f2u(-K1)) +
             'v_lshlrev_b32 v%d, 7, v%d\nv_mov_b32 v%d, 0x%x\nv_cmp_gt_u32 vcc, 2, v%d\n' % (vS, vL, vS + 1, OOB, vL) +
             'v_and_b32 v%d, 7, v%d\nv_lshl_add_u32 v%d, v%d, 2, s%d\nv_cndmask_b32 v%d, v%d, v%d, vcc\n' % (vS + 2, vL, vPOFF, vS + 2, sCF, vFLAG, vS + 1, vS) +
             'v_and_b32 v%d, 15, v%d\nv_lshlrev_b32 v%d, 10, v%d\n' % (vS, vL, vS, vS) +
             'v_lshrrev_b32 v%d, 4, v%d\nv_lshl_or_b32 v%d, v%d, 3, v%d' % (vS + 1, vL, vW1, vS + 1, vS)).split('\n')
        assert not p.fill(f)
        p.emit(self)
        self.stamp()
        e('@sec gelu')
        e('s_barrier')
        o, n = [], 0
        for pp in range(n3 // 8):
            for tb in range(4):
                d = vS + 4 * (n % 4)
                for g in range(2):
                    o += self.gelu4(vX + 16 * (2 * pp + g) + 4 * tb, d + 2 * g, vP + 4 * g, KC)
                n += 1
                o.append('ds_write_b128 v%d, %s offset:%d' % (HW, vr('v', d, 4), self.h2a(tb, pp)))
        self.put(o)
        self.stamp()
        e('@sec P7')
        accB, ng = (vS, vP, vX, vX + 32), n3 // 4
        groups = [(['w4%d' % (2 * (ng * ps + k) + i) for i in range(2)], [2 * k, 2 * k + 1], accB if ps else [vX + 16 * b for b in range(4)], k == 0)
                  for ps in range(2) for k in range(ng)]
        p = self.gemm(n3, groups, lambda k, tb: (vACT, self.h2a(tb, k)), [piece(h) for h in range(n3 + 6, 2 * n3)], p.rest, sync, self.tile_dma(0, 'kv0'))
        assert not p.rest
        for pp, (lo, hi) in enumerate(((p.st[ng - 1] + 18, p.st[ng] + 16), (p.st[ng] + 2, p.st[ng] + 24))):
            pk = []
            for tb in range(3, -1, -1):
                a = vX + 32 * pp + 4 * tb
                pk += self.pack(a + 16, a, a + 16)
            p.g[hi - 1]['va'] += p.fill(pk, lo, hi)
        pk = self.vaddr_restore()
        for tb in range(3, -1, -1):
            pk += self.pack(vP + 4 * tb, vS + 4 * tb, vP + 4 * tb)
        rest = p.fill(pk, p.st[-1] + 17)
        p.emit(self)
        self.put(rest)
        for tb in range(3, -1, -1):
            self.put(self.pack(vX + 32 + 4 * tb, vX + 4 * tb, vX + 32 + 4 * tb))
        for r in range(0, 16, 2):
            e('v_pk_mov_b32 %s, %s, %s op_sel:[0,1]' % (P(vX + r), P(vP + r), P(vP + r)))
        self.yfrag = {(0, 0): vX + 16, (0, 1): vX + 48, (1, 0): vX, (1, 1): vX + 32}
        self.stamp()

    def part_flag(self, word, need):
        return Job(Ins('buffer_store_dword v%d, v%d, %s, s%d offen offset:%d sc1' % (vONE, vFLAG, srd(SWS), sFP, 4 * word), need=need))

    def held(self):
        h = {14 + g: [[aK + 32 * g + 8 * b + 4 * kk for kk in range(2)] for b in range(4)] for g in range(2)}
        if self.opt('hold3', 1) and self.prof != 1:
            idle = (148, 152, 156, 172, 176, 180, 184, 188)
            h[13] = [[idle[2 * b + kk] for kk in range(2)] for b in range(4)]
            if self.opt('hold4', 1):
                h[12] = [[aQ + 32 + 8 * b + 4 * kk for kk in range(2)] for b in range(4)]
            if self.opt('hold5', 1):
                h[11] = [[aQ + 8 * b + 4 * kk for kk in range(2)] for b in range(4)]
        return h

    def attention2(self):
        e = self.s
        e('@sec attention 2a')
        N2 = 256 - self.opt('n1', 176)
        H, T = self.opt('head2', 32), N2 - self.opt('tail2', 32)
        assert N2 % 16 == 0

        def sched(spread, chk, fill):
            chk[T + 4] = self.poll_check(SWS, 1)
            spread([self.part_store(self.yfrag[h, pp] + 4 * tb, YP_OFF + 65536 * pp + 16384 * tb + 1024 * h, 'yst', sYO)
                    for h in range(2) for pp in range(2) for tb in range(4)], 4, H - 8, 2)
            spread([self.part_flag(0, ['yst'])], H - 8, H - 7)
            spread(self.warm(SWO, vACT, sWOW, (0, 1024, 2048, 3072)) + self.code_warm(), H - 8, H - 6)
            spread([self.poll_load(SWS)], T, T + 1)
            spread([Job('buffer_load_dwordx2 %s, v%d, %s, s%d offen offset:%d' % (vr('a', aRES + 2 * nb, 2), vW1, srd(SX), sXO, 512 * (nb >> 1) + 32 * (nb & 1)))
                    for nb in range(4)], T, T + 2)
            spread(self.gather('v', vX, sPI, YP_OFF, 'sc1' + ' nt' * self.opt('nt2', 1)), T + 5, N2 - 8, 2)
            if nh >= 3:
                spread(self.whalf('wo', od[26], 0) + self.whalf('wo', od[27], 1), T - 9, T - 6)
            first = sum([self.whalf('wo', od[k], h) for k, h in ((28, 4), (29, 5), (30, 2), (31, 3), (0, 0), (1, 1))], [])
            spread(first[:8], T - 17, T - 14)
            first = first[8:]
            if nh == 5:
                for kk in range(2):
                    for jb in self.whalf('wo', od[22 + kk], 0):
                        jb.m0 = 's_lshl1_add_u32 m0, s%d, 0x%x' % (sW2K, 32768 * kk)
                        first.append(jb)
            spread(first, N2 - 11, N2 - 1)
            late = self.whalf('wo', od[2], 2) + self.whalf('wo', od[3], 3)
            late[0].ins.need = ['held15']
            if nh >= 4:
                self.oepi_jobs, late = late, self.whalf('wo', od[24], 4) + self.whalf('wo', od[25], 5)
                late[0].ins.need = ['held14']
            spread(late, N2 + 1, N2 + 3)
            fill[H - 12] = (self.code_addr(), H - 8)
            fill[H - 4] = (self.waddr(vT, vT + 4, 's%d' % sRING), H)
        od, nh = self.pair_order(self.opt('p6_early', 7)), len(self.held())
        slot, at = {11: 0, 12: 4, 13: 0, 14: 4, 15: 2}, {11: None, 12: None, 13: (T - 3, 0), 14: (N2 - 2, 8), 15: (N2 - 1, 8)}
        self.oepi_jobs = []
        extra = [(at[G], [Ins('ds_read_b64_tr_b16 %s, v%d offset:%d' % (vr('a', regs[b][kk] + 2 * x, 2), (vTR if G == 12 else vT) + b, (32768 * kk if G == 11 else (slot[G] + kk) * 4096) + 2048 * x),
                              need=['wo%d' % od[2 * G + kk]], tag='held%d' % G) for b in range(4) for kk in range(2) for x in range(2)])
                 for G, regs in sorted(self.held().items())]
        self.oepi_reads = [ins for a, ins in extra if not a]
        extra = [x for x in extra if x[0]]
        self.segment(1, N2, sched, loop=(H, T) if T >= H + 32 else None, extra=extra)
        self.o_epilogue()

    def o_epilogue(self):
        e = self.s
        e('@sec O epilogue')
        e('L_oepi:')
        jobs = self.flat(self.oepi_jobs)
        for r in range(8):
            e('v_accvgpr_read_b32 v%d, a%d' % (vS + r, aL + r))
        for qb in range(4):
            e('v_add_f32 v%d, v%d, v%d' % (vS + 2 * qb, vS + 2 * qb, vS + 2 * qb + 1))
        B = vS + 8
        for qb in range(4):
            e('v_subrev_u32 v%d, 0x2b800000, v%d' % (B + qb, vS + 2 * qb))
        e('v_max3_u32 v%d, v%d, v%d, v%d\nv_max_u32 v%d, v%d, v%d' % (B, B, B + 1, B + 2, B, B, B + 3))
        e('v_cmp_lt_u32 vcc, 0x28000000, v%d' % B)
        e('v_and_b32 v%d, 3, v%d\nv_lshlrev_b32 v%d, 12, v%d\nv_lshl_add_u32 v%d, s%d, 2, v%d' % (B + 1, vL, B + 1, B + 1, B + 1, sW, B + 1))
        e('s_or_b32 s%d, vcc_lo, vcc_hi' % sT0)
        e('v_mov_b32 v%d, s%d' % (B, sT0))
        e('ds_write_b32 v%d, v%d offset:16384' % (B + 1, B))
        for qb in range(4):
            e('v_rcp_f32 v%d, v%d' % (vS + 2 * qb, vS + 2 * qb))
        e('v_lshl_add_u32 v%d, s%d, 12, v%d' % (vP, sW, vACT))
        e('s_lshl_b32 s%d, s%d, 12\nv_mov_b32 v%d, s%d' % (sT0, sW, B + 1, sT0))
        e('s_barrier', need=['*lg'])
        e('ds_read_b128 %s, v%d offset:16384' % (vr('v', B + 4, 4), B + 1))
        staged = self.oepi_reads[0] if len(self.oepi_reads) == 2 else []
        for n, (qb, ks) in enumerate((qb, ks) for qb in (1, 3, 0, 2) for ks in range(4)):
            a = vACC + 32 * ks + 4 * qb
            for h in (0, 2, 16, 18):
                e('v_pk_mul_f32 %s, %s, %s op_sel_hi:[1,0]' % (vr('v', a + h, 2), vr('v', a + h, 2), vr('v', vS + 2 * qb, 2)))
            self.put(self.pack(a + 16, a, a + 16))
            if n == 0:
                continue
            if n == 1:
                e('v_or3_b32 v%d, v%d, v%d, v%d\nv_or_b32 v%d, v%d, v%d' % (B, B + 4, B + 5, B + 6, B, B, B + 7))
                e('v_cmp_ne_u32 vcc, 0, v%d\ns_cbranch_vccnz L_slow\nL_ofine:' % B)
                e('ds_write_b128 v%d, %s offset:16384' % (vP, vr('v', vACC + 20, 4)))
                self.put(self.waddr(vTR, vT, 's%d' % sRING))
                e('s_sub_u32 s%d, s%d, s%d' % (sT0, sT0, sRING))
                self.put(['v_add_u32 v%d, s%d, v%d' % (vT + b, sT0, vTR + b) for b in range(4)])
            e('ds_write_b128 v%d, %s offset:%d' % (vP, vr('v', a + 16, 4), (16 * qb + ks) * 1024))
            self.put(staged[4 * (n - 2):4 * (n - 1)] if n >= 2 else [])
            for pre, d, post in jobs[n - 1:n]:
                self.put(pre + [d] + post)
        self.put(self.oepi_reads[-1] if self.oepi_reads else [])
        self.stamp()
        self.slow_path()

    def slow_path(self):
        main, self.s = self.s, Stream()
        e = self.s
        M = vT
        e('L_slow:\ns_cmp_lg_u32 s%d, 0\ns_cbranch_scc1 L_ofine\ns_mov_b32 s%d, 1' % (sPASS, sPASS))
        e('s_waitcnt vmcnt(0) lgkmcnt(0)')
        for ps in range(2):
            e('s_mov_b32 s%d, 0\ns_mov_b32 s%d, 0\ns_mov_b32 s%d, 64' % (sKO, sVO, sCNT))
            if ps == 0:
                for qb in range(4):
                    e('v_mov_b32 v%d, 0xff800000' % (M + qb))
            else:
                for qb in range(4):
                    for op in ('v_permlane32_swap_b32', 'v_permlane16_swap_b32'):
                        e('v_mov_b32 v%d, v%d\n%s v%d, v%d\nv_max_f32 v%d, v%d, v%d' % (vS, M + qb, op, vS, M + qb, M + qb, M + qb, vS))
                e('v_lshrrev_b32 v%d, 4, v%d\nv_xor_b32 v%d, v%d, v%d\nv_bfe_i32 v%d, v%d, 1, 1' % (vS, vL, vS, vS, vL, vS, vS))
                e('v_not_b32 v%d, v%d\nv_and_b32 v%d, 0x3f803f80, v%d' % (vS, vS, vS, vS))
                for r in range(4):
                    e('v_accvgpr_write_b32 a%d, v%d' % (aONES + r, vS))
                for r in range(128):
                    e('v_mov_b32 v%d, 0' % (vACC + r))
                for r in range(8):
                    e('v_accvgpr_write_b32 a%d, 0' % (aL + r))
            e('L_slow%d:\ns_barrier' % ps)
            self.emit_jobs(self.kv_dma('K', 2, 'k') + (self.kv_dma('V', 2, 'k') if ps else []))
            e('s_barrier', need=['k'])
            self.put([self.krd(2, f, aV + 32) for f in range(8)] + ([self.vrd(2, h) for h in range(16)] if ps else []))
            e('s_waitcnt lgkmcnt(0)')
            for qb in range(4):
                for kb in range(2):
                    for ks in range(4):
                        e(mfma(vr('v', vS + 4 * kb, 4), vr('a', aV + 32 + 16 * kb + 4 * ks, 4), vr('a', aQ + 16 * qb + 4 * ks, 4), '0' if ks == 0 else None))
                if ps == 0:
                    for r in range(0, 8, 2):
                        e('v_max3_f32 v%d, v%d, v%d, v%d' % (M + qb, M + qb, vS + r, vS + r + 1))
                    continue
                for r in range(8):
                    e('v_sub_f32 v%d, v%d, v%d' % (vS + r, vS + r, M + qb))
                for r in range(8):
                    e('v_exp_f32 v%d, v%d' % (vS + r, vS + r))
                for r in range(4):
                    e('v_cvt_pk_bf16_f32 v%d, v%d, v%d' % (vP + 4 * qb + r, vS + 2 * r, vS + 2 * r + 1))
                for db in range(8):
                    e(mfma(vr('v', vACC + 16 * db + 4 * qb, 4), vr('a', aV + 4 * db, 4), vr('v', vP + 4 * qb, 4)))
                if qb & 1:
                    e(self.rowsum(qb >> 1, aONES, vP + 4 * (qb - 1)))
            e('s_nop 7\ns_sub_u32 s%d, s%d, 1\ns_cmp_lg_u32 s%d, 0\ns_cbranch_scc1 L_slow%d' % (sCNT, sCNT, sCNT, ps))
        e('s_barrier\ns_branch L_oepi')
        e.insert_waits()
        e.pad_hazards()
        self.tail.append(e.text())
        self.s = main

    SEL = vT

    def reduce(self, acc, f, regs, ks, first=False):
        return [mfma(vr('v', acc + 4 * (2 * (k & 1) + g), 4), vr('v', self.SEL + 2 - 2 * g, 4), vr(f, regs + 4 * k, 4), '0' if (first and k < 2) else None)
                for k in ks for g in range(2)]

    def collect(self, acc, regs, base, once):
        e, L = self.s, 'L_c'
        NEW, N = sT0, sT1
        e('s_mov_b32 s%d, 0x80000\ns_mov_b32 s%d, 0\ns_waitcnt vmcnt(1)\ns_branch %s_got' % (sT3, sCNT, L))
        e('%s_wait:\ns_waitcnt vmcnt(0)\n%s_got:\nv_cmp_eq_u32 vcc, 1, v%d\ns_and_b32 s%d, vcc_lo, 0xff' % (L, L, vPRES, NEW))
        e('s_andn2_b32 s%d, s%d, s%d\ns_or_b32 s%d, s%d, s%d\ns_bcnt1_i32_b32 s%d, s%d' % (NEW, NEW, sDONE, sDONE, sDONE, NEW, N, NEW))
        for n in range(7):
            e('s_cmp_eq_u32 s%d, %d\ns_cbranch_scc1 %s_ld%d' % (N, n, L, 7 - n))
        for q in range(7):
            e('%s_ld%d:\ns_ff1_i32_b32 s%d, s%d\ns_bitset0_b32 s%d, s%d' % (L, q, sT2, NEW, NEW, sT2))
            e('s_lshl_b32 s%d, s%d, 11\ns_add_u32 s%d, s%d, s%d' % (sT2, sT2, sT2, sT2, base))
            for p in range(2):
                e('buffer_load_dwordx4 %s, v%d, %s, s%d offen offset:%d sc1' % (vr('a', regs + 8 * q + 4 * p, 4), vACT, srd(SWS), sT2, 1024 * p))
        e('%s_ld7:' % L)
        e.add(self.poll_load(SWS).ins)
        e('s_cmp_lg_u32 s%d, 0\ns_cbranch_scc1 %s_again\ns_mov_b32 s%d, 1' % (sCNT, L, sCNT))
        self.put(once)
        e('%s_again:' % L)
        for n in range(7):
            e('s_cmp_eq_u32 s%d, %d\ns_cbranch_scc1 %s_mm%d' % (N, n, L, 7 - n))
        for q in range(7):
            e('%s_mm%d:' % (L, q))
            self.put(self.reduce(acc, 'a', regs, (2 * q, 2 * q + 1)))
        e('s_cmp_lg_u32 s%d, 0xff\ns_cbranch_scc1 %s_wait\n%s_end:' % (sDONE, L, L))
        self.tail.append('%s_mm7:\n    s_sub_u32 s%d, s%d, 1\n    s_cbranch_scc0 %s_wait\n    s_branch %s_end' % (L, sT3, sT3, L, L))

    def p6_final(self):
        e = self.s
        P = lambda b: vr('v', b, 2)
        e('@sec P6')
        NE, held = self.opt('p6_early', 7), self.held()
        od = self.pair_order(NE)
        groups = [g + (held[G],) if G in held else g for G, g in enumerate(self.pair_groups('wo', od))]
        NQ = self.opt('p6_quarter', 4)
        if NQ:
            src = lambda G: held[G] if G in held else [[(2 * G + kk, b, groups[G][0][kk]) for kk in range(2)] for b in range(4)]
            seq = sorted(range(16 - NQ, 16), key=lambda G: G not in held)
            groups[16 - NQ:] = [([], groups[G][1], groups[G][2][2 * pp:2 * pp + 2], False, src(G)[2 * pp:2 * pp + 2])
                                for pp in range(2) for G in (seq[::-1] if pp else seq)]
        p = self.gemm(0, groups, lambda k, tb: (vACT, (tb * 16 + k) * 1024), [self.whalf('wo', od[h], h) for h in range(6, 32 - 2 * len(held))],
                      self.whalf('wo', od[4], 4) + self.whalf('wo', od[5], 5), lambda: self.s('s_barrier', need=['*lg']), WF=vS, AF=aV, wf='v')
        pk, st = [], []
        for h in range(2):
            for pp in range(2):
                for tb in range(3, -1, -1):
                    a = vACC + 64 * h + 32 * pp + 4 * tb
                    pk.append(self.pack(a + 16, a, a + 16))
                    st.append(self.part_store(a + 16, SP_OFF + 65536 * pp + 16384 * tb + 1024 * h, 'sst', vo=vDB + pp))
        q, pos = p.dma_end + self.opt('a_start', 16), []
        ready = [32 * (16 - NE) + 2] * 8 + [512 - 16 * NQ + 2] * (4 if NQ else 0)
        for k, r in enumerate(ready):
            q = max(q, r + 6)
            if q > 508:
                break
            while len(p.g[q]['ds']) > 1 or p.g[q]['vm']:
                q += 1
            p.jobs(self.flat([st[k]]), [q], lo=q - 2)
            pos.append(q)
            q += self.opt('a_step', 8)
        for k, q in enumerate(pos):
            p.g[q - 1]['va'] += p.fill(pk[k], ready[k], q)
        pk, st = pk[len(pos):], st[len(pos):]
        SEL, ZZ, XF, SS, E = self.SEL, vS, vP, vACC, vACC + 32
        t = vKA
        f = ('v_lshrrev_b32 v%d, 4, v%d\nv_bfe_u32 v%d, v%d, 2, 2\nv_and_b32 v%d, 1, v%d\nv_lshlrev_b32 v%d, 4, v%d\n' % (t + 1, vL, t, vL, t + 2, vL, t + 2, t + 2) +
             'v_mov_b32 v%d, 0x3f80\nv_lshlrev_b32 v%d, v%d, v%d\n' % (t + 3, t + 2, t + 2, t + 3) +
             'v_cmp_eq_u32 vcc, v%d, v%d\nv_mov_b32 v%d, 0\nv_mov_b32 v%d, 0\n' % (t, t + 1, SEL, SEL + 1) +
             'v_cndmask_b32 v%d, 0, v%d, vcc\nv_and_b32 v%d, 2, v%d\nv_cmp_eq_u32 vcc, 0, v%d\n' % (t + 2, t + 2, t, vL, t) +
             'v_mov_b32 v%d, 0\nv_mov_b32 v%d, 0\nv_cndmask_b32 v%d, 0, v%d, vcc\n' % (SEL + 4, SEL + 5, SEL + 2, t + 2) +
             'v_sub_u32 v%d, v%d, v%d\n' % (SEL + 3, t + 2, SEL + 2) +
             'v_lshl_add_u32 v%d, v%d, 3, v%d' % (vW2, t + 1, vW1)).split('\n')
        p.scalars(['s_lshl_b32 s%d, s%d, 1' % (sVO, sW), 's_sub_u32 s%d, s%d, s%d' % (sVO, sJ, sVO), 's_lshr_b32 s%d, s%d, 1' % (sCNT, sJ),
                   's_mul_i32 s%d, s%d, %d' % (sCNT, sCNT, WWAVE), 's_add_u32 s%d, s%d, s%d' % (sCNT, sCNT, sW2K), 's_add_u32 s%d, s%d, %d' % (sCNT, sCNT, WREG)], 0, 16)
        f += ['v_mov_b32 v%d, 0x%x' % (t, OOB), 'v_mov_b32 v%d, s%d' % (t + 1, sVO), 'v_cmp_eq_u32 vcc, 0, v%d' % (t + 1),
              'v_add_u32 v%d, s%d, v%d' % (vDB + 2, sRING, vACT), 'v_add_u32 v%d, s%d, v%d' % (vDB + 3, sCNT, vACT),
              'v_cndmask_b32 v%d, v%d, v%d, vcc' % (vDB, vACT, t), 'v_cmp_eq_u32 vcc, 1, v%d' % (t + 1),
              'v_add_u32 v%d, 32, v%d' % (vPOFF, vPOFF), 'v_cndmask_b32 v%d, v%d, v%d, vcc' % (vDB + 1, vACT, t)]
        assert not p.fill(f, 0, 48)
        red = self.reduce(XF, 'a', aRES, (0, 1), True) + self.reduce(ZZ, 'a', aX1, (0, 1), True) + self.reduce(ZZ, 'v', vX, range(16))
        gate = ['s_mov_b32 s%d, %s' % (sC0 + k, f2u(-math.log2(math.e))) for k in range(2)]
        gate += ['v_pk_mul_f32 %s, %s, s[%d:%d]' % (P(E + r), P(ZZ + r), sC0, sC0 + 1) for r in range(0, 16, 2)]
        gate += ['v_exp_f32 v%d, v%d' % (E + r, E + r) for r in range(16)]
        gate += ['v_pk_add_f32 %s, %s, 1.0 op_sel_hi:[1,0]' % (P(E + r), P(E + r)) for r in range(0, 16, 2)]
        gate += ['v_rcp_f32 v%d, v%d' % (E + r, E + r) for r in range(16)]
        gate += ['v_pk_mul_f32 %s, %s, %s' % (P(ZZ + r), P(ZZ + r), P(E + r)) for r in range(0, 16, 2)]
        p.scalars(['s_lshl_b32 s%d, 1, s%d' % (sDONE, sJ), 's_add_u32 s%d, s%d, 0x%x' % (sKO, sPI, SP_OFF)], 16, 24)
        if self.opt('p6stamp', 0):
            for q in (127, 255, 383, p.dma_end - 2, 479):
                p.g[q]['end'] += self.stamp_items('q%d' % q)
        p.emit(self)
        self.stamp('P6')
        e('@sec s epilogue')
        self.sprinkle(sum(pk, []), st, start=4, every=4)
        self.stamp('issued')
        self.emit_jobs([self.poll_load(SWS)])
        for pp in range(2):
            e('s_cmp_lg_u32 s%d, %d\ns_cbranch_scc1 L_other%d' % (sVO, pp, pp))
            for h in range(2):
                for tb in range(4):
                    e('ds_write_b128 v%d, %s offset:%d' % (vDB + 2, vr('v', vACC + 64 * h + 32 * pp + 16 + 4 * tb, 4), 2048 * tb + 1024 * h))
            e('L_other%d:' % pp)
        e('s_waitcnt lgkmcnt(0)\ns_barrier')
        for h in range(2):
            e('ds_read_b128 %s, v%d offset:%d' % (vr('a', 4 * h, 4), vDB + 3, 1024 * h))
        work, nb4 = red + gate, self.opt('before_flag', 24)
        self.put(self.reduce(SS, 'a', 0, (0, 1), True) + work[:nb4])
        self.emit_jobs([self.part_flag(8, ['sst'])])
        self.stamp('acked')
        self.collect(SS, 64, sKO, work[nb4:])
        self.stamp('collected')
        for nb in range(4):
            for r in range(4 * nb, 4 * nb + 4, 2):
                e('v_pk_fma_f32 %s, %s, %s, %s' % (P(XF + r), P(SS + r), P(ZZ + r), P(XF + r)))
            for k in range(2 * nb, 2 * nb + 2):
                e('v_cvt_pk_bf16_f32 v%d, v%d, v%d' % (E + k, XF + 2 * k, XF + 2 * k + 1))
            om = self.opt('outmode', 2)
            if om < 2:
                e('buffer_store_dwordx2 %s, v%d, %s, s%d offen offset:%d%s' % (P(E + 2 * nb), vW1, srd(SOUT), sXO, 512 * (nb >> 1) + 32 * (nb & 1), ' sc1' * om))
            elif nb & 1:
                t = E + 2 * nb - 2
                for op in ('v_permlane32_swap_b32', 'v_permlane16_swap_b32'):
                    e('%s v%d, v%d\n%s v%d, v%d' % (op, t, t + 2, op, t + 1, t + 3))
                e('buffer_store_dwordx4 %s, v%d, %s, s%d offen offset:%d sc1' % (vr('v', t, 4), vW2, srd(SOUT), sXO, 512 * (nb >> 1)))
        if 'diag' in self.o:
            self.stamp('end')
            if self.o['diag'].startswith('xcc'):
                e('v_mov_b32 v%d, 4\nbuffer_load_dword v%d, v%d, %s, 0 offen sc1\ns_waitcnt vmcnt(0)' % (vT, vT + 1, vT, srd(SDBG)))
                e('v_readfirstlane_b32 s100, v%d\ns_nop 3\ns_bcnt1_i32_b32 s100, s100\ns_mul_i32 s100, s100, 1000\ns_mov_b32 s98, 1000' % (vT + 1))
            e('s_sub_u32 s100, s100, s98\ns_mul_i32 s100, s100, %s\ns_min_u32 s100, s100, 100000' % self.o['diag'].split(':')[2])
            e('s_memrealtime s[98:99]\ns_waitcnt lgkmcnt(0)\ns_add_u32 s100, s100, s98')
            e('L_diag:\ns_memrealtime s[98:99]\ns_waitcnt lgkmcnt(0)\ns_sub_u32 s98, s98, s100\ns_cmp_lt_i32 s98, 0\ns_cbranch_scc1 L_diag')
        if self.prof:
            e('s_waitcnt vmcnt(0)')
            self.stamp('end')
            e('v_accvgpr_read_b32 v%d, a%d\nv_accvgpr_read_b32 v%d, a%d' % (vT, aPROF, vT + 1, aPROF + 1))
            for k in range(self.nstamp * (self.prof == 2)):
                e('v_writelane_b32 v%d, s%d, %d\nv_writelane_b32 v%d, s%d, %d' % (vT, LITE[k], k, vT + 1, LITE[k], k))
            e('s_lshl_b32 s%d, s2, 11\ns_lshl_b32 s%d, s%d, 9\ns_add_u32 s%d, s%d, s%d' % (sT0, sT1, sW, sT0, sT0, sT1))
            e('s_add_u32 s%d, s%d, 0x%x\nv_lshlrev_b32 v%d, 3, v%d' % (sT0, sT0, PROF_OFF, vT + 2, vL))
            e('buffer_store_dwordx2 %s, v%d, %s, s%d offen' % (vr('v', vT, 2), vT + 2, srd(SWS), sT0))

    def build(self, verbose=False):
        for phase in (self.prologue, self.p0, self.p2, self.q_p1, self.attention1, self.mlp, self.attention2, self.p6_final):
            phase()
        s = self.s
        s.insert_waits()
        pads = s.pad_hazards()
        est = s.estimate()
        s.fold()
        s.l += [Ins('L_end:'), Ins('s_endpgm'), Ins('@mark main_end')] + self.aside.l
        fixes = s.align(self.opt('touch', 1))
        if self.opt('touch', 1):
            n, cut = s.marks['main_end'] + 1, self.opt('touch_cut', 15)
            assert s.marks['touch1'] < cut + 1 or cut >= n
            for r, (lo, hi) in enumerate(((0, min(cut, n)), (min(cut, n), n))):
                for k in range(lo, hi):
                    s.pages[k].text = 's_cbranch_execz ' + ('L_pg%d' % (k + 4) if k + 4 < hi else 'L_touched%d' % r)
                for x in s.l:
                    for w in range(4):
                        if x.text.endswith(' L_touch%d_%d' % (r, w)):
                            x.text = x.text.replace('L_touch%d_%d' % (r, w), 'L_pg%d' % (lo + w) if lo + w < hi else 'L_touched%d' % r)
        if verbose:
            print('alignment fixes:', fixes, 'pages:', len(s.pages), s.marks)
        if verbose:
            print('hazard pads:', pads)
            for name, cyc, nm in est:
                print('  %-18s est %6d cycles, %5d mfma (%6d)' % (name, cyc, nm, nm * 16))
            print('  total', sum(c for _, c, _ in est))
        ref = open('cdna_kernels/%s.s.ref' % NAME).read().split('\n')
        head = [l for l in ref if l.startswith(';') and '@launch' not in l]
        o = head + ['; @launch grid=(256,1,1) block=(256,1,1) lds=163840',
                    '.amdgcn_target "amdgcn-amd-amdhsa--gfx950"', '.text', '.globl %s_kernel' % NAME, '.p2align 8',
                    '.type %s_kernel,@function' % NAME, '%s_kernel:' % NAME]
        o.append(DOC)
        o.append(s.text())
        o += self.tail
        o.append('L_code_end:\n    s_endpgm')
        o.append('''.section .rodata,"a"
.p2align 6
.amdhsa_kernel %s_kernel
  .amdhsa_next_free_vgpr 512
  .amdhsa_next_free_sgpr 102
  .amdhsa_accum_offset 256
  .amdhsa_group_segment_fixed_size 0
  .amdhsa_kernarg_size 104
  .amdhsa_user_sgpr_count 2
  .amdhsa_user_sgpr_kernarg_segment_ptr 1
  .amdhsa_system_sgpr_workgroup_id_x 1
  .amdhsa_float_denorm_mode_32 3
.end_amdhsa_kernel''' % NAME)
        return '\n'.join(o) + '\n'


if __name__ == '__main__':
    out = sys.argv[1] if len(sys.argv) > 1 else 'k.s'
    opts = dict(a.split('=') for a in sys.argv[2:])
    SP_OFF, YP_OFF = int(opts.get('sp', hex(SP_OFF)), 0), int(opts.get('yp', hex(YP_OFF)), 0)
    open(out, 'w').write(Gen(False, opts).build(True))
    open(out.replace('.s', '_prof.s'), 'w').write(Gen(True, opts).build())
    open(out.replace('.s', '_lite.s'), 'w').write(Gen(2, opts).build())
```

```python
import math
import struct
import sys

sys.path.insert(0, 'work')
from asmgen import Ins, Stream, vr

NAME = 'recurrent_scan__gqa_block_cached__mixer_s_mlp__prompt'


def f2u(x):
    return '0x%08x' % struct.unpack('<I', struct.pack('<f', x))[0]


H_OFF = 0
X1_OFF = 0x200000
FLAG_OFF = 0x400000
ST_OFF = 0x600000
SP_OFF = 0x1000000
YP_OFF = 0x2000000
PROF_OFF = 0x8000000
OOB = 0x40000000

KRING, VRING = 0, 32768
WREG = 65536
WWAVE = 24576

SX, SK, SV, SWQ, SWO, SW1, SW2, SW3, SW4, SOUT, SDBG, SWS, SH, SCODE = range(4, 60, 4)
sT, sJ, sW, sTBG, sRING, sW2K = 60, 61, 62, 63, 64, 65
sO, sDONE, sKO, sVO, sCNT, sRET = 66, 67, 68, 69, 70, 71
sT0, sT1, sT2, sT3 = 72, 73, 74, 75
sC0 = 76
sPASS, sWSH = 78, 79
sST = 80
sHO, sX1O, sX1I, sSTO, sPO, sPI, sCF, sFP, sXO, sCW, sW3W, sW4W, sWOW, sSTEP = range(84, 98)
sRANK, sYO = sHO, sX1O

vL = 0
vTR = 1
vKA = 9
vACT = 13
vWN, vW3, vW2, vW1 = 14, 15, 16, 17
vDB = 18
vFLAG, vONE, vPOFF, vPRES = 22, 23, 24, 25
vT = 26
vIDX = 31
vS, vP = 32, 48
vX = 64
vACC = 128
aK, aV, aONES, aL, aX1, aQ = 0, 64, 128, 132, 140, 192
aPROF, aDUMMY, aSTAT, aRES, aONE2 = 150, 152, 156, 160, 168

LITE = (3, 59, 98, 99, 100, 101, 82, 83)
CSCALE = math.log2(math.e) / math.sqrt(128.0)
K1 = 2 * 0.7978845608028654 * math.log2(math.e)
K2 = K1 * 0.044715


def srd(n):
    return 's[%d:%d]' % (n, n + 3)


def mfma(d, a, b, c=None):
    return 'v_mfma_f32_16x16x32_bf16 %s, %s, %s, %s' % (d, a, b, d if c is None else c)


DOC = """; One persistent launch, one workgroup per CU: workgroup b handles token block t = b/8 (64 tokens) and kv head
; j = b%8; wave w owns query head 4j+w.  All products are computed transposed (tokens on MFMA columns) with
; v_mfma_f32_16x16x32_bf16; weights, K and V stream global -> LDS by DMA and are read with transposing loads.
; cleared by their owner at start and used only after the arrival counters in d_debug show the clears are done."""


class Job:
    def __init__(self, ins, pre=(), m0=None, post=()):
        self.ins = ins if isinstance(ins, Ins) else Ins(ins)
        self.pre, self.m0, self.post = list(pre), m0, list(post)


class Plan:
    def __init__(self):
        self.mf, self.g = [], []

    def add(self, m):
        self.mf.append(m)
        self.g.append(dict(sc=[], ds=[], vm=[], va=[], end=[]))
        return len(self.mf) - 1

    def cap(self, j):
        g = self.g[j]
        if g['vm'] or g['end']:
            return 0
        c = 1 if self.mf[j].startswith('v_smfmac') else 2
        return c - len(g['ds']) - sum(vcost(x) for x in g['va']) - max(0, len(g['sc']) - 1)

    def jobs(self, groups, pos, lo=0, avoid=()):
        prev, pend = lo - 1, []
        for (pre, d, post), p in zip(groups, pos):
            self.scalars(pend + pre, prev + 1, p, avoid, late=True)
            assert not self.g[p]['vm'], 'gap %d already holds a memory instruction' % p
            self.g[p]['vm'].append(d)
            prev, pend = p, post
        return prev, pend

    def scalars(self, sc, a, b, avoid=(), late=False):
        if not sc:
            return
        c = [j for j in range(a, b) if not self.g[j]['vm'] and not self.g[j]['sc'] and j not in avoid]
        if len(c) < len(sc):
            c = [j for j in range(a, b) if not self.g[j]['vm']]
        if not c:
            self.g[b]['sc'] += sc
            return
        c = c[-len(sc):] if late else c[:len(sc)]
        for k, x in enumerate(sc):
            self.g[c[min(k, len(c) - 1)]]['sc'].append(x)

    def fill(self, va, start=0, end=None):
        va, j = list(va), start
        end = len(self.mf) if end is None else end
        while va and j < end:
            if self.cap(j) >= vcost(va[0]):
                self.g[j]['va'].append(va.pop(0))
            else:
                j += 1
        return va

    def empty(self, start, n, step=1):
        res, j = [], start
        while len(res) < n:
            if not any(self.g[j][k] for k in ('sc', 'ds', 'vm', 'va', 'end')):
                res.append(j)
                j += step
            else:
                j += 1
        return res

    def emit(self, gen):
        for m, g in zip(self.mf, self.g):
            gen.put([m] + g['sc'] + g['vm'] + g['ds'] + g['va'] + g['end'])


def vcost(x):
    t = x.text if isinstance(x, Ins) else x
    return 2 if t.startswith(('v_exp', 'v_rcp', 'v_rsq', 'v_permlane')) else 1


class Gen:
    def __init__(self, prof=False, opts=None):
        self.s = Stream()
        self.tail = []
        self.prof = prof
        self.o = opts or {}
        self.nstamp = 0
        self.nlab = 0
        self.kv_nt = False

    def stamp(self, name=None):
        if 'diag' in self.o:
            a, b, k = self.o['diag'].split(':')
            sec = name or [x.op[5:] for x in self.s.l if x.kind == 'meta' and x.op.startswith('@sec ')][-1]
            for r, want in ((98, a), (100, b)):
                if sec.replace(' ', '_') == want:
                    self.s('s_waitcnt lgkmcnt(0) ; stamp\ns_memrealtime s[%d:%d]\ns_waitcnt lgkmcnt(0) ; stamp' % (r, r + 1))
            return
        if not self.prof or (self.prof == 2 and name not in self.o.get('lite', 'kernarg,end,P0 end,P2 end,pre,loop').replace('_', ' ').split(',')):
            return
        e = self.s
        if self.prof == 2:
            e('s_waitcnt lgkmcnt(0) ; stamp\ns_memrealtime s[%d:%d]\ns_waitcnt lgkmcnt(0) ; stamp\ns_mov_b32 s%d, s%d' % (sST, sST + 1, LITE[self.nstamp], sST))
            self.nstamp += 1
            return
        self.tail.append('; @@' + (name or [x.op[5:] for x in e.l if x.kind == 'meta' and x.op.startswith('@sec ')][-1]))
        e('s_waitcnt lgkmcnt(0) ; stamp')
        e('s_memtime s[%d:%d]\ns_memrealtime s[%d:%d]\ns_waitcnt lgkmcnt(0) ; stamp' % (sST, sST + 1, sST + 2, sST + 3))
        for k in range(2):
            e('v_accvgpr_read_b32 v%d, a%d' % (vONE, aPROF + k))
            e('s_nop 1\nv_writelane_b32 v%d, s%d, %d' % (vONE, sST + 2 * k, self.nstamp))
            e('v_accvgpr_write_b32 a%d, v%d' % (aPROF + k, vONE))
        e('v_mov_b32 v%d, 1' % vONE)
        self.nstamp += 1

    def stamp_items(self, name):
        main, self.s = self.s, Stream()
        self.s('@sec ' + name)
        self.stamp(name)
        items, self.s = self.s.l[1:], main
        return items

    def poll_load(self, buf):
        return Job('buffer_load_dword v%d, v%d, %s, 0 offen sc1' % (vPRES, vPOFF, srd(buf)))

    def poll_check(self, buf, val):
        self.nlab += 1
        n = self.nlab
        cmp = 'v_cmp_ne_u32' if val == 1 else 'v_cmp_gt_u32' if val else 'v_cmp_eq_u32'
        self.tail.append('''L_spin%(n)d:
    s_mov_b32 s%(c)d, 0x80000
L_spin%(n)d_loop:
    buffer_load_dword v%(r)d, v%(o)d, %(b)s, 0 offen sc1
    s_waitcnt vmcnt(0)
    %(cmp)s vcc, %(v)d, v%(r)d
    s_cbranch_vccz L_back%(n)d
    s_sub_u32 s%(c)d, s%(c)d, 1
    s_cbranch_scc0 L_spin%(n)d_loop
    s_branch L_back%(n)d''' % dict(n=n, c=sT3, r=vPRES, o=vPOFF, b=srd(buf), v=val, cmp=cmp))
        return [Ins('%s vcc, %d, v%d' % (cmp, val, vPRES)), Ins('s_cbranch_vccnz L_spin%d' % n), Ins('L_back%d:' % n)]

    def flag_store(self, phase, need):
        return Job(Ins('buffer_store_dword v%d, v%d, %s, s%d offen sc1' % (vONE, vFLAG, srd(SWS), sT2), need=need),
                   pre=['s_mov_b32 s%d, 0x%x' % (sT2, FLAG_OFF + phase * 131072)])

    def opt(self, k, d):
        return int(self.o.get(k, d))

    def touch(self, r):
        if not self.opt('touch', 1):
            return
        e = self.s
        e('@mark touch%d\ns_mov_b64 exec, 0' % r)
        alt = self.classes() if r else ()
        for cls, first in alt:
            e('s_cmp_ge_u32 s%d, %d\ns_cbranch_scc1 L_enter%d' % (sRANK, first, cls))
        for cls in [8] + [c for c, _ in alt]:
            e('L_enter%d:' % cls if cls != 8 else '')
            for w in range(3):
                e('s_cmp_eq_u32 s%d, %d\ns_cbranch_scc1 L_touch%d_%d_%d' % (sW, w, r, cls, w))
            e('s_branch L_touch%d_%d_3' % (r, cls))
        e('L_touched%d:\ns_mov_b64 exec, -1' % r)

    def put(self, items):
        for x in items:
            self.s.add(x if isinstance(x, Ins) else Ins(x))

    def flat(self, jobs):
        res, m0 = [], None
        for jb in jobs:
            pre = list(jb.pre)
            if jb.m0 and jb.m0 != m0:
                pre.insert(0, jb.m0)
                m0 = jb.m0
            res.append((pre, jb.ins, list(jb.post)))
        return res

    def emit_jobs(self, jobs):
        for pre, d, post in self.flat(jobs):
            self.put(pre + [d] + post)

    def sprinkle(self, main, jobs, start=0, every=8):
        groups = self.flat(jobs)
        for k, x in enumerate(main):
            if groups and k >= start and (k - start) % every == 0:
                pre, d, post = groups.pop(0)
                self.put(pre + [d] + post)
            self.put([x])
        for pre, d, post in groups:
            self.put(pre + [d] + post)

    def whalf(self, name, k, h, cls=8):
        buf, vo, stride, nat, off = {
            'wq': (SWQ, vDB, 8192, True, (k >> 1) * 32 * 8192 + (k & 1) * 128),
            'w1': (SW1, vW1, 1024, True, k * 32768),
            'w2': (SW2, vW2, 1024, False, k * 32768),
            'w3': (SW3, vW3, 3584, False, k * (64 if cls == 4 else 32) * 3584),
            'w4': (SW4, vW2, 1024, False, (k % (cls or 8)) * 32768 + (k // (cls or 8)) * 512),
            'wo': (SWO, vWN, 1024, False, (k >> 1) * 32768 + (k & 1) * 512)}[name]
        rows = [16 * (a & 1) + 4 * (a >> 1) if nat else 8 * a for a in range(4)]
        return [Job(Ins('buffer_load_dwordx4 v%d, %s, s%d offen offset:%d %slds' % (vo, srd(buf), sO, 1024 * a, 'nt ' if name in self.o.get('wnt', 'none').split(',') else ''), tag='%s%d' % (name, k)),
                    pre=['s_mov_b32 s%d, 0x%x' % (sO, off + rows[a] * stride - 1024 * a)] if cls is not None else
                    ['s_mul_i32 s%d, s%d, %d' % (sO, sSTEP, k) if a == 0 else 's_add_u32 s%d, s%d, 0x%x' % (sO, sO, 8 * stride - 1024)],
                    m0='s_add_u32 m0, s%d, 0x%x' % (sRING, (h % 6) * 4096)) for a in range(4)]

    def waddr(self, dst, t, base):
        return ['v_lshrrev_b32 v%d, 2, v%d' % (dst, vL), 'v_bfe_u32 v%d, v%d, 3, 2' % (t, vL), 'v_lshlrev_b32 v%d, 5, v%d' % (t, t),
                'v_lshl_or_b32 v%d, v%d, 7, v%d' % (dst, dst, t), 'v_and_b32 v%d, 3, v%d' % (t, vL), 'v_lshl_or_b32 v%d, v%d, 3, v%d' % (dst, t, dst),
                'v_add_u32 v%d, %s, v%d' % (dst, base, dst)] + ['v_xor_b32 v%d, 0x%x, v%d' % (dst + b, b << 5, dst) for b in range(1, 4)]

    def vaddr_restore(self):
        return ['v_xor_b32 v%d, 0x80, v%d' % (vTR + db, vTR + 4 + db) for db in range(4)]

    def lanesum(self, r, t):
        o = []
        for op in ('v_permlane32_swap_b32', 'v_permlane16_swap_b32'):
            o += ['v_mov_b32 v%d, v%d' % (t, r), '%s v%d, v%d' % (op, t, r), 'v_add_f32 v%d, v%d, v%d' % (r, r, t)]
        return o

    def gelu4(self, src, dst, tmp, k1, scale=None):
        o = []
        e = o.append
        P = lambda b: vr('v', b, 2)
        if scale is not None:
            for h in (0, 2):
                e('v_pk_mul_f32 %s, %s, %s op_sel_hi:[1,0]' % (P(src + h), P(src + h), P(scale)))
        for h in (0, 2):
            e('v_pk_mul_f32 %s, %s, %s' % (P(tmp + h), P(src + h), P(src + h)))
        for h in (0, 2):
            e('v_pk_fma_f32 %s, %s, s[%d:%d], %s op_sel_hi:[1,1,0]' % (P(tmp + h), P(tmp + h), sC0, sC0 + 1, P(k1)))
        for h in (0, 2):
            e('v_pk_mul_f32 %s, %s, %s' % (P(tmp + h), P(tmp + h), P(src + h)))
        for r in range(4):
            e('v_exp_f32 v%d, v%d' % (tmp + r, tmp + r))
        for h in (0, 2):
            e('v_pk_add_f32 %s, %s, 1.0 op_sel_hi:[1,0]' % (P(tmp + h), P(tmp + h)))
        for r in range(4):
            e('v_rcp_f32 v%d, v%d' % (tmp + r, tmp + r))
        for h in (0, 2):
            e('v_pk_mul_f32 %s, %s, %s' % (P(tmp + h), P(tmp + h), P(src + h)))
        for h in (0, 2):
            e('v_cvt_pk_bf16_f32 v%d, v%d, v%d' % (dst + h // 2, tmp + h, tmp + h + 1))
        return o

    def pack(self, d, a0, a1):
        return ['v_cvt_pk_bf16_f32 v%d, v%d, v%d' % (d + 3, a1 + 2, a1 + 3), 'v_cvt_pk_bf16_f32 v%d, v%d, v%d' % (d + 2, a1, a1 + 1),
                'v_cvt_pk_bf16_f32 v%d, v%d, v%d' % (d, a0, a0 + 1), 'v_cvt_pk_bf16_f32 v%d, v%d, v%d' % (d + 1, a0 + 2, a0 + 3)]

    def g16(self, accf, acc, ring, ad, fill=()):
        def kn(n):
            return (n & 15, n >> 4) if self.opt('chain16', 1) else (n >> 2, n & 3)

        def rd(n):
            ks, nb = kn(n)
            off = ((ks >> 2) & 1) * WWAVE + (ks & 3) * 4096
            return ['ds_read_b64_tr_b16 %s, v%d offset:%d' % (vr('a', ring + 4 * (n % 8) + 2 * g, 2), ad + nb, off + 2048 * g) for g in range(2)]
        AH = 6
        for n in range(AH):
            self.put(rd(n))
        p = Plan()
        for n in range(64):
            ks, nb = kn(n)
            p.add(mfma(vr(accf, acc + 4 * nb, 4), vr('a', ring + 4 * (n % 8), 4), vr('v', vX + 4 * ks, 4), '0' if ks == 0 else None))
            if n + AH < 64:
                p.g[n]['ds'] += rd(n + AH)
                if kn(n + AH)[0] == 7:
                    a = ad + kn(n + AH)[1]
                    p.g[n]['va'].append('v_add_u32 v%d, 0x%x, v%d' % (a, 2 * WWAVE, a))
            p.g[n]['va'] += fill[n:n + 1]
        p.emit(self)

    def gemm(self, h0, groups, actf, later, first_jobs=(), sync=None, last_jobs=(), WF=0, AF=32, wf='a', ntb=(4, 4, 4, 4), dq=4):
        LEAD = 9
        p, par, h, blk, free, srcs = Plan(), [], h0, [], {}, []
        p.st = []
        for G, (tags, ak, acc, first, *src) in enumerate(groups):
            par.append(par[-1] ^ (ak != groups[G - 1][1]) if G else 0)
            p.st.append(len(p.mf))
            flip = 0
            for b in range(len(acc)):
                n = len(blk)
                blk.append(len(p.mf))
                srcs.append(src[0][b] if src else [(h + kk, b, tags[kk]) if len(tags) == 2 else (h, b + 2 * kk, tags[0]) for kk in range(2)])
                for x in srcs[-1]:
                    if isinstance(x, tuple):
                        free[x[0]] = blk[-1]
                for tb in (range(ntb[b] - 1, -1, -1) if b & 1 else range(ntb[b])):
                    for i, kk in enumerate((1, 0) if flip else (0, 1)):
                        w = srcs[-1][kk]
                        p.add(mfma(vr('v', acc[b] + 4 * tb, 4), vr(wf, WF + 8 * (n % 4) + 4 * kk, 4) if isinstance(w, tuple) else vr('a', w, 4),
                                   vr('a', AF + 32 * par[G] + 16 * kk + 4 * tb, 4), '0' if (first and i == 0) else None))
                    flip ^= 1
            h += len(tags)
        owner = [free[x] for x in sorted(free)]
        N = len(p.mf)
        jobs, pos, q = list(first_jobs), [2 * k + 1 for k in range(len(first_jobs))], 4 * ((len(first_jobs) + 1) // 2) + 1
        rest = []
        for k, piece in enumerate(later):
            while k < len(owner) and q <= owner[k]:
                q += dq
            for jb in piece:
                if q < N and k < len(owner) and not rest:
                    jobs.append(jb)
                    pos.append(q)
                    q += dq
                else:
                    rest.append(jb)
        for jb in last_jobs:
            jobs.append(jb)
            pos.append(q)
            q += 4
        p.rest, p.dma_end = rest, q
        prev, pend = p.jobs(self.flat(jobs), pos, avoid={x - 1 for x in blk})
        p.scalars(pend, prev + 1, N)
        pre = []

        def place(ins, lo, use):
            for each, lead in ((1, LEAD), (2, LEAD), (2, LEAD - 2), (2, LEAD - 4)):
                c = [j for j in range(max(lo - 1, 0), use - lead + 1) if not p.g[j]['vm'] and (j + 1 not in blk or each == 2)
                     for _ in range(each - len(p.g[j]['ds']))]
                if len(c) >= len(ins) or lo == 0:
                    break
            assert len(c) >= len(ins) or lo == 0
            c = c[-len(ins):]
            pre.extend(ins[:len(ins) - len(c)])
            for j, x in zip(c, ins[len(ins) - len(c):]):
                p.g[j]['ds'].append(x)
        for n, src in enumerate(srcs):
            ins = [Ins('ds_read_b64_tr_b16 %s, v%d offset:%d' % (vr(wf, WF + 8 * (n % 4) + 4 * kk + 2 * g, 2), vTR + x[1], (x[0] % 6) * 4096 + 2048 * g),
                       need=[x[2]]) for kk, x in enumerate(src) if isinstance(x, tuple) for g in range(2)]
            if ins:
                place(ins, blk[n - 3] if n >= 4 else 0, blk[n])
        for G, (tags, ak, *_) in enumerate(groups):
            if G == 0 or ak != groups[G - 1][1]:
                ins = ['ds_read_b128 %s, v%d offset:%d' % ((vr('a', AF + 32 * par[G] + 16 * kk + 4 * tb, 4),) + actf(k, tb)) for tb in range(4) for kk, k in enumerate(ak)]
                prev = [x for x in range(G) if par[x] == par[G]]
                lo = p.st[prev[-1] + 1] if prev else 0
                if G == 0:
                    act0 = [ins[k] for k in (0, 1, 3, 2, 4, 5, 7, 6)]
                    continue
                span = max(1, (p.st[G] - LEAD - lo) // len(ins))
                for k, x in enumerate(ins):
                    j = lo + k * span
                    while p.g[j]['vm'] or len(p.g[j]['ds']) >= 2 or (j + 1 in blk and span > 1):
                        j += 1
                    assert j < p.st[G] - 4 + k
                    p.g[j]['ds'].append(x)
        main, self.s = self.s, Stream()
        sync()
        bar, self.s = self.s.l, main
        for x in bar:
            if x.kind == 'bar':
                lg = [y for y in self.s.l if y.kind in ('dsr', 'dsw')]
                if lg:
                    lg[-1].tag = 'lastlds'
                self.put(pre)
                x.need = ['lastlds'] if lg else []
            self.s.add(x)
        self.put(act0)
        return p

    def part_store(self, reg, off, tag, base=sPO, vo=vACT):
        return Job(Ins('buffer_store_dwordx4 %s, v%d, %s, s%d offen sc1' % (vr('v', reg, 4), vo, srd(SWS), sT1), tag=tag),
                   pre=['s_add_u32 s%d, s%d, 0x%x' % (sT1, base, off)])

    def gather(self, f, dst, soff, off, flags):
        return [Job('buffer_load_dwordx4 %s, v%d, %s, s%d offen offset:%d %s' % (vr(f, dst + 4 * k, 4), vACT, srd(SWS), sRET, 1024 * (k % 4), flags),
                    pre=['s_add_u32 s%d, s%d, 0x%x' % (sRET, soff, off + 1024 * k)] if k % 4 == 0 else []) for k in range(16)]

    LR, LB = vW1, vFLAG
    XS, XW, RA, F1 = vP + 8, vP + 9, vP + 10, vT + 4

    def prologue(self):
        e = self.s
        D = vr('a', aDUMMY, 4)
        e('@sec prologue')
        bufs = [(SX, 0, 0x200000), (SWQ, 24, 0x400000), (SWS, 96, 0x10000000), (SW1, 48, 0x80000), (SW2, 56, 0x80000), (SDBG, 88, 256), (SK, 8, 0x400000),
                (SV, 16, 0x400000), (SWO, 32, 0x400000), (SW3, 64, 0x1c0000), (SW4, 72, 0x1c0000), (SOUT, 80, 0x200000)]
        for b, off, _ in bufs[:2]:
            e('s_load_dwordx2 s[%d:%d], s[0:1], %d' % (b, b + 1, off))
        e('s_cmp_ge_u32 s2, 256\ns_cbranch_scc1 L_end')
        if self.o.get('diag', '').startswith('start'):
            e('s_memrealtime s[98:99]')
        if self.prof:
            e('v_accvgpr_write_b32 a%d, 0\nv_accvgpr_write_b32 a%d, 0' % (aPROF, aPROF + 1))
        e('s_getpc_b64 s[%d:%d]\nL_pc:' % (SCODE, SCODE + 1))
        e('s_mov_b32 s%d, L_code_end-L_pc-16' % (SCODE + 2))
        e('s_lshr_b32 s%d, s2, 3\nv_lshlrev_b32 v%d, 4, v0\nv_lshl_add_u32 v%d, s%d, 12, v%d' % (sT, vT + 3, vT, sT, vT + 3))
        self.put(self.code_addr()[1:])
        self.emit_jobs(self.code_warm())
        e('v_readfirstlane_b32 s%d, v0\ns_and_b32 s%d, s2, 7\nv_and_b32 v0, 63, v0' % (sW, sJ))
        e('s_lshr_b32 s%d, s%d, 6' % (sW, sW))
        e('s_lshl_b32 s%d, s%d, 2\ns_add_u32 s%d, s%d, s%d' % (sTBG, sT, sTBG, sTBG, sW))
        e('v_lshrrev_b32 v%d, 2, v%d\nv_and_b32 v%d, 3, v%d' % (vT + 1, vL, vT + 2, vL))
        e('v_lshlrev_b32 v%d, 10, v%d\nv_lshl_or_b32 v%d, v%d, 4, v%d' % (vT + 4, vT + 1, vT + 4, vT + 2, vT + 4))
        e('v_lshlrev_b32 v%d, 4, v%d' % (vACT, vL))
        e('s_lshl_b32 s%d, s%d, 14\ns_lshl_b32 s%d, s%d, 13\ns_lshl_b32 s%d, s%d, 10' % (sCNT, sTBG, sVO, sTBG, sT1, sJ))
        e('s_mov_b32 s%d, 0x200000\ns_mov_b32 s%d, 0x20000' % (SX + 2, SX + 3))
        e('s_sub_u32 s%d, 0x400000, s%d\ns_mov_b32 s%d, 0x20000' % (SWQ + 2, sT1, SWQ + 3))
        e('s_waitcnt lgkmcnt(0)')
        self.stamp('kernarg')
        e('s_add_u32 s%d, s%d, s%d\ns_addc_u32 s%d, s%d, 0' % (SWQ, SWQ, sT1, SWQ + 1, SWQ + 1))
        for b, off, _ in bufs[2:]:
            e('s_load_dwordx2 s[%d:%d], s[0:1], %d' % (b, b + 1, off))
        wl = [Job('buffer_load_dwordx4 %s, v%d, %s, s%d offen' % (D, vACT, srd(SWQ), sVO), post=['s_add_u32 s%d, s%d, 0x100000' % (sVO, sVO)]) for i in range(4)]
        nf = self.opt('wq_first', 2)
        self.emit_jobs(wl[:nf])
        xl = [Job('buffer_load_dwordx4 %s, v%d, %s, s%d offen offset:%d' % (vr('v', vX + 4 * ks, 4), vT + 4, srd(SX), sCNT, 64 * ks)) for ks in range(16)]
        nx = self.opt('x_first', 10)
        self.emit_jobs(xl[:nx])
        self.stamp('x issued')
        mark = len(e.l)

        def lin(dst, c, *terms):
            for k, (reg, mul) in enumerate(terms):
                e('s_mul_i32 s%d, s%d, 0x%x' % (dst if k == 0 else sT0, reg, mul & 0xffffffff))
                if k:
                    e('s_add_u32 s%d, s%d, s%d' % (dst, dst, sT0))
            if c:
                e('s_add_u32 s%d, s%d, 0x%x' % (dst, dst, c))
        lin(sRING, WREG, (sW, WWAVE))
        lin(sW2K, 0, (sW, 2048))
        e('v_mov_b32 v%d, 1' % vONE)
        XS, XW, RA = self.XS, self.XW, self.RA
        e('v_lshlrev_b32 v%d, 1, v%d\nv_xor_b32 v%d, v%d, v%d\nv_lshl_or_b32 v%d, v%d, 4, v%d' % (vT, vT + 2, vT, vT, vT + 1, vT, vT + 2, vT))
        e('v_lshlrev_b32 v%d, 4, v%d\nv_lshl_add_u32 v%d, s%d, 14, v%d' % (vT, vT, XW, sW, vT))
        e('v_lshrrev_b32 v%d, 4, v%d\nv_lshlrev_b32 v%d, 5, v%d\nv_xor_b32 v%d, v%d, v%d' % (vT, vL, vT, vT, XS, vT, vACT))
        e('v_lshrrev_b32 v%d, 5, v%d\nv_and_b32 v%d, 15, v%d\nv_mul_u32_u24 v%d, 18, v%d\nv_xor_b32 v%d, v%d, v%d' % (vT, vL, vT + 1, vL, vT, vT, vT, vT, vT + 1))
        e('v_bfe_u32 v%d, v%d, 4, 1\nv_lshl_or_b32 v%d, v%d, 1, v%d\nv_lshlrev_b32 v%d, 3, v%d' % (vT + 1, vL, vT, vT, vT + 1, vT, vT))
        lin(sT1, 0, (sW, 16384), (sJ, 1024))
        e('v_add_u32 v%d, s%d, v%d\nv_xor_b32 v%d, 64, v%d' % (RA, sT1, vT, RA + 1, RA))
        C, RN, RK = vT, vT + 1, vT + 2
        e('v_and_b32 v%d, 7, v%d\nv_bfe_u32 v%d, v%d, 4, 2\nv_lshlrev_b32 v%d, 1, v%d\nv_xor_b32 v%d, v%d, v%d' % (C, vL, RN, vL, RN, RN, C, C, RN))
        e('v_lshlrev_b32 v%d, 4, v%d\nv_lshrrev_b32 v%d, 3, v%d' % (C, C, RN, vL))
        e('v_and_b32 v%d, 4, v%d\nv_add_u32 v%d, v%d, v%d' % (RK, RN, RK, RK, RN))
        e('v_lshl_add_u32 v%d, v%d, 13, v%d\nv_lshl_add_u32 v%d, s%d, 8, v%d' % (vDB, RK, C, vDB, sW, vDB))
        e('v_lshl_add_u32 v%d, v%d, 10, v%d\nv_lshl_add_u32 v%d, s%d, 17, v%d' % (vW1, RK, C, vW1, sW, vW1))
        e('v_lshl_add_u32 v%d, v%d, 10, v%d' % (vWN, RN, C))
        e('v_and_b32 v%d, 64, v%d\nv_mad_u32_u24 v%d, v%d, 7, v%d' % (RK, C, vW2, RK, vWN))
        W1W, W2W = vP, vP + 1
        e('v_mov_b32 v%d, v%d\nv_mov_b32 v%d, v%d' % (W1W, vWN, W2W, vW2))
        e('v_lshl_add_u32 v%d, s%d, 17, v%d\nv_lshl_add_u32 v%d, s%d, 7, v%d' % (vW2, sW, vW2, vWN, sW, vWN))
        e('v_mul_u32_u24 v%d, 3584, v%d\nv_lshl_add_u32 v%d, s%d, 7, v%d\nv_add_u32 v%d, v%d, v%d' % (RN, RN, C, sW, C, vW3, RN, C))
        e('v_mov_b32 v%d, 0x%x' % (vT + 5, OOB))
        lin(sKO, 0, (sT, 16384))
        RS, Z = vP + 2, vP + 3
        e('v_lshrrev_b32 v%d, 2, v%d\nv_lshlrev_b32 v%d, 17, v%d' % (RS, vL, RS, RS))
        e('v_and_b32 v%d, 3, v%d\nv_lshl_or_b32 v%d, v%d, 10, v%d' % (Z, vL, RS, Z, RS))
        e('v_cmp_gt_u32 vcc, 0x80, v%d' % (vT + 3))
        lin(sT1, 0, (sTBG, 1024), (sJ, 128))
        e('v_cndmask_b32 v%d, v%d, v%d, vcc' % (RS, vT + 5, RS))
        e('v_lshrrev_b32 v%d, 9, v%d\nv_cmp_eq_u32 vcc, 1, v%d' % (Z, vT + 3, Z))
        e('v_lshlrev_b32 v%d, 2, v%d\nv_add_u32 v%d, 0x%x, v%d' % (Z, vL, Z, 0x40000 - 128, Z))
        e('v_cndmask_b32 v%d, v%d, v%d, vcc' % (RS, RS, Z))
        e('v_cmp_eq_u32 vcc, 0, v%d\nv_mov_b32 v%d, s%d\ns_add_u32 s%d, s%d, 0x%x' % (vL, vFLAG, sT1, sRET, sT1, FLAG_OFF))
        e('v_cndmask_b32 v%d, v%d, v%d, vcc' % (vFLAG, vT + 5, vFLAG))
        e('v_cmp_eq_u32 vcc, 0, v%d\nv_mov_b32 v%d, 0\ns_add_u32 s%d, s%d, 0x%x' % (vT + 3, Z, sSTO, sT1, ST_OFF))
        e('v_cndmask_b32 v%d, v%d, 0, vcc' % (vPOFF, vT + 5))
        e('v_and_b32 v%d, 15, v%d\nv_lshrrev_b32 v%d, 4, v%d' % (vT, vL, vT + 1, vL))
        e('v_xor_b32 v%d, v%d, v%d\nv_lshlrev_b32 v%d, 4, v%d\nv_lshl_or_b32 v%d, v%d, 8, v%d' % (vT + 1, vT + 1, vT, vT + 1, vT + 1, vKA, vT, vT + 1))
        for ks in range(1, 4):
            e('v_xor_b32 v%d, 0x%x, v%d' % (vKA + ks, 64 * ks, vKA))
        e('v_lshrrev_b32 v%d, 2, v%d\nv_and_b32 v%d, 7, v%d\nv_lshlrev_b32 v%d, 5, v%d' % (vT, vL, vT + 1, vT, vT + 1, vT + 1))
        e('v_lshl_or_b32 v%d, v%d, 8, v%d\nv_and_b32 v%d, 3, v%d\nv_lshl_or_b32 v%d, v%d, 3, v%d' % (vT, vT, vT + 1, vT + 1, vL, vT, vT + 1, vT))
        for db in range(4, 8):
            e('v_xor_b32 v%d, 0x%x, v%d' % (vTR + db, VRING | db << 5, vT))
        self.put(self.waddr(vTR, vT, 's%d' % sRING))
        e('v_bfe_i32 v%d, v%d, 1, 1\nv_and_b32 v%d, 0x3f803f80, v%d\nv_xor_b32 v%d, 0x3f803f80, v%d' % (vT, vL, vT + 1, vT, vT + 2, vT + 1))
        e('v_bfe_i32 v%d, v%d, 0, 1\nv_and_b32 v%d, 0xaaaaaaaa, v%d\nv_or_b32 v%d, 0x44444444, v%d' % (vT, vL, vT, vT, vIDX, vT))
        for r in range(4):
            e('v_accvgpr_write_b32 a%d, v%d\nv_accvgpr_write_b32 a%d, v%d' % (aONES + r, vT + 2, aONE2 + r, vT + 1))
        for r in range(8):
            e('v_accvgpr_write_b32 a%d, 0' % (aL + r))
        lin(sHO, 0, (sTBG, 1 << 14), (sJ, 1 << 11))
        lin(sX1I, X1_OFF, (sTBG, 1 << 14))
        lin(sX1O, 0, (sJ, 1 << 10), (sX1I, 1))
        lin(sPO, 0, (sT, 1 << 19), (sJ, 1 << 11), (sW, 1 << 17))
        lin(sPI, 0, (sT, 1 << 19), (sJ, 1 << 16), (sW, 1 << 14))
        lin(sCF, FLAG_OFF + 0x40000, (sT, 1 << 12), (sJ, 1 << 7))
        lin(sFP, FLAG_OFF + 0x40000, (sT, 1 << 12), (sW, 256), (sJ, 4))
        lin(sXO, 0, (sTBG, 1 << 14), (sJ, 64))
        lin(sCW, 0, (sTBG, 1024))
        lin(sW3W, 0, (sTBG, 4 * 3584))
        lin(sWOW, 0, (sTBG, 4096))
        e('s_lshr_b32 s%d, s%d, 1\ns_lshl_b32 s%d, s%d, 13' % (sWSH, sTBG, sWSH, sWSH))
        e('s_mov_b32 s%d, %s\ns_mov_b32 s%d, %s\ns_mov_b32 s%d, 0' % (sC0, f2u(-K2), sC0 + 1, f2u(-K2), sPASS))
        e('s_waitcnt lgkmcnt(0)')
        shift = {SW1: [(sJ, 128)], SW2: [(sJ, 64)], SK: [(sJ, 1 << 19)], SV: [(sJ, 1 << 19)], SWO: [(sJ, 1 << 19)]}
        for b, _, size in bufs[2:]:
            if b in shift:
                lin(sT1, 0, *shift[b])
                e('s_add_u32 s%d, s%d, s%d\ns_addc_u32 s%d, s%d, 0\ns_sub_u32 s%d, 0x%x, s%d' % (b, b, sT1, b + 1, b + 1, b + 2, size, sT1))
            else:
                e('s_mov_b32 s%d, 0x%x' % (b + 2, size))
            e('s_mov_b32 s%d, 0x20000' % (b + 3))
        e('s_mov_b32 s%d, s%d\ns_mov_b32 s%d, s%d\ns_mov_b32 s%d, 0x200000\ns_mov_b32 s%d, 0x20000' % (SH, SWS, SH + 1, SWS + 1, SH + 2, SH + 3))
        ns = self.opt('x_setup', 0)
        setup, e.l = e.l[mark:], e.l[:mark]
        self.sprinkle(setup, xl[nx:nx + ns], start=self.opt('xs_start', 20), every=self.opt('xs_every', 25))
        self.xrest = xl[nx + ns:]
        self.early = wl[nf:] + [Job(Ins('buffer_store_dword v%d, v%d, %s, s%d offen sc1' % (Z, RS, srd(SWS), sRET), tag='reset')),
                                Job('buffer_load_dwordx4 %s, v%d, %s, s%d offen' % (D, W1W, srd(SW1), sWSH)),
                                Job('buffer_load_dwordx4 %s, v%d, %s, s%d offen' % (D, W2W, srd(SW2), sWSH))]
        self.early += (self.warm(SK, vACT, sWOW, (0, 1024, 2048, 3072)) + self.warm(SV, vACT, sWOW, (0, 1024, 2048, 3072)))[:self.opt('kv_early', 2)]
        self.stamp('setup')
        self.touch(0)
        self.stamp('touched')
        e('s_branch L_go\n.p2align 12\nL_go:')

    def p0(self):
        e = self.s
        e('@sec P0 layernorm')
        P = lambda b: vr('v', b, 2)
        A, X0 = vS, vS + 8
        o = ['v_lshlrev_b32 v%d, 16, v%d' % (X0 + 1, vX), 'v_mov_b32_dpp v%d, v%d quad_perm:[0,0,0,0] row_mask:0xf bank_mask:0xf' % (X0, X0 + 1)]
        for k in range(64):
            d = vACC + 2 * k
            o += ['v_lshlrev_b32 v%d, 16, v%d' % (d, vX + k), 'v_and_b32 v%d, 0xffff0000, v%d' % (d + 1, vX + k),
                  'v_pk_add_f32 %s, %s, %s op_sel_hi:[1,0] neg_lo:[0,1] neg_hi:[0,1]' % (P(d), P(d), P(X0))]
            if k == 0:
                o += ['v_pk_mul_f32 %s, %s, %s' % (P(A + 2), P(d), P(d))]
            else:
                o += ['v_pk_add_f32 %s, %s, %s' % (P(A), P(A) if k > 1 else P(vACC), P(d)), 'v_pk_fma_f32 %s, %s, %s, %s' % (P(A + 2), P(d), P(d), P(A + 2))]
        wq = []
        for k in range(6):
            wq += self.whalf('wq', self.pair_order(0)[k], k)
        nd = self.opt('p1_dma', 2)
        jobs = []
        while self.xrest or (wq and nd):
            jobs += self.xrest[:1] + wq[:nd if self.xrest else nd + 1]
            wq = wq[nd if self.xrest else nd + 1:]
            self.xrest = self.xrest[1:]
        self.sprinkle(o, jobs, start=self.opt('p1_start', 2), every=20 // (nd + 1) if nd else 10)
        self.stamp('x landed')
        o = ['v_add_f32 v%d, v%d, v%d' % (A, A, A + 1), 'v_add_f32 v%d, v%d, v%d' % (A + 2, A + 2, A + 3)]
        for qp in ('[1,0,3,2]', '[2,3,0,1]'):
            for r in (A, A + 2):
                o.append('v_add_f32_dpp v%d, v%d, v%d quad_perm:%s row_mask:0xf bank_mask:0xf' % (r, r, r, qp))
        M, V, R = A, A + 2, A + 4
        o += ['v_mul_f32 v%d, %s, v%d' % (M, f2u(1.0 / 512), M), 'v_mul_f32 v%d, %s, v%d' % (V, f2u(1.0 / 512), V),
              'v_fma_f32 v%d, -v%d, v%d, v%d' % (V, M, M, V), 'v_max_f32 v%d, 0, v%d' % (V, V),
              'v_add_f32 v%d, %s, v%d' % (R, f2u(1e-5), V), 'v_rsq_f32 v%d, v%d' % (R, R),
              'v_and_b32 v%d, 0xf0, v%d' % (A + 7, vACT),
              'v_mul_f32 v%d, v%d, v%d' % (A + 6, R, R), 'v_fmaak_f32 v%d, v%d, v%d, %s' % (A + 6, A + 6, V, f2u(1e-5)), 'v_rsq_f32 v%d, v%d' % (A + 6, A + 6),
              'v_mul_f32 v%d, %s, v%d' % (R, f2u(CSCALE), R), 'v_mul_f32 v%d, %s, v%d' % (A + 6, f2u(1.0 / CSCALE), A + 6),
              'v_mul_f32_e64 v%d, -v%d, v%d' % (M, M, R), 'ds_bpermute_b32 v%d, v%d, v%d' % (self.F1, A + 7, A + 6)]
        for ks in range(16):
            for k in range(4 * ks, 4 * ks + 4):
                d = P(vACC + 2 * k)
                o.append('v_pk_fma_f32 %s, %s, %s, %s op_sel_hi:[1,0,0]' % (d, d, P(R), P(M)))
            for k in range(4 * ks, 4 * ks + 4):
                o.append('v_cvt_pk_bf16_f32 v%d, v%d, v%d' % (vX + k, vACC + 2 * k, vACC + 2 * k + 1))
            o.append('ds_write_b128 v%d, %s offset:%d' % (self.XW, vr('v', vX + 4 * ks, 4), 1024 * ks))
        nw, nl = 4 * self.opt('ln_w', 4), self.opt('ln_jobs', 22)
        jobs = wq[:nw] + self.early + wq[nw:]
        self.p2_first = jobs[nl:]
        self.sprinkle(o, jobs[:nl], start=self.opt('ln_start', 0), every=self.opt('ln_every', 2 if nd else 7))
        for nb in range(4):
            e('ds_read_b64 %s, v%d offset:%d' % (vr('a', aRES + 2 * nb, 2), self.RA + (nb & 1), 8192 * (nb >> 1) + 512 * (nb & 1)))
        e('v_lshl_add_u32 v%d, s%d, 14, v%d' % (self.XW, sW, self.XS))

    def kv_dma(self, which, unit, tag):
        buf, ring, so, vo = (SK, KRING, sKO, vDB) if which == 'K' else (SV, VRING, sVO, vDB + 2)
        fl = self.o.get('kvflag', 'nt_').replace('_', ' ') if self.kv_nt else ''
        m0 = 's_add_u32 m0, s%d, 0x%x' % (sW2K, ring + 8192 * (unit & 3))
        return [Job(Ins('buffer_load_dwordx4 v%d, %s, s%d offen %slds' % (vo, srd(buf), so, fl), tag=tag), m0=m0),
                Job(Ins('buffer_load_dwordx4 v%d, %s, s%d offen offset:1024 %slds' % (vo + 1, srd(buf), so, fl), tag=tag), m0=m0,
                    post=['s_add_u32 s%d, s%d, 0x2000' % (so, so), 's_and_b32 s%d, s%d, 0x7ffff' % (so, so)])]

    def pair_order(self, early):
        sg = [(kp, hf) for kp in range(8 - early) for hf in range(2)] + [(kp, hf) for hf in range(2) for kp in range(8 - early, 8)]
        return [2 * (2 * kp + kk) + hf for kp, hf in sg for kk in range(2)]

    def pair_groups(self, name, od):
        return [(['%s%d' % (name, k) for k in od[h:h + 2]], [k >> 1 for k in od[h:h + 2]],
                 [vACC + 64 * (od[h] & 1) + 16 * b for b in range(4)], od[h] < 2) for h in range(0, 32, 2)]

    def p2(self):
        e = self.s
        e('@sec P2')
        od = self.pair_order(0)
        later = [self.whalf('wq', od[h], h) if h < 32 else self.whalf('w1', h - 32, h) for h in range(6, 36)]
        if self.opt('kvwarm', 0):
            later[25] = later[25] + self.warm(SK, vACT, sWOW, (0, 1024, 2048, 3072)) + self.warm(SV, vACT, sWOW, (0, 1024, 2048, 3072))
        p = self.gemm(0, self.pair_groups('wq', od), lambda k, tb: (self.XS, (tb * 16 + k) * 1024),
                      later, self.p2_first, lambda: (self.s('s_barrier', need=['*lg']), self.stamp('P0 end')))
        self.q_first = p.rest
        for ks in range(16):
            p.g[16 * (ks + 2) + 7]['ds'].append('ds_read_b128 %s, v%d offset:%d' % (vr('v', vX + 4 * ks, 4), self.XW, 1024 * ks))
        assert not p.fill(self.waddr(vP + 12, vT, '0x%x' % (WREG + 8192)) + ['v_mov_b32 v%d, %s' % (vP + 10, f2u(-K1))], 16)
        f = ('v_lshrrev_b32 v%d, 4, v%d\nv_and_b32 v%d, 15, v%d\nv_lshl_add_u32 v%d, v%d, 8, s%d\n' % (vT, vL, vT + 1, vL, vT + 2, vT, sW2K) +
             'v_bfe_u32 v%d, v%d, 8, 4\nv_xor_b32 v%d, v%d, v%d\n' % (vT + 3, vT + 2, vT + 3, vT + 3, vT + 1) +
             'v_lshl_add_u32 v%d, v%d, 4, v%d\nv_xor_b32 v%d, 64, v%d\n' % (vDB, vT + 3, vT + 2, vDB + 1, vDB) +
             'v_lshlrev_b32 v%d, 1, v%d\nv_xor_b32 v%d, v%d, v%d\n' % (vT + 3, vT, vT + 3, vT + 3, vT + 1) +
             'v_lshl_add_u32 v%d, v%d, 4, v%d\nv_xor_b32 v%d, 0x80, v%d' % (vDB + 2, vT + 3, vT + 2, vDB + 3, vDB + 2)).split('\n')
        assert not p.fill(f, 32 * 14)
        assert not p.fill(self.vaddr_restore(), 16 * 31 + 2)
        p.jobs(self.flat([Job(Ins('buffer_atomic_add v%d, v%d, %s, s%d offen sc1' % (vONE, vPOFF, srd(SDBG), sT0), need=['reset']),
                              pre=['s_lshl_b32 s%d, s%d, 3' % (sT0, sT), 's_mov_b32 s%d, s%d' % (sVO, sKO)])]), p.empty(16 * 31 + 10, 1), lo=16 * 31 + 5)
        p.emit(self)
        self.stamp('P2 end')

    def q_p1(self):
        e = self.s
        e('@sec Q epilogue')
        if self.o.get('diag', '').startswith('xcc'):
            e('s_getreg_b32 s98, hwreg(HW_REG_XCC_ID)\ns_sub_u32 s98, s98, s%d\ns_and_b32 s98, s98, 7\ns_lshl_b32 s98, 1, s98' % sJ)
            e('v_mov_b32 v%d, s98\nbuffer_atomic_or v%d, v%d, %s, 0 offen offset:4 sc1' % (vT, vT, vPOFF, srd(SDBG)))
        e('s_barrier', need=['*lg'])
        jobs = self.q_first + self.tile_dma(0, 'kv0')
        o, wr = [], []
        fr = [(qb, ks) for qb in range(4) for ks in range(4)]
        for n in range(0, 16, 2):
            ts = []
            for qb, ks in fr[n:n + 2]:
                a = vACC + 32 * ks + 4 * qb
                o += self.pack(a + 16, a, a + 16)
                ts.append(a + 16)
            for op in ('v_permlane32_swap_b32', 'v_permlane16_swap_b32'):
                for t in ts:
                    o += ['%s v%d, v%d' % (op, t, t + 2), '%s v%d, v%d' % (op, t + 1, t + 3)]
            for (qb, ks), t in zip(fr[n:n + 2], ts):
                (wr if self.opt('q_in_p1', 1) else o).extend('v_accvgpr_write_b32 a%d, v%d' % (aQ + 16 * qb + 4 * ks + r, t + r) for r in range(4))
        self.sprinkle(o, jobs, every=self.opt('q_every', 4))
        self.stamp()
        e('@sec P1')
        e('s_barrier', need=['w13'])
        self.g16('v', vS, 0, vP + 12, wr)
        o = []
        for nb in range(4):
            o += self.gelu4(vS + 4 * nb, vX + 2 * nb, vP + 4 * (nb & 1), vP + 10, scale=self.F1)
        self.sprinkle(o, self.tile_dma(1, 'kv1'), every=11)
        for p in range(2):
            e('buffer_store_dwordx4 %s, v%d, %s, s%d offen offset:%d sc1' % (vr('v', vX + 4 * p, 4), vACT, srd(SH), sHO, 1024 * p), tag='hst')
        self.stamp()

    def p3(self, kreads):
        e = self.s
        self.stamp()
        e('@sec P3')
        acc = aK
        self.put(self.waddr(vT, vT + 4, '0x%x' % (WREG + 8192)))
        self.g16('a', acc, aK + 32, vT)
        X, R, PK = vX, vX + 16, vX + 32
        P = lambda b: vr('v', b, 2)
        for k in range(8):
            e('v_accvgpr_read_b32 v%d, a%d' % (PK + k, aRES + k))
        for k in range(8):
            e('v_lshlrev_b32 v%d, 16, v%d\nv_and_b32 v%d, 0xffff0000, v%d' % (R + 2 * k, PK + k, R + 2 * k + 1, PK + k))
        e('v_mov_b32 v%d, %s' % (PK + 8, f2u(1.0 / CSCALE)))
        for k in range(16):
            e('v_accvgpr_read_b32 v%d, a%d' % (X + k, acc + k))
        mark = len(e.l)
        for k in range(8):
            e('v_pk_fma_f32 %s, %s, %s, %s op_sel_hi:[1,0,1]' % (P(X + 2 * k), P(R + 2 * k), P(PK + 8), P(X + 2 * k)))
        for k in range(8):
            e('v_cvt_pk_bf16_f32 v%d, v%d, v%d' % (PK + k, X + 2 * k, X + 2 * k + 1))
        e('s_add_u32 s%d, s%d, 0x2000' % (sT1, sX1O))
        for p in range(2):
            e('buffer_store_dwordx4 %s, v%d, %s, s%d offen sc1' % (vr('v', PK + 4 * p, 4), vACT, srd(SWS), sT1 if p else sX1O))
        for k in range(8):
            e('v_lshlrev_b32 v%d, 16, v%d\nv_and_b32 v%d, 0xffff0000, v%d' % (X + 2 * k, PK + k, X + 2 * k + 1, PK + k))
            e('v_accvgpr_write_b32 a%d, v%d' % (aX1 + k, PK + k))
        for k in range(4):
            e('v_pk_add_f32 %s, %s, %s' % (P(R + 2 * k), P(X + 2 * k), P(X + 8 + 2 * k)))
        e('v_pk_add_f32 %s, %s, %s\nv_pk_add_f32 %s, %s, %s' % (P(R), P(R), P(R + 2), P(R + 4), P(R + 4), P(R + 6)))
        e('v_pk_add_f32 %s, %s, %s\nv_add_f32 v%d, v%d, v%d' % (P(R), P(R), P(R + 4), R + 8, R, R + 1))
        self.put(self.lanesum(R + 8, R + 10))
        e('v_mul_f32 v%d, %s, v%d' % (R + 8, f2u(1.0 / 64), R + 8))
        for k in range(8):
            e('v_pk_add_f32 %s, %s, %s op_sel_hi:[1,0] neg_lo:[0,1] neg_hi:[0,1]' % (P(X + 2 * k), P(X + 2 * k), P(R + 8)))
        for k in range(8):
            e('v_pk_fma_f32 %s, %s, %s, %s' % (P(R), P(X + 2 * k), P(X + 2 * k), P(R)) if k else 'v_pk_mul_f32 %s, %s, %s' % (P(R), P(X), P(X)))
        e('v_add_f32 v%d, v%d, v%d' % (R + 9, R, R + 1))
        e('v_lshlrev_b32 v%d, 3, v%d\nv_mov_b32 v%d, 0x%x\nv_cmp_gt_u32 vcc, 16, v%d' % (R, vL, R + 1, OOB, vL))
        self.put(self.lanesum(R + 9, R + 10))
        e('v_cndmask_b32 v%d, v%d, v%d, vcc' % (R, R + 1, R))
        e('buffer_store_dwordx2 %s, v%d, %s, s%d offen sc1' % (P(R + 8), R, srd(SWS), sSTO), tag='x1st')
        epi, e.l = e.l[mark:], e.l[:mark]
        for k, x in enumerate(epi):
            if k % 16 == 0:
                self.put(kreads[k // 4:k // 4 + 4])
            e.add(x)
        self.stamp()
        e('@sec attention 1b')

    def krd(self, u, f, base=aK):
        kb, ks = f >> 2, f & 3
        return 'ds_read_b128 %s, v%d offset:%d' % (vr('a', base + 32 * (u & 1) + 4 * f, 4), vKA + ks, KRING + 8192 * (u & 3) + 4096 * kb)

    def vrd(self, u, h):
        db, g = h >> 1, h & 1
        return 'ds_read_b64_tr_b16 %s, v%d offset:%d' % (vr('a', aV + 32 * (u & 1) + 4 * db + 2 * g, 2), vTR + db, 8192 * (u & 3) + 4096 * g)

    def rowsum(self, d, ones, p):
        return 'v_smfmac_f32_16x16x64_bf16 %s, %s, %s, v%d' % (vr('a', aL + 4 * d, 4), vr('a', ones, 4), vr('v', p, 8), vIDX)

    KV_GAPS = ((5, 1), (5, 5), (5, 9), (5, 13), (6, 1), (6, 5), (6, 13), (7, 1))
    SIDE_GAPS = {7: (5, 13), 0: (1, 5, 9, 13), 1: (1, 5), 4: (9, 13)}

    SLOW = (2, 1, 0, 0, 2, 1, 1, 1)

    def tile_dma(self, T, tag):
        return sum([self.kv_dma(w, 2 * T + k, tag + w) for w in 'KV' for k in range(2)], [])

    def segment(self, seg, NS, sched, loop=None, inline=None, extra=()):
        e = self.s
        NT, inline = NS // 8, inline or {}
        side, chk, fill = {}, {}, {}

        def slots(n):
            T, h = n >> 3, n & 7
            if n < 3 or n >= NS:
                return [1, 3, 5, 7] if n > NS else []
            g = list(self.SIDE_GAPS.get(h, ()))
            if T + 2 >= NT:
                g += [x for hh, x in self.KV_GAPS if hh == h]
            if T + 1 == NT:
                g += {4: [5], 6: [9], 7: [9]}.get(h, [])
            return sorted(g)

        def spread(jobs, n, stop, rate=4):
            jobs = list(jobs)
            while jobs:
                assert n < stop, 'side jobs do not fit'
                room = min(rate if isinstance(rate, int) else rate[n & 7], len(slots(n)) - (n in chk) - len(side.get(n, [])))
                while room > 0 and jobs:
                    side.setdefault(n, []).append(jobs.pop(0))
                    room -= 1
                n += 1
        sched(spread, chk, fill)
        lab = 'L_attn%d' % seg
        plans, use = [], {}
        for n in range(NS + 3):
            T, h = n >> 3, n & 7
            p = Plan()
            if n < NS:
                for kb in range(2):
                    d = vr('v', vS + 8 * (n & 1) + 4 * kb, 4)
                    for i, ks in enumerate(range(3, -1, -1) if kb else range(4)):
                        j = p.add(mfma(d, vr('a', aK + 32 * (n & 1) + 16 * kb + 4 * ks, 4), vr('a', aQ + 16 * (h >> 1) + 4 * ks, 4), self.o.get('c0', '-4.0') if i == 0 else None))
                        use.setdefault(('K', T, n & 1, 4 * kb + ks), []).append((n, j))
            if n >= 3:
                m, dh = (n - 3) >> 1, (n - 3) & 1
                for db in range(4 * dh, 4 * dh + 4):
                    for i, kk in enumerate((1, 0) if db & 1 else (0, 1)):
                        j = p.add(mfma(vr('v', vACC + 16 * db + 4 * (m & 3), 4), vr('a', aV + 32 * kk + 4 * db, 4), vr('v', vP + 8 * (m & 1) + 4 * kk, 4),
                                       '0' if (m < 4 and seg == 0 and i == 0) else None))
                        use.setdefault(('V', m >> 2, kk, db), []).append((n, j))
            g, full = p.g, len(p.mf) == 16
            if 1 <= n <= NS:
                sb, pb = vS + 8 * ((n - 1) & 1), vP + 4 * ((n - 1) & 3)
                lag = 2 if n < 3 else 0
                for k in range(8):
                    g[2 * k if full else min(k + lag, 7)]['va'].append('v_exp_f32 v%d, v%d' % (sb + k, sb + k))
                    if k & 1:
                        g[2 * k + 1 if full else min(k + lag + 1, 7)]['va'].append('v_cvt_pk_bf16_f32 v%d, v%d, v%d' % (pb + k // 2, sb + k - 1, sb + k))
            jobs, pos = [], []
            self.kv_nt = False
            if seg and n < 2:
                jobs, pos = self.tile_dma(1, 'kv1')[4 * n:4 * n + 4], [0, 2, 4, 6]
            if T + 2 < NT and n < NS:
                for jb, (hh, x) in zip(self.tile_dma(T + 2, 'kv%d' % (T + 2)), self.KV_GAPS):
                    if hh == h:
                        jobs.append(jb)
                        pos.append(x)
            free = slots(n)
            if n in chk:
                g[free.pop()]['end'] += chk[n]
            jobs += side.get(n, [])
            pos += free[:len(side.get(n, []))]
            assert pos == sorted(pos)
            if full and h == 4:
                late_v = seg and T == 0
                g[14]['sc'].append(Ins('@need', need=(['kv%d%s' % (T + 1, 'K' if late_v else 'V')] if T + 1 < NT else []) + ['*lg']))
                g[15]['sc'].append('s_barrier')
            if seg and n == 9:
                g[0]['sc'].append(Ins('s_barrier', need=['kv1V']))
            if loop and loop[0] <= n < loop[1] and (n - loop[0]) % 16 == 15:
                g[10]['sc'].append('s_sub_u32 s%d, s%d, 1' % (sCNT, sCNT))
                g[12]['sc'].append('s_cmp_lg_u32 s%d, 0' % sCNT)
            prev, pend = p.jobs(self.flat(jobs), pos)
            p.scalars(pend, prev + 1, 10 if prev < 8 and full else len(g))
            plans.append(p)
        reads, pre, held = [], [], {}
        for (w, T, k, f), u in use.items():
            ins = [self.krd(2 * T + k, f)] if w == 'K' else [self.vrd(2 * T + k, 2 * f + x) for x in range(2)]
            if w == 'K' and 8 * T in inline:
                held.setdefault(8 * T, []).extend(ins)
            elif w == 'K' and T == 0 and k == 0:
                pre += ins
            else:
                reads.append((u[0], use[w, T - 1, k, f][-1] if T else (0, 0), ins))
        reads.sort()
        reads += [((NS + 3, 0), at, ins) for at, ins in extra]
        for first, (n, j), ins in reads:
            for x in ins:
                while True:
                    p = plans[n]
                    g = p.g[j]
                    if len(p.mf) == 16:
                        ok = j & 1 and p.cap(j) > 0 and not (first[0] > NS + 2 and (n & 7) == 4 and j > 8)
                    else:
                        ok = not g['vm'] and len(g['ds']) < 2
                    if ok:
                        break
                    n, j = (n, j + 1) if j + 1 < len(p.mf) else (n + 1, 0)
                g['ds'].append(x)
                assert (n, j) < first and not ((n & 7) == 4 and j > 8), (n, j)
        if loop:
            e('s_mov_b32 s%d, %d' % (sCNT, (loop[1] - loop[0]) // 16))
        e('s_barrier', need=['kv0V', '*lg'])
        self.put(pre)
        carry, dead = [], 0
        for n, p in enumerate(plans):
            if n in inline:
                inline[n](held[n])
            inloop = loop and loop[0] <= n < loop[1]
            if self.opt('astamp', 0) and n % 8 == 0 and not (loop and loop[0] <= n <= loop[1]) and n not in inline:
                self.stamp('s%d-%d' % (seg, n))
            if loop and n == loop[0]:
                self.stamp('pre')
            if inloop and (n - loop[0]) % 16 == 0:
                e('@rep %s %d' % (lab, n))
            if loop and n == loop[1]:
                e('@endrep ' + lab)
                self.stamp('loop')
            if n in fill:
                assert not carry
                carry, dead = fill[n]
            carry = p.fill(carry)
            if carry and n + 1 >= dead:
                p.g[-1]['va'] += carry
                carry = []
            if n >= 3 and n & 1:
                m = (n - 3) >> 1
                p.g[7 if len(p.mf) == 16 else 3]['end'].append(self.rowsum((m >> 1) & 1, aONE2 if m & 1 else aONES, vP + 8 * (m & 1)))
            if inloop and (n - loop[0]) % 16 == 15:
                p.g[15]['end'].append('s_cbranch_scc1 ' + lab)
            p.emit(self)
        self.stamp('seg%d' % seg)

    def code_addr(self):
        return ['v_add_u32 v%d, s%d, v%d' % (vT, sCW, vACT), 'v_min_u32 v%d, s%d, v%d' % (vT, SCODE + 2, vT), 'v_mov_b32 v%d, 0' % (vT + 1),
                'v_lshl_add_u64 %s, %s, 0, s[%d:%d]' % (vr('v', vT, 2), vr('v', vT, 2), SCODE, SCODE + 1)]

    def code_warm(self):
        return [Job('global_load_dwordx4 %s, %s, off' % (vr('a', aDUMMY, 4), vr('v', vT, 2)))]

    def warm(self, buf, vo, so, offs):
        return [Job('buffer_load_dwordx4 %s, v%d, %s, s%d offen offset:%d' % (vr('a', aDUMMY, 4), vo, srd(buf), so, o)) for o in offs]

    def attention1(self):
        e = self.s
        e('@sec attention 1a')
        U, F, G = vX + 48, vT + 4, vT
        N1, P3 = self.opt('n1', 176), self.opt('p3', 48)
        L0, L1, K = P3 + 8, N1 - 56, N1 - 48
        f0 = ('v_and_b32 v%d, 3, v%d\nv_min_u32 v%d, 2, v%d\n' % (U, vL, U, U) +
              'v_add3_u32 v%d, v%d, s%d, -1\nv_med3_i32 v%d, v%d, 0, 31\nv_lshlrev_b32 v%d, 3, v%d' % (U, U, sT, U, U, vPOFF, U)).split('\n')
        f1 = ('v_bfe_u32 v%d, v%d, 1, 1\nv_lshl_add_u32 v%d, v%d, 1, -1\n' % (U, vL, U, U) +
              'v_bfe_u32 v%d, v%d, 3, 1\nv_mul_i32_i24 v%d, v%d, v%d\n' % (U + 1, vL, U, U, U + 1) +
              'v_add_u32 v%d, s%d, v%d\nv_max_i32 v%d, 0, v%d\nv_min_i32 v%d, 0x7f, v%d\n' % (U, sTBG, U, U, U, U, U) +
              'v_and_b32 v%d, 7, v%d\nv_lshl_or_b32 v%d, v%d, 3, v%d\n' % (U + 1, vL, U, U, U + 1) +
              'v_lshlrev_b32 v%d, 7, v%d\nv_add_u32 v%d, 0x%x, v%d' % (U, U, F, FLAG_OFF, U)).split('\n')
        f2 = ('v_and_b32 v%d, 15, v%d\nv_lshl_add_u32 v%d, s%d, 4, v%d\nv_and_b32 v%d, 48, v%d' % (U, vL, U, sTBG, U, U + 1, vL)).split('\n')
        for g, dlt in enumerate((-1, 1, -2, 2)):
            f2 += ['v_add_u32 v%d, %d, v%d' % (U + 2, dlt, U), 'v_and_or_b32 v%d, v%d, 15, v%d' % (U + 3, U + 2, U + 1),
                   'v_bfe_u32 v%d, v%d, 4, 8' % (U + 2, U + 2), 'v_lshl_or_b32 v%d, v%d, 10, v%d' % (U + 3, U + 2, U + 3),
                   'v_lshlrev_b32 v%d, 4, v%d' % (U + 3, U + 3), 'v_add_u32 v%d, 0x%x, v%d' % (G + g, 4096 * g, U + 3)]
        f3 = ('v_lshrrev_b32 v%d, 4, v%d\nv_and_b32 v%d, 15, v%d\nv_mul_u32_u24 v%d, 3584, v%d\n' % (vT, vL, vT + 1, vL, vT + 2, vT) +
              'v_lshl_add_u32 v%d, v%d, 4, v%d\nv_lshlrev_b32 v%d, 8, v%d\nv_lshl_or_b32 v%d, v%d, 3, v%d\n' % (vT + 3, vT + 1, vT + 2, vT, vT, vT, vT + 1, vT) +
              'v_lshl_add_u32 v%d, s%d, 10, v%d\nv_add_u32 v%d, 0x%x, v%d\n' % (vT, sTBG, vT, vT + 4, ST_OFF, vT) +
              'v_and_b32 v%d, 7, v%d\nv_lshl_or_b32 v%d, s%d, 3, v%d\n' % (vT, vL, vT, sTBG, vT) +
              'v_lshlrev_b32 v%d, 7, v%d\nv_add_u32 v%d, 0x%x, v%d' % (vT, vT, vPOFF, FLAG_OFF + 131072, vT)).split('\n')
        R, M, O = vT, vT + 1, vT + 2
        f3 += ['v_or_b32 v%d, s%d, v%d' % (M, sW, vL), 'v_cmp_eq_u32 vcc, 0, v%d' % M, 'v_mov_b32 v%d, 0x%x' % (O, OOB), 'v_mov_b32 v%d, 1' % R,
               'v_cndmask_b32 v%d, v%d, 0, vcc' % (M, O)]
        dbg = lambda op, off: Job('%s v%d, v%d, %s, s%d offen offset:%d %ssc1' % (op, R, M, srd(SDBG), sT2, off, 'sc0 ' * ('atomic' in op)),
                                  pre=['s_lshl_b32 s%d, s%d, 3' % (sT2, sJ) if off != 68 else 's_mov_b32 s%d, 0' % sT2])
        CB, SM = sT0, sT1
        slices = ['v_readfirstlane_b32 s%d, v%d' % (sRANK, vPRES), 'v_and_b32 v%d, 64, v%d' % (O, vWN), 's_sub_u32 s%d, s%d, 1' % (sRANK, sRANK),
                  's_and_b32 s%d, s%d, 7' % (sRANK, sRANK),
                  's_lshl_b32 s%d, s%d, 9' % (CB, sRANK)]
        n8, n4 = (5, 7) if self.opt('middle', 1) else (6, 6)
        if self.opt('middle', 1):
            slices += ['s_mul_i32 s%d, s%d, 384' % (SM, sRANK), 's_add_u32 s%d, s%d, 640' % (SM, SM), 's_min_u32 s%d, s%d, s%d' % (CB, CB, SM)]
        else:
            slices += ['s_min_u32 s%d, s%d, 0xd00' % (CB, CB)]
        slices += ['s_add_u32 s%d, s%d, s%d' % (sW3W, sW3W, CB), 's_lshl_b32 s%d, s%d, 9' % (sT2, CB), 'v_add_u32 v%d, s%d, v%d' % (vW2, sT2, vWN),
                   's_lshr_b32 s%d, s%d, 1' % (sT3, sW), 's_sub_u32 s%d, s%d, s%d' % (sT3, sT3, sW), 's_add_u32 s%d, s%d, 3' % (sT3, sT3),
                   's_lshl_b32 s%d, s%d, 6' % (SM, sW), 's_cmp_ge_u32 s%d, %d' % (sRANK, n4), 's_cselect_b32 s%d, 1791, s%d' % (sT3, sT3),
                   's_cselect_b32 s%d, 2, 3' % sW4W, 's_cselect_b32 s%d, 2, 1' % sSTEP,
                   's_cmp_ge_u32 s%d, %d' % (sRANK, n8), 's_cselect_b32 s%d, s%d, 0' % (sT3, sT3), 's_cselect_b32 s%d, s%d, 4' % (sW4W, sW4W),
                   's_cselect_b32 s%d, s%d, 0' % (SM, SM), 'v_mad_u32_u24 v%d, s%d, v%d, v%d' % (vW3, sT3, O, vW3),
                   's_mul_i32 s%d, s%d, s%d' % (sW4W, sW4W, sTBG), 's_lshl_b32 s%d, s%d, 9' % (sW4W, sW4W), 's_add_u32 s%d, s%d, s%d' % (sW4W, sW4W, sT2),
                   's_mul_i32 s%d, s%d, 0x%x' % (sSTEP, sSTEP, 32 * 3584), 's_sub_u32 s%d, s%d, s%d' % (CB, CB, SM), 'v_add_u32 v%d, s%d, v%d' % (vW3, CB, vW3),
                  's_sub_u32 s%d, s%d, s%d' % (sT2, sRANK, sJ), 's_lshl_b32 s%d, s%d, 11' % (sT2, sT2), 's_add_u32 s%d, s%d, s%d' % (sYO, sPO, sT2)]
        A, LR, LB, LT = vX + 56, self.LR, self.LB, vT + 4
        f4 = ['v_accvgpr_read_b32 v%d, a%d' % (A + r, aSTAT + r) for r in range(4)]
        f4 += ['v_add_f32 v%d, v%d, v%d' % (A + 4, A, A + 2)] + self.lanesum(A + 4, A + 5)
        f4 += ['v_mul_f32 v%d, 0x3e000000, v%d' % (A + 4, A + 4), 'v_sub_f32 v%d, v%d, v%d' % (A, A, A + 4), 'v_sub_f32 v%d, v%d, v%d' % (A + 2, A + 2, A + 4),
               'v_mul_f32 v%d, v%d, v%d' % (A, A, A), 'v_fmac_f32 v%d, v%d, v%d' % (A, A + 2, A + 2), 'v_add_f32 v%d, v%d, v%d' % (A + 1, A + 1, A + 3),
               'v_fmac_f32 v%d, 0x42800000, v%d' % (A + 1, A)] + self.lanesum(A + 1, A + 5)
        f4 += ['v_mov_b32 v%d, %s' % (LR, f2u(1e-5)), 'v_fmac_f32 v%d, %s, v%d' % (LR, f2u(1.0 / 512), A + 1), 'v_rsq_f32 v%d, v%d' % (LR, LR),
               'v_sub_f32 v%d, 0, v%d' % (A + 4, A + 4), 'v_mul_f32 v%d, v%d, v%d' % (LB, A + 4, LR)]
        f5, self.ln_done = [], self.opt('ln_fill', 6)
        for k in range(vX, vX + 4 * self.ln_done):
            f5 += ['v_lshlrev_b32 v%d, 16, v%d' % (LT, k), 'v_and_b32 v%d, 0xffff0000, v%d' % (k, k), 'v_fma_f32 v%d, v%d, v%d, v%d' % (LT, LT, LR, LB),
                   'v_fma_f32 v%d, v%d, v%d, v%d' % (k, k, LR, LB), 'v_cvt_pk_bf16_f32 v%d, v%d, v%d' % (k, LT, k)]
        f6 = ['v_lshl_add_u32 v%d, s%d, 14, v%d' % (vT + 3, sW, vACT)] + self.waddr(vTR, vT, 's%d' % sRING)
        f6 += ['v_mov_b32 v%d, v%d' % (vS + 6, LR), 'v_mov_b32 v%d, v%d' % (vS + 4, LB)]
        self.put(f0)

        def sched(spread, chk, fill):
            c0, c1 = 12, 20
            chk[c0] = self.poll_check(SDBG, 8) + [Ins('v_mov_b32 v%d, v%d' % (vPOFF, F))]
            chk[c1] = self.poll_check(SWS, 1)
            chk[L1 + 4] = self.poll_check(SWS, 1) + ['v_mov_b32 v%d, 132' % vPOFF, 'v_lshl_add_u32 v%d, s%d, 3, v%d' % (vPOFF, sJ, vPOFF)]
            chk[K + 7] = ['v_cmp_eq_u32 vcc, %d, v%d' % (self.opt('quant', 15), R), 'v_mov_b32 v%d, 1' % R, 'v_cndmask_b32 v%d, v%d, v%d, vcc' % (M, O, M)]
            chk[K + 15] = ['v_add_u32 v%d, 1, v%d' % (R, R)]
            chk[K + 28] = self.poll_check(SDBG, 0) + slices + self.code_addr()
            fill[4], fill[c0], fill[P3] = (f1, c0), (f2, c1 + 1), (f3, P3 + 6)
            fill[L1 + 12], fill[L1 + 24], fill[N1 + 2] = (f4, L1 + 24), (f5, N1 + 2), (f6, N1 + 3)
            spread([self.flag_store(0, ['hst'])], 4, 5)
            spread([self.poll_load(SDBG)], 7, 8)
            spread([self.poll_load(SWS)], c1 - 5, c1 - 4)
            w2 = []
            for k in range(4):
                w2 += self.whalf('w2', k, 2 + k)
            spread(w2, 4, 21)
            spread([Job('buffer_load_dwordx4 %s, v%d, %s, 0 offen offset:%d sc1' % (vr('v', vX + 4 * k, 4), G + (k >> 2), srd(SH), 1024 * (k & 3)))
                    for k in range(16)], c1 + 1, P3 - 3, self.SLOW)
            spread([self.flag_store(1, ['x1st'])], P3 + 4, P3 + 5)
            spread([self.poll_load(SWS)], L1, L1 + 1)
            spread([dbg('buffer_atomic_add', 4)], K, K + 1)
            spread([dbg('buffer_atomic_add', 68)], K + 8, K + 9)
            spread([dbg('buffer_store_dword', 132)], K + 16, K + 17)
            spread([self.poll_load(SDBG)], K + 23, K + 24)
            spread([Job('buffer_load_dwordx2 %s, v%d, %s, 0 offen offset:%d sc1' % (vr('a', aSTAT + 2 * k, 2), vT + 4, srd(SWS), 128 * k)) for k in range(2)], L1 + 7, L1 + 8)
            spread(self.gather('v', vX, sX1I, 0, 'sc1' + ' nt' * self.opt('nt1', 0)), L1 + 8, L1 + 34, self.SLOW)
            spread(self.warm(SW3, vT + 3, sW3W, (0, 256)) + self.warm(SW4, vACT, sW4W, (0, 1024)) + self.code_warm(), K + 31, K + 33, 3)
            spread(sum([self.whalf('w3', k, k, None) for k in range(self.opt('w3pre', 6))], []), N1 - self.opt('w3at', 9), N1 + 2)
        self.segment(0, N1, sched, loop=(L0, L1), inline={P3: self.p3})

    def h2a(self, tb, slot):
        return 16384 + (tb & 1) * 8192 + (tb >> 1) * 32768 + slot * 1024

    def mlp(self):
        e = self.s
        P = lambda b: vr('v', b, 2)
        e('@sec LN x1')
        o, wr = [], ['ds_write_b128 v%d, %s offset:%d' % (vT + 3, vr('v', vX + 4 * ks, 4), 1024 * ks) for ks in range(16)]
        for ks in range(self.ln_done, 16):
            t = vP + 8 * (ks & 1)
            for k in range(4):
                o += ['v_lshlrev_b32 v%d, 16, v%d' % (t + 2 * k, vX + 4 * ks + k), 'v_and_b32 v%d, 0xffff0000, v%d' % (t + 2 * k + 1, vX + 4 * ks + k)]
            if ks - self.ln_done < self.ln_done:
                o.append(wr[ks - self.ln_done])
            for k in range(4):
                o.append('v_pk_fma_f32 %s, %s, %s, %s op_sel_hi:[1,0,0]' % (P(t + 2 * k), P(t + 2 * k), P(vS + 6), P(vS + 4)))
            for k in range(4):
                o.append('v_cvt_pk_bf16_f32 v%d, v%d, v%d' % (vX + 4 * ks + k, t + 2 * k, t + 2 * k + 1))
            o.append(wr[ks])
        o += wr[16 - self.ln_done:self.ln_done]
        self.put(o)
        self.touch(1)
        self.stamp('LN x1')
        self.aside = []
        for cls, first in self.classes():
            e('s_cmp_ge_u32 s%d, %d\ns_cbranch_scc1 L_mlp%d' % (sRANK, first, cls))
            n0, names = self.nstamp, len(self.tail)
            main, self.s = self.s, Stream(known=['w3%d' % k for k in range(self.opt('w3pre', 6))])
            self.s('@mark mlp%d\nL_mlp%d:\ns_waitcnt vmcnt(0) lgkmcnt(0)' % (cls, cls))
            self.mlp_body(cls)
            self.s('s_waitcnt vmcnt(0) lgkmcnt(0)\ns_branch L_mlp_done\n@mark end%d' % cls)
            self.s.insert_waits()
            self.s.pad_hazards()
            self.aside += self.s.l
            self.s, self.nstamp, self.tail[names:] = main, n0, []
        self.mlp_body(8)
        e('@mark end8\nL_mlp_done:')

    def classes(self):
        return ((4, 7), (6, 5)) if self.opt('middle', 1) else ((4, 6),)

    def mlp_body(self, cls):
        e = self.s
        P = lambda b: vr('v', b, 2)
        e('@sec P5')
        small, mid = cls == 4, cls == 6
        n3 = 8 if small else 16
        sync = lambda: self.s('s_barrier', need=['*lg'])
        piece = lambda h: self.whalf('w3', h, h, cls) if h < n3 else self.whalf('w4', h - n3, h, cls)
        groups = [(['w3%d' % (k // 2)] if small else ['w3%d' % k, 'w3%d' % (k + 1)], [k, k + 1], [vX + 16 * b for b in range(n3 // 4)], k == 0) for k in range(0, 16, 2)]
        HW, KC, A0, A1 = vT, vT + 2, vP + 8, vP + 9
        actf = lambda k, tb: (vACT, (tb * 16 + k) * 1024)
        if mid:
            e('s_and_b32 s%d, s%d, 1\nv_lshl_add_u32 v%d, s%d, 15, v%d\nv_xor_b32 v%d, 0x8000, v%d' % (sT0, sW, A0, sT0, vACT, A1, A0))
            e('s_lshr_b32 s%d, s%d, 1\ns_add_u32 s%d, s%d, 4' % (sT0, sW, sT0, sT0))
            actf = lambda k, tb: (A0 + (tb >> 1), ((tb & 1) * 16 + k) * 1024)
        p = self.gemm(0, groups, actf, [piece(h) for h in range(6, n3 + 6)], sum([piece(h) for h in range(self.opt('w3pre', 6), 6)], []), sync,
                      ntb=(4, 4, 2, 2) if mid else (4, 4, 4, 4), dq=3 if mid else 4)
        f = ('v_lshl_add_u32 v%d, s%d, %d, v%d\nv_mov_b32 v%d, %s\n' % (HW, sW, 11 if cls == 8 else 10, A0 if mid else vACT, KC, f2u(-K1)) +
             'v_xor_b32 v%d, 0x8000, v%d\nv_lshl_add_u32 v%d, s%d, 10, v%d\n' % (HW + 1, HW, HW + 4, sT0, A0) * mid +
             'v_lshlrev_b32 v%d, 7, v%d\nv_mov_b32 v%d, 0x%x\nv_cmp_gt_u32 vcc, 2, v%d\n' % (vS, vL, vS + 1, OOB, vL) +
             'v_and_b32 v%d, 7, v%d\nv_lshl_add_u32 v%d, v%d, 2, s%d\nv_cndmask_b32 v%d, v%d, v%d, vcc\n' % (vS + 2, vL, vPOFF, vS + 2, sCF, vFLAG, vS + 1, vS) +
             'v_and_b32 v%d, 15, v%d\nv_lshlrev_b32 v%d, 10, v%d\n' % (vS, vL, vS, vS) +
             'v_lshrrev_b32 v%d, 4, v%d\nv_lshl_or_b32 v%d, v%d, 3, v%d' % (vS + 1, vL, vW1, vS + 1, vS)).split('\n')
        assert not p.fill(f)
        p.emit(self)
        self.stamp('P5')
        e('@sec gelu')
        e('s_barrier')
        o, n = [], 0
        for pp in range(n3 // 8):
            for tb in range(2 if mid and pp else 4):
                d = vS + 4 * (n % 4)
                for g in range(2):
                    o += self.gelu4(vX + 16 * (2 * pp + g) + 4 * tb, d + 2 * g, vP + 4 * g, KC)
                n += 1
                wa = (HW + 4 if pp else HW + (tb >> 1), self.h2a(tb & 1, 0)) if mid else (HW, self.h2a(tb, pp))
                o.append('ds_write_b128 v%d, %s offset:%d' % (wa[0], vr('v', d, 4), wa[1]))
        self.put(o)
        self.stamp('gelu')
        e('@sec P7')
        accB, ng = (vS, vP, vX, vX + 32), cls // 2
        groups = [(['w4%d' % (2 * (ng * ps + k) + i) for i in range(2)], [2 * k, 2 * k + 1], accB if ps else [vX + 16 * b for b in range(4)], k == 0)
                  for ps in range(2) for k in range(ng)]
        p = self.gemm(n3, groups, lambda k, tb: (vACT, self.h2a(tb, k)), [piece(h) for h in range(n3 + 6, n3 + 2 * cls)], p.rest, sync, self.tile_dma(0, 'kv0'))
        assert not p.rest
        for pp, (lo, hi) in enumerate(((p.st[ng - 1] + 18, p.st[ng] + 16), (p.st[ng] + 2, p.st[ng] + 24))):
            pk = []
            for tb in range(3, -1, -1):
                a = vX + 32 * pp + 4 * tb
                pk += self.pack(a + 16, a, a + 16)
            p.g[hi - 1]['va'] += p.fill(pk, lo, hi)
        pk = self.vaddr_restore()
        for tb in range(3, -1, -1):
            pk += self.pack(vP + 4 * tb, vS + 4 * tb, vP + 4 * tb)
        rest = p.fill(pk, p.st[-1] + 17)
        p.emit(self)
        self.put(rest)
        for tb in range(3, -1, -1):
            self.put(self.pack(vX + 32 + 4 * tb, vX + 4 * tb, vX + 32 + 4 * tb))
        for r in range(0, 16, 2):
            e('v_pk_mov_b32 %s, %s, %s op_sel:[0,1]' % (P(vX + r), P(vP + r), P(vP + r)))
        self.yfrag = {(0, 0): vX + 16, (0, 1): vX + 48, (1, 0): vX, (1, 1): vX + 32}
        self.stamp('P7')

    def part_flag(self, word, need):
        return Job(Ins('buffer_store_dword v%d, v%d, %s, s%d offen offset:%d sc1' % (vONE, vFLAG, srd(SWS), sFP, 4 * word), need=need))

    def held(self):
        h = {14 + g: [[aK + 32 * g + 8 * b + 4 * kk for kk in range(2)] for b in range(4)] for g in range(2)}
        if self.opt('hold3', 1) and self.prof != 1:
            idle = (148, 152, 156, 172, 176, 180, 184, 188)
            h[13] = [[idle[2 * b + kk] for kk in range(2)] for b in range(4)]
            if self.opt('hold4', 1):
                h[12] = [[aQ + 32 + 8 * b + 4 * kk for kk in range(2)] for b in range(4)]
            if self.opt('hold5', 0):
                h[11] = [[aQ + 8 * b + 4 * kk for kk in range(2)] for b in range(4)]
        return h

    def attention2(self):
        e = self.s
        e('@sec attention 2a')
        N2 = 256 - self.opt('n1', 176)
        H, T = self.opt('head2', 32), N2 - self.opt('tail2', 32)
        assert N2 % 16 == 0

        def sched(spread, chk, fill):
            chk[T + 4] = self.poll_check(SWS, 1)
            spread([self.part_store(self.yfrag[h, pp] + 4 * tb, YP_OFF + 65536 * pp + 16384 * tb + 1024 * h, 'yst', sYO)
                    for h in range(2) for pp in range(2) for tb in range(4)], 4, H - 7, self.SLOW)
            spread(self.code_warm() + self.warm(SWO, vACT, sWOW, (0, 1024, 2048, 3072)), H - 8, H - 3, 2)
            spread([self.part_flag(0, ['yst'])], H - 4, H - 3)
            spread([self.poll_load(SWS)], T, T + 1)
            spread([Job('buffer_load_dwordx2 %s, v%d, %s, s%d offen offset:%d' % (vr('a', aRES + 2 * nb, 2), vW1, srd(SX), sXO, 512 * (nb >> 1) + 32 * (nb & 1)))
                    for nb in range(4)], H - 1, H + 1)
            spread(self.gather('v', vX, sPI, YP_OFF, 'sc1' + ' nt' * self.opt('nt2', 1)), T + 5, N2 - 6, self.SLOW)
            spread(sum([self.whalf('wo', od[k], h) for k, h in ((26, 0), (27, 1), (28, 4), (29, 5), (30, 2), (31, 3))[2 * (nh < 3):]], []), H + 1, T + 9)
            first = self.whalf('wo', od[0], 0) + self.whalf('wo', od[1], 1)
            first[0].ins.need = ['held13'] * (nh >= 3)
            if nh == 5:
                for kk in range(2):
                    for jb in self.whalf('wo', od[22 + kk], 0):
                        jb.m0 = 's_lshl1_add_u32 m0, s%d, 0x%x' % (sW2K, 32768 * kk)
                        first.append(jb)
            spread(first, N2 - 8, N2 - 1)
            late = self.whalf('wo', od[2], 2) + self.whalf('wo', od[3], 3)
            late[0].ins.need = ['held15']
            if nh >= 4:
                self.oepi_jobs, late = late, self.whalf('wo', od[24], 4) + self.whalf('wo', od[25], 5)
                late[0].ins.need = ['held14']
            spread(late, N2 + 1, N2 + 3)
            fill[H - 12] = (self.code_addr(), H - 8)
            fill[H - 4] = (self.waddr(vT, vT + 4, 's%d' % sRING), H)
        od, nh = self.pair_order(self.opt('p6_early', 6)), len(self.held())
        slot, at = {11: 0, 12: 4, 13: 0, 14: 4, 15: 2}, {11: None, 12: None, 13: (T - 3, 0), 14: (N2 - 2, 8), 15: (N2 - 1, 8)}
        self.oepi_jobs = []
        extra = [(at[G], [Ins('ds_read_b64_tr_b16 %s, v%d offset:%d' % (vr('a', regs[b][kk] + 2 * x, 2), (vTR if G == 12 else vT) + b, (32768 * kk if G == 11 else (slot[G] + kk) * 4096) + 2048 * x),
                              need=['wo%d' % od[2 * G + kk]], tag='held%d' % G) for b in range(4) for kk in range(2) for x in range(2)])
                 for G, regs in sorted(self.held().items())]
        self.oepi_reads = [ins for a, ins in extra if not a]
        extra = [x for x in extra if x[0]]
        self.segment(1, N2, sched, loop=(H, T) if T >= H + 32 else None, extra=extra)
        self.o_epilogue()

    def o_epilogue(self):
        e = self.s
        e('@sec O epilogue')
        e('L_oepi:')
        jobs = self.flat(self.oepi_jobs)
        for r in range(8):
            e('v_accvgpr_read_b32 v%d, a%d' % (vS + r, aL + r))
        for qb in range(4):
            e('v_add_f32 v%d, v%d, v%d' % (vS + 2 * qb, vS + 2 * qb, vS + 2 * qb + 1))
        B = vS + 8
        for qb in range(4):
            e('v_subrev_u32 v%d, 0x2b800000, v%d' % (B + qb, vS + 2 * qb))
        e('v_max3_u32 v%d, v%d, v%d, v%d\nv_max_u32 v%d, v%d, v%d' % (B, B, B + 1, B + 2, B, B, B + 3))
        e('v_cmp_lt_u32 vcc, 0x28000000, v%d' % B)
        e('v_and_b32 v%d, 3, v%d\nv_lshlrev_b32 v%d, 12, v%d\nv_lshl_add_u32 v%d, s%d, 2, v%d' % (B + 1, vL, B + 1, B + 1, B + 1, sW, B + 1))
        e('s_or_b32 s%d, vcc_lo, vcc_hi' % sT0)
        e('v_mov_b32 v%d, s%d' % (B, sT0))
        e('ds_write_b32 v%d, v%d offset:16384' % (B + 1, B))
        for qb in range(4):
            e('v_rcp_f32 v%d, v%d' % (vS + 2 * qb, vS + 2 * qb))
        e('v_lshl_add_u32 v%d, s%d, 12, v%d' % (vP, sW, vACT))
        e('s_lshl_b32 s%d, s%d, 12\nv_mov_b32 v%d, s%d' % (sT0, sW, B + 1, sT0))
        e('s_barrier', need=['*lg'])
        e('ds_read_b128 %s, v%d offset:16384' % (vr('v', B + 4, 4), B + 1))
        staged = self.oepi_reads[0] if len(self.oepi_reads) == 2 else []
        for n, (qb, ks) in enumerate((qb, ks) for qb in (1, 3, 0, 2) for ks in range(4)):
            a = vACC + 32 * ks + 4 * qb
            for h in (0, 2, 16, 18):
                e('v_pk_mul_f32 %s, %s, %s op_sel_hi:[1,0]' % (vr('v', a + h, 2), vr('v', a + h, 2), vr('v', vS + 2 * qb, 2)))
            self.put(self.pack(a + 16, a, a + 16))
            if n == 0:
                continue
            if n == 1:
                e('v_or3_b32 v%d, v%d, v%d, v%d\nv_or_b32 v%d, v%d, v%d' % (B, B + 4, B + 5, B + 6, B, B, B + 7))
                e('v_cmp_ne_u32 vcc, 0, v%d\ns_cbranch_vccnz L_slow\nL_ofine:' % B)
                e('ds_write_b128 v%d, %s offset:16384' % (vP, vr('v', vACC + 20, 4)))
                self.put(self.waddr(vTR, vT, 's%d' % sRING))
                e('s_sub_u32 s%d, s%d, s%d' % (sT0, sT0, sRING))
                self.put(['v_add_u32 v%d, s%d, v%d' % (vT + b, sT0, vTR + b) for b in range(4)])
            e('ds_write_b128 v%d, %s offset:%d' % (vP, vr('v', a + 16, 4), (16 * qb + ks) * 1024))
            self.put(staged[4 * (n - 2):4 * (n - 1)] if n >= 2 else [])
            for pre, d, post in jobs[n - 1:n]:
                self.put(pre + [d] + post)
        self.put(self.oepi_reads[-1] if self.oepi_reads else [])
        self.stamp('O epilogue')
        self.slow_path()

    def slow_path(self):
        main, self.s = self.s, Stream()
        e = self.s
        M = vT
        e('L_slow:\ns_cmp_lg_u32 s%d, 0\ns_cbranch_scc1 L_ofine\ns_mov_b32 s%d, 1' % (sPASS, sPASS))
        e('s_waitcnt vmcnt(0) lgkmcnt(0)')
        for ps in range(2):
            e('s_mov_b32 s%d, 0\ns_mov_b32 s%d, 0\ns_mov_b32 s%d, 64' % (sKO, sVO, sCNT))
            if ps == 0:
                for qb in range(4):
                    e('v_mov_b32 v%d, 0xff800000' % (M + qb))
            else:
                for qb in range(4):
                    for op in ('v_permlane32_swap_b32', 'v_permlane16_swap_b32'):
                        e('v_mov_b32 v%d, v%d\n%s v%d, v%d\nv_max_f32 v%d, v%d, v%d' % (vS, M + qb, op, vS, M + qb, M + qb, M + qb, vS))
                e('v_lshrrev_b32 v%d, 4, v%d\nv_xor_b32 v%d, v%d, v%d\nv_bfe_i32 v%d, v%d, 1, 1' % (vS, vL, vS, vS, vL, vS, vS))
                e('v_not_b32 v%d, v%d\nv_and_b32 v%d, 0x3f803f80, v%d' % (vS, vS, vS, vS))
                for r in range(4):
                    e('v_accvgpr_write_b32 a%d, v%d' % (aONES + r, vS))
                for r in range(128):
                    e('v_mov_b32 v%d, 0' % (vACC + r))
                for r in range(8):
                    e('v_accvgpr_write_b32 a%d, 0' % (aL + r))
            e('L_slow%d:\ns_barrier' % ps)
            self.emit_jobs(self.kv_dma('K', 2, 'k') + (self.kv_dma('V', 2, 'k') if ps else []))
            e('s_barrier', need=['k'])
            self.put([self.krd(2, f, aV + 32) for f in range(8)] + ([self.vrd(2, h) for h in range(16)] if ps else []))
            e('s_waitcnt lgkmcnt(0)')
            for qb in range(4):
                for kb in range(2):
                    for ks in range(4):
                        e(mfma(vr('v', vS + 4 * kb, 4), vr('a', aV + 32 + 16 * kb + 4 * ks, 4), vr('a', aQ + 16 * qb + 4 * ks, 4), '0' if ks == 0 else None))
                if ps == 0:
                    for r in range(0, 8, 2):
                        e('v_max3_f32 v%d, v%d, v%d, v%d' % (M + qb, M + qb, vS + r, vS + r + 1))
                    continue
                for r in range(8):
                    e('v_sub_f32 v%d, v%d, v%d' % (vS + r, vS + r, M + qb))
                for r in range(8):
                    e('v_exp_f32 v%d, v%d' % (vS + r, vS + r))
                for r in range(4):
                    e('v_cvt_pk_bf16_f32 v%d, v%d, v%d' % (vP + 4 * qb + r, vS + 2 * r, vS + 2 * r + 1))
                for db in range(8):
                    e(mfma(vr('v', vACC + 16 * db + 4 * qb, 4), vr('a', aV + 4 * db, 4), vr('v', vP + 4 * qb, 4)))
                if qb & 1:
                    e(self.rowsum(qb >> 1, aONES, vP + 4 * (qb - 1)))
            e('s_nop 7\ns_sub_u32 s%d, s%d, 1\ns_cmp_lg_u32 s%d, 0\ns_cbranch_scc1 L_slow%d' % (sCNT, sCNT, sCNT, ps))
        e('s_barrier\ns_branch L_oepi')
        e.insert_waits()
        e.pad_hazards()
        self.tail.append(e.text())
        self.s = main

    SEL = vT

    def reduce(self, acc, f, regs, ks, first=False):
        return [mfma(vr('v', acc + 4 * (2 * (k & 1) + g), 4), vr('v', self.SEL + 2 - 2 * g, 4), vr(f, regs + 4 * k, 4), '0' if (first and k < 2) else None)
                for k in ks for g in range(2)]

    def collect(self, acc, regs, base, once):
        e, L = self.s, 'L_c'
        NEW, N = sT0, sT1
        e('s_mov_b32 s%d, 0x80000\ns_mov_b32 s%d, 0\ns_waitcnt vmcnt(1)\ns_branch %s_got' % (sT3, sCNT, L))
        e('%s_wait:\ns_waitcnt vmcnt(0)\n%s_got:\nv_cmp_eq_u32 vcc, 1, v%d\ns_and_b32 s%d, vcc_lo, 0xff' % (L, L, vPRES, NEW))
        e('s_andn2_b32 s%d, s%d, s%d\ns_or_b32 s%d, s%d, s%d\ns_bcnt1_i32_b32 s%d, s%d' % (NEW, NEW, sDONE, sDONE, sDONE, NEW, N, NEW))
        for n in range(7):
            e('s_cmp_eq_u32 s%d, %d\ns_cbranch_scc1 %s_ld%d' % (N, n, L, 7 - n))
        for q in range(7):
            e('%s_ld%d:\ns_ff1_i32_b32 s%d, s%d\ns_bitset0_b32 s%d, s%d' % (L, q, sT2, NEW, NEW, sT2))
            e('s_lshl_b32 s%d, s%d, 11\ns_add_u32 s%d, s%d, s%d' % (sT2, sT2, sT2, sT2, base))
            for p in range(2):
                e('buffer_load_dwordx4 %s, v%d, %s, s%d offen offset:%d sc1' % (vr('a', regs + 8 * q + 4 * p, 4), vACT, srd(SWS), sT2, 1024 * p))
        e('%s_ld7:' % L)
        e.add(self.poll_load(SWS).ins)
        e('s_cmp_lg_u32 s%d, 0\ns_cbranch_scc1 %s_again\ns_mov_b32 s%d, 1' % (sCNT, L, sCNT))
        self.put(once)
        e('%s_again:' % L)
        for n in range(7):
            e('s_cmp_eq_u32 s%d, %d\ns_cbranch_scc1 %s_mm%d' % (N, n, L, 7 - n))
        for q in range(7):
            e('%s_mm%d:' % (L, q))
            self.put(self.reduce(acc, 'a', regs, (2 * q, 2 * q + 1)))
        e('s_cmp_lg_u32 s%d, 0xff\ns_cbranch_scc1 %s_wait\n%s_end:' % (sDONE, L, L))
        self.tail.append('%s_mm7:\n    s_sub_u32 s%d, s%d, 1\n    s_cbranch_scc0 %s_wait\n    s_branch %s_end' % (L, sT3, sT3, L, L))

    def collect2(self, h, done, acc, regs, base):
        e, L = self.s, 'L_c%d' % h
        NEW, N = sT0, sT1
        e('s_mov_b32 s%d, 0x80000\ns_branch %s_test' % (sT3, L))
        e('%s_wait:\ns_waitcnt vmcnt(0)\nv_cmp_eq_u32 vcc, 1, v%d\ns_bfe_u32 s%d, vcc_lo, 0x%x' % (L, vPRES, NEW, 0x80000 + 8 * h))
        e('s_andn2_b32 s%d, s%d, s%d\ns_cbranch_scc0 %s_poll' % (NEW, NEW, done, L))
        e('s_or_b32 s%d, s%d, s%d\ns_bcnt1_i32_b32 s%d, s%d' % (done, done, NEW, N, NEW))
        for n in range(1, 7):
            e('s_cmp_eq_u32 s%d, %d\ns_cbranch_scc1 %s_ld%d' % (N, n, L, 7 - n))
        for q in range(7):
            e('%s_ld%d:\ns_ff1_i32_b32 s%d, s%d\ns_bitset0_b32 s%d, s%d' % (L, q, sT2, NEW, NEW, sT2))
            e('s_lshl_b32 s%d, s%d, 11\ns_add_u32 s%d, s%d, s%d' % (sT2, sT2, sT2, sT2, base))
            e('buffer_load_dwordx4 %s, v%d, %s, s%d offen offset:%d sc1' % (vr('a', regs + 8 * q + 4 * h, 4), vACT, srd(SWS), sT2, 1024 * h))
        e.add(self.poll_load(SWS).ins)
        for n in range(1, 7):
            e('s_cmp_eq_u32 s%d, %d\ns_cbranch_scc1 %s_mm%d' % (N, n, L, 7 - n))
        for q in range(7):
            e('%s_mm%d:' % (L, q))
            self.put(self.reduce(acc, 'a', regs, (2 * q + h,)))
        e('%s_test:\ns_cmp_lg_u32 s%d, 0xff\ns_cbranch_scc1 %s_wait\n%s_end:' % (L, done, L, L))
        self.tail.append('%s_poll:\n    %s\n    s_sub_u32 s%d, s%d, 1\n    s_cbranch_scc0 %s_wait\n    s_branch %s_end' % (L, self.poll_load(SWS).ins.text, sT3, sT3, L, L))

    def p6_final(self):
        e = self.s
        P = lambda b: vr('v', b, 2)
        e('@sec P6')
        NE, held = self.opt('p6_early', 6), self.held()
        od = self.pair_order(NE)
        groups = [g + (held[G],) if G in held else g for G, g in enumerate(self.pair_groups('wo', od))]
        NQ = self.opt('p6_quarter', 4)
        if NQ:
            src = lambda G: held[G] if G in held else [[(2 * G + kk, b, groups[G][0][kk]) for kk in range(2)] for b in range(4)]
            seq = sorted(range(16 - NQ, 16), key=lambda G: G not in held)
            groups[16 - NQ:] = [([], groups[G][1], groups[G][2][2 * pp:2 * pp + 2], False, src(G)[2 * pp:2 * pp + 2])
                                for pp in range(2) for G in (seq[::-1] if pp else seq)]
        p = self.gemm(0, groups, lambda k, tb: (vACT, (tb * 16 + k) * 1024), [self.whalf('wo', od[h], h) for h in range(6, 32 - 2 * len(held))],
                      self.whalf('wo', od[4], 4) + self.whalf('wo', od[5], 5), lambda: self.s('s_barrier', need=['*lg']), WF=vS, AF=aV, wf='v')
        pk, st = [], []
        for h in range(2):
            for pp in range(2):
                for tb in range(3, -1, -1):
                    a = vACC + 64 * h + 32 * pp + 4 * tb
                    pk.append(self.pack(a + 16, a, a + 16))
                    st.append(self.part_store(a + 16, SP_OFF + 65536 * pp + 16384 * tb + 1024 * h, 'sst%d' % h, vo=vDB + pp))
        q, pos = p.dma_end + self.opt('a_start', 16), []
        ready = [32 * (16 - NE) + 2] * 8 + [512 - 16 * NQ + 2] * (4 if NQ else 0)
        for k, r in enumerate(ready):
            q = max(q, r + 6)
            if q > 508:
                break
            while len(p.g[q]['ds']) > 1 or p.g[q]['vm']:
                q += 1
            p.jobs(self.flat([st[k]]), [q], lo=q - 2)
            pos.append(q)
            q += self.opt('a_step', 8)
        AB = self.opt('ab', 0)
        if AB:
            free = lambda q: [x for x in range(q, 512) if not p.g[x]['vm'] and len(p.g[x]['ds']) < 2][0]
            p.jobs(self.flat([self.part_flag(8, ['sst0'])]), [free(max(self.opt('flag_a', 440), pos[7] + 40))])
            p.jobs(self.flat([self.poll_load(SWS)]), [free(self.opt('poll_a', 506))])
        for k, q in enumerate(pos):
            p.g[q - 1]['va'] += p.fill(pk[k], ready[k], q)
        pk, st = pk[len(pos):], st[len(pos):]
        SEL, ZZ, XF, SS, E = self.SEL, vS, vP, vACC, vACC + 32
        t = vKA
        f = ('v_lshrrev_b32 v%d, 4, v%d\nv_bfe_u32 v%d, v%d, 2, 2\nv_and_b32 v%d, 1, v%d\nv_lshlrev_b32 v%d, 4, v%d\n' % (t + 1, vL, t, vL, t + 2, vL, t + 2, t + 2) +
             'v_mov_b32 v%d, 0x3f80\nv_lshlrev_b32 v%d, v%d, v%d\n' % (t + 3, t + 2, t + 2, t + 3) +
             'v_cmp_eq_u32 vcc, v%d, v%d\nv_mov_b32 v%d, 0\nv_mov_b32 v%d, 0\n' % (t, t + 1, SEL, SEL + 1) +
             'v_cndmask_b32 v%d, 0, v%d, vcc\nv_and_b32 v%d, 2, v%d\nv_cmp_eq_u32 vcc, 0, v%d\n' % (t + 2, t + 2, t, vL, t) +
             'v_mov_b32 v%d, 0\nv_mov_b32 v%d, 0\nv_cndmask_b32 v%d, 0, v%d, vcc\n' % (SEL + 4, SEL + 5, SEL + 2, t + 2) +
             'v_sub_u32 v%d, v%d, v%d\n' % (SEL + 3, t + 2, SEL + 2) +
             'v_lshl_add_u32 v%d, v%d, 3, v%d' % (vW2, t + 1, vW1)).split('\n')
        p.scalars(['s_lshl_b32 s%d, s%d, 1' % (sVO, sW), 's_sub_u32 s%d, s%d, s%d' % (sVO, sJ, sVO), 's_lshr_b32 s%d, s%d, 1' % (sCNT, sJ),
                   's_mul_i32 s%d, s%d, %d' % (sCNT, sCNT, WWAVE), 's_add_u32 s%d, s%d, s%d' % (sCNT, sCNT, sW2K), 's_add_u32 s%d, s%d, %d' % (sCNT, sCNT, WREG)], 0, 16)
        f += ['v_mov_b32 v%d, 0x%x' % (t, OOB), 'v_mov_b32 v%d, s%d' % (t + 1, sVO), 'v_cmp_eq_u32 vcc, 0, v%d' % (t + 1),
              'v_add_u32 v%d, s%d, v%d' % (vDB + 2, sRING, vACT), 'v_add_u32 v%d, s%d, v%d' % (vDB + 3, sCNT, vACT),
              'v_cndmask_b32 v%d, v%d, v%d, vcc' % (vDB, vACT, t), 'v_cmp_eq_u32 vcc, 1, v%d' % (t + 1),
              'v_and_b32 v%d, 8, v%d' % (t + 2, vL), 'v_lshl_add_u32 v%d, v%d, 2, v%d' % (vPOFF, t + 2, vPOFF),
              'v_add_u32 v%d, 32, v%d' % (vPOFF, vPOFF), 'v_cndmask_b32 v%d, v%d, v%d, vcc' % (vDB + 1, vACT, t)]
        assert not p.fill(f, 0, 48)
        red = self.reduce(XF, 'a', aRES, (0, 1), True) + self.reduce(ZZ, 'a', aX1, (0, 1), True) + self.reduce(ZZ, 'v', vX, range(16))
        gate = ['s_mov_b32 s%d, %s' % (sC0 + k, f2u(-math.log2(math.e))) for k in range(2)]
        gate += ['v_pk_mul_f32 %s, %s, s[%d:%d]' % (P(E + r), P(ZZ + r), sC0, sC0 + 1) for r in range(0, 16, 2)]
        gate += ['v_exp_f32 v%d, v%d' % (E + r, E + r) for r in range(16)]
        gate += ['v_pk_add_f32 %s, %s, 1.0 op_sel_hi:[1,0]' % (P(E + r), P(E + r)) for r in range(0, 16, 2)]
        gate += ['v_rcp_f32 v%d, v%d' % (E + r, E + r) for r in range(16)]
        gate += ['v_pk_mul_f32 %s, %s, %s' % (P(ZZ + r), P(ZZ + r), P(E + r)) for r in range(0, 16, 2)]
        p.scalars(['s_lshl_b32 s%d, 1, s%d' % (sDONE, sJ), 's_add_u32 s%d, s%d, 0x%x' % (sKO, sPI, SP_OFF)], 16, 24)
        if self.opt('p6stamp', 0):
            for q in (127, 255, 383, p.dma_end - 2, 479):
                p.g[q]['end'] += self.stamp_items('q%d' % q)
        p.emit(self)
        self.stamp('P6')
        e('@sec s epilogue')
        self.sprinkle(sum(pk, []), st, start=4, every=4)
        self.stamp('issued')
        self.emit_jobs([self.poll_load(SWS)] * (not AB))
        for pp in range(2):
            e('s_cmp_lg_u32 s%d, %d\ns_cbranch_scc1 L_other%d' % (sVO, pp, pp))
            for h in range(2):
                for tb in range(4):
                    e('ds_write_b128 v%d, %s offset:%d' % (vDB + 2, vr('v', vACC + 64 * h + 32 * pp + 16 + 4 * tb, 4), 2048 * tb + 1024 * h))
            e('L_other%d:' % pp)
        e('s_waitcnt lgkmcnt(0)\ns_barrier')
        for h in range(2):
            e('ds_read_b128 %s, v%d offset:%d' % (vr('a', 4 * h, 4), vDB + 3, 1024 * h))
        if AB:
            DA, M = sCNT, vACC + 64
            e('v_cmp_eq_u32 vcc, 1, v%d\ns_and_b32 s%d, vcc_lo, 0xff' % (vPRES, sT2))
            e('s_orn2_b32 s%d, s%d, s%d\ns_or_b32 s%d, s%d, s%d' % (sT0, sDONE, sT2, DA, sDONE, sT2))
            jobs = self.gather('a', 64, sPI, SP_OFF, 'sc1')[::2]
            for q, jb in enumerate(jobs):
                jb.ins = Ins(jb.ins.text.replace(' v%d,' % vACT, ' v%d,' % (M + q)))
                jb.pre += ['v_bfe_u32 v%d, s%d, %d, 1' % (M + q, sT0, q), 'v_lshl_or_b32 v%d, v%d, 30, v%d' % (M + q, M + q, vACT)]
            if AB == 2:
                e('s_bfe_u32 s%d, vcc_lo, 0x80008\ns_orn2_b32 s%d, s%d, s%d\ns_or_b32 s%d, s%d, s%d' % (sT2, sT3, sDONE, sT2, sDONE, sDONE, sT2))
                g = self.gather('a', 64, sPI, SP_OFF, 'sc1')
                for q, jb in enumerate(g[1::2]):
                    jb.ins = Ins(jb.ins.text.replace(' v%d,' % vACT, ' v%d,' % (M + 8 + q)))
                    jb.pre = g[2 * q].pre + ['v_bfe_u32 v%d, s%d, %d, 1' % (M + 8 + q, sT3, q), 'v_lshl_or_b32 v%d, v%d, 30, v%d' % (M + 8 + q, M + 8 + q, vACT)]
                    jobs.append(jb)
            nb4 = self.opt('a_before', 4)
            self.emit_jobs(jobs[:nb4] + [self.part_flag(16, ['sst1'])] + jobs[nb4:])
            self.stamp('acked')
            work = self.reduce(SS, 'a', 0, (0, 1), True) + red + gate
            cut = self.opt('poll_b', 44)
            self.put(work[:cut])
            self.emit_jobs([self.poll_load(SWS)])
            self.put(work[cut:] + self.reduce(SS, 'a', 64, list(range(0, 16, 2)) + list(range(1, 16, 2)) * (AB == 2)))
            self.collect2(0, DA, SS, 64, sKO)
            self.collect2(1, sDONE, SS, 64, sKO)
        else:
            work, nb4 = red + gate, self.opt('before_flag', 24)
            self.put(self.reduce(SS, 'a', 0, (0, 1), True) + work[:nb4])
            self.emit_jobs([self.part_flag(8, ['sst1'])])
            self.stamp('acked')
            self.collect(SS, 64, sKO, work[nb4:])
        self.stamp('collected')
        for nb in range(4):
            for r in range(4 * nb, 4 * nb + 4, 2):
                e('v_pk_fma_f32 %s, %s, %s, %s' % (P(XF + r), P(SS + r), P(ZZ + r), P(XF + r)))
            for k in range(2 * nb, 2 * nb + 2):
                e('v_cvt_pk_bf16_f32 v%d, v%d, v%d' % (E + k, XF + 2 * k, XF + 2 * k + 1))
            om = self.opt('outmode', 2)
            if om < 2:
                e('buffer_store_dwordx2 %s, v%d, %s, s%d offen offset:%d%s' % (P(E + 2 * nb), vW1, srd(SOUT), sXO, 512 * (nb >> 1) + 32 * (nb & 1), ' sc1' * om))
            elif nb & 1:
                t = E + 2 * nb - 2
                for op in ('v_permlane32_swap_b32', 'v_permlane16_swap_b32'):
                    e('%s v%d, v%d\n%s v%d, v%d' % (op, t, t + 2, op, t + 1, t + 3))
                e('buffer_store_dwordx4 %s, v%d, %s, s%d offen offset:%d sc1' % (vr('v', t, 4), vW2, srd(SOUT), sXO, 512 * (nb >> 1)))
        if 'diag' in self.o:
            self.stamp('end')
            if self.o['diag'].startswith('xcc'):
                e('v_mov_b32 v%d, 4\nbuffer_load_dword v%d, v%d, %s, 0 offen sc1\ns_waitcnt vmcnt(0)' % (vT, vT + 1, vT, srd(SDBG)))
                e('v_readfirstlane_b32 s100, v%d\ns_nop 3\ns_bcnt1_i32_b32 s100, s100\ns_mul_i32 s100, s100, 1000\ns_mov_b32 s98, 1000' % (vT + 1))
            e('s_sub_u32 s100, s100, s98\ns_mul_i32 s100, s100, %s\ns_min_u32 s100, s100, 100000' % self.o['diag'].split(':')[2])
            e('s_memrealtime s[98:99]\ns_waitcnt lgkmcnt(0)\ns_add_u32 s100, s100, s98')
            e('L_diag:\ns_memrealtime s[98:99]\ns_waitcnt lgkmcnt(0)\ns_sub_u32 s98, s98, s100\ns_cmp_lt_i32 s98, 0\ns_cbranch_scc1 L_diag')
        if self.prof:
            e('s_waitcnt vmcnt(0)')
            self.stamp('end')
            e('v_accvgpr_read_b32 v%d, a%d\nv_accvgpr_read_b32 v%d, a%d' % (vT, aPROF, vT + 1, aPROF + 1))
            for k in range(self.nstamp * (self.prof == 2)):
                e('v_writelane_b32 v%d, s%d, %d\nv_writelane_b32 v%d, s%d, %d' % (vT, LITE[k], k, vT + 1, LITE[k], k))
            e('s_lshl_b32 s%d, s2, 11\ns_lshl_b32 s%d, s%d, 9\ns_add_u32 s%d, s%d, s%d' % (sT0, sT1, sW, sT0, sT0, sT1))
            e('s_add_u32 s%d, s%d, 0x%x\nv_lshlrev_b32 v%d, 3, v%d' % (sT0, sT0, PROF_OFF, vT + 2, vL))
            e('buffer_store_dwordx2 %s, v%d, %s, s%d offen' % (vr('v', vT, 2), vT + 2, srd(SWS), sT0))

    def build(self, verbose=False):
        for phase in (self.prologue, self.p0, self.p2, self.q_p1, self.attention1, self.mlp, self.attention2, self.p6_final):
            phase()
        s = self.s
        for i, x in enumerate(s.l):
            if x.op.startswith('global_'):
                w = [y.text for y in s.l[:i] if y.wr & x.rd][-3:]
                assert w == self.code_addr()[1:], w
        s.insert_waits()
        pads = s.pad_hazards()
        est = s.estimate()
        s.fold()
        s.l += [Ins('L_end:'), Ins('s_endpgm'), Ins('@mark main_end')] + self.aside
        fixes = s.align(self.opt('touch', 1))
        if self.opt('touch', 1):
            cut, mk = self.opt('touch_cut', 15), s.marks
            assert mk['touch1'] <= cut
            lab = lambda k, r: 'L_pg%d' % k if k is not None else 'L_touched%d' % r
            head = {}
            for k in range(cut):
                s.pages[k].text = 's_cbranch_execz ' + lab(k + 4 if k + 4 < cut else None, 0)
            for w in range(4):
                head['L_touch0_8_%d' % w] = lab(w, 0)
            common = list(range(mk['end8'] + 1, mk['main_end'] + 1))
            chain = [common[3 - w::4] for w in range(4)]
            for c in chain:
                for k, nx in zip(c, c[1:] + [None]):
                    s.pages[k].text = 's_cbranch_execz ' + lab(nx, 1)
            for cls in [8] + [c for c, _ in self.classes()]:
                own = list(range(cut if cls == 8 else mk['mlp%d' % cls] + 1, mk['end%d' % cls] + 1))
                assert len(own) <= 4
                for w in range(4):
                    if w < len(own):
                        s.pages[own[w]].text = 's_cbranch_execz ' + lab(chain[w][0], 1)
                    head['L_touch1_%d_%d' % (cls, w)] = lab(own[w] if w < len(own) else chain[w][0], 1)
            for x in s.l:
                if x.kind == 'ctl' and x.text.split()[-1] in head:
                    x.text = x.text.split()[0] + ' ' + head[x.text.split()[-1]]
        if verbose:
            print('alignment fixes:', fixes, 'pages:', len(s.pages), s.marks)
        if verbose:
            print('hazard pads:', pads)
            for name, cyc, nm in est:
                print('  %-18s est %6d cycles, %5d mfma (%6d)' % (name, cyc, nm, nm * 16))
            print('  total', sum(c for _, c, _ in est))
        ref = open('cdna_kernels/%s.s.ref' % NAME).read().split('\n')
        head = [l for l in ref if l.startswith(';') and '@launch' not in l]
        o = head + ['; @launch grid=(256,1,1) block=(256,1,1) lds=163840',
                    '.amdgcn_target "amdgcn-amd-amdhsa--gfx950"', '.text', '.globl %s_kernel' % NAME, '.p2align 8',
                    '.type %s_kernel,@function' % NAME, '%s_kernel:' % NAME]
        o.append(DOC)
        near = [x for x in self.tail if x.startswith(('L_spin', 'L_c'))]
        self.tail = [x for x in self.tail if x not in near]
        o.append(s.text().replace('s_branch L_go\n', 's_branch L_go\n; ---- out-of-line polling loops\n' + '\n'.join(near) + '\n'))
        o += self.tail
        o.append('L_code_end:\n    s_endpgm')
        o.append('''.section .rodata,"a"
.p2align 6
.amdhsa_kernel %s_kernel
  .amdhsa_next_free_vgpr 512
  .amdhsa_next_free_sgpr 102
  .amdhsa_accum_offset 256
  .amdhsa_group_segment_fixed_size 0
  .amdhsa_kernarg_size 104
  .amdhsa_user_sgpr_count 2
  .amdhsa_user_sgpr_kernarg_segment_ptr 1
  .amdhsa_system_sgpr_workgroup_id_x 1
  .amdhsa_float_denorm_mode_32 3
.end_amdhsa_kernel''' % NAME)
        return ('\n'.join(o) + '\n').replace('\n    ', '\n\t')


if __name__ == '__main__':
    out = sys.argv[1] if len(sys.argv) > 1 else 'k.s'
    opts = dict(a.split('=') for a in sys.argv[2:])
    SP_OFF, YP_OFF = int(opts.get('sp', hex(SP_OFF)), 0), int(opts.get('yp', hex(YP_OFF)), 0)
    open(out, 'w').write(Gen(False, opts).build(True))
    open(out.replace('.s', '_lite.s'), 'w').write(Gen(2, opts).build())
    if 'prof' in opts:
        open(out.replace('.s', '_prof.s'), 'w').write(Gen(True, opts).build())
```
